```python
import torch

def _softmax(x, axis=-1):
    return torch.softmax(x, dim=axis)
def _gelu(x):
    return torch.nn.functional.gelu(x, approximate="tanh")
def _silu(x):
    return torch.nn.functional.silu(x)
def _sigmoid(x):
    return torch.sigmoid(x)
def _layernorm(x, axis=-1, eps=1e-5):
    m = x.mean(dim=axis, keepdim=True)
    v = x.var(dim=axis, keepdim=True, unbiased=False)
    return (x - m) / torch.sqrt(v + eps)
def _scatter_add(tgt, idx, src, axis=0):
    return tgt.clone().index_add_(axis, idx, src)
def _segment_sum(src, seg, n):
    out = torch.zeros((n,) + src.shape[1:], dtype=src.dtype)
    return out.index_add_(0, seg, src)
def _pad(x, pw):
    flat = tuple(v for pair in reversed(pw) for v in pair)
    return torch.nn.functional.pad(x, flat)

kernel_name = 'standalone__mixer_token_mlp__prompt'

def setup_inputs():

    _w = (lambda a: (lambda t: t.to(torch.bfloat16) if t.is_floating_point() else t)(torch.as_tensor(a)))
    B, S, D, F = 1, 2048, 640, 1728
    return {
        "x": _w((lambda *s: torch.randn(*s, dtype=torch.bfloat16) * 0.05)(B, S, D)),
        "w1": _w((lambda *s: torch.randn(*s, dtype=torch.bfloat16) * 0.2)(S, F) * (S ** -0.5)),
        "b1": _w((lambda *s: torch.randn(*s, dtype=torch.bfloat16) * 1.6)(F) * 0.02),
        "w2": _w((lambda *s: torch.randn(*s, dtype=torch.bfloat16) * 0.05)(F, S) * (F ** -0.5)),
        "b2": _w((lambda *s: torch.randn(*s, dtype=torch.bfloat16) * 0.1)(S) * 0.02),
    }

def reference(x, w1, b1, w2, b2):
    B, S, D = x.shape
    h = _layernorm(x, axis=-1)
    u = torch.einsum("bsd,sf->bdf", h, w1) + b1
    u = _gelu(u)
    y = torch.einsum("bdf,fs->bds", u, w2) + b2
    return (lambda x, *d: x.permute(*d))(y, 0, 2, 1)
```

```python
import sys, argparse

S, D, F = 2048, 640, 1728
KN = "standalone__mixer_token_mlp__prompt_kernel"

WS_H = 0
H_BYTES = 64 * 40 * 1024
WS_G = 0x300000
G_BYTES = 54 * 40 * 1024
WS_FLAG = 0x600000
FLAG_H = 0
FLAG_G = 0x10000
FLAG_BYTES = 0x20000
WS_PROF = 0x700000

LDS_BYTES = 163840
LN_BASE = 131072
LN_ROW = 1344

sKA = 0; sWG = 2
sX, sW1, sW2, sH, sG, sO, sF, sB1, sB2, sD = 20, 24, 28, 32, 36, 40, 44, 48, 52, 56
sWAVE, sXCD, sJ, sFT, sDT1, sST, sDT2, sNONCE = 60, 61, 62, 63, 64, 65, 66, 67
sT0, sT1, sT2, sT3, sT4, sT5 = 68, 69, 70, 71, 72, 73
sROT1, sROT2, sSTEP, sOFF = 74, 75, 76, 77
sM0B = 78
sSPIN = 79
sP = 80
sPROF = 84

vTID, vLANE = 0, 1
vTR = 2
vA = 6; vA2 = 7
vDMA = 8
vB1 = 10
vB2 = 14
vT = 15
vACC = 16
vRING = 96

def srd(n): return f"s[{n}:{n+3}]"
def vr(n, c=1): return f"v{n}" if c == 1 else f"v[{n}:{n+c-1}]"
def ar(n, c=1): return f"a{n}" if c == 1 else f"a[{n}:{n+c-1}]"

class Asm:
    def __init__(self):
        self.L = []
        self.vm = []
        self.uid = 0
    def __call__(self, s): self.L.append("    " + s)
    def label(self, s): self.L.append(s + ":")
    def raw(self, s): self.L.append(s)
    def c(self, s): self.L.append("    ; " + s)
    def vmem(self, s, tag):
        self(s); self.vm.append(tag)
    def wait_vm(self, tag):
        hits = [i for i, t in enumerate(self.vm) if t == tag]
        if not hits: return
        idx = hits[-1]
        n = len(self.vm) - 1 - idx
        self(f"s_waitcnt vmcnt({min(n, 63)})")
        self.vm = self.vm[idx + 1:]
    def wait_vm0(self):
        self("s_waitcnt vmcnt(0)"); self.vm = []
    def newlabel(self, p):
        self.uid += 1
        return f"L_{p}_{self.uid}"

def acc1(mt, nt): return vACC + (mt * 5 + nt) * 4
def acc2(mt, nt): return vACC + (mt * 4 + nt) * 4
def ring(slot, t): return vRING + slot * 20 + t * 4
def wfrag(step, t): return step * 16 + t * 4

def stamp(a, opt, idx):
    if opt.prof:
        a(f"s_mem{'time' if opt.prof == 2 else 'realtime'} s[{sP}:{sP+1}]")
        a("s_waitcnt lgkmcnt(0)")
        a(f"s_mov_b32 s{sPROF+idx}, s{sP}")

def make_srd(a, n, lo, size, add=0):
    if add:
        a(f"s_add_u32 s{n}, s{lo}, {add}")
        a(f"s_addc_u32 s{n+1}, s{lo+1}, 0")
        a(f"s_and_b32 s{n+1}, s{n+1}, 0xffff")
    else:
        a(f"s_mov_b32 s{n}, s{lo}")
        a(f"s_and_b32 s{n+1}, s{lo+1}, 0xffff")
    a(f"s_mov_b32 s{n+2}, {size}")
    a(f"s_mov_b32 s{n+3}, 0x20000")

def get_nonce(a, opt):
    lp = a.newlabel("nonce"); dn = a.newlabel("nonced")
    a(f"s_mov_b32 s{sSPIN}, 0")
    a(f"v_mov_b32 v{vT}, 0")
    a.label(lp)
    a(f"buffer_load_dword v{vT-6}, v{vT}, {srd(sD)}, 0 offen sc1")
    a("s_waitcnt vmcnt(0)")
    a(f"v_readfirstlane_b32 s{sNONCE}, v{vT-6}")
    a(f"s_add_u32 s{sSPIN}, s{sSPIN}, 1")
    a(f"s_cmp_lg_u32 s{sNONCE}, 0")
    a(f"s_cbranch_scc1 {dn}")
    a(f"s_cmp_lt_u32 s{sSPIN}, {opt.spin}")
    a(f"s_cbranch_scc1 {lp}")
    a.label(dn)
    a.vm = []

def dma_addr(a, stride, s_tile):
    a(f"v_lshrrev_b32 v{vT}, 3, v{vLANE}")
    a(f"v_lshrrev_b32 v{vDMA+1}, 1, v{vT}")
    a(f"v_lshlrev_b32 v{vDMA+1}, 1, v{vDMA+1}")
    a(f"v_and_b32 v{vDMA}, 7, v{vLANE}")
    a(f"v_xor_b32 v{vDMA}, v{vDMA}, v{vDMA+1}")
    a(f"v_lshlrev_b32 v{vDMA}, 4, v{vDMA}")
    a(f"s_mov_b32 s{sT0}, {stride}")
    a(f"v_mul_lo_u32 v{vT}, v{vT}, s{sT0}")
    a(f"v_add_u32 v{vDMA}, v{vDMA}, v{vT}")
    a(f"s_lshl_b32 s{sT0}, s{s_tile}, 7")
    a(f"v_add_u32 v{vDMA}, s{sT0}, v{vDMA}")

def dma_step(a, srdn, stride, s_rowoff, s_ldsbase, slot, tag):
    for blk in range(4):
        a(f"s_add_u32 m0, s{s_ldsbase}, {slot*4096 + blk*1024}")
        a(f"s_add_u32 s{sT5}, s{s_rowoff}, {blk*8*stride}")
        a.vmem(f"buffer_load_dwordx4 v{vDMA}, {srd(srdn)}, s{sT5} offen lds", tag)

def tr_step(a, slot, step):
    for t in range(4):
        w = wfrag(step, t)
        a(f"ds_read_b64_tr_b16 {ar(w,2)}, v{vTR+t} offset:{slot*4096}")
        a(f"ds_read_b64_tr_b16 {ar(w+2,2)}, v{vTR+t} offset:{slot*4096+2048}")

def step_rowoff(a, dst, s_base, s_rot, i, nsteps, bytes_per_step):
    a(f"s_add_u32 s{sT4}, s{s_rot}, {i}")
    a(f"s_cmp_ge_u32 s{sT4}, {nsteps}")
    a(f"s_cselect_b32 s{dst}, {nsteps}, 0")
    a(f"s_sub_u32 s{sT4}, s{sT4}, s{dst}")
    a(f"s_mul_i32 s{sT4}, s{sT4}, {bytes_per_step}")
    a(f"s_add_u32 s{dst}, s{sT4}, s{s_base}")

def poll(a, opt, vaddr, nd, lanes):
    lp = a.newlabel("poll"); dn = a.newlabel("polled")
    vP = ring(7, 0)
    a(f"s_mov_b32 s{sSPIN}, 0")
    a.label(lp)
    ld = {1: "dword", 2: "dwordx2"}[nd]
    a(f"buffer_load_{ld} {vr(vP, nd)}, v{vaddr}, {srd(sF)}, 0 offen sc1")
    a("s_waitcnt vmcnt(0)")
    a(f"v_cmp_ne_u32 vcc, s{sNONCE}, v{vP}")
    if nd == 2:
        a(f"v_cmp_ne_u32 s[{sP}:{sP+1}], s{sNONCE}, v{vP+1}")
        a(f"s_or_b64 vcc, vcc, s[{sP}:{sP+1}]")
    if lanes is not None:
        a(f"s_and_b64 vcc, vcc, s[{lanes}:{lanes+1}]")
    a(f"s_add_u32 s{sSPIN}, s{sSPIN}, 1")
    a("s_cmp_eq_u64 vcc, 0")
    a(f"s_cbranch_scc1 {dn}")
    if opt.sleep: a(f"s_sleep {opt.sleep}")
    a(f"s_cmp_lt_u32 s{sSPIN}, {opt.spin}")
    a(f"s_cbranch_scc1 {lp}")
    a.label(dn)
    a.vm = []

def flag_store(a, s_index_bytes):
    a(f"v_mov_b32 v{vT}, s{s_index_bytes}")
    a(f"v_mov_b32 v{vT-6}, s{sNONCE}")
    a(f"s_mov_b64 s[{sP}:{sP+1}], exec")
    a("s_mov_b64 exec, 1")
    a.vmem(f"buffer_store_dword v{vT-6}, v{vT}, {srd(sF)}, 0 offen sc1", "flag")
    a(f"s_mov_b64 exec, s[{sP}:{sP+1}]")

def gelu_pairs(a, regs, tmp):
    n = len(regs)
    for i, r in enumerate(regs):
        t = tmp + 2 * i
        a(f"v_pk_mul_f32 {vr(t,2)}, {vr(r,2)}, {vr(r,2)}")
    for i, r in enumerate(regs):
        t = tmp + 2 * i
        a(f"v_pk_fma_f32 {vr(t,2)}, {vr(t,2)}, s[100:101], v[250:251]")
    for i, r in enumerate(regs):
        t = tmp + 2 * i
        a(f"v_pk_mul_f32 {vr(t,2)}, {vr(t,2)}, {vr(r,2)}")
    for i, r in enumerate(regs):
        t = tmp + 2 * i
        a(f"v_exp_f32 v{t}, v{t}")
        a(f"v_exp_f32 v{t+1}, v{t+1}")
    for i, r in enumerate(regs):
        t = tmp + 2 * i
        a(f"v_pk_add_f32 {vr(t,2)}, {vr(t,2)}, 1.0 op_sel_hi:[1,0]")
    for i, r in enumerate(regs):
        t = tmp + 2 * i
        a(f"v_rcp_f32 v{t}, v{t}")
        a(f"v_rcp_f32 v{t+1}, v{t+1}")
    a("s_nop 0")
    for i, r in enumerate(regs):
        t = tmp + 2 * i
        a(f"v_pk_mul_f32 {vr(r,2)}, {vr(r,2)}, {vr(t,2)}")

def gen(opt):
    a = Asm()
    a.raw(f"; @launch grid=(256,1,1) block=(256,1,1) lds={LDS_BYTES}")
    a.raw('.amdgcn_target "amdgcn-amd-amdhsa--gfx950"')
    a.raw(".text")
    a.raw(f".globl {KN}")
    a.raw(".p2align 8")
    a.raw(f".type {KN},@function")
    a.label(KN)
    a(f"s_cmp_ge_u32 s{sWG}, 256")
    a("s_cbranch_scc1 L_done")
    a("s_load_dwordx16 s[4:19], s[0:1], 0")
    if opt.prof:
        a(f"s_mem{'time' if opt.prof == 2 else 'realtime'} s[{sP}:{sP+1}]")
    a(f"v_lshrrev_b32 v{vT}, 6, v{vTID}")
    a(f"v_and_b32 v{vLANE}, 63, v{vTID}")
    a(f"v_readfirstlane_b32 s{sWAVE}, v{vT}")
    a(f"s_and_b32 s{sXCD}, s{sWG}, 7")
    a(f"s_lshr_b32 s{sJ}, s{sWG}, 3")
    a(f"s_mul_i32 s{sT0}, s{sXCD}, 27")
    a(f"s_add_u32 s{sT0}, s{sT0}, s{sJ}")
    a(f"s_lshr_b32 s{sFT}, s{sT0}, 3")
    a(f"s_and_b32 s{sDT1}, s{sT0}, 7")
    a(f"s_lshr_b32 s{sT0}, s{sJ}, 3")
    a(f"s_lshl_b32 s{sST}, s{sXCD}, 2")
    a(f"s_add_u32 s{sST}, s{sST}, s{sT0}")
    a(f"s_and_b32 s{sDT2}, s{sJ}, 7")
    if opt.rot:
        a(f"s_lshl_b32 s{sROT1}, s{sDT1}, 1")
        a(f"s_and_b32 s{sT0}, s{sFT}, 3")
        a(f"s_lshl_b32 s{sT0}, s{sT0}, 2")
        a(f"s_add_u32 s{sROT1}, s{sROT1}, s{sT0}")
        a(f"s_and_b32 s{sROT1}, s{sROT1}, 15")
        a(f"s_lshl_b32 s{sROT2}, s{sDT2}, 1")
        a(f"s_and_b32 s{sT0}, s{sST}, 3")
        a(f"s_mul_i32 s{sT0}, s{sT0}, 3")
        a(f"s_add_u32 s{sROT2}, s{sROT2}, s{sT0}")
        a(f"s_cmp_ge_u32 s{sROT2}, 14")
        a(f"s_cselect_b32 s{sT0}, 14, 0")
        a(f"s_sub_u32 s{sROT2}, s{sROT2}, s{sT0}")
    else:
        a(f"s_mov_b32 s{sROT1}, 0")
        a(f"s_mov_b32 s{sROT2}, 0")
    a(f"s_lshl_b32 s{sM0B}, s{sWAVE}, 15")
    t0, t1, t2, t3 = 100, 101, 102, 103
    a(f"v_lshrrev_b32 v{t0}, 4, v{vLANE}")
    a(f"v_and_b32 v{t1}, 1, v{t0}")
    a(f"v_lshlrev_b32 v{t1}, 2, v{t1}")
    a(f"v_bfe_u32 v{t2}, v{vLANE}, 2, 2")
    a(f"v_add_u32 v{t1}, v{t1}, v{t2}")
    a(f"v_lshrrev_b32 v{t0}, 1, v{t0}")
    a(f"v_lshlrev_b32 v{t0}, 10, v{t0}")
    a(f"v_lshlrev_b32 v{t2}, 7, v{t1}")
    a(f"v_add_u32 v{t0}, v{t0}, v{t2}")
    a(f"v_and_b32 v{t2}, 3, v{vLANE}")
    a(f"v_lshlrev_b32 v{t2}, 3, v{t2}")
    a(f"v_add_u32 v{t0}, v{t0}, v{t2}")
    a(f"v_add_u32 v{t0}, s{sM0B}, v{t0}")
    a(f"v_lshrrev_b32 v{t1}, 1, v{t1}")
    for t in range(4):
        a(f"v_xor_b32 v{t2}, {t}, v{t1}")
        a(f"v_lshlrev_b32 v{t2}, 5, v{t2}")
        a(f"v_add_u32 v{vTR+t}, v{t0}, v{t2}")
    a("s_waitcnt lgkmcnt(0)")
    if opt.prof:
        a(f"s_mov_b32 s{sPROF}, s{sP}")
    make_srd(a, sX, 4, S * D * 2)
    make_srd(a, sW1, 6, S * F * 2)
    make_srd(a, sB1, 8, F * 2)
    make_srd(a, sW2, 10, F * S * 2)
    make_srd(a, sB2, 12, S * 2)
    make_srd(a, sO, 14, S * D * 2)
    make_srd(a, sD, 16, 256)
    make_srd(a, sH, 18, H_BYTES, WS_H)
    make_srd(a, sG, 18, G_BYTES, WS_G)
    make_srd(a, sF, 18, FLAG_BYTES, WS_FLAG)

    a(f"s_cmp_ge_u32 s{sWAVE}, 2")
    a("s_cbranch_scc1 L_loader")

    a.c("LayerNorm: wave w normalises rows 32*ks + 16*w + 4*q + (0..3), 16 lanes per row")
    XR = 96
    XF = 120
    TM = 160
    a(f"s_lshr_b32 s{sT0}, s{sWG}, 2")
    a(f"s_and_b32 s{sT1}, s{sWG}, 3")
    a(f"s_lshl_b32 s{sT2}, s{sT0}, 5")
    a(f"s_lshl_b32 s{sT3}, s{sWAVE}, 4")
    a(f"s_add_u32 s{sT2}, s{sT2}, s{sT3}")
    a(f"s_lshl_b32 s{sT3}, s{sT1}, 2")
    a(f"s_add_u32 s{sT2}, s{sT2}, s{sT3}")
    a(f"s_mul_i32 s{sT2}, s{sT2}, 1280")
    a(f"v_lshrrev_b32 v{TM}, 4, v{vLANE}")
    a(f"v_and_b32 v{TM+1}, 15, v{vLANE}")
    a(f"v_mul_u32_u24 v{TM+2}, 1280, v{TM}")
    a(f"v_lshlrev_b32 v{TM+3}, 4, v{TM+1}")
    a(f"v_add_u32 v{TM+2}, v{TM+2}, v{TM+3}")
    for i in range(5):
        a.vmem(f"buffer_load_dwordx4 {vr(XR+4*i,4)}, v{TM+2}, {srd(sX)}, s{sT2} offen offset:{i*256}", "x")
    a(f"s_mul_i32 s{sSTEP}, s{sT0}, 40960")
    a(f"s_lshl_b32 s{sT1}, s{sT1}, 8")
    a(f"s_add_u32 s{sSTEP}, s{sSTEP}, s{sT1}")
    a(f"s_lshl_b32 s{sT3}, s{sWAVE}, 2")
    a(f"v_add_u32 v{TM+4}, s{sT3}, v{TM}")
    a(f"v_mul_u32_u24 v{TM+4}, {LN_ROW}, v{TM+4}")
    a(f"v_add_u32 v{TM+4}, v{TM+4}, v{TM+3}")
    a(f"v_add_u32 v{TM+4}, {LN_BASE}, v{TM+4}")
    a(f"v_bfe_u32 v{TM+5}, v{vLANE}, 2, 2")
    a(f"v_mul_u32_u24 v{TM+5}, {LN_ROW}, v{TM+5}")
    a(f"s_mul_i32 s{sT3}, s{sWAVE}, 20")
    a(f"v_add_u32 v{TM+6}, s{sT3}, v{TM}")
    a(f"v_lshlrev_b32 v{TM+7}, 5, v{TM+6}")
    a(f"v_add_u32 v{TM+5}, v{TM+5}, v{TM+7}")
    a(f"v_and_b32 v{TM+7}, 3, v{vLANE}")
    a(f"v_lshlrev_b32 v{TM+7}, 3, v{TM+7}")
    a(f"v_add_u32 v{TM+5}, v{TM+5}, v{TM+7}")
    a(f"v_add_u32 v{TM+5}, {LN_BASE}, v{TM+5}")
    a(f"v_lshlrev_b32 v{TM+6}, 10, v{TM+6}")
    a(f"v_add_u32 v{TM+6}, v{TM+6}, v{TM+3}")
    a(f"s_mov_b32 s{sT0}, 0xffff0000")
    a.wait_vm("x")
    stamp(a, opt, 1)
    for i in range(20):
        a(f"v_lshlrev_b32 v{XF+2*i}, 16, v{XR+i}")
        a(f"v_and_b32 v{XF+2*i+1}, s{sT0}, v{XR+i}")
    SM = TM + 8
    for k in range(4):
        a(f"v_pk_add_f32 {vr(SM+2*k,2)}, {vr(XF+2*k,2)}, {vr(XF+8+2*k,2)}")
    for i in range(8, 20):
        k = i % 4
        a(f"v_pk_add_f32 {vr(SM+2*k,2)}, {vr(SM+2*k,2)}, {vr(XF+2*i,2)}")
    def reduce_row(dst):
        a(f"v_pk_add_f32 {vr(SM,2)}, {vr(SM,2)}, {vr(SM+2,2)}")
        a(f"v_pk_add_f32 {vr(SM+4,2)}, {vr(SM+4,2)}, {vr(SM+6,2)}")
        a(f"v_pk_add_f32 {vr(SM,2)}, {vr(SM,2)}, {vr(SM+4,2)}")
        a(f"v_add_f32 v{dst}, v{SM}, v{SM+1}")
        for rot in (8, 4, 2, 1):
            a("s_nop 1")
            a(f"v_add_f32_dpp v{dst}, v{dst}, v{dst} row_ror:{rot} row_mask:0xf bank_mask:0xf")
    MN = TM + 16
    reduce_row(MN)
    a(f"v_mul_f32 v{MN}, {f2h(1.0/640.0)}, v{MN}")
    a(f"v_mov_b32 v{MN+1}, v{MN}")
    for i in range(20):
        a(f"v_pk_add_f32 {vr(XF+2*i,2)}, {vr(XF+2*i,2)}, {vr(MN,2)} neg_lo:[0,1] neg_hi:[0,1]")
    for k in range(4):
        a(f"v_pk_mul_f32 {vr(SM+2*k,2)}, {vr(XF+2*k,2)}, {vr(XF+2*k,2)}")
    for i in range(4, 20):
        k = i % 4
        a(f"v_pk_fma_f32 {vr(SM+2*k,2)}, {vr(XF+2*i,2)}, {vr(XF+2*i,2)}, {vr(SM+2*k,2)}")
    reduce_row(MN)
    a(f"v_mov_b32 v{MN+1}, {f2h(1e-5)}")
    a(f"v_fmac_f32 v{MN+1}, {f2h(1.0/640.0)}, v{MN}")
    a(f"v_rsq_f32 v{MN}, v{MN+1}")
    a("s_nop 0")
    a(f"v_mov_b32 v{MN+1}, v{MN}")
    for i in range(20):
        a(f"v_pk_mul_f32 {vr(XF+2*i,2)}, {vr(XF+2*i,2)}, {vr(MN,2)}")
    for i in range(20):
        a(f"v_cvt_pk_bf16_f32 v{XR+i}, v{XF+2*i}, v{XF+2*i+1}")
    for i in range(5):
        a(f"ds_write_b128 v{TM+4}, {vr(XR+4*i,4)} offset:{i*256}")
    a("s_waitcnt lgkmcnt(0)")
    a("s_barrier")
    for i in range(5):
        a(f"ds_read_b64_tr_b16 {vr(XF+4*i,2)}, v{TM+5} offset:{i*128}")
        a(f"ds_read_b64_tr_b16 {vr(XF+4*i+2,2)}, v{TM+5} offset:{i*128+4*LN_ROW}")
    for i in range(5):
        a(f"s_waitcnt lgkmcnt({8-2*i})")
        a(f"s_add_u32 s{sT0}, s{sSTEP}, {i*4096}")
        a.vmem(f"buffer_store_dwordx4 {vr(XF+4*i,4)}, v{TM+6}, {srd(sH)}, s{sT0} offen {opt.stbits}", "h")
    stamp(a, opt, 2)
    get_nonce(a, opt)
    a(f"s_lshl_b32 s{sT0}, s{sWG}, 1")
    a(f"s_add_u32 s{sT0}, s{sT0}, s{sWAVE}")
    a(f"s_mul_i32 s{sT0}, s{sT0}, {opt.hstride}")
    flag_store(a, sT0)
    stamp(a, opt, 3)
    a("s_barrier")
    a("s_branch L_common")

    a.label("L_loader")
    a.vm = []
    a(f"s_cmp_lg_u32 s{sWG}, 0")
    a("s_cbranch_scc1 L_nononce")
    a(f"s_cmp_lg_u32 s{sWAVE}, 3")
    a("s_cbranch_scc1 L_nononce")
    a(f"s_memrealtime s[{sP}:{sP+1}]")
    a("s_waitcnt lgkmcnt(0)")
    a(f"s_or_b32 s{sT0}, s{sP}, 1")
    a(f"v_mov_b32 v{vT-6}, s{sT0}")
    a(f"v_mov_b32 v{vT}, 0")
    a(f"s_mov_b64 s[{sP}:{sP+1}], exec")
    a("s_mov_b64 exec, 1")
    a(f"buffer_store_dword v{vT-6}, v{vT}, {srd(sD)}, 0 offen sc1")
    a(f"s_mov_b64 exec, s[{sP}:{sP+1}]")
    a.label("L_nononce")
    a(f"s_cmp_ge_u32 s{sJ}, 27")
    a("s_cbranch_scc1 L_loader_idle")
    dma_addr(a, F * 2, sFT)
    for reg_i in range(2):
        if reg_i == 0:
            a(f"s_sub_u32 s{sT1}, s{sWAVE}, 2")
        else:
            a(f"s_mov_b32 s{sT1}, s{sWAVE}")
        a(f"s_lshl_b32 s{sT2}, s{sT1}, 15")
        a(f"s_mul_i32 s{sT3}, s{sT1}, {512*F*2}")
        for st in range(8):
            step_rowoff(a, sOFF, sT3, sROT1, st, 16, 32 * F * 2)
            dma_step(a, sW1, F * 2, sOFF, sT2, st, "w1a")
    a.label("L_loader_idle")
    a("s_barrier")
    get_nonce(a, opt)
    a("s_barrier")

    a.label("L_common")
    a.vm = []
    stamp(a, opt, 4)
    a(f"v_lshrrev_b32 v{vT}, 4, v{vLANE}")
    a(f"v_lshlrev_b32 v{vT}, 3, v{vT}")
    a(f"s_and_b32 s{sT0}, s{sWAVE}, 1")
    a(f"s_lshl_b32 s{sT0}, s{sT0}, 6")
    a(f"s_lshl_b32 s{sT1}, s{sFT}, 7")
    a(f"s_add_u32 s{sT0}, s{sT0}, s{sT1}")
    a.vmem(f"buffer_load_dwordx2 {vr(vB1,2)}, v{vT}, {srd(sB1)}, s{sT0} offen", "b")
    a.vmem(f"buffer_load_dwordx2 {vr(vB1+2,2)}, v{vT}, {srd(sB1)}, s{sT0} offen offset:32", "b")
    a(f"v_and_b32 v{vT}, 15, v{vLANE}")
    a(f"v_lshlrev_b32 v{vT}, 1, v{vT}")
    a(f"s_lshl_b32 s{sT0}, s{sST}, 7")
    a(f"s_lshl_b32 s{sT1}, s{sWAVE}, 5")
    a(f"s_add_u32 s{sT0}, s{sT0}, s{sT1}")
    a.vmem(f"buffer_load_ushort v{vB2}, v{vT}, {srd(sB2)}, s{sT0} offen", "b")
    a(f"s_cmp_ge_u32 s{sJ}, 27")
    a("s_cbranch_scc1 L_nogemm1")

    dma_addr(a, F * 2, sFT)
    for st in range(8):
        tr_step(a, st, st)
        if st % 2 == 1: a("s_waitcnt lgkmcnt(0)")
    a(f"s_mul_i32 s{sT3}, s{sWAVE}, {512*F*2}")
    for st in range(8, 16):
        step_rowoff(a, sOFF, sT3, sROT1, st, 16, 32 * F * 2)
        dma_step(a, sW1, F * 2, sOFF, sM0B, st - 8, f"w1b{st}")
    for st in range(8, 16):
        a.wait_vm(f"w1b{st}")
        tr_step(a, st - 8, st)
        if st % 2 == 1: a("s_waitcnt lgkmcnt(0)")
    stamp(a, opt, 5)
    dma_addr(a, S * 2, sST)
    a(f"v_lshlrev_b32 v{vA}, 4, v{vLANE}")
    a(f"s_mul_i32 s{sT0}, s{sDT1}, 5120")
    a(f"v_add_u32 v{vA}, s{sT0}, v{vA}")
    a(f"v_add_u32 v{vA2}, 4096, v{vA}")
    a(f"s_lshl_b32 s{sT0}, s{sWAVE}, 6")
    a(f"v_add_u32 v{vT}, s{sT0}, v{vLANE}")
    if opt.hstride == 4:
        a(f"v_lshlrev_b32 v{vT}, 3, v{vT}")
        poll(a, opt, vT, 2, None)
    else:
        raise SystemExit("hstride")
    if opt.exp & 8:
        a("s_mov_b32 s79, 0")
        a.label("L_dly")
        a("s_sleep 8")
        a("s_add_u32 s79, s79, 1")
        a("s_cmp_lt_u32 s79, 16")
        a("s_cbranch_scc1 L_dly")
    stamp(a, opt, 6)

    def a_loads(srdn, step, nsteps, s_rot, slot, tag):
        step_rowoff(a, sOFF, sSTEP, s_rot, step, nsteps, 40960)
        return [f"buffer_load_dwordx4 {vr(ring(slot,t),4)}, v{vA if t < 4 else vA2}, {srd(srdn)}, s{sOFF} offen offset:{(t*1024) if t < 4 else 0} {opt.ldbits}" for t in range(5)]

    a(f"s_mul_i32 s{sSTEP}, s{sWAVE}, {16*40960}")
    if opt.exp & 16: sHL = sW2
    else: sHL = sH
    for st in range(8):
        for ins in a_loads(sHL, st, 16, sROT1, st, None): a.vmem(ins, f"h{st}")
    a(f"s_mul_i32 s{sT3}, s{sWAVE}, {448*S*2}")
    for st in range(16):
        a.wait_vm(f"h{st}")
        if st == 0: stamp(a, opt, 14)
        if st == 8: stamp(a, opt, 15)
        nxt = a_loads(sHL, st + 8, 16, sROT1, st % 8, None) if (st + 8 < 16 and not (opt.exp & 2)) else None
        for nt in range(5):
            for mt in range(4):
                c = "0" if st == 0 else vr(acc1(mt, nt), 4)
                if not (opt.exp & 1) or st == 0:
                    a(f"v_mfma_f32_16x16x32_bf16 {vr(acc1(mt,nt),4)}, {ar(wfrag(st,mt),4)}, {vr(ring(st%8,nt),4)}, {c}")
            if nxt: a.vmem(nxt[nt], f"h{st+8}")
        if 8 <= st < 14 and not (opt.exp & 4):
            step_rowoff(a, sOFF, sT3, sROT2, st - 8, 14, 32 * S * 2)
            dma_step(a, sW2, S * 2, sOFF, sM0B, st - 8, "w2a")
    stamp(a, opt, 7)
    a(f"s_mov_b32 s100, {f2h(C1)}"); a(f"s_mov_b32 s101, {f2h(C1)}")
    a(f"v_mov_b32 v250, {f2h(C0)}"); a(f"v_mov_b32 v251, {f2h(C0)}")
    vL0, vL1, vL2 = 247, 248, 249
    a(f"v_lshlrev_b32 v{vL0}, 4, v{vLANE}")
    a(f"v_add_u32 v{vL1}, 65536, v{vL0}")
    a(f"v_add_u32 v{vL2}, 131072, v{vL0}")
    def lds_ref(addr):
        if addr < 65536: return vL0, addr
        if addr < 131072: return vL1, addr - 65536
        return vL2, addr - 131072
    def owner1(p, nt): return p + (0 if nt < 3 else 2)
    units = [(p, nt) for p in range(2) for nt in range(5)]
    def red1_addr(src, u):
        k = [x for x in units if owner1(*x) != src].index(u)
        return src * 32768 + 24576 + k * 2048 if k < 4 else 131072 + src * 8192 + (k - 4) * 2048
    saved_vm = list(a.vm)
    for w in range(4):
        if w < 3:
            a(f"s_cmp_lg_u32 s{sWAVE}, {w}")
            a(f"s_cbranch_scc1 L_ep1_{w+1}")
        a.vm = list(saved_vm)
        a("s_nop 7")
        for u in units:
            if owner1(*u) == w: continue
            p, nt = u
            for hf in range(2):
                vb, off = lds_ref(red1_addr(w, u) + hf * 1024)
                a(f"ds_write_b128 v{vb}, {vr(acc1(2*p+hf, nt),4)} offset:{off}")
        a("s_waitcnt lgkmcnt(0)")
        a("s_barrier")
        own = [u for u in units if owner1(*u) == w]
        RT = vRING
        n = 0
        for u in own:
            for src in range(4):
                if src == w: continue
                for hf in range(2):
                    vb, off = lds_ref(red1_addr(src, u) + hf * 1024)
                    a(f"ds_read_b128 {vr(RT + n*4, 4)}, v{vb} offset:{off}")
                    n += 1
        BI = 232
        a.wait_vm("b")
        for i in range(4):
            a(f"v_lshlrev_b32 v{BI+2*i}, 16, v{vB1+i}")
            a(f"v_and_b32 v{BI+2*i+1}, 0xffff0000, v{vB1+i}")
        n = 0
        tot = len(own) * 6
        for u in own:
            p, nt = u
            for si in range(3):
                for hf in range(2):
                    a(f"s_waitcnt lgkmcnt({min(15, tot - n - 1)})")
                    r = acc1(2*p+hf, nt)
                    a(f"v_pk_add_f32 {vr(r,2)}, {vr(r,2)}, {vr(RT+n*4,2)}")
                    a(f"v_pk_add_f32 {vr(r+2,2)}, {vr(r+2,2)}, {vr(RT+n*4+2,2)}")
                    n += 1
        a("s_barrier")
        regs = []
        for u in own:
            p, nt = u
            for hf in range(2):
                r = acc1(2*p+hf, nt)
                a(f"v_pk_add_f32 {vr(r,2)}, {vr(r,2)}, {vr(BI+4*hf,2)}")
                a(f"v_pk_add_f32 {vr(r+2,2)}, {vr(r+2,2)}, {vr(BI+4*hf+2,2)}")
                regs += [r, r + 2]
        gelu_pairs(a, regs, RT)
        a(f"s_lshl_b32 s{sT0}, s{sFT}, 1")
        a(f"s_add_u32 s{sT0}, s{sT0}, {w & 1}")
        a(f"s_mul_i32 s{sT0}, s{sT0}, 40960")
        a(f"s_mul_i32 s{sT1}, s{sDT1}, 5120")
        a(f"s_add_u32 s{sT0}, s{sT0}, s{sT1}")
        for i, u in enumerate(own):
            p, nt = u
            o = RT + 64 + 4 * i
            r0, r1 = acc1(2*p, nt), acc1(2*p+1, nt)
            a(f"v_cvt_pk_bf16_f32 v{o}, v{r0}, v{r0+1}")
            a(f"v_cvt_pk_bf16_f32 v{o+1}, v{r0+2}, v{r0+3}")
            a(f"v_cvt_pk_bf16_f32 v{o+2}, v{r1}, v{r1+1}")
            a(f"v_cvt_pk_bf16_f32 v{o+3}, v{r1+2}, v{r1+3}")
            a(f"s_add_u32 s{sT1}, s{sT0}, {nt*1024}")
            a.vmem(f"buffer_store_dwordx4 {vr(o,4)}, v{vL0}, {srd(sG)}, s{sT1} offen {opt.stbits}", "g")
        stamp(a, opt, 8)
        a.wait_vm("w2a")
        for st in range(6):
            tr_step(a, st, st)
            if st % 2 == 1: a("s_waitcnt lgkmcnt(0)")
        for st in range(6, 14):
            step_rowoff(a, sOFF, sT3, sROT2, st, 14, 32 * S * 2)
            dma_step(a, sW2, S * 2, sOFF, sM0B, st - 6, f"w2b{st}")
        a.wait_vm("g")
        a(f"s_lshl_b32 s{sT0}, s{sDT1}, 5")
        a(f"s_add_u32 s{sT0}, s{sT0}, s{sFT}")
        a(f"s_lshl_b32 s{sT0}, s{sT0}, 4")
        a(f"s_add_u32 s{sT0}, s{sT0}, {FLAG_G + 4*w}")
        flag_store(a, sT0)
        stamp(a, opt, 9)
        vm_after = list(a.vm)
        a("s_branch L_pre2")
        if w < 3: a.label(f"L_ep1_{w+1}")

    a.label("L_nogemm1")
    a.vm = ["b", "b", "b"]
    dma_addr(a, S * 2, sST)
    a(f"s_mul_i32 s{sT3}, s{sWAVE}, {448*S*2}")
    for st in range(6):
        step_rowoff(a, sOFF, sT3, sROT2, st, 14, 32 * S * 2)
        dma_step(a, sW2, S * 2, sOFF, sM0B, st, "w2a")
    a.wait_vm("w2a")
    for st in range(6):
        tr_step(a, st, st)
        if st % 2 == 1: a("s_waitcnt lgkmcnt(0)")
    for st in range(6, 14):
        step_rowoff(a, sOFF, sT3, sROT2, st, 14, 32 * S * 2)
        dma_step(a, sW2, S * 2, sOFF, sM0B, st - 6, f"w2b{st}")

    a.label("L_pre2")
    a.wait_vm0()
    for st in range(6, 14):
        tr_step(a, st - 6, st)
        if st % 2 == 1: a("s_waitcnt lgkmcnt(0)")
    stamp(a, opt, 10)
    a(f"v_lshlrev_b32 v{vA}, 4, v{vLANE}")
    a(f"s_mul_i32 s{sT0}, s{sDT2}, 5120")
    a(f"v_add_u32 v{vA}, s{sT0}, v{vA}")
    a(f"v_add_u32 v{vA2}, 4096, v{vA}")
    a(f"s_lshl_b32 s{sT0}, s{sDT2}, 5")
    a(f"s_mul_i32 s{sT1}, s{sWAVE}, 7")
    a(f"s_add_u32 s{sT0}, s{sT0}, s{sT1}")
    a(f"s_lshl_b32 s{sT0}, s{sT0}, 4")
    a(f"s_add_u32 s{sT0}, s{sT0}, {FLAG_G}")
    a(f"v_lshlrev_b32 v{vT}, 2, v{vLANE}")
    a(f"v_add_u32 v{vT}, s{sT0}, v{vT}")
    a(f"s_cmp_eq_u32 s{sWAVE}, 3")
    a(f"s_mov_b32 s{sP+3}, 0xffffff")
    a(f"s_cselect_b32 s{sP+2}, s{sP+3}, 0xfffffff")
    a(f"s_mov_b32 s{sP+3}, 0")
    poll(a, opt, vT, 1, sP + 2)
    stamp(a, opt, 11)
    a(f"s_mul_i32 s{sSTEP}, s{sWAVE}, {14*40960}")
    for st in range(8):
        for ins in a_loads(sG, st, 14, sROT2, st, None): a.vmem(ins, f"g{st}")
    for st in range(14):
        a.wait_vm(f"g{st}")
        nxt = a_loads(sG, st + 8, 14, sROT2, st % 8, None) if st + 8 < 14 else None
        for mt in range(5):
            for nt in range(4):
                c = "0" if st == 0 else vr(acc2(mt, nt), 4)
                a(f"v_mfma_f32_16x16x32_bf16 {vr(acc2(mt,nt),4)}, {vr(ring(st%8,mt),4)}, {ar(wfrag(st,nt),4)}, {c}")
            if nxt: a.vmem(nxt[mt], f"g{st+8}")
    stamp(a, opt, 12)
    vL0, vL1 = 247, 248
    a(f"v_lshlrev_b32 v{vL0}, 4, v{vLANE}")
    a(f"v_add_u32 v{vL1}, 65536, v{vL0}")
    a(f"v_and_b32 v{vT}, 15, v{vLANE}")
    a(f"s_lshl_b32 s{sT0}, s{sWAVE}, 4")
    a(f"v_add_u32 v{vT}, s{sT0}, v{vT}")
    a(f"v_mul_u32_u24 v{vA}, 1280, v{vT}")
    a(f"v_lshrrev_b32 v{vT}, 4, v{vLANE}")
    a(f"v_lshlrev_b32 v{vT}, 3, v{vT}")
    a(f"v_add_u32 v{vA}, v{vA}, v{vT}")
    a(f"s_mul_i32 s{sT0}, s{sST}, {64*1280}")
    a(f"s_mul_i32 s{sT1}, s{sDT2}, 160")
    a(f"s_add_u32 s{sOFF}, s{sT0}, s{sT1}")
    a(f"v_lshlrev_b32 v{vB2}, 16, v{vB2}")
    def red2_addr(src, nt, mt):
        k = [x for x in range(4) if x != src].index(nt)
        return src * 32768 + (k * 5 + mt) * 1024
    def lds_ref2(addr):
        return (vL0, addr) if addr < 65536 else (vL1, addr - 65536)
    for w in range(4):
        if w < 3:
            a(f"s_cmp_lg_u32 s{sWAVE}, {w}")
            a(f"s_cbranch_scc1 L_ep2_{w+1}")
        a("s_nop 7")
        for nt in range(4):
            if nt == w: continue
            for mt in range(5):
                vb, off = lds_ref2(red2_addr(w, nt, mt))
                a(f"ds_write_b128 v{vb}, {vr(acc2(mt,nt),4)} offset:{off}")
        a("s_waitcnt lgkmcnt(0)")
        a("s_barrier")
        RT = vRING
        n = 0
        for mt in range(5):
            for src in range(4):
                if src == w: continue
                vb, off = lds_ref2(red2_addr(src, w, mt))
                a(f"ds_read_b128 {vr(RT+n*4,4)}, v{vb} offset:{off}")
                n += 1
        n = 0
        for mt in range(5):
            r = acc2(mt, w)
            for si in range(3):
                a(f"s_waitcnt lgkmcnt({14 - n})")
                a(f"v_pk_add_f32 {vr(r,2)}, {vr(r,2)}, {vr(RT+n*4,2)}")
                a(f"v_pk_add_f32 {vr(r+2,2)}, {vr(r+2,2)}, {vr(RT+n*4+2,2)}")
                n += 1
            for k in range(4):
                a(f"v_add_f32 v{r+k}, v{r+k}, v{vB2}")
            o = RT + 64 + 2 * mt
            a(f"v_cvt_pk_bf16_f32 v{o}, v{r}, v{r+1}")
            a(f"v_cvt_pk_bf16_f32 v{o+1}, v{r+2}, v{r+3}")
            a(f"buffer_store_dwordx2 {vr(o,2)}, v{vA}, {srd(sO)}, s{sOFF} offen offset:{mt*32}")
        a("s_branch L_fin")
        if w < 3: a.label(f"L_ep2_{w+1}")
    a.label("L_fin")
    if opt.prof:
        a("s_waitcnt vmcnt(0)")
        stamp(a, opt, 13)
        a(f"s_add_u32 s{sT0}, s18, {WS_PROF}")
        a(f"s_addc_u32 s{sT1}, s19, 0")
        a(f"s_mov_b32 s{sX}, s{sT0}")
        a(f"s_and_b32 s{sX+1}, s{sT1}, 0xffff")
        a(f"s_mov_b32 s{sX+2}, 65536")
        a(f"s_lshl_b32 s{sT0}, s{sWG}, 2")
        a(f"s_add_u32 s{sT0}, s{sT0}, s{sWAVE}")
        a(f"s_lshl_b32 s{sT0}, s{sT0}, 6")
        a(f"v_mov_b32 v{vT}, s{sT0}")
        a("s_mov_b64 exec, 1")
        for i in range(16):
            a(f"v_mov_b32 v{100}, s{sPROF+i}")
            a(f"buffer_store_dword v100, v{vT}, {srd(sX)}, 0 offen offset:{4*i}")
            a("s_nop 1")
        a("s_waitcnt vmcnt(0)")
    a.label("L_done")
    a("s_endpgm")
    a.raw('.section .rodata,"a"')
    a.raw(".p2align 6")
    a.raw(f".amdhsa_kernel {KN}")
    for l in ["next_free_vgpr 512", "next_free_sgpr 102", "accum_offset 256", "group_segment_fixed_size 0",
              "kernarg_size 64", "user_sgpr_count 2", "user_sgpr_kernarg_segment_ptr 1",
              "system_sgpr_workgroup_id_x 1", "float_denorm_mode_32 3"]:
        a.raw(f"  .amdhsa_{l}")
    a.raw(".end_amdhsa_kernel")
    return "\n".join(a.L) + "\n"

import struct
def f2h(x): return "0x%08x" % struct.unpack("<I", struct.pack("<f", x))[0]
C0 = -2.0 * 0.7978845608028654 * 1.4426950408889634
C1 = C0 * 0.044715

if __name__ == "__main__":
    ap = argparse.ArgumentParser()
    ap.add_argument("-o", default="standalone__mixer_token_mlp__prompt.s")
    ap.add_argument("--prof", type=int, default=0)
    ap.add_argument("--rot", type=int, default=1)
    ap.add_argument("--spin", type=int, default=200000)
    ap.add_argument("--sleep", type=int, default=1)
    ap.add_argument("--hstride", type=int, default=4)
    ap.add_argument("--exp", type=int, default=0)
    ap.add_argument("--stbits", default="sc1")
    ap.add_argument("--ldbits", default="sc1")
    opt = ap.parse_args()
    open(opt.o, "w").write(gen(opt))
```

```python
import sys, argparse

S, D, F = 2048, 640, 1728
KN = "standalone__mixer_token_mlp__prompt_kernel"

WS_H = 0
H_BYTES = 64 * 40 * 1024
WS_G = 0x300000
G_BYTES = 54 * 40 * 1024
WS_FLAG = 0x600000
FLAG_H = 0
FLAG_G = 0x10000
FLAG_BYTES = 0x20000
WS_PROF = 0x700000

LDS_BYTES = 163840
LN_BASE = 131072
LN_ROW = 1344

sKA = 0; sWG = 2
sX, sW1, sW2, sH, sG, sO, sF, sB1, sB2, sD = 20, 24, 28, 32, 36, 40, 44, 48, 52, 56
sWAVE, sXCD, sJ, sFT, sDT1, sST, sDT2, sNONCE = 60, 61, 62, 63, 64, 65, 66, 67
sT0, sT1, sT2, sT3, sT4, sT5 = 68, 69, 70, 71, 72, 73
sROT1, sROT2, sSTEP, sOFF = 74, 75, 76, 77
sM0B = 78
sSPIN = 79
sP = 80
sPROF = 84

vTID, vLANE = 0, 1
vTR = 2
vA = 6; vA2 = 7
vDMA = 8
vB1 = 10
vB2 = 14
vT = 15
vACC = 16
vRING = 96

def srd(n): return f"s[{n}:{n+3}]"
def vr(n, c=1): return f"v{n}" if c == 1 else f"v[{n}:{n+c-1}]"
def ar(n, c=1): return f"a{n}" if c == 1 else f"a[{n}:{n+c-1}]"

class Asm:
    def __init__(self):
        self.L = []
        self.vm = []
        self.uid = 0
    def __call__(self, s): self.L.append("    " + s)
    def label(self, s): self.L.append(s + ":")
    def raw(self, s): self.L.append(s)
    def c(self, s): self.L.append("    ; " + s)
    def vmem(self, s, tag):
        self(s); self.vm.append(tag)
    def wait_vm(self, tag):
        hits = [i for i, t in enumerate(self.vm) if t == tag]
        if not hits: return
        idx = hits[-1]
        n = len(self.vm) - 1 - idx
        self(f"s_waitcnt vmcnt({min(n, 63)})")
        self.vm = self.vm[idx + 1:]
    def wait_vm0(self):
        self("s_waitcnt vmcnt(0)"); self.vm = []
    def newlabel(self, p):
        self.uid += 1
        return f"L_{p}_{self.uid}"

def acc1(mt, nt): return vACC + (mt * 5 + nt) * 4
def acc2(mt, nt): return vACC + (mt * 4 + nt) * 4
def ring(slot, t): return vRING + slot * 20 + t * 4
def wfrag(step, t): return step * 16 + t * 4

def stamp(a, opt, idx):
    if opt.prof:
        a(f"s_mem{'time' if opt.prof == 2 else 'realtime'} s[{sP}:{sP+1}]")
        a("s_waitcnt lgkmcnt(0)")
        a(f"s_mov_b32 s{sPROF+idx}, s{sP}")

def make_srd(a, n, lo, size, add=0):
    if add:
        a(f"s_add_u32 s{n}, s{lo}, {add}")
        a(f"s_addc_u32 s{n+1}, s{lo+1}, 0")
        a(f"s_and_b32 s{n+1}, s{n+1}, 0xffff")
    else:
        a(f"s_mov_b32 s{n}, s{lo}")
        a(f"s_and_b32 s{n+1}, s{lo+1}, 0xffff")
    a(f"s_mov_b32 s{n+2}, {size}")
    a(f"s_mov_b32 s{n+3}, 0x20000")

def get_nonce(a, opt):
    lp = a.newlabel("nonce"); dn = a.newlabel("nonced")
    a(f"s_mov_b32 s{sSPIN}, 0")
    a(f"v_mov_b32 v{vT}, 0")
    a.label(lp)
    a(f"buffer_load_dword v{vT-6}, v{vT}, {srd(sD)}, 0 offen sc1")
    a("s_waitcnt vmcnt(0)")
    a(f"v_readfirstlane_b32 s{sNONCE}, v{vT-6}")
    a(f"s_add_u32 s{sSPIN}, s{sSPIN}, 1")
    a(f"s_cmp_lg_u32 s{sNONCE}, 0")
    a(f"s_cbranch_scc1 {dn}")
    a(f"s_cmp_lt_u32 s{sSPIN}, {opt.spin}")
    a(f"s_cbranch_scc1 {lp}")
    a.label(dn)
    a.vm = []

def dma_addr(a, stride, s_tile):
    a(f"v_lshrrev_b32 v{vT}, 3, v{vLANE}")
    a(f"v_lshrrev_b32 v{vDMA+1}, 1, v{vT}")
    a(f"v_lshlrev_b32 v{vDMA+1}, 1, v{vDMA+1}")
    a(f"v_and_b32 v{vDMA}, 7, v{vLANE}")
    a(f"v_xor_b32 v{vDMA}, v{vDMA}, v{vDMA+1}")
    a(f"v_lshlrev_b32 v{vDMA}, 4, v{vDMA}")
    a(f"s_mov_b32 s{sT0}, {stride}")
    a(f"v_mul_lo_u32 v{vT}, v{vT}, s{sT0}")
    a(f"v_add_u32 v{vDMA}, v{vDMA}, v{vT}")
    a(f"s_lshl_b32 s{sT0}, s{s_tile}, 7")
    a(f"v_add_u32 v{vDMA}, s{sT0}, v{vDMA}")

def dma_step(a, srdn, stride, s_rowoff, s_ldsbase, slot, tag):
    for blk in range(4):
        a(f"s_add_u32 m0, s{s_ldsbase}, {slot*4096 + blk*1024}")
        a(f"s_add_u32 s{sT5}, s{s_rowoff}, {blk*8*stride}")
        a.vmem(f"buffer_load_dwordx4 v{vDMA}, {srd(srdn)}, s{sT5} offen lds", tag)

def tr_step(a, slot, step):
    for t in range(4):
        w = wfrag(step, t)
        a(f"ds_read_b64_tr_b16 {ar(w,2)}, v{vTR+t} offset:{slot*4096}")
        a(f"ds_read_b64_tr_b16 {ar(w+2,2)}, v{vTR+t} offset:{slot*4096+2048}")

def step_rowoff(a, dst, s_base, s_rot, i, nsteps, bytes_per_step):
    a(f"s_add_u32 s{sT4}, s{s_rot}, {i}")
    a(f"s_cmp_ge_u32 s{sT4}, {nsteps}")
    a(f"s_cselect_b32 s{dst}, {nsteps}, 0")
    a(f"s_sub_u32 s{sT4}, s{sT4}, s{dst}")
    a(f"s_mul_i32 s{sT4}, s{sT4}, {bytes_per_step}")
    a(f"s_add_u32 s{dst}, s{sT4}, s{s_base}")

def poll(a, opt, vaddr, nd, lanes):
    lp = a.newlabel("poll"); dn = a.newlabel("polled")
    vP = ring(7, 0)
    a(f"s_mov_b32 s{sSPIN}, 0")
    a.label(lp)
    ld = {1: "dword", 2: "dwordx2"}[nd]
    a(f"buffer_load_{ld} {vr(vP, nd)}, v{vaddr}, {srd(sF)}, 0 offen sc1")
    a("s_waitcnt vmcnt(0)")
    a(f"v_cmp_ne_u32 vcc, s{sNONCE}, v{vP}")
    if nd == 2:
        a(f"v_cmp_ne_u32 s[{sP}:{sP+1}], s{sNONCE}, v{vP+1}")
        a(f"s_or_b64 vcc, vcc, s[{sP}:{sP+1}]")
    if lanes is not None:
        a(f"s_and_b64 vcc, vcc, s[{lanes}:{lanes+1}]")
    a(f"s_add_u32 s{sSPIN}, s{sSPIN}, 1")
    a("s_cmp_eq_u64 vcc, 0")
    a(f"s_cbranch_scc1 {dn}")
    if opt.sleep: a(f"s_sleep {opt.sleep}")
    a(f"s_cmp_lt_u32 s{sSPIN}, {opt.spin}")
    a(f"s_cbranch_scc1 {lp}")
    a.label(dn)
    a.vm = []

def flag_store(a, s_index_bytes):
    a(f"v_mov_b32 v{vT}, s{s_index_bytes}")
    a(f"v_mov_b32 v{vT-6}, s{sNONCE}")
    a(f"s_mov_b64 s[{sP}:{sP+1}], exec")
    a("s_mov_b64 exec, 1")
    a.vmem(f"buffer_store_dword v{vT-6}, v{vT}, {srd(sF)}, 0 offen sc1", "flag")
    a(f"s_mov_b64 exec, s[{sP}:{sP+1}]")

def gelu_pairs(a, regs, tmp):
    n = len(regs)
    for i, r in enumerate(regs):
        t = tmp + 2 * i
        a(f"v_pk_mul_f32 {vr(t,2)}, {vr(r,2)}, {vr(r,2)}")
    for i, r in enumerate(regs):
        t = tmp + 2 * i
        a(f"v_pk_fma_f32 {vr(t,2)}, {vr(t,2)}, s[100:101], v[250:251]")
    for i, r in enumerate(regs):
        t = tmp + 2 * i
        a(f"v_pk_mul_f32 {vr(t,2)}, {vr(t,2)}, {vr(r,2)}")
    for i, r in enumerate(regs):
        t = tmp + 2 * i
        a(f"v_exp_f32 v{t}, v{t}")
        a(f"v_exp_f32 v{t+1}, v{t+1}")
    for i, r in enumerate(regs):
        t = tmp + 2 * i
        a(f"v_pk_add_f32 {vr(t,2)}, {vr(t,2)}, 1.0 op_sel_hi:[1,0]")
    for i, r in enumerate(regs):
        t = tmp + 2 * i
        a(f"v_rcp_f32 v{t}, v{t}")
        a(f"v_rcp_f32 v{t+1}, v{t+1}")
    a("s_nop 0")
    for i, r in enumerate(regs):
        t = tmp + 2 * i
        a(f"v_pk_mul_f32 {vr(r,2)}, {vr(r,2)}, {vr(t,2)}")

def gen(opt):
    a = Asm()
    a.raw(f"; @launch grid=(256,1,1) block=(256,1,1) lds={LDS_BYTES}")
    a.raw('.amdgcn_target "amdgcn-amd-amdhsa--gfx950"')
    a.raw(".text")
    a.raw(f".globl {KN}")
    a.raw(".p2align 8")
    a.raw(f".type {KN},@function")
    a.label(KN)
    a(f"s_cmp_ge_u32 s{sWG}, 256")
    a("s_cbranch_scc1 L_done")
    a("s_load_dwordx16 s[4:19], s[0:1], 0")
    if opt.prof:
        a(f"s_mem{'time' if opt.prof == 2 else 'realtime'} s[{sP}:{sP+1}]")
    if opt.span:
        a("s_memrealtime s[98:99]")
    a(f"v_lshrrev_b32 v{vT}, 6, v{vTID}")
    a(f"v_and_b32 v{vLANE}, 63, v{vTID}")
    a(f"v_readfirstlane_b32 s{sWAVE}, v{vT}")
    a(f"s_and_b32 s{sXCD}, s{sWG}, 7")
    a(f"s_lshr_b32 s{sJ}, s{sWG}, 3")
    a(f"s_mul_i32 s{sT0}, s{sXCD}, 27")
    a(f"s_add_u32 s{sT0}, s{sT0}, s{sJ}")
    a(f"s_lshr_b32 s{sFT}, s{sT0}, 3")
    a(f"s_and_b32 s{sDT1}, s{sT0}, 7")
    a(f"s_lshr_b32 s{sT0}, s{sJ}, 3")
    a(f"s_lshl_b32 s{sST}, s{sXCD}, 2")
    a(f"s_add_u32 s{sST}, s{sST}, s{sT0}")
    a(f"s_and_b32 s{sDT2}, s{sJ}, 7")
    if opt.rot:
        a(f"s_lshl_b32 s{sROT1}, s{sDT1}, 1")
        a(f"s_and_b32 s{sT0}, s{sFT}, 3")
        a(f"s_lshl_b32 s{sT0}, s{sT0}, 2")
        a(f"s_add_u32 s{sROT1}, s{sROT1}, s{sT0}")
        a(f"s_and_b32 s{sROT1}, s{sROT1}, 15")
        a(f"s_lshl_b32 s{sROT2}, s{sDT2}, 1")
        a(f"s_and_b32 s{sT0}, s{sST}, 3")
        a(f"s_mul_i32 s{sT0}, s{sT0}, 3")
        a(f"s_add_u32 s{sROT2}, s{sROT2}, s{sT0}")
        a(f"s_cmp_ge_u32 s{sROT2}, 14")
        a(f"s_cselect_b32 s{sT0}, 14, 0")
        a(f"s_sub_u32 s{sROT2}, s{sROT2}, s{sT0}")
    else:
        a(f"s_mov_b32 s{sROT1}, 0")
        a(f"s_mov_b32 s{sROT2}, 0")
    a(f"s_lshl_b32 s{sM0B}, s{sWAVE}, 15")
    t0, t1, t2, t3 = 100, 101, 102, 103
    a(f"v_lshrrev_b32 v{t0}, 4, v{vLANE}")
    a(f"v_and_b32 v{t1}, 1, v{t0}")
    a(f"v_lshlrev_b32 v{t1}, 2, v{t1}")
    a(f"v_bfe_u32 v{t2}, v{vLANE}, 2, 2")
    a(f"v_add_u32 v{t1}, v{t1}, v{t2}")
    a(f"v_lshrrev_b32 v{t0}, 1, v{t0}")
    a(f"v_lshlrev_b32 v{t0}, 10, v{t0}")
    a(f"v_lshlrev_b32 v{t2}, 7, v{t1}")
    a(f"v_add_u32 v{t0}, v{t0}, v{t2}")
    a(f"v_and_b32 v{t2}, 3, v{vLANE}")
    a(f"v_lshlrev_b32 v{t2}, 3, v{t2}")
    a(f"v_add_u32 v{t0}, v{t0}, v{t2}")
    a(f"v_add_u32 v{t0}, s{sM0B}, v{t0}")
    a(f"v_lshrrev_b32 v{t1}, 1, v{t1}")
    for t in range(4):
        a(f"v_xor_b32 v{t2}, {t}, v{t1}")
        a(f"v_lshlrev_b32 v{t2}, 5, v{t2}")
        a(f"v_add_u32 v{vTR+t}, v{t0}, v{t2}")
    a("s_waitcnt lgkmcnt(0)")
    if opt.prof:
        a(f"s_mov_b32 s{sPROF}, s{sP}")
    make_srd(a, sX, 4, S * D * 2)
    make_srd(a, sW1, 6, S * F * 2)
    make_srd(a, sB1, 8, F * 2)
    make_srd(a, sW2, 10, F * S * 2)
    make_srd(a, sB2, 12, S * 2)
    make_srd(a, sO, 14, S * D * 2)
    make_srd(a, sD, 16, 256)
    make_srd(a, sH, 18, H_BYTES, WS_H)
    make_srd(a, sG, 18, G_BYTES, WS_G)
    make_srd(a, sF, 18, FLAG_BYTES, WS_FLAG)

    a(f"s_cmp_ge_u32 s{sWAVE}, 2")
    a("s_cbranch_scc1 L_loader")

    a.c("LayerNorm: wave w normalises rows 32*ks + 16*w + 4*q + (0..3), 16 lanes per row")
    XR = 96
    XF = 120
    TM = 160
    a(f"s_lshr_b32 s{sT0}, s{sWG}, 2")
    a(f"s_and_b32 s{sT1}, s{sWG}, 3")
    a(f"s_lshl_b32 s{sT2}, s{sT0}, 5")
    a(f"s_lshl_b32 s{sT3}, s{sWAVE}, 4")
    a(f"s_add_u32 s{sT2}, s{sT2}, s{sT3}")
    a(f"s_lshl_b32 s{sT3}, s{sT1}, 2")
    a(f"s_add_u32 s{sT2}, s{sT2}, s{sT3}")
    a(f"s_mul_i32 s{sT2}, s{sT2}, 1280")
    a(f"v_lshrrev_b32 v{TM}, 4, v{vLANE}")
    a(f"v_and_b32 v{TM+1}, 15, v{vLANE}")
    a(f"v_mul_u32_u24 v{TM+2}, 1280, v{TM}")
    a(f"v_lshlrev_b32 v{TM+3}, 4, v{TM+1}")
    a(f"v_add_u32 v{TM+2}, v{TM+2}, v{TM+3}")
    for i in range(5):
        a.vmem(f"buffer_load_dwordx4 {vr(XR+4*i,4)}, v{TM+2}, {srd(sX)}, s{sT2} offen offset:{i*256}", "x")
    a(f"s_mul_i32 s{sSTEP}, s{sT0}, 40960")
    a(f"s_lshl_b32 s{sT1}, s{sT1}, 8")
    a(f"s_add_u32 s{sSTEP}, s{sSTEP}, s{sT1}")
    a(f"s_lshl_b32 s{sT3}, s{sWAVE}, 2")
    a(f"v_add_u32 v{TM+4}, s{sT3}, v{TM}")
    a(f"v_mul_u32_u24 v{TM+4}, {LN_ROW}, v{TM+4}")
    a(f"v_add_u32 v{TM+4}, v{TM+4}, v{TM+3}")
    a(f"v_add_u32 v{TM+4}, {LN_BASE}, v{TM+4}")
    a(f"v_bfe_u32 v{TM+5}, v{vLANE}, 2, 2")
    a(f"v_mul_u32_u24 v{TM+5}, {LN_ROW}, v{TM+5}")
    a(f"s_mul_i32 s{sT3}, s{sWAVE}, 20")
    a(f"v_add_u32 v{TM+6}, s{sT3}, v{TM}")
    a(f"v_lshlrev_b32 v{TM+7}, 5, v{TM+6}")
    a(f"v_add_u32 v{TM+5}, v{TM+5}, v{TM+7}")
    a(f"v_and_b32 v{TM+7}, 3, v{vLANE}")
    a(f"v_lshlrev_b32 v{TM+7}, 3, v{TM+7}")
    a(f"v_add_u32 v{TM+5}, v{TM+5}, v{TM+7}")
    a(f"v_add_u32 v{TM+5}, {LN_BASE}, v{TM+5}")
    a(f"v_lshlrev_b32 v{TM+6}, 10, v{TM+6}")
    a(f"v_add_u32 v{TM+6}, v{TM+6}, v{TM+3}")
    a(f"s_mov_b32 s{sT0}, 0xffff0000")
    a.wait_vm("x")
    stamp(a, opt, 1)
    for i in range(20):
        a(f"v_lshlrev_b32 v{XF+2*i}, 16, v{XR+i}")
        a(f"v_and_b32 v{XF+2*i+1}, s{sT0}, v{XR+i}")
    SM = TM + 8
    for k in range(4):
        a(f"v_pk_add_f32 {vr(SM+2*k,2)}, {vr(XF+2*k,2)}, {vr(XF+8+2*k,2)}")
    for i in range(8, 20):
        k = i % 4
        a(f"v_pk_add_f32 {vr(SM+2*k,2)}, {vr(SM+2*k,2)}, {vr(XF+2*i,2)}")
    def reduce_row(dst):
        a(f"v_pk_add_f32 {vr(SM,2)}, {vr(SM,2)}, {vr(SM+2,2)}")
        a(f"v_pk_add_f32 {vr(SM+4,2)}, {vr(SM+4,2)}, {vr(SM+6,2)}")
        a(f"v_pk_add_f32 {vr(SM,2)}, {vr(SM,2)}, {vr(SM+4,2)}")
        a(f"v_add_f32 v{dst}, v{SM}, v{SM+1}")
        for rot in (8, 4, 2, 1):
            a("s_nop 1")
            a(f"v_add_f32_dpp v{dst}, v{dst}, v{dst} row_ror:{rot} row_mask:0xf bank_mask:0xf")
    MN = TM + 16
    reduce_row(MN)
    a(f"v_mul_f32 v{MN}, {f2h(1.0/640.0)}, v{MN}")
    a(f"v_mov_b32 v{MN+1}, v{MN}")
    for i in range(20):
        a(f"v_pk_add_f32 {vr(XF+2*i,2)}, {vr(XF+2*i,2)}, {vr(MN,2)} neg_lo:[0,1] neg_hi:[0,1]")
    for k in range(4):
        a(f"v_pk_mul_f32 {vr(SM+2*k,2)}, {vr(XF+2*k,2)}, {vr(XF+2*k,2)}")
    for i in range(4, 20):
        k = i % 4
        a(f"v_pk_fma_f32 {vr(SM+2*k,2)}, {vr(XF+2*i,2)}, {vr(XF+2*i,2)}, {vr(SM+2*k,2)}")
    reduce_row(MN)
    a(f"v_mov_b32 v{MN+1}, {f2h(1e-5)}")
    a(f"v_fmac_f32 v{MN+1}, {f2h(1.0/640.0)}, v{MN}")
    a(f"v_rsq_f32 v{MN}, v{MN+1}")
    a("s_nop 0")
    a(f"v_mov_b32 v{MN+1}, v{MN}")
    for i in range(20):
        a(f"v_pk_mul_f32 {vr(XF+2*i,2)}, {vr(XF+2*i,2)}, {vr(MN,2)}")
    for i in range(20):
        a(f"v_cvt_pk_bf16_f32 v{XR+i}, v{XF+2*i}, v{XF+2*i+1}")
    for i in range(5):
        a(f"ds_write_b128 v{TM+4}, {vr(XR+4*i,4)} offset:{i*256}")
    a("s_waitcnt lgkmcnt(0)")
    a("s_barrier")
    for i in range(5):
        a(f"ds_read_b64_tr_b16 {vr(XF+4*i,2)}, v{TM+5} offset:{i*128}")
        a(f"ds_read_b64_tr_b16 {vr(XF+4*i+2,2)}, v{TM+5} offset:{i*128+4*LN_ROW}")
    for i in range(5):
        a(f"s_waitcnt lgkmcnt({8-2*i})")
        a(f"s_add_u32 s{sT0}, s{sSTEP}, {i*4096}")
        a.vmem(f"buffer_store_dwordx4 {vr(XF+4*i,4)}, v{TM+6}, {srd(sH)}, s{sT0} offen {opt.stbits}", "h")
    stamp(a, opt, 2)
    get_nonce(a, opt)
    a(f"s_lshl_b32 s{sT0}, s{sWG}, 1")
    a(f"s_add_u32 s{sT0}, s{sT0}, s{sWAVE}")
    a(f"s_mul_i32 s{sT0}, s{sT0}, {opt.hstride}")
    flag_store(a, sT0)
    stamp(a, opt, 3)
    a("s_barrier")
    a("s_branch L_common")

    a.label("L_loader")
    a.vm = []
    a(f"s_cmp_lg_u32 s{sWG}, 0")
    a("s_cbranch_scc1 L_nononce")
    a(f"s_cmp_lg_u32 s{sWAVE}, 3")
    a("s_cbranch_scc1 L_nononce")
    a(f"s_memrealtime s[{sP}:{sP+1}]")
    a("s_waitcnt lgkmcnt(0)")
    a(f"s_or_b32 s{sT0}, s{sP}, 1")
    a(f"v_mov_b32 v{vT-6}, s{sT0}")
    a(f"v_mov_b32 v{vT}, 0")
    a(f"s_mov_b64 s[{sP}:{sP+1}], exec")
    a("s_mov_b64 exec, 1")
    a(f"buffer_store_dword v{vT-6}, v{vT}, {srd(sD)}, 0 offen sc1")
    a(f"s_mov_b64 exec, s[{sP}:{sP+1}]")
    a.label("L_nononce")
    a(f"s_cmp_ge_u32 s{sJ}, 27")
    a("s_cbranch_scc1 L_loader_idle")
    dma_addr(a, F * 2, sFT)
    for reg_i in range(2):
        if reg_i == 0:
            a(f"s_sub_u32 s{sT1}, s{sWAVE}, 2")
        else:
            a(f"s_mov_b32 s{sT1}, s{sWAVE}")
        a(f"s_lshl_b32 s{sT2}, s{sT1}, 15")
        a(f"s_mul_i32 s{sT3}, s{sT1}, {512*F*2}")
        for st in range(8):
            step_rowoff(a, sOFF, sT3, sROT1, st, 16, 32 * F * 2)
            dma_step(a, sW1, F * 2, sOFF, sT2, st, "w1a")
    a.label("L_loader_idle")
    a("s_barrier")
    get_nonce(a, opt)
    a("s_barrier")

    a.label("L_common")
    a.vm = []
    stamp(a, opt, 4)
    a(f"v_lshrrev_b32 v{vT}, 4, v{vLANE}")
    a(f"v_lshlrev_b32 v{vT}, 3, v{vT}")
    a(f"s_and_b32 s{sT0}, s{sWAVE}, 1")
    a(f"s_lshl_b32 s{sT0}, s{sT0}, 6")
    a(f"s_lshl_b32 s{sT1}, s{sFT}, 7")
    a(f"s_add_u32 s{sT0}, s{sT0}, s{sT1}")
    a.vmem(f"buffer_load_dwordx2 {vr(vB1,2)}, v{vT}, {srd(sB1)}, s{sT0} offen", "b")
    a.vmem(f"buffer_load_dwordx2 {vr(vB1+2,2)}, v{vT}, {srd(sB1)}, s{sT0} offen offset:32", "b")
    a(f"v_and_b32 v{vT}, 15, v{vLANE}")
    a(f"v_lshlrev_b32 v{vT}, 1, v{vT}")
    a(f"s_lshl_b32 s{sT0}, s{sST}, 7")
    a(f"s_lshl_b32 s{sT1}, s{sWAVE}, 5")
    a(f"s_add_u32 s{sT0}, s{sT0}, s{sT1}")
    a.vmem(f"buffer_load_ushort v{vB2}, v{vT}, {srd(sB2)}, s{sT0} offen", "b")
    a(f"s_cmp_ge_u32 s{sJ}, 27")
    a("s_cbranch_scc1 L_nogemm1")

    dma_addr(a, F * 2, sFT)
    for st in range(8):
        tr_step(a, st, st)
        if st % 2 == 1: a("s_waitcnt lgkmcnt(0)")
    a(f"s_mul_i32 s{sT3}, s{sWAVE}, {512*F*2}")
    for st in range(8, 16):
        step_rowoff(a, sOFF, sT3, sROT1, st, 16, 32 * F * 2)
        dma_step(a, sW1, F * 2, sOFF, sM0B, st - 8, f"w1b{st}")
    for st in range(8, 16):
        a.wait_vm(f"w1b{st}")
        tr_step(a, st - 8, st)
        if st % 2 == 1: a("s_waitcnt lgkmcnt(0)")
    stamp(a, opt, 5)
    dma_addr(a, S * 2, sST)
    a(f"v_lshlrev_b32 v{vA}, 4, v{vLANE}")
    a(f"s_mul_i32 s{sT0}, s{sDT1}, 5120")
    a(f"v_add_u32 v{vA}, s{sT0}, v{vA}")
    a(f"v_add_u32 v{vA2}, 4096, v{vA}")
    a(f"s_lshl_b32 s{sT0}, s{sWAVE}, 6")
    a(f"v_add_u32 v{vT}, s{sT0}, v{vLANE}")
    if opt.hstride == 4:
        a(f"v_lshlrev_b32 v{vT}, 3, v{vT}")
        poll(a, opt, vT, 2, None)
    else:
        raise SystemExit("hstride")
    if opt.exp & 8:
        a("s_mov_b32 s79, 0")
        a.label("L_dly")
        a("s_sleep 8")
        a("s_add_u32 s79, s79, 1")
        a("s_cmp_lt_u32 s79, 16")
        a("s_cbranch_scc1 L_dly")
    stamp(a, opt, 6)

    def a_loads(srdn, step, nsteps, s_rot, slot, tag):
        step_rowoff(a, sOFF, sSTEP, s_rot, step, nsteps, 40960)
        return [f"buffer_load_dwordx4 {vr(ring(slot,t),4)}, v{vA if t < 4 else vA2}, {srd(srdn)}, s{sOFF} offen offset:{(t*1024) if t < 4 else 0} {opt.ldbits}" for t in range(5)]

    a(f"s_mul_i32 s{sSTEP}, s{sWAVE}, {16*40960}")
    if opt.exp & 16: sHL = sW2
    else: sHL = sH
    for st in range(8):
        for ins in a_loads(sHL, st, 16, sROT1, st, None): a.vmem(ins, f"h{st}")
    a(f"s_mul_i32 s{sT3}, s{sWAVE}, {448*S*2}")
    for st in range(16):
        a.wait_vm(f"h{st}")
        if st == 0: stamp(a, opt, 14)
        if st == 8: stamp(a, opt, 15)
        nxt = a_loads(sHL, st + 8, 16, sROT1, st % 8, None) if (st + 8 < 16 and not (opt.exp & 2)) else None
        for nt in range(5):
            for mt in range(4):
                c = "0" if st == 0 else vr(acc1(mt, nt), 4)
                if not (opt.exp & 1) or st == 0:
                    a(f"v_mfma_f32_16x16x32_bf16 {vr(acc1(mt,nt),4)}, {ar(wfrag(st,mt),4)}, {vr(ring(st%8,nt),4)}, {c}")
            if nxt: a.vmem(nxt[nt], f"h{st+8}")
        if 8 <= st < 14 and not (opt.exp & 4):
            step_rowoff(a, sOFF, sT3, sROT2, st - 8, 14, 32 * S * 2)
            dma_step(a, sW2, S * 2, sOFF, sM0B, st - 8, "w2a")
    stamp(a, opt, 7)
    a(f"s_mov_b32 s100, {f2h(C1)}"); a(f"s_mov_b32 s101, {f2h(C1)}")
    a(f"v_mov_b32 v250, {f2h(C0)}"); a(f"v_mov_b32 v251, {f2h(C0)}")
    vL0, vL1, vL2 = 247, 248, 249
    a(f"v_lshlrev_b32 v{vL0}, 4, v{vLANE}")
    a(f"v_add_u32 v{vL1}, 65536, v{vL0}")
    a(f"v_add_u32 v{vL2}, 131072, v{vL0}")
    def lds_ref(addr):
        if addr < 65536: return vL0, addr
        if addr < 131072: return vL1, addr - 65536
        return vL2, addr - 131072
    def owner1(p, nt): return p + (0 if nt < 3 else 2)
    units = [(p, nt) for p in range(2) for nt in range(5)]
    def red1_addr(src, u):
        k = [x for x in units if owner1(*x) != src].index(u)
        return src * 32768 + 24576 + k * 2048 if k < 4 else 131072 + src * 8192 + (k - 4) * 2048
    saved_vm = list(a.vm)
    for w in range(4):
        if w < 3:
            a(f"s_cmp_lg_u32 s{sWAVE}, {w}")
            a(f"s_cbranch_scc1 L_ep1_{w+1}")
        a.vm = list(saved_vm)
        a("s_nop 7")
        for u in units:
            if owner1(*u) == w: continue
            p, nt = u
            for hf in range(2):
                vb, off = lds_ref(red1_addr(w, u) + hf * 1024)
                a(f"ds_write_b128 v{vb}, {vr(acc1(2*p+hf, nt),4)} offset:{off}")
        a("s_waitcnt lgkmcnt(0)")
        a("s_barrier")
        own = [u for u in units if owner1(*u) == w]
        RT = vRING
        n = 0
        for u in own:
            for src in range(4):
                if src == w: continue
                for hf in range(2):
                    vb, off = lds_ref(red1_addr(src, u) + hf * 1024)
                    a(f"ds_read_b128 {vr(RT + n*4, 4)}, v{vb} offset:{off}")
                    n += 1
        BI = 232
        a.wait_vm("b")
        for i in range(4):
            a(f"v_lshlrev_b32 v{BI+2*i}, 16, v{vB1+i}")
            a(f"v_and_b32 v{BI+2*i+1}, 0xffff0000, v{vB1+i}")
        n = 0
        tot = len(own) * 6
        for u in own:
            p, nt = u
            for si in range(3):
                for hf in range(2):
                    a(f"s_waitcnt lgkmcnt({min(15, tot - n - 1)})")
                    r = acc1(2*p+hf, nt)
                    a(f"v_pk_add_f32 {vr(r,2)}, {vr(r,2)}, {vr(RT+n*4,2)}")
                    a(f"v_pk_add_f32 {vr(r+2,2)}, {vr(r+2,2)}, {vr(RT+n*4+2,2)}")
                    n += 1
        a("s_barrier")
        regs = []
        for u in own:
            p, nt = u
            for hf in range(2):
                r = acc1(2*p+hf, nt)
                a(f"v_pk_add_f32 {vr(r,2)}, {vr(r,2)}, {vr(BI+4*hf,2)}")
                a(f"v_pk_add_f32 {vr(r+2,2)}, {vr(r+2,2)}, {vr(BI+4*hf+2,2)}")
                regs += [r, r + 2]
        gelu_pairs(a, regs, RT)
        a(f"s_lshl_b32 s{sT0}, s{sFT}, 1")
        a(f"s_add_u32 s{sT0}, s{sT0}, {w & 1}")
        a(f"s_mul_i32 s{sT0}, s{sT0}, 40960")
        a(f"s_mul_i32 s{sT1}, s{sDT1}, 5120")
        a(f"s_add_u32 s{sT0}, s{sT0}, s{sT1}")
        for i, u in enumerate(own):
            p, nt = u
            o = RT + 64 + 4 * i
            r0, r1 = acc1(2*p, nt), acc1(2*p+1, nt)
            a(f"v_cvt_pk_bf16_f32 v{o}, v{r0}, v{r0+1}")
            a(f"v_cvt_pk_bf16_f32 v{o+1}, v{r0+2}, v{r0+3}")
            a(f"v_cvt_pk_bf16_f32 v{o+2}, v{r1}, v{r1+1}")
            a(f"v_cvt_pk_bf16_f32 v{o+3}, v{r1+2}, v{r1+3}")
            a(f"s_add_u32 s{sT1}, s{sT0}, {nt*1024}")
            a.vmem(f"buffer_store_dwordx4 {vr(o,4)}, v{vL0}, {srd(sG)}, s{sT1} offen {opt.stbits}", "g")
        stamp(a, opt, 8)
        a.wait_vm("w2a")
        for st in range(6):
            tr_step(a, st, st)
            if st % 2 == 1: a("s_waitcnt lgkmcnt(0)")
        for st in range(6, 14):
            step_rowoff(a, sOFF, sT3, sROT2, st, 14, 32 * S * 2)
            dma_step(a, sW2, S * 2, sOFF, sM0B, st - 6, f"w2b{st}")
        a.wait_vm("g")
        a(f"s_lshl_b32 s{sT0}, s{sDT1}, 5")
        a(f"s_add_u32 s{sT0}, s{sT0}, s{sFT}")
        a(f"s_lshl_b32 s{sT0}, s{sT0}, 4")
        a(f"s_add_u32 s{sT0}, s{sT0}, {FLAG_G + 4*w}")
        flag_store(a, sT0)
        stamp(a, opt, 9)
        vm_after = list(a.vm)
        a("s_branch L_pre2")
        if w < 3: a.label(f"L_ep1_{w+1}")

    a.label("L_nogemm1")
    a.vm = ["b", "b", "b"]
    dma_addr(a, S * 2, sST)
    a(f"s_mul_i32 s{sT3}, s{sWAVE}, {448*S*2}")
    for st in range(6):
        step_rowoff(a, sOFF, sT3, sROT2, st, 14, 32 * S * 2)
        dma_step(a, sW2, S * 2, sOFF, sM0B, st, "w2a")
    a.wait_vm("w2a")
    for st in range(6):
        tr_step(a, st, st)
        if st % 2 == 1: a("s_waitcnt lgkmcnt(0)")
    for st in range(6, 14):
        step_rowoff(a, sOFF, sT3, sROT2, st, 14, 32 * S * 2)
        dma_step(a, sW2, S * 2, sOFF, sM0B, st - 6, f"w2b{st}")

    a.label("L_pre2")
    a.wait_vm0()
    for st in range(6, 14):
        tr_step(a, st - 6, st)
        if st % 2 == 1: a("s_waitcnt lgkmcnt(0)")
    stamp(a, opt, 10)
    a(f"v_lshlrev_b32 v{vA}, 4, v{vLANE}")
    a(f"s_mul_i32 s{sT0}, s{sDT2}, 5120")
    a(f"v_add_u32 v{vA}, s{sT0}, v{vA}")
    a(f"v_add_u32 v{vA2}, 4096, v{vA}")
    a(f"s_lshl_b32 s{sT0}, s{sDT2}, 5")
    a(f"s_mul_i32 s{sT1}, s{sWAVE}, 7")
    a(f"s_add_u32 s{sT0}, s{sT0}, s{sT1}")
    a(f"s_lshl_b32 s{sT0}, s{sT0}, 4")
    a(f"s_add_u32 s{sT0}, s{sT0}, {FLAG_G}")
    a(f"v_lshlrev_b32 v{vT}, 2, v{vLANE}")
    a(f"v_add_u32 v{vT}, s{sT0}, v{vT}")
    a(f"s_cmp_eq_u32 s{sWAVE}, 3")
    a(f"s_mov_b32 s{sP+3}, 0xffffff")
    a(f"s_cselect_b32 s{sP+2}, s{sP+3}, 0xfffffff")
    a(f"s_mov_b32 s{sP+3}, 0")
    poll(a, opt, vT, 1, sP + 2)
    stamp(a, opt, 11)
    a(f"s_mul_i32 s{sSTEP}, s{sWAVE}, {14*40960}")
    for st in range(8):
        for ins in a_loads(sG, st, 14, sROT2, st, None): a.vmem(ins, f"g{st}")
    for st in range(14):
        a.wait_vm(f"g{st}")
        nxt = a_loads(sG, st + 8, 14, sROT2, st % 8, None) if st + 8 < 14 else None
        for mt in range(5):
            for nt in range(4):
                c = "0" if st == 0 else vr(acc2(mt, nt), 4)
                a(f"v_mfma_f32_16x16x32_bf16 {vr(acc2(mt,nt),4)}, {vr(ring(st%8,mt),4)}, {ar(wfrag(st,nt),4)}, {c}")
            if nxt: a.vmem(nxt[mt], f"g{st+8}")
    stamp(a, opt, 12)
    vL0, vL1 = 247, 248
    a(f"v_lshlrev_b32 v{vL0}, 4, v{vLANE}")
    a(f"v_add_u32 v{vL1}, 65536, v{vL0}")
    a(f"v_and_b32 v{vT}, 15, v{vLANE}")
    a(f"s_lshl_b32 s{sT0}, s{sWAVE}, 4")
    a(f"v_add_u32 v{vT}, s{sT0}, v{vT}")
    a(f"v_mul_u32_u24 v{vA}, 1280, v{vT}")
    a(f"v_lshrrev_b32 v{vT}, 4, v{vLANE}")
    a(f"v_lshlrev_b32 v{vT}, 3, v{vT}")
    a(f"v_add_u32 v{vA}, v{vA}, v{vT}")
    a(f"s_mul_i32 s{sT0}, s{sST}, {64*1280}")
    a(f"s_mul_i32 s{sT1}, s{sDT2}, 160")
    a(f"s_add_u32 s{sOFF}, s{sT0}, s{sT1}")
    a(f"v_lshlrev_b32 v{vB2}, 16, v{vB2}")
    def red2_addr(src, nt, mt):
        k = [x for x in range(4) if x != src].index(nt)
        return src * 32768 + (k * 5 + mt) * 1024
    def lds_ref2(addr):
        return (vL0, addr) if addr < 65536 else (vL1, addr - 65536)
    for w in range(4):
        if w < 3:
            a(f"s_cmp_lg_u32 s{sWAVE}, {w}")
            a(f"s_cbranch_scc1 L_ep2_{w+1}")
        a("s_nop 7")
        for nt in range(4):
            if nt == w: continue
            for mt in range(5):
                vb, off = lds_ref2(red2_addr(w, nt, mt))
                a(f"ds_write_b128 v{vb}, {vr(acc2(mt,nt),4)} offset:{off}")
        a("s_waitcnt lgkmcnt(0)")
        a("s_barrier")
        RT = vRING
        n = 0
        for mt in range(5):
            for src in range(4):
                if src == w: continue
                vb, off = lds_ref2(red2_addr(src, w, mt))
                a(f"ds_read_b128 {vr(RT+n*4,4)}, v{vb} offset:{off}")
                n += 1
        n = 0
        for mt in range(5):
            r = acc2(mt, w)
            for si in range(3):
                a(f"s_waitcnt lgkmcnt({14 - n})")
                a(f"v_pk_add_f32 {vr(r,2)}, {vr(r,2)}, {vr(RT+n*4,2)}")
                a(f"v_pk_add_f32 {vr(r+2,2)}, {vr(r+2,2)}, {vr(RT+n*4+2,2)}")
                n += 1
            for k in range(4):
                a(f"v_add_f32 v{r+k}, v{r+k}, v{vB2}")
            o = RT + 64 + 2 * mt
            a(f"v_cvt_pk_bf16_f32 v{o}, v{r}, v{r+1}")
            a(f"v_cvt_pk_bf16_f32 v{o+1}, v{r+2}, v{r+3}")
            a(f"buffer_store_dwordx2 {vr(o,2)}, v{vA}, {srd(sO)}, s{sOFF} offen offset:{mt*32}")
        a("s_branch L_fin")
        if w < 3: a.label(f"L_ep2_{w+1}")
    a.label("L_fin")
    if opt.span:
        a("s_waitcnt vmcnt(0)")
        a(f"s_memrealtime s[{sP}:{sP+1}]")
        a("s_waitcnt lgkmcnt(0)")
        a("s_not_b32 s98, s98")
        a("v_mov_b32 v100, s98")
        a(f"v_mov_b32 v101, s{sP}")
        a("v_mov_b32 v102, 4")
        a("v_mov_b32 v103, 8")
        a("s_mov_b64 exec, 1")
        a(f"buffer_atomic_umax v100, v102, {srd(sD)}, 0 offen")
        a(f"buffer_atomic_umax v101, v103, {srd(sD)}, 0 offen")
        a("s_waitcnt vmcnt(0)")
    if opt.prof:
        a("s_waitcnt vmcnt(0)")
        stamp(a, opt, 13)
        a(f"s_add_u32 s{sT0}, s18, {WS_PROF}")
        a(f"s_addc_u32 s{sT1}, s19, 0")
        a(f"s_mov_b32 s{sX}, s{sT0}")
        a(f"s_and_b32 s{sX+1}, s{sT1}, 0xffff")
        a(f"s_mov_b32 s{sX+2}, 65536")
        a(f"s_lshl_b32 s{sT0}, s{sWG}, 2")
        a(f"s_add_u32 s{sT0}, s{sT0}, s{sWAVE}")
        a(f"s_lshl_b32 s{sT0}, s{sT0}, 6")
        a(f"v_mov_b32 v{vT}, s{sT0}")
        a("s_mov_b64 exec, 1")
        for i in range(16):
            a(f"v_mov_b32 v{100}, s{sPROF+i}")
            a(f"buffer_store_dword v100, v{vT}, {srd(sX)}, 0 offen offset:{4*i}")
            a("s_nop 1")
        a("s_waitcnt vmcnt(0)")
    a.label("L_done")
    a("s_endpgm")
    a.raw('.section .rodata,"a"')
    a.raw(".p2align 6")
    a.raw(f".amdhsa_kernel {KN}")
    for l in ["next_free_vgpr 512", "next_free_sgpr 102", "accum_offset 256", "group_segment_fixed_size 0",
              "kernarg_size 64", "user_sgpr_count 2", "user_sgpr_kernarg_segment_ptr 1",
              "system_sgpr_workgroup_id_x 1", "float_denorm_mode_32 3"]:
        a.raw(f"  .amdhsa_{l}")
    a.raw(".end_amdhsa_kernel")
    return "\n".join(a.L) + "\n"

import struct
def f2h(x): return "0x%08x" % struct.unpack("<I", struct.pack("<f", x))[0]
C0 = -2.0 * 0.7978845608028654 * 1.4426950408889634
C1 = C0 * 0.044715

if __name__ == "__main__":
    ap = argparse.ArgumentParser()
    ap.add_argument("-o", default="standalone__mixer_token_mlp__prompt.s")
    ap.add_argument("--prof", type=int, default=0)
    ap.add_argument("--rot", type=int, default=1)
    ap.add_argument("--spin", type=int, default=200000)
    ap.add_argument("--sleep", type=int, default=1)
    ap.add_argument("--hstride", type=int, default=4)
    ap.add_argument("--exp", type=int, default=0)
    ap.add_argument("--span", type=int, default=0)
    ap.add_argument("--stbits", default="sc1")
    ap.add_argument("--ldbits", default="sc1")
    opt = ap.parse_args()
    open(opt.o, "w").write(gen(opt))
```

```python
import sys, argparse

S, D, F = 2048, 640, 1728
KN = "standalone__mixer_token_mlp__prompt_kernel"

WS_H = 0
H_BYTES = 64 * 40 * 1024
WS_G = 0x300000
G_BYTES = 54 * 40 * 1024
WS_FLAG = 0x600000
FLAG_H = 0
FLAG_G = 0x10000
FLAG_BYTES = 0x20000
WS_PROF = 0x700000

LDS_BYTES = 163840
LN_BASE = 131072
LN_ROW = 1344

sKA = 0; sWG = 2
sX, sW1, sW2, sH, sG, sO, sF, sB1, sB2, sD = 20, 24, 28, 32, 36, 40, 44, 48, 52, 56
sWAVE, sXCD, sJ, sFT, sDT1, sST, sDT2, sNONCE = 60, 61, 62, 63, 64, 65, 66, 67
sT0, sT1, sT2, sT3, sT4, sT5 = 68, 69, 70, 71, 72, 73
sROT1, sROT2, sSTEP, sOFF = 74, 75, 76, 77
sM0B = 78
sSPIN = 79
sP = 80
sPROF = 84

vTID, vLANE = 0, 1
vTR = 2
vA = 6; vA2 = 7
vDMA = 8
vB1 = 10
vB2 = 14
vT = 15
vACC = 16
vRING = 96

def srd(n): return f"s[{n}:{n+3}]"
def vr(n, c=1): return f"v{n}" if c == 1 else f"v[{n}:{n+c-1}]"
def ar(n, c=1): return f"a{n}" if c == 1 else f"a[{n}:{n+c-1}]"

class Asm:
    def __init__(self):
        self.L = []
        self.vm = []
        self.uid = 0
    def __call__(self, s): self.L.append("    " + s)
    def label(self, s): self.L.append(s + ":")
    def raw(self, s): self.L.append(s)
    def c(self, s): self.L.append("    ; " + s)
    def vmem(self, s, tag):
        self(s); self.vm.append(tag)
    def wait_vm(self, tag):
        hits = [i for i, t in enumerate(self.vm) if t == tag]
        if not hits: return
        idx = hits[-1]
        n = len(self.vm) - 1 - idx
        self(f"s_waitcnt vmcnt({min(n, 63)})")
        self.vm = self.vm[idx + 1:]
    def wait_vm0(self):
        self("s_waitcnt vmcnt(0)"); self.vm = []
    def newlabel(self, p):
        self.uid += 1
        return f"L_{p}_{self.uid}"

def acc1(mt, nt): return vACC + (mt * 5 + nt) * 4
def acc2(mt, nt): return vACC + (mt * 4 + nt) * 4
def ring(slot, t): return vRING + slot * 20 + t * 4
def wfrag(step, t): return step * 16 + t * 4

def stamp(a, opt, idx):
    if opt.prof:
        a(f"s_mem{'time' if opt.prof == 2 else 'realtime'} s[{sP}:{sP+1}]")
        a("s_waitcnt lgkmcnt(0)")
        a(f"s_mov_b32 s{sPROF+idx}, s{sP}")

def make_srd(a, n, lo, size, add=0):
    if add:
        a(f"s_add_u32 s{n}, s{lo}, {add}")
        a(f"s_addc_u32 s{n+1}, s{lo+1}, 0")
        a(f"s_and_b32 s{n+1}, s{n+1}, 0xffff")
    else:
        a(f"s_mov_b32 s{n}, s{lo}")
        a(f"s_and_b32 s{n+1}, s{lo+1}, 0xffff")
    a(f"s_mov_b32 s{n+2}, {size}")
    a(f"s_mov_b32 s{n+3}, 0x20000")

def get_nonce(a, opt):
    lp = a.newlabel("nonce"); dn = a.newlabel("nonced")
    a(f"s_mov_b32 s{sSPIN}, 0")
    a(f"v_mov_b32 v{vT}, 0")
    a.label(lp)
    a(f"buffer_load_dword v{vT-6}, v{vT}, {srd(sD)}, 0 offen sc1")
    a("s_waitcnt vmcnt(0)")
    a(f"v_readfirstlane_b32 s{sNONCE}, v{vT-6}")
    a(f"s_add_u32 s{sSPIN}, s{sSPIN}, 1")
    a(f"s_cmp_lg_u32 s{sNONCE}, 0")
    a(f"s_cbranch_scc1 {dn}")
    a(f"s_cmp_lt_u32 s{sSPIN}, {opt.spin}")
    a(f"s_cbranch_scc1 {lp}")
    a.label(dn)
    a.vm = []

def dma_addr(a, stride, s_tile):
    a(f"v_lshrrev_b32 v{vT}, 3, v{vLANE}")
    a(f"v_lshrrev_b32 v{vDMA+1}, 1, v{vT}")
    a(f"v_lshlrev_b32 v{vDMA+1}, 1, v{vDMA+1}")
    a(f"v_and_b32 v{vDMA}, 7, v{vLANE}")
    a(f"v_xor_b32 v{vDMA}, v{vDMA}, v{vDMA+1}")
    a(f"v_lshlrev_b32 v{vDMA}, 4, v{vDMA}")
    a(f"s_mov_b32 s{sT0}, {stride}")
    a(f"v_mul_lo_u32 v{vT}, v{vT}, s{sT0}")
    a(f"v_add_u32 v{vDMA}, v{vDMA}, v{vT}")
    a(f"s_lshl_b32 s{sT0}, s{s_tile}, 7")
    a(f"v_add_u32 v{vDMA}, s{sT0}, v{vDMA}")

def dma_step(a, srdn, stride, s_rowoff, s_ldsbase, slot, tag):
    for blk in range(4):
        a(f"s_add_u32 m0, s{s_ldsbase}, {slot*4096 + blk*1024}")
        a(f"s_add_u32 s{sT5}, s{s_rowoff}, {blk*8*stride}")
        a.vmem(f"buffer_load_dwordx4 v{vDMA}, {srd(srdn)}, s{sT5} offen lds", tag)

def tr_step(a, slot, step):
    for t in range(4):
        w = wfrag(step, t)
        a(f"ds_read_b64_tr_b16 {ar(w,2)}, v{vTR+t} offset:{slot*4096}")
        a(f"ds_read_b64_tr_b16 {ar(w+2,2)}, v{vTR+t} offset:{slot*4096+2048}")

def step_rowoff(a, dst, s_base, s_rot, i, nsteps, bytes_per_step):
    a(f"s_add_u32 s{sT4}, s{s_rot}, {i}")
    a(f"s_cmp_ge_u32 s{sT4}, {nsteps}")
    a(f"s_cselect_b32 s{dst}, {nsteps}, 0")
    a(f"s_sub_u32 s{sT4}, s{sT4}, s{dst}")
    a(f"s_mul_i32 s{sT4}, s{sT4}, {bytes_per_step}")
    a(f"s_add_u32 s{dst}, s{sT4}, s{s_base}")

def poll(a, opt, vaddr, nd, lanes):
    lp = a.newlabel("poll"); dn = a.newlabel("polled")
    vP = ring(7, 0)
    a(f"s_mov_b32 s{sSPIN}, 0")
    a.label(lp)
    ld = {1: "dword", 2: "dwordx2"}[nd]
    a(f"buffer_load_{ld} {vr(vP, nd)}, v{vaddr}, {srd(sF)}, 0 offen sc1")
    a("s_waitcnt vmcnt(0)")
    a(f"v_cmp_ne_u32 vcc, s{sNONCE}, v{vP}")
    if nd == 2:
        a(f"v_cmp_ne_u32 s[{sP}:{sP+1}], s{sNONCE}, v{vP+1}")
        a(f"s_or_b64 vcc, vcc, s[{sP}:{sP+1}]")
    if lanes is not None:
        a(f"s_and_b64 vcc, vcc, s[{lanes}:{lanes+1}]")
    a(f"s_add_u32 s{sSPIN}, s{sSPIN}, 1")
    a("s_cmp_eq_u64 vcc, 0")
    a(f"s_cbranch_scc1 {dn}")
    if opt.sleep: a(f"s_sleep {opt.sleep}")
    a(f"s_cmp_lt_u32 s{sSPIN}, {opt.spin}")
    a(f"s_cbranch_scc1 {lp}")
    a.label(dn)
    a.vm = []

def flag_store(a, s_index_bytes):
    a(f"v_mov_b32 v{vT}, s{s_index_bytes}")
    a(f"v_mov_b32 v{vT-6}, s{sNONCE}")
    a(f"s_mov_b64 s[{sP}:{sP+1}], exec")
    a("s_mov_b64 exec, 1")
    a.vmem(f"buffer_store_dword v{vT-6}, v{vT}, {srd(sF)}, 0 offen sc1", "flag")
    a(f"s_mov_b64 exec, s[{sP}:{sP+1}]")

def gelu_pairs(a, regs, tmp):
    n = len(regs)
    for i, r in enumerate(regs):
        t = tmp + 2 * i
        a(f"v_pk_mul_f32 {vr(t,2)}, {vr(r,2)}, {vr(r,2)}")
    for i, r in enumerate(regs):
        t = tmp + 2 * i
        a(f"v_pk_fma_f32 {vr(t,2)}, {vr(t,2)}, s[100:101], v[250:251]")
    for i, r in enumerate(regs):
        t = tmp + 2 * i
        a(f"v_pk_mul_f32 {vr(t,2)}, {vr(t,2)}, {vr(r,2)}")
    for i, r in enumerate(regs):
        t = tmp + 2 * i
        a(f"v_exp_f32 v{t}, v{t}")
        a(f"v_exp_f32 v{t+1}, v{t+1}")
    for i, r in enumerate(regs):
        t = tmp + 2 * i
        a(f"v_pk_add_f32 {vr(t,2)}, {vr(t,2)}, 1.0 op_sel_hi:[1,0]")
    for i, r in enumerate(regs):
        t = tmp + 2 * i
        a(f"v_rcp_f32 v{t}, v{t}")
        a(f"v_rcp_f32 v{t+1}, v{t+1}")
    a("s_nop 0")
    for i, r in enumerate(regs):
        t = tmp + 2 * i
        a(f"v_pk_mul_f32 {vr(r,2)}, {vr(r,2)}, {vr(t,2)}")

def gen(opt):
    a = Asm()
    a.raw(f"; @launch grid=(256,1,1) block=(256,1,1) lds={LDS_BYTES}")
    a.raw('.amdgcn_target "amdgcn-amd-amdhsa--gfx950"')
    a.raw(".text")
    a.raw(f".globl {KN}")
    a.raw(".p2align 8")
    a.raw(f".type {KN},@function")
    a.label(KN)
    a(f"s_cmp_ge_u32 s{sWG}, 256")
    a("s_cbranch_scc1 L_done")
    a("s_load_dwordx16 s[4:19], s[0:1], 0")
    if opt.prof:
        a(f"s_mem{'time' if opt.prof == 2 else 'realtime'} s[{sP}:{sP+1}]")
    if opt.span or opt.pad:
        a("s_memrealtime s[98:99]")
    a(f"v_lshrrev_b32 v{vT}, 6, v{vTID}")
    a(f"v_and_b32 v{vLANE}, 63, v{vTID}")
    a(f"v_readfirstlane_b32 s{sWAVE}, v{vT}")
    a(f"s_and_b32 s{sXCD}, s{sWG}, 7")
    a(f"s_lshr_b32 s{sJ}, s{sWG}, 3")
    a(f"s_mul_i32 s{sT0}, s{sXCD}, 27")
    a(f"s_add_u32 s{sT0}, s{sT0}, s{sJ}")
    a(f"s_lshr_b32 s{sFT}, s{sT0}, 3")
    a(f"s_and_b32 s{sDT1}, s{sT0}, 7")
    a(f"s_lshr_b32 s{sT0}, s{sJ}, 3")
    a(f"s_lshl_b32 s{sST}, s{sXCD}, 2")
    a(f"s_add_u32 s{sST}, s{sST}, s{sT0}")
    a(f"s_and_b32 s{sDT2}, s{sJ}, 7")
    if opt.rot:
        a(f"s_lshl_b32 s{sROT1}, s{sDT1}, 1")
        a(f"s_and_b32 s{sT0}, s{sFT}, 3")
        a(f"s_lshl_b32 s{sT0}, s{sT0}, 2")
        a(f"s_add_u32 s{sROT1}, s{sROT1}, s{sT0}")
        a(f"s_and_b32 s{sROT1}, s{sROT1}, 15")
        a(f"s_lshl_b32 s{sROT2}, s{sDT2}, 1")
        a(f"s_and_b32 s{sT0}, s{sST}, 3")
        a(f"s_mul_i32 s{sT0}, s{sT0}, 3")
        a(f"s_add_u32 s{sROT2}, s{sROT2}, s{sT0}")
        a(f"s_cmp_ge_u32 s{sROT2}, 14")
        a(f"s_cselect_b32 s{sT0}, 14, 0")
        a(f"s_sub_u32 s{sROT2}, s{sROT2}, s{sT0}")
    else:
        a(f"s_mov_b32 s{sROT1}, 0")
        a(f"s_mov_b32 s{sROT2}, 0")
    a(f"s_lshl_b32 s{sM0B}, s{sWAVE}, 15")
    t0, t1, t2, t3 = 100, 101, 102, 103
    a(f"v_lshrrev_b32 v{t0}, 4, v{vLANE}")
    a(f"v_and_b32 v{t1}, 1, v{t0}")
    a(f"v_lshlrev_b32 v{t1}, 2, v{t1}")
    a(f"v_bfe_u32 v{t2}, v{vLANE}, 2, 2")
    a(f"v_add_u32 v{t1}, v{t1}, v{t2}")
    a(f"v_lshrrev_b32 v{t0}, 1, v{t0}")
    a(f"v_lshlrev_b32 v{t0}, 10, v{t0}")
    a(f"v_lshlrev_b32 v{t2}, 7, v{t1}")
    a(f"v_add_u32 v{t0}, v{t0}, v{t2}")
    a(f"v_and_b32 v{t2}, 3, v{vLANE}")
    a(f"v_lshlrev_b32 v{t2}, 3, v{t2}")
    a(f"v_add_u32 v{t0}, v{t0}, v{t2}")
    a(f"v_add_u32 v{t0}, s{sM0B}, v{t0}")
    a(f"v_lshrrev_b32 v{t1}, 1, v{t1}")
    for t in range(4):
        a(f"v_xor_b32 v{t2}, {t}, v{t1}")
        a(f"v_lshlrev_b32 v{t2}, 5, v{t2}")
        a(f"v_add_u32 v{vTR+t}, v{t0}, v{t2}")
    a("s_waitcnt lgkmcnt(0)")
    if opt.prof:
        a(f"s_mov_b32 s{sPROF}, s{sP}")
    make_srd(a, sX, 4, S * D * 2)
    make_srd(a, sW1, 6, S * F * 2)
    make_srd(a, sB1, 8, F * 2)
    make_srd(a, sW2, 10, F * S * 2)
    make_srd(a, sB2, 12, S * 2)
    make_srd(a, sO, 14, S * D * 2)
    make_srd(a, sD, 16, 256)
    make_srd(a, sH, 18, H_BYTES, WS_H)
    make_srd(a, sG, 18, G_BYTES, WS_G)
    make_srd(a, sF, 18, FLAG_BYTES, WS_FLAG)

    a(f"s_cmp_ge_u32 s{sWAVE}, 2")
    a("s_cbranch_scc1 L_loader")

    a.c("LayerNorm: wave w normalises rows 32*ks + 16*w + 4*q + (0..3), 16 lanes per row")
    XR = 96
    XF = 120
    TM = 160
    a(f"s_lshr_b32 s{sT0}, s{sWG}, 2")
    a(f"s_and_b32 s{sT1}, s{sWG}, 3")
    a(f"s_lshl_b32 s{sT2}, s{sT0}, 5")
    a(f"s_lshl_b32 s{sT3}, s{sWAVE}, 4")
    a(f"s_add_u32 s{sT2}, s{sT2}, s{sT3}")
    a(f"s_lshl_b32 s{sT3}, s{sT1}, 2")
    a(f"s_add_u32 s{sT2}, s{sT2}, s{sT3}")
    a(f"s_mul_i32 s{sT2}, s{sT2}, 1280")
    a(f"v_lshrrev_b32 v{TM}, 4, v{vLANE}")
    a(f"v_and_b32 v{TM+1}, 15, v{vLANE}")
    a(f"v_mul_u32_u24 v{TM+2}, 1280, v{TM}")
    a(f"v_lshlrev_b32 v{TM+3}, 4, v{TM+1}")
    a(f"v_add_u32 v{TM+2}, v{TM+2}, v{TM+3}")
    for i in range(5):
        a.vmem(f"buffer_load_dwordx4 {vr(XR+4*i,4)}, v{TM+2}, {srd(sX)}, s{sT2} offen offset:{i*256}", "x")
    a(f"s_mul_i32 s{sSTEP}, s{sT0}, 40960")
    a(f"s_lshl_b32 s{sT1}, s{sT1}, 8")
    a(f"s_add_u32 s{sSTEP}, s{sSTEP}, s{sT1}")
    a(f"s_lshl_b32 s{sT3}, s{sWAVE}, 2")
    a(f"v_add_u32 v{TM+4}, s{sT3}, v{TM}")
    a(f"v_mul_u32_u24 v{TM+4}, {LN_ROW}, v{TM+4}")
    a(f"v_add_u32 v{TM+4}, v{TM+4}, v{TM+3}")
    a(f"v_add_u32 v{TM+4}, {LN_BASE}, v{TM+4}")
    a(f"v_bfe_u32 v{TM+5}, v{vLANE}, 2, 2")
    a(f"v_mul_u32_u24 v{TM+5}, {LN_ROW}, v{TM+5}")
    a(f"s_mul_i32 s{sT3}, s{sWAVE}, 20")
    a(f"v_add_u32 v{TM+6}, s{sT3}, v{TM}")
    a(f"v_lshlrev_b32 v{TM+7}, 5, v{TM+6}")
    a(f"v_add_u32 v{TM+5}, v{TM+5}, v{TM+7}")
    a(f"v_and_b32 v{TM+7}, 3, v{vLANE}")
    a(f"v_lshlrev_b32 v{TM+7}, 3, v{TM+7}")
    a(f"v_add_u32 v{TM+5}, v{TM+5}, v{TM+7}")
    a(f"v_add_u32 v{TM+5}, {LN_BASE}, v{TM+5}")
    a(f"v_lshlrev_b32 v{TM+6}, 10, v{TM+6}")
    a(f"v_add_u32 v{TM+6}, v{TM+6}, v{TM+3}")
    a(f"s_mov_b32 s{sT0}, 0xffff0000")
    a.wait_vm("x")
    stamp(a, opt, 1)
    for i in range(20):
        a(f"v_lshlrev_b32 v{XF+2*i}, 16, v{XR+i}")
        a(f"v_and_b32 v{XF+2*i+1}, s{sT0}, v{XR+i}")
    SM = TM + 8
    for k in range(4):
        a(f"v_pk_add_f32 {vr(SM+2*k,2)}, {vr(XF+2*k,2)}, {vr(XF+8+2*k,2)}")
    for i in range(8, 20):
        k = i % 4
        a(f"v_pk_add_f32 {vr(SM+2*k,2)}, {vr(SM+2*k,2)}, {vr(XF+2*i,2)}")
    def reduce_row(dst):
        a(f"v_pk_add_f32 {vr(SM,2)}, {vr(SM,2)}, {vr(SM+2,2)}")
        a(f"v_pk_add_f32 {vr(SM+4,2)}, {vr(SM+4,2)}, {vr(SM+6,2)}")
        a(f"v_pk_add_f32 {vr(SM,2)}, {vr(SM,2)}, {vr(SM+4,2)}")
        a(f"v_add_f32 v{dst}, v{SM}, v{SM+1}")
        for rot in (8, 4, 2, 1):
            a("s_nop 1")
            a(f"v_add_f32_dpp v{dst}, v{dst}, v{dst} row_ror:{rot} row_mask:0xf bank_mask:0xf")
    MN = TM + 16
    reduce_row(MN)
    a(f"v_mul_f32 v{MN}, {f2h(1.0/640.0)}, v{MN}")
    a(f"v_mov_b32 v{MN+1}, v{MN}")
    for i in range(20):
        a(f"v_pk_add_f32 {vr(XF+2*i,2)}, {vr(XF+2*i,2)}, {vr(MN,2)} neg_lo:[0,1] neg_hi:[0,1]")
    for k in range(4):
        a(f"v_pk_mul_f32 {vr(SM+2*k,2)}, {vr(XF+2*k,2)}, {vr(XF+2*k,2)}")
    for i in range(4, 20):
        k = i % 4
        a(f"v_pk_fma_f32 {vr(SM+2*k,2)}, {vr(XF+2*i,2)}, {vr(XF+2*i,2)}, {vr(SM+2*k,2)}")
    reduce_row(MN)
    a(f"v_mov_b32 v{MN+1}, {f2h(1e-5)}")
    a(f"v_fmac_f32 v{MN+1}, {f2h(1.0/640.0)}, v{MN}")
    a(f"v_rsq_f32 v{MN}, v{MN+1}")
    a("s_nop 0")
    a(f"v_mov_b32 v{MN+1}, v{MN}")
    for i in range(20):
        a(f"v_pk_mul_f32 {vr(XF+2*i,2)}, {vr(XF+2*i,2)}, {vr(MN,2)}")
    for i in range(20):
        a(f"v_cvt_pk_bf16_f32 v{XR+i}, v{XF+2*i}, v{XF+2*i+1}")
    for i in range(5):
        a(f"ds_write_b128 v{TM+4}, {vr(XR+4*i,4)} offset:{i*256}")
    a("s_waitcnt lgkmcnt(0)")
    a("s_barrier")
    for i in range(5):
        a(f"ds_read_b64_tr_b16 {vr(XF+4*i,2)}, v{TM+5} offset:{i*128}")
        a(f"ds_read_b64_tr_b16 {vr(XF+4*i+2,2)}, v{TM+5} offset:{i*128+4*LN_ROW}")
    for i in range(5):
        a(f"s_waitcnt lgkmcnt({8-2*i})")
        a(f"s_add_u32 s{sT0}, s{sSTEP}, {i*4096}")
        a.vmem(f"buffer_store_dwordx4 {vr(XF+4*i,4)}, v{TM+6}, {srd(sH)}, s{sT0} offen {opt.stbits}", "h")
    stamp(a, opt, 2)
    get_nonce(a, opt)
    a(f"s_lshl_b32 s{sT0}, s{sWG}, 1")
    a(f"s_add_u32 s{sT0}, s{sT0}, s{sWAVE}")
    a(f"s_mul_i32 s{sT0}, s{sT0}, {opt.hstride}")
    flag_store(a, sT0)
    stamp(a, opt, 3)
    a("s_barrier")
    a("s_branch L_common")

    a.label("L_loader")
    a.vm = []
    a(f"s_cmp_lg_u32 s{sWG}, 0")
    a("s_cbranch_scc1 L_nononce")
    a(f"s_cmp_lg_u32 s{sWAVE}, 3")
    a("s_cbranch_scc1 L_nononce")
    a(f"s_memrealtime s[{sP}:{sP+1}]")
    a("s_waitcnt lgkmcnt(0)")
    a(f"s_or_b32 s{sT0}, s{sP}, 1")
    a(f"v_mov_b32 v{vT-6}, s{sT0}")
    a(f"v_mov_b32 v{vT}, 0")
    a(f"s_mov_b64 s[{sP}:{sP+1}], exec")
    a("s_mov_b64 exec, 1")
    a(f"buffer_store_dword v{vT-6}, v{vT}, {srd(sD)}, 0 offen sc1")
    a(f"s_mov_b64 exec, s[{sP}:{sP+1}]")
    a.label("L_nononce")
    a(f"s_cmp_ge_u32 s{sJ}, 27")
    a("s_cbranch_scc1 L_loader_idle")
    dma_addr(a, F * 2, sFT)
    for reg_i in range(2):
        if reg_i == 0:
            a(f"s_sub_u32 s{sT1}, s{sWAVE}, 2")
        else:
            a(f"s_mov_b32 s{sT1}, s{sWAVE}")
        a(f"s_lshl_b32 s{sT2}, s{sT1}, 15")
        a(f"s_mul_i32 s{sT3}, s{sT1}, {512*F*2}")
        for st in range(8):
            step_rowoff(a, sOFF, sT3, sROT1, st, 16, 32 * F * 2)
            dma_step(a, sW1, F * 2, sOFF, sT2, st, "w1a")
    a.label("L_loader_idle")
    a("s_barrier")
    get_nonce(a, opt)
    a("s_barrier")

    a.label("L_common")
    a.vm = []
    stamp(a, opt, 4)
    a(f"v_lshrrev_b32 v{vT}, 4, v{vLANE}")
    a(f"v_lshlrev_b32 v{vT}, 3, v{vT}")
    a(f"s_and_b32 s{sT0}, s{sWAVE}, 1")
    a(f"s_lshl_b32 s{sT0}, s{sT0}, 6")
    a(f"s_lshl_b32 s{sT1}, s{sFT}, 7")
    a(f"s_add_u32 s{sT0}, s{sT0}, s{sT1}")
    a.vmem(f"buffer_load_dwordx2 {vr(vB1,2)}, v{vT}, {srd(sB1)}, s{sT0} offen", "b")
    a.vmem(f"buffer_load_dwordx2 {vr(vB1+2,2)}, v{vT}, {srd(sB1)}, s{sT0} offen offset:32", "b")
    a(f"v_and_b32 v{vT}, 15, v{vLANE}")
    a(f"v_lshlrev_b32 v{vT}, 1, v{vT}")
    a(f"s_lshl_b32 s{sT0}, s{sST}, 7")
    a(f"s_lshl_b32 s{sT1}, s{sWAVE}, 5")
    a(f"s_add_u32 s{sT0}, s{sT0}, s{sT1}")
    a.vmem(f"buffer_load_ushort v{vB2}, v{vT}, {srd(sB2)}, s{sT0} offen", "b")
    a(f"s_cmp_ge_u32 s{sJ}, 27")
    a("s_cbranch_scc1 L_nogemm1")

    dma_addr(a, F * 2, sFT)
    for st in range(8):
        tr_step(a, st, st)
        if st % 2 == 1: a("s_waitcnt lgkmcnt(0)")
    a(f"s_mul_i32 s{sT3}, s{sWAVE}, {512*F*2}")
    for st in range(8, 16):
        step_rowoff(a, sOFF, sT3, sROT1, st, 16, 32 * F * 2)
        dma_step(a, sW1, F * 2, sOFF, sM0B, st - 8, f"w1b{st}")
    for st in range(8, 16):
        a.wait_vm(f"w1b{st}")
        tr_step(a, st - 8, st)
        if st % 2 == 1: a("s_waitcnt lgkmcnt(0)")
    stamp(a, opt, 5)
    dma_addr(a, S * 2, sST)
    a(f"v_lshlrev_b32 v{vA}, 4, v{vLANE}")
    a(f"s_mul_i32 s{sT0}, s{sDT1}, 5120")
    a(f"v_add_u32 v{vA}, s{sT0}, v{vA}")
    a(f"v_add_u32 v{vA2}, 4096, v{vA}")
    a(f"s_lshl_b32 s{sT0}, s{sWAVE}, 6")
    a(f"v_add_u32 v{vT}, s{sT0}, v{vLANE}")
    if opt.hstride == 4:
        a(f"v_lshlrev_b32 v{vT}, 3, v{vT}")
        poll(a, opt, vT, 2, None)
    else:
        raise SystemExit("hstride")
    if opt.exp & 8:
        a("s_mov_b32 s79, 0")
        a.label("L_dly")
        a("s_sleep 8")
        a("s_add_u32 s79, s79, 1")
        a("s_cmp_lt_u32 s79, 16")
        a("s_cbranch_scc1 L_dly")
    stamp(a, opt, 6)

    def a_loads(srdn, step, nsteps, s_rot, slot, tag):
        step_rowoff(a, sOFF, sSTEP, s_rot, step, nsteps, 40960)
        return [f"buffer_load_dwordx4 {vr(ring(slot,t),4)}, v{vA if t < 4 else vA2}, {srd(srdn)}, s{sOFF} offen offset:{(t*1024) if t < 4 else 0} {opt.ldbits}" for t in range(5)]

    a(f"s_mul_i32 s{sSTEP}, s{sWAVE}, {16*40960}")
    if opt.exp & 16: sHL = sW2
    else: sHL = sH
    for st in range(8):
        for ins in a_loads(sHL, st, 16, sROT1, st, None): a.vmem(ins, f"h{st}")
    a(f"s_mul_i32 s{sT3}, s{sWAVE}, {448*S*2}")
    for st in range(16):
        a.wait_vm(f"h{st}")
        if st == 0: stamp(a, opt, 14)
        if st == 8: stamp(a, opt, 15)
        nxt = a_loads(sHL, st + 8, 16, sROT1, st % 8, None) if (st + 8 < 16 and not (opt.exp & 2)) else None
        for nt in range(5):
            for mt in range(4):
                c = "0" if st == 0 else vr(acc1(mt, nt), 4)
                if not (opt.exp & 1) or st == 0:
                    a(f"v_mfma_f32_16x16x32_bf16 {vr(acc1(mt,nt),4)}, {ar(wfrag(st,mt),4)}, {vr(ring(st%8,nt),4)}, {c}")
            if nxt: a.vmem(nxt[nt], f"h{st+8}")
        if 8 <= st < 14 and not (opt.exp & 4):
            step_rowoff(a, sOFF, sT3, sROT2, st - 8, 14, 32 * S * 2)
            dma_step(a, sW2, S * 2, sOFF, sM0B, st - 8, "w2a")
    stamp(a, opt, 7)
    a(f"s_mov_b32 s100, {f2h(C1)}"); a(f"s_mov_b32 s101, {f2h(C1)}")
    a(f"v_mov_b32 v250, {f2h(C0)}"); a(f"v_mov_b32 v251, {f2h(C0)}")
    vL0, vL1, vL2 = 247, 248, 249
    a(f"v_lshlrev_b32 v{vL0}, 4, v{vLANE}")
    a(f"v_add_u32 v{vL1}, 65536, v{vL0}")
    a(f"v_add_u32 v{vL2}, 131072, v{vL0}")
    def lds_ref(addr):
        if addr < 65536: return vL0, addr
        if addr < 131072: return vL1, addr - 65536
        return vL2, addr - 131072
    def owner1(p, nt): return p + (0 if nt < 3 else 2)
    units = [(p, nt) for p in range(2) for nt in range(5)]
    def red1_addr(src, u):
        k = [x for x in units if owner1(*x) != src].index(u)
        return src * 32768 + 24576 + k * 2048 if k < 4 else 131072 + src * 8192 + (k - 4) * 2048
    saved_vm = list(a.vm)
    for w in range(4):
        if w < 3:
            a(f"s_cmp_lg_u32 s{sWAVE}, {w}")
            a(f"s_cbranch_scc1 L_ep1_{w+1}")
        a.vm = list(saved_vm)
        a("s_nop 7")
        for u in units:
            if owner1(*u) == w: continue
            p, nt = u
            for hf in range(2):
                vb, off = lds_ref(red1_addr(w, u) + hf * 1024)
                a(f"ds_write_b128 v{vb}, {vr(acc1(2*p+hf, nt),4)} offset:{off}")
        a("s_waitcnt lgkmcnt(0)")
        a("s_barrier")
        own = [u for u in units if owner1(*u) == w]
        RT = vRING
        n = 0
        for u in own:
            for src in range(4):
                if src == w: continue
                for hf in range(2):
                    vb, off = lds_ref(red1_addr(src, u) + hf * 1024)
                    a(f"ds_read_b128 {vr(RT + n*4, 4)}, v{vb} offset:{off}")
                    n += 1
        BI = 232
        a.wait_vm("b")
        for i in range(4):
            a(f"v_lshlrev_b32 v{BI+2*i}, 16, v{vB1+i}")
            a(f"v_and_b32 v{BI+2*i+1}, 0xffff0000, v{vB1+i}")
        n = 0
        tot = len(own) * 6
        for u in own:
            p, nt = u
            for si in range(3):
                for hf in range(2):
                    a(f"s_waitcnt lgkmcnt({min(15, tot - n - 1)})")
                    r = acc1(2*p+hf, nt)
                    a(f"v_pk_add_f32 {vr(r,2)}, {vr(r,2)}, {vr(RT+n*4,2)}")
                    a(f"v_pk_add_f32 {vr(r+2,2)}, {vr(r+2,2)}, {vr(RT+n*4+2,2)}")
                    n += 1
        a("s_barrier")
        regs = []
        for u in own:
            p, nt = u
            for hf in range(2):
                r = acc1(2*p+hf, nt)
                a(f"v_pk_add_f32 {vr(r,2)}, {vr(r,2)}, {vr(BI+4*hf,2)}")
                a(f"v_pk_add_f32 {vr(r+2,2)}, {vr(r+2,2)}, {vr(BI+4*hf+2,2)}")
                regs += [r, r + 2]
        gelu_pairs(a, regs, RT)
        a(f"s_lshl_b32 s{sT0}, s{sFT}, 1")
        a(f"s_add_u32 s{sT0}, s{sT0}, {w & 1}")
        a(f"s_mul_i32 s{sT0}, s{sT0}, 40960")
        a(f"s_mul_i32 s{sT1}, s{sDT1}, 5120")
        a(f"s_add_u32 s{sT0}, s{sT0}, s{sT1}")
        for i, u in enumerate(own):
            p, nt = u
            o = RT + 64 + 4 * i
            r0, r1 = acc1(2*p, nt), acc1(2*p+1, nt)
            a(f"v_cvt_pk_bf16_f32 v{o}, v{r0}, v{r0+1}")
            a(f"v_cvt_pk_bf16_f32 v{o+1}, v{r0+2}, v{r0+3}")
            a(f"v_cvt_pk_bf16_f32 v{o+2}, v{r1}, v{r1+1}")
            a(f"v_cvt_pk_bf16_f32 v{o+3}, v{r1+2}, v{r1+3}")
            a(f"s_add_u32 s{sT1}, s{sT0}, {nt*1024}")
            a.vmem(f"buffer_store_dwordx4 {vr(o,4)}, v{vL0}, {srd(sG)}, s{sT1} offen {opt.stbits}", "g")
        stamp(a, opt, 8)
        a.wait_vm("w2a")
        for st in range(6):
            tr_step(a, st, st)
            if st % 2 == 1: a("s_waitcnt lgkmcnt(0)")
        for st in range(6, 14):
            step_rowoff(a, sOFF, sT3, sROT2, st, 14, 32 * S * 2)
            dma_step(a, sW2, S * 2, sOFF, sM0B, st - 6, f"w2b{st}")
        a.wait_vm("g")
        a(f"s_lshl_b32 s{sT0}, s{sDT1}, 5")
        a(f"s_add_u32 s{sT0}, s{sT0}, s{sFT}")
        a(f"s_lshl_b32 s{sT0}, s{sT0}, 4")
        a(f"s_add_u32 s{sT0}, s{sT0}, {FLAG_G + 4*w}")
        flag_store(a, sT0)
        stamp(a, opt, 9)
        vm_after = list(a.vm)
        a("s_branch L_pre2")
        if w < 3: a.label(f"L_ep1_{w+1}")

    a.label("L_nogemm1")
    a.vm = ["b", "b", "b"]
    dma_addr(a, S * 2, sST)
    a(f"s_mul_i32 s{sT3}, s{sWAVE}, {448*S*2}")
    for st in range(6):
        step_rowoff(a, sOFF, sT3, sROT2, st, 14, 32 * S * 2)
        dma_step(a, sW2, S * 2, sOFF, sM0B, st, "w2a")
    a.wait_vm("w2a")
    for st in range(6):
        tr_step(a, st, st)
        if st % 2 == 1: a("s_waitcnt lgkmcnt(0)")
    for st in range(6, 14):
        step_rowoff(a, sOFF, sT3, sROT2, st, 14, 32 * S * 2)
        dma_step(a, sW2, S * 2, sOFF, sM0B, st - 6, f"w2b{st}")

    a.label("L_pre2")
    a.wait_vm0()
    for st in range(6, 14):
        tr_step(a, st - 6, st)
        if st % 2 == 1: a("s_waitcnt lgkmcnt(0)")
    stamp(a, opt, 10)
    a(f"v_lshlrev_b32 v{vA}, 4, v{vLANE}")
    a(f"s_mul_i32 s{sT0}, s{sDT2}, 5120")
    a(f"v_add_u32 v{vA}, s{sT0}, v{vA}")
    a(f"v_add_u32 v{vA2}, 4096, v{vA}")
    a(f"s_lshl_b32 s{sT0}, s{sDT2}, 5")
    a(f"s_mul_i32 s{sT1}, s{sWAVE}, 7")
    a(f"s_add_u32 s{sT0}, s{sT0}, s{sT1}")
    a(f"s_lshl_b32 s{sT0}, s{sT0}, 4")
    a(f"s_add_u32 s{sT0}, s{sT0}, {FLAG_G}")
    a(f"v_lshlrev_b32 v{vT}, 2, v{vLANE}")
    a(f"v_add_u32 v{vT}, s{sT0}, v{vT}")
    a(f"s_cmp_eq_u32 s{sWAVE}, 3")
    a(f"s_mov_b32 s{sP+3}, 0xffffff")
    a(f"s_cselect_b32 s{sP+2}, s{sP+3}, 0xfffffff")
    a(f"s_mov_b32 s{sP+3}, 0")
    poll(a, opt, vT, 1, sP + 2)
    stamp(a, opt, 11)
    a(f"s_mul_i32 s{sSTEP}, s{sWAVE}, {14*40960}")
    for st in range(8):
        for ins in a_loads(sG, st, 14, sROT2, st, None): a.vmem(ins, f"g{st}")
    for st in range(14):
        a.wait_vm(f"g{st}")
        nxt = a_loads(sG, st + 8, 14, sROT2, st % 8, None) if st + 8 < 14 else None
        for mt in range(5):
            for nt in range(4):
                c = "0" if st == 0 else vr(acc2(mt, nt), 4)
                a(f"v_mfma_f32_16x16x32_bf16 {vr(acc2(mt,nt),4)}, {vr(ring(st%8,mt),4)}, {ar(wfrag(st,nt),4)}, {c}")
            if nxt: a.vmem(nxt[mt], f"g{st+8}")
    stamp(a, opt, 12)
    vL0, vL1 = 247, 248
    a(f"v_lshlrev_b32 v{vL0}, 4, v{vLANE}")
    a(f"v_add_u32 v{vL1}, 65536, v{vL0}")
    a(f"v_and_b32 v{vT}, 15, v{vLANE}")
    a(f"s_lshl_b32 s{sT0}, s{sWAVE}, 4")
    a(f"v_add_u32 v{vT}, s{sT0}, v{vT}")
    a(f"v_mul_u32_u24 v{vA}, 1280, v{vT}")
    a(f"v_lshrrev_b32 v{vT}, 4, v{vLANE}")
    a(f"v_lshlrev_b32 v{vT}, 3, v{vT}")
    a(f"v_add_u32 v{vA}, v{vA}, v{vT}")
    a(f"s_mul_i32 s{sT0}, s{sST}, {64*1280}")
    a(f"s_mul_i32 s{sT1}, s{sDT2}, 160")
    a(f"s_add_u32 s{sOFF}, s{sT0}, s{sT1}")
    a(f"v_lshlrev_b32 v{vB2}, 16, v{vB2}")
    def red2_addr(src, nt, mt):
        k = [x for x in range(4) if x != src].index(nt)
        return src * 32768 + (k * 5 + mt) * 1024
    def lds_ref2(addr):
        return (vL0, addr) if addr < 65536 else (vL1, addr - 65536)
    for w in range(4):
        if w < 3:
            a(f"s_cmp_lg_u32 s{sWAVE}, {w}")
            a(f"s_cbranch_scc1 L_ep2_{w+1}")
        a("s_nop 7")
        for nt in range(4):
            if nt == w: continue
            for mt in range(5):
                vb, off = lds_ref2(red2_addr(w, nt, mt))
                a(f"ds_write_b128 v{vb}, {vr(acc2(mt,nt),4)} offset:{off}")
        a("s_waitcnt lgkmcnt(0)")
        a("s_barrier")
        RT = vRING
        n = 0
        for mt in range(5):
            for src in range(4):
                if src == w: continue
                vb, off = lds_ref2(red2_addr(src, w, mt))
                a(f"ds_read_b128 {vr(RT+n*4,4)}, v{vb} offset:{off}")
                n += 1
        n = 0
        for mt in range(5):
            r = acc2(mt, w)
            for si in range(3):
                a(f"s_waitcnt lgkmcnt({14 - n})")
                a(f"v_pk_add_f32 {vr(r,2)}, {vr(r,2)}, {vr(RT+n*4,2)}")
                a(f"v_pk_add_f32 {vr(r+2,2)}, {vr(r+2,2)}, {vr(RT+n*4+2,2)}")
                n += 1
            for k in range(4):
                a(f"v_add_f32 v{r+k}, v{r+k}, v{vB2}")
            o = RT + 64 + 2 * mt
            a(f"v_cvt_pk_bf16_f32 v{o}, v{r}, v{r+1}")
            a(f"v_cvt_pk_bf16_f32 v{o+1}, v{r+2}, v{r+3}")
            a(f"buffer_store_dwordx2 {vr(o,2)}, v{vA}, {srd(sO)}, s{sOFF} offen offset:{mt*32}")
        a("s_branch L_fin")
        if w < 3: a.label(f"L_ep2_{w+1}")
    a.label("L_fin")
    if opt.pad:
        a.label("L_pad")
        a(f"s_memrealtime s[{sP}:{sP+1}]")
        a("s_waitcnt lgkmcnt(0)")
        a(f"s_sub_u32 s{sT0}, s{sP}, s98")
        a(f"s_cmp_lt_u32 s{sT0}, {opt.pad}")
        a("s_cbranch_scc1 L_pad")
    if opt.span:
        a("s_waitcnt vmcnt(0)")
        a(f"s_memrealtime s[{sP}:{sP+1}]")
        a("s_waitcnt lgkmcnt(0)")
        a("s_not_b32 s98, s98")
        a("v_mov_b32 v100, s98")
        a(f"v_mov_b32 v101, s{sP}")
        a("v_mov_b32 v102, 4")
        a("v_mov_b32 v103, 8")
        a("s_mov_b64 exec, 1")
        a(f"buffer_atomic_umax v100, v102, {srd(sD)}, 0 offen")
        a(f"buffer_atomic_umax v101, v103, {srd(sD)}, 0 offen")
        a("s_waitcnt vmcnt(0)")
    if opt.prof:
        a("s_waitcnt vmcnt(0)")
        stamp(a, opt, 13)
        a(f"s_add_u32 s{sT0}, s18, {WS_PROF}")
        a(f"s_addc_u32 s{sT1}, s19, 0")
        a(f"s_mov_b32 s{sX}, s{sT0}")
        a(f"s_and_b32 s{sX+1}, s{sT1}, 0xffff")
        a(f"s_mov_b32 s{sX+2}, 65536")
        a(f"s_lshl_b32 s{sT0}, s{sWG}, 2")
        a(f"s_add_u32 s{sT0}, s{sT0}, s{sWAVE}")
        a(f"s_lshl_b32 s{sT0}, s{sT0}, 6")
        a(f"v_mov_b32 v{vT}, s{sT0}")
        a("s_mov_b64 exec, 1")
        for i in range(16):
            a(f"v_mov_b32 v{100}, s{sPROF+i}")
            a(f"buffer_store_dword v100, v{vT}, {srd(sX)}, 0 offen offset:{4*i}")
            a("s_nop 1")
        a("s_waitcnt vmcnt(0)")
    a.label("L_done")
    a("s_endpgm")
    a.raw('.section .rodata,"a"')
    a.raw(".p2align 6")
    a.raw(f".amdhsa_kernel {KN}")
    for l in ["next_free_vgpr 512", "next_free_sgpr 102", "accum_offset 256", "group_segment_fixed_size 0",
              "kernarg_size 64", "user_sgpr_count 2", "user_sgpr_kernarg_segment_ptr 1",
              "system_sgpr_workgroup_id_x 1", "float_denorm_mode_32 3"]:
        a.raw(f"  .amdhsa_{l}")
    a.raw(".end_amdhsa_kernel")
    return "\n".join(a.L) + "\n"

import struct
def f2h(x): return "0x%08x" % struct.unpack("<I", struct.pack("<f", x))[0]
C0 = -2.0 * 0.7978845608028654 * 1.4426950408889634
C1 = C0 * 0.044715

if __name__ == "__main__":
    ap = argparse.ArgumentParser()
    ap.add_argument("-o", default="standalone__mixer_token_mlp__prompt.s")
    ap.add_argument("--prof", type=int, default=0)
    ap.add_argument("--rot", type=int, default=1)
    ap.add_argument("--spin", type=int, default=200000)
    ap.add_argument("--sleep", type=int, default=1)
    ap.add_argument("--hstride", type=int, default=4)
    ap.add_argument("--exp", type=int, default=0)
    ap.add_argument("--pad", type=int, default=0)
    ap.add_argument("--span", type=int, default=0)
    ap.add_argument("--stbits", default="sc1")
    ap.add_argument("--ldbits", default="sc1")
    opt = ap.parse_args()
    open(opt.o, "w").write(gen(opt))
```

```python
import sys, argparse

S, D, F = 2048, 640, 1728
KN = "standalone__mixer_token_mlp__prompt_kernel"

WS_H = 0
H_BYTES = 64 * 40 * 1024
WS_G = 0x300000
G_BYTES = 54 * 40 * 1024
WS_FLAG = 0x600000
FLAG_H = 0
FLAG_G = 0x10000
FLAG_BYTES = 0x20000
WS_PROF = 0x700000

LDS_BYTES = 163840
LN_BASE = 131072
LN_ROW = 1344

sKA = 0; sWG = 2
sX, sW1, sW2, sH, sG, sO, sF, sB1, sB2, sD = 20, 24, 28, 32, 36, 40, 44, 48, 52, 56
sWAVE, sXCD, sJ, sFT, sDT1, sST, sDT2, sNONCE = 60, 61, 62, 63, 64, 65, 66, 67
sT0, sT1, sT2, sT3, sT4, sT5 = 68, 69, 70, 71, 72, 73
sROT1, sROT2, sSTEP, sOFF = 74, 75, 76, 77
sM0B = 78
sSPIN = 79
sP = 80
sPROF = 84

vTID, vLANE = 0, 1
vTR = 2
vA = 6; vA2 = 7
vDMA = 8
vB1 = 10
vB2 = 14
vT = 15
vACC = 16
vRING = 96

def srd(n): return f"s[{n}:{n+3}]"
def vr(n, c=1): return f"v{n}" if c == 1 else f"v[{n}:{n+c-1}]"
def ar(n, c=1): return f"a{n}" if c == 1 else f"a[{n}:{n+c-1}]"

class Asm:
    def __init__(self):
        self.L = []
        self.vm = []
        self.uid = 0
    def __call__(self, s): self.L.append("    " + s)
    def label(self, s): self.L.append(s + ":")
    def raw(self, s): self.L.append(s)
    def c(self, s): self.L.append("    ; " + s)
    def vmem(self, s, tag):
        self(s); self.vm.append(tag)
    def wait_vm(self, tag):
        hits = [i for i, t in enumerate(self.vm) if t == tag]
        if not hits: return
        idx = hits[-1]
        n = len(self.vm) - 1 - idx
        self(f"s_waitcnt vmcnt({min(n, 63)})")
        self.vm = self.vm[idx + 1:]
    def wait_vm0(self):
        self("s_waitcnt vmcnt(0)"); self.vm = []
    def newlabel(self, p):
        self.uid += 1
        return f"L_{p}_{self.uid}"

def acc1(mt, nt): return vACC + (mt * 5 + nt) * 4
def acc2(mt, nt): return vACC + (mt * 4 + nt) * 4
def ring(slot, t): return vRING + slot * 20 + t * 4
def wfrag(step, t): return step * 16 + t * 4

def stamp(a, opt, idx):
    if opt.prof:
        a(f"s_mem{'time' if opt.prof == 2 else 'realtime'} s[{sP}:{sP+1}]")
        a("s_waitcnt lgkmcnt(0)")
        a(f"s_mov_b32 s{sPROF+idx}, s{sP}")

def make_srd(a, n, lo, size, add=0):
    if add:
        a(f"s_add_u32 s{n}, s{lo}, {add}")
        a(f"s_addc_u32 s{n+1}, s{lo+1}, 0")
        a(f"s_and_b32 s{n+1}, s{n+1}, 0xffff")
    else:
        a(f"s_mov_b32 s{n}, s{lo}")
        a(f"s_and_b32 s{n+1}, s{lo+1}, 0xffff")
    a(f"s_mov_b32 s{n+2}, {size}")
    a(f"s_mov_b32 s{n+3}, 0x20000")

def get_nonce(a, opt):
    lp = a.newlabel("nonce"); dn = a.newlabel("nonced")
    a(f"s_mov_b32 s{sSPIN}, 0")
    a(f"v_mov_b32 v{vT}, 0")
    a.label(lp)
    a(f"buffer_load_dword v{vT-6}, v{vT}, {srd(sD)}, 0 offen sc1")
    a("s_waitcnt vmcnt(0)")
    a(f"v_readfirstlane_b32 s{sNONCE}, v{vT-6}")
    a(f"s_add_u32 s{sSPIN}, s{sSPIN}, 1")
    a(f"s_cmp_lg_u32 s{sNONCE}, 0")
    a(f"s_cbranch_scc1 {dn}")
    a(f"s_cmp_lt_u32 s{sSPIN}, {opt.spin}")
    a(f"s_cbranch_scc1 {lp}")
    a.label(dn)
    a.vm = []

def dma_addr(a, stride, s_tile):
    a(f"v_lshrrev_b32 v{vT}, 3, v{vLANE}")
    a(f"v_lshrrev_b32 v{vDMA+1}, 1, v{vT}")
    a(f"v_lshlrev_b32 v{vDMA+1}, 1, v{vDMA+1}")
    a(f"v_and_b32 v{vDMA}, 7, v{vLANE}")
    a(f"v_xor_b32 v{vDMA}, v{vDMA}, v{vDMA+1}")
    a(f"v_lshlrev_b32 v{vDMA}, 4, v{vDMA}")
    a(f"s_mov_b32 s{sT0}, {stride}")
    a(f"v_mul_lo_u32 v{vT}, v{vT}, s{sT0}")
    a(f"v_add_u32 v{vDMA}, v{vDMA}, v{vT}")
    a(f"s_lshl_b32 s{sT0}, s{s_tile}, 7")
    a(f"v_add_u32 v{vDMA}, s{sT0}, v{vDMA}")

def dma_step(a, srdn, stride, s_rowoff, s_ldsbase, slot, tag):
    for blk in range(4):
        a(f"s_add_u32 m0, s{s_ldsbase}, {slot*4096 + blk*1024}")
        a(f"s_add_u32 s{sT5}, s{s_rowoff}, {blk*8*stride}")
        a.vmem(f"buffer_load_dwordx4 v{vDMA}, {srd(srdn)}, s{sT5} offen lds", tag)

def tr_step(a, slot, step):
    for t in range(4):
        w = wfrag(step, t)
        a(f"ds_read_b64_tr_b16 {ar(w,2)}, v{vTR+t} offset:{slot*4096}")
        a(f"ds_read_b64_tr_b16 {ar(w+2,2)}, v{vTR+t} offset:{slot*4096+2048}")

def step_rowoff(a, dst, s_base, s_rot, i, nsteps, bytes_per_step):
    a(f"s_add_u32 s{sT4}, s{s_rot}, {i}")
    a(f"s_cmp_ge_u32 s{sT4}, {nsteps}")
    a(f"s_cselect_b32 s{dst}, {nsteps}, 0")
    a(f"s_sub_u32 s{sT4}, s{sT4}, s{dst}")
    a(f"s_mul_i32 s{sT4}, s{sT4}, {bytes_per_step}")
    a(f"s_add_u32 s{dst}, s{sT4}, s{s_base}")

def poll(a, opt, vaddr, nd, lanes):
    lp = a.newlabel("poll"); dn = a.newlabel("polled")
    vP = ring(7, 0)
    a(f"s_mov_b32 s{sSPIN}, 0")
    a.label(lp)
    ld = {1: "dword", 2: "dwordx2"}[nd]
    a(f"buffer_load_{ld} {vr(vP, nd)}, v{vaddr}, {srd(sF)}, 0 offen sc1")
    a("s_waitcnt vmcnt(0)")
    a(f"v_cmp_ne_u32 vcc, s{sNONCE}, v{vP}")
    if nd == 2:
        a(f"v_cmp_ne_u32 s[{sP}:{sP+1}], s{sNONCE}, v{vP+1}")
        a(f"s_or_b64 vcc, vcc, s[{sP}:{sP+1}]")
    if lanes is not None:
        a(f"s_and_b64 vcc, vcc, s[{lanes}:{lanes+1}]")
    a(f"s_add_u32 s{sSPIN}, s{sSPIN}, 1")
    a("s_cmp_eq_u64 vcc, 0")
    a(f"s_cbranch_scc1 {dn}")
    if opt.sleep: a(f"s_sleep {opt.sleep}")
    a(f"s_cmp_lt_u32 s{sSPIN}, {opt.spin}")
    a(f"s_cbranch_scc1 {lp}")
    a.label(dn)
    a.vm = []

def flag_store(a, s_index_bytes):
    a(f"v_mov_b32 v{vT}, s{s_index_bytes}")
    a(f"v_mov_b32 v{vT-6}, s{sNONCE}")
    a(f"s_mov_b64 s[{sP}:{sP+1}], exec")
    a("s_mov_b64 exec, 1")
    a.vmem(f"buffer_store_dword v{vT-6}, v{vT}, {srd(sF)}, 0 offen sc1", "flag")
    a(f"s_mov_b64 exec, s[{sP}:{sP+1}]")

def gelu_pairs(a, regs, tmp):
    n = len(regs)
    for i, r in enumerate(regs):
        t = tmp + 2 * i
        a(f"v_pk_mul_f32 {vr(t,2)}, {vr(r,2)}, {vr(r,2)}")
    for i, r in enumerate(regs):
        t = tmp + 2 * i
        a(f"v_pk_fma_f32 {vr(t,2)}, {vr(t,2)}, s[100:101], v[250:251]")
    for i, r in enumerate(regs):
        t = tmp + 2 * i
        a(f"v_pk_mul_f32 {vr(t,2)}, {vr(t,2)}, {vr(r,2)}")
    for i, r in enumerate(regs):
        t = tmp + 2 * i
        a(f"v_exp_f32 v{t}, v{t}")
        a(f"v_exp_f32 v{t+1}, v{t+1}")
    for i, r in enumerate(regs):
        t = tmp + 2 * i
        a(f"v_pk_add_f32 {vr(t,2)}, {vr(t,2)}, 1.0 op_sel_hi:[1,0]")
    for i, r in enumerate(regs):
        t = tmp + 2 * i
        a(f"v_rcp_f32 v{t}, v{t}")
        a(f"v_rcp_f32 v{t+1}, v{t+1}")
    a("s_nop 0")
    for i, r in enumerate(regs):
        t = tmp + 2 * i
        a(f"v_pk_mul_f32 {vr(r,2)}, {vr(r,2)}, {vr(t,2)}")

def gen(opt):
    a = Asm()
    if opt.extra:
        for e in opt.extra.split(","):
            if e == "main": a.raw(f"; @launch kernel={KN} grid=(256,1,1) block=(256,1,1) lds={LDS_BYTES}")
            elif e == "empty": a.raw("; @launch kernel=empty_kernel grid=(256,1,1) block=(256,1,1) lds=0")
            elif e == "empty1": a.raw("; @launch kernel=empty_kernel grid=(1,1,1) block=(64,1,1) lds=0")
    else:
        a.raw(f"; @launch grid=(256,1,1) block=(256,1,1) lds={LDS_BYTES}")
    a.raw('.amdgcn_target "amdgcn-amd-amdhsa--gfx950"')
    a.raw(".text")
    a.raw(f".globl {KN}")
    a.raw(".p2align 8")
    a.raw(f".type {KN},@function")
    a.label(KN)
    a(f"s_cmp_ge_u32 s{sWG}, 256")
    a("s_cbranch_scc1 L_done")
    a("s_load_dwordx16 s[4:19], s[0:1], 0")
    if opt.prof:
        a(f"s_mem{'time' if opt.prof == 2 else 'realtime'} s[{sP}:{sP+1}]")
    if opt.span or opt.pad:
        a("s_memrealtime s[98:99]")
    a(f"v_lshrrev_b32 v{vT}, 6, v{vTID}")
    a(f"v_and_b32 v{vLANE}, 63, v{vTID}")
    a(f"v_readfirstlane_b32 s{sWAVE}, v{vT}")
    a(f"s_and_b32 s{sXCD}, s{sWG}, 7")
    a(f"s_lshr_b32 s{sJ}, s{sWG}, 3")
    a(f"s_mul_i32 s{sT0}, s{sXCD}, 27")
    a(f"s_add_u32 s{sT0}, s{sT0}, s{sJ}")
    a(f"s_lshr_b32 s{sFT}, s{sT0}, 3")
    a(f"s_and_b32 s{sDT1}, s{sT0}, 7")
    a(f"s_lshr_b32 s{sT0}, s{sJ}, 3")
    a(f"s_lshl_b32 s{sST}, s{sXCD}, 2")
    a(f"s_add_u32 s{sST}, s{sST}, s{sT0}")
    a(f"s_and_b32 s{sDT2}, s{sJ}, 7")
    if opt.rot:
        a(f"s_lshl_b32 s{sROT1}, s{sDT1}, 1")
        a(f"s_and_b32 s{sT0}, s{sFT}, 3")
        a(f"s_lshl_b32 s{sT0}, s{sT0}, 2")
        a(f"s_add_u32 s{sROT1}, s{sROT1}, s{sT0}")
        a(f"s_and_b32 s{sROT1}, s{sROT1}, 15")
        a(f"s_lshl_b32 s{sROT2}, s{sDT2}, 1")
        a(f"s_and_b32 s{sT0}, s{sST}, 3")
        a(f"s_mul_i32 s{sT0}, s{sT0}, 3")
        a(f"s_add_u32 s{sROT2}, s{sROT2}, s{sT0}")
        a(f"s_cmp_ge_u32 s{sROT2}, 14")
        a(f"s_cselect_b32 s{sT0}, 14, 0")
        a(f"s_sub_u32 s{sROT2}, s{sROT2}, s{sT0}")
    else:
        a(f"s_mov_b32 s{sROT1}, 0")
        a(f"s_mov_b32 s{sROT2}, 0")
    a(f"s_lshl_b32 s{sM0B}, s{sWAVE}, 15")
    t0, t1, t2, t3 = 100, 101, 102, 103
    a(f"v_lshrrev_b32 v{t0}, 4, v{vLANE}")
    a(f"v_and_b32 v{t1}, 1, v{t0}")
    a(f"v_lshlrev_b32 v{t1}, 2, v{t1}")
    a(f"v_bfe_u32 v{t2}, v{vLANE}, 2, 2")
    a(f"v_add_u32 v{t1}, v{t1}, v{t2}")
    a(f"v_lshrrev_b32 v{t0}, 1, v{t0}")
    a(f"v_lshlrev_b32 v{t0}, 10, v{t0}")
    a(f"v_lshlrev_b32 v{t2}, 7, v{t1}")
    a(f"v_add_u32 v{t0}, v{t0}, v{t2}")
    a(f"v_and_b32 v{t2}, 3, v{vLANE}")
    a(f"v_lshlrev_b32 v{t2}, 3, v{t2}")
    a(f"v_add_u32 v{t0}, v{t0}, v{t2}")
    a(f"v_add_u32 v{t0}, s{sM0B}, v{t0}")
    a(f"v_lshrrev_b32 v{t1}, 1, v{t1}")
    for t in range(4):
        a(f"v_xor_b32 v{t2}, {t}, v{t1}")
        a(f"v_lshlrev_b32 v{t2}, 5, v{t2}")
        a(f"v_add_u32 v{vTR+t}, v{t0}, v{t2}")
    a("s_waitcnt lgkmcnt(0)")
    if opt.prof:
        a(f"s_mov_b32 s{sPROF}, s{sP}")
    make_srd(a, sX, 4, S * D * 2)
    make_srd(a, sW1, 6, S * F * 2)
    make_srd(a, sB1, 8, F * 2)
    make_srd(a, sW2, 10, F * S * 2)
    make_srd(a, sB2, 12, S * 2)
    make_srd(a, sO, 14, S * D * 2)
    make_srd(a, sD, 16, 256)
    make_srd(a, sH, 18, H_BYTES, WS_H)
    make_srd(a, sG, 18, G_BYTES, WS_G)
    make_srd(a, sF, 18, FLAG_BYTES, WS_FLAG)

    a(f"s_cmp_ge_u32 s{sWAVE}, 2")
    a("s_cbranch_scc1 L_loader")

    a.c("LayerNorm: wave w normalises rows 32*ks + 16*w + 4*q + (0..3), 16 lanes per row")
    XR = 96
    XF = 120
    TM = 160
    a(f"s_lshr_b32 s{sT0}, s{sWG}, 2")
    a(f"s_and_b32 s{sT1}, s{sWG}, 3")
    a(f"s_lshl_b32 s{sT2}, s{sT0}, 5")
    a(f"s_lshl_b32 s{sT3}, s{sWAVE}, 4")
    a(f"s_add_u32 s{sT2}, s{sT2}, s{sT3}")
    a(f"s_lshl_b32 s{sT3}, s{sT1}, 2")
    a(f"s_add_u32 s{sT2}, s{sT2}, s{sT3}")
    a(f"s_mul_i32 s{sT2}, s{sT2}, 1280")
    a(f"v_lshrrev_b32 v{TM}, 4, v{vLANE}")
    a(f"v_and_b32 v{TM+1}, 15, v{vLANE}")
    a(f"v_mul_u32_u24 v{TM+2}, 1280, v{TM}")
    a(f"v_lshlrev_b32 v{TM+3}, 4, v{TM+1}")
    a(f"v_add_u32 v{TM+2}, v{TM+2}, v{TM+3}")
    for i in range(5):
        a.vmem(f"buffer_load_dwordx4 {vr(XR+4*i,4)}, v{TM+2}, {srd(sX)}, s{sT2} offen offset:{i*256}", "x")
    a(f"s_mul_i32 s{sSTEP}, s{sT0}, 40960")
    a(f"s_lshl_b32 s{sT1}, s{sT1}, 8")
    a(f"s_add_u32 s{sSTEP}, s{sSTEP}, s{sT1}")
    a(f"s_lshl_b32 s{sT3}, s{sWAVE}, 2")
    a(f"v_add_u32 v{TM+4}, s{sT3}, v{TM}")
    a(f"v_mul_u32_u24 v{TM+4}, {LN_ROW}, v{TM+4}")
    a(f"v_add_u32 v{TM+4}, v{TM+4}, v{TM+3}")
    a(f"v_add_u32 v{TM+4}, {LN_BASE}, v{TM+4}")
    a(f"v_bfe_u32 v{TM+5}, v{vLANE}, 2, 2")
    a(f"v_mul_u32_u24 v{TM+5}, {LN_ROW}, v{TM+5}")
    a(f"s_mul_i32 s{sT3}, s{sWAVE}, 20")
    a(f"v_add_u32 v{TM+6}, s{sT3}, v{TM}")
    a(f"v_lshlrev_b32 v{TM+7}, 5, v{TM+6}")
    a(f"v_add_u32 v{TM+5}, v{TM+5}, v{TM+7}")
    a(f"v_and_b32 v{TM+7}, 3, v{vLANE}")
    a(f"v_lshlrev_b32 v{TM+7}, 3, v{TM+7}")
    a(f"v_add_u32 v{TM+5}, v{TM+5}, v{TM+7}")
    a(f"v_add_u32 v{TM+5}, {LN_BASE}, v{TM+5}")
    a(f"v_lshlrev_b32 v{TM+6}, 10, v{TM+6}")
    a(f"v_add_u32 v{TM+6}, v{TM+6}, v{TM+3}")
    a(f"s_mov_b32 s{sT0}, 0xffff0000")
    a.wait_vm("x")
    stamp(a, opt, 1)
    for i in range(20):
        a(f"v_lshlrev_b32 v{XF+2*i}, 16, v{XR+i}")
        a(f"v_and_b32 v{XF+2*i+1}, s{sT0}, v{XR+i}")
    SM = TM + 8
    for k in range(4):
        a(f"v_pk_add_f32 {vr(SM+2*k,2)}, {vr(XF+2*k,2)}, {vr(XF+8+2*k,2)}")
    for i in range(8, 20):
        k = i % 4
        a(f"v_pk_add_f32 {vr(SM+2*k,2)}, {vr(SM+2*k,2)}, {vr(XF+2*i,2)}")
    def reduce_row(dst):
        a(f"v_pk_add_f32 {vr(SM,2)}, {vr(SM,2)}, {vr(SM+2,2)}")
        a(f"v_pk_add_f32 {vr(SM+4,2)}, {vr(SM+4,2)}, {vr(SM+6,2)}")
        a(f"v_pk_add_f32 {vr(SM,2)}, {vr(SM,2)}, {vr(SM+4,2)}")
        a(f"v_add_f32 v{dst}, v{SM}, v{SM+1}")
        for rot in (8, 4, 2, 1):
            a("s_nop 1")
            a(f"v_add_f32_dpp v{dst}, v{dst}, v{dst} row_ror:{rot} row_mask:0xf bank_mask:0xf")
    MN = TM + 16
    reduce_row(MN)
    a(f"v_mul_f32 v{MN}, {f2h(1.0/640.0)}, v{MN}")
    a(f"v_mov_b32 v{MN+1}, v{MN}")
    for i in range(20):
        a(f"v_pk_add_f32 {vr(XF+2*i,2)}, {vr(XF+2*i,2)}, {vr(MN,2)} neg_lo:[0,1] neg_hi:[0,1]")
    for k in range(4):
        a(f"v_pk_mul_f32 {vr(SM+2*k,2)}, {vr(XF+2*k,2)}, {vr(XF+2*k,2)}")
    for i in range(4, 20):
        k = i % 4
        a(f"v_pk_fma_f32 {vr(SM+2*k,2)}, {vr(XF+2*i,2)}, {vr(XF+2*i,2)}, {vr(SM+2*k,2)}")
    reduce_row(MN)
    a(f"v_mov_b32 v{MN+1}, {f2h(1e-5)}")
    a(f"v_fmac_f32 v{MN+1}, {f2h(1.0/640.0)}, v{MN}")
    a(f"v_rsq_f32 v{MN}, v{MN+1}")
    a("s_nop 0")
    a(f"v_mov_b32 v{MN+1}, v{MN}")
    for i in range(20):
        a(f"v_pk_mul_f32 {vr(XF+2*i,2)}, {vr(XF+2*i,2)}, {vr(MN,2)}")
    for i in range(20):
        a(f"v_cvt_pk_bf16_f32 v{XR+i}, v{XF+2*i}, v{XF+2*i+1}")
    for i in range(5):
        a(f"ds_write_b128 v{TM+4}, {vr(XR+4*i,4)} offset:{i*256}")
    a("s_waitcnt lgkmcnt(0)")
    a("s_barrier")
    for i in range(5):
        a(f"ds_read_b64_tr_b16 {vr(XF+4*i,2)}, v{TM+5} offset:{i*128}")
        a(f"ds_read_b64_tr_b16 {vr(XF+4*i+2,2)}, v{TM+5} offset:{i*128+4*LN_ROW}")
    for i in range(5):
        a(f"s_waitcnt lgkmcnt({8-2*i})")
        a(f"s_add_u32 s{sT0}, s{sSTEP}, {i*4096}")
        a.vmem(f"buffer_store_dwordx4 {vr(XF+4*i,4)}, v{TM+6}, {srd(sH)}, s{sT0} offen {opt.stbits}", "h")
    stamp(a, opt, 2)
    get_nonce(a, opt)
    a(f"s_lshl_b32 s{sT0}, s{sWG}, 1")
    a(f"s_add_u32 s{sT0}, s{sT0}, s{sWAVE}")
    a(f"s_mul_i32 s{sT0}, s{sT0}, {opt.hstride}")
    flag_store(a, sT0)
    stamp(a, opt, 3)
    a("s_barrier")
    a("s_branch L_common")

    a.label("L_loader")
    a.vm = []
    a(f"s_cmp_lg_u32 s{sWG}, 0")
    a("s_cbranch_scc1 L_nononce")
    a(f"s_cmp_lg_u32 s{sWAVE}, 3")
    a("s_cbranch_scc1 L_nononce")
    a(f"s_memrealtime s[{sP}:{sP+1}]")
    a("s_waitcnt lgkmcnt(0)")
    a(f"s_or_b32 s{sT0}, s{sP}, 1")
    a(f"v_mov_b32 v{vT-6}, s{sT0}")
    a(f"v_mov_b32 v{vT}, 0")
    a(f"s_mov_b64 s[{sP}:{sP+1}], exec")
    a("s_mov_b64 exec, 1")
    a(f"buffer_store_dword v{vT-6}, v{vT}, {srd(sD)}, 0 offen sc1")
    a(f"s_mov_b64 exec, s[{sP}:{sP+1}]")
    a.label("L_nononce")
    a(f"s_cmp_ge_u32 s{sJ}, 27")
    a("s_cbranch_scc1 L_loader_idle")
    dma_addr(a, F * 2, sFT)
    for reg_i in range(2):
        if reg_i == 0:
            a(f"s_sub_u32 s{sT1}, s{sWAVE}, 2")
        else:
            a(f"s_mov_b32 s{sT1}, s{sWAVE}")
        a(f"s_lshl_b32 s{sT2}, s{sT1}, 15")
        a(f"s_mul_i32 s{sT3}, s{sT1}, {512*F*2}")
        for st in range(8):
            step_rowoff(a, sOFF, sT3, sROT1, st, 16, 32 * F * 2)
            dma_step(a, sW1, F * 2, sOFF, sT2, st, "w1a")
    a.label("L_loader_idle")
    a("s_barrier")
    get_nonce(a, opt)
    a("s_barrier")

    a.label("L_common")
    a.vm = []
    stamp(a, opt, 4)
    a(f"v_lshrrev_b32 v{vT}, 4, v{vLANE}")
    a(f"v_lshlrev_b32 v{vT}, 3, v{vT}")
    a(f"s_and_b32 s{sT0}, s{sWAVE}, 1")
    a(f"s_lshl_b32 s{sT0}, s{sT0}, 6")
    a(f"s_lshl_b32 s{sT1}, s{sFT}, 7")
    a(f"s_add_u32 s{sT0}, s{sT0}, s{sT1}")
    a.vmem(f"buffer_load_dwordx2 {vr(vB1,2)}, v{vT}, {srd(sB1)}, s{sT0} offen", "b")
    a.vmem(f"buffer_load_dwordx2 {vr(vB1+2,2)}, v{vT}, {srd(sB1)}, s{sT0} offen offset:32", "b")
    a(f"v_and_b32 v{vT}, 15, v{vLANE}")
    a(f"v_lshlrev_b32 v{vT}, 1, v{vT}")
    a(f"s_lshl_b32 s{sT0}, s{sST}, 7")
    a(f"s_lshl_b32 s{sT1}, s{sWAVE}, 5")
    a(f"s_add_u32 s{sT0}, s{sT0}, s{sT1}")
    a.vmem(f"buffer_load_ushort v{vB2}, v{vT}, {srd(sB2)}, s{sT0} offen", "b")
    a(f"s_cmp_ge_u32 s{sJ}, 27")
    a("s_cbranch_scc1 L_nogemm1")

    dma_addr(a, F * 2, sFT)
    for st in range(8):
        tr_step(a, st, st)
        if st % 2 == 1: a("s_waitcnt lgkmcnt(0)")
    a(f"s_mul_i32 s{sT3}, s{sWAVE}, {512*F*2}")
    for st in range(8, 16):
        step_rowoff(a, sOFF, sT3, sROT1, st, 16, 32 * F * 2)
        dma_step(a, sW1, F * 2, sOFF, sM0B, st - 8, f"w1b{st}")
    for st in range(8, 16):
        a.wait_vm(f"w1b{st}")
        tr_step(a, st - 8, st)
        if st % 2 == 1: a("s_waitcnt lgkmcnt(0)")
    stamp(a, opt, 5)
    dma_addr(a, S * 2, sST)
    a(f"v_lshlrev_b32 v{vA}, 4, v{vLANE}")
    a(f"s_mul_i32 s{sT0}, s{sDT1}, 5120")
    a(f"v_add_u32 v{vA}, s{sT0}, v{vA}")
    a(f"v_add_u32 v{vA2}, 4096, v{vA}")
    a(f"s_lshl_b32 s{sT0}, s{sWAVE}, 6")
    a(f"v_add_u32 v{vT}, s{sT0}, v{vLANE}")
    if opt.hstride == 4:
        a(f"v_lshlrev_b32 v{vT}, 3, v{vT}")
        poll(a, opt, vT, 2, None)
    else:
        raise SystemExit("hstride")
    if opt.exp & 8:
        a("s_mov_b32 s79, 0")
        a.label("L_dly")
        a("s_sleep 8")
        a("s_add_u32 s79, s79, 1")
        a("s_cmp_lt_u32 s79, 16")
        a("s_cbranch_scc1 L_dly")
    stamp(a, opt, 6)

    def a_loads(srdn, step, nsteps, s_rot, slot, tag):
        step_rowoff(a, sOFF, sSTEP, s_rot, step, nsteps, 40960)
        return [f"buffer_load_dwordx4 {vr(ring(slot,t),4)}, v{vA if t < 4 else vA2}, {srd(srdn)}, s{sOFF} offen offset:{(t*1024) if t < 4 else 0} {opt.ldbits}" for t in range(5)]

    a(f"s_mul_i32 s{sSTEP}, s{sWAVE}, {16*40960}")
    if opt.exp & 16: sHL = sW2
    else: sHL = sH
    for st in range(8):
        for ins in a_loads(sHL, st, 16, sROT1, st, None): a.vmem(ins, f"h{st}")
    a(f"s_mul_i32 s{sT3}, s{sWAVE}, {448*S*2}")
    for st in range(16):
        a.wait_vm(f"h{st}")
        if st == 0: stamp(a, opt, 14)
        if st == 8: stamp(a, opt, 15)
        nxt = a_loads(sHL, st + 8, 16, sROT1, st % 8, None) if (st + 8 < 16 and not (opt.exp & 2)) else None
        for nt in range(5):
            for mt in range(4):
                c = "0" if st == 0 else vr(acc1(mt, nt), 4)
                if not (opt.exp & 1) or st == 0:
                    a(f"v_mfma_f32_16x16x32_bf16 {vr(acc1(mt,nt),4)}, {ar(wfrag(st,mt),4)}, {vr(ring(st%8,nt),4)}, {c}")
            if nxt: a.vmem(nxt[nt], f"h{st+8}")
        if 8 <= st < 14 and not (opt.exp & 4):
            step_rowoff(a, sOFF, sT3, sROT2, st - 8, 14, 32 * S * 2)
            dma_step(a, sW2, S * 2, sOFF, sM0B, st - 8, "w2a")
    stamp(a, opt, 7)
    a(f"s_mov_b32 s100, {f2h(C1)}"); a(f"s_mov_b32 s101, {f2h(C1)}")
    a(f"v_mov_b32 v250, {f2h(C0)}"); a(f"v_mov_b32 v251, {f2h(C0)}")
    vL0, vL1, vL2 = 247, 248, 249
    a(f"v_lshlrev_b32 v{vL0}, 4, v{vLANE}")
    a(f"v_add_u32 v{vL1}, 65536, v{vL0}")
    a(f"v_add_u32 v{vL2}, 131072, v{vL0}")
    def lds_ref(addr):
        if addr < 65536: return vL0, addr
        if addr < 131072: return vL1, addr - 65536
        return vL2, addr - 131072
    def owner1(p, nt): return p + (0 if nt < 3 else 2)
    units = [(p, nt) for p in range(2) for nt in range(5)]
    def red1_addr(src, u):
        k = [x for x in units if owner1(*x) != src].index(u)
        return src * 32768 + 24576 + k * 2048 if k < 4 else 131072 + src * 8192 + (k - 4) * 2048
    saved_vm = list(a.vm)
    for w in range(4):
        if w < 3:
            a(f"s_cmp_lg_u32 s{sWAVE}, {w}")
            a(f"s_cbranch_scc1 L_ep1_{w+1}")
        a.vm = list(saved_vm)
        a("s_nop 7")
        for u in units:
            if owner1(*u) == w: continue
            p, nt = u
            for hf in range(2):
                vb, off = lds_ref(red1_addr(w, u) + hf * 1024)
                a(f"ds_write_b128 v{vb}, {vr(acc1(2*p+hf, nt),4)} offset:{off}")
        a("s_waitcnt lgkmcnt(0)")
        a("s_barrier")
        own = [u for u in units if owner1(*u) == w]
        RT = vRING
        n = 0
        for u in own:
            for src in range(4):
                if src == w: continue
                for hf in range(2):
                    vb, off = lds_ref(red1_addr(src, u) + hf * 1024)
                    a(f"ds_read_b128 {vr(RT + n*4, 4)}, v{vb} offset:{off}")
                    n += 1
        BI = 232
        a.wait_vm("b")
        for i in range(4):
            a(f"v_lshlrev_b32 v{BI+2*i}, 16, v{vB1+i}")
            a(f"v_and_b32 v{BI+2*i+1}, 0xffff0000, v{vB1+i}")
        n = 0
        tot = len(own) * 6
        for u in own:
            p, nt = u
            for si in range(3):
                for hf in range(2):
                    a(f"s_waitcnt lgkmcnt({min(15, tot - n - 1)})")
                    r = acc1(2*p+hf, nt)
                    a(f"v_pk_add_f32 {vr(r,2)}, {vr(r,2)}, {vr(RT+n*4,2)}")
                    a(f"v_pk_add_f32 {vr(r+2,2)}, {vr(r+2,2)}, {vr(RT+n*4+2,2)}")
                    n += 1
        a("s_barrier")
        regs = []
        for u in own:
            p, nt = u
            for hf in range(2):
                r = acc1(2*p+hf, nt)
                a(f"v_pk_add_f32 {vr(r,2)}, {vr(r,2)}, {vr(BI+4*hf,2)}")
                a(f"v_pk_add_f32 {vr(r+2,2)}, {vr(r+2,2)}, {vr(BI+4*hf+2,2)}")
                regs += [r, r + 2]
        gelu_pairs(a, regs, RT)
        a(f"s_lshl_b32 s{sT0}, s{sFT}, 1")
        a(f"s_add_u32 s{sT0}, s{sT0}, {w & 1}")
        a(f"s_mul_i32 s{sT0}, s{sT0}, 40960")
        a(f"s_mul_i32 s{sT1}, s{sDT1}, 5120")
        a(f"s_add_u32 s{sT0}, s{sT0}, s{sT1}")
        for i, u in enumerate(own):
            p, nt = u
            o = RT + 64 + 4 * i
            r0, r1 = acc1(2*p, nt), acc1(2*p+1, nt)
            a(f"v_cvt_pk_bf16_f32 v{o}, v{r0}, v{r0+1}")
            a(f"v_cvt_pk_bf16_f32 v{o+1}, v{r0+2}, v{r0+3}")
            a(f"v_cvt_pk_bf16_f32 v{o+2}, v{r1}, v{r1+1}")
            a(f"v_cvt_pk_bf16_f32 v{o+3}, v{r1+2}, v{r1+3}")
            a(f"s_add_u32 s{sT1}, s{sT0}, {nt*1024}")
            a.vmem(f"buffer_store_dwordx4 {vr(o,4)}, v{vL0}, {srd(sG)}, s{sT1} offen {opt.stbits}", "g")
        stamp(a, opt, 8)
        a.wait_vm("w2a")
        for st in range(6):
            tr_step(a, st, st)
            if st % 2 == 1: a("s_waitcnt lgkmcnt(0)")
        for st in range(6, 14):
            step_rowoff(a, sOFF, sT3, sROT2, st, 14, 32 * S * 2)
            dma_step(a, sW2, S * 2, sOFF, sM0B, st - 6, f"w2b{st}")
        a.wait_vm("g")
        a(f"s_lshl_b32 s{sT0}, s{sDT1}, 5")
        a(f"s_add_u32 s{sT0}, s{sT0}, s{sFT}")
        a(f"s_lshl_b32 s{sT0}, s{sT0}, 4")
        a(f"s_add_u32 s{sT0}, s{sT0}, {FLAG_G + 4*w}")
        flag_store(a, sT0)
        stamp(a, opt, 9)
        vm_after = list(a.vm)
        a("s_branch L_pre2")
        if w < 3: a.label(f"L_ep1_{w+1}")

    a.label("L_nogemm1")
    a.vm = ["b", "b", "b"]
    dma_addr(a, S * 2, sST)
    a(f"s_mul_i32 s{sT3}, s{sWAVE}, {448*S*2}")
    for st in range(6):
        step_rowoff(a, sOFF, sT3, sROT2, st, 14, 32 * S * 2)
        dma_step(a, sW2, S * 2, sOFF, sM0B, st, "w2a")
    a.wait_vm("w2a")
    for st in range(6):
        tr_step(a, st, st)
        if st % 2 == 1: a("s_waitcnt lgkmcnt(0)")
    for st in range(6, 14):
        step_rowoff(a, sOFF, sT3, sROT2, st, 14, 32 * S * 2)
        dma_step(a, sW2, S * 2, sOFF, sM0B, st - 6, f"w2b{st}")

    a.label("L_pre2")
    a.wait_vm0()
    for st in range(6, 14):
        tr_step(a, st - 6, st)
        if st % 2 == 1: a("s_waitcnt lgkmcnt(0)")
    stamp(a, opt, 10)
    a(f"v_lshlrev_b32 v{vA}, 4, v{vLANE}")
    a(f"s_mul_i32 s{sT0}, s{sDT2}, 5120")
    a(f"v_add_u32 v{vA}, s{sT0}, v{vA}")
    a(f"v_add_u32 v{vA2}, 4096, v{vA}")
    a(f"s_lshl_b32 s{sT0}, s{sDT2}, 5")
    a(f"s_mul_i32 s{sT1}, s{sWAVE}, 7")
    a(f"s_add_u32 s{sT0}, s{sT0}, s{sT1}")
    a(f"s_lshl_b32 s{sT0}, s{sT0}, 4")
    a(f"s_add_u32 s{sT0}, s{sT0}, {FLAG_G}")
    a(f"v_lshlrev_b32 v{vT}, 2, v{vLANE}")
    a(f"v_add_u32 v{vT}, s{sT0}, v{vT}")
    a(f"s_cmp_eq_u32 s{sWAVE}, 3")
    a(f"s_mov_b32 s{sP+3}, 0xffffff")
    a(f"s_cselect_b32 s{sP+2}, s{sP+3}, 0xfffffff")
    a(f"s_mov_b32 s{sP+3}, 0")
    poll(a, opt, vT, 1, sP + 2)
    stamp(a, opt, 11)
    a(f"s_mul_i32 s{sSTEP}, s{sWAVE}, {14*40960}")
    for st in range(8):
        for ins in a_loads(sG, st, 14, sROT2, st, None): a.vmem(ins, f"g{st}")
    for st in range(14):
        a.wait_vm(f"g{st}")
        nxt = a_loads(sG, st + 8, 14, sROT2, st % 8, None) if st + 8 < 14 else None
        for mt in range(5):
            for nt in range(4):
                c = "0" if st == 0 else vr(acc2(mt, nt), 4)
                a(f"v_mfma_f32_16x16x32_bf16 {vr(acc2(mt,nt),4)}, {vr(ring(st%8,mt),4)}, {ar(wfrag(st,nt),4)}, {c}")
            if nxt: a.vmem(nxt[mt], f"g{st+8}")
    stamp(a, opt, 12)
    vL0, vL1 = 247, 248
    a(f"v_lshlrev_b32 v{vL0}, 4, v{vLANE}")
    a(f"v_add_u32 v{vL1}, 65536, v{vL0}")
    a(f"v_and_b32 v{vT}, 15, v{vLANE}")
    a(f"s_lshl_b32 s{sT0}, s{sWAVE}, 4")
    a(f"v_add_u32 v{vT}, s{sT0}, v{vT}")
    a(f"v_mul_u32_u24 v{vA}, 1280, v{vT}")
    a(f"v_lshrrev_b32 v{vT}, 4, v{vLANE}")
    a(f"v_lshlrev_b32 v{vT}, 3, v{vT}")
    a(f"v_add_u32 v{vA}, v{vA}, v{vT}")
    a(f"s_mul_i32 s{sT0}, s{sST}, {64*1280}")
    a(f"s_mul_i32 s{sT1}, s{sDT2}, 160")
    a(f"s_add_u32 s{sOFF}, s{sT0}, s{sT1}")
    a(f"v_lshlrev_b32 v{vB2}, 16, v{vB2}")
    def red2_addr(src, nt, mt):
        k = [x for x in range(4) if x != src].index(nt)
        return src * 32768 + (k * 5 + mt) * 1024
    def lds_ref2(addr):
        return (vL0, addr) if addr < 65536 else (vL1, addr - 65536)
    for w in range(4):
        if w < 3:
            a(f"s_cmp_lg_u32 s{sWAVE}, {w}")
            a(f"s_cbranch_scc1 L_ep2_{w+1}")
        a("s_nop 7")
        for nt in range(4):
            if nt == w: continue
            for mt in range(5):
                vb, off = lds_ref2(red2_addr(w, nt, mt))
                a(f"ds_write_b128 v{vb}, {vr(acc2(mt,nt),4)} offset:{off}")
        a("s_waitcnt lgkmcnt(0)")
        a("s_barrier")
        RT = vRING
        n = 0
        for mt in range(5):
            for src in range(4):
                if src == w: continue
                vb, off = lds_ref2(red2_addr(src, w, mt))
                a(f"ds_read_b128 {vr(RT+n*4,4)}, v{vb} offset:{off}")
                n += 1
        n = 0
        for mt in range(5):
            r = acc2(mt, w)
            for si in range(3):
                a(f"s_waitcnt lgkmcnt({14 - n})")
                a(f"v_pk_add_f32 {vr(r,2)}, {vr(r,2)}, {vr(RT+n*4,2)}")
                a(f"v_pk_add_f32 {vr(r+2,2)}, {vr(r+2,2)}, {vr(RT+n*4+2,2)}")
                n += 1
            for k in range(4):
                a(f"v_add_f32 v{r+k}, v{r+k}, v{vB2}")
            o = RT + 64 + 2 * mt
            a(f"v_cvt_pk_bf16_f32 v{o}, v{r}, v{r+1}")
            a(f"v_cvt_pk_bf16_f32 v{o+1}, v{r+2}, v{r+3}")
            a(f"buffer_store_dwordx2 {vr(o,2)}, v{vA}, {srd(sO)}, s{sOFF} offen offset:{mt*32} {opt.obits}")
        a("s_branch L_fin")
        if w < 3: a.label(f"L_ep2_{w+1}")
    a.label("L_fin")
    if opt.pad:
        a.label("L_pad")
        a(f"s_memrealtime s[{sP}:{sP+1}]")
        a("s_waitcnt lgkmcnt(0)")
        a(f"s_sub_u32 s{sT0}, s{sP}, s98")
        a(f"s_cmp_lt_u32 s{sT0}, {opt.pad}")
        a("s_cbranch_scc1 L_pad")
    if opt.span:
        a("s_waitcnt vmcnt(0)")
        a(f"s_memrealtime s[{sP}:{sP+1}]")
        a("s_waitcnt lgkmcnt(0)")
        a("s_not_b32 s98, s98")
        a("v_mov_b32 v100, s98")
        a(f"v_mov_b32 v101, s{sP}")
        a("v_mov_b32 v102, 4")
        a("v_mov_b32 v103, 8")
        a("s_mov_b64 exec, 1")
        a(f"buffer_atomic_umax v100, v102, {srd(sD)}, 0 offen")
        a(f"buffer_atomic_umax v101, v103, {srd(sD)}, 0 offen")
        a("s_waitcnt vmcnt(0)")
    if opt.prof:
        a("s_waitcnt vmcnt(0)")
        stamp(a, opt, 13)
        a(f"s_add_u32 s{sT0}, s18, {WS_PROF}")
        a(f"s_addc_u32 s{sT1}, s19, 0")
        a(f"s_mov_b32 s{sX}, s{sT0}")
        a(f"s_and_b32 s{sX+1}, s{sT1}, 0xffff")
        a(f"s_mov_b32 s{sX+2}, 65536")
        a(f"s_lshl_b32 s{sT0}, s{sWG}, 2")
        a(f"s_add_u32 s{sT0}, s{sT0}, s{sWAVE}")
        a(f"s_lshl_b32 s{sT0}, s{sT0}, 6")
        a(f"v_mov_b32 v{vT}, s{sT0}")
        a("s_mov_b64 exec, 1")
        for i in range(16):
            a(f"v_mov_b32 v{100}, s{sPROF+i}")
            a(f"buffer_store_dword v100, v{vT}, {srd(sX)}, 0 offen offset:{4*i}")
            a("s_nop 1")
        a("s_waitcnt vmcnt(0)")
    a.label("L_done")
    a("s_endpgm")
    if opt.extra:
        a.raw(".globl empty_kernel\n.p2align 8\n.type empty_kernel,@function\nempty_kernel:\n    s_endpgm")
    a.raw('.section .rodata,"a"')
    a.raw(".p2align 6")
    a.raw(f".amdhsa_kernel {KN}")
    for l in ["next_free_vgpr 512", "next_free_sgpr 102", "accum_offset 256", "group_segment_fixed_size 0",
              "kernarg_size 64", "user_sgpr_count 2", "user_sgpr_kernarg_segment_ptr 1",
              "system_sgpr_workgroup_id_x 1", "float_denorm_mode_32 3"]:
        a.raw(f"  .amdhsa_{l}")
    a.raw(".end_amdhsa_kernel")
    if opt.extra:
        a.raw(".p2align 6\n.amdhsa_kernel empty_kernel")
        for l in ["next_free_vgpr 8", "next_free_sgpr 16", "accum_offset 8", "group_segment_fixed_size 0",
                  "kernarg_size 64", "user_sgpr_count 2", "user_sgpr_kernarg_segment_ptr 1", "system_sgpr_workgroup_id_x 1"]:
            a.raw(f"  .amdhsa_{l}")
        a.raw(".end_amdhsa_kernel")
    return "\n".join(a.L) + "\n"

import struct
def f2h(x): return "0x%08x" % struct.unpack("<I", struct.pack("<f", x))[0]
C0 = -2.0 * 0.7978845608028654 * 1.4426950408889634
C1 = C0 * 0.044715

if __name__ == "__main__":
    ap = argparse.ArgumentParser()
    ap.add_argument("-o", default="standalone__mixer_token_mlp__prompt.s")
    ap.add_argument("--prof", type=int, default=0)
    ap.add_argument("--rot", type=int, default=1)
    ap.add_argument("--spin", type=int, default=200000)
    ap.add_argument("--sleep", type=int, default=1)
    ap.add_argument("--hstride", type=int, default=4)
    ap.add_argument("--exp", type=int, default=0)
    ap.add_argument("--obits", default="")
    ap.add_argument("--extra", default="")
    ap.add_argument("--pad", type=int, default=0)
    ap.add_argument("--span", type=int, default=0)
    ap.add_argument("--stbits", default="sc1")
    ap.add_argument("--ldbits", default="sc1")
    opt = ap.parse_args()
    open(opt.o, "w").write(gen(opt))
```

```python
import argparse, struct

S, D, F = 2048, 640, 1728
KN = "standalone__mixer_token_mlp__prompt_kernel"

WS_H = 0
H_BYTES = 64 * 40 * 1024
WS_G = 0x300000
G_BYTES = 54 * 40 * 1024
WS_FLAG = 0x600000
FLAG_H = 0
FLAG_G = 0x10000
FLAG_BYTES = 0x20000
WS_PROF = 0x700000

LDS_BYTES = 163840
LN_BASE = 147456
LN_ROW = 1344
LF_BASE = 158208
P0_BASE = [0, 65536, 131072, 139264]

sWG = 2
sX, sW1, sW2, sH, sG, sO, sF, sB1, sB2, sD = 20, 24, 28, 32, 36, 40, 44, 48, 52, 56
sWAVE, sXCD, sJ, sFT, sDT1, sST, sDT2, sNONCE = 60, 61, 62, 63, 64, 65, 66, 67
sT0, sT1, sT2, sT3, sT4, sT5 = 68, 69, 70, 71, 72, 73
sROT1, sROT2, sSTEP, sOFF = 74, 75, 76, 77
sM0B, sSPIN = 78, 79
sP = 80
sPROF = 84
sUP = 99
sWB = 3

vTID, vLANE = 0, 1
vTR = 2
vA, vA2, vDMA, vT2 = 6, 7, 8, 9
vB1 = 10
vB2, vT = 14, 15
vACC = 16
vRING = 96
vTRU = 176
vL0, vL1, vL2 = 180, 181, 182
vC0 = 184
BI = 186
vPOLL = 194
vX = 196

def srd(n): return f"s[{n}:{n+3}]"
def vr(n, c=1): return f"v{n}" if c == 1 else f"v[{n}:{n+c-1}]"
def ar(n, c=1): return f"a{n}" if c == 1 else f"a[{n}:{n+c-1}]"
def f2h(x): return "0x%08x" % struct.unpack("<I", struct.pack("<f", x))[0]
C0 = -2.0 * 0.7978845608028654 * 1.4426950408889634
C1 = C0 * 0.044715

class Asm:
    def __init__(self):
        self.L = []; self.vm = []; self.uid = 0
    def __call__(self, s): self.L.append("    " + s)
    def label(self, s): self.L.append(s + ":")
    def raw(self, s): self.L.append(s)
    def c(self, s): self.L.append("    ; " + s)
    def vmem(self, s, tag):
        self(s); self.vm.append(tag)
    def wait_vm(self, tag):
        hits = [i for i, t in enumerate(self.vm) if t == tag]
        if not hits: return
        n = len(self.vm) - 1 - hits[-1]
        self(f"s_waitcnt vmcnt({min(n, 63)})")
        self.vm = self.vm[hits[-1] + 1:]
    def wait_vm0(self):
        self("s_waitcnt vmcnt(0)"); self.vm = []
    def newlabel(self, p):
        self.uid += 1
        return f"L_{p}_{self.uid}"

def acc1(mt, nt): return vACC + (mt * 5 + nt) * 4
def acc2(mt, nt): return vACC + (mt * 4 + nt) * 4
def wfrag(step, t): return step * 16 + t * 4

def stamp(a, opt, idx):
    if opt.prof:
        a(f"s_mem{'time' if opt.prof == 2 else 'realtime'} s[{sP}:{sP+1}]")
        a("s_waitcnt lgkmcnt(0)")
        a(f"s_mov_b32 s{sPROF+idx}, s{sP}")

def make_srd(a, n, lo, size, add=0):
    if add:
        a(f"s_add_u32 s{n}, s{lo}, {add}")
        a(f"s_addc_u32 s{n+1}, s{lo+1}, 0")
        a(f"s_and_b32 s{n+1}, s{n+1}, 0xffff")
    else:
        a(f"s_mov_b32 s{n}, s{lo}")
        a(f"s_and_b32 s{n+1}, s{lo+1}, 0xffff")
    a(f"s_mov_b32 s{n+2}, {size}")
    a(f"s_mov_b32 s{n+3}, 0x20000")

def nonce_spin(a, opt):
    lp = a.newlabel("nonce"); dn = a.newlabel("nonced")
    a(f"s_cmp_lg_u32 s{sNONCE}, 0")
    a(f"s_cbranch_scc1 {dn}")
    a(f"s_mov_b32 s{sSPIN}, 0")
    a(f"v_mov_b32 v{vT}, 0")
    a.label(lp)
    a(f"buffer_load_dword v{vT2}, v{vT}, {srd(sD)}, 0 offen sc1")
    a("s_waitcnt vmcnt(0)")
    a(f"v_readfirstlane_b32 s{sNONCE}, v{vT2}")
    a(f"s_add_u32 s{sSPIN}, s{sSPIN}, 1")
    a(f"s_cmp_lg_u32 s{sNONCE}, 0")
    a(f"s_cbranch_scc1 {dn}")
    a(f"s_cmp_lt_u32 s{sSPIN}, {opt.spin}")
    a(f"s_cbranch_scc1 {lp}")
    a.label(dn)

def lds_set(a, addr_sgpr_or_imm):
    a(f"v_mov_b32 v{vT}, {addr_sgpr_or_imm}")
    a(f"v_mov_b32 v{vT2}, 1")
    a(f"s_mov_b64 s[{sP}:{sP+1}], exec")
    a("s_mov_b64 exec, 1")
    a(f"ds_write_b32 v{vT}, v{vT2}")
    a(f"s_mov_b64 exec, s[{sP}:{sP+1}]")

def lds_spin(a, opt, addr):
    lp = a.newlabel("lspin"); dn = a.newlabel("lspun")
    a(f"v_mov_b32 v{vT}, {addr}")
    a(f"s_mov_b32 s{sSPIN}, 0")
    a.label(lp)
    a(f"ds_read_b32 v{vT2}, v{vT}")
    a("s_waitcnt lgkmcnt(0)")
    a(f"v_readfirstlane_b32 s{sP}, v{vT2}")
    a(f"s_add_u32 s{sSPIN}, s{sSPIN}, 1")
    a(f"s_cmp_lg_u32 s{sP}, 0")
    a(f"s_cbranch_scc1 {dn}")
    a(f"s_cmp_lt_u32 s{sSPIN}, {opt.spin * 8}")
    a(f"s_cbranch_scc1 {lp}")
    a.label(dn)

def dma_addr(a, stride, s_tile):
    a(f"v_lshrrev_b32 v{vT}, 3, v{vLANE}")
    a(f"v_lshrrev_b32 v{vT2}, 1, v{vT}")
    a(f"v_lshlrev_b32 v{vT2}, 1, v{vT2}")
    a(f"v_and_b32 v{vDMA}, 7, v{vLANE}")
    a(f"v_xor_b32 v{vDMA}, v{vDMA}, v{vT2}")
    a(f"v_lshlrev_b32 v{vDMA}, 4, v{vDMA}")
    a(f"v_mul_u32_u24 v{vT}, {stride}, v{vT}")
    a(f"v_add_u32 v{vDMA}, v{vDMA}, v{vT}")
    a(f"s_lshl_b32 s{sT0}, s{s_tile}, 7")
    a(f"v_add_u32 v{vDMA}, s{sT0}, v{vDMA}")

def step_off(a, dst, s_base, s_rot, i, nsteps, bytes_per_step):
    a(f"s_add_u32 s{sT4}, s{s_rot}, {i}")
    a(f"s_cmp_ge_u32 s{sT4}, {nsteps}")
    a(f"s_cselect_b32 s{dst}, {nsteps}, 0")
    a(f"s_sub_u32 s{sT4}, s{sT4}, s{dst}")
    a(f"s_mul_i32 s{sT4}, s{sT4}, {bytes_per_step}")
    a(f"s_add_u32 s{dst}, s{sT4}, s{s_base}")

def dma_step(a, srdn, stride, s_rowbase, s_rot, step, nsteps, s_lds, lds_off, tag):
    step_off(a, sOFF, s_rowbase, s_rot, step, nsteps, 32 * stride)
    for blk in range(4):
        a(f"s_add_u32 m0, s{s_lds}, {lds_off + blk*1024}")
        a(f"s_add_u32 s{sT5}, s{sOFF}, {blk*8*stride}")
        a.vmem(f"buffer_load_dwordx4 v{vDMA}, {srd(srdn)}, s{sT5} offen lds", tag)

def tr_step(a, vbase, off, step):
    for t in range(4):
        w = wfrag(step, t)
        a(f"ds_read_b64_tr_b16 {ar(w,2)}, v{vbase+t} offset:{off}")
        a(f"ds_read_b64_tr_b16 {ar(w+2,2)}, v{vbase+t} offset:{off+2048}")

def poll(a, opt, vaddr, nd, lanes):
    lp = a.newlabel("poll"); dn = a.newlabel("polled")
    a(f"s_mov_b32 s{sSPIN}, 0")
    a.label(lp)
    ld = {1: "dword", 2: "dwordx2"}[nd]
    a(f"buffer_load_{ld} {vr(vPOLL, nd)}, v{vaddr}, {srd(sF)}, 0 offen sc1")
    a("s_waitcnt vmcnt(0)")
    a(f"v_cmp_ne_u32 vcc, s{sNONCE}, v{vPOLL}")
    if nd == 2:
        a(f"v_cmp_ne_u32 s[{sP}:{sP+1}], s{sNONCE}, v{vPOLL+1}")
        a(f"s_or_b64 vcc, vcc, s[{sP}:{sP+1}]")
    if lanes is not None:
        a(f"s_and_b64 vcc, vcc, s[{lanes}:{lanes+1}]")
    a(f"s_add_u32 s{sSPIN}, s{sSPIN}, 1")
    a("s_cmp_eq_u64 vcc, 0")
    a(f"s_cbranch_scc1 {dn}")
    if opt.sleep: a(f"s_sleep {opt.sleep}")
    a(f"s_cmp_lt_u32 s{sSPIN}, {opt.spin}")
    a(f"s_cbranch_scc1 {lp}")
    a.label(dn)
    a.vm = []

def flag_store(a, s_index_bytes):
    a(f"v_mov_b32 v{vT}, s{s_index_bytes}")
    a(f"v_mov_b32 v{vT2}, s{sNONCE}")
    a(f"s_mov_b64 s[{sP}:{sP+1}], exec")
    a("s_mov_b64 exec, 1")
    a.vmem(f"buffer_store_dword v{vT2}, v{vT}, {srd(sF)}, 0 offen sc1", "flag")
    a(f"s_mov_b64 exec, s[{sP}:{sP+1}]")

def gelu_pairs(a, regs, tmp, fill=None):
    def each(fn):
        for i, r in enumerate(regs): fn(r, tmp + 2 * i)
    each(lambda r, t: a(f"v_pk_mul_f32 {vr(t,2)}, {vr(r,2)}, {vr(r,2)}"))
    each(lambda r, t: a(f"v_pk_fma_f32 {vr(t,2)}, {vr(t,2)}, s[100:101], {vr(vC0,2)}"))
    each(lambda r, t: a(f"v_pk_mul_f32 {vr(t,2)}, {vr(t,2)}, {vr(r,2)}"))
    if fill: fill()
    each(lambda r, t: (a(f"v_exp_f32 v{t}, v{t}"), a(f"v_exp_f32 v{t+1}, v{t+1}")))
    each(lambda r, t: a(f"v_pk_add_f32 {vr(t,2)}, {vr(t,2)}, 1.0 op_sel_hi:[1,0]"))
    each(lambda r, t: (a(f"v_rcp_f32 v{t}, v{t}"), a(f"v_rcp_f32 v{t+1}, v{t+1}")))
    a("s_nop 0")
    each(lambda r, t: a(f"v_pk_mul_f32 {vr(r,2)}, {vr(r,2)}, {vr(t,2)}"))

def w2_slot(step):
    if step < 8: return sM0B, step * 4096, vTR, step * 4096
    if step < 10: return sUP, (step - 8) * 4096, vTRU, (step - 8) * 4096
    return sM0B, (step - 10) * 4096, vTR, (step - 10) * 4096

def w2_dma(a, step):
    sb, off, _, _ = w2_slot(step)
    dma_step(a, sW2, S * 2, sWB, sROT2, step, 14, sb, off, f"w2_{step}")

def w2_tr(a, step):
    _, _, vb, off = w2_slot(step)
    tr_step(a, vb, off, step)

def gen(opt):
    a = Asm()
    NS = opt.depth + 1
    def ring(slot, t): return vRING + slot * 20 + t * 4
    a.raw(f"; @launch grid=(256,1,1) block=(256,1,1) lds={LDS_BYTES}")
    a.raw('.amdgcn_target "amdgcn-amd-amdhsa--gfx950"')
    a.raw(".text")
    a.raw(f".globl {KN}")
    a.raw(".p2align 8")
    a.raw(f".type {KN},@function")
    a.label(KN)
    a(f"s_cmp_ge_u32 s{sWG}, 256")
    a("s_cbranch_scc1 L_done")
    a("s_load_dwordx16 s[4:19], s[0:1], 0")
    if opt.prof:
        a(f"s_mem{'time' if opt.prof == 2 else 'realtime'} s[{sP}:{sP+1}]")
    if opt.pad:
        a("s_memrealtime s[96:97]")
    a(f"v_lshrrev_b32 v{vT}, 6, v{vTID}")
    a(f"v_and_b32 v{vLANE}, 63, v{vTID}")
    a(f"v_readfirstlane_b32 s{sWAVE}, v{vT}")
    a(f"s_and_b32 s{sXCD}, s{sWG}, 7")
    a(f"s_lshr_b32 s{sJ}, s{sWG}, 3")
    a(f"s_lshr_b32 s{sT1}, s{sXCD}, 1")
    a(f"s_and_b32 s{sT2}, s{sXCD}, 1")
    a(f"s_lshl_b32 s{sT2}, s{sT2}, 2")
    a(f"s_mul_i32 s{sT0}, s{sT1}, 27")
    a(f"s_add_u32 s{sT0}, s{sT0}, s{sJ}")
    a(f"s_lshr_b32 s{sFT}, s{sT0}, 2")
    a(f"s_and_b32 s{sT3}, s{sT0}, 3")
    a(f"s_add_u32 s{sDT1}, s{sT2}, s{sT3}")
    a(f"s_lshl_b32 s{sROT1}, s{sT3}, 2")
    a(f"s_lshr_b32 s{sT0}, s{sJ}, 2")
    a(f"s_lshl_b32 s{sST}, s{sT1}, 3")
    a(f"s_add_u32 s{sST}, s{sST}, s{sT0}")
    a(f"s_and_b32 s{sT3}, s{sJ}, 3")
    a(f"s_add_u32 s{sDT2}, s{sT2}, s{sT3}")
    a(f"s_mul_i32 s{sROT2}, s{sT3}, 7")
    a(f"s_lshr_b32 s{sROT2}, s{sROT2}, 1")
    if not opt.rot:
        a(f"s_mov_b32 s{sROT1}, 0")
        a(f"s_mov_b32 s{sROT2}, 0")
    a(f"s_lshl_b32 s{sM0B}, s{sWAVE}, 15")
    a(f"s_lshl_b32 s{sUP}, s{sWAVE}, 13")
    a(f"s_add_u32 s{sUP}, s{sUP}, 131072")
    a(f"s_cmp_ge_u32 s{sWAVE}, 2")
    a("s_cbranch_scc1 L_loader")

    a.c("LayerNorm: wave w normalises rows 32*ks + 16*w + 4*q + (0..3), 16 lanes per row")
    XR, XF, TM = 96, 120, 160
    a(f"s_lshr_b32 s{sT0}, s{sWG}, 2")
    a(f"s_and_b32 s{sT1}, s{sWG}, 3")
    a(f"s_lshl_b32 s{sT2}, s{sT0}, 5")
    a(f"s_lshl_b32 s{sT3}, s{sWAVE}, 4")
    a(f"s_add_u32 s{sT2}, s{sT2}, s{sT3}")
    a(f"s_lshl_b32 s{sT3}, s{sT1}, 2")
    a(f"s_add_u32 s{sT2}, s{sT2}, s{sT3}")
    a(f"s_mul_i32 s{sT2}, s{sT2}, 1280")
    a(f"v_lshrrev_b32 v{TM}, 4, v{vLANE}")
    a(f"v_and_b32 v{TM+1}, 15, v{vLANE}")
    a(f"v_mul_u32_u24 v{TM+2}, 1280, v{TM}")
    a(f"v_lshlrev_b32 v{TM+3}, 4, v{TM+1}")
    a(f"v_add_u32 v{TM+2}, v{TM+2}, v{TM+3}")
    a(f"v_mov_b32 v{vT}, 0")
    a("s_waitcnt lgkmcnt(0)")
    if opt.prof: a(f"s_mov_b32 s{sPROF}, s{sP}")
    make_srd(a, sX, 4, S * D * 2)
    for i in range(5):
        a.vmem(f"buffer_load_dwordx4 {vr(XR+4*i,4)}, v{TM+2}, {srd(sX)}, s{sT2} offen offset:{i*256}", "x")
    make_srd(a, sD, 16, 256)
    a.vmem(f"buffer_load_dword v{vPOLL}, v{vT}, {srd(sD)}, 0 offen sc1", "nonce")
    a("s_barrier")
    make_srd(a, sH, 18, H_BYTES, WS_H)
    make_srd(a, sF, 18, FLAG_BYTES, WS_FLAG)
    a(f"s_mul_i32 s{sSTEP}, s{sT0}, 40960")
    a(f"s_lshl_b32 s{sT1}, s{sT1}, 8")
    a(f"s_add_u32 s{sSTEP}, s{sSTEP}, s{sT1}")
    a(f"s_lshl_b32 s{sT3}, s{sWAVE}, 2")
    a(f"v_add_u32 v{TM+4}, s{sT3}, v{TM}")
    a(f"v_mul_u32_u24 v{TM+4}, {LN_ROW}, v{TM+4}")
    a(f"v_add_u32 v{TM+4}, v{TM+4}, v{TM+3}")
    a(f"v_add_u32 v{TM+4}, {LN_BASE}, v{TM+4}")
    a(f"v_bfe_u32 v{TM+5}, v{vLANE}, 2, 2")
    a(f"v_mul_u32_u24 v{TM+5}, {LN_ROW}, v{TM+5}")
    a(f"s_mul_i32 s{sT3}, s{sWAVE}, 20")
    a(f"v_add_u32 v{TM+6}, s{sT3}, v{TM}")
    a(f"v_lshlrev_b32 v{TM+7}, 5, v{TM+6}")
    a(f"v_add_u32 v{TM+5}, v{TM+5}, v{TM+7}")
    a(f"v_and_b32 v{TM+7}, 3, v{vLANE}")
    a(f"v_lshlrev_b32 v{TM+7}, 3, v{TM+7}")
    a(f"v_add_u32 v{TM+5}, v{TM+5}, v{TM+7}")
    a(f"v_add_u32 v{TM+5}, {LN_BASE}, v{TM+5}")
    a(f"v_lshlrev_b32 v{TM+6}, 10, v{TM+6}")
    a(f"v_add_u32 v{TM+6}, v{TM+6}, v{TM+3}")
    a(f"s_mov_b32 s{sT0}, 0xffff0000")
    a.wait_vm("x")
    stamp(a, opt, 1)
    for i in range(20):
        a(f"v_lshlrev_b32 v{XF+2*i}, 16, v{XR+i}")
        a(f"v_and_b32 v{XF+2*i+1}, s{sT0}, v{XR+i}")
    SM = TM + 8
    for k in range(4):
        a(f"v_pk_add_f32 {vr(SM+2*k,2)}, {vr(XF+2*k,2)}, {vr(XF+8+2*k,2)}")
    for i in range(8, 20):
        k = i % 4
        a(f"v_pk_add_f32 {vr(SM+2*k,2)}, {vr(SM+2*k,2)}, {vr(XF+2*i,2)}")
    def reduce_row(dst):
        a(f"v_pk_add_f32 {vr(SM,2)}, {vr(SM,2)}, {vr(SM+2,2)}")
        a(f"v_pk_add_f32 {vr(SM+4,2)}, {vr(SM+4,2)}, {vr(SM+6,2)}")
        a(f"v_pk_add_f32 {vr(SM,2)}, {vr(SM,2)}, {vr(SM+4,2)}")
        a(f"v_add_f32 v{dst}, v{SM}, v{SM+1}")
        for rot in (8, 4, 2, 1):
            a("s_nop 1")
            a(f"v_add_f32_dpp v{dst}, v{dst}, v{dst} row_ror:{rot} row_mask:0xf bank_mask:0xf")
    MN = TM + 16
    reduce_row(MN)
    a(f"v_mul_f32 v{MN}, {f2h(1.0/640.0)}, v{MN}")
    a(f"v_mov_b32 v{MN+1}, v{MN}")
    for i in range(20):
        a(f"v_pk_add_f32 {vr(XF+2*i,2)}, {vr(XF+2*i,2)}, {vr(MN,2)} neg_lo:[0,1] neg_hi:[0,1]")
    for k in range(4):
        a(f"v_pk_mul_f32 {vr(SM+2*k,2)}, {vr(XF+2*k,2)}, {vr(XF+2*k,2)}")
    for i in range(4, 20):
        k = i % 4
        a(f"v_pk_fma_f32 {vr(SM+2*k,2)}, {vr(XF+2*i,2)}, {vr(XF+2*i,2)}, {vr(SM+2*k,2)}")
    reduce_row(MN)
    a(f"v_mov_b32 v{MN+1}, {f2h(1e-5)}")
    a(f"v_fmac_f32 v{MN+1}, {f2h(1.0/640.0)}, v{MN}")
    a(f"v_rsq_f32 v{MN}, v{MN+1}")
    a("s_nop 0")
    a(f"v_mov_b32 v{MN+1}, v{MN}")
    for i in range(20):
        a(f"v_pk_mul_f32 {vr(XF+2*i,2)}, {vr(XF+2*i,2)}, {vr(MN,2)}")
    for i in range(20):
        a(f"v_cvt_pk_bf16_f32 v{XR+i}, v{XF+2*i}, v{XF+2*i+1}")
    for i in range(5):
        a(f"ds_write_b128 v{TM+4}, {vr(XR+4*i,4)} offset:{i*256}")
    a(f"s_lshl_b32 s{sT0}, s{sWAVE}, 2")
    a(f"s_add_u32 s{sT1}, s{sT0}, {LF_BASE}")
    a(f"s_xor_b32 s{sT0}, s{sT0}, 4")
    a(f"s_add_u32 s{sT0}, s{sT0}, {LF_BASE}")
    a("s_waitcnt lgkmcnt(0)")
    lds_set(a, f"s{sT1}")
    lds_spin(a, opt, f"s{sT0}")
    for i in range(5):
        a(f"ds_read_b64_tr_b16 {vr(XF+4*i,2)}, v{TM+5} offset:{i*128}")
        a(f"ds_read_b64_tr_b16 {vr(XF+4*i+2,2)}, v{TM+5} offset:{i*128+4*LN_ROW}")
    for i in range(5):
        a(f"s_waitcnt lgkmcnt({8-2*i})")
        a(f"s_add_u32 s{sT0}, s{sSTEP}, {i*4096}")
        a.vmem(f"buffer_store_dwordx4 {vr(XF+4*i,4)}, v{TM+6}, {srd(sH)}, s{sT0} offen sc1", "h")
    stamp(a, opt, 2)
    a.wait_vm("nonce")
    a(f"v_readfirstlane_b32 s{sNONCE}, v{vPOLL}")
    nonce_spin(a, opt)
    a.wait_vm0()
    a(f"s_lshl_b32 s{sT0}, s{sWG}, 1")
    a(f"s_add_u32 s{sT0}, s{sT0}, s{sWAVE}")
    a(f"s_lshl_b32 s{sT0}, s{sT0}, 2")
    flag_store(a, sT0)
    stamp(a, opt, 3)
    a("s_branch L_roles_done")

    a.label("L_loader")
    a.vm = []
    dma_addr(a, F * 2, sFT)
    a(f"v_lshlrev_b32 v{vX}, 2, v{vLANE}")
    a(f"v_add_u32 v{vX}, {LF_BASE}, v{vX}")
    a(f"v_mov_b32 v{vX+1}, 0")
    a(f"s_sub_u32 s{sT1}, s{sWAVE}, 2")
    a(f"s_lshl_b32 s{sT2}, s{sT1}, 16")
    a(f"s_lshl_b32 s{sT3}, s{sT1}, 13")
    a(f"s_add_u32 s{sT3}, s{sT3}, {P0_BASE[2]}")
    a(f"s_mul_i32 s{sSTEP}, s{sT1}, {512*F*2}")
    a(f"s_mul_i32 s{sWB}, s{sWAVE}, {512*F*2}")
    a(f"ds_write_b32 v{vX}, v{vX+1}")
    a("s_waitcnt lgkmcnt(0)")
    if opt.prof: a(f"s_mov_b32 s{sPROF}, s{sP}")
    make_srd(a, sW1, 6, S * F * 2)
    make_srd(a, sD, 16, 256)
    a(f"s_cmp_lg_u32 s{sWG}, 0")
    a("s_cbranch_scc1 L_nononce")
    a(f"s_cmp_lg_u32 s{sWAVE}, 3")
    a("s_cbranch_scc1 L_nononce")
    a(f"s_memrealtime s[{sP}:{sP+1}]")
    a("s_waitcnt lgkmcnt(0)")
    a(f"s_or_b32 s{sT0}, s{sP}, 1")
    a(f"v_mov_b32 v{vT2}, s{sT0}")
    a(f"v_mov_b32 v{vT}, 0")
    a(f"s_mov_b64 s[{sP}:{sP+1}], exec")
    a("s_mov_b64 exec, 1")
    a(f"buffer_store_dword v{vT2}, v{vT}, {srd(sD)}, 0 offen sc1")
    a(f"s_mov_b64 exec, s[{sP}:{sP+1}]")
    a.label("L_nononce")
    a(f"s_cmp_ge_u32 s{sJ}, 27")
    a("s_cbranch_scc1 L_loader_idle")
    LEAD = opt.lead
    def own(i): dma_step(a, sW1, F * 2, sWB, sROT1, i, 16, sT3, (i % 2) * 4096, f"o{i}")
    def par(i): dma_step(a, sW1, F * 2, sSTEP, sROT1, i, 16, sT2, i * 4096, f"p{i}")
    own(0); own(1)
    a("s_barrier")
    def tr_addr(base_sgpr):
        t0, t1, t2 = vX, vX + 1, vX + 2
        a(f"v_lshrrev_b32 v{t0}, 4, v{vLANE}")
        a(f"v_and_b32 v{t1}, 1, v{t0}")
        a(f"v_lshlrev_b32 v{t1}, 2, v{t1}")
        a(f"v_bfe_u32 v{t2}, v{vLANE}, 2, 2")
        a(f"v_add_u32 v{t1}, v{t1}, v{t2}")
        a(f"v_lshrrev_b32 v{t0}, 1, v{t0}")
        a(f"v_lshlrev_b32 v{t0}, 10, v{t0}")
        a(f"v_lshlrev_b32 v{t2}, 7, v{t1}")
        a(f"v_add_u32 v{t0}, v{t0}, v{t2}")
        a(f"v_and_b32 v{t2}, 3, v{vLANE}")
        a(f"v_lshlrev_b32 v{t2}, 3, v{t2}")
        a(f"v_add_u32 v{t0}, v{t0}, v{t2}")
        a(f"v_add_u32 v{t0}, s{base_sgpr}, v{t0}")
        a(f"v_lshrrev_b32 v{t1}, 1, v{t1}")
        for t in range(4):
            a(f"v_xor_b32 v{t2}, {t}, v{t1}")
            a(f"v_lshlrev_b32 v{t2}, 5, v{t2}")
            a(f"v_add_u32 v{vTR+t}, v{t0}, v{t2}")
    for i in range(LEAD): par(i)
    tr_addr(sT3)
    a(f"s_lshl_b32 s{sT0}, s{sT1}, 4")
    a(f"s_add_u32 s{sSPIN}, s{sT0}, {LF_BASE + 8}")
    signalled = 0
    for i in range(16):
        a.wait_vm(f"o{i}")
        tr_step(a, vTR, (i % 2) * 4096, i)
        landed = [k for k in range(16) if f"p{k}" not in a.vm and k < i + LEAD]
        nland = len(landed)
        while signalled < 4 and nland >= 4 * (signalled + 1):
            a(f"s_add_u32 s{sT0}, s{sSPIN}, {4*signalled}")
            lds_set(a, f"s{sT0}")
            signalled += 1
        a("s_waitcnt lgkmcnt(0)")
        if i + 2 < 16: own(i + 2)
        if i + LEAD < 16: par(i + LEAD)
    if signalled < 4:
        a.wait_vm0()
        while signalled < 4:
            a(f"s_add_u32 s{sT0}, s{sSPIN}, {4*signalled}")
            lds_set(a, f"s{sT0}")
            signalled += 1
    a(f"s_mov_b32 s{sNONCE}, 0")
    nonce_spin(a, opt)
    a("s_branch L_w1_ready")
    a.label("L_loader_idle")
    a("s_barrier")
    a(f"s_mov_b32 s{sNONCE}, 0")
    nonce_spin(a, opt)
    a("s_branch L_nogemm1")

    a.label("L_roles_done")
    a.vm = []
    a(f"s_cmp_ge_u32 s{sJ}, 27")
    a("s_cbranch_scc1 L_nogemm1")
    a(f"s_lshl_b32 s{sT3}, s{sWAVE}, 16")
    tr_addr(sT3)
    for k in range(4):
        a(f"s_lshl_b32 s{sT0}, s{sWAVE}, 4")
        a(f"s_add_u32 s{sT0}, s{sT0}, {LF_BASE + 8 + 4*k}")
        lds_spin(a, opt, f"s{sT0}")
        for i in range(4 * k, 4 * k + 4):
            tr_step(a, vTR, i * 4096, i)
            if i % 2 == 1: a("s_waitcnt lgkmcnt(0)")

    def common_setup():
        make_srd(a, sH, 18, H_BYTES, WS_H)
        make_srd(a, sF, 18, FLAG_BYTES, WS_FLAG)
        make_srd(a, sB1, 8, F * 2)
        make_srd(a, sW2, 10, F * S * 2)
        make_srd(a, sB2, 12, S * 2)
        make_srd(a, sO, 14, S * D * 2)
        make_srd(a, sG, 18, G_BYTES, WS_G)
        a(f"v_lshrrev_b32 v{vT}, 4, v{vLANE}")
        a(f"v_lshlrev_b32 v{vT}, 3, v{vT}")
        a(f"s_and_b32 s{sT0}, s{sWAVE}, 1")
        a(f"s_lshl_b32 s{sT0}, s{sT0}, 6")
        a(f"s_lshl_b32 s{sT1}, s{sFT}, 7")
        a(f"s_add_u32 s{sT0}, s{sT0}, s{sT1}")
        a.vmem(f"buffer_load_dwordx2 {vr(vB1,2)}, v{vT}, {srd(sB1)}, s{sT0} offen", "b")
        a.vmem(f"buffer_load_dwordx2 {vr(vB1+2,2)}, v{vT}, {srd(sB1)}, s{sT0} offen offset:32", "b")
        a(f"v_and_b32 v{vT}, 15, v{vLANE}")
        a(f"v_lshlrev_b32 v{vT}, 1, v{vT}")
        a(f"s_lshl_b32 s{sT0}, s{sST}, 7")
        a(f"s_lshl_b32 s{sT1}, s{sWAVE}, 5")
        a(f"s_add_u32 s{sT0}, s{sT0}, s{sT1}")
        a.vmem(f"buffer_load_ushort v{vB2}, v{vT}, {srd(sB2)}, s{sT0} offen", "b")
        dma_addr(a, S * 2, sST)
        a(f"s_mul_i32 s{sWB}, s{sWAVE}, {448*S*2}")
        tr_addr(sM0B)
        a(f"s_sub_u32 s{sT0}, s{sUP}, s{sM0B}")
        for t in range(4):
            a(f"v_add_u32 v{vTRU+t}, s{sT0}, v{vTR+t}")
        a(f"v_lshlrev_b32 v{vL0}, 4, v{vLANE}")
        a(f"v_add_u32 v{vL1}, 65536, v{vL0}")
        a(f"v_add_u32 v{vL2}, 131072, v{vL0}")

    a.label("L_w1_ready")
    a.vm = []
    stamp(a, opt, 4)
    common_setup()
    a(f"s_mul_i32 s{sT0}, s{sDT1}, 5120")
    a(f"v_add_u32 v{vA}, s{sT0}, v{vL0}")
    a(f"v_add_u32 v{vA2}, 4096, v{vA}")
    a(f"s_lshl_b32 s{sT0}, s{sWAVE}, 6")
    a(f"v_add_u32 v{vX}, s{sT0}, v{vLANE}")
    a(f"v_lshlrev_b32 v{vX}, 3, v{vX}")
    poll(a, opt, vX, 2, None)
    a("s_barrier")
    stamp(a, opt, 5)

    def a_loads(srdn, step, nsteps, s_rot):
        slot = step % NS
        step_off(a, sOFF, sSTEP, s_rot, step, nsteps, 40960)
        return [f"buffer_load_dwordx4 {vr(ring(slot,t),4)}, v{vA if t < 4 else vA2}, {srd(srdn)}, s{sOFF} offen offset:{(t*1024) if t < 4 else 0} sc1" for t in range(5)]

    def main_loop(srdn, nsteps, s_rot, tagp, mfma, stamp0, tail):
        for st in range(opt.depth):
            for ins in a_loads(srdn, st, nsteps, s_rot): a.vmem(ins, f"{tagp}{st}")
        for st in range(nsteps):
            nx = st + opt.depth
            nxt = a_loads(srdn, nx, nsteps, s_rot) if nx < nsteps else None
            a.wait_vm(f"{tagp}{st}")
            if st == 0 and stamp0 is not None: stamp(a, opt, stamp0)
            for o in range(5):
                if nxt: a.vmem(nxt[o], f"{tagp}{nx}")
                for i in range(4): mfma(st, o, i, st % NS)
                if tail: tail(st, o)

    a(f"s_mul_i32 s{sSTEP}, s{sWAVE}, {16*40960}")
    def mfma1(st, nt, mt, slot):
        c = "0" if st == 0 else vr(acc1(mt, nt), 4)
        a(f"v_mfma_f32_16x16x32_bf16 {vr(acc1(mt,nt),4)}, {ar(wfrag(st,mt),4)}, {vr(ring(slot,nt),4)}, {c}")
    def tail1(st, o):
        if st >= 14 and o == 1: w2_dma(a, st - 14)
    main_loop(sH, 16, sROT1, "h", mfma1, 6, tail1)
    stamp(a, opt, 7)

    a(f"s_mov_b32 s100, {f2h(C1)}"); a(f"s_mov_b32 s101, {f2h(C1)}")
    a(f"v_mov_b32 v{vC0}, {f2h(C0)}"); a(f"v_mov_b32 v{vC0+1}, {f2h(C0)}")
    def lds_ref(addr):
        if addr < 65536: return vL0, addr
        if addr < 131072: return vL1, addr - 65536
        return vL2, addr - 131072
    def owner1(p, nt): return p + (0 if nt < 3 else 2)
    units = [(p, nt) for p in range(2) for nt in range(5)]
    def red1_addr(src, u):
        k = [x for x in units if owner1(*x) != src].index(u)
        return src * 32768 + 24576 + k * 2048 if k < 4 else 131072 + src * 8192 + (k - 4) * 2048
    saved_vm = list(a.vm)
    for w in range(4):
        if w < 3:
            a(f"s_cmp_lg_u32 s{sWAVE}, {w}")
            a(f"s_cbranch_scc1 L_ep1_{w+1}")
        a.vm = list(saved_vm)
        a("s_nop 7")
        for u in units:
            if owner1(*u) == w: continue
            p, nt = u
            for hf in range(2):
                vb, off = lds_ref(red1_addr(w, u) + hf * 1024)
                a(f"ds_write_b128 v{vb}, {vr(acc1(2*p+hf, nt),4)} offset:{off}")
        w2_dma(a, 2); w2_dma(a, 3)
        a("s_waitcnt lgkmcnt(0)")
        a("s_barrier")
        own_u = [u for u in units if owner1(*u) == w]
        RT = vRING
        n = 0
        for u in own_u:
            for src in range(4):
                if src == w: continue
                for hf in range(2):
                    vb, off = lds_ref(red1_addr(src, u) + hf * 1024)
                    a(f"ds_read_b128 {vr(RT + n*4, 4)}, v{vb} offset:{off}")
                    n += 1
        a.wait_vm("b")
        for i in range(4):
            a(f"v_lshlrev_b32 v{BI+2*i}, 16, v{vB1+i}")
            a(f"v_and_b32 v{BI+2*i+1}, 0xffff0000, v{vB1+i}")
        n = 0
        tot = len(own_u) * 6
        for u in own_u:
            p, nt = u
            for si in range(3):
                for hf in range(2):
                    a(f"s_waitcnt lgkmcnt({min(15, tot - n - 1)})")
                    r = acc1(2*p+hf, nt)
                    a(f"v_pk_add_f32 {vr(r,2)}, {vr(r,2)}, {vr(RT+n*4,2)}")
                    a(f"v_pk_add_f32 {vr(r+2,2)}, {vr(r+2,2)}, {vr(RT+n*4+2,2)}")
                    n += 1
        a("s_barrier")
        w2_dma(a, 4); w2_dma(a, 5)
        regs = []
        for u in own_u:
            p, nt = u
            for hf in range(2):
                r = acc1(2*p+hf, nt)
                a(f"v_pk_add_f32 {vr(r,2)}, {vr(r,2)}, {vr(BI+4*hf,2)}")
                a(f"v_pk_add_f32 {vr(r+2,2)}, {vr(r+2,2)}, {vr(BI+4*hf+2,2)}")
                regs += [r, r + 2]
        gelu_pairs(a, regs, RT, fill=lambda: (w2_dma(a, 6), w2_dma(a, 7)))
        a(f"s_lshl_b32 s{sT0}, s{sFT}, 1")
        a(f"s_add_u32 s{sT0}, s{sT0}, {w & 1}")
        a(f"s_mul_i32 s{sT0}, s{sT0}, 40960")
        a(f"s_mul_i32 s{sT1}, s{sDT1}, 5120")
        a(f"s_add_u32 s{sT0}, s{sT0}, s{sT1}")
        for i, u in enumerate(own_u):
            p, nt = u
            o = RT + 64 + 4 * i
            r0, r1 = acc1(2*p, nt), acc1(2*p+1, nt)
            a(f"v_cvt_pk_bf16_f32 v{o}, v{r0}, v{r0+1}")
            a(f"v_cvt_pk_bf16_f32 v{o+1}, v{r0+2}, v{r0+3}")
            a(f"v_cvt_pk_bf16_f32 v{o+2}, v{r1}, v{r1+1}")
            a(f"v_cvt_pk_bf16_f32 v{o+3}, v{r1+2}, v{r1+3}")
            a(f"s_add_u32 s{sT1}, s{sT0}, {nt*1024}")
            a.vmem(f"buffer_store_dwordx4 {vr(o,4)}, v{vL0}, {srd(sG)}, s{sT1} offen sc1", "g")
        stamp(a, opt, 8)
        w2_dma(a, 8); w2_dma(a, 9)
        a.wait_vm("w2_3")
        for st in range(4):
            w2_tr(a, st)
            if st == 1: a("s_waitcnt lgkmcnt(0)")
        a.wait_vm("g")
        a(f"s_lshl_b32 s{sT0}, s{sDT1}, 5")
        a(f"s_add_u32 s{sT0}, s{sT0}, s{sFT}")
        a(f"s_lshl_b32 s{sT0}, s{sT0}, 4")
        a(f"s_add_u32 s{sT0}, s{sT0}, {FLAG_G + 4*w}")
        flag_store(a, sT0)
        stamp(a, opt, 9)
        a("s_waitcnt lgkmcnt(0)")
        for st in range(10, 14): w2_dma(a, st)
        for st in range(4, 8):
            w2_tr(a, st)
            if st % 2 == 1: a("s_waitcnt lgkmcnt(0)")
        a.wait_vm("w2_9")
        for st in range(8, 10): w2_tr(a, st)
        a("s_branch L_pre2")
        if w < 3: a.label(f"L_ep1_{w+1}")

    a.label("L_nogemm1")
    a.vm = []
    common_setup()
    if opt.pf:
        a(f"s_and_b32 s{sT0}, s{sXCD}, 1")
        a(f"s_mul_i32 s{sT0}, s{sT0}, 5")
        a(f"s_add_u32 s{sT0}, s{sT0}, s{sJ}")
        a(f"s_sub_u32 s{sT0}, s{sT0}, 27")
        a(f"s_lshl_b32 s{sT0}, s{sT0}, 2")
        a(f"s_add_u32 s{sT0}, s{sT0}, s{sWAVE}")
        a(f"s_lshl_b32 s{sT0}, s{sT0}, 12")
        a(f"s_lshr_b32 s{sT1}, s{sXCD}, 1")
        a(f"s_lshl_b32 s{sT1}, s{sT1}, 10")
        a(f"s_add_u32 s{sT0}, s{sT0}, s{sT1}")
        for k in range(44):
            o = vRING + (k % 16) * 4
            a.vmem(f"buffer_load_dwordx4 {vr(o,4)}, v{vL0}, {srd(sW2)}, s{sT0} offen", f"pf{k}")
            a(f"s_add_u32 s{sT0}, s{sT0}, {40*4096}")
            if k >= 12: a.wait_vm(f"pf{k-12}")
    for st in range(10): w2_dma(a, st)
    for st in range(4):
        a.wait_vm(f"w2_{st}")
        w2_tr(a, st)
        if st % 2 == 1: a("s_waitcnt lgkmcnt(0)")
    for st in range(10, 14): w2_dma(a, st)
    for st in range(4, 10):
        a.wait_vm(f"w2_{st}")
        w2_tr(a, st)
        if st % 2 == 1: a("s_waitcnt lgkmcnt(0)")

    a.label("L_pre2")
    a.wait_vm0()
    a("s_waitcnt lgkmcnt(0)")
    for st in range(10, 14):
        w2_tr(a, st)
        if st % 2 == 1: a("s_waitcnt lgkmcnt(0)")
    stamp(a, opt, 10)
    a(f"s_mul_i32 s{sT0}, s{sDT2}, 5120")
    a(f"v_add_u32 v{vA}, s{sT0}, v{vL0}")
    a(f"v_add_u32 v{vA2}, 4096, v{vA}")
    a(f"s_lshl_b32 s{sT0}, s{sDT2}, 5")
    a(f"s_mul_i32 s{sT1}, s{sWAVE}, 7")
    a(f"s_add_u32 s{sT0}, s{sT0}, s{sT1}")
    a(f"s_lshl_b32 s{sT0}, s{sT0}, 4")
    a(f"s_add_u32 s{sT0}, s{sT0}, {FLAG_G}")
    a(f"v_lshlrev_b32 v{vX}, 2, v{vLANE}")
    a(f"v_add_u32 v{vX}, s{sT0}, v{vX}")
    a(f"s_cmp_eq_u32 s{sWAVE}, 3")
    a(f"s_mov_b32 s{sP+3}, 0xffffff")
    a(f"s_cselect_b32 s{sP+2}, s{sP+3}, 0xfffffff")
    a(f"s_mov_b32 s{sP+3}, 0")
    poll(a, opt, vX, 1, sP + 2)
    stamp(a, opt, 11)
    a(f"s_mul_i32 s{sSTEP}, s{sWAVE}, {14*40960}")
    def mfma2(st, mt, nt, slot):
        c = "0" if st == 0 else vr(acc2(mt, nt), 4)
        a(f"v_mfma_f32_16x16x32_bf16 {vr(acc2(mt,nt),4)}, {vr(ring(slot,mt),4)}, {ar(wfrag(st,nt),4)}, {c}")
    main_loop(sG, 14, sROT2, "g", mfma2, 12, None)
    stamp(a, opt, 13)
    a(f"v_and_b32 v{vT}, 15, v{vLANE}")
    a(f"s_lshl_b32 s{sT0}, s{sWAVE}, 4")
    a(f"v_add_u32 v{vT}, s{sT0}, v{vT}")
    a(f"v_mul_u32_u24 v{vA}, 1280, v{vT}")
    a(f"v_lshrrev_b32 v{vT}, 4, v{vLANE}")
    a(f"v_lshlrev_b32 v{vT}, 3, v{vT}")
    a(f"v_add_u32 v{vA}, v{vA}, v{vT}")
    a(f"s_mul_i32 s{sT0}, s{sST}, {64*1280}")
    a(f"s_mul_i32 s{sT1}, s{sDT2}, 160")
    a(f"s_add_u32 s{sOFF}, s{sT0}, s{sT1}")
    a(f"v_lshlrev_b32 v{vB2}, 16, v{vB2}")
    def red2_addr(src, nt, mt):
        k = [x for x in range(4) if x != src].index(nt)
        return src * 32768 + (k * 5 + mt) * 1024
    for w in range(4):
        if w < 3:
            a(f"s_cmp_lg_u32 s{sWAVE}, {w}")
            a(f"s_cbranch_scc1 L_ep2_{w+1}")
        a("s_nop 7")
        for nt in range(4):
            if nt == w: continue
            for mt in range(5):
                vb, off = lds_ref(red2_addr(w, nt, mt))
                a(f"ds_write_b128 v{vb}, {vr(acc2(mt,nt),4)} offset:{off}")
        a("s_waitcnt lgkmcnt(0)")
        a("s_barrier")
        RT = vRING
        n = 0
        for mt in range(5):
            for src in range(4):
                if src == w: continue
                vb, off = lds_ref(red2_addr(src, w, mt))
                a(f"ds_read_b128 {vr(RT+n*4,4)}, v{vb} offset:{off}")
                n += 1
        n = 0
        for mt in range(5):
            r = acc2(mt, w)
            for si in range(3):
                a(f"s_waitcnt lgkmcnt({14 - n})")
                a(f"v_pk_add_f32 {vr(r,2)}, {vr(r,2)}, {vr(RT+n*4,2)}")
                a(f"v_pk_add_f32 {vr(r+2,2)}, {vr(r+2,2)}, {vr(RT+n*4+2,2)}")
                n += 1
            for k in range(4):
                a(f"v_add_f32 v{r+k}, v{r+k}, v{vB2}")
            o = RT + 64 + 2 * mt
            a(f"v_cvt_pk_bf16_f32 v{o}, v{r}, v{r+1}")
            a(f"v_cvt_pk_bf16_f32 v{o+1}, v{r+2}, v{r+3}")
            a(f"buffer_store_dwordx2 {vr(o,2)}, v{vA}, {srd(sO)}, s{sOFF} offen offset:{mt*32} {opt.obits}")
        a("s_branch L_fin")
        if w < 3: a.label(f"L_ep2_{w+1}")
    a.label("L_fin")
    if opt.pad:
        a.label("L_pad")
        a(f"s_memrealtime s[{sP}:{sP+1}]")
        a("s_waitcnt lgkmcnt(0)")
        a(f"s_sub_u32 s{sT0}, s{sP}, s96")
        a(f"s_cmp_lt_u32 s{sT0}, {opt.pad}")
        a("s_cbranch_scc1 L_pad")
    if opt.prof:
        a("s_waitcnt vmcnt(0)")
        stamp(a, opt, 14)
        make_srd(a, sX, 18, 65536, WS_PROF)
        a(f"s_lshl_b32 s{sT0}, s{sWG}, 2")
        a(f"s_add_u32 s{sT0}, s{sT0}, s{sWAVE}")
        a(f"s_lshl_b32 s{sT0}, s{sT0}, 6")
        a(f"v_mov_b32 v{vT}, s{sT0}")
        a("s_mov_b64 exec, 1")
        for i in range(15):
            a(f"v_mov_b32 v100, s{sPROF+i}")
            a(f"buffer_store_dword v100, v{vT}, {srd(sX)}, 0 offen offset:{4*i}")
            a("s_nop 1")
        a("s_waitcnt vmcnt(0)")
    a.label("L_done")
    a("s_endpgm")
    a.raw('.section .rodata,"a"')
    a.raw(".p2align 6")
    a.raw(f".amdhsa_kernel {KN}")
    for l in ["next_free_vgpr 512", "next_free_sgpr 102", "accum_offset 256", "group_segment_fixed_size 0",
              "kernarg_size 64", "user_sgpr_count 2", "user_sgpr_kernarg_segment_ptr 1",
              "system_sgpr_workgroup_id_x 1", "float_denorm_mode_32 3"]:
        a.raw(f"  .amdhsa_{l}")
    a.raw(".end_amdhsa_kernel")
    return "\n".join(a.L) + "\n"

def parse(argv=None):
    ap = argparse.ArgumentParser()
    ap.add_argument("-o", default="standalone__mixer_token_mlp__prompt.s")
    ap.add_argument("--prof", type=int, default=0)
    ap.add_argument("--rot", type=int, default=1)
    ap.add_argument("--spin", type=int, default=100000)
    ap.add_argument("--sleep", type=int, default=1)
    ap.add_argument("--depth", type=int, default=2)
    ap.add_argument("--lead", type=int, default=4)
    ap.add_argument("--pf", type=int, default=1)
    ap.add_argument("--pad", type=int, default=0)
    ap.add_argument("--obits", default="sc1")
    return ap.parse_args(argv)

if __name__ == "__main__":
    opt = parse()
    open(opt.o, "w").write(gen(opt))
```

```python
import argparse, struct

S, D, F = 2048, 640, 1728
KN = "standalone__mixer_token_mlp__prompt_kernel"

WS_H = 0
H_BYTES = 64 * 40 * 1024
WS_G = 0x300000
G_BYTES = 54 * 40 * 1024
WS_FLAG = 0x600000
FLAG_H = 0
FLAG_G = 0x10000
FLAG_BYTES = 0x40000
WS_PROF = 0x700000

LDS_BYTES = 163840
LN_BASE = 131072
LN_ROW = 1344
LF_BASE = 141824
P0_BASE = [0, 49152, 98304, 122880]

sWG = 2
sX, sW1, sW2, sH, sG, sO, sF, sB1, sB2, sD = 20, 24, 28, 32, 36, 40, 44, 48, 52, 56
sWAVE, sXCD, sJ, sFT, sDT1, sST, sDT2, sNONCE = 60, 61, 62, 63, 64, 65, 66, 67
sT0, sT1, sT2, sT3, sT4, sT5 = 68, 69, 70, 71, 72, 73
sROT1, sROT2, sSTEP, sOFF = 74, 75, 76, 77
sM0B, sSPIN = 78, 79
sP = 80
sPROF = 84
sUP = 99
sJLIM, sIDLE = 100, 101
sWB = 3

vTID, vLANE = 0, 1
vTR = 2
vA, vA2, vDMA, vT2 = 6, 7, 8, 9
vB1 = 10
vB2, vT = 14, 15
vACC = 16
vRING = 96
vTRU = 176
vL0, vL1, vL2 = 180, 181, 182
vC0 = 184
BI = 186
vPOLL = 194
vX = 196
vDM = 200

def srd(n): return f"s[{n}:{n+3}]"
def vr(n, c=1): return f"v{n}" if c == 1 else f"v[{n}:{n+c-1}]"
def ar(n, c=1): return f"a{n}" if c == 1 else f"a[{n}:{n+c-1}]"
def f2h(x): return "0x%08x" % struct.unpack("<I", struct.pack("<f", x))[0]
C0 = -2.0 * 0.7978845608028654 * 1.4426950408889634
C1 = C0 * 0.044715

class Asm:
    def __init__(self):
        self.L = []; self.vm = []; self.uid = 0
    def __call__(self, s): self.L.append("    " + s)
    def label(self, s): self.L.append(s + ":")
    def raw(self, s): self.L.append(s)
    def c(self, s): self.L.append("    ; " + s)
    def vmem(self, s, tag):
        self(s); self.vm.append(tag)
    def wait_vm(self, tag):
        hits = [i for i, t in enumerate(self.vm) if t == tag]
        if not hits: return
        n = len(self.vm) - 1 - hits[-1]
        self(f"s_waitcnt vmcnt({min(n, 63)})")
        self.vm = self.vm[hits[-1] + 1:]
    def wait_vm0(self):
        self("s_waitcnt vmcnt(0)"); self.vm = []
    def newlabel(self, p):
        self.uid += 1
        return f"L_{p}_{self.uid}"

def acc1(mt, nt): return vACC + (mt * 5 + nt) * 4
def acc2(mt, nt): return vACC + (mt * 4 + nt) * 4
def wfrag(step, t): return step * 16 + t * 4

def stamp(a, opt, idx, force=False):
    if opt.lnprof and idx in (4, 5) and getattr(a, "ln_done", False): return
    if opt.prof:
        a(f"s_mem{'time' if opt.prof == 2 else 'realtime'} s[{sP}:{sP+1}]")
        a("s_waitcnt lgkmcnt(0)")
        a(f"s_mov_b32 s{sPROF+idx}, s{sP}")

def make_srd(a, n, lo, size, add=0):
    if add:
        a(f"s_add_u32 s{n}, s{lo}, {add}")
        a(f"s_addc_u32 s{n+1}, s{lo+1}, 0")
        a(f"s_and_b32 s{n+1}, s{n+1}, 0xffff")
    else:
        a(f"s_mov_b32 s{n}, s{lo}")
        a(f"s_and_b32 s{n+1}, s{lo+1}, 0xffff")
    a(f"s_mov_b32 s{n+2}, {size}")
    a(f"s_mov_b32 s{n+3}, 0x20000")

def nonce_spin(a, opt):
    lp = a.newlabel("nonce"); dn = a.newlabel("nonced")
    a(f"s_cmp_lg_u32 s{sNONCE}, 0")
    a(f"s_cbranch_scc1 {dn}")
    a(f"s_mov_b32 s{sSPIN}, 0")
    a(f"v_mov_b32 v{vT}, 0")
    a.label(lp)
    a(f"buffer_load_dword v{vT2}, v{vT}, {srd(sD)}, 0 offen sc1")
    a("s_waitcnt vmcnt(0)")
    a(f"v_readfirstlane_b32 s{sNONCE}, v{vT2}")
    a(f"s_add_u32 s{sSPIN}, s{sSPIN}, 1")
    a(f"s_cmp_lg_u32 s{sNONCE}, 0")
    a(f"s_cbranch_scc1 {dn}")
    a(f"s_cmp_lt_u32 s{sSPIN}, {opt.spin}")
    a(f"s_cbranch_scc1 {lp}")
    a.label(dn)

def lds_set(a, addr_sgpr_or_imm):
    a(f"v_mov_b32 v{vT}, {addr_sgpr_or_imm}")
    a(f"v_mov_b32 v{vT2}, 1")
    a(f"s_mov_b64 s[{sP}:{sP+1}], exec")
    a("s_mov_b64 exec, 1")
    a(f"ds_write_b32 v{vT}, v{vT2}")
    a(f"s_mov_b64 exec, s[{sP}:{sP+1}]")

def lds_spin(a, opt, addr):
    lp = a.newlabel("lspin"); dn = a.newlabel("lspun")
    a(f"v_mov_b32 v{vT}, {addr}")
    a(f"s_mov_b32 s{sSPIN}, 0")
    a.label(lp)
    a(f"ds_read_b32 v{vT2}, v{vT}")
    a("s_waitcnt lgkmcnt(0)")
    a(f"v_readfirstlane_b32 s{sP}, v{vT2}")
    a(f"s_add_u32 s{sSPIN}, s{sSPIN}, 1")
    a(f"s_cmp_lg_u32 s{sP}, 0")
    a(f"s_cbranch_scc1 {dn}")
    a(f"s_cmp_lt_u32 s{sSPIN}, {opt.spin * 8}")
    a(f"s_cbranch_scc1 {lp}")
    a.label(dn)

def dma_addr(a, stride, s_tile):
    a(f"v_lshrrev_b32 v{vT}, 3, v{vLANE}")
    a(f"v_lshrrev_b32 v{vT2}, 1, v{vT}")
    a(f"v_lshlrev_b32 v{vT2}, 1, v{vT2}")
    a(f"v_and_b32 v{vDM}, 7, v{vLANE}")
    a(f"v_xor_b32 v{vDM}, v{vDM}, v{vT2}")
    a(f"v_lshlrev_b32 v{vDM}, 4, v{vDM}")
    a(f"v_mul_u32_u24 v{vT}, {stride}, v{vT}")
    a(f"v_add_u32 v{vDM}, v{vDM}, v{vT}")
    a(f"s_lshl_b32 s{sT0}, s{s_tile}, 7")
    a(f"v_add_u32 v{vDM}, s{sT0}, v{vDM}")
    for b in range(1, 4):
        a(f"v_add_u32 v{vDM+b}, {b*(8*stride-1024)}, v{vDM}")

def step_off(a, dst, s_base, s_rot, i, nsteps, bytes_per_step):
    a(f"s_add_u32 s{sT4}, s{s_rot}, {i}")
    a(f"s_cmp_ge_u32 s{sT4}, {nsteps}")
    a(f"s_cselect_b32 s{dst}, {nsteps}, 0")
    a(f"s_sub_u32 s{sT4}, s{sT4}, s{dst}")
    a(f"s_mul_i32 s{sT4}, s{sT4}, {bytes_per_step}")
    a(f"s_add_u32 s{dst}, s{sT4}, s{s_base}")

def dma_step(a, srdn, stride, s_rowbase, s_rot, step, nsteps, s_lds, lds_off, tag, bits=""):
    a(f"s_add_u32 m0, s{s_lds}, {lds_off}")
    step_off(a, sOFF, s_rowbase, s_rot, step, nsteps, 32 * stride)
    for blk in range(4):
        a.vmem(f"buffer_load_dwordx4 v{vDM+blk}, {srd(srdn)}, s{sOFF} offen offset:{blk*1024} {bits} lds", tag)

def tr_step(a, vbase, off, step):
    for t in range(4):
        w = wfrag(step, t)
        a(f"ds_read_b64_tr_b16 {ar(w,2)}, v{vbase+t} offset:{off}")
        a(f"ds_read_b64_tr_b16 {ar(w+2,2)}, v{vbase+t} offset:{off+2048}")

def poll(a, opt, vaddr, nd, lanes):
    lp = a.newlabel("poll"); dn = a.newlabel("polled")
    a(f"s_mov_b32 s{sSPIN}, 0")
    a.label(lp)
    ld = {1: "dword", 2: "dwordx2"}[nd]
    a(f"buffer_load_{ld} {vr(vPOLL, nd)}, v{vaddr}, {srd(sF)}, 0 offen sc1")
    a("s_waitcnt vmcnt(0)")
    a(f"v_cmp_ne_u32 vcc, s{sNONCE}, v{vPOLL}")
    if nd == 2:
        a(f"v_cmp_ne_u32 s[{sP}:{sP+1}], s{sNONCE}, v{vPOLL+1}")
        a(f"s_or_b64 vcc, vcc, s[{sP}:{sP+1}]")
    if lanes is not None:
        a(f"s_and_b64 vcc, vcc, s[{lanes}:{lanes+1}]")
    a(f"s_add_u32 s{sSPIN}, s{sSPIN}, 1")
    a("s_cmp_eq_u64 vcc, 0")
    a(f"s_cbranch_scc1 {dn}")
    if opt.sleep: a(f"s_sleep {opt.sleep}")
    a(f"s_cmp_lt_u32 s{sSPIN}, {opt.spin}")
    a(f"s_cbranch_scc1 {lp}")
    a.label(dn)
    a.vm = []

def flag_store(a, s_index_bytes):
    a(f"v_mov_b32 v{vT}, s{s_index_bytes}")
    a(f"v_mov_b32 v{vT2}, s{sNONCE}")
    a(f"s_mov_b64 s[{sP}:{sP+1}], exec")
    a("s_mov_b64 exec, 1")
    a.vmem(f"buffer_store_dword v{vT2}, v{vT}, {srd(sF)}, 0 offen sc1", "flag")
    a(f"s_mov_b64 exec, s[{sP}:{sP+1}]")

def gelu_pairs(a, regs, tmp, fill=None):
    def each(fn):
        for i, r in enumerate(regs): fn(r, tmp + 2 * i)
    each(lambda r, t: a(f"v_pk_mul_f32 {vr(t,2)}, {vr(r,2)}, {vr(r,2)}"))
    each(lambda r, t: a(f"v_pk_fma_f32 {vr(t,2)}, {vr(t,2)}, s[100:101], {vr(vC0,2)}"))
    each(lambda r, t: a(f"v_pk_mul_f32 {vr(t,2)}, {vr(t,2)}, {vr(r,2)}"))
    if fill: fill()
    each(lambda r, t: (a(f"v_exp_f32 v{t}, v{t}"), a(f"v_exp_f32 v{t+1}, v{t+1}")))
    each(lambda r, t: a(f"v_pk_add_f32 {vr(t,2)}, {vr(t,2)}, 1.0 op_sel_hi:[1,0]"))
    each(lambda r, t: (a(f"v_rcp_f32 v{t}, v{t}"), a(f"v_rcp_f32 v{t+1}, v{t+1}")))
    a("s_nop 0")
    each(lambda r, t: a(f"v_pk_mul_f32 {vr(r,2)}, {vr(r,2)}, {vr(t,2)}"))

def w2_slot(step):
    if step < 8: return sM0B, step * 4096, vTR, step * 4096
    if step < 10: return sUP, (step - 8) * 4096, vTRU, (step - 8) * 4096
    return sM0B, (step - 10) * 4096, vTR, (step - 10) * 4096

def w2_dma(a, step):
    sb, off, _, _ = w2_slot(step)
    dma_step(a, sW2, S * 2, sWB, sROT2, step, 14, sb, off, f"w2_{step}", OPT.w2bits)

def w2_tr(a, step):
    _, _, vb, off = w2_slot(step)
    tr_step(a, vb, off, step)

def gen(opt):
    global OPT
    OPT = opt
    a = Asm()
    NS = opt.depth + 1
    def ring(slot, t): return vRING + slot * 20 + t * 4
    a.raw(f"; @launch grid=(256,1,1) block=(256,1,1) lds={LDS_BYTES}")
    a.raw('.amdgcn_target "amdgcn-amd-amdhsa--gfx950"')
    a.raw(".text")
    a.raw(f".globl {KN}")
    a.raw(".p2align 8")
    a.raw(f".type {KN},@function")
    a.label(KN)
    a(f"s_cmp_ge_u32 s{sWG}, 256")
    a("s_cbranch_scc1 L_done")
    a("s_load_dwordx16 s[4:19], s[0:1], 0")
    if opt.prof:
        a(f"s_mem{'time' if opt.prof == 2 else 'realtime'} s[{sP}:{sP+1}]")
    if opt.prof:
        for i in range(1, 15): a(f"s_mov_b32 s{sPROF+i}, 0")
    if opt.pad:
        a("s_memrealtime s[96:97]")
    a(f"v_lshrrev_b32 v{vT}, 6, v{vTID}")
    a(f"v_and_b32 v{vLANE}, 63, v{vTID}")
    a(f"v_readfirstlane_b32 s{sWAVE}, v{vT}")
    a(f"s_and_b32 s{sXCD}, s{sWG}, 7")
    a(f"s_lshr_b32 s{sJ}, s{sWG}, 3")
    if opt.p1 == 2:
        a(f"s_lshr_b32 s{sT1}, s{sXCD}, 1")
        a(f"s_and_b32 s{sT2}, s{sXCD}, 1")
        a(f"s_lshl_b32 s{sT2}, s{sT2}, 2")
        a(f"s_mul_i32 s{sT0}, s{sT1}, 7")
        a(f"s_lshr_b32 s{sFT}, s{sJ}, 2")
        a(f"s_add_u32 s{sFT}, s{sFT}, s{sT0}")
        a(f"s_and_b32 s{sT3}, s{sJ}, 3")
        a(f"s_add_u32 s{sDT1}, s{sT2}, s{sT3}")
        a(f"s_lshl_b32 s{sROT1}, s{sT3}, 2")
        a(f"s_cmp_eq_u32 s{sT1}, 3")
        a(f"s_cselect_b32 s{sJLIM}, 24, 28")
        a(f"s_lshl_b32 s{sT0}, s{sXCD}, 2")
        a(f"s_sub_u32 s{sT0}, s{sT0}, 28")
        a(f"s_lshl_b32 s{sT3}, s{sXCD}, 3")
        a(f"s_sub_u32 s{sT3}, s{sT3}, 48")
        a(f"s_cselect_b32 s{sIDLE}, s{sT0}, s{sT0}")
        a(f"s_cmp_ge_u32 s{sXCD}, 6")
        a(f"s_cselect_b32 s{sIDLE}, s{sT3}, s{sT0}")
        a(f"s_add_u32 s{sIDLE}, s{sIDLE}, s{sJ}")
    else:
        a(f"s_lshl_b32 s{sT0}, s{sXCD}, 2")
        a(f"s_mul_i32 s{sT1}, s{sXCD}, 3")
        a(f"s_add_u32 s{sT1}, s{sT1}, 3")
        a(f"s_cmp_lt_u32 s{sXCD}, 3")
        a(f"s_cselect_b32 s{sT0}, s{sT0}, s{sT1}")
        a(f"s_cselect_b32 s{sJLIM}, 32, 24")
        a(f"s_lshr_b32 s{sFT}, s{sJ}, 3")
        a(f"s_add_u32 s{sFT}, s{sFT}, s{sT0}")
        a(f"s_and_b32 s{sDT1}, s{sJ}, 7")
        a(f"s_lshl_b32 s{sROT1}, s{sDT1}, 1")
        a(f"s_lshl_b32 s{sIDLE}, s{sXCD}, 3")
        a(f"s_add_u32 s{sIDLE}, s{sIDLE}, s{sJ}")
        a(f"s_sub_u32 s{sIDLE}, s{sIDLE}, 48")
    if opt.rota1:
        a(f"s_mul_i32 s{sT0}, s{sFT}, {opt.rota1}")
        a(f"s_add_u32 s{sROT1}, s{sROT1}, s{sT0}")
        a(f"s_and_b32 s{sROT1}, s{sROT1}, 15")
    if opt.p2 == 2:
        a(f"s_lshr_b32 s{sT1}, s{sXCD}, 1")
        a(f"s_and_b32 s{sT2}, s{sXCD}, 1")
        a(f"s_lshl_b32 s{sT2}, s{sT2}, 2")
        a(f"s_lshr_b32 s{sT0}, s{sJ}, 2")
        a(f"s_lshl_b32 s{sST}, s{sT1}, 3")
        a(f"s_add_u32 s{sST}, s{sST}, s{sT0}")
        a(f"s_and_b32 s{sT3}, s{sJ}, 3")
        a(f"s_add_u32 s{sDT2}, s{sT2}, s{sT3}")
        a(f"s_mul_i32 s{sROT2}, s{sT3}, 7")
        a(f"s_lshr_b32 s{sROT2}, s{sROT2}, 1")
    else:
        a(f"s_lshr_b32 s{sT0}, s{sJ}, 3")
        a(f"s_lshl_b32 s{sST}, s{sXCD}, 2")
        a(f"s_add_u32 s{sST}, s{sST}, s{sT0}")
        a(f"s_and_b32 s{sDT2}, s{sJ}, 7")
        a(f"s_mul_i32 s{sROT2}, s{sDT2}, 7")
        a(f"s_lshr_b32 s{sROT2}, s{sROT2}, 2")
    if opt.rota2:
        a(f"s_mul_i32 s{sT0}, s{sST}, {opt.rota2}")
        a(f"s_add_u32 s{sROT2}, s{sROT2}, s{sT0}")
        a(f"s_and_b32 s{sT0}, s{sROT2}, 0xff")
        a(f"s_mul_i32 s{sT0}, s{sROT2}, 18725")
        a(f"s_lshr_b32 s{sT0}, s{sT0}, 18")
        a(f"s_mul_i32 s{sT0}, s{sT0}, 14")
        a(f"s_sub_u32 s{sROT2}, s{sROT2}, s{sT0}")
    if not opt.rot:
        a(f"s_mov_b32 s{sROT1}, 0")
        a(f"s_mov_b32 s{sROT2}, 0")
    a(f"s_lshl_b32 s{sM0B}, s{sWAVE}, 15")
    a(f"s_lshl_b32 s{sUP}, s{sWAVE}, 13")
    a(f"s_add_u32 s{sUP}, s{sUP}, 131072")
    def tr_addr(base_sgpr):
        t0, t1, t2 = vX, vX + 1, vX + 2
        a(f"v_lshrrev_b32 v{t0}, 4, v{vLANE}")
        a(f"v_and_b32 v{t1}, 1, v{t0}")
        a(f"v_lshlrev_b32 v{t1}, 2, v{t1}")
        a(f"v_bfe_u32 v{t2}, v{vLANE}, 2, 2")
        a(f"v_add_u32 v{t1}, v{t1}, v{t2}")
        a(f"v_lshrrev_b32 v{t0}, 1, v{t0}")
        a(f"v_lshlrev_b32 v{t0}, 10, v{t0}")
        a(f"v_lshlrev_b32 v{t2}, 7, v{t1}")
        a(f"v_add_u32 v{t0}, v{t0}, v{t2}")
        a(f"v_and_b32 v{t2}, 3, v{vLANE}")
        a(f"v_lshlrev_b32 v{t2}, 3, v{t2}")
        a(f"v_add_u32 v{t0}, v{t0}, v{t2}")
        a(f"v_add_u32 v{t0}, s{base_sgpr}, v{t0}")
        a(f"v_lshrrev_b32 v{t1}, 1, v{t1}")
        for t in range(4):
            a(f"v_xor_b32 v{t2}, {t}, v{t1}")
            a(f"v_lshlrev_b32 v{t2}, 5, v{t2}")
            a(f"v_add_u32 v{vTR+t}, v{t0}, v{t2}")
    def w1_dma(i): dma_step(a, sW1, F * 2, sWB, sROT1, i, 16, sM0B, (i % 8) * 4096, f"w1_{i}", opt.w1bits)
    def w1_stream(first, dp):
        retired = 0
        def retire():
            nonlocal retired
            a.wait_vm(f"w1_{retired}")
            if retired: a("s_waitcnt lgkmcnt(0)")
            tr_step(a, vTR, (retired % 8) * 4096, retired)
            retired += 1
        for i in range(first, 16):
            while retired <= i - dp: retire()
            if i >= 8:
                while retired <= i - 8: retire()
                if retired == i - 7: a("s_waitcnt lgkmcnt(0)")
            w1_dma(i)
        while retired < 16: retire()
        a("s_waitcnt lgkmcnt(0)")
    dma_addr(a, F * 2, sFT)
    a(f"s_mul_i32 s{sWB}, s{sWAVE}, {512*F*2}")
    a(f"s_cmp_ge_u32 s{sWAVE}, 2")
    a("s_cbranch_scc1 L_loader")

    a.c("LayerNorm: wave w normalises rows 32*ks + 16*w + 4*q + (0..3), 16 lanes per row")
    XR, XF, TM = 96, 120, 160
    if opt.prio: a(f"s_setprio {opt.prio}")
    a(f"s_lshr_b32 s{sT0}, s{sWG}, 2")
    a(f"s_and_b32 s{sT1}, s{sWG}, 3")
    a(f"s_lshl_b32 s{sT2}, s{sT0}, 5")
    a(f"s_lshl_b32 s{sT3}, s{sWAVE}, 4")
    a(f"s_add_u32 s{sT2}, s{sT2}, s{sT3}")
    a(f"s_lshl_b32 s{sT3}, s{sT1}, 2")
    a(f"s_add_u32 s{sT2}, s{sT2}, s{sT3}")
    a(f"s_mul_i32 s{sT2}, s{sT2}, 1280")
    a(f"v_lshrrev_b32 v{TM}, 4, v{vLANE}")
    a(f"v_and_b32 v{TM+1}, 15, v{vLANE}")
    a(f"v_mul_u32_u24 v{TM+2}, 1280, v{TM}")
    a(f"v_lshlrev_b32 v{TM+3}, 4, v{TM+1}")
    a(f"v_add_u32 v{TM+2}, v{TM+2}, v{TM+3}")
    a(f"v_mov_b32 v{vT}, 0")
    a("s_waitcnt lgkmcnt(0)")
    if opt.prof: a(f"s_mov_b32 s{sPROF}, s{sP}")
    make_srd(a, sX, 4, S * D * 2)
    for i in range(5):
        a.vmem(f"buffer_load_dwordx4 {vr(XR+4*i,4)}, v{TM+2}, {srd(sX)}, s{sT2} offen offset:{i*256} {opt.xbits}", "x")
    make_srd(a, sD, 16, 256)
    a.vmem(f"buffer_load_dword v{vPOLL}, v{vT}, {srd(sD)}, 0 offen sc1", "nonce")
    make_srd(a, sW1, 6, S * F * 2)
    a(f"s_cmp_ge_u32 s{sJ}, s{sJLIM}")
    a("s_cbranch_scc1 L_ln_now1")
    for i in range(opt.nearly): w1_dma(i)
    a.label("L_ln_now1")
    a("s_barrier")
    make_srd(a, sH, 18, H_BYTES, WS_H)
    make_srd(a, sF, 18, FLAG_BYTES, WS_FLAG)
    a(f"s_mul_i32 s{sSTEP}, s{sT0}, 40960")
    a(f"s_lshl_b32 s{sT1}, s{sT1}, 8")
    a(f"s_add_u32 s{sSTEP}, s{sSTEP}, s{sT1}")
    a(f"s_lshl_b32 s{sT3}, s{sWAVE}, 2")
    a(f"v_add_u32 v{TM+4}, s{sT3}, v{TM}")
    a(f"v_mul_u32_u24 v{TM+4}, {LN_ROW}, v{TM+4}")
    a(f"v_add_u32 v{TM+4}, v{TM+4}, v{TM+3}")
    a(f"v_add_u32 v{TM+4}, {LN_BASE}, v{TM+4}")
    a(f"v_bfe_u32 v{TM+5}, v{vLANE}, 2, 2")
    a(f"v_mul_u32_u24 v{TM+5}, {LN_ROW}, v{TM+5}")
    a(f"s_mul_i32 s{sT3}, s{sWAVE}, 20")
    a(f"v_add_u32 v{TM+6}, s{sT3}, v{TM}")
    a(f"v_lshlrev_b32 v{TM+7}, 5, v{TM+6}")
    a(f"v_add_u32 v{TM+5}, v{TM+5}, v{TM+7}")
    a(f"v_and_b32 v{TM+7}, 3, v{vLANE}")
    a(f"v_lshlrev_b32 v{TM+7}, 3, v{TM+7}")
    a(f"v_add_u32 v{TM+5}, v{TM+5}, v{TM+7}")
    a(f"v_add_u32 v{TM+5}, {LN_BASE}, v{TM+5}")
    a(f"v_lshlrev_b32 v{TM+6}, 10, v{TM+6}")
    a(f"v_add_u32 v{TM+6}, v{TM+6}, v{TM+3}")
    a(f"s_mov_b32 s{sT0}, 0xffff0000")
    a(f"s_cmp_ge_u32 s{sJ}, s{sJLIM}")
    a("s_cbranch_scc1 L_ln_idle")
    a(f"s_waitcnt vmcnt({1 + 4*opt.nearly})")
    a("s_branch L_ln_go")
    a.label("L_ln_idle")
    a("s_waitcnt vmcnt(1)")
    a.label("L_ln_go")
    a.vm = [t for t in a.vm if t != "x"]
    stamp(a, opt, 1)
    for i in range(20):
        a(f"v_lshlrev_b32 v{XF+2*i}, 16, v{XR+i}")
        a(f"v_and_b32 v{XF+2*i+1}, s{sT0}, v{XR+i}")
    SM = TM + 8
    for k in range(4):
        a(f"v_pk_add_f32 {vr(SM+2*k,2)}, {vr(XF+2*k,2)}, {vr(XF+8+2*k,2)}")
    for i in range(8, 20):
        k = i % 4
        a(f"v_pk_add_f32 {vr(SM+2*k,2)}, {vr(SM+2*k,2)}, {vr(XF+2*i,2)}")
    def reduce_row(dst):
        a(f"v_pk_add_f32 {vr(SM,2)}, {vr(SM,2)}, {vr(SM+2,2)}")
        a(f"v_pk_add_f32 {vr(SM+4,2)}, {vr(SM+4,2)}, {vr(SM+6,2)}")
        a(f"v_pk_add_f32 {vr(SM,2)}, {vr(SM,2)}, {vr(SM+4,2)}")
        a(f"v_add_f32 v{dst}, v{SM}, v{SM+1}")
        for rot in (8, 4, 2, 1):
            a("s_nop 1")
            a(f"v_add_f32_dpp v{dst}, v{dst}, v{dst} row_ror:{rot} row_mask:0xf bank_mask:0xf")
    MN = TM + 16
    reduce_row(MN)
    a(f"v_mul_f32 v{MN}, {f2h(1.0/640.0)}, v{MN}")
    a(f"v_mov_b32 v{MN+1}, v{MN}")
    for i in range(20):
        a(f"v_pk_add_f32 {vr(XF+2*i,2)}, {vr(XF+2*i,2)}, {vr(MN,2)} neg_lo:[0,1] neg_hi:[0,1]")
    for k in range(4):
        a(f"v_pk_mul_f32 {vr(SM+2*k,2)}, {vr(XF+2*k,2)}, {vr(XF+2*k,2)}")
    for i in range(4, 20):
        k = i % 4
        a(f"v_pk_fma_f32 {vr(SM+2*k,2)}, {vr(XF+2*i,2)}, {vr(XF+2*i,2)}, {vr(SM+2*k,2)}")
    reduce_row(MN)
    a(f"v_mov_b32 v{MN+1}, {f2h(1e-5)}")
    a(f"v_fmac_f32 v{MN+1}, {f2h(1.0/640.0)}, v{MN}")
    a(f"v_rsq_f32 v{MN}, v{MN+1}")
    a("s_nop 0")
    a(f"v_mov_b32 v{MN+1}, v{MN}")
    for i in range(20):
        a(f"v_pk_mul_f32 {vr(XF+2*i,2)}, {vr(XF+2*i,2)}, {vr(MN,2)}")
    for i in range(20):
        a(f"v_cvt_pk_bf16_f32 v{XR+i}, v{XF+2*i}, v{XF+2*i+1}")
    if opt.lnprof: stamp(a, opt, 4)
    for i in range(5):
        a(f"ds_write_b128 v{TM+4}, {vr(XR+4*i,4)} offset:{i*256}")
    a(f"s_lshl_b32 s{sT0}, s{sWAVE}, 2")
    a(f"s_add_u32 s{sT1}, s{sT0}, {LF_BASE}")
    a(f"s_xor_b32 s{sT0}, s{sT0}, 4")
    a(f"s_add_u32 s{sT0}, s{sT0}, {LF_BASE}")
    a("s_waitcnt lgkmcnt(0)")
    lds_set(a, f"s{sT1}")
    lds_spin(a, opt, f"s{sT0}")
    if opt.lnprof: stamp(a, opt, 5)
    for i in range(5):
        a(f"ds_read_b64_tr_b16 {vr(XF+4*i,2)}, v{TM+5} offset:{i*128}")
        a(f"ds_read_b64_tr_b16 {vr(XF+4*i+2,2)}, v{TM+5} offset:{i*128+4*LN_ROW}")
    for i in range(5):
        a(f"s_waitcnt lgkmcnt({8-2*i})")
        a(f"s_add_u32 s{sT0}, s{sSTEP}, {i*4096}")
        a.vmem(f"buffer_store_dwordx4 {vr(XF+4*i,4)}, v{TM+6}, {srd(sH)}, s{sT0} offen {opt.hbits}", "h")
    stamp(a, opt, 2)
    a("s_waitcnt vmcnt(5)")
    a(f"v_readfirstlane_b32 s{sNONCE}, v{vPOLL}")
    nonce_spin(a, opt)
    a.wait_vm0()
    a(f"s_mul_i32 s{sT0}, s{sWG}, {opt.hstride}")
    a(f"s_lshl_b32 s{sT1}, s{sWAVE}, 2")
    a(f"s_add_u32 s{sT0}, s{sT0}, s{sT1}")
    flag_store(a, sT0)
    a(f"s_lshl_b32 s{sT0}, s{sWAVE}, 2")
    a(f"s_add_u32 s{sT0}, s{sT0}, {LF_BASE + 8}")
    lds_set(a, f"s{sT0}")
    stamp(a, opt, 3)
    if opt.prio: a("s_setprio 0")
    a.ln_done = True
    a("s_branch L_roles_done")

    a.label("L_loader")
    a.vm = []
    a(f"v_lshlrev_b32 v{vX}, 2, v{vLANE}")
    a(f"v_add_u32 v{vX}, {LF_BASE}, v{vX}")
    a(f"v_mov_b32 v{vX+1}, 0")
    a(f"ds_write_b32 v{vX}, v{vX+1}")
    a("s_waitcnt lgkmcnt(0)")
    if opt.prof: a(f"s_mov_b32 s{sPROF}, s{sP}")
    make_srd(a, sW1, 6, S * F * 2)
    make_srd(a, sD, 16, 256)
    a(f"s_cmp_lg_u32 s{sWG}, 0")
    a("s_cbranch_scc1 L_nononce")
    a(f"s_cmp_lg_u32 s{sWAVE}, 3")
    a("s_cbranch_scc1 L_nononce")
    a(f"s_memrealtime s[{sP}:{sP+1}]")
    a("s_waitcnt lgkmcnt(0)")
    a(f"s_or_b32 s{sT0}, s{sP}, 1")
    a(f"v_mov_b32 v{vT2}, s{sT0}")
    a(f"v_mov_b32 v{vT}, 0")
    a(f"s_mov_b64 s[{sP}:{sP+1}], exec")
    a("s_mov_b64 exec, 1")
    a(f"buffer_store_dword v{vT2}, v{vT}, {srd(sD)}, 0 offen sc1")
    a(f"s_mov_b64 exec, s[{sP}:{sP+1}]")
    a.label("L_nononce")
    a(f"s_cmp_ge_u32 s{sJ}, s{sJLIM}")
    a("s_cbranch_scc1 L_loader_idle")
    for i in range(2): w1_dma(i)
    a("s_barrier")
    tr_addr(sM0B)
    if opt.hold:
        lds_spin(a, opt, LF_BASE + 8)
        lds_spin(a, opt, LF_BASE + 12)
    w1_stream(2, opt.dp)
    a(f"s_mov_b32 s{sNONCE}, 0")
    nonce_spin(a, opt)
    a("s_branch L_w1_ready")
    a.label("L_loader_idle")
    a.vm = []
    a("s_barrier")
    if opt.pfwait:
        lds_spin(a, opt, LF_BASE + 8)
        lds_spin(a, opt, LF_BASE + 12)
    if opt.pf:
        make_srd(a, sW2, 10, F * S * 2)
        a(f"s_lshl_b32 s{sT0}, s{sIDLE}, 1")
        a(f"s_add_u32 s{sT0}, s{sT0}, s{sWAVE}")
        a(f"s_sub_u32 s{sT0}, s{sT0}, 2")
        a(f"s_lshl_b32 s{sT0}, s{sT0}, 10")
        a(f"v_lshlrev_b32 v{vX}, 4, v{vLANE}")
        inc = 80 * 1024
        for k in range(87):
            o = vRING + (k % 20) * 4
            a.vmem(f"buffer_load_dwordx4 {vr(o,4)}, v{vX}, {srd(sW2)}, s{sT0} offen {opt.pfbits}", f"pf{k}")
            a(f"s_add_u32 s{sT0}, s{sT0}, {inc}")
            if k >= opt.pfdepth: a.wait_vm(f"pf{k-opt.pfdepth}")
    a(f"s_mov_b32 s{sNONCE}, 0")
    nonce_spin(a, opt)
    a("s_branch L_nogemm1")

    a.label("L_roles_done")
    a.vm = []
    a(f"s_cmp_ge_u32 s{sJ}, s{sJLIM}")
    a("s_cbranch_scc1 L_nogemm1")
    a.vm = []
    tr_addr(sM0B)
    for i in range(opt.nearly): a.vm.append(f"w1_{i}")
    a.vm.append("flag")
    w1_stream(opt.nearly, opt.dpl)

    def common_setup():
        make_srd(a, sH, 18, H_BYTES, WS_H)
        make_srd(a, sF, 18, FLAG_BYTES, WS_FLAG)
        make_srd(a, sB1, 8, F * 2)
        make_srd(a, sW2, 10, F * S * 2)
        make_srd(a, sB2, 12, S * 2)
        make_srd(a, sO, 14, S * D * 2)
        make_srd(a, sG, 18, G_BYTES, WS_G)
        a(f"v_lshrrev_b32 v{vT}, 4, v{vLANE}")
        a(f"v_lshlrev_b32 v{vT}, 3, v{vT}")
        a(f"s_and_b32 s{sT0}, s{sWAVE}, 1")
        a(f"s_lshl_b32 s{sT0}, s{sT0}, 6")
        a(f"s_lshl_b32 s{sT1}, s{sFT}, 7")
        a(f"s_add_u32 s{sT0}, s{sT0}, s{sT1}")
        a.vmem(f"buffer_load_dwordx2 {vr(vB1,2)}, v{vT}, {srd(sB1)}, s{sT0} offen", "b")
        a.vmem(f"buffer_load_dwordx2 {vr(vB1+2,2)}, v{vT}, {srd(sB1)}, s{sT0} offen offset:32", "b")
        a(f"v_and_b32 v{vT}, 15, v{vLANE}")
        a(f"v_lshlrev_b32 v{vT}, 1, v{vT}")
        a(f"s_lshl_b32 s{sT0}, s{sST}, 7")
        a(f"s_lshl_b32 s{sT1}, s{sWAVE}, 5")
        a(f"s_add_u32 s{sT0}, s{sT0}, s{sT1}")
        a.vmem(f"buffer_load_ushort v{vB2}, v{vT}, {srd(sB2)}, s{sT0} offen", "b")
        dma_addr(a, S * 2, sST)
        a(f"s_mul_i32 s{sWB}, s{sWAVE}, {448*S*2}")
        tr_addr(sM0B)
        a(f"s_sub_u32 s{sT0}, s{sUP}, s{sM0B}")
        for t in range(4):
            a(f"v_add_u32 v{vTRU+t}, s{sT0}, v{vTR+t}")
        a(f"v_lshlrev_b32 v{vL0}, 4, v{vLANE}")
        a(f"v_add_u32 v{vL1}, 65536, v{vL0}")
        a(f"v_add_u32 v{vL2}, 131072, v{vL0}")

    a.label("L_w1_ready")
    a.vm = []
    stamp(a, opt, 4)
    common_setup()
    a(f"s_mul_i32 s{sT0}, s{sDT1}, 5120")
    a(f"v_add_u32 v{vA}, s{sT0}, v{vL0}")
    a(f"v_add_u32 v{vA2}, 4096, v{vA}")
    a(f"s_lshl_b32 s{sT0}, s{sWAVE}, 6")
    a(f"v_add_u32 v{vX}, s{sT0}, v{vLANE}")
    a(f"v_mul_u32_u24 v{vX}, {opt.hstride}, v{vX}")
    poll(a, opt, vX, 2, None)
    a("s_barrier")
    stamp(a, opt, 5)

    def a_loads(srdn, step, nsteps, s_rot):
        slot = step % NS
        step_off(a, sOFF, sSTEP, s_rot, step, nsteps, 40960)
        return [f"buffer_load_dwordx4 {vr(ring(slot,t),4)}, v{vA if t < 4 else vA2}, {srd(srdn)}, s{sOFF} offen offset:{(t*1024) if t < 4 else 0} sc1" for t in range(5)]

    def main_loop(srdn, nsteps, s_rot, tagp, mfma, stamp0, tail):
        for st in range(opt.depth):
            for ins in a_loads(srdn, st, nsteps, s_rot): a.vmem(ins, f"{tagp}{st}")
        for st in range(nsteps):
            nx = st + opt.depth
            nxt = a_loads(srdn, nx, nsteps, s_rot) if nx < nsteps else None
            a.wait_vm(f"{tagp}{st}")
            if st == 0 and stamp0 is not None: stamp(a, opt, stamp0)
            for o in range(5):
                if nxt: a.vmem(nxt[o], f"{tagp}{nx}")
                for i in range(4): mfma(st, o, i, st % NS)
                if tail: tail(st, o)

    a(f"s_mul_i32 s{sSTEP}, s{sWAVE}, {16*40960}")
    def mfma1(st, nt, mt, slot):
        c = "0" if st == 0 else vr(acc1(mt, nt), 4)
        a(f"v_mfma_f32_16x16x32_bf16 {vr(acc1(mt,nt),4)}, {ar(wfrag(st,mt),4)}, {vr(ring(slot,nt),4)}, {c}")
    def tail1(st, o):
        if st >= 14 and o == 1: w2_dma(a, st - 14)
    main_loop(sH, 16, sROT1, "h", mfma1, 6, tail1)
    stamp(a, opt, 7)

    a(f"s_mov_b32 s100, {f2h(C1)}"); a(f"s_mov_b32 s101, {f2h(C1)}")
    a(f"v_mov_b32 v{vC0}, {f2h(C0)}"); a(f"v_mov_b32 v{vC0+1}, {f2h(C0)}")
    def lds_ref(addr):
        if addr < 65536: return vL0, addr
        if addr < 131072: return vL1, addr - 65536
        return vL2, addr - 131072
    def owner1(p, nt): return p + (0 if nt < 3 else 2)
    units = [(p, nt) for p in range(2) for nt in range(5)]
    def red1_addr(src, u):
        k = [x for x in units if owner1(*x) != src].index(u)
        return src * 32768 + 24576 + k * 2048 if k < 4 else 131072 + src * 8192 + (k - 4) * 2048
    saved_vm = list(a.vm)
    for w in range(4):
        if w < 3:
            a(f"s_cmp_lg_u32 s{sWAVE}, {w}")
            a(f"s_cbranch_scc1 L_ep1_{w+1}")
        a.vm = list(saved_vm)
        a("s_nop 7")
        for u in units:
            if owner1(*u) == w: continue
            p, nt = u
            for hf in range(2):
                vb, off = lds_ref(red1_addr(w, u) + hf * 1024)
                a(f"ds_write_b128 v{vb}, {vr(acc1(2*p+hf, nt),4)} offset:{off}")
        if opt.e1 >= 1: w2_dma(a, 2); w2_dma(a, 3)
        a("s_waitcnt lgkmcnt(0)")
        a("s_barrier")
        own_u = [u for u in units if owner1(*u) == w]
        RT = vRING
        n = 0
        for u in own_u:
            for src in range(4):
                if src == w: continue
                for hf in range(2):
                    vb, off = lds_ref(red1_addr(src, u) + hf * 1024)
                    a(f"ds_read_b128 {vr(RT + n*4, 4)}, v{vb} offset:{off}")
                    n += 1
        a.wait_vm("b")
        for i in range(4):
            a(f"v_lshlrev_b32 v{BI+2*i}, 16, v{vB1+i}")
            a(f"v_and_b32 v{BI+2*i+1}, 0xffff0000, v{vB1+i}")
        for u in own_u:
            p, nt = u
            for hf in range(2):
                r = acc1(2*p+hf, nt)
                a(f"v_pk_add_f32 {vr(r,2)}, {vr(r,2)}, {vr(BI+4*hf,2)}")
                a(f"v_pk_add_f32 {vr(r+2,2)}, {vr(r+2,2)}, {vr(BI+4*hf+2,2)}")
        n = 0
        tot = len(own_u) * 6
        for u in own_u:
            p, nt = u
            for si in range(3):
                for hf in range(2):
                    a(f"s_waitcnt lgkmcnt({min(15, tot - n - 1)})")
                    r = acc1(2*p+hf, nt)
                    a(f"v_pk_add_f32 {vr(r,2)}, {vr(r,2)}, {vr(RT+n*4,2)}")
                    a(f"v_pk_add_f32 {vr(r+2,2)}, {vr(r+2,2)}, {vr(RT+n*4+2,2)}")
                    n += 1
        a("s_barrier")
        regs = []
        for u in own_u:
            p, nt = u
            for hf in range(2):
                r = acc1(2*p+hf, nt)
                regs += [r, r + 2]
        nissued = 4 if opt.e1 >= 1 else 2
        def fill():
            nonlocal nissued
            if opt.e1 >= 2:
                w2_dma(a, nissued); w2_dma(a, nissued + 1); nissued += 2
        gelu_pairs(a, regs, RT, fill=fill)
        a(f"s_lshl_b32 s{sT0}, s{sFT}, 1")
        a(f"s_add_u32 s{sT0}, s{sT0}, {w & 1}")
        a(f"s_mul_i32 s{sT0}, s{sT0}, 40960")
        a(f"s_mul_i32 s{sT1}, s{sDT1}, 5120")
        a(f"s_add_u32 s{sT0}, s{sT0}, s{sT1}")
        for i, u in enumerate(own_u):
            p, nt = u
            o = RT + 64 + 4 * i
            r0, r1 = acc1(2*p, nt), acc1(2*p+1, nt)
            a(f"v_cvt_pk_bf16_f32 v{o}, v{r0}, v{r0+1}")
            a(f"v_cvt_pk_bf16_f32 v{o+1}, v{r0+2}, v{r0+3}")
            a(f"v_cvt_pk_bf16_f32 v{o+2}, v{r1}, v{r1+1}")
            a(f"v_cvt_pk_bf16_f32 v{o+3}, v{r1+2}, v{r1+3}")
            a(f"s_add_u32 s{sT1}, s{sT0}, {nt*1024}")
            a.vmem(f"buffer_store_dwordx4 {vr(o,4)}, v{vL0}, {srd(sG)}, s{sT1} offen sc1", "g")
        stamp(a, opt, 8)
        nb = min(opt.nb, 10 - nissued)
        for st in range(nissued, nissued + nb): w2_dma(a, st)
        nissued += nb
        trd = 0
        a.wait_vm("g")
        a(f"s_lshl_b32 s{sT0}, s{sDT1}, 5")
        a(f"s_add_u32 s{sT0}, s{sT0}, s{sFT}")
        a(f"s_mul_i32 s{sT0}, s{sT0}, {opt.gstride}")
        a(f"s_add_u32 s{sT0}, s{sT0}, {FLAG_G + 4*w}")
        flag_store(a, sT0)
        stamp(a, opt, 9)
        for st in range(nissued, 10): w2_dma(a, st)
        for st in range(4):
            a.wait_vm(f"w2_{st}")
            w2_tr(a, st)
            if st % 2 == 1: a("s_waitcnt lgkmcnt(0)")
        for st in range(10, 14): w2_dma(a, st)
        for st in range(4, 10):
            a.wait_vm(f"w2_{st}")
            w2_tr(a, st)
            if st % 2 == 1: a("s_waitcnt lgkmcnt(0)")
        a("s_branch L_pre2")
        if w < 3: a.label(f"L_ep1_{w+1}")

    a.label("L_nogemm1")
    a.vm = []
    common_setup()
    for st in range(10): w2_dma(a, st)
    for st in range(4):
        a.wait_vm(f"w2_{st}")
        w2_tr(a, st)
        if st % 2 == 1: a("s_waitcnt lgkmcnt(0)")
    for st in range(10, 14): w2_dma(a, st)
    for st in range(4, 10):
        a.wait_vm(f"w2_{st}")
        w2_tr(a, st)
        if st % 2 == 1: a("s_waitcnt lgkmcnt(0)")

    a.label("L_pre2")
    a.wait_vm0()
    a("s_waitcnt lgkmcnt(0)")
    for st in range(10, 14):
        w2_tr(a, st)
        if st % 2 == 1: a("s_waitcnt lgkmcnt(0)")
    stamp(a, opt, 10)
    a(f"s_mul_i32 s{sT0}, s{sDT2}, 5120")
    a(f"v_add_u32 v{vA}, s{sT0}, v{vL0}")
    a(f"v_add_u32 v{vA2}, 4096, v{vA}")
    a(f"s_lshl_b32 s{sT0}, s{sDT2}, 5")
    a(f"s_mul_i32 s{sT1}, s{sWAVE}, 7")
    a(f"s_add_u32 s{sT0}, s{sT0}, s{sT1}")
    a(f"s_mul_i32 s{sT0}, s{sT0}, {opt.gstride}")
    a(f"s_add_u32 s{sT0}, s{sT0}, {FLAG_G}")
    a(f"v_lshrrev_b32 v{vX}, 2, v{vLANE}")
    a(f"v_mul_u32_u24 v{vX}, {opt.gstride}, v{vX}")
    a(f"v_and_b32 v{vT}, 3, v{vLANE}")
    a(f"v_lshlrev_b32 v{vT}, 2, v{vT}")
    a(f"v_add_u32 v{vX}, v{vX}, v{vT}")
    a(f"v_add_u32 v{vX}, s{sT0}, v{vX}")
    a(f"s_cmp_eq_u32 s{sWAVE}, 3")
    a(f"s_mov_b32 s{sP+3}, 0xffffff")
    a(f"s_cselect_b32 s{sP+2}, s{sP+3}, 0xfffffff")
    a(f"s_mov_b32 s{sP+3}, 0")
    poll(a, opt, vX, 1, sP + 2)
    stamp(a, opt, 11)
    a(f"s_mul_i32 s{sSTEP}, s{sWAVE}, {14*40960}")
    def mfma2(st, mt, nt, slot):
        c = "0" if st == 0 else vr(acc2(mt, nt), 4)
        a(f"v_mfma_f32_16x16x32_bf16 {vr(acc2(mt,nt),4)}, {vr(ring(slot,mt),4)}, {ar(wfrag(st,nt),4)}, {c}")
    main_loop(sG, 14, sROT2, "g", mfma2, 12, None)
    stamp(a, opt, 13)
    a(f"v_and_b32 v{vT}, 15, v{vLANE}")
    a(f"s_lshl_b32 s{sT0}, s{sWAVE}, 4")
    a(f"v_add_u32 v{vT}, s{sT0}, v{vT}")
    a(f"v_mul_u32_u24 v{vA}, 1280, v{vT}")
    a(f"v_lshrrev_b32 v{vT}, 4, v{vLANE}")
    a(f"v_lshlrev_b32 v{vT}, 3, v{vT}")
    a(f"v_add_u32 v{vA}, v{vA}, v{vT}")
    a(f"s_mul_i32 s{sT0}, s{sST}, {64*1280}")
    a(f"s_mul_i32 s{sT1}, s{sDT2}, 160")
    a(f"s_add_u32 s{sOFF}, s{sT0}, s{sT1}")
    a(f"v_lshlrev_b32 v{vB2}, 16, v{vB2}")
    def red2_addr(src, nt, mt):
        k = [x for x in range(4) if x != src].index(nt)
        return src * 32768 + (k * 5 + mt) * 1024
    for w in range(4):
        if w < 3:
            a(f"s_cmp_lg_u32 s{sWAVE}, {w}")
            a(f"s_cbranch_scc1 L_ep2_{w+1}")
        a("s_nop 7")
        for nt in range(4):
            if nt == w: continue
            for mt in range(5):
                vb, off = lds_ref(red2_addr(w, nt, mt))
                a(f"ds_write_b128 v{vb}, {vr(acc2(mt,nt),4)} offset:{off}")
        a("s_waitcnt lgkmcnt(0)")
        a("s_barrier")
        RT = vRING
        n = 0
        for mt in range(5):
            for src in range(4):
                if src == w: continue
                vb, off = lds_ref(red2_addr(src, w, mt))
                a(f"ds_read_b128 {vr(RT+n*4,4)}, v{vb} offset:{off}")
                n += 1
        n = 0
        for mt in range(5):
            r = acc2(mt, w)
            for si in range(3):
                a(f"s_waitcnt lgkmcnt({14 - n})")
                a(f"v_pk_add_f32 {vr(r,2)}, {vr(r,2)}, {vr(RT+n*4,2)}")
                a(f"v_pk_add_f32 {vr(r+2,2)}, {vr(r+2,2)}, {vr(RT+n*4+2,2)}")
                n += 1
            for k in range(4):
                a(f"v_add_f32 v{r+k}, v{r+k}, v{vB2}")
            o = RT + 64 + 2 * mt
            a(f"v_cvt_pk_bf16_f32 v{o}, v{r}, v{r+1}")
            a(f"v_cvt_pk_bf16_f32 v{o+1}, v{r+2}, v{r+3}")
            a(f"buffer_store_dwordx2 {vr(o,2)}, v{vA}, {srd(sO)}, s{sOFF} offen offset:{mt*32} {opt.obits}")
        a("s_branch L_fin")
        if w < 3: a.label(f"L_ep2_{w+1}")
    a.label("L_fin")
    if opt.pad:
        a.label("L_pad")
        a(f"s_memrealtime s[{sP}:{sP+1}]")
        a("s_waitcnt lgkmcnt(0)")
        a(f"s_sub_u32 s{sT0}, s{sP}, s96")
        a(f"s_cmp_lt_u32 s{sT0}, {opt.pad}")
        a("s_cbranch_scc1 L_pad")
    if opt.prof:
        a("s_waitcnt vmcnt(0)")
        stamp(a, opt, 14)
        make_srd(a, sX, 18, 65536, WS_PROF)
        a(f"s_lshl_b32 s{sT0}, s{sWG}, 2")
        a(f"s_add_u32 s{sT0}, s{sT0}, s{sWAVE}")
        a(f"s_lshl_b32 s{sT0}, s{sT0}, 6")
        a(f"v_mov_b32 v{vT}, s{sT0}")
        a("s_mov_b64 exec, 1")
        for i in range(15):
            a(f"v_mov_b32 v100, s{sPROF+i}")
            a(f"buffer_store_dword v100, v{vT}, {srd(sX)}, 0 offen offset:{4*i}")
            a("s_nop 1")
        a("s_waitcnt vmcnt(0)")
    a.label("L_done")
    a("s_endpgm")
    a.raw('.section .rodata,"a"')
    a.raw(".p2align 6")
    a.raw(f".amdhsa_kernel {KN}")
    for l in ["next_free_vgpr 512", "next_free_sgpr 102", "accum_offset 256", "group_segment_fixed_size 0",
              "kernarg_size 64", "user_sgpr_count 2", "user_sgpr_kernarg_segment_ptr 1",
              "system_sgpr_workgroup_id_x 1", "float_denorm_mode_32 3"]:
        a.raw(f"  .amdhsa_{l}")
    a.raw(".end_amdhsa_kernel")
    return "\n".join(a.L) + "\n"

def parse(argv=None):
    ap = argparse.ArgumentParser()
    ap.add_argument("-o", default="standalone__mixer_token_mlp__prompt.s")
    ap.add_argument("--prof", type=int, default=0)
    ap.add_argument("--rot", type=int, default=1)
    ap.add_argument("--spin", type=int, default=20000)
    ap.add_argument("--sleep", type=int, default=8)
    ap.add_argument("--depth", type=int, default=3)
    ap.add_argument("--lnprof", type=int, default=0)
    ap.add_argument("--hbits", default="sc1")
    ap.add_argument("--pfwait", type=int, default=1)
    ap.add_argument("--hold", type=int, default=0)
    ap.add_argument("--e1", type=int, default=1)
    ap.add_argument("--nb", type=int, default=4)
    ap.add_argument("--nearly", type=int, default=2)
    ap.add_argument("--dpl", type=int, default=5)
    ap.add_argument("--dp", type=int, default=3)
    ap.add_argument("--p1", type=int, default=1)
    ap.add_argument("--p2", type=int, default=1)
    ap.add_argument("--rota1", type=int, default=0)
    ap.add_argument("--rota2", type=int, default=0)
    ap.add_argument("--xbits", default="nt")
    ap.add_argument("--w1bits", default="nt")
    ap.add_argument("--w2bits", default="")
    ap.add_argument("--pfbits", default="")
    ap.add_argument("--pfdepth", type=int, default=16)
    ap.add_argument("--prio", type=int, default=3)
    ap.add_argument("--delay", type=int, default=0)
    ap.add_argument("--hstride", type=int, default=8)
    ap.add_argument("--gstride", type=int, default=256)
    ap.add_argument("--pf", type=int, default=1)
    ap.add_argument("--pad", type=int, default=0)
    ap.add_argument("--obits", default="sc1")
    return ap.parse_args(argv)

if __name__ == "__main__":
    opt = parse()
    open(opt.o, "w").write(gen(opt))
```

```python
import argparse, struct

S, D, F = 2048, 640, 1728
KN = "standalone__mixer_token_mlp__prompt_kernel"

WS_H = 0
H_BYTES = 64 * 40 * 1024
WS_G = 0x300000
G_BYTES = 54 * 40 * 1024
WS_FLAG = 0x600000
FLAG_H = 0
FLAG_G = 0x10000
FLAG_BYTES = 0x40000
WS_PROF = 0x700000

LDS_BYTES = 163840
LN_BASE = 131072
LN_ROW = 1344
LF_BASE = 141824
P0_BASE = [0, 49152, 98304, 122880]

sWG = 2
sX, sW1, sW2, sH, sG, sO, sF, sB1, sB2, sD = 20, 24, 28, 32, 36, 40, 44, 48, 52, 56
sWAVE, sXCD, sJ, sFT, sDT1, sST, sDT2, sNONCE = 60, 61, 62, 63, 64, 65, 66, 67
sT0, sT1, sT2, sT3, sT4, sT5 = 68, 69, 70, 71, 72, 73
sROT1, sROT2, sSTEP, sOFF = 74, 75, 76, 77
sM0B, sSPIN = 78, 79
sP = 80
sPROF = 84
sUP = 99
sJLIM, sIDLE = 100, 101
sWB = 3

vTID, vLANE = 0, 1
vTR = 2
vA, vA2, vDMA, vT2 = 6, 7, 8, 9
vB1 = 10
vB2, vT = 14, 15
vACC = 16
vRING = 96
vTRU = 176
vL0, vL1, vL2 = 180, 181, 182
vC0 = 184
BI = 186
vPOLL = 194
vX = 196
vDM = 200

def srd(n): return f"s[{n}:{n+3}]"
def vr(n, c=1): return f"v{n}" if c == 1 else f"v[{n}:{n+c-1}]"
def ar(n, c=1): return f"a{n}" if c == 1 else f"a[{n}:{n+c-1}]"
def f2h(x): return "0x%08x" % struct.unpack("<I", struct.pack("<f", x))[0]
C0 = -2.0 * 0.7978845608028654 * 1.4426950408889634
C1 = C0 * 0.044715

class Asm:
    def __init__(self):
        self.L = []; self.vm = []; self.uid = 0
    def __call__(self, s): self.L.append("    " + s)
    def label(self, s): self.L.append(s + ":")
    def raw(self, s): self.L.append(s)
    def c(self, s): self.L.append("    ; " + s)
    def vmem(self, s, tag):
        self(s); self.vm.append(tag)
    def wait_vm(self, tag):
        hits = [i for i, t in enumerate(self.vm) if t == tag]
        if not hits: return
        n = len(self.vm) - 1 - hits[-1]
        self(f"s_waitcnt vmcnt({min(n, 63)})")
        self.vm = self.vm[hits[-1] + 1:]
    def wait_vm0(self):
        self("s_waitcnt vmcnt(0)"); self.vm = []
    def newlabel(self, p):
        self.uid += 1
        return f"L_{p}_{self.uid}"

def acc1(mt, nt): return vACC + (mt * 5 + nt) * 4
def acc2(mt, nt): return vACC + (mt * 4 + nt) * 4
def wfrag(step, t): return step * 16 + t * 4

def stamp(a, opt, idx, force=False):
    if opt.lnprof and idx in (4, 5) and getattr(a, "ln_done", False): return
    if opt.prof:
        a(f"s_mem{'time' if opt.prof == 2 else 'realtime'} s[{sP}:{sP+1}]")
        a("s_waitcnt lgkmcnt(0)")
        a(f"s_mov_b32 s{sPROF+idx}, s{sP}")

def make_srd(a, n, lo, size, add=0):
    if add:
        a(f"s_add_u32 s{n}, s{lo}, {add}")
        a(f"s_addc_u32 s{n+1}, s{lo+1}, 0")
        a(f"s_and_b32 s{n+1}, s{n+1}, 0xffff")
    else:
        a(f"s_mov_b32 s{n}, s{lo}")
        a(f"s_and_b32 s{n+1}, s{lo+1}, 0xffff")
    a(f"s_mov_b32 s{n+2}, {size}")
    a(f"s_mov_b32 s{n+3}, 0x20000")

def nonce_spin(a, opt):
    lp = a.newlabel("nonce"); dn = a.newlabel("nonced")
    a(f"s_cmp_lg_u32 s{sNONCE}, 0")
    a(f"s_cbranch_scc1 {dn}")
    a(f"s_mov_b32 s{sSPIN}, 0")
    a(f"v_mov_b32 v{vT}, 0")
    a.label(lp)
    a(f"buffer_load_dword v{vT2}, v{vT}, {srd(sD)}, 0 offen sc1")
    a("s_waitcnt vmcnt(0)")
    a(f"v_readfirstlane_b32 s{sNONCE}, v{vT2}")
    a(f"s_add_u32 s{sSPIN}, s{sSPIN}, 1")
    a(f"s_cmp_lg_u32 s{sNONCE}, 0")
    a(f"s_cbranch_scc1 {dn}")
    a(f"s_cmp_lt_u32 s{sSPIN}, {opt.spin}")
    a(f"s_cbranch_scc1 {lp}")
    a.label(dn)

def lds_set(a, addr_sgpr_or_imm):
    a(f"v_mov_b32 v{vT}, {addr_sgpr_or_imm}")
    a(f"v_mov_b32 v{vT2}, 1")
    a(f"s_mov_b64 s[{sP}:{sP+1}], exec")
    a("s_mov_b64 exec, 1")
    a(f"ds_write_b32 v{vT}, v{vT2}")
    a(f"s_mov_b64 exec, s[{sP}:{sP+1}]")

def lds_spin(a, opt, addr):
    lp = a.newlabel("lspin"); dn = a.newlabel("lspun")
    a(f"v_mov_b32 v{vT}, {addr}")
    a(f"s_mov_b32 s{sSPIN}, 0")
    a.label(lp)
    a(f"ds_read_b32 v{vT2}, v{vT}")
    a("s_waitcnt lgkmcnt(0)")
    a(f"v_readfirstlane_b32 s{sP}, v{vT2}")
    a(f"s_add_u32 s{sSPIN}, s{sSPIN}, 1")
    a(f"s_cmp_lg_u32 s{sP}, 0")
    a(f"s_cbranch_scc1 {dn}")
    a(f"s_cmp_lt_u32 s{sSPIN}, {opt.spin * 8}")
    a(f"s_cbranch_scc1 {lp}")
    a.label(dn)

def dma_addr(a, stride, s_tile):
    a(f"v_lshrrev_b32 v{vT}, 3, v{vLANE}")
    a(f"v_lshrrev_b32 v{vT2}, 1, v{vT}")
    a(f"v_lshlrev_b32 v{vT2}, 1, v{vT2}")
    a(f"v_and_b32 v{vDM}, 7, v{vLANE}")
    a(f"v_xor_b32 v{vDM}, v{vDM}, v{vT2}")
    a(f"v_lshlrev_b32 v{vDM}, 4, v{vDM}")
    a(f"v_mul_u32_u24 v{vT}, {stride}, v{vT}")
    a(f"v_add_u32 v{vDM}, v{vDM}, v{vT}")
    a(f"s_lshl_b32 s{sT0}, s{s_tile}, 7")
    a(f"v_add_u32 v{vDM}, s{sT0}, v{vDM}")
    for b in range(1, 4):
        a(f"v_add_u32 v{vDM+b}, {b*(8*stride-1024)}, v{vDM}")

def step_off(a, dst, s_base, s_rot, i, nsteps, bytes_per_step):
    a(f"s_add_u32 s{sT4}, s{s_rot}, {i}")
    a(f"s_cmp_ge_u32 s{sT4}, {nsteps}")
    a(f"s_cselect_b32 s{dst}, {nsteps}, 0")
    a(f"s_sub_u32 s{sT4}, s{sT4}, s{dst}")
    a(f"s_mul_i32 s{sT4}, s{sT4}, {bytes_per_step}")
    a(f"s_add_u32 s{dst}, s{sT4}, s{s_base}")

def dma_step(a, srdn, stride, s_rowbase, s_rot, step, nsteps, s_lds, lds_off, tag, bits=""):
    a(f"s_add_u32 m0, s{s_lds}, {lds_off}")
    step_off(a, sOFF, s_rowbase, s_rot, step, nsteps, 32 * stride)
    for blk in range(4):
        a.vmem(f"buffer_load_dwordx4 v{vDM+blk}, {srd(srdn)}, s{sOFF} offen offset:{blk*1024} {bits} lds", tag)

def tr_step(a, vbase, off, step):
    for t in range(4):
        w = wfrag(step, t)
        a(f"ds_read_b64_tr_b16 {ar(w,2)}, v{vbase+t} offset:{off}")
        a(f"ds_read_b64_tr_b16 {ar(w+2,2)}, v{vbase+t} offset:{off+2048}")

def poll(a, opt, vaddr, nd, lanes):
    lp = a.newlabel("poll"); dn = a.newlabel("polled")
    a(f"s_mov_b32 s{sSPIN}, 0")
    a.label(lp)
    ld = {1: "dword", 2: "dwordx2"}[nd]
    a(f"buffer_load_{ld} {vr(vPOLL, nd)}, v{vaddr}, {srd(sF)}, 0 offen sc1")
    a("s_waitcnt vmcnt(0)")
    a(f"v_cmp_ne_u32 vcc, s{sNONCE}, v{vPOLL}")
    if nd == 2:
        a(f"v_cmp_ne_u32 s[{sP}:{sP+1}], s{sNONCE}, v{vPOLL+1}")
        a(f"s_or_b64 vcc, vcc, s[{sP}:{sP+1}]")
    if lanes is not None:
        a(f"s_and_b64 vcc, vcc, s[{lanes}:{lanes+1}]")
    a(f"s_add_u32 s{sSPIN}, s{sSPIN}, 1")
    a("s_cmp_eq_u64 vcc, 0")
    a(f"s_cbranch_scc1 {dn}")
    if opt.sleep: a(f"s_sleep {opt.sleep}")
    a(f"s_cmp_lt_u32 s{sSPIN}, {opt.spin}")
    a(f"s_cbranch_scc1 {lp}")
    a.label(dn)
    a.vm = []

def flag_store(a, s_index_bytes):
    a(f"v_mov_b32 v{vT}, s{s_index_bytes}")
    a(f"v_mov_b32 v{vT2}, s{sNONCE}")
    a(f"s_mov_b64 s[{sP}:{sP+1}], exec")
    a("s_mov_b64 exec, 1")
    a.vmem(f"buffer_store_dword v{vT2}, v{vT}, {srd(sF)}, 0 offen sc1", "flag")
    a(f"s_mov_b64 exec, s[{sP}:{sP+1}]")

def gelu_pairs(a, regs, tmp, fill=None):
    def each(fn):
        for i, r in enumerate(regs): fn(r, tmp + 2 * i)
    each(lambda r, t: a(f"v_pk_mul_f32 {vr(t,2)}, {vr(r,2)}, {vr(r,2)}"))
    each(lambda r, t: a(f"v_pk_fma_f32 {vr(t,2)}, {vr(t,2)}, s[100:101], {vr(vC0,2)}"))
    each(lambda r, t: a(f"v_pk_mul_f32 {vr(t,2)}, {vr(t,2)}, {vr(r,2)}"))
    if fill: fill()
    each(lambda r, t: (a(f"v_exp_f32 v{t}, v{t}"), a(f"v_exp_f32 v{t+1}, v{t+1}")))
    each(lambda r, t: a(f"v_pk_add_f32 {vr(t,2)}, {vr(t,2)}, 1.0 op_sel_hi:[1,0]"))
    each(lambda r, t: (a(f"v_rcp_f32 v{t}, v{t}"), a(f"v_rcp_f32 v{t+1}, v{t+1}")))
    a("s_nop 0")
    each(lambda r, t: a(f"v_pk_mul_f32 {vr(r,2)}, {vr(r,2)}, {vr(t,2)}"))

def w2_slot(step):
    if step < 8: return sM0B, step * 4096, vTR, step * 4096
    if step < 10: return sUP, (step - 8) * 4096, vTRU, (step - 8) * 4096
    return sM0B, (step - 10) * 4096, vTR, (step - 10) * 4096

def w2_dma(a, step):
    sb, off, _, _ = w2_slot(step)
    dma_step(a, sW2, S * 2, sWB, sROT2, step, 14, sb, off, f"w2_{step}", OPT.w2bits)

def w2_dma_parts(a, step):
    sb, off, _, _ = w2_slot(step)
    def setup():
        a(f"s_add_u32 m0, s{sb}, {off}")
        step_off(a, sOFF, sWB, sROT2, step, 14, 32 * S * 2)
    def one(blk):
        return lambda: a.vmem(f"buffer_load_dwordx4 v{vDM+blk}, {srd(sW2)}, s{sOFF} offen offset:{blk*1024} {OPT.w2bits} lds", f"w2_{step}")
    return [setup] + [one(b) for b in range(4)]

def w2_tr(a, step):
    _, _, vb, off = w2_slot(step)
    tr_step(a, vb, off, step)

def gen(opt):
    global OPT
    OPT = opt
    a = Asm()
    NS = opt.depth + 1
    def ring(slot, t): return vRING + slot * 20 + t * 4
    a.raw(f"; @launch grid=(256,1,1) block=(256,1,1) lds={LDS_BYTES}")
    a.raw('.amdgcn_target "amdgcn-amd-amdhsa--gfx950"')
    a.raw(".text")
    a.raw(f".globl {KN}")
    a.raw(".p2align 8")
    a.raw(f".type {KN},@function")
    a.label(KN)
    a(f"s_cmp_ge_u32 s{sWG}, 256")
    a("s_cbranch_scc1 L_done")
    a("s_load_dwordx16 s[4:19], s[0:1], 0")
    if opt.prof:
        a(f"s_mem{'time' if opt.prof == 2 else 'realtime'} s[{sP}:{sP+1}]")
    if opt.prof:
        for i in range(1, 15): a(f"s_mov_b32 s{sPROF+i}, 0")
    if opt.pad:
        a("s_memrealtime s[96:97]")
    a(f"v_lshrrev_b32 v{vT}, 6, v{vTID}")
    a(f"v_and_b32 v{vLANE}, 63, v{vTID}")
    a(f"v_readfirstlane_b32 s{sWAVE}, v{vT}")
    a(f"s_and_b32 s{sXCD}, s{sWG}, 7")
    a(f"s_lshr_b32 s{sJ}, s{sWG}, 3")
    if opt.p1 == 2:
        a(f"s_lshr_b32 s{sT1}, s{sXCD}, 1")
        a(f"s_and_b32 s{sT2}, s{sXCD}, 1")
        a(f"s_lshl_b32 s{sT2}, s{sT2}, 2")
        a(f"s_mul_i32 s{sT0}, s{sT1}, 7")
        a(f"s_lshr_b32 s{sFT}, s{sJ}, 2")
        a(f"s_add_u32 s{sFT}, s{sFT}, s{sT0}")
        a(f"s_and_b32 s{sT3}, s{sJ}, 3")
        a(f"s_add_u32 s{sDT1}, s{sT2}, s{sT3}")
        a(f"s_lshl_b32 s{sROT1}, s{sT3}, 2")
        a(f"s_cmp_eq_u32 s{sT1}, 3")
        a(f"s_cselect_b32 s{sJLIM}, 24, 28")
        a(f"s_lshl_b32 s{sT0}, s{sXCD}, 2")
        a(f"s_sub_u32 s{sT0}, s{sT0}, 28")
        a(f"s_lshl_b32 s{sT3}, s{sXCD}, 3")
        a(f"s_sub_u32 s{sT3}, s{sT3}, 48")
        a(f"s_cselect_b32 s{sIDLE}, s{sT0}, s{sT0}")
        a(f"s_cmp_ge_u32 s{sXCD}, 6")
        a(f"s_cselect_b32 s{sIDLE}, s{sT3}, s{sT0}")
        a(f"s_add_u32 s{sIDLE}, s{sIDLE}, s{sJ}")
    else:
        a(f"s_lshl_b32 s{sT0}, s{sXCD}, 2")
        a(f"s_mul_i32 s{sT1}, s{sXCD}, 3")
        a(f"s_add_u32 s{sT1}, s{sT1}, 3")
        a(f"s_cmp_lt_u32 s{sXCD}, 3")
        a(f"s_cselect_b32 s{sT0}, s{sT0}, s{sT1}")
        a(f"s_cselect_b32 s{sJLIM}, 32, 24")
        a(f"s_lshr_b32 s{sFT}, s{sJ}, 3")
        a(f"s_add_u32 s{sFT}, s{sFT}, s{sT0}")
        a(f"s_and_b32 s{sDT1}, s{sJ}, 7")
        a(f"s_lshl_b32 s{sROT1}, s{sDT1}, 1")
        a(f"s_lshl_b32 s{sIDLE}, s{sXCD}, 3")
        a(f"s_add_u32 s{sIDLE}, s{sIDLE}, s{sJ}")
        a(f"s_sub_u32 s{sIDLE}, s{sIDLE}, 48")
    if opt.rota1:
        a(f"s_mul_i32 s{sT0}, s{sFT}, {opt.rota1}")
        a(f"s_add_u32 s{sROT1}, s{sROT1}, s{sT0}")
        a(f"s_and_b32 s{sROT1}, s{sROT1}, 15")
    if opt.p2 == 2:
        a(f"s_lshr_b32 s{sT1}, s{sXCD}, 1")
        a(f"s_and_b32 s{sT2}, s{sXCD}, 1")
        a(f"s_lshl_b32 s{sT2}, s{sT2}, 2")
        a(f"s_lshr_b32 s{sT0}, s{sJ}, 2")
        a(f"s_lshl_b32 s{sST}, s{sT1}, 3")
        a(f"s_add_u32 s{sST}, s{sST}, s{sT0}")
        a(f"s_and_b32 s{sT3}, s{sJ}, 3")
        a(f"s_add_u32 s{sDT2}, s{sT2}, s{sT3}")
        a(f"s_mul_i32 s{sROT2}, s{sT3}, 7")
        a(f"s_lshr_b32 s{sROT2}, s{sROT2}, 1")
    else:
        a(f"s_lshr_b32 s{sT0}, s{sJ}, 3")
        a(f"s_lshl_b32 s{sST}, s{sXCD}, 2")
        a(f"s_add_u32 s{sST}, s{sST}, s{sT0}")
        a(f"s_and_b32 s{sDT2}, s{sJ}, 7")
        a(f"s_mul_i32 s{sROT2}, s{sDT2}, 7")
        a(f"s_lshr_b32 s{sROT2}, s{sROT2}, 2")
    if opt.rota2:
        a(f"s_mul_i32 s{sT0}, s{sST}, {opt.rota2}")
        a(f"s_add_u32 s{sROT2}, s{sROT2}, s{sT0}")
        a(f"s_and_b32 s{sT0}, s{sROT2}, 0xff")
        a(f"s_mul_i32 s{sT0}, s{sROT2}, 18725")
        a(f"s_lshr_b32 s{sT0}, s{sT0}, 18")
        a(f"s_mul_i32 s{sT0}, s{sT0}, 14")
        a(f"s_sub_u32 s{sROT2}, s{sROT2}, s{sT0}")
    if not (opt.rot & 1): a(f"s_mov_b32 s{sROT1}, 0")
    if not (opt.rot & 2): a(f"s_mov_b32 s{sROT2}, 0")
    a(f"s_lshl_b32 s{sM0B}, s{sWAVE}, 15")
    a(f"s_lshl_b32 s{sUP}, s{sWAVE}, 13")
    a(f"s_add_u32 s{sUP}, s{sUP}, 131072")
    def tr_addr(base_sgpr):
        t0, t1, t2 = vX, vX + 1, vX + 2
        a(f"v_lshrrev_b32 v{t0}, 4, v{vLANE}")
        a(f"v_and_b32 v{t1}, 1, v{t0}")
        a(f"v_lshlrev_b32 v{t1}, 2, v{t1}")
        a(f"v_bfe_u32 v{t2}, v{vLANE}, 2, 2")
        a(f"v_add_u32 v{t1}, v{t1}, v{t2}")
        a(f"v_lshrrev_b32 v{t0}, 1, v{t0}")
        a(f"v_lshlrev_b32 v{t0}, 10, v{t0}")
        a(f"v_lshlrev_b32 v{t2}, 7, v{t1}")
        a(f"v_add_u32 v{t0}, v{t0}, v{t2}")
        a(f"v_and_b32 v{t2}, 3, v{vLANE}")
        a(f"v_lshlrev_b32 v{t2}, 3, v{t2}")
        a(f"v_add_u32 v{t0}, v{t0}, v{t2}")
        a(f"v_add_u32 v{t0}, s{base_sgpr}, v{t0}")
        a(f"v_lshrrev_b32 v{t1}, 1, v{t1}")
        for t in range(4):
            a(f"v_xor_b32 v{t2}, {t}, v{t1}")
            a(f"v_lshlrev_b32 v{t2}, 5, v{t2}")
            a(f"v_add_u32 v{vTR+t}, v{t0}, v{t2}")
    def w1_dma(i): dma_step(a, sW1, F * 2, sWB, sROT1, i, 16, sM0B, (i % 8) * 4096, f"w1_{i}", opt.w1bits)
    def w1_stream(first, dp):
        retired = 0
        def retire():
            nonlocal retired
            a.wait_vm(f"w1_{retired}")
            if retired: a("s_waitcnt lgkmcnt(0)")
            tr_step(a, vTR, (retired % 8) * 4096, retired)
            retired += 1
        for i in range(first, 16):
            while retired <= i - dp: retire()
            if i >= 8:
                while retired <= i - 8: retire()
                if retired == i - 7: a("s_waitcnt lgkmcnt(0)")
            w1_dma(i)
        while retired < 16: retire()
        a("s_waitcnt lgkmcnt(0)")
    dma_addr(a, F * 2, sFT)
    a(f"s_mul_i32 s{sWB}, s{sWAVE}, {512*F*2}")
    a(f"s_cmp_ge_u32 s{sWAVE}, 2")
    a("s_cbranch_scc1 L_loader")

    a.c("LayerNorm: wave w normalises rows 32*ks + 16*w + 4*q + (0..3), 16 lanes per row")
    XR, XF, TM = 96, 120, 160
    if opt.prio: a(f"s_setprio {opt.prio}")
    a(f"s_lshr_b32 s{sT0}, s{sWG}, 2")
    a(f"s_and_b32 s{sT1}, s{sWG}, 3")
    a(f"s_lshl_b32 s{sT2}, s{sT0}, 5")
    a(f"s_lshl_b32 s{sT3}, s{sWAVE}, 4")
    a(f"s_add_u32 s{sT2}, s{sT2}, s{sT3}")
    a(f"s_lshl_b32 s{sT3}, s{sT1}, 2")
    a(f"s_add_u32 s{sT2}, s{sT2}, s{sT3}")
    a(f"s_mul_i32 s{sT2}, s{sT2}, 1280")
    a(f"v_lshrrev_b32 v{TM}, 4, v{vLANE}")
    a(f"v_and_b32 v{TM+1}, 15, v{vLANE}")
    a(f"v_mul_u32_u24 v{TM+2}, 1280, v{TM}")
    a(f"v_lshlrev_b32 v{TM+3}, 4, v{TM+1}")
    a(f"v_add_u32 v{TM+2}, v{TM+2}, v{TM+3}")
    a(f"v_mov_b32 v{vT}, 0")
    a("s_waitcnt lgkmcnt(0)")
    if opt.prof: a(f"s_mov_b32 s{sPROF}, s{sP}")
    make_srd(a, sX, 4, S * D * 2)
    for i in range(5):
        a.vmem(f"buffer_load_dwordx4 {vr(XR+4*i,4)}, v{TM+2}, {srd(sX)}, s{sT2} offen offset:{i*256} {opt.xbits}", "x")
    make_srd(a, sD, 16, 256)
    a.vmem(f"buffer_load_dword v{vPOLL}, v{vT}, {srd(sD)}, 0 offen sc1", "nonce")
    make_srd(a, sW1, 6, S * F * 2)
    a(f"s_cmp_ge_u32 s{sJ}, s{sJLIM}")
    a("s_cbranch_scc1 L_ln_now1")
    for i in range(opt.nearly): w1_dma(i)
    a.label("L_ln_now1")
    a("s_barrier")
    make_srd(a, sH, 18, H_BYTES, WS_H)
    make_srd(a, sF, 18, FLAG_BYTES, WS_FLAG)
    a(f"s_mul_i32 s{sSTEP}, s{sT0}, 40960")
    a(f"s_lshl_b32 s{sT1}, s{sT1}, 8")
    a(f"s_add_u32 s{sSTEP}, s{sSTEP}, s{sT1}")
    a(f"s_lshl_b32 s{sT3}, s{sWAVE}, 2")
    a(f"v_add_u32 v{TM+4}, s{sT3}, v{TM}")
    a(f"v_mul_u32_u24 v{TM+4}, {LN_ROW}, v{TM+4}")
    a(f"v_add_u32 v{TM+4}, v{TM+4}, v{TM+3}")
    a(f"v_add_u32 v{TM+4}, {LN_BASE}, v{TM+4}")
    a(f"v_bfe_u32 v{TM+5}, v{vLANE}, 2, 2")
    a(f"v_mul_u32_u24 v{TM+5}, {LN_ROW}, v{TM+5}")
    a(f"s_mul_i32 s{sT3}, s{sWAVE}, 20")
    a(f"v_add_u32 v{TM+6}, s{sT3}, v{TM}")
    a(f"v_lshlrev_b32 v{TM+7}, 5, v{TM+6}")
    a(f"v_add_u32 v{TM+5}, v{TM+5}, v{TM+7}")
    a(f"v_and_b32 v{TM+7}, 3, v{vLANE}")
    a(f"v_lshlrev_b32 v{TM+7}, 3, v{TM+7}")
    a(f"v_add_u32 v{TM+5}, v{TM+5}, v{TM+7}")
    a(f"v_add_u32 v{TM+5}, {LN_BASE}, v{TM+5}")
    a(f"v_lshlrev_b32 v{TM+6}, 10, v{TM+6}")
    a(f"v_add_u32 v{TM+6}, v{TM+6}, v{TM+3}")
    a(f"s_mov_b32 s{sT0}, 0xffff0000")
    a(f"s_cmp_ge_u32 s{sJ}, s{sJLIM}")
    a("s_cbranch_scc1 L_ln_idle")
    a(f"s_waitcnt vmcnt({1 + 4*opt.nearly})")
    a("s_branch L_ln_go")
    a.label("L_ln_idle")
    a("s_waitcnt vmcnt(1)")
    a.label("L_ln_go")
    a.vm = [t for t in a.vm if t != "x"]
    stamp(a, opt, 1)
    for i in range(20):
        a(f"v_lshlrev_b32 v{XF+2*i}, 16, v{XR+i}")
        a(f"v_and_b32 v{XF+2*i+1}, s{sT0}, v{XR+i}")
    SM = TM + 8
    for k in range(4):
        a(f"v_pk_add_f32 {vr(SM+2*k,2)}, {vr(XF+2*k,2)}, {vr(XF+8+2*k,2)}")
    for i in range(8, 20):
        k = i % 4
        a(f"v_pk_add_f32 {vr(SM+2*k,2)}, {vr(SM+2*k,2)}, {vr(XF+2*i,2)}")
    def reduce_row(dst):
        a(f"v_pk_add_f32 {vr(SM,2)}, {vr(SM,2)}, {vr(SM+2,2)}")
        a(f"v_pk_add_f32 {vr(SM+4,2)}, {vr(SM+4,2)}, {vr(SM+6,2)}")
        a(f"v_pk_add_f32 {vr(SM,2)}, {vr(SM,2)}, {vr(SM+4,2)}")
        a(f"v_add_f32 v{dst}, v{SM}, v{SM+1}")
        for rot in (8, 4, 2, 1):
            a("s_nop 1")
            a(f"v_add_f32_dpp v{dst}, v{dst}, v{dst} row_ror:{rot} row_mask:0xf bank_mask:0xf")
    MN = TM + 16
    reduce_row(MN)
    a(f"v_mul_f32 v{MN}, {f2h(1.0/640.0)}, v{MN}")
    a(f"v_mov_b32 v{MN+1}, v{MN}")
    for i in range(20):
        a(f"v_pk_add_f32 {vr(XF+2*i,2)}, {vr(XF+2*i,2)}, {vr(MN,2)} neg_lo:[0,1] neg_hi:[0,1]")
    for k in range(4):
        a(f"v_pk_mul_f32 {vr(SM+2*k,2)}, {vr(XF+2*k,2)}, {vr(XF+2*k,2)}")
    for i in range(4, 20):
        k = i % 4
        a(f"v_pk_fma_f32 {vr(SM+2*k,2)}, {vr(XF+2*i,2)}, {vr(XF+2*i,2)}, {vr(SM+2*k,2)}")
    reduce_row(MN)
    a(f"v_mov_b32 v{MN+1}, {f2h(1e-5)}")
    a(f"v_fmac_f32 v{MN+1}, {f2h(1.0/640.0)}, v{MN}")
    a(f"v_rsq_f32 v{MN}, v{MN+1}")
    a("s_nop 0")
    a(f"v_mov_b32 v{MN+1}, v{MN}")
    for i in range(20):
        a(f"v_pk_mul_f32 {vr(XF+2*i,2)}, {vr(XF+2*i,2)}, {vr(MN,2)}")
    for i in range(20):
        a(f"v_cvt_pk_bf16_f32 v{XR+i}, v{XF+2*i}, v{XF+2*i+1}")
    if opt.lnprof: stamp(a, opt, 4)
    for i in range(5):
        a(f"ds_write_b128 v{TM+4}, {vr(XR+4*i,4)} offset:{i*256}")
    a(f"s_lshl_b32 s{sT0}, s{sWAVE}, 2")
    a(f"s_add_u32 s{sT1}, s{sT0}, {LF_BASE}")
    a(f"s_xor_b32 s{sT0}, s{sT0}, 4")
    a(f"s_add_u32 s{sT0}, s{sT0}, {LF_BASE}")
    a("s_waitcnt lgkmcnt(0)")
    lds_set(a, f"s{sT1}")
    lds_spin(a, opt, f"s{sT0}")
    if opt.lnprof: stamp(a, opt, 5)
    for i in range(5):
        a(f"ds_read_b64_tr_b16 {vr(XF+4*i,2)}, v{TM+5} offset:{i*128}")
        a(f"ds_read_b64_tr_b16 {vr(XF+4*i+2,2)}, v{TM+5} offset:{i*128+4*LN_ROW}")
    for i in range(5):
        a(f"s_waitcnt lgkmcnt({8-2*i})")
        a(f"s_add_u32 s{sT0}, s{sSTEP}, {i*4096}")
        a.vmem(f"buffer_store_dwordx4 {vr(XF+4*i,4)}, v{TM+6}, {srd(sH)}, s{sT0} offen {opt.hbits}", "h")
    stamp(a, opt, 2)
    a("s_waitcnt vmcnt(5)")
    a(f"v_readfirstlane_b32 s{sNONCE}, v{vPOLL}")
    nonce_spin(a, opt)
    a.wait_vm0()
    a(f"s_mul_i32 s{sT0}, s{sWG}, {opt.hstride}")
    a(f"s_lshl_b32 s{sT1}, s{sWAVE}, 2")
    a(f"s_add_u32 s{sT0}, s{sT0}, s{sT1}")
    flag_store(a, sT0)
    a(f"s_lshl_b32 s{sT0}, s{sWAVE}, 2")
    a(f"s_add_u32 s{sT0}, s{sT0}, {LF_BASE + 8}")
    lds_set(a, f"s{sT0}")
    stamp(a, opt, 3)
    if opt.prio: a("s_setprio 0")
    a.ln_done = True
    a("s_branch L_roles_done")

    a.label("L_loader")
    a.vm = []
    a(f"v_lshlrev_b32 v{vX}, 2, v{vLANE}")
    a(f"v_add_u32 v{vX}, {LF_BASE}, v{vX}")
    a(f"v_mov_b32 v{vX+1}, 0")
    a(f"ds_write_b32 v{vX}, v{vX+1}")
    a("s_waitcnt lgkmcnt(0)")
    if opt.prof: a(f"s_mov_b32 s{sPROF}, s{sP}")
    make_srd(a, sW1, 6, S * F * 2)
    make_srd(a, sD, 16, 256)
    a(f"s_cmp_lg_u32 s{sWG}, 0")
    a("s_cbranch_scc1 L_nononce")
    a(f"s_cmp_lg_u32 s{sWAVE}, 3")
    a("s_cbranch_scc1 L_nononce")
    a(f"s_memrealtime s[{sP}:{sP+1}]")
    a("s_waitcnt lgkmcnt(0)")
    a(f"s_or_b32 s{sT0}, s{sP}, 1")
    a(f"v_mov_b32 v{vT2}, s{sT0}")
    a(f"v_mov_b32 v{vT}, 0")
    a(f"s_mov_b64 s[{sP}:{sP+1}], exec")
    a("s_mov_b64 exec, 1")
    a(f"buffer_store_dword v{vT2}, v{vT}, {srd(sD)}, 0 offen sc1")
    a(f"s_mov_b64 exec, s[{sP}:{sP+1}]")
    a.label("L_nononce")
    a(f"s_cmp_ge_u32 s{sJ}, s{sJLIM}")
    a("s_cbranch_scc1 L_loader_idle")
    for i in range(2): w1_dma(i)
    a("s_barrier")
    tr_addr(sM0B)
    if opt.hold:
        lds_spin(a, opt, LF_BASE + 8)
        lds_spin(a, opt, LF_BASE + 12)
    w1_stream(2, opt.dp)
    a(f"s_mov_b32 s{sNONCE}, 0")
    nonce_spin(a, opt)
    a("s_branch L_w1_ready")
    a.label("L_loader_idle")
    a.vm = []
    a("s_barrier")
    if opt.pfwait:
        lds_spin(a, opt, LF_BASE + 8)
        lds_spin(a, opt, LF_BASE + 12)
    if opt.pf == 1:
        make_srd(a, sW2, 10, F * S * 2)
        a(f"s_lshl_b32 s{sT0}, s{sIDLE}, 1")
        a(f"s_add_u32 s{sT0}, s{sT0}, s{sWAVE}")
        a(f"s_sub_u32 s{sT0}, s{sT0}, 2")
        a(f"s_lshl_b32 s{sT0}, s{sT0}, 10")
        a(f"v_lshlrev_b32 v{vX}, 4, v{vLANE}")
        inc = 80 * 1024
        for k in range(87):
            o = vRING + (k % 20) * 4
            a.vmem(f"buffer_load_dwordx4 {vr(o,4)}, v{vX}, {srd(sW2)}, s{sT0} offen {opt.pfbits}", f"pf{k}")
            a(f"s_add_u32 s{sT0}, s{sT0}, {inc}")
            if k >= opt.pfdepth: a.wait_vm(f"pf{k-opt.pfdepth}")
    a(f"s_mov_b32 s{sNONCE}, 0")
    nonce_spin(a, opt)
    a("s_branch L_nogemm1")

    a.label("L_roles_done")
    a.vm = []
    a(f"s_cmp_ge_u32 s{sJ}, s{sJLIM}")
    a("s_cbranch_scc1 L_nogemm1")
    a.vm = []
    tr_addr(sM0B)
    for i in range(opt.nearly): a.vm.append(f"w1_{i}")
    a.vm.append("flag")
    w1_stream(opt.nearly, opt.dpl)

    def common_setup():
        make_srd(a, sH, 18, H_BYTES, WS_H)
        make_srd(a, sF, 18, FLAG_BYTES, WS_FLAG)
        make_srd(a, sB1, 8, F * 2)
        make_srd(a, sW2, 10, F * S * 2)
        make_srd(a, sB2, 12, S * 2)
        make_srd(a, sO, 14, S * D * 2)
        make_srd(a, sG, 18, G_BYTES, WS_G)
        a(f"v_lshrrev_b32 v{vT}, 4, v{vLANE}")
        a(f"v_lshlrev_b32 v{vT}, 3, v{vT}")
        a(f"s_and_b32 s{sT0}, s{sWAVE}, 1")
        a(f"s_lshl_b32 s{sT0}, s{sT0}, 6")
        a(f"s_lshl_b32 s{sT1}, s{sFT}, 7")
        a(f"s_add_u32 s{sT0}, s{sT0}, s{sT1}")
        a.vmem(f"buffer_load_dwordx2 {vr(vB1,2)}, v{vT}, {srd(sB1)}, s{sT0} offen", "b")
        a.vmem(f"buffer_load_dwordx2 {vr(vB1+2,2)}, v{vT}, {srd(sB1)}, s{sT0} offen offset:32", "b")
        a(f"v_and_b32 v{vT}, 15, v{vLANE}")
        a(f"v_lshlrev_b32 v{vT}, 1, v{vT}")
        a(f"s_lshl_b32 s{sT0}, s{sST}, 7")
        a(f"s_lshl_b32 s{sT1}, s{sWAVE}, 5")
        a(f"s_add_u32 s{sT0}, s{sT0}, s{sT1}")
        a.vmem(f"buffer_load_ushort v{vB2}, v{vT}, {srd(sB2)}, s{sT0} offen", "b")
        dma_addr(a, S * 2, sST)
        a(f"s_mul_i32 s{sWB}, s{sWAVE}, {448*S*2}")
        tr_addr(sM0B)
        a(f"s_sub_u32 s{sT0}, s{sUP}, s{sM0B}")
        for t in range(4):
            a(f"v_add_u32 v{vTRU+t}, s{sT0}, v{vTR+t}")
        a(f"v_lshlrev_b32 v{vL0}, 4, v{vLANE}")
        a(f"v_add_u32 v{vL1}, 65536, v{vL0}")
        a(f"v_add_u32 v{vL2}, 131072, v{vL0}")

    a.label("L_w1_ready")
    a.vm = []
    stamp(a, opt, 4)
    common_setup()
    a(f"s_mul_i32 s{sT0}, s{sDT1}, 5120")
    a(f"v_add_u32 v{vA}, s{sT0}, v{vL0}")
    a(f"v_add_u32 v{vA2}, 4096, v{vA}")
    a(f"s_lshl_b32 s{sT0}, s{sWAVE}, 6")
    a(f"v_add_u32 v{vX}, s{sT0}, v{vLANE}")
    a(f"v_mul_u32_u24 v{vX}, {opt.hstride}, v{vX}")
    poll(a, opt, vX, 2, None)
    a("s_barrier")
    stamp(a, opt, 5)

    def a_loads(srdn, step, nsteps, s_rot):
        slot = step % NS
        step_off(a, sOFF, sSTEP, s_rot, step, nsteps, 40960)
        return [f"buffer_load_dwordx4 {vr(ring(slot,t),4)}, v{vA if t < 4 else vA2}, {srd(srdn)}, s{sOFF} offen offset:{(t*1024) if t < 4 else 0} sc1" for t in range(5)]

    def main_loop(srdn, nsteps, s_rot, tagp, mfma, stamp0, tail, nuni):
        for st in range(opt.depth):
            for o, ins in enumerate(a_loads(srdn, st, nsteps, s_rot)): a.vmem(ins, f"{tagp}{st}_{o}")
        for st in range(nuni):
            nx = st + opt.depth
            nxt = a_loads(srdn, nx, nsteps, s_rot) if nx < nsteps else None
            a.wait_vm(f"{tagp}{st}_4")
            if st == 0 and stamp0 is not None: stamp(a, opt, stamp0)
            for o in range(5):
                if nxt: a.vmem(nxt[o], f"{tagp}{nx}_{o}")
                for i in range(4): mfma(st, o, i, st % NS)
                if tail: tail(st, o)

    def tile_tail(nsteps, tagp, first, last, frag_of, mfma_tile, write_tile, extra):
        ic = [0]
        done_at = {}
        queue = []
        extra = list(extra)
        def emit(fn):
            fn(); ic[0] += 1
        def filler():
            if queue and ic[0] - done_at[queue[0]] >= 9:
                t = queue.pop(0); emit(lambda: write_tile(t)); return
            if extra: emit(extra.pop(0))
        tiles = list(first) + list(last)
        for i in range(0, len(tiles), 2):
            pair = tiles[i:i + 2]
            for t in pair:
                for st in (nsteps - 2, nsteps - 1): a.wait_vm(f"{tagp}{st}_{frag_of(t)}")
            for st in (nsteps - 2, nsteps - 1):
                for t in pair:
                    emit(lambda: mfma_tile(st, t))
                    if st == nsteps - 1:
                        done_at[t] = ic[0]
                        if t in first: queue.append(t)
                    filler()
        while extra: emit(extra.pop(0))
        while queue:
            while ic[0] - done_at[queue[0]] < 9: emit(lambda: a("s_nop 0"))
            t = queue.pop(0); emit(lambda: write_tile(t))

    a(f"s_mul_i32 s{sSTEP}, s{sWAVE}, {16*40960}")
    def mfma1(st, nt, mt, slot):
        c = "0" if st == 0 else vr(acc1(mt, nt), 4)
        a(f"v_mfma_f32_16x16x32_bf16 {vr(acc1(mt,nt),4)}, {ar(wfrag(st,mt),4)}, {vr(ring(slot,nt),4)}, {c}")
    parts13 = w2_dma_parts(a, 0) if opt.t13 else []
    def tail1(st, o):
        if st == 13 and parts13:
            if o == 0: parts13[0]()
            else: parts13[o]()
    main_loop(sH, 16, sROT1, "h", mfma1, 6, tail1, 14)

    a(f"s_mov_b32 s100, {f2h(C1)}"); a(f"s_mov_b32 s101, {f2h(C1)}")
    a(f"v_mov_b32 v{vC0}, {f2h(C0)}"); a(f"v_mov_b32 v{vC0+1}, {f2h(C0)}")
    def lds_ref(addr):
        if addr < 65536: return vL0, addr
        if addr < 131072: return vL1, addr - 65536
        return vL2, addr - 131072
    def owner1(p, nt): return p + (0 if nt < 3 else 2)
    units = [(p, nt) for p in range(2) for nt in range(5)]
    def red1_addr(src, u):
        k = [x for x in units if owner1(*x) != src].index(u)
        return src * 32768 + 24576 + k * 2048 if k < 4 else 131072 + src * 8192 + (k - 4) * 2048
    saved_vm = list(a.vm)
    for w in range(4):
        if w < 3:
            a(f"s_cmp_lg_u32 s{sWAVE}, {w}")
            a(f"s_cbranch_scc1 L_ep1_{w+1}")
        a.vm = list(saved_vm)
        nis = [1 if opt.t13 else 0]
        def more(n, limit):
            for _ in range(n):
                if nis[0] < limit:
                    w2_dma(a, nis[0]); nis[0] += 1
        tl = [(2 * p + hf, nt) for nt in range(5) for p in range(2) for hf in range(2)]
        first = [t for t in tl if owner1(t[0] // 2, t[1]) != w]
        last = [t for t in tl if owner1(t[0] // 2, t[1]) == w]
        def wr1(t):
            vb, off = lds_ref(red1_addr(w, (t[0] // 2, t[1])) + (t[0] & 1) * 1024)
            a(f"ds_write_b128 v{vb}, {vr(acc1(*t),4)} offset:{off}")
        extra = []
        for _ in range(opt.tt):
            extra += w2_dma_parts(a, nis[0]); nis[0] += 1
        tile_tail(16, "h", first, last, lambda t: t[1], lambda st, t: mfma1(st, t[1], t[0], st % NS), wr1, extra)
        stamp(a, opt, 7)
        more(opt.e1, 6)
        a("s_waitcnt lgkmcnt(0)")
        a("s_barrier")
        own_u = [u for u in units if owner1(*u) == w]
        RT = vRING
        n = 0
        for u in own_u:
            for src in range(4):
                if src == w: continue
                for hf in range(2):
                    vb, off = lds_ref(red1_addr(src, u) + hf * 1024)
                    a(f"ds_read_b128 {vr(RT + n*4, 4)}, v{vb} offset:{off}")
                    n += 1
        a.wait_vm("b")
        for i in range(4):
            a(f"v_lshlrev_b32 v{BI+2*i}, 16, v{vB1+i}")
            a(f"v_and_b32 v{BI+2*i+1}, 0xffff0000, v{vB1+i}")
        for u in own_u:
            p, nt = u
            for hf in range(2):
                r = acc1(2*p+hf, nt)
                a(f"v_pk_add_f32 {vr(r,2)}, {vr(r,2)}, {vr(BI+4*hf,2)}")
                a(f"v_pk_add_f32 {vr(r+2,2)}, {vr(r+2,2)}, {vr(BI+4*hf+2,2)}")
        n = 0
        tot = len(own_u) * 6
        for u in own_u:
            p, nt = u
            for si in range(3):
                for hf in range(2):
                    a(f"s_waitcnt lgkmcnt({min(15, tot - n - 1)})")
                    r = acc1(2*p+hf, nt)
                    a(f"v_pk_add_f32 {vr(r,2)}, {vr(r,2)}, {vr(RT+n*4,2)}")
                    a(f"v_pk_add_f32 {vr(r+2,2)}, {vr(r+2,2)}, {vr(RT+n*4+2,2)}")
                    n += 1
        a("s_barrier")
        regs = []
        for u in own_u:
            p, nt = u
            for hf in range(2):
                r = acc1(2*p+hf, nt)
                regs += [r, r + 2]
        more(opt.e2, 10)
        gelu_pairs(a, regs, RT, fill=lambda: more(opt.e3, 10))
        a(f"s_lshl_b32 s{sT0}, s{sFT}, 1")
        a(f"s_add_u32 s{sT0}, s{sT0}, {w & 1}")
        a(f"s_mul_i32 s{sT0}, s{sT0}, 40960")
        a(f"s_mul_i32 s{sT1}, s{sDT1}, 5120")
        a(f"s_add_u32 s{sT0}, s{sT0}, s{sT1}")
        for i, u in enumerate(own_u):
            p, nt = u
            o = RT + 64 + 4 * i
            r0, r1 = acc1(2*p, nt), acc1(2*p+1, nt)
            a(f"v_cvt_pk_bf16_f32 v{o}, v{r0}, v{r0+1}")
            a(f"v_cvt_pk_bf16_f32 v{o+1}, v{r0+2}, v{r0+3}")
            a(f"v_cvt_pk_bf16_f32 v{o+2}, v{r1}, v{r1+1}")
            a(f"v_cvt_pk_bf16_f32 v{o+3}, v{r1+2}, v{r1+3}")
            a(f"s_add_u32 s{sT1}, s{sT0}, {nt*1024}")
            a.vmem(f"buffer_store_dwordx4 {vr(o,4)}, v{vL0}, {srd(sG)}, s{sT1} offen sc1", "g")
        stamp(a, opt, 8)
        more(opt.nb, 10)
        a.wait_vm("w2_3")
        if nis[0] >= 4:
            for st in range(4):
                w2_tr(a, st)
                if st % 2 == 1: a("s_waitcnt lgkmcnt(0)")
        if nis[0] == 10 and opt.nb2:
            for st in range(10, 10 + opt.nb2): w2_dma(a, st)
            nis[0] += opt.nb2
        a.wait_vm("g")
        a(f"s_lshl_b32 s{sT0}, s{sDT1}, 5")
        a(f"s_add_u32 s{sT0}, s{sT0}, s{sFT}")
        a(f"s_mul_i32 s{sT0}, s{sT0}, {opt.gstride}")
        a(f"s_add_u32 s{sT0}, s{sT0}, {FLAG_G + 4*w}")
        flag_store(a, sT0)
        stamp(a, opt, 9)
        assert nis[0] >= 4
        more(10, 10)
        more(4, 14)
        for st in range(4, 10):
            a.wait_vm(f"w2_{st}")
            w2_tr(a, st)
            if st % 2 == 1: a("s_waitcnt lgkmcnt(0)")
        a("s_branch L_pre2")
        if w < 3: a.label(f"L_ep1_{w+1}")

    a.label("L_nogemm1")
    a.vm = []
    common_setup()
    if opt.pf == 2:
        assert opt.p1 == 2 and opt.p2 == 1
        a(f"s_cmp_lt_u32 s{sJ}, 28")
        a("s_cbranch_scc1 L_nopf")
        a(f"s_sub_u32 s{sT0}, s{sJ}, 28")
        a(f"s_lshl_b32 s{sT0}, s{sT0}, 2")
        a(f"s_add_u32 s{sT0}, s{sT0}, s{sWAVE}")
        a(f"s_lshl_b32 s{sT0}, s{sT0}, 13")
        a(f"s_lshl_b32 s{sT1}, s{sXCD}, 9")
        a(f"s_add_u32 s{sT0}, s{sT0}, s{sT1}")
        a(f"v_lshrrev_b32 v{vX}, 5, v{vLANE}")
        a(f"v_lshlrev_b32 v{vX}, 12, v{vX}")
        a(f"v_and_b32 v{vX+1}, 31, v{vLANE}")
        a(f"v_lshlrev_b32 v{vX+1}, 4, v{vX+1}")
        a(f"v_add_u32 v{vX}, v{vX}, v{vX+1}")
        keep = list(a.vm)
        for k in range(54):
            o = vRING + (k % 16) * 4
            a.vmem(f"buffer_load_dwordx4 {vr(o,4)}, v{vX}, {srd(sW2)}, s{sT0} offen", f"pf{k}")
            a(f"s_add_u32 s{sT0}, s{sT0}, {16*8192}")
            if k >= opt.pfdepth: a.wait_vm(f"pf{k-opt.pfdepth}")
        a.wait_vm0()
        a.label("L_nopf")
        a.vm = keep
    for st in range(10): w2_dma(a, st)
    for st in range(4):
        a.wait_vm(f"w2_{st}")
        w2_tr(a, st)
        if st % 2 == 1: a("s_waitcnt lgkmcnt(0)")
    for st in range(10, 14): w2_dma(a, st)
    for st in range(4, 10):
        a.wait_vm(f"w2_{st}")
        w2_tr(a, st)
        if st % 2 == 1: a("s_waitcnt lgkmcnt(0)")

    a.label("L_pre2")
    a.wait_vm0()
    a("s_waitcnt lgkmcnt(0)")
    for st in range(10, 14):
        w2_tr(a, st)
        if st % 2 == 1: a("s_waitcnt lgkmcnt(0)")
    stamp(a, opt, 10)
    a(f"s_mul_i32 s{sT0}, s{sDT2}, 5120")
    a(f"v_add_u32 v{vA}, s{sT0}, v{vL0}")
    a(f"v_add_u32 v{vA2}, 4096, v{vA}")
    a(f"s_lshl_b32 s{sT0}, s{sDT2}, 5")
    a(f"s_mul_i32 s{sT1}, s{sWAVE}, 7")
    a(f"s_add_u32 s{sT0}, s{sT0}, s{sT1}")
    a(f"s_mul_i32 s{sT0}, s{sT0}, {opt.gstride}")
    a(f"s_add_u32 s{sT0}, s{sT0}, {FLAG_G}")
    a(f"v_lshrrev_b32 v{vX}, 2, v{vLANE}")
    a(f"v_mul_u32_u24 v{vX}, {opt.gstride}, v{vX}")
    a(f"v_and_b32 v{vT}, 3, v{vLANE}")
    a(f"v_lshlrev_b32 v{vT}, 2, v{vT}")
    a(f"v_add_u32 v{vX}, v{vX}, v{vT}")
    a(f"v_add_u32 v{vX}, s{sT0}, v{vX}")
    a(f"s_cmp_eq_u32 s{sWAVE}, 3")
    a(f"s_mov_b32 s{sP+3}, 0xffffff")
    a(f"s_cselect_b32 s{sP+2}, s{sP+3}, 0xfffffff")
    a(f"s_mov_b32 s{sP+3}, 0")
    poll(a, opt, vX, 1, sP + 2)
    stamp(a, opt, 11)
    a(f"s_mul_i32 s{sSTEP}, s{sWAVE}, {14*40960}")
    def mfma2(st, mt, nt, slot):
        c = "0" if st == 0 else vr(acc2(mt, nt), 4)
        a(f"v_mfma_f32_16x16x32_bf16 {vr(acc2(mt,nt),4)}, {vr(ring(slot,mt),4)}, {ar(wfrag(st,nt),4)}, {c}")
    main_loop(sG, 14, sROT2, "g", mfma2, 12, None, 12)
    saved_vm2 = list(a.vm)
    a(f"v_and_b32 v{vT}, 15, v{vLANE}")
    a(f"s_lshl_b32 s{sT0}, s{sWAVE}, 4")
    a(f"v_add_u32 v{vT}, s{sT0}, v{vT}")
    a(f"v_mul_u32_u24 v{vA}, 1280, v{vT}")
    a(f"v_lshrrev_b32 v{vT}, 4, v{vLANE}")
    a(f"v_lshlrev_b32 v{vT}, 3, v{vT}")
    a(f"v_add_u32 v{vA}, v{vA}, v{vT}")
    a(f"s_mul_i32 s{sT0}, s{sST}, {64*1280}")
    a(f"s_mul_i32 s{sT1}, s{sDT2}, 160")
    a(f"s_add_u32 s{sOFF}, s{sT0}, s{sT1}")
    a(f"v_lshlrev_b32 v{vB2}, 16, v{vB2}")
    def red2_addr(src, nt, mt):
        k = [x for x in range(4) if x != src].index(nt)
        return src * 32768 + (k * 5 + mt) * 1024
    for w in range(4):
        if w < 3:
            a(f"s_cmp_lg_u32 s{sWAVE}, {w}")
            a(f"s_cbranch_scc1 L_ep2_{w+1}")
        a.vm = list(saved_vm2)
        tl = [(mt, nt) for mt in range(5) for nt in range(4)]
        def wr2(t):
            vb, off = lds_ref(red2_addr(w, t[1], t[0]))
            a(f"ds_write_b128 v{vb}, {vr(acc2(*t),4)} offset:{off}")
        tile_tail(14, "g", [t for t in tl if t[1] != w], [t for t in tl if t[1] == w], lambda t: t[0],
                  lambda st, t: mfma2(st, t[0], t[1], st % NS), wr2, [])
        stamp(a, opt, 13)
        a("s_waitcnt lgkmcnt(0)")
        a("s_barrier")
        RT = vRING
        n = 0
        for mt in range(5):
            for src in range(4):
                if src == w: continue
                vb, off = lds_ref(red2_addr(src, w, mt))
                a(f"ds_read_b128 {vr(RT+n*4,4)}, v{vb} offset:{off}")
                n += 1
        n = 0
        for mt in range(5):
            r = acc2(mt, w)
            for si in range(3):
                a(f"s_waitcnt lgkmcnt({14 - n})")
                a(f"v_pk_add_f32 {vr(r,2)}, {vr(r,2)}, {vr(RT+n*4,2)}")
                a(f"v_pk_add_f32 {vr(r+2,2)}, {vr(r+2,2)}, {vr(RT+n*4+2,2)}")
                n += 1
            for k in range(4):
                a(f"v_add_f32 v{r+k}, v{r+k}, v{vB2}")
            o = RT + 64 + 2 * mt
            a(f"v_cvt_pk_bf16_f32 v{o}, v{r}, v{r+1}")
            a(f"v_cvt_pk_bf16_f32 v{o+1}, v{r+2}, v{r+3}")
            a(f"buffer_store_dwordx2 {vr(o,2)}, v{vA}, {srd(sO)}, s{sOFF} offen offset:{mt*32} {opt.obits}")
        a("s_branch L_fin")
        if w < 3: a.label(f"L_ep2_{w+1}")
    a.label("L_fin")
    if opt.pad:
        a.label("L_pad")
        a(f"s_memrealtime s[{sP}:{sP+1}]")
        a("s_waitcnt lgkmcnt(0)")
        a(f"s_sub_u32 s{sT0}, s{sP}, s96")
        a(f"s_cmp_lt_u32 s{sT0}, {opt.pad}")
        a("s_cbranch_scc1 L_pad")
    if opt.prof:
        a("s_waitcnt vmcnt(0)")
        stamp(a, opt, 14)
        make_srd(a, sX, 18, 65536, WS_PROF)
        a(f"s_lshl_b32 s{sT0}, s{sWG}, 2")
        a(f"s_add_u32 s{sT0}, s{sT0}, s{sWAVE}")
        a(f"s_lshl_b32 s{sT0}, s{sT0}, 6")
        a(f"v_mov_b32 v{vT}, s{sT0}")
        a("s_mov_b64 exec, 1")
        for i in range(15):
            a(f"v_mov_b32 v100, s{sPROF+i}")
            a(f"buffer_store_dword v100, v{vT}, {srd(sX)}, 0 offen offset:{4*i}")
            a("s_nop 1")
        a("s_waitcnt vmcnt(0)")
    a.label("L_done")
    a("s_endpgm")
    a.raw('.section .rodata,"a"')
    a.raw(".p2align 6")
    a.raw(f".amdhsa_kernel {KN}")
    for l in ["next_free_vgpr 512", "next_free_sgpr 102", "accum_offset 256", "group_segment_fixed_size 0",
              "kernarg_size 64", "user_sgpr_count 2", "user_sgpr_kernarg_segment_ptr 1",
              "system_sgpr_workgroup_id_x 1", "float_denorm_mode_32 3"]:
        a.raw(f"  .amdhsa_{l}")
    a.raw(".end_amdhsa_kernel")
    return "\n".join(a.L) + "\n"

def parse(argv=None):
    ap = argparse.ArgumentParser()
    ap.add_argument("-o", default="standalone__mixer_token_mlp__prompt.s")
    ap.add_argument("--prof", type=int, default=0)
    ap.add_argument("--rot", type=int, default=2)
    ap.add_argument("--spin", type=int, default=20000)
    ap.add_argument("--sleep", type=int, default=8)
    ap.add_argument("--depth", type=int, default=3)
    ap.add_argument("--lnprof", type=int, default=0)
    ap.add_argument("--hbits", default="sc1")
    ap.add_argument("--pfwait", type=int, default=1)
    ap.add_argument("--hold", type=int, default=0)
    ap.add_argument("--t13", type=int, default=1)
    ap.add_argument("--tt", type=int, default=2)
    ap.add_argument("--e2", type=int, default=0)
    ap.add_argument("--e3", type=int, default=0)
    ap.add_argument("--nb2", type=int, default=0)
    ap.add_argument("--e1", type=int, default=1)
    ap.add_argument("--nb", type=int, default=2)
    ap.add_argument("--nearly", type=int, default=2)
    ap.add_argument("--dpl", type=int, default=5)
    ap.add_argument("--dp", type=int, default=3)
    ap.add_argument("--p1", type=int, default=1)
    ap.add_argument("--p2", type=int, default=1)
    ap.add_argument("--rota1", type=int, default=0)
    ap.add_argument("--rota2", type=int, default=0)
    ap.add_argument("--xbits", default="")
    ap.add_argument("--w1bits", default="")
    ap.add_argument("--w2bits", default="")
    ap.add_argument("--pfbits", default="")
    ap.add_argument("--pfdepth", type=int, default=8)
    ap.add_argument("--prio", type=int, default=3)
    ap.add_argument("--delay", type=int, default=0)
    ap.add_argument("--hstride", type=int, default=8)
    ap.add_argument("--gstride", type=int, default=256)
    ap.add_argument("--pf", type=int, default=0)
    ap.add_argument("--pad", type=int, default=0)
    ap.add_argument("--obits", default="sc1")
    return ap.parse_args(argv)

if __name__ == "__main__":
    opt = parse()
    open(opt.o, "w").write(gen(opt))
```

```python
import argparse, struct

S, D, F = 2048, 640, 1728
KN = "standalone__mixer_token_mlp__prompt_kernel"

WS_H = 0
H_BYTES = 64 * 40 * 1024
WS_G = 0x300000
G_BYTES = 54 * 40 * 1024
WS_FLAG = 0x600000
FLAG_H = 0
FLAG_G = 0x10000
FLAG_BYTES = 0x40000
WS_PROF = 0x700000

LDS_BYTES = 163840
LN_BASE = 131072
LN_ROW = 1344
LF_BASE = 141824
P0_BASE = [0, 49152, 98304, 122880]

sWG = 2
sX, sW1, sW2, sH, sG, sO, sF, sB1, sB2, sD = 20, 24, 28, 32, 36, 40, 44, 48, 52, 56
sWAVE, sXCD, sJ, sFT, sDT1, sST, sDT2, sNONCE = 60, 61, 62, 63, 64, 65, 66, 67
sT0, sT1, sT2, sT3, sT4, sT5 = 68, 69, 70, 71, 72, 73
sROT1, sROT2, sSTEP, sOFF = 74, 75, 76, 77
sM0B, sSPIN = 78, 79
sP = 80
sPROF = 84
sUP = 99
sJLIM, sIDLE = 100, 101
sWB = 3

vTID, vLANE = 0, 1
vTR = 2
vA, vA2, vDMA, vT2 = 6, 7, 8, 9
vB1 = 10
vB2, vT = 14, 15
vACC = 16
vRING = 96
vTRU = 176
vL0, vL1, vL2 = 180, 181, 182
vC0 = 184
BI = 186
vPOLL = 194
vX = 196
vDM = 200

def srd(n): return f"s[{n}:{n+3}]"
def vr(n, c=1): return f"v{n}" if c == 1 else f"v[{n}:{n+c-1}]"
def ar(n, c=1): return f"a{n}" if c == 1 else f"a[{n}:{n+c-1}]"
def f2h(x): return "0x%08x" % struct.unpack("<I", struct.pack("<f", x))[0]
C0 = -2.0 * 0.7978845608028654 * 1.4426950408889634
C1 = C0 * 0.044715

class Asm:
    def __init__(self):
        self.L = []; self.vm = []; self.uid = 0
    def __call__(self, s): self.L.append("    " + s)
    def label(self, s): self.L.append(s + ":")
    def raw(self, s): self.L.append(s)
    def c(self, s): self.L.append("    ; " + s)
    def vmem(self, s, tag):
        self(s); self.vm.append(tag)
    def wait_vm(self, tag):
        hits = [i for i, t in enumerate(self.vm) if t == tag]
        if not hits: return
        n = len(self.vm) - 1 - hits[-1]
        self(f"s_waitcnt vmcnt({min(n, 63)})")
        self.vm = self.vm[hits[-1] + 1:]
    def wait_vm0(self):
        self("s_waitcnt vmcnt(0)"); self.vm = []
    def newlabel(self, p):
        self.uid += 1
        return f"L_{p}_{self.uid}"

def acc1(mt, nt): return vACC + (mt * 5 + nt) * 4
def acc2(mt, nt): return vACC + (mt * 4 + nt) * 4
def wfrag(step, t): return step * 16 + t * 4

def stamp(a, opt, idx, force=False):
    if opt.probe >= 0:
        if idx == opt.probe:
            a(f"s_memrealtime s[{sP}:{sP+1}]")
            a("s_waitcnt lgkmcnt(0)")
            a(f"s_mov_b32 s{sPROF+1}, s{sP}")
        return
    if opt.lnprof and idx in (4, 5) and getattr(a, "ln_done", False): return
    if opt.prof:
        a(f"s_mem{'time' if opt.prof == 2 else 'realtime'} s[{sP}:{sP+1}]")
        a("s_waitcnt lgkmcnt(0)")
        a(f"s_mov_b32 s{sPROF+idx}, s{sP}")

def make_srd(a, n, lo, size, add=0):
    if add:
        a(f"s_add_u32 s{n}, s{lo}, {add}")
        a(f"s_addc_u32 s{n+1}, s{lo+1}, 0")
        a(f"s_and_b32 s{n+1}, s{n+1}, 0xffff")
    else:
        a(f"s_mov_b32 s{n}, s{lo}")
        a(f"s_and_b32 s{n+1}, s{lo+1}, 0xffff")
    a(f"s_mov_b32 s{n+2}, {size}")
    a(f"s_mov_b32 s{n+3}, 0x20000")

def nonce_spin(a, opt):
    lp = a.newlabel("nonce"); dn = a.newlabel("nonced")
    a(f"s_cmp_lg_u32 s{sNONCE}, 0")
    a(f"s_cbranch_scc1 {dn}")
    a(f"s_mov_b32 s{sSPIN}, 0")
    a(f"v_mov_b32 v{vT}, 0")
    a.label(lp)
    a(f"buffer_load_dword v{vT2}, v{vT}, {srd(sD)}, 0 offen sc1")
    a("s_waitcnt vmcnt(0)")
    a(f"v_readfirstlane_b32 s{sNONCE}, v{vT2}")
    a(f"s_add_u32 s{sSPIN}, s{sSPIN}, 1")
    a(f"s_cmp_lg_u32 s{sNONCE}, 0")
    a(f"s_cbranch_scc1 {dn}")
    a(f"s_cmp_lt_u32 s{sSPIN}, {opt.spin}")
    a(f"s_cbranch_scc1 {lp}")
    a.label(dn)

def lds_set(a, addr_sgpr_or_imm):
    a(f"v_mov_b32 v{vT}, {addr_sgpr_or_imm}")
    a(f"v_mov_b32 v{vT2}, 1")
    a(f"s_mov_b64 s[{sP}:{sP+1}], exec")
    a("s_mov_b64 exec, 1")
    a(f"ds_write_b32 v{vT}, v{vT2}")
    a(f"s_mov_b64 exec, s[{sP}:{sP+1}]")

def lds_spin(a, opt, addr):
    lp = a.newlabel("lspin"); dn = a.newlabel("lspun")
    a(f"v_mov_b32 v{vT}, {addr}")
    a(f"s_mov_b32 s{sSPIN}, 0")
    a.label(lp)
    a(f"ds_read_b32 v{vT2}, v{vT}")
    a("s_waitcnt lgkmcnt(0)")
    a(f"v_readfirstlane_b32 s{sP}, v{vT2}")
    a(f"s_add_u32 s{sSPIN}, s{sSPIN}, 1")
    a(f"s_cmp_lg_u32 s{sP}, 0")
    a(f"s_cbranch_scc1 {dn}")
    a(f"s_cmp_lt_u32 s{sSPIN}, {opt.spin * 8}")
    a(f"s_cbranch_scc1 {lp}")
    a.label(dn)

def dma_addr(a, stride, s_tile):
    a(f"v_lshrrev_b32 v{vT}, 3, v{vLANE}")
    a(f"v_lshrrev_b32 v{vT2}, 1, v{vT}")
    a(f"v_lshlrev_b32 v{vT2}, 1, v{vT2}")
    a(f"v_and_b32 v{vDM}, 7, v{vLANE}")
    a(f"v_xor_b32 v{vDM}, v{vDM}, v{vT2}")
    a(f"v_lshlrev_b32 v{vDM}, 4, v{vDM}")
    a(f"v_mul_u32_u24 v{vT}, {stride}, v{vT}")
    a(f"v_add_u32 v{vDM}, v{vDM}, v{vT}")
    a(f"s_lshl_b32 s{sT0}, s{s_tile}, 7")
    a(f"v_add_u32 v{vDM}, s{sT0}, v{vDM}")
    for b in range(1, 4):
        a(f"v_add_u32 v{vDM+b}, {b*(8*stride-1024)}, v{vDM}")

def step_off(a, dst, s_base, s_rot, i, nsteps, bytes_per_step):
    a(f"s_add_u32 s{sT4}, s{s_rot}, {i}")
    a(f"s_cmp_ge_u32 s{sT4}, {nsteps}")
    a(f"s_cselect_b32 s{dst}, {nsteps}, 0")
    a(f"s_sub_u32 s{sT4}, s{sT4}, s{dst}")
    a(f"s_mul_i32 s{sT4}, s{sT4}, {bytes_per_step}")
    a(f"s_add_u32 s{dst}, s{sT4}, s{s_base}")

def dma_step(a, srdn, stride, s_rowbase, s_rot, step, nsteps, s_lds, lds_off, tag, bits=""):
    a(f"s_add_u32 m0, s{s_lds}, {lds_off}")
    step_off(a, sOFF, s_rowbase, s_rot, step, nsteps, 32 * stride)
    for blk in range(4):
        a.vmem(f"buffer_load_dwordx4 v{vDM+blk}, {srd(srdn)}, s{sOFF} offen offset:{blk*1024} {bits} lds", tag)

def tr_step(a, vbase, off, step):
    for t in range(4):
        w = wfrag(step, t)
        a(f"ds_read_b64_tr_b16 {ar(w,2)}, v{vbase+t} offset:{off}")
        a(f"ds_read_b64_tr_b16 {ar(w+2,2)}, v{vbase+t} offset:{off+2048}")

def poll(a, opt, vaddr, nd, lanes):
    lp = a.newlabel("poll"); dn = a.newlabel("polled")
    a(f"s_mov_b32 s{sSPIN}, 0")
    a.label(lp)
    ld = {1: "dword", 2: "dwordx2"}[nd]
    a(f"buffer_load_{ld} {vr(vPOLL, nd)}, v{vaddr}, {srd(sF)}, 0 offen sc1")
    a("s_waitcnt vmcnt(0)")
    a(f"v_cmp_ne_u32 vcc, s{sNONCE}, v{vPOLL}")
    if nd == 2:
        a(f"v_cmp_ne_u32 s[{sP}:{sP+1}], s{sNONCE}, v{vPOLL+1}")
        a(f"s_or_b64 vcc, vcc, s[{sP}:{sP+1}]")
    if lanes is not None:
        a(f"s_and_b64 vcc, vcc, s[{lanes}:{lanes+1}]")
    a(f"s_add_u32 s{sSPIN}, s{sSPIN}, 1")
    a("s_cmp_eq_u64 vcc, 0")
    a(f"s_cbranch_scc1 {dn}")
    if opt.sleep: a(f"s_sleep {opt.sleep}")
    a(f"s_cmp_lt_u32 s{sSPIN}, {opt.spin}")
    a(f"s_cbranch_scc1 {lp}")
    a.label(dn)
    a.vm = []

def flag_store(a, s_index_bytes):
    a(f"v_mov_b32 v{vT}, s{s_index_bytes}")
    a(f"v_mov_b32 v{vT2}, s{sNONCE}")
    a(f"s_mov_b64 s[{sP}:{sP+1}], exec")
    a("s_mov_b64 exec, 1")
    a.vmem(f"buffer_store_dword v{vT2}, v{vT}, {srd(sF)}, 0 offen sc1", "flag")
    a(f"s_mov_b64 exec, s[{sP}:{sP+1}]")

def gelu_pairs(a, regs, tmp, fill=None):
    def each(fn):
        for i, r in enumerate(regs): fn(r, tmp + 2 * i)
    each(lambda r, t: a(f"v_pk_mul_f32 {vr(t,2)}, {vr(r,2)}, {vr(r,2)}"))
    each(lambda r, t: a(f"v_pk_fma_f32 {vr(t,2)}, {vr(t,2)}, s[100:101], {vr(vC0,2)}"))
    each(lambda r, t: a(f"v_pk_mul_f32 {vr(t,2)}, {vr(t,2)}, {vr(r,2)}"))
    if fill: fill()
    each(lambda r, t: (a(f"v_exp_f32 v{t}, v{t}"), a(f"v_exp_f32 v{t+1}, v{t+1}")))
    each(lambda r, t: a(f"v_pk_add_f32 {vr(t,2)}, {vr(t,2)}, 1.0 op_sel_hi:[1,0]"))
    each(lambda r, t: (a(f"v_rcp_f32 v{t}, v{t}"), a(f"v_rcp_f32 v{t+1}, v{t+1}")))
    a("s_nop 0")
    each(lambda r, t: a(f"v_pk_mul_f32 {vr(r,2)}, {vr(r,2)}, {vr(t,2)}"))

def w2_slot(step):
    if step < 8: return sM0B, step * 4096, vTR, step * 4096
    if step < 10: return sUP, (step - 8) * 4096, vTRU, (step - 8) * 4096
    return sM0B, (step - 10) * 4096, vTR, (step - 10) * 4096

def w2_dma(a, step):
    sb, off, _, _ = w2_slot(step)
    dma_step(a, sW2, S * 2, sWB, sROT2, step, 14, sb, off, f"w2_{step}", OPT.w2bits)

def w2_dma_parts(a, step):
    sb, off, _, _ = w2_slot(step)
    def setup():
        a(f"s_add_u32 m0, s{sb}, {off}")
        step_off(a, sOFF, sWB, sROT2, step, 14, 32 * S * 2)
    def one(blk):
        return lambda: a.vmem(f"buffer_load_dwordx4 v{vDM+blk}, {srd(sW2)}, s{sOFF} offen offset:{blk*1024} {OPT.w2bits} lds", f"w2_{step}")
    return [setup] + [one(b) for b in range(4)]

def w2_tr(a, step):
    _, _, vb, off = w2_slot(step)
    tr_step(a, vb, off, step)

def gen(opt):
    global OPT
    OPT = opt
    a = Asm()
    NS = opt.depth + 1
    def ring(slot, t): return vRING + slot * 20 + t * 4
    a.raw(f"; @launch grid=(256,1,1) block=(256,1,1) lds={LDS_BYTES}")
    a.raw('.amdgcn_target "amdgcn-amd-amdhsa--gfx950"')
    a.raw(".text")
    a.raw(f".globl {KN}")
    a.raw(".p2align 8")
    a.raw(f".type {KN},@function")
    a.label(KN)
    a(f"s_cmp_ge_u32 s{sWG}, 256")
    a("s_cbranch_scc1 L_done")
    a("s_load_dwordx16 s[4:19], s[0:1], 0")
    if opt.prof:
        a(f"s_mem{'time' if opt.prof == 2 else 'realtime'} s[{sP}:{sP+1}]")
    if opt.prof:
        for i in range(1, 15): a(f"s_mov_b32 s{sPROF+i}, 0")
    if opt.pad or opt.probe >= 0:
        a("s_memrealtime s[96:97]")
    a(f"v_lshrrev_b32 v{vT}, 6, v{vTID}")
    a(f"v_and_b32 v{vLANE}, 63, v{vTID}")
    a(f"v_readfirstlane_b32 s{sWAVE}, v{vT}")
    a(f"s_and_b32 s{sXCD}, s{sWG}, 7")
    a(f"s_lshr_b32 s{sJ}, s{sWG}, 3")
    if opt.p1 == 2:
        a(f"s_lshr_b32 s{sT1}, s{sXCD}, 1")
        a(f"s_and_b32 s{sT2}, s{sXCD}, 1")
        a(f"s_lshl_b32 s{sT2}, s{sT2}, 2")
        a(f"s_mul_i32 s{sT0}, s{sT1}, 7")
        a(f"s_lshr_b32 s{sFT}, s{sJ}, 2")
        a(f"s_add_u32 s{sFT}, s{sFT}, s{sT0}")
        a(f"s_and_b32 s{sT3}, s{sJ}, 3")
        a(f"s_add_u32 s{sDT1}, s{sT2}, s{sT3}")
        a(f"s_lshl_b32 s{sROT1}, s{sT3}, 2")
        a(f"s_cmp_eq_u32 s{sT1}, 3")
        a(f"s_cselect_b32 s{sJLIM}, 24, 28")
        a(f"s_lshl_b32 s{sT0}, s{sXCD}, 2")
        a(f"s_sub_u32 s{sT0}, s{sT0}, 28")
        a(f"s_lshl_b32 s{sT3}, s{sXCD}, 3")
        a(f"s_sub_u32 s{sT3}, s{sT3}, 48")
        a(f"s_cselect_b32 s{sIDLE}, s{sT0}, s{sT0}")
        a(f"s_cmp_ge_u32 s{sXCD}, 6")
        a(f"s_cselect_b32 s{sIDLE}, s{sT3}, s{sT0}")
        a(f"s_add_u32 s{sIDLE}, s{sIDLE}, s{sJ}")
    else:
        a(f"s_lshl_b32 s{sT0}, s{sXCD}, 2")
        a(f"s_mul_i32 s{sT1}, s{sXCD}, 3")
        a(f"s_add_u32 s{sT1}, s{sT1}, 3")
        a(f"s_cmp_lt_u32 s{sXCD}, 3")
        a(f"s_cselect_b32 s{sT0}, s{sT0}, s{sT1}")
        a(f"s_cselect_b32 s{sJLIM}, 32, 24")
        a(f"s_lshr_b32 s{sFT}, s{sJ}, 3")
        a(f"s_add_u32 s{sFT}, s{sFT}, s{sT0}")
        a(f"s_and_b32 s{sDT1}, s{sJ}, 7")
        a(f"s_lshl_b32 s{sROT1}, s{sDT1}, 1")
        a(f"s_lshl_b32 s{sIDLE}, s{sXCD}, 3")
        a(f"s_add_u32 s{sIDLE}, s{sIDLE}, s{sJ}")
        a(f"s_sub_u32 s{sIDLE}, s{sIDLE}, 48")
    if opt.rota1:
        a(f"s_mul_i32 s{sT0}, s{sFT}, {opt.rota1}")
        a(f"s_add_u32 s{sROT1}, s{sROT1}, s{sT0}")
        a(f"s_and_b32 s{sROT1}, s{sROT1}, 15")
    if opt.p2 == 2:
        a(f"s_lshr_b32 s{sT1}, s{sXCD}, 1")
        a(f"s_and_b32 s{sT2}, s{sXCD}, 1")
        a(f"s_lshl_b32 s{sT2}, s{sT2}, 2")
        a(f"s_lshr_b32 s{sT0}, s{sJ}, 2")
        a(f"s_lshl_b32 s{sST}, s{sT1}, 3")
        a(f"s_add_u32 s{sST}, s{sST}, s{sT0}")
        a(f"s_and_b32 s{sT3}, s{sJ}, 3")
        a(f"s_add_u32 s{sDT2}, s{sT2}, s{sT3}")
        a(f"s_mul_i32 s{sROT2}, s{sT3}, 7")
        a(f"s_lshr_b32 s{sROT2}, s{sROT2}, 1")
    else:
        a(f"s_lshr_b32 s{sT0}, s{sJ}, 3")
        a(f"s_lshl_b32 s{sST}, s{sXCD}, 2")
        a(f"s_add_u32 s{sST}, s{sST}, s{sT0}")
        a(f"s_and_b32 s{sDT2}, s{sJ}, 7")
        a(f"s_mul_i32 s{sROT2}, s{sDT2}, 7")
        a(f"s_lshr_b32 s{sROT2}, s{sROT2}, 2")
    if opt.rota2:
        a(f"s_mul_i32 s{sT0}, s{sST}, {opt.rota2}")
        a(f"s_add_u32 s{sROT2}, s{sROT2}, s{sT0}")
        a(f"s_and_b32 s{sT0}, s{sROT2}, 0xff")
        a(f"s_mul_i32 s{sT0}, s{sROT2}, 18725")
        a(f"s_lshr_b32 s{sT0}, s{sT0}, 18")
        a(f"s_mul_i32 s{sT0}, s{sT0}, 14")
        a(f"s_sub_u32 s{sROT2}, s{sROT2}, s{sT0}")
    if not (opt.rot & 1): a(f"s_mov_b32 s{sROT1}, 0")
    if not (opt.rot & 2): a(f"s_mov_b32 s{sROT2}, 0")
    a(f"s_lshl_b32 s{sM0B}, s{sWAVE}, 15")
    a(f"s_lshl_b32 s{sUP}, s{sWAVE}, 13")
    a(f"s_add_u32 s{sUP}, s{sUP}, 131072")
    def tr_addr(base_sgpr):
        t0, t1, t2 = vX, vX + 1, vX + 2
        a(f"v_lshrrev_b32 v{t0}, 4, v{vLANE}")
        a(f"v_and_b32 v{t1}, 1, v{t0}")
        a(f"v_lshlrev_b32 v{t1}, 2, v{t1}")
        a(f"v_bfe_u32 v{t2}, v{vLANE}, 2, 2")
        a(f"v_add_u32 v{t1}, v{t1}, v{t2}")
        a(f"v_lshrrev_b32 v{t0}, 1, v{t0}")
        a(f"v_lshlrev_b32 v{t0}, 10, v{t0}")
        a(f"v_lshlrev_b32 v{t2}, 7, v{t1}")
        a(f"v_add_u32 v{t0}, v{t0}, v{t2}")
        a(f"v_and_b32 v{t2}, 3, v{vLANE}")
        a(f"v_lshlrev_b32 v{t2}, 3, v{t2}")
        a(f"v_add_u32 v{t0}, v{t0}, v{t2}")
        a(f"v_add_u32 v{t0}, s{base_sgpr}, v{t0}")
        a(f"v_lshrrev_b32 v{t1}, 1, v{t1}")
        for t in range(4):
            a(f"v_xor_b32 v{t2}, {t}, v{t1}")
            a(f"v_lshlrev_b32 v{t2}, 5, v{t2}")
            a(f"v_add_u32 v{vTR+t}, v{t0}, v{t2}")
    def w1_dma(i): dma_step(a, sW1, F * 2, sWB, sROT1, i, 16, sM0B, (i % 8) * 4096, f"w1_{i}", opt.w1bits)
    def w1_stream(first, dp):
        retired = 0
        def retire():
            nonlocal retired
            a.wait_vm(f"w1_{retired}")
            if retired: a("s_waitcnt lgkmcnt(0)")
            tr_step(a, vTR, (retired % 8) * 4096, retired)
            retired += 1
        for i in range(first, 16):
            while retired <= i - dp: retire()
            if i >= 8:
                while retired <= i - 8: retire()
                if retired == i - 7: a("s_waitcnt lgkmcnt(0)")
            w1_dma(i)
        while retired < 16: retire()
        a("s_waitcnt lgkmcnt(0)")
    dma_addr(a, F * 2, sFT)
    a(f"s_mul_i32 s{sWB}, s{sWAVE}, {512*F*2}")
    a(f"s_cmp_ge_u32 s{sWAVE}, 2")
    a("s_cbranch_scc1 L_loader")

    a.c("LayerNorm: wave w normalises rows 32*ks + 16*w + 4*q + (0..3), 16 lanes per row")
    XR, XF, TM = 96, 120, 160
    if opt.prio: a(f"s_setprio {opt.prio}")
    a(f"s_lshr_b32 s{sT0}, s{sWG}, 2")
    a(f"s_and_b32 s{sT1}, s{sWG}, 3")
    a(f"s_lshl_b32 s{sT2}, s{sT0}, 5")
    a(f"s_lshl_b32 s{sT3}, s{sWAVE}, 4")
    a(f"s_add_u32 s{sT2}, s{sT2}, s{sT3}")
    a(f"s_lshl_b32 s{sT3}, s{sT1}, 2")
    a(f"s_add_u32 s{sT2}, s{sT2}, s{sT3}")
    a(f"s_mul_i32 s{sT2}, s{sT2}, 1280")
    a(f"v_lshrrev_b32 v{TM}, 4, v{vLANE}")
    a(f"v_and_b32 v{TM+1}, 15, v{vLANE}")
    a(f"v_mul_u32_u24 v{TM+2}, 1280, v{TM}")
    a(f"v_lshlrev_b32 v{TM+3}, 4, v{TM+1}")
    a(f"v_add_u32 v{TM+2}, v{TM+2}, v{TM+3}")
    a(f"v_mov_b32 v{vT}, 0")
    a("s_waitcnt lgkmcnt(0)")
    if opt.prof: a(f"s_mov_b32 s{sPROF}, s{sP}")
    make_srd(a, sX, 4, S * D * 2)
    for i in range(5):
        a.vmem(f"buffer_load_dwordx4 {vr(XR+4*i,4)}, v{TM+2}, {srd(sX)}, s{sT2} offen offset:{i*256} {opt.xbits}", "x")
    make_srd(a, sD, 16, 256)
    a.vmem(f"buffer_load_dword v{vPOLL}, v{vT}, {srd(sD)}, 0 offen sc1", "nonce")
    make_srd(a, sW1, 6, S * F * 2)
    a(f"s_cmp_ge_u32 s{sJ}, s{sJLIM}")
    a("s_cbranch_scc1 L_ln_now1")
    for i in range(opt.nearly): w1_dma(i)
    a.label("L_ln_now1")
    a("s_barrier")
    make_srd(a, sH, 18, H_BYTES, WS_H)
    make_srd(a, sF, 18, FLAG_BYTES, WS_FLAG)
    a(f"s_mul_i32 s{sSTEP}, s{sT0}, 40960")
    a(f"s_lshl_b32 s{sT1}, s{sT1}, 8")
    a(f"s_add_u32 s{sSTEP}, s{sSTEP}, s{sT1}")
    a(f"s_lshl_b32 s{sT3}, s{sWAVE}, 2")
    a(f"v_add_u32 v{TM+4}, s{sT3}, v{TM}")
    a(f"v_mul_u32_u24 v{TM+4}, {LN_ROW}, v{TM+4}")
    a(f"v_add_u32 v{TM+4}, v{TM+4}, v{TM+3}")
    a(f"v_add_u32 v{TM+4}, {LN_BASE}, v{TM+4}")
    a(f"v_bfe_u32 v{TM+5}, v{vLANE}, 2, 2")
    a(f"v_mul_u32_u24 v{TM+5}, {LN_ROW}, v{TM+5}")
    a(f"s_mul_i32 s{sT3}, s{sWAVE}, 20")
    a(f"v_add_u32 v{TM+6}, s{sT3}, v{TM}")
    a(f"v_lshlrev_b32 v{TM+7}, 5, v{TM+6}")
    a(f"v_add_u32 v{TM+5}, v{TM+5}, v{TM+7}")
    a(f"v_and_b32 v{TM+7}, 3, v{vLANE}")
    a(f"v_lshlrev_b32 v{TM+7}, 3, v{TM+7}")
    a(f"v_add_u32 v{TM+5}, v{TM+5}, v{TM+7}")
    a(f"v_add_u32 v{TM+5}, {LN_BASE}, v{TM+5}")
    a(f"v_lshlrev_b32 v{TM+6}, 10, v{TM+6}")
    a(f"v_add_u32 v{TM+6}, v{TM+6}, v{TM+3}")
    a(f"s_mov_b32 s{sT0}, 0xffff0000")
    a(f"s_cmp_ge_u32 s{sJ}, s{sJLIM}")
    a("s_cbranch_scc1 L_ln_idle")
    a(f"s_waitcnt vmcnt({1 + 4*opt.nearly})")
    a("s_branch L_ln_go")
    a.label("L_ln_idle")
    a("s_waitcnt vmcnt(1)")
    a.label("L_ln_go")
    a.vm = [t for t in a.vm if t != "x"]
    stamp(a, opt, 1)
    for i in range(20):
        a(f"v_lshlrev_b32 v{XF+2*i}, 16, v{XR+i}")
        a(f"v_and_b32 v{XF+2*i+1}, s{sT0}, v{XR+i}")
    SM = TM + 8
    for k in range(4):
        a(f"v_pk_add_f32 {vr(SM+2*k,2)}, {vr(XF+2*k,2)}, {vr(XF+8+2*k,2)}")
    for i in range(8, 20):
        k = i % 4
        a(f"v_pk_add_f32 {vr(SM+2*k,2)}, {vr(SM+2*k,2)}, {vr(XF+2*i,2)}")
    def reduce_row(dst):
        a(f"v_pk_add_f32 {vr(SM,2)}, {vr(SM,2)}, {vr(SM+2,2)}")
        a(f"v_pk_add_f32 {vr(SM+4,2)}, {vr(SM+4,2)}, {vr(SM+6,2)}")
        a(f"v_pk_add_f32 {vr(SM,2)}, {vr(SM,2)}, {vr(SM+4,2)}")
        a(f"v_add_f32 v{dst}, v{SM}, v{SM+1}")
        for rot in (8, 4, 2, 1):
            a("s_nop 1")
            a(f"v_add_f32_dpp v{dst}, v{dst}, v{dst} row_ror:{rot} row_mask:0xf bank_mask:0xf")
    MN = TM + 16
    reduce_row(MN)
    a(f"v_mul_f32 v{MN}, {f2h(1.0/640.0)}, v{MN}")
    a(f"v_mov_b32 v{MN+1}, v{MN}")
    for i in range(20):
        a(f"v_pk_add_f32 {vr(XF+2*i,2)}, {vr(XF+2*i,2)}, {vr(MN,2)} neg_lo:[0,1] neg_hi:[0,1]")
    for k in range(4):
        a(f"v_pk_mul_f32 {vr(SM+2*k,2)}, {vr(XF+2*k,2)}, {vr(XF+2*k,2)}")
    for i in range(4, 20):
        k = i % 4
        a(f"v_pk_fma_f32 {vr(SM+2*k,2)}, {vr(XF+2*i,2)}, {vr(XF+2*i,2)}, {vr(SM+2*k,2)}")
    reduce_row(MN)
    a(f"v_mov_b32 v{MN+1}, {f2h(1e-5)}")
    a(f"v_fmac_f32 v{MN+1}, {f2h(1.0/640.0)}, v{MN}")
    a(f"v_rsq_f32 v{MN}, v{MN+1}")
    a("s_nop 0")
    a(f"v_mov_b32 v{MN+1}, v{MN}")
    for i in range(20):
        a(f"v_pk_mul_f32 {vr(XF+2*i,2)}, {vr(XF+2*i,2)}, {vr(MN,2)}")
    for i in range(20):
        a(f"v_cvt_pk_bf16_f32 v{XR+i}, v{XF+2*i}, v{XF+2*i+1}")
    if opt.lnprof: stamp(a, opt, 4)
    for i in range(5):
        a(f"ds_write_b128 v{TM+4}, {vr(XR+4*i,4)} offset:{i*256}")
    a(f"s_lshl_b32 s{sT0}, s{sWAVE}, 2")
    a(f"s_add_u32 s{sT1}, s{sT0}, {LF_BASE}")
    a(f"s_xor_b32 s{sT0}, s{sT0}, 4")
    a(f"s_add_u32 s{sT0}, s{sT0}, {LF_BASE}")
    a("s_waitcnt lgkmcnt(0)")
    lds_set(a, f"s{sT1}")
    lds_spin(a, opt, f"s{sT0}")
    if opt.lnprof: stamp(a, opt, 5)
    for i in range(5):
        a(f"ds_read_b64_tr_b16 {vr(XF+4*i,2)}, v{TM+5} offset:{i*128}")
        a(f"ds_read_b64_tr_b16 {vr(XF+4*i+2,2)}, v{TM+5} offset:{i*128+4*LN_ROW}")
    for i in range(5):
        a(f"s_waitcnt lgkmcnt({8-2*i})")
        a(f"s_add_u32 s{sT0}, s{sSTEP}, {i*4096}")
        a.vmem(f"buffer_store_dwordx4 {vr(XF+4*i,4)}, v{TM+6}, {srd(sH)}, s{sT0} offen {opt.hbits}", "h")
    stamp(a, opt, 2)
    a("s_waitcnt vmcnt(5)")
    a(f"v_readfirstlane_b32 s{sNONCE}, v{vPOLL}")
    nonce_spin(a, opt)
    a.wait_vm0()
    a(f"s_mul_i32 s{sT0}, s{sWG}, {opt.hstride}")
    a(f"s_lshl_b32 s{sT1}, s{sWAVE}, 2")
    a(f"s_add_u32 s{sT0}, s{sT0}, s{sT1}")
    flag_store(a, sT0)
    a(f"s_lshl_b32 s{sT0}, s{sWAVE}, 2")
    a(f"s_add_u32 s{sT0}, s{sT0}, {LF_BASE + 8}")
    lds_set(a, f"s{sT0}")
    stamp(a, opt, 3)
    if opt.prio: a("s_setprio 0")
    a.ln_done = True
    a("s_branch L_roles_done")

    a.label("L_loader")
    a.vm = []
    a(f"v_lshlrev_b32 v{vX}, 2, v{vLANE}")
    a(f"v_add_u32 v{vX}, {LF_BASE}, v{vX}")
    a(f"v_mov_b32 v{vX+1}, 0")
    a(f"ds_write_b32 v{vX}, v{vX+1}")
    a("s_waitcnt lgkmcnt(0)")
    if opt.prof: a(f"s_mov_b32 s{sPROF}, s{sP}")
    make_srd(a, sW1, 6, S * F * 2)
    make_srd(a, sD, 16, 256)
    a(f"s_cmp_lg_u32 s{sWG}, 0")
    a("s_cbranch_scc1 L_nononce")
    a(f"s_cmp_lg_u32 s{sWAVE}, 3")
    a("s_cbranch_scc1 L_nononce")
    a(f"s_memrealtime s[{sP}:{sP+1}]")
    a("s_waitcnt lgkmcnt(0)")
    a(f"s_or_b32 s{sT0}, s{sP}, 1")
    a(f"v_mov_b32 v{vT2}, s{sT0}")
    a(f"v_mov_b32 v{vT}, 0")
    a(f"s_mov_b64 s[{sP}:{sP+1}], exec")
    a("s_mov_b64 exec, 1")
    a(f"buffer_store_dword v{vT2}, v{vT}, {srd(sD)}, 0 offen sc1")
    a(f"s_mov_b64 exec, s[{sP}:{sP+1}]")
    a.label("L_nononce")
    a(f"s_cmp_ge_u32 s{sJ}, s{sJLIM}")
    a("s_cbranch_scc1 L_loader_idle")
    for i in range(2): w1_dma(i)
    a("s_barrier")
    tr_addr(sM0B)
    if opt.hold:
        lds_spin(a, opt, LF_BASE + 8)
        lds_spin(a, opt, LF_BASE + 12)
    w1_stream(2, opt.dp)
    a(f"s_mov_b32 s{sNONCE}, 0")
    nonce_spin(a, opt)
    a("s_branch L_w1_ready")
    a.label("L_loader_idle")
    a.vm = []
    a("s_barrier")
    if opt.pfwait:
        lds_spin(a, opt, LF_BASE + 8)
        lds_spin(a, opt, LF_BASE + 12)
    if opt.pf == 1:
        make_srd(a, sW2, 10, F * S * 2)
        a(f"s_lshl_b32 s{sT0}, s{sIDLE}, 1")
        a(f"s_add_u32 s{sT0}, s{sT0}, s{sWAVE}")
        a(f"s_sub_u32 s{sT0}, s{sT0}, 2")
        a(f"s_lshl_b32 s{sT0}, s{sT0}, 10")
        a(f"v_lshlrev_b32 v{vX}, 4, v{vLANE}")
        inc = 80 * 1024
        for k in range(87):
            o = vRING + (k % 20) * 4
            a.vmem(f"buffer_load_dwordx4 {vr(o,4)}, v{vX}, {srd(sW2)}, s{sT0} offen {opt.pfbits}", f"pf{k}")
            a(f"s_add_u32 s{sT0}, s{sT0}, {inc}")
            if k >= opt.pfdepth: a.wait_vm(f"pf{k-opt.pfdepth}")
    a(f"s_mov_b32 s{sNONCE}, 0")
    nonce_spin(a, opt)
    a("s_branch L_nogemm1")

    a.label("L_roles_done")
    a.vm = []
    a(f"s_cmp_ge_u32 s{sJ}, s{sJLIM}")
    a("s_cbranch_scc1 L_nogemm1")
    a.vm = []
    tr_addr(sM0B)
    for i in range(opt.nearly): a.vm.append(f"w1_{i}")
    a.vm.append("flag")
    w1_stream(opt.nearly, opt.dpl)

    def common_setup():
        make_srd(a, sH, 18, H_BYTES, WS_H)
        make_srd(a, sF, 18, FLAG_BYTES, WS_FLAG)
        make_srd(a, sB1, 8, F * 2)
        make_srd(a, sW2, 10, F * S * 2)
        make_srd(a, sB2, 12, S * 2)
        make_srd(a, sO, 14, S * D * 2)
        make_srd(a, sG, 18, G_BYTES, WS_G)
        a(f"v_lshrrev_b32 v{vT}, 4, v{vLANE}")
        a(f"v_lshlrev_b32 v{vT}, 3, v{vT}")
        a(f"s_and_b32 s{sT0}, s{sWAVE}, 1")
        a(f"s_lshl_b32 s{sT0}, s{sT0}, 6")
        a(f"s_lshl_b32 s{sT1}, s{sFT}, 7")
        a(f"s_add_u32 s{sT0}, s{sT0}, s{sT1}")
        a.vmem(f"buffer_load_dwordx2 {vr(vB1,2)}, v{vT}, {srd(sB1)}, s{sT0} offen", "b")
        a.vmem(f"buffer_load_dwordx2 {vr(vB1+2,2)}, v{vT}, {srd(sB1)}, s{sT0} offen offset:32", "b")
        a(f"v_and_b32 v{vT}, 15, v{vLANE}")
        a(f"v_lshlrev_b32 v{vT}, 1, v{vT}")
        a(f"s_lshl_b32 s{sT0}, s{sST}, 7")
        a(f"s_lshl_b32 s{sT1}, s{sWAVE}, 5")
        a(f"s_add_u32 s{sT0}, s{sT0}, s{sT1}")
        a.vmem(f"buffer_load_ushort v{vB2}, v{vT}, {srd(sB2)}, s{sT0} offen", "b")
        dma_addr(a, S * 2, sST)
        a(f"s_mul_i32 s{sWB}, s{sWAVE}, {448*S*2}")
        tr_addr(sM0B)
        a(f"s_sub_u32 s{sT0}, s{sUP}, s{sM0B}")
        for t in range(4):
            a(f"v_add_u32 v{vTRU+t}, s{sT0}, v{vTR+t}")
        a(f"v_lshlrev_b32 v{vL0}, 4, v{vLANE}")
        a(f"v_add_u32 v{vL1}, 65536, v{vL0}")
        a(f"v_add_u32 v{vL2}, 131072, v{vL0}")

    a.label("L_w1_ready")
    a.vm = []
    stamp(a, opt, 4)
    common_setup()
    a(f"s_mul_i32 s{sT0}, s{sDT1}, 5120")
    a(f"v_add_u32 v{vA}, s{sT0}, v{vL0}")
    a(f"v_add_u32 v{vA2}, 4096, v{vA}")
    a(f"s_lshl_b32 s{sT0}, s{sWAVE}, 6")
    a(f"v_add_u32 v{vX}, s{sT0}, v{vLANE}")
    a(f"v_mul_u32_u24 v{vX}, {opt.hstride}, v{vX}")
    poll(a, opt, vX, 2, None)
    a("s_barrier")
    stamp(a, opt, 5)

    def a_loads(srdn, step, nsteps, s_rot):
        slot = step % NS
        step_off(a, sOFF, sSTEP, s_rot, step, nsteps, 40960)
        return [f"buffer_load_dwordx4 {vr(ring(slot,t),4)}, v{vA if t < 4 else vA2}, {srd(srdn)}, s{sOFF} offen offset:{(t*1024) if t < 4 else 0} sc1" for t in range(5)]

    def main_loop(srdn, nsteps, s_rot, tagp, mfma, stamp0, tail, nuni):
        for st in range(opt.depth):
            for o, ins in enumerate(a_loads(srdn, st, nsteps, s_rot)): a.vmem(ins, f"{tagp}{st}_{o}")
        for st in range(nuni):
            nx = st + opt.depth
            nxt = a_loads(srdn, nx, nsteps, s_rot) if nx < nsteps else None
            a.wait_vm(f"{tagp}{st}_4")
            if st == 0 and stamp0 is not None: stamp(a, opt, stamp0)
            for o in range(5):
                if nxt: a.vmem(nxt[o], f"{tagp}{nx}_{o}")
                for i in range(4): mfma(st, o, i, st % NS)
                if tail: tail(st, o)

    def tile_tail(nsteps, tagp, first, last, frag_of, mfma_tile, write_tile, extra):
        ic = [0]
        done_at = {}
        queue = []
        extra = list(extra)
        def emit(fn):
            fn(); ic[0] += 1
        def filler():
            if queue and ic[0] - done_at[queue[0]] >= 9:
                t = queue.pop(0); emit(lambda: write_tile(t)); return
            if extra: emit(extra.pop(0))
        tiles = list(first) + list(last)
        for i in range(0, len(tiles), 2):
            pair = tiles[i:i + 2]
            for t in pair:
                for st in (nsteps - 2, nsteps - 1): a.wait_vm(f"{tagp}{st}_{frag_of(t)}")
            for st in (nsteps - 2, nsteps - 1):
                for t in pair:
                    emit(lambda: mfma_tile(st, t))
                    if st == nsteps - 1:
                        done_at[t] = ic[0]
                        if t in first: queue.append(t)
                    filler()
        while extra: emit(extra.pop(0))
        while queue:
            while ic[0] - done_at[queue[0]] < 9: emit(lambda: a("s_nop 0"))
            t = queue.pop(0); emit(lambda: write_tile(t))

    a(f"s_mul_i32 s{sSTEP}, s{sWAVE}, {16*40960}")
    def mfma1(st, nt, mt, slot):
        c = "0" if st == 0 else vr(acc1(mt, nt), 4)
        a(f"v_mfma_f32_16x16x32_bf16 {vr(acc1(mt,nt),4)}, {ar(wfrag(st,mt),4)}, {vr(ring(slot,nt),4)}, {c}")
    parts13 = w2_dma_parts(a, 0) if opt.t13 else []
    def tail1(st, o):
        if st == 13 and parts13:
            if o == 0: parts13[0]()
            else: parts13[o]()
    main_loop(sH, 16, sROT1, "h", mfma1, 6, tail1, 14)

    a(f"s_mov_b32 s100, {f2h(C1)}"); a(f"s_mov_b32 s101, {f2h(C1)}")
    a(f"v_mov_b32 v{vC0}, {f2h(C0)}"); a(f"v_mov_b32 v{vC0+1}, {f2h(C0)}")
    def lds_ref(addr):
        if addr < 65536: return vL0, addr
        if addr < 131072: return vL1, addr - 65536
        return vL2, addr - 131072
    def owner1(p, nt): return p + (0 if nt < 3 else 2)
    units = [(p, nt) for p in range(2) for nt in range(5)]
    def red1_addr(src, u):
        k = [x for x in units if owner1(*x) != src].index(u)
        return src * 32768 + 24576 + k * 2048 if k < 4 else 131072 + src * 8192 + (k - 4) * 2048
    saved_vm = list(a.vm)
    for w in range(4):
        if w < 3:
            a(f"s_cmp_lg_u32 s{sWAVE}, {w}")
            a(f"s_cbranch_scc1 L_ep1_{w+1}")
        a.vm = list(saved_vm)
        nis = [1 if opt.t13 else 0]
        def more(n, limit):
            for _ in range(n):
                if nis[0] < limit:
                    w2_dma(a, nis[0]); nis[0] += 1
        tl = [(2 * p + hf, nt) for nt in range(5) for p in range(2) for hf in range(2)]
        first = [t for t in tl if owner1(t[0] // 2, t[1]) != w]
        last = [t for t in tl if owner1(t[0] // 2, t[1]) == w]
        def wr1(t):
            vb, off = lds_ref(red1_addr(w, (t[0] // 2, t[1])) + (t[0] & 1) * 1024)
            a(f"ds_write_b128 v{vb}, {vr(acc1(*t),4)} offset:{off}")
        extra = []
        for _ in range(opt.tt):
            extra += w2_dma_parts(a, nis[0]); nis[0] += 1
        tile_tail(16, "h", first, last, lambda t: t[1], lambda st, t: mfma1(st, t[1], t[0], st % NS), wr1, extra)
        stamp(a, opt, 7)
        more(opt.e1, 6)
        a("s_waitcnt lgkmcnt(0)")
        a("s_barrier")
        own_u = [u for u in units if owner1(*u) == w]
        RT = vRING
        n = 0
        for u in own_u:
            for src in range(4):
                if src == w: continue
                for hf in range(2):
                    vb, off = lds_ref(red1_addr(src, u) + hf * 1024)
                    a(f"ds_read_b128 {vr(RT + n*4, 4)}, v{vb} offset:{off}")
                    n += 1
        a.wait_vm("b")
        for i in range(4):
            a(f"v_lshlrev_b32 v{BI+2*i}, 16, v{vB1+i}")
            a(f"v_and_b32 v{BI+2*i+1}, 0xffff0000, v{vB1+i}")
        for u in own_u:
            p, nt = u
            for hf in range(2):
                r = acc1(2*p+hf, nt)
                a(f"v_pk_add_f32 {vr(r,2)}, {vr(r,2)}, {vr(BI+4*hf,2)}")
                a(f"v_pk_add_f32 {vr(r+2,2)}, {vr(r+2,2)}, {vr(BI+4*hf+2,2)}")
        n = 0
        tot = len(own_u) * 6
        for u in own_u:
            p, nt = u
            for si in range(3):
                for hf in range(2):
                    a(f"s_waitcnt lgkmcnt({min(15, tot - n - 1)})")
                    r = acc1(2*p+hf, nt)
                    a(f"v_pk_add_f32 {vr(r,2)}, {vr(r,2)}, {vr(RT+n*4,2)}")
                    a(f"v_pk_add_f32 {vr(r+2,2)}, {vr(r+2,2)}, {vr(RT+n*4+2,2)}")
                    n += 1
        a("s_barrier")
        regs = []
        for u in own_u:
            p, nt = u
            for hf in range(2):
                r = acc1(2*p+hf, nt)
                regs += [r, r + 2]
        more(opt.e2, 10)
        gelu_pairs(a, regs, RT, fill=lambda: more(opt.e3, 10))
        a(f"s_lshl_b32 s{sT0}, s{sFT}, 1")
        a(f"s_add_u32 s{sT0}, s{sT0}, {w & 1}")
        a(f"s_mul_i32 s{sT0}, s{sT0}, 40960")
        a(f"s_mul_i32 s{sT1}, s{sDT1}, 5120")
        a(f"s_add_u32 s{sT0}, s{sT0}, s{sT1}")
        for i, u in enumerate(own_u):
            p, nt = u
            o = RT + 64 + 4 * i
            r0, r1 = acc1(2*p, nt), acc1(2*p+1, nt)
            a(f"v_cvt_pk_bf16_f32 v{o}, v{r0}, v{r0+1}")
            a(f"v_cvt_pk_bf16_f32 v{o+1}, v{r0+2}, v{r0+3}")
            a(f"v_cvt_pk_bf16_f32 v{o+2}, v{r1}, v{r1+1}")
            a(f"v_cvt_pk_bf16_f32 v{o+3}, v{r1+2}, v{r1+3}")
            a(f"s_add_u32 s{sT1}, s{sT0}, {nt*1024}")
            a.vmem(f"buffer_store_dwordx4 {vr(o,4)}, v{vL0}, {srd(sG)}, s{sT1} offen sc1", "g")
        stamp(a, opt, 8)
        more(opt.nb, 10)
        a.wait_vm("w2_3")
        if nis[0] >= 4:
            for st in range(4):
                w2_tr(a, st)
                if st % 2 == 1: a("s_waitcnt lgkmcnt(0)")
        if nis[0] == 10 and opt.nb2:
            for st in range(10, 10 + opt.nb2): w2_dma(a, st)
            nis[0] += opt.nb2
        a.wait_vm("g")
        a(f"s_lshl_b32 s{sT0}, s{sDT1}, 5")
        a(f"s_add_u32 s{sT0}, s{sT0}, s{sFT}")
        a(f"s_mul_i32 s{sT0}, s{sT0}, {opt.gstride}")
        a(f"s_add_u32 s{sT0}, s{sT0}, {FLAG_G + 4*w}")
        flag_store(a, sT0)
        stamp(a, opt, 9)
        assert nis[0] >= 4
        more(10, 10)
        more(4, 14)
        for st in range(4, 10):
            a.wait_vm(f"w2_{st}")
            w2_tr(a, st)
            if st % 2 == 1: a("s_waitcnt lgkmcnt(0)")
        a("s_branch L_pre2")
        if w < 3: a.label(f"L_ep1_{w+1}")

    a.label("L_nogemm1")
    a.vm = []
    common_setup()
    if opt.pf == 2:
        assert opt.p1 == 2 and opt.p2 == 1
        a(f"s_cmp_lt_u32 s{sJ}, 28")
        a("s_cbranch_scc1 L_nopf")
        a(f"s_sub_u32 s{sT0}, s{sJ}, 28")
        a(f"s_lshl_b32 s{sT0}, s{sT0}, 2")
        a(f"s_add_u32 s{sT0}, s{sT0}, s{sWAVE}")
        a(f"s_lshl_b32 s{sT0}, s{sT0}, 13")
        a(f"s_lshl_b32 s{sT1}, s{sXCD}, 9")
        a(f"s_add_u32 s{sT0}, s{sT0}, s{sT1}")
        a(f"v_lshrrev_b32 v{vX}, 5, v{vLANE}")
        a(f"v_lshlrev_b32 v{vX}, 12, v{vX}")
        a(f"v_and_b32 v{vX+1}, 31, v{vLANE}")
        a(f"v_lshlrev_b32 v{vX+1}, 4, v{vX+1}")
        a(f"v_add_u32 v{vX}, v{vX}, v{vX+1}")
        keep = list(a.vm)
        for k in range(54):
            o = vRING + (k % 16) * 4
            a.vmem(f"buffer_load_dwordx4 {vr(o,4)}, v{vX}, {srd(sW2)}, s{sT0} offen", f"pf{k}")
            a(f"s_add_u32 s{sT0}, s{sT0}, {16*8192}")
            if k >= opt.pfdepth: a.wait_vm(f"pf{k-opt.pfdepth}")
        a.wait_vm0()
        a.label("L_nopf")
        a.vm = keep
    for st in range(10): w2_dma(a, st)
    for st in range(4):
        a.wait_vm(f"w2_{st}")
        w2_tr(a, st)
        if st % 2 == 1: a("s_waitcnt lgkmcnt(0)")
    for st in range(10, 14): w2_dma(a, st)
    for st in range(4, 10):
        a.wait_vm(f"w2_{st}")
        w2_tr(a, st)
        if st % 2 == 1: a("s_waitcnt lgkmcnt(0)")

    a.label("L_pre2")
    a.wait_vm0()
    a("s_waitcnt lgkmcnt(0)")
    for st in range(10, 14):
        w2_tr(a, st)
        if st % 2 == 1: a("s_waitcnt lgkmcnt(0)")
    stamp(a, opt, 10)
    a(f"s_mul_i32 s{sT0}, s{sDT2}, 5120")
    a(f"v_add_u32 v{vA}, s{sT0}, v{vL0}")
    a(f"v_add_u32 v{vA2}, 4096, v{vA}")
    a(f"s_lshl_b32 s{sT0}, s{sDT2}, 5")
    a(f"s_mul_i32 s{sT1}, s{sWAVE}, 7")
    a(f"s_add_u32 s{sT0}, s{sT0}, s{sT1}")
    a(f"s_mul_i32 s{sT0}, s{sT0}, {opt.gstride}")
    a(f"s_add_u32 s{sT0}, s{sT0}, {FLAG_G}")
    a(f"v_lshrrev_b32 v{vX}, 2, v{vLANE}")
    a(f"v_mul_u32_u24 v{vX}, {opt.gstride}, v{vX}")
    a(f"v_and_b32 v{vT}, 3, v{vLANE}")
    a(f"v_lshlrev_b32 v{vT}, 2, v{vT}")
    a(f"v_add_u32 v{vX}, v{vX}, v{vT}")
    a(f"v_add_u32 v{vX}, s{sT0}, v{vX}")
    a(f"s_cmp_eq_u32 s{sWAVE}, 3")
    a(f"s_mov_b32 s{sP+3}, 0xffffff")
    a(f"s_cselect_b32 s{sP+2}, s{sP+3}, 0xfffffff")
    a(f"s_mov_b32 s{sP+3}, 0")
    poll(a, opt, vX, 1, sP + 2)
    stamp(a, opt, 11)
    a(f"s_mul_i32 s{sSTEP}, s{sWAVE}, {14*40960}")
    def mfma2(st, mt, nt, slot):
        c = "0" if st == 0 else vr(acc2(mt, nt), 4)
        a(f"v_mfma_f32_16x16x32_bf16 {vr(acc2(mt,nt),4)}, {vr(ring(slot,mt),4)}, {ar(wfrag(st,nt),4)}, {c}")
    main_loop(sG, 14, sROT2, "g", mfma2, 12, None, 12)
    saved_vm2 = list(a.vm)
    a(f"v_and_b32 v{vT}, 15, v{vLANE}")
    a(f"s_lshl_b32 s{sT0}, s{sWAVE}, 4")
    a(f"v_add_u32 v{vT}, s{sT0}, v{vT}")
    a(f"v_mul_u32_u24 v{vA}, 1280, v{vT}")
    a(f"v_lshrrev_b32 v{vT}, 4, v{vLANE}")
    a(f"v_lshlrev_b32 v{vT}, 3, v{vT}")
    a(f"v_add_u32 v{vA}, v{vA}, v{vT}")
    a(f"s_mul_i32 s{sT0}, s{sST}, {64*1280}")
    a(f"s_mul_i32 s{sT1}, s{sDT2}, 160")
    a(f"s_add_u32 s{sOFF}, s{sT0}, s{sT1}")
    a(f"v_lshlrev_b32 v{vB2}, 16, v{vB2}")
    def red2_addr(src, nt, mt):
        k = [x for x in range(4) if x != src].index(nt)
        return src * 32768 + (k * 5 + mt) * 1024
    for w in range(4):
        if w < 3:
            a(f"s_cmp_lg_u32 s{sWAVE}, {w}")
            a(f"s_cbranch_scc1 L_ep2_{w+1}")
        a.vm = list(saved_vm2)
        tl = [(mt, nt) for mt in range(5) for nt in range(4)]
        def wr2(t):
            vb, off = lds_ref(red2_addr(w, t[1], t[0]))
            a(f"ds_write_b128 v{vb}, {vr(acc2(*t),4)} offset:{off}")
        tile_tail(14, "g", [t for t in tl if t[1] != w], [t for t in tl if t[1] == w], lambda t: t[0],
                  lambda st, t: mfma2(st, t[0], t[1], st % NS), wr2, [])
        stamp(a, opt, 13)
        a("s_waitcnt lgkmcnt(0)")
        a("s_barrier")
        RT = vRING
        n = 0
        for mt in range(5):
            for src in range(4):
                if src == w: continue
                vb, off = lds_ref(red2_addr(src, w, mt))
                a(f"ds_read_b128 {vr(RT+n*4,4)}, v{vb} offset:{off}")
                n += 1
        n = 0
        for mt in range(5):
            r = acc2(mt, w)
            for si in range(3):
                a(f"s_waitcnt lgkmcnt({14 - n})")
                a(f"v_pk_add_f32 {vr(r,2)}, {vr(r,2)}, {vr(RT+n*4,2)}")
                a(f"v_pk_add_f32 {vr(r+2,2)}, {vr(r+2,2)}, {vr(RT+n*4+2,2)}")
                n += 1
            for k in range(4):
                a(f"v_add_f32 v{r+k}, v{r+k}, v{vB2}")
            o = RT + 64 + 2 * mt
            a(f"v_cvt_pk_bf16_f32 v{o}, v{r}, v{r+1}")
            a(f"v_cvt_pk_bf16_f32 v{o+1}, v{r+2}, v{r+3}")
            a(f"buffer_store_dwordx2 {vr(o,2)}, v{vA}, {srd(sO)}, s{sOFF} offen offset:{mt*32} {opt.obits}")
        a("s_branch L_fin")
        if w < 3: a.label(f"L_ep2_{w+1}")
    a.label("L_fin")
    if opt.probe >= 0:
        if opt.probe == 14:
            a("s_waitcnt vmcnt(0)")
            stamp(a, opt, 14)
        a(f"s_cmp_lg_u32 s{sWG}, {opt.probewg}")
        a("s_cbranch_scc1 L_done")
        a(f"s_cmp_lg_u32 s{sWAVE}, {opt.probew}")
        a("s_cbranch_scc1 L_done")
        a(f"s_sub_u32 s{sT1}, s{sPROF+1}, s96")
        a(f"s_lshl_b32 s{sT1}, s{sT1}, 2")
        a(f"s_add_u32 s{sT1}, s{sT1}, 4000")
        a.label("L_probe")
        a(f"s_memrealtime s[{sP}:{sP+1}]")
        a("s_waitcnt lgkmcnt(0)")
        a(f"s_sub_u32 s{sT0}, s{sP}, s96")
        a(f"s_cmp_lt_u32 s{sT0}, s{sT1}")
        a("s_cbranch_scc1 L_probe")
    if opt.pad:
        a.label("L_pad")
        a(f"s_memrealtime s[{sP}:{sP+1}]")
        a("s_waitcnt lgkmcnt(0)")
        a(f"s_sub_u32 s{sT0}, s{sP}, s96")
        a(f"s_cmp_lt_u32 s{sT0}, {opt.pad}")
        a("s_cbranch_scc1 L_pad")
    if opt.prof:
        a("s_waitcnt vmcnt(0)")
        stamp(a, opt, 14)
        make_srd(a, sX, 18, 65536, WS_PROF)
        a(f"s_lshl_b32 s{sT0}, s{sWG}, 2")
        a(f"s_add_u32 s{sT0}, s{sT0}, s{sWAVE}")
        a(f"s_lshl_b32 s{sT0}, s{sT0}, 6")
        a(f"v_mov_b32 v{vT}, s{sT0}")
        a("s_mov_b64 exec, 1")
        for i in range(15):
            a(f"v_mov_b32 v100, s{sPROF+i}")
            a(f"buffer_store_dword v100, v{vT}, {srd(sX)}, 0 offen offset:{4*i}")
            a("s_nop 1")
        a("s_waitcnt vmcnt(0)")
    a.label("L_done")
    a("s_endpgm")
    a.raw('.section .rodata,"a"')
    a.raw(".p2align 6")
    a.raw(f".amdhsa_kernel {KN}")
    for l in ["next_free_vgpr 512", "next_free_sgpr 102", "accum_offset 256", "group_segment_fixed_size 0",
              "kernarg_size 64", "user_sgpr_count 2", "user_sgpr_kernarg_segment_ptr 1",
              "system_sgpr_workgroup_id_x 1", "float_denorm_mode_32 3"]:
        a.raw(f"  .amdhsa_{l}")
    a.raw(".end_amdhsa_kernel")
    return "\n".join(a.L) + "\n"

def parse(argv=None):
    ap = argparse.ArgumentParser()
    ap.add_argument("-o", default="standalone__mixer_token_mlp__prompt.s")
    ap.add_argument("--prof", type=int, default=0)
    ap.add_argument("--rot", type=int, default=2)
    ap.add_argument("--spin", type=int, default=20000)
    ap.add_argument("--sleep", type=int, default=8)
    ap.add_argument("--depth", type=int, default=3)
    ap.add_argument("--lnprof", type=int, default=0)
    ap.add_argument("--hbits", default="sc1")
    ap.add_argument("--pfwait", type=int, default=1)
    ap.add_argument("--hold", type=int, default=0)
    ap.add_argument("--probe", type=int, default=-1)
    ap.add_argument("--probewg", type=int, default=100)
    ap.add_argument("--probew", type=int, default=2)
    ap.add_argument("--t13", type=int, default=1)
    ap.add_argument("--tt", type=int, default=2)
    ap.add_argument("--e2", type=int, default=0)
    ap.add_argument("--e3", type=int, default=0)
    ap.add_argument("--nb2", type=int, default=0)
    ap.add_argument("--e1", type=int, default=1)
    ap.add_argument("--nb", type=int, default=2)
    ap.add_argument("--nearly", type=int, default=2)
    ap.add_argument("--dpl", type=int, default=5)
    ap.add_argument("--dp", type=int, default=3)
    ap.add_argument("--p1", type=int, default=1)
    ap.add_argument("--p2", type=int, default=1)
    ap.add_argument("--rota1", type=int, default=0)
    ap.add_argument("--rota2", type=int, default=0)
    ap.add_argument("--xbits", default="")
    ap.add_argument("--w1bits", default="")
    ap.add_argument("--w2bits", default="")
    ap.add_argument("--pfbits", default="")
    ap.add_argument("--pfdepth", type=int, default=8)
    ap.add_argument("--prio", type=int, default=3)
    ap.add_argument("--delay", type=int, default=0)
    ap.add_argument("--hstride", type=int, default=8)
    ap.add_argument("--gstride", type=int, default=256)
    ap.add_argument("--pf", type=int, default=0)
    ap.add_argument("--pad", type=int, default=0)
    ap.add_argument("--obits", default="sc1")
    return ap.parse_args(argv)

if __name__ == "__main__":
    opt = parse()
    open(opt.o, "w").write(gen(opt))
```

```python
import argparse, struct

S, D, F = 2048, 640, 1728
KN = "standalone__mixer_token_mlp__prompt_kernel"

WS_H = 0
H_BYTES = 64 * 40 * 1024
WS_G = 0x300000
G_BYTES = 54 * 40 * 1024
WS_FLAG = 0x600000
FLAG_H = 0
FLAG_G = 0x10000
FLAG_BYTES = 0x40000
WS_PROF = 0x700000

LDS_BYTES = 163840
LN_BASE = 131072
LN_ROW = 1344
LF_BASE = 141824
P0_BASE = [0, 49152, 98304, 122880]

sWG = 2
sX, sW1, sW2, sH, sG, sO, sF, sB1, sB2, sD = 20, 24, 28, 32, 36, 40, 44, 48, 52, 56
sWAVE, sXCD, sJ, sFT, sDT1, sST, sDT2, sNONCE = 60, 61, 62, 63, 64, 65, 66, 67
sT0, sT1, sT2, sT3, sT4, sT5 = 68, 69, 70, 71, 72, 73
sROT1, sROT2, sSTEP, sOFF = 74, 75, 76, 77
sM0B, sSPIN = 78, 79
sP = 80
sPROF = 84
sUP = 99
sJLIM, sIDLE = 100, 101
sWB = 3

vTID, vLANE = 0, 1
vTR = 2
vA, vA2, vDMA, vT2 = 6, 7, 8, 9
vB1 = 10
vB2, vT = 14, 15
vACC = 16
vRING = 96
vTRU = 176
vL0, vL1, vL2 = 180, 181, 182
vC0 = 184
BI = 186
vPOLL = 194
vX = 196
vDM = 200

def srd(n): return f"s[{n}:{n+3}]"
def vr(n, c=1): return f"v{n}" if c == 1 else f"v[{n}:{n+c-1}]"
def ar(n, c=1): return f"a{n}" if c == 1 else f"a[{n}:{n+c-1}]"
def f2h(x): return "0x%08x" % struct.unpack("<I", struct.pack("<f", x))[0]
C0 = -2.0 * 0.7978845608028654 * 1.4426950408889634
C1 = C0 * 0.044715

class Asm:
    def __init__(self):
        self.L = []; self.vm = []; self.uid = 0
    def __call__(self, s): self.L.append("    " + s)
    def label(self, s): self.L.append(s + ":")
    def raw(self, s): self.L.append(s)
    def c(self, s): self.L.append("    ; " + s)
    def vmem(self, s, tag):
        self(s); self.vm.append(tag)
    def wait_vm(self, tag):
        hits = [i for i, t in enumerate(self.vm) if t == tag]
        if not hits: return
        n = len(self.vm) - 1 - hits[-1]
        self(f"s_waitcnt vmcnt({min(n, 63)})")
        self.vm = self.vm[hits[-1] + 1:]
    def wait_vm0(self):
        self("s_waitcnt vmcnt(0)"); self.vm = []
    def newlabel(self, p):
        self.uid += 1
        return f"L_{p}_{self.uid}"

def acc1(mt, nt): return vACC + (mt * 5 + nt) * 4
def acc2(mt, nt): return vACC + (mt * 4 + nt) * 4
def wfrag(step, t): return step * 16 + t * 4

def stamp(a, opt, idx, force=False):
    if opt.probe >= 0:
        ins = "s_memtime" if opt.probecyc else "s_memrealtime"
        if idx == opt.probe:
            a(f"{ins} s[{sP}:{sP+1}]")
            a("s_waitcnt lgkmcnt(0)")
            a(f"s_mov_b32 s{sPROF+1}, s{sP}")
        if idx == opt.probe0:
            a(f"{ins} s[{sP}:{sP+1}]")
            a("s_waitcnt lgkmcnt(0)")
            a(f"s_mov_b32 s{sPROF+2}, s{sP}")
        return
    if opt.lnprof and idx in (4, 5) and getattr(a, "ln_done", False): return
    if opt.prof:
        a(f"s_mem{'time' if opt.prof == 2 else 'realtime'} s[{sP}:{sP+1}]")
        a("s_waitcnt lgkmcnt(0)")
        a(f"s_mov_b32 s{sPROF+idx}, s{sP}")

def make_srd(a, n, lo, size, add=0):
    if add:
        a(f"s_add_u32 s{n}, s{lo}, {add}")
        a(f"s_addc_u32 s{n+1}, s{lo+1}, 0")
        a(f"s_and_b32 s{n+1}, s{n+1}, 0xffff")
    else:
        a(f"s_mov_b32 s{n}, s{lo}")
        a(f"s_and_b32 s{n+1}, s{lo+1}, 0xffff")
    a(f"s_mov_b32 s{n+2}, {size}")
    a(f"s_mov_b32 s{n+3}, 0x20000")

def nonce_spin(a, opt):
    lp = a.newlabel("nonce"); dn = a.newlabel("nonced")
    a(f"s_cmp_lg_u32 s{sNONCE}, 0")
    a(f"s_cbranch_scc1 {dn}")
    a(f"s_mov_b32 s{sSPIN}, 0")
    a(f"v_mov_b32 v{vT}, 0")
    a.label(lp)
    a(f"buffer_load_dword v{vT2}, v{vT}, {srd(sD)}, 0 offen sc1")
    a("s_waitcnt vmcnt(0)")
    a(f"v_readfirstlane_b32 s{sNONCE}, v{vT2}")
    a(f"s_add_u32 s{sSPIN}, s{sSPIN}, 1")
    a(f"s_cmp_lg_u32 s{sNONCE}, 0")
    a(f"s_cbranch_scc1 {dn}")
    a(f"s_cmp_lt_u32 s{sSPIN}, {opt.spin}")
    a(f"s_cbranch_scc1 {lp}")
    a.label(dn)

def lds_set(a, addr_sgpr_or_imm):
    a(f"v_mov_b32 v{vT}, {addr_sgpr_or_imm}")
    a(f"v_mov_b32 v{vT2}, 1")
    a(f"s_mov_b64 s[{sP}:{sP+1}], exec")
    a("s_mov_b64 exec, 1")
    a(f"ds_write_b32 v{vT}, v{vT2}")
    a(f"s_mov_b64 exec, s[{sP}:{sP+1}]")

def lds_spin(a, opt, addr):
    lp = a.newlabel("lspin"); dn = a.newlabel("lspun")
    a(f"v_mov_b32 v{vT}, {addr}")
    a(f"s_mov_b32 s{sSPIN}, 0")
    a.label(lp)
    a(f"ds_read_b32 v{vT2}, v{vT}")
    a("s_waitcnt lgkmcnt(0)")
    a(f"v_readfirstlane_b32 s{sP}, v{vT2}")
    a(f"s_add_u32 s{sSPIN}, s{sSPIN}, 1")
    a(f"s_cmp_lg_u32 s{sP}, 0")
    a(f"s_cbranch_scc1 {dn}")
    a(f"s_cmp_lt_u32 s{sSPIN}, {opt.spin * 8}")
    a(f"s_cbranch_scc1 {lp}")
    a.label(dn)

def dma_addr(a, stride, s_tile):
    a(f"v_lshrrev_b32 v{vT}, 3, v{vLANE}")
    a(f"v_lshrrev_b32 v{vT2}, 1, v{vT}")
    a(f"v_lshlrev_b32 v{vT2}, 1, v{vT2}")
    a(f"v_and_b32 v{vDM}, 7, v{vLANE}")
    a(f"v_xor_b32 v{vDM}, v{vDM}, v{vT2}")
    a(f"v_lshlrev_b32 v{vDM}, 4, v{vDM}")
    a(f"v_mul_u32_u24 v{vT}, {stride}, v{vT}")
    a(f"v_add_u32 v{vDM}, v{vDM}, v{vT}")
    a(f"s_lshl_b32 s{sT0}, s{s_tile}, 7")
    a(f"v_add_u32 v{vDM}, s{sT0}, v{vDM}")
    for b in range(1, 4):
        a(f"v_add_u32 v{vDM+b}, {b*(8*stride-1024)}, v{vDM}")

def step_off(a, dst, s_base, s_rot, i, nsteps, bytes_per_step):
    a(f"s_add_u32 s{sT4}, s{s_rot}, {i}")
    a(f"s_cmp_ge_u32 s{sT4}, {nsteps}")
    a(f"s_cselect_b32 s{dst}, {nsteps}, 0")
    a(f"s_sub_u32 s{sT4}, s{sT4}, s{dst}")
    a(f"s_mul_i32 s{sT4}, s{sT4}, {bytes_per_step}")
    a(f"s_add_u32 s{dst}, s{sT4}, s{s_base}")

def dma_step(a, srdn, stride, s_rowbase, s_rot, step, nsteps, s_lds, lds_off, tag, bits=""):
    a(f"s_add_u32 m0, s{s_lds}, {lds_off}")
    step_off(a, sOFF, s_rowbase, s_rot, step, nsteps, 32 * stride)
    for blk in range(4):
        a.vmem(f"buffer_load_dwordx4 v{vDM+blk}, {srd(srdn)}, s{sOFF} offen offset:{blk*1024} {bits} lds", tag)

def tr_step(a, vbase, off, step):
    for t in range(4):
        w = wfrag(step, t)
        a(f"ds_read_b64_tr_b16 {ar(w,2)}, v{vbase+t} offset:{off}")
        a(f"ds_read_b64_tr_b16 {ar(w+2,2)}, v{vbase+t} offset:{off+2048}")

def poll(a, opt, vaddr, nd, lanes):
    lp = a.newlabel("poll"); dn = a.newlabel("polled")
    a(f"s_mov_b32 s{sSPIN}, 0")
    a.label(lp)
    ld = {1: "dword", 2: "dwordx2"}[nd]
    a(f"buffer_load_{ld} {vr(vPOLL, nd)}, v{vaddr}, {srd(sF)}, 0 offen sc1")
    a("s_waitcnt vmcnt(0)")
    a(f"v_cmp_ne_u32 vcc, s{sNONCE}, v{vPOLL}")
    if nd == 2:
        a(f"v_cmp_ne_u32 s[{sP}:{sP+1}], s{sNONCE}, v{vPOLL+1}")
        a(f"s_or_b64 vcc, vcc, s[{sP}:{sP+1}]")
    if lanes is not None:
        a(f"s_and_b64 vcc, vcc, s[{lanes}:{lanes+1}]")
    a(f"s_add_u32 s{sSPIN}, s{sSPIN}, 1")
    a("s_cmp_eq_u64 vcc, 0")
    a(f"s_cbranch_scc1 {dn}")
    if opt.sleep: a(f"s_sleep {opt.sleep}")
    a(f"s_cmp_lt_u32 s{sSPIN}, {opt.spin}")
    a(f"s_cbranch_scc1 {lp}")
    a.label(dn)
    a.vm = []

def flag_store(a, s_index_bytes):
    a(f"v_mov_b32 v{vT}, s{s_index_bytes}")
    a(f"v_mov_b32 v{vT2}, s{sNONCE}")
    a(f"s_mov_b64 s[{sP}:{sP+1}], exec")
    a("s_mov_b64 exec, 1")
    a.vmem(f"buffer_store_dword v{vT2}, v{vT}, {srd(sF)}, 0 offen sc1", "flag")
    a(f"s_mov_b64 exec, s[{sP}:{sP+1}]")

def gelu_pairs(a, regs, tmp, fill=None):
    def each(fn):
        for i, r in enumerate(regs): fn(r, tmp + 2 * i)
    each(lambda r, t: a(f"v_pk_mul_f32 {vr(t,2)}, {vr(r,2)}, {vr(r,2)}"))
    each(lambda r, t: a(f"v_pk_fma_f32 {vr(t,2)}, {vr(t,2)}, s[100:101], {vr(vC0,2)}"))
    each(lambda r, t: a(f"v_pk_mul_f32 {vr(t,2)}, {vr(t,2)}, {vr(r,2)}"))
    if fill: fill()
    each(lambda r, t: (a(f"v_exp_f32 v{t}, v{t}"), a(f"v_exp_f32 v{t+1}, v{t+1}")))
    each(lambda r, t: a(f"v_pk_add_f32 {vr(t,2)}, {vr(t,2)}, 1.0 op_sel_hi:[1,0]"))
    each(lambda r, t: (a(f"v_rcp_f32 v{t}, v{t}"), a(f"v_rcp_f32 v{t+1}, v{t+1}")))
    a("s_nop 0")
    each(lambda r, t: a(f"v_pk_mul_f32 {vr(r,2)}, {vr(r,2)}, {vr(t,2)}"))

def w2_slot(step):
    if step < 8: return sM0B, step * 4096, vTR, step * 4096
    if step < 10: return sUP, (step - 8) * 4096, vTRU, (step - 8) * 4096
    return sM0B, (step - 10) * 4096, vTR, (step - 10) * 4096

def w2_dma(a, step):
    sb, off, _, _ = w2_slot(step)
    dma_step(a, sW2, S * 2, sWB, sROT2, step, 14, sb, off, f"w2_{step}", OPT.w2bits)

def w2_dma_parts(a, step):
    sb, off, _, _ = w2_slot(step)
    def setup():
        a(f"s_add_u32 m0, s{sb}, {off}")
        step_off(a, sOFF, sWB, sROT2, step, 14, 32 * S * 2)
    def one(blk):
        return lambda: a.vmem(f"buffer_load_dwordx4 v{vDM+blk}, {srd(sW2)}, s{sOFF} offen offset:{blk*1024} {OPT.w2bits} lds", f"w2_{step}")
    return [setup] + [one(b) for b in range(4)]

def w2_tr(a, step):
    _, _, vb, off = w2_slot(step)
    tr_step(a, vb, off, step)

def gen(opt):
    global OPT
    OPT = opt
    a = Asm()
    NS = opt.depth + 1
    def ring(slot, t): return vRING + slot * 20 + t * 4
    a.raw(f"; @launch grid=(256,1,1) block=(256,1,1) lds={LDS_BYTES}")
    a.raw('.amdgcn_target "amdgcn-amd-amdhsa--gfx950"')
    a.raw(".text")
    a.raw(f".globl {KN}")
    a.raw(".p2align 8")
    a.raw(f".type {KN},@function")
    a.label(KN)
    a(f"s_cmp_ge_u32 s{sWG}, 256")
    a("s_cbranch_scc1 L_done")
    a("s_load_dwordx16 s[4:19], s[0:1], 0")
    if opt.prof:
        a(f"s_mem{'time' if opt.prof == 2 else 'realtime'} s[{sP}:{sP+1}]")
    if opt.prof:
        for i in range(1, 15): a(f"s_mov_b32 s{sPROF+i}, 0")
    if opt.pad or opt.probe >= 0:
        a("s_memrealtime s[96:97]")
    a(f"v_lshrrev_b32 v{vT}, 6, v{vTID}")
    a(f"v_and_b32 v{vLANE}, 63, v{vTID}")
    a(f"v_readfirstlane_b32 s{sWAVE}, v{vT}")
    a(f"s_and_b32 s{sXCD}, s{sWG}, 7")
    a(f"s_lshr_b32 s{sJ}, s{sWG}, 3")
    if opt.p1 == 2:
        a(f"s_lshr_b32 s{sT1}, s{sXCD}, 1")
        a(f"s_and_b32 s{sT2}, s{sXCD}, 1")
        a(f"s_lshl_b32 s{sT2}, s{sT2}, 2")
        a(f"s_mul_i32 s{sT0}, s{sT1}, 7")
        a(f"s_lshr_b32 s{sFT}, s{sJ}, 2")
        a(f"s_add_u32 s{sFT}, s{sFT}, s{sT0}")
        a(f"s_and_b32 s{sT3}, s{sJ}, 3")
        a(f"s_add_u32 s{sDT1}, s{sT2}, s{sT3}")
        a(f"s_lshl_b32 s{sROT1}, s{sT3}, 2")
        a(f"s_cmp_eq_u32 s{sT1}, 3")
        a(f"s_cselect_b32 s{sJLIM}, 24, 28")
        a(f"s_lshl_b32 s{sT0}, s{sXCD}, 2")
        a(f"s_sub_u32 s{sT0}, s{sT0}, 28")
        a(f"s_lshl_b32 s{sT3}, s{sXCD}, 3")
        a(f"s_sub_u32 s{sT3}, s{sT3}, 48")
        a(f"s_cselect_b32 s{sIDLE}, s{sT0}, s{sT0}")
        a(f"s_cmp_ge_u32 s{sXCD}, 6")
        a(f"s_cselect_b32 s{sIDLE}, s{sT3}, s{sT0}")
        a(f"s_add_u32 s{sIDLE}, s{sIDLE}, s{sJ}")
    else:
        a(f"s_lshl_b32 s{sT0}, s{sXCD}, 2")
        a(f"s_mul_i32 s{sT1}, s{sXCD}, 3")
        a(f"s_add_u32 s{sT1}, s{sT1}, 3")
        a(f"s_cmp_lt_u32 s{sXCD}, 3")
        a(f"s_cselect_b32 s{sT0}, s{sT0}, s{sT1}")
        a(f"s_cselect_b32 s{sJLIM}, 32, 24")
        a(f"s_lshr_b32 s{sFT}, s{sJ}, 3")
        a(f"s_add_u32 s{sFT}, s{sFT}, s{sT0}")
        a(f"s_and_b32 s{sDT1}, s{sJ}, 7")
        a(f"s_lshl_b32 s{sROT1}, s{sDT1}, 1")
        a(f"s_lshl_b32 s{sIDLE}, s{sXCD}, 3")
        a(f"s_add_u32 s{sIDLE}, s{sIDLE}, s{sJ}")
        a(f"s_sub_u32 s{sIDLE}, s{sIDLE}, 48")
    if opt.rota1:
        a(f"s_mul_i32 s{sT0}, s{sFT}, {opt.rota1}")
        a(f"s_add_u32 s{sROT1}, s{sROT1}, s{sT0}")
        a(f"s_and_b32 s{sROT1}, s{sROT1}, 15")
    if opt.p2 == 2:
        a(f"s_lshr_b32 s{sT1}, s{sXCD}, 1")
        a(f"s_and_b32 s{sT2}, s{sXCD}, 1")
        a(f"s_lshl_b32 s{sT2}, s{sT2}, 2")
        a(f"s_lshr_b32 s{sT0}, s{sJ}, 2")
        a(f"s_lshl_b32 s{sST}, s{sT1}, 3")
        a(f"s_add_u32 s{sST}, s{sST}, s{sT0}")
        a(f"s_and_b32 s{sT3}, s{sJ}, 3")
        a(f"s_add_u32 s{sDT2}, s{sT2}, s{sT3}")
        a(f"s_mul_i32 s{sROT2}, s{sT3}, 7")
        a(f"s_lshr_b32 s{sROT2}, s{sROT2}, 1")
    else:
        a(f"s_lshr_b32 s{sT0}, s{sJ}, 3")
        a(f"s_lshl_b32 s{sST}, s{sXCD}, 2")
        a(f"s_add_u32 s{sST}, s{sST}, s{sT0}")
        a(f"s_and_b32 s{sDT2}, s{sJ}, 7")
        a(f"s_mul_i32 s{sROT2}, s{sDT2}, 7")
        a(f"s_lshr_b32 s{sROT2}, s{sROT2}, 2")
    if opt.rota2:
        a(f"s_mul_i32 s{sT0}, s{sST}, {opt.rota2}")
        a(f"s_add_u32 s{sROT2}, s{sROT2}, s{sT0}")
        a(f"s_and_b32 s{sT0}, s{sROT2}, 0xff")
        a(f"s_mul_i32 s{sT0}, s{sROT2}, 18725")
        a(f"s_lshr_b32 s{sT0}, s{sT0}, 18")
        a(f"s_mul_i32 s{sT0}, s{sT0}, 14")
        a(f"s_sub_u32 s{sROT2}, s{sROT2}, s{sT0}")
    if not (opt.rot & 1): a(f"s_mov_b32 s{sROT1}, 0")
    if not (opt.rot & 2): a(f"s_mov_b32 s{sROT2}, 0")
    a(f"s_lshl_b32 s{sM0B}, s{sWAVE}, 15")
    a(f"s_lshl_b32 s{sUP}, s{sWAVE}, 13")
    a(f"s_add_u32 s{sUP}, s{sUP}, 131072")
    def tr_addr(base_sgpr):
        t0, t1, t2 = vX, vX + 1, vX + 2
        a(f"v_lshrrev_b32 v{t0}, 4, v{vLANE}")
        a(f"v_and_b32 v{t1}, 1, v{t0}")
        a(f"v_lshlrev_b32 v{t1}, 2, v{t1}")
        a(f"v_bfe_u32 v{t2}, v{vLANE}, 2, 2")
        a(f"v_add_u32 v{t1}, v{t1}, v{t2}")
        a(f"v_lshrrev_b32 v{t0}, 1, v{t0}")
        a(f"v_lshlrev_b32 v{t0}, 10, v{t0}")
        a(f"v_lshlrev_b32 v{t2}, 7, v{t1}")
        a(f"v_add_u32 v{t0}, v{t0}, v{t2}")
        a(f"v_and_b32 v{t2}, 3, v{vLANE}")
        a(f"v_lshlrev_b32 v{t2}, 3, v{t2}")
        a(f"v_add_u32 v{t0}, v{t0}, v{t2}")
        a(f"v_add_u32 v{t0}, s{base_sgpr}, v{t0}")
        a(f"v_lshrrev_b32 v{t1}, 1, v{t1}")
        for t in range(4):
            a(f"v_xor_b32 v{t2}, {t}, v{t1}")
            a(f"v_lshlrev_b32 v{t2}, 5, v{t2}")
            a(f"v_add_u32 v{vTR+t}, v{t0}, v{t2}")
    def w1_dma(i): dma_step(a, sW1, F * 2, sWB, sROT1, i, 16, sM0B, (i % 8) * 4096, f"w1_{i}", opt.w1bits)
    def w1_stream(first, dp):
        retired = 0
        def retire():
            nonlocal retired
            a.wait_vm(f"w1_{retired}")
            if retired: a("s_waitcnt lgkmcnt(0)")
            tr_step(a, vTR, (retired % 8) * 4096, retired)
            retired += 1
        for i in range(first, 16):
            while retired <= i - dp: retire()
            if i >= 8:
                while retired <= i - 8: retire()
                if retired == i - 7: a("s_waitcnt lgkmcnt(0)")
            w1_dma(i)
        while retired < 16: retire()
        a("s_waitcnt lgkmcnt(0)")
    dma_addr(a, F * 2, sFT)
    a(f"s_mul_i32 s{sWB}, s{sWAVE}, {512*F*2}")
    a(f"s_cmp_ge_u32 s{sWAVE}, 2")
    a("s_cbranch_scc1 L_loader")

    a.c("LayerNorm: wave w normalises rows 32*ks + 16*w + 4*q + (0..3), 16 lanes per row")
    XR, XF, TM = 96, 120, 160
    if opt.prio: a(f"s_setprio {opt.prio}")
    a(f"s_lshr_b32 s{sT0}, s{sWG}, 2")
    a(f"s_and_b32 s{sT1}, s{sWG}, 3")
    a(f"s_lshl_b32 s{sT2}, s{sT0}, 5")
    a(f"s_lshl_b32 s{sT3}, s{sWAVE}, 4")
    a(f"s_add_u32 s{sT2}, s{sT2}, s{sT3}")
    a(f"s_lshl_b32 s{sT3}, s{sT1}, 2")
    a(f"s_add_u32 s{sT2}, s{sT2}, s{sT3}")
    a(f"s_mul_i32 s{sT2}, s{sT2}, 1280")
    a(f"v_lshrrev_b32 v{TM}, 4, v{vLANE}")
    a(f"v_and_b32 v{TM+1}, 15, v{vLANE}")
    a(f"v_mul_u32_u24 v{TM+2}, 1280, v{TM}")
    a(f"v_lshlrev_b32 v{TM+3}, 4, v{TM+1}")
    a(f"v_add_u32 v{TM+2}, v{TM+2}, v{TM+3}")
    a(f"v_mov_b32 v{vT}, 0")
    a("s_waitcnt lgkmcnt(0)")
    if opt.prof: a(f"s_mov_b32 s{sPROF}, s{sP}")
    make_srd(a, sX, 4, S * D * 2)
    for i in range(5):
        a.vmem(f"buffer_load_dwordx4 {vr(XR+4*i,4)}, v{TM+2}, {srd(sX)}, s{sT2} offen offset:{i*256} {opt.xbits}", "x")
    make_srd(a, sD, 16, 256)
    a.vmem(f"buffer_load_dword v{vPOLL}, v{vT}, {srd(sD)}, 0 offen sc1", "nonce")
    make_srd(a, sW1, 6, S * F * 2)
    a(f"s_cmp_ge_u32 s{sJ}, s{sJLIM}")
    a("s_cbranch_scc1 L_ln_now1")
    for i in range(opt.nearly): w1_dma(i)
    a.label("L_ln_now1")
    a("s_barrier")
    make_srd(a, sH, 18, H_BYTES, WS_H)
    make_srd(a, sF, 18, FLAG_BYTES, WS_FLAG)
    a(f"s_mul_i32 s{sSTEP}, s{sT0}, 40960")
    a(f"s_lshl_b32 s{sT1}, s{sT1}, 8")
    a(f"s_add_u32 s{sSTEP}, s{sSTEP}, s{sT1}")
    a(f"s_lshl_b32 s{sT3}, s{sWAVE}, 2")
    a(f"v_add_u32 v{TM+4}, s{sT3}, v{TM}")
    a(f"v_mul_u32_u24 v{TM+4}, {LN_ROW}, v{TM+4}")
    a(f"v_add_u32 v{TM+4}, v{TM+4}, v{TM+3}")
    a(f"v_add_u32 v{TM+4}, {LN_BASE}, v{TM+4}")
    a(f"v_bfe_u32 v{TM+5}, v{vLANE}, 2, 2")
    a(f"v_mul_u32_u24 v{TM+5}, {LN_ROW}, v{TM+5}")
    a(f"s_mul_i32 s{sT3}, s{sWAVE}, 20")
    a(f"v_add_u32 v{TM+6}, s{sT3}, v{TM}")
    a(f"v_lshlrev_b32 v{TM+7}, 5, v{TM+6}")
    a(f"v_add_u32 v{TM+5}, v{TM+5}, v{TM+7}")
    a(f"v_and_b32 v{TM+7}, 3, v{vLANE}")
    a(f"v_lshlrev_b32 v{TM+7}, 3, v{TM+7}")
    a(f"v_add_u32 v{TM+5}, v{TM+5}, v{TM+7}")
    a(f"v_add_u32 v{TM+5}, {LN_BASE}, v{TM+5}")
    a(f"v_lshlrev_b32 v{TM+6}, 10, v{TM+6}")
    a(f"v_add_u32 v{TM+6}, v{TM+6}, v{TM+3}")
    a(f"s_mov_b32 s{sT0}, 0xffff0000")
    a(f"s_cmp_ge_u32 s{sJ}, s{sJLIM}")
    a("s_cbranch_scc1 L_ln_idle")
    a(f"s_waitcnt vmcnt({1 + 4*opt.nearly})")
    a("s_branch L_ln_go")
    a.label("L_ln_idle")
    a("s_waitcnt vmcnt(1)")
    a.label("L_ln_go")
    a.vm = [t for t in a.vm if t != "x"]
    stamp(a, opt, 1)
    for i in range(20):
        a(f"v_lshlrev_b32 v{XF+2*i}, 16, v{XR+i}")
        a(f"v_and_b32 v{XF+2*i+1}, s{sT0}, v{XR+i}")
    SM = TM + 8
    for k in range(4):
        a(f"v_pk_add_f32 {vr(SM+2*k,2)}, {vr(XF+2*k,2)}, {vr(XF+8+2*k,2)}")
    for i in range(8, 20):
        k = i % 4
        a(f"v_pk_add_f32 {vr(SM+2*k,2)}, {vr(SM+2*k,2)}, {vr(XF+2*i,2)}")
    def reduce_row(dst):
        a(f"v_pk_add_f32 {vr(SM,2)}, {vr(SM,2)}, {vr(SM+2,2)}")
        a(f"v_pk_add_f32 {vr(SM+4,2)}, {vr(SM+4,2)}, {vr(SM+6,2)}")
        a(f"v_pk_add_f32 {vr(SM,2)}, {vr(SM,2)}, {vr(SM+4,2)}")
        a(f"v_add_f32 v{dst}, v{SM}, v{SM+1}")
        for rot in (8, 4, 2, 1):
            a("s_nop 1")
            a(f"v_add_f32_dpp v{dst}, v{dst}, v{dst} row_ror:{rot} row_mask:0xf bank_mask:0xf")
    MN = TM + 16
    reduce_row(MN)
    a(f"v_mul_f32 v{MN}, {f2h(1.0/640.0)}, v{MN}")
    a(f"v_mov_b32 v{MN+1}, v{MN}")
    for i in range(20):
        a(f"v_pk_add_f32 {vr(XF+2*i,2)}, {vr(XF+2*i,2)}, {vr(MN,2)} neg_lo:[0,1] neg_hi:[0,1]")
    for k in range(4):
        a(f"v_pk_mul_f32 {vr(SM+2*k,2)}, {vr(XF+2*k,2)}, {vr(XF+2*k,2)}")
    for i in range(4, 20):
        k = i % 4
        a(f"v_pk_fma_f32 {vr(SM+2*k,2)}, {vr(XF+2*i,2)}, {vr(XF+2*i,2)}, {vr(SM+2*k,2)}")
    reduce_row(MN)
    a(f"v_mov_b32 v{MN+1}, {f2h(1e-5)}")
    a(f"v_fmac_f32 v{MN+1}, {f2h(1.0/640.0)}, v{MN}")
    a(f"v_rsq_f32 v{MN}, v{MN+1}")
    a("s_nop 0")
    a(f"v_mov_b32 v{MN+1}, v{MN}")
    for i in range(20):
        a(f"v_pk_mul_f32 {vr(XF+2*i,2)}, {vr(XF+2*i,2)}, {vr(MN,2)}")
    for i in range(20):
        a(f"v_cvt_pk_bf16_f32 v{XR+i}, v{XF+2*i}, v{XF+2*i+1}")
    if opt.lnprof: stamp(a, opt, 4)
    for i in range(5):
        a(f"ds_write_b128 v{TM+4}, {vr(XR+4*i,4)} offset:{i*256}")
    a(f"s_lshl_b32 s{sT0}, s{sWAVE}, 2")
    a(f"s_add_u32 s{sT1}, s{sT0}, {LF_BASE}")
    a(f"s_xor_b32 s{sT0}, s{sT0}, 4")
    a(f"s_add_u32 s{sT0}, s{sT0}, {LF_BASE}")
    a("s_waitcnt lgkmcnt(0)")
    lds_set(a, f"s{sT1}")
    lds_spin(a, opt, f"s{sT0}")
    if opt.lnprof: stamp(a, opt, 5)
    for i in range(5):
        a(f"ds_read_b64_tr_b16 {vr(XF+4*i,2)}, v{TM+5} offset:{i*128}")
        a(f"ds_read_b64_tr_b16 {vr(XF+4*i+2,2)}, v{TM+5} offset:{i*128+4*LN_ROW}")
    for i in range(5):
        a(f"s_waitcnt lgkmcnt({8-2*i})")
        a(f"s_add_u32 s{sT0}, s{sSTEP}, {i*4096}")
        a.vmem(f"buffer_store_dwordx4 {vr(XF+4*i,4)}, v{TM+6}, {srd(sH)}, s{sT0} offen {opt.hbits}", "h")
    stamp(a, opt, 2)
    a("s_waitcnt vmcnt(5)")
    a(f"v_readfirstlane_b32 s{sNONCE}, v{vPOLL}")
    nonce_spin(a, opt)
    a.wait_vm0()
    a(f"s_mul_i32 s{sT0}, s{sWG}, {opt.hstride}")
    a(f"s_lshl_b32 s{sT1}, s{sWAVE}, 2")
    a(f"s_add_u32 s{sT0}, s{sT0}, s{sT1}")
    flag_store(a, sT0)
    a(f"s_lshl_b32 s{sT0}, s{sWAVE}, 2")
    a(f"s_add_u32 s{sT0}, s{sT0}, {LF_BASE + 8}")
    lds_set(a, f"s{sT0}")
    stamp(a, opt, 3)
    if opt.prio: a("s_setprio 0")
    a.ln_done = True
    a("s_branch L_roles_done")

    a.label("L_loader")
    a.vm = []
    a(f"v_lshlrev_b32 v{vX}, 2, v{vLANE}")
    a(f"v_add_u32 v{vX}, {LF_BASE}, v{vX}")
    a(f"v_mov_b32 v{vX+1}, 0")
    a(f"ds_write_b32 v{vX}, v{vX+1}")
    a("s_waitcnt lgkmcnt(0)")
    if opt.prof: a(f"s_mov_b32 s{sPROF}, s{sP}")
    make_srd(a, sW1, 6, S * F * 2)
    make_srd(a, sD, 16, 256)
    a(f"s_cmp_lg_u32 s{sWG}, 0")
    a("s_cbranch_scc1 L_nononce")
    a(f"s_cmp_lg_u32 s{sWAVE}, 3")
    a("s_cbranch_scc1 L_nononce")
    a(f"s_memrealtime s[{sP}:{sP+1}]")
    a("s_waitcnt lgkmcnt(0)")
    a(f"s_or_b32 s{sT0}, s{sP}, 1")
    a(f"v_mov_b32 v{vT2}, s{sT0}")
    a(f"v_mov_b32 v{vT}, 0")
    a(f"s_mov_b64 s[{sP}:{sP+1}], exec")
    a("s_mov_b64 exec, 1")
    a(f"buffer_store_dword v{vT2}, v{vT}, {srd(sD)}, 0 offen sc1")
    a(f"s_mov_b64 exec, s[{sP}:{sP+1}]")
    a.label("L_nononce")
    a(f"s_cmp_ge_u32 s{sJ}, s{sJLIM}")
    a("s_cbranch_scc1 L_loader_idle")
    for i in range(2): w1_dma(i)
    a("s_barrier")
    tr_addr(sM0B)
    if opt.hold:
        lds_spin(a, opt, LF_BASE + 8)
        lds_spin(a, opt, LF_BASE + 12)
    w1_stream(2, opt.dp)
    a(f"s_mov_b32 s{sNONCE}, 0")
    nonce_spin(a, opt)
    a("s_branch L_w1_ready")
    a.label("L_loader_idle")
    a.vm = []
    a("s_barrier")
    if opt.pfwait:
        lds_spin(a, opt, LF_BASE + 8)
        lds_spin(a, opt, LF_BASE + 12)
    if opt.pf == 1:
        make_srd(a, sW2, 10, F * S * 2)
        a(f"s_lshl_b32 s{sT0}, s{sIDLE}, 1")
        a(f"s_add_u32 s{sT0}, s{sT0}, s{sWAVE}")
        a(f"s_sub_u32 s{sT0}, s{sT0}, 2")
        a(f"s_lshl_b32 s{sT0}, s{sT0}, 10")
        a(f"v_lshlrev_b32 v{vX}, 4, v{vLANE}")
        inc = 80 * 1024
        for k in range(87):
            o = vRING + (k % 20) * 4
            a.vmem(f"buffer_load_dwordx4 {vr(o,4)}, v{vX}, {srd(sW2)}, s{sT0} offen {opt.pfbits}", f"pf{k}")
            a(f"s_add_u32 s{sT0}, s{sT0}, {inc}")
            if k >= opt.pfdepth: a.wait_vm(f"pf{k-opt.pfdepth}")
    a(f"s_mov_b32 s{sNONCE}, 0")
    nonce_spin(a, opt)
    a("s_branch L_nogemm1")

    a.label("L_roles_done")
    a.vm = []
    a(f"s_cmp_ge_u32 s{sJ}, s{sJLIM}")
    a("s_cbranch_scc1 L_nogemm1")
    a.vm = []
    tr_addr(sM0B)
    for i in range(opt.nearly): a.vm.append(f"w1_{i}")
    a.vm.append("flag")
    w1_stream(opt.nearly, opt.dpl)

    def common_setup():
        make_srd(a, sH, 18, H_BYTES, WS_H)
        make_srd(a, sF, 18, FLAG_BYTES, WS_FLAG)
        make_srd(a, sB1, 8, F * 2)
        make_srd(a, sW2, 10, F * S * 2)
        make_srd(a, sB2, 12, S * 2)
        make_srd(a, sO, 14, S * D * 2)
        make_srd(a, sG, 18, G_BYTES, WS_G)
        a(f"v_lshrrev_b32 v{vT}, 4, v{vLANE}")
        a(f"v_lshlrev_b32 v{vT}, 3, v{vT}")
        a(f"s_and_b32 s{sT0}, s{sWAVE}, 1")
        a(f"s_lshl_b32 s{sT0}, s{sT0}, 6")
        a(f"s_lshl_b32 s{sT1}, s{sFT}, 7")
        a(f"s_add_u32 s{sT0}, s{sT0}, s{sT1}")
        a.vmem(f"buffer_load_dwordx2 {vr(vB1,2)}, v{vT}, {srd(sB1)}, s{sT0} offen", "b")
        a.vmem(f"buffer_load_dwordx2 {vr(vB1+2,2)}, v{vT}, {srd(sB1)}, s{sT0} offen offset:32", "b")
        a(f"v_and_b32 v{vT}, 15, v{vLANE}")
        a(f"v_lshlrev_b32 v{vT}, 1, v{vT}")
        a(f"s_lshl_b32 s{sT0}, s{sST}, 7")
        a(f"s_lshl_b32 s{sT1}, s{sWAVE}, 5")
        a(f"s_add_u32 s{sT0}, s{sT0}, s{sT1}")
        a.vmem(f"buffer_load_ushort v{vB2}, v{vT}, {srd(sB2)}, s{sT0} offen", "b")
        dma_addr(a, S * 2, sST)
        a(f"s_mul_i32 s{sWB}, s{sWAVE}, {448*S*2}")
        tr_addr(sM0B)
        a(f"s_sub_u32 s{sT0}, s{sUP}, s{sM0B}")
        for t in range(4):
            a(f"v_add_u32 v{vTRU+t}, s{sT0}, v{vTR+t}")
        a(f"v_lshlrev_b32 v{vL0}, 4, v{vLANE}")
        a(f"v_add_u32 v{vL1}, 65536, v{vL0}")
        a(f"v_add_u32 v{vL2}, 131072, v{vL0}")

    a.label("L_w1_ready")
    a.vm = []
    stamp(a, opt, 4)
    common_setup()
    a(f"s_mul_i32 s{sT0}, s{sDT1}, 5120")
    a(f"v_add_u32 v{vA}, s{sT0}, v{vL0}")
    a(f"v_add_u32 v{vA2}, 4096, v{vA}")
    a(f"s_lshl_b32 s{sT0}, s{sWAVE}, 6")
    a(f"v_add_u32 v{vX}, s{sT0}, v{vLANE}")
    a(f"v_mul_u32_u24 v{vX}, {opt.hstride}, v{vX}")
    poll(a, opt, vX, 2, None)
    a("s_barrier")
    stamp(a, opt, 5)

    def a_loads(srdn, step, nsteps, s_rot):
        slot = step % NS
        step_off(a, sOFF, sSTEP, s_rot, step, nsteps, 40960)
        return [f"buffer_load_dwordx4 {vr(ring(slot,t),4)}, v{vA if t < 4 else vA2}, {srd(srdn)}, s{sOFF} offen offset:{(t*1024) if t < 4 else 0} sc1" for t in range(5)]

    def main_loop(srdn, nsteps, s_rot, tagp, mfma, stamp0, tail, nuni):
        for st in range(opt.depth):
            for o, ins in enumerate(a_loads(srdn, st, nsteps, s_rot)): a.vmem(ins, f"{tagp}{st}_{o}")
        for st in range(nuni):
            nx = st + opt.depth
            nxt = a_loads(srdn, nx, nsteps, s_rot) if nx < nsteps else None
            a.wait_vm(f"{tagp}{st}_4")
            if st == 0 and stamp0 is not None: stamp(a, opt, stamp0)
            for o in range(5):
                if nxt: a.vmem(nxt[o], f"{tagp}{nx}_{o}")
                for i in range(4): mfma(st, o, i, st % NS)
                if tail: tail(st, o)

    def tile_tail(nsteps, tagp, first, last, frag_of, mfma_tile, write_tile, extra):
        ic = [0]
        done_at = {}
        queue = []
        extra = list(extra)
        def emit(fn):
            fn(); ic[0] += 1
        def filler():
            if queue and ic[0] - done_at[queue[0]] >= 9:
                t = queue.pop(0); emit(lambda: write_tile(t)); return
            if extra: emit(extra.pop(0))
        tiles = list(first) + list(last)
        for i in range(0, len(tiles), 2):
            pair = tiles[i:i + 2]
            for t in pair:
                for st in (nsteps - 2, nsteps - 1): a.wait_vm(f"{tagp}{st}_{frag_of(t)}")
            for st in (nsteps - 2, nsteps - 1):
                for t in pair:
                    emit(lambda: mfma_tile(st, t))
                    if st == nsteps - 1:
                        done_at[t] = ic[0]
                        if t in first: queue.append(t)
                    filler()
        while extra: emit(extra.pop(0))
        while queue:
            while ic[0] - done_at[queue[0]] < 9: emit(lambda: a("s_nop 0"))
            t = queue.pop(0); emit(lambda: write_tile(t))

    a(f"s_mul_i32 s{sSTEP}, s{sWAVE}, {16*40960}")
    def mfma1(st, nt, mt, slot):
        c = "0" if st == 0 else vr(acc1(mt, nt), 4)
        a(f"v_mfma_f32_16x16x32_bf16 {vr(acc1(mt,nt),4)}, {ar(wfrag(st,mt),4)}, {vr(ring(slot,nt),4)}, {c}")
    parts13 = w2_dma_parts(a, 0) if opt.t13 else []
    def tail1(st, o):
        if st == 13 and parts13:
            if o == 0: parts13[0]()
            else: parts13[o]()
    main_loop(sH, 16, sROT1, "h", mfma1, 6, tail1, 14)

    a(f"s_mov_b32 s100, {f2h(C1)}"); a(f"s_mov_b32 s101, {f2h(C1)}")
    a(f"v_mov_b32 v{vC0}, {f2h(C0)}"); a(f"v_mov_b32 v{vC0+1}, {f2h(C0)}")
    def lds_ref(addr):
        if addr < 65536: return vL0, addr
        if addr < 131072: return vL1, addr - 65536
        return vL2, addr - 131072
    def owner1(p, nt): return p + (0 if nt < 3 else 2)
    units = [(p, nt) for p in range(2) for nt in range(5)]
    def red1_addr(src, u):
        k = [x for x in units if owner1(*x) != src].index(u)
        return src * 32768 + 24576 + k * 2048 if k < 4 else 131072 + src * 8192 + (k - 4) * 2048
    saved_vm = list(a.vm)
    for w in range(4):
        if w < 3:
            a(f"s_cmp_lg_u32 s{sWAVE}, {w}")
            a(f"s_cbranch_scc1 L_ep1_{w+1}")
        a.vm = list(saved_vm)
        nis = [1 if opt.t13 else 0]
        def more(n, limit):
            for _ in range(n):
                if nis[0] < limit:
                    w2_dma(a, nis[0]); nis[0] += 1
        tl = [(2 * p + hf, nt) for nt in range(5) for p in range(2) for hf in range(2)]
        first = [t for t in tl if owner1(t[0] // 2, t[1]) != w]
        last = [t for t in tl if owner1(t[0] // 2, t[1]) == w]
        def wr1(t):
            vb, off = lds_ref(red1_addr(w, (t[0] // 2, t[1])) + (t[0] & 1) * 1024)
            a(f"ds_write_b128 v{vb}, {vr(acc1(*t),4)} offset:{off}")
        extra = []
        for _ in range(opt.tt):
            extra += w2_dma_parts(a, nis[0]); nis[0] += 1
        tile_tail(16, "h", first, last, lambda t: t[1], lambda st, t: mfma1(st, t[1], t[0], st % NS), wr1, extra)
        stamp(a, opt, 7)
        more(opt.e1, 6)
        a("s_waitcnt lgkmcnt(0)")
        a("s_barrier")
        own_u = [u for u in units if owner1(*u) == w]
        RT = vRING
        n = 0
        for u in own_u:
            for src in range(4):
                if src == w: continue
                for hf in range(2):
                    vb, off = lds_ref(red1_addr(src, u) + hf * 1024)
                    a(f"ds_read_b128 {vr(RT + n*4, 4)}, v{vb} offset:{off}")
                    n += 1
        a.wait_vm("b")
        for i in range(4):
            a(f"v_lshlrev_b32 v{BI+2*i}, 16, v{vB1+i}")
            a(f"v_and_b32 v{BI+2*i+1}, 0xffff0000, v{vB1+i}")
        for u in own_u:
            p, nt = u
            for hf in range(2):
                r = acc1(2*p+hf, nt)
                a(f"v_pk_add_f32 {vr(r,2)}, {vr(r,2)}, {vr(BI+4*hf,2)}")
                a(f"v_pk_add_f32 {vr(r+2,2)}, {vr(r+2,2)}, {vr(BI+4*hf+2,2)}")
        n = 0
        tot = len(own_u) * 6
        for u in own_u:
            p, nt = u
            for si in range(3):
                for hf in range(2):
                    a(f"s_waitcnt lgkmcnt({min(15, tot - n - 1)})")
                    r = acc1(2*p+hf, nt)
                    a(f"v_pk_add_f32 {vr(r,2)}, {vr(r,2)}, {vr(RT+n*4,2)}")
                    a(f"v_pk_add_f32 {vr(r+2,2)}, {vr(r+2,2)}, {vr(RT+n*4+2,2)}")
                    n += 1
        a("s_barrier")
        regs = []
        for u in own_u:
            p, nt = u
            for hf in range(2):
                r = acc1(2*p+hf, nt)
                regs += [r, r + 2]
        more(opt.e2, 10)
        gelu_pairs(a, regs, RT, fill=lambda: more(opt.e3, 10))
        a(f"s_lshl_b32 s{sT0}, s{sFT}, 1")
        a(f"s_add_u32 s{sT0}, s{sT0}, {w & 1}")
        a(f"s_mul_i32 s{sT0}, s{sT0}, 40960")
        a(f"s_mul_i32 s{sT1}, s{sDT1}, 5120")
        a(f"s_add_u32 s{sT0}, s{sT0}, s{sT1}")
        for i, u in enumerate(own_u):
            p, nt = u
            o = RT + 64 + 4 * i
            r0, r1 = acc1(2*p, nt), acc1(2*p+1, nt)
            a(f"v_cvt_pk_bf16_f32 v{o}, v{r0}, v{r0+1}")
            a(f"v_cvt_pk_bf16_f32 v{o+1}, v{r0+2}, v{r0+3}")
            a(f"v_cvt_pk_bf16_f32 v{o+2}, v{r1}, v{r1+1}")
            a(f"v_cvt_pk_bf16_f32 v{o+3}, v{r1+2}, v{r1+3}")
            a(f"s_add_u32 s{sT1}, s{sT0}, {nt*1024}")
            a.vmem(f"buffer_store_dwordx4 {vr(o,4)}, v{vL0}, {srd(sG)}, s{sT1} offen sc1", "g")
        stamp(a, opt, 8)
        more(opt.nb, 10)
        a.wait_vm("w2_3")
        if nis[0] >= 4:
            for st in range(4):
                w2_tr(a, st)
                if st % 2 == 1: a("s_waitcnt lgkmcnt(0)")
        if nis[0] == 10 and opt.nb2:
            for st in range(10, 10 + opt.nb2): w2_dma(a, st)
            nis[0] += opt.nb2
        a.wait_vm("g")
        a(f"s_lshl_b32 s{sT0}, s{sDT1}, 5")
        a(f"s_add_u32 s{sT0}, s{sT0}, s{sFT}")
        a(f"s_mul_i32 s{sT0}, s{sT0}, {opt.gstride}")
        a(f"s_add_u32 s{sT0}, s{sT0}, {FLAG_G + 4*w}")
        flag_store(a, sT0)
        stamp(a, opt, 9)
        assert nis[0] >= 4
        more(10, 10)
        more(4, 14)
        for st in range(4, 10):
            a.wait_vm(f"w2_{st}")
            w2_tr(a, st)
            if st % 2 == 1: a("s_waitcnt lgkmcnt(0)")
        a("s_branch L_pre2")
        if w < 3: a.label(f"L_ep1_{w+1}")

    a.label("L_nogemm1")
    a.vm = []
    common_setup()
    if opt.pf == 2:
        assert opt.p1 == 2 and opt.p2 == 1
        a(f"s_cmp_lt_u32 s{sJ}, 28")
        a("s_cbranch_scc1 L_nopf")
        a(f"s_sub_u32 s{sT0}, s{sJ}, 28")
        a(f"s_lshl_b32 s{sT0}, s{sT0}, 2")
        a(f"s_add_u32 s{sT0}, s{sT0}, s{sWAVE}")
        a(f"s_lshl_b32 s{sT0}, s{sT0}, 13")
        a(f"s_lshl_b32 s{sT1}, s{sXCD}, 9")
        a(f"s_add_u32 s{sT0}, s{sT0}, s{sT1}")
        a(f"v_lshrrev_b32 v{vX}, 5, v{vLANE}")
        a(f"v_lshlrev_b32 v{vX}, 12, v{vX}")
        a(f"v_and_b32 v{vX+1}, 31, v{vLANE}")
        a(f"v_lshlrev_b32 v{vX+1}, 4, v{vX+1}")
        a(f"v_add_u32 v{vX}, v{vX}, v{vX+1}")
        keep = list(a.vm)
        for k in range(54):
            o = vRING + (k % 16) * 4
            a.vmem(f"buffer_load_dwordx4 {vr(o,4)}, v{vX}, {srd(sW2)}, s{sT0} offen", f"pf{k}")
            a(f"s_add_u32 s{sT0}, s{sT0}, {16*8192}")
            if k >= opt.pfdepth: a.wait_vm(f"pf{k-opt.pfdepth}")
        a.wait_vm0()
        a.label("L_nopf")
        a.vm = keep
    for st in range(10): w2_dma(a, st)
    for st in range(4):
        a.wait_vm(f"w2_{st}")
        w2_tr(a, st)
        if st % 2 == 1: a("s_waitcnt lgkmcnt(0)")
    for st in range(10, 14): w2_dma(a, st)
    for st in range(4, 10):
        a.wait_vm(f"w2_{st}")
        w2_tr(a, st)
        if st % 2 == 1: a("s_waitcnt lgkmcnt(0)")

    a.label("L_pre2")
    a.wait_vm0()
    a("s_waitcnt lgkmcnt(0)")
    for st in range(10, 14):
        w2_tr(a, st)
        if st % 2 == 1: a("s_waitcnt lgkmcnt(0)")
    stamp(a, opt, 10)
    a(f"s_mul_i32 s{sT0}, s{sDT2}, 5120")
    a(f"v_add_u32 v{vA}, s{sT0}, v{vL0}")
    a(f"v_add_u32 v{vA2}, 4096, v{vA}")
    a(f"s_lshl_b32 s{sT0}, s{sDT2}, 5")
    a(f"s_mul_i32 s{sT1}, s{sWAVE}, 7")
    a(f"s_add_u32 s{sT0}, s{sT0}, s{sT1}")
    a(f"s_mul_i32 s{sT0}, s{sT0}, {opt.gstride}")
    a(f"s_add_u32 s{sT0}, s{sT0}, {FLAG_G}")
    a(f"v_lshrrev_b32 v{vX}, 2, v{vLANE}")
    a(f"v_mul_u32_u24 v{vX}, {opt.gstride}, v{vX}")
    a(f"v_and_b32 v{vT}, 3, v{vLANE}")
    a(f"v_lshlrev_b32 v{vT}, 2, v{vT}")
    a(f"v_add_u32 v{vX}, v{vX}, v{vT}")
    a(f"v_add_u32 v{vX}, s{sT0}, v{vX}")
    a(f"s_cmp_eq_u32 s{sWAVE}, 3")
    a(f"s_mov_b32 s{sP+3}, 0xffffff")
    a(f"s_cselect_b32 s{sP+2}, s{sP+3}, 0xfffffff")
    a(f"s_mov_b32 s{sP+3}, 0")
    poll(a, opt, vX, 1, sP + 2)
    stamp(a, opt, 11)
    a(f"s_mul_i32 s{sSTEP}, s{sWAVE}, {14*40960}")
    def mfma2(st, mt, nt, slot):
        c = "0" if st == 0 else vr(acc2(mt, nt), 4)
        a(f"v_mfma_f32_16x16x32_bf16 {vr(acc2(mt,nt),4)}, {vr(ring(slot,mt),4)}, {ar(wfrag(st,nt),4)}, {c}")
    main_loop(sG, 14, sROT2, "g", mfma2, 12, None, 12)
    saved_vm2 = list(a.vm)
    a(f"v_and_b32 v{vT}, 15, v{vLANE}")
    a(f"s_lshl_b32 s{sT0}, s{sWAVE}, 4")
    a(f"v_add_u32 v{vT}, s{sT0}, v{vT}")
    a(f"v_mul_u32_u24 v{vA}, 1280, v{vT}")
    a(f"v_lshrrev_b32 v{vT}, 4, v{vLANE}")
    a(f"v_lshlrev_b32 v{vT}, 3, v{vT}")
    a(f"v_add_u32 v{vA}, v{vA}, v{vT}")
    a(f"s_mul_i32 s{sT0}, s{sST}, {64*1280}")
    a(f"s_mul_i32 s{sT1}, s{sDT2}, 160")
    a(f"s_add_u32 s{sOFF}, s{sT0}, s{sT1}")
    a(f"v_lshlrev_b32 v{vB2}, 16, v{vB2}")
    def red2_addr(src, nt, mt):
        k = [x for x in range(4) if x != src].index(nt)
        return src * 32768 + (k * 5 + mt) * 1024
    for w in range(4):
        if w < 3:
            a(f"s_cmp_lg_u32 s{sWAVE}, {w}")
            a(f"s_cbranch_scc1 L_ep2_{w+1}")
        a.vm = list(saved_vm2)
        tl = [(mt, nt) for mt in range(5) for nt in range(4)]
        def wr2(t):
            vb, off = lds_ref(red2_addr(w, t[1], t[0]))
            a(f"ds_write_b128 v{vb}, {vr(acc2(*t),4)} offset:{off}")
        tile_tail(14, "g", [t for t in tl if t[1] != w], [t for t in tl if t[1] == w], lambda t: t[0],
                  lambda st, t: mfma2(st, t[0], t[1], st % NS), wr2, [])
        stamp(a, opt, 13)
        a("s_waitcnt lgkmcnt(0)")
        a("s_barrier")
        RT = vRING
        n = 0
        for mt in range(5):
            for src in range(4):
                if src == w: continue
                vb, off = lds_ref(red2_addr(src, w, mt))
                a(f"ds_read_b128 {vr(RT+n*4,4)}, v{vb} offset:{off}")
                n += 1
        n = 0
        for mt in range(5):
            r = acc2(mt, w)
            for si in range(3):
                a(f"s_waitcnt lgkmcnt({14 - n})")
                a(f"v_pk_add_f32 {vr(r,2)}, {vr(r,2)}, {vr(RT+n*4,2)}")
                a(f"v_pk_add_f32 {vr(r+2,2)}, {vr(r+2,2)}, {vr(RT+n*4+2,2)}")
                n += 1
            for k in range(4):
                a(f"v_add_f32 v{r+k}, v{r+k}, v{vB2}")
            o = RT + 64 + 2 * mt
            a(f"v_cvt_pk_bf16_f32 v{o}, v{r}, v{r+1}")
            a(f"v_cvt_pk_bf16_f32 v{o+1}, v{r+2}, v{r+3}")
            a(f"buffer_store_dwordx2 {vr(o,2)}, v{vA}, {srd(sO)}, s{sOFF} offen offset:{mt*32} {opt.obits}")
        a("s_branch L_fin")
        if w < 3: a.label(f"L_ep2_{w+1}")
    a.label("L_fin")
    if opt.probe >= 0:
        if opt.probe == 14:
            a("s_waitcnt vmcnt(0)")
            stamp(a, opt, 14)
        a(f"s_cmp_lg_u32 s{sWG}, {opt.probewg}")
        a("s_cbranch_scc1 L_done")
        a(f"s_cmp_lg_u32 s{sWAVE}, {opt.probew}")
        a("s_cbranch_scc1 L_done")
        a(f"s_sub_u32 s{sT1}, s{sPROF+1}, s{sPROF+2 if opt.probe0 >= 0 else 96}")
        if opt.probecyc: a(f"s_lshr_b32 s{sT1}, s{sT1}, 2")
        else: a(f"s_lshl_b32 s{sT1}, s{sT1}, 2")
        a(f"s_add_u32 s{sT1}, s{sT1}, 4000")
        a.label("L_probe")
        a(f"s_memrealtime s[{sP}:{sP+1}]")
        a("s_waitcnt lgkmcnt(0)")
        a(f"s_sub_u32 s{sT0}, s{sP}, s96")
        a(f"s_cmp_lt_u32 s{sT0}, s{sT1}")
        a("s_cbranch_scc1 L_probe")
    if opt.pad:
        a.label("L_pad")
        a(f"s_memrealtime s[{sP}:{sP+1}]")
        a("s_waitcnt lgkmcnt(0)")
        a(f"s_sub_u32 s{sT0}, s{sP}, s96")
        a(f"s_cmp_lt_u32 s{sT0}, {opt.pad}")
        a("s_cbranch_scc1 L_pad")
    if opt.prof:
        a("s_waitcnt vmcnt(0)")
        stamp(a, opt, 14)
        make_srd(a, sX, 18, 65536, WS_PROF)
        a(f"s_lshl_b32 s{sT0}, s{sWG}, 2")
        a(f"s_add_u32 s{sT0}, s{sT0}, s{sWAVE}")
        a(f"s_lshl_b32 s{sT0}, s{sT0}, 6")
        a(f"v_mov_b32 v{vT}, s{sT0}")
        a("s_mov_b64 exec, 1")
        for i in range(15):
            a(f"v_mov_b32 v100, s{sPROF+i}")
            a(f"buffer_store_dword v100, v{vT}, {srd(sX)}, 0 offen offset:{4*i}")
            a("s_nop 1")
        a("s_waitcnt vmcnt(0)")
    a.label("L_done")
    a("s_endpgm")
    a.raw('.section .rodata,"a"')
    a.raw(".p2align 6")
    a.raw(f".amdhsa_kernel {KN}")
    for l in ["next_free_vgpr 512", "next_free_sgpr 102", "accum_offset 256", "group_segment_fixed_size 0",
              "kernarg_size 64", "user_sgpr_count 2", "user_sgpr_kernarg_segment_ptr 1",
              "system_sgpr_workgroup_id_x 1", "float_denorm_mode_32 3"]:
        a.raw(f"  .amdhsa_{l}")
    a.raw(".end_amdhsa_kernel")
    return "\n".join(a.L) + "\n"

def parse(argv=None):
    ap = argparse.ArgumentParser()
    ap.add_argument("-o", default="standalone__mixer_token_mlp__prompt.s")
    ap.add_argument("--prof", type=int, default=0)
    ap.add_argument("--rot", type=int, default=2)
    ap.add_argument("--spin", type=int, default=20000)
    ap.add_argument("--sleep", type=int, default=8)
    ap.add_argument("--depth", type=int, default=3)
    ap.add_argument("--lnprof", type=int, default=0)
    ap.add_argument("--hbits", default="sc1")
    ap.add_argument("--pfwait", type=int, default=1)
    ap.add_argument("--hold", type=int, default=0)
    ap.add_argument("--probe", type=int, default=-1)
    ap.add_argument("--probe0", type=int, default=-1)
    ap.add_argument("--probecyc", type=int, default=0)
    ap.add_argument("--probewg", type=int, default=100)
    ap.add_argument("--probew", type=int, default=2)
    ap.add_argument("--t13", type=int, default=1)
    ap.add_argument("--tt", type=int, default=2)
    ap.add_argument("--e2", type=int, default=0)
    ap.add_argument("--e3", type=int, default=0)
    ap.add_argument("--nb2", type=int, default=0)
    ap.add_argument("--e1", type=int, default=1)
    ap.add_argument("--nb", type=int, default=2)
    ap.add_argument("--nearly", type=int, default=2)
    ap.add_argument("--dpl", type=int, default=5)
    ap.add_argument("--dp", type=int, default=3)
    ap.add_argument("--p1", type=int, default=1)
    ap.add_argument("--p2", type=int, default=1)
    ap.add_argument("--rota1", type=int, default=0)
    ap.add_argument("--rota2", type=int, default=0)
    ap.add_argument("--xbits", default="")
    ap.add_argument("--w1bits", default="")
    ap.add_argument("--w2bits", default="")
    ap.add_argument("--pfbits", default="")
    ap.add_argument("--pfdepth", type=int, default=8)
    ap.add_argument("--prio", type=int, default=3)
    ap.add_argument("--delay", type=int, default=0)
    ap.add_argument("--hstride", type=int, default=8)
    ap.add_argument("--gstride", type=int, default=256)
    ap.add_argument("--pf", type=int, default=0)
    ap.add_argument("--pad", type=int, default=0)
    ap.add_argument("--obits", default="sc1")
    return ap.parse_args(argv)

if __name__ == "__main__":
    opt = parse()
    open(opt.o, "w").write(gen(opt))
```

```python
import argparse, struct

S, D, F = 2048, 640, 1728
KN = "standalone__mixer_token_mlp__prompt_kernel"

WS_H = 0
H_BYTES = 64 * 40 * 1024
WS_G = 0x300000
G_BYTES = 54 * 40 * 1024
WS_FLAG = 0x600000
FLAG_H = 0
FLAG_G = 0x10000
FLAG_BYTES = 0x40000
WS_PROF = 0x700000

LDS_BYTES = 163840
LN_BASE = 131072
LN_ROW = 1344
LF_BASE = 141824
P0_BASE = [0, 49152, 98304, 122880]

sWG = 2
sX, sW1, sW2, sH, sG, sO, sF, sB1, sB2, sD = 20, 24, 28, 32, 36, 40, 44, 48, 52, 56
sWAVE, sXCD, sJ, sFT, sDT1, sST, sDT2, sNONCE = 60, 61, 62, 63, 64, 65, 66, 67
sT0, sT1, sT2, sT3, sT4, sT5 = 68, 69, 70, 71, 72, 73
sROT1, sROT2, sSTEP, sOFF = 74, 75, 76, 77
sM0B, sSPIN = 78, 79
sP = 80
sPROF = 84
sUP = 99
sJLIM, sIDLE = 100, 101
sWB = 3

vTID, vLANE = 0, 1
vTR = 2
vA, vA2, vDMA, vT2 = 6, 7, 8, 9
vB1 = 10
vB2, vT = 14, 15
vACC = 16
vRING = 96
vTRU = 176
vL0, vL1, vL2 = 180, 181, 182
vC0 = 184
BI = 186
vPOLL = 194
vX = 196
vDM = 200

def srd(n): return f"s[{n}:{n+3}]"
def vr(n, c=1): return f"v{n}" if c == 1 else f"v[{n}:{n+c-1}]"
def ar(n, c=1): return f"a{n}" if c == 1 else f"a[{n}:{n+c-1}]"
def f2h(x): return "0x%08x" % struct.unpack("<I", struct.pack("<f", x))[0]
C0 = -2.0 * 0.7978845608028654 * 1.4426950408889634
C1 = C0 * 0.044715

class Asm:
    def __init__(self):
        self.L = []; self.vm = []; self.uid = 0
    def __call__(self, s): self.L.append("    " + s)
    def label(self, s): self.L.append(s + ":")
    def raw(self, s): self.L.append(s)
    def c(self, s): self.L.append("    ; " + s)
    def vmem(self, s, tag):
        self(s); self.vm.append(tag)
    def wait_vm(self, tag):
        hits = [i for i, t in enumerate(self.vm) if t == tag]
        if not hits: return
        n = len(self.vm) - 1 - hits[-1]
        self(f"s_waitcnt vmcnt({min(n, 63)})")
        self.vm = self.vm[hits[-1] + 1:]
    def wait_vm0(self):
        self("s_waitcnt vmcnt(0)"); self.vm = []
    def newlabel(self, p):
        self.uid += 1
        return f"L_{p}_{self.uid}"

def acc1(mt, nt): return vACC + (mt * 5 + nt) * 4
def acc2(mt, nt): return vACC + (mt * 4 + nt) * 4
def wfrag(step, t): return step * 16 + t * 4

def stamp(a, opt, idx, force=False):
    if opt.probe >= 0:
        ins = "s_memtime" if opt.probecyc else "s_memrealtime"
        if idx == opt.probe:
            a(f"{ins} s[{sP}:{sP+1}]")
            a("s_waitcnt lgkmcnt(0)")
            a(f"s_mov_b32 s{sPROF+1}, s{sP}")
        if idx == opt.probe0:
            a(f"{ins} s[{sP}:{sP+1}]")
            a("s_waitcnt lgkmcnt(0)")
            a(f"s_mov_b32 s{sPROF+2}, s{sP}")
        return
    if opt.lnprof and idx in (4, 5) and getattr(a, "ln_done", False): return
    if opt.prof:
        a(f"s_mem{'time' if opt.prof == 2 else 'realtime'} s[{sP}:{sP+1}]")
        a("s_waitcnt lgkmcnt(0)")
        a(f"s_mov_b32 s{sPROF+idx}, s{sP}")

def make_srd(a, n, lo, size, add=0):
    if add:
        a(f"s_add_u32 s{n}, s{lo}, {add}")
        a(f"s_addc_u32 s{n+1}, s{lo+1}, 0")
        a(f"s_and_b32 s{n+1}, s{n+1}, 0xffff")
    else:
        a(f"s_mov_b32 s{n}, s{lo}")
        a(f"s_and_b32 s{n+1}, s{lo+1}, 0xffff")
    a(f"s_mov_b32 s{n+2}, {size}")
    a(f"s_mov_b32 s{n+3}, 0x20000")

def nonce_spin(a, opt):
    lp = a.newlabel("nonce"); dn = a.newlabel("nonced")
    a(f"s_cmp_lg_u32 s{sNONCE}, 0")
    a(f"s_cbranch_scc1 {dn}")
    a(f"s_mov_b32 s{sSPIN}, 0")
    a(f"v_mov_b32 v{vT}, 0")
    a.label(lp)
    a(f"buffer_load_dword v{vT2}, v{vT}, {srd(sD)}, 0 offen sc1")
    a("s_waitcnt vmcnt(0)")
    a(f"v_readfirstlane_b32 s{sNONCE}, v{vT2}")
    a(f"s_add_u32 s{sSPIN}, s{sSPIN}, 1")
    a(f"s_cmp_lg_u32 s{sNONCE}, 0")
    a(f"s_cbranch_scc1 {dn}")
    a(f"s_cmp_lt_u32 s{sSPIN}, {opt.spin}")
    a(f"s_cbranch_scc1 {lp}")
    a.label(dn)

def lds_set(a, addr_sgpr_or_imm):
    a(f"v_mov_b32 v{vT}, {addr_sgpr_or_imm}")
    a(f"v_mov_b32 v{vT2}, 1")
    a(f"s_mov_b64 s[{sP}:{sP+1}], exec")
    a("s_mov_b64 exec, 1")
    a(f"ds_write_b32 v{vT}, v{vT2}")
    a(f"s_mov_b64 exec, s[{sP}:{sP+1}]")

def lds_spin(a, opt, addr):
    lp = a.newlabel("lspin"); dn = a.newlabel("lspun")
    a(f"v_mov_b32 v{vT}, {addr}")
    a(f"s_mov_b32 s{sSPIN}, 0")
    a.label(lp)
    a(f"ds_read_b32 v{vT2}, v{vT}")
    a("s_waitcnt lgkmcnt(0)")
    a(f"v_readfirstlane_b32 s{sP}, v{vT2}")
    a(f"s_add_u32 s{sSPIN}, s{sSPIN}, 1")
    a(f"s_cmp_lg_u32 s{sP}, 0")
    a(f"s_cbranch_scc1 {dn}")
    a(f"s_cmp_lt_u32 s{sSPIN}, {opt.spin * 8}")
    a(f"s_cbranch_scc1 {lp}")
    a.label(dn)

def dma_addr(a, stride, s_tile):
    a(f"v_lshrrev_b32 v{vT}, 3, v{vLANE}")
    a(f"v_lshrrev_b32 v{vT2}, 1, v{vT}")
    a(f"v_lshlrev_b32 v{vT2}, 1, v{vT2}")
    a(f"v_and_b32 v{vDM}, 7, v{vLANE}")
    a(f"v_xor_b32 v{vDM}, v{vDM}, v{vT2}")
    a(f"v_lshlrev_b32 v{vDM}, 4, v{vDM}")
    a(f"v_mul_u32_u24 v{vT}, {stride}, v{vT}")
    a(f"v_add_u32 v{vDM}, v{vDM}, v{vT}")
    a(f"s_lshl_b32 s{sT0}, s{s_tile}, 7")
    a(f"v_add_u32 v{vDM}, s{sT0}, v{vDM}")
    for b in range(1, 4):
        a(f"v_add_u32 v{vDM+b}, {b*(8*stride-1024)}, v{vDM}")

def step_off(a, dst, s_base, s_rot, i, nsteps, bytes_per_step):
    a(f"s_add_u32 s{sT4}, s{s_rot}, {i}")
    a(f"s_cmp_ge_u32 s{sT4}, {nsteps}")
    a(f"s_cselect_b32 s{dst}, {nsteps}, 0")
    a(f"s_sub_u32 s{sT4}, s{sT4}, s{dst}")
    a(f"s_mul_i32 s{sT4}, s{sT4}, {bytes_per_step}")
    a(f"s_add_u32 s{dst}, s{sT4}, s{s_base}")

def dma_step(a, srdn, stride, s_rowbase, s_rot, step, nsteps, s_lds, lds_off, tag, bits=""):
    a(f"s_add_u32 m0, s{s_lds}, {lds_off}")
    step_off(a, sOFF, s_rowbase, s_rot, step, nsteps, 32 * stride)
    for blk in range(4):
        a.vmem(f"buffer_load_dwordx4 v{vDM+blk}, {srd(srdn)}, s{sOFF} offen offset:{blk*1024} {bits} lds", tag)

def tr_step(a, vbase, off, step):
    for t in range(4):
        w = wfrag(step, t)
        a(f"ds_read_b64_tr_b16 {ar(w,2)}, v{vbase+t} offset:{off}")
        a(f"ds_read_b64_tr_b16 {ar(w+2,2)}, v{vbase+t} offset:{off+2048}")

def poll(a, opt, vaddr, nd, lanes):
    lp = a.newlabel("poll"); dn = a.newlabel("polled")
    a(f"s_mov_b32 s{sSPIN}, 0")
    a.label(lp)
    ld = {1: "dword", 2: "dwordx2"}[nd]
    a(f"buffer_load_{ld} {vr(vPOLL, nd)}, v{vaddr}, {srd(sF)}, 0 offen sc1")
    a("s_waitcnt vmcnt(0)")
    a(f"v_cmp_ne_u32 vcc, s{sNONCE}, v{vPOLL}")
    if nd == 2:
        a(f"v_cmp_ne_u32 s[{sP}:{sP+1}], s{sNONCE}, v{vPOLL+1}")
        a(f"s_or_b64 vcc, vcc, s[{sP}:{sP+1}]")
    if lanes is not None:
        a(f"s_and_b64 vcc, vcc, s[{lanes}:{lanes+1}]")
    a(f"s_add_u32 s{sSPIN}, s{sSPIN}, 1")
    a("s_cmp_eq_u64 vcc, 0")
    a(f"s_cbranch_scc1 {dn}")
    if opt.sleep: a(f"s_sleep {opt.sleep}")
    a(f"s_cmp_lt_u32 s{sSPIN}, {opt.spin}")
    a(f"s_cbranch_scc1 {lp}")
    a.label(dn)
    a.vm = []

def flag_store(a, s_index_bytes):
    a(f"v_mov_b32 v{vT}, s{s_index_bytes}")
    a(f"v_mov_b32 v{vT2}, s{sNONCE}")
    a(f"s_mov_b64 s[{sP}:{sP+1}], exec")
    a("s_mov_b64 exec, 1")
    a.vmem(f"buffer_store_dword v{vT2}, v{vT}, {srd(sF)}, 0 offen sc1", "flag")
    a(f"s_mov_b64 exec, s[{sP}:{sP+1}]")

def gelu_pairs(a, regs, tmp, fill=None):
    def each(fn):
        for i, r in enumerate(regs): fn(r, tmp + 2 * i)
    each(lambda r, t: a(f"v_pk_mul_f32 {vr(t,2)}, {vr(r,2)}, {vr(r,2)}"))
    each(lambda r, t: a(f"v_pk_fma_f32 {vr(t,2)}, {vr(t,2)}, s[100:101], {vr(vC0,2)}"))
    each(lambda r, t: a(f"v_pk_mul_f32 {vr(t,2)}, {vr(t,2)}, {vr(r,2)}"))
    if fill: fill()
    each(lambda r, t: (a(f"v_exp_f32 v{t}, v{t}"), a(f"v_exp_f32 v{t+1}, v{t+1}")))
    each(lambda r, t: a(f"v_pk_add_f32 {vr(t,2)}, {vr(t,2)}, 1.0 op_sel_hi:[1,0]"))
    each(lambda r, t: (a(f"v_rcp_f32 v{t}, v{t}"), a(f"v_rcp_f32 v{t+1}, v{t+1}")))
    a("s_nop 0")
    each(lambda r, t: a(f"v_pk_mul_f32 {vr(r,2)}, {vr(r,2)}, {vr(t,2)}"))

def w2_slot(step):
    if step < 8: return sM0B, step * 4096, vTR, step * 4096
    if step < 10: return sUP, (step - 8) * 4096, vTRU, (step - 8) * 4096
    return sM0B, (step - 10) * 4096, vTR, (step - 10) * 4096

def w2_dma(a, step):
    sb, off, _, _ = w2_slot(step)
    dma_step(a, sW2, S * 2, sWB, sROT2, step, 14, sb, off, f"w2_{step}", OPT.w2bits)

def w2_dma_parts(a, step):
    sb, off, _, _ = w2_slot(step)
    def setup():
        a(f"s_add_u32 m0, s{sb}, {off}")
        step_off(a, sOFF, sWB, sROT2, step, 14, 32 * S * 2)
    def one(blk):
        return lambda: a.vmem(f"buffer_load_dwordx4 v{vDM+blk}, {srd(sW2)}, s{sOFF} offen offset:{blk*1024} {OPT.w2bits} lds", f"w2_{step}")
    return [setup] + [one(b) for b in range(4)]

def w2_tr(a, step):
    _, _, vb, off = w2_slot(step)
    tr_step(a, vb, off, step)

def gen(opt):
    global OPT
    OPT = opt
    a = Asm()
    NS = opt.depth + 1
    def ring(slot, t): return vRING + slot * 20 + t * 4
    a.raw(f"; @launch grid=(256,1,1) block=(256,1,1) lds={LDS_BYTES}")
    a.raw('.amdgcn_target "amdgcn-amd-amdhsa--gfx950"')
    a.raw(".text")
    a.raw(f".globl {KN}")
    a.raw(".p2align 8")
    a.raw(f".type {KN},@function")
    a.label(KN)
    a(f"s_cmp_ge_u32 s{sWG}, 256")
    a("s_cbranch_scc1 L_done")
    a("s_load_dwordx16 s[4:19], s[0:1], 0")
    if opt.prof:
        a(f"s_mem{'time' if opt.prof == 2 else 'realtime'} s[{sP}:{sP+1}]")
    if opt.prof:
        for i in range(1, 15): a(f"s_mov_b32 s{sPROF+i}, 0")
    if opt.pad or opt.probe >= 0:
        a("s_memrealtime s[96:97]")
    a(f"v_lshrrev_b32 v{vT}, 6, v{vTID}")
    a(f"v_and_b32 v{vLANE}, 63, v{vTID}")
    a(f"v_readfirstlane_b32 s{sWAVE}, v{vT}")
    a(f"s_and_b32 s{sXCD}, s{sWG}, 7")
    a(f"s_lshr_b32 s{sJ}, s{sWG}, 3")
    if opt.p1 == 2:
        a(f"s_lshr_b32 s{sT1}, s{sXCD}, 1")
        a(f"s_and_b32 s{sT2}, s{sXCD}, 1")
        a(f"s_lshl_b32 s{sT2}, s{sT2}, 2")
        a(f"s_mul_i32 s{sT0}, s{sT1}, 7")
        a(f"s_lshr_b32 s{sFT}, s{sJ}, 2")
        a(f"s_add_u32 s{sFT}, s{sFT}, s{sT0}")
        a(f"s_and_b32 s{sT3}, s{sJ}, 3")
        a(f"s_add_u32 s{sDT1}, s{sT2}, s{sT3}")
        if opt.rot8: a(f"s_lshl_b32 s{sROT1}, s{sDT1}, 1")
        else: a(f"s_lshl_b32 s{sROT1}, s{sT3}, 2")
        a(f"s_cmp_eq_u32 s{sT1}, 3")
        a(f"s_cselect_b32 s{sJLIM}, 24, 28")
        a(f"s_lshl_b32 s{sT0}, s{sXCD}, 2")
        a(f"s_sub_u32 s{sT0}, s{sT0}, 28")
        a(f"s_lshl_b32 s{sT3}, s{sXCD}, 3")
        a(f"s_sub_u32 s{sT3}, s{sT3}, 48")
        a(f"s_cselect_b32 s{sIDLE}, s{sT0}, s{sT0}")
        a(f"s_cmp_ge_u32 s{sXCD}, 6")
        a(f"s_cselect_b32 s{sIDLE}, s{sT3}, s{sT0}")
        a(f"s_add_u32 s{sIDLE}, s{sIDLE}, s{sJ}")
    else:
        a(f"s_lshl_b32 s{sT0}, s{sXCD}, 2")
        a(f"s_mul_i32 s{sT1}, s{sXCD}, 3")
        a(f"s_add_u32 s{sT1}, s{sT1}, 3")
        a(f"s_cmp_lt_u32 s{sXCD}, 3")
        a(f"s_cselect_b32 s{sT0}, s{sT0}, s{sT1}")
        a(f"s_cselect_b32 s{sJLIM}, 32, 24")
        a(f"s_lshr_b32 s{sFT}, s{sJ}, 3")
        a(f"s_add_u32 s{sFT}, s{sFT}, s{sT0}")
        a(f"s_and_b32 s{sDT1}, s{sJ}, 7")
        a(f"s_lshl_b32 s{sROT1}, s{sDT1}, 1")
        a(f"s_lshl_b32 s{sIDLE}, s{sXCD}, 3")
        a(f"s_add_u32 s{sIDLE}, s{sIDLE}, s{sJ}")
        a(f"s_sub_u32 s{sIDLE}, s{sIDLE}, 48")
    if opt.rota1:
        a(f"s_mul_i32 s{sT0}, s{sFT}, {opt.rota1}")
        a(f"s_add_u32 s{sROT1}, s{sROT1}, s{sT0}")
        a(f"s_and_b32 s{sROT1}, s{sROT1}, 15")
    if opt.p2 == 2:
        a(f"s_lshr_b32 s{sT1}, s{sXCD}, 1")
        a(f"s_and_b32 s{sT2}, s{sXCD}, 1")
        a(f"s_lshl_b32 s{sT2}, s{sT2}, 2")
        a(f"s_lshr_b32 s{sT0}, s{sJ}, 2")
        a(f"s_lshl_b32 s{sST}, s{sT1}, 3")
        a(f"s_add_u32 s{sST}, s{sST}, s{sT0}")
        a(f"s_and_b32 s{sT3}, s{sJ}, 3")
        a(f"s_add_u32 s{sDT2}, s{sT2}, s{sT3}")
        if opt.rot8:
            a(f"s_mul_i32 s{sROT2}, s{sDT2}, 7")
            a(f"s_lshr_b32 s{sROT2}, s{sROT2}, 2")
        else:
            a(f"s_mul_i32 s{sROT2}, s{sT3}, 7")
            a(f"s_lshr_b32 s{sROT2}, s{sROT2}, 1")
    else:
        a(f"s_lshr_b32 s{sT0}, s{sJ}, 3")
        a(f"s_lshl_b32 s{sST}, s{sXCD}, 2")
        a(f"s_add_u32 s{sST}, s{sST}, s{sT0}")
        a(f"s_and_b32 s{sDT2}, s{sJ}, 7")
        a(f"s_mul_i32 s{sROT2}, s{sDT2}, 7")
        a(f"s_lshr_b32 s{sROT2}, s{sROT2}, 2")
    if opt.rota2:
        a(f"s_mul_i32 s{sT0}, s{sST}, {opt.rota2}")
        a(f"s_add_u32 s{sROT2}, s{sROT2}, s{sT0}")
        a(f"s_and_b32 s{sT0}, s{sROT2}, 0xff")
        a(f"s_mul_i32 s{sT0}, s{sROT2}, 18725")
        a(f"s_lshr_b32 s{sT0}, s{sT0}, 18")
        a(f"s_mul_i32 s{sT0}, s{sT0}, 14")
        a(f"s_sub_u32 s{sROT2}, s{sROT2}, s{sT0}")
    if not (opt.rot & 1): a(f"s_mov_b32 s{sROT1}, 0")
    if not (opt.rot & 2): a(f"s_mov_b32 s{sROT2}, 0")
    a(f"s_lshl_b32 s{sM0B}, s{sWAVE}, 15")
    a(f"s_lshl_b32 s{sUP}, s{sWAVE}, 13")
    a(f"s_add_u32 s{sUP}, s{sUP}, 131072")
    def tr_addr(base_sgpr):
        t0, t1, t2 = vX, vX + 1, vX + 2
        a(f"v_lshrrev_b32 v{t0}, 4, v{vLANE}")
        a(f"v_and_b32 v{t1}, 1, v{t0}")
        a(f"v_lshlrev_b32 v{t1}, 2, v{t1}")
        a(f"v_bfe_u32 v{t2}, v{vLANE}, 2, 2")
        a(f"v_add_u32 v{t1}, v{t1}, v{t2}")
        a(f"v_lshrrev_b32 v{t0}, 1, v{t0}")
        a(f"v_lshlrev_b32 v{t0}, 10, v{t0}")
        a(f"v_lshlrev_b32 v{t2}, 7, v{t1}")
        a(f"v_add_u32 v{t0}, v{t0}, v{t2}")
        a(f"v_and_b32 v{t2}, 3, v{vLANE}")
        a(f"v_lshlrev_b32 v{t2}, 3, v{t2}")
        a(f"v_add_u32 v{t0}, v{t0}, v{t2}")
        a(f"v_add_u32 v{t0}, s{base_sgpr}, v{t0}")
        a(f"v_lshrrev_b32 v{t1}, 1, v{t1}")
        for t in range(4):
            a(f"v_xor_b32 v{t2}, {t}, v{t1}")
            a(f"v_lshlrev_b32 v{t2}, 5, v{t2}")
            a(f"v_add_u32 v{vTR+t}, v{t0}, v{t2}")
    def w1_dma(i): dma_step(a, sW1, F * 2, sWB, sROT1, i, 16, sM0B, (i % 8) * 4096, f"w1_{i}", opt.w1bits)
    def w1_stream(first, dp):
        retired = 0
        def retire():
            nonlocal retired
            a.wait_vm(f"w1_{retired}")
            if retired: a("s_waitcnt lgkmcnt(0)")
            tr_step(a, vTR, (retired % 8) * 4096, retired)
            retired += 1
        for i in range(first, 16):
            while retired <= i - dp: retire()
            if i >= 8:
                while retired <= i - 8: retire()
                if retired == i - 7: a("s_waitcnt lgkmcnt(0)")
            w1_dma(i)
        while retired < 16: retire()
        a("s_waitcnt lgkmcnt(0)")
    dma_addr(a, F * 2, sFT)
    a(f"s_mul_i32 s{sWB}, s{sWAVE}, {512*F*2}")
    a(f"s_cmp_ge_u32 s{sWAVE}, 2")
    a("s_cbranch_scc1 L_loader")

    a.c("LayerNorm: wave w normalises rows 32*ks + 16*w + 4*q + (0..3), 16 lanes per row")
    XR, XF, TM = 96, 120, 160
    if opt.prio: a(f"s_setprio {opt.prio}")
    a(f"s_lshr_b32 s{sT0}, s{sWG}, 2")
    a(f"s_and_b32 s{sT1}, s{sWG}, 3")
    a(f"s_lshl_b32 s{sT2}, s{sT0}, 5")
    a(f"s_lshl_b32 s{sT3}, s{sWAVE}, 4")
    a(f"s_add_u32 s{sT2}, s{sT2}, s{sT3}")
    a(f"s_lshl_b32 s{sT3}, s{sT1}, 2")
    a(f"s_add_u32 s{sT2}, s{sT2}, s{sT3}")
    a(f"s_mul_i32 s{sT2}, s{sT2}, 1280")
    a(f"v_lshrrev_b32 v{TM}, 4, v{vLANE}")
    a(f"v_and_b32 v{TM+1}, 15, v{vLANE}")
    a(f"v_mul_u32_u24 v{TM+2}, 1280, v{TM}")
    a(f"v_lshlrev_b32 v{TM+3}, 4, v{TM+1}")
    a(f"v_add_u32 v{TM+2}, v{TM+2}, v{TM+3}")
    a(f"v_mov_b32 v{vT}, 0")
    a("s_waitcnt lgkmcnt(0)")
    if opt.prof: a(f"s_mov_b32 s{sPROF}, s{sP}")
    make_srd(a, sX, 4, S * D * 2)
    for i in range(5):
        a.vmem(f"buffer_load_dwordx4 {vr(XR+4*i,4)}, v{TM+2}, {srd(sX)}, s{sT2} offen offset:{i*256} {opt.xbits}", "x")
    make_srd(a, sD, 16, 256)
    a.vmem(f"buffer_load_dword v{vPOLL}, v{vT}, {srd(sD)}, 0 offen sc1", "nonce")
    make_srd(a, sW1, 6, S * F * 2)
    a(f"s_cmp_ge_u32 s{sJ}, s{sJLIM}")
    a("s_cbranch_scc1 L_ln_now1")
    for i in range(opt.nearly): w1_dma(i)
    a.label("L_ln_now1")
    a("s_barrier")
    make_srd(a, sH, 18, H_BYTES, WS_H)
    make_srd(a, sF, 18, FLAG_BYTES, WS_FLAG)
    a(f"s_mul_i32 s{sSTEP}, s{sT0}, 40960")
    a(f"s_lshl_b32 s{sT1}, s{sT1}, 8")
    a(f"s_add_u32 s{sSTEP}, s{sSTEP}, s{sT1}")
    a(f"s_lshl_b32 s{sT3}, s{sWAVE}, 2")
    a(f"v_add_u32 v{TM+4}, s{sT3}, v{TM}")
    a(f"v_mul_u32_u24 v{TM+4}, {LN_ROW}, v{TM+4}")
    a(f"v_add_u32 v{TM+4}, v{TM+4}, v{TM+3}")
    a(f"v_add_u32 v{TM+4}, {LN_BASE}, v{TM+4}")
    a(f"v_bfe_u32 v{TM+5}, v{vLANE}, 2, 2")
    a(f"v_mul_u32_u24 v{TM+5}, {LN_ROW}, v{TM+5}")
    a(f"s_mul_i32 s{sT3}, s{sWAVE}, 20")
    a(f"v_add_u32 v{TM+6}, s{sT3}, v{TM}")
    a(f"v_lshlrev_b32 v{TM+7}, 5, v{TM+6}")
    a(f"v_add_u32 v{TM+5}, v{TM+5}, v{TM+7}")
    a(f"v_and_b32 v{TM+7}, 3, v{vLANE}")
    a(f"v_lshlrev_b32 v{TM+7}, 3, v{TM+7}")
    a(f"v_add_u32 v{TM+5}, v{TM+5}, v{TM+7}")
    a(f"v_add_u32 v{TM+5}, {LN_BASE}, v{TM+5}")
    a(f"v_lshlrev_b32 v{TM+6}, 10, v{TM+6}")
    a(f"v_add_u32 v{TM+6}, v{TM+6}, v{TM+3}")
    a(f"s_mov_b32 s{sT0}, 0xffff0000")
    a(f"s_cmp_ge_u32 s{sJ}, s{sJLIM}")
    a("s_cbranch_scc1 L_ln_idle")
    a(f"s_waitcnt vmcnt({1 + 4*opt.nearly})")
    a("s_branch L_ln_go")
    a.label("L_ln_idle")
    a("s_waitcnt vmcnt(1)")
    a.label("L_ln_go")
    a.vm = [t for t in a.vm if t != "x"]
    stamp(a, opt, 1)
    for i in range(20):
        a(f"v_lshlrev_b32 v{XF+2*i}, 16, v{XR+i}")
        a(f"v_and_b32 v{XF+2*i+1}, s{sT0}, v{XR+i}")
    SM = TM + 8
    for k in range(4):
        a(f"v_pk_add_f32 {vr(SM+2*k,2)}, {vr(XF+2*k,2)}, {vr(XF+8+2*k,2)}")
    for i in range(8, 20):
        k = i % 4
        a(f"v_pk_add_f32 {vr(SM+2*k,2)}, {vr(SM+2*k,2)}, {vr(XF+2*i,2)}")
    def reduce_row(dst):
        a(f"v_pk_add_f32 {vr(SM,2)}, {vr(SM,2)}, {vr(SM+2,2)}")
        a(f"v_pk_add_f32 {vr(SM+4,2)}, {vr(SM+4,2)}, {vr(SM+6,2)}")
        a(f"v_pk_add_f32 {vr(SM,2)}, {vr(SM,2)}, {vr(SM+4,2)}")
        a(f"v_add_f32 v{dst}, v{SM}, v{SM+1}")
        for rot in (8, 4, 2, 1):
            a("s_nop 1")
            a(f"v_add_f32_dpp v{dst}, v{dst}, v{dst} row_ror:{rot} row_mask:0xf bank_mask:0xf")
    MN = TM + 16
    reduce_row(MN)
    a(f"v_mul_f32 v{MN}, {f2h(1.0/640.0)}, v{MN}")
    a(f"v_mov_b32 v{MN+1}, v{MN}")
    for i in range(20):
        a(f"v_pk_add_f32 {vr(XF+2*i,2)}, {vr(XF+2*i,2)}, {vr(MN,2)} neg_lo:[0,1] neg_hi:[0,1]")
    for k in range(4):
        a(f"v_pk_mul_f32 {vr(SM+2*k,2)}, {vr(XF+2*k,2)}, {vr(XF+2*k,2)}")
    for i in range(4, 20):
        k = i % 4
        a(f"v_pk_fma_f32 {vr(SM+2*k,2)}, {vr(XF+2*i,2)}, {vr(XF+2*i,2)}, {vr(SM+2*k,2)}")
    reduce_row(MN)
    a(f"v_mov_b32 v{MN+1}, {f2h(1e-5)}")
    a(f"v_fmac_f32 v{MN+1}, {f2h(1.0/640.0)}, v{MN}")
    a(f"v_rsq_f32 v{MN}, v{MN+1}")
    a("s_nop 0")
    a(f"v_mov_b32 v{MN+1}, v{MN}")
    for i in range(20):
        a(f"v_pk_mul_f32 {vr(XF+2*i,2)}, {vr(XF+2*i,2)}, {vr(MN,2)}")
    for i in range(20):
        a(f"v_cvt_pk_bf16_f32 v{XR+i}, v{XF+2*i}, v{XF+2*i+1}")
    if opt.lnprof: stamp(a, opt, 4)
    for i in range(5):
        a(f"ds_write_b128 v{TM+4}, {vr(XR+4*i,4)} offset:{i*256}")
    a(f"s_lshl_b32 s{sT0}, s{sWAVE}, 2")
    a(f"s_add_u32 s{sT1}, s{sT0}, {LF_BASE}")
    a(f"s_xor_b32 s{sT0}, s{sT0}, 4")
    a(f"s_add_u32 s{sT0}, s{sT0}, {LF_BASE}")
    a("s_waitcnt lgkmcnt(0)")
    lds_set(a, f"s{sT1}")
    lds_spin(a, opt, f"s{sT0}")
    if opt.lnprof: stamp(a, opt, 5)
    for i in range(5):
        a(f"ds_read_b64_tr_b16 {vr(XF+4*i,2)}, v{TM+5} offset:{i*128}")
        a(f"ds_read_b64_tr_b16 {vr(XF+4*i+2,2)}, v{TM+5} offset:{i*128+4*LN_ROW}")
    for i in range(5):
        a(f"s_waitcnt lgkmcnt({8-2*i})")
        a(f"s_add_u32 s{sT0}, s{sSTEP}, {i*4096}")
        a.vmem(f"buffer_store_dwordx4 {vr(XF+4*i,4)}, v{TM+6}, {srd(sH)}, s{sT0} offen {opt.hbits}", "h")
    stamp(a, opt, 2)
    a("s_waitcnt vmcnt(5)")
    a(f"v_readfirstlane_b32 s{sNONCE}, v{vPOLL}")
    nonce_spin(a, opt)
    a.wait_vm0()
    a(f"s_mul_i32 s{sT0}, s{sWG}, {opt.hstride}")
    a(f"s_lshl_b32 s{sT1}, s{sWAVE}, 2")
    a(f"s_add_u32 s{sT0}, s{sT0}, s{sT1}")
    flag_store(a, sT0)
    a(f"s_lshl_b32 s{sT0}, s{sWAVE}, 2")
    a(f"s_add_u32 s{sT0}, s{sT0}, {LF_BASE + 8}")
    lds_set(a, f"s{sT0}")
    stamp(a, opt, 3)
    if opt.prio: a("s_setprio 0")
    a.ln_done = True
    a("s_branch L_roles_done")

    a.label("L_loader")
    a.vm = []
    a(f"v_lshlrev_b32 v{vX}, 2, v{vLANE}")
    a(f"v_add_u32 v{vX}, {LF_BASE}, v{vX}")
    a(f"v_mov_b32 v{vX+1}, 0")
    a(f"ds_write_b32 v{vX}, v{vX+1}")
    a("s_waitcnt lgkmcnt(0)")
    if opt.prof: a(f"s_mov_b32 s{sPROF}, s{sP}")
    make_srd(a, sW1, 6, S * F * 2)
    make_srd(a, sD, 16, 256)
    a(f"s_cmp_lg_u32 s{sWG}, 0")
    a("s_cbranch_scc1 L_nononce")
    a(f"s_cmp_lg_u32 s{sWAVE}, 3")
    a("s_cbranch_scc1 L_nononce")
    a(f"s_memrealtime s[{sP}:{sP+1}]")
    a("s_waitcnt lgkmcnt(0)")
    a(f"s_or_b32 s{sT0}, s{sP}, 1")
    a(f"v_mov_b32 v{vT2}, s{sT0}")
    a(f"v_mov_b32 v{vT}, 0")
    a(f"s_mov_b64 s[{sP}:{sP+1}], exec")
    a("s_mov_b64 exec, 1")
    a(f"buffer_store_dword v{vT2}, v{vT}, {srd(sD)}, 0 offen sc1")
    a(f"s_mov_b64 exec, s[{sP}:{sP+1}]")
    a.label("L_nononce")
    a(f"s_cmp_ge_u32 s{sJ}, s{sJLIM}")
    a("s_cbranch_scc1 L_loader_idle")
    for i in range(2): w1_dma(i)
    a("s_barrier")
    tr_addr(sM0B)
    if opt.hold:
        lds_spin(a, opt, LF_BASE + 8)
        lds_spin(a, opt, LF_BASE + 12)
    w1_stream(2, opt.dp)
    a(f"s_mov_b32 s{sNONCE}, 0")
    nonce_spin(a, opt)
    a("s_branch L_w1_ready")
    a.label("L_loader_idle")
    a.vm = []
    a("s_barrier")
    if opt.pfwait:
        lds_spin(a, opt, LF_BASE + 8)
        lds_spin(a, opt, LF_BASE + 12)
    if opt.pf == 1:
        make_srd(a, sW2, 10, F * S * 2)
        a(f"s_lshl_b32 s{sT0}, s{sIDLE}, 1")
        a(f"s_add_u32 s{sT0}, s{sT0}, s{sWAVE}")
        a(f"s_sub_u32 s{sT0}, s{sT0}, 2")
        a(f"s_lshl_b32 s{sT0}, s{sT0}, 10")
        a(f"v_lshlrev_b32 v{vX}, 4, v{vLANE}")
        inc = 80 * 1024
        for k in range(87):
            o = vRING + (k % 20) * 4
            a.vmem(f"buffer_load_dwordx4 {vr(o,4)}, v{vX}, {srd(sW2)}, s{sT0} offen {opt.pfbits}", f"pf{k}")
            a(f"s_add_u32 s{sT0}, s{sT0}, {inc}")
            if k >= opt.pfdepth: a.wait_vm(f"pf{k-opt.pfdepth}")
    a(f"s_mov_b32 s{sNONCE}, 0")
    nonce_spin(a, opt)
    a("s_branch L_nogemm1")

    a.label("L_roles_done")
    a.vm = []
    a(f"s_cmp_ge_u32 s{sJ}, s{sJLIM}")
    a("s_cbranch_scc1 L_nogemm1")
    a.vm = []
    tr_addr(sM0B)
    for i in range(opt.nearly): a.vm.append(f"w1_{i}")
    a.vm.append("flag")
    w1_stream(opt.nearly, opt.dpl)

    def common_setup():
        make_srd(a, sH, 18, H_BYTES, WS_H)
        make_srd(a, sF, 18, FLAG_BYTES, WS_FLAG)
        make_srd(a, sB1, 8, F * 2)
        make_srd(a, sW2, 10, F * S * 2)
        make_srd(a, sB2, 12, S * 2)
        make_srd(a, sO, 14, S * D * 2)
        make_srd(a, sG, 18, G_BYTES, WS_G)
        a(f"v_lshrrev_b32 v{vT}, 4, v{vLANE}")
        a(f"v_lshlrev_b32 v{vT}, 3, v{vT}")
        a(f"s_and_b32 s{sT0}, s{sWAVE}, 1")
        a(f"s_lshl_b32 s{sT0}, s{sT0}, 6")
        a(f"s_lshl_b32 s{sT1}, s{sFT}, 7")
        a(f"s_add_u32 s{sT0}, s{sT0}, s{sT1}")
        a.vmem(f"buffer_load_dwordx2 {vr(vB1,2)}, v{vT}, {srd(sB1)}, s{sT0} offen", "b")
        a.vmem(f"buffer_load_dwordx2 {vr(vB1+2,2)}, v{vT}, {srd(sB1)}, s{sT0} offen offset:32", "b")
        a(f"v_and_b32 v{vT}, 15, v{vLANE}")
        a(f"v_lshlrev_b32 v{vT}, 1, v{vT}")
        a(f"s_lshl_b32 s{sT0}, s{sST}, 7")
        a(f"s_lshl_b32 s{sT1}, s{sWAVE}, 5")
        a(f"s_add_u32 s{sT0}, s{sT0}, s{sT1}")
        a.vmem(f"buffer_load_ushort v{vB2}, v{vT}, {srd(sB2)}, s{sT0} offen", "b")
        dma_addr(a, S * 2, sST)
        a(f"s_mul_i32 s{sWB}, s{sWAVE}, {448*S*2}")
        tr_addr(sM0B)
        a(f"s_sub_u32 s{sT0}, s{sUP}, s{sM0B}")
        for t in range(4):
            a(f"v_add_u32 v{vTRU+t}, s{sT0}, v{vTR+t}")
        a(f"v_lshlrev_b32 v{vL0}, 4, v{vLANE}")
        a(f"v_add_u32 v{vL1}, 65536, v{vL0}")
        a(f"v_add_u32 v{vL2}, 131072, v{vL0}")

    a.label("L_w1_ready")
    a.vm = []
    stamp(a, opt, 4)
    common_setup()
    a(f"s_mul_i32 s{sT0}, s{sDT1}, 5120")
    a(f"v_add_u32 v{vA}, s{sT0}, v{vL0}")
    a(f"v_add_u32 v{vA2}, 4096, v{vA}")
    a(f"s_lshl_b32 s{sT0}, s{sWAVE}, 6")
    a(f"v_add_u32 v{vX}, s{sT0}, v{vLANE}")
    a(f"v_mul_u32_u24 v{vX}, {opt.hstride}, v{vX}")
    poll(a, opt, vX, 2, None)
    a("s_barrier")
    stamp(a, opt, 5)

    def a_loads(srdn, step, nsteps, s_rot):
        slot = step % NS
        step_off(a, sOFF, sSTEP, s_rot, step, nsteps, 40960)
        return [f"buffer_load_dwordx4 {vr(ring(slot,t),4)}, v{vA if t < 4 else vA2}, {srd(srdn)}, s{sOFF} offen offset:{(t*1024) if t < 4 else 0} sc1" for t in range(5)]

    def main_loop(srdn, nsteps, s_rot, tagp, mfma, stamp0, tail, nuni):
        for st in range(opt.depth):
            for o, ins in enumerate(a_loads(srdn, st, nsteps, s_rot)): a.vmem(ins, f"{tagp}{st}_{o}")
        for st in range(nuni):
            nx = st + opt.depth
            nxt = a_loads(srdn, nx, nsteps, s_rot) if nx < nsteps else None
            a.wait_vm(f"{tagp}{st}_4")
            if st == 0 and stamp0 is not None: stamp(a, opt, stamp0)
            for o in range(5):
                if nxt: a.vmem(nxt[o], f"{tagp}{nx}_{o}")
                for i in range(4): mfma(st, o, i, st % NS)
                if tail: tail(st, o)

    def tile_tail(nsteps, tagp, first, last, frag_of, mfma_tile, write_tile, extra):
        ic = [0]
        done_at = {}
        queue = []
        extra = list(extra)
        def emit(fn):
            fn(); ic[0] += 1
        def filler():
            if queue and ic[0] - done_at[queue[0]] >= 9:
                t = queue.pop(0); emit(lambda: write_tile(t)); return
            if extra: emit(extra.pop(0))
        tiles = list(first) + list(last)
        for i in range(0, len(tiles), 2):
            pair = tiles[i:i + 2]
            for t in pair:
                for st in (nsteps - 2, nsteps - 1): a.wait_vm(f"{tagp}{st}_{frag_of(t)}")
            for st in (nsteps - 2, nsteps - 1):
                for t in pair:
                    emit(lambda: mfma_tile(st, t))
                    if st == nsteps - 1:
                        done_at[t] = ic[0]
                        if t in first: queue.append(t)
                    filler()
        while extra: emit(extra.pop(0))
        while queue:
            while ic[0] - done_at[queue[0]] < 9: emit(lambda: a("s_nop 0"))
            t = queue.pop(0); emit(lambda: write_tile(t))

    a(f"s_mul_i32 s{sSTEP}, s{sWAVE}, {16*40960}")
    def mfma1(st, nt, mt, slot):
        c = "0" if st == 0 else vr(acc1(mt, nt), 4)
        a(f"v_mfma_f32_16x16x32_bf16 {vr(acc1(mt,nt),4)}, {ar(wfrag(st,mt),4)}, {vr(ring(slot,nt),4)}, {c}")
    parts13 = w2_dma_parts(a, 0) if opt.t13 else []
    def tail1(st, o):
        if st == 13 and parts13:
            if o == 0: parts13[0]()
            else: parts13[o]()
    main_loop(sH, 16, sROT1, "h", mfma1, 6, tail1, 14)

    a(f"s_mov_b32 s100, {f2h(C1)}"); a(f"s_mov_b32 s101, {f2h(C1)}")
    a(f"v_mov_b32 v{vC0}, {f2h(C0)}"); a(f"v_mov_b32 v{vC0+1}, {f2h(C0)}")
    def lds_ref(addr):
        if addr < 65536: return vL0, addr
        if addr < 131072: return vL1, addr - 65536
        return vL2, addr - 131072
    def owner1(p, nt): return p + (0 if nt < 3 else 2)
    units = [(p, nt) for p in range(2) for nt in range(5)]
    def red1_addr(src, u):
        k = [x for x in units if owner1(*x) != src].index(u)
        return src * 32768 + 24576 + k * 2048 if k < 4 else 131072 + src * 8192 + (k - 4) * 2048
    saved_vm = list(a.vm)
    for w in range(4):
        if w < 3:
            a(f"s_cmp_lg_u32 s{sWAVE}, {w}")
            a(f"s_cbranch_scc1 L_ep1_{w+1}")
        a.vm = list(saved_vm)
        nis = [1 if opt.t13 else 0]
        def more(n, limit):
            for _ in range(n):
                if nis[0] < limit:
                    w2_dma(a, nis[0]); nis[0] += 1
        tl = [(2 * p + hf, nt) for nt in range(5) for p in range(2) for hf in range(2)]
        first = [t for t in tl if owner1(t[0] // 2, t[1]) != w]
        last = [t for t in tl if owner1(t[0] // 2, t[1]) == w]
        def wr1(t):
            vb, off = lds_ref(red1_addr(w, (t[0] // 2, t[1])) + (t[0] & 1) * 1024)
            a(f"ds_write_b128 v{vb}, {vr(acc1(*t),4)} offset:{off}")
        extra = []
        for _ in range(opt.tt):
            extra += w2_dma_parts(a, nis[0]); nis[0] += 1
        tile_tail(16, "h", first, last, lambda t: t[1], lambda st, t: mfma1(st, t[1], t[0], st % NS), wr1, extra)
        stamp(a, opt, 7)
        more(opt.e1, 6)
        a("s_waitcnt lgkmcnt(0)")
        a("s_barrier")
        own_u = [u for u in units if owner1(*u) == w]
        RT = vRING
        n = 0
        for u in own_u:
            for src in range(4):
                if src == w: continue
                for hf in range(2):
                    vb, off = lds_ref(red1_addr(src, u) + hf * 1024)
                    a(f"ds_read_b128 {vr(RT + n*4, 4)}, v{vb} offset:{off}")
                    n += 1
        a.wait_vm("b")
        for i in range(4):
            a(f"v_lshlrev_b32 v{BI+2*i}, 16, v{vB1+i}")
            a(f"v_and_b32 v{BI+2*i+1}, 0xffff0000, v{vB1+i}")
        for u in own_u:
            p, nt = u
            for hf in range(2):
                r = acc1(2*p+hf, nt)
                a(f"v_pk_add_f32 {vr(r,2)}, {vr(r,2)}, {vr(BI+4*hf,2)}")
                a(f"v_pk_add_f32 {vr(r+2,2)}, {vr(r+2,2)}, {vr(BI+4*hf+2,2)}")
        n = 0
        tot = len(own_u) * 6
        for u in own_u:
            p, nt = u
            for si in range(3):
                for hf in range(2):
                    a(f"s_waitcnt lgkmcnt({min(15, tot - n - 1)})")
                    r = acc1(2*p+hf, nt)
                    a(f"v_pk_add_f32 {vr(r,2)}, {vr(r,2)}, {vr(RT+n*4,2)}")
                    a(f"v_pk_add_f32 {vr(r+2,2)}, {vr(r+2,2)}, {vr(RT+n*4+2,2)}")
                    n += 1
        a("s_barrier")
        regs = []
        for u in own_u:
            p, nt = u
            for hf in range(2):
                r = acc1(2*p+hf, nt)
                regs += [r, r + 2]
        more(opt.e2, 10)
        gelu_pairs(a, regs, RT, fill=lambda: more(opt.e3, 10))
        a(f"s_lshl_b32 s{sT0}, s{sFT}, 1")
        a(f"s_add_u32 s{sT0}, s{sT0}, {w & 1}")
        a(f"s_mul_i32 s{sT0}, s{sT0}, 40960")
        a(f"s_mul_i32 s{sT1}, s{sDT1}, 5120")
        a(f"s_add_u32 s{sT0}, s{sT0}, s{sT1}")
        for i, u in enumerate(own_u):
            p, nt = u
            o = RT + 64 + 4 * i
            r0, r1 = acc1(2*p, nt), acc1(2*p+1, nt)
            a(f"v_cvt_pk_bf16_f32 v{o}, v{r0}, v{r0+1}")
            a(f"v_cvt_pk_bf16_f32 v{o+1}, v{r0+2}, v{r0+3}")
            a(f"v_cvt_pk_bf16_f32 v{o+2}, v{r1}, v{r1+1}")
            a(f"v_cvt_pk_bf16_f32 v{o+3}, v{r1+2}, v{r1+3}")
            a(f"s_add_u32 s{sT1}, s{sT0}, {nt*1024}")
            a.vmem(f"buffer_store_dwordx4 {vr(o,4)}, v{vL0}, {srd(sG)}, s{sT1} offen sc1", "g")
        stamp(a, opt, 8)
        more(opt.nb, 10)
        a.wait_vm("w2_3")
        if nis[0] >= 4:
            for st in range(4):
                w2_tr(a, st)
                if st % 2 == 1: a("s_waitcnt lgkmcnt(0)")
        if nis[0] == 10 and opt.nb2:
            for st in range(10, 10 + opt.nb2): w2_dma(a, st)
            nis[0] += opt.nb2
        a.wait_vm("g")
        a(f"s_lshl_b32 s{sT0}, s{sDT1}, 5")
        a(f"s_add_u32 s{sT0}, s{sT0}, s{sFT}")
        a(f"s_mul_i32 s{sT0}, s{sT0}, {opt.gstride}")
        a(f"s_add_u32 s{sT0}, s{sT0}, {FLAG_G + 4*w}")
        flag_store(a, sT0)
        stamp(a, opt, 9)
        assert nis[0] >= 4
        more(10, 10)
        more(4, 14)
        for st in range(4, 10):
            a.wait_vm(f"w2_{st}")
            w2_tr(a, st)
            if st % 2 == 1: a("s_waitcnt lgkmcnt(0)")
        a("s_branch L_pre2")
        if w < 3: a.label(f"L_ep1_{w+1}")

    a.label("L_nogemm1")
    a.vm = []
    common_setup()
    if opt.pf == 2:
        assert opt.p1 == 2 and opt.p2 == 1
        a(f"s_cmp_lt_u32 s{sJ}, 28")
        a("s_cbranch_scc1 L_nopf")
        a(f"s_sub_u32 s{sT0}, s{sJ}, 28")
        a(f"s_lshl_b32 s{sT0}, s{sT0}, 2")
        a(f"s_add_u32 s{sT0}, s{sT0}, s{sWAVE}")
        a(f"s_lshl_b32 s{sT0}, s{sT0}, 13")
        a(f"s_lshl_b32 s{sT1}, s{sXCD}, 9")
        a(f"s_add_u32 s{sT0}, s{sT0}, s{sT1}")
        a(f"v_lshrrev_b32 v{vX}, 5, v{vLANE}")
        a(f"v_lshlrev_b32 v{vX}, 12, v{vX}")
        a(f"v_and_b32 v{vX+1}, 31, v{vLANE}")
        a(f"v_lshlrev_b32 v{vX+1}, 4, v{vX+1}")
        a(f"v_add_u32 v{vX}, v{vX}, v{vX+1}")
        keep = list(a.vm)
        for k in range(54):
            o = vRING + (k % 16) * 4
            a.vmem(f"buffer_load_dwordx4 {vr(o,4)}, v{vX}, {srd(sW2)}, s{sT0} offen", f"pf{k}")
            a(f"s_add_u32 s{sT0}, s{sT0}, {16*8192}")
            if k >= opt.pfdepth: a.wait_vm(f"pf{k-opt.pfdepth}")
        a.wait_vm0()
        a.label("L_nopf")
        a.vm = keep
    for st in range(10): w2_dma(a, st)
    for st in range(4):
        a.wait_vm(f"w2_{st}")
        w2_tr(a, st)
        if st % 2 == 1: a("s_waitcnt lgkmcnt(0)")
    for st in range(10, 14): w2_dma(a, st)
    for st in range(4, 10):
        a.wait_vm(f"w2_{st}")
        w2_tr(a, st)
        if st % 2 == 1: a("s_waitcnt lgkmcnt(0)")

    a.label("L_pre2")
    a.wait_vm0()
    a("s_waitcnt lgkmcnt(0)")
    for st in range(10, 14):
        w2_tr(a, st)
        if st % 2 == 1: a("s_waitcnt lgkmcnt(0)")
    stamp(a, opt, 10)
    a(f"s_mul_i32 s{sT0}, s{sDT2}, 5120")
    a(f"v_add_u32 v{vA}, s{sT0}, v{vL0}")
    a(f"v_add_u32 v{vA2}, 4096, v{vA}")
    a(f"s_lshl_b32 s{sT0}, s{sDT2}, 5")
    a(f"s_mul_i32 s{sT1}, s{sWAVE}, 7")
    a(f"s_add_u32 s{sT0}, s{sT0}, s{sT1}")
    a(f"s_mul_i32 s{sT0}, s{sT0}, {opt.gstride}")
    a(f"s_add_u32 s{sT0}, s{sT0}, {FLAG_G}")
    a(f"v_lshrrev_b32 v{vX}, 2, v{vLANE}")
    a(f"v_mul_u32_u24 v{vX}, {opt.gstride}, v{vX}")
    a(f"v_and_b32 v{vT}, 3, v{vLANE}")
    a(f"v_lshlrev_b32 v{vT}, 2, v{vT}")
    a(f"v_add_u32 v{vX}, v{vX}, v{vT}")
    a(f"v_add_u32 v{vX}, s{sT0}, v{vX}")
    a(f"s_cmp_eq_u32 s{sWAVE}, 3")
    a(f"s_mov_b32 s{sP+3}, 0xffffff")
    a(f"s_cselect_b32 s{sP+2}, s{sP+3}, 0xfffffff")
    a(f"s_mov_b32 s{sP+3}, 0")
    poll(a, opt, vX, 1, sP + 2)
    stamp(a, opt, 11)
    a(f"s_mul_i32 s{sSTEP}, s{sWAVE}, {14*40960}")
    def mfma2(st, mt, nt, slot):
        c = "0" if st == 0 else vr(acc2(mt, nt), 4)
        a(f"v_mfma_f32_16x16x32_bf16 {vr(acc2(mt,nt),4)}, {vr(ring(slot,mt),4)}, {ar(wfrag(st,nt),4)}, {c}")
    main_loop(sG, 14, sROT2, "g", mfma2, 12, None, 12)
    saved_vm2 = list(a.vm)
    a(f"v_and_b32 v{vT}, 15, v{vLANE}")
    a(f"s_lshl_b32 s{sT0}, s{sWAVE}, 4")
    a(f"v_add_u32 v{vT}, s{sT0}, v{vT}")
    a(f"v_mul_u32_u24 v{vA}, 1280, v{vT}")
    a(f"v_lshrrev_b32 v{vT}, 4, v{vLANE}")
    a(f"v_lshlrev_b32 v{vT}, 3, v{vT}")
    a(f"v_add_u32 v{vA}, v{vA}, v{vT}")
    a(f"s_mul_i32 s{sT0}, s{sST}, {64*1280}")
    a(f"s_mul_i32 s{sT1}, s{sDT2}, 160")
    a(f"s_add_u32 s{sOFF}, s{sT0}, s{sT1}")
    a(f"v_lshlrev_b32 v{vB2}, 16, v{vB2}")
    def red2_addr(src, nt, mt):
        k = [x for x in range(4) if x != src].index(nt)
        return src * 32768 + (k * 5 + mt) * 1024
    for w in range(4):
        if w < 3:
            a(f"s_cmp_lg_u32 s{sWAVE}, {w}")
            a(f"s_cbranch_scc1 L_ep2_{w+1}")
        a.vm = list(saved_vm2)
        tl = [(mt, nt) for mt in range(5) for nt in range(4)]
        def wr2(t):
            vb, off = lds_ref(red2_addr(w, t[1], t[0]))
            a(f"ds_write_b128 v{vb}, {vr(acc2(*t),4)} offset:{off}")
        tile_tail(14, "g", [t for t in tl if t[1] != w], [t for t in tl if t[1] == w], lambda t: t[0],
                  lambda st, t: mfma2(st, t[0], t[1], st % NS), wr2, [])
        stamp(a, opt, 13)
        a("s_waitcnt lgkmcnt(0)")
        a("s_barrier")
        RT = vRING
        n = 0
        for mt in range(5):
            for src in range(4):
                if src == w: continue
                vb, off = lds_ref(red2_addr(src, w, mt))
                a(f"ds_read_b128 {vr(RT+n*4,4)}, v{vb} offset:{off}")
                n += 1
        n = 0
        for mt in range(5):
            r = acc2(mt, w)
            for si in range(3):
                a(f"s_waitcnt lgkmcnt({14 - n})")
                a(f"v_pk_add_f32 {vr(r,2)}, {vr(r,2)}, {vr(RT+n*4,2)}")
                a(f"v_pk_add_f32 {vr(r+2,2)}, {vr(r+2,2)}, {vr(RT+n*4+2,2)}")
                n += 1
            for k in range(4):
                a(f"v_add_f32 v{r+k}, v{r+k}, v{vB2}")
            o = RT + 64 + 2 * mt
            a(f"v_cvt_pk_bf16_f32 v{o}, v{r}, v{r+1}")
            a(f"v_cvt_pk_bf16_f32 v{o+1}, v{r+2}, v{r+3}")
            a(f"buffer_store_dwordx2 {vr(o,2)}, v{vA}, {srd(sO)}, s{sOFF} offen offset:{mt*32} {opt.obits}")
        a("s_branch L_fin")
        if w < 3: a.label(f"L_ep2_{w+1}")
    a.label("L_fin")
    if opt.probe >= 0:
        if opt.probe == 14:
            a("s_waitcnt vmcnt(0)")
            stamp(a, opt, 14)
        a(f"s_cmp_lg_u32 s{sWG}, {opt.probewg}")
        a("s_cbranch_scc1 L_done")
        a(f"s_cmp_lg_u32 s{sWAVE}, {opt.probew}")
        a("s_cbranch_scc1 L_done")
        a(f"s_sub_u32 s{sT1}, s{sPROF+1}, s{sPROF+2 if opt.probe0 >= 0 else 96}")
        if opt.probecyc: a(f"s_lshr_b32 s{sT1}, s{sT1}, 2")
        else: a(f"s_lshl_b32 s{sT1}, s{sT1}, 2")
        a(f"s_add_u32 s{sT1}, s{sT1}, 4000")
        a.label("L_probe")
        a(f"s_memrealtime s[{sP}:{sP+1}]")
        a("s_waitcnt lgkmcnt(0)")
        a(f"s_sub_u32 s{sT0}, s{sP}, s96")
        a(f"s_cmp_lt_u32 s{sT0}, s{sT1}")
        a("s_cbranch_scc1 L_probe")
    if opt.pad:
        a.label("L_pad")
        a(f"s_memrealtime s[{sP}:{sP+1}]")
        a("s_waitcnt lgkmcnt(0)")
        a(f"s_sub_u32 s{sT0}, s{sP}, s96")
        a(f"s_cmp_lt_u32 s{sT0}, {opt.pad}")
        a("s_cbranch_scc1 L_pad")
    if opt.prof:
        a("s_waitcnt vmcnt(0)")
        stamp(a, opt, 14)
        make_srd(a, sX, 18, 65536, WS_PROF)
        a(f"s_lshl_b32 s{sT0}, s{sWG}, 2")
        a(f"s_add_u32 s{sT0}, s{sT0}, s{sWAVE}")
        a(f"s_lshl_b32 s{sT0}, s{sT0}, 6")
        a(f"v_mov_b32 v{vT}, s{sT0}")
        a("s_mov_b64 exec, 1")
        for i in range(15):
            a(f"v_mov_b32 v100, s{sPROF+i}")
            a(f"buffer_store_dword v100, v{vT}, {srd(sX)}, 0 offen offset:{4*i}")
            a("s_nop 1")
        a("s_waitcnt vmcnt(0)")
    a.label("L_done")
    a("s_endpgm")
    a.raw('.section .rodata,"a"')
    a.raw(".p2align 6")
    a.raw(f".amdhsa_kernel {KN}")
    for l in ["next_free_vgpr 512", "next_free_sgpr 102", "accum_offset 256", "group_segment_fixed_size 0",
              "kernarg_size 64", "user_sgpr_count 2", "user_sgpr_kernarg_segment_ptr 1",
              "system_sgpr_workgroup_id_x 1", "float_denorm_mode_32 3"]:
        a.raw(f"  .amdhsa_{l}")
    a.raw(".end_amdhsa_kernel")
    return "\n".join(a.L) + "\n"

def parse(argv=None):
    ap = argparse.ArgumentParser()
    ap.add_argument("-o", default="standalone__mixer_token_mlp__prompt.s")
    ap.add_argument("--prof", type=int, default=0)
    ap.add_argument("--rot", type=int, default=3)
    ap.add_argument("--spin", type=int, default=20000)
    ap.add_argument("--sleep", type=int, default=8)
    ap.add_argument("--depth", type=int, default=3)
    ap.add_argument("--lnprof", type=int, default=0)
    ap.add_argument("--hbits", default="sc1")
    ap.add_argument("--pfwait", type=int, default=1)
    ap.add_argument("--hold", type=int, default=0)
    ap.add_argument("--probe", type=int, default=-1)
    ap.add_argument("--probe0", type=int, default=-1)
    ap.add_argument("--probecyc", type=int, default=0)
    ap.add_argument("--probewg", type=int, default=100)
    ap.add_argument("--probew", type=int, default=2)
    ap.add_argument("--rot8", type=int, default=1)
    ap.add_argument("--t13", type=int, default=1)
    ap.add_argument("--tt", type=int, default=2)
    ap.add_argument("--e2", type=int, default=0)
    ap.add_argument("--e3", type=int, default=0)
    ap.add_argument("--nb2", type=int, default=0)
    ap.add_argument("--e1", type=int, default=1)
    ap.add_argument("--nb", type=int, default=2)
    ap.add_argument("--nearly", type=int, default=2)
    ap.add_argument("--dpl", type=int, default=5)
    ap.add_argument("--dp", type=int, default=3)
    ap.add_argument("--p1", type=int, default=1)
    ap.add_argument("--p2", type=int, default=1)
    ap.add_argument("--rota1", type=int, default=0)
    ap.add_argument("--rota2", type=int, default=0)
    ap.add_argument("--xbits", default="nt")
    ap.add_argument("--w1bits", default="")
    ap.add_argument("--w2bits", default="")
    ap.add_argument("--pfbits", default="")
    ap.add_argument("--pfdepth", type=int, default=8)
    ap.add_argument("--prio", type=int, default=3)
    ap.add_argument("--delay", type=int, default=0)
    ap.add_argument("--hstride", type=int, default=8)
    ap.add_argument("--gstride", type=int, default=256)
    ap.add_argument("--pf", type=int, default=1)
    ap.add_argument("--pad", type=int, default=0)
    ap.add_argument("--obits", default="sc1")
    return ap.parse_args(argv)

if __name__ == "__main__":
    opt = parse()
    open(opt.o, "w").write(gen(opt))
```

```python
import argparse, struct

S, D, F = 2048, 640, 1728
KN = "standalone__mixer_token_mlp__prompt_kernel"

WS_H = 0
H_BYTES = 64 * 40 * 1024
WS_G = 0x300000
G_BYTES = 54 * 40 * 1024
WS_FLAG = 0x600000
FLAG_H = 0
FLAG_G = 0x10000
FLAG_BYTES = 0x40000
WS_PROF = 0x700000

LDS_BYTES = 163840
LN_BASE = 131072
LN_ROW = 1344
LF_BASE = 141824
P0_BASE = [0, 49152, 98304, 122880]

sWG = 2
sX, sW1, sW2, sH, sG, sO, sF, sB1, sB2, sD = 20, 24, 28, 32, 36, 40, 44, 48, 52, 56
sWAVE, sXCD, sJ, sFT, sDT1, sST, sDT2, sNONCE = 60, 61, 62, 63, 64, 65, 66, 67
sT0, sT1, sT2, sT3, sT4, sT5 = 68, 69, 70, 71, 72, 73
sROT1, sROT2, sSTEP, sOFF = 74, 75, 76, 77
sM0B, sSPIN = 78, 79
sP = 80
sPROF = 84
sUP = 99
sJLIM, sIDLE = 100, 101
sWB = 3

vTID, vLANE = 0, 1
vTR = 2
vA, vA2, vDMA, vT2 = 6, 7, 8, 9
vB1 = 10
vB2, vT = 14, 15
vACC = 16
vRING = 96
vTRU = 176
vL0, vL1, vL2 = 180, 181, 182
vC0 = 184
BI = 186
vPOLL = 194
vX = 196
vDM = 200

def srd(n): return f"s[{n}:{n+3}]"
def vr(n, c=1): return f"v{n}" if c == 1 else f"v[{n}:{n+c-1}]"
def ar(n, c=1): return f"a{n}" if c == 1 else f"a[{n}:{n+c-1}]"
def f2h(x): return "0x%08x" % struct.unpack("<I", struct.pack("<f", x))[0]
C0 = -2.0 * 0.7978845608028654 * 1.4426950408889634
C1 = C0 * 0.044715

class Asm:
    def __init__(self):
        self.L = []; self.vm = []; self.uid = 0
    def __call__(self, s): self.L.append("    " + s)
    def label(self, s): self.L.append(s + ":")
    def raw(self, s): self.L.append(s)
    def c(self, s): self.L.append("    ; " + s)
    def vmem(self, s, tag):
        self(s); self.vm.append(tag)
    def wait_vm(self, tag):
        hits = [i for i, t in enumerate(self.vm) if t == tag]
        if not hits: return
        n = len(self.vm) - 1 - hits[-1]
        self(f"s_waitcnt vmcnt({min(n, 63)})")
        self.vm = self.vm[hits[-1] + 1:]
    def wait_vm0(self):
        self("s_waitcnt vmcnt(0)"); self.vm = []
    def newlabel(self, p):
        self.uid += 1
        return f"L_{p}_{self.uid}"

def acc1(mt, nt): return vACC + (mt * 5 + nt) * 4
def acc2(mt, nt): return vACC + (mt * 4 + nt) * 4
def wfrag(step, t): return step * 16 + t * 4

def stamp(a, opt, idx, force=False):
    if opt.probe >= 0:
        ins = "s_memtime" if opt.probecyc else "s_memrealtime"
        if idx == opt.probe:
            a(f"{ins} s[{sP}:{sP+1}]")
            a("s_waitcnt lgkmcnt(0)")
            a(f"s_mov_b32 s{sPROF+1}, s{sP}")
        if idx == opt.probe0:
            a(f"{ins} s[{sP}:{sP+1}]")
            a("s_waitcnt lgkmcnt(0)")
            a(f"s_mov_b32 s{sPROF+2}, s{sP}")
        return
    if opt.lnprof and idx in (4, 5) and getattr(a, "ln_done", False): return
    if opt.prof:
        a(f"s_mem{'time' if opt.prof == 2 else 'realtime'} s[{sP}:{sP+1}]")
        a("s_waitcnt lgkmcnt(0)")
        a(f"s_mov_b32 s{sPROF+idx}, s{sP}")

def make_srd(a, n, lo, size, add=0):
    if add:
        a(f"s_add_u32 s{n}, s{lo}, {add}")
        a(f"s_addc_u32 s{n+1}, s{lo+1}, 0")
        a(f"s_and_b32 s{n+1}, s{n+1}, 0xffff")
    else:
        a(f"s_mov_b32 s{n}, s{lo}")
        a(f"s_and_b32 s{n+1}, s{lo+1}, 0xffff")
    a(f"s_mov_b32 s{n+2}, {size}")
    a(f"s_mov_b32 s{n+3}, 0x20000")

def nonce_spin(a, opt):
    lp = a.newlabel("nonce"); dn = a.newlabel("nonced")
    a(f"s_cmp_lg_u32 s{sNONCE}, 0")
    a(f"s_cbranch_scc1 {dn}")
    a(f"s_mov_b32 s{sSPIN}, 0")
    a(f"v_mov_b32 v{vT}, 0")
    a.label(lp)
    a(f"buffer_load_dword v{vT2}, v{vT}, {srd(sD)}, 0 offen sc1")
    a("s_waitcnt vmcnt(0)")
    a(f"v_readfirstlane_b32 s{sNONCE}, v{vT2}")
    a(f"s_add_u32 s{sSPIN}, s{sSPIN}, 1")
    a(f"s_cmp_lg_u32 s{sNONCE}, 0")
    a(f"s_cbranch_scc1 {dn}")
    a(f"s_cmp_lt_u32 s{sSPIN}, {opt.spin}")
    a(f"s_cbranch_scc1 {lp}")
    a.label(dn)

def lds_set(a, addr_sgpr_or_imm):
    a(f"v_mov_b32 v{vT}, {addr_sgpr_or_imm}")
    a(f"v_mov_b32 v{vT2}, 1")
    a(f"s_mov_b64 s[{sP}:{sP+1}], exec")
    a("s_mov_b64 exec, 1")
    a(f"ds_write_b32 v{vT}, v{vT2}")
    a(f"s_mov_b64 exec, s[{sP}:{sP+1}]")

def lds_spin(a, opt, addr):
    lp = a.newlabel("lspin"); dn = a.newlabel("lspun")
    a(f"v_mov_b32 v{vT}, {addr}")
    a(f"s_mov_b32 s{sSPIN}, 0")
    a.label(lp)
    a(f"ds_read_b32 v{vT2}, v{vT}")
    a("s_waitcnt lgkmcnt(0)")
    a(f"v_readfirstlane_b32 s{sP}, v{vT2}")
    a(f"s_add_u32 s{sSPIN}, s{sSPIN}, 1")
    a(f"s_cmp_lg_u32 s{sP}, 0")
    a(f"s_cbranch_scc1 {dn}")
    a(f"s_cmp_lt_u32 s{sSPIN}, {opt.spin * 8}")
    a(f"s_cbranch_scc1 {lp}")
    a.label(dn)

def dma_addr(a, stride, s_tile):
    a(f"v_lshrrev_b32 v{vT}, 3, v{vLANE}")
    a(f"v_lshrrev_b32 v{vT2}, 1, v{vT}")
    a(f"v_lshlrev_b32 v{vT2}, 1, v{vT2}")
    a(f"v_and_b32 v{vDM}, 7, v{vLANE}")
    a(f"v_xor_b32 v{vDM}, v{vDM}, v{vT2}")
    a(f"v_lshlrev_b32 v{vDM}, 4, v{vDM}")
    a(f"v_mul_u32_u24 v{vT}, {stride}, v{vT}")
    a(f"v_add_u32 v{vDM}, v{vDM}, v{vT}")
    a(f"s_lshl_b32 s{sT0}, s{s_tile}, 7")
    a(f"v_add_u32 v{vDM}, s{sT0}, v{vDM}")
    for b in range(1, 4):
        a(f"v_add_u32 v{vDM+b}, {b*(8*stride-1024)}, v{vDM}")

def step_off(a, dst, s_base, s_rot, i, nsteps, bytes_per_step):
    a(f"s_add_u32 s{sT4}, s{s_rot}, {i}")
    a(f"s_cmp_ge_u32 s{sT4}, {nsteps}")
    a(f"s_cselect_b32 s{dst}, {nsteps}, 0")
    a(f"s_sub_u32 s{sT4}, s{sT4}, s{dst}")
    a(f"s_mul_i32 s{sT4}, s{sT4}, {bytes_per_step}")
    a(f"s_add_u32 s{dst}, s{sT4}, s{s_base}")

def dma_step(a, srdn, stride, s_rowbase, s_rot, step, nsteps, s_lds, lds_off, tag, bits=""):
    a(f"s_add_u32 m0, s{s_lds}, {lds_off}")
    step_off(a, sOFF, s_rowbase, s_rot, step, nsteps, 32 * stride)
    for blk in range(4):
        a.vmem(f"buffer_load_dwordx4 v{vDM+blk}, {srd(srdn)}, s{sOFF} offen offset:{blk*1024} {bits} lds", tag)

def tr_step(a, vbase, off, step):
    for t in range(4):
        w = wfrag(step, t)
        a(f"ds_read_b64_tr_b16 {ar(w,2)}, v{vbase+t} offset:{off}")
        a(f"ds_read_b64_tr_b16 {ar(w+2,2)}, v{vbase+t} offset:{off+2048}")

def poll(a, opt, vaddr, nd, lanes):
    lp = a.newlabel("poll"); dn = a.newlabel("polled")
    a(f"s_mov_b32 s{sSPIN}, 0")
    a.label(lp)
    ld = {1: "dword", 2: "dwordx2"}[nd]
    a(f"buffer_load_{ld} {vr(vPOLL, nd)}, v{vaddr}, {srd(sF)}, 0 offen sc1")
    a("s_waitcnt vmcnt(0)")
    a(f"v_cmp_ne_u32 vcc, s{sNONCE}, v{vPOLL}")
    if nd == 2:
        a(f"v_cmp_ne_u32 s[{sP}:{sP+1}], s{sNONCE}, v{vPOLL+1}")
        a(f"s_or_b64 vcc, vcc, s[{sP}:{sP+1}]")
    if lanes is not None:
        a(f"s_and_b64 vcc, vcc, s[{lanes}:{lanes+1}]")
    a(f"s_add_u32 s{sSPIN}, s{sSPIN}, 1")
    a("s_cmp_eq_u64 vcc, 0")
    a(f"s_cbranch_scc1 {dn}")
    if opt.sleep: a(f"s_sleep {opt.sleep}")
    a(f"s_cmp_lt_u32 s{sSPIN}, {opt.spin}")
    a(f"s_cbranch_scc1 {lp}")
    a.label(dn)
    a.vm = []

def flag_store(a, s_index_bytes):
    a(f"v_mov_b32 v{vT}, s{s_index_bytes}")
    a(f"v_mov_b32 v{vT2}, s{sNONCE}")
    a(f"s_mov_b64 s[{sP}:{sP+1}], exec")
    a("s_mov_b64 exec, 1")
    a.vmem(f"buffer_store_dword v{vT2}, v{vT}, {srd(sF)}, 0 offen sc1", "flag")
    a(f"s_mov_b64 exec, s[{sP}:{sP+1}]")

def gelu_pairs(a, regs, tmp, fill=None):
    def each(fn):
        for i, r in enumerate(regs): fn(r, tmp + 2 * i)
    each(lambda r, t: a(f"v_pk_mul_f32 {vr(t,2)}, {vr(r,2)}, {vr(r,2)}"))
    each(lambda r, t: a(f"v_pk_fma_f32 {vr(t,2)}, {vr(t,2)}, s[100:101], {vr(vC0,2)}"))
    each(lambda r, t: a(f"v_pk_mul_f32 {vr(t,2)}, {vr(t,2)}, {vr(r,2)}"))
    if fill: fill()
    each(lambda r, t: (a(f"v_exp_f32 v{t}, v{t}"), a(f"v_exp_f32 v{t+1}, v{t+1}")))
    each(lambda r, t: a(f"v_pk_add_f32 {vr(t,2)}, {vr(t,2)}, 1.0 op_sel_hi:[1,0]"))
    each(lambda r, t: (a(f"v_rcp_f32 v{t}, v{t}"), a(f"v_rcp_f32 v{t+1}, v{t+1}")))
    a("s_nop 0")
    each(lambda r, t: a(f"v_pk_mul_f32 {vr(r,2)}, {vr(r,2)}, {vr(t,2)}"))

def w2_slot(step):
    if step < 8: return sM0B, step * 4096, vTR, step * 4096
    if step < 10: return sUP, (step - 8) * 4096, vTRU, (step - 8) * 4096
    return sM0B, (step - 10) * 4096, vTR, (step - 10) * 4096

def w2_dma(a, step):
    sb, off, _, _ = w2_slot(step)
    dma_step(a, sW2, S * 2, sWB, sROT2, step, 14, sb, off, f"w2_{step}", OPT.w2bits)

def w2_dma_parts(a, step):
    sb, off, _, _ = w2_slot(step)
    def setup():
        a(f"s_add_u32 m0, s{sb}, {off}")
        step_off(a, sOFF, sWB, sROT2, step, 14, 32 * S * 2)
    def one(blk):
        return lambda: a.vmem(f"buffer_load_dwordx4 v{vDM+blk}, {srd(sW2)}, s{sOFF} offen offset:{blk*1024} {OPT.w2bits} lds", f"w2_{step}")
    return [setup] + [one(b) for b in range(4)]

def w2_tr(a, step):
    _, _, vb, off = w2_slot(step)
    tr_step(a, vb, off, step)

def gen(opt):
    global OPT
    OPT = opt
    a = Asm()
    NS = opt.depth + 1
    def ring(slot, t): return vRING + slot * 20 + t * 4
    a.raw(f"; @launch grid=(256,1,1) block=(256,1,1) lds={LDS_BYTES}")
    a.raw('.amdgcn_target "amdgcn-amd-amdhsa--gfx950"')
    a.raw(".text")
    a.raw(f".globl {KN}")
    a.raw(".p2align 8")
    a.raw(f".type {KN},@function")
    a.label(KN)
    if opt.cpf: a("s_getpc_b64 s[94:95]")
    a(f"s_cmp_ge_u32 s{sWG}, 256")
    a("s_cbranch_scc1 L_done")
    a("s_load_dwordx16 s[4:19], s[0:1], 0")
    if opt.prof:
        a(f"s_mem{'time' if opt.prof == 2 else 'realtime'} s[{sP}:{sP+1}]")
    if opt.prof:
        for i in range(1, 15): a(f"s_mov_b32 s{sPROF+i}, 0")
    if opt.pad or opt.probe >= 0:
        a("s_memrealtime s[96:97]")
    a(f"v_lshrrev_b32 v{vT}, 6, v{vTID}")
    a(f"v_and_b32 v{vLANE}, 63, v{vTID}")
    a(f"v_readfirstlane_b32 s{sWAVE}, v{vT}")
    a(f"s_and_b32 s{sXCD}, s{sWG}, 7")
    a(f"s_lshr_b32 s{sJ}, s{sWG}, 3")
    if opt.p1 == 2:
        a(f"s_lshr_b32 s{sT1}, s{sXCD}, 1")
        a(f"s_and_b32 s{sT2}, s{sXCD}, 1")
        a(f"s_lshl_b32 s{sT2}, s{sT2}, 2")
        a(f"s_mul_i32 s{sT0}, s{sT1}, 7")
        a(f"s_lshr_b32 s{sFT}, s{sJ}, 2")
        a(f"s_add_u32 s{sFT}, s{sFT}, s{sT0}")
        a(f"s_and_b32 s{sT3}, s{sJ}, 3")
        a(f"s_add_u32 s{sDT1}, s{sT2}, s{sT3}")
        if opt.rot8: a(f"s_lshl_b32 s{sROT1}, s{sDT1}, 1")
        else: a(f"s_lshl_b32 s{sROT1}, s{sT3}, 2")
        a(f"s_cmp_eq_u32 s{sT1}, 3")
        a(f"s_cselect_b32 s{sJLIM}, 24, 28")
        a(f"s_lshl_b32 s{sT0}, s{sXCD}, 2")
        a(f"s_sub_u32 s{sT0}, s{sT0}, 28")
        a(f"s_lshl_b32 s{sT3}, s{sXCD}, 3")
        a(f"s_sub_u32 s{sT3}, s{sT3}, 48")
        a(f"s_cselect_b32 s{sIDLE}, s{sT0}, s{sT0}")
        a(f"s_cmp_ge_u32 s{sXCD}, 6")
        a(f"s_cselect_b32 s{sIDLE}, s{sT3}, s{sT0}")
        a(f"s_add_u32 s{sIDLE}, s{sIDLE}, s{sJ}")
    else:
        a(f"s_lshl_b32 s{sT0}, s{sXCD}, 2")
        a(f"s_mul_i32 s{sT1}, s{sXCD}, 3")
        a(f"s_add_u32 s{sT1}, s{sT1}, 3")
        a(f"s_cmp_lt_u32 s{sXCD}, 3")
        a(f"s_cselect_b32 s{sT0}, s{sT0}, s{sT1}")
        a(f"s_cselect_b32 s{sJLIM}, 32, 24")
        a(f"s_lshr_b32 s{sFT}, s{sJ}, 3")
        a(f"s_add_u32 s{sFT}, s{sFT}, s{sT0}")
        a(f"s_and_b32 s{sDT1}, s{sJ}, 7")
        a(f"s_lshl_b32 s{sROT1}, s{sDT1}, 1")
        a(f"s_lshl_b32 s{sIDLE}, s{sXCD}, 3")
        a(f"s_add_u32 s{sIDLE}, s{sIDLE}, s{sJ}")
        a(f"s_sub_u32 s{sIDLE}, s{sIDLE}, 48")
    if opt.rota1:
        a(f"s_mul_i32 s{sT0}, s{sFT}, {opt.rota1}")
        a(f"s_add_u32 s{sROT1}, s{sROT1}, s{sT0}")
        a(f"s_and_b32 s{sROT1}, s{sROT1}, 15")
    if opt.p2 == 2:
        a(f"s_lshr_b32 s{sT1}, s{sXCD}, 1")
        a(f"s_and_b32 s{sT2}, s{sXCD}, 1")
        a(f"s_lshl_b32 s{sT2}, s{sT2}, 2")
        a(f"s_lshr_b32 s{sT0}, s{sJ}, 2")
        a(f"s_lshl_b32 s{sST}, s{sT1}, 3")
        a(f"s_add_u32 s{sST}, s{sST}, s{sT0}")
        a(f"s_and_b32 s{sT3}, s{sJ}, 3")
        a(f"s_add_u32 s{sDT2}, s{sT2}, s{sT3}")
        if opt.rot8:
            a(f"s_mul_i32 s{sROT2}, s{sDT2}, 7")
            a(f"s_lshr_b32 s{sROT2}, s{sROT2}, 2")
        else:
            a(f"s_mul_i32 s{sROT2}, s{sT3}, 7")
            a(f"s_lshr_b32 s{sROT2}, s{sROT2}, 1")
    else:
        a(f"s_lshr_b32 s{sT0}, s{sJ}, 3")
        a(f"s_lshl_b32 s{sST}, s{sXCD}, 2")
        a(f"s_add_u32 s{sST}, s{sST}, s{sT0}")
        a(f"s_and_b32 s{sDT2}, s{sJ}, 7")
        a(f"s_mul_i32 s{sROT2}, s{sDT2}, 7")
        a(f"s_lshr_b32 s{sROT2}, s{sROT2}, 2")
    if opt.rota2:
        a(f"s_mul_i32 s{sT0}, s{sST}, {opt.rota2}")
        a(f"s_add_u32 s{sROT2}, s{sROT2}, s{sT0}")
        a(f"s_and_b32 s{sT0}, s{sROT2}, 0xff")
        a(f"s_mul_i32 s{sT0}, s{sROT2}, 18725")
        a(f"s_lshr_b32 s{sT0}, s{sT0}, 18")
        a(f"s_mul_i32 s{sT0}, s{sT0}, 14")
        a(f"s_sub_u32 s{sROT2}, s{sROT2}, s{sT0}")
    if not (opt.rot & 1): a(f"s_mov_b32 s{sROT1}, 0")
    if not (opt.rot & 2): a(f"s_mov_b32 s{sROT2}, 0")
    a(f"s_lshl_b32 s{sM0B}, s{sWAVE}, 15")
    a(f"s_lshl_b32 s{sUP}, s{sWAVE}, 13")
    a(f"s_add_u32 s{sUP}, s{sUP}, 131072")
    def tr_addr(base_sgpr):
        t0, t1, t2 = vX, vX + 1, vX + 2
        a(f"v_lshrrev_b32 v{t0}, 4, v{vLANE}")
        a(f"v_and_b32 v{t1}, 1, v{t0}")
        a(f"v_lshlrev_b32 v{t1}, 2, v{t1}")
        a(f"v_bfe_u32 v{t2}, v{vLANE}, 2, 2")
        a(f"v_add_u32 v{t1}, v{t1}, v{t2}")
        a(f"v_lshrrev_b32 v{t0}, 1, v{t0}")
        a(f"v_lshlrev_b32 v{t0}, 10, v{t0}")
        a(f"v_lshlrev_b32 v{t2}, 7, v{t1}")
        a(f"v_add_u32 v{t0}, v{t0}, v{t2}")
        a(f"v_and_b32 v{t2}, 3, v{vLANE}")
        a(f"v_lshlrev_b32 v{t2}, 3, v{t2}")
        a(f"v_add_u32 v{t0}, v{t0}, v{t2}")
        a(f"v_add_u32 v{t0}, s{base_sgpr}, v{t0}")
        a(f"v_lshrrev_b32 v{t1}, 1, v{t1}")
        for t in range(4):
            a(f"v_xor_b32 v{t2}, {t}, v{t1}")
            a(f"v_lshlrev_b32 v{t2}, 5, v{t2}")
            a(f"v_add_u32 v{vTR+t}, v{t0}, v{t2}")
    def w1_dma(i): dma_step(a, sW1, F * 2, sWB, sROT1, i, 16, sM0B, (i % 8) * 4096, f"w1_{i}", opt.w1bits)
    def w1_stream(first, dp):
        retired = 0
        def retire():
            nonlocal retired
            a.wait_vm(f"w1_{retired}")
            if retired: a("s_waitcnt lgkmcnt(0)")
            tr_step(a, vTR, (retired % 8) * 4096, retired)
            retired += 1
        for i in range(first, 16):
            while retired <= i - dp: retire()
            if i >= 8:
                while retired <= i - 8: retire()
                if retired == i - 7: a("s_waitcnt lgkmcnt(0)")
            w1_dma(i)
        while retired < 16: retire()
        a("s_waitcnt lgkmcnt(0)")
    dma_addr(a, F * 2, sFT)
    a(f"s_mul_i32 s{sWB}, s{sWAVE}, {512*F*2}")
    a(f"s_cmp_ge_u32 s{sWAVE}, 2")
    a("s_cbranch_scc1 L_loader")

    a.c("LayerNorm: wave w normalises rows 32*ks + 16*w + 4*q + (0..3), 16 lanes per row")
    XR, XF, TM = 96, 120, 160
    if opt.prio: a(f"s_setprio {opt.prio}")
    a(f"s_lshr_b32 s{sT0}, s{sWG}, 2")
    a(f"s_and_b32 s{sT1}, s{sWG}, 3")
    a(f"s_lshl_b32 s{sT2}, s{sT0}, 5")
    a(f"s_lshl_b32 s{sT3}, s{sWAVE}, 4")
    a(f"s_add_u32 s{sT2}, s{sT2}, s{sT3}")
    a(f"s_lshl_b32 s{sT3}, s{sT1}, 2")
    a(f"s_add_u32 s{sT2}, s{sT2}, s{sT3}")
    a(f"s_mul_i32 s{sT2}, s{sT2}, 1280")
    a(f"v_lshrrev_b32 v{TM}, 4, v{vLANE}")
    a(f"v_and_b32 v{TM+1}, 15, v{vLANE}")
    a(f"v_mul_u32_u24 v{TM+2}, 1280, v{TM}")
    a(f"v_lshlrev_b32 v{TM+3}, 4, v{TM+1}")
    a(f"v_add_u32 v{TM+2}, v{TM+2}, v{TM+3}")
    a(f"v_mov_b32 v{vT}, 0")
    a("s_waitcnt lgkmcnt(0)")
    if opt.prof: a(f"s_mov_b32 s{sPROF}, s{sP}")
    make_srd(a, sX, 4, S * D * 2)
    for i in range(5):
        a.vmem(f"buffer_load_dwordx4 {vr(XR+4*i,4)}, v{TM+2}, {srd(sX)}, s{sT2} offen offset:{i*256} {opt.xbits}", "x")
    make_srd(a, sD, 16, 256)
    a.vmem(f"buffer_load_dword v{vPOLL}, v{vT}, {srd(sD)}, 0 offen sc1", "nonce")
    make_srd(a, sW1, 6, S * F * 2)
    a(f"s_cmp_ge_u32 s{sJ}, s{sJLIM}")
    a("s_cbranch_scc1 L_ln_now1")
    for i in range(opt.nearly): w1_dma(i)
    a.label("L_ln_now1")
    a("s_barrier")
    make_srd(a, sH, 18, H_BYTES, WS_H)
    make_srd(a, sF, 18, FLAG_BYTES, WS_FLAG)
    a(f"s_mul_i32 s{sSTEP}, s{sT0}, 40960")
    a(f"s_lshl_b32 s{sT1}, s{sT1}, 8")
    a(f"s_add_u32 s{sSTEP}, s{sSTEP}, s{sT1}")
    a(f"s_lshl_b32 s{sT3}, s{sWAVE}, 2")
    a(f"v_add_u32 v{TM+4}, s{sT3}, v{TM}")
    a(f"v_mul_u32_u24 v{TM+4}, {LN_ROW}, v{TM+4}")
    a(f"v_add_u32 v{TM+4}, v{TM+4}, v{TM+3}")
    a(f"v_add_u32 v{TM+4}, {LN_BASE}, v{TM+4}")
    a(f"v_bfe_u32 v{TM+5}, v{vLANE}, 2, 2")
    a(f"v_mul_u32_u24 v{TM+5}, {LN_ROW}, v{TM+5}")
    a(f"s_mul_i32 s{sT3}, s{sWAVE}, 20")
    a(f"v_add_u32 v{TM+6}, s{sT3}, v{TM}")
    a(f"v_lshlrev_b32 v{TM+7}, 5, v{TM+6}")
    a(f"v_add_u32 v{TM+5}, v{TM+5}, v{TM+7}")
    a(f"v_and_b32 v{TM+7}, 3, v{vLANE}")
    a(f"v_lshlrev_b32 v{TM+7}, 3, v{TM+7}")
    a(f"v_add_u32 v{TM+5}, v{TM+5}, v{TM+7}")
    a(f"v_add_u32 v{TM+5}, {LN_BASE}, v{TM+5}")
    a(f"v_lshlrev_b32 v{TM+6}, 10, v{TM+6}")
    a(f"v_add_u32 v{TM+6}, v{TM+6}, v{TM+3}")
    a(f"s_mov_b32 s{sT0}, 0xffff0000")
    a(f"s_cmp_ge_u32 s{sJ}, s{sJLIM}")
    a("s_cbranch_scc1 L_ln_idle")
    a(f"s_waitcnt vmcnt({1 + 4*opt.nearly})")
    a("s_branch L_ln_go")
    a.label("L_ln_idle")
    a("s_waitcnt vmcnt(1)")
    a.label("L_ln_go")
    a.vm = [t for t in a.vm if t != "x"]
    stamp(a, opt, 1)
    for i in range(20):
        a(f"v_lshlrev_b32 v{XF+2*i}, 16, v{XR+i}")
        a(f"v_and_b32 v{XF+2*i+1}, s{sT0}, v{XR+i}")
    SM = TM + 8
    for k in range(4):
        a(f"v_pk_add_f32 {vr(SM+2*k,2)}, {vr(XF+2*k,2)}, {vr(XF+8+2*k,2)}")
    for i in range(8, 20):
        k = i % 4
        a(f"v_pk_add_f32 {vr(SM+2*k,2)}, {vr(SM+2*k,2)}, {vr(XF+2*i,2)}")
    def reduce_row(dst):
        a(f"v_pk_add_f32 {vr(SM,2)}, {vr(SM,2)}, {vr(SM+2,2)}")
        a(f"v_pk_add_f32 {vr(SM+4,2)}, {vr(SM+4,2)}, {vr(SM+6,2)}")
        a(f"v_pk_add_f32 {vr(SM,2)}, {vr(SM,2)}, {vr(SM+4,2)}")
        a(f"v_add_f32 v{dst}, v{SM}, v{SM+1}")
        for rot in (8, 4, 2, 1):
            a("s_nop 1")
            a(f"v_add_f32_dpp v{dst}, v{dst}, v{dst} row_ror:{rot} row_mask:0xf bank_mask:0xf")
    MN = TM + 16
    reduce_row(MN)
    a(f"v_mul_f32 v{MN}, {f2h(1.0/640.0)}, v{MN}")
    a(f"v_mov_b32 v{MN+1}, v{MN}")
    for i in range(20):
        a(f"v_pk_add_f32 {vr(XF+2*i,2)}, {vr(XF+2*i,2)}, {vr(MN,2)} neg_lo:[0,1] neg_hi:[0,1]")
    for k in range(4):
        a(f"v_pk_mul_f32 {vr(SM+2*k,2)}, {vr(XF+2*k,2)}, {vr(XF+2*k,2)}")
    for i in range(4, 20):
        k = i % 4
        a(f"v_pk_fma_f32 {vr(SM+2*k,2)}, {vr(XF+2*i,2)}, {vr(XF+2*i,2)}, {vr(SM+2*k,2)}")
    reduce_row(MN)
    a(f"v_mov_b32 v{MN+1}, {f2h(1e-5)}")
    a(f"v_fmac_f32 v{MN+1}, {f2h(1.0/640.0)}, v{MN}")
    a(f"v_rsq_f32 v{MN}, v{MN+1}")
    a("s_nop 0")
    a(f"v_mov_b32 v{MN+1}, v{MN}")
    for i in range(20):
        a(f"v_pk_mul_f32 {vr(XF+2*i,2)}, {vr(XF+2*i,2)}, {vr(MN,2)}")
    for i in range(20):
        a(f"v_cvt_pk_bf16_f32 v{XR+i}, v{XF+2*i}, v{XF+2*i+1}")
    if opt.lnprof: stamp(a, opt, 4)
    for i in range(5):
        a(f"ds_write_b128 v{TM+4}, {vr(XR+4*i,4)} offset:{i*256}")
    a(f"s_lshl_b32 s{sT0}, s{sWAVE}, 2")
    a(f"s_add_u32 s{sT1}, s{sT0}, {LF_BASE}")
    a(f"s_xor_b32 s{sT0}, s{sT0}, 4")
    a(f"s_add_u32 s{sT0}, s{sT0}, {LF_BASE}")
    a("s_waitcnt lgkmcnt(0)")
    lds_set(a, f"s{sT1}")
    lds_spin(a, opt, f"s{sT0}")
    if opt.lnprof: stamp(a, opt, 5)
    for i in range(5):
        a(f"ds_read_b64_tr_b16 {vr(XF+4*i,2)}, v{TM+5} offset:{i*128}")
        a(f"ds_read_b64_tr_b16 {vr(XF+4*i+2,2)}, v{TM+5} offset:{i*128+4*LN_ROW}")
    for i in range(5):
        a(f"s_waitcnt lgkmcnt({8-2*i})")
        a(f"s_add_u32 s{sT0}, s{sSTEP}, {i*4096}")
        a.vmem(f"buffer_store_dwordx4 {vr(XF+4*i,4)}, v{TM+6}, {srd(sH)}, s{sT0} offen {opt.hbits}", "h")
    stamp(a, opt, 2)
    a("s_waitcnt vmcnt(5)")
    a(f"v_readfirstlane_b32 s{sNONCE}, v{vPOLL}")
    nonce_spin(a, opt)
    a.wait_vm0()
    a(f"s_mul_i32 s{sT0}, s{sWG}, {opt.hstride}")
    a(f"s_lshl_b32 s{sT1}, s{sWAVE}, 2")
    a(f"s_add_u32 s{sT0}, s{sT0}, s{sT1}")
    flag_store(a, sT0)
    a(f"s_lshl_b32 s{sT0}, s{sWAVE}, 2")
    a(f"s_add_u32 s{sT0}, s{sT0}, {LF_BASE + 8}")
    lds_set(a, f"s{sT0}")
    stamp(a, opt, 3)
    if opt.prio: a("s_setprio 0")
    a.ln_done = True
    a("s_branch L_roles_done")

    a.label("L_loader")
    a.vm = []
    if opt.cpf:
        a(f"s_cmp_lg_u32 s{sWAVE}, {opt.cpfw}")
        a("s_cbranch_scc1 L_nocpf")
        a(f"s_lshl_b32 s{sT0}, s{sJ}, 11")
        a(f"v_lshlrev_b32 v{vX}, 4, v{vLANE}")
        a(f"v_add_u32 v{vX}, s{sT0}, v{vX}")
        for h in range(2):
            if h: a(f"v_add_u32 v{vX}, 1024, v{vX}")
            a(f"v_cmp_gt_u32 vcc, L_codeend-{KN}-20, v{vX}")
            a(f"s_and_saveexec_b64 s[{sP}:{sP+1}], vcc")
            a(f"s_cbranch_execz L_cpf{h}")
            a(f"global_load_dwordx4 {vr(240+4*h,4)}, v{vX}, s[94:95]")
            a.label(f"L_cpf{h}")
            a(f"s_mov_b64 exec, s[{sP}:{sP+1}]")
        a.label("L_nocpf")
    a(f"v_lshlrev_b32 v{vX}, 2, v{vLANE}")
    a(f"v_add_u32 v{vX}, {LF_BASE}, v{vX}")
    a(f"v_mov_b32 v{vX+1}, 0")
    a(f"ds_write_b32 v{vX}, v{vX+1}")
    a("s_waitcnt lgkmcnt(0)")
    if opt.prof: a(f"s_mov_b32 s{sPROF}, s{sP}")
    make_srd(a, sW1, 6, S * F * 2)
    make_srd(a, sD, 16, 256)
    a(f"s_cmp_lg_u32 s{sWG}, 0")
    a("s_cbranch_scc1 L_nononce")
    a(f"s_cmp_lg_u32 s{sWAVE}, 3")
    a("s_cbranch_scc1 L_nononce")
    a(f"s_memrealtime s[{sP}:{sP+1}]")
    a("s_waitcnt lgkmcnt(0)")
    a(f"s_or_b32 s{sT0}, s{sP}, 1")
    a(f"v_mov_b32 v{vT2}, s{sT0}")
    a(f"v_mov_b32 v{vT}, 0")
    a(f"s_mov_b64 s[{sP}:{sP+1}], exec")
    a("s_mov_b64 exec, 1")
    a(f"buffer_store_dword v{vT2}, v{vT}, {srd(sD)}, 0 offen sc1")
    a(f"s_mov_b64 exec, s[{sP}:{sP+1}]")
    a.label("L_nononce")
    a(f"s_cmp_ge_u32 s{sJ}, s{sJLIM}")
    a("s_cbranch_scc1 L_loader_idle")
    for i in range(2): w1_dma(i)
    a("s_barrier")
    tr_addr(sM0B)
    if opt.hold:
        lds_spin(a, opt, LF_BASE + 8)
        lds_spin(a, opt, LF_BASE + 12)
    w1_stream(2, opt.dp)
    a(f"s_mov_b32 s{sNONCE}, 0")
    nonce_spin(a, opt)
    a("s_branch L_w1_ready")
    a.label("L_loader_idle")
    a.vm = []
    a("s_barrier")
    if opt.pfwait:
        lds_spin(a, opt, LF_BASE + 8)
        lds_spin(a, opt, LF_BASE + 12)
    if opt.pf == 1:
        make_srd(a, sW2, 10, F * S * 2)
        a(f"s_lshl_b32 s{sT0}, s{sIDLE}, 1")
        a(f"s_add_u32 s{sT0}, s{sT0}, s{sWAVE}")
        a(f"s_sub_u32 s{sT0}, s{sT0}, 2")
        a(f"s_lshl_b32 s{sT0}, s{sT0}, 10")
        a(f"v_lshlrev_b32 v{vX}, 4, v{vLANE}")
        inc = 80 * 1024
        for k in range(87):
            o = vRING + (k % 20) * 4
            a.vmem(f"buffer_load_dwordx4 {vr(o,4)}, v{vX}, {srd(sW2)}, s{sT0} offen {opt.pfbits}", f"pf{k}")
            a(f"s_add_u32 s{sT0}, s{sT0}, {inc}")
            if k >= opt.pfdepth: a.wait_vm(f"pf{k-opt.pfdepth}")
    a(f"s_mov_b32 s{sNONCE}, 0")
    nonce_spin(a, opt)
    a("s_branch L_nogemm1")

    a.label("L_roles_done")
    a.vm = []
    a(f"s_cmp_ge_u32 s{sJ}, s{sJLIM}")
    a("s_cbranch_scc1 L_nogemm1")
    a.vm = []
    tr_addr(sM0B)
    for i in range(opt.nearly): a.vm.append(f"w1_{i}")
    a.vm.append("flag")
    w1_stream(opt.nearly, opt.dpl)

    def common_setup():
        make_srd(a, sH, 18, H_BYTES, WS_H)
        make_srd(a, sF, 18, FLAG_BYTES, WS_FLAG)
        make_srd(a, sB1, 8, F * 2)
        make_srd(a, sW2, 10, F * S * 2)
        make_srd(a, sB2, 12, S * 2)
        make_srd(a, sO, 14, S * D * 2)
        make_srd(a, sG, 18, G_BYTES, WS_G)
        a(f"v_lshrrev_b32 v{vT}, 4, v{vLANE}")
        a(f"v_lshlrev_b32 v{vT}, 3, v{vT}")
        a(f"s_and_b32 s{sT0}, s{sWAVE}, 1")
        a(f"s_lshl_b32 s{sT0}, s{sT0}, 6")
        a(f"s_lshl_b32 s{sT1}, s{sFT}, 7")
        a(f"s_add_u32 s{sT0}, s{sT0}, s{sT1}")
        a.vmem(f"buffer_load_dwordx2 {vr(vB1,2)}, v{vT}, {srd(sB1)}, s{sT0} offen", "b")
        a.vmem(f"buffer_load_dwordx2 {vr(vB1+2,2)}, v{vT}, {srd(sB1)}, s{sT0} offen offset:32", "b")
        a(f"v_and_b32 v{vT}, 15, v{vLANE}")
        a(f"v_lshlrev_b32 v{vT}, 1, v{vT}")
        a(f"s_lshl_b32 s{sT0}, s{sST}, 7")
        a(f"s_lshl_b32 s{sT1}, s{sWAVE}, 5")
        a(f"s_add_u32 s{sT0}, s{sT0}, s{sT1}")
        a.vmem(f"buffer_load_ushort v{vB2}, v{vT}, {srd(sB2)}, s{sT0} offen", "b")
        dma_addr(a, S * 2, sST)
        a(f"s_mul_i32 s{sWB}, s{sWAVE}, {448*S*2}")
        tr_addr(sM0B)
        a(f"s_sub_u32 s{sT0}, s{sUP}, s{sM0B}")
        for t in range(4):
            a(f"v_add_u32 v{vTRU+t}, s{sT0}, v{vTR+t}")
        a(f"v_lshlrev_b32 v{vL0}, 4, v{vLANE}")
        a(f"v_add_u32 v{vL1}, 65536, v{vL0}")
        a(f"v_add_u32 v{vL2}, 131072, v{vL0}")

    a.label("L_w1_ready")
    a.vm = []
    stamp(a, opt, 4)
    common_setup()
    a(f"s_mul_i32 s{sT0}, s{sDT1}, 5120")
    a(f"v_add_u32 v{vA}, s{sT0}, v{vL0}")
    a(f"v_add_u32 v{vA2}, 4096, v{vA}")
    a(f"s_lshl_b32 s{sT0}, s{sWAVE}, 6")
    a(f"v_add_u32 v{vX}, s{sT0}, v{vLANE}")
    a(f"v_mul_u32_u24 v{vX}, {opt.hstride}, v{vX}")
    poll(a, opt, vX, 2, None)
    a("s_barrier")
    stamp(a, opt, 5)

    def a_loads(srdn, step, nsteps, s_rot):
        slot = step % NS
        step_off(a, sOFF, sSTEP, s_rot, step, nsteps, 40960)
        return [f"buffer_load_dwordx4 {vr(ring(slot,t),4)}, v{vA if t < 4 else vA2}, {srd(srdn)}, s{sOFF} offen offset:{(t*1024) if t < 4 else 0} sc1" for t in range(5)]

    def main_loop(srdn, nsteps, s_rot, tagp, mfma, stamp0, tail, nuni):
        for st in range(opt.depth):
            for o, ins in enumerate(a_loads(srdn, st, nsteps, s_rot)): a.vmem(ins, f"{tagp}{st}_{o}")
        for st in range(nuni):
            nx = st + opt.depth
            nxt = a_loads(srdn, nx, nsteps, s_rot) if nx < nsteps else None
            a.wait_vm(f"{tagp}{st}_4")
            if st == 0 and stamp0 is not None: stamp(a, opt, stamp0)
            for o in range(5):
                if nxt: a.vmem(nxt[o], f"{tagp}{nx}_{o}")
                for i in range(4): mfma(st, o, i, st % NS)
                if tail: tail(st, o)

    def tile_tail(nsteps, tagp, first, last, frag_of, mfma_tile, write_tile, extra):
        ic = [0]
        done_at = {}
        queue = []
        extra = list(extra)
        def emit(fn):
            fn(); ic[0] += 1
        def filler():
            if queue and ic[0] - done_at[queue[0]] >= 9:
                t = queue.pop(0); emit(lambda: write_tile(t)); return
            if extra: emit(extra.pop(0))
        tiles = list(first) + list(last)
        for i in range(0, len(tiles), 2):
            pair = tiles[i:i + 2]
            for t in pair:
                for st in (nsteps - 2, nsteps - 1): a.wait_vm(f"{tagp}{st}_{frag_of(t)}")
            for st in (nsteps - 2, nsteps - 1):
                for t in pair:
                    emit(lambda: mfma_tile(st, t))
                    if st == nsteps - 1:
                        done_at[t] = ic[0]
                        if t in first: queue.append(t)
                    filler()
        while extra: emit(extra.pop(0))
        while queue:
            while ic[0] - done_at[queue[0]] < 9: emit(lambda: a("s_nop 0"))
            t = queue.pop(0); emit(lambda: write_tile(t))

    a(f"s_mul_i32 s{sSTEP}, s{sWAVE}, {16*40960}")
    def mfma1(st, nt, mt, slot):
        c = "0" if st == 0 else vr(acc1(mt, nt), 4)
        a(f"v_mfma_f32_16x16x32_bf16 {vr(acc1(mt,nt),4)}, {ar(wfrag(st,mt),4)}, {vr(ring(slot,nt),4)}, {c}")
    parts13 = w2_dma_parts(a, 0) if opt.t13 else []
    def tail1(st, o):
        if st == 13 and parts13:
            if o == 0: parts13[0]()
            else: parts13[o]()
    main_loop(sH, 16, sROT1, "h", mfma1, 6, tail1, 14)

    a(f"s_mov_b32 s100, {f2h(C1)}"); a(f"s_mov_b32 s101, {f2h(C1)}")
    a(f"v_mov_b32 v{vC0}, {f2h(C0)}"); a(f"v_mov_b32 v{vC0+1}, {f2h(C0)}")
    def lds_ref(addr):
        if addr < 65536: return vL0, addr
        if addr < 131072: return vL1, addr - 65536
        return vL2, addr - 131072
    def owner1(p, nt): return p + (0 if nt < 3 else 2)
    units = [(p, nt) for p in range(2) for nt in range(5)]
    def red1_addr(src, u):
        k = [x for x in units if owner1(*x) != src].index(u)
        return src * 32768 + 24576 + k * 2048 if k < 4 else 131072 + src * 8192 + (k - 4) * 2048
    saved_vm = list(a.vm)
    for w in range(4):
        if w < 3:
            a(f"s_cmp_lg_u32 s{sWAVE}, {w}")
            a(f"s_cbranch_scc1 L_ep1_{w+1}")
        a.vm = list(saved_vm)
        nis = [1 if opt.t13 else 0]
        def more(n, limit):
            for _ in range(n):
                if nis[0] < limit:
                    w2_dma(a, nis[0]); nis[0] += 1
        tl = [(2 * p + hf, nt) for nt in range(5) for p in range(2) for hf in range(2)]
        first = [t for t in tl if owner1(t[0] // 2, t[1]) != w]
        last = [t for t in tl if owner1(t[0] // 2, t[1]) == w]
        def wr1(t):
            vb, off = lds_ref(red1_addr(w, (t[0] // 2, t[1])) + (t[0] & 1) * 1024)
            a(f"ds_write_b128 v{vb}, {vr(acc1(*t),4)} offset:{off}")
        extra = []
        for _ in range(opt.tt):
            extra += w2_dma_parts(a, nis[0]); nis[0] += 1
        tile_tail(16, "h", first, last, lambda t: t[1], lambda st, t: mfma1(st, t[1], t[0], st % NS), wr1, extra)
        stamp(a, opt, 7)
        more(opt.e1, 6)
        a("s_waitcnt lgkmcnt(0)")
        a("s_barrier")
        own_u = [u for u in units if owner1(*u) == w]
        RT = vRING
        n = 0
        for u in own_u:
            for src in range(4):
                if src == w: continue
                for hf in range(2):
                    vb, off = lds_ref(red1_addr(src, u) + hf * 1024)
                    a(f"ds_read_b128 {vr(RT + n*4, 4)}, v{vb} offset:{off}")
                    n += 1
        a.wait_vm("b")
        for i in range(4):
            a(f"v_lshlrev_b32 v{BI+2*i}, 16, v{vB1+i}")
            a(f"v_and_b32 v{BI+2*i+1}, 0xffff0000, v{vB1+i}")
        for u in own_u:
            p, nt = u
            for hf in range(2):
                r = acc1(2*p+hf, nt)
                a(f"v_pk_add_f32 {vr(r,2)}, {vr(r,2)}, {vr(BI+4*hf,2)}")
                a(f"v_pk_add_f32 {vr(r+2,2)}, {vr(r+2,2)}, {vr(BI+4*hf+2,2)}")
        n = 0
        tot = len(own_u) * 6
        for u in own_u:
            p, nt = u
            for si in range(3):
                for hf in range(2):
                    a(f"s_waitcnt lgkmcnt({min(15, tot - n - 1)})")
                    r = acc1(2*p+hf, nt)
                    a(f"v_pk_add_f32 {vr(r,2)}, {vr(r,2)}, {vr(RT+n*4,2)}")
                    a(f"v_pk_add_f32 {vr(r+2,2)}, {vr(r+2,2)}, {vr(RT+n*4+2,2)}")
                    n += 1
        a("s_barrier")
        regs = []
        for u in own_u:
            p, nt = u
            for hf in range(2):
                r = acc1(2*p+hf, nt)
                regs += [r, r + 2]
        more(opt.e2, 10)
        gelu_pairs(a, regs, RT, fill=lambda: more(opt.e3, 10))
        a(f"s_lshl_b32 s{sT0}, s{sFT}, 1")
        a(f"s_add_u32 s{sT0}, s{sT0}, {w & 1}")
        a(f"s_mul_i32 s{sT0}, s{sT0}, 40960")
        a(f"s_mul_i32 s{sT1}, s{sDT1}, 5120")
        a(f"s_add_u32 s{sT0}, s{sT0}, s{sT1}")
        for i, u in enumerate(own_u):
            p, nt = u
            o = RT + 64 + 4 * i
            r0, r1 = acc1(2*p, nt), acc1(2*p+1, nt)
            a(f"v_cvt_pk_bf16_f32 v{o}, v{r0}, v{r0+1}")
            a(f"v_cvt_pk_bf16_f32 v{o+1}, v{r0+2}, v{r0+3}")
            a(f"v_cvt_pk_bf16_f32 v{o+2}, v{r1}, v{r1+1}")
            a(f"v_cvt_pk_bf16_f32 v{o+3}, v{r1+2}, v{r1+3}")
            a(f"s_add_u32 s{sT1}, s{sT0}, {nt*1024}")
            a.vmem(f"buffer_store_dwordx4 {vr(o,4)}, v{vL0}, {srd(sG)}, s{sT1} offen sc1", "g")
        stamp(a, opt, 8)
        more(opt.nb, 10)
        a.wait_vm("w2_3")
        if nis[0] >= 4:
            for st in range(4):
                w2_tr(a, st)
                if st % 2 == 1: a("s_waitcnt lgkmcnt(0)")
        if nis[0] == 10 and opt.nb2:
            for st in range(10, 10 + opt.nb2): w2_dma(a, st)
            nis[0] += opt.nb2
        a.wait_vm("g")
        a(f"s_lshl_b32 s{sT0}, s{sDT1}, 5")
        a(f"s_add_u32 s{sT0}, s{sT0}, s{sFT}")
        a(f"s_mul_i32 s{sT0}, s{sT0}, {opt.gstride}")
        a(f"s_add_u32 s{sT0}, s{sT0}, {FLAG_G + 4*w}")
        flag_store(a, sT0)
        stamp(a, opt, 9)
        assert nis[0] >= 4
        more(10, 10)
        more(4, 14)
        for st in range(4, 10):
            a.wait_vm(f"w2_{st}")
            w2_tr(a, st)
            if st % 2 == 1: a("s_waitcnt lgkmcnt(0)")
        a("s_branch L_pre2")
        if w < 3: a.label(f"L_ep1_{w+1}")

    a.label("L_nogemm1")
    a.vm = []
    common_setup()
    if opt.pf == 2:
        assert opt.p1 == 2 and opt.p2 == 1
        a(f"s_cmp_lt_u32 s{sJ}, 28")
        a("s_cbranch_scc1 L_nopf")
        a(f"s_sub_u32 s{sT0}, s{sJ}, 28")
        a(f"s_lshl_b32 s{sT0}, s{sT0}, 2")
        a(f"s_add_u32 s{sT0}, s{sT0}, s{sWAVE}")
        a(f"s_lshl_b32 s{sT0}, s{sT0}, 13")
        a(f"s_lshl_b32 s{sT1}, s{sXCD}, 9")
        a(f"s_add_u32 s{sT0}, s{sT0}, s{sT1}")
        a(f"v_lshrrev_b32 v{vX}, 5, v{vLANE}")
        a(f"v_lshlrev_b32 v{vX}, 12, v{vX}")
        a(f"v_and_b32 v{vX+1}, 31, v{vLANE}")
        a(f"v_lshlrev_b32 v{vX+1}, 4, v{vX+1}")
        a(f"v_add_u32 v{vX}, v{vX}, v{vX+1}")
        keep = list(a.vm)
        for k in range(54):
            o = vRING + (k % 16) * 4
            a.vmem(f"buffer_load_dwordx4 {vr(o,4)}, v{vX}, {srd(sW2)}, s{sT0} offen", f"pf{k}")
            a(f"s_add_u32 s{sT0}, s{sT0}, {16*8192}")
            if k >= opt.pfdepth: a.wait_vm(f"pf{k-opt.pfdepth}")
        a.wait_vm0()
        a.label("L_nopf")
        a.vm = keep
    for st in range(10): w2_dma(a, st)
    for st in range(4):
        a.wait_vm(f"w2_{st}")
        w2_tr(a, st)
        if st % 2 == 1: a("s_waitcnt lgkmcnt(0)")
    for st in range(10, 14): w2_dma(a, st)
    for st in range(4, 10):
        a.wait_vm(f"w2_{st}")
        w2_tr(a, st)
        if st % 2 == 1: a("s_waitcnt lgkmcnt(0)")

    a.label("L_pre2")
    a.wait_vm0()
    a("s_waitcnt lgkmcnt(0)")
    for st in range(10, 14):
        w2_tr(a, st)
        if st % 2 == 1: a("s_waitcnt lgkmcnt(0)")
    stamp(a, opt, 10)
    a(f"s_mul_i32 s{sT0}, s{sDT2}, 5120")
    a(f"v_add_u32 v{vA}, s{sT0}, v{vL0}")
    a(f"v_add_u32 v{vA2}, 4096, v{vA}")
    a(f"s_lshl_b32 s{sT0}, s{sDT2}, 5")
    a(f"s_mul_i32 s{sT1}, s{sWAVE}, 7")
    a(f"s_add_u32 s{sT0}, s{sT0}, s{sT1}")
    a(f"s_mul_i32 s{sT0}, s{sT0}, {opt.gstride}")
    a(f"s_add_u32 s{sT0}, s{sT0}, {FLAG_G}")
    a(f"v_lshrrev_b32 v{vX}, 2, v{vLANE}")
    a(f"v_mul_u32_u24 v{vX}, {opt.gstride}, v{vX}")
    a(f"v_and_b32 v{vT}, 3, v{vLANE}")
    a(f"v_lshlrev_b32 v{vT}, 2, v{vT}")
    a(f"v_add_u32 v{vX}, v{vX}, v{vT}")
    a(f"v_add_u32 v{vX}, s{sT0}, v{vX}")
    a(f"s_cmp_eq_u32 s{sWAVE}, 3")
    a(f"s_mov_b32 s{sP+3}, 0xffffff")
    a(f"s_cselect_b32 s{sP+2}, s{sP+3}, 0xfffffff")
    a(f"s_mov_b32 s{sP+3}, 0")
    poll(a, opt, vX, 1, sP + 2)
    stamp(a, opt, 11)
    a(f"s_mul_i32 s{sSTEP}, s{sWAVE}, {14*40960}")
    def mfma2(st, mt, nt, slot):
        c = "0" if st == 0 else vr(acc2(mt, nt), 4)
        a(f"v_mfma_f32_16x16x32_bf16 {vr(acc2(mt,nt),4)}, {vr(ring(slot,mt),4)}, {ar(wfrag(st,nt),4)}, {c}")
    main_loop(sG, 14, sROT2, "g", mfma2, 12, None, 12)
    saved_vm2 = list(a.vm)
    a(f"v_and_b32 v{vT}, 15, v{vLANE}")
    a(f"s_lshl_b32 s{sT0}, s{sWAVE}, 4")
    a(f"v_add_u32 v{vT}, s{sT0}, v{vT}")
    a(f"v_mul_u32_u24 v{vA}, 1280, v{vT}")
    a(f"v_lshrrev_b32 v{vT}, 4, v{vLANE}")
    a(f"v_lshlrev_b32 v{vT}, 3, v{vT}")
    a(f"v_add_u32 v{vA}, v{vA}, v{vT}")
    a(f"s_mul_i32 s{sT0}, s{sST}, {64*1280}")
    a(f"s_mul_i32 s{sT1}, s{sDT2}, 160")
    a(f"s_add_u32 s{sOFF}, s{sT0}, s{sT1}")
    a(f"v_lshlrev_b32 v{vB2}, 16, v{vB2}")
    def red2_addr(src, nt, mt):
        k = [x for x in range(4) if x != src].index(nt)
        return src * 32768 + (k * 5 + mt) * 1024
    for w in range(4):
        if w < 3:
            a(f"s_cmp_lg_u32 s{sWAVE}, {w}")
            a(f"s_cbranch_scc1 L_ep2_{w+1}")
        a.vm = list(saved_vm2)
        tl = [(mt, nt) for mt in range(5) for nt in range(4)]
        def wr2(t):
            vb, off = lds_ref(red2_addr(w, t[1], t[0]))
            a(f"ds_write_b128 v{vb}, {vr(acc2(*t),4)} offset:{off}")
        tile_tail(14, "g", [t for t in tl if t[1] != w], [t for t in tl if t[1] == w], lambda t: t[0],
                  lambda st, t: mfma2(st, t[0], t[1], st % NS), wr2, [])
        stamp(a, opt, 13)
        a("s_waitcnt lgkmcnt(0)")
        a("s_barrier")
        RT = vRING
        n = 0
        for mt in range(5):
            for src in range(4):
                if src == w: continue
                vb, off = lds_ref(red2_addr(src, w, mt))
                a(f"ds_read_b128 {vr(RT+n*4,4)}, v{vb} offset:{off}")
                n += 1
        n = 0
        for mt in range(5):
            r = acc2(mt, w)
            for si in range(3):
                a(f"s_waitcnt lgkmcnt({14 - n})")
                a(f"v_pk_add_f32 {vr(r,2)}, {vr(r,2)}, {vr(RT+n*4,2)}")
                a(f"v_pk_add_f32 {vr(r+2,2)}, {vr(r+2,2)}, {vr(RT+n*4+2,2)}")
                n += 1
            for k in range(4):
                a(f"v_add_f32 v{r+k}, v{r+k}, v{vB2}")
            o = RT + 64 + 2 * mt
            a(f"v_cvt_pk_bf16_f32 v{o}, v{r}, v{r+1}")
            a(f"v_cvt_pk_bf16_f32 v{o+1}, v{r+2}, v{r+3}")
            a(f"buffer_store_dwordx2 {vr(o,2)}, v{vA}, {srd(sO)}, s{sOFF} offen offset:{mt*32} {opt.obits}")
        a("s_branch L_fin")
        if w < 3: a.label(f"L_ep2_{w+1}")
    a.label("L_fin")
    if opt.probe >= 0:
        if opt.probe == 14:
            a("s_waitcnt vmcnt(0)")
            stamp(a, opt, 14)
        a(f"s_cmp_lg_u32 s{sWG}, {opt.probewg}")
        a("s_cbranch_scc1 L_done")
        a(f"s_cmp_lg_u32 s{sWAVE}, {opt.probew}")
        a("s_cbranch_scc1 L_done")
        a(f"s_sub_u32 s{sT1}, s{sPROF+1}, s{sPROF+2 if opt.probe0 >= 0 else 96}")
        if opt.probecyc: a(f"s_lshr_b32 s{sT1}, s{sT1}, 2")
        else: a(f"s_lshl_b32 s{sT1}, s{sT1}, 2")
        a(f"s_add_u32 s{sT1}, s{sT1}, 4000")
        a.label("L_probe")
        a(f"s_memrealtime s[{sP}:{sP+1}]")
        a("s_waitcnt lgkmcnt(0)")
        a(f"s_sub_u32 s{sT0}, s{sP}, s96")
        a(f"s_cmp_lt_u32 s{sT0}, s{sT1}")
        a("s_cbranch_scc1 L_probe")
    if opt.pad:
        a.label("L_pad")
        a(f"s_memrealtime s[{sP}:{sP+1}]")
        a("s_waitcnt lgkmcnt(0)")
        a(f"s_sub_u32 s{sT0}, s{sP}, s96")
        a(f"s_cmp_lt_u32 s{sT0}, {opt.pad}")
        a("s_cbranch_scc1 L_pad")
    if opt.prof:
        a("s_waitcnt vmcnt(0)")
        stamp(a, opt, 14)
        make_srd(a, sX, 18, 65536, WS_PROF)
        a(f"s_lshl_b32 s{sT0}, s{sWG}, 2")
        a(f"s_add_u32 s{sT0}, s{sT0}, s{sWAVE}")
        a(f"s_lshl_b32 s{sT0}, s{sT0}, 6")
        a(f"v_mov_b32 v{vT}, s{sT0}")
        a("s_mov_b64 exec, 1")
        for i in range(15):
            a(f"v_mov_b32 v100, s{sPROF+i}")
            a(f"buffer_store_dword v100, v{vT}, {srd(sX)}, 0 offen offset:{4*i}")
            a("s_nop 1")
        a("s_waitcnt vmcnt(0)")
    a.label("L_done")
    a("s_endpgm")
    a.label("L_codeend")
    a.raw('.section .rodata,"a"')
    a.raw(".p2align 6")
    a.raw(f".amdhsa_kernel {KN}")
    for l in ["next_free_vgpr 512", "next_free_sgpr 102", "accum_offset 256", "group_segment_fixed_size 0",
              "kernarg_size 64", "user_sgpr_count 2", "user_sgpr_kernarg_segment_ptr 1",
              "system_sgpr_workgroup_id_x 1", "float_denorm_mode_32 3"]:
        a.raw(f"  .amdhsa_{l}")
    a.raw(".end_amdhsa_kernel")
    return "\n".join(a.L) + "\n"

def parse(argv=None):
    ap = argparse.ArgumentParser()
    ap.add_argument("-o", default="standalone__mixer_token_mlp__prompt.s")
    ap.add_argument("--prof", type=int, default=0)
    ap.add_argument("--rot", type=int, default=3)
    ap.add_argument("--spin", type=int, default=20000)
    ap.add_argument("--sleep", type=int, default=8)
    ap.add_argument("--depth", type=int, default=3)
    ap.add_argument("--lnprof", type=int, default=0)
    ap.add_argument("--hbits", default="sc1")
    ap.add_argument("--pfwait", type=int, default=1)
    ap.add_argument("--hold", type=int, default=0)
    ap.add_argument("--probe", type=int, default=-1)
    ap.add_argument("--probe0", type=int, default=-1)
    ap.add_argument("--probecyc", type=int, default=0)
    ap.add_argument("--probewg", type=int, default=100)
    ap.add_argument("--probew", type=int, default=2)
    ap.add_argument("--rot8", type=int, default=1)
    ap.add_argument("--cpf", type=int, default=0)
    ap.add_argument("--cpfw", type=int, default=3)
    ap.add_argument("--t13", type=int, default=1)
    ap.add_argument("--tt", type=int, default=2)
    ap.add_argument("--e2", type=int, default=0)
    ap.add_argument("--e3", type=int, default=0)
    ap.add_argument("--nb2", type=int, default=0)
    ap.add_argument("--e1", type=int, default=1)
    ap.add_argument("--nb", type=int, default=2)
    ap.add_argument("--nearly", type=int, default=3)
    ap.add_argument("--dpl", type=int, default=5)
    ap.add_argument("--dp", type=int, default=4)
    ap.add_argument("--p1", type=int, default=2)
    ap.add_argument("--p2", type=int, default=1)
    ap.add_argument("--rota1", type=int, default=0)
    ap.add_argument("--rota2", type=int, default=0)
    ap.add_argument("--xbits", default="nt")
    ap.add_argument("--w1bits", default="")
    ap.add_argument("--w2bits", default="")
    ap.add_argument("--pfbits", default="")
    ap.add_argument("--pfdepth", type=int, default=8)
    ap.add_argument("--prio", type=int, default=3)
    ap.add_argument("--delay", type=int, default=0)
    ap.add_argument("--hstride", type=int, default=8)
    ap.add_argument("--gstride", type=int, default=256)
    ap.add_argument("--pf", type=int, default=1)
    ap.add_argument("--pad", type=int, default=0)
    ap.add_argument("--obits", default="sc1")
    return ap.parse_args(argv)

if __name__ == "__main__":
    opt = parse()
    open(opt.o, "w").write(gen(opt))
```

```python
import argparse, struct

S, D, F = 2048, 640, 1728
KN = "standalone__mixer_token_mlp__prompt_kernel"

WS_H = 0
H_BYTES = 64 * 40 * 1024
WS_G = 0x300000
G_BYTES = 54 * 40 * 1024
WS_FLAG = 0x600000
FLAG_H = 0
FLAG_G = 0x10000
FLAG_BYTES = 0x40000
WS_PROF = 0x700000

LDS_BYTES = 163840
LN_BASE = 131072
LN_ROW = 1344
LF_BASE = 141824
P0_BASE = [0, 49152, 98304, 122880]

sWG = 2
sX, sW1, sW2, sH, sG, sO, sF, sB1, sB2, sD = 20, 24, 28, 32, 36, 40, 44, 48, 52, 56
sWAVE, sXCD, sJ, sFT, sDT1, sST, sDT2, sNONCE = 60, 61, 62, 63, 64, 65, 66, 67
sT0, sT1, sT2, sT3, sT4, sT5 = 68, 69, 70, 71, 72, 73
sROT1, sROT2, sSTEP, sOFF = 74, 75, 76, 77
sM0B, sSPIN = 78, 79
sP = 80
sPROF = 84
sUP = 99
sJLIM, sIDLE = 100, 101
sWB = 3

vTID, vLANE = 0, 1
vTR = 2
vA, vA2, vDMA, vT2 = 6, 7, 8, 9
vB1 = 10
vB2, vT = 14, 15
vACC = 16
vRING = 96
vTRU = 176
vL0, vL1, vL2 = 180, 181, 182
vC0 = 184
BI = 186
vPOLL = 194
vX = 196
vDM = 200

def srd(n): return f"s[{n}:{n+3}]"
def vr(n, c=1): return f"v{n}" if c == 1 else f"v[{n}:{n+c-1}]"
def ar(n, c=1): return f"a{n}" if c == 1 else f"a[{n}:{n+c-1}]"
def f2h(x): return "0x%08x" % struct.unpack("<I", struct.pack("<f", x))[0]
C0 = -2.0 * 0.7978845608028654 * 1.4426950408889634
C1 = C0 * 0.044715

class Asm:
    def __init__(self):
        self.L = []; self.vm = []; self.uid = 0
    def __call__(self, s): self.L.append("    " + s)
    def label(self, s): self.L.append(s + ":")
    def raw(self, s): self.L.append(s)
    def c(self, s): self.L.append("    ; " + s)
    def vmem(self, s, tag):
        self(s); self.vm.append(tag)
    def wait_vm(self, tag):
        hits = [i for i, t in enumerate(self.vm) if t == tag]
        if not hits: return
        n = len(self.vm) - 1 - hits[-1]
        self(f"s_waitcnt vmcnt({min(n, 63)})")
        self.vm = self.vm[hits[-1] + 1:]
    def wait_vm0(self):
        self("s_waitcnt vmcnt(0)"); self.vm = []
    def newlabel(self, p):
        self.uid += 1
        return f"L_{p}_{self.uid}"

def acc1(mt, nt): return vACC + (mt * 5 + nt) * 4
def acc2(mt, nt): return vACC + (mt * 4 + nt) * 4
def wfrag(step, t): return step * 16 + t * 4

def stamp(a, opt, idx, force=False):
    if opt.probe >= 0:
        ins = "s_memtime" if opt.probecyc else "s_memrealtime"
        if idx == opt.probe:
            a(f"{ins} s[{sP}:{sP+1}]")
            a("s_waitcnt lgkmcnt(0)")
            a(f"s_mov_b32 s{sPROF+1}, s{sP}")
        if idx == opt.probe0:
            a(f"{ins} s[{sP}:{sP+1}]")
            a("s_waitcnt lgkmcnt(0)")
            a(f"s_mov_b32 s{sPROF+2}, s{sP}")
        return
    if opt.lnprof and idx in (4, 5) and getattr(a, "ln_done", False): return
    if opt.prof:
        a(f"s_mem{'time' if opt.prof == 2 else 'realtime'} s[{sP}:{sP+1}]")
        a("s_waitcnt lgkmcnt(0)")
        a(f"s_mov_b32 s{sPROF+idx}, s{sP}")

def make_srd(a, n, lo, size, add=0):
    if add:
        a(f"s_add_u32 s{n}, s{lo}, {add}")
        a(f"s_addc_u32 s{n+1}, s{lo+1}, 0")
        a(f"s_and_b32 s{n+1}, s{n+1}, 0xffff")
    else:
        a(f"s_mov_b32 s{n}, s{lo}")
        a(f"s_and_b32 s{n+1}, s{lo+1}, 0xffff")
    a(f"s_mov_b32 s{n+2}, {size}")
    a(f"s_mov_b32 s{n+3}, 0x20000")

def nonce_spin(a, opt):
    lp = a.newlabel("nonce"); dn = a.newlabel("nonced")
    a(f"s_cmp_lg_u32 s{sNONCE}, 0")
    a(f"s_cbranch_scc1 {dn}")
    a(f"s_mov_b32 s{sSPIN}, 0")
    a(f"v_mov_b32 v{vT}, 0")
    a.label(lp)
    a(f"buffer_load_dword v{vT2}, v{vT}, {srd(sD)}, 0 offen sc1")
    a("s_waitcnt vmcnt(0)")
    a(f"v_readfirstlane_b32 s{sNONCE}, v{vT2}")
    a(f"s_add_u32 s{sSPIN}, s{sSPIN}, 1")
    a(f"s_cmp_lg_u32 s{sNONCE}, 0")
    a(f"s_cbranch_scc1 {dn}")
    a(f"s_cmp_lt_u32 s{sSPIN}, {opt.spin}")
    a(f"s_cbranch_scc1 {lp}")
    a.label(dn)

def lds_set(a, addr_sgpr_or_imm):
    a(f"v_mov_b32 v{vT}, {addr_sgpr_or_imm}")
    a(f"v_mov_b32 v{vT2}, 1")
    a(f"s_mov_b64 s[{sP}:{sP+1}], exec")
    a("s_mov_b64 exec, 1")
    a(f"ds_write_b32 v{vT}, v{vT2}")
    a(f"s_mov_b64 exec, s[{sP}:{sP+1}]")

def lds_spin(a, opt, addr):
    lp = a.newlabel("lspin"); dn = a.newlabel("lspun")
    a(f"v_mov_b32 v{vT}, {addr}")
    a(f"s_mov_b32 s{sSPIN}, 0")
    a.label(lp)
    a(f"ds_read_b32 v{vT2}, v{vT}")
    a("s_waitcnt lgkmcnt(0)")
    a(f"v_readfirstlane_b32 s{sP}, v{vT2}")
    a(f"s_add_u32 s{sSPIN}, s{sSPIN}, 1")
    a(f"s_cmp_lg_u32 s{sP}, 0")
    a(f"s_cbranch_scc1 {dn}")
    a(f"s_cmp_lt_u32 s{sSPIN}, {opt.spin * 8}")
    a(f"s_cbranch_scc1 {lp}")
    a.label(dn)

def dma_addr(a, stride, s_tile):
    a(f"v_lshrrev_b32 v{vT}, 3, v{vLANE}")
    a(f"v_lshrrev_b32 v{vT2}, 1, v{vT}")
    a(f"v_lshlrev_b32 v{vT2}, 1, v{vT2}")
    a(f"v_and_b32 v{vDM}, 7, v{vLANE}")
    a(f"v_xor_b32 v{vDM}, v{vDM}, v{vT2}")
    a(f"v_lshlrev_b32 v{vDM}, 4, v{vDM}")
    a(f"v_mul_u32_u24 v{vT}, {stride}, v{vT}")
    a(f"v_add_u32 v{vDM}, v{vDM}, v{vT}")
    a(f"s_lshl_b32 s{sT0}, s{s_tile}, 7")
    a(f"v_add_u32 v{vDM}, s{sT0}, v{vDM}")
    for b in range(1, 4):
        a(f"v_add_u32 v{vDM+b}, {b*(8*stride-1024)}, v{vDM}")

def step_off(a, dst, s_base, s_rot, i, nsteps, bytes_per_step):
    a(f"s_add_u32 s{sT4}, s{s_rot}, {i}")
    a(f"s_cmp_ge_u32 s{sT4}, {nsteps}")
    a(f"s_cselect_b32 s{dst}, {nsteps}, 0")
    a(f"s_sub_u32 s{sT4}, s{sT4}, s{dst}")
    a(f"s_mul_i32 s{sT4}, s{sT4}, {bytes_per_step}")
    a(f"s_add_u32 s{dst}, s{sT4}, s{s_base}")

def dma_step(a, srdn, stride, s_rowbase, s_rot, step, nsteps, s_lds, lds_off, tag, bits=""):
    a(f"s_add_u32 m0, s{s_lds}, {lds_off}")
    step_off(a, sOFF, s_rowbase, s_rot, step, nsteps, 32 * stride)
    for blk in range(4):
        a.vmem(f"buffer_load_dwordx4 v{vDM+blk}, {srd(srdn)}, s{sOFF} offen offset:{blk*1024} {bits} lds", tag)

def tr_step(a, vbase, off, step):
    for t in range(4):
        w = wfrag(step, t)
        a(f"ds_read_b64_tr_b16 {ar(w,2)}, v{vbase+t} offset:{off}")
        a(f"ds_read_b64_tr_b16 {ar(w+2,2)}, v{vbase+t} offset:{off+2048}")

def poll(a, opt, vaddr, nd, lanes):
    lp = a.newlabel("poll"); dn = a.newlabel("polled")
    a(f"s_mov_b32 s{sSPIN}, 0")
    a.label(lp)
    ld = {1: "dword", 2: "dwordx2"}[nd]
    a(f"buffer_load_{ld} {vr(vPOLL, nd)}, v{vaddr}, {srd(sF)}, 0 offen sc1")
    a("s_waitcnt vmcnt(0)")
    a(f"v_cmp_ne_u32 vcc, s{sNONCE}, v{vPOLL}")
    if nd == 2:
        a(f"v_cmp_ne_u32 s[{sP}:{sP+1}], s{sNONCE}, v{vPOLL+1}")
        a(f"s_or_b64 vcc, vcc, s[{sP}:{sP+1}]")
    if lanes is not None:
        a(f"s_and_b64 vcc, vcc, s[{lanes}:{lanes+1}]")
    a(f"s_add_u32 s{sSPIN}, s{sSPIN}, 1")
    a("s_cmp_eq_u64 vcc, 0")
    a(f"s_cbranch_scc1 {dn}")
    if opt.sleep: a(f"s_sleep {opt.sleep}")
    a(f"s_cmp_lt_u32 s{sSPIN}, {opt.spin}")
    a(f"s_cbranch_scc1 {lp}")
    a.label(dn)
    a.vm = []

def flag_store(a, s_index_bytes):
    a(f"v_mov_b32 v{vT}, s{s_index_bytes}")
    a(f"v_mov_b32 v{vT2}, s{sNONCE}")
    a(f"s_mov_b64 s[{sP}:{sP+1}], exec")
    a("s_mov_b64 exec, 1")
    a.vmem(f"buffer_store_dword v{vT2}, v{vT}, {srd(sF)}, 0 offen sc1", "flag")
    a(f"s_mov_b64 exec, s[{sP}:{sP+1}]")

def gelu_pairs(a, regs, tmp, fill=None):
    def each(fn):
        for i, r in enumerate(regs): fn(r, tmp + 2 * i)
    each(lambda r, t: a(f"v_pk_mul_f32 {vr(t,2)}, {vr(r,2)}, {vr(r,2)}"))
    each(lambda r, t: a(f"v_pk_fma_f32 {vr(t,2)}, {vr(t,2)}, s[100:101], {vr(vC0,2)}"))
    each(lambda r, t: a(f"v_pk_mul_f32 {vr(t,2)}, {vr(t,2)}, {vr(r,2)}"))
    if fill: fill()
    each(lambda r, t: (a(f"v_exp_f32 v{t}, v{t}"), a(f"v_exp_f32 v{t+1}, v{t+1}")))
    each(lambda r, t: a(f"v_pk_add_f32 {vr(t,2)}, {vr(t,2)}, 1.0 op_sel_hi:[1,0]"))
    each(lambda r, t: (a(f"v_rcp_f32 v{t}, v{t}"), a(f"v_rcp_f32 v{t+1}, v{t+1}")))
    a("s_nop 0")
    each(lambda r, t: a(f"v_pk_mul_f32 {vr(r,2)}, {vr(r,2)}, {vr(t,2)}"))

def w2_slot(step):
    if step < 8: return sM0B, step * 4096, vTR, step * 4096
    if step < 10: return sUP, (step - 8) * 4096, vTRU, (step - 8) * 4096
    return sM0B, (step - 10) * 4096, vTR, (step - 10) * 4096

def w2_dma(a, step):
    sb, off, _, _ = w2_slot(step)
    dma_step(a, sW2, S * 2, sWB, sROT2, step, 14, sb, off, f"w2_{step}", OPT.w2bits)

def w2_dma_parts(a, step):
    sb, off, _, _ = w2_slot(step)
    def setup():
        a(f"s_add_u32 m0, s{sb}, {off}")
        step_off(a, sOFF, sWB, sROT2, step, 14, 32 * S * 2)
    def one(blk):
        return lambda: a.vmem(f"buffer_load_dwordx4 v{vDM+blk}, {srd(sW2)}, s{sOFF} offen offset:{blk*1024} {OPT.w2bits} lds", f"w2_{step}")
    return [setup] + [one(b) for b in range(4)]

def w2_tr(a, step):
    _, _, vb, off = w2_slot(step)
    tr_step(a, vb, off, step)

def gen(opt):
    global OPT
    OPT = opt
    a = Asm()
    NS = opt.depth + 1
    def ring(slot, t): return vRING + slot * 20 + t * 4
    a.raw(f"; @launch grid=(256,1,1) block=(256,1,1) lds={LDS_BYTES}")
    a.raw('.amdgcn_target "amdgcn-amd-amdhsa--gfx950"')
    a.raw(".text")
    a.raw(f".globl {KN}")
    a.raw(".p2align 8")
    a.raw(f".type {KN},@function")
    a.label(KN)
    if opt.cpf: a("s_getpc_b64 s[94:95]")
    a(f"s_cmp_ge_u32 s{sWG}, 256")
    a("s_cbranch_scc1 L_done")
    a("s_load_dwordx16 s[4:19], s[0:1], 0")
    if opt.prof:
        a(f"s_mem{'time' if opt.prof == 2 else 'realtime'} s[{sP}:{sP+1}]")
    if opt.prof:
        for i in range(1, 15): a(f"s_mov_b32 s{sPROF+i}, 0")
    if opt.pad or opt.probe >= 0:
        a("s_memrealtime s[96:97]")
    a(f"v_lshrrev_b32 v{vT}, 6, v{vTID}")
    a(f"v_and_b32 v{vLANE}, 63, v{vTID}")
    a(f"v_readfirstlane_b32 s{sWAVE}, v{vT}")
    a(f"s_and_b32 s{sXCD}, s{sWG}, 7")
    a(f"s_lshr_b32 s{sJ}, s{sWG}, 3")
    if opt.p1 == 2:
        a(f"s_lshr_b32 s{sT1}, s{sXCD}, 1")
        a(f"s_and_b32 s{sT2}, s{sXCD}, 1")
        a(f"s_lshl_b32 s{sT2}, s{sT2}, 2")
        a(f"s_mul_i32 s{sT0}, s{sT1}, 7")
        a(f"s_lshr_b32 s{sFT}, s{sJ}, 2")
        a(f"s_add_u32 s{sFT}, s{sFT}, s{sT0}")
        a(f"s_and_b32 s{sT3}, s{sJ}, 3")
        a(f"s_add_u32 s{sDT1}, s{sT2}, s{sT3}")
        if opt.rot8: a(f"s_lshl_b32 s{sROT1}, s{sDT1}, 1")
        else: a(f"s_lshl_b32 s{sROT1}, s{sT3}, 2")
        a(f"s_cmp_eq_u32 s{sT1}, 3")
        a(f"s_cselect_b32 s{sJLIM}, 24, 28")
        a(f"s_lshl_b32 s{sT0}, s{sXCD}, 2")
        a(f"s_sub_u32 s{sT0}, s{sT0}, 28")
        a(f"s_lshl_b32 s{sT3}, s{sXCD}, 3")
        a(f"s_sub_u32 s{sT3}, s{sT3}, 48")
        a(f"s_cselect_b32 s{sIDLE}, s{sT0}, s{sT0}")
        a(f"s_cmp_ge_u32 s{sXCD}, 6")
        a(f"s_cselect_b32 s{sIDLE}, s{sT3}, s{sT0}")
        a(f"s_add_u32 s{sIDLE}, s{sIDLE}, s{sJ}")
    else:
        a(f"s_lshl_b32 s{sT0}, s{sXCD}, 2")
        a(f"s_mul_i32 s{sT1}, s{sXCD}, 3")
        a(f"s_add_u32 s{sT1}, s{sT1}, 3")
        a(f"s_cmp_lt_u32 s{sXCD}, 3")
        a(f"s_cselect_b32 s{sT0}, s{sT0}, s{sT1}")
        a(f"s_cselect_b32 s{sJLIM}, 32, 24")
        a(f"s_lshr_b32 s{sFT}, s{sJ}, 3")
        a(f"s_add_u32 s{sFT}, s{sFT}, s{sT0}")
        a(f"s_and_b32 s{sDT1}, s{sJ}, 7")
        a(f"s_lshl_b32 s{sROT1}, s{sDT1}, 1")
        a(f"s_lshl_b32 s{sIDLE}, s{sXCD}, 3")
        a(f"s_add_u32 s{sIDLE}, s{sIDLE}, s{sJ}")
        a(f"s_sub_u32 s{sIDLE}, s{sIDLE}, 48")
    if opt.rota1:
        a(f"s_mul_i32 s{sT0}, s{sFT}, {opt.rota1}")
        a(f"s_add_u32 s{sROT1}, s{sROT1}, s{sT0}")
        a(f"s_and_b32 s{sROT1}, s{sROT1}, 15")
    if opt.p2 == 2:
        a(f"s_lshr_b32 s{sT1}, s{sXCD}, 1")
        a(f"s_and_b32 s{sT2}, s{sXCD}, 1")
        a(f"s_lshl_b32 s{sT2}, s{sT2}, 2")
        a(f"s_lshr_b32 s{sT0}, s{sJ}, 2")
        a(f"s_lshl_b32 s{sST}, s{sT1}, 3")
        a(f"s_add_u32 s{sST}, s{sST}, s{sT0}")
        a(f"s_and_b32 s{sT3}, s{sJ}, 3")
        a(f"s_add_u32 s{sDT2}, s{sT2}, s{sT3}")
        if opt.rot8:
            a(f"s_mul_i32 s{sROT2}, s{sDT2}, 7")
            a(f"s_lshr_b32 s{sROT2}, s{sROT2}, 2")
        else:
            a(f"s_mul_i32 s{sROT2}, s{sT3}, 7")
            a(f"s_lshr_b32 s{sROT2}, s{sROT2}, 1")
    else:
        a(f"s_lshr_b32 s{sT0}, s{sJ}, 3")
        a(f"s_lshl_b32 s{sST}, s{sXCD}, 2")
        a(f"s_add_u32 s{sST}, s{sST}, s{sT0}")
        a(f"s_and_b32 s{sDT2}, s{sJ}, 7")
        a(f"s_mul_i32 s{sROT2}, s{sDT2}, 7")
        a(f"s_lshr_b32 s{sROT2}, s{sROT2}, 2")
    if opt.rota2:
        a(f"s_mul_i32 s{sT0}, s{sST}, {opt.rota2}")
        a(f"s_add_u32 s{sROT2}, s{sROT2}, s{sT0}")
        a(f"s_and_b32 s{sT0}, s{sROT2}, 0xff")
        a(f"s_mul_i32 s{sT0}, s{sROT2}, 18725")
        a(f"s_lshr_b32 s{sT0}, s{sT0}, 18")
        a(f"s_mul_i32 s{sT0}, s{sT0}, 14")
        a(f"s_sub_u32 s{sROT2}, s{sROT2}, s{sT0}")
    if not (opt.rot & 1): a(f"s_mov_b32 s{sROT1}, 0")
    if not (opt.rot & 2): a(f"s_mov_b32 s{sROT2}, 0")
    a(f"s_lshl_b32 s{sM0B}, s{sWAVE}, 15")
    a(f"s_lshl_b32 s{sUP}, s{sWAVE}, 13")
    a(f"s_add_u32 s{sUP}, s{sUP}, 131072")
    def tr_addr(base_sgpr):
        t0, t1, t2 = vX, vX + 1, vX + 2
        a(f"v_lshrrev_b32 v{t0}, 4, v{vLANE}")
        a(f"v_and_b32 v{t1}, 1, v{t0}")
        a(f"v_lshlrev_b32 v{t1}, 2, v{t1}")
        a(f"v_bfe_u32 v{t2}, v{vLANE}, 2, 2")
        a(f"v_add_u32 v{t1}, v{t1}, v{t2}")
        a(f"v_lshrrev_b32 v{t0}, 1, v{t0}")
        a(f"v_lshlrev_b32 v{t0}, 10, v{t0}")
        a(f"v_lshlrev_b32 v{t2}, 7, v{t1}")
        a(f"v_add_u32 v{t0}, v{t0}, v{t2}")
        a(f"v_and_b32 v{t2}, 3, v{vLANE}")
        a(f"v_lshlrev_b32 v{t2}, 3, v{t2}")
        a(f"v_add_u32 v{t0}, v{t0}, v{t2}")
        a(f"v_add_u32 v{t0}, s{base_sgpr}, v{t0}")
        a(f"v_lshrrev_b32 v{t1}, 1, v{t1}")
        for t in range(4):
            a(f"v_xor_b32 v{t2}, {t}, v{t1}")
            a(f"v_lshlrev_b32 v{t2}, 5, v{t2}")
            a(f"v_add_u32 v{vTR+t}, v{t0}, v{t2}")
    def w1_dma(i): dma_step(a, sW1, F * 2, sWB, sROT1, i, 16, sM0B, (i % 8) * 4096, f"w1_{i}", opt.w1bits)
    def w1_stream(first, dp):
        retired = 0
        def retire():
            nonlocal retired
            a.wait_vm(f"w1_{retired}")
            if retired: a("s_waitcnt lgkmcnt(0)")
            tr_step(a, vTR, (retired % 8) * 4096, retired)
            retired += 1
        for i in range(first, 16):
            while retired <= i - dp: retire()
            if i >= 8:
                while retired <= i - 8: retire()
                if retired == i - 7: a("s_waitcnt lgkmcnt(0)")
            w1_dma(i)
        while retired < 16: retire()
        a("s_waitcnt lgkmcnt(0)")
    dma_addr(a, F * 2, sFT)
    a(f"s_mul_i32 s{sWB}, s{sWAVE}, {512*F*2}")
    a(f"s_cmp_ge_u32 s{sWAVE}, 2")
    a("s_cbranch_scc1 L_loader")

    a.c("LayerNorm: wave w normalises rows 32*ks + 16*w + 4*q + (0..3), 16 lanes per row")
    XR, XF, TM = 96, 120, 160
    if opt.prio: a(f"s_setprio {opt.prio}")
    a(f"s_lshr_b32 s{sT0}, s{sWG}, 2")
    a(f"s_and_b32 s{sT1}, s{sWG}, 3")
    a(f"s_lshl_b32 s{sT2}, s{sT0}, 5")
    a(f"s_lshl_b32 s{sT3}, s{sWAVE}, 4")
    a(f"s_add_u32 s{sT2}, s{sT2}, s{sT3}")
    a(f"s_lshl_b32 s{sT3}, s{sT1}, 2")
    a(f"s_add_u32 s{sT2}, s{sT2}, s{sT3}")
    a(f"s_mul_i32 s{sT2}, s{sT2}, 1280")
    a(f"v_lshrrev_b32 v{TM}, 4, v{vLANE}")
    a(f"v_and_b32 v{TM+1}, 15, v{vLANE}")
    a(f"v_mul_u32_u24 v{TM+2}, 1280, v{TM}")
    a(f"v_lshlrev_b32 v{TM+3}, 4, v{TM+1}")
    a(f"v_add_u32 v{TM+2}, v{TM+2}, v{TM+3}")
    a(f"v_mov_b32 v{vT}, 0")
    a("s_waitcnt lgkmcnt(0)")
    if opt.prof: a(f"s_mov_b32 s{sPROF}, s{sP}")
    make_srd(a, sX, 4, S * D * 2)
    for i in range(5):
        a.vmem(f"buffer_load_dwordx4 {vr(XR+4*i,4)}, v{TM+2}, {srd(sX)}, s{sT2} offen offset:{i*256} {opt.xbits}", "x")
    make_srd(a, sD, 16, 256)
    a.vmem(f"buffer_load_dword v{vPOLL}, v{vT}, {srd(sD)}, 0 offen sc1", "nonce")
    make_srd(a, sW1, 6, S * F * 2)
    a(f"s_cmp_ge_u32 s{sJ}, s{sJLIM}")
    a("s_cbranch_scc1 L_ln_now1")
    for i in range(opt.nearly): w1_dma(i)
    a.label("L_ln_now1")
    a("s_barrier")
    make_srd(a, sH, 18, H_BYTES, WS_H)
    make_srd(a, sF, 18, FLAG_BYTES, WS_FLAG)
    a(f"s_mul_i32 s{sSTEP}, s{sT0}, 40960")
    a(f"s_lshl_b32 s{sT1}, s{sT1}, 8")
    a(f"s_add_u32 s{sSTEP}, s{sSTEP}, s{sT1}")
    a(f"s_lshl_b32 s{sT3}, s{sWAVE}, 2")
    a(f"v_add_u32 v{TM+4}, s{sT3}, v{TM}")
    a(f"v_mul_u32_u24 v{TM+4}, {LN_ROW}, v{TM+4}")
    a(f"v_add_u32 v{TM+4}, v{TM+4}, v{TM+3}")
    a(f"v_add_u32 v{TM+4}, {LN_BASE}, v{TM+4}")
    a(f"v_bfe_u32 v{TM+5}, v{vLANE}, 2, 2")
    a(f"v_mul_u32_u24 v{TM+5}, {LN_ROW}, v{TM+5}")
    a(f"s_mul_i32 s{sT3}, s{sWAVE}, 20")
    a(f"v_add_u32 v{TM+6}, s{sT3}, v{TM}")
    a(f"v_lshlrev_b32 v{TM+7}, 5, v{TM+6}")
    a(f"v_add_u32 v{TM+5}, v{TM+5}, v{TM+7}")
    a(f"v_and_b32 v{TM+7}, 3, v{vLANE}")
    a(f"v_lshlrev_b32 v{TM+7}, 3, v{TM+7}")
    a(f"v_add_u32 v{TM+5}, v{TM+5}, v{TM+7}")
    a(f"v_add_u32 v{TM+5}, {LN_BASE}, v{TM+5}")
    a(f"v_lshlrev_b32 v{TM+6}, 10, v{TM+6}")
    a(f"v_add_u32 v{TM+6}, v{TM+6}, v{TM+3}")
    a(f"s_mov_b32 s{sT0}, 0xffff0000")
    a(f"s_cmp_ge_u32 s{sJ}, s{sJLIM}")
    a("s_cbranch_scc1 L_ln_idle")
    a(f"s_waitcnt vmcnt({1 + 4*opt.nearly})")
    a("s_branch L_ln_go")
    a.label("L_ln_idle")
    a("s_waitcnt vmcnt(1)")
    a.label("L_ln_go")
    a.vm = [t for t in a.vm if t != "x"]
    stamp(a, opt, 1)
    for i in range(20):
        a(f"v_lshlrev_b32 v{XF+2*i}, 16, v{XR+i}")
        a(f"v_and_b32 v{XF+2*i+1}, s{sT0}, v{XR+i}")
    SM = TM + 8
    for k in range(4):
        a(f"v_pk_add_f32 {vr(SM+2*k,2)}, {vr(XF+2*k,2)}, {vr(XF+8+2*k,2)}")
    for i in range(8, 20):
        k = i % 4
        a(f"v_pk_add_f32 {vr(SM+2*k,2)}, {vr(SM+2*k,2)}, {vr(XF+2*i,2)}")
    def reduce_row(dst):
        a(f"v_pk_add_f32 {vr(SM,2)}, {vr(SM,2)}, {vr(SM+2,2)}")
        a(f"v_pk_add_f32 {vr(SM+4,2)}, {vr(SM+4,2)}, {vr(SM+6,2)}")
        a(f"v_pk_add_f32 {vr(SM,2)}, {vr(SM,2)}, {vr(SM+4,2)}")
        a(f"v_add_f32 v{dst}, v{SM}, v{SM+1}")
        for rot in (8, 4, 2, 1):
            a("s_nop 1")
            a(f"v_add_f32_dpp v{dst}, v{dst}, v{dst} row_ror:{rot} row_mask:0xf bank_mask:0xf")
    MN = TM + 16
    reduce_row(MN)
    a(f"v_mul_f32 v{MN}, {f2h(1.0/640.0)}, v{MN}")
    a(f"v_mov_b32 v{MN+1}, v{MN}")
    for i in range(20):
        a(f"v_pk_add_f32 {vr(XF+2*i,2)}, {vr(XF+2*i,2)}, {vr(MN,2)} neg_lo:[0,1] neg_hi:[0,1]")
    for k in range(4):
        a(f"v_pk_mul_f32 {vr(SM+2*k,2)}, {vr(XF+2*k,2)}, {vr(XF+2*k,2)}")
    for i in range(4, 20):
        k = i % 4
        a(f"v_pk_fma_f32 {vr(SM+2*k,2)}, {vr(XF+2*i,2)}, {vr(XF+2*i,2)}, {vr(SM+2*k,2)}")
    reduce_row(MN)
    a(f"v_mov_b32 v{MN+1}, {f2h(1e-5)}")
    a(f"v_fmac_f32 v{MN+1}, {f2h(1.0/640.0)}, v{MN}")
    a(f"v_rsq_f32 v{MN}, v{MN+1}")
    a("s_nop 0")
    a(f"v_mov_b32 v{MN+1}, v{MN}")
    for i in range(20):
        a(f"v_pk_mul_f32 {vr(XF+2*i,2)}, {vr(XF+2*i,2)}, {vr(MN,2)}")
    for i in range(20):
        a(f"v_cvt_pk_bf16_f32 v{XR+i}, v{XF+2*i}, v{XF+2*i+1}")
    if opt.lnprof: stamp(a, opt, 4)
    for i in range(5):
        a(f"ds_write_b128 v{TM+4}, {vr(XR+4*i,4)} offset:{i*256}")
    a(f"s_lshl_b32 s{sT0}, s{sWAVE}, 2")
    a(f"s_add_u32 s{sT1}, s{sT0}, {LF_BASE}")
    a(f"s_xor_b32 s{sT0}, s{sT0}, 4")
    a(f"s_add_u32 s{sT0}, s{sT0}, {LF_BASE}")
    a("s_waitcnt lgkmcnt(0)")
    lds_set(a, f"s{sT1}")
    lds_spin(a, opt, f"s{sT0}")
    if opt.lnprof: stamp(a, opt, 5)
    for i in range(5):
        a(f"ds_read_b64_tr_b16 {vr(XF+4*i,2)}, v{TM+5} offset:{i*128}")
        a(f"ds_read_b64_tr_b16 {vr(XF+4*i+2,2)}, v{TM+5} offset:{i*128+4*LN_ROW}")
    for i in range(5):
        a(f"s_waitcnt lgkmcnt({8-2*i})")
        a(f"s_add_u32 s{sT0}, s{sSTEP}, {i*4096}")
        a.vmem(f"buffer_store_dwordx4 {vr(XF+4*i,4)}, v{TM+6}, {srd(sH)}, s{sT0} offen {opt.hbits}", "h")
    stamp(a, opt, 2)
    a("s_waitcnt vmcnt(5)")
    a(f"v_readfirstlane_b32 s{sNONCE}, v{vPOLL}")
    nonce_spin(a, opt)
    a.wait_vm0()
    a(f"s_mul_i32 s{sT0}, s{sWG}, {opt.hstride}")
    a(f"s_lshl_b32 s{sT1}, s{sWAVE}, 2")
    a(f"s_add_u32 s{sT0}, s{sT0}, s{sT1}")
    flag_store(a, sT0)
    a(f"s_lshl_b32 s{sT0}, s{sWAVE}, 2")
    a(f"s_add_u32 s{sT0}, s{sT0}, {LF_BASE + 8}")
    lds_set(a, f"s{sT0}")
    stamp(a, opt, 3)
    if opt.prio: a("s_setprio 0")
    a.ln_done = True
    a("s_branch L_roles_done")

    a.label("L_loader")
    a.vm = []
    if opt.cpf:
        a(f"s_cmp_lg_u32 s{sWAVE}, {opt.cpfw}")
        a("s_cbranch_scc1 L_nocpf")
        a(f"s_lshl_b32 s{sT0}, s{sJ}, 11")
        a(f"v_lshlrev_b32 v{vX}, 4, v{vLANE}")
        a(f"v_add_u32 v{vX}, s{sT0}, v{vX}")
        for h in range(2):
            if h: a(f"v_add_u32 v{vX}, 1024, v{vX}")
            a(f"v_cmp_gt_u32 vcc, L_codeend-{KN}-20, v{vX}")
            a(f"s_and_saveexec_b64 s[{sP}:{sP+1}], vcc")
            a(f"s_cbranch_execz L_cpf{h}")
            a(f"global_load_dwordx4 {vr(240+4*h,4)}, v{vX}, s[94:95]")
            a.label(f"L_cpf{h}")
            a(f"s_mov_b64 exec, s[{sP}:{sP+1}]")
        a.label("L_nocpf")
    a(f"v_lshlrev_b32 v{vX}, 2, v{vLANE}")
    a(f"v_add_u32 v{vX}, {LF_BASE}, v{vX}")
    a(f"v_mov_b32 v{vX+1}, 0")
    a(f"ds_write_b32 v{vX}, v{vX+1}")
    a("s_waitcnt lgkmcnt(0)")
    if opt.prof: a(f"s_mov_b32 s{sPROF}, s{sP}")
    make_srd(a, sW1, 6, S * F * 2)
    make_srd(a, sD, 16, 256)
    a(f"s_cmp_lg_u32 s{sWG}, 0")
    a("s_cbranch_scc1 L_nononce")
    a(f"s_cmp_lg_u32 s{sWAVE}, 3")
    a("s_cbranch_scc1 L_nononce")
    a(f"s_memrealtime s[{sP}:{sP+1}]")
    a("s_waitcnt lgkmcnt(0)")
    a(f"s_or_b32 s{sT0}, s{sP}, 1")
    a(f"v_mov_b32 v{vT2}, s{sT0}")
    a(f"v_mov_b32 v{vT}, 0")
    a(f"s_mov_b64 s[{sP}:{sP+1}], exec")
    a("s_mov_b64 exec, 1")
    a(f"buffer_store_dword v{vT2}, v{vT}, {srd(sD)}, 0 offen sc1")
    a(f"s_mov_b64 exec, s[{sP}:{sP+1}]")
    a.label("L_nononce")
    a(f"s_cmp_ge_u32 s{sJ}, s{sJLIM}")
    a("s_cbranch_scc1 L_loader_idle")
    for i in range(2): w1_dma(i)
    a("s_barrier")
    tr_addr(sM0B)
    if opt.hold:
        lds_spin(a, opt, LF_BASE + 8)
        lds_spin(a, opt, LF_BASE + 12)
    w1_stream(2, opt.dp)
    a(f"s_mov_b32 s{sNONCE}, 0")
    nonce_spin(a, opt)
    a("s_branch L_w1_ready")
    a.label("L_loader_idle")
    a.vm = []
    a("s_barrier")
    if opt.pfwait:
        lds_spin(a, opt, LF_BASE + 8)
        lds_spin(a, opt, LF_BASE + 12)
    if opt.pf == 1:
        make_srd(a, sW2, 10, F * S * 2)
        a(f"s_lshl_b32 s{sT0}, s{sIDLE}, 1")
        a(f"s_add_u32 s{sT0}, s{sT0}, s{sWAVE}")
        a(f"s_sub_u32 s{sT0}, s{sT0}, 2")
        a(f"s_lshl_b32 s{sT0}, s{sT0}, 10")
        a(f"v_lshlrev_b32 v{vX}, 4, v{vLANE}")
        inc = 80 * 1024
        for k in range(87):
            o = vRING + (k % 20) * 4
            a.vmem(f"buffer_load_dwordx4 {vr(o,4)}, v{vX}, {srd(sW2)}, s{sT0} offen {opt.pfbits}", f"pf{k}")
            a(f"s_add_u32 s{sT0}, s{sT0}, {inc}")
            if k >= opt.pfdepth: a.wait_vm(f"pf{k-opt.pfdepth}")
    a(f"s_mov_b32 s{sNONCE}, 0")
    nonce_spin(a, opt)
    a("s_branch L_nogemm1")

    a.label("L_roles_done")
    a.vm = []
    a(f"s_cmp_ge_u32 s{sJ}, s{sJLIM}")
    a("s_cbranch_scc1 L_nogemm1")
    a.vm = []
    tr_addr(sM0B)
    for i in range(opt.nearly): a.vm.append(f"w1_{i}")
    a.vm.append("flag")
    w1_stream(opt.nearly, opt.dpl)

    def common_setup():
        make_srd(a, sH, 18, H_BYTES, WS_H)
        make_srd(a, sF, 18, FLAG_BYTES, WS_FLAG)
        make_srd(a, sB1, 8, F * 2)
        make_srd(a, sW2, 10, F * S * 2)
        make_srd(a, sB2, 12, S * 2)
        make_srd(a, sO, 14, S * D * 2)
        make_srd(a, sG, 18, G_BYTES, WS_G)
        a(f"v_lshrrev_b32 v{vT}, 4, v{vLANE}")
        a(f"v_lshlrev_b32 v{vT}, 3, v{vT}")
        a(f"s_and_b32 s{sT0}, s{sWAVE}, 1")
        a(f"s_lshl_b32 s{sT0}, s{sT0}, 6")
        a(f"s_lshl_b32 s{sT1}, s{sFT}, 7")
        a(f"s_add_u32 s{sT0}, s{sT0}, s{sT1}")
        a.vmem(f"buffer_load_dwordx2 {vr(vB1,2)}, v{vT}, {srd(sB1)}, s{sT0} offen", "b")
        a.vmem(f"buffer_load_dwordx2 {vr(vB1+2,2)}, v{vT}, {srd(sB1)}, s{sT0} offen offset:32", "b")
        a(f"v_and_b32 v{vT}, 15, v{vLANE}")
        a(f"v_lshlrev_b32 v{vT}, 1, v{vT}")
        a(f"s_lshl_b32 s{sT0}, s{sST}, 7")
        a(f"s_lshl_b32 s{sT1}, s{sWAVE}, 5")
        a(f"s_add_u32 s{sT0}, s{sT0}, s{sT1}")
        a.vmem(f"buffer_load_ushort v{vB2}, v{vT}, {srd(sB2)}, s{sT0} offen", "b")
        dma_addr(a, S * 2, sST)
        a(f"s_mul_i32 s{sWB}, s{sWAVE}, {448*S*2}")
        tr_addr(sM0B)
        a(f"s_sub_u32 s{sT0}, s{sUP}, s{sM0B}")
        for t in range(4):
            a(f"v_add_u32 v{vTRU+t}, s{sT0}, v{vTR+t}")
        a(f"v_lshlrev_b32 v{vL0}, 4, v{vLANE}")
        a(f"v_add_u32 v{vL1}, 65536, v{vL0}")
        a(f"v_add_u32 v{vL2}, 131072, v{vL0}")

    a.label("L_w1_ready")
    a.vm = []
    stamp(a, opt, 4)
    common_setup()
    a(f"s_mul_i32 s{sT0}, s{sDT1}, 5120")
    a(f"v_add_u32 v{vA}, s{sT0}, v{vL0}")
    a(f"v_add_u32 v{vA2}, 4096, v{vA}")
    a(f"s_lshl_b32 s{sT0}, s{sWAVE}, 6")
    a(f"v_add_u32 v{vX}, s{sT0}, v{vLANE}")
    a(f"v_mul_u32_u24 v{vX}, {opt.hstride}, v{vX}")
    poll(a, opt, vX, 2, None)
    a("s_barrier")
    stamp(a, opt, 5)

    def a_loads(srdn, step, nsteps, s_rot):
        slot = step % NS
        step_off(a, sOFF, sSTEP, s_rot, step, nsteps, 40960)
        return [f"buffer_load_dwordx4 {vr(ring(slot,t),4)}, v{vA if t < 4 else vA2}, {srd(srdn)}, s{sOFF} offen offset:{(t*1024) if t < 4 else 0} sc1" for t in range(5)]

    def main_loop(srdn, nsteps, s_rot, tagp, mfma, stamp0, tail, nuni):
        for st in range(opt.depth):
            for o, ins in enumerate(a_loads(srdn, st, nsteps, s_rot)): a.vmem(ins, f"{tagp}{st}_{o}")
        for st in range(nuni):
            nx = st + opt.depth
            nxt = a_loads(srdn, nx, nsteps, s_rot) if nx < nsteps else None
            a.wait_vm(f"{tagp}{st}_4")
            if st == 0 and stamp0 is not None: stamp(a, opt, stamp0)
            for o in range(5):
                if nxt: a.vmem(nxt[o], f"{tagp}{nx}_{o}")
                for i in range(4): mfma(st, o, i, st % NS)
                if tail: tail(st, o)

    def tile_tail(nsteps, tagp, first, last, frag_of, mfma_tile, write_tile, extra):
        ic = [0]
        done_at = {}
        queue = []
        extra = list(extra)
        def emit(fn):
            fn(); ic[0] += 1
        def filler():
            if queue and ic[0] - done_at[queue[0]] >= 9:
                t = queue.pop(0); emit(lambda: write_tile(t)); return
            if extra: emit(extra.pop(0))
        tiles = list(first) + list(last)
        for i in range(0, len(tiles), 2):
            pair = tiles[i:i + 2]
            for t in pair:
                for st in (nsteps - 2, nsteps - 1): a.wait_vm(f"{tagp}{st}_{frag_of(t)}")
            for st in (nsteps - 2, nsteps - 1):
                for t in pair:
                    emit(lambda: mfma_tile(st, t))
                    if st == nsteps - 1:
                        done_at[t] = ic[0]
                        if t in first: queue.append(t)
                    filler()
        while extra: emit(extra.pop(0))
        while queue:
            while ic[0] - done_at[queue[0]] < 9: emit(lambda: a("s_nop 0"))
            t = queue.pop(0); emit(lambda: write_tile(t))

    a(f"s_mul_i32 s{sSTEP}, s{sWAVE}, {16*40960}")
    def mfma1(st, nt, mt, slot):
        c = "0" if st == 0 else vr(acc1(mt, nt), 4)
        a(f"v_mfma_f32_16x16x32_bf16 {vr(acc1(mt,nt),4)}, {ar(wfrag(st,mt),4)}, {vr(ring(slot,nt),4)}, {c}")
    parts13 = w2_dma_parts(a, 0) if opt.t13 else []
    def tail1(st, o):
        if st == 13 and parts13:
            if o == 0: parts13[0]()
            else: parts13[o]()
    main_loop(sH, 16, sROT1, "h", mfma1, 6, tail1, 14)

    a(f"s_mov_b32 s100, {f2h(C1)}"); a(f"s_mov_b32 s101, {f2h(C1)}")
    a(f"v_mov_b32 v{vC0}, {f2h(C0)}"); a(f"v_mov_b32 v{vC0+1}, {f2h(C0)}")
    def lds_ref(addr):
        if addr < 65536: return vL0, addr
        if addr < 131072: return vL1, addr - 65536
        return vL2, addr - 131072
    def owner1(p, nt): return p + (0 if nt < 3 else 2)
    units = [(p, nt) for p in range(2) for nt in range(5)]
    def red1_addr(src, u):
        k = [x for x in units if owner1(*x) != src].index(u)
        return src * 32768 + 24576 + k * 2048 if k < 4 else 131072 + src * 8192 + (k - 4) * 2048
    saved_vm = list(a.vm)
    for w in range(4):
        if w < 3:
            a(f"s_cmp_lg_u32 s{sWAVE}, {w}")
            a(f"s_cbranch_scc1 L_ep1_{w+1}")
        a.vm = list(saved_vm)
        nis = [1 if opt.t13 else 0]
        def more(n, limit):
            for _ in range(n):
                if nis[0] < limit:
                    w2_dma(a, nis[0]); nis[0] += 1
        tl = [(2 * p + hf, nt) for nt in range(5) for p in range(2) for hf in range(2)]
        first = [t for t in tl if owner1(t[0] // 2, t[1]) != w]
        last = [t for t in tl if owner1(t[0] // 2, t[1]) == w]
        def wr1(t):
            vb, off = lds_ref(red1_addr(w, (t[0] // 2, t[1])) + (t[0] & 1) * 1024)
            a(f"ds_write_b128 v{vb}, {vr(acc1(*t),4)} offset:{off}")
        extra = []
        for _ in range(opt.tt):
            extra += w2_dma_parts(a, nis[0]); nis[0] += 1
        tile_tail(16, "h", first, last, lambda t: t[1], lambda st, t: mfma1(st, t[1], t[0], st % NS), wr1, extra)
        stamp(a, opt, 7)
        more(opt.e1, 6)
        a("s_waitcnt lgkmcnt(0)")
        a("s_barrier")
        own_u = [u for u in units if owner1(*u) == w]
        RT = vRING
        n = 0
        for u in own_u:
            for src in range(4):
                if src == w: continue
                for hf in range(2):
                    vb, off = lds_ref(red1_addr(src, u) + hf * 1024)
                    a(f"ds_read_b128 {vr(RT + n*4, 4)}, v{vb} offset:{off}")
                    n += 1
        a.wait_vm("b")
        for i in range(4):
            a(f"v_lshlrev_b32 v{BI+2*i}, 16, v{vB1+i}")
            a(f"v_and_b32 v{BI+2*i+1}, 0xffff0000, v{vB1+i}")
        for u in own_u:
            p, nt = u
            for hf in range(2):
                r = acc1(2*p+hf, nt)
                a(f"v_pk_add_f32 {vr(r,2)}, {vr(r,2)}, {vr(BI+4*hf,2)}")
                a(f"v_pk_add_f32 {vr(r+2,2)}, {vr(r+2,2)}, {vr(BI+4*hf+2,2)}")
        n = 0
        tot = len(own_u) * 6
        for u in own_u:
            p, nt = u
            for si in range(3):
                for hf in range(2):
                    a(f"s_waitcnt lgkmcnt({min(15, tot - n - 1)})")
                    r = acc1(2*p+hf, nt)
                    a(f"v_pk_add_f32 {vr(r,2)}, {vr(r,2)}, {vr(RT+n*4,2)}")
                    a(f"v_pk_add_f32 {vr(r+2,2)}, {vr(r+2,2)}, {vr(RT+n*4+2,2)}")
                    n += 1
        a("s_barrier")
        regs = []
        for u in own_u:
            p, nt = u
            for hf in range(2):
                r = acc1(2*p+hf, nt)
                regs += [r, r + 2]
        more(opt.e2, 10)
        gelu_pairs(a, regs, RT, fill=lambda: more(opt.e3, 10))
        a(f"s_lshl_b32 s{sT0}, s{sFT}, 1")
        a(f"s_add_u32 s{sT0}, s{sT0}, {w & 1}")
        a(f"s_mul_i32 s{sT0}, s{sT0}, 40960")
        a(f"s_mul_i32 s{sT1}, s{sDT1}, 5120")
        a(f"s_add_u32 s{sT0}, s{sT0}, s{sT1}")
        for i, u in enumerate(own_u):
            p, nt = u
            o = RT + 64 + 4 * i
            r0, r1 = acc1(2*p, nt), acc1(2*p+1, nt)
            a(f"v_cvt_pk_bf16_f32 v{o}, v{r0}, v{r0+1}")
            a(f"v_cvt_pk_bf16_f32 v{o+1}, v{r0+2}, v{r0+3}")
            a(f"v_cvt_pk_bf16_f32 v{o+2}, v{r1}, v{r1+1}")
            a(f"v_cvt_pk_bf16_f32 v{o+3}, v{r1+2}, v{r1+3}")
            a(f"s_add_u32 s{sT1}, s{sT0}, {nt*1024}")
            a.vmem(f"buffer_store_dwordx4 {vr(o,4)}, v{vL0}, {srd(sG)}, s{sT1} offen sc1", "g")
        stamp(a, opt, 8)
        more(opt.nb, 10)
        a.wait_vm("w2_3")
        if nis[0] >= 4:
            for st in range(4):
                w2_tr(a, st)
                if st % 2 == 1: a("s_waitcnt lgkmcnt(0)")
        if nis[0] == 10 and opt.nb2:
            for st in range(10, 10 + opt.nb2): w2_dma(a, st)
            nis[0] += opt.nb2
        a.wait_vm("g")
        a(f"s_lshl_b32 s{sT0}, s{sDT1}, 5")
        a(f"s_add_u32 s{sT0}, s{sT0}, s{sFT}")
        a(f"s_mul_i32 s{sT0}, s{sT0}, {opt.gstride}")
        a(f"s_add_u32 s{sT0}, s{sT0}, {FLAG_G + 4*w}")
        flag_store(a, sT0)
        stamp(a, opt, 9)
        assert nis[0] >= 4
        more(10, 10)
        more(4, 14)
        for st in range(4, 10):
            a.wait_vm(f"w2_{st}")
            w2_tr(a, st)
            if st % 2 == 1: a("s_waitcnt lgkmcnt(0)")
        a("s_branch L_pre2")
        if w < 3: a.label(f"L_ep1_{w+1}")

    a.label("L_nogemm1")
    a.vm = []
    common_setup()
    if opt.idlewait:
        a(f"s_lshl_b32 s{sT0}, s{sWAVE}, 6")
        a(f"v_add_u32 v{vX}, s{sT0}, v{vLANE}")
        a(f"v_mul_u32_u24 v{vX}, {opt.hstride}, v{vX}")
        poll(a, opt, vX, 2, None)
        if opt.idlewait > 1:
            a(f"s_sleep {opt.idlewait}")
    if opt.pf == 3:
        a(f"s_lshl_b32 s{sT0}, s{sIDLE}, 2")
        a(f"s_add_u32 s{sT0}, s{sT0}, s{sWAVE}")
        a(f"s_lshl_b32 s{sT0}, s{sT0}, 10")
        for k in range(44):
            o = vRING + (k % 16) * 4
            a.vmem(f"buffer_load_dwordx4 {vr(o,4)}, v{vL0}, {srd(sW2)}, s{sT0} offen {opt.pfbits}", f"pf{k}")
            a(f"s_add_u32 s{sT0}, s{sT0}, {160*1024}")
            if k >= opt.pfdepth: a.wait_vm(f"pf{k-opt.pfdepth}")
        a.wait_vm0()
    if opt.pf == 2:
        assert opt.p1 == 2 and opt.p2 == 1
        a(f"s_cmp_lt_u32 s{sJ}, 28")
        a("s_cbranch_scc1 L_nopf")
        a(f"s_sub_u32 s{sT0}, s{sJ}, 28")
        a(f"s_lshl_b32 s{sT0}, s{sT0}, 2")
        a(f"s_add_u32 s{sT0}, s{sT0}, s{sWAVE}")
        a(f"s_lshl_b32 s{sT0}, s{sT0}, 13")
        a(f"s_lshl_b32 s{sT1}, s{sXCD}, 9")
        a(f"s_add_u32 s{sT0}, s{sT0}, s{sT1}")
        a(f"v_lshrrev_b32 v{vX}, 5, v{vLANE}")
        a(f"v_lshlrev_b32 v{vX}, 12, v{vX}")
        a(f"v_and_b32 v{vX+1}, 31, v{vLANE}")
        a(f"v_lshlrev_b32 v{vX+1}, 4, v{vX+1}")
        a(f"v_add_u32 v{vX}, v{vX}, v{vX+1}")
        keep = list(a.vm)
        for k in range(54):
            o = vRING + (k % 16) * 4
            a.vmem(f"buffer_load_dwordx4 {vr(o,4)}, v{vX}, {srd(sW2)}, s{sT0} offen", f"pf{k}")
            a(f"s_add_u32 s{sT0}, s{sT0}, {16*8192}")
            if k >= opt.pfdepth: a.wait_vm(f"pf{k-opt.pfdepth}")
        a.wait_vm0()
        a.label("L_nopf")
        a.vm = keep
    for st in range(10): w2_dma(a, st)
    for st in range(4):
        a.wait_vm(f"w2_{st}")
        w2_tr(a, st)
        if st % 2 == 1: a("s_waitcnt lgkmcnt(0)")
    for st in range(10, 14): w2_dma(a, st)
    for st in range(4, 10):
        a.wait_vm(f"w2_{st}")
        w2_tr(a, st)
        if st % 2 == 1: a("s_waitcnt lgkmcnt(0)")

    a.label("L_pre2")
    a.wait_vm0()
    a("s_waitcnt lgkmcnt(0)")
    for st in range(10, 14):
        w2_tr(a, st)
        if st % 2 == 1: a("s_waitcnt lgkmcnt(0)")
    stamp(a, opt, 10)
    a(f"s_mul_i32 s{sT0}, s{sDT2}, 5120")
    a(f"v_add_u32 v{vA}, s{sT0}, v{vL0}")
    a(f"v_add_u32 v{vA2}, 4096, v{vA}")
    a(f"s_lshl_b32 s{sT0}, s{sDT2}, 5")
    a(f"s_mul_i32 s{sT1}, s{sWAVE}, 7")
    a(f"s_add_u32 s{sT0}, s{sT0}, s{sT1}")
    a(f"s_mul_i32 s{sT0}, s{sT0}, {opt.gstride}")
    a(f"s_add_u32 s{sT0}, s{sT0}, {FLAG_G}")
    a(f"v_lshrrev_b32 v{vX}, 2, v{vLANE}")
    a(f"v_mul_u32_u24 v{vX}, {opt.gstride}, v{vX}")
    a(f"v_and_b32 v{vT}, 3, v{vLANE}")
    a(f"v_lshlrev_b32 v{vT}, 2, v{vT}")
    a(f"v_add_u32 v{vX}, v{vX}, v{vT}")
    a(f"v_add_u32 v{vX}, s{sT0}, v{vX}")
    a(f"s_cmp_eq_u32 s{sWAVE}, 3")
    a(f"s_mov_b32 s{sP+3}, 0xffffff")
    a(f"s_cselect_b32 s{sP+2}, s{sP+3}, 0xfffffff")
    a(f"s_mov_b32 s{sP+3}, 0")
    poll(a, opt, vX, 1, sP + 2)
    stamp(a, opt, 11)
    a(f"s_mul_i32 s{sSTEP}, s{sWAVE}, {14*40960}")
    def mfma2(st, mt, nt, slot):
        c = "0" if st == 0 else vr(acc2(mt, nt), 4)
        a(f"v_mfma_f32_16x16x32_bf16 {vr(acc2(mt,nt),4)}, {vr(ring(slot,mt),4)}, {ar(wfrag(st,nt),4)}, {c}")
    main_loop(sG, 14, sROT2, "g", mfma2, 12, None, 12)
    saved_vm2 = list(a.vm)
    a(f"v_and_b32 v{vT}, 15, v{vLANE}")
    a(f"s_lshl_b32 s{sT0}, s{sWAVE}, 4")
    a(f"v_add_u32 v{vT}, s{sT0}, v{vT}")
    a(f"v_mul_u32_u24 v{vA}, 1280, v{vT}")
    a(f"v_lshrrev_b32 v{vT}, 4, v{vLANE}")
    a(f"v_lshlrev_b32 v{vT}, 3, v{vT}")
    a(f"v_add_u32 v{vA}, v{vA}, v{vT}")
    a(f"s_mul_i32 s{sT0}, s{sST}, {64*1280}")
    a(f"s_mul_i32 s{sT1}, s{sDT2}, 160")
    a(f"s_add_u32 s{sOFF}, s{sT0}, s{sT1}")
    a(f"v_lshlrev_b32 v{vC0}, 16, v{vB2}")
    a(f"v_lshlrev_b32 v{vC0+1}, 16, v{vB2}")
    a(f"v_sub_u32 v{vA2}, v{vA}, v{vT}")
    a(f"v_bfe_u32 v{vT}, v{vLANE}, 4, 1")
    a(f"v_lshlrev_b32 v{vT}, 5, v{vT}")
    a(f"v_add_u32 v{vA2}, v{vA2}, v{vT}")
    a(f"v_bfe_u32 v{vT}, v{vLANE}, 5, 1")
    a(f"v_lshlrev_b32 v{vT}, 4, v{vT}")
    a(f"v_add_u32 v{vA2}, v{vA2}, v{vT}")
    def red2_addr(src, nt, mt):
        k = [x for x in range(4) if x != src].index(nt)
        return src * 32768 + (k * 5 + mt) * 1024
    for w in range(4):
        if w < 3:
            a(f"s_cmp_lg_u32 s{sWAVE}, {w}")
            a(f"s_cbranch_scc1 L_ep2_{w+1}")
        a.vm = list(saved_vm2)
        tl = [(mt, nt) for mt in range(5) for nt in range(4)]
        def wr2(t):
            vb, off = lds_ref(red2_addr(w, t[1], t[0]))
            a(f"ds_write_b128 v{vb}, {vr(acc2(*t),4)} offset:{off}")
        tile_tail(14, "g", [t for t in tl if t[1] != w], [t for t in tl if t[1] == w], lambda t: t[0],
                  lambda st, t: mfma2(st, t[0], t[1], st % NS), wr2, [])
        stamp(a, opt, 13)
        a("s_waitcnt lgkmcnt(0)")
        a("s_barrier")
        RT = vRING
        n = 0
        for mt in range(5):
            for src in range(4):
                if src == w: continue
                vb, off = lds_ref(red2_addr(src, w, mt))
                a(f"ds_read_b128 {vr(RT+n*4,4)}, v{vb} offset:{off}")
                n += 1
        n = 0
        for mt in range(5):
            r = acc2(mt, w)
            for si in range(3):
                a(f"s_waitcnt lgkmcnt({14 - n})")
                a(f"v_pk_add_f32 {vr(r,2)}, {vr(r,2)}, {vr(RT+n*4,2)}")
                a(f"v_pk_add_f32 {vr(r+2,2)}, {vr(r+2,2)}, {vr(RT+n*4+2,2)}")
                n += 1
            a(f"v_pk_add_f32 {vr(r,2)}, {vr(r,2)}, {vr(vC0,2)}")
            a(f"v_pk_add_f32 {vr(r+2,2)}, {vr(r+2,2)}, {vr(vC0,2)}")
            o = RT + 64 + 2 * mt
            a(f"v_cvt_pk_bf16_f32 v{o}, v{r}, v{r+1}")
            a(f"v_cvt_pk_bf16_f32 v{o+1}, v{r+2}, v{r+3}")
            if not opt.wide or mt == 4:
                a(f"buffer_store_dwordx2 {vr(o,2)}, v{vA}, {srd(sO)}, s{sOFF} offen offset:{mt*32} {opt.obits}")
            elif mt % 2 == 1:
                a("s_nop 1")
                a(f"v_permlane16_swap_b32 v{o-2}, v{o}")
                a(f"v_permlane16_swap_b32 v{o-1}, v{o+1}")
                a(f"buffer_store_dwordx4 {vr(o-2,4)}, v{vA2}, {srd(sO)}, s{sOFF} offen offset:{(mt-1)*32} {opt.obits}")
        a("s_branch L_fin")
        if w < 3: a.label(f"L_ep2_{w+1}")
    a.label("L_fin")
    if opt.probe >= 0:
        if opt.probe == 14:
            a("s_waitcnt vmcnt(0)")
            stamp(a, opt, 14)
        a(f"s_cmp_lg_u32 s{sWG}, {opt.probewg}")
        a("s_cbranch_scc1 L_done")
        a(f"s_cmp_lg_u32 s{sWAVE}, {opt.probew}")
        a("s_cbranch_scc1 L_done")
        a(f"s_sub_u32 s{sT1}, s{sPROF+1}, s{sPROF+2 if opt.probe0 >= 0 else 96}")
        if opt.probecyc: a(f"s_lshr_b32 s{sT1}, s{sT1}, 2")
        else: a(f"s_lshl_b32 s{sT1}, s{sT1}, 2")
        a(f"s_add_u32 s{sT1}, s{sT1}, 4000")
        a.label("L_probe")
        a(f"s_memrealtime s[{sP}:{sP+1}]")
        a("s_waitcnt lgkmcnt(0)")
        a(f"s_sub_u32 s{sT0}, s{sP}, s96")
        a(f"s_cmp_lt_u32 s{sT0}, s{sT1}")
        a("s_cbranch_scc1 L_probe")
    if opt.pad:
        a.label("L_pad")
        a(f"s_memrealtime s[{sP}:{sP+1}]")
        a("s_waitcnt lgkmcnt(0)")
        a(f"s_sub_u32 s{sT0}, s{sP}, s96")
        a(f"s_cmp_lt_u32 s{sT0}, {opt.pad}")
        a("s_cbranch_scc1 L_pad")
    if opt.prof:
        a("s_waitcnt vmcnt(0)")
        stamp(a, opt, 14)
        make_srd(a, sX, 18, 65536, WS_PROF)
        a(f"s_lshl_b32 s{sT0}, s{sWG}, 2")
        a(f"s_add_u32 s{sT0}, s{sT0}, s{sWAVE}")
        a(f"s_lshl_b32 s{sT0}, s{sT0}, 6")
        a(f"v_mov_b32 v{vT}, s{sT0}")
        a("s_mov_b64 exec, 1")
        for i in range(15):
            a(f"v_mov_b32 v100, s{sPROF+i}")
            a(f"buffer_store_dword v100, v{vT}, {srd(sX)}, 0 offen offset:{4*i}")
            a("s_nop 1")
        a("s_waitcnt vmcnt(0)")
    a.label("L_done")
    a("s_endpgm")
    a.label("L_codeend")
    a.raw('.section .rodata,"a"')
    a.raw(".p2align 6")
    a.raw(f".amdhsa_kernel {KN}")
    for l in ["next_free_vgpr 512", "next_free_sgpr 102", "accum_offset 256", "group_segment_fixed_size 0",
              "kernarg_size 64", "user_sgpr_count 2", "user_sgpr_kernarg_segment_ptr 1",
              "system_sgpr_workgroup_id_x 1", "float_denorm_mode_32 3"]:
        a.raw(f"  .amdhsa_{l}")
    a.raw(".end_amdhsa_kernel")
    return "\n".join(a.L) + "\n"

def parse(argv=None):
    ap = argparse.ArgumentParser()
    ap.add_argument("-o", default="standalone__mixer_token_mlp__prompt.s")
    ap.add_argument("--prof", type=int, default=0)
    ap.add_argument("--rot", type=int, default=3)
    ap.add_argument("--spin", type=int, default=20000)
    ap.add_argument("--sleep", type=int, default=8)
    ap.add_argument("--depth", type=int, default=3)
    ap.add_argument("--lnprof", type=int, default=0)
    ap.add_argument("--hbits", default="sc1")
    ap.add_argument("--pfwait", type=int, default=1)
    ap.add_argument("--hold", type=int, default=0)
    ap.add_argument("--probe", type=int, default=-1)
    ap.add_argument("--probe0", type=int, default=-1)
    ap.add_argument("--probecyc", type=int, default=0)
    ap.add_argument("--probewg", type=int, default=100)
    ap.add_argument("--probew", type=int, default=2)
    ap.add_argument("--rot8", type=int, default=1)
    ap.add_argument("--cpf", type=int, default=1)
    ap.add_argument("--cpfw", type=int, default=3)
    ap.add_argument("--wide", type=int, default=1)
    ap.add_argument("--idlewait", type=int, default=0)
    ap.add_argument("--t13", type=int, default=1)
    ap.add_argument("--tt", type=int, default=2)
    ap.add_argument("--e2", type=int, default=0)
    ap.add_argument("--e3", type=int, default=0)
    ap.add_argument("--nb2", type=int, default=0)
    ap.add_argument("--e1", type=int, default=1)
    ap.add_argument("--nb", type=int, default=2)
    ap.add_argument("--nearly", type=int, default=3)
    ap.add_argument("--dpl", type=int, default=5)
    ap.add_argument("--dp", type=int, default=4)
    ap.add_argument("--p1", type=int, default=2)
    ap.add_argument("--p2", type=int, default=1)
    ap.add_argument("--rota1", type=int, default=0)
    ap.add_argument("--rota2", type=int, default=0)
    ap.add_argument("--xbits", default="nt")
    ap.add_argument("--w1bits", default="")
    ap.add_argument("--w2bits", default="")
    ap.add_argument("--pfbits", default="")
    ap.add_argument("--pfdepth", type=int, default=8)
    ap.add_argument("--prio", type=int, default=3)
    ap.add_argument("--delay", type=int, default=0)
    ap.add_argument("--hstride", type=int, default=8)
    ap.add_argument("--gstride", type=int, default=256)
    ap.add_argument("--pf", type=int, default=1)
    ap.add_argument("--pad", type=int, default=0)
    ap.add_argument("--obits", default="sc1")
    return ap.parse_args(argv)

if __name__ == "__main__":
    opt = parse()
    open(opt.o, "w").write(gen(opt))
```

```python
import argparse, struct

S, D, F = 2048, 640, 1728
KN = "standalone__mixer_token_mlp__prompt_kernel"

WS_H = 0
H_BYTES = 64 * 40 * 1024
WS_G = 0x300000
G_BYTES = 54 * 40 * 1024
WS_FLAG = 0x600000
FLAG_H = 0
FLAG_G = 0x10000
FLAG_BYTES = 0x40000
WS_PROF = 0x700000

LDS_BYTES = 163840
LN_BASE = 131072
LN_ROW = 1344
LF_BASE = 141824
P0_BASE = [0, 49152, 98304, 122880]

sWG = 2
sX, sW1, sW2, sH, sG, sO, sF, sB1, sB2, sD = 20, 24, 28, 32, 36, 40, 44, 48, 52, 56
sWAVE, sXCD, sJ, sFT, sDT1, sST, sDT2, sNONCE = 60, 61, 62, 63, 64, 65, 66, 67
sT0, sT1, sT2, sT3, sT4, sT5 = 68, 69, 70, 71, 72, 73
sROT1, sROT2, sSTEP, sOFF = 74, 75, 76, 77
sM0B, sSPIN = 78, 79
sP = 80
sPROF = 84
sUP = 99
sJLIM, sIDLE = 100, 101
sWB = 3

vTID, vLANE = 0, 1
vTR = 2
vA, vA2, vDMA, vT2 = 6, 7, 8, 9
vB1 = 10
vB2, vT = 14, 15
vACC = 16
vRING = 96
vTRU = 176
vL0, vL1, vL2 = 180, 181, 182
vC0 = 184
BI = 186
vPOLL = 194
vX = 196
vDM = 200

def srd(n): return f"s[{n}:{n+3}]"
def vr(n, c=1): return f"v{n}" if c == 1 else f"v[{n}:{n+c-1}]"
def ar(n, c=1): return f"a{n}" if c == 1 else f"a[{n}:{n+c-1}]"
def f2h(x): return "0x%08x" % struct.unpack("<I", struct.pack("<f", x))[0]
C0 = -2.0 * 0.7978845608028654 * 1.4426950408889634
C1 = C0 * 0.044715

class Asm:
    def __init__(self):
        self.L = []; self.vm = []; self.uid = 0
    def __call__(self, s): self.L.append("    " + s)
    def label(self, s): self.L.append(s + ":")
    def raw(self, s): self.L.append(s)
    def c(self, s): self.L.append("    ; " + s)
    def vmem(self, s, tag):
        self(s); self.vm.append(tag)
    def wait_vm(self, tag):
        hits = [i for i, t in enumerate(self.vm) if t == tag]
        if not hits: return
        n = len(self.vm) - 1 - hits[-1]
        self(f"s_waitcnt vmcnt({min(n, 63)})")
        self.vm = self.vm[hits[-1] + 1:]
    def wait_vm0(self):
        self("s_waitcnt vmcnt(0)"); self.vm = []
    def newlabel(self, p):
        self.uid += 1
        return f"L_{p}_{self.uid}"

def acc1(mt, nt): return vACC + (mt * 5 + nt) * 4
def acc2(mt, nt): return vACC + (mt * 4 + nt) * 4
def wfrag(step, t): return step * 16 + t * 4

def stamp(a, opt, idx, force=False):
    if opt.probe >= 0:
        ins = "s_memtime" if opt.probecyc else "s_memrealtime"
        if idx == opt.probe:
            a(f"{ins} s[{sP}:{sP+1}]")
            a("s_waitcnt lgkmcnt(0)")
            a(f"s_mov_b32 s{sPROF+1}, s{sP}")
        if idx == opt.probe0:
            a(f"{ins} s[{sP}:{sP+1}]")
            a("s_waitcnt lgkmcnt(0)")
            a(f"s_mov_b32 s{sPROF+2}, s{sP}")
        return
    if opt.lnprof and idx in (4, 5) and getattr(a, "ln_done", False): return
    if opt.prof:
        a(f"s_mem{'time' if opt.prof == 2 else 'realtime'} s[{sP}:{sP+1}]")
        a("s_waitcnt lgkmcnt(0)")
        a(f"s_mov_b32 s{sPROF+idx}, s{sP}")

def make_srd(a, n, lo, size, add=0):
    if add:
        a(f"s_add_u32 s{n}, s{lo}, {add}")
        a(f"s_addc_u32 s{n+1}, s{lo+1}, 0")
        a(f"s_and_b32 s{n+1}, s{n+1}, 0xffff")
    else:
        a(f"s_mov_b32 s{n}, s{lo}")
        a(f"s_and_b32 s{n+1}, s{lo+1}, 0xffff")
    a(f"s_mov_b32 s{n+2}, {size}")
    a(f"s_mov_b32 s{n+3}, 0x20000")

def nonce_spin(a, opt):
    lp = a.newlabel("nonce"); dn = a.newlabel("nonced")
    a(f"s_cmp_lg_u32 s{sNONCE}, 0")
    a(f"s_cbranch_scc1 {dn}")
    a(f"s_mov_b32 s{sSPIN}, 0")
    a(f"v_mov_b32 v{vT}, 0")
    a.label(lp)
    a(f"buffer_load_dword v{vT2}, v{vT}, {srd(sD)}, 0 offen sc1")
    a("s_waitcnt vmcnt(0)")
    a(f"v_readfirstlane_b32 s{sNONCE}, v{vT2}")
    a(f"s_add_u32 s{sSPIN}, s{sSPIN}, 1")
    a(f"s_cmp_lg_u32 s{sNONCE}, 0")
    a(f"s_cbranch_scc1 {dn}")
    a(f"s_cmp_lt_u32 s{sSPIN}, {opt.spin}")
    a(f"s_cbranch_scc1 {lp}")
    a.label(dn)

def lds_set(a, addr_sgpr_or_imm):
    a(f"v_mov_b32 v{vT}, {addr_sgpr_or_imm}")
    a(f"v_mov_b32 v{vT2}, 1")
    a(f"s_mov_b64 s[{sP}:{sP+1}], exec")
    a("s_mov_b64 exec, 1")
    a(f"ds_write_b32 v{vT}, v{vT2}")
    a(f"s_mov_b64 exec, s[{sP}:{sP+1}]")

def lds_spin(a, opt, addr):
    lp = a.newlabel("lspin"); dn = a.newlabel("lspun")
    a(f"v_mov_b32 v{vT}, {addr}")
    a(f"s_mov_b32 s{sSPIN}, 0")
    a.label(lp)
    a(f"ds_read_b32 v{vT2}, v{vT}")
    a("s_waitcnt lgkmcnt(0)")
    a(f"v_readfirstlane_b32 s{sP}, v{vT2}")
    a(f"s_add_u32 s{sSPIN}, s{sSPIN}, 1")
    a(f"s_cmp_lg_u32 s{sP}, 0")
    a(f"s_cbranch_scc1 {dn}")
    a(f"s_cmp_lt_u32 s{sSPIN}, {opt.spin * 8}")
    a(f"s_cbranch_scc1 {lp}")
    a.label(dn)

def dma_addr(a, stride, s_tile):
    a(f"v_lshrrev_b32 v{vT}, 3, v{vLANE}")
    a(f"v_lshrrev_b32 v{vT2}, 1, v{vT}")
    a(f"v_lshlrev_b32 v{vT2}, 1, v{vT2}")
    a(f"v_and_b32 v{vDM}, 7, v{vLANE}")
    a(f"v_xor_b32 v{vDM}, v{vDM}, v{vT2}")
    a(f"v_lshlrev_b32 v{vDM}, 4, v{vDM}")
    a(f"v_mul_u32_u24 v{vT}, {stride}, v{vT}")
    a(f"v_add_u32 v{vDM}, v{vDM}, v{vT}")
    a(f"s_lshl_b32 s{sT0}, s{s_tile}, 7")
    a(f"v_add_u32 v{vDM}, s{sT0}, v{vDM}")
    for b in range(1, 4):
        a(f"v_add_u32 v{vDM+b}, {b*(8*stride-1024)}, v{vDM}")

def step_off(a, dst, s_base, s_rot, i, nsteps, bytes_per_step):
    a(f"s_add_u32 s{sT4}, s{s_rot}, {i}")
    a(f"s_cmp_ge_u32 s{sT4}, {nsteps}")
    a(f"s_cselect_b32 s{dst}, {nsteps}, 0")
    a(f"s_sub_u32 s{sT4}, s{sT4}, s{dst}")
    a(f"s_mul_i32 s{sT4}, s{sT4}, {bytes_per_step}")
    a(f"s_add_u32 s{dst}, s{sT4}, s{s_base}")

def dma_step(a, srdn, stride, s_rowbase, s_rot, step, nsteps, s_lds, lds_off, tag, bits=""):
    a(f"s_add_u32 m0, s{s_lds}, {lds_off}")
    step_off(a, sOFF, s_rowbase, s_rot, step, nsteps, 32 * stride)
    for blk in range(4):
        a.vmem(f"buffer_load_dwordx4 v{vDM+blk}, {srd(srdn)}, s{sOFF} offen offset:{blk*1024} {bits} lds", tag)

def tr_step(a, vbase, off, step):
    for t in range(4):
        w = wfrag(step, t)
        a(f"ds_read_b64_tr_b16 {ar(w,2)}, v{vbase+t} offset:{off}")
        a(f"ds_read_b64_tr_b16 {ar(w+2,2)}, v{vbase+t} offset:{off+2048}")

def poll(a, opt, vaddr, nd, lanes, sleep=None, pre=0):
    if sleep is None: sleep = opt.sleep
    if pre: a(f"s_sleep {pre}")
    lp = a.newlabel("poll"); dn = a.newlabel("polled")
    a(f"s_mov_b32 s{sSPIN}, 0")
    a.label(lp)
    ld = {1: "dword", 2: "dwordx2"}[nd]
    a(f"buffer_load_{ld} {vr(vPOLL, nd)}, v{vaddr}, {srd(sF)}, 0 offen sc1")
    a("s_waitcnt vmcnt(0)")
    a(f"v_cmp_ne_u32 vcc, s{sNONCE}, v{vPOLL}")
    if nd == 2:
        a(f"v_cmp_ne_u32 s[{sP}:{sP+1}], s{sNONCE}, v{vPOLL+1}")
        a(f"s_or_b64 vcc, vcc, s[{sP}:{sP+1}]")
    if lanes is not None:
        a(f"s_and_b64 vcc, vcc, s[{lanes}:{lanes+1}]")
    a(f"s_add_u32 s{sSPIN}, s{sSPIN}, 1")
    a("s_cmp_eq_u64 vcc, 0")
    a(f"s_cbranch_scc1 {dn}")
    if sleep: a(f"s_sleep {sleep}")
    a(f"s_cmp_lt_u32 s{sSPIN}, {opt.spin}")
    a(f"s_cbranch_scc1 {lp}")
    a.label(dn)
    a.vm = []

def flag_store(a, s_index_bytes):
    a(f"v_mov_b32 v{vT}, s{s_index_bytes}")
    a(f"v_mov_b32 v{vT2}, s{sNONCE}")
    a(f"s_mov_b64 s[{sP}:{sP+1}], exec")
    a("s_mov_b64 exec, 1")
    a.vmem(f"buffer_store_dword v{vT2}, v{vT}, {srd(sF)}, 0 offen sc1", "flag")
    a(f"s_mov_b64 exec, s[{sP}:{sP+1}]")

def gelu_pairs(a, regs, tmp, fill=None):
    def each(fn):
        for i, r in enumerate(regs): fn(r, tmp + 2 * i)
    each(lambda r, t: a(f"v_pk_mul_f32 {vr(t,2)}, {vr(r,2)}, {vr(r,2)}"))
    each(lambda r, t: a(f"v_pk_fma_f32 {vr(t,2)}, {vr(t,2)}, s[100:101], {vr(vC0,2)}"))
    each(lambda r, t: a(f"v_pk_mul_f32 {vr(t,2)}, {vr(t,2)}, {vr(r,2)}"))
    if fill: fill()
    each(lambda r, t: (a(f"v_exp_f32 v{t}, v{t}"), a(f"v_exp_f32 v{t+1}, v{t+1}")))
    each(lambda r, t: a(f"v_pk_add_f32 {vr(t,2)}, {vr(t,2)}, 1.0 op_sel_hi:[1,0]"))
    each(lambda r, t: (a(f"v_rcp_f32 v{t}, v{t}"), a(f"v_rcp_f32 v{t+1}, v{t+1}")))
    a("s_nop 0")
    each(lambda r, t: a(f"v_pk_mul_f32 {vr(r,2)}, {vr(r,2)}, {vr(t,2)}"))

def w2_slot(step):
    if step < 8: return sM0B, step * 4096, vTR, step * 4096
    if step < 10: return sUP, (step - 8) * 4096, vTRU, (step - 8) * 4096
    return sM0B, (step - 10) * 4096, vTR, (step - 10) * 4096

def w2_dma(a, step):
    sb, off, _, _ = w2_slot(step)
    dma_step(a, sW2, S * 2, sWB, sROT2, step, 14, sb, off, f"w2_{step}", OPT.w2bits)

def w2_dma_parts(a, step):
    sb, off, _, _ = w2_slot(step)
    def setup():
        a(f"s_add_u32 m0, s{sb}, {off}")
        step_off(a, sOFF, sWB, sROT2, step, 14, 32 * S * 2)
    def one(blk):
        return lambda: a.vmem(f"buffer_load_dwordx4 v{vDM+blk}, {srd(sW2)}, s{sOFF} offen offset:{blk*1024} {OPT.w2bits} lds", f"w2_{step}")
    return [setup] + [one(b) for b in range(4)]

def w2_tr(a, step):
    _, _, vb, off = w2_slot(step)
    tr_step(a, vb, off, step)

def gen(opt):
    global OPT
    OPT = opt
    a = Asm()
    NS = opt.depth + 1
    def ring(slot, t): return vRING + slot * 20 + t * 4
    a.raw(f"; @launch grid=(256,1,1) block=(256,1,1) lds={LDS_BYTES}")
    a.raw('.amdgcn_target "amdgcn-amd-amdhsa--gfx950"')
    a.raw(".text")
    a.raw(f".globl {KN}")
    a.raw(".p2align 8")
    a.raw(f".type {KN},@function")
    a.label(KN)
    if opt.cpf: a("s_getpc_b64 s[94:95]")
    a(f"s_cmp_ge_u32 s{sWG}, 256")
    a("s_cbranch_scc1 L_done")
    a("s_load_dwordx16 s[4:19], s[0:1], 0")
    if opt.prof:
        a(f"s_mem{'time' if opt.prof == 2 else 'realtime'} s[{sP}:{sP+1}]")
    if opt.prof:
        for i in range(1, 15): a(f"s_mov_b32 s{sPROF+i}, 0")
    if opt.pad or opt.probe >= 0:
        a("s_memrealtime s[96:97]")
    a(f"v_lshrrev_b32 v{vT}, 6, v{vTID}")
    a(f"v_and_b32 v{vLANE}, 63, v{vTID}")
    a(f"v_readfirstlane_b32 s{sWAVE}, v{vT}")
    a(f"s_and_b32 s{sXCD}, s{sWG}, 7")
    a(f"s_lshr_b32 s{sJ}, s{sWG}, 3")
    if opt.p1 == 2:
        a(f"s_lshr_b32 s{sT1}, s{sXCD}, 1")
        a(f"s_and_b32 s{sT2}, s{sXCD}, 1")
        a(f"s_lshl_b32 s{sT2}, s{sT2}, 2")
        a(f"s_mul_i32 s{sT0}, s{sT1}, 7")
        a(f"s_lshr_b32 s{sFT}, s{sJ}, 2")
        a(f"s_add_u32 s{sFT}, s{sFT}, s{sT0}")
        a(f"s_and_b32 s{sT3}, s{sJ}, 3")
        a(f"s_add_u32 s{sDT1}, s{sT2}, s{sT3}")
        if opt.rot8: a(f"s_lshl_b32 s{sROT1}, s{sDT1}, 1")
        else: a(f"s_lshl_b32 s{sROT1}, s{sT3}, 2")
        a(f"s_cmp_eq_u32 s{sT1}, 3")
        a(f"s_cselect_b32 s{sJLIM}, 24, 28")
        a(f"s_lshl_b32 s{sT0}, s{sXCD}, 2")
        a(f"s_sub_u32 s{sT0}, s{sT0}, 28")
        a(f"s_lshl_b32 s{sT3}, s{sXCD}, 3")
        a(f"s_sub_u32 s{sT3}, s{sT3}, 48")
        a(f"s_cselect_b32 s{sIDLE}, s{sT0}, s{sT0}")
        a(f"s_cmp_ge_u32 s{sXCD}, 6")
        a(f"s_cselect_b32 s{sIDLE}, s{sT3}, s{sT0}")
        a(f"s_add_u32 s{sIDLE}, s{sIDLE}, s{sJ}")
    else:
        a(f"s_lshl_b32 s{sT0}, s{sXCD}, 2")
        a(f"s_mul_i32 s{sT1}, s{sXCD}, 3")
        a(f"s_add_u32 s{sT1}, s{sT1}, 3")
        a(f"s_cmp_lt_u32 s{sXCD}, 3")
        a(f"s_cselect_b32 s{sT0}, s{sT0}, s{sT1}")
        a(f"s_cselect_b32 s{sJLIM}, 32, 24")
        a(f"s_lshr_b32 s{sFT}, s{sJ}, 3")
        a(f"s_add_u32 s{sFT}, s{sFT}, s{sT0}")
        a(f"s_and_b32 s{sDT1}, s{sJ}, 7")
        a(f"s_lshl_b32 s{sROT1}, s{sDT1}, 1")
        a(f"s_lshl_b32 s{sIDLE}, s{sXCD}, 3")
        a(f"s_add_u32 s{sIDLE}, s{sIDLE}, s{sJ}")
        a(f"s_sub_u32 s{sIDLE}, s{sIDLE}, 48")
    if opt.rota1:
        a(f"s_mul_i32 s{sT0}, s{sFT}, {opt.rota1}")
        a(f"s_add_u32 s{sROT1}, s{sROT1}, s{sT0}")
        a(f"s_and_b32 s{sROT1}, s{sROT1}, 15")
    if opt.p2 == 2:
        a(f"s_lshr_b32 s{sT1}, s{sXCD}, 1")
        a(f"s_and_b32 s{sT2}, s{sXCD}, 1")
        a(f"s_lshl_b32 s{sT2}, s{sT2}, 2")
        a(f"s_lshr_b32 s{sT0}, s{sJ}, 2")
        a(f"s_lshl_b32 s{sST}, s{sT1}, 3")
        a(f"s_add_u32 s{sST}, s{sST}, s{sT0}")
        a(f"s_and_b32 s{sT3}, s{sJ}, 3")
        a(f"s_add_u32 s{sDT2}, s{sT2}, s{sT3}")
        if opt.rot8:
            a(f"s_mul_i32 s{sROT2}, s{sDT2}, 7")
            a(f"s_lshr_b32 s{sROT2}, s{sROT2}, 2")
        else:
            a(f"s_mul_i32 s{sROT2}, s{sT3}, 7")
            a(f"s_lshr_b32 s{sROT2}, s{sROT2}, 1")
    else:
        a(f"s_lshr_b32 s{sT0}, s{sJ}, 3")
        a(f"s_lshl_b32 s{sST}, s{sXCD}, 2")
        a(f"s_add_u32 s{sST}, s{sST}, s{sT0}")
        a(f"s_and_b32 s{sDT2}, s{sJ}, 7")
        a(f"s_mul_i32 s{sROT2}, s{sDT2}, 7")
        a(f"s_lshr_b32 s{sROT2}, s{sROT2}, 2")
    if opt.rota2:
        a(f"s_mul_i32 s{sT0}, s{sST}, {opt.rota2}")
        a(f"s_add_u32 s{sROT2}, s{sROT2}, s{sT0}")
        a(f"s_and_b32 s{sT0}, s{sROT2}, 0xff")
        a(f"s_mul_i32 s{sT0}, s{sROT2}, 18725")
        a(f"s_lshr_b32 s{sT0}, s{sT0}, 18")
        a(f"s_mul_i32 s{sT0}, s{sT0}, 14")
        a(f"s_sub_u32 s{sROT2}, s{sROT2}, s{sT0}")
    if not (opt.rot & 1): a(f"s_mov_b32 s{sROT1}, 0")
    if not (opt.rot & 2): a(f"s_mov_b32 s{sROT2}, 0")
    a(f"s_lshl_b32 s{sM0B}, s{sWAVE}, 15")
    a(f"s_lshl_b32 s{sUP}, s{sWAVE}, 13")
    a(f"s_add_u32 s{sUP}, s{sUP}, 131072")
    def tr_addr(base_sgpr):
        t0, t1, t2 = vX, vX + 1, vX + 2
        a(f"v_lshrrev_b32 v{t0}, 4, v{vLANE}")
        a(f"v_and_b32 v{t1}, 1, v{t0}")
        a(f"v_lshlrev_b32 v{t1}, 2, v{t1}")
        a(f"v_bfe_u32 v{t2}, v{vLANE}, 2, 2")
        a(f"v_add_u32 v{t1}, v{t1}, v{t2}")
        a(f"v_lshrrev_b32 v{t0}, 1, v{t0}")
        a(f"v_lshlrev_b32 v{t0}, 10, v{t0}")
        a(f"v_lshlrev_b32 v{t2}, 7, v{t1}")
        a(f"v_add_u32 v{t0}, v{t0}, v{t2}")
        a(f"v_and_b32 v{t2}, 3, v{vLANE}")
        a(f"v_lshlrev_b32 v{t2}, 3, v{t2}")
        a(f"v_add_u32 v{t0}, v{t0}, v{t2}")
        a(f"v_add_u32 v{t0}, s{base_sgpr}, v{t0}")
        a(f"v_lshrrev_b32 v{t1}, 1, v{t1}")
        for t in range(4):
            a(f"v_xor_b32 v{t2}, {t}, v{t1}")
            a(f"v_lshlrev_b32 v{t2}, 5, v{t2}")
            a(f"v_add_u32 v{vTR+t}, v{t0}, v{t2}")
    def w1_dma(i): dma_step(a, sW1, F * 2, sWB, sROT1, i, 16, sM0B, (i % 8) * 4096, f"w1_{i}", opt.w1bits)
    def w1_stream(first, dp):
        retired = 0
        def retire():
            nonlocal retired
            a.wait_vm(f"w1_{retired}")
            if retired: a("s_waitcnt lgkmcnt(0)")
            tr_step(a, vTR, (retired % 8) * 4096, retired)
            retired += 1
        for i in range(first, 16):
            while retired <= i - dp: retire()
            if i >= 8:
                while retired <= i - 8: retire()
                if retired == i - 7: a("s_waitcnt lgkmcnt(0)")
            w1_dma(i)
        while retired < 16: retire()
        a("s_waitcnt lgkmcnt(0)")
    dma_addr(a, F * 2, sFT)
    a(f"s_mul_i32 s{sWB}, s{sWAVE}, {512*F*2}")
    a(f"s_cmp_ge_u32 s{sWAVE}, 2")
    a("s_cbranch_scc1 L_loader")

    a.c("LayerNorm: wave w normalises rows 32*ks + 16*w + 4*q + (0..3), 16 lanes per row")
    XR, XF, TM = 96, 120, 160
    if opt.prio: a(f"s_setprio {opt.prio}")
    a(f"s_lshr_b32 s{sT0}, s{sWG}, 2")
    a(f"s_and_b32 s{sT1}, s{sWG}, 3")
    a(f"s_lshl_b32 s{sT2}, s{sT0}, 5")
    a(f"s_lshl_b32 s{sT3}, s{sWAVE}, 4")
    a(f"s_add_u32 s{sT2}, s{sT2}, s{sT3}")
    a(f"s_lshl_b32 s{sT3}, s{sT1}, 2")
    a(f"s_add_u32 s{sT2}, s{sT2}, s{sT3}")
    a(f"s_mul_i32 s{sT2}, s{sT2}, 1280")
    a(f"v_lshrrev_b32 v{TM}, 4, v{vLANE}")
    a(f"v_and_b32 v{TM+1}, 15, v{vLANE}")
    a(f"v_mul_u32_u24 v{TM+2}, 1280, v{TM}")
    a(f"v_lshlrev_b32 v{TM+3}, 4, v{TM+1}")
    a(f"v_add_u32 v{TM+2}, v{TM+2}, v{TM+3}")
    a(f"v_mov_b32 v{vT}, 0")
    a("s_waitcnt lgkmcnt(0)")
    if opt.prof: a(f"s_mov_b32 s{sPROF}, s{sP}")
    make_srd(a, sX, 4, S * D * 2)
    for i in range(5):
        a.vmem(f"buffer_load_dwordx4 {vr(XR+4*i,4)}, v{TM+2}, {srd(sX)}, s{sT2} offen offset:{i*256} {opt.xbits}", "x")
    make_srd(a, sD, 16, 256)
    a.vmem(f"buffer_load_dword v{vPOLL}, v{vT}, {srd(sD)}, 0 offen sc1", "nonce")
    make_srd(a, sW1, 6, S * F * 2)
    a(f"s_cmp_ge_u32 s{sJ}, s{sJLIM}")
    a("s_cbranch_scc1 L_ln_now1")
    for i in range(opt.nearly): w1_dma(i)
    a.label("L_ln_now1")
    a("s_barrier")
    make_srd(a, sH, 18, H_BYTES, WS_H)
    make_srd(a, sF, 18, FLAG_BYTES, WS_FLAG)
    a(f"s_mul_i32 s{sSTEP}, s{sT0}, 40960")
    a(f"s_lshl_b32 s{sT1}, s{sT1}, 8")
    a(f"s_add_u32 s{sSTEP}, s{sSTEP}, s{sT1}")
    a(f"s_lshl_b32 s{sT3}, s{sWAVE}, 2")
    a(f"v_add_u32 v{TM+4}, s{sT3}, v{TM}")
    a(f"v_mul_u32_u24 v{TM+4}, {LN_ROW}, v{TM+4}")
    a(f"v_add_u32 v{TM+4}, v{TM+4}, v{TM+3}")
    a(f"v_add_u32 v{TM+4}, {LN_BASE}, v{TM+4}")
    a(f"v_bfe_u32 v{TM+5}, v{vLANE}, 2, 2")
    a(f"v_mul_u32_u24 v{TM+5}, {LN_ROW}, v{TM+5}")
    a(f"s_mul_i32 s{sT3}, s{sWAVE}, 20")
    a(f"v_add_u32 v{TM+6}, s{sT3}, v{TM}")
    a(f"v_lshlrev_b32 v{TM+7}, 5, v{TM+6}")
    a(f"v_add_u32 v{TM+5}, v{TM+5}, v{TM+7}")
    a(f"v_and_b32 v{TM+7}, 3, v{vLANE}")
    a(f"v_lshlrev_b32 v{TM+7}, 3, v{TM+7}")
    a(f"v_add_u32 v{TM+5}, v{TM+5}, v{TM+7}")
    a(f"v_add_u32 v{TM+5}, {LN_BASE}, v{TM+5}")
    a(f"v_lshlrev_b32 v{TM+6}, 10, v{TM+6}")
    a(f"v_add_u32 v{TM+6}, v{TM+6}, v{TM+3}")
    a(f"s_mov_b32 s{sT0}, 0xffff0000")
    a(f"s_cmp_ge_u32 s{sJ}, s{sJLIM}")
    a("s_cbranch_scc1 L_ln_idle")
    a(f"s_waitcnt vmcnt({1 + 4*opt.nearly})")
    a("s_branch L_ln_go")
    a.label("L_ln_idle")
    a("s_waitcnt vmcnt(1)")
    a.label("L_ln_go")
    a.vm = [t for t in a.vm if t != "x"]
    stamp(a, opt, 1)
    for i in range(20):
        a(f"v_lshlrev_b32 v{XF+2*i}, 16, v{XR+i}")
        a(f"v_and_b32 v{XF+2*i+1}, s{sT0}, v{XR+i}")
    SM = TM + 8
    for k in range(4):
        a(f"v_pk_add_f32 {vr(SM+2*k,2)}, {vr(XF+2*k,2)}, {vr(XF+8+2*k,2)}")
    for i in range(8, 20):
        k = i % 4
        a(f"v_pk_add_f32 {vr(SM+2*k,2)}, {vr(SM+2*k,2)}, {vr(XF+2*i,2)}")
    def reduce_row(dst):
        a(f"v_pk_add_f32 {vr(SM,2)}, {vr(SM,2)}, {vr(SM+2,2)}")
        a(f"v_pk_add_f32 {vr(SM+4,2)}, {vr(SM+4,2)}, {vr(SM+6,2)}")
        a(f"v_pk_add_f32 {vr(SM,2)}, {vr(SM,2)}, {vr(SM+4,2)}")
        a(f"v_add_f32 v{dst}, v{SM}, v{SM+1}")
        for rot in (8, 4, 2, 1):
            a("s_nop 1")
            a(f"v_add_f32_dpp v{dst}, v{dst}, v{dst} row_ror:{rot} row_mask:0xf bank_mask:0xf")
    MN = TM + 16
    reduce_row(MN)
    a(f"v_mul_f32 v{MN}, {f2h(1.0/640.0)}, v{MN}")
    a(f"v_mov_b32 v{MN+1}, v{MN}")
    for i in range(20):
        a(f"v_pk_add_f32 {vr(XF+2*i,2)}, {vr(XF+2*i,2)}, {vr(MN,2)} neg_lo:[0,1] neg_hi:[0,1]")
    for k in range(4):
        a(f"v_pk_mul_f32 {vr(SM+2*k,2)}, {vr(XF+2*k,2)}, {vr(XF+2*k,2)}")
    for i in range(4, 20):
        k = i % 4
        a(f"v_pk_fma_f32 {vr(SM+2*k,2)}, {vr(XF+2*i,2)}, {vr(XF+2*i,2)}, {vr(SM+2*k,2)}")
    reduce_row(MN)
    a(f"v_mov_b32 v{MN+1}, {f2h(1e-5)}")
    a(f"v_fmac_f32 v{MN+1}, {f2h(1.0/640.0)}, v{MN}")
    a(f"v_rsq_f32 v{MN}, v{MN+1}")
    a("s_nop 0")
    a(f"v_mov_b32 v{MN+1}, v{MN}")
    for i in range(20):
        a(f"v_pk_mul_f32 {vr(XF+2*i,2)}, {vr(XF+2*i,2)}, {vr(MN,2)}")
    for i in range(20):
        a(f"v_cvt_pk_bf16_f32 v{XR+i}, v{XF+2*i}, v{XF+2*i+1}")
    if opt.lnprof: stamp(a, opt, 4)
    for i in range(5):
        a(f"ds_write_b128 v{TM+4}, {vr(XR+4*i,4)} offset:{i*256}")
    a(f"s_lshl_b32 s{sT0}, s{sWAVE}, 2")
    a(f"s_add_u32 s{sT1}, s{sT0}, {LF_BASE}")
    a(f"s_xor_b32 s{sT0}, s{sT0}, 4")
    a(f"s_add_u32 s{sT0}, s{sT0}, {LF_BASE}")
    a("s_waitcnt lgkmcnt(0)")
    lds_set(a, f"s{sT1}")
    lds_spin(a, opt, f"s{sT0}")
    if opt.lnprof: stamp(a, opt, 5)
    for i in range(5):
        a(f"ds_read_b64_tr_b16 {vr(XF+4*i,2)}, v{TM+5} offset:{i*128}")
        a(f"ds_read_b64_tr_b16 {vr(XF+4*i+2,2)}, v{TM+5} offset:{i*128+4*LN_ROW}")
    for i in range(5):
        a(f"s_waitcnt lgkmcnt({8-2*i})")
        a(f"s_add_u32 s{sT0}, s{sSTEP}, {i*4096}")
        a.vmem(f"buffer_store_dwordx4 {vr(XF+4*i,4)}, v{TM+6}, {srd(sH)}, s{sT0} offen {opt.hbits}", "h")
    stamp(a, opt, 2)
    a("s_waitcnt vmcnt(5)")
    a(f"v_readfirstlane_b32 s{sNONCE}, v{vPOLL}")
    nonce_spin(a, opt)
    a.wait_vm0()
    a(f"s_mul_i32 s{sT0}, s{sWG}, {opt.hstride}")
    a(f"s_lshl_b32 s{sT1}, s{sWAVE}, 2")
    a(f"s_add_u32 s{sT0}, s{sT0}, s{sT1}")
    flag_store(a, sT0)
    a(f"s_lshl_b32 s{sT0}, s{sWAVE}, 2")
    a(f"s_add_u32 s{sT0}, s{sT0}, {LF_BASE + 8}")
    lds_set(a, f"s{sT0}")
    stamp(a, opt, 3)
    if opt.prio: a("s_setprio 0")
    a.ln_done = True
    a("s_branch L_roles_done")

    a.label("L_loader")
    a.vm = []
    if opt.cpf:
        a(f"s_cmp_lg_u32 s{sWAVE}, {opt.cpfw}")
        a("s_cbranch_scc1 L_nocpf")
        a(f"s_lshl_b32 s{sT0}, s{sJ}, 11")
        a(f"v_lshlrev_b32 v{vX}, 4, v{vLANE}")
        a(f"v_add_u32 v{vX}, s{sT0}, v{vX}")
        for h in range(2):
            if h: a(f"v_add_u32 v{vX}, 1024, v{vX}")
            a(f"v_cmp_gt_u32 vcc, L_codeend-{KN}-20, v{vX}")
            a(f"s_and_saveexec_b64 s[{sP}:{sP+1}], vcc")
            a(f"s_cbranch_execz L_cpf{h}")
            a(f"global_load_dwordx4 {vr(240+4*h,4)}, v{vX}, s[94:95]")
            a.label(f"L_cpf{h}")
            a(f"s_mov_b64 exec, s[{sP}:{sP+1}]")
        a.label("L_nocpf")
    a(f"v_lshlrev_b32 v{vX}, 2, v{vLANE}")
    a(f"v_add_u32 v{vX}, {LF_BASE}, v{vX}")
    a(f"v_mov_b32 v{vX+1}, 0")
    a(f"ds_write_b32 v{vX}, v{vX+1}")
    a("s_waitcnt lgkmcnt(0)")
    if opt.prof: a(f"s_mov_b32 s{sPROF}, s{sP}")
    make_srd(a, sW1, 6, S * F * 2)
    make_srd(a, sD, 16, 256)
    a(f"s_cmp_lg_u32 s{sWG}, 0")
    a("s_cbranch_scc1 L_nononce")
    a(f"s_cmp_lg_u32 s{sWAVE}, 3")
    a("s_cbranch_scc1 L_nononce")
    a(f"s_memrealtime s[{sP}:{sP+1}]")
    a("s_waitcnt lgkmcnt(0)")
    a(f"s_or_b32 s{sT0}, s{sP}, 1")
    a(f"v_mov_b32 v{vT2}, s{sT0}")
    a(f"v_mov_b32 v{vT}, 0")
    a(f"s_mov_b64 s[{sP}:{sP+1}], exec")
    a("s_mov_b64 exec, 1")
    a(f"buffer_store_dword v{vT2}, v{vT}, {srd(sD)}, 0 offen sc1")
    a(f"s_mov_b64 exec, s[{sP}:{sP+1}]")
    a.label("L_nononce")
    a(f"s_cmp_ge_u32 s{sJ}, s{sJLIM}")
    a("s_cbranch_scc1 L_loader_idle")
    for i in range(2): w1_dma(i)
    a("s_barrier")
    tr_addr(sM0B)
    if opt.hold:
        lds_spin(a, opt, LF_BASE + 8)
        lds_spin(a, opt, LF_BASE + 12)
    w1_stream(2, opt.dp)
    a(f"s_mov_b32 s{sNONCE}, 0")
    nonce_spin(a, opt)
    a("s_branch L_w1_ready")
    a.label("L_loader_idle")
    a.vm = []
    a("s_barrier")
    if opt.pfwait:
        lds_spin(a, opt, LF_BASE + 8)
        lds_spin(a, opt, LF_BASE + 12)
    if opt.pf == 1:
        make_srd(a, sW2, 10, F * S * 2)
        a(f"s_lshl_b32 s{sT0}, s{sIDLE}, 1")
        a(f"s_add_u32 s{sT0}, s{sT0}, s{sWAVE}")
        a(f"s_sub_u32 s{sT0}, s{sT0}, 2")
        a(f"s_lshl_b32 s{sT0}, s{sT0}, 10")
        a(f"v_lshlrev_b32 v{vX}, 4, v{vLANE}")
        inc = 80 * 1024
        for k in range(87):
            o = vRING + (k % 20) * 4
            a.vmem(f"buffer_load_dwordx4 {vr(o,4)}, v{vX}, {srd(sW2)}, s{sT0} offen {opt.pfbits}", f"pf{k}")
            a(f"s_add_u32 s{sT0}, s{sT0}, {inc}")
            if k >= opt.pfdepth: a.wait_vm(f"pf{k-opt.pfdepth}")
    a(f"s_mov_b32 s{sNONCE}, 0")
    nonce_spin(a, opt)
    a("s_branch L_nogemm1")

    a.label("L_roles_done")
    a.vm = []
    a(f"s_cmp_ge_u32 s{sJ}, s{sJLIM}")
    a("s_cbranch_scc1 L_nogemm1")
    a.vm = []
    tr_addr(sM0B)
    for i in range(opt.nearly): a.vm.append(f"w1_{i}")
    a.vm.append("flag")
    w1_stream(opt.nearly, opt.dpl)

    def common_setup():
        make_srd(a, sH, 18, H_BYTES, WS_H)
        make_srd(a, sF, 18, FLAG_BYTES, WS_FLAG)
        make_srd(a, sB1, 8, F * 2)
        make_srd(a, sW2, 10, F * S * 2)
        make_srd(a, sB2, 12, S * 2)
        make_srd(a, sO, 14, S * D * 2)
        make_srd(a, sG, 18, G_BYTES, WS_G)
        a(f"v_lshrrev_b32 v{vT}, 4, v{vLANE}")
        a(f"v_lshlrev_b32 v{vT}, 3, v{vT}")
        a(f"s_and_b32 s{sT0}, s{sWAVE}, 1")
        a(f"s_lshl_b32 s{sT0}, s{sT0}, 6")
        a(f"s_lshl_b32 s{sT1}, s{sFT}, 7")
        a(f"s_add_u32 s{sT0}, s{sT0}, s{sT1}")
        a.vmem(f"buffer_load_dwordx2 {vr(vB1,2)}, v{vT}, {srd(sB1)}, s{sT0} offen", "b")
        a.vmem(f"buffer_load_dwordx2 {vr(vB1+2,2)}, v{vT}, {srd(sB1)}, s{sT0} offen offset:32", "b")
        a(f"v_and_b32 v{vT}, 15, v{vLANE}")
        a(f"v_lshlrev_b32 v{vT}, 1, v{vT}")
        a(f"s_lshl_b32 s{sT0}, s{sST}, 7")
        a(f"s_lshl_b32 s{sT1}, s{sWAVE}, 5")
        a(f"s_add_u32 s{sT0}, s{sT0}, s{sT1}")
        a.vmem(f"buffer_load_ushort v{vB2}, v{vT}, {srd(sB2)}, s{sT0} offen", "b")
        dma_addr(a, S * 2, sST)
        a(f"s_mul_i32 s{sWB}, s{sWAVE}, {448*S*2}")
        tr_addr(sM0B)
        a(f"s_sub_u32 s{sT0}, s{sUP}, s{sM0B}")
        for t in range(4):
            a(f"v_add_u32 v{vTRU+t}, s{sT0}, v{vTR+t}")
        a(f"v_lshlrev_b32 v{vL0}, 4, v{vLANE}")
        a(f"v_add_u32 v{vL1}, 65536, v{vL0}")
        a(f"v_add_u32 v{vL2}, 131072, v{vL0}")

    a.label("L_w1_ready")
    a.vm = []
    stamp(a, opt, 4)
    common_setup()
    a(f"s_mul_i32 s{sT0}, s{sDT1}, 5120")
    a(f"v_add_u32 v{vA}, s{sT0}, v{vL0}")
    a(f"v_add_u32 v{vA2}, 4096, v{vA}")
    a(f"s_lshl_b32 s{sT0}, s{sWAVE}, 6")
    a(f"v_add_u32 v{vX}, s{sT0}, v{vLANE}")
    a(f"v_mul_u32_u24 v{vX}, {opt.hstride}, v{vX}")
    poll(a, opt, vX, 2, None, opt.sleeph, opt.preh)
    a("s_barrier")
    stamp(a, opt, 5)

    def a_loads(srdn, step, nsteps, s_rot):
        slot = step % NS
        step_off(a, sOFF, sSTEP, s_rot, step, nsteps, 40960)
        return [f"buffer_load_dwordx4 {vr(ring(slot,t),4)}, v{vA if t < 4 else vA2}, {srd(srdn)}, s{sOFF} offen offset:{(t*1024) if t < 4 else 0} sc1" for t in range(5)]

    def main_loop(srdn, nsteps, s_rot, tagp, mfma, stamp0, tail, nuni):
        for st in range(opt.depth):
            for o, ins in enumerate(a_loads(srdn, st, nsteps, s_rot)): a.vmem(ins, f"{tagp}{st}_{o}")
        for st in range(nuni):
            nx = st + opt.depth
            nxt = a_loads(srdn, nx, nsteps, s_rot) if nx < nsteps else None
            a.wait_vm(f"{tagp}{st}_4")
            if st == 0 and stamp0 is not None: stamp(a, opt, stamp0)
            for o in range(5):
                if nxt: a.vmem(nxt[o], f"{tagp}{nx}_{o}")
                for i in range(4): mfma(st, o, i, st % NS)
                if tail: tail(st, o)

    def tile_tail(nsteps, tagp, first, last, frag_of, mfma_tile, write_tile, extra):
        ic = [0]
        done_at = {}
        queue = []
        extra = list(extra)
        def emit(fn):
            fn(); ic[0] += 1
        def filler():
            if queue and ic[0] - done_at[queue[0]] >= 9:
                t = queue.pop(0); emit(lambda: write_tile(t)); return
            if extra: emit(extra.pop(0))
        tiles = list(first) + list(last)
        for i in range(0, len(tiles), 2):
            pair = tiles[i:i + 2]
            for t in pair:
                for st in (nsteps - 2, nsteps - 1): a.wait_vm(f"{tagp}{st}_{frag_of(t)}")
            for st in (nsteps - 2, nsteps - 1):
                for t in pair:
                    emit(lambda: mfma_tile(st, t))
                    if st == nsteps - 1:
                        done_at[t] = ic[0]
                        if t in first: queue.append(t)
                    filler()
        while extra: emit(extra.pop(0))
        while queue:
            while ic[0] - done_at[queue[0]] < 9: emit(lambda: a("s_nop 0"))
            t = queue.pop(0); emit(lambda: write_tile(t))

    a(f"s_mul_i32 s{sSTEP}, s{sWAVE}, {16*40960}")
    def mfma1(st, nt, mt, slot):
        c = "0" if st == 0 else vr(acc1(mt, nt), 4)
        a(f"v_mfma_f32_16x16x32_bf16 {vr(acc1(mt,nt),4)}, {ar(wfrag(st,mt),4)}, {vr(ring(slot,nt),4)}, {c}")
    parts13 = w2_dma_parts(a, 0) if opt.t13 else []
    def tail1(st, o):
        if st == 13 and parts13:
            if o == 0: parts13[0]()
            else: parts13[o]()
    main_loop(sH, 16, sROT1, "h", mfma1, 6, tail1, 14)

    a(f"s_mov_b32 s100, {f2h(C1)}"); a(f"s_mov_b32 s101, {f2h(C1)}")
    a(f"v_mov_b32 v{vC0}, {f2h(C0)}"); a(f"v_mov_b32 v{vC0+1}, {f2h(C0)}")
    def lds_ref(addr):
        if addr < 65536: return vL0, addr
        if addr < 131072: return vL1, addr - 65536
        return vL2, addr - 131072
    def owner1(p, nt): return p + (0 if nt < 3 else 2)
    units = [(p, nt) for p in range(2) for nt in range(5)]
    def red1_addr(src, u):
        k = [x for x in units if owner1(*x) != src].index(u)
        return src * 32768 + 24576 + k * 2048 if k < 4 else 131072 + src * 8192 + (k - 4) * 2048
    saved_vm = list(a.vm)
    for w in range(4):
        if w < 3:
            a(f"s_cmp_lg_u32 s{sWAVE}, {w}")
            a(f"s_cbranch_scc1 L_ep1_{w+1}")
        a.vm = list(saved_vm)
        nis = [1 if opt.t13 else 0]
        def more(n, limit):
            for _ in range(n):
                if nis[0] < limit:
                    w2_dma(a, nis[0]); nis[0] += 1
        tl = [(2 * p + hf, nt) for nt in range(5) for p in range(2) for hf in range(2)]
        first = [t for t in tl if owner1(t[0] // 2, t[1]) != w]
        last = [t for t in tl if owner1(t[0] // 2, t[1]) == w]
        def wr1(t):
            vb, off = lds_ref(red1_addr(w, (t[0] // 2, t[1])) + (t[0] & 1) * 1024)
            a(f"ds_write_b128 v{vb}, {vr(acc1(*t),4)} offset:{off}")
        extra = []
        for _ in range(opt.tt):
            extra += w2_dma_parts(a, nis[0]); nis[0] += 1
        tile_tail(16, "h", first, last, lambda t: t[1], lambda st, t: mfma1(st, t[1], t[0], st % NS), wr1, extra)
        stamp(a, opt, 7)
        more(opt.e1, 6)
        a("s_waitcnt lgkmcnt(0)")
        a("s_barrier")
        own_u = [u for u in units if owner1(*u) == w]
        RT = vRING
        n = 0
        for u in own_u:
            for src in range(4):
                if src == w: continue
                for hf in range(2):
                    vb, off = lds_ref(red1_addr(src, u) + hf * 1024)
                    a(f"ds_read_b128 {vr(RT + n*4, 4)}, v{vb} offset:{off}")
                    n += 1
        a.wait_vm("b")
        for i in range(4):
            a(f"v_lshlrev_b32 v{BI+2*i}, 16, v{vB1+i}")
            a(f"v_and_b32 v{BI+2*i+1}, 0xffff0000, v{vB1+i}")
        for u in own_u:
            p, nt = u
            for hf in range(2):
                r = acc1(2*p+hf, nt)
                a(f"v_pk_add_f32 {vr(r,2)}, {vr(r,2)}, {vr(BI+4*hf,2)}")
                a(f"v_pk_add_f32 {vr(r+2,2)}, {vr(r+2,2)}, {vr(BI+4*hf+2,2)}")
        n = 0
        tot = len(own_u) * 6
        for u in own_u:
            p, nt = u
            for si in range(3):
                for hf in range(2):
                    a(f"s_waitcnt lgkmcnt({min(15, tot - n - 1)})")
                    r = acc1(2*p+hf, nt)
                    a(f"v_pk_add_f32 {vr(r,2)}, {vr(r,2)}, {vr(RT+n*4,2)}")
                    a(f"v_pk_add_f32 {vr(r+2,2)}, {vr(r+2,2)}, {vr(RT+n*4+2,2)}")
                    n += 1
        a("s_barrier")
        regs = []
        for u in own_u:
            p, nt = u
            for hf in range(2):
                r = acc1(2*p+hf, nt)
                regs += [r, r + 2]
        more(opt.e2, 10)
        gelu_pairs(a, regs, RT, fill=lambda: more(opt.e3, 10))
        a(f"s_lshl_b32 s{sT0}, s{sFT}, 1")
        a(f"s_add_u32 s{sT0}, s{sT0}, {w & 1}")
        a(f"s_mul_i32 s{sT0}, s{sT0}, 40960")
        a(f"s_mul_i32 s{sT1}, s{sDT1}, 5120")
        a(f"s_add_u32 s{sT0}, s{sT0}, s{sT1}")
        for i, u in enumerate(own_u):
            p, nt = u
            o = RT + 64 + 4 * i
            r0, r1 = acc1(2*p, nt), acc1(2*p+1, nt)
            a(f"v_cvt_pk_bf16_f32 v{o}, v{r0}, v{r0+1}")
            a(f"v_cvt_pk_bf16_f32 v{o+1}, v{r0+2}, v{r0+3}")
            a(f"v_cvt_pk_bf16_f32 v{o+2}, v{r1}, v{r1+1}")
            a(f"v_cvt_pk_bf16_f32 v{o+3}, v{r1+2}, v{r1+3}")
            a(f"s_add_u32 s{sT1}, s{sT0}, {nt*1024}")
            a.vmem(f"buffer_store_dwordx4 {vr(o,4)}, v{vL0}, {srd(sG)}, s{sT1} offen sc1", "g")
        stamp(a, opt, 8)
        more(opt.nb, 10)
        a.wait_vm("w2_3")
        if nis[0] >= 4:
            for st in range(4):
                w2_tr(a, st)
                if st % 2 == 1: a("s_waitcnt lgkmcnt(0)")
        if nis[0] == 10 and opt.nb2:
            for st in range(10, 10 + opt.nb2): w2_dma(a, st)
            nis[0] += opt.nb2
        a.wait_vm("g")
        a(f"s_lshl_b32 s{sT0}, s{sDT1}, 5")
        a(f"s_add_u32 s{sT0}, s{sT0}, s{sFT}")
        a(f"s_mul_i32 s{sT0}, s{sT0}, {opt.gstride}")
        a(f"s_add_u32 s{sT0}, s{sT0}, {FLAG_G + 4*w}")
        flag_store(a, sT0)
        stamp(a, opt, 9)
        assert nis[0] >= 4
        more(10, 10)
        more(4, 14)
        for st in range(4, 10):
            a.wait_vm(f"w2_{st}")
            w2_tr(a, st)
            if st % 2 == 1: a("s_waitcnt lgkmcnt(0)")
        a("s_branch L_pre2")
        if w < 3: a.label(f"L_ep1_{w+1}")

    a.label("L_nogemm1")
    a.vm = []
    common_setup()
    if opt.idlewait:
        a(f"s_lshl_b32 s{sT0}, s{sWAVE}, 6")
        a(f"v_add_u32 v{vX}, s{sT0}, v{vLANE}")
        a(f"v_mul_u32_u24 v{vX}, {opt.hstride}, v{vX}")
        poll(a, opt, vX, 2, None)
        if opt.idlewait > 1:
            a(f"s_sleep {opt.idlewait}")
    if opt.pf == 3:
        a(f"s_lshl_b32 s{sT0}, s{sIDLE}, 2")
        a(f"s_add_u32 s{sT0}, s{sT0}, s{sWAVE}")
        a(f"s_lshl_b32 s{sT0}, s{sT0}, 10")
        for k in range(44):
            o = vRING + (k % 16) * 4
            a.vmem(f"buffer_load_dwordx4 {vr(o,4)}, v{vL0}, {srd(sW2)}, s{sT0} offen {opt.pfbits}", f"pf{k}")
            a(f"s_add_u32 s{sT0}, s{sT0}, {160*1024}")
            if k >= opt.pfdepth: a.wait_vm(f"pf{k-opt.pfdepth}")
        a.wait_vm0()
    if opt.pf == 2:
        assert opt.p1 == 2 and opt.p2 == 1
        a(f"s_cmp_lt_u32 s{sJ}, 28")
        a("s_cbranch_scc1 L_nopf")
        a(f"s_sub_u32 s{sT0}, s{sJ}, 28")
        a(f"s_lshl_b32 s{sT0}, s{sT0}, 2")
        a(f"s_add_u32 s{sT0}, s{sT0}, s{sWAVE}")
        a(f"s_lshl_b32 s{sT0}, s{sT0}, 13")
        a(f"s_lshl_b32 s{sT1}, s{sXCD}, 9")
        a(f"s_add_u32 s{sT0}, s{sT0}, s{sT1}")
        a(f"v_lshrrev_b32 v{vX}, 5, v{vLANE}")
        a(f"v_lshlrev_b32 v{vX}, 12, v{vX}")
        a(f"v_and_b32 v{vX+1}, 31, v{vLANE}")
        a(f"v_lshlrev_b32 v{vX+1}, 4, v{vX+1}")
        a(f"v_add_u32 v{vX}, v{vX}, v{vX+1}")
        keep = list(a.vm)
        for k in range(54):
            o = vRING + (k % 16) * 4
            a.vmem(f"buffer_load_dwordx4 {vr(o,4)}, v{vX}, {srd(sW2)}, s{sT0} offen", f"pf{k}")
            a(f"s_add_u32 s{sT0}, s{sT0}, {16*8192}")
            if k >= opt.pfdepth: a.wait_vm(f"pf{k-opt.pfdepth}")
        a.wait_vm0()
        a.label("L_nopf")
        a.vm = keep
    for st in range(10): w2_dma(a, st)
    for st in range(4):
        a.wait_vm(f"w2_{st}")
        w2_tr(a, st)
        if st % 2 == 1: a("s_waitcnt lgkmcnt(0)")
    for st in range(10, 14): w2_dma(a, st)
    for st in range(4, 10):
        a.wait_vm(f"w2_{st}")
        w2_tr(a, st)
        if st % 2 == 1: a("s_waitcnt lgkmcnt(0)")

    a.label("L_pre2")
    a.wait_vm0()
    a("s_waitcnt lgkmcnt(0)")
    for st in range(10, 14):
        w2_tr(a, st)
        if st % 2 == 1: a("s_waitcnt lgkmcnt(0)")
    stamp(a, opt, 10)
    a(f"s_mul_i32 s{sT0}, s{sDT2}, 5120")
    a(f"v_add_u32 v{vA}, s{sT0}, v{vL0}")
    a(f"v_add_u32 v{vA2}, 4096, v{vA}")
    a(f"s_lshl_b32 s{sT0}, s{sDT2}, 5")
    a(f"s_mul_i32 s{sT1}, s{sWAVE}, 7")
    a(f"s_add_u32 s{sT0}, s{sT0}, s{sT1}")
    a(f"s_mul_i32 s{sT0}, s{sT0}, {opt.gstride}")
    a(f"s_add_u32 s{sT0}, s{sT0}, {FLAG_G}")
    a(f"v_lshrrev_b32 v{vX}, 2, v{vLANE}")
    a(f"v_mul_u32_u24 v{vX}, {opt.gstride}, v{vX}")
    a(f"v_and_b32 v{vT}, 3, v{vLANE}")
    a(f"v_lshlrev_b32 v{vT}, 2, v{vT}")
    a(f"v_add_u32 v{vX}, v{vX}, v{vT}")
    a(f"v_add_u32 v{vX}, s{sT0}, v{vX}")
    a(f"s_cmp_eq_u32 s{sWAVE}, 3")
    a(f"s_mov_b32 s{sP+3}, 0xffffff")
    a(f"s_cselect_b32 s{sP+2}, s{sP+3}, 0xfffffff")
    a(f"s_mov_b32 s{sP+3}, 0")
    poll(a, opt, vX, 1, sP + 2, opt.sleep, opt.preg)
    stamp(a, opt, 11)
    a(f"s_mul_i32 s{sSTEP}, s{sWAVE}, {14*40960}")
    def mfma2(st, mt, nt, slot):
        c = "0" if st == 0 else vr(acc2(mt, nt), 4)
        a(f"v_mfma_f32_16x16x32_bf16 {vr(acc2(mt,nt),4)}, {vr(ring(slot,mt),4)}, {ar(wfrag(st,nt),4)}, {c}")
    main_loop(sG, 14, sROT2, "g", mfma2, 12, None, 12)
    saved_vm2 = list(a.vm)
    a(f"v_and_b32 v{vT}, 15, v{vLANE}")
    a(f"s_lshl_b32 s{sT0}, s{sWAVE}, 4")
    a(f"v_add_u32 v{vT}, s{sT0}, v{vT}")
    a(f"v_mul_u32_u24 v{vA}, 1280, v{vT}")
    a(f"v_lshrrev_b32 v{vT}, 4, v{vLANE}")
    a(f"v_lshlrev_b32 v{vT}, 3, v{vT}")
    a(f"v_add_u32 v{vA}, v{vA}, v{vT}")
    a(f"s_mul_i32 s{sT0}, s{sST}, {64*1280}")
    a(f"s_mul_i32 s{sT1}, s{sDT2}, 160")
    a(f"s_add_u32 s{sOFF}, s{sT0}, s{sT1}")
    a(f"v_lshlrev_b32 v{vC0}, 16, v{vB2}")
    a(f"v_lshlrev_b32 v{vC0+1}, 16, v{vB2}")
    a(f"v_sub_u32 v{vA2}, v{vA}, v{vT}")
    a(f"v_bfe_u32 v{vT}, v{vLANE}, 4, 1")
    a(f"v_lshlrev_b32 v{vT}, 5, v{vT}")
    a(f"v_add_u32 v{vA2}, v{vA2}, v{vT}")
    a(f"v_bfe_u32 v{vT}, v{vLANE}, 5, 1")
    a(f"v_lshlrev_b32 v{vT}, 4, v{vT}")
    a(f"v_add_u32 v{vA2}, v{vA2}, v{vT}")
    def red2_addr(src, nt, mt):
        k = [x for x in range(4) if x != src].index(nt)
        return src * 32768 + (k * 5 + mt) * 1024
    for w in range(4):
        if w < 3:
            a(f"s_cmp_lg_u32 s{sWAVE}, {w}")
            a(f"s_cbranch_scc1 L_ep2_{w+1}")
        a.vm = list(saved_vm2)
        tl = [(mt, nt) for mt in range(5) for nt in range(4)]
        def wr2(t):
            vb, off = lds_ref(red2_addr(w, t[1], t[0]))
            a(f"ds_write_b128 v{vb}, {vr(acc2(*t),4)} offset:{off}")
        tile_tail(14, "g", [t for t in tl if t[1] != w], [t for t in tl if t[1] == w], lambda t: t[0],
                  lambda st, t: mfma2(st, t[0], t[1], st % NS), wr2, [])
        stamp(a, opt, 13)
        a("s_waitcnt lgkmcnt(0)")
        a("s_barrier")
        RT = vRING
        n = 0
        for mt in range(5):
            for src in range(4):
                if src == w: continue
                vb, off = lds_ref(red2_addr(src, w, mt))
                a(f"ds_read_b128 {vr(RT+n*4,4)}, v{vb} offset:{off}")
                n += 1
        n = 0
        for mt in range(5):
            r = acc2(mt, w)
            for si in range(3):
                a(f"s_waitcnt lgkmcnt({14 - n})")
                a(f"v_pk_add_f32 {vr(r,2)}, {vr(r,2)}, {vr(RT+n*4,2)}")
                a(f"v_pk_add_f32 {vr(r+2,2)}, {vr(r+2,2)}, {vr(RT+n*4+2,2)}")
                n += 1
            a(f"v_pk_add_f32 {vr(r,2)}, {vr(r,2)}, {vr(vC0,2)}")
            a(f"v_pk_add_f32 {vr(r+2,2)}, {vr(r+2,2)}, {vr(vC0,2)}")
            o = RT + 64 + 2 * mt
            a(f"v_cvt_pk_bf16_f32 v{o}, v{r}, v{r+1}")
            a(f"v_cvt_pk_bf16_f32 v{o+1}, v{r+2}, v{r+3}")
            if not opt.wide or mt == 4:
                a(f"buffer_store_dwordx2 {vr(o,2)}, v{vA}, {srd(sO)}, s{sOFF} offen offset:{mt*32} {opt.obits}")
            elif mt % 2 == 1:
                a("s_nop 1")
                a(f"v_permlane16_swap_b32 v{o-2}, v{o}")
                a(f"v_permlane16_swap_b32 v{o-1}, v{o+1}")
                a(f"buffer_store_dwordx4 {vr(o-2,4)}, v{vA2}, {srd(sO)}, s{sOFF} offen offset:{(mt-1)*32} {opt.obits}")
        a("s_branch L_fin")
        if w < 3: a.label(f"L_ep2_{w+1}")
    a.label("L_fin")
    if opt.probe >= 0:
        if opt.probe == 14:
            a("s_waitcnt vmcnt(0)")
            stamp(a, opt, 14)
        a(f"s_cmp_lg_u32 s{sWG}, {opt.probewg}")
        a("s_cbranch_scc1 L_done")
        a(f"s_cmp_lg_u32 s{sWAVE}, {opt.probew}")
        a("s_cbranch_scc1 L_done")
        ref = sNONCE if opt.probeabs else (sPROF + 2 if opt.probe0 >= 0 else 96)
        a(f"s_sub_u32 s{sT1}, s{sPROF+1}, s{ref}")
        if opt.probecyc: a(f"s_lshr_b32 s{sT1}, s{sT1}, 2")
        else: a(f"s_lshl_b32 s{sT1}, s{sT1}, 2")
        a(f"s_add_u32 s{sT1}, s{sT1}, 4000")
        a.label("L_probe")
        a(f"s_memrealtime s[{sP}:{sP+1}]")
        a("s_waitcnt lgkmcnt(0)")
        a(f"s_sub_u32 s{sT0}, s{sP}, s96")
        a(f"s_cmp_lt_u32 s{sT0}, s{sT1}")
        a("s_cbranch_scc1 L_probe")
    if opt.pad:
        a.label("L_pad")
        a(f"s_memrealtime s[{sP}:{sP+1}]")
        a("s_waitcnt lgkmcnt(0)")
        a(f"s_sub_u32 s{sT0}, s{sP}, s96")
        a(f"s_cmp_lt_u32 s{sT0}, {opt.pad}")
        a("s_cbranch_scc1 L_pad")
    if opt.prof:
        a("s_waitcnt vmcnt(0)")
        stamp(a, opt, 14)
        make_srd(a, sX, 18, 65536, WS_PROF)
        a(f"s_lshl_b32 s{sT0}, s{sWG}, 2")
        a(f"s_add_u32 s{sT0}, s{sT0}, s{sWAVE}")
        a(f"s_lshl_b32 s{sT0}, s{sT0}, 6")
        a(f"v_mov_b32 v{vT}, s{sT0}")
        a("s_mov_b64 exec, 1")
        for i in range(15):
            a(f"v_mov_b32 v100, s{sPROF+i}")
            a(f"buffer_store_dword v100, v{vT}, {srd(sX)}, 0 offen offset:{4*i}")
            a("s_nop 1")
        a("s_waitcnt vmcnt(0)")
    a.label("L_done")
    a("s_endpgm")
    a.label("L_codeend")
    a.raw('.section .rodata,"a"')
    a.raw(".p2align 6")
    a.raw(f".amdhsa_kernel {KN}")
    for l in ["next_free_vgpr 512", "next_free_sgpr 102", "accum_offset 256", "group_segment_fixed_size 0",
              "kernarg_size 64", "user_sgpr_count 2", "user_sgpr_kernarg_segment_ptr 1",
              "system_sgpr_workgroup_id_x 1", "float_denorm_mode_32 3"]:
        a.raw(f"  .amdhsa_{l}")
    a.raw(".end_amdhsa_kernel")
    return "\n".join(a.L) + "\n"

def parse(argv=None):
    ap = argparse.ArgumentParser()
    ap.add_argument("-o", default="standalone__mixer_token_mlp__prompt.s")
    ap.add_argument("--prof", type=int, default=0)
    ap.add_argument("--rot", type=int, default=3)
    ap.add_argument("--spin", type=int, default=20000)
    ap.add_argument("--sleep", type=int, default=24)
    ap.add_argument("--depth", type=int, default=3)
    ap.add_argument("--lnprof", type=int, default=0)
    ap.add_argument("--hbits", default="sc1")
    ap.add_argument("--pfwait", type=int, default=1)
    ap.add_argument("--hold", type=int, default=0)
    ap.add_argument("--probe", type=int, default=-1)
    ap.add_argument("--probe0", type=int, default=-1)
    ap.add_argument("--probecyc", type=int, default=0)
    ap.add_argument("--probeabs", type=int, default=0)
    ap.add_argument("--probewg", type=int, default=100)
    ap.add_argument("--probew", type=int, default=2)
    ap.add_argument("--rot8", type=int, default=1)
    ap.add_argument("--cpf", type=int, default=1)
    ap.add_argument("--cpfw", type=int, default=3)
    ap.add_argument("--wide", type=int, default=1)
    ap.add_argument("--idlewait", type=int, default=0)
    ap.add_argument("--sleeph", type=int, default=24)
    ap.add_argument("--preh", type=int, default=0)
    ap.add_argument("--preg", type=int, default=0)
    ap.add_argument("--t13", type=int, default=1)
    ap.add_argument("--tt", type=int, default=2)
    ap.add_argument("--e2", type=int, default=0)
    ap.add_argument("--e3", type=int, default=0)
    ap.add_argument("--nb2", type=int, default=0)
    ap.add_argument("--e1", type=int, default=1)
    ap.add_argument("--nb", type=int, default=2)
    ap.add_argument("--nearly", type=int, default=3)
    ap.add_argument("--dpl", type=int, default=5)
    ap.add_argument("--dp", type=int, default=4)
    ap.add_argument("--p1", type=int, default=1)
    ap.add_argument("--p2", type=int, default=1)
    ap.add_argument("--rota1", type=int, default=0)
    ap.add_argument("--rota2", type=int, default=0)
    ap.add_argument("--xbits", default="nt")
    ap.add_argument("--w1bits", default="")
    ap.add_argument("--w2bits", default="")
    ap.add_argument("--pfbits", default="")
    ap.add_argument("--pfdepth", type=int, default=8)
    ap.add_argument("--prio", type=int, default=3)
    ap.add_argument("--delay", type=int, default=0)
    ap.add_argument("--hstride", type=int, default=8)
    ap.add_argument("--gstride", type=int, default=256)
    ap.add_argument("--pf", type=int, default=1)
    ap.add_argument("--pad", type=int, default=0)
    ap.add_argument("--obits", default="sc1")
    return ap.parse_args(argv)

if __name__ == "__main__":
    opt = parse()
    open(opt.o, "w").write(gen(opt))
```

```python
import argparse, struct

S, D, F = 2048, 640, 1728
KN = "standalone__mixer_token_mlp__prompt_kernel"

WS_H = 0
H_BYTES = 64 * 40 * 1024
WS_G = 0x300000
G_BYTES = 54 * 40 * 1024
WS_FLAG = 0x600000
FLAG_H = 0
FLAG_G = 0x10000
FLAG_BYTES = 0x40000
WS_PROF = 0x700000

LDS_BYTES = 163840
LN_BASE = 131072
LN_ROW = 1344
LF_BASE = 141824
P0_BASE = [0, 49152, 98304, 122880]

sWG = 2
sX, sW1, sW2, sH, sG, sO, sF, sB1, sB2, sD = 20, 24, 28, 32, 36, 40, 44, 48, 52, 56
sWAVE, sXCD, sJ, sFT, sDT1, sST, sDT2, sNONCE = 60, 61, 62, 63, 64, 65, 66, 67
sT0, sT1, sT2, sT3, sT4, sT5 = 68, 69, 70, 71, 72, 73
sROT1, sROT2, sSTEP, sOFF = 74, 75, 76, 77
sM0B, sSPIN = 78, 79
sP = 80
sPROF = 84
sUP = 99
sJLIM, sIDLE = 100, 101
sWB = 3

vTID, vLANE = 0, 1
vTR = 2
vA, vA2, vDMA, vT2 = 6, 7, 8, 9
vB1 = 10
vB2, vT = 14, 15
vACC = 16
vRING = 96
vTRU = 176
vL0, vL1, vL2 = 180, 181, 182
vC0 = 184
BI = 186
vPOLL = 194
vX = 196
vDM = 200

def srd(n): return f"s[{n}:{n+3}]"
def vr(n, c=1): return f"v{n}" if c == 1 else f"v[{n}:{n+c-1}]"
def ar(n, c=1): return f"a{n}" if c == 1 else f"a[{n}:{n+c-1}]"
def f2h(x): return "0x%08x" % struct.unpack("<I", struct.pack("<f", x))[0]
C0 = -2.0 * 0.7978845608028654 * 1.4426950408889634
C1 = C0 * 0.044715

class Asm:
    def __init__(self):
        self.L = []; self.vm = []; self.uid = 0
    def __call__(self, s): self.L.append("    " + s)
    def label(self, s): self.L.append(s + ":")
    def raw(self, s): self.L.append(s)
    def c(self, s): self.L.append("    ; " + s)
    def vmem(self, s, tag):
        self(s); self.vm.append(tag)
    def wait_vm(self, tag):
        hits = [i for i, t in enumerate(self.vm) if t == tag]
        if not hits: return
        n = len(self.vm) - 1 - hits[-1]
        self(f"s_waitcnt vmcnt({min(n, 63)})")
        self.vm = self.vm[hits[-1] + 1:]
    def wait_vm0(self):
        self("s_waitcnt vmcnt(0)"); self.vm = []
    def newlabel(self, p):
        self.uid += 1
        return f"L_{p}_{self.uid}"

def acc1(mt, nt): return vACC + (mt * 5 + nt) * 4
def acc2(mt, nt): return vACC + (mt * 4 + nt) * 4
def wfrag(step, t): return step * 16 + t * 4

def stamp(a, opt, idx, force=False):
    if opt.probe >= 0:
        ins = "s_memtime" if opt.probecyc else "s_memrealtime"
        if idx == opt.probe:
            a(f"{ins} s[{sP}:{sP+1}]")
            a("s_waitcnt lgkmcnt(0)")
            a(f"s_mov_b32 s{sPROF+1}, s{sP}")
        if idx == opt.probe0:
            a(f"{ins} s[{sP}:{sP+1}]")
            a("s_waitcnt lgkmcnt(0)")
            a(f"s_mov_b32 s{sPROF+2}, s{sP}")
        return
    if opt.lnprof and idx in (4, 5) and getattr(a, "ln_done", False): return
    if opt.prof:
        a(f"s_mem{'time' if opt.prof == 2 else 'realtime'} s[{sP}:{sP+1}]")
        a("s_waitcnt lgkmcnt(0)")
        a(f"s_mov_b32 s{sPROF+idx}, s{sP}")

def make_srd(a, n, lo, size, add=0):
    if add:
        a(f"s_add_u32 s{n}, s{lo}, {add}")
        a(f"s_addc_u32 s{n+1}, s{lo+1}, 0")
        a(f"s_and_b32 s{n+1}, s{n+1}, 0xffff")
    else:
        a(f"s_mov_b32 s{n}, s{lo}")
        a(f"s_and_b32 s{n+1}, s{lo+1}, 0xffff")
    a(f"s_mov_b32 s{n+2}, {size}")
    a(f"s_mov_b32 s{n+3}, 0x20000")

def nonce_spin(a, opt):
    lp = a.newlabel("nonce"); dn = a.newlabel("nonced")
    a(f"s_cmp_lg_u32 s{sNONCE}, 0")
    a(f"s_cbranch_scc1 {dn}")
    a(f"s_mov_b32 s{sSPIN}, 0")
    a(f"v_mov_b32 v{vT}, 0")
    a.label(lp)
    a(f"buffer_load_dword v{vT2}, v{vT}, {srd(sD)}, 0 offen sc1")
    a("s_waitcnt vmcnt(0)")
    a(f"v_readfirstlane_b32 s{sNONCE}, v{vT2}")
    a(f"s_add_u32 s{sSPIN}, s{sSPIN}, 1")
    a(f"s_cmp_lg_u32 s{sNONCE}, 0")
    a(f"s_cbranch_scc1 {dn}")
    a(f"s_cmp_lt_u32 s{sSPIN}, {opt.spin}")
    a(f"s_cbranch_scc1 {lp}")
    a.label(dn)

def lds_set(a, addr_sgpr_or_imm):
    a(f"v_mov_b32 v{vT}, {addr_sgpr_or_imm}")
    a(f"v_mov_b32 v{vT2}, 1")
    a(f"s_mov_b64 s[{sP}:{sP+1}], exec")
    a("s_mov_b64 exec, 1")
    a(f"ds_write_b32 v{vT}, v{vT2}")
    a(f"s_mov_b64 exec, s[{sP}:{sP+1}]")

def lds_spin(a, opt, addr):
    lp = a.newlabel("lspin"); dn = a.newlabel("lspun")
    a(f"v_mov_b32 v{vT}, {addr}")
    a(f"s_mov_b32 s{sSPIN}, 0")
    a.label(lp)
    a(f"ds_read_b32 v{vT2}, v{vT}")
    a("s_waitcnt lgkmcnt(0)")
    a(f"v_readfirstlane_b32 s{sP}, v{vT2}")
    a(f"s_add_u32 s{sSPIN}, s{sSPIN}, 1")
    a(f"s_cmp_lg_u32 s{sP}, 0")
    a(f"s_cbranch_scc1 {dn}")
    a(f"s_cmp_lt_u32 s{sSPIN}, {opt.spin * 8}")
    a(f"s_cbranch_scc1 {lp}")
    a.label(dn)

def dma_addr(a, stride, s_tile):
    a(f"v_lshrrev_b32 v{vT}, 3, v{vLANE}")
    a(f"v_lshrrev_b32 v{vT2}, 1, v{vT}")
    a(f"v_lshlrev_b32 v{vT2}, 1, v{vT2}")
    a(f"v_and_b32 v{vDM}, 7, v{vLANE}")
    a(f"v_xor_b32 v{vDM}, v{vDM}, v{vT2}")
    a(f"v_lshlrev_b32 v{vDM}, 4, v{vDM}")
    a(f"v_mul_u32_u24 v{vT}, {stride}, v{vT}")
    a(f"v_add_u32 v{vDM}, v{vDM}, v{vT}")
    a(f"s_lshl_b32 s{sT0}, s{s_tile}, 7")
    a(f"v_add_u32 v{vDM}, s{sT0}, v{vDM}")
    for b in range(1, 4):
        a(f"v_add_u32 v{vDM+b}, {b*(8*stride-1024)}, v{vDM}")

def step_off(a, dst, s_base, s_rot, i, nsteps, bytes_per_step):
    a(f"s_add_u32 s{sT4}, s{s_rot}, {i}")
    a(f"s_cmp_ge_u32 s{sT4}, {nsteps}")
    a(f"s_cselect_b32 s{dst}, {nsteps}, 0")
    a(f"s_sub_u32 s{sT4}, s{sT4}, s{dst}")
    a(f"s_mul_i32 s{sT4}, s{sT4}, {bytes_per_step}")
    a(f"s_add_u32 s{dst}, s{sT4}, s{s_base}")

def dma_step(a, srdn, stride, s_rowbase, s_rot, step, nsteps, s_lds, lds_off, tag, bits=""):
    a(f"s_add_u32 m0, s{s_lds}, {lds_off}")
    step_off(a, sOFF, s_rowbase, s_rot, step, nsteps, 32 * stride)
    for blk in range(4):
        a.vmem(f"buffer_load_dwordx4 v{vDM+blk}, {srd(srdn)}, s{sOFF} offen offset:{blk*1024} {bits} lds", tag)

def tr_step(a, vbase, off, step):
    for t in range(4):
        w = wfrag(step, t)
        a(f"ds_read_b64_tr_b16 {ar(w,2)}, v{vbase+t} offset:{off}")
        a(f"ds_read_b64_tr_b16 {ar(w+2,2)}, v{vbase+t} offset:{off+2048}")

def poll(a, opt, vaddr, nd, lanes, sleep=None, pre=0):
    if sleep is None: sleep = opt.sleep
    if pre: a(f"s_sleep {pre}")
    lp = a.newlabel("poll"); dn = a.newlabel("polled")
    a(f"s_mov_b32 s{sSPIN}, 0")
    a.label(lp)
    ld = {1: "dword", 2: "dwordx2"}[nd]
    a(f"buffer_load_{ld} {vr(vPOLL, nd)}, v{vaddr}, {srd(sF)}, 0 offen sc1")
    a("s_waitcnt vmcnt(0)")
    a(f"v_cmp_ne_u32 vcc, s{sNONCE}, v{vPOLL}")
    if nd == 2:
        a(f"v_cmp_ne_u32 s[{sP}:{sP+1}], s{sNONCE}, v{vPOLL+1}")
        a(f"s_or_b64 vcc, vcc, s[{sP}:{sP+1}]")
    if lanes is not None:
        a(f"s_and_b64 vcc, vcc, s[{lanes}:{lanes+1}]")
    a(f"s_add_u32 s{sSPIN}, s{sSPIN}, 1")
    a("s_cmp_eq_u64 vcc, 0")
    a(f"s_cbranch_scc1 {dn}")
    if sleep: a(f"s_sleep {sleep}")
    a(f"s_cmp_lt_u32 s{sSPIN}, {opt.spin}")
    a(f"s_cbranch_scc1 {lp}")
    a.label(dn)
    a.vm = []

def flag_store(a, s_index_bytes):
    a(f"v_mov_b32 v{vT}, s{s_index_bytes}")
    a(f"v_mov_b32 v{vT2}, s{sNONCE}")
    a(f"s_mov_b64 s[{sP}:{sP+1}], exec")
    a("s_mov_b64 exec, 1")
    a.vmem(f"buffer_store_dword v{vT2}, v{vT}, {srd(sF)}, 0 offen sc1", "flag")
    a(f"s_mov_b64 exec, s[{sP}:{sP+1}]")

def gelu_pairs(a, regs, tmp, fill=None):
    def each(fn):
        for i, r in enumerate(regs): fn(r, tmp + 2 * i)
    each(lambda r, t: a(f"v_pk_mul_f32 {vr(t,2)}, {vr(r,2)}, {vr(r,2)}"))
    each(lambda r, t: a(f"v_pk_fma_f32 {vr(t,2)}, {vr(t,2)}, s[100:101], {vr(vC0,2)}"))
    each(lambda r, t: a(f"v_pk_mul_f32 {vr(t,2)}, {vr(t,2)}, {vr(r,2)}"))
    if fill: fill()
    each(lambda r, t: (a(f"v_exp_f32 v{t}, v{t}"), a(f"v_exp_f32 v{t+1}, v{t+1}")))
    each(lambda r, t: a(f"v_pk_add_f32 {vr(t,2)}, {vr(t,2)}, 1.0 op_sel_hi:[1,0]"))
    each(lambda r, t: (a(f"v_rcp_f32 v{t}, v{t}"), a(f"v_rcp_f32 v{t+1}, v{t+1}")))
    a("s_nop 0")
    each(lambda r, t: a(f"v_pk_mul_f32 {vr(r,2)}, {vr(r,2)}, {vr(t,2)}"))

def w2_slot(step):
    if step < 8: return sM0B, step * 4096, vTR, step * 4096
    if step < 10: return sUP, (step - 8) * 4096, vTRU, (step - 8) * 4096
    return sM0B, (step - 10) * 4096, vTR, (step - 10) * 4096

def w2_dma(a, step):
    sb, off, _, _ = w2_slot(step)
    dma_step(a, sW2, S * 2, sWB, sROT2, step, 14, sb, off, f"w2_{step}", "nt" if step < OPT.ntb else OPT.w2bits)

def w2_dma_parts(a, step):
    sb, off, _, _ = w2_slot(step)
    def setup():
        a(f"s_add_u32 m0, s{sb}, {off}")
        step_off(a, sOFF, sWB, sROT2, step, 14, 32 * S * 2)
    def one(blk):
        return lambda: a.vmem(f"buffer_load_dwordx4 v{vDM+blk}, {srd(sW2)}, s{sOFF} offen offset:{blk*1024} {"nt" if step < OPT.ntb else OPT.w2bits} lds", f"w2_{step}")
    return [setup] + [one(b) for b in range(4)]

def w2_tr(a, step):
    _, _, vb, off = w2_slot(step)
    tr_step(a, vb, off, step)

def gen(opt):
    global OPT
    OPT = opt
    a = Asm()
    NS = opt.depth + 1
    def ring(slot, t): return vRING + slot * 20 + t * 4
    a.raw(f"; @launch grid=(256,1,1) block=(256,1,1) lds={LDS_BYTES}")
    a.raw('.amdgcn_target "amdgcn-amd-amdhsa--gfx950"')
    a.raw(".text")
    a.raw(f".globl {KN}")
    a.raw(".p2align 8")
    a.raw(f".type {KN},@function")
    a.label(KN)
    if opt.cpf: a("s_getpc_b64 s[94:95]")
    a(f"s_cmp_ge_u32 s{sWG}, 256")
    a("s_cbranch_scc1 L_done")
    a("s_load_dwordx16 s[4:19], s[0:1], 0")
    if opt.prof:
        a(f"s_mem{'time' if opt.prof == 2 else 'realtime'} s[{sP}:{sP+1}]")
    if opt.prof:
        for i in range(1, 15): a(f"s_mov_b32 s{sPROF+i}, 0")
    if opt.pad or opt.probe >= 0:
        a("s_memrealtime s[96:97]")
    a(f"v_lshrrev_b32 v{vT}, 6, v{vTID}")
    a(f"v_and_b32 v{vLANE}, 63, v{vTID}")
    a(f"v_readfirstlane_b32 s{sWAVE}, v{vT}")
    a(f"s_and_b32 s{sXCD}, s{sWG}, 7")
    a(f"s_lshr_b32 s{sJ}, s{sWG}, 3")
    if opt.p1 == 2:
        a(f"s_lshr_b32 s{sT1}, s{sXCD}, 1")
        a(f"s_and_b32 s{sT2}, s{sXCD}, 1")
        a(f"s_lshl_b32 s{sT2}, s{sT2}, 2")
        a(f"s_mul_i32 s{sT0}, s{sT1}, 7")
        a(f"s_lshr_b32 s{sFT}, s{sJ}, 2")
        a(f"s_add_u32 s{sFT}, s{sFT}, s{sT0}")
        a(f"s_and_b32 s{sT3}, s{sJ}, 3")
        a(f"s_add_u32 s{sDT1}, s{sT2}, s{sT3}")
        if opt.rot8: a(f"s_lshl_b32 s{sROT1}, s{sDT1}, 1")
        else: a(f"s_lshl_b32 s{sROT1}, s{sT3}, 2")
        a(f"s_cmp_eq_u32 s{sT1}, 3")
        a(f"s_cselect_b32 s{sJLIM}, 24, 28")
        a(f"s_lshl_b32 s{sT0}, s{sXCD}, 2")
        a(f"s_sub_u32 s{sT0}, s{sT0}, 28")
        a(f"s_lshl_b32 s{sT3}, s{sXCD}, 3")
        a(f"s_sub_u32 s{sT3}, s{sT3}, 48")
        a(f"s_cselect_b32 s{sIDLE}, s{sT0}, s{sT0}")
        a(f"s_cmp_ge_u32 s{sXCD}, 6")
        a(f"s_cselect_b32 s{sIDLE}, s{sT3}, s{sT0}")
        a(f"s_add_u32 s{sIDLE}, s{sIDLE}, s{sJ}")
    else:
        a(f"s_lshl_b32 s{sT0}, s{sXCD}, 2")
        a(f"s_mul_i32 s{sT1}, s{sXCD}, 3")
        a(f"s_add_u32 s{sT1}, s{sT1}, 3")
        a(f"s_cmp_lt_u32 s{sXCD}, 3")
        a(f"s_cselect_b32 s{sT0}, s{sT0}, s{sT1}")
        a(f"s_cselect_b32 s{sJLIM}, 32, 24")
        a(f"s_lshr_b32 s{sFT}, s{sJ}, 3")
        a(f"s_add_u32 s{sFT}, s{sFT}, s{sT0}")
        a(f"s_and_b32 s{sDT1}, s{sJ}, 7")
        a(f"s_lshl_b32 s{sROT1}, s{sDT1}, 1")
        a(f"s_lshl_b32 s{sIDLE}, s{sXCD}, 3")
        a(f"s_add_u32 s{sIDLE}, s{sIDLE}, s{sJ}")
        a(f"s_sub_u32 s{sIDLE}, s{sIDLE}, 48")
    if opt.rota1:
        a(f"s_mul_i32 s{sT0}, s{sFT}, {opt.rota1}")
        a(f"s_add_u32 s{sROT1}, s{sROT1}, s{sT0}")
        a(f"s_and_b32 s{sROT1}, s{sROT1}, 15")
    if opt.p2 == 2:
        a(f"s_lshr_b32 s{sT1}, s{sXCD}, 1")
        a(f"s_and_b32 s{sT2}, s{sXCD}, 1")
        a(f"s_lshl_b32 s{sT2}, s{sT2}, 2")
        a(f"s_lshr_b32 s{sT0}, s{sJ}, 2")
        a(f"s_lshl_b32 s{sST}, s{sT1}, 3")
        a(f"s_add_u32 s{sST}, s{sST}, s{sT0}")
        a(f"s_and_b32 s{sT3}, s{sJ}, 3")
        a(f"s_add_u32 s{sDT2}, s{sT2}, s{sT3}")
        if opt.rot8:
            a(f"s_mul_i32 s{sROT2}, s{sDT2}, 7")
            a(f"s_lshr_b32 s{sROT2}, s{sROT2}, 2")
        else:
            a(f"s_mul_i32 s{sROT2}, s{sT3}, 7")
            a(f"s_lshr_b32 s{sROT2}, s{sROT2}, 1")
    else:
        a(f"s_lshr_b32 s{sT0}, s{sJ}, 3")
        a(f"s_lshl_b32 s{sST}, s{sXCD}, 2")
        a(f"s_add_u32 s{sST}, s{sST}, s{sT0}")
        a(f"s_and_b32 s{sDT2}, s{sJ}, 7")
        a(f"s_mul_i32 s{sROT2}, s{sDT2}, 7")
        a(f"s_lshr_b32 s{sROT2}, s{sROT2}, 2")
    if opt.rota2:
        a(f"s_mul_i32 s{sT0}, s{sST}, {opt.rota2}")
        a(f"s_add_u32 s{sROT2}, s{sROT2}, s{sT0}")
        a(f"s_and_b32 s{sT0}, s{sROT2}, 0xff")
        a(f"s_mul_i32 s{sT0}, s{sROT2}, 18725")
        a(f"s_lshr_b32 s{sT0}, s{sT0}, 18")
        a(f"s_mul_i32 s{sT0}, s{sT0}, 14")
        a(f"s_sub_u32 s{sROT2}, s{sROT2}, s{sT0}")
    if not (opt.rot & 1): a(f"s_mov_b32 s{sROT1}, 0")
    if not (opt.rot & 2): a(f"s_mov_b32 s{sROT2}, 0")
    a(f"s_lshl_b32 s{sM0B}, s{sWAVE}, 15")
    a(f"s_lshl_b32 s{sUP}, s{sWAVE}, 13")
    a(f"s_add_u32 s{sUP}, s{sUP}, 131072")
    def tr_addr(base_sgpr):
        t0, t1, t2 = vX, vX + 1, vX + 2
        a(f"v_lshrrev_b32 v{t0}, 4, v{vLANE}")
        a(f"v_and_b32 v{t1}, 1, v{t0}")
        a(f"v_lshlrev_b32 v{t1}, 2, v{t1}")
        a(f"v_bfe_u32 v{t2}, v{vLANE}, 2, 2")
        a(f"v_add_u32 v{t1}, v{t1}, v{t2}")
        a(f"v_lshrrev_b32 v{t0}, 1, v{t0}")
        a(f"v_lshlrev_b32 v{t0}, 10, v{t0}")
        a(f"v_lshlrev_b32 v{t2}, 7, v{t1}")
        a(f"v_add_u32 v{t0}, v{t0}, v{t2}")
        a(f"v_and_b32 v{t2}, 3, v{vLANE}")
        a(f"v_lshlrev_b32 v{t2}, 3, v{t2}")
        a(f"v_add_u32 v{t0}, v{t0}, v{t2}")
        a(f"v_add_u32 v{t0}, s{base_sgpr}, v{t0}")
        a(f"v_lshrrev_b32 v{t1}, 1, v{t1}")
        for t in range(4):
            a(f"v_xor_b32 v{t2}, {t}, v{t1}")
            a(f"v_lshlrev_b32 v{t2}, 5, v{t2}")
            a(f"v_add_u32 v{vTR+t}, v{t0}, v{t2}")
    def w1_dma(i): dma_step(a, sW1, F * 2, sWB, sROT1, i, 16, sM0B, (i % 8) * 4096, f"w1_{i}", "nt" if i < opt.nta else opt.w1bits)
    def w1_stream(first, dp):
        retired = 0
        def retire():
            nonlocal retired
            a.wait_vm(f"w1_{retired}")
            if retired: a("s_waitcnt lgkmcnt(0)")
            tr_step(a, vTR, (retired % 8) * 4096, retired)
            retired += 1
        for i in range(first, 16):
            while retired <= i - dp: retire()
            if i >= 8:
                while retired <= i - 8: retire()
                if retired == i - 7: a("s_waitcnt lgkmcnt(0)")
            w1_dma(i)
        while retired < 16: retire()
        a("s_waitcnt lgkmcnt(0)")
    dma_addr(a, F * 2, sFT)
    a(f"s_mul_i32 s{sWB}, s{sWAVE}, {512*F*2}")
    a(f"s_cmp_ge_u32 s{sWAVE}, 2")
    a("s_cbranch_scc1 L_loader")

    a.c("LayerNorm: wave w normalises rows 32*ks + 16*w + 4*q + (0..3), 16 lanes per row")
    XR, XF, TM = 96, 120, 160
    if opt.prio: a(f"s_setprio {opt.prio}")
    a(f"s_lshr_b32 s{sT0}, s{sWG}, 2")
    a(f"s_and_b32 s{sT1}, s{sWG}, 3")
    a(f"s_lshl_b32 s{sT2}, s{sT0}, 5")
    a(f"s_lshl_b32 s{sT3}, s{sWAVE}, 4")
    a(f"s_add_u32 s{sT2}, s{sT2}, s{sT3}")
    a(f"s_lshl_b32 s{sT3}, s{sT1}, 2")
    a(f"s_add_u32 s{sT2}, s{sT2}, s{sT3}")
    a(f"s_mul_i32 s{sT2}, s{sT2}, 1280")
    a(f"v_lshrrev_b32 v{TM}, 4, v{vLANE}")
    a(f"v_and_b32 v{TM+1}, 15, v{vLANE}")
    a(f"v_mul_u32_u24 v{TM+2}, 1280, v{TM}")
    a(f"v_lshlrev_b32 v{TM+3}, 4, v{TM+1}")
    a(f"v_add_u32 v{TM+2}, v{TM+2}, v{TM+3}")
    a(f"v_mov_b32 v{vT}, 0")
    a("s_waitcnt lgkmcnt(0)")
    if opt.prof: a(f"s_mov_b32 s{sPROF}, s{sP}")
    make_srd(a, sX, 4, S * D * 2)
    for i in range(5):
        a.vmem(f"buffer_load_dwordx4 {vr(XR+4*i,4)}, v{TM+2}, {srd(sX)}, s{sT2} offen offset:{i*256} {opt.xbits}", "x")
    make_srd(a, sD, 16, 256)
    a.vmem(f"buffer_load_dword v{vPOLL}, v{vT}, {srd(sD)}, 0 offen sc1", "nonce")
    make_srd(a, sW1, 6, S * F * 2)
    a(f"s_cmp_ge_u32 s{sJ}, s{sJLIM}")
    a("s_cbranch_scc1 L_ln_now1")
    for i in range(opt.nearly): w1_dma(i)
    a.label("L_ln_now1")
    a("s_barrier")
    make_srd(a, sH, 18, H_BYTES, WS_H)
    make_srd(a, sF, 18, FLAG_BYTES, WS_FLAG)
    a(f"s_mul_i32 s{sSTEP}, s{sT0}, 40960")
    a(f"s_lshl_b32 s{sT1}, s{sT1}, 8")
    a(f"s_add_u32 s{sSTEP}, s{sSTEP}, s{sT1}")
    a(f"s_lshl_b32 s{sT3}, s{sWAVE}, 2")
    a(f"v_add_u32 v{TM+4}, s{sT3}, v{TM}")
    a(f"v_mul_u32_u24 v{TM+4}, {LN_ROW}, v{TM+4}")
    a(f"v_add_u32 v{TM+4}, v{TM+4}, v{TM+3}")
    a(f"v_add_u32 v{TM+4}, {LN_BASE}, v{TM+4}")
    a(f"v_bfe_u32 v{TM+5}, v{vLANE}, 2, 2")
    a(f"v_mul_u32_u24 v{TM+5}, {LN_ROW}, v{TM+5}")
    a(f"s_mul_i32 s{sT3}, s{sWAVE}, 20")
    a(f"v_add_u32 v{TM+6}, s{sT3}, v{TM}")
    a(f"v_lshlrev_b32 v{TM+7}, 5, v{TM+6}")
    a(f"v_add_u32 v{TM+5}, v{TM+5}, v{TM+7}")
    a(f"v_and_b32 v{TM+7}, 3, v{vLANE}")
    a(f"v_lshlrev_b32 v{TM+7}, 3, v{TM+7}")
    a(f"v_add_u32 v{TM+5}, v{TM+5}, v{TM+7}")
    a(f"v_add_u32 v{TM+5}, {LN_BASE}, v{TM+5}")
    a(f"v_lshlrev_b32 v{TM+6}, 10, v{TM+6}")
    a(f"v_add_u32 v{TM+6}, v{TM+6}, v{TM+3}")
    a(f"s_mov_b32 s{sT0}, 0xffff0000")
    a(f"s_cmp_ge_u32 s{sJ}, s{sJLIM}")
    a("s_cbranch_scc1 L_ln_idle")
    a(f"s_waitcnt vmcnt({1 + 4*opt.nearly})")
    a("s_branch L_ln_go")
    a.label("L_ln_idle")
    a("s_waitcnt vmcnt(1)")
    a.label("L_ln_go")
    a.vm = [t for t in a.vm if t != "x"]
    stamp(a, opt, 1)
    for i in range(20):
        a(f"v_lshlrev_b32 v{XF+2*i}, 16, v{XR+i}")
        a(f"v_and_b32 v{XF+2*i+1}, s{sT0}, v{XR+i}")
    SM = TM + 8
    for k in range(4):
        a(f"v_pk_add_f32 {vr(SM+2*k,2)}, {vr(XF+2*k,2)}, {vr(XF+8+2*k,2)}")
    for i in range(8, 20):
        k = i % 4
        a(f"v_pk_add_f32 {vr(SM+2*k,2)}, {vr(SM+2*k,2)}, {vr(XF+2*i,2)}")
    def reduce_row(dst):
        a(f"v_pk_add_f32 {vr(SM,2)}, {vr(SM,2)}, {vr(SM+2,2)}")
        a(f"v_pk_add_f32 {vr(SM+4,2)}, {vr(SM+4,2)}, {vr(SM+6,2)}")
        a(f"v_pk_add_f32 {vr(SM,2)}, {vr(SM,2)}, {vr(SM+4,2)}")
        a(f"v_add_f32 v{dst}, v{SM}, v{SM+1}")
        for rot in (8, 4, 2, 1):
            a("s_nop 1")
            a(f"v_add_f32_dpp v{dst}, v{dst}, v{dst} row_ror:{rot} row_mask:0xf bank_mask:0xf")
    MN = TM + 16
    reduce_row(MN)
    a(f"v_mul_f32 v{MN}, {f2h(1.0/640.0)}, v{MN}")
    a(f"v_mov_b32 v{MN+1}, v{MN}")
    for i in range(20):
        a(f"v_pk_add_f32 {vr(XF+2*i,2)}, {vr(XF+2*i,2)}, {vr(MN,2)} neg_lo:[0,1] neg_hi:[0,1]")
    for k in range(4):
        a(f"v_pk_mul_f32 {vr(SM+2*k,2)}, {vr(XF+2*k,2)}, {vr(XF+2*k,2)}")
    for i in range(4, 20):
        k = i % 4
        a(f"v_pk_fma_f32 {vr(SM+2*k,2)}, {vr(XF+2*i,2)}, {vr(XF+2*i,2)}, {vr(SM+2*k,2)}")
    reduce_row(MN)
    a(f"v_mov_b32 v{MN+1}, {f2h(1e-5)}")
    a(f"v_fmac_f32 v{MN+1}, {f2h(1.0/640.0)}, v{MN}")
    a(f"v_rsq_f32 v{MN}, v{MN+1}")
    a("s_nop 0")
    a(f"v_mov_b32 v{MN+1}, v{MN}")
    for i in range(20):
        a(f"v_pk_mul_f32 {vr(XF+2*i,2)}, {vr(XF+2*i,2)}, {vr(MN,2)}")
    for i in range(20):
        a(f"v_cvt_pk_bf16_f32 v{XR+i}, v{XF+2*i}, v{XF+2*i+1}")
    if opt.lnprof: stamp(a, opt, 4)
    for i in range(5):
        a(f"ds_write_b128 v{TM+4}, {vr(XR+4*i,4)} offset:{i*256}")
    a(f"s_lshl_b32 s{sT0}, s{sWAVE}, 2")
    a(f"s_add_u32 s{sT1}, s{sT0}, {LF_BASE}")
    a(f"s_xor_b32 s{sT0}, s{sT0}, 4")
    a(f"s_add_u32 s{sT0}, s{sT0}, {LF_BASE}")
    a("s_waitcnt lgkmcnt(0)")
    lds_set(a, f"s{sT1}")
    lds_spin(a, opt, f"s{sT0}")
    if opt.lnprof: stamp(a, opt, 5)
    for i in range(5):
        a(f"ds_read_b64_tr_b16 {vr(XF+4*i,2)}, v{TM+5} offset:{i*128}")
        a(f"ds_read_b64_tr_b16 {vr(XF+4*i+2,2)}, v{TM+5} offset:{i*128+4*LN_ROW}")
    for i in range(5):
        a(f"s_waitcnt lgkmcnt({8-2*i})")
        a(f"s_add_u32 s{sT0}, s{sSTEP}, {i*4096}")
        a.vmem(f"buffer_store_dwordx4 {vr(XF+4*i,4)}, v{TM+6}, {srd(sH)}, s{sT0} offen {opt.hbits}", "h")
    stamp(a, opt, 2)
    a("s_waitcnt vmcnt(5)")
    a(f"v_readfirstlane_b32 s{sNONCE}, v{vPOLL}")
    nonce_spin(a, opt)
    a.wait_vm0()
    a(f"s_mul_i32 s{sT0}, s{sWG}, {opt.hstride}")
    a(f"s_lshl_b32 s{sT1}, s{sWAVE}, 2")
    a(f"s_add_u32 s{sT0}, s{sT0}, s{sT1}")
    flag_store(a, sT0)
    a(f"s_lshl_b32 s{sT0}, s{sWAVE}, 2")
    a(f"s_add_u32 s{sT0}, s{sT0}, {LF_BASE + 8}")
    lds_set(a, f"s{sT0}")
    stamp(a, opt, 3)
    if opt.prio: a("s_setprio 0")
    a.ln_done = True
    a("s_branch L_roles_done")

    a.label("L_loader")
    a.vm = []
    if opt.cpf:
        a(f"s_cmp_lg_u32 s{sWAVE}, {opt.cpfw}")
        a("s_cbranch_scc1 L_nocpf")
        a(f"s_lshl_b32 s{sT0}, s{sJ}, 11")
        a(f"v_lshlrev_b32 v{vX}, 4, v{vLANE}")
        a(f"v_add_u32 v{vX}, s{sT0}, v{vX}")
        for h in range(2):
            if h: a(f"v_add_u32 v{vX}, 1024, v{vX}")
            a(f"v_cmp_gt_u32 vcc, L_codeend-{KN}-20, v{vX}")
            a(f"s_and_saveexec_b64 s[{sP}:{sP+1}], vcc")
            a(f"s_cbranch_execz L_cpf{h}")
            a(f"global_load_dwordx4 {vr(240+4*h,4)}, v{vX}, s[94:95]")
            a.label(f"L_cpf{h}")
            a(f"s_mov_b64 exec, s[{sP}:{sP+1}]")
        a.label("L_nocpf")
    a(f"v_lshlrev_b32 v{vX}, 2, v{vLANE}")
    a(f"v_add_u32 v{vX}, {LF_BASE}, v{vX}")
    a(f"v_mov_b32 v{vX+1}, 0")
    a(f"ds_write_b32 v{vX}, v{vX+1}")
    a("s_waitcnt lgkmcnt(0)")
    if opt.prof: a(f"s_mov_b32 s{sPROF}, s{sP}")
    make_srd(a, sW1, 6, S * F * 2)
    make_srd(a, sD, 16, 256)
    a(f"s_cmp_lg_u32 s{sWG}, 0")
    a("s_cbranch_scc1 L_nononce")
    a(f"s_cmp_lg_u32 s{sWAVE}, 3")
    a("s_cbranch_scc1 L_nononce")
    a(f"s_memrealtime s[{sP}:{sP+1}]")
    a("s_waitcnt lgkmcnt(0)")
    a(f"s_or_b32 s{sT0}, s{sP}, 1")
    a(f"v_mov_b32 v{vT2}, s{sT0}")
    a(f"v_mov_b32 v{vT}, 0")
    a(f"s_mov_b64 s[{sP}:{sP+1}], exec")
    a("s_mov_b64 exec, 1")
    a(f"buffer_store_dword v{vT2}, v{vT}, {srd(sD)}, 0 offen sc1")
    a(f"s_mov_b64 exec, s[{sP}:{sP+1}]")
    a.label("L_nononce")
    a(f"s_cmp_ge_u32 s{sJ}, s{sJLIM}")
    a("s_cbranch_scc1 L_loader_idle")
    for i in range(2): w1_dma(i)
    a("s_barrier")
    tr_addr(sM0B)
    if opt.hold:
        lds_spin(a, opt, LF_BASE + 8)
        lds_spin(a, opt, LF_BASE + 12)
    w1_stream(2, opt.dp)
    a(f"s_mov_b32 s{sNONCE}, 0")
    nonce_spin(a, opt)
    a("s_branch L_w1_ready")
    a.label("L_loader_idle")
    a.vm = []
    a("s_barrier")
    if opt.pfwait:
        lds_spin(a, opt, LF_BASE + 8)
        lds_spin(a, opt, LF_BASE + 12)
    if opt.pf == 1:
        make_srd(a, sW2, 10, F * S * 2)
        a(f"s_lshl_b32 s{sT0}, s{sIDLE}, 1")
        a(f"s_add_u32 s{sT0}, s{sT0}, s{sWAVE}")
        a(f"s_sub_u32 s{sT0}, s{sT0}, 2")
        a(f"s_lshl_b32 s{sT0}, s{sT0}, 10")
        a(f"v_lshlrev_b32 v{vX}, 4, v{vLANE}")
        inc = 80 * 1024
        for k in range(87):
            o = vRING + (k % 20) * 4
            a.vmem(f"buffer_load_dwordx4 {vr(o,4)}, v{vX}, {srd(sW2)}, s{sT0} offen {opt.pfbits}", f"pf{k}")
            a(f"s_add_u32 s{sT0}, s{sT0}, {inc}")
            if k >= opt.pfdepth: a.wait_vm(f"pf{k-opt.pfdepth}")
    a(f"s_mov_b32 s{sNONCE}, 0")
    nonce_spin(a, opt)
    a("s_branch L_nogemm1")

    a.label("L_roles_done")
    a.vm = []
    a(f"s_cmp_ge_u32 s{sJ}, s{sJLIM}")
    a("s_cbranch_scc1 L_nogemm1")
    a.vm = []
    tr_addr(sM0B)
    for i in range(opt.nearly): a.vm.append(f"w1_{i}")
    a.vm.append("flag")
    w1_stream(opt.nearly, opt.dpl)

    def common_setup():
        make_srd(a, sH, 18, H_BYTES, WS_H)
        make_srd(a, sF, 18, FLAG_BYTES, WS_FLAG)
        make_srd(a, sB1, 8, F * 2)
        make_srd(a, sW2, 10, F * S * 2)
        make_srd(a, sB2, 12, S * 2)
        make_srd(a, sO, 14, S * D * 2)
        make_srd(a, sG, 18, G_BYTES, WS_G)
        a(f"v_lshrrev_b32 v{vT}, 4, v{vLANE}")
        a(f"v_lshlrev_b32 v{vT}, 3, v{vT}")
        a(f"s_and_b32 s{sT0}, s{sWAVE}, 1")
        a(f"s_lshl_b32 s{sT0}, s{sT0}, 6")
        a(f"s_lshl_b32 s{sT1}, s{sFT}, 7")
        a(f"s_add_u32 s{sT0}, s{sT0}, s{sT1}")
        a.vmem(f"buffer_load_dwordx2 {vr(vB1,2)}, v{vT}, {srd(sB1)}, s{sT0} offen", "b")
        a.vmem(f"buffer_load_dwordx2 {vr(vB1+2,2)}, v{vT}, {srd(sB1)}, s{sT0} offen offset:32", "b")
        a(f"v_and_b32 v{vT}, 15, v{vLANE}")
        a(f"v_lshlrev_b32 v{vT}, 1, v{vT}")
        a(f"s_lshl_b32 s{sT0}, s{sST}, 7")
        a(f"s_lshl_b32 s{sT1}, s{sWAVE}, 5")
        a(f"s_add_u32 s{sT0}, s{sT0}, s{sT1}")
        a.vmem(f"buffer_load_ushort v{vB2}, v{vT}, {srd(sB2)}, s{sT0} offen", "b")
        dma_addr(a, S * 2, sST)
        a(f"s_mul_i32 s{sWB}, s{sWAVE}, {448*S*2}")
        tr_addr(sM0B)
        a(f"s_sub_u32 s{sT0}, s{sUP}, s{sM0B}")
        for t in range(4):
            a(f"v_add_u32 v{vTRU+t}, s{sT0}, v{vTR+t}")
        a(f"v_lshlrev_b32 v{vL0}, 4, v{vLANE}")
        a(f"v_add_u32 v{vL1}, 65536, v{vL0}")
        a(f"v_add_u32 v{vL2}, 131072, v{vL0}")

    a.label("L_w1_ready")
    a.vm = []
    stamp(a, opt, 4)
    common_setup()
    a(f"s_mul_i32 s{sT0}, s{sDT1}, 5120")
    a(f"v_add_u32 v{vA}, s{sT0}, v{vL0}")
    a(f"v_add_u32 v{vA2}, 4096, v{vA}")
    a(f"s_lshl_b32 s{sT0}, s{sWAVE}, 6")
    a(f"v_add_u32 v{vX}, s{sT0}, v{vLANE}")
    a(f"v_mul_u32_u24 v{vX}, {opt.hstride}, v{vX}")
    poll(a, opt, vX, 2, None, opt.sleeph, opt.preh)
    a("s_barrier")
    stamp(a, opt, 5)

    def a_loads(srdn, step, nsteps, s_rot):
        slot = step % NS
        step_off(a, sOFF, sSTEP, s_rot, step, nsteps, 40960)
        return [f"buffer_load_dwordx4 {vr(ring(slot,t),4)}, v{vA if t < 4 else vA2}, {srd(srdn)}, s{sOFF} offen offset:{(t*1024) if t < 4 else 0} sc1" for t in range(5)]

    def main_loop(srdn, nsteps, s_rot, tagp, mfma, stamp0, tail, nuni):
        for st in range(opt.depth):
            for o, ins in enumerate(a_loads(srdn, st, nsteps, s_rot)): a.vmem(ins, f"{tagp}{st}_{o}")
        for st in range(nuni):
            nx = st + opt.depth
            nxt = a_loads(srdn, nx, nsteps, s_rot) if nx < nsteps else None
            a.wait_vm(f"{tagp}{st}_4")
            if st == 0 and stamp0 is not None: stamp(a, opt, stamp0)
            for o in range(5):
                if nxt: a.vmem(nxt[o], f"{tagp}{nx}_{o}")
                for i in range(4): mfma(st, o, i, st % NS)
                if tail: tail(st, o)

    def tile_tail(nsteps, tagp, first, last, frag_of, mfma_tile, write_tile, extra):
        ic = [0]
        done_at = {}
        queue = []
        extra = list(extra)
        def emit(fn):
            fn(); ic[0] += 1
        def filler():
            if queue and ic[0] - done_at[queue[0]] >= 9:
                t = queue.pop(0); emit(lambda: write_tile(t)); return
            if extra: emit(extra.pop(0))
        tiles = list(first) + list(last)
        for i in range(0, len(tiles), 2):
            pair = tiles[i:i + 2]
            for t in pair:
                for st in (nsteps - 2, nsteps - 1): a.wait_vm(f"{tagp}{st}_{frag_of(t)}")
            for st in (nsteps - 2, nsteps - 1):
                for t in pair:
                    emit(lambda: mfma_tile(st, t))
                    if st == nsteps - 1:
                        done_at[t] = ic[0]
                        if t in first: queue.append(t)
                    filler()
        while extra: emit(extra.pop(0))
        while queue:
            while ic[0] - done_at[queue[0]] < 9: emit(lambda: a("s_nop 0"))
            t = queue.pop(0); emit(lambda: write_tile(t))

    a(f"s_mul_i32 s{sSTEP}, s{sWAVE}, {16*40960}")
    def mfma1(st, nt, mt, slot):
        c = "0" if st == 0 else vr(acc1(mt, nt), 4)
        a(f"v_mfma_f32_16x16x32_bf16 {vr(acc1(mt,nt),4)}, {ar(wfrag(st,mt),4)}, {vr(ring(slot,nt),4)}, {c}")
    parts13 = w2_dma_parts(a, 0) if opt.t13 else []
    def tail1(st, o):
        if st == 13 and parts13:
            if o == 0: parts13[0]()
            else: parts13[o]()
    main_loop(sH, 16, sROT1, "h", mfma1, 6, tail1, 14)

    a(f"s_mov_b32 s100, {f2h(C1)}"); a(f"s_mov_b32 s101, {f2h(C1)}")
    a(f"v_mov_b32 v{vC0}, {f2h(C0)}"); a(f"v_mov_b32 v{vC0+1}, {f2h(C0)}")
    def lds_ref(addr):
        if addr < 65536: return vL0, addr
        if addr < 131072: return vL1, addr - 65536
        return vL2, addr - 131072
    def owner1(p, nt): return p + (0 if nt < 3 else 2)
    units = [(p, nt) for p in range(2) for nt in range(5)]
    def red1_addr(src, u):
        k = [x for x in units if owner1(*x) != src].index(u)
        return src * 32768 + 24576 + k * 2048 if k < 4 else 131072 + src * 8192 + (k - 4) * 2048
    saved_vm = list(a.vm)
    for w in range(4):
        if w < 3:
            a(f"s_cmp_lg_u32 s{sWAVE}, {w}")
            a(f"s_cbranch_scc1 L_ep1_{w+1}")
        a.vm = list(saved_vm)
        nis = [1 if opt.t13 else 0]
        def more(n, limit):
            for _ in range(n):
                if nis[0] < limit:
                    w2_dma(a, nis[0]); nis[0] += 1
        tl = [(2 * p + hf, nt) for nt in range(5) for p in range(2) for hf in range(2)]
        first = [t for t in tl if owner1(t[0] // 2, t[1]) != w]
        last = [t for t in tl if owner1(t[0] // 2, t[1]) == w]
        def wr1(t):
            vb, off = lds_ref(red1_addr(w, (t[0] // 2, t[1])) + (t[0] & 1) * 1024)
            a(f"ds_write_b128 v{vb}, {vr(acc1(*t),4)} offset:{off}")
        extra = []
        for _ in range(opt.tt):
            extra += w2_dma_parts(a, nis[0]); nis[0] += 1
        tile_tail(16, "h", first, last, lambda t: t[1], lambda st, t: mfma1(st, t[1], t[0], st % NS), wr1, extra)
        stamp(a, opt, 7)
        more(opt.e1, 6)
        a("s_waitcnt lgkmcnt(0)")
        a("s_barrier")
        own_u = [u for u in units if owner1(*u) == w]
        RT = vRING
        n = 0
        for u in own_u:
            for src in range(4):
                if src == w: continue
                for hf in range(2):
                    vb, off = lds_ref(red1_addr(src, u) + hf * 1024)
                    a(f"ds_read_b128 {vr(RT + n*4, 4)}, v{vb} offset:{off}")
                    n += 1
        a.wait_vm("b")
        for i in range(4):
            a(f"v_lshlrev_b32 v{BI+2*i}, 16, v{vB1+i}")
            a(f"v_and_b32 v{BI+2*i+1}, 0xffff0000, v{vB1+i}")
        for u in own_u:
            p, nt = u
            for hf in range(2):
                r = acc1(2*p+hf, nt)
                a(f"v_pk_add_f32 {vr(r,2)}, {vr(r,2)}, {vr(BI+4*hf,2)}")
                a(f"v_pk_add_f32 {vr(r+2,2)}, {vr(r+2,2)}, {vr(BI+4*hf+2,2)}")
        n = 0
        tot = len(own_u) * 6
        for u in own_u:
            p, nt = u
            for si in range(3):
                for hf in range(2):
                    a(f"s_waitcnt lgkmcnt({min(15, tot - n - 1)})")
                    r = acc1(2*p+hf, nt)
                    a(f"v_pk_add_f32 {vr(r,2)}, {vr(r,2)}, {vr(RT+n*4,2)}")
                    a(f"v_pk_add_f32 {vr(r+2,2)}, {vr(r+2,2)}, {vr(RT+n*4+2,2)}")
                    n += 1
        a("s_barrier")
        regs = []
        for u in own_u:
            p, nt = u
            for hf in range(2):
                r = acc1(2*p+hf, nt)
                regs += [r, r + 2]
        more(opt.e2, 10)
        gelu_pairs(a, regs, RT, fill=lambda: more(opt.e3, 10))
        a(f"s_lshl_b32 s{sT0}, s{sFT}, 1")
        a(f"s_add_u32 s{sT0}, s{sT0}, {w & 1}")
        a(f"s_mul_i32 s{sT0}, s{sT0}, 40960")
        a(f"s_mul_i32 s{sT1}, s{sDT1}, 5120")
        a(f"s_add_u32 s{sT0}, s{sT0}, s{sT1}")
        for i, u in enumerate(own_u):
            p, nt = u
            o = RT + 64 + 4 * i
            r0, r1 = acc1(2*p, nt), acc1(2*p+1, nt)
            a(f"v_cvt_pk_bf16_f32 v{o}, v{r0}, v{r0+1}")
            a(f"v_cvt_pk_bf16_f32 v{o+1}, v{r0+2}, v{r0+3}")
            a(f"v_cvt_pk_bf16_f32 v{o+2}, v{r1}, v{r1+1}")
            a(f"v_cvt_pk_bf16_f32 v{o+3}, v{r1+2}, v{r1+3}")
            a(f"s_add_u32 s{sT1}, s{sT0}, {nt*1024}")
            a.vmem(f"buffer_store_dwordx4 {vr(o,4)}, v{vL0}, {srd(sG)}, s{sT1} offen sc1", "g")
        stamp(a, opt, 8)
        more(opt.nb, 10)
        a.wait_vm("w2_3")
        if nis[0] >= 4:
            for st in range(4):
                w2_tr(a, st)
                if st % 2 == 1: a("s_waitcnt lgkmcnt(0)")
        if nis[0] == 10 and opt.nb2:
            for st in range(10, 10 + opt.nb2): w2_dma(a, st)
            nis[0] += opt.nb2
        a.wait_vm("g")
        a(f"s_lshl_b32 s{sT0}, s{sDT1}, 5")
        a(f"s_add_u32 s{sT0}, s{sT0}, s{sFT}")
        a(f"s_mul_i32 s{sT0}, s{sT0}, {opt.gstride}")
        a(f"s_add_u32 s{sT0}, s{sT0}, {FLAG_G + 4*w}")
        flag_store(a, sT0)
        stamp(a, opt, 9)
        assert nis[0] >= 4
        more(10, 10)
        more(4, 14)
        for st in range(4, 10):
            a.wait_vm(f"w2_{st}")
            w2_tr(a, st)
            if st % 2 == 1: a("s_waitcnt lgkmcnt(0)")
        a("s_branch L_pre2")
        if w < 3: a.label(f"L_ep1_{w+1}")

    a.label("L_nogemm1")
    a.vm = []
    common_setup()
    if opt.idlewait:
        a(f"s_lshl_b32 s{sT0}, s{sWAVE}, 6")
        a(f"v_add_u32 v{vX}, s{sT0}, v{vLANE}")
        a(f"v_mul_u32_u24 v{vX}, {opt.hstride}, v{vX}")
        poll(a, opt, vX, 2, None)
        if opt.idlewait > 1:
            a(f"s_sleep {opt.idlewait}")
    if opt.pf == 3:
        a(f"s_lshl_b32 s{sT0}, s{sIDLE}, 2")
        a(f"s_add_u32 s{sT0}, s{sT0}, s{sWAVE}")
        a(f"s_lshl_b32 s{sT0}, s{sT0}, 10")
        for k in range(44):
            o = vRING + (k % 16) * 4
            a.vmem(f"buffer_load_dwordx4 {vr(o,4)}, v{vL0}, {srd(sW2)}, s{sT0} offen {opt.pfbits}", f"pf{k}")
            a(f"s_add_u32 s{sT0}, s{sT0}, {160*1024}")
            if k >= opt.pfdepth: a.wait_vm(f"pf{k-opt.pfdepth}")
        a.wait_vm0()
    if opt.pf == 2:
        assert opt.p1 == 2 and opt.p2 == 1
        a(f"s_cmp_lt_u32 s{sJ}, 28")
        a("s_cbranch_scc1 L_nopf")
        a(f"s_sub_u32 s{sT0}, s{sJ}, 28")
        a(f"s_lshl_b32 s{sT0}, s{sT0}, 2")
        a(f"s_add_u32 s{sT0}, s{sT0}, s{sWAVE}")
        a(f"s_lshl_b32 s{sT0}, s{sT0}, 13")
        a(f"s_lshl_b32 s{sT1}, s{sXCD}, 9")
        a(f"s_add_u32 s{sT0}, s{sT0}, s{sT1}")
        a(f"v_lshrrev_b32 v{vX}, 5, v{vLANE}")
        a(f"v_lshlrev_b32 v{vX}, 12, v{vX}")
        a(f"v_and_b32 v{vX+1}, 31, v{vLANE}")
        a(f"v_lshlrev_b32 v{vX+1}, 4, v{vX+1}")
        a(f"v_add_u32 v{vX}, v{vX}, v{vX+1}")
        keep = list(a.vm)
        for k in range(54):
            o = vRING + (k % 16) * 4
            a.vmem(f"buffer_load_dwordx4 {vr(o,4)}, v{vX}, {srd(sW2)}, s{sT0} offen", f"pf{k}")
            a(f"s_add_u32 s{sT0}, s{sT0}, {16*8192}")
            if k >= opt.pfdepth: a.wait_vm(f"pf{k-opt.pfdepth}")
        a.wait_vm0()
        a.label("L_nopf")
        a.vm = keep
    for st in range(10): w2_dma(a, st)
    for st in range(4):
        a.wait_vm(f"w2_{st}")
        w2_tr(a, st)
        if st % 2 == 1: a("s_waitcnt lgkmcnt(0)")
    for st in range(10, 14): w2_dma(a, st)
    for st in range(4, 10):
        a.wait_vm(f"w2_{st}")
        w2_tr(a, st)
        if st % 2 == 1: a("s_waitcnt lgkmcnt(0)")

    a.label("L_pre2")
    a.wait_vm0()
    a("s_waitcnt lgkmcnt(0)")
    for st in range(10, 14):
        w2_tr(a, st)
        if st % 2 == 1: a("s_waitcnt lgkmcnt(0)")
    stamp(a, opt, 10)
    a(f"s_mul_i32 s{sT0}, s{sDT2}, 5120")
    a(f"v_add_u32 v{vA}, s{sT0}, v{vL0}")
    a(f"v_add_u32 v{vA2}, 4096, v{vA}")
    a(f"s_lshl_b32 s{sT0}, s{sDT2}, 5")
    a(f"s_mul_i32 s{sT1}, s{sWAVE}, 7")
    a(f"s_add_u32 s{sT0}, s{sT0}, s{sT1}")
    a(f"s_mul_i32 s{sT0}, s{sT0}, {opt.gstride}")
    a(f"s_add_u32 s{sT0}, s{sT0}, {FLAG_G}")
    a(f"v_lshrrev_b32 v{vX}, 2, v{vLANE}")
    a(f"v_mul_u32_u24 v{vX}, {opt.gstride}, v{vX}")
    a(f"v_and_b32 v{vT}, 3, v{vLANE}")
    a(f"v_lshlrev_b32 v{vT}, 2, v{vT}")
    a(f"v_add_u32 v{vX}, v{vX}, v{vT}")
    a(f"v_add_u32 v{vX}, s{sT0}, v{vX}")
    a(f"s_cmp_eq_u32 s{sWAVE}, 3")
    a(f"s_mov_b32 s{sP+3}, 0xffffff")
    a(f"s_cselect_b32 s{sP+2}, s{sP+3}, 0xfffffff")
    a(f"s_mov_b32 s{sP+3}, 0")
    poll(a, opt, vX, 1, sP + 2, opt.sleep, opt.preg)
    stamp(a, opt, 11)
    a(f"s_mul_i32 s{sSTEP}, s{sWAVE}, {14*40960}")
    def mfma2(st, mt, nt, slot):
        c = "0" if st == 0 else vr(acc2(mt, nt), 4)
        a(f"v_mfma_f32_16x16x32_bf16 {vr(acc2(mt,nt),4)}, {vr(ring(slot,mt),4)}, {ar(wfrag(st,nt),4)}, {c}")
    main_loop(sG, 14, sROT2, "g", mfma2, 12, None, 12)
    saved_vm2 = list(a.vm)
    a(f"v_and_b32 v{vT}, 15, v{vLANE}")
    a(f"s_lshl_b32 s{sT0}, s{sWAVE}, 4")
    a(f"v_add_u32 v{vT}, s{sT0}, v{vT}")
    a(f"v_mul_u32_u24 v{vA}, 1280, v{vT}")
    a(f"v_lshrrev_b32 v{vT}, 4, v{vLANE}")
    a(f"v_lshlrev_b32 v{vT}, 3, v{vT}")
    a(f"v_add_u32 v{vA}, v{vA}, v{vT}")
    a(f"s_mul_i32 s{sT0}, s{sST}, {64*1280}")
    a(f"s_mul_i32 s{sT1}, s{sDT2}, 160")
    a(f"s_add_u32 s{sOFF}, s{sT0}, s{sT1}")
    a(f"v_lshlrev_b32 v{vC0}, 16, v{vB2}")
    a(f"v_lshlrev_b32 v{vC0+1}, 16, v{vB2}")
    a(f"v_sub_u32 v{vA2}, v{vA}, v{vT}")
    a(f"v_bfe_u32 v{vT}, v{vLANE}, 4, 1")
    a(f"v_lshlrev_b32 v{vT}, 5, v{vT}")
    a(f"v_add_u32 v{vA2}, v{vA2}, v{vT}")
    a(f"v_bfe_u32 v{vT}, v{vLANE}, 5, 1")
    a(f"v_lshlrev_b32 v{vT}, 4, v{vT}")
    a(f"v_add_u32 v{vA2}, v{vA2}, v{vT}")
    def red2_addr(src, nt, mt):
        k = [x for x in range(4) if x != src].index(nt)
        return src * 32768 + (k * 5 + mt) * 1024
    for w in range(4):
        if w < 3:
            a(f"s_cmp_lg_u32 s{sWAVE}, {w}")
            a(f"s_cbranch_scc1 L_ep2_{w+1}")
        a.vm = list(saved_vm2)
        tl = [(mt, nt) for mt in range(5) for nt in range(4)]
        def wr2(t):
            vb, off = lds_ref(red2_addr(w, t[1], t[0]))
            a(f"ds_write_b128 v{vb}, {vr(acc2(*t),4)} offset:{off}")
        tile_tail(14, "g", [t for t in tl if t[1] != w], [t for t in tl if t[1] == w], lambda t: t[0],
                  lambda st, t: mfma2(st, t[0], t[1], st % NS), wr2, [])
        stamp(a, opt, 13)
        a("s_waitcnt lgkmcnt(0)")
        a("s_barrier")
        RT = vRING
        n = 0
        for mt in range(5):
            for src in range(4):
                if src == w: continue
                vb, off = lds_ref(red2_addr(src, w, mt))
                a(f"ds_read_b128 {vr(RT+n*4,4)}, v{vb} offset:{off}")
                n += 1
        n = 0
        for mt in range(5):
            r = acc2(mt, w)
            for si in range(3):
                a(f"s_waitcnt lgkmcnt({14 - n})")
                a(f"v_pk_add_f32 {vr(r,2)}, {vr(r,2)}, {vr(RT+n*4,2)}")
                a(f"v_pk_add_f32 {vr(r+2,2)}, {vr(r+2,2)}, {vr(RT+n*4+2,2)}")
                n += 1
            a(f"v_pk_add_f32 {vr(r,2)}, {vr(r,2)}, {vr(vC0,2)}")
            a(f"v_pk_add_f32 {vr(r+2,2)}, {vr(r+2,2)}, {vr(vC0,2)}")
            o = RT + 64 + 2 * mt
            a(f"v_cvt_pk_bf16_f32 v{o}, v{r}, v{r+1}")
            a(f"v_cvt_pk_bf16_f32 v{o+1}, v{r+2}, v{r+3}")
            if not opt.wide or mt == 4:
                a(f"buffer_store_dwordx2 {vr(o,2)}, v{vA}, {srd(sO)}, s{sOFF} offen offset:{mt*32} {opt.obits}")
            elif mt % 2 == 1:
                a("s_nop 1")
                a(f"v_permlane16_swap_b32 v{o-2}, v{o}")
                a(f"v_permlane16_swap_b32 v{o-1}, v{o+1}")
                a(f"buffer_store_dwordx4 {vr(o-2,4)}, v{vA2}, {srd(sO)}, s{sOFF} offen offset:{(mt-1)*32} {opt.obits}")
        a("s_branch L_fin")
        if w < 3: a.label(f"L_ep2_{w+1}")
    a.label("L_fin")
    if opt.probe >= 0:
        if opt.probe == 14:
            a("s_waitcnt vmcnt(0)")
            stamp(a, opt, 14)
        a(f"s_cmp_lg_u32 s{sWG}, {opt.probewg}")
        a("s_cbranch_scc1 L_done")
        a(f"s_cmp_lg_u32 s{sWAVE}, {opt.probew}")
        a("s_cbranch_scc1 L_done")
        ref = sNONCE if opt.probeabs else (sPROF + 2 if opt.probe0 >= 0 else 96)
        a(f"s_sub_u32 s{sT1}, s{sPROF+1}, s{ref}")
        if opt.probecyc: a(f"s_lshr_b32 s{sT1}, s{sT1}, 2")
        else: a(f"s_lshl_b32 s{sT1}, s{sT1}, 2")
        a(f"s_add_u32 s{sT1}, s{sT1}, 4000")
        a.label("L_probe")
        a(f"s_memrealtime s[{sP}:{sP+1}]")
        a("s_waitcnt lgkmcnt(0)")
        a(f"s_sub_u32 s{sT0}, s{sP}, s96")
        a(f"s_cmp_lt_u32 s{sT0}, s{sT1}")
        a("s_cbranch_scc1 L_probe")
    if opt.pad:
        a.label("L_pad")
        a(f"s_memrealtime s[{sP}:{sP+1}]")
        a("s_waitcnt lgkmcnt(0)")
        a(f"s_sub_u32 s{sT0}, s{sP}, s96")
        a(f"s_cmp_lt_u32 s{sT0}, {opt.pad}")
        a("s_cbranch_scc1 L_pad")
    if opt.prof:
        a("s_waitcnt vmcnt(0)")
        stamp(a, opt, 14)
        make_srd(a, sX, 18, 65536, WS_PROF)
        a(f"s_lshl_b32 s{sT0}, s{sWG}, 2")
        a(f"s_add_u32 s{sT0}, s{sT0}, s{sWAVE}")
        a(f"s_lshl_b32 s{sT0}, s{sT0}, 6")
        a(f"v_mov_b32 v{vT}, s{sT0}")
        a("s_mov_b64 exec, 1")
        for i in range(15):
            a(f"v_mov_b32 v100, s{sPROF+i}")
            a(f"buffer_store_dword v100, v{vT}, {srd(sX)}, 0 offen offset:{4*i}")
            a("s_nop 1")
        a("s_waitcnt vmcnt(0)")
    a.label("L_done")
    a("s_endpgm")
    a.label("L_codeend")
    a.raw('.section .rodata,"a"')
    a.raw(".p2align 6")
    a.raw(f".amdhsa_kernel {KN}")
    for l in ["next_free_vgpr 512", "next_free_sgpr 102", "accum_offset 256", "group_segment_fixed_size 0",
              "kernarg_size 64", "user_sgpr_count 2", "user_sgpr_kernarg_segment_ptr 1",
              "system_sgpr_workgroup_id_x 1", "float_denorm_mode_32 3"]:
        a.raw(f"  .amdhsa_{l}")
    a.raw(".end_amdhsa_kernel")
    return "\n".join(a.L) + "\n"

def parse(argv=None):
    ap = argparse.ArgumentParser()
    ap.add_argument("-o", default="standalone__mixer_token_mlp__prompt.s")
    ap.add_argument("--prof", type=int, default=0)
    ap.add_argument("--rot", type=int, default=3)
    ap.add_argument("--spin", type=int, default=20000)
    ap.add_argument("--sleep", type=int, default=24)
    ap.add_argument("--depth", type=int, default=3)
    ap.add_argument("--lnprof", type=int, default=0)
    ap.add_argument("--hbits", default="sc1")
    ap.add_argument("--pfwait", type=int, default=1)
    ap.add_argument("--hold", type=int, default=0)
    ap.add_argument("--probe", type=int, default=-1)
    ap.add_argument("--probe0", type=int, default=-1)
    ap.add_argument("--probecyc", type=int, default=0)
    ap.add_argument("--probeabs", type=int, default=0)
    ap.add_argument("--probewg", type=int, default=100)
    ap.add_argument("--probew", type=int, default=2)
    ap.add_argument("--rot8", type=int, default=1)
    ap.add_argument("--cpf", type=int, default=1)
    ap.add_argument("--cpfw", type=int, default=3)
    ap.add_argument("--wide", type=int, default=1)
    ap.add_argument("--idlewait", type=int, default=0)
    ap.add_argument("--sleeph", type=int, default=8)
    ap.add_argument("--preh", type=int, default=0)
    ap.add_argument("--preg", type=int, default=0)
    ap.add_argument("--nta", type=int, default=0)
    ap.add_argument("--ntb", type=int, default=0)
    ap.add_argument("--t13", type=int, default=1)
    ap.add_argument("--tt", type=int, default=2)
    ap.add_argument("--e2", type=int, default=0)
    ap.add_argument("--e3", type=int, default=0)
    ap.add_argument("--nb2", type=int, default=0)
    ap.add_argument("--e1", type=int, default=1)
    ap.add_argument("--nb", type=int, default=2)
    ap.add_argument("--nearly", type=int, default=3)
    ap.add_argument("--dpl", type=int, default=5)
    ap.add_argument("--dp", type=int, default=4)
    ap.add_argument("--p1", type=int, default=1)
    ap.add_argument("--p2", type=int, default=1)
    ap.add_argument("--rota1", type=int, default=0)
    ap.add_argument("--rota2", type=int, default=0)
    ap.add_argument("--xbits", default="nt")
    ap.add_argument("--w1bits", default="")
    ap.add_argument("--w2bits", default="")
    ap.add_argument("--pfbits", default="")
    ap.add_argument("--pfdepth", type=int, default=8)
    ap.add_argument("--prio", type=int, default=3)
    ap.add_argument("--delay", type=int, default=0)
    ap.add_argument("--hstride", type=int, default=8)
    ap.add_argument("--gstride", type=int, default=256)
    ap.add_argument("--pf", type=int, default=1)
    ap.add_argument("--pad", type=int, default=0)
    ap.add_argument("--obits", default="sc1")
    return ap.parse_args(argv)

if __name__ == "__main__":
    opt = parse()
    open(opt.o, "w").write(gen(opt))
```

```python
import argparse, struct

S, D, F = 2048, 640, 1728
KN = "standalone__mixer_token_mlp__prompt_kernel"

WS_H = 0
H_BYTES = 64 * 40 * 1024
WS_G = 0x300000
G_BYTES = 54 * 40 * 1024
WS_FLAG = 0x600000
FLAG_H = 0
FLAG_G = 0x10000
FLAG_BYTES = 0x40000
WS_PROF = 0x700000

LDS_BYTES = 163840
LN_BASE = 131072
LN_ROW = 1344
LF_BASE = 141824
P0_BASE = [0, 49152, 98304, 122880]

sWG = 2
sX, sW1, sW2, sH, sG, sO, sF, sB1, sB2, sD = 20, 24, 28, 32, 36, 40, 44, 48, 52, 56
sWAVE, sXCD, sJ, sFT, sDT1, sST, sDT2, sNONCE = 60, 61, 62, 63, 64, 65, 66, 67
sT0, sT1, sT2, sT3, sT4, sT5 = 68, 69, 70, 71, 72, 73
sROT1, sROT2, sSTEP, sOFF = 74, 75, 76, 77
sM0B, sSPIN = 78, 79
sP = 80
sPROF = 84
sUP = 99
sJLIM, sIDLE = 100, 101
sWB = 3

vTID, vLANE = 0, 1
vTR = 2
vA, vA2, vDMA, vT2 = 6, 7, 8, 9
vB1 = 10
vB2, vT = 14, 15
vACC = 16
vRING = 96
vTRU = 176
vL0, vL1, vL2 = 180, 181, 182
vC0 = 184
BI = 186
vPOLL = 194
vX = 196
vPQ = 208
vDM = 200

def srd(n): return f"s[{n}:{n+3}]"
def vr(n, c=1): return f"v{n}" if c == 1 else f"v[{n}:{n+c-1}]"
def ar(n, c=1): return f"a{n}" if c == 1 else f"a[{n}:{n+c-1}]"
def f2h(x): return "0x%08x" % struct.unpack("<I", struct.pack("<f", x))[0]
C0 = -2.0 * 0.7978845608028654 * 1.4426950408889634
C1 = C0 * 0.044715

class Asm:
    def __init__(self):
        self.L = []; self.vm = []; self.uid = 0
    def __call__(self, s): self.L.append("    " + s)
    def label(self, s): self.L.append(s + ":")
    def raw(self, s): self.L.append(s)
    def c(self, s): self.L.append("    ; " + s)
    def vmem(self, s, tag):
        self(s); self.vm.append(tag)
    def wait_vm(self, tag):
        hits = [i for i, t in enumerate(self.vm) if t == tag]
        if not hits: return
        n = len(self.vm) - 1 - hits[-1]
        self(f"s_waitcnt vmcnt({min(n, 63)})")
        self.vm = self.vm[hits[-1] + 1:]
    def wait_vm0(self):
        self("s_waitcnt vmcnt(0)"); self.vm = []
    def newlabel(self, p):
        self.uid += 1
        return f"L_{p}_{self.uid}"

def acc1(mt, nt): return vACC + (mt * 5 + nt) * 4
def acc2(mt, nt): return vACC + (mt * 4 + nt) * 4
def wfrag(step, t): return step * 16 + t * 4

def stamp(a, opt, idx, force=False):
    if opt.probe >= 0:
        ins = "s_memtime" if opt.probecyc else "s_memrealtime"
        if idx == opt.probe:
            a(f"{ins} s[{sP}:{sP+1}]")
            a("s_waitcnt lgkmcnt(0)")
            a(f"s_mov_b32 s{sPROF+1}, s{sP}")
        if idx == opt.probe0:
            a(f"{ins} s[{sP}:{sP+1}]")
            a("s_waitcnt lgkmcnt(0)")
            a(f"s_mov_b32 s{sPROF+2}, s{sP}")
        return
    if opt.lnprof and idx in (4, 5) and getattr(a, "ln_done", False): return
    if opt.prof:
        a(f"s_mem{'time' if opt.prof == 2 else 'realtime'} s[{sP}:{sP+1}]")
        a("s_waitcnt lgkmcnt(0)")
        a(f"s_mov_b32 s{sPROF+idx}, s{sP}")

def make_srd(a, n, lo, size, add=0):
    if add:
        a(f"s_add_u32 s{n}, s{lo}, {add}")
        a(f"s_addc_u32 s{n+1}, s{lo+1}, 0")
        a(f"s_and_b32 s{n+1}, s{n+1}, 0xffff")
    else:
        a(f"s_mov_b32 s{n}, s{lo}")
        a(f"s_and_b32 s{n+1}, s{lo+1}, 0xffff")
    a(f"s_mov_b32 s{n+2}, {size}")
    a(f"s_mov_b32 s{n+3}, 0x20000")

def nonce_spin(a, opt):
    lp = a.newlabel("nonce"); dn = a.newlabel("nonced")
    a(f"s_cmp_lg_u32 s{sNONCE}, 0")
    a(f"s_cbranch_scc1 {dn}")
    a(f"s_mov_b32 s{sSPIN}, 0")
    a(f"v_mov_b32 v{vT}, 0")
    a.label(lp)
    a(f"buffer_load_dword v{vT2}, v{vT}, {srd(sD)}, 0 offen sc1")
    a("s_waitcnt vmcnt(0)")
    a(f"v_readfirstlane_b32 s{sNONCE}, v{vT2}")
    a(f"s_add_u32 s{sSPIN}, s{sSPIN}, 1")
    a(f"s_cmp_lg_u32 s{sNONCE}, 0")
    a(f"s_cbranch_scc1 {dn}")
    a(f"s_cmp_lt_u32 s{sSPIN}, {opt.spin}")
    a(f"s_cbranch_scc1 {lp}")
    a.label(dn)

def lds_set(a, addr_sgpr_or_imm):
    a(f"v_mov_b32 v{vT}, {addr_sgpr_or_imm}")
    a(f"v_mov_b32 v{vT2}, 1")
    a(f"s_mov_b64 s[{sP}:{sP+1}], exec")
    a("s_mov_b64 exec, 1")
    a(f"ds_write_b32 v{vT}, v{vT2}")
    a(f"s_mov_b64 exec, s[{sP}:{sP+1}]")

def lds_spin(a, opt, addr):
    lp = a.newlabel("lspin"); dn = a.newlabel("lspun")
    a(f"v_mov_b32 v{vT}, {addr}")
    a(f"s_mov_b32 s{sSPIN}, 0")
    a.label(lp)
    a(f"ds_read_b32 v{vT2}, v{vT}")
    a("s_waitcnt lgkmcnt(0)")
    a(f"v_readfirstlane_b32 s{sP}, v{vT2}")
    a(f"s_add_u32 s{sSPIN}, s{sSPIN}, 1")
    a(f"s_cmp_lg_u32 s{sP}, 0")
    a(f"s_cbranch_scc1 {dn}")
    a(f"s_cmp_lt_u32 s{sSPIN}, {opt.spin * 8}")
    a(f"s_cbranch_scc1 {lp}")
    a.label(dn)

def dma_addr(a, stride, s_tile):
    a(f"v_lshrrev_b32 v{vT}, 3, v{vLANE}")
    a(f"v_lshrrev_b32 v{vT2}, 1, v{vT}")
    a(f"v_lshlrev_b32 v{vT2}, 1, v{vT2}")
    a(f"v_and_b32 v{vDM}, 7, v{vLANE}")
    a(f"v_xor_b32 v{vDM}, v{vDM}, v{vT2}")
    a(f"v_lshlrev_b32 v{vDM}, 4, v{vDM}")
    a(f"v_mul_u32_u24 v{vT}, {stride}, v{vT}")
    a(f"v_add_u32 v{vDM}, v{vDM}, v{vT}")
    a(f"s_lshl_b32 s{sT0}, s{s_tile}, 7")
    a(f"v_add_u32 v{vDM}, s{sT0}, v{vDM}")
    for b in range(1, 4):
        a(f"v_add_u32 v{vDM+b}, {b*(8*stride-1024)}, v{vDM}")

def step_off(a, dst, s_base, s_rot, i, nsteps, bytes_per_step):
    a(f"s_add_u32 s{sT4}, s{s_rot}, {i}")
    a(f"s_cmp_ge_u32 s{sT4}, {nsteps}")
    a(f"s_cselect_b32 s{dst}, {nsteps}, 0")
    a(f"s_sub_u32 s{sT4}, s{sT4}, s{dst}")
    a(f"s_mul_i32 s{sT4}, s{sT4}, {bytes_per_step}")
    a(f"s_add_u32 s{dst}, s{sT4}, s{s_base}")

def dma_step(a, srdn, stride, s_rowbase, s_rot, step, nsteps, s_lds, lds_off, tag, bits=""):
    a(f"s_add_u32 m0, s{s_lds}, {lds_off}")
    step_off(a, sOFF, s_rowbase, s_rot, step, nsteps, 32 * stride)
    for blk in range(4):
        a.vmem(f"buffer_load_dwordx4 v{vDM+blk}, {srd(srdn)}, s{sOFF} offen offset:{blk*1024} {bits} lds", tag)

def tr_step(a, vbase, off, step):
    for t in range(4):
        w = wfrag(step, t)
        a(f"ds_read_b64_tr_b16 {ar(w,2)}, v{vbase+t} offset:{off}")
        a(f"ds_read_b64_tr_b16 {ar(w+2,2)}, v{vbase+t} offset:{off+2048}")

def poll(a, opt, vaddr, nd, lanes, sleep=None, pre=0, nload=1):
    if sleep is None: sleep = opt.sleep
    if pre: a(f"s_sleep {pre}")
    lp = a.newlabel("poll"); dn = a.newlabel("polled")
    a(f"s_mov_b32 s{sSPIN}, 0")
    a.label(lp)
    ld = {1: "dword", 2: "dwordx2", 4: "dwordx4"}[nd]
    for k in range(nload):
        a(f"buffer_load_{ld} {vr(vPQ + 4*k, nd)}, v{vaddr}, {srd(sF)}, 0 offen offset:{k*1024} sc1")
    a("s_waitcnt vmcnt(0)")
    first = True
    for k in range(nload):
        for i in range(nd):
            if first:
                a(f"v_cmp_ne_u32 vcc, s{sNONCE}, v{vPQ+4*k+i}"); first = False
            else:
                a(f"v_cmp_ne_u32 s[{sP}:{sP+1}], s{sNONCE}, v{vPQ+4*k+i}")
                a(f"s_or_b64 vcc, vcc, s[{sP}:{sP+1}]")
    if lanes is not None:
        a(f"s_and_b64 vcc, vcc, s[{lanes}:{lanes+1}]")
    a(f"s_add_u32 s{sSPIN}, s{sSPIN}, 1")
    a("s_cmp_eq_u64 vcc, 0")
    a(f"s_cbranch_scc1 {dn}")
    if sleep: a(f"s_sleep {sleep}")
    a(f"s_cmp_lt_u32 s{sSPIN}, {opt.spin}")
    a(f"s_cbranch_scc1 {lp}")
    a.label(dn)
    a.vm = []

def flag_store(a, s_index_bytes):
    a(f"v_mov_b32 v{vT}, s{s_index_bytes}")
    a(f"v_mov_b32 v{vT2}, s{sNONCE}")
    a(f"s_mov_b64 s[{sP}:{sP+1}], exec")
    a("s_mov_b64 exec, 1")
    a.vmem(f"buffer_store_dword v{vT2}, v{vT}, {srd(sF)}, 0 offen sc1", "flag")
    a(f"s_mov_b64 exec, s[{sP}:{sP+1}]")

def gelu_pairs(a, regs, tmp, fill=None):
    def each(fn):
        for i, r in enumerate(regs): fn(r, tmp + 2 * i)
    each(lambda r, t: a(f"v_pk_mul_f32 {vr(t,2)}, {vr(r,2)}, {vr(r,2)}"))
    each(lambda r, t: a(f"v_pk_fma_f32 {vr(t,2)}, {vr(t,2)}, s[100:101], {vr(vC0,2)}"))
    each(lambda r, t: a(f"v_pk_mul_f32 {vr(t,2)}, {vr(t,2)}, {vr(r,2)}"))
    if fill: fill()
    each(lambda r, t: (a(f"v_exp_f32 v{t}, v{t}"), a(f"v_exp_f32 v{t+1}, v{t+1}")))
    each(lambda r, t: a(f"v_pk_add_f32 {vr(t,2)}, {vr(t,2)}, 1.0 op_sel_hi:[1,0]"))
    each(lambda r, t: (a(f"v_rcp_f32 v{t}, v{t}"), a(f"v_rcp_f32 v{t+1}, v{t+1}")))
    a("s_nop 0")
    each(lambda r, t: a(f"v_pk_mul_f32 {vr(r,2)}, {vr(r,2)}, {vr(t,2)}"))

def w2_slot(step):
    if step < 8: return sM0B, step * 4096, vTR, step * 4096
    if step < 10: return sUP, (step - 8) * 4096, vTRU, (step - 8) * 4096
    return sM0B, (step - 10) * 4096, vTR, (step - 10) * 4096

def w2_dma(a, step):
    sb, off, _, _ = w2_slot(step)
    dma_step(a, sW2, S * 2, sWB, sROT2, step, 14, sb, off, f"w2_{step}", OPT.w2bits)

def w2_dma_parts(a, step):
    sb, off, _, _ = w2_slot(step)
    def setup():
        a(f"s_add_u32 m0, s{sb}, {off}")
        step_off(a, sOFF, sWB, sROT2, step, 14, 32 * S * 2)
    def one(blk):
        return lambda: a.vmem(f"buffer_load_dwordx4 v{vDM+blk}, {srd(sW2)}, s{sOFF} offen offset:{blk*1024} {OPT.w2bits} lds", f"w2_{step}")
    return [setup] + [one(b) for b in range(4)]

def w2_tr(a, step):
    _, _, vb, off = w2_slot(step)
    tr_step(a, vb, off, step)

def gen(opt):
    global OPT
    OPT = opt
    a = Asm()
    NS = opt.depth + 1
    def ring(slot, t): return vRING + slot * 20 + t * 4
    a.raw(f"; @launch grid=(256,1,1) block=(256,1,1) lds={LDS_BYTES}")
    a.raw('.amdgcn_target "amdgcn-amd-amdhsa--gfx950"')
    a.raw(".text")
    a.raw(f".globl {KN}")
    a.raw(".p2align 8")
    a.raw(f".type {KN},@function")
    a.label(KN)
    if opt.cpf: a("s_getpc_b64 s[94:95]")
    a(f"s_cmp_ge_u32 s{sWG}, 256")
    a("s_cbranch_scc1 L_done")
    a("s_load_dwordx16 s[4:19], s[0:1], 0")
    if opt.prof:
        a(f"s_mem{'time' if opt.prof == 2 else 'realtime'} s[{sP}:{sP+1}]")
    if opt.prof:
        for i in range(1, 15): a(f"s_mov_b32 s{sPROF+i}, 0")
    if opt.pad or opt.probe >= 0:
        a("s_memrealtime s[96:97]")
    a(f"v_lshrrev_b32 v{vT}, 6, v{vTID}")
    a(f"v_and_b32 v{vLANE}, 63, v{vTID}")
    a(f"v_readfirstlane_b32 s{sWAVE}, v{vT}")
    a(f"s_and_b32 s{sXCD}, s{sWG}, 7")
    a(f"s_lshr_b32 s{sJ}, s{sWG}, 3")
    if opt.p1 == 2:
        a(f"s_lshr_b32 s{sT1}, s{sXCD}, 1")
        a(f"s_and_b32 s{sT2}, s{sXCD}, 1")
        a(f"s_lshl_b32 s{sT2}, s{sT2}, 2")
        a(f"s_mul_i32 s{sT0}, s{sT1}, 7")
        a(f"s_lshr_b32 s{sFT}, s{sJ}, 2")
        a(f"s_add_u32 s{sFT}, s{sFT}, s{sT0}")
        a(f"s_and_b32 s{sT3}, s{sJ}, 3")
        a(f"s_add_u32 s{sDT1}, s{sT2}, s{sT3}")
        if opt.rot8: a(f"s_lshl_b32 s{sROT1}, s{sDT1}, 1")
        else: a(f"s_lshl_b32 s{sROT1}, s{sT3}, 2")
        a(f"s_cmp_eq_u32 s{sT1}, 3")
        a(f"s_cselect_b32 s{sJLIM}, 24, 28")
        a(f"s_lshl_b32 s{sT0}, s{sXCD}, 2")
        a(f"s_sub_u32 s{sT0}, s{sT0}, 28")
        a(f"s_lshl_b32 s{sT3}, s{sXCD}, 3")
        a(f"s_sub_u32 s{sT3}, s{sT3}, 48")
        a(f"s_cselect_b32 s{sIDLE}, s{sT0}, s{sT0}")
        a(f"s_cmp_ge_u32 s{sXCD}, 6")
        a(f"s_cselect_b32 s{sIDLE}, s{sT3}, s{sT0}")
        a(f"s_add_u32 s{sIDLE}, s{sIDLE}, s{sJ}")
    else:
        a(f"s_lshl_b32 s{sT0}, s{sXCD}, 2")
        a(f"s_mul_i32 s{sT1}, s{sXCD}, 3")
        a(f"s_add_u32 s{sT1}, s{sT1}, 3")
        a(f"s_cmp_lt_u32 s{sXCD}, 3")
        a(f"s_cselect_b32 s{sT0}, s{sT0}, s{sT1}")
        a(f"s_cselect_b32 s{sJLIM}, 32, 24")
        a(f"s_lshr_b32 s{sFT}, s{sJ}, 3")
        a(f"s_add_u32 s{sFT}, s{sFT}, s{sT0}")
        a(f"s_and_b32 s{sDT1}, s{sJ}, 7")
        a(f"s_lshl_b32 s{sROT1}, s{sDT1}, 1")
        a(f"s_lshl_b32 s{sIDLE}, s{sXCD}, 3")
        a(f"s_add_u32 s{sIDLE}, s{sIDLE}, s{sJ}")
        a(f"s_sub_u32 s{sIDLE}, s{sIDLE}, 48")
    if opt.rota1:
        a(f"s_mul_i32 s{sT0}, s{sFT}, {opt.rota1}")
        a(f"s_add_u32 s{sROT1}, s{sROT1}, s{sT0}")
        a(f"s_and_b32 s{sROT1}, s{sROT1}, 15")
    if opt.p2 == 2:
        a(f"s_lshr_b32 s{sT1}, s{sXCD}, 1")
        a(f"s_and_b32 s{sT2}, s{sXCD}, 1")
        a(f"s_lshl_b32 s{sT2}, s{sT2}, 2")
        a(f"s_lshr_b32 s{sT0}, s{sJ}, 2")
        a(f"s_lshl_b32 s{sST}, s{sT1}, 3")
        a(f"s_add_u32 s{sST}, s{sST}, s{sT0}")
        a(f"s_and_b32 s{sT3}, s{sJ}, 3")
        a(f"s_add_u32 s{sDT2}, s{sT2}, s{sT3}")
        if opt.rot8:
            a(f"s_mul_i32 s{sROT2}, s{sDT2}, 7")
            a(f"s_lshr_b32 s{sROT2}, s{sROT2}, 2")
        else:
            a(f"s_mul_i32 s{sROT2}, s{sT3}, 7")
            a(f"s_lshr_b32 s{sROT2}, s{sROT2}, 1")
    else:
        a(f"s_lshr_b32 s{sT0}, s{sJ}, 3")
        a(f"s_lshl_b32 s{sST}, s{sXCD}, 2")
        a(f"s_add_u32 s{sST}, s{sST}, s{sT0}")
        a(f"s_and_b32 s{sDT2}, s{sJ}, 7")
        a(f"s_mul_i32 s{sROT2}, s{sDT2}, 7")
        a(f"s_lshr_b32 s{sROT2}, s{sROT2}, 2")
    if opt.rota2:
        a(f"s_mul_i32 s{sT0}, s{sST}, {opt.rota2}")
        a(f"s_add_u32 s{sROT2}, s{sROT2}, s{sT0}")
        a(f"s_and_b32 s{sT0}, s{sROT2}, 0xff")
        a(f"s_mul_i32 s{sT0}, s{sROT2}, 18725")
        a(f"s_lshr_b32 s{sT0}, s{sT0}, 18")
        a(f"s_mul_i32 s{sT0}, s{sT0}, 14")
        a(f"s_sub_u32 s{sROT2}, s{sROT2}, s{sT0}")
    if not (opt.rot & 1): a(f"s_mov_b32 s{sROT1}, 0")
    if not (opt.rot & 2): a(f"s_mov_b32 s{sROT2}, 0")
    a(f"s_lshl_b32 s{sM0B}, s{sWAVE}, 15")
    a(f"s_lshl_b32 s{sUP}, s{sWAVE}, 13")
    a(f"s_add_u32 s{sUP}, s{sUP}, 131072")
    def tr_addr(base_sgpr):
        t0, t1, t2 = vX, vX + 1, vX + 2
        a(f"v_lshrrev_b32 v{t0}, 4, v{vLANE}")
        a(f"v_and_b32 v{t1}, 1, v{t0}")
        a(f"v_lshlrev_b32 v{t1}, 2, v{t1}")
        a(f"v_bfe_u32 v{t2}, v{vLANE}, 2, 2")
        a(f"v_add_u32 v{t1}, v{t1}, v{t2}")
        a(f"v_lshrrev_b32 v{t0}, 1, v{t0}")
        a(f"v_lshlrev_b32 v{t0}, 10, v{t0}")
        a(f"v_lshlrev_b32 v{t2}, 7, v{t1}")
        a(f"v_add_u32 v{t0}, v{t0}, v{t2}")
        a(f"v_and_b32 v{t2}, 3, v{vLANE}")
        a(f"v_lshlrev_b32 v{t2}, 3, v{t2}")
        a(f"v_add_u32 v{t0}, v{t0}, v{t2}")
        a(f"v_add_u32 v{t0}, s{base_sgpr}, v{t0}")
        a(f"v_lshrrev_b32 v{t1}, 1, v{t1}")
        for t in range(4):
            a(f"v_xor_b32 v{t2}, {t}, v{t1}")
            a(f"v_lshlrev_b32 v{t2}, 5, v{t2}")
            a(f"v_add_u32 v{vTR+t}, v{t0}, v{t2}")
    def w1_dma(i): dma_step(a, sW1, F * 2, sWB, sROT1, i, 16, sM0B, (i % 8) * 4096, f"w1_{i}", "nt" if i < opt.nta else opt.w1bits)
    def w1_stream(first, dp):
        retired = 0
        def retire():
            nonlocal retired
            a.wait_vm(f"w1_{retired}")
            if retired: a("s_waitcnt lgkmcnt(0)")
            tr_step(a, vTR, (retired % 8) * 4096, retired)
            retired += 1
        for i in range(first, 16):
            while retired <= i - dp: retire()
            if i >= 8:
                while retired <= i - 8: retire()
                if retired == i - 7: a("s_waitcnt lgkmcnt(0)")
            w1_dma(i)
        while retired < 16: retire()
        a("s_waitcnt lgkmcnt(0)")
    dma_addr(a, F * 2, sFT)
    a(f"s_mul_i32 s{sWB}, s{sWAVE}, {512*F*2}")
    a(f"s_cmp_ge_u32 s{sWAVE}, 2")
    a("s_cbranch_scc1 L_loader")

    a.c("LayerNorm: wave w normalises rows 32*ks + 16*w + 4*q + (0..3), 16 lanes per row")
    XR, XF, TM = 96, 120, 160
    if opt.prio: a(f"s_setprio {opt.prio}")
    a(f"s_lshr_b32 s{sT0}, s{sWG}, 2")
    a(f"s_and_b32 s{sT1}, s{sWG}, 3")
    a(f"s_lshl_b32 s{sT2}, s{sT0}, 5")
    a(f"s_lshl_b32 s{sT3}, s{sWAVE}, 4")
    a(f"s_add_u32 s{sT2}, s{sT2}, s{sT3}")
    a(f"s_lshl_b32 s{sT3}, s{sT1}, 2")
    a(f"s_add_u32 s{sT2}, s{sT2}, s{sT3}")
    a(f"s_mul_i32 s{sT2}, s{sT2}, 1280")
    a(f"v_lshrrev_b32 v{TM}, 4, v{vLANE}")
    a(f"v_and_b32 v{TM+1}, 15, v{vLANE}")
    a(f"v_mul_u32_u24 v{TM+2}, 1280, v{TM}")
    a(f"v_lshlrev_b32 v{TM+3}, 4, v{TM+1}")
    a(f"v_add_u32 v{TM+2}, v{TM+2}, v{TM+3}")
    a(f"v_mov_b32 v{vT}, 0")
    a("s_waitcnt lgkmcnt(0)")
    if opt.prof: a(f"s_mov_b32 s{sPROF}, s{sP}")
    make_srd(a, sX, 4, S * D * 2)
    for i in range(5):
        a.vmem(f"buffer_load_dwordx4 {vr(XR+4*i,4)}, v{TM+2}, {srd(sX)}, s{sT2} offen offset:{i*256} {opt.xbits}", "x")
    make_srd(a, sD, 16, 256)
    a.vmem(f"buffer_load_dword v{vPOLL}, v{vT}, {srd(sD)}, 0 offen sc1", "nonce")
    make_srd(a, sW1, 6, S * F * 2)
    a(f"s_cmp_ge_u32 s{sJ}, s{sJLIM}")
    a("s_cbranch_scc1 L_ln_now1")
    for i in range(opt.nearly): w1_dma(i)
    a.label("L_ln_now1")
    a("s_barrier")
    make_srd(a, sH, 18, H_BYTES, WS_H)
    make_srd(a, sF, 18, FLAG_BYTES, WS_FLAG)
    a(f"s_mul_i32 s{sSTEP}, s{sT0}, 40960")
    a(f"s_lshl_b32 s{sT1}, s{sT1}, 8")
    a(f"s_add_u32 s{sSTEP}, s{sSTEP}, s{sT1}")
    a(f"s_lshl_b32 s{sT3}, s{sWAVE}, 2")
    a(f"v_add_u32 v{TM+4}, s{sT3}, v{TM}")
    a(f"v_mul_u32_u24 v{TM+4}, {LN_ROW}, v{TM+4}")
    a(f"v_add_u32 v{TM+4}, v{TM+4}, v{TM+3}")
    a(f"v_add_u32 v{TM+4}, {LN_BASE}, v{TM+4}")
    a(f"v_bfe_u32 v{TM+5}, v{vLANE}, 2, 2")
    a(f"v_mul_u32_u24 v{TM+5}, {LN_ROW}, v{TM+5}")
    a(f"s_mul_i32 s{sT3}, s{sWAVE}, 20")
    a(f"v_add_u32 v{TM+6}, s{sT3}, v{TM}")
    a(f"v_lshlrev_b32 v{TM+7}, 5, v{TM+6}")
    a(f"v_add_u32 v{TM+5}, v{TM+5}, v{TM+7}")
    a(f"v_and_b32 v{TM+7}, 3, v{vLANE}")
    a(f"v_lshlrev_b32 v{TM+7}, 3, v{TM+7}")
    a(f"v_add_u32 v{TM+5}, v{TM+5}, v{TM+7}")
    a(f"v_add_u32 v{TM+5}, {LN_BASE}, v{TM+5}")
    a(f"v_lshlrev_b32 v{TM+6}, 10, v{TM+6}")
    a(f"v_add_u32 v{TM+6}, v{TM+6}, v{TM+3}")
    a(f"s_mov_b32 s{sT0}, 0xffff0000")
    a(f"s_cmp_ge_u32 s{sJ}, s{sJLIM}")
    a("s_cbranch_scc1 L_ln_idle")
    a(f"s_waitcnt vmcnt({1 + 4*opt.nearly})")
    a("s_branch L_ln_go")
    a.label("L_ln_idle")
    a("s_waitcnt vmcnt(1)")
    a.label("L_ln_go")
    a.vm = [t for t in a.vm if t != "x"]
    stamp(a, opt, 1)
    for i in range(20):
        a(f"v_lshlrev_b32 v{XF+2*i}, 16, v{XR+i}")
        a(f"v_and_b32 v{XF+2*i+1}, s{sT0}, v{XR+i}")
    SM = TM + 8
    for k in range(4):
        a(f"v_pk_add_f32 {vr(SM+2*k,2)}, {vr(XF+2*k,2)}, {vr(XF+8+2*k,2)}")
    for i in range(8, 20):
        k = i % 4
        a(f"v_pk_add_f32 {vr(SM+2*k,2)}, {vr(SM+2*k,2)}, {vr(XF+2*i,2)}")
    def reduce_row(dst):
        a(f"v_pk_add_f32 {vr(SM,2)}, {vr(SM,2)}, {vr(SM+2,2)}")
        a(f"v_pk_add_f32 {vr(SM+4,2)}, {vr(SM+4,2)}, {vr(SM+6,2)}")
        a(f"v_pk_add_f32 {vr(SM,2)}, {vr(SM,2)}, {vr(SM+4,2)}")
        a(f"v_add_f32 v{dst}, v{SM}, v{SM+1}")
        for rot in (8, 4, 2, 1):
            a("s_nop 1")
            a(f"v_add_f32_dpp v{dst}, v{dst}, v{dst} row_ror:{rot} row_mask:0xf bank_mask:0xf")
    MN = TM + 16
    reduce_row(MN)
    a(f"v_mul_f32 v{MN}, {f2h(1.0/640.0)}, v{MN}")
    a(f"v_mov_b32 v{MN+1}, v{MN}")
    for i in range(20):
        a(f"v_pk_add_f32 {vr(XF+2*i,2)}, {vr(XF+2*i,2)}, {vr(MN,2)} neg_lo:[0,1] neg_hi:[0,1]")
    for k in range(4):
        a(f"v_pk_mul_f32 {vr(SM+2*k,2)}, {vr(XF+2*k,2)}, {vr(XF+2*k,2)}")
    for i in range(4, 20):
        k = i % 4
        a(f"v_pk_fma_f32 {vr(SM+2*k,2)}, {vr(XF+2*i,2)}, {vr(XF+2*i,2)}, {vr(SM+2*k,2)}")
    reduce_row(MN)
    a(f"v_mov_b32 v{MN+1}, {f2h(1e-5)}")
    a(f"v_fmac_f32 v{MN+1}, {f2h(1.0/640.0)}, v{MN}")
    a(f"v_rsq_f32 v{MN}, v{MN+1}")
    a("s_nop 0")
    a(f"v_mov_b32 v{MN+1}, v{MN}")
    for i in range(20):
        a(f"v_pk_mul_f32 {vr(XF+2*i,2)}, {vr(XF+2*i,2)}, {vr(MN,2)}")
    for i in range(20):
        a(f"v_cvt_pk_bf16_f32 v{XR+i}, v{XF+2*i}, v{XF+2*i+1}")
    if opt.lnprof: stamp(a, opt, 4)
    for i in range(5):
        a(f"ds_write_b128 v{TM+4}, {vr(XR+4*i,4)} offset:{i*256}")
    a(f"s_lshl_b32 s{sT0}, s{sWAVE}, 2")
    a(f"s_add_u32 s{sT1}, s{sT0}, {LF_BASE}")
    a(f"s_xor_b32 s{sT0}, s{sT0}, 4")
    a(f"s_add_u32 s{sT0}, s{sT0}, {LF_BASE}")
    a("s_waitcnt lgkmcnt(0)")
    lds_set(a, f"s{sT1}")
    lds_spin(a, opt, f"s{sT0}")
    if opt.lnprof: stamp(a, opt, 5)
    for i in range(5):
        a(f"ds_read_b64_tr_b16 {vr(XF+4*i,2)}, v{TM+5} offset:{i*128}")
        a(f"ds_read_b64_tr_b16 {vr(XF+4*i+2,2)}, v{TM+5} offset:{i*128+4*LN_ROW}")
    for i in range(5):
        a(f"s_waitcnt lgkmcnt({8-2*i})")
        a(f"s_add_u32 s{sT0}, s{sSTEP}, {i*4096}")
        a.vmem(f"buffer_store_dwordx4 {vr(XF+4*i,4)}, v{TM+6}, {srd(sH)}, s{sT0} offen {opt.hbits}", "h")
    stamp(a, opt, 2)
    a("s_waitcnt vmcnt(5)")
    a(f"v_readfirstlane_b32 s{sNONCE}, v{vPOLL}")
    nonce_spin(a, opt)
    a.wait_vm0()
    a(f"s_mul_i32 s{sT0}, s{sWG}, {opt.hstride}")
    a(f"s_lshl_b32 s{sT1}, s{sWAVE}, 2")
    a(f"s_add_u32 s{sT0}, s{sT0}, s{sT1}")
    flag_store(a, sT0)
    a(f"s_lshl_b32 s{sT0}, s{sWAVE}, 2")
    a(f"s_add_u32 s{sT0}, s{sT0}, {LF_BASE + 8}")
    lds_set(a, f"s{sT0}")
    stamp(a, opt, 3)
    if opt.prio: a("s_setprio 0")
    a.ln_done = True
    a("s_branch L_roles_done")

    a.label("L_loader")
    a.vm = []
    if opt.cpf:
        a(f"s_cmp_lg_u32 s{sWAVE}, {opt.cpfw}")
        a("s_cbranch_scc1 L_nocpf")
        a(f"s_lshl_b32 s{sT0}, s{sJ}, 11")
        a(f"v_lshlrev_b32 v{vX}, 4, v{vLANE}")
        a(f"v_add_u32 v{vX}, s{sT0}, v{vX}")
        for h in range(2):
            if h: a(f"v_add_u32 v{vX}, 1024, v{vX}")
            a(f"v_cmp_gt_u32 vcc, L_codeend-{KN}-20, v{vX}")
            a(f"s_and_saveexec_b64 s[{sP}:{sP+1}], vcc")
            a(f"s_cbranch_execz L_cpf{h}")
            a(f"global_load_dwordx4 {vr(240+4*h,4)}, v{vX}, s[94:95]")
            a.label(f"L_cpf{h}")
            a(f"s_mov_b64 exec, s[{sP}:{sP+1}]")
        a.label("L_nocpf")
    a(f"v_lshlrev_b32 v{vX}, 2, v{vLANE}")
    a(f"v_add_u32 v{vX}, {LF_BASE}, v{vX}")
    a(f"v_mov_b32 v{vX+1}, 0")
    a(f"ds_write_b32 v{vX}, v{vX+1}")
    a("s_waitcnt lgkmcnt(0)")
    if opt.prof: a(f"s_mov_b32 s{sPROF}, s{sP}")
    make_srd(a, sW1, 6, S * F * 2)
    make_srd(a, sD, 16, 256)
    a(f"s_cmp_lg_u32 s{sWG}, 0")
    a("s_cbranch_scc1 L_nononce")
    a(f"s_cmp_lg_u32 s{sWAVE}, 3")
    a("s_cbranch_scc1 L_nononce")
    a(f"s_memrealtime s[{sP}:{sP+1}]")
    a("s_waitcnt lgkmcnt(0)")
    a(f"s_or_b32 s{sT0}, s{sP}, 1")
    a(f"v_mov_b32 v{vT2}, s{sT0}")
    a(f"v_mov_b32 v{vT}, 0")
    a(f"s_mov_b64 s[{sP}:{sP+1}], exec")
    a("s_mov_b64 exec, 1")
    a(f"buffer_store_dword v{vT2}, v{vT}, {srd(sD)}, 0 offen sc1")
    a(f"s_mov_b64 exec, s[{sP}:{sP+1}]")
    a.label("L_nononce")
    a(f"s_cmp_ge_u32 s{sJ}, s{sJLIM}")
    a("s_cbranch_scc1 L_loader_idle")
    for i in range(2): w1_dma(i)
    a("s_barrier")
    tr_addr(sM0B)
    if opt.hold:
        lds_spin(a, opt, LF_BASE + 8)
        lds_spin(a, opt, LF_BASE + 12)
    w1_stream(2, opt.dp)
    a(f"s_mov_b32 s{sNONCE}, 0")
    nonce_spin(a, opt)
    a("s_branch L_w1_ready")
    a.label("L_loader_idle")
    a.vm = []
    a("s_barrier")
    if opt.pfwait:
        lds_spin(a, opt, LF_BASE + 8)
        lds_spin(a, opt, LF_BASE + 12)
    if opt.pf == 1:
        make_srd(a, sW2, 10, F * S * 2)
        a(f"s_lshl_b32 s{sT0}, s{sIDLE}, 1")
        a(f"s_add_u32 s{sT0}, s{sT0}, s{sWAVE}")
        a(f"s_sub_u32 s{sT0}, s{sT0}, 2")
        a(f"s_lshl_b32 s{sT0}, s{sT0}, 10")
        a(f"v_lshlrev_b32 v{vX}, 4, v{vLANE}")
        inc = 80 * 1024
        for k in range(87):
            o = vRING + (k % 20) * 4
            a.vmem(f"buffer_load_dwordx4 {vr(o,4)}, v{vX}, {srd(sW2)}, s{sT0} offen {opt.pfbits}", f"pf{k}")
            a(f"s_add_u32 s{sT0}, s{sT0}, {inc}")
            if k >= opt.pfdepth: a.wait_vm(f"pf{k-opt.pfdepth}")
    a(f"s_mov_b32 s{sNONCE}, 0")
    nonce_spin(a, opt)
    a("s_branch L_nogemm1")

    a.label("L_roles_done")
    a.vm = []
    a(f"s_cmp_ge_u32 s{sJ}, s{sJLIM}")
    a("s_cbranch_scc1 L_nogemm1")
    a.vm = []
    tr_addr(sM0B)
    for i in range(opt.nearly): a.vm.append(f"w1_{i}")
    a.vm.append("flag")
    w1_stream(opt.nearly, opt.dpl)

    def common_setup():
        make_srd(a, sH, 18, H_BYTES, WS_H)
        make_srd(a, sF, 18, FLAG_BYTES, WS_FLAG)
        make_srd(a, sB1, 8, F * 2)
        make_srd(a, sW2, 10, F * S * 2)
        make_srd(a, sB2, 12, S * 2)
        make_srd(a, sO, 14, S * D * 2)
        make_srd(a, sG, 18, G_BYTES, WS_G)
        a(f"v_lshrrev_b32 v{vT}, 4, v{vLANE}")
        a(f"v_lshlrev_b32 v{vT}, 3, v{vT}")
        a(f"s_and_b32 s{sT0}, s{sWAVE}, 1")
        a(f"s_lshl_b32 s{sT0}, s{sT0}, 6")
        a(f"s_lshl_b32 s{sT1}, s{sFT}, 7")
        a(f"s_add_u32 s{sT0}, s{sT0}, s{sT1}")
        a.vmem(f"buffer_load_dwordx2 {vr(vB1,2)}, v{vT}, {srd(sB1)}, s{sT0} offen", "b")
        a.vmem(f"buffer_load_dwordx2 {vr(vB1+2,2)}, v{vT}, {srd(sB1)}, s{sT0} offen offset:32", "b")
        a(f"v_and_b32 v{vT}, 15, v{vLANE}")
        a(f"v_lshlrev_b32 v{vT}, 1, v{vT}")
        a(f"s_lshl_b32 s{sT0}, s{sST}, 7")
        a(f"s_lshl_b32 s{sT1}, s{sWAVE}, 5")
        a(f"s_add_u32 s{sT0}, s{sT0}, s{sT1}")
        a.vmem(f"buffer_load_ushort v{vB2}, v{vT}, {srd(sB2)}, s{sT0} offen", "b")
        dma_addr(a, S * 2, sST)
        a(f"s_mul_i32 s{sWB}, s{sWAVE}, {448*S*2}")
        tr_addr(sM0B)
        a(f"s_sub_u32 s{sT0}, s{sUP}, s{sM0B}")
        for t in range(4):
            a(f"v_add_u32 v{vTRU+t}, s{sT0}, v{vTR+t}")
        a(f"v_lshlrev_b32 v{vL0}, 4, v{vLANE}")
        a(f"v_add_u32 v{vL1}, 65536, v{vL0}")
        a(f"v_add_u32 v{vL2}, 131072, v{vL0}")

    a.label("L_w1_ready")
    a.vm = []
    stamp(a, opt, 4)
    common_setup()
    a(f"s_mul_i32 s{sT0}, s{sDT1}, 5120")
    a(f"v_add_u32 v{vA}, s{sT0}, v{vL0}")
    a(f"v_add_u32 v{vA2}, 4096, v{vA}")
    if opt.onepoll & 1:
        assert opt.hstride == 8
        a(f"s_cmp_lg_u32 s{sWAVE}, {opt.pollw}")
        a("s_cbranch_scc1 L_hpolled")
        poll(a, opt, vL0, 4, None, opt.sleeph, opt.preh, 2)
        a.label("L_hpolled")
        a.wait_vm0()
    else:
        a(f"s_lshl_b32 s{sT0}, s{sWAVE}, 6")
        a(f"v_add_u32 v{vX}, s{sT0}, v{vLANE}")
        a(f"v_mul_u32_u24 v{vX}, {opt.hstride}, v{vX}")
        poll(a, opt, vX, 2, None, opt.sleeph, opt.preh)
    a("s_barrier")
    stamp(a, opt, 5)

    def a_loads(srdn, step, nsteps, s_rot):
        slot = step % NS
        step_off(a, sOFF, sSTEP, s_rot, step, nsteps, 40960)
        return [f"buffer_load_dwordx4 {vr(ring(slot,t),4)}, v{vA if t < 4 else vA2}, {srd(srdn)}, s{sOFF} offen offset:{(t*1024) if t < 4 else 0} sc1" for t in range(5)]

    def main_loop(srdn, nsteps, s_rot, tagp, mfma, stamp0, tail, nuni):
        for st in range(opt.depth):
            for o, ins in enumerate(a_loads(srdn, st, nsteps, s_rot)): a.vmem(ins, f"{tagp}{st}_{o}")
        for st in range(nuni):
            nx = st + opt.depth
            nxt = a_loads(srdn, nx, nsteps, s_rot) if nx < nsteps else None
            a.wait_vm(f"{tagp}{st}_4")
            if st == 0 and stamp0 is not None: stamp(a, opt, stamp0)
            for o in range(5):
                if nxt: a.vmem(nxt[o], f"{tagp}{nx}_{o}")
                for i in range(4): mfma(st, o, i, st % NS)
                if tail: tail(st, o)

    def tile_tail(nsteps, tagp, first, last, frag_of, mfma_tile, write_tile, extra):
        ic = [0]
        done_at = {}
        queue = []
        extra = list(extra)
        def emit(fn):
            fn(); ic[0] += 1
        def filler():
            if queue and ic[0] - done_at[queue[0]] >= 9:
                t = queue.pop(0); emit(lambda: write_tile(t)); return
            if extra: emit(extra.pop(0))
        tiles = list(first) + list(last)
        for i in range(0, len(tiles), 2):
            pair = tiles[i:i + 2]
            for t in pair:
                for st in (nsteps - 2, nsteps - 1): a.wait_vm(f"{tagp}{st}_{frag_of(t)}")
            for st in (nsteps - 2, nsteps - 1):
                for t in pair:
                    emit(lambda: mfma_tile(st, t))
                    if st == nsteps - 1:
                        done_at[t] = ic[0]
                        if t in first: queue.append(t)
                    filler()
        while extra: emit(extra.pop(0))
        while queue:
            while ic[0] - done_at[queue[0]] < 9: emit(lambda: a("s_nop 0"))
            t = queue.pop(0); emit(lambda: write_tile(t))

    a(f"s_mul_i32 s{sSTEP}, s{sWAVE}, {16*40960}")
    def mfma1(st, nt, mt, slot):
        c = "0" if st == 0 else vr(acc1(mt, nt), 4)
        a(f"v_mfma_f32_16x16x32_bf16 {vr(acc1(mt,nt),4)}, {ar(wfrag(st,mt),4)}, {vr(ring(slot,nt),4)}, {c}")
    parts13 = w2_dma_parts(a, 0) if opt.t13 else []
    def tail1(st, o):
        if st == 13 and parts13:
            if o == 0: parts13[0]()
            else: parts13[o]()
    main_loop(sH, 16, sROT1, "h", mfma1, 6, tail1, 14)

    a(f"s_mov_b32 s100, {f2h(C1)}"); a(f"s_mov_b32 s101, {f2h(C1)}")
    a(f"v_mov_b32 v{vC0}, {f2h(C0)}"); a(f"v_mov_b32 v{vC0+1}, {f2h(C0)}")
    def lds_ref(addr):
        if addr < 65536: return vL0, addr
        if addr < 131072: return vL1, addr - 65536
        return vL2, addr - 131072
    def owner1(p, nt): return p + (0 if nt < 3 else 2)
    units = [(p, nt) for p in range(2) for nt in range(5)]
    def red1_addr(src, u):
        k = [x for x in units if owner1(*x) != src].index(u)
        return src * 32768 + 24576 + k * 2048 if k < 4 else 131072 + src * 8192 + (k - 4) * 2048
    saved_vm = list(a.vm)
    for w in range(4):
        if w < 3:
            a(f"s_cmp_lg_u32 s{sWAVE}, {w}")
            a(f"s_cbranch_scc1 L_ep1_{w+1}")
        a.vm = list(saved_vm)
        nis = [1 if opt.t13 else 0]
        def more(n, limit):
            for _ in range(n):
                if nis[0] < limit:
                    w2_dma(a, nis[0]); nis[0] += 1
        tl = [(2 * p + hf, nt) for nt in range(5) for p in range(2) for hf in range(2)]
        first = [t for t in tl if owner1(t[0] // 2, t[1]) != w]
        last = [t for t in tl if owner1(t[0] // 2, t[1]) == w]
        def wr1(t):
            vb, off = lds_ref(red1_addr(w, (t[0] // 2, t[1])) + (t[0] & 1) * 1024)
            a(f"ds_write_b128 v{vb}, {vr(acc1(*t),4)} offset:{off}")
        extra = []
        for _ in range(opt.tt):
            extra += w2_dma_parts(a, nis[0]); nis[0] += 1
        tile_tail(16, "h", first, last, lambda t: t[1], lambda st, t: mfma1(st, t[1], t[0], st % NS), wr1, extra)
        stamp(a, opt, 7)
        more(opt.e1, 6)
        a("s_waitcnt lgkmcnt(0)")
        a("s_barrier")
        own_u = [u for u in units if owner1(*u) == w]
        RT = vRING
        n = 0
        for u in own_u:
            for src in range(4):
                if src == w: continue
                for hf in range(2):
                    vb, off = lds_ref(red1_addr(src, u) + hf * 1024)
                    a(f"ds_read_b128 {vr(RT + n*4, 4)}, v{vb} offset:{off}")
                    n += 1
        a.wait_vm("b")
        for i in range(4):
            a(f"v_lshlrev_b32 v{BI+2*i}, 16, v{vB1+i}")
            a(f"v_and_b32 v{BI+2*i+1}, 0xffff0000, v{vB1+i}")
        for u in own_u:
            p, nt = u
            for hf in range(2):
                r = acc1(2*p+hf, nt)
                a(f"v_pk_add_f32 {vr(r,2)}, {vr(r,2)}, {vr(BI+4*hf,2)}")
                a(f"v_pk_add_f32 {vr(r+2,2)}, {vr(r+2,2)}, {vr(BI+4*hf+2,2)}")
        n = 0
        tot = len(own_u) * 6
        for u in own_u:
            p, nt = u
            for si in range(3):
                for hf in range(2):
                    a(f"s_waitcnt lgkmcnt({min(15, tot - n - 1)})")
                    r = acc1(2*p+hf, nt)
                    a(f"v_pk_add_f32 {vr(r,2)}, {vr(r,2)}, {vr(RT+n*4,2)}")
                    a(f"v_pk_add_f32 {vr(r+2,2)}, {vr(r+2,2)}, {vr(RT+n*4+2,2)}")
                    n += 1
        a("s_barrier")
        regs = []
        for u in own_u:
            p, nt = u
            for hf in range(2):
                r = acc1(2*p+hf, nt)
                regs += [r, r + 2]
        more(opt.e2, 10)
        gelu_pairs(a, regs, RT, fill=lambda: more(opt.e3, 10))
        a(f"s_lshl_b32 s{sT0}, s{sFT}, 1")
        a(f"s_add_u32 s{sT0}, s{sT0}, {w & 1}")
        a(f"s_mul_i32 s{sT0}, s{sT0}, 40960")
        a(f"s_mul_i32 s{sT1}, s{sDT1}, 5120")
        a(f"s_add_u32 s{sT0}, s{sT0}, s{sT1}")
        for i, u in enumerate(own_u):
            p, nt = u
            o = RT + 64 + 4 * i
            r0, r1 = acc1(2*p, nt), acc1(2*p+1, nt)
            a(f"v_cvt_pk_bf16_f32 v{o}, v{r0}, v{r0+1}")
            a(f"v_cvt_pk_bf16_f32 v{o+1}, v{r0+2}, v{r0+3}")
            a(f"v_cvt_pk_bf16_f32 v{o+2}, v{r1}, v{r1+1}")
            a(f"v_cvt_pk_bf16_f32 v{o+3}, v{r1+2}, v{r1+3}")
            a(f"s_add_u32 s{sT1}, s{sT0}, {nt*1024}")
            a.vmem(f"buffer_store_dwordx4 {vr(o,4)}, v{vL0}, {srd(sG)}, s{sT1} offen sc1", "g")
        stamp(a, opt, 8)
        more(opt.nb, 10)
        a.wait_vm("w2_3")
        if nis[0] >= 4:
            for st in range(4):
                w2_tr(a, st)
                if st % 2 == 1: a("s_waitcnt lgkmcnt(0)")
        if nis[0] == 10 and opt.nb2:
            for st in range(10, 10 + opt.nb2): w2_dma(a, st)
            nis[0] += opt.nb2
        a.wait_vm("g")
        a(f"s_lshl_b32 s{sT0}, s{sDT1}, 5")
        a(f"s_add_u32 s{sT0}, s{sT0}, s{sFT}")
        a(f"s_mul_i32 s{sT0}, s{sT0}, {opt.gstride}")
        a(f"s_add_u32 s{sT0}, s{sT0}, {FLAG_G + 4*w}")
        flag_store(a, sT0)
        stamp(a, opt, 9)
        assert nis[0] >= 4
        more(10, 10)
        more(4, 14)
        for st in range(4, 10):
            a.wait_vm(f"w2_{st}")
            w2_tr(a, st)
            if st % 2 == 1: a("s_waitcnt lgkmcnt(0)")
        a("s_branch L_pre2")
        if w < 3: a.label(f"L_ep1_{w+1}")

    a.label("L_nogemm1")
    a.vm = []
    common_setup()
    if opt.idlewait:
        a(f"s_lshl_b32 s{sT0}, s{sWAVE}, 6")
        a(f"v_add_u32 v{vX}, s{sT0}, v{vLANE}")
        a(f"v_mul_u32_u24 v{vX}, {opt.hstride}, v{vX}")
        poll(a, opt, vX, 2, None)
        if opt.idlewait > 1:
            a(f"s_sleep {opt.idlewait}")
    if opt.pf == 3:
        a(f"s_lshl_b32 s{sT0}, s{sIDLE}, 2")
        a(f"s_add_u32 s{sT0}, s{sT0}, s{sWAVE}")
        a(f"s_lshl_b32 s{sT0}, s{sT0}, 10")
        for k in range(44):
            o = vRING + (k % 16) * 4
            a.vmem(f"buffer_load_dwordx4 {vr(o,4)}, v{vL0}, {srd(sW2)}, s{sT0} offen {opt.pfbits}", f"pf{k}")
            a(f"s_add_u32 s{sT0}, s{sT0}, {160*1024}")
            if k >= opt.pfdepth: a.wait_vm(f"pf{k-opt.pfdepth}")
        a.wait_vm0()
    if opt.pf == 2:
        assert opt.p1 == 2 and opt.p2 == 1
        a(f"s_cmp_lt_u32 s{sJ}, 28")
        a("s_cbranch_scc1 L_nopf")
        a(f"s_sub_u32 s{sT0}, s{sJ}, 28")
        a(f"s_lshl_b32 s{sT0}, s{sT0}, 2")
        a(f"s_add_u32 s{sT0}, s{sT0}, s{sWAVE}")
        a(f"s_lshl_b32 s{sT0}, s{sT0}, 13")
        a(f"s_lshl_b32 s{sT1}, s{sXCD}, 9")
        a(f"s_add_u32 s{sT0}, s{sT0}, s{sT1}")
        a(f"v_lshrrev_b32 v{vX}, 5, v{vLANE}")
        a(f"v_lshlrev_b32 v{vX}, 12, v{vX}")
        a(f"v_and_b32 v{vX+1}, 31, v{vLANE}")
        a(f"v_lshlrev_b32 v{vX+1}, 4, v{vX+1}")
        a(f"v_add_u32 v{vX}, v{vX}, v{vX+1}")
        keep = list(a.vm)
        for k in range(54):
            o = vRING + (k % 16) * 4
            a.vmem(f"buffer_load_dwordx4 {vr(o,4)}, v{vX}, {srd(sW2)}, s{sT0} offen", f"pf{k}")
            a(f"s_add_u32 s{sT0}, s{sT0}, {16*8192}")
            if k >= opt.pfdepth: a.wait_vm(f"pf{k-opt.pfdepth}")
        a.wait_vm0()
        a.label("L_nopf")
        a.vm = keep
    for st in range(10): w2_dma(a, st)
    for st in range(4):
        a.wait_vm(f"w2_{st}")
        w2_tr(a, st)
        if st % 2 == 1: a("s_waitcnt lgkmcnt(0)")
    for st in range(10, 14): w2_dma(a, st)
    for st in range(4, 10):
        a.wait_vm(f"w2_{st}")
        w2_tr(a, st)
        if st % 2 == 1: a("s_waitcnt lgkmcnt(0)")

    a.label("L_pre2")
    a.wait_vm0()
    a("s_waitcnt lgkmcnt(0)")
    for st in range(10, 14):
        w2_tr(a, st)
        if st % 2 == 1: a("s_waitcnt lgkmcnt(0)")
    stamp(a, opt, 10)
    a(f"s_mul_i32 s{sT0}, s{sDT2}, 5120")
    a(f"v_add_u32 v{vA}, s{sT0}, v{vL0}")
    a(f"v_add_u32 v{vA2}, 4096, v{vA}")
    if opt.onepoll & 2:
        a(f"s_cmp_lg_u32 s{sWAVE}, {opt.pollw}")
        a("s_cbranch_scc1 L_gpolled")
        a(f"s_lshl_b32 s{sT0}, s{sDT2}, 5")
        a(f"s_mul_i32 s{sT0}, s{sT0}, {opt.gstride}")
        a(f"s_add_u32 s{sT0}, s{sT0}, {FLAG_G}")
        a(f"v_mul_u32_u24 v{vX}, {opt.gstride}, v{vLANE}")
        a(f"v_add_u32 v{vX}, s{sT0}, v{vX}")
        a(f"s_mov_b32 s{sP+2}, 0x7ffffff")
        a(f"s_mov_b32 s{sP+3}, 0")
        poll(a, opt, vX, 4, sP + 2, opt.sleep, opt.preg)
        a.label("L_gpolled")
        a("s_barrier")
    else:
        a(f"s_lshl_b32 s{sT0}, s{sDT2}, 5")
        a(f"s_mul_i32 s{sT1}, s{sWAVE}, 7")
        a(f"s_add_u32 s{sT0}, s{sT0}, s{sT1}")
        a(f"s_mul_i32 s{sT0}, s{sT0}, {opt.gstride}")
        a(f"s_add_u32 s{sT0}, s{sT0}, {FLAG_G}")
        a(f"v_lshrrev_b32 v{vX}, 2, v{vLANE}")
        a(f"v_mul_u32_u24 v{vX}, {opt.gstride}, v{vX}")
        a(f"v_and_b32 v{vT}, 3, v{vLANE}")
        a(f"v_lshlrev_b32 v{vT}, 2, v{vT}")
        a(f"v_add_u32 v{vX}, v{vX}, v{vT}")
        a(f"v_add_u32 v{vX}, s{sT0}, v{vX}")
        a(f"s_cmp_eq_u32 s{sWAVE}, 3")
        a(f"s_mov_b32 s{sP+3}, 0xffffff")
        a(f"s_cselect_b32 s{sP+2}, s{sP+3}, 0xfffffff")
        a(f"s_mov_b32 s{sP+3}, 0")
        poll(a, opt, vX, 1, sP + 2, opt.sleep, opt.preg)
    stamp(a, opt, 11)
    a(f"s_mul_i32 s{sSTEP}, s{sWAVE}, {14*40960}")
    def mfma2(st, mt, nt, slot):
        c = "0" if st == 0 else vr(acc2(mt, nt), 4)
        a(f"v_mfma_f32_16x16x32_bf16 {vr(acc2(mt,nt),4)}, {vr(ring(slot,mt),4)}, {ar(wfrag(st,nt),4)}, {c}")
    main_loop(sG, 14, sROT2, "g", mfma2, 12, None, 12)
    saved_vm2 = list(a.vm)
    a(f"v_and_b32 v{vT}, 15, v{vLANE}")
    a(f"s_lshl_b32 s{sT0}, s{sWAVE}, 4")
    a(f"v_add_u32 v{vT}, s{sT0}, v{vT}")
    a(f"v_mul_u32_u24 v{vA}, 1280, v{vT}")
    a(f"v_lshrrev_b32 v{vT}, 4, v{vLANE}")
    a(f"v_lshlrev_b32 v{vT}, 3, v{vT}")
    a(f"v_add_u32 v{vA}, v{vA}, v{vT}")
    a(f"s_mul_i32 s{sT0}, s{sST}, {64*1280}")
    a(f"s_mul_i32 s{sT1}, s{sDT2}, 160")
    a(f"s_add_u32 s{sOFF}, s{sT0}, s{sT1}")
    a(f"v_lshlrev_b32 v{vC0}, 16, v{vB2}")
    a(f"v_lshlrev_b32 v{vC0+1}, 16, v{vB2}")
    a(f"v_sub_u32 v{vA2}, v{vA}, v{vT}")
    a(f"v_bfe_u32 v{vT}, v{vLANE}, 4, 1")
    a(f"v_lshlrev_b32 v{vT}, 5, v{vT}")
    a(f"v_add_u32 v{vA2}, v{vA2}, v{vT}")
    a(f"v_bfe_u32 v{vT}, v{vLANE}, 5, 1")
    a(f"v_lshlrev_b32 v{vT}, 4, v{vT}")
    a(f"v_add_u32 v{vA2}, v{vA2}, v{vT}")
    def red2_addr(src, nt, mt):
        k = [x for x in range(4) if x != src].index(nt)
        return src * 32768 + (k * 5 + mt) * 1024
    for w in range(4):
        if w < 3:
            a(f"s_cmp_lg_u32 s{sWAVE}, {w}")
            a(f"s_cbranch_scc1 L_ep2_{w+1}")
        a.vm = list(saved_vm2)
        tl = [(mt, nt) for mt in range(5) for nt in range(4)]
        def wr2(t):
            vb, off = lds_ref(red2_addr(w, t[1], t[0]))
            a(f"ds_write_b128 v{vb}, {vr(acc2(*t),4)} offset:{off}")
        tile_tail(14, "g", [t for t in tl if t[1] != w], [t for t in tl if t[1] == w], lambda t: t[0],
                  lambda st, t: mfma2(st, t[0], t[1], st % NS), wr2, [])
        stamp(a, opt, 13)
        a("s_waitcnt lgkmcnt(0)")
        a("s_barrier")
        RT = vRING
        n = 0
        for mt in range(5):
            for src in range(4):
                if src == w: continue
                vb, off = lds_ref(red2_addr(src, w, mt))
                a(f"ds_read_b128 {vr(RT+n*4,4)}, v{vb} offset:{off}")
                n += 1
        n = 0
        for mt in range(5):
            r = acc2(mt, w)
            for si in range(3):
                a(f"s_waitcnt lgkmcnt({14 - n})")
                a(f"v_pk_add_f32 {vr(r,2)}, {vr(r,2)}, {vr(RT+n*4,2)}")
                a(f"v_pk_add_f32 {vr(r+2,2)}, {vr(r+2,2)}, {vr(RT+n*4+2,2)}")
                n += 1
            a(f"v_pk_add_f32 {vr(r,2)}, {vr(r,2)}, {vr(vC0,2)}")
            a(f"v_pk_add_f32 {vr(r+2,2)}, {vr(r+2,2)}, {vr(vC0,2)}")
            o = RT + 64 + 2 * mt
            a(f"v_cvt_pk_bf16_f32 v{o}, v{r}, v{r+1}")
            a(f"v_cvt_pk_bf16_f32 v{o+1}, v{r+2}, v{r+3}")
            if not opt.wide or mt == 4:
                a(f"buffer_store_dwordx2 {vr(o,2)}, v{vA}, {srd(sO)}, s{sOFF} offen offset:{mt*32} {opt.obits}")
            elif mt % 2 == 1:
                a("s_nop 1")
                a(f"v_permlane16_swap_b32 v{o-2}, v{o}")
                a(f"v_permlane16_swap_b32 v{o-1}, v{o+1}")
                a(f"buffer_store_dwordx4 {vr(o-2,4)}, v{vA2}, {srd(sO)}, s{sOFF} offen offset:{(mt-1)*32} {opt.obits}")
        a("s_branch L_fin")
        if w < 3: a.label(f"L_ep2_{w+1}")
    a.label("L_fin")
    if opt.probe >= 0:
        if opt.probe == 14:
            a("s_waitcnt vmcnt(0)")
            stamp(a, opt, 14)
        a(f"s_cmp_lg_u32 s{sWG}, {opt.probewg}")
        a("s_cbranch_scc1 L_done")
        a(f"s_cmp_lg_u32 s{sWAVE}, {opt.probew}")
        a("s_cbranch_scc1 L_done")
        ref = sNONCE if opt.probeabs else (sPROF + 2 if opt.probe0 >= 0 else 96)
        a(f"s_sub_u32 s{sT1}, s{sPROF+1}, s{ref}")
        if opt.probecyc: a(f"s_lshr_b32 s{sT1}, s{sT1}, 2")
        else: a(f"s_lshl_b32 s{sT1}, s{sT1}, 2")
        a(f"s_add_u32 s{sT1}, s{sT1}, 4000")
        a.label("L_probe")
        a(f"s_memrealtime s[{sP}:{sP+1}]")
        a("s_waitcnt lgkmcnt(0)")
        a(f"s_sub_u32 s{sT0}, s{sP}, s96")
        a(f"s_cmp_lt_u32 s{sT0}, s{sT1}")
        a("s_cbranch_scc1 L_probe")
    if opt.pad:
        a.label("L_pad")
        a(f"s_memrealtime s[{sP}:{sP+1}]")
        a("s_waitcnt lgkmcnt(0)")
        a(f"s_sub_u32 s{sT0}, s{sP}, s96")
        a(f"s_cmp_lt_u32 s{sT0}, {opt.pad}")
        a("s_cbranch_scc1 L_pad")
    if opt.prof:
        a("s_waitcnt vmcnt(0)")
        stamp(a, opt, 14)
        make_srd(a, sX, 18, 65536, WS_PROF)
        a(f"s_lshl_b32 s{sT0}, s{sWG}, 2")
        a(f"s_add_u32 s{sT0}, s{sT0}, s{sWAVE}")
        a(f"s_lshl_b32 s{sT0}, s{sT0}, 6")
        a(f"v_mov_b32 v{vT}, s{sT0}")
        a("s_mov_b64 exec, 1")
        for i in range(15):
            a(f"v_mov_b32 v100, s{sPROF+i}")
            a(f"buffer_store_dword v100, v{vT}, {srd(sX)}, 0 offen offset:{4*i}")
            a("s_nop 1")
        a("s_waitcnt vmcnt(0)")
    a.label("L_done")
    a("s_endpgm")
    a.label("L_codeend")
    a.raw('.section .rodata,"a"')
    a.raw(".p2align 6")
    a.raw(f".amdhsa_kernel {KN}")
    for l in ["next_free_vgpr 512", "next_free_sgpr 102", "accum_offset 256", "group_segment_fixed_size 0",
              "kernarg_size 64", "user_sgpr_count 2", "user_sgpr_kernarg_segment_ptr 1",
              "system_sgpr_workgroup_id_x 1", "float_denorm_mode_32 3"]:
        a.raw(f"  .amdhsa_{l}")
    a.raw(".end_amdhsa_kernel")
    return "\n".join(a.L) + "\n"

def parse(argv=None):
    ap = argparse.ArgumentParser()
    ap.add_argument("-o", default="standalone__mixer_token_mlp__prompt.s")
    ap.add_argument("--prof", type=int, default=0)
    ap.add_argument("--rot", type=int, default=3)
    ap.add_argument("--spin", type=int, default=20000)
    ap.add_argument("--sleep", type=int, default=8)
    ap.add_argument("--depth", type=int, default=3)
    ap.add_argument("--lnprof", type=int, default=0)
    ap.add_argument("--hbits", default="sc1")
    ap.add_argument("--pfwait", type=int, default=1)
    ap.add_argument("--hold", type=int, default=0)
    ap.add_argument("--probe", type=int, default=-1)
    ap.add_argument("--probe0", type=int, default=-1)
    ap.add_argument("--probecyc", type=int, default=0)
    ap.add_argument("--probeabs", type=int, default=0)
    ap.add_argument("--probewg", type=int, default=100)
    ap.add_argument("--probew", type=int, default=2)
    ap.add_argument("--rot8", type=int, default=1)
    ap.add_argument("--cpf", type=int, default=1)
    ap.add_argument("--cpfw", type=int, default=3)
    ap.add_argument("--wide", type=int, default=1)
    ap.add_argument("--idlewait", type=int, default=0)
    ap.add_argument("--sleeph", type=int, default=8)
    ap.add_argument("--preh", type=int, default=0)
    ap.add_argument("--preg", type=int, default=0)
    ap.add_argument("--onepoll", type=int, default=3)
    ap.add_argument("--pollw", type=int, default=3)
    ap.add_argument("--nta", type=int, default=0)
    ap.add_argument("--t13", type=int, default=1)
    ap.add_argument("--tt", type=int, default=2)
    ap.add_argument("--e2", type=int, default=0)
    ap.add_argument("--e3", type=int, default=0)
    ap.add_argument("--nb2", type=int, default=0)
    ap.add_argument("--e1", type=int, default=1)
    ap.add_argument("--nb", type=int, default=2)
    ap.add_argument("--nearly", type=int, default=3)
    ap.add_argument("--dpl", type=int, default=5)
    ap.add_argument("--dp", type=int, default=4)
    ap.add_argument("--p1", type=int, default=1)
    ap.add_argument("--p2", type=int, default=1)
    ap.add_argument("--rota1", type=int, default=0)
    ap.add_argument("--rota2", type=int, default=0)
    ap.add_argument("--xbits", default="nt")
    ap.add_argument("--w1bits", default="")
    ap.add_argument("--w2bits", default="")
    ap.add_argument("--pfbits", default="")
    ap.add_argument("--pfdepth", type=int, default=8)
    ap.add_argument("--prio", type=int, default=3)
    ap.add_argument("--delay", type=int, default=0)
    ap.add_argument("--hstride", type=int, default=8)
    ap.add_argument("--gstride", type=int, default=256)
    ap.add_argument("--pf", type=int, default=1)
    ap.add_argument("--pad", type=int, default=0)
    ap.add_argument("--obits", default="sc1")
    return ap.parse_args(argv)

if __name__ == "__main__":
    opt = parse()
    open(opt.o, "w").write(gen(opt))
```

```python
import argparse, struct

S, D, F = 2048, 640, 1728
KN = "standalone__mixer_token_mlp__prompt_kernel"

WS_H = 0
H_BYTES = 64 * 40 * 1024
WS_G = 0x300000
G_BYTES = 54 * 40 * 1024
WS_FLAG = 0x600000
FLAG_H = 0
FLAG_G = 0x10000
FLAG_BYTES = 0x40000
WS_PROF = 0x700000

LDS_BYTES = 163840
LN_BASE = 131072
LN_ROW = 1344
LF_BASE = 141824
P0_BASE = [0, 49152, 98304, 122880]

sWG = 2
sX, sW1, sW2, sH, sG, sO, sF, sB1, sB2, sD = 20, 24, 28, 32, 36, 40, 44, 48, 52, 56
sWAVE, sXCD, sJ, sFT, sDT1, sST, sDT2, sNONCE = 60, 61, 62, 63, 64, 65, 66, 67
sT0, sT1, sT2, sT3, sT4, sT5 = 68, 69, 70, 71, 72, 73
sROT1, sROT2, sSTEP, sOFF = 74, 75, 76, 77
sM0B, sSPIN = 78, 79
sP = 80
sPROF = 84
sUP = 99
sJLIM, sIDLE = 100, 101
sWB = 3

vTID, vLANE = 0, 1
vTR = 2
vA, vA2, vDMA, vT2 = 6, 7, 8, 9
vB1 = 10
vB2, vT = 14, 15
vACC = 16
vRING = 96
vTRU = 176
vL0, vL1, vL2 = 180, 181, 182
vC0 = 184
BI = 186
vPOLL = 194
vX = 196
vPQ = 208
vDM = 200

def srd(n): return f"s[{n}:{n+3}]"
def vr(n, c=1): return f"v{n}" if c == 1 else f"v[{n}:{n+c-1}]"
def ar(n, c=1): return f"a{n}" if c == 1 else f"a[{n}:{n+c-1}]"
def f2h(x): return "0x%08x" % struct.unpack("<I", struct.pack("<f", x))[0]
C0 = -2.0 * 0.7978845608028654 * 1.4426950408889634
C1 = C0 * 0.044715

class Asm:
    def __init__(self):
        self.L = []; self.vm = []; self.uid = 0
    def __call__(self, s): self.L.append("    " + s)
    def label(self, s): self.L.append(s + ":")
    def raw(self, s): self.L.append(s)
    def c(self, s): self.L.append("    ; " + s)
    def vmem(self, s, tag):
        self(s); self.vm.append(tag)
    def wait_vm(self, tag):
        hits = [i for i, t in enumerate(self.vm) if t == tag]
        if not hits: return
        n = len(self.vm) - 1 - hits[-1]
        self(f"s_waitcnt vmcnt({min(n, 63)})")
        self.vm = self.vm[hits[-1] + 1:]
    def wait_vm0(self):
        self("s_waitcnt vmcnt(0)"); self.vm = []
    def newlabel(self, p):
        self.uid += 1
        return f"L_{p}_{self.uid}"

def acc1(mt, nt): return vACC + (mt * 5 + nt) * 4
def acc2(mt, nt): return vACC + (mt * 4 + nt) * 4
def wfrag(step, t): return step * 16 + t * 4

def stamp(a, opt, idx, force=False):
    if opt.probe >= 0:
        ins = "s_memtime" if opt.probecyc else "s_memrealtime"
        if idx == opt.probe:
            a(f"{ins} s[{sP}:{sP+1}]")
            a("s_waitcnt lgkmcnt(0)")
            a(f"s_mov_b32 s{sPROF+1}, s{sP}")
        if idx == opt.probe0:
            a(f"{ins} s[{sP}:{sP+1}]")
            a("s_waitcnt lgkmcnt(0)")
            a(f"s_mov_b32 s{sPROF+2}, s{sP}")
        return
    if opt.lnprof and idx in (4, 5) and getattr(a, "ln_done", False): return
    if opt.prof:
        a(f"s_mem{'time' if opt.prof == 2 else 'realtime'} s[{sP}:{sP+1}]")
        a("s_waitcnt lgkmcnt(0)")
        a(f"s_mov_b32 s{sPROF+idx}, s{sP}")

def make_srd(a, n, lo, size, add=0):
    if add:
        a(f"s_add_u32 s{n}, s{lo}, {add}")
        a(f"s_addc_u32 s{n+1}, s{lo+1}, 0")
        a(f"s_and_b32 s{n+1}, s{n+1}, 0xffff")
    else:
        a(f"s_mov_b32 s{n}, s{lo}")
        a(f"s_and_b32 s{n+1}, s{lo+1}, 0xffff")
    a(f"s_mov_b32 s{n+2}, {size}")
    a(f"s_mov_b32 s{n+3}, 0x20000")

def nonce_spin(a, opt):
    lp = a.newlabel("nonce"); dn = a.newlabel("nonced")
    a(f"s_cmp_lg_u32 s{sNONCE}, 0")
    a(f"s_cbranch_scc1 {dn}")
    a(f"s_mov_b32 s{sSPIN}, 0")
    a(f"v_mov_b32 v{vT}, 0")
    a.label(lp)
    a(f"buffer_load_dword v{vT2}, v{vT}, {srd(sD)}, 0 offen sc1")
    a("s_waitcnt vmcnt(0)")
    a(f"v_readfirstlane_b32 s{sNONCE}, v{vT2}")
    a(f"s_add_u32 s{sSPIN}, s{sSPIN}, 1")
    a(f"s_cmp_lg_u32 s{sNONCE}, 0")
    a(f"s_cbranch_scc1 {dn}")
    a(f"s_cmp_lt_u32 s{sSPIN}, {opt.spin}")
    a(f"s_cbranch_scc1 {lp}")
    a.label(dn)

def lds_set(a, addr_sgpr_or_imm):
    a(f"v_mov_b32 v{vT}, {addr_sgpr_or_imm}")
    a(f"v_mov_b32 v{vT2}, 1")
    a(f"s_mov_b64 s[{sP}:{sP+1}], exec")
    a("s_mov_b64 exec, 1")
    a(f"ds_write_b32 v{vT}, v{vT2}")
    a(f"s_mov_b64 exec, s[{sP}:{sP+1}]")

def lds_spin(a, opt, addr):
    lp = a.newlabel("lspin"); dn = a.newlabel("lspun")
    a(f"v_mov_b32 v{vT}, {addr}")
    a(f"s_mov_b32 s{sSPIN}, 0")
    a.label(lp)
    a(f"ds_read_b32 v{vT2}, v{vT}")
    a("s_waitcnt lgkmcnt(0)")
    a(f"v_readfirstlane_b32 s{sP}, v{vT2}")
    a(f"s_add_u32 s{sSPIN}, s{sSPIN}, 1")
    a(f"s_cmp_lg_u32 s{sP}, 0")
    a(f"s_cbranch_scc1 {dn}")
    a(f"s_cmp_lt_u32 s{sSPIN}, {opt.spin * 8}")
    a(f"s_cbranch_scc1 {lp}")
    a.label(dn)

def dma_addr(a, stride, s_tile):
    a(f"v_lshrrev_b32 v{vT}, 3, v{vLANE}")
    a(f"v_lshrrev_b32 v{vT2}, 1, v{vT}")
    a(f"v_lshlrev_b32 v{vT2}, 1, v{vT2}")
    a(f"v_and_b32 v{vDM}, 7, v{vLANE}")
    a(f"v_xor_b32 v{vDM}, v{vDM}, v{vT2}")
    a(f"v_lshlrev_b32 v{vDM}, 4, v{vDM}")
    a(f"v_mul_u32_u24 v{vT}, {stride}, v{vT}")
    a(f"v_add_u32 v{vDM}, v{vDM}, v{vT}")
    a(f"s_lshl_b32 s{sT0}, s{s_tile}, 7")
    a(f"v_add_u32 v{vDM}, s{sT0}, v{vDM}")
    for b in range(1, 4):
        a(f"v_add_u32 v{vDM+b}, {b*(8*stride-1024)}, v{vDM}")

def step_off(a, dst, s_base, s_rot, i, nsteps, bytes_per_step):
    a(f"s_add_u32 s{sT4}, s{s_rot}, {i}")
    a(f"s_cmp_ge_u32 s{sT4}, {nsteps}")
    a(f"s_cselect_b32 s{dst}, {nsteps}, 0")
    a(f"s_sub_u32 s{sT4}, s{sT4}, s{dst}")
    a(f"s_mul_i32 s{sT4}, s{sT4}, {bytes_per_step}")
    a(f"s_add_u32 s{dst}, s{sT4}, s{s_base}")

def dma_step(a, srdn, stride, s_rowbase, s_rot, step, nsteps, s_lds, lds_off, tag, bits=""):
    a(f"s_add_u32 m0, s{s_lds}, {lds_off}")
    step_off(a, sOFF, s_rowbase, s_rot, step, nsteps, 32 * stride)
    for blk in range(4):
        a.vmem(f"buffer_load_dwordx4 v{vDM+blk}, {srd(srdn)}, s{sOFF} offen offset:{blk*1024} {bits} lds", tag)

def tr_step(a, vbase, off, step):
    for t in range(4):
        w = wfrag(step, t)
        a(f"ds_read_b64_tr_b16 {ar(w,2)}, v{vbase+t} offset:{off}")
        a(f"ds_read_b64_tr_b16 {ar(w+2,2)}, v{vbase+t} offset:{off+2048}")

def poll(a, opt, vaddr, nd, lanes, sleep=None, pre=0, nload=1):
    if sleep is None: sleep = opt.sleep
    if pre: a(f"s_sleep {pre}")
    lp = a.newlabel("poll"); dn = a.newlabel("polled")
    a(f"s_mov_b32 s{sSPIN}, 0")
    a.label(lp)
    ld = {1: "dword", 2: "dwordx2", 4: "dwordx4"}[nd]
    for k in range(nload):
        a(f"buffer_load_{ld} {vr(vPQ + 4*k, nd)}, v{vaddr}, {srd(sF)}, 0 offen offset:{k*1024} sc1")
    a("s_waitcnt vmcnt(0)")
    first = True
    for k in range(nload):
        for i in range(nd):
            if first:
                a(f"v_cmp_ne_u32 vcc, s{sNONCE}, v{vPQ+4*k+i}"); first = False
            else:
                a(f"v_cmp_ne_u32 s[{sP}:{sP+1}], s{sNONCE}, v{vPQ+4*k+i}")
                a(f"s_or_b64 vcc, vcc, s[{sP}:{sP+1}]")
    if lanes is not None:
        a(f"s_and_b64 vcc, vcc, s[{lanes}:{lanes+1}]")
    a(f"s_add_u32 s{sSPIN}, s{sSPIN}, 1")
    a("s_cmp_eq_u64 vcc, 0")
    a(f"s_cbranch_scc1 {dn}")
    if sleep: a(f"s_sleep {sleep}")
    a(f"s_cmp_lt_u32 s{sSPIN}, {opt.spin}")
    a(f"s_cbranch_scc1 {lp}")
    a.label(dn)
    a.vm = []

def flag_store(a, s_index_bytes):
    a(f"v_mov_b32 v{vT}, s{s_index_bytes}")
    a(f"v_mov_b32 v{vT2}, s{sNONCE}")
    a(f"s_mov_b64 s[{sP}:{sP+1}], exec")
    a("s_mov_b64 exec, 1")
    a.vmem(f"buffer_store_dword v{vT2}, v{vT}, {srd(sF)}, 0 offen sc1", "flag")
    a(f"s_mov_b64 exec, s[{sP}:{sP+1}]")

def gelu_pairs(a, regs, tmp, fill=None):
    def each(fn):
        for i, r in enumerate(regs): fn(r, tmp + 2 * i)
    each(lambda r, t: a(f"v_pk_mul_f32 {vr(t,2)}, {vr(r,2)}, {vr(r,2)}"))
    each(lambda r, t: a(f"v_pk_fma_f32 {vr(t,2)}, {vr(t,2)}, s[100:101], {vr(vC0,2)}"))
    each(lambda r, t: a(f"v_pk_mul_f32 {vr(t,2)}, {vr(t,2)}, {vr(r,2)}"))
    if fill: fill()
    each(lambda r, t: (a(f"v_exp_f32 v{t}, v{t}"), a(f"v_exp_f32 v{t+1}, v{t+1}")))
    each(lambda r, t: a(f"v_pk_add_f32 {vr(t,2)}, {vr(t,2)}, 1.0 op_sel_hi:[1,0]"))
    each(lambda r, t: (a(f"v_rcp_f32 v{t}, v{t}"), a(f"v_rcp_f32 v{t+1}, v{t+1}")))
    a("s_nop 0")
    each(lambda r, t: a(f"v_pk_mul_f32 {vr(r,2)}, {vr(r,2)}, {vr(t,2)}"))

def w2_slot(step):
    if step < 8: return sM0B, step * 4096, vTR, step * 4096
    if step < 10: return sUP, (step - 8) * 4096, vTRU, (step - 8) * 4096
    return sM0B, (step - 10) * 4096, vTR, (step - 10) * 4096

def w2_dma(a, step):
    sb, off, _, _ = w2_slot(step)
    dma_step(a, sW2, S * 2, sWB, sROT2, step, 14, sb, off, f"w2_{step}", OPT.w2bits)

def w2_dma_parts(a, step):
    sb, off, _, _ = w2_slot(step)
    def setup():
        a(f"s_add_u32 m0, s{sb}, {off}")
        step_off(a, sOFF, sWB, sROT2, step, 14, 32 * S * 2)
    def one(blk):
        return lambda: a.vmem(f"buffer_load_dwordx4 v{vDM+blk}, {srd(sW2)}, s{sOFF} offen offset:{blk*1024} {OPT.w2bits} lds", f"w2_{step}")
    return [setup] + [one(b) for b in range(4)]

def w2_tr(a, step):
    _, _, vb, off = w2_slot(step)
    tr_step(a, vb, off, step)

def gen(opt):
    global OPT
    OPT = opt
    a = Asm()
    NS = opt.depth + 1
    def ring(slot, t): return vRING + slot * 20 + t * 4
    a.raw(f"; @launch grid=(256,1,1) block=(256,1,1) lds={LDS_BYTES}")
    a.raw('.amdgcn_target "amdgcn-amd-amdhsa--gfx950"')
    a.raw(".text")
    a.raw(f".globl {KN}")
    a.raw(".p2align 8")
    a.raw(f".type {KN},@function")
    a.label(KN)
    if opt.cpf: a("s_getpc_b64 s[94:95]")
    a(f"s_cmp_ge_u32 s{sWG}, 256")
    a("s_cbranch_scc1 L_done")
    a("s_load_dwordx16 s[4:19], s[0:1], 0")
    if opt.prof:
        a(f"s_mem{'time' if opt.prof == 2 else 'realtime'} s[{sP}:{sP+1}]")
    if opt.prof:
        for i in range(1, 15): a(f"s_mov_b32 s{sPROF+i}, 0")
    if opt.pad or opt.probe >= 0:
        a("s_memrealtime s[96:97]")
    a(f"v_lshrrev_b32 v{vT}, 6, v{vTID}")
    a(f"v_and_b32 v{vLANE}, 63, v{vTID}")
    a(f"v_readfirstlane_b32 s{sWAVE}, v{vT}")
    a(f"s_and_b32 s{sXCD}, s{sWG}, 7")
    a(f"s_lshr_b32 s{sJ}, s{sWG}, 3")
    if opt.p1 == 2:
        a(f"s_lshr_b32 s{sT1}, s{sXCD}, 1")
        a(f"s_and_b32 s{sT2}, s{sXCD}, 1")
        a(f"s_lshl_b32 s{sT2}, s{sT2}, 2")
        a(f"s_mul_i32 s{sT0}, s{sT1}, 7")
        a(f"s_lshr_b32 s{sFT}, s{sJ}, 2")
        a(f"s_add_u32 s{sFT}, s{sFT}, s{sT0}")
        a(f"s_and_b32 s{sT3}, s{sJ}, 3")
        a(f"s_add_u32 s{sDT1}, s{sT2}, s{sT3}")
        if opt.rot8: a(f"s_lshl_b32 s{sROT1}, s{sDT1}, 1")
        else: a(f"s_lshl_b32 s{sROT1}, s{sT3}, 2")
        a(f"s_cmp_eq_u32 s{sT1}, 3")
        a(f"s_cselect_b32 s{sJLIM}, 24, 28")
        a(f"s_lshl_b32 s{sT0}, s{sXCD}, 2")
        a(f"s_sub_u32 s{sT0}, s{sT0}, 28")
        a(f"s_lshl_b32 s{sT3}, s{sXCD}, 3")
        a(f"s_sub_u32 s{sT3}, s{sT3}, 48")
        a(f"s_cselect_b32 s{sIDLE}, s{sT0}, s{sT0}")
        a(f"s_cmp_ge_u32 s{sXCD}, 6")
        a(f"s_cselect_b32 s{sIDLE}, s{sT3}, s{sT0}")
        a(f"s_add_u32 s{sIDLE}, s{sIDLE}, s{sJ}")
    else:
        a(f"s_lshl_b32 s{sT0}, s{sXCD}, 2")
        a(f"s_mul_i32 s{sT1}, s{sXCD}, 3")
        a(f"s_add_u32 s{sT1}, s{sT1}, 3")
        a(f"s_cmp_lt_u32 s{sXCD}, 3")
        a(f"s_cselect_b32 s{sT0}, s{sT0}, s{sT1}")
        a(f"s_cselect_b32 s{sJLIM}, 32, 24")
        a(f"s_lshr_b32 s{sFT}, s{sJ}, 3")
        a(f"s_add_u32 s{sFT}, s{sFT}, s{sT0}")
        a(f"s_and_b32 s{sDT1}, s{sJ}, 7")
        a(f"s_lshl_b32 s{sROT1}, s{sDT1}, 1")
        a(f"s_lshl_b32 s{sIDLE}, s{sXCD}, 3")
        a(f"s_add_u32 s{sIDLE}, s{sIDLE}, s{sJ}")
        a(f"s_sub_u32 s{sIDLE}, s{sIDLE}, 48")
    if opt.rotg1 == 3:
        a(f"s_mul_i32 s{sT0}, s{sFT}, 11")
        a(f"s_lshr_b32 s{sT0}, s{sT0}, 5")
        a(f"s_mul_i32 s{sT0}, s{sT0}, 3")
        a(f"s_sub_u32 s{sT0}, s{sFT}, s{sT0}")
        a(f"s_mul_i32 s{sT0}, s{sT0}, 5")
        a(f"s_add_u32 s{sROT1}, s{sROT1}, s{sT0}")
        a(f"s_and_b32 s{sROT1}, s{sROT1}, 15")
    if opt.rotg1 == 2:
        a(f"s_and_b32 s{sT0}, s{sFT}, 1")
        a(f"s_lshl_b32 s{sT0}, s{sT0}, 3")
        a(f"s_add_u32 s{sROT1}, s{sROT1}, s{sT0}")
        a(f"s_and_b32 s{sROT1}, s{sROT1}, 15")
    if opt.rota1:
        a(f"s_mul_i32 s{sT0}, s{sFT}, {opt.rota1}")
        a(f"s_add_u32 s{sROT1}, s{sROT1}, s{sT0}")
        a(f"s_and_b32 s{sROT1}, s{sROT1}, 15")
    if opt.p2 == 2:
        a(f"s_lshr_b32 s{sT1}, s{sXCD}, 1")
        a(f"s_and_b32 s{sT2}, s{sXCD}, 1")
        a(f"s_lshl_b32 s{sT2}, s{sT2}, 2")
        a(f"s_lshr_b32 s{sT0}, s{sJ}, 2")
        a(f"s_lshl_b32 s{sST}, s{sT1}, 3")
        a(f"s_add_u32 s{sST}, s{sST}, s{sT0}")
        a(f"s_and_b32 s{sT3}, s{sJ}, 3")
        a(f"s_add_u32 s{sDT2}, s{sT2}, s{sT3}")
        if opt.rot8:
            a(f"s_mul_i32 s{sROT2}, s{sDT2}, 7")
            a(f"s_lshr_b32 s{sROT2}, s{sROT2}, 2")
        else:
            a(f"s_mul_i32 s{sROT2}, s{sT3}, 7")
            a(f"s_lshr_b32 s{sROT2}, s{sROT2}, 1")
    else:
        a(f"s_lshr_b32 s{sT0}, s{sJ}, 3")
        a(f"s_lshl_b32 s{sST}, s{sXCD}, 2")
        a(f"s_add_u32 s{sST}, s{sST}, s{sT0}")
        a(f"s_and_b32 s{sDT2}, s{sJ}, 7")
        a(f"s_mul_i32 s{sROT2}, s{sDT2}, 7")
        a(f"s_lshr_b32 s{sROT2}, s{sROT2}, 2")
    if opt.rotg2:
        if opt.rotg2 == 2:
            a(f"s_and_b32 s{sT0}, s{sST}, 1")
            a(f"s_mul_i32 s{sT0}, s{sT0}, 7")
        else:
            a(f"s_mul_i32 s{sT0}, s{sST}, 11")
            a(f"s_lshr_b32 s{sT0}, s{sT0}, 5")
            a(f"s_mul_i32 s{sT0}, s{sT0}, 3")
            a(f"s_sub_u32 s{sT0}, s{sST}, s{sT0}")
            a(f"s_mul_i32 s{sT0}, s{sT0}, 5")
        a(f"s_add_u32 s{sROT2}, s{sROT2}, s{sT0}")
        a(f"s_cmp_ge_u32 s{sROT2}, 14")
        a(f"s_cselect_b32 s{sT0}, 14, 0")
        a(f"s_sub_u32 s{sROT2}, s{sROT2}, s{sT0}")
    if opt.rota2:
        a(f"s_mul_i32 s{sT0}, s{sST}, {opt.rota2}")
        a(f"s_add_u32 s{sROT2}, s{sROT2}, s{sT0}")
        a(f"s_and_b32 s{sT0}, s{sROT2}, 0xff")
        a(f"s_mul_i32 s{sT0}, s{sROT2}, 18725")
        a(f"s_lshr_b32 s{sT0}, s{sT0}, 18")
        a(f"s_mul_i32 s{sT0}, s{sT0}, 14")
        a(f"s_sub_u32 s{sROT2}, s{sROT2}, s{sT0}")
    if not (opt.rot & 1): a(f"s_mov_b32 s{sROT1}, 0")
    if not (opt.rot & 2): a(f"s_mov_b32 s{sROT2}, 0")
    a(f"s_lshl_b32 s{sM0B}, s{sWAVE}, 15")
    a(f"s_lshl_b32 s{sUP}, s{sWAVE}, 13")
    a(f"s_add_u32 s{sUP}, s{sUP}, 131072")
    def tr_addr(base_sgpr):
        t0, t1, t2 = vX, vX + 1, vX + 2
        a(f"v_lshrrev_b32 v{t0}, 4, v{vLANE}")
        a(f"v_and_b32 v{t1}, 1, v{t0}")
        a(f"v_lshlrev_b32 v{t1}, 2, v{t1}")
        a(f"v_bfe_u32 v{t2}, v{vLANE}, 2, 2")
        a(f"v_add_u32 v{t1}, v{t1}, v{t2}")
        a(f"v_lshrrev_b32 v{t0}, 1, v{t0}")
        a(f"v_lshlrev_b32 v{t0}, 10, v{t0}")
        a(f"v_lshlrev_b32 v{t2}, 7, v{t1}")
        a(f"v_add_u32 v{t0}, v{t0}, v{t2}")
        a(f"v_and_b32 v{t2}, 3, v{vLANE}")
        a(f"v_lshlrev_b32 v{t2}, 3, v{t2}")
        a(f"v_add_u32 v{t0}, v{t0}, v{t2}")
        a(f"v_add_u32 v{t0}, s{base_sgpr}, v{t0}")
        a(f"v_lshrrev_b32 v{t1}, 1, v{t1}")
        for t in range(4):
            a(f"v_xor_b32 v{t2}, {t}, v{t1}")
            a(f"v_lshlrev_b32 v{t2}, 5, v{t2}")
            a(f"v_add_u32 v{vTR+t}, v{t0}, v{t2}")
    def w1_dma(i): dma_step(a, sW1, F * 2, sWB, sROT1, i, 16, sM0B, (i % 8) * 4096, f"w1_{i}", "nt" if i < opt.nta else opt.w1bits)
    def w1_stream(first, dp):
        retired = 0
        def retire():
            nonlocal retired
            a.wait_vm(f"w1_{retired}")
            if retired: a("s_waitcnt lgkmcnt(0)")
            tr_step(a, vTR, (retired % 8) * 4096, retired)
            retired += 1
        for i in range(first, 16):
            while retired <= i - dp: retire()
            if i >= 8:
                while retired <= i - 8: retire()
                if retired == i - 7: a("s_waitcnt lgkmcnt(0)")
            w1_dma(i)
        while retired < 16: retire()
        a("s_waitcnt lgkmcnt(0)")
    dma_addr(a, F * 2, sFT)
    a(f"s_mul_i32 s{sWB}, s{sWAVE}, {512*F*2}")
    a(f"s_cmp_ge_u32 s{sWAVE}, 2")
    a("s_cbranch_scc1 L_loader")

    a.c("LayerNorm: wave w normalises rows 32*ks + 16*w + 4*q + (0..3), 16 lanes per row")
    XR, XF, TM = 96, 120, 160
    if opt.prio: a(f"s_setprio {opt.prio}")
    a(f"s_lshr_b32 s{sT0}, s{sWG}, 2")
    a(f"s_and_b32 s{sT1}, s{sWG}, 3")
    a(f"s_lshl_b32 s{sT2}, s{sT0}, 5")
    a(f"s_lshl_b32 s{sT3}, s{sWAVE}, 4")
    a(f"s_add_u32 s{sT2}, s{sT2}, s{sT3}")
    a(f"s_lshl_b32 s{sT3}, s{sT1}, 2")
    a(f"s_add_u32 s{sT2}, s{sT2}, s{sT3}")
    a(f"s_mul_i32 s{sT2}, s{sT2}, 1280")
    a(f"v_lshrrev_b32 v{TM}, 4, v{vLANE}")
    a(f"v_and_b32 v{TM+1}, 15, v{vLANE}")
    a(f"v_mul_u32_u24 v{TM+2}, 1280, v{TM}")
    a(f"v_lshlrev_b32 v{TM+3}, 4, v{TM+1}")
    a(f"v_add_u32 v{TM+2}, v{TM+2}, v{TM+3}")
    a(f"v_mov_b32 v{vT}, 0")
    a("s_waitcnt lgkmcnt(0)")
    if opt.prof: a(f"s_mov_b32 s{sPROF}, s{sP}")
    make_srd(a, sX, 4, S * D * 2)
    for i in range(5):
        a.vmem(f"buffer_load_dwordx4 {vr(XR+4*i,4)}, v{TM+2}, {srd(sX)}, s{sT2} offen offset:{i*256} {opt.xbits}", "x")
    make_srd(a, sD, 16, 256)
    a.vmem(f"buffer_load_dword v{vPOLL}, v{vT}, {srd(sD)}, 0 offen sc1", "nonce")
    make_srd(a, sW1, 6, S * F * 2)
    a(f"s_cmp_ge_u32 s{sJ}, s{sJLIM}")
    a("s_cbranch_scc1 L_ln_now1")
    for i in range(opt.nearly): w1_dma(i)
    a.label("L_ln_now1")
    a("s_barrier")
    make_srd(a, sH, 18, H_BYTES, WS_H)
    make_srd(a, sF, 18, FLAG_BYTES, WS_FLAG)
    a(f"s_mul_i32 s{sSTEP}, s{sT0}, 40960")
    a(f"s_lshl_b32 s{sT1}, s{sT1}, 8")
    a(f"s_add_u32 s{sSTEP}, s{sSTEP}, s{sT1}")
    a(f"s_lshl_b32 s{sT3}, s{sWAVE}, 2")
    a(f"v_add_u32 v{TM+4}, s{sT3}, v{TM}")
    a(f"v_mul_u32_u24 v{TM+4}, {LN_ROW}, v{TM+4}")
    a(f"v_add_u32 v{TM+4}, v{TM+4}, v{TM+3}")
    a(f"v_add_u32 v{TM+4}, {LN_BASE}, v{TM+4}")
    a(f"v_bfe_u32 v{TM+5}, v{vLANE}, 2, 2")
    a(f"v_mul_u32_u24 v{TM+5}, {LN_ROW}, v{TM+5}")
    a(f"s_mul_i32 s{sT3}, s{sWAVE}, 20")
    a(f"v_add_u32 v{TM+6}, s{sT3}, v{TM}")
    a(f"v_lshlrev_b32 v{TM+7}, 5, v{TM+6}")
    a(f"v_add_u32 v{TM+5}, v{TM+5}, v{TM+7}")
    a(f"v_and_b32 v{TM+7}, 3, v{vLANE}")
    a(f"v_lshlrev_b32 v{TM+7}, 3, v{TM+7}")
    a(f"v_add_u32 v{TM+5}, v{TM+5}, v{TM+7}")
    a(f"v_add_u32 v{TM+5}, {LN_BASE}, v{TM+5}")
    a(f"v_lshlrev_b32 v{TM+6}, 10, v{TM+6}")
    a(f"v_add_u32 v{TM+6}, v{TM+6}, v{TM+3}")
    a(f"s_mov_b32 s{sT0}, 0xffff0000")
    a(f"s_cmp_ge_u32 s{sJ}, s{sJLIM}")
    a("s_cbranch_scc1 L_ln_idle")
    a(f"s_waitcnt vmcnt({1 + 4*opt.nearly})")
    a("s_branch L_ln_go")
    a.label("L_ln_idle")
    a("s_waitcnt vmcnt(1)")
    a.label("L_ln_go")
    a.vm = [t for t in a.vm if t != "x"]
    stamp(a, opt, 1)
    for i in range(20):
        a(f"v_lshlrev_b32 v{XF+2*i}, 16, v{XR+i}")
        a(f"v_and_b32 v{XF+2*i+1}, s{sT0}, v{XR+i}")
    SM = TM + 8
    for k in range(4):
        a(f"v_pk_add_f32 {vr(SM+2*k,2)}, {vr(XF+2*k,2)}, {vr(XF+8+2*k,2)}")
    for i in range(8, 20):
        k = i % 4
        a(f"v_pk_add_f32 {vr(SM+2*k,2)}, {vr(SM+2*k,2)}, {vr(XF+2*i,2)}")
    def reduce_row(dst):
        a(f"v_pk_add_f32 {vr(SM,2)}, {vr(SM,2)}, {vr(SM+2,2)}")
        a(f"v_pk_add_f32 {vr(SM+4,2)}, {vr(SM+4,2)}, {vr(SM+6,2)}")
        a(f"v_pk_add_f32 {vr(SM,2)}, {vr(SM,2)}, {vr(SM+4,2)}")
        a(f"v_add_f32 v{dst}, v{SM}, v{SM+1}")
        for rot in (8, 4, 2, 1):
            a("s_nop 1")
            a(f"v_add_f32_dpp v{dst}, v{dst}, v{dst} row_ror:{rot} row_mask:0xf bank_mask:0xf")
    MN = TM + 16
    reduce_row(MN)
    a(f"v_mul_f32 v{MN}, {f2h(1.0/640.0)}, v{MN}")
    a(f"v_mov_b32 v{MN+1}, v{MN}")
    for i in range(20):
        a(f"v_pk_add_f32 {vr(XF+2*i,2)}, {vr(XF+2*i,2)}, {vr(MN,2)} neg_lo:[0,1] neg_hi:[0,1]")
    for k in range(4):
        a(f"v_pk_mul_f32 {vr(SM+2*k,2)}, {vr(XF+2*k,2)}, {vr(XF+2*k,2)}")
    for i in range(4, 20):
        k = i % 4
        a(f"v_pk_fma_f32 {vr(SM+2*k,2)}, {vr(XF+2*i,2)}, {vr(XF+2*i,2)}, {vr(SM+2*k,2)}")
    reduce_row(MN)
    a(f"v_mov_b32 v{MN+1}, {f2h(1e-5)}")
    a(f"v_fmac_f32 v{MN+1}, {f2h(1.0/640.0)}, v{MN}")
    a(f"v_rsq_f32 v{MN}, v{MN+1}")
    a("s_nop 0")
    a(f"v_mov_b32 v{MN+1}, v{MN}")
    for i in range(20):
        a(f"v_pk_mul_f32 {vr(XF+2*i,2)}, {vr(XF+2*i,2)}, {vr(MN,2)}")
    for i in range(20):
        a(f"v_cvt_pk_bf16_f32 v{XR+i}, v{XF+2*i}, v{XF+2*i+1}")
    if opt.lnprof: stamp(a, opt, 4)
    for i in range(5):
        a(f"ds_write_b128 v{TM+4}, {vr(XR+4*i,4)} offset:{i*256}")
    a(f"s_lshl_b32 s{sT0}, s{sWAVE}, 2")
    a(f"s_add_u32 s{sT1}, s{sT0}, {LF_BASE}")
    a(f"s_xor_b32 s{sT0}, s{sT0}, 4")
    a(f"s_add_u32 s{sT0}, s{sT0}, {LF_BASE}")
    a("s_waitcnt lgkmcnt(0)")
    lds_set(a, f"s{sT1}")
    lds_spin(a, opt, f"s{sT0}")
    if opt.lnprof: stamp(a, opt, 5)
    for i in range(5):
        a(f"ds_read_b64_tr_b16 {vr(XF+4*i,2)}, v{TM+5} offset:{i*128}")
        a(f"ds_read_b64_tr_b16 {vr(XF+4*i+2,2)}, v{TM+5} offset:{i*128+4*LN_ROW}")
    for i in range(5):
        a(f"s_waitcnt lgkmcnt({8-2*i})")
        a(f"s_add_u32 s{sT0}, s{sSTEP}, {i*4096}")
        a.vmem(f"buffer_store_dwordx4 {vr(XF+4*i,4)}, v{TM+6}, {srd(sH)}, s{sT0} offen {opt.hbits}", "h")
    stamp(a, opt, 2)
    a("s_waitcnt vmcnt(5)")
    a(f"v_readfirstlane_b32 s{sNONCE}, v{vPOLL}")
    nonce_spin(a, opt)
    a.wait_vm0()
    a(f"s_mul_i32 s{sT0}, s{sWG}, {opt.hstride}")
    a(f"s_lshl_b32 s{sT1}, s{sWAVE}, 2")
    a(f"s_add_u32 s{sT0}, s{sT0}, s{sT1}")
    flag_store(a, sT0)
    a(f"s_lshl_b32 s{sT0}, s{sWAVE}, 2")
    a(f"s_add_u32 s{sT0}, s{sT0}, {LF_BASE + 8}")
    lds_set(a, f"s{sT0}")
    stamp(a, opt, 3)
    if opt.prio: a("s_setprio 0")
    a.ln_done = True
    a("s_branch L_roles_done")

    a.label("L_loader")
    a.vm = []
    if opt.cpf:
        a(f"s_cmp_lg_u32 s{sWAVE}, {opt.cpfw}")
        a("s_cbranch_scc1 L_nocpf")
        a(f"s_lshl_b32 s{sT0}, s{sJ}, 11")
        a(f"v_lshlrev_b32 v{vX}, 4, v{vLANE}")
        a(f"v_add_u32 v{vX}, s{sT0}, v{vX}")
        for h in range(2):
            if h: a(f"v_add_u32 v{vX}, 1024, v{vX}")
            a(f"v_cmp_gt_u32 vcc, L_codeend-{KN}-20, v{vX}")
            a(f"s_and_saveexec_b64 s[{sP}:{sP+1}], vcc")
            a(f"s_cbranch_execz L_cpf{h}")
            a(f"global_load_dwordx4 {vr(240+4*h,4)}, v{vX}, s[94:95]")
            a.label(f"L_cpf{h}")
            a(f"s_mov_b64 exec, s[{sP}:{sP+1}]")
        a.label("L_nocpf")
    a(f"v_lshlrev_b32 v{vX}, 2, v{vLANE}")
    a(f"v_add_u32 v{vX}, {LF_BASE}, v{vX}")
    a(f"v_mov_b32 v{vX+1}, 0")
    a(f"ds_write_b32 v{vX}, v{vX+1}")
    a("s_waitcnt lgkmcnt(0)")
    if opt.prof: a(f"s_mov_b32 s{sPROF}, s{sP}")
    make_srd(a, sW1, 6, S * F * 2)
    make_srd(a, sD, 16, 256)
    a(f"s_cmp_lg_u32 s{sWG}, 0")
    a("s_cbranch_scc1 L_nononce")
    a(f"s_cmp_lg_u32 s{sWAVE}, 3")
    a("s_cbranch_scc1 L_nononce")
    a(f"s_memrealtime s[{sP}:{sP+1}]")
    a("s_waitcnt lgkmcnt(0)")
    a(f"s_or_b32 s{sT0}, s{sP}, 1")
    a(f"v_mov_b32 v{vT2}, s{sT0}")
    a(f"v_mov_b32 v{vT}, 0")
    a(f"s_mov_b64 s[{sP}:{sP+1}], exec")
    a("s_mov_b64 exec, 1")
    a(f"buffer_store_dword v{vT2}, v{vT}, {srd(sD)}, 0 offen sc1")
    a(f"s_mov_b64 exec, s[{sP}:{sP+1}]")
    a.label("L_nononce")
    a(f"s_cmp_ge_u32 s{sJ}, s{sJLIM}")
    a("s_cbranch_scc1 L_loader_idle")
    for i in range(2): w1_dma(i)
    a("s_barrier")
    tr_addr(sM0B)
    if opt.hold:
        lds_spin(a, opt, LF_BASE + 8)
        lds_spin(a, opt, LF_BASE + 12)
    w1_stream(2, opt.dp)
    a(f"s_mov_b32 s{sNONCE}, 0")
    nonce_spin(a, opt)
    a("s_branch L_w1_ready")
    a.label("L_loader_idle")
    a.vm = []
    a("s_barrier")
    if opt.pfwait:
        lds_spin(a, opt, LF_BASE + 8)
        lds_spin(a, opt, LF_BASE + 12)
    if opt.pf == 1:
        make_srd(a, sW2, 10, F * S * 2)
        a(f"s_lshl_b32 s{sT0}, s{sIDLE}, 1")
        a(f"s_add_u32 s{sT0}, s{sT0}, s{sWAVE}")
        a(f"s_sub_u32 s{sT0}, s{sT0}, 2")
        a(f"s_lshl_b32 s{sT0}, s{sT0}, 10")
        a(f"v_lshlrev_b32 v{vX}, 4, v{vLANE}")
        inc = 80 * 1024
        for k in range(87):
            o = vRING + (k % 20) * 4
            a.vmem(f"buffer_load_dwordx4 {vr(o,4)}, v{vX}, {srd(sW2)}, s{sT0} offen {opt.pfbits}", f"pf{k}")
            a(f"s_add_u32 s{sT0}, s{sT0}, {inc}")
            if k >= opt.pfdepth: a.wait_vm(f"pf{k-opt.pfdepth}")
    a(f"s_mov_b32 s{sNONCE}, 0")
    nonce_spin(a, opt)
    a("s_branch L_nogemm1")

    a.label("L_roles_done")
    a.vm = []
    a(f"s_cmp_ge_u32 s{sJ}, s{sJLIM}")
    a("s_cbranch_scc1 L_nogemm1")
    a.vm = []
    tr_addr(sM0B)
    for i in range(opt.nearly): a.vm.append(f"w1_{i}")
    a.vm.append("flag")
    w1_stream(opt.nearly, opt.dpl)

    def common_setup():
        make_srd(a, sH, 18, H_BYTES, WS_H)
        make_srd(a, sF, 18, FLAG_BYTES, WS_FLAG)
        make_srd(a, sB1, 8, F * 2)
        make_srd(a, sW2, 10, F * S * 2)
        make_srd(a, sB2, 12, S * 2)
        make_srd(a, sO, 14, S * D * 2)
        make_srd(a, sG, 18, G_BYTES, WS_G)
        a(f"v_lshrrev_b32 v{vT}, 4, v{vLANE}")
        a(f"v_lshlrev_b32 v{vT}, 3, v{vT}")
        a(f"s_and_b32 s{sT0}, s{sWAVE}, 1")
        a(f"s_lshl_b32 s{sT0}, s{sT0}, 6")
        a(f"s_lshl_b32 s{sT1}, s{sFT}, 7")
        a(f"s_add_u32 s{sT0}, s{sT0}, s{sT1}")
        a.vmem(f"buffer_load_dwordx2 {vr(vB1,2)}, v{vT}, {srd(sB1)}, s{sT0} offen", "b")
        a.vmem(f"buffer_load_dwordx2 {vr(vB1+2,2)}, v{vT}, {srd(sB1)}, s{sT0} offen offset:32", "b")
        a(f"v_and_b32 v{vT}, 15, v{vLANE}")
        a(f"v_lshlrev_b32 v{vT}, 1, v{vT}")
        a(f"s_lshl_b32 s{sT0}, s{sST}, 7")
        a(f"s_lshl_b32 s{sT1}, s{sWAVE}, 5")
        a(f"s_add_u32 s{sT0}, s{sT0}, s{sT1}")
        a.vmem(f"buffer_load_ushort v{vB2}, v{vT}, {srd(sB2)}, s{sT0} offen", "b")
        dma_addr(a, S * 2, sST)
        a(f"s_mul_i32 s{sWB}, s{sWAVE}, {448*S*2}")
        tr_addr(sM0B)
        a(f"s_sub_u32 s{sT0}, s{sUP}, s{sM0B}")
        for t in range(4):
            a(f"v_add_u32 v{vTRU+t}, s{sT0}, v{vTR+t}")
        a(f"v_lshlrev_b32 v{vL0}, 4, v{vLANE}")
        a(f"v_add_u32 v{vL1}, 65536, v{vL0}")
        a(f"v_add_u32 v{vL2}, 131072, v{vL0}")

    a.label("L_w1_ready")
    a.vm = []
    stamp(a, opt, 4)
    common_setup()
    a(f"s_mul_i32 s{sT0}, s{sDT1}, 5120")
    a(f"v_add_u32 v{vA}, s{sT0}, v{vL0}")
    a(f"v_add_u32 v{vA2}, 4096, v{vA}")
    if opt.onepoll & 1:
        assert opt.hstride == 8
        a(f"s_cmp_lg_u32 s{sWAVE}, {opt.pollw}")
        a("s_cbranch_scc1 L_hpolled")
        poll(a, opt, vL0, 4, None, opt.sleeph, opt.preh, 2)
        a.label("L_hpolled")
        a.wait_vm0()
    else:
        a(f"s_lshl_b32 s{sT0}, s{sWAVE}, 6")
        a(f"v_add_u32 v{vX}, s{sT0}, v{vLANE}")
        a(f"v_mul_u32_u24 v{vX}, {opt.hstride}, v{vX}")
        poll(a, opt, vX, 2, None, opt.sleeph, opt.preh)
    a("s_barrier")
    stamp(a, opt, 5)

    def a_loads(srdn, step, nsteps, s_rot):
        slot = step % NS
        step_off(a, sOFF, sSTEP, s_rot, step, nsteps, 40960)
        return [f"buffer_load_dwordx4 {vr(ring(slot,t),4)}, v{vA if t < 4 else vA2}, {srd(srdn)}, s{sOFF} offen offset:{(t*1024) if t < 4 else 0} sc1" for t in range(5)]

    def main_loop(srdn, nsteps, s_rot, tagp, mfma, stamp0, tail, nuni):
        for st in range(opt.depth):
            for o, ins in enumerate(a_loads(srdn, st, nsteps, s_rot)): a.vmem(ins, f"{tagp}{st}_{o}")
        for st in range(nuni):
            nx = st + opt.depth
            nxt = a_loads(srdn, nx, nsteps, s_rot) if nx < nsteps else None
            a.wait_vm(f"{tagp}{st}_4")
            if st == 0 and stamp0 is not None: stamp(a, opt, stamp0)
            for o in range(5):
                if nxt: a.vmem(nxt[o], f"{tagp}{nx}_{o}")
                for i in range(4): mfma(st, o, i, st % NS)
                if tail: tail(st, o)

    def tile_tail(nsteps, tagp, first, last, frag_of, mfma_tile, write_tile, extra):
        ic = [0]
        done_at = {}
        queue = []
        extra = list(extra)
        def emit(fn):
            fn(); ic[0] += 1
        def filler():
            if queue and ic[0] - done_at[queue[0]] >= 9:
                t = queue.pop(0); emit(lambda: write_tile(t)); return
            if extra: emit(extra.pop(0))
        tiles = list(first) + list(last)
        for i in range(0, len(tiles), 2):
            pair = tiles[i:i + 2]
            for t in pair:
                for st in (nsteps - 2, nsteps - 1): a.wait_vm(f"{tagp}{st}_{frag_of(t)}")
            for st in (nsteps - 2, nsteps - 1):
                for t in pair:
                    emit(lambda: mfma_tile(st, t))
                    if st == nsteps - 1:
                        done_at[t] = ic[0]
                        if t in first: queue.append(t)
                    filler()
        while extra: emit(extra.pop(0))
        while queue:
            while ic[0] - done_at[queue[0]] < 9: emit(lambda: a("s_nop 0"))
            t = queue.pop(0); emit(lambda: write_tile(t))

    a(f"s_mul_i32 s{sSTEP}, s{sWAVE}, {16*40960}")
    def mfma1(st, nt, mt, slot):
        c = "0" if st == 0 else vr(acc1(mt, nt), 4)
        a(f"v_mfma_f32_16x16x32_bf16 {vr(acc1(mt,nt),4)}, {ar(wfrag(st,mt),4)}, {vr(ring(slot,nt),4)}, {c}")
    parts13 = w2_dma_parts(a, 0) if opt.t13 else []
    def tail1(st, o):
        if st == 13 and parts13:
            if o == 0: parts13[0]()
            else: parts13[o]()
    main_loop(sH, 16, sROT1, "h", mfma1, 6, tail1, 14)

    a(f"s_mov_b32 s100, {f2h(C1)}"); a(f"s_mov_b32 s101, {f2h(C1)}")
    a(f"v_mov_b32 v{vC0}, {f2h(C0)}"); a(f"v_mov_b32 v{vC0+1}, {f2h(C0)}")
    def lds_ref(addr):
        if addr < 65536: return vL0, addr
        if addr < 131072: return vL1, addr - 65536
        return vL2, addr - 131072
    def owner1(p, nt): return p + (0 if nt < 3 else 2)
    units = [(p, nt) for p in range(2) for nt in range(5)]
    def red1_addr(src, u):
        k = [x for x in units if owner1(*x) != src].index(u)
        return src * 32768 + 24576 + k * 2048 if k < 4 else 131072 + src * 8192 + (k - 4) * 2048
    saved_vm = list(a.vm)
    for w in range(4):
        if w < 3:
            a(f"s_cmp_lg_u32 s{sWAVE}, {w}")
            a(f"s_cbranch_scc1 L_ep1_{w+1}")
        a.vm = list(saved_vm)
        nis = [1 if opt.t13 else 0]
        def more(n, limit):
            for _ in range(n):
                if nis[0] < limit:
                    w2_dma(a, nis[0]); nis[0] += 1
        tl = [(2 * p + hf, nt) for nt in range(5) for p in range(2) for hf in range(2)]
        first = [t for t in tl if owner1(t[0] // 2, t[1]) != w]
        last = [t for t in tl if owner1(t[0] // 2, t[1]) == w]
        def wr1(t):
            vb, off = lds_ref(red1_addr(w, (t[0] // 2, t[1])) + (t[0] & 1) * 1024)
            a(f"ds_write_b128 v{vb}, {vr(acc1(*t),4)} offset:{off}")
        extra = []
        for _ in range(opt.tt):
            extra += w2_dma_parts(a, nis[0]); nis[0] += 1
        tile_tail(16, "h", first, last, lambda t: t[1], lambda st, t: mfma1(st, t[1], t[0], st % NS), wr1, extra)
        stamp(a, opt, 7)
        more(opt.e1, 6)
        a("s_waitcnt lgkmcnt(0)")
        a("s_barrier")
        own_u = [u for u in units if owner1(*u) == w]
        RT = vRING
        n = 0
        for u in own_u:
            for src in range(4):
                if src == w: continue
                for hf in range(2):
                    vb, off = lds_ref(red1_addr(src, u) + hf * 1024)
                    a(f"ds_read_b128 {vr(RT + n*4, 4)}, v{vb} offset:{off}")
                    n += 1
        a.wait_vm("b")
        for i in range(4):
            a(f"v_lshlrev_b32 v{BI+2*i}, 16, v{vB1+i}")
            a(f"v_and_b32 v{BI+2*i+1}, 0xffff0000, v{vB1+i}")
        for u in own_u:
            p, nt = u
            for hf in range(2):
                r = acc1(2*p+hf, nt)
                a(f"v_pk_add_f32 {vr(r,2)}, {vr(r,2)}, {vr(BI+4*hf,2)}")
                a(f"v_pk_add_f32 {vr(r+2,2)}, {vr(r+2,2)}, {vr(BI+4*hf+2,2)}")
        n = 0
        tot = len(own_u) * 6
        for u in own_u:
            p, nt = u
            for si in range(3):
                for hf in range(2):
                    a(f"s_waitcnt lgkmcnt({min(15, tot - n - 1)})")
                    r = acc1(2*p+hf, nt)
                    a(f"v_pk_add_f32 {vr(r,2)}, {vr(r,2)}, {vr(RT+n*4,2)}")
                    a(f"v_pk_add_f32 {vr(r+2,2)}, {vr(r+2,2)}, {vr(RT+n*4+2,2)}")
                    n += 1
        a("s_barrier")
        regs = []
        for u in own_u:
            p, nt = u
            for hf in range(2):
                r = acc1(2*p+hf, nt)
                regs += [r, r + 2]
        more(opt.e2, 10)
        gelu_pairs(a, regs, RT, fill=lambda: more(opt.e3, 10))
        a(f"s_lshl_b32 s{sT0}, s{sFT}, 1")
        a(f"s_add_u32 s{sT0}, s{sT0}, {w & 1}")
        a(f"s_mul_i32 s{sT0}, s{sT0}, 40960")
        a(f"s_mul_i32 s{sT1}, s{sDT1}, 5120")
        a(f"s_add_u32 s{sT0}, s{sT0}, s{sT1}")
        for i, u in enumerate(own_u):
            p, nt = u
            o = RT + 64 + 4 * i
            r0, r1 = acc1(2*p, nt), acc1(2*p+1, nt)
            a(f"v_cvt_pk_bf16_f32 v{o}, v{r0}, v{r0+1}")
            a(f"v_cvt_pk_bf16_f32 v{o+1}, v{r0+2}, v{r0+3}")
            a(f"v_cvt_pk_bf16_f32 v{o+2}, v{r1}, v{r1+1}")
            a(f"v_cvt_pk_bf16_f32 v{o+3}, v{r1+2}, v{r1+3}")
            a(f"s_add_u32 s{sT1}, s{sT0}, {nt*1024}")
            a.vmem(f"buffer_store_dwordx4 {vr(o,4)}, v{vL0}, {srd(sG)}, s{sT1} offen sc1", "g")
        stamp(a, opt, 8)
        more(opt.nb, 10)
        a.wait_vm("w2_3")
        if nis[0] >= 4:
            for st in range(4):
                w2_tr(a, st)
                if st % 2 == 1: a("s_waitcnt lgkmcnt(0)")
        if nis[0] == 10 and opt.nb2:
            for st in range(10, 10 + opt.nb2): w2_dma(a, st)
            nis[0] += opt.nb2
        a.wait_vm("g")
        a(f"s_lshl_b32 s{sT0}, s{sDT1}, 5")
        a(f"s_add_u32 s{sT0}, s{sT0}, s{sFT}")
        a(f"s_mul_i32 s{sT0}, s{sT0}, {opt.gstride}")
        a(f"s_add_u32 s{sT0}, s{sT0}, {FLAG_G + 4*w}")
        flag_store(a, sT0)
        stamp(a, opt, 9)
        assert nis[0] >= 4
        more(10, 10)
        more(4, 14)
        for st in range(4, 10):
            a.wait_vm(f"w2_{st}")
            w2_tr(a, st)
            if st % 2 == 1: a("s_waitcnt lgkmcnt(0)")
        a("s_branch L_pre2")
        if w < 3: a.label(f"L_ep1_{w+1}")

    a.label("L_nogemm1")
    a.vm = []
    common_setup()
    if opt.idlewait:
        a(f"s_lshl_b32 s{sT0}, s{sWAVE}, 6")
        a(f"v_add_u32 v{vX}, s{sT0}, v{vLANE}")
        a(f"v_mul_u32_u24 v{vX}, {opt.hstride}, v{vX}")
        poll(a, opt, vX, 2, None)
        if opt.idlewait > 1:
            a(f"s_sleep {opt.idlewait}")
    if opt.pf == 3:
        a(f"s_lshl_b32 s{sT0}, s{sIDLE}, 2")
        a(f"s_add_u32 s{sT0}, s{sT0}, s{sWAVE}")
        a(f"s_lshl_b32 s{sT0}, s{sT0}, 10")
        for k in range(44):
            o = vRING + (k % 16) * 4
            a.vmem(f"buffer_load_dwordx4 {vr(o,4)}, v{vL0}, {srd(sW2)}, s{sT0} offen {opt.pfbits}", f"pf{k}")
            a(f"s_add_u32 s{sT0}, s{sT0}, {160*1024}")
            if k >= opt.pfdepth: a.wait_vm(f"pf{k-opt.pfdepth}")
        a.wait_vm0()
    if opt.pf == 2:
        assert opt.p1 == 2 and opt.p2 == 1
        a(f"s_cmp_lt_u32 s{sJ}, 28")
        a("s_cbranch_scc1 L_nopf")
        a(f"s_sub_u32 s{sT0}, s{sJ}, 28")
        a(f"s_lshl_b32 s{sT0}, s{sT0}, 2")
        a(f"s_add_u32 s{sT0}, s{sT0}, s{sWAVE}")
        a(f"s_lshl_b32 s{sT0}, s{sT0}, 13")
        a(f"s_lshl_b32 s{sT1}, s{sXCD}, 9")
        a(f"s_add_u32 s{sT0}, s{sT0}, s{sT1}")
        a(f"v_lshrrev_b32 v{vX}, 5, v{vLANE}")
        a(f"v_lshlrev_b32 v{vX}, 12, v{vX}")
        a(f"v_and_b32 v{vX+1}, 31, v{vLANE}")
        a(f"v_lshlrev_b32 v{vX+1}, 4, v{vX+1}")
        a(f"v_add_u32 v{vX}, v{vX}, v{vX+1}")
        keep = list(a.vm)
        for k in range(54):
            o = vRING + (k % 16) * 4
            a.vmem(f"buffer_load_dwordx4 {vr(o,4)}, v{vX}, {srd(sW2)}, s{sT0} offen", f"pf{k}")
            a(f"s_add_u32 s{sT0}, s{sT0}, {16*8192}")
            if k >= opt.pfdepth: a.wait_vm(f"pf{k-opt.pfdepth}")
        a.wait_vm0()
        a.label("L_nopf")
        a.vm = keep
    for st in range(10): w2_dma(a, st)
    for st in range(4):
        a.wait_vm(f"w2_{st}")
        w2_tr(a, st)
        if st % 2 == 1: a("s_waitcnt lgkmcnt(0)")
    for st in range(10, 14): w2_dma(a, st)
    for st in range(4, 10):
        a.wait_vm(f"w2_{st}")
        w2_tr(a, st)
        if st % 2 == 1: a("s_waitcnt lgkmcnt(0)")

    a.label("L_pre2")
    a.wait_vm0()
    a("s_waitcnt lgkmcnt(0)")
    for st in range(10, 14):
        w2_tr(a, st)
        if st % 2 == 1: a("s_waitcnt lgkmcnt(0)")
    stamp(a, opt, 10)
    a(f"s_mul_i32 s{sT0}, s{sDT2}, 5120")
    a(f"v_add_u32 v{vA}, s{sT0}, v{vL0}")
    a(f"v_add_u32 v{vA2}, 4096, v{vA}")
    if opt.onepoll & 2:
        a(f"s_cmp_lg_u32 s{sWAVE}, {opt.pollw}")
        a("s_cbranch_scc1 L_gpolled")
        a(f"s_lshl_b32 s{sT0}, s{sDT2}, 5")
        a(f"s_mul_i32 s{sT0}, s{sT0}, {opt.gstride}")
        a(f"s_add_u32 s{sT0}, s{sT0}, {FLAG_G}")
        a(f"v_mul_u32_u24 v{vX}, {opt.gstride}, v{vLANE}")
        a(f"v_add_u32 v{vX}, s{sT0}, v{vX}")
        a(f"s_mov_b32 s{sP+2}, 0x7ffffff")
        a(f"s_mov_b32 s{sP+3}, 0")
        poll(a, opt, vX, 4, sP + 2, opt.sleep, opt.preg)
        a.label("L_gpolled")
        a("s_barrier")
    else:
        a(f"s_lshl_b32 s{sT0}, s{sDT2}, 5")
        a(f"s_mul_i32 s{sT1}, s{sWAVE}, 7")
        a(f"s_add_u32 s{sT0}, s{sT0}, s{sT1}")
        a(f"s_mul_i32 s{sT0}, s{sT0}, {opt.gstride}")
        a(f"s_add_u32 s{sT0}, s{sT0}, {FLAG_G}")
        a(f"v_lshrrev_b32 v{vX}, 2, v{vLANE}")
        a(f"v_mul_u32_u24 v{vX}, {opt.gstride}, v{vX}")
        a(f"v_and_b32 v{vT}, 3, v{vLANE}")
        a(f"v_lshlrev_b32 v{vT}, 2, v{vT}")
        a(f"v_add_u32 v{vX}, v{vX}, v{vT}")
        a(f"v_add_u32 v{vX}, s{sT0}, v{vX}")
        a(f"s_cmp_eq_u32 s{sWAVE}, 3")
        a(f"s_mov_b32 s{sP+3}, 0xffffff")
        a(f"s_cselect_b32 s{sP+2}, s{sP+3}, 0xfffffff")
        a(f"s_mov_b32 s{sP+3}, 0")
        poll(a, opt, vX, 1, sP + 2, opt.sleep, opt.preg)
    stamp(a, opt, 11)
    a(f"s_mul_i32 s{sSTEP}, s{sWAVE}, {14*40960}")
    def mfma2(st, mt, nt, slot):
        c = "0" if st == 0 else vr(acc2(mt, nt), 4)
        a(f"v_mfma_f32_16x16x32_bf16 {vr(acc2(mt,nt),4)}, {vr(ring(slot,mt),4)}, {ar(wfrag(st,nt),4)}, {c}")
    main_loop(sG, 14, sROT2, "g", mfma2, 12, None, 12)
    saved_vm2 = list(a.vm)
    a(f"v_and_b32 v{vT}, 15, v{vLANE}")
    a(f"s_lshl_b32 s{sT0}, s{sWAVE}, 4")
    a(f"v_add_u32 v{vT}, s{sT0}, v{vT}")
    a(f"v_mul_u32_u24 v{vA}, 1280, v{vT}")
    a(f"v_lshrrev_b32 v{vT}, 4, v{vLANE}")
    a(f"v_lshlrev_b32 v{vT}, 3, v{vT}")
    a(f"v_add_u32 v{vA}, v{vA}, v{vT}")
    a(f"s_mul_i32 s{sT0}, s{sST}, {64*1280}")
    a(f"s_mul_i32 s{sT1}, s{sDT2}, 160")
    a(f"s_add_u32 s{sOFF}, s{sT0}, s{sT1}")
    a(f"v_lshlrev_b32 v{vC0}, 16, v{vB2}")
    a(f"v_lshlrev_b32 v{vC0+1}, 16, v{vB2}")
    a(f"v_sub_u32 v{vA2}, v{vA}, v{vT}")
    a(f"v_bfe_u32 v{vT}, v{vLANE}, 4, 1")
    a(f"v_lshlrev_b32 v{vT}, 5, v{vT}")
    a(f"v_add_u32 v{vA2}, v{vA2}, v{vT}")
    a(f"v_bfe_u32 v{vT}, v{vLANE}, 5, 1")
    a(f"v_lshlrev_b32 v{vT}, 4, v{vT}")
    a(f"v_add_u32 v{vA2}, v{vA2}, v{vT}")
    def red2_addr(src, nt, mt):
        k = [x for x in range(4) if x != src].index(nt)
        return src * 32768 + (k * 5 + mt) * 1024
    for w in range(4):
        if w < 3:
            a(f"s_cmp_lg_u32 s{sWAVE}, {w}")
            a(f"s_cbranch_scc1 L_ep2_{w+1}")
        a.vm = list(saved_vm2)
        tl = [(mt, nt) for mt in range(5) for nt in range(4)]
        def wr2(t):
            vb, off = lds_ref(red2_addr(w, t[1], t[0]))
            a(f"ds_write_b128 v{vb}, {vr(acc2(*t),4)} offset:{off}")
        tile_tail(14, "g", [t for t in tl if t[1] != w], [t for t in tl if t[1] == w], lambda t: t[0],
                  lambda st, t: mfma2(st, t[0], t[1], st % NS), wr2, [])
        stamp(a, opt, 13)
        a("s_waitcnt lgkmcnt(0)")
        a("s_barrier")
        RT = vRING
        n = 0
        for mt in range(5):
            for src in range(4):
                if src == w: continue
                vb, off = lds_ref(red2_addr(src, w, mt))
                a(f"ds_read_b128 {vr(RT+n*4,4)}, v{vb} offset:{off}")
                n += 1
        n = 0
        for mt in range(5):
            r = acc2(mt, w)
            for si in range(3):
                a(f"s_waitcnt lgkmcnt({14 - n})")
                a(f"v_pk_add_f32 {vr(r,2)}, {vr(r,2)}, {vr(RT+n*4,2)}")
                a(f"v_pk_add_f32 {vr(r+2,2)}, {vr(r+2,2)}, {vr(RT+n*4+2,2)}")
                n += 1
            a(f"v_pk_add_f32 {vr(r,2)}, {vr(r,2)}, {vr(vC0,2)}")
            a(f"v_pk_add_f32 {vr(r+2,2)}, {vr(r+2,2)}, {vr(vC0,2)}")
            o = RT + 64 + 2 * mt
            a(f"v_cvt_pk_bf16_f32 v{o}, v{r}, v{r+1}")
            a(f"v_cvt_pk_bf16_f32 v{o+1}, v{r+2}, v{r+3}")
            if not opt.wide or mt == 4:
                a(f"buffer_store_dwordx2 {vr(o,2)}, v{vA}, {srd(sO)}, s{sOFF} offen offset:{mt*32} {opt.obits}")
            elif mt % 2 == 1:
                a("s_nop 1")
                a(f"v_permlane16_swap_b32 v{o-2}, v{o}")
                a(f"v_permlane16_swap_b32 v{o-1}, v{o+1}")
                a(f"buffer_store_dwordx4 {vr(o-2,4)}, v{vA2}, {srd(sO)}, s{sOFF} offen offset:{(mt-1)*32} {opt.obits}")
        a("s_branch L_fin")
        if w < 3: a.label(f"L_ep2_{w+1}")
    a.label("L_fin")
    if opt.probe >= 0:
        if opt.probe == 14:
            a("s_waitcnt vmcnt(0)")
            stamp(a, opt, 14)
        a(f"s_cmp_lg_u32 s{sWG}, {opt.probewg}")
        a("s_cbranch_scc1 L_done")
        a(f"s_cmp_lg_u32 s{sWAVE}, {opt.probew}")
        a("s_cbranch_scc1 L_done")
        ref = sNONCE if opt.probeabs else (sPROF + 2 if opt.probe0 >= 0 else 96)
        a(f"s_sub_u32 s{sT1}, s{sPROF+1}, s{ref}")
        if opt.probecyc: a(f"s_lshr_b32 s{sT1}, s{sT1}, 2")
        else: a(f"s_lshl_b32 s{sT1}, s{sT1}, 2")
        a(f"s_add_u32 s{sT1}, s{sT1}, 4000")
        a.label("L_probe")
        a(f"s_memrealtime s[{sP}:{sP+1}]")
        a("s_waitcnt lgkmcnt(0)")
        a(f"s_sub_u32 s{sT0}, s{sP}, s96")
        a(f"s_cmp_lt_u32 s{sT0}, s{sT1}")
        a("s_cbranch_scc1 L_probe")
    if opt.pad:
        a.label("L_pad")
        a(f"s_memrealtime s[{sP}:{sP+1}]")
        a("s_waitcnt lgkmcnt(0)")
        a(f"s_sub_u32 s{sT0}, s{sP}, s96")
        a(f"s_cmp_lt_u32 s{sT0}, {opt.pad}")
        a("s_cbranch_scc1 L_pad")
    if opt.prof:
        a("s_waitcnt vmcnt(0)")
        stamp(a, opt, 14)
        make_srd(a, sX, 18, 65536, WS_PROF)
        a(f"s_lshl_b32 s{sT0}, s{sWG}, 2")
        a(f"s_add_u32 s{sT0}, s{sT0}, s{sWAVE}")
        a(f"s_lshl_b32 s{sT0}, s{sT0}, 6")
        a(f"v_mov_b32 v{vT}, s{sT0}")
        a("s_mov_b64 exec, 1")
        for i in range(15):
            a(f"v_mov_b32 v100, s{sPROF+i}")
            a(f"buffer_store_dword v100, v{vT}, {srd(sX)}, 0 offen offset:{4*i}")
            a("s_nop 1")
        a("s_waitcnt vmcnt(0)")
    a.label("L_done")
    a("s_endpgm")
    a.label("L_codeend")
    a.raw('.section .rodata,"a"')
    a.raw(".p2align 6")
    a.raw(f".amdhsa_kernel {KN}")
    for l in ["next_free_vgpr 512", "next_free_sgpr 102", "accum_offset 256", "group_segment_fixed_size 0",
              "kernarg_size 64", "user_sgpr_count 2", "user_sgpr_kernarg_segment_ptr 1",
              "system_sgpr_workgroup_id_x 1", "float_denorm_mode_32 3"]:
        a.raw(f"  .amdhsa_{l}")
    a.raw(".end_amdhsa_kernel")
    return "\n".join(a.L) + "\n"

def parse(argv=None):
    ap = argparse.ArgumentParser()
    ap.add_argument("-o", default="standalone__mixer_token_mlp__prompt.s")
    ap.add_argument("--prof", type=int, default=0)
    ap.add_argument("--rot", type=int, default=3)
    ap.add_argument("--spin", type=int, default=20000)
    ap.add_argument("--sleep", type=int, default=8)
    ap.add_argument("--depth", type=int, default=3)
    ap.add_argument("--lnprof", type=int, default=0)
    ap.add_argument("--hbits", default="sc1")
    ap.add_argument("--pfwait", type=int, default=1)
    ap.add_argument("--hold", type=int, default=0)
    ap.add_argument("--probe", type=int, default=-1)
    ap.add_argument("--probe0", type=int, default=-1)
    ap.add_argument("--probecyc", type=int, default=0)
    ap.add_argument("--probeabs", type=int, default=0)
    ap.add_argument("--probewg", type=int, default=100)
    ap.add_argument("--probew", type=int, default=2)
    ap.add_argument("--rot8", type=int, default=1)
    ap.add_argument("--cpf", type=int, default=1)
    ap.add_argument("--cpfw", type=int, default=3)
    ap.add_argument("--wide", type=int, default=1)
    ap.add_argument("--idlewait", type=int, default=0)
    ap.add_argument("--sleeph", type=int, default=8)
    ap.add_argument("--preh", type=int, default=0)
    ap.add_argument("--preg", type=int, default=0)
    ap.add_argument("--onepoll", type=int, default=3)
    ap.add_argument("--pollw", type=int, default=3)
    ap.add_argument("--nta", type=int, default=0)
    ap.add_argument("--rotg1", type=int, default=0)
    ap.add_argument("--rotg2", type=int, default=0)
    ap.add_argument("--t13", type=int, default=1)
    ap.add_argument("--tt", type=int, default=2)
    ap.add_argument("--e2", type=int, default=0)
    ap.add_argument("--e3", type=int, default=0)
    ap.add_argument("--nb2", type=int, default=0)
    ap.add_argument("--e1", type=int, default=1)
    ap.add_argument("--nb", type=int, default=2)
    ap.add_argument("--nearly", type=int, default=3)
    ap.add_argument("--dpl", type=int, default=5)
    ap.add_argument("--dp", type=int, default=4)
    ap.add_argument("--p1", type=int, default=1)
    ap.add_argument("--p2", type=int, default=1)
    ap.add_argument("--rota1", type=int, default=0)
    ap.add_argument("--rota2", type=int, default=0)
    ap.add_argument("--xbits", default="nt")
    ap.add_argument("--w1bits", default="")
    ap.add_argument("--w2bits", default="")
    ap.add_argument("--pfbits", default="")
    ap.add_argument("--pfdepth", type=int, default=8)
    ap.add_argument("--prio", type=int, default=3)
    ap.add_argument("--delay", type=int, default=0)
    ap.add_argument("--hstride", type=int, default=8)
    ap.add_argument("--gstride", type=int, default=256)
    ap.add_argument("--pf", type=int, default=1)
    ap.add_argument("--pad", type=int, default=0)
    ap.add_argument("--obits", default="sc1")
    return ap.parse_args(argv)

if __name__ == "__main__":
    opt = parse()
    open(opt.o, "w").write(gen(opt))
```

```python
import argparse, struct

S, D, F = 2048, 640, 1728
KN = "standalone__mixer_token_mlp__prompt_kernel"

WS_H = 0
H_BYTES = 64 * 40 * 1024
WS_G = 0x300000
G_BYTES = 54 * 40 * 1024
WS_FLAG = 0x600000
FLAG_H = 0
FLAG_G = 0x10000
FLAG_BYTES = 0x40000
WS_PROF = 0x700000

LDS_BYTES = 163840
LN_BASE = 131072
LN_ROW = 1344
LF_BASE = 141824
P0_BASE = [0, 49152, 98304, 122880]

sWG = 2
sX, sW1, sW2, sH, sG, sO, sF, sB1, sB2, sD = 20, 24, 28, 32, 36, 40, 44, 48, 52, 56
sWAVE, sXCD, sJ, sFT, sDT1, sST, sDT2, sNONCE = 60, 61, 62, 63, 64, 65, 66, 67
sT0, sT1, sT2, sT3, sT4, sT5 = 68, 69, 70, 71, 72, 73
sROT1, sROT2, sSTEP, sOFF = 74, 75, 76, 77
sM0B, sSPIN = 78, 79
sP = 80
sPROF = 84
sUP = 99
sJLIM, sIDLE = 100, 101
sWB = 3

vTID, vLANE = 0, 1
vTR = 2
vA, vA2, vDMA, vT2 = 6, 7, 8, 9
vB1 = 10
vB2, vT = 14, 15
vACC = 16
vRING = 96
vTRU = 176
vL0, vL1, vL2 = 180, 181, 182
vC0 = 184
BI = 186
vPOLL = 194
vX = 196
vPQ = 208
vDM = 200

def srd(n): return f"s[{n}:{n+3}]"
def vr(n, c=1): return f"v{n}" if c == 1 else f"v[{n}:{n+c-1}]"
def ar(n, c=1): return f"a{n}" if c == 1 else f"a[{n}:{n+c-1}]"
def f2h(x): return "0x%08x" % struct.unpack("<I", struct.pack("<f", x))[0]
C0 = -2.0 * 0.7978845608028654 * 1.4426950408889634
C1 = C0 * 0.044715

class Asm:
    def __init__(self):
        self.L = []; self.vm = []; self.uid = 0
    def __call__(self, s): self.L.append("    " + s)
    def label(self, s): self.L.append(s + ":")
    def raw(self, s): self.L.append(s)
    def c(self, s): self.L.append("    ; " + s)
    def vmem(self, s, tag):
        self(s); self.vm.append(tag)
    def wait_vm(self, tag):
        hits = [i for i, t in enumerate(self.vm) if t == tag]
        if not hits: return
        n = len(self.vm) - 1 - hits[-1]
        self(f"s_waitcnt vmcnt({min(n, 63)})")
        self.vm = self.vm[hits[-1] + 1:]
    def wait_vm0(self):
        self("s_waitcnt vmcnt(0)"); self.vm = []
    def newlabel(self, p):
        self.uid += 1
        return f"L_{p}_{self.uid}"

def acc1(mt, nt): return vACC + (mt * 5 + nt) * 4
def acc2(mt, nt): return vACC + (mt * 4 + nt) * 4
def wfrag(step, t): return step * 16 + t * 4

def stamp(a, opt, idx, force=False):
    if opt.probe >= 0:
        ins = "s_memtime" if opt.probecyc else "s_memrealtime"
        if idx == opt.probe:
            a(f"{ins} s[{sP}:{sP+1}]")
            a("s_waitcnt lgkmcnt(0)")
            a(f"s_mov_b32 s{sPROF+1}, s{sP}")
        if idx == opt.probe0:
            a(f"{ins} s[{sP}:{sP+1}]")
            a("s_waitcnt lgkmcnt(0)")
            a(f"s_mov_b32 s{sPROF+2}, s{sP}")
        return
    if opt.lnprof and idx in (4, 5) and getattr(a, "ln_done", False): return
    if opt.prof:
        a(f"s_mem{'time' if opt.prof == 2 else 'realtime'} s[{sP}:{sP+1}]")
        a("s_waitcnt lgkmcnt(0)")
        a(f"s_mov_b32 s{sPROF+idx}, s{sP}")

def make_srd(a, n, lo, size, add=0):
    if add:
        a(f"s_add_u32 s{n}, s{lo}, {add}")
        a(f"s_addc_u32 s{n+1}, s{lo+1}, 0")
        a(f"s_and_b32 s{n+1}, s{n+1}, 0xffff")
    else:
        a(f"s_mov_b32 s{n}, s{lo}")
        a(f"s_and_b32 s{n+1}, s{lo+1}, 0xffff")
    a(f"s_mov_b32 s{n+2}, {size}")
    a(f"s_mov_b32 s{n+3}, 0x20000")

def nonce_spin(a, opt):
    lp = a.newlabel("nonce"); dn = a.newlabel("nonced")
    a(f"s_cmp_lg_u32 s{sNONCE}, 0")
    a(f"s_cbranch_scc1 {dn}")
    a(f"s_mov_b32 s{sSPIN}, 0")
    a(f"v_mov_b32 v{vT}, 0")
    a.label(lp)
    a(f"buffer_load_dword v{vT2}, v{vT}, {srd(sD)}, 0 offen sc1")
    a("s_waitcnt vmcnt(0)")
    a(f"v_readfirstlane_b32 s{sNONCE}, v{vT2}")
    a(f"s_add_u32 s{sSPIN}, s{sSPIN}, 1")
    a(f"s_cmp_lg_u32 s{sNONCE}, 0")
    a(f"s_cbranch_scc1 {dn}")
    a(f"s_cmp_lt_u32 s{sSPIN}, {opt.spin}")
    a(f"s_cbranch_scc1 {lp}")
    a.label(dn)

def lds_set(a, addr_sgpr_or_imm):
    a(f"v_mov_b32 v{vT}, {addr_sgpr_or_imm}")
    a(f"v_mov_b32 v{vT2}, 1")
    a(f"s_mov_b64 s[{sP}:{sP+1}], exec")
    a("s_mov_b64 exec, 1")
    a(f"ds_write_b32 v{vT}, v{vT2}")
    a(f"s_mov_b64 exec, s[{sP}:{sP+1}]")

def lds_spin(a, opt, addr):
    lp = a.newlabel("lspin"); dn = a.newlabel("lspun")
    a(f"v_mov_b32 v{vT}, {addr}")
    a(f"s_mov_b32 s{sSPIN}, 0")
    a.label(lp)
    a(f"ds_read_b32 v{vT2}, v{vT}")
    a("s_waitcnt lgkmcnt(0)")
    a(f"v_readfirstlane_b32 s{sP}, v{vT2}")
    a(f"s_add_u32 s{sSPIN}, s{sSPIN}, 1")
    a(f"s_cmp_lg_u32 s{sP}, 0")
    a(f"s_cbranch_scc1 {dn}")
    a(f"s_cmp_lt_u32 s{sSPIN}, {opt.spin * 8}")
    a(f"s_cbranch_scc1 {lp}")
    a.label(dn)

def dma_addr(a, stride, s_tile):
    a(f"v_lshrrev_b32 v{vT}, 3, v{vLANE}")
    a(f"v_lshrrev_b32 v{vT2}, 1, v{vT}")
    a(f"v_lshlrev_b32 v{vT2}, 1, v{vT2}")
    a(f"v_and_b32 v{vDM}, 7, v{vLANE}")
    a(f"v_xor_b32 v{vDM}, v{vDM}, v{vT2}")
    a(f"v_lshlrev_b32 v{vDM}, 4, v{vDM}")
    a(f"v_mul_u32_u24 v{vT}, {stride}, v{vT}")
    a(f"v_add_u32 v{vDM}, v{vDM}, v{vT}")
    a(f"s_lshl_b32 s{sT0}, s{s_tile}, 7")
    a(f"v_add_u32 v{vDM}, s{sT0}, v{vDM}")
    for b in range(1, 4):
        a(f"v_add_u32 v{vDM+b}, {b*(8*stride-1024)}, v{vDM}")

def step_off(a, dst, s_base, s_rot, i, nsteps, bytes_per_step):
    a(f"s_add_u32 s{sT4}, s{s_rot}, {i}")
    a(f"s_cmp_ge_u32 s{sT4}, {nsteps}")
    a(f"s_cselect_b32 s{dst}, {nsteps}, 0")
    a(f"s_sub_u32 s{sT4}, s{sT4}, s{dst}")
    a(f"s_mul_i32 s{sT4}, s{sT4}, {bytes_per_step}")
    a(f"s_add_u32 s{dst}, s{sT4}, s{s_base}")

def dma_step(a, srdn, stride, s_rowbase, s_rot, step, nsteps, s_lds, lds_off, tag, bits=""):
    a(f"s_add_u32 m0, s{s_lds}, {lds_off}")
    step_off(a, sOFF, s_rowbase, s_rot, step, nsteps, 32 * stride)
    for blk in range(4):
        a.vmem(f"buffer_load_dwordx4 v{vDM+blk}, {srd(srdn)}, s{sOFF} offen offset:{blk*1024} {bits} lds", tag)

def tr_step(a, vbase, off, step):
    for t in range(4):
        w = wfrag(step, t)
        a(f"ds_read_b64_tr_b16 {ar(w,2)}, v{vbase+t} offset:{off}")
        a(f"ds_read_b64_tr_b16 {ar(w+2,2)}, v{vbase+t} offset:{off+2048}")

def poll(a, opt, vaddr, nd, lanes, sleep=None, pre=0, nload=1):
    if sleep is None: sleep = opt.sleep
    if pre: a(f"s_sleep {pre}")
    lp = a.newlabel("poll"); dn = a.newlabel("polled")
    a(f"s_mov_b32 s{sSPIN}, 0")
    a.label(lp)
    ld = {1: "dword", 2: "dwordx2", 4: "dwordx4"}[nd]
    for k in range(nload):
        a(f"buffer_load_{ld} {vr(vPQ + 4*k, nd)}, v{vaddr}, {srd(sF)}, 0 offen offset:{k*1024} sc1")
    a("s_waitcnt vmcnt(0)")
    first = True
    for k in range(nload):
        for i in range(nd):
            if first:
                a(f"v_cmp_ne_u32 vcc, s{sNONCE}, v{vPQ+4*k+i}"); first = False
            else:
                a(f"v_cmp_ne_u32 s[{sP}:{sP+1}], s{sNONCE}, v{vPQ+4*k+i}")
                a(f"s_or_b64 vcc, vcc, s[{sP}:{sP+1}]")
    if lanes is not None:
        a(f"s_and_b64 vcc, vcc, s[{lanes}:{lanes+1}]")
    a(f"s_add_u32 s{sSPIN}, s{sSPIN}, 1")
    a("s_cmp_eq_u64 vcc, 0")
    a(f"s_cbranch_scc1 {dn}")
    if sleep: a(f"s_sleep {sleep}")
    a(f"s_cmp_lt_u32 s{sSPIN}, {opt.spin}")
    a(f"s_cbranch_scc1 {lp}")
    a.label(dn)
    a.vm = []

def flag_store(a, s_index_bytes):
    a(f"v_mov_b32 v{vT}, s{s_index_bytes}")
    a(f"v_mov_b32 v{vT2}, s{sNONCE}")
    a(f"s_mov_b64 s[{sP}:{sP+1}], exec")
    a("s_mov_b64 exec, 1")
    a.vmem(f"buffer_store_dword v{vT2}, v{vT}, {srd(sF)}, 0 offen sc1", "flag")
    a(f"s_mov_b64 exec, s[{sP}:{sP+1}]")

def gelu_pairs(a, regs, tmp, fill=None):
    def each(fn):
        for i, r in enumerate(regs): fn(r, tmp + 2 * i)
    each(lambda r, t: a(f"v_pk_mul_f32 {vr(t,2)}, {vr(r,2)}, {vr(r,2)}"))
    each(lambda r, t: a(f"v_pk_fma_f32 {vr(t,2)}, {vr(t,2)}, s[100:101], {vr(vC0,2)}"))
    each(lambda r, t: a(f"v_pk_mul_f32 {vr(t,2)}, {vr(t,2)}, {vr(r,2)}"))
    if fill: fill()
    each(lambda r, t: (a(f"v_exp_f32 v{t}, v{t}"), a(f"v_exp_f32 v{t+1}, v{t+1}")))
    each(lambda r, t: a(f"v_pk_add_f32 {vr(t,2)}, {vr(t,2)}, 1.0 op_sel_hi:[1,0]"))
    each(lambda r, t: (a(f"v_rcp_f32 v{t}, v{t}"), a(f"v_rcp_f32 v{t+1}, v{t+1}")))
    a("s_nop 0")
    each(lambda r, t: a(f"v_pk_mul_f32 {vr(r,2)}, {vr(r,2)}, {vr(t,2)}"))

def w2_slot(step):
    if step < 8: return sM0B, step * 4096, vTR, step * 4096
    if step < 10: return sUP, (step - 8) * 4096, vTRU, (step - 8) * 4096
    return sM0B, (step - 10) * 4096, vTR, (step - 10) * 4096

def w2_dma(a, step):
    sb, off, _, _ = w2_slot(step)
    dma_step(a, sW2, S * 2, sWB, sROT2, step, 14, sb, off, f"w2_{step}", OPT.w2bits)

def w2_dma_parts(a, step):
    sb, off, _, _ = w2_slot(step)
    def setup():
        a(f"s_add_u32 m0, s{sb}, {off}")
        step_off(a, sOFF, sWB, sROT2, step, 14, 32 * S * 2)
    def one(blk):
        return lambda: a.vmem(f"buffer_load_dwordx4 v{vDM+blk}, {srd(sW2)}, s{sOFF} offen offset:{blk*1024} {OPT.w2bits} lds", f"w2_{step}")
    return [setup] + [one(b) for b in range(4)]

def w2_tr(a, step):
    _, _, vb, off = w2_slot(step)
    tr_step(a, vb, off, step)

def gen(opt):
    global OPT
    OPT = opt
    a = Asm()
    NS = opt.depth + 1
    def ring(slot, t): return vRING + slot * 20 + t * 4
    a.raw(f"; @launch grid=(256,1,1) block=(256,1,1) lds={LDS_BYTES}")
    a.raw('.amdgcn_target "amdgcn-amd-amdhsa--gfx950"')
    a.raw(".text")
    a.raw(f".globl {KN}")
    a.raw(".p2align 8")
    a.raw(f".type {KN},@function")
    a.label(KN)
    if opt.cpf: a("s_getpc_b64 s[94:95]")
    a(f"s_cmp_ge_u32 s{sWG}, 256")
    a("s_cbranch_scc1 L_done")
    a("s_load_dwordx16 s[4:19], s[0:1], 0")
    if opt.prof:
        a(f"s_mem{'time' if opt.prof == 2 else 'realtime'} s[{sP}:{sP+1}]")
    if opt.prof:
        for i in range(1, 15): a(f"s_mov_b32 s{sPROF+i}, 0")
    if not opt.prof:
        a("s_memrealtime s[96:97]")
    a(f"v_lshrrev_b32 v{vT}, 6, v{vTID}")
    a(f"v_and_b32 v{vLANE}, 63, v{vTID}")
    a(f"v_readfirstlane_b32 s{sWAVE}, v{vT}")
    a(f"s_and_b32 s{sXCD}, s{sWG}, 7")
    a(f"s_lshr_b32 s{sJ}, s{sWG}, 3")
    if opt.p1 == 2:
        a(f"s_lshr_b32 s{sT1}, s{sXCD}, 1")
        a(f"s_and_b32 s{sT2}, s{sXCD}, 1")
        a(f"s_lshl_b32 s{sT2}, s{sT2}, 2")
        a(f"s_mul_i32 s{sT0}, s{sT1}, 7")
        a(f"s_lshr_b32 s{sFT}, s{sJ}, 2")
        a(f"s_add_u32 s{sFT}, s{sFT}, s{sT0}")
        a(f"s_and_b32 s{sT3}, s{sJ}, 3")
        a(f"s_add_u32 s{sDT1}, s{sT2}, s{sT3}")
        if opt.rot8: a(f"s_lshl_b32 s{sROT1}, s{sDT1}, 1")
        else: a(f"s_lshl_b32 s{sROT1}, s{sT3}, 2")
        a(f"s_cmp_eq_u32 s{sT1}, 3")
        a(f"s_cselect_b32 s{sJLIM}, 24, 28")
        a(f"s_lshl_b32 s{sT0}, s{sXCD}, 2")
        a(f"s_sub_u32 s{sT0}, s{sT0}, 28")
        a(f"s_lshl_b32 s{sT3}, s{sXCD}, 3")
        a(f"s_sub_u32 s{sT3}, s{sT3}, 48")
        a(f"s_cselect_b32 s{sIDLE}, s{sT0}, s{sT0}")
        a(f"s_cmp_ge_u32 s{sXCD}, 6")
        a(f"s_cselect_b32 s{sIDLE}, s{sT3}, s{sT0}")
        a(f"s_add_u32 s{sIDLE}, s{sIDLE}, s{sJ}")
    else:
        a(f"s_lshl_b32 s{sT0}, s{sXCD}, 2")
        a(f"s_mul_i32 s{sT1}, s{sXCD}, 3")
        a(f"s_add_u32 s{sT1}, s{sT1}, 3")
        a(f"s_cmp_lt_u32 s{sXCD}, 3")
        a(f"s_cselect_b32 s{sT0}, s{sT0}, s{sT1}")
        a(f"s_cselect_b32 s{sJLIM}, 32, 24")
        a(f"s_lshr_b32 s{sFT}, s{sJ}, 3")
        a(f"s_add_u32 s{sFT}, s{sFT}, s{sT0}")
        a(f"s_and_b32 s{sDT1}, s{sJ}, 7")
        a(f"s_lshl_b32 s{sROT1}, s{sDT1}, 1")
        a(f"s_lshl_b32 s{sIDLE}, s{sXCD}, 3")
        a(f"s_add_u32 s{sIDLE}, s{sIDLE}, s{sJ}")
        a(f"s_sub_u32 s{sIDLE}, s{sIDLE}, 48")
    if opt.rotg1 == 3:
        a(f"s_mul_i32 s{sT0}, s{sFT}, 11")
        a(f"s_lshr_b32 s{sT0}, s{sT0}, 5")
        a(f"s_mul_i32 s{sT0}, s{sT0}, 3")
        a(f"s_sub_u32 s{sT0}, s{sFT}, s{sT0}")
        a(f"s_mul_i32 s{sT0}, s{sT0}, 5")
        a(f"s_add_u32 s{sROT1}, s{sROT1}, s{sT0}")
        a(f"s_and_b32 s{sROT1}, s{sROT1}, 15")
    if opt.rotg1 == 2:
        a(f"s_and_b32 s{sT0}, s{sFT}, 1")
        a(f"s_lshl_b32 s{sT0}, s{sT0}, 3")
        a(f"s_add_u32 s{sROT1}, s{sROT1}, s{sT0}")
        a(f"s_and_b32 s{sROT1}, s{sROT1}, 15")
    if opt.rota1:
        a(f"s_mul_i32 s{sT0}, s{sFT}, {opt.rota1}")
        a(f"s_add_u32 s{sROT1}, s{sROT1}, s{sT0}")
        a(f"s_and_b32 s{sROT1}, s{sROT1}, 15")
    if opt.p2 == 2:
        a(f"s_lshr_b32 s{sT1}, s{sXCD}, 1")
        a(f"s_and_b32 s{sT2}, s{sXCD}, 1")
        a(f"s_lshl_b32 s{sT2}, s{sT2}, 2")
        a(f"s_lshr_b32 s{sT0}, s{sJ}, 2")
        a(f"s_lshl_b32 s{sST}, s{sT1}, 3")
        a(f"s_add_u32 s{sST}, s{sST}, s{sT0}")
        a(f"s_and_b32 s{sT3}, s{sJ}, 3")
        a(f"s_add_u32 s{sDT2}, s{sT2}, s{sT3}")
        if opt.rot8:
            a(f"s_mul_i32 s{sROT2}, s{sDT2}, 7")
            a(f"s_lshr_b32 s{sROT2}, s{sROT2}, 2")
        else:
            a(f"s_mul_i32 s{sROT2}, s{sT3}, 7")
            a(f"s_lshr_b32 s{sROT2}, s{sROT2}, 1")
    else:
        a(f"s_lshr_b32 s{sT0}, s{sJ}, 3")
        a(f"s_lshl_b32 s{sST}, s{sXCD}, 2")
        a(f"s_add_u32 s{sST}, s{sST}, s{sT0}")
        a(f"s_and_b32 s{sDT2}, s{sJ}, 7")
        a(f"s_mul_i32 s{sROT2}, s{sDT2}, 7")
        a(f"s_lshr_b32 s{sROT2}, s{sROT2}, 2")
    if opt.rotg2:
        if opt.rotg2 == 2:
            a(f"s_and_b32 s{sT0}, s{sST}, 1")
            a(f"s_mul_i32 s{sT0}, s{sT0}, 7")
        else:
            a(f"s_mul_i32 s{sT0}, s{sST}, 11")
            a(f"s_lshr_b32 s{sT0}, s{sT0}, 5")
            a(f"s_mul_i32 s{sT0}, s{sT0}, 3")
            a(f"s_sub_u32 s{sT0}, s{sST}, s{sT0}")
            a(f"s_mul_i32 s{sT0}, s{sT0}, 5")
        a(f"s_add_u32 s{sROT2}, s{sROT2}, s{sT0}")
        a(f"s_cmp_ge_u32 s{sROT2}, 14")
        a(f"s_cselect_b32 s{sT0}, 14, 0")
        a(f"s_sub_u32 s{sROT2}, s{sROT2}, s{sT0}")
    if opt.rota2:
        a(f"s_mul_i32 s{sT0}, s{sST}, {opt.rota2}")
        a(f"s_add_u32 s{sROT2}, s{sROT2}, s{sT0}")
        a(f"s_and_b32 s{sT0}, s{sROT2}, 0xff")
        a(f"s_mul_i32 s{sT0}, s{sROT2}, 18725")
        a(f"s_lshr_b32 s{sT0}, s{sT0}, 18")
        a(f"s_mul_i32 s{sT0}, s{sT0}, 14")
        a(f"s_sub_u32 s{sROT2}, s{sROT2}, s{sT0}")
    if not (opt.rot & 1): a(f"s_mov_b32 s{sROT1}, 0")
    if not (opt.rot & 2): a(f"s_mov_b32 s{sROT2}, 0")
    a(f"s_lshl_b32 s{sM0B}, s{sWAVE}, 15")
    a(f"s_lshl_b32 s{sUP}, s{sWAVE}, 13")
    a(f"s_add_u32 s{sUP}, s{sUP}, 131072")
    def tr_addr(base_sgpr):
        t0, t1, t2 = vX, vX + 1, vX + 2
        a(f"v_lshrrev_b32 v{t0}, 4, v{vLANE}")
        a(f"v_and_b32 v{t1}, 1, v{t0}")
        a(f"v_lshlrev_b32 v{t1}, 2, v{t1}")
        a(f"v_bfe_u32 v{t2}, v{vLANE}, 2, 2")
        a(f"v_add_u32 v{t1}, v{t1}, v{t2}")
        a(f"v_lshrrev_b32 v{t0}, 1, v{t0}")
        a(f"v_lshlrev_b32 v{t0}, 10, v{t0}")
        a(f"v_lshlrev_b32 v{t2}, 7, v{t1}")
        a(f"v_add_u32 v{t0}, v{t0}, v{t2}")
        a(f"v_and_b32 v{t2}, 3, v{vLANE}")
        a(f"v_lshlrev_b32 v{t2}, 3, v{t2}")
        a(f"v_add_u32 v{t0}, v{t0}, v{t2}")
        a(f"v_add_u32 v{t0}, s{base_sgpr}, v{t0}")
        a(f"v_lshrrev_b32 v{t1}, 1, v{t1}")
        for t in range(4):
            a(f"v_xor_b32 v{t2}, {t}, v{t1}")
            a(f"v_lshlrev_b32 v{t2}, 5, v{t2}")
            a(f"v_add_u32 v{vTR+t}, v{t0}, v{t2}")
    def w1_dma(i): dma_step(a, sW1, F * 2, sWB, sROT1, i, 16, sM0B, (i % 8) * 4096, f"w1_{i}", "nt" if i < opt.nta else opt.w1bits)
    def w1_stream(first, dp):
        retired = 0
        def retire():
            nonlocal retired
            a.wait_vm(f"w1_{retired}")
            if retired: a("s_waitcnt lgkmcnt(0)")
            tr_step(a, vTR, (retired % 8) * 4096, retired)
            retired += 1
        for i in range(first, 16):
            while retired <= i - dp: retire()
            if i >= 8:
                while retired <= i - 8: retire()
                if retired == i - 7: a("s_waitcnt lgkmcnt(0)")
            w1_dma(i)
        while retired < 16: retire()
        a("s_waitcnt lgkmcnt(0)")
    dma_addr(a, F * 2, sFT)
    a(f"s_mul_i32 s{sWB}, s{sWAVE}, {512*F*2}")
    a.c("LayerNorm: wave w normalises rows 32*ks + 16*(w>>1) + 4*q + 2*(w&1) + (0,1), 32 lanes per row")
    XR, XF, TM = 96, 108, 130
    a(f"s_lshr_b32 s{sT0}, s{sWG}, 2")
    a(f"s_and_b32 s{sT1}, s{sWG}, 3")
    a(f"s_lshl_b32 s{sT2}, s{sT0}, 5")
    a(f"s_lshr_b32 s{sT3}, s{sWAVE}, 1")
    a(f"s_lshl_b32 s{sT3}, s{sT3}, 4")
    a(f"s_add_u32 s{sT2}, s{sT2}, s{sT3}")
    a(f"s_lshl_b32 s{sT3}, s{sT1}, 2")
    a(f"s_add_u32 s{sT2}, s{sT2}, s{sT3}")
    a(f"s_and_b32 s{sT3}, s{sWAVE}, 1")
    a(f"s_lshl_b32 s{sT3}, s{sT3}, 1")
    a(f"s_add_u32 s{sT2}, s{sT2}, s{sT3}")
    a(f"s_mul_i32 s{sT2}, s{sT2}, 1280")
    a(f"v_lshrrev_b32 v{TM}, 5, v{vLANE}")
    a(f"v_and_b32 v{TM+1}, 31, v{vLANE}")
    a(f"v_lshlrev_b32 v{TM+1}, 3, v{TM+1}")
    a(f"v_mul_u32_u24 v{TM+2}, 1280, v{TM}")
    a(f"v_add_u32 v{TM+2}, v{TM+2}, v{TM+1}")
    a(f"v_mov_b32 v{vT}, 0")
    a("s_waitcnt lgkmcnt(0)")
    if opt.prof: a(f"s_mov_b32 s{sPROF}, s{sP}")
    make_srd(a, sD, 16, 256)
    a(f"s_cmp_lg_u32 s{sWG}, 0")
    a("s_cbranch_scc1 L_nononce")
    a(f"s_cmp_lg_u32 s{sWAVE}, 3")
    a("s_cbranch_scc1 L_nononce")
    a(f"s_or_b32 s{sNONCE}, s{sP if opt.prof else 96}, 1")
    a(f"v_mov_b32 v{vT2}, s{sNONCE}")
    a(f"s_mov_b64 s[{sP+2}:{sP+3}], exec")
    a("s_mov_b64 exec, 1")
    a(f"buffer_store_dword v{vT2}, v{vT}, {srd(sD)}, 0 offen sc1")
    a(f"s_mov_b64 exec, s[{sP+2}:{sP+3}]")
    a.label("L_nononce")
    make_srd(a, sX, 4, S * D * 2)
    for i in range(5):
        a.vmem(f"buffer_load_dwordx2 {vr(XR+2*i,2)}, v{TM+2}, {srd(sX)}, s{sT2} offen offset:{i*256} {opt.xbits}", "x")
    make_srd(a, sW1, 6, S * F * 2)
    a(f"s_cmp_ge_u32 s{sJ}, s{sJLIM}")
    a("s_cbranch_scc1 L_ln_now1")
    for i in range(opt.nearly): w1_dma(i)
    a.label("L_ln_now1")
    if opt.cpf:
        a(f"s_cmp_lg_u32 s{sWAVE}, 3")
        a("s_cbranch_scc1 L_nocpf")
        a(f"s_lshl_b32 s{sT3}, s{sJ}, 11")
        a(f"v_lshlrev_b32 v{vX}, 4, v{vLANE}")
        a(f"v_add_u32 v{vX}, s{sT3}, v{vX}")
        a(f"v_add_u32 v{vX+1}, 1024, v{vX}")
        for h in range(2):
            a(f"v_min_u32 v{vX+h}, L_codeend-{KN}-36, v{vX+h}")
            a(f"global_load_dwordx4 {vr(240+4*h,4)}, v{vX+h}, s[94:95]")
        a.label("L_nocpf")
    make_srd(a, sH, 18, H_BYTES, WS_H)
    make_srd(a, sF, 18, FLAG_BYTES, WS_FLAG)
    a(f"s_mul_i32 s{sSTEP}, s{sT0}, 40960")
    a(f"s_lshl_b32 s{sT1}, s{sT1}, 8")
    a(f"s_add_u32 s{sSTEP}, s{sSTEP}, s{sT1}")
    a(f"s_lshl_b32 s{sT3}, s{sWAVE}, 1")
    a(f"v_add_u32 v{TM+4}, s{sT3}, v{TM}")
    a(f"v_mul_u32_u24 v{TM+4}, {LN_ROW}, v{TM+4}")
    a(f"v_add_u32 v{TM+4}, v{TM+4}, v{TM+1}")
    a(f"v_add_u32 v{TM+4}, {LN_BASE}, v{TM+4}")
    a(f"s_mul_i32 s{sT3}, s{sWAVE}, 12")
    a(f"s_cmp_eq_u32 s{sWAVE}, 3")
    a(f"s_cselect_b32 s{sT3}, 32, s{sT3}")
    a(f"v_lshrrev_b32 v{TM+6}, 4, v{vLANE}")
    a(f"v_add_u32 v{TM+6}, s{sT3}, v{TM+6}")
    a(f"v_bfe_u32 v{TM+5}, v{vLANE}, 2, 2")
    a(f"v_mul_u32_u24 v{TM+5}, {LN_ROW}, v{TM+5}")
    a(f"v_lshlrev_b32 v{TM+7}, 5, v{TM+6}")
    a(f"v_add_u32 v{TM+5}, v{TM+5}, v{TM+7}")
    a(f"v_and_b32 v{TM+7}, 3, v{vLANE}")
    a(f"v_lshlrev_b32 v{TM+7}, 3, v{TM+7}")
    a(f"v_add_u32 v{TM+5}, v{TM+5}, v{TM+7}")
    a(f"v_add_u32 v{TM+5}, {LN_BASE}, v{TM+5}")
    a(f"v_lshlrev_b32 v{TM+6}, 10, v{TM+6}")
    a(f"v_and_b32 v{TM+7}, 15, v{vLANE}")
    a(f"v_lshlrev_b32 v{TM+7}, 4, v{TM+7}")
    a(f"v_add_u32 v{TM+6}, v{TM+6}, v{TM+7}")
    tr_addr(sM0B)
    a(f"s_mov_b32 s{sT0}, 0xffff0000")
    nc = 2 if opt.cpf else 0
    a(f"s_cmp_ge_u32 s{sJ}, s{sJLIM}")
    a("s_cbranch_scc1 L_ln_idle")
    a(f"s_cmp_eq_u32 s{sWAVE}, 3")
    a("s_cbranch_scc1 L_ln_w3")
    a(f"s_waitcnt vmcnt({4*opt.nearly})")
    a("s_branch L_ln_go")
    a.label("L_ln_w3")
    a(f"s_waitcnt vmcnt({4*opt.nearly + nc})")
    a("s_branch L_ln_go")
    a.label("L_ln_idle")
    a(f"s_cmp_eq_u32 s{sWAVE}, 3")
    a("s_cbranch_scc1 L_ln_idle3")
    a("s_waitcnt vmcnt(0)")
    a("s_branch L_ln_go")
    a.label("L_ln_idle3")
    a(f"s_waitcnt vmcnt({nc})")
    a.label("L_ln_go")
    stamp(a, opt, 1)
    for i in range(10):
        a(f"v_lshlrev_b32 v{XF+2*i}, 16, v{XR+i}")
        a(f"v_and_b32 v{XF+2*i+1}, s{sT0}, v{XR+i}")
    SM = TM + 8
    a(f"v_pk_add_f32 {vr(SM,2)}, {vr(XF,2)}, {vr(XF+4,2)}")
    a(f"v_pk_add_f32 {vr(SM+2,2)}, {vr(XF+2,2)}, {vr(XF+6,2)}")
    for i in range(4, 10):
        k = i % 2
        a(f"v_pk_add_f32 {vr(SM+2*k,2)}, {vr(SM+2*k,2)}, {vr(XF+2*i,2)}")
    def reduce_row(dst):
        a(f"v_pk_add_f32 {vr(SM,2)}, {vr(SM,2)}, {vr(SM+2,2)}")
        a(f"v_add_f32 v{dst}, v{SM}, v{SM+1}")
        for rot in (8, 4, 2, 1):
            a("s_nop 1")
            a(f"v_add_f32_dpp v{dst}, v{dst}, v{dst} row_ror:{rot} row_mask:0xf bank_mask:0xf")
        a(f"v_mov_b32 v{SM}, v{dst}")
        a("s_nop 1")
        a(f"v_permlane16_swap_b32 v{dst}, v{SM}")
        a("s_nop 1")
        a(f"v_add_f32 v{dst}, v{dst}, v{SM}")
    MN = TM + 12
    reduce_row(MN)
    a(f"v_mul_f32 v{MN}, {f2h(1.0/640.0)}, v{MN}")
    a(f"v_mov_b32 v{MN+1}, v{MN}")
    for i in range(10):
        a(f"v_pk_add_f32 {vr(XF+2*i,2)}, {vr(XF+2*i,2)}, {vr(MN,2)} neg_lo:[0,1] neg_hi:[0,1]")
    for k in range(2):
        a(f"v_pk_mul_f32 {vr(SM+2*k,2)}, {vr(XF+2*k,2)}, {vr(XF+2*k,2)}")
    for i in range(2, 10):
        k = i % 2
        a(f"v_pk_fma_f32 {vr(SM+2*k,2)}, {vr(XF+2*i,2)}, {vr(XF+2*i,2)}, {vr(SM+2*k,2)}")
    reduce_row(MN)
    a(f"v_mov_b32 v{MN+1}, {f2h(1e-5)}")
    a(f"v_fmac_f32 v{MN+1}, {f2h(1.0/640.0)}, v{MN}")
    a(f"v_rsq_f32 v{MN}, v{MN+1}")
    a("s_nop 0")
    a(f"v_mov_b32 v{MN+1}, v{MN}")
    for i in range(10):
        a(f"v_pk_mul_f32 {vr(XF+2*i,2)}, {vr(XF+2*i,2)}, {vr(MN,2)}")
    for i in range(10):
        a(f"v_cvt_pk_bf16_f32 v{XR+i}, v{XF+2*i}, v{XF+2*i+1}")
    for i in range(5):
        a(f"ds_write_b64 v{TM+4}, {vr(XR+2*i,2)} offset:{i*256}")
    a("s_waitcnt lgkmcnt(0)")
    a("s_barrier")
    for i in range(2):
        a(f"ds_read_b64_tr_b16 {vr(XF+4*i,2)}, v{TM+5} offset:{i*128}")
        a(f"ds_read_b64_tr_b16 {vr(XF+4*i+2,2)}, v{TM+5} offset:{i*128+4*LN_ROW}")
    a(f"s_cmp_ge_u32 s{sWAVE}, 2")
    a("s_cbranch_scc1 L_ln_two")
    a(f"ds_read_b64_tr_b16 {vr(XF+8,2)}, v{TM+5} offset:{2*128}")
    a(f"ds_read_b64_tr_b16 {vr(XF+10,2)}, v{TM+5} offset:{2*128+4*LN_ROW}")
    a("s_waitcnt lgkmcnt(0)")
    a(f"s_add_u32 s{sT0}, s{sSTEP}, {2*4096}")
    a(f"buffer_store_dwordx4 {vr(XF+8,4)}, v{TM+6}, {srd(sH)}, s{sT0} offen {opt.hbits}")
    a.label("L_ln_two")
    a("s_waitcnt lgkmcnt(0)")
    for i in range(2):
        a(f"s_add_u32 s{sT0}, s{sSTEP}, {i*4096}")
        a(f"buffer_store_dwordx4 {vr(XF+4*i,4)}, v{TM+6}, {srd(sH)}, s{sT0} offen {opt.hbits}")
    a(f"buffer_load_dword v{vPOLL}, v{vT}, {srd(sD)}, 0 offen sc1")
    stamp(a, opt, 2)
    a(f"s_cmp_ge_u32 s{sJ}, s{sJLIM}")
    a("s_cbranch_scc1 L_ln_idle2")
    a.vm = [f"w1_{i}" for i in range(opt.nearly)]
    for i in range(opt.nearly, opt.nearly + opt.npost): w1_dma(i)
    a(f"s_waitcnt vmcnt({4*opt.npost})")
    a("s_branch L_ln_go2")
    a.label("L_ln_idle2")
    a("s_waitcnt vmcnt(0)")
    a.label("L_ln_go2")
    a(f"v_readfirstlane_b32 s{sNONCE}, v{vPOLL}")
    nonce_spin(a, opt)
    a("s_barrier")
    a(f"s_cmp_lg_u32 s{sWAVE}, 0")
    a("s_cbranch_scc1 L_noflag")
    a(f"s_lshl_b32 s{sT0}, s{sWG}, 2")
    keep = list(a.vm)
    flag_store(a, sT0)
    a.vm = keep
    a.label("L_noflag")
    stamp(a, opt, 3)
    a(f"s_cmp_ge_u32 s{sJ}, s{sJLIM}")
    a("s_cbranch_scc1 L_nogemm1")
    w1_stream(opt.nearly + opt.npost, opt.dp)

    def common_setup():
        make_srd(a, sH, 18, H_BYTES, WS_H)
        make_srd(a, sF, 18, FLAG_BYTES, WS_FLAG)
        make_srd(a, sB1, 8, F * 2)
        make_srd(a, sW2, 10, F * S * 2)
        make_srd(a, sB2, 12, S * 2)
        make_srd(a, sO, 14, S * D * 2)
        make_srd(a, sG, 18, G_BYTES, WS_G)
        a(f"v_lshrrev_b32 v{vT}, 4, v{vLANE}")
        a(f"v_lshlrev_b32 v{vT}, 3, v{vT}")
        a(f"s_and_b32 s{sT0}, s{sWAVE}, 1")
        a(f"s_lshl_b32 s{sT0}, s{sT0}, 6")
        a(f"s_lshl_b32 s{sT1}, s{sFT}, 7")
        a(f"s_add_u32 s{sT0}, s{sT0}, s{sT1}")
        a.vmem(f"buffer_load_dwordx2 {vr(vB1,2)}, v{vT}, {srd(sB1)}, s{sT0} offen", "b")
        a.vmem(f"buffer_load_dwordx2 {vr(vB1+2,2)}, v{vT}, {srd(sB1)}, s{sT0} offen offset:32", "b")
        a(f"v_and_b32 v{vT}, 15, v{vLANE}")
        a(f"v_lshlrev_b32 v{vT}, 1, v{vT}")
        a(f"s_lshl_b32 s{sT0}, s{sST}, 7")
        a(f"s_lshl_b32 s{sT1}, s{sWAVE}, 5")
        a(f"s_add_u32 s{sT0}, s{sT0}, s{sT1}")
        a.vmem(f"buffer_load_ushort v{vB2}, v{vT}, {srd(sB2)}, s{sT0} offen", "b")
        dma_addr(a, S * 2, sST)
        a(f"s_mul_i32 s{sWB}, s{sWAVE}, {448*S*2}")
        tr_addr(sM0B)
        a(f"s_sub_u32 s{sT0}, s{sUP}, s{sM0B}")
        for t in range(4):
            a(f"v_add_u32 v{vTRU+t}, s{sT0}, v{vTR+t}")
        a(f"v_lshlrev_b32 v{vL0}, 4, v{vLANE}")
        a(f"v_add_u32 v{vL1}, 65536, v{vL0}")
        a(f"v_add_u32 v{vL2}, 131072, v{vL0}")

    a.label("L_w1_ready")
    a.vm = []
    stamp(a, opt, 4)
    common_setup()
    a(f"s_mul_i32 s{sT0}, s{sDT1}, 5120")
    a(f"v_add_u32 v{vA}, s{sT0}, v{vL0}")
    a(f"v_add_u32 v{vA2}, 4096, v{vA}")
    a(f"s_cmp_lg_u32 s{sWAVE}, {opt.pollw}")
    a("s_cbranch_scc1 L_hpolled")
    poll(a, opt, vL0, 4, None, opt.sleeph, opt.preh, 1)
    a.label("L_hpolled")
    a.wait_vm0()
    a("s_barrier")
    stamp(a, opt, 5)

    def a_loads(srdn, step, nsteps, s_rot):
        slot = step % NS
        step_off(a, sOFF, sSTEP, s_rot, step, nsteps, 40960)
        return [f"buffer_load_dwordx4 {vr(ring(slot,t),4)}, v{vA if t < 4 else vA2}, {srd(srdn)}, s{sOFF} offen offset:{(t*1024) if t < 4 else 0} sc1" for t in range(5)]

    def main_loop(srdn, nsteps, s_rot, tagp, mfma, stamp0, tail, nuni):
        for st in range(opt.depth):
            for o, ins in enumerate(a_loads(srdn, st, nsteps, s_rot)): a.vmem(ins, f"{tagp}{st}_{o}")
        for st in range(nuni):
            nx = st + opt.depth
            nxt = a_loads(srdn, nx, nsteps, s_rot) if nx < nsteps else None
            a.wait_vm(f"{tagp}{st}_4")
            if st == 0 and stamp0 is not None: stamp(a, opt, stamp0)
            for o in range(5):
                if nxt: a.vmem(nxt[o], f"{tagp}{nx}_{o}")
                for i in range(4): mfma(st, o, i, st % NS)
                if tail: tail(st, o)

    def tile_tail(nsteps, tagp, first, last, frag_of, mfma_tile, write_tile, extra):
        ic = [0]
        done_at = {}
        queue = []
        extra = list(extra)
        def emit(fn):
            fn(); ic[0] += 1
        def filler():
            if queue and ic[0] - done_at[queue[0]] >= 9:
                t = queue.pop(0); emit(lambda: write_tile(t)); return
            if extra: emit(extra.pop(0))
        tiles = list(first) + list(last)
        for i in range(0, len(tiles), 2):
            pair = tiles[i:i + 2]
            for t in pair:
                for st in (nsteps - 2, nsteps - 1): a.wait_vm(f"{tagp}{st}_{frag_of(t)}")
            for st in (nsteps - 2, nsteps - 1):
                for t in pair:
                    emit(lambda: mfma_tile(st, t))
                    if st == nsteps - 1:
                        done_at[t] = ic[0]
                        if t in first: queue.append(t)
                    filler()
        while extra: emit(extra.pop(0))
        while queue:
            while ic[0] - done_at[queue[0]] < 9: emit(lambda: a("s_nop 0"))
            t = queue.pop(0); emit(lambda: write_tile(t))

    a(f"s_mul_i32 s{sSTEP}, s{sWAVE}, {16*40960}")
    def mfma1(st, nt, mt, slot):
        c = "0" if st == 0 else vr(acc1(mt, nt), 4)
        a(f"v_mfma_f32_16x16x32_bf16 {vr(acc1(mt,nt),4)}, {ar(wfrag(st,mt),4)}, {vr(ring(slot,nt),4)}, {c}")
    parts13 = w2_dma_parts(a, 0) if opt.t13 else []
    def tail1(st, o):
        if st == 13 and parts13:
            if o == 0: parts13[0]()
            else: parts13[o]()
    main_loop(sH, 16, sROT1, "h", mfma1, 6, tail1, 14)

    a(f"s_mov_b32 s100, {f2h(C1)}"); a(f"s_mov_b32 s101, {f2h(C1)}")
    a(f"v_mov_b32 v{vC0}, {f2h(C0)}"); a(f"v_mov_b32 v{vC0+1}, {f2h(C0)}")
    def lds_ref(addr):
        if addr < 65536: return vL0, addr
        if addr < 131072: return vL1, addr - 65536
        return vL2, addr - 131072
    def owner1(p, nt): return p + (0 if nt < 3 else 2)
    units = [(p, nt) for p in range(2) for nt in range(5)]
    def red1_addr(src, u):
        k = [x for x in units if owner1(*x) != src].index(u)
        return src * 32768 + 24576 + k * 2048 if k < 4 else 131072 + src * 8192 + (k - 4) * 2048
    saved_vm = list(a.vm)
    for w in range(4):
        if w < 3:
            a(f"s_cmp_lg_u32 s{sWAVE}, {w}")
            a(f"s_cbranch_scc1 L_ep1_{w+1}")
        a.vm = list(saved_vm)
        nis = [1 if opt.t13 else 0]
        def more(n, limit):
            for _ in range(n):
                if nis[0] < limit:
                    w2_dma(a, nis[0]); nis[0] += 1
        tl = [(2 * p + hf, nt) for nt in range(5) for p in range(2) for hf in range(2)]
        first = [t for t in tl if owner1(t[0] // 2, t[1]) != w]
        last = [t for t in tl if owner1(t[0] // 2, t[1]) == w]
        def wr1(t):
            vb, off = lds_ref(red1_addr(w, (t[0] // 2, t[1])) + (t[0] & 1) * 1024)
            a(f"ds_write_b128 v{vb}, {vr(acc1(*t),4)} offset:{off}")
        extra = []
        for _ in range(opt.tt):
            extra += w2_dma_parts(a, nis[0]); nis[0] += 1
        tile_tail(16, "h", first, last, lambda t: t[1], lambda st, t: mfma1(st, t[1], t[0], st % NS), wr1, extra)
        stamp(a, opt, 7)
        more(opt.e1, 6)
        a("s_waitcnt lgkmcnt(0)")
        a("s_barrier")
        own_u = [u for u in units if owner1(*u) == w]
        RT = vRING
        n = 0
        for u in own_u:
            for src in range(4):
                if src == w: continue
                for hf in range(2):
                    vb, off = lds_ref(red1_addr(src, u) + hf * 1024)
                    a(f"ds_read_b128 {vr(RT + n*4, 4)}, v{vb} offset:{off}")
                    n += 1
        a.wait_vm("b")
        for i in range(4):
            a(f"v_lshlrev_b32 v{BI+2*i}, 16, v{vB1+i}")
            a(f"v_and_b32 v{BI+2*i+1}, 0xffff0000, v{vB1+i}")
        for u in own_u:
            p, nt = u
            for hf in range(2):
                r = acc1(2*p+hf, nt)
                a(f"v_pk_add_f32 {vr(r,2)}, {vr(r,2)}, {vr(BI+4*hf,2)}")
                a(f"v_pk_add_f32 {vr(r+2,2)}, {vr(r+2,2)}, {vr(BI+4*hf+2,2)}")
        n = 0
        tot = len(own_u) * 6
        for u in own_u:
            p, nt = u
            for si in range(3):
                for hf in range(2):
                    a(f"s_waitcnt lgkmcnt({min(15, tot - n - 1)})")
                    r = acc1(2*p+hf, nt)
                    a(f"v_pk_add_f32 {vr(r,2)}, {vr(r,2)}, {vr(RT+n*4,2)}")
                    a(f"v_pk_add_f32 {vr(r+2,2)}, {vr(r+2,2)}, {vr(RT+n*4+2,2)}")
                    n += 1
        a("s_barrier")
        regs = []
        for u in own_u:
            p, nt = u
            for hf in range(2):
                r = acc1(2*p+hf, nt)
                regs += [r, r + 2]
        more(opt.e2, 10)
        gelu_pairs(a, regs, RT, fill=lambda: more(opt.e3, 10))
        a(f"s_lshl_b32 s{sT0}, s{sFT}, 1")
        a(f"s_add_u32 s{sT0}, s{sT0}, {w & 1}")
        a(f"s_mul_i32 s{sT0}, s{sT0}, 40960")
        a(f"s_mul_i32 s{sT1}, s{sDT1}, 5120")
        a(f"s_add_u32 s{sT0}, s{sT0}, s{sT1}")
        for i, u in enumerate(own_u):
            p, nt = u
            o = RT + 64 + 4 * i
            r0, r1 = acc1(2*p, nt), acc1(2*p+1, nt)
            a(f"v_cvt_pk_bf16_f32 v{o}, v{r0}, v{r0+1}")
            a(f"v_cvt_pk_bf16_f32 v{o+1}, v{r0+2}, v{r0+3}")
            a(f"v_cvt_pk_bf16_f32 v{o+2}, v{r1}, v{r1+1}")
            a(f"v_cvt_pk_bf16_f32 v{o+3}, v{r1+2}, v{r1+3}")
            a(f"s_add_u32 s{sT1}, s{sT0}, {nt*1024}")
            a.vmem(f"buffer_store_dwordx4 {vr(o,4)}, v{vL0}, {srd(sG)}, s{sT1} offen sc1", "g")
        stamp(a, opt, 8)
        more(opt.nb, 10)
        a.wait_vm("w2_3")
        if nis[0] >= 4:
            for st in range(4):
                w2_tr(a, st)
                if st % 2 == 1: a("s_waitcnt lgkmcnt(0)")
        if nis[0] == 10 and opt.nb2:
            for st in range(10, 10 + opt.nb2): w2_dma(a, st)
            nis[0] += opt.nb2
        a.wait_vm("g")
        a(f"s_lshl_b32 s{sT0}, s{sDT1}, 5")
        a(f"s_add_u32 s{sT0}, s{sT0}, s{sFT}")
        a(f"s_mul_i32 s{sT0}, s{sT0}, {opt.gstride}")
        a(f"s_add_u32 s{sT0}, s{sT0}, {FLAG_G + 4*w}")
        flag_store(a, sT0)
        stamp(a, opt, 9)
        assert nis[0] >= 4
        more(10, 10)
        more(4, 14)
        for st in range(4, 10):
            a.wait_vm(f"w2_{st}")
            w2_tr(a, st)
            if st % 2 == 1: a("s_waitcnt lgkmcnt(0)")
        a("s_branch L_pre2")
        if w < 3: a.label(f"L_ep1_{w+1}")

    a.label("L_nogemm1")
    a.vm = []
    common_setup()
    if False:
        a(f"s_lshl_b32 s{sT0}, s{sWAVE}, 6")
        a(f"v_add_u32 v{vX}, s{sT0}, v{vLANE}")
        a(f"v_mul_u32_u24 v{vX}, {opt.hstride}, v{vX}")
        poll(a, opt, vX, 2, None)
        if opt.idlewait > 1:
            a(f"s_sleep {opt.idlewait}")
    if opt.pf == 3:
        a(f"s_lshl_b32 s{sT0}, s{sIDLE}, 2")
        a(f"s_add_u32 s{sT0}, s{sT0}, s{sWAVE}")
        a(f"s_lshl_b32 s{sT0}, s{sT0}, 10")
        for k in range(44):
            o = vRING + (k % 16) * 4
            a.vmem(f"buffer_load_dwordx4 {vr(o,4)}, v{vL0}, {srd(sW2)}, s{sT0} offen {opt.pfbits}", f"pf{k}")
            a(f"s_add_u32 s{sT0}, s{sT0}, {160*1024}")
            if k >= opt.pfdepth: a.wait_vm(f"pf{k-opt.pfdepth}")
        a.wait_vm0()
    if opt.pf == 2:
        assert opt.p1 == 2 and opt.p2 == 1
        a(f"s_cmp_lt_u32 s{sJ}, 28")
        a("s_cbranch_scc1 L_nopf")
        a(f"s_sub_u32 s{sT0}, s{sJ}, 28")
        a(f"s_lshl_b32 s{sT0}, s{sT0}, 2")
        a(f"s_add_u32 s{sT0}, s{sT0}, s{sWAVE}")
        a(f"s_lshl_b32 s{sT0}, s{sT0}, 13")
        a(f"s_lshl_b32 s{sT1}, s{sXCD}, 9")
        a(f"s_add_u32 s{sT0}, s{sT0}, s{sT1}")
        a(f"v_lshrrev_b32 v{vX}, 5, v{vLANE}")
        a(f"v_lshlrev_b32 v{vX}, 12, v{vX}")
        a(f"v_and_b32 v{vX+1}, 31, v{vLANE}")
        a(f"v_lshlrev_b32 v{vX+1}, 4, v{vX+1}")
        a(f"v_add_u32 v{vX}, v{vX}, v{vX+1}")
        keep = list(a.vm)
        for k in range(54):
            o = vRING + (k % 16) * 4
            a.vmem(f"buffer_load_dwordx4 {vr(o,4)}, v{vX}, {srd(sW2)}, s{sT0} offen", f"pf{k}")
            a(f"s_add_u32 s{sT0}, s{sT0}, {16*8192}")
            if k >= opt.pfdepth: a.wait_vm(f"pf{k-opt.pfdepth}")
        a.wait_vm0()
        a.label("L_nopf")
        a.vm = keep
    for st in range(10): w2_dma(a, st)
    for st in range(4):
        a.wait_vm(f"w2_{st}")
        w2_tr(a, st)
        if st % 2 == 1: a("s_waitcnt lgkmcnt(0)")
    for st in range(10, 14): w2_dma(a, st)
    for st in range(4, 10):
        a.wait_vm(f"w2_{st}")
        w2_tr(a, st)
        if st % 2 == 1: a("s_waitcnt lgkmcnt(0)")

    a.label("L_pre2")
    a.wait_vm0()
    a("s_waitcnt lgkmcnt(0)")
    for st in range(10, 14):
        w2_tr(a, st)
        if st % 2 == 1: a("s_waitcnt lgkmcnt(0)")
    stamp(a, opt, 10)
    a(f"s_mul_i32 s{sT0}, s{sDT2}, 5120")
    a(f"v_add_u32 v{vA}, s{sT0}, v{vL0}")
    a(f"v_add_u32 v{vA2}, 4096, v{vA}")
    if opt.onepoll & 2:
        a(f"s_cmp_lg_u32 s{sWAVE}, {opt.pollw}")
        a("s_cbranch_scc1 L_gpolled")
        a(f"s_lshl_b32 s{sT0}, s{sDT2}, 5")
        a(f"s_mul_i32 s{sT0}, s{sT0}, {opt.gstride}")
        a(f"s_add_u32 s{sT0}, s{sT0}, {FLAG_G}")
        a(f"v_mul_u32_u24 v{vX}, {opt.gstride}, v{vLANE}")
        a(f"v_add_u32 v{vX}, s{sT0}, v{vX}")
        a(f"s_mov_b32 s{sP+2}, 0x7ffffff")
        a(f"s_mov_b32 s{sP+3}, 0")
        poll(a, opt, vX, 4, sP + 2, opt.sleep, opt.preg)
        a.label("L_gpolled")
        a("s_barrier")
    else:
        a(f"s_lshl_b32 s{sT0}, s{sDT2}, 5")
        a(f"s_mul_i32 s{sT1}, s{sWAVE}, 7")
        a(f"s_add_u32 s{sT0}, s{sT0}, s{sT1}")
        a(f"s_mul_i32 s{sT0}, s{sT0}, {opt.gstride}")
        a(f"s_add_u32 s{sT0}, s{sT0}, {FLAG_G}")
        a(f"v_lshrrev_b32 v{vX}, 2, v{vLANE}")
        a(f"v_mul_u32_u24 v{vX}, {opt.gstride}, v{vX}")
        a(f"v_and_b32 v{vT}, 3, v{vLANE}")
        a(f"v_lshlrev_b32 v{vT}, 2, v{vT}")
        a(f"v_add_u32 v{vX}, v{vX}, v{vT}")
        a(f"v_add_u32 v{vX}, s{sT0}, v{vX}")
        a(f"s_cmp_eq_u32 s{sWAVE}, 3")
        a(f"s_mov_b32 s{sP+3}, 0xffffff")
        a(f"s_cselect_b32 s{sP+2}, s{sP+3}, 0xfffffff")
        a(f"s_mov_b32 s{sP+3}, 0")
        poll(a, opt, vX, 1, sP + 2, opt.sleep, opt.preg)
    stamp(a, opt, 11)
    a(f"s_mul_i32 s{sSTEP}, s{sWAVE}, {14*40960}")
    def mfma2(st, mt, nt, slot):
        c = "0" if st == 0 else vr(acc2(mt, nt), 4)
        a(f"v_mfma_f32_16x16x32_bf16 {vr(acc2(mt,nt),4)}, {vr(ring(slot,mt),4)}, {ar(wfrag(st,nt),4)}, {c}")
    main_loop(sG, 14, sROT2, "g", mfma2, 12, None, 12)
    saved_vm2 = list(a.vm)
    a(f"v_and_b32 v{vT}, 15, v{vLANE}")
    a(f"s_lshl_b32 s{sT0}, s{sWAVE}, 4")
    a(f"v_add_u32 v{vT}, s{sT0}, v{vT}")
    a(f"v_mul_u32_u24 v{vA}, 1280, v{vT}")
    a(f"v_lshrrev_b32 v{vT}, 4, v{vLANE}")
    a(f"v_lshlrev_b32 v{vT}, 3, v{vT}")
    a(f"v_add_u32 v{vA}, v{vA}, v{vT}")
    a(f"s_mul_i32 s{sT0}, s{sST}, {64*1280}")
    a(f"s_mul_i32 s{sT1}, s{sDT2}, 160")
    a(f"s_add_u32 s{sOFF}, s{sT0}, s{sT1}")
    a(f"v_lshlrev_b32 v{vC0}, 16, v{vB2}")
    a(f"v_lshlrev_b32 v{vC0+1}, 16, v{vB2}")
    a(f"v_sub_u32 v{vA2}, v{vA}, v{vT}")
    a(f"v_bfe_u32 v{vT}, v{vLANE}, 4, 1")
    a(f"v_lshlrev_b32 v{vT}, 5, v{vT}")
    a(f"v_add_u32 v{vA2}, v{vA2}, v{vT}")
    a(f"v_bfe_u32 v{vT}, v{vLANE}, 5, 1")
    a(f"v_lshlrev_b32 v{vT}, 4, v{vT}")
    a(f"v_add_u32 v{vA2}, v{vA2}, v{vT}")
    def red2_addr(src, nt, mt):
        k = [x for x in range(4) if x != src].index(nt)
        return src * 32768 + (k * 5 + mt) * 1024
    for w in range(4):
        if w < 3:
            a(f"s_cmp_lg_u32 s{sWAVE}, {w}")
            a(f"s_cbranch_scc1 L_ep2_{w+1}")
        a.vm = list(saved_vm2)
        tl = [(mt, nt) for mt in range(5) for nt in range(4)]
        def wr2(t):
            vb, off = lds_ref(red2_addr(w, t[1], t[0]))
            a(f"ds_write_b128 v{vb}, {vr(acc2(*t),4)} offset:{off}")
        tile_tail(14, "g", [t for t in tl if t[1] != w], [t for t in tl if t[1] == w], lambda t: t[0],
                  lambda st, t: mfma2(st, t[0], t[1], st % NS), wr2, [])
        stamp(a, opt, 13)
        a("s_waitcnt lgkmcnt(0)")
        a("s_barrier")
        RT = vRING
        n = 0
        for mt in range(5):
            for src in range(4):
                if src == w: continue
                vb, off = lds_ref(red2_addr(src, w, mt))
                a(f"ds_read_b128 {vr(RT+n*4,4)}, v{vb} offset:{off}")
                n += 1
        n = 0
        for mt in range(5):
            r = acc2(mt, w)
            for si in range(3):
                a(f"s_waitcnt lgkmcnt({14 - n})")
                a(f"v_pk_add_f32 {vr(r,2)}, {vr(r,2)}, {vr(RT+n*4,2)}")
                a(f"v_pk_add_f32 {vr(r+2,2)}, {vr(r+2,2)}, {vr(RT+n*4+2,2)}")
                n += 1
            a(f"v_pk_add_f32 {vr(r,2)}, {vr(r,2)}, {vr(vC0,2)}")
            a(f"v_pk_add_f32 {vr(r+2,2)}, {vr(r+2,2)}, {vr(vC0,2)}")
            o = RT + 64 + 2 * mt
            a(f"v_cvt_pk_bf16_f32 v{o}, v{r}, v{r+1}")
            a(f"v_cvt_pk_bf16_f32 v{o+1}, v{r+2}, v{r+3}")
            if not opt.wide or mt == 4:
                a(f"buffer_store_dwordx2 {vr(o,2)}, v{vA}, {srd(sO)}, s{sOFF} offen offset:{mt*32} {opt.obits}")
            elif mt % 2 == 1:
                a("s_nop 1")
                a(f"v_permlane16_swap_b32 v{o-2}, v{o}")
                a(f"v_permlane16_swap_b32 v{o-1}, v{o+1}")
                a(f"buffer_store_dwordx4 {vr(o-2,4)}, v{vA2}, {srd(sO)}, s{sOFF} offen offset:{(mt-1)*32} {opt.obits}")
        a("s_branch L_fin")
        if w < 3: a.label(f"L_ep2_{w+1}")
    a.label("L_fin")
    if opt.probe >= 0:
        if opt.probe == 14:
            a("s_waitcnt vmcnt(0)")
            stamp(a, opt, 14)
        a(f"s_cmp_lg_u32 s{sWG}, {opt.probewg}")
        a("s_cbranch_scc1 L_done")
        a(f"s_cmp_lg_u32 s{sWAVE}, {opt.probew}")
        a("s_cbranch_scc1 L_done")
        ref = sNONCE if opt.probeabs else (sPROF + 2 if opt.probe0 >= 0 else 96)
        a(f"s_sub_u32 s{sT1}, s{sPROF+1}, s{ref}")
        if opt.probecyc: a(f"s_lshr_b32 s{sT1}, s{sT1}, 2")
        else: a(f"s_lshl_b32 s{sT1}, s{sT1}, 2")
        a(f"s_add_u32 s{sT1}, s{sT1}, 4000")
        a.label("L_probe")
        a(f"s_memrealtime s[{sP}:{sP+1}]")
        a("s_waitcnt lgkmcnt(0)")
        a(f"s_sub_u32 s{sT0}, s{sP}, s96")
        a(f"s_cmp_lt_u32 s{sT0}, s{sT1}")
        a("s_cbranch_scc1 L_probe")
    if opt.pad:
        a.label("L_pad")
        a(f"s_memrealtime s[{sP}:{sP+1}]")
        a("s_waitcnt lgkmcnt(0)")
        a(f"s_sub_u32 s{sT0}, s{sP}, s96")
        a(f"s_cmp_lt_u32 s{sT0}, {opt.pad}")
        a("s_cbranch_scc1 L_pad")
    if opt.prof:
        a("s_waitcnt vmcnt(0)")
        stamp(a, opt, 14)
        make_srd(a, sX, 18, 65536, WS_PROF)
        a(f"s_lshl_b32 s{sT0}, s{sWG}, 2")
        a(f"s_add_u32 s{sT0}, s{sT0}, s{sWAVE}")
        a(f"s_lshl_b32 s{sT0}, s{sT0}, 6")
        a(f"v_mov_b32 v{vT}, s{sT0}")
        a("s_mov_b64 exec, 1")
        for i in range(15):
            a(f"v_mov_b32 v100, s{sPROF+i}")
            a(f"buffer_store_dword v100, v{vT}, {srd(sX)}, 0 offen offset:{4*i}")
            a("s_nop 1")
        a("s_waitcnt vmcnt(0)")
    a.label("L_done")
    a("s_endpgm")
    a.label("L_codeend")
    a.raw('.section .rodata,"a"')
    a.raw(".p2align 6")
    a.raw(f".amdhsa_kernel {KN}")
    for l in ["next_free_vgpr 512", "next_free_sgpr 102", "accum_offset 256", "group_segment_fixed_size 0",
              "kernarg_size 64", "user_sgpr_count 2", "user_sgpr_kernarg_segment_ptr 1",
              "system_sgpr_workgroup_id_x 1", "float_denorm_mode_32 3"]:
        a.raw(f"  .amdhsa_{l}")
    a.raw(".end_amdhsa_kernel")
    return "\n".join(a.L) + "\n"

def parse(argv=None):
    ap = argparse.ArgumentParser()
    ap.add_argument("-o", default="standalone__mixer_token_mlp__prompt.s")
    ap.add_argument("--prof", type=int, default=0)
    ap.add_argument("--rot", type=int, default=3)
    ap.add_argument("--spin", type=int, default=20000)
    ap.add_argument("--sleep", type=int, default=8)
    ap.add_argument("--depth", type=int, default=3)
    ap.add_argument("--lnprof", type=int, default=0)
    ap.add_argument("--hbits", default="sc1")
    ap.add_argument("--pfwait", type=int, default=1)
    ap.add_argument("--hold", type=int, default=0)
    ap.add_argument("--probe", type=int, default=-1)
    ap.add_argument("--probe0", type=int, default=-1)
    ap.add_argument("--probecyc", type=int, default=0)
    ap.add_argument("--probeabs", type=int, default=0)
    ap.add_argument("--probewg", type=int, default=100)
    ap.add_argument("--probew", type=int, default=2)
    ap.add_argument("--rot8", type=int, default=1)
    ap.add_argument("--cpf", type=int, default=1)
    ap.add_argument("--cpfw", type=int, default=3)
    ap.add_argument("--wide", type=int, default=1)
    ap.add_argument("--idlewait", type=int, default=0)
    ap.add_argument("--sleeph", type=int, default=8)
    ap.add_argument("--preh", type=int, default=0)
    ap.add_argument("--preg", type=int, default=0)
    ap.add_argument("--onepoll", type=int, default=3)
    ap.add_argument("--pollw", type=int, default=3)
    ap.add_argument("--nta", type=int, default=0)
    ap.add_argument("--rotg1", type=int, default=0)
    ap.add_argument("--rotg2", type=int, default=0)
    ap.add_argument("--npost", type=int, default=2)
    ap.add_argument("--t13", type=int, default=1)
    ap.add_argument("--tt", type=int, default=2)
    ap.add_argument("--e2", type=int, default=0)
    ap.add_argument("--e3", type=int, default=0)
    ap.add_argument("--nb2", type=int, default=0)
    ap.add_argument("--e1", type=int, default=1)
    ap.add_argument("--nb", type=int, default=2)
    ap.add_argument("--nearly", type=int, default=2)
    ap.add_argument("--dpl", type=int, default=5)
    ap.add_argument("--dp", type=int, default=3)
    ap.add_argument("--p1", type=int, default=1)
    ap.add_argument("--p2", type=int, default=1)
    ap.add_argument("--rota1", type=int, default=0)
    ap.add_argument("--rota2", type=int, default=0)
    ap.add_argument("--xbits", default="nt")
    ap.add_argument("--w1bits", default="")
    ap.add_argument("--w2bits", default="")
    ap.add_argument("--pfbits", default="")
    ap.add_argument("--pfdepth", type=int, default=8)
    ap.add_argument("--prio", type=int, default=3)
    ap.add_argument("--delay", type=int, default=0)
    ap.add_argument("--hstride", type=int, default=8)
    ap.add_argument("--gstride", type=int, default=256)
    ap.add_argument("--pf", type=int, default=3)
    ap.add_argument("--pad", type=int, default=0)
    ap.add_argument("--obits", default="sc1")
    return ap.parse_args(argv)

if __name__ == "__main__":
    opt = parse()
    open(opt.o, "w").write(gen(opt))
```

```python
import argparse, struct

S, D, F = 2048, 640, 1728
KN = "standalone__mixer_token_mlp__prompt_kernel"

WS_H = 0
H_BYTES = 64 * 40 * 1024
WS_G = 0x300000
G_BYTES = 54 * 40 * 1024
WS_FLAG = 0x600000
FLAG_H = 0
FLAG_G = 0x10000
FLAG_BYTES = 0x40000
WS_PROF = 0x700000

LDS_BYTES = 163840
LN_BASE = 131072
LN_ROW = 1344
LF_BASE = 141824
P0_BASE = [0, 49152, 98304, 122880]

sWG = 2
sX, sW1, sW2, sH, sG, sO, sF, sB1, sB2, sD = 20, 24, 28, 32, 36, 40, 44, 48, 52, 56
sWAVE, sXCD, sJ, sFT, sDT1, sST, sDT2, sNONCE = 60, 61, 62, 63, 64, 65, 66, 67
sT0, sT1, sT2, sT3, sT4, sT5 = 68, 69, 70, 71, 72, 73
sROT1, sROT2, sSTEP, sOFF = 74, 75, 76, 77
sM0B, sSPIN = 78, 79
sP = 80
sPROF = 84
sUP = 99
sJLIM, sIDLE = 100, 101
sWB = 3

vTID, vLANE = 0, 1
vTR = 2
vA, vA2, vDMA, vT2 = 6, 7, 8, 9
vB1 = 10
vB2, vT = 14, 15
vACC = 16
vRING = 96
vTRU = 176
vL0, vL1, vL2 = 180, 181, 182
vC0 = 184
BI = 186
vPOLL = 194
vX = 196
vPQ = 208
vDM = 200

def srd(n): return f"s[{n}:{n+3}]"
def vr(n, c=1): return f"v{n}" if c == 1 else f"v[{n}:{n+c-1}]"
def ar(n, c=1): return f"a{n}" if c == 1 else f"a[{n}:{n+c-1}]"
def f2h(x): return "0x%08x" % struct.unpack("<I", struct.pack("<f", x))[0]
C0 = -2.0 * 0.7978845608028654 * 1.4426950408889634
C1 = C0 * 0.044715

class Asm:
    def __init__(self):
        self.L = []; self.vm = []; self.uid = 0
    def __call__(self, s): self.L.append("    " + s)
    def label(self, s): self.L.append(s + ":")
    def raw(self, s): self.L.append(s)
    def c(self, s): self.L.append("    ; " + s)
    def vmem(self, s, tag):
        self(s); self.vm.append(tag)
    def wait_vm(self, tag):
        hits = [i for i, t in enumerate(self.vm) if t == tag]
        if not hits: return
        n = len(self.vm) - 1 - hits[-1]
        self(f"s_waitcnt vmcnt({min(n, 63)})")
        self.vm = self.vm[hits[-1] + 1:]
    def wait_vm0(self):
        self("s_waitcnt vmcnt(0)"); self.vm = []
    def newlabel(self, p):
        self.uid += 1
        return f"L_{p}_{self.uid}"

def acc1(mt, nt): return vACC + (mt * 5 + nt) * 4
def acc2(mt, nt): return vACC + (mt * 4 + nt) * 4
def wfrag(step, t): return step * 16 + t * 4

def stamp(a, opt, idx, force=False):
    if opt.probe >= 0:
        ins = "s_memtime" if opt.probecyc else "s_memrealtime"
        if idx == opt.probe:
            a(f"{ins} s[{sP}:{sP+1}]")
            a("s_waitcnt lgkmcnt(0)")
            a(f"s_mov_b32 s{sPROF+1}, s{sP}")
        if idx == opt.probe0:
            a(f"{ins} s[{sP}:{sP+1}]")
            a("s_waitcnt lgkmcnt(0)")
            a(f"s_mov_b32 s{sPROF+2}, s{sP}")
        return
    if opt.prof == 4 and idx != 14: return
    if opt.lnprof and idx in (4, 5) and getattr(a, "ln_done", False): return
    if opt.prof:
        a(f"s_mem{'time' if opt.prof == 2 else 'realtime'} s[{sP}:{sP+1}]")
        a("s_waitcnt lgkmcnt(0)")
        a(f"s_mov_b32 s{sPROF+idx}, s{sP}")

def make_srd(a, n, lo, size, add=0):
    if add:
        a(f"s_add_u32 s{n}, s{lo}, {add}")
        a(f"s_addc_u32 s{n+1}, s{lo+1}, 0")
        a(f"s_and_b32 s{n+1}, s{n+1}, 0xffff")
    else:
        a(f"s_mov_b32 s{n}, s{lo}")
        a(f"s_and_b32 s{n+1}, s{lo+1}, 0xffff")
    a(f"s_mov_b32 s{n+2}, {size}")
    a(f"s_mov_b32 s{n+3}, 0x20000")

def nonce_spin(a, opt):
    lp = a.newlabel("nonce"); dn = a.newlabel("nonced")
    a(f"s_cmp_lg_u32 s{sNONCE}, 0")
    a(f"s_cbranch_scc1 {dn}")
    a(f"s_mov_b32 s{sSPIN}, 0")
    a(f"v_mov_b32 v{vT}, 0")
    a.label(lp)
    a(f"buffer_load_dword v{vT2}, v{vT}, {srd(sD)}, 0 offen sc1")
    a("s_waitcnt vmcnt(0)")
    a(f"v_readfirstlane_b32 s{sNONCE}, v{vT2}")
    a(f"s_add_u32 s{sSPIN}, s{sSPIN}, 1")
    a(f"s_cmp_lg_u32 s{sNONCE}, 0")
    a(f"s_cbranch_scc1 {dn}")
    a(f"s_cmp_lt_u32 s{sSPIN}, {opt.spin}")
    a(f"s_cbranch_scc1 {lp}")
    a.label(dn)

def lds_set(a, addr_sgpr_or_imm):
    a(f"v_mov_b32 v{vT}, {addr_sgpr_or_imm}")
    a(f"v_mov_b32 v{vT2}, 1")
    a(f"s_mov_b64 s[{sP}:{sP+1}], exec")
    a("s_mov_b64 exec, 1")
    a(f"ds_write_b32 v{vT}, v{vT2}")
    a(f"s_mov_b64 exec, s[{sP}:{sP+1}]")

def lds_spin(a, opt, addr):
    lp = a.newlabel("lspin"); dn = a.newlabel("lspun")
    a(f"v_mov_b32 v{vT}, {addr}")
    a(f"s_mov_b32 s{sSPIN}, 0")
    a.label(lp)
    a(f"ds_read_b32 v{vT2}, v{vT}")
    a("s_waitcnt lgkmcnt(0)")
    a(f"v_readfirstlane_b32 s{sP}, v{vT2}")
    a(f"s_add_u32 s{sSPIN}, s{sSPIN}, 1")
    a(f"s_cmp_lg_u32 s{sP}, 0")
    a(f"s_cbranch_scc1 {dn}")
    a(f"s_cmp_lt_u32 s{sSPIN}, {opt.spin * 8}")
    a(f"s_cbranch_scc1 {lp}")
    a.label(dn)

def dma_addr(a, stride, s_tile):
    a(f"v_lshrrev_b32 v{vT}, 3, v{vLANE}")
    a(f"v_lshrrev_b32 v{vT2}, 1, v{vT}")
    a(f"v_lshlrev_b32 v{vT2}, 1, v{vT2}")
    a(f"v_and_b32 v{vDM}, 7, v{vLANE}")
    a(f"v_xor_b32 v{vDM}, v{vDM}, v{vT2}")
    a(f"v_lshlrev_b32 v{vDM}, 4, v{vDM}")
    a(f"v_mul_u32_u24 v{vT}, {stride}, v{vT}")
    a(f"v_add_u32 v{vDM}, v{vDM}, v{vT}")
    a(f"s_lshl_b32 s{sT0}, s{s_tile}, 7")
    a(f"v_add_u32 v{vDM}, s{sT0}, v{vDM}")
    for b in range(1, 4):
        a(f"v_add_u32 v{vDM+b}, {b*(8*stride-1024)}, v{vDM}")

def step_off(a, dst, s_base, s_rot, i, nsteps, bytes_per_step):
    a(f"s_add_u32 s{sT4}, s{s_rot}, {i}")
    a(f"s_cmp_ge_u32 s{sT4}, {nsteps}")
    a(f"s_cselect_b32 s{dst}, {nsteps}, 0")
    a(f"s_sub_u32 s{sT4}, s{sT4}, s{dst}")
    a(f"s_mul_i32 s{sT4}, s{sT4}, {bytes_per_step}")
    a(f"s_add_u32 s{dst}, s{sT4}, s{s_base}")

def dma_step(a, srdn, stride, s_rowbase, s_rot, step, nsteps, s_lds, lds_off, tag, bits=""):
    a(f"s_add_u32 m0, s{s_lds}, {lds_off}")
    step_off(a, sOFF, s_rowbase, s_rot, step, nsteps, 32 * stride)
    for blk in range(4):
        a.vmem(f"buffer_load_dwordx4 v{vDM+blk}, {srd(srdn)}, s{sOFF} offen offset:{blk*1024} {bits} lds", tag)

def tr_step(a, vbase, off, step):
    for t in range(4):
        w = wfrag(step, t)
        a(f"ds_read_b64_tr_b16 {ar(w,2)}, v{vbase+t} offset:{off}")
        a(f"ds_read_b64_tr_b16 {ar(w+2,2)}, v{vbase+t} offset:{off+2048}")

def poll(a, opt, vaddr, nd, lanes, sleep=None, pre=0, nload=1):
    if sleep is None: sleep = opt.sleep
    if pre: a(f"s_sleep {pre}")
    lp = a.newlabel("poll"); dn = a.newlabel("polled")
    a(f"s_mov_b32 s{sSPIN}, 0")
    a.label(lp)
    ld = {1: "dword", 2: "dwordx2", 4: "dwordx4"}[nd]
    for k in range(nload):
        a(f"buffer_load_{ld} {vr(vPQ + 4*k, nd)}, v{vaddr}, {srd(sF)}, 0 offen offset:{k*1024} sc1")
    a("s_waitcnt vmcnt(0)")
    first = True
    for k in range(nload):
        for i in range(nd):
            if first:
                a(f"v_cmp_ne_u32 vcc, s{sNONCE}, v{vPQ+4*k+i}"); first = False
            else:
                a(f"v_cmp_ne_u32 s[{sP}:{sP+1}], s{sNONCE}, v{vPQ+4*k+i}")
                a(f"s_or_b64 vcc, vcc, s[{sP}:{sP+1}]")
    if lanes is not None:
        a(f"s_and_b64 vcc, vcc, s[{lanes}:{lanes+1}]")
    a(f"s_add_u32 s{sSPIN}, s{sSPIN}, 1")
    a("s_cmp_eq_u64 vcc, 0")
    a(f"s_cbranch_scc1 {dn}")
    if sleep: a(f"s_sleep {sleep}")
    a(f"s_cmp_lt_u32 s{sSPIN}, {opt.spin}")
    a(f"s_cbranch_scc1 {lp}")
    a.label(dn)
    a.vm = []

def poll_check(a, nd, lanes, ok_label):
    for i in range(nd):
        if i == 0: a(f"v_cmp_ne_u32 vcc, s{sNONCE}, v{vPQ}")
        else:
            a(f"v_cmp_ne_u32 s[{sP}:{sP+1}], s{sNONCE}, v{vPQ+i}")
            a(f"s_or_b64 vcc, vcc, s[{sP}:{sP+1}]")
    if lanes is not None:
        a(f"s_and_b64 vcc, vcc, s[{lanes}:{lanes+1}]")
    a("s_cmp_eq_u64 vcc, 0")
    a(f"s_cbranch_scc1 {ok_label}")

def flag_store(a, s_index_bytes):
    a(f"v_mov_b32 v{vT}, s{s_index_bytes}")
    a(f"v_mov_b32 v{vT2}, s{sNONCE}")
    a(f"s_mov_b64 s[{sP}:{sP+1}], exec")
    a("s_mov_b64 exec, 1")
    a.vmem(f"buffer_store_dword v{vT2}, v{vT}, {srd(sF)}, 0 offen sc1", "flag")
    a(f"s_mov_b64 exec, s[{sP}:{sP+1}]")

def gelu_pairs(a, regs, tmp, fill=None):
    def each(fn):
        for i, r in enumerate(regs): fn(r, tmp + 2 * i)
    each(lambda r, t: a(f"v_pk_mul_f32 {vr(t,2)}, {vr(r,2)}, {vr(r,2)}"))
    each(lambda r, t: a(f"v_pk_fma_f32 {vr(t,2)}, {vr(t,2)}, s[100:101], {vr(vC0,2)}"))
    each(lambda r, t: a(f"v_pk_mul_f32 {vr(t,2)}, {vr(t,2)}, {vr(r,2)}"))
    if fill: fill()
    each(lambda r, t: (a(f"v_exp_f32 v{t}, v{t}"), a(f"v_exp_f32 v{t+1}, v{t+1}")))
    each(lambda r, t: a(f"v_pk_add_f32 {vr(t,2)}, {vr(t,2)}, 1.0 op_sel_hi:[1,0]"))
    each(lambda r, t: (a(f"v_rcp_f32 v{t}, v{t}"), a(f"v_rcp_f32 v{t+1}, v{t+1}")))
    a("s_nop 0")
    each(lambda r, t: a(f"v_pk_mul_f32 {vr(r,2)}, {vr(r,2)}, {vr(t,2)}"))

def w2_slot(step):
    if step < 8: return sM0B, step * 4096, vTR, step * 4096
    if step < 10: return sUP, (step - 8) * 4096, vTRU, (step - 8) * 4096
    return sM0B, (step - 10) * 4096, vTR, (step - 10) * 4096

def w2_dma(a, step):
    sb, off, _, _ = w2_slot(step)
    dma_step(a, sW2, S * 2, sWB, sROT2, step, 14, sb, off, f"w2_{step}", OPT.w2bits)

def w2_dma_parts(a, step):
    sb, off, _, _ = w2_slot(step)
    def setup():
        a(f"s_add_u32 m0, s{sb}, {off}")
        step_off(a, sOFF, sWB, sROT2, step, 14, 32 * S * 2)
    def one(blk):
        return lambda: a.vmem(f"buffer_load_dwordx4 v{vDM+blk}, {srd(sW2)}, s{sOFF} offen offset:{blk*1024} {OPT.w2bits} lds", f"w2_{step}")
    return [setup] + [one(b) for b in range(4)]

def w2_tr(a, step):
    _, _, vb, off = w2_slot(step)
    tr_step(a, vb, off, step)

def gen(opt):
    global OPT
    OPT = opt
    a = Asm()
    NS = opt.depth + 1
    def ring(slot, t): return vRING + slot * 20 + t * 4
    a.raw(f"; @launch grid=(256,1,1) block=(256,1,1) lds={LDS_BYTES}")
    a.raw('.amdgcn_target "amdgcn-amd-amdhsa--gfx950"')
    a.raw(".text")
    a.raw(f".globl {KN}")
    a.raw(".p2align 8")
    a.raw(f".type {KN},@function")
    a.label(KN)
    if opt.cpf: a("s_getpc_b64 s[94:95]")
    a(f"s_cmp_ge_u32 s{sWG}, 256")
    a("s_cbranch_scc1 L_done")
    a("s_load_dwordx16 s[4:19], s[0:1], 0")
    if opt.prof:
        a(f"s_mem{'time' if opt.prof == 2 else 'realtime'} s[{sP}:{sP+1}]")
    if opt.prof:
        for i in range(1, 15): a(f"s_mov_b32 s{sPROF+i}, 0")
    if not opt.prof:
        a("s_memrealtime s[96:97]")
    a(f"v_lshrrev_b32 v{vT}, 6, v{vTID}")
    a(f"v_and_b32 v{vLANE}, 63, v{vTID}")
    a(f"v_readfirstlane_b32 s{sWAVE}, v{vT}")
    a(f"s_and_b32 s{sXCD}, s{sWG}, 7")
    a(f"s_lshr_b32 s{sJ}, s{sWG}, 3")
    if opt.p1 == 2:
        a(f"s_lshr_b32 s{sT1}, s{sXCD}, 1")
        a(f"s_and_b32 s{sT2}, s{sXCD}, 1")
        a(f"s_lshl_b32 s{sT2}, s{sT2}, 2")
        a(f"s_mul_i32 s{sT0}, s{sT1}, 7")
        a(f"s_lshr_b32 s{sFT}, s{sJ}, 2")
        a(f"s_add_u32 s{sFT}, s{sFT}, s{sT0}")
        a(f"s_and_b32 s{sT3}, s{sJ}, 3")
        a(f"s_add_u32 s{sDT1}, s{sT2}, s{sT3}")
        if opt.rot8: a(f"s_lshl_b32 s{sROT1}, s{sDT1}, 1")
        else: a(f"s_lshl_b32 s{sROT1}, s{sT3}, 2")
        a(f"s_cmp_eq_u32 s{sT1}, 3")
        a(f"s_cselect_b32 s{sJLIM}, 24, 28")
        a(f"s_lshl_b32 s{sT0}, s{sXCD}, 2")
        a(f"s_sub_u32 s{sT0}, s{sT0}, 28")
        a(f"s_lshl_b32 s{sT3}, s{sXCD}, 3")
        a(f"s_sub_u32 s{sT3}, s{sT3}, 48")
        a(f"s_cselect_b32 s{sIDLE}, s{sT0}, s{sT0}")
        a(f"s_cmp_ge_u32 s{sXCD}, 6")
        a(f"s_cselect_b32 s{sIDLE}, s{sT3}, s{sT0}")
        a(f"s_add_u32 s{sIDLE}, s{sIDLE}, s{sJ}")
    else:
        a(f"s_lshl_b32 s{sT0}, s{sXCD}, 2")
        a(f"s_mul_i32 s{sT1}, s{sXCD}, 3")
        a(f"s_add_u32 s{sT1}, s{sT1}, 3")
        a(f"s_cmp_lt_u32 s{sXCD}, 3")
        a(f"s_cselect_b32 s{sT0}, s{sT0}, s{sT1}")
        a(f"s_cselect_b32 s{sJLIM}, 32, 24")
        a(f"s_lshr_b32 s{sFT}, s{sJ}, 3")
        a(f"s_add_u32 s{sFT}, s{sFT}, s{sT0}")
        a(f"s_and_b32 s{sDT1}, s{sJ}, 7")
        a(f"s_lshl_b32 s{sROT1}, s{sDT1}, 1")
        a(f"s_lshl_b32 s{sIDLE}, s{sXCD}, 3")
        a(f"s_add_u32 s{sIDLE}, s{sIDLE}, s{sJ}")
        a(f"s_sub_u32 s{sIDLE}, s{sIDLE}, 48")
    if opt.rotg1 == 3:
        a(f"s_mul_i32 s{sT0}, s{sFT}, 11")
        a(f"s_lshr_b32 s{sT0}, s{sT0}, 5")
        a(f"s_mul_i32 s{sT0}, s{sT0}, 3")
        a(f"s_sub_u32 s{sT0}, s{sFT}, s{sT0}")
        a(f"s_mul_i32 s{sT0}, s{sT0}, 5")
        a(f"s_add_u32 s{sROT1}, s{sROT1}, s{sT0}")
        a(f"s_and_b32 s{sROT1}, s{sROT1}, 15")
    if opt.rotg1 == 2:
        a(f"s_and_b32 s{sT0}, s{sFT}, 1")
        a(f"s_lshl_b32 s{sT0}, s{sT0}, 3")
        a(f"s_add_u32 s{sROT1}, s{sROT1}, s{sT0}")
        a(f"s_and_b32 s{sROT1}, s{sROT1}, 15")
    if opt.rota1:
        a(f"s_mul_i32 s{sT0}, s{sFT}, {opt.rota1}")
        a(f"s_add_u32 s{sROT1}, s{sROT1}, s{sT0}")
        a(f"s_and_b32 s{sROT1}, s{sROT1}, 15")
    if opt.p2 == 2:
        a(f"s_lshr_b32 s{sT1}, s{sXCD}, 1")
        a(f"s_and_b32 s{sT2}, s{sXCD}, 1")
        a(f"s_lshl_b32 s{sT2}, s{sT2}, 2")
        a(f"s_lshr_b32 s{sT0}, s{sJ}, 2")
        a(f"s_lshl_b32 s{sST}, s{sT1}, 3")
        a(f"s_add_u32 s{sST}, s{sST}, s{sT0}")
        a(f"s_and_b32 s{sT3}, s{sJ}, 3")
        a(f"s_add_u32 s{sDT2}, s{sT2}, s{sT3}")
        if opt.rot8:
            a(f"s_mul_i32 s{sROT2}, s{sDT2}, 7")
            a(f"s_lshr_b32 s{sROT2}, s{sROT2}, 2")
        else:
            a(f"s_mul_i32 s{sROT2}, s{sT3}, 7")
            a(f"s_lshr_b32 s{sROT2}, s{sROT2}, 1")
    else:
        a(f"s_lshr_b32 s{sT0}, s{sJ}, 3")
        a(f"s_lshl_b32 s{sST}, s{sXCD}, 2")
        a(f"s_add_u32 s{sST}, s{sST}, s{sT0}")
        a(f"s_and_b32 s{sDT2}, s{sJ}, 7")
        a(f"s_mul_i32 s{sROT2}, s{sDT2}, 7")
        a(f"s_lshr_b32 s{sROT2}, s{sROT2}, 2")
    if opt.rotg2:
        if opt.rotg2 == 2:
            a(f"s_and_b32 s{sT0}, s{sST}, 1")
            a(f"s_mul_i32 s{sT0}, s{sT0}, 7")
        else:
            a(f"s_mul_i32 s{sT0}, s{sST}, 11")
            a(f"s_lshr_b32 s{sT0}, s{sT0}, 5")
            a(f"s_mul_i32 s{sT0}, s{sT0}, 3")
            a(f"s_sub_u32 s{sT0}, s{sST}, s{sT0}")
            a(f"s_mul_i32 s{sT0}, s{sT0}, 5")
        a(f"s_add_u32 s{sROT2}, s{sROT2}, s{sT0}")
        a(f"s_cmp_ge_u32 s{sROT2}, 14")
        a(f"s_cselect_b32 s{sT0}, 14, 0")
        a(f"s_sub_u32 s{sROT2}, s{sROT2}, s{sT0}")
    if opt.rota2:
        a(f"s_mul_i32 s{sT0}, s{sST}, {opt.rota2}")
        a(f"s_add_u32 s{sROT2}, s{sROT2}, s{sT0}")
        a(f"s_and_b32 s{sT0}, s{sROT2}, 0xff")
        a(f"s_mul_i32 s{sT0}, s{sROT2}, 18725")
        a(f"s_lshr_b32 s{sT0}, s{sT0}, 18")
        a(f"s_mul_i32 s{sT0}, s{sT0}, 14")
        a(f"s_sub_u32 s{sROT2}, s{sROT2}, s{sT0}")
    if not (opt.rot & 1): a(f"s_mov_b32 s{sROT1}, 0")
    if not (opt.rot & 2): a(f"s_mov_b32 s{sROT2}, 0")
    a(f"s_lshl_b32 s{sM0B}, s{sWAVE}, 15")
    a(f"s_lshl_b32 s{sUP}, s{sWAVE}, 13")
    a(f"s_add_u32 s{sUP}, s{sUP}, 131072")
    def tr_addr(base_sgpr):
        t0, t1, t2 = vX, vX + 1, vX + 2
        a(f"v_lshrrev_b32 v{t0}, 4, v{vLANE}")
        a(f"v_and_b32 v{t1}, 1, v{t0}")
        a(f"v_lshlrev_b32 v{t1}, 2, v{t1}")
        a(f"v_bfe_u32 v{t2}, v{vLANE}, 2, 2")
        a(f"v_add_u32 v{t1}, v{t1}, v{t2}")
        a(f"v_lshrrev_b32 v{t0}, 1, v{t0}")
        a(f"v_lshlrev_b32 v{t0}, 10, v{t0}")
        a(f"v_lshlrev_b32 v{t2}, 7, v{t1}")
        a(f"v_add_u32 v{t0}, v{t0}, v{t2}")
        a(f"v_and_b32 v{t2}, 3, v{vLANE}")
        a(f"v_lshlrev_b32 v{t2}, 3, v{t2}")
        a(f"v_add_u32 v{t0}, v{t0}, v{t2}")
        a(f"v_add_u32 v{t0}, s{base_sgpr}, v{t0}")
        a(f"v_lshrrev_b32 v{t1}, 1, v{t1}")
        for t in range(4):
            a(f"v_xor_b32 v{t2}, {t}, v{t1}")
            a(f"v_lshlrev_b32 v{t2}, 5, v{t2}")
            a(f"v_add_u32 v{vTR+t}, v{t0}, v{t2}")
    def w1_dma(i): dma_step(a, sW1, F * 2, sWB, sROT1, i, 16, sM0B, (i % 8) * 4096, f"w1_{i}", "nt" if i < opt.nta else opt.w1bits)
    def w1_stream(first, dp, hold=0):
        retired = 0
        def retire():
            nonlocal retired
            a.wait_vm(f"w1_{retired}")
            if retired: a("s_waitcnt lgkmcnt(0)")
            tr_step(a, vTR, (retired % 8) * 4096, retired)
            retired += 1
        for i in range(first, 16):
            while retired <= i - dp: retire()
            if i >= 8:
                while retired <= i - 8: retire()
                if retired == i - 7: a("s_waitcnt lgkmcnt(0)")
            w1_dma(i)
        while retired < 16 - hold: retire()
        def finish():
            while retired < 16: retire()
            a("s_waitcnt lgkmcnt(0)")
        if not hold: finish()
        return finish
    dma_addr(a, F * 2, sFT)
    a(f"s_mul_i32 s{sWB}, s{sWAVE}, {512*F*2}")
    a.c("LayerNorm: wave w normalises rows 32*ks + 16*(w>>1) + 4*q + 2*(w&1) + (0,1), 32 lanes per row")
    XR, XF, TM = 96, 108, 130
    a(f"s_lshr_b32 s{sT0}, s{sWG}, 2")
    a(f"s_and_b32 s{sT1}, s{sWG}, 3")
    a(f"s_lshl_b32 s{sT2}, s{sT0}, 5")
    a(f"s_lshr_b32 s{sT3}, s{sWAVE}, 1")
    a(f"s_lshl_b32 s{sT3}, s{sT3}, 4")
    a(f"s_add_u32 s{sT2}, s{sT2}, s{sT3}")
    a(f"s_lshl_b32 s{sT3}, s{sT1}, 2")
    a(f"s_add_u32 s{sT2}, s{sT2}, s{sT3}")
    a(f"s_and_b32 s{sT3}, s{sWAVE}, 1")
    a(f"s_lshl_b32 s{sT3}, s{sT3}, 1")
    a(f"s_add_u32 s{sT2}, s{sT2}, s{sT3}")
    a(f"s_mul_i32 s{sT2}, s{sT2}, 1280")
    a(f"v_lshrrev_b32 v{TM}, 5, v{vLANE}")
    a(f"v_and_b32 v{TM+1}, 31, v{vLANE}")
    a(f"v_lshlrev_b32 v{TM+1}, 3, v{TM+1}")
    a(f"v_mul_u32_u24 v{TM+2}, 1280, v{TM}")
    a(f"v_add_u32 v{TM+2}, v{TM+2}, v{TM+1}")
    a(f"v_mov_b32 v{vT}, 0")
    a("s_waitcnt lgkmcnt(0)")
    if opt.prof: a(f"s_mov_b32 s{sPROF}, s{sP}")
    make_srd(a, sD, 16, 256)
    a(f"s_cmp_lg_u32 s{sWG}, 0")
    a("s_cbranch_scc1 L_nononce")
    a(f"s_cmp_lg_u32 s{sWAVE}, 3")
    a("s_cbranch_scc1 L_nononce")
    a(f"s_or_b32 s{sNONCE}, s{sP if opt.prof else 96}, 1")
    a(f"v_mov_b32 v{vT2}, s{sNONCE}")
    a(f"s_mov_b64 s[{sP+2}:{sP+3}], exec")
    a("s_mov_b64 exec, 1")
    a(f"buffer_store_dword v{vT2}, v{vT}, {srd(sD)}, 0 offen sc1")
    a(f"s_mov_b64 exec, s[{sP+2}:{sP+3}]")
    a.label("L_nononce")
    make_srd(a, sX, 4, S * D * 2)
    for i in range(5):
        a.vmem(f"buffer_load_dwordx2 {vr(XR+2*i,2)}, v{TM+2}, {srd(sX)}, s{sT2} offen offset:{i*256} {opt.xbits}", "x")
    make_srd(a, sW1, 6, S * F * 2)
    if opt.xbar: a("s_barrier")
    a(f"s_cmp_ge_u32 s{sJ}, s{sJLIM}")
    a("s_cbranch_scc1 L_ln_now1")
    for i in range(opt.nearly): w1_dma(i)
    a.label("L_ln_now1")
    if opt.cpf:
        a(f"s_cmp_lg_u32 s{sWAVE}, 3")
        a("s_cbranch_scc1 L_nocpf")
        a(f"s_lshl_b32 s{sT3}, s{sJ}, 11")
        a(f"v_lshlrev_b32 v{vX}, 4, v{vLANE}")
        a(f"v_add_u32 v{vX}, s{sT3}, v{vX}")
        a(f"v_add_u32 v{vX+1}, 1024, v{vX}")
        for h in range(2):
            a(f"v_min_u32 v{vX+h}, L_codeend-{KN}-36, v{vX+h}")
            a(f"global_load_dwordx4 {vr(240+4*h,4)}, v{vX+h}, s[94:95]")
        a.label("L_nocpf")
    make_srd(a, sH, 18, H_BYTES, WS_H)
    make_srd(a, sF, 18, FLAG_BYTES, WS_FLAG)
    a(f"s_mul_i32 s{sSTEP}, s{sT0}, 40960")
    a(f"s_lshl_b32 s{sT1}, s{sT1}, 8")
    a(f"s_add_u32 s{sSTEP}, s{sSTEP}, s{sT1}")
    a(f"s_lshl_b32 s{sT3}, s{sWAVE}, 1")
    a(f"v_add_u32 v{TM+4}, s{sT3}, v{TM}")
    a(f"v_mul_u32_u24 v{TM+4}, {LN_ROW}, v{TM+4}")
    a(f"v_add_u32 v{TM+4}, v{TM+4}, v{TM+1}")
    a(f"v_add_u32 v{TM+4}, {LN_BASE}, v{TM+4}")
    a(f"s_mul_i32 s{sT3}, s{sWAVE}, 12")
    a(f"s_cmp_eq_u32 s{sWAVE}, 3")
    a(f"s_cselect_b32 s{sT3}, 32, s{sT3}")
    a(f"v_lshrrev_b32 v{TM+6}, 4, v{vLANE}")
    a(f"v_add_u32 v{TM+6}, s{sT3}, v{TM+6}")
    a(f"v_bfe_u32 v{TM+5}, v{vLANE}, 2, 2")
    a(f"v_mul_u32_u24 v{TM+5}, {LN_ROW}, v{TM+5}")
    a(f"v_lshlrev_b32 v{TM+7}, 5, v{TM+6}")
    a(f"v_add_u32 v{TM+5}, v{TM+5}, v{TM+7}")
    a(f"v_and_b32 v{TM+7}, 3, v{vLANE}")
    a(f"v_lshlrev_b32 v{TM+7}, 3, v{TM+7}")
    a(f"v_add_u32 v{TM+5}, v{TM+5}, v{TM+7}")
    a(f"v_add_u32 v{TM+5}, {LN_BASE}, v{TM+5}")
    a(f"v_lshlrev_b32 v{TM+6}, 10, v{TM+6}")
    a(f"v_and_b32 v{TM+7}, 15, v{vLANE}")
    a(f"v_lshlrev_b32 v{TM+7}, 4, v{TM+7}")
    a(f"v_add_u32 v{TM+6}, v{TM+6}, v{TM+7}")
    tr_addr(sM0B)
    a(f"s_mov_b32 s{sT0}, 0xffff0000")
    nc = 2 if opt.cpf else 0
    a(f"s_cmp_ge_u32 s{sJ}, s{sJLIM}")
    a("s_cbranch_scc1 L_ln_idle")
    a(f"s_cmp_eq_u32 s{sWAVE}, 3")
    a("s_cbranch_scc1 L_ln_w3")
    a(f"s_waitcnt vmcnt({4*opt.nearly})")
    a("s_branch L_ln_go")
    a.label("L_ln_w3")
    a(f"s_waitcnt vmcnt({4*opt.nearly + nc})")
    a("s_branch L_ln_go")
    a.label("L_ln_idle")
    a(f"s_cmp_eq_u32 s{sWAVE}, 3")
    a("s_cbranch_scc1 L_ln_idle3")
    a("s_waitcnt vmcnt(0)")
    a("s_branch L_ln_go")
    a.label("L_ln_idle3")
    a(f"s_waitcnt vmcnt({nc})")
    a.label("L_ln_go")
    stamp(a, opt, 1)
    for i in range(10):
        a(f"v_lshlrev_b32 v{XF+2*i}, 16, v{XR+i}")
        a(f"v_and_b32 v{XF+2*i+1}, s{sT0}, v{XR+i}")
    SM = TM + 8
    a(f"v_pk_add_f32 {vr(SM,2)}, {vr(XF,2)}, {vr(XF+4,2)}")
    a(f"v_pk_add_f32 {vr(SM+2,2)}, {vr(XF+2,2)}, {vr(XF+6,2)}")
    for i in range(4, 10):
        k = i % 2
        a(f"v_pk_add_f32 {vr(SM+2*k,2)}, {vr(SM+2*k,2)}, {vr(XF+2*i,2)}")
    def reduce_row(dst):
        a(f"v_pk_add_f32 {vr(SM,2)}, {vr(SM,2)}, {vr(SM+2,2)}")
        a(f"v_add_f32 v{dst}, v{SM}, v{SM+1}")
        for rot in (8, 4, 2, 1):
            a("s_nop 1")
            a(f"v_add_f32_dpp v{dst}, v{dst}, v{dst} row_ror:{rot} row_mask:0xf bank_mask:0xf")
        a(f"v_mov_b32 v{SM}, v{dst}")
        a("s_nop 1")
        a(f"v_permlane16_swap_b32 v{dst}, v{SM}")
        a("s_nop 1")
        a(f"v_add_f32 v{dst}, v{dst}, v{SM}")
    MN = TM + 12
    reduce_row(MN)
    a(f"v_mul_f32 v{MN}, {f2h(1.0/640.0)}, v{MN}")
    a(f"v_mov_b32 v{MN+1}, v{MN}")
    for i in range(10):
        a(f"v_pk_add_f32 {vr(XF+2*i,2)}, {vr(XF+2*i,2)}, {vr(MN,2)} neg_lo:[0,1] neg_hi:[0,1]")
    for k in range(2):
        a(f"v_pk_mul_f32 {vr(SM+2*k,2)}, {vr(XF+2*k,2)}, {vr(XF+2*k,2)}")
    for i in range(2, 10):
        k = i % 2
        a(f"v_pk_fma_f32 {vr(SM+2*k,2)}, {vr(XF+2*i,2)}, {vr(XF+2*i,2)}, {vr(SM+2*k,2)}")
    reduce_row(MN)
    a(f"v_mov_b32 v{MN+1}, {f2h(1e-5)}")
    a(f"v_fmac_f32 v{MN+1}, {f2h(1.0/640.0)}, v{MN}")
    a(f"v_rsq_f32 v{MN}, v{MN+1}")
    a("s_nop 0")
    a(f"v_mov_b32 v{MN+1}, v{MN}")
    for i in range(10):
        a(f"v_pk_mul_f32 {vr(XF+2*i,2)}, {vr(XF+2*i,2)}, {vr(MN,2)}")
    for i in range(10):
        a(f"v_cvt_pk_bf16_f32 v{XR+i}, v{XF+2*i}, v{XF+2*i+1}")
    for i in range(5):
        a(f"ds_write_b64 v{TM+4}, {vr(XR+2*i,2)} offset:{i*256}")
    a("s_waitcnt lgkmcnt(0)")
    a("s_barrier")
    for i in range(2):
        a(f"ds_read_b64_tr_b16 {vr(XF+4*i,2)}, v{TM+5} offset:{i*128}")
        a(f"ds_read_b64_tr_b16 {vr(XF+4*i+2,2)}, v{TM+5} offset:{i*128+4*LN_ROW}")
    a(f"s_cmp_ge_u32 s{sWAVE}, 2")
    a("s_cbranch_scc1 L_ln_two")
    a(f"ds_read_b64_tr_b16 {vr(XF+8,2)}, v{TM+5} offset:{2*128}")
    a(f"ds_read_b64_tr_b16 {vr(XF+10,2)}, v{TM+5} offset:{2*128+4*LN_ROW}")
    a("s_waitcnt lgkmcnt(0)")
    a(f"s_add_u32 s{sT0}, s{sSTEP}, {2*4096}")
    a(f"buffer_store_dwordx4 {vr(XF+8,4)}, v{TM+6}, {srd(sH)}, s{sT0} offen {opt.hbits}")
    a.label("L_ln_two")
    a("s_waitcnt lgkmcnt(0)")
    for i in range(2):
        a(f"s_add_u32 s{sT0}, s{sSTEP}, {i*4096}")
        a(f"buffer_store_dwordx4 {vr(XF+4*i,4)}, v{TM+6}, {srd(sH)}, s{sT0} offen {opt.hbits}")
    a(f"buffer_load_dword v{vPOLL}, v{vT}, {srd(sD)}, 0 offen sc1")
    stamp(a, opt, 2)
    a(f"s_cmp_ge_u32 s{sJ}, s{sJLIM}")
    a("s_cbranch_scc1 L_ln_idle2")
    a.vm = [f"w1_{i}" for i in range(opt.nearly)]
    for i in range(opt.nearly, opt.nearly + opt.npost): w1_dma(i)
    a(f"s_waitcnt vmcnt({4*opt.npost})")
    a("s_branch L_ln_go2")
    a.label("L_ln_idle2")
    a("s_waitcnt vmcnt(0)")
    a.label("L_ln_go2")
    a(f"v_readfirstlane_b32 s{sNONCE}, v{vPOLL}")
    nonce_spin(a, opt)
    a("s_barrier")
    a(f"s_cmp_lg_u32 s{sWAVE}, 0")
    a("s_cbranch_scc1 L_noflag")
    a(f"s_lshl_b32 s{sT0}, s{sWG}, 2")
    keep = list(a.vm)
    flag_store(a, sT0)
    a.vm = keep
    a.label("L_noflag")
    stamp(a, opt, 3)
    a(f"s_cmp_ge_u32 s{sJ}, s{sJLIM}")
    a("s_cbranch_scc1 L_nogemm1")
    w1_finish = w1_stream(opt.nearly + opt.npost, opt.dp, opt.hold1)

    def common_setup(retr=True):
        make_srd(a, sH, 18, H_BYTES, WS_H)
        make_srd(a, sF, 18, FLAG_BYTES, WS_FLAG)
        make_srd(a, sB1, 8, F * 2)
        make_srd(a, sW2, 10, F * S * 2)
        make_srd(a, sB2, 12, S * 2)
        make_srd(a, sO, 14, S * D * 2)
        make_srd(a, sG, 18, G_BYTES, WS_G)
        a(f"v_lshrrev_b32 v{vT}, 4, v{vLANE}")
        a(f"v_lshlrev_b32 v{vT}, 3, v{vT}")
        a(f"s_and_b32 s{sT0}, s{sWAVE}, 1")
        a(f"s_lshl_b32 s{sT0}, s{sT0}, 6")
        a(f"s_lshl_b32 s{sT1}, s{sFT}, 7")
        a(f"s_add_u32 s{sT0}, s{sT0}, s{sT1}")
        a.vmem(f"buffer_load_dwordx2 {vr(vB1,2)}, v{vT}, {srd(sB1)}, s{sT0} offen", "b")
        a.vmem(f"buffer_load_dwordx2 {vr(vB1+2,2)}, v{vT}, {srd(sB1)}, s{sT0} offen offset:32", "b")
        a(f"v_and_b32 v{vT}, 15, v{vLANE}")
        a(f"v_lshlrev_b32 v{vT}, 1, v{vT}")
        a(f"s_lshl_b32 s{sT0}, s{sST}, 7")
        a(f"s_lshl_b32 s{sT1}, s{sWAVE}, 5")
        a(f"s_add_u32 s{sT0}, s{sT0}, s{sT1}")
        a.vmem(f"buffer_load_ushort v{vB2}, v{vT}, {srd(sB2)}, s{sT0} offen", "b")
        dma_addr(a, S * 2, sST)
        a(f"s_mul_i32 s{sWB}, s{sWAVE}, {448*S*2}")
        if retr: tr_addr(sM0B)
        a(f"s_sub_u32 s{sT0}, s{sUP}, s{sM0B}")
        for t in range(4):
            a(f"v_add_u32 v{vTRU+t}, s{sT0}, v{vTR+t}")
        a(f"v_lshlrev_b32 v{vL0}, 4, v{vLANE}")
        a(f"v_add_u32 v{vL1}, 65536, v{vL0}")
        a(f"v_add_u32 v{vL2}, 131072, v{vL0}")

    a.label("L_w1_ready")
    stamp(a, opt, 4)
    vm_keep = list(a.vm)
    common_setup(retr=False)
    a(f"s_mul_i32 s{sT0}, s{sDT1}, 5120")
    a(f"v_add_u32 v{vA}, s{sT0}, v{vL0}")
    a(f"v_add_u32 v{vA2}, 4096, v{vA}")
    a(f"s_cmp_lg_u32 s{sWAVE}, {opt.pollw}")
    a("s_cbranch_scc1 L_hpolled")
    poll(a, opt, vL0, 4, None, opt.sleeph, opt.preh, 1)
    a.label("L_hpolled")
    a.vm = vm_keep + ["b", "b", "b"]
    a("s_barrier")
    stamp(a, opt, 5)

    def a_loads(srdn, step, nsteps, s_rot):
        slot = step % NS
        step_off(a, sOFF, sSTEP, s_rot, step, nsteps, 40960)
        return [f"buffer_load_dwordx4 {vr(ring(slot,t),4)}, v{vA if t < 4 else vA2}, {srd(srdn)}, s{sOFF} offen offset:{(t*1024) if t < 4 else 0} sc1" for t in range(5)]

    def main_loop(srdn, nsteps, s_rot, tagp, mfma, stamp0, tail, nuni, pre=None):
        for st in range(opt.depth):
            for o, ins in enumerate(a_loads(srdn, st, nsteps, s_rot)): a.vmem(ins, f"{tagp}{st}_{o}")
        if pre: pre()
        for st in range(nuni):
            nx = st + opt.depth
            nxt = a_loads(srdn, nx, nsteps, s_rot) if nx < nsteps else None
            a.wait_vm(f"{tagp}{st}_4")
            if st == 0 and stamp0 is not None: stamp(a, opt, stamp0)
            for o in range(5):
                if nxt: a.vmem(nxt[o], f"{tagp}{nx}_{o}")
                for i in range(4): mfma(st, o, i, st % NS)
                if tail: tail(st, o)

    def tile_tail(nsteps, tagp, first, last, frag_of, mfma_tile, write_tile, extra):
        ic = [0]
        done_at = {}
        queue = []
        extra = list(extra)
        def emit(fn):
            fn(); ic[0] += 1
        def filler():
            if queue and ic[0] - done_at[queue[0]] >= 9:
                t = queue.pop(0); emit(lambda: write_tile(t)); return
            if extra: emit(extra.pop(0))
        tiles = list(first) + list(last)
        for i in range(0, len(tiles), 2):
            pair = tiles[i:i + 2]
            for t in pair:
                for st in (nsteps - 2, nsteps - 1): a.wait_vm(f"{tagp}{st}_{frag_of(t)}")
            for st in (nsteps - 2, nsteps - 1):
                for t in pair:
                    emit(lambda: mfma_tile(st, t))
                    if st == nsteps - 1:
                        done_at[t] = ic[0]
                        if t in first: queue.append(t)
                    filler()
        while extra: emit(extra.pop(0))
        while queue:
            while ic[0] - done_at[queue[0]] < 9: emit(lambda: a("s_nop 0"))
            t = queue.pop(0); emit(lambda: write_tile(t))

    a(f"s_mul_i32 s{sSTEP}, s{sWAVE}, {16*40960}")
    def mfma1(st, nt, mt, slot):
        c = "0" if st == 0 else vr(acc1(mt, nt), 4)
        a(f"v_mfma_f32_16x16x32_bf16 {vr(acc1(mt,nt),4)}, {ar(wfrag(st,mt),4)}, {vr(ring(slot,nt),4)}, {c}")
    parts13 = w2_dma_parts(a, 0) if opt.t13 else []
    def tail1(st, o):
        if st == 13 and parts13:
            if o == 0: parts13[0]()
            else: parts13[o]()
    main_loop(sH, 16, sROT1, "h", mfma1, 6, tail1, 14, w1_finish if opt.hold1 else None)

    a(f"s_mov_b32 s100, {f2h(C1)}"); a(f"s_mov_b32 s101, {f2h(C1)}")
    a(f"v_mov_b32 v{vC0}, {f2h(C0)}"); a(f"v_mov_b32 v{vC0+1}, {f2h(C0)}")
    def lds_ref(addr):
        if addr < 65536: return vL0, addr
        if addr < 131072: return vL1, addr - 65536
        return vL2, addr - 131072
    def owner1(p, nt): return p + (0 if nt < 3 else 2)
    units = [(p, nt) for p in range(2) for nt in range(5)]
    def red1_addr(src, u):
        k = [x for x in units if owner1(*x) != src].index(u)
        return src * 32768 + 24576 + k * 2048 if k < 4 else 131072 + src * 8192 + (k - 4) * 2048
    saved_vm = list(a.vm)
    for w in range(4):
        if w < 3:
            a(f"s_cmp_lg_u32 s{sWAVE}, {w}")
            a(f"s_cbranch_scc1 L_ep1_{w+1}")
        a.vm = list(saved_vm)
        nis = [1 if opt.t13 else 0]
        def more(n, limit):
            for _ in range(n):
                if nis[0] < limit:
                    w2_dma(a, nis[0]); nis[0] += 1
        tl = [(2 * p + hf, nt) for nt in range(5) for p in range(2) for hf in range(2)]
        first = [t for t in tl if owner1(t[0] // 2, t[1]) != w]
        last = [t for t in tl if owner1(t[0] // 2, t[1]) == w]
        def wr1(t):
            vb, off = lds_ref(red1_addr(w, (t[0] // 2, t[1])) + (t[0] & 1) * 1024)
            a(f"ds_write_b128 v{vb}, {vr(acc1(*t),4)} offset:{off}")
        extra = []
        for _ in range(opt.tt):
            extra += w2_dma_parts(a, nis[0]); nis[0] += 1
        tile_tail(16, "h", first, last, lambda t: t[1], lambda st, t: mfma1(st, t[1], t[0], st % NS), wr1, extra)
        stamp(a, opt, 7)
        more(opt.e1, 6)
        a("s_waitcnt lgkmcnt(0)")
        a("s_barrier")
        own_u = [u for u in units if owner1(*u) == w]
        RT = vRING
        n = 0
        for u in own_u:
            for src in range(4):
                if src == w: continue
                for hf in range(2):
                    vb, off = lds_ref(red1_addr(src, u) + hf * 1024)
                    a(f"ds_read_b128 {vr(RT + n*4, 4)}, v{vb} offset:{off}")
                    n += 1
        a.wait_vm("b")
        for i in range(4):
            a(f"v_lshlrev_b32 v{BI+2*i}, 16, v{vB1+i}")
            a(f"v_and_b32 v{BI+2*i+1}, 0xffff0000, v{vB1+i}")
        for u in own_u:
            p, nt = u
            for hf in range(2):
                r = acc1(2*p+hf, nt)
                a(f"v_pk_add_f32 {vr(r,2)}, {vr(r,2)}, {vr(BI+4*hf,2)}")
                a(f"v_pk_add_f32 {vr(r+2,2)}, {vr(r+2,2)}, {vr(BI+4*hf+2,2)}")
        n = 0
        tot = len(own_u) * 6
        for u in own_u:
            p, nt = u
            for si in range(3):
                for hf in range(2):
                    a(f"s_waitcnt lgkmcnt({min(15, tot - n - 1)})")
                    r = acc1(2*p+hf, nt)
                    a(f"v_pk_add_f32 {vr(r,2)}, {vr(r,2)}, {vr(RT+n*4,2)}")
                    a(f"v_pk_add_f32 {vr(r+2,2)}, {vr(r+2,2)}, {vr(RT+n*4+2,2)}")
                    n += 1
        a("s_barrier")
        regs = []
        for u in own_u:
            p, nt = u
            for hf in range(2):
                r = acc1(2*p+hf, nt)
                regs += [r, r + 2]
        more(opt.e2, 10)
        gelu_pairs(a, regs, RT, fill=lambda: more(opt.e3, 10))
        a(f"s_lshl_b32 s{sT0}, s{sFT}, 1")
        a(f"s_add_u32 s{sT0}, s{sT0}, {w & 1}")
        a(f"s_mul_i32 s{sT0}, s{sT0}, 40960")
        a(f"s_mul_i32 s{sT1}, s{sDT1}, 5120")
        a(f"s_add_u32 s{sT0}, s{sT0}, s{sT1}")
        for i, u in enumerate(own_u):
            p, nt = u
            o = RT + 64 + 4 * i
            r0, r1 = acc1(2*p, nt), acc1(2*p+1, nt)
            a(f"v_cvt_pk_bf16_f32 v{o}, v{r0}, v{r0+1}")
            a(f"v_cvt_pk_bf16_f32 v{o+1}, v{r0+2}, v{r0+3}")
            a(f"v_cvt_pk_bf16_f32 v{o+2}, v{r1}, v{r1+1}")
            a(f"v_cvt_pk_bf16_f32 v{o+3}, v{r1+2}, v{r1+3}")
            a(f"s_add_u32 s{sT1}, s{sT0}, {nt*1024}")
            a.vmem(f"buffer_store_dwordx4 {vr(o,4)}, v{vL0}, {srd(sG)}, s{sT1} offen sc1", "g")
        stamp(a, opt, 8)
        more(opt.nb, 10)
        a.wait_vm("w2_3")
        if nis[0] >= 4:
            for st in range(4):
                w2_tr(a, st)
                if st % 2 == 1: a("s_waitcnt lgkmcnt(0)")
        if nis[0] == 10 and opt.nb2:
            for st in range(10, 10 + opt.nb2): w2_dma(a, st)
            nis[0] += opt.nb2
        a.wait_vm("g")
        a(f"s_lshl_b32 s{sT0}, s{sDT1}, 5")
        a(f"s_add_u32 s{sT0}, s{sT0}, s{sFT}")
        a(f"s_mul_i32 s{sT0}, s{sT0}, {opt.gstride}")
        a(f"s_add_u32 s{sT0}, s{sT0}, {FLAG_G + 4*w}")
        flag_store(a, sT0)
        stamp(a, opt, 9)
        assert nis[0] >= 4
        more(10, 10)
        more(4, 14)
        for st in range(4, 10):
            a.wait_vm(f"w2_{st}")
            w2_tr(a, st)
            if st % 2 == 1: a("s_waitcnt lgkmcnt(0)")
        a("s_branch L_pre2")
        if w < 3: a.label(f"L_ep1_{w+1}")

    a.label("L_nogemm1")
    a.vm = []
    common_setup()
    if False:
        a(f"s_lshl_b32 s{sT0}, s{sWAVE}, 6")
        a(f"v_add_u32 v{vX}, s{sT0}, v{vLANE}")
        a(f"v_mul_u32_u24 v{vX}, {opt.hstride}, v{vX}")
        poll(a, opt, vX, 2, None)
        if opt.idlewait > 1:
            a(f"s_sleep {opt.idlewait}")
    if opt.pf == 3:
        a(f"s_lshl_b32 s{sT0}, s{sIDLE}, 2")
        a(f"s_add_u32 s{sT0}, s{sT0}, s{sWAVE}")
        a(f"s_lshl_b32 s{sT0}, s{sT0}, 10")
        for k in range(44):
            o = vRING + (k % 16) * 4
            a.vmem(f"buffer_load_dwordx4 {vr(o,4)}, v{vL0}, {srd(sW2)}, s{sT0} offen {opt.pfbits}", f"pf{k}")
            a(f"s_add_u32 s{sT0}, s{sT0}, {160*1024}")
            if k >= opt.pfdepth: a.wait_vm(f"pf{k-opt.pfdepth}")
        a.wait_vm0()
    if opt.pf == 2:
        assert opt.p1 == 2 and opt.p2 == 1
        a(f"s_cmp_lt_u32 s{sJ}, 28")
        a("s_cbranch_scc1 L_nopf")
        a(f"s_sub_u32 s{sT0}, s{sJ}, 28")
        a(f"s_lshl_b32 s{sT0}, s{sT0}, 2")
        a(f"s_add_u32 s{sT0}, s{sT0}, s{sWAVE}")
        a(f"s_lshl_b32 s{sT0}, s{sT0}, 13")
        a(f"s_lshl_b32 s{sT1}, s{sXCD}, 9")
        a(f"s_add_u32 s{sT0}, s{sT0}, s{sT1}")
        a(f"v_lshrrev_b32 v{vX}, 5, v{vLANE}")
        a(f"v_lshlrev_b32 v{vX}, 12, v{vX}")
        a(f"v_and_b32 v{vX+1}, 31, v{vLANE}")
        a(f"v_lshlrev_b32 v{vX+1}, 4, v{vX+1}")
        a(f"v_add_u32 v{vX}, v{vX}, v{vX+1}")
        keep = list(a.vm)
        for k in range(54):
            o = vRING + (k % 16) * 4
            a.vmem(f"buffer_load_dwordx4 {vr(o,4)}, v{vX}, {srd(sW2)}, s{sT0} offen", f"pf{k}")
            a(f"s_add_u32 s{sT0}, s{sT0}, {16*8192}")
            if k >= opt.pfdepth: a.wait_vm(f"pf{k-opt.pfdepth}")
        a.wait_vm0()
        a.label("L_nopf")
        a.vm = keep
    for st in range(10): w2_dma(a, st)
    for st in range(4):
        a.wait_vm(f"w2_{st}")
        w2_tr(a, st)
        if st % 2 == 1: a("s_waitcnt lgkmcnt(0)")
    for st in range(10, 14): w2_dma(a, st)
    for st in range(4, 10):
        a.wait_vm(f"w2_{st}")
        w2_tr(a, st)
        if st % 2 == 1: a("s_waitcnt lgkmcnt(0)")

    a.label("L_pre2")
    a(f"s_mul_i32 s{sT0}, s{sDT2}, 5120")
    a(f"v_add_u32 v{vA}, s{sT0}, v{vL0}")
    a(f"v_add_u32 v{vA2}, 4096, v{vA}")
    def w2_finish():
        a.wait_vm("w2all")
        a("s_waitcnt lgkmcnt(0)")
        for st in range(10, 14):
            w2_tr(a, st)
            if st % 2 == 1: a("s_waitcnt lgkmcnt(0)")
    if not opt.hold2:
        a.vm = ["w2all"]
        w2_finish()
    stamp(a, opt, 10)
    a(f"s_cmp_lg_u32 s{sWAVE}, {opt.pollw}")
    a("s_cbranch_scc1 L_gpolled")
    a(f"s_lshl_b32 s{sT0}, s{sDT2}, 5")
    a(f"s_mul_i32 s{sT0}, s{sT0}, {opt.gstride}")
    a(f"s_add_u32 s{sT0}, s{sT0}, {FLAG_G}")
    a(f"v_mul_u32_u24 v{vX}, {opt.gstride}, v{vLANE}")
    a(f"v_add_u32 v{vX}, s{sT0}, v{vX}")
    a(f"s_mov_b32 s{sP+2}, 0x7ffffff")
    a(f"s_mov_b32 s{sP+3}, 0")
    poll(a, opt, vX, 4, sP + 2, opt.sleep, opt.preg)
    a.label("L_gpolled")
    a("s_barrier")
    a.vm = ["w2all"] if opt.hold2 else []
    stamp(a, opt, 11)
    a(f"s_mul_i32 s{sSTEP}, s{sWAVE}, {14*40960}")
    def mfma2(st, mt, nt, slot):
        c = "0" if st == 0 else vr(acc2(mt, nt), 4)
        a(f"v_mfma_f32_16x16x32_bf16 {vr(acc2(mt,nt),4)}, {vr(ring(slot,mt),4)}, {ar(wfrag(st,nt),4)}, {c}")
    main_loop(sG, 14, sROT2, "g", mfma2, 12, None, 12, w2_finish if opt.hold2 else None)
    saved_vm2 = list(a.vm)
    a(f"v_and_b32 v{vT}, 15, v{vLANE}")
    a(f"s_lshl_b32 s{sT0}, s{sWAVE}, 4")
    a(f"v_add_u32 v{vT}, s{sT0}, v{vT}")
    a(f"v_mul_u32_u24 v{vA}, 1280, v{vT}")
    a(f"v_lshrrev_b32 v{vT}, 4, v{vLANE}")
    a(f"v_lshlrev_b32 v{vT}, 3, v{vT}")
    a(f"v_add_u32 v{vA}, v{vA}, v{vT}")
    a(f"s_mul_i32 s{sT0}, s{sST}, {64*1280}")
    a(f"s_mul_i32 s{sT1}, s{sDT2}, 160")
    a(f"s_add_u32 s{sOFF}, s{sT0}, s{sT1}")
    a(f"v_lshlrev_b32 v{vC0}, 16, v{vB2}")
    a(f"v_lshlrev_b32 v{vC0+1}, 16, v{vB2}")
    a(f"v_sub_u32 v{vA2}, v{vA}, v{vT}")
    a(f"v_bfe_u32 v{vT}, v{vLANE}, 4, 1")
    a(f"v_lshlrev_b32 v{vT}, 5, v{vT}")
    a(f"v_add_u32 v{vA2}, v{vA2}, v{vT}")
    a(f"v_bfe_u32 v{vT}, v{vLANE}, 5, 1")
    a(f"v_lshlrev_b32 v{vT}, 4, v{vT}")
    a(f"v_add_u32 v{vA2}, v{vA2}, v{vT}")
    def red2_addr(src, nt, mt):
        k = [x for x in range(4) if x != src].index(nt)
        return src * 32768 + (k * 5 + mt) * 1024
    for w in range(4):
        if w < 3:
            a(f"s_cmp_lg_u32 s{sWAVE}, {w}")
            a(f"s_cbranch_scc1 L_ep2_{w+1}")
        a.vm = list(saved_vm2)
        tl = [(mt, nt) for mt in range(5) for nt in range(4)]
        def wr2(t):
            vb, off = lds_ref(red2_addr(w, t[1], t[0]))
            a(f"ds_write_b128 v{vb}, {vr(acc2(*t),4)} offset:{off}")
        tile_tail(14, "g", [t for t in tl if t[1] != w], [t for t in tl if t[1] == w], lambda t: t[0],
                  lambda st, t: mfma2(st, t[0], t[1], st % NS), wr2, [])
        stamp(a, opt, 13)
        a("s_waitcnt lgkmcnt(0)")
        a("s_barrier")
        RT = vRING
        n = 0
        for mt in range(5):
            for src in range(4):
                if src == w: continue
                vb, off = lds_ref(red2_addr(src, w, mt))
                a(f"ds_read_b128 {vr(RT+n*4,4)}, v{vb} offset:{off}")
                n += 1
        n = 0
        for mt in range(5):
            r = acc2(mt, w)
            for si in range(3):
                a(f"s_waitcnt lgkmcnt({14 - n})")
                a(f"v_pk_add_f32 {vr(r,2)}, {vr(r,2)}, {vr(RT+n*4,2)}")
                a(f"v_pk_add_f32 {vr(r+2,2)}, {vr(r+2,2)}, {vr(RT+n*4+2,2)}")
                n += 1
            a(f"v_pk_add_f32 {vr(r,2)}, {vr(r,2)}, {vr(vC0,2)}")
            a(f"v_pk_add_f32 {vr(r+2,2)}, {vr(r+2,2)}, {vr(vC0,2)}")
            o = RT + 64 + 2 * mt
            a(f"v_cvt_pk_bf16_f32 v{o}, v{r}, v{r+1}")
            a(f"v_cvt_pk_bf16_f32 v{o+1}, v{r+2}, v{r+3}")
            if not opt.wide or mt == 4:
                a(f"buffer_store_dwordx2 {vr(o,2)}, v{vA}, {srd(sO)}, s{sOFF} offen offset:{mt*32} {opt.obits}")
            elif mt % 2 == 1:
                a("s_nop 1")
                a(f"v_permlane16_swap_b32 v{o-2}, v{o}")
                a(f"v_permlane16_swap_b32 v{o-1}, v{o+1}")
                a(f"buffer_store_dwordx4 {vr(o-2,4)}, v{vA2}, {srd(sO)}, s{sOFF} offen offset:{(mt-1)*32} {opt.obits}")
        a("s_branch L_fin")
        if w < 3: a.label(f"L_ep2_{w+1}")
    a.label("L_fin")
    if opt.probe >= 0:
        if opt.probe == 14:
            a("s_waitcnt vmcnt(0)")
            stamp(a, opt, 14)
        a(f"s_cmp_lg_u32 s{sWG}, {opt.probewg}")
        a("s_cbranch_scc1 L_done")
        a(f"s_cmp_lg_u32 s{sWAVE}, {opt.probew}")
        a("s_cbranch_scc1 L_done")
        ref = sNONCE if opt.probeabs else (sPROF + 2 if opt.probe0 >= 0 else 96)
        a(f"s_sub_u32 s{sT1}, s{sPROF+1}, s{ref}")
        if opt.probecyc: a(f"s_lshr_b32 s{sT1}, s{sT1}, 2")
        else: a(f"s_lshl_b32 s{sT1}, s{sT1}, 2")
        a(f"s_add_u32 s{sT1}, s{sT1}, 4000")
        a.label("L_probe")
        a(f"s_memrealtime s[{sP}:{sP+1}]")
        a("s_waitcnt lgkmcnt(0)")
        a(f"s_sub_u32 s{sT0}, s{sP}, s96")
        a(f"s_cmp_lt_u32 s{sT0}, s{sT1}")
        a("s_cbranch_scc1 L_probe")
    if opt.pad:
        a.label("L_pad")
        a(f"s_memrealtime s[{sP}:{sP+1}]")
        a("s_waitcnt lgkmcnt(0)")
        a(f"s_sub_u32 s{sT0}, s{sP}, s96")
        a(f"s_cmp_lt_u32 s{sT0}, {opt.pad}")
        a("s_cbranch_scc1 L_pad")
    if opt.prof:
        a("s_waitcnt vmcnt(0)")
        stamp(a, opt, 14)
        make_srd(a, sX, 18, 65536, WS_PROF)
        a(f"s_lshl_b32 s{sT0}, s{sWG}, 2")
        a(f"s_add_u32 s{sT0}, s{sT0}, s{sWAVE}")
        a(f"s_lshl_b32 s{sT0}, s{sT0}, 6")
        a(f"v_mov_b32 v{vT}, s{sT0}")
        a("s_mov_b64 exec, 1")
        for i in range(15):
            a(f"v_mov_b32 v100, s{sPROF+i}")
            a(f"buffer_store_dword v100, v{vT}, {srd(sX)}, 0 offen offset:{4*i}")
            a("s_nop 1")
        a("s_waitcnt vmcnt(0)")
    a.label("L_done")
    a("s_endpgm")
    a.label("L_codeend")
    a.raw('.section .rodata,"a"')
    a.raw(".p2align 6")
    a.raw(f".amdhsa_kernel {KN}")
    for l in ["next_free_vgpr 512", "next_free_sgpr 102", "accum_offset 256", "group_segment_fixed_size 0",
              "kernarg_size 64", "user_sgpr_count 2", "user_sgpr_kernarg_segment_ptr 1",
              "system_sgpr_workgroup_id_x 1", "float_denorm_mode_32 3"]:
        a.raw(f"  .amdhsa_{l}")
    a.raw(".end_amdhsa_kernel")
    return "\n".join(a.L) + "\n"

def parse(argv=None):
    ap = argparse.ArgumentParser()
    ap.add_argument("-o", default="standalone__mixer_token_mlp__prompt.s")
    ap.add_argument("--prof", type=int, default=0)
    ap.add_argument("--rot", type=int, default=3)
    ap.add_argument("--spin", type=int, default=20000)
    ap.add_argument("--sleep", type=int, default=8)
    ap.add_argument("--depth", type=int, default=3)
    ap.add_argument("--lnprof", type=int, default=0)
    ap.add_argument("--hbits", default="sc1")
    ap.add_argument("--pfwait", type=int, default=1)
    ap.add_argument("--hold", type=int, default=0)
    ap.add_argument("--probe", type=int, default=-1)
    ap.add_argument("--probe0", type=int, default=-1)
    ap.add_argument("--probecyc", type=int, default=0)
    ap.add_argument("--probeabs", type=int, default=0)
    ap.add_argument("--probewg", type=int, default=100)
    ap.add_argument("--probew", type=int, default=2)
    ap.add_argument("--rot8", type=int, default=1)
    ap.add_argument("--cpf", type=int, default=1)
    ap.add_argument("--cpfw", type=int, default=3)
    ap.add_argument("--wide", type=int, default=1)
    ap.add_argument("--idlewait", type=int, default=0)
    ap.add_argument("--sleeph", type=int, default=8)
    ap.add_argument("--preh", type=int, default=0)
    ap.add_argument("--preg", type=int, default=0)
    ap.add_argument("--onepoll", type=int, default=3)
    ap.add_argument("--pollw", type=int, default=3)
    ap.add_argument("--nta", type=int, default=0)
    ap.add_argument("--rotg1", type=int, default=0)
    ap.add_argument("--rotg2", type=int, default=0)
    ap.add_argument("--npost", type=int, default=3)
    ap.add_argument("--xbar", type=int, default=1)
    ap.add_argument("--hold1", type=int, default=4)
    ap.add_argument("--hold2", type=int, default=1)
    ap.add_argument("--t13", type=int, default=1)
    ap.add_argument("--tt", type=int, default=2)
    ap.add_argument("--e2", type=int, default=0)
    ap.add_argument("--e3", type=int, default=0)
    ap.add_argument("--nb2", type=int, default=0)
    ap.add_argument("--e1", type=int, default=1)
    ap.add_argument("--nb", type=int, default=2)
    ap.add_argument("--nearly", type=int, default=2)
    ap.add_argument("--dpl", type=int, default=5)
    ap.add_argument("--dp", type=int, default=4)
    ap.add_argument("--p1", type=int, default=1)
    ap.add_argument("--p2", type=int, default=1)
    ap.add_argument("--rota1", type=int, default=0)
    ap.add_argument("--rota2", type=int, default=0)
    ap.add_argument("--xbits", default="nt")
    ap.add_argument("--w1bits", default="")
    ap.add_argument("--w2bits", default="")
    ap.add_argument("--pfbits", default="")
    ap.add_argument("--pfdepth", type=int, default=8)
    ap.add_argument("--prio", type=int, default=3)
    ap.add_argument("--delay", type=int, default=0)
    ap.add_argument("--hstride", type=int, default=8)
    ap.add_argument("--gstride", type=int, default=256)
    ap.add_argument("--pf", type=int, default=3)
    ap.add_argument("--pad", type=int, default=0)
    ap.add_argument("--obits", default="sc1")
    return ap.parse_args(argv)

if __name__ == "__main__":
    opt = parse()
    open(opt.o, "w").write(gen(opt))
```

```python
import argparse, struct

S, D, F = 2048, 640, 1728
KN = "standalone__mixer_token_mlp__prompt_kernel"

WS_H = 0
H_BYTES = 64 * 40 * 1024
WS_G = 0x300000
G_BYTES = 54 * 40 * 1024
WS_FLAG = 0x600000
FLAG_H = 0
FLAG_G = 0x10000
FLAG_BYTES = 0x40000
WS_PROF = 0x700000

LDS_BYTES = 163840
LN_BASE = 131072
LN_ROW = 1344
LF_BASE = 141824
P0_BASE = [0, 49152, 98304, 122880]

sWG = 2
sX, sW1, sW2, sH, sG, sO, sF, sB1, sB2, sD = 20, 24, 28, 32, 36, 40, 44, 48, 52, 56
sWAVE, sXCD, sJ, sFT, sDT1, sST, sDT2, sNONCE = 60, 61, 62, 63, 64, 65, 66, 67
sT0, sT1, sT2, sT3, sT4, sT5 = 68, 69, 70, 71, 72, 73
sROT1, sROT2, sSTEP, sOFF = 74, 75, 76, 77
sM0B, sSPIN = 78, 79
sP = 80
sPROF = 84
sUP = 99
sJLIM, sIDLE = 100, 101
sWB = 3

vTID, vLANE = 0, 1
vTR = 2
vA, vA2, vDMA, vT2 = 6, 7, 8, 9
vB1 = 10
vB2, vT = 14, 15
vACC = 16
vRING = 96
vTRU = 176
vL0, vL1, vL2 = 180, 181, 182
vC0 = 184
BI = 186
vPOLL = 194
vX = 196
vPQ = 208
vDM = 200

def srd(n): return f"s[{n}:{n+3}]"
def vr(n, c=1): return f"v{n}" if c == 1 else f"v[{n}:{n+c-1}]"
def ar(n, c=1): return f"a{n}" if c == 1 else f"a[{n}:{n+c-1}]"
def f2h(x): return "0x%08x" % struct.unpack("<I", struct.pack("<f", x))[0]
C0 = -2.0 * 0.7978845608028654 * 1.4426950408889634
C1 = C0 * 0.044715

class Asm:
    def __init__(self):
        self.L = []; self.vm = []; self.uid = 0
    def __call__(self, s): self.L.append("    " + s)
    def label(self, s): self.L.append(s + ":")
    def raw(self, s): self.L.append(s)
    def c(self, s): self.L.append("    ; " + s)
    def vmem(self, s, tag):
        self(s); self.vm.append(tag)
    def wait_vm(self, tag):
        hits = [i for i, t in enumerate(self.vm) if t == tag]
        if not hits: return
        n = len(self.vm) - 1 - hits[-1]
        self(f"s_waitcnt vmcnt({min(n, 63)})")
        self.vm = self.vm[hits[-1] + 1:]
    def wait_vm0(self):
        self("s_waitcnt vmcnt(0)"); self.vm = []
    def newlabel(self, p):
        self.uid += 1
        return f"L_{p}_{self.uid}"

def acc1(mt, nt): return vACC + (mt * 5 + nt) * 4
def acc2(mt, nt): return vACC + (mt * 4 + nt) * 4
def wfrag(step, t): return step * 16 + t * 4

def stamp(a, opt, idx, force=False):
    if opt.probe >= 0:
        ins = "s_memtime" if opt.probecyc else "s_memrealtime"
        if idx == opt.probe:
            a(f"{ins} s[{sP}:{sP+1}]")
            a("s_waitcnt lgkmcnt(0)")
            a(f"s_mov_b32 s{sPROF+1}, s{sP}")
        if idx == opt.probe0:
            a(f"{ins} s[{sP}:{sP+1}]")
            a("s_waitcnt lgkmcnt(0)")
            a(f"s_mov_b32 s{sPROF+2}, s{sP}")
        return
    if opt.prof == 4 and idx != 14: return
    if opt.lnprof and idx in (4, 5) and getattr(a, "ln_done", False): return
    if opt.prof:
        a(f"s_mem{'time' if opt.prof == 2 else 'realtime'} s[{sP}:{sP+1}]")
        a("s_waitcnt lgkmcnt(0)")
        a(f"s_mov_b32 s{sPROF+idx}, s{sP}")

def make_srd(a, n, lo, size, add=0):
    if add:
        a(f"s_add_u32 s{n}, s{lo}, {add}")
        a(f"s_addc_u32 s{n+1}, s{lo+1}, 0")
        a(f"s_and_b32 s{n+1}, s{n+1}, 0xffff")
    else:
        a(f"s_mov_b32 s{n}, s{lo}")
        a(f"s_and_b32 s{n+1}, s{lo+1}, 0xffff")
    a(f"s_mov_b32 s{n+2}, {size}")
    a(f"s_mov_b32 s{n+3}, 0x20000")

def nonce_spin(a, opt):
    lp = a.newlabel("nonce"); dn = a.newlabel("nonced")
    a(f"s_cmp_lg_u32 s{sNONCE}, 0")
    a(f"s_cbranch_scc1 {dn}")
    a(f"s_mov_b32 s{sSPIN}, 0")
    a(f"v_mov_b32 v{vT}, 0")
    a.label(lp)
    a(f"buffer_load_dword v{vT2}, v{vT}, {srd(sD)}, 0 offen sc1")
    a("s_waitcnt vmcnt(0)")
    a(f"v_readfirstlane_b32 s{sNONCE}, v{vT2}")
    a(f"s_add_u32 s{sSPIN}, s{sSPIN}, 1")
    a(f"s_cmp_lg_u32 s{sNONCE}, 0")
    a(f"s_cbranch_scc1 {dn}")
    a(f"s_cmp_lt_u32 s{sSPIN}, {opt.spin}")
    a(f"s_cbranch_scc1 {lp}")
    a.label(dn)

def lds_set(a, addr_sgpr_or_imm):
    a(f"v_mov_b32 v{vT}, {addr_sgpr_or_imm}")
    a(f"v_mov_b32 v{vT2}, 1")
    a(f"s_mov_b64 s[{sP}:{sP+1}], exec")
    a("s_mov_b64 exec, 1")
    a(f"ds_write_b32 v{vT}, v{vT2}")
    a(f"s_mov_b64 exec, s[{sP}:{sP+1}]")

def lds_spin(a, opt, addr):
    lp = a.newlabel("lspin"); dn = a.newlabel("lspun")
    a(f"v_mov_b32 v{vT}, {addr}")
    a(f"s_mov_b32 s{sSPIN}, 0")
    a.label(lp)
    a(f"ds_read_b32 v{vT2}, v{vT}")
    a("s_waitcnt lgkmcnt(0)")
    a(f"v_readfirstlane_b32 s{sP}, v{vT2}")
    a(f"s_add_u32 s{sSPIN}, s{sSPIN}, 1")
    a(f"s_cmp_lg_u32 s{sP}, 0")
    a(f"s_cbranch_scc1 {dn}")
    a(f"s_cmp_lt_u32 s{sSPIN}, {opt.spin * 8}")
    a(f"s_cbranch_scc1 {lp}")
    a.label(dn)

def dma_addr(a, stride, s_tile):
    a(f"v_lshrrev_b32 v{vT}, 3, v{vLANE}")
    a(f"v_lshrrev_b32 v{vT2}, 1, v{vT}")
    a(f"v_lshlrev_b32 v{vT2}, 1, v{vT2}")
    a(f"v_and_b32 v{vDM}, 7, v{vLANE}")
    a(f"v_xor_b32 v{vDM}, v{vDM}, v{vT2}")
    a(f"v_lshlrev_b32 v{vDM}, 4, v{vDM}")
    a(f"v_mul_u32_u24 v{vT}, {stride}, v{vT}")
    a(f"v_add_u32 v{vDM}, v{vDM}, v{vT}")
    a(f"s_lshl_b32 s{sT0}, s{s_tile}, 7")
    a(f"v_add_u32 v{vDM}, s{sT0}, v{vDM}")
    for b in range(1, 4):
        a(f"v_add_u32 v{vDM+b}, {b*(8*stride-1024)}, v{vDM}")

def step_off(a, dst, s_base, s_rot, i, nsteps, bytes_per_step):
    a(f"s_add_u32 s{sT4}, s{s_rot}, {i}")
    a(f"s_cmp_ge_u32 s{sT4}, {nsteps}")
    a(f"s_cselect_b32 s{dst}, {nsteps}, 0")
    a(f"s_sub_u32 s{sT4}, s{sT4}, s{dst}")
    a(f"s_mul_i32 s{sT4}, s{sT4}, {bytes_per_step}")
    a(f"s_add_u32 s{dst}, s{sT4}, s{s_base}")

def dma_step(a, srdn, stride, s_rowbase, s_rot, step, nsteps, s_lds, lds_off, tag, bits=""):
    a(f"s_add_u32 m0, s{s_lds}, {lds_off}")
    step_off(a, sOFF, s_rowbase, s_rot, step, nsteps, 32 * stride)
    for blk in range(4):
        a.vmem(f"buffer_load_dwordx4 v{vDM+blk}, {srd(srdn)}, s{sOFF} offen offset:{blk*1024} {bits} lds", tag)

def tr_step(a, vbase, off, step):
    for t in range(4):
        w = wfrag(step, t)
        a(f"ds_read_b64_tr_b16 {ar(w,2)}, v{vbase+t} offset:{off}")
        a(f"ds_read_b64_tr_b16 {ar(w+2,2)}, v{vbase+t} offset:{off+2048}")

def poll(a, opt, vaddr, nd, lanes, sleep=None, pre=0, nload=1):
    if sleep is None: sleep = opt.sleep
    if pre: a(f"s_sleep {pre}")
    lp = a.newlabel("poll"); dn = a.newlabel("polled")
    a(f"s_mov_b32 s{sSPIN}, 0")
    a.label(lp)
    ld = {1: "dword", 2: "dwordx2", 4: "dwordx4"}[nd]
    for k in range(nload):
        a(f"buffer_load_{ld} {vr(vPQ + 4*k, nd)}, v{vaddr}, {srd(sF)}, 0 offen offset:{k*1024} sc1")
    a("s_waitcnt vmcnt(0)")
    first = True
    for k in range(nload):
        for i in range(nd):
            if first:
                a(f"v_cmp_ne_u32 vcc, s{sNONCE}, v{vPQ+4*k+i}"); first = False
            else:
                a(f"v_cmp_ne_u32 s[{sP}:{sP+1}], s{sNONCE}, v{vPQ+4*k+i}")
                a(f"s_or_b64 vcc, vcc, s[{sP}:{sP+1}]")
    if lanes is not None:
        a(f"s_and_b64 vcc, vcc, s[{lanes}:{lanes+1}]")
    a(f"s_add_u32 s{sSPIN}, s{sSPIN}, 1")
    a("s_cmp_eq_u64 vcc, 0")
    a(f"s_cbranch_scc1 {dn}")
    if sleep: a(f"s_sleep {sleep}")
    a(f"s_cmp_lt_u32 s{sSPIN}, {opt.spin}")
    a(f"s_cbranch_scc1 {lp}")
    a.label(dn)
    a.vm = []

def poll_check(a, nd, lanes, ok_label):
    for i in range(nd):
        if i == 0: a(f"v_cmp_ne_u32 vcc, s{sNONCE}, v{vPQ}")
        else:
            a(f"v_cmp_ne_u32 s[{sP}:{sP+1}], s{sNONCE}, v{vPQ+i}")
            a(f"s_or_b64 vcc, vcc, s[{sP}:{sP+1}]")
    if lanes is not None:
        a(f"s_and_b64 vcc, vcc, s[{lanes}:{lanes+1}]")
    a("s_cmp_eq_u64 vcc, 0")
    a(f"s_cbranch_scc1 {ok_label}")

def flag_store(a, s_index_bytes):
    a(f"v_mov_b32 v{vT}, s{s_index_bytes}")
    a(f"v_mov_b32 v{vT2}, s{sNONCE}")
    a(f"s_mov_b64 s[{sP}:{sP+1}], exec")
    a("s_mov_b64 exec, 1")
    a.vmem(f"buffer_store_dword v{vT2}, v{vT}, {srd(sF)}, 0 offen sc1", "flag")
    a(f"s_mov_b64 exec, s[{sP}:{sP+1}]")

def gelu_pairs(a, regs, tmp, fill=None):
    def each(fn):
        for i, r in enumerate(regs): fn(r, tmp + 2 * i)
    each(lambda r, t: a(f"v_pk_mul_f32 {vr(t,2)}, {vr(r,2)}, {vr(r,2)}"))
    each(lambda r, t: a(f"v_pk_fma_f32 {vr(t,2)}, {vr(t,2)}, s[100:101], {vr(vC0,2)}"))
    each(lambda r, t: a(f"v_pk_mul_f32 {vr(t,2)}, {vr(t,2)}, {vr(r,2)}"))
    if fill: fill()
    each(lambda r, t: (a(f"v_exp_f32 v{t}, v{t}"), a(f"v_exp_f32 v{t+1}, v{t+1}")))
    each(lambda r, t: a(f"v_pk_add_f32 {vr(t,2)}, {vr(t,2)}, 1.0 op_sel_hi:[1,0]"))
    each(lambda r, t: (a(f"v_rcp_f32 v{t}, v{t}"), a(f"v_rcp_f32 v{t+1}, v{t+1}")))
    a("s_nop 0")
    each(lambda r, t: a(f"v_pk_mul_f32 {vr(r,2)}, {vr(r,2)}, {vr(t,2)}"))

def w2_slot(step):
    if step < 8: return sM0B, step * 4096, vTR, step * 4096
    if step < 10: return sUP, (step - 8) * 4096, vTRU, (step - 8) * 4096
    return sM0B, (step - 10) * 4096, vTR, (step - 10) * 4096

def w2_dma(a, step):
    sb, off, _, _ = w2_slot(step)
    dma_step(a, sW2, S * 2, sWB, sROT2, step, 14, sb, off, f"w2_{step}", OPT.w2bits)

def w2_dma_parts(a, step):
    sb, off, _, _ = w2_slot(step)
    def setup():
        a(f"s_add_u32 m0, s{sb}, {off}")
        step_off(a, sOFF, sWB, sROT2, step, 14, 32 * S * 2)
    def one(blk):
        return lambda: a.vmem(f"buffer_load_dwordx4 v{vDM+blk}, {srd(sW2)}, s{sOFF} offen offset:{blk*1024} {OPT.w2bits} lds", f"w2_{step}")
    return [setup] + [one(b) for b in range(4)]

def w2_tr(a, step):
    _, _, vb, off = w2_slot(step)
    tr_step(a, vb, off, step)

def gen(opt):
    global OPT
    OPT = opt
    a = Asm()
    NS = opt.depth + 1
    def ring(slot, t): return vRING + slot * 20 + t * 4
    a.raw(f"; @launch grid=(256,1,1) block=(256,1,1) lds={LDS_BYTES}")
    a.raw('.amdgcn_target "amdgcn-amd-amdhsa--gfx950"')
    a.raw(".text")
    a.raw(f".globl {KN}")
    a.raw(".p2align 8")
    a.raw(f".type {KN},@function")
    a.label(KN)
    if opt.cpf: a("s_getpc_b64 s[94:95]")
    a(f"s_cmp_ge_u32 s{sWG}, 256")
    a("s_cbranch_scc1 L_done")
    a("s_load_dwordx16 s[4:19], s[0:1], 0")
    if opt.prof:
        a(f"s_mem{'time' if opt.prof == 2 else 'realtime'} s[{sP}:{sP+1}]")
    if opt.prof:
        for i in range(1, 15): a(f"s_mov_b32 s{sPROF+i}, 0")
    if not opt.prof:
        a("s_memrealtime s[96:97]")
    a(f"v_lshrrev_b32 v{vT}, 6, v{vTID}")
    a(f"v_and_b32 v{vLANE}, 63, v{vTID}")
    a(f"v_readfirstlane_b32 s{sWAVE}, v{vT}")
    a(f"s_and_b32 s{sXCD}, s{sWG}, 7")
    a(f"s_lshr_b32 s{sJ}, s{sWG}, 3")
    if opt.p1 == 2:
        a(f"s_lshr_b32 s{sT1}, s{sXCD}, 1")
        a(f"s_and_b32 s{sT2}, s{sXCD}, 1")
        a(f"s_lshl_b32 s{sT2}, s{sT2}, 2")
        a(f"s_mul_i32 s{sT0}, s{sT1}, 7")
        a(f"s_lshr_b32 s{sFT}, s{sJ}, 2")
        a(f"s_add_u32 s{sFT}, s{sFT}, s{sT0}")
        a(f"s_and_b32 s{sT3}, s{sJ}, 3")
        a(f"s_add_u32 s{sDT1}, s{sT2}, s{sT3}")
        if opt.rot8: a(f"s_lshl_b32 s{sROT1}, s{sDT1}, 1")
        else: a(f"s_lshl_b32 s{sROT1}, s{sT3}, 2")
        a(f"s_cmp_eq_u32 s{sT1}, 3")
        a(f"s_cselect_b32 s{sJLIM}, 24, 28")
        a(f"s_lshl_b32 s{sT0}, s{sXCD}, 2")
        a(f"s_sub_u32 s{sT0}, s{sT0}, 28")
        a(f"s_lshl_b32 s{sT3}, s{sXCD}, 3")
        a(f"s_sub_u32 s{sT3}, s{sT3}, 48")
        a(f"s_cselect_b32 s{sIDLE}, s{sT0}, s{sT0}")
        a(f"s_cmp_ge_u32 s{sXCD}, 6")
        a(f"s_cselect_b32 s{sIDLE}, s{sT3}, s{sT0}")
        a(f"s_add_u32 s{sIDLE}, s{sIDLE}, s{sJ}")
    else:
        a(f"s_lshl_b32 s{sT0}, s{sXCD}, 2")
        a(f"s_mul_i32 s{sT1}, s{sXCD}, 3")
        a(f"s_add_u32 s{sT1}, s{sT1}, 3")
        a(f"s_cmp_lt_u32 s{sXCD}, 3")
        a(f"s_cselect_b32 s{sT0}, s{sT0}, s{sT1}")
        a(f"s_cselect_b32 s{sJLIM}, 32, 24")
        a(f"s_lshr_b32 s{sFT}, s{sJ}, 3")
        a(f"s_add_u32 s{sFT}, s{sFT}, s{sT0}")
        a(f"s_and_b32 s{sDT1}, s{sJ}, 7")
        a(f"s_lshl_b32 s{sROT1}, s{sDT1}, 1")
        a(f"s_lshl_b32 s{sIDLE}, s{sXCD}, 3")
        a(f"s_add_u32 s{sIDLE}, s{sIDLE}, s{sJ}")
        a(f"s_sub_u32 s{sIDLE}, s{sIDLE}, 48")
    if opt.rotg1 == 3:
        a(f"s_mul_i32 s{sT0}, s{sFT}, 11")
        a(f"s_lshr_b32 s{sT0}, s{sT0}, 5")
        a(f"s_mul_i32 s{sT0}, s{sT0}, 3")
        a(f"s_sub_u32 s{sT0}, s{sFT}, s{sT0}")
        a(f"s_mul_i32 s{sT0}, s{sT0}, 5")
        a(f"s_add_u32 s{sROT1}, s{sROT1}, s{sT0}")
        a(f"s_and_b32 s{sROT1}, s{sROT1}, 15")
    if opt.rotg1 == 2:
        a(f"s_and_b32 s{sT0}, s{sFT}, 1")
        a(f"s_lshl_b32 s{sT0}, s{sT0}, 3")
        a(f"s_add_u32 s{sROT1}, s{sROT1}, s{sT0}")
        a(f"s_and_b32 s{sROT1}, s{sROT1}, 15")
    if opt.rota1:
        a(f"s_mul_i32 s{sT0}, s{sFT}, {opt.rota1}")
        a(f"s_add_u32 s{sROT1}, s{sROT1}, s{sT0}")
        a(f"s_and_b32 s{sROT1}, s{sROT1}, 15")
    if opt.p2 == 2:
        a(f"s_lshr_b32 s{sT1}, s{sXCD}, 1")
        a(f"s_and_b32 s{sT2}, s{sXCD}, 1")
        a(f"s_lshl_b32 s{sT2}, s{sT2}, 2")
        a(f"s_lshr_b32 s{sT0}, s{sJ}, 2")
        a(f"s_lshl_b32 s{sST}, s{sT1}, 3")
        a(f"s_add_u32 s{sST}, s{sST}, s{sT0}")
        a(f"s_and_b32 s{sT3}, s{sJ}, 3")
        a(f"s_add_u32 s{sDT2}, s{sT2}, s{sT3}")
        if opt.rot8:
            a(f"s_mul_i32 s{sROT2}, s{sDT2}, 7")
            a(f"s_lshr_b32 s{sROT2}, s{sROT2}, 2")
        else:
            a(f"s_mul_i32 s{sROT2}, s{sT3}, 7")
            a(f"s_lshr_b32 s{sROT2}, s{sROT2}, 1")
    else:
        a(f"s_lshr_b32 s{sT0}, s{sJ}, 3")
        a(f"s_lshl_b32 s{sST}, s{sXCD}, 2")
        a(f"s_add_u32 s{sST}, s{sST}, s{sT0}")
        a(f"s_and_b32 s{sDT2}, s{sJ}, 7")
        a(f"s_mul_i32 s{sROT2}, s{sDT2}, 7")
        a(f"s_lshr_b32 s{sROT2}, s{sROT2}, 2")
    if opt.rotg2:
        if opt.rotg2 == 2:
            a(f"s_and_b32 s{sT0}, s{sST}, 1")
            a(f"s_mul_i32 s{sT0}, s{sT0}, 7")
        else:
            a(f"s_mul_i32 s{sT0}, s{sST}, 11")
            a(f"s_lshr_b32 s{sT0}, s{sT0}, 5")
            a(f"s_mul_i32 s{sT0}, s{sT0}, 3")
            a(f"s_sub_u32 s{sT0}, s{sST}, s{sT0}")
            a(f"s_mul_i32 s{sT0}, s{sT0}, 5")
        a(f"s_add_u32 s{sROT2}, s{sROT2}, s{sT0}")
        a(f"s_cmp_ge_u32 s{sROT2}, 14")
        a(f"s_cselect_b32 s{sT0}, 14, 0")
        a(f"s_sub_u32 s{sROT2}, s{sROT2}, s{sT0}")
    if opt.rota2:
        a(f"s_mul_i32 s{sT0}, s{sST}, {opt.rota2}")
        a(f"s_add_u32 s{sROT2}, s{sROT2}, s{sT0}")
        a(f"s_and_b32 s{sT0}, s{sROT2}, 0xff")
        a(f"s_mul_i32 s{sT0}, s{sROT2}, 18725")
        a(f"s_lshr_b32 s{sT0}, s{sT0}, 18")
        a(f"s_mul_i32 s{sT0}, s{sT0}, 14")
        a(f"s_sub_u32 s{sROT2}, s{sROT2}, s{sT0}")
    if not (opt.rot & 1): a(f"s_mov_b32 s{sROT1}, 0")
    if not (opt.rot & 2): a(f"s_mov_b32 s{sROT2}, 0")
    a(f"s_lshl_b32 s{sM0B}, s{sWAVE}, 15")
    a(f"s_lshl_b32 s{sUP}, s{sWAVE}, 13")
    a(f"s_add_u32 s{sUP}, s{sUP}, 131072")
    def tr_addr(base_sgpr):
        t0, t1, t2 = vX, vX + 1, vX + 2
        a(f"v_lshrrev_b32 v{t0}, 4, v{vLANE}")
        a(f"v_and_b32 v{t1}, 1, v{t0}")
        a(f"v_lshlrev_b32 v{t1}, 2, v{t1}")
        a(f"v_bfe_u32 v{t2}, v{vLANE}, 2, 2")
        a(f"v_add_u32 v{t1}, v{t1}, v{t2}")
        a(f"v_lshrrev_b32 v{t0}, 1, v{t0}")
        a(f"v_lshlrev_b32 v{t0}, 10, v{t0}")
        a(f"v_lshlrev_b32 v{t2}, 7, v{t1}")
        a(f"v_add_u32 v{t0}, v{t0}, v{t2}")
        a(f"v_and_b32 v{t2}, 3, v{vLANE}")
        a(f"v_lshlrev_b32 v{t2}, 3, v{t2}")
        a(f"v_add_u32 v{t0}, v{t0}, v{t2}")
        a(f"v_add_u32 v{t0}, s{base_sgpr}, v{t0}")
        a(f"v_lshrrev_b32 v{t1}, 1, v{t1}")
        for t in range(4):
            a(f"v_xor_b32 v{t2}, {t}, v{t1}")
            a(f"v_lshlrev_b32 v{t2}, 5, v{t2}")
            a(f"v_add_u32 v{vTR+t}, v{t0}, v{t2}")
    def w1_dma(i): dma_step(a, sW1, F * 2, sWB, sROT1, i, 16, sM0B, (i % 8) * 4096, f"w1_{i}", "nt" if i < opt.nta else opt.w1bits)
    def w1_stream(first, dp, hold=0):
        retired = 0
        def retire():
            nonlocal retired
            a.wait_vm(f"w1_{retired}")
            if retired: a("s_waitcnt lgkmcnt(0)")
            tr_step(a, vTR, (retired % 8) * 4096, retired)
            retired += 1
        for i in range(first, 16):
            while retired <= i - dp: retire()
            if i >= 8:
                while retired <= i - 8: retire()
                if retired == i - 7: a("s_waitcnt lgkmcnt(0)")
            w1_dma(i)
        while retired < 16 - hold: retire()
        def finish():
            while retired < 16: retire()
            a("s_waitcnt lgkmcnt(0)")
        if not hold: finish()
        return finish
    dma_addr(a, F * 2, sFT)
    a(f"s_mul_i32 s{sWB}, s{sWAVE}, {512*F*2}")
    a.c("LayerNorm: wave w normalises rows 32*ks + 16*(w>>1) + 4*q + 2*(w&1) + (0,1), 32 lanes per row")
    XR, XF, TM = 96, 108, 130
    a(f"s_lshr_b32 s{sT0}, s{sWG}, 2")
    a(f"s_and_b32 s{sT1}, s{sWG}, 3")
    a(f"s_lshl_b32 s{sT2}, s{sT0}, 5")
    a(f"s_lshr_b32 s{sT3}, s{sWAVE}, 1")
    a(f"s_lshl_b32 s{sT3}, s{sT3}, 4")
    a(f"s_add_u32 s{sT2}, s{sT2}, s{sT3}")
    a(f"s_lshl_b32 s{sT3}, s{sT1}, 2")
    a(f"s_add_u32 s{sT2}, s{sT2}, s{sT3}")
    a(f"s_and_b32 s{sT3}, s{sWAVE}, 1")
    a(f"s_lshl_b32 s{sT3}, s{sT3}, 1")
    a(f"s_add_u32 s{sT2}, s{sT2}, s{sT3}")
    a(f"s_mul_i32 s{sT2}, s{sT2}, 1280")
    a(f"v_lshrrev_b32 v{TM}, 5, v{vLANE}")
    a(f"v_and_b32 v{TM+1}, 31, v{vLANE}")
    a(f"v_lshlrev_b32 v{TM+1}, 3, v{TM+1}")
    a(f"v_mul_u32_u24 v{TM+2}, 1280, v{TM}")
    a(f"v_add_u32 v{TM+2}, v{TM+2}, v{TM+1}")
    a(f"v_mov_b32 v{vT}, 0")
    a("s_waitcnt lgkmcnt(0)")
    if opt.prof: a(f"s_mov_b32 s{sPROF}, s{sP}")
    make_srd(a, sD, 16, 256)
    a(f"s_cmp_lg_u32 s{sWG}, 0")
    a("s_cbranch_scc1 L_nononce")
    a(f"s_cmp_lg_u32 s{sWAVE}, 3")
    a("s_cbranch_scc1 L_nononce")
    a(f"s_or_b32 s{sNONCE}, s{sP if opt.prof else 96}, 1")
    a(f"v_mov_b32 v{vT2}, s{sNONCE}")
    a(f"s_mov_b64 s[{sP+2}:{sP+3}], exec")
    a("s_mov_b64 exec, 1")
    a(f"buffer_store_dword v{vT2}, v{vT}, {srd(sD)}, 0 offen sc1")
    a(f"s_mov_b64 exec, s[{sP+2}:{sP+3}]")
    a.label("L_nononce")
    make_srd(a, sX, 4, S * D * 2)
    for i in range(5):
        a.vmem(f"buffer_load_dwordx2 {vr(XR+2*i,2)}, v{TM+2}, {srd(sX)}, s{sT2} offen offset:{i*256} {opt.xbits}", "x")
    make_srd(a, sW1, 6, S * F * 2)
    if opt.xbar: a("s_barrier")
    a(f"s_cmp_ge_u32 s{sJ}, s{sJLIM}")
    a("s_cbranch_scc1 L_ln_now1")
    for i in range(opt.nearly): w1_dma(i)
    a.label("L_ln_now1")
    if opt.cpf:
        a(f"s_cmp_lg_u32 s{sWAVE}, 3")
        a("s_cbranch_scc1 L_nocpf")
        a(f"s_lshl_b32 s{sT3}, s{sJ}, 11")
        a(f"v_lshlrev_b32 v{vX}, 4, v{vLANE}")
        a(f"v_add_u32 v{vX}, s{sT3}, v{vX}")
        a(f"v_add_u32 v{vX+1}, 1024, v{vX}")
        for h in range(2):
            a(f"v_min_u32 v{vX+h}, L_codeend-{KN}-36, v{vX+h}")
            a(f"global_load_dwordx4 {vr(240+4*h,4)}, v{vX+h}, s[94:95]")
        a.label("L_nocpf")
    make_srd(a, sH, 18, H_BYTES, WS_H)
    make_srd(a, sF, 18, FLAG_BYTES, WS_FLAG)
    a(f"s_mul_i32 s{sSTEP}, s{sT0}, 40960")
    a(f"s_lshl_b32 s{sT1}, s{sT1}, 8")
    a(f"s_add_u32 s{sSTEP}, s{sSTEP}, s{sT1}")
    a(f"s_lshl_b32 s{sT3}, s{sWAVE}, 1")
    a(f"v_add_u32 v{TM+4}, s{sT3}, v{TM}")
    a(f"v_mul_u32_u24 v{TM+4}, {LN_ROW}, v{TM+4}")
    a(f"v_add_u32 v{TM+4}, v{TM+4}, v{TM+1}")
    a(f"v_add_u32 v{TM+4}, {LN_BASE}, v{TM+4}")
    a(f"s_mul_i32 s{sT3}, s{sWAVE}, 12")
    a(f"s_cmp_eq_u32 s{sWAVE}, 3")
    a(f"s_cselect_b32 s{sT3}, 32, s{sT3}")
    a(f"v_lshrrev_b32 v{TM+6}, 4, v{vLANE}")
    a(f"v_add_u32 v{TM+6}, s{sT3}, v{TM+6}")
    a(f"v_bfe_u32 v{TM+5}, v{vLANE}, 2, 2")
    a(f"v_mul_u32_u24 v{TM+5}, {LN_ROW}, v{TM+5}")
    a(f"v_lshlrev_b32 v{TM+7}, 5, v{TM+6}")
    a(f"v_add_u32 v{TM+5}, v{TM+5}, v{TM+7}")
    a(f"v_and_b32 v{TM+7}, 3, v{vLANE}")
    a(f"v_lshlrev_b32 v{TM+7}, 3, v{TM+7}")
    a(f"v_add_u32 v{TM+5}, v{TM+5}, v{TM+7}")
    a(f"v_add_u32 v{TM+5}, {LN_BASE}, v{TM+5}")
    a(f"v_lshlrev_b32 v{TM+6}, 10, v{TM+6}")
    a(f"v_and_b32 v{TM+7}, 15, v{vLANE}")
    a(f"v_lshlrev_b32 v{TM+7}, 4, v{TM+7}")
    a(f"v_add_u32 v{TM+6}, v{TM+6}, v{TM+7}")
    tr_addr(sM0B)
    a(f"s_mov_b32 s{sT0}, 0xffff0000")
    nc = 2 if opt.cpf else 0
    a(f"s_cmp_ge_u32 s{sJ}, s{sJLIM}")
    a("s_cbranch_scc1 L_ln_idle")
    a(f"s_cmp_eq_u32 s{sWAVE}, 3")
    a("s_cbranch_scc1 L_ln_w3")
    a(f"s_waitcnt vmcnt({4*opt.nearly})")
    a("s_branch L_ln_go")
    a.label("L_ln_w3")
    a(f"s_waitcnt vmcnt({4*opt.nearly + nc})")
    a("s_branch L_ln_go")
    a.label("L_ln_idle")
    a(f"s_cmp_eq_u32 s{sWAVE}, 3")
    a("s_cbranch_scc1 L_ln_idle3")
    a("s_waitcnt vmcnt(0)")
    a("s_branch L_ln_go")
    a.label("L_ln_idle3")
    a(f"s_waitcnt vmcnt({nc})")
    a.label("L_ln_go")
    stamp(a, opt, 1)
    nmid = [opt.nearly]
    def mid_step(tag):
        if nmid[0] < opt.nearly + opt.nmid:
            a(f"s_cmp_ge_u32 s{sJ}, s{sJLIM}")
            a(f"s_cbranch_scc1 L_mid_{tag}")
            w1_dma(nmid[0]); nmid[0] += 1
            a.label(f"L_mid_{tag}")
    mid_step("a")
    for i in range(10):
        a(f"v_lshlrev_b32 v{XF+2*i}, 16, v{XR+i}")
        a(f"v_and_b32 v{XF+2*i+1}, s{sT0}, v{XR+i}")
    SM = TM + 8
    a(f"v_pk_add_f32 {vr(SM,2)}, {vr(XF,2)}, {vr(XF+4,2)}")
    a(f"v_pk_add_f32 {vr(SM+2,2)}, {vr(XF+2,2)}, {vr(XF+6,2)}")
    for i in range(4, 10):
        k = i % 2
        a(f"v_pk_add_f32 {vr(SM+2*k,2)}, {vr(SM+2*k,2)}, {vr(XF+2*i,2)}")
    def reduce_row(dst):
        a(f"v_pk_add_f32 {vr(SM,2)}, {vr(SM,2)}, {vr(SM+2,2)}")
        a(f"v_add_f32 v{dst}, v{SM}, v{SM+1}")
        for rot in (8, 4, 2, 1):
            a("s_nop 1")
            a(f"v_add_f32_dpp v{dst}, v{dst}, v{dst} row_ror:{rot} row_mask:0xf bank_mask:0xf")
        a(f"v_mov_b32 v{SM}, v{dst}")
        a("s_nop 1")
        a(f"v_permlane16_swap_b32 v{dst}, v{SM}")
        a("s_nop 1")
        a(f"v_add_f32 v{dst}, v{dst}, v{SM}")
    MN = TM + 12
    reduce_row(MN)
    mid_step("b")
    a(f"v_mul_f32 v{MN}, {f2h(1.0/640.0)}, v{MN}")
    a(f"v_mov_b32 v{MN+1}, v{MN}")
    for i in range(10):
        a(f"v_pk_add_f32 {vr(XF+2*i,2)}, {vr(XF+2*i,2)}, {vr(MN,2)} neg_lo:[0,1] neg_hi:[0,1]")
    for k in range(2):
        a(f"v_pk_mul_f32 {vr(SM+2*k,2)}, {vr(XF+2*k,2)}, {vr(XF+2*k,2)}")
    for i in range(2, 10):
        k = i % 2
        a(f"v_pk_fma_f32 {vr(SM+2*k,2)}, {vr(XF+2*i,2)}, {vr(XF+2*i,2)}, {vr(SM+2*k,2)}")
    reduce_row(MN)
    mid_step("c")
    a(f"v_mov_b32 v{MN+1}, {f2h(1e-5)}")
    a(f"v_fmac_f32 v{MN+1}, {f2h(1.0/640.0)}, v{MN}")
    a(f"v_rsq_f32 v{MN}, v{MN+1}")
    a("s_nop 0")
    a(f"v_mov_b32 v{MN+1}, v{MN}")
    for i in range(10):
        a(f"v_pk_mul_f32 {vr(XF+2*i,2)}, {vr(XF+2*i,2)}, {vr(MN,2)}")
    for i in range(10):
        a(f"v_cvt_pk_bf16_f32 v{XR+i}, v{XF+2*i}, v{XF+2*i+1}")
    for i in range(5):
        a(f"ds_write_b64 v{TM+4}, {vr(XR+2*i,2)} offset:{i*256}")
    a("s_waitcnt lgkmcnt(0)")
    a("s_barrier")
    for i in range(2):
        a(f"ds_read_b64_tr_b16 {vr(XF+4*i,2)}, v{TM+5} offset:{i*128}")
        a(f"ds_read_b64_tr_b16 {vr(XF+4*i+2,2)}, v{TM+5} offset:{i*128+4*LN_ROW}")
    a(f"s_cmp_ge_u32 s{sWAVE}, 2")
    a("s_cbranch_scc1 L_ln_two")
    a(f"ds_read_b64_tr_b16 {vr(XF+8,2)}, v{TM+5} offset:{2*128}")
    a(f"ds_read_b64_tr_b16 {vr(XF+10,2)}, v{TM+5} offset:{2*128+4*LN_ROW}")
    a("s_waitcnt lgkmcnt(0)")
    a(f"s_add_u32 s{sT0}, s{sSTEP}, {2*4096}")
    a(f"buffer_store_dwordx4 {vr(XF+8,4)}, v{TM+6}, {srd(sH)}, s{sT0} offen {opt.hbits}")
    a.label("L_ln_two")
    a("s_waitcnt lgkmcnt(0)")
    for i in range(2):
        a(f"s_add_u32 s{sT0}, s{sSTEP}, {i*4096}")
        a(f"buffer_store_dwordx4 {vr(XF+4*i,4)}, v{TM+6}, {srd(sH)}, s{sT0} offen {opt.hbits}")
    a(f"buffer_load_dword v{vPOLL}, v{vT}, {srd(sD)}, 0 offen sc1")
    stamp(a, opt, 2)
    a(f"s_cmp_ge_u32 s{sJ}, s{sJLIM}")
    a("s_cbranch_scc1 L_ln_idle2")
    ne = opt.nearly + opt.nmid
    a.vm = [f"w1_{i}" for i in range(ne)]
    for i in range(ne, ne + opt.npost): w1_dma(i)
    a(f"s_waitcnt vmcnt({4*opt.npost})")
    a("s_branch L_ln_go2")
    a.label("L_ln_idle2")
    a("s_waitcnt vmcnt(0)")
    a.label("L_ln_go2")
    a(f"v_readfirstlane_b32 s{sNONCE}, v{vPOLL}")
    nonce_spin(a, opt)
    a("s_barrier")
    a(f"s_cmp_lg_u32 s{sWAVE}, 0")
    a("s_cbranch_scc1 L_noflag")
    a(f"s_lshl_b32 s{sT0}, s{sWG}, 2")
    keep = list(a.vm)
    flag_store(a, sT0)
    a.vm = keep
    a.label("L_noflag")
    stamp(a, opt, 3)
    a(f"s_cmp_ge_u32 s{sJ}, s{sJLIM}")
    a("s_cbranch_scc1 L_nogemm1")
    w1_finish = w1_stream(opt.nearly + opt.nmid + opt.npost, opt.dp, opt.hold1)

    def common_setup(retr=True):
        make_srd(a, sH, 18, H_BYTES, WS_H)
        make_srd(a, sF, 18, FLAG_BYTES, WS_FLAG)
        make_srd(a, sB1, 8, F * 2)
        make_srd(a, sW2, 10, F * S * 2)
        make_srd(a, sB2, 12, S * 2)
        make_srd(a, sO, 14, S * D * 2)
        make_srd(a, sG, 18, G_BYTES, WS_G)
        a(f"v_lshrrev_b32 v{vT}, 4, v{vLANE}")
        a(f"v_lshlrev_b32 v{vT}, 3, v{vT}")
        a(f"s_and_b32 s{sT0}, s{sWAVE}, 1")
        a(f"s_lshl_b32 s{sT0}, s{sT0}, 6")
        a(f"s_lshl_b32 s{sT1}, s{sFT}, 7")
        a(f"s_add_u32 s{sT0}, s{sT0}, s{sT1}")
        a.vmem(f"buffer_load_dwordx2 {vr(vB1,2)}, v{vT}, {srd(sB1)}, s{sT0} offen", "b")
        a.vmem(f"buffer_load_dwordx2 {vr(vB1+2,2)}, v{vT}, {srd(sB1)}, s{sT0} offen offset:32", "b")
        a(f"v_and_b32 v{vT}, 15, v{vLANE}")
        a(f"v_lshlrev_b32 v{vT}, 1, v{vT}")
        a(f"s_lshl_b32 s{sT0}, s{sST}, 7")
        a(f"s_lshl_b32 s{sT1}, s{sWAVE}, 5")
        a(f"s_add_u32 s{sT0}, s{sT0}, s{sT1}")
        a.vmem(f"buffer_load_ushort v{vB2}, v{vT}, {srd(sB2)}, s{sT0} offen", "b")
        dma_addr(a, S * 2, sST)
        a(f"s_mul_i32 s{sWB}, s{sWAVE}, {448*S*2}")
        if retr: tr_addr(sM0B)
        a(f"s_sub_u32 s{sT0}, s{sUP}, s{sM0B}")
        for t in range(4):
            a(f"v_add_u32 v{vTRU+t}, s{sT0}, v{vTR+t}")
        a(f"v_lshlrev_b32 v{vL0}, 4, v{vLANE}")
        a(f"v_add_u32 v{vL1}, 65536, v{vL0}")
        a(f"v_add_u32 v{vL2}, 131072, v{vL0}")

    a.label("L_w1_ready")
    stamp(a, opt, 4)
    vm_keep = list(a.vm)
    common_setup(retr=False)
    a(f"s_mul_i32 s{sT0}, s{sDT1}, 5120")
    a(f"v_add_u32 v{vA}, s{sT0}, v{vL0}")
    a(f"v_add_u32 v{vA2}, 4096, v{vA}")
    a(f"s_cmp_lg_u32 s{sWAVE}, {opt.pollw}")
    a("s_cbranch_scc1 L_hpolled")
    poll(a, opt, vL0, 4, None, opt.sleeph, opt.preh, 1)
    a.label("L_hpolled")
    a.vm = vm_keep + ["b", "b", "b"]
    a("s_barrier")
    stamp(a, opt, 5)

    def a_loads(srdn, step, nsteps, s_rot):
        slot = step % NS
        step_off(a, sOFF, sSTEP, s_rot, step, nsteps, 40960)
        return [f"buffer_load_dwordx4 {vr(ring(slot,t),4)}, v{vA if t < 4 else vA2}, {srd(srdn)}, s{sOFF} offen offset:{(t*1024) if t < 4 else 0} sc1" for t in range(5)]

    def main_loop(srdn, nsteps, s_rot, tagp, mfma, stamp0, tail, nuni, pre=None):
        for st in range(opt.depth):
            for o, ins in enumerate(a_loads(srdn, st, nsteps, s_rot)): a.vmem(ins, f"{tagp}{st}_{o}")
        if pre: pre()
        for st in range(nuni):
            nx = st + opt.depth
            nxt = a_loads(srdn, nx, nsteps, s_rot) if nx < nsteps else None
            a.wait_vm(f"{tagp}{st}_4")
            if st == 0 and stamp0 is not None: stamp(a, opt, stamp0)
            for o in range(5):
                if nxt: a.vmem(nxt[o], f"{tagp}{nx}_{o}")
                for i in range(4): mfma(st, o, i, st % NS)
                if tail: tail(st, o)

    def tile_tail(nsteps, tagp, first, last, frag_of, mfma_tile, write_tile, extra):
        ic = [0]
        done_at = {}
        queue = []
        extra = list(extra)
        def emit(fn):
            fn(); ic[0] += 1
        def filler():
            if queue and ic[0] - done_at[queue[0]] >= 9:
                t = queue.pop(0); emit(lambda: write_tile(t)); return
            if extra: emit(extra.pop(0))
        tiles = list(first) + list(last)
        for i in range(0, len(tiles), 2):
            pair = tiles[i:i + 2]
            for t in pair:
                for st in (nsteps - 2, nsteps - 1): a.wait_vm(f"{tagp}{st}_{frag_of(t)}")
            for st in (nsteps - 2, nsteps - 1):
                for t in pair:
                    emit(lambda: mfma_tile(st, t))
                    if st == nsteps - 1:
                        done_at[t] = ic[0]
                        if t in first: queue.append(t)
                    filler()
        while extra: emit(extra.pop(0))
        while queue:
            while ic[0] - done_at[queue[0]] < 9: emit(lambda: a("s_nop 0"))
            t = queue.pop(0); emit(lambda: write_tile(t))

    a(f"s_mul_i32 s{sSTEP}, s{sWAVE}, {16*40960}")
    def mfma1(st, nt, mt, slot):
        c = "0" if st == 0 else vr(acc1(mt, nt), 4)
        a(f"v_mfma_f32_16x16x32_bf16 {vr(acc1(mt,nt),4)}, {ar(wfrag(st,mt),4)}, {vr(ring(slot,nt),4)}, {c}")
    parts13 = w2_dma_parts(a, 0) if opt.t13 else []
    def tail1(st, o):
        if st == 13 and parts13:
            if o == 0: parts13[0]()
            else: parts13[o]()
    main_loop(sH, 16, sROT1, "h", mfma1, 6, tail1, 14, w1_finish if opt.hold1 else None)

    a(f"s_mov_b32 s100, {f2h(C1)}"); a(f"s_mov_b32 s101, {f2h(C1)}")
    a(f"v_mov_b32 v{vC0}, {f2h(C0)}"); a(f"v_mov_b32 v{vC0+1}, {f2h(C0)}")
    def lds_ref(addr):
        if addr < 65536: return vL0, addr
        if addr < 131072: return vL1, addr - 65536
        return vL2, addr - 131072
    def owner1(p, nt): return p + (0 if nt < 3 else 2)
    units = [(p, nt) for p in range(2) for nt in range(5)]
    def red1_addr(src, u):
        k = [x for x in units if owner1(*x) != src].index(u)
        return src * 32768 + 24576 + k * 2048 if k < 4 else 131072 + src * 8192 + (k - 4) * 2048
    saved_vm = list(a.vm)
    for w in range(4):
        if w < 3:
            a(f"s_cmp_lg_u32 s{sWAVE}, {w}")
            a(f"s_cbranch_scc1 L_ep1_{w+1}")
        a.vm = list(saved_vm)
        nis = [1 if opt.t13 else 0]
        def more(n, limit):
            for _ in range(n):
                if nis[0] < limit:
                    w2_dma(a, nis[0]); nis[0] += 1
        tl = [(2 * p + hf, nt) for nt in range(5) for p in range(2) for hf in range(2)]
        first = [t for t in tl if owner1(t[0] // 2, t[1]) != w]
        last = [t for t in tl if owner1(t[0] // 2, t[1]) == w]
        def wr1(t):
            vb, off = lds_ref(red1_addr(w, (t[0] // 2, t[1])) + (t[0] & 1) * 1024)
            a(f"ds_write_b128 v{vb}, {vr(acc1(*t),4)} offset:{off}")
        extra = []
        for _ in range(opt.tt):
            extra += w2_dma_parts(a, nis[0]); nis[0] += 1
        tile_tail(16, "h", first, last, lambda t: t[1], lambda st, t: mfma1(st, t[1], t[0], st % NS), wr1, extra)
        stamp(a, opt, 7)
        more(opt.e1, 6)
        a("s_waitcnt lgkmcnt(0)")
        a("s_barrier")
        own_u = [u for u in units if owner1(*u) == w]
        RT = vRING
        n = 0
        for u in own_u:
            for src in range(4):
                if src == w: continue
                for hf in range(2):
                    vb, off = lds_ref(red1_addr(src, u) + hf * 1024)
                    a(f"ds_read_b128 {vr(RT + n*4, 4)}, v{vb} offset:{off}")
                    n += 1
        a.wait_vm("b")
        for i in range(4):
            a(f"v_lshlrev_b32 v{BI+2*i}, 16, v{vB1+i}")
            a(f"v_and_b32 v{BI+2*i+1}, 0xffff0000, v{vB1+i}")
        for u in own_u:
            p, nt = u
            for hf in range(2):
                r = acc1(2*p+hf, nt)
                a(f"v_pk_add_f32 {vr(r,2)}, {vr(r,2)}, {vr(BI+4*hf,2)}")
                a(f"v_pk_add_f32 {vr(r+2,2)}, {vr(r+2,2)}, {vr(BI+4*hf+2,2)}")
        n = 0
        tot = len(own_u) * 6
        for u in own_u:
            p, nt = u
            for si in range(3):
                for hf in range(2):
                    a(f"s_waitcnt lgkmcnt({min(15, tot - n - 1)})")
                    r = acc1(2*p+hf, nt)
                    a(f"v_pk_add_f32 {vr(r,2)}, {vr(r,2)}, {vr(RT+n*4,2)}")
                    a(f"v_pk_add_f32 {vr(r+2,2)}, {vr(r+2,2)}, {vr(RT+n*4+2,2)}")
                    n += 1
        a("s_barrier")
        regs = []
        for u in own_u:
            p, nt = u
            for hf in range(2):
                r = acc1(2*p+hf, nt)
                regs += [r, r + 2]
        more(opt.e2, 10)
        gelu_pairs(a, regs, RT, fill=lambda: more(opt.e3, 10))
        a(f"s_lshl_b32 s{sT0}, s{sFT}, 1")
        a(f"s_add_u32 s{sT0}, s{sT0}, {w & 1}")
        a(f"s_mul_i32 s{sT0}, s{sT0}, 40960")
        a(f"s_mul_i32 s{sT1}, s{sDT1}, 5120")
        a(f"s_add_u32 s{sT0}, s{sT0}, s{sT1}")
        for i, u in enumerate(own_u):
            p, nt = u
            o = RT + 64 + 4 * i
            r0, r1 = acc1(2*p, nt), acc1(2*p+1, nt)
            a(f"v_cvt_pk_bf16_f32 v{o}, v{r0}, v{r0+1}")
            a(f"v_cvt_pk_bf16_f32 v{o+1}, v{r0+2}, v{r0+3}")
            a(f"v_cvt_pk_bf16_f32 v{o+2}, v{r1}, v{r1+1}")
            a(f"v_cvt_pk_bf16_f32 v{o+3}, v{r1+2}, v{r1+3}")
            a(f"s_add_u32 s{sT1}, s{sT0}, {nt*1024}")
            a.vmem(f"buffer_store_dwordx4 {vr(o,4)}, v{vL0}, {srd(sG)}, s{sT1} offen sc1", "g")
        stamp(a, opt, 8)
        more(opt.nb, 10)
        a.wait_vm("w2_3")
        if nis[0] >= 4:
            for st in range(4):
                w2_tr(a, st)
                if st % 2 == 1: a("s_waitcnt lgkmcnt(0)")
        if nis[0] == 10 and opt.nb2:
            for st in range(10, 10 + opt.nb2): w2_dma(a, st)
            nis[0] += opt.nb2
        a.wait_vm("g")
        a(f"s_lshl_b32 s{sT0}, s{sDT1}, 5")
        a(f"s_add_u32 s{sT0}, s{sT0}, s{sFT}")
        a(f"s_mul_i32 s{sT0}, s{sT0}, {opt.gstride}")
        a(f"s_add_u32 s{sT0}, s{sT0}, {FLAG_G + 4*w}")
        flag_store(a, sT0)
        stamp(a, opt, 9)
        assert nis[0] >= 4
        more(10, 10)
        more(4, 14)
        for st in range(4, 10):
            a.wait_vm(f"w2_{st}")
            w2_tr(a, st)
            if st % 2 == 1: a("s_waitcnt lgkmcnt(0)")
        a("s_branch L_pre2")
        if w < 3: a.label(f"L_ep1_{w+1}")

    a.label("L_nogemm1")
    a.vm = []
    common_setup()
    if False:
        a(f"s_lshl_b32 s{sT0}, s{sWAVE}, 6")
        a(f"v_add_u32 v{vX}, s{sT0}, v{vLANE}")
        a(f"v_mul_u32_u24 v{vX}, {opt.hstride}, v{vX}")
        poll(a, opt, vX, 2, None)
        if opt.idlewait > 1:
            a(f"s_sleep {opt.idlewait}")
    if opt.pf == 3:
        a(f"s_lshl_b32 s{sT0}, s{sIDLE}, 2")
        a(f"s_add_u32 s{sT0}, s{sT0}, s{sWAVE}")
        a(f"s_lshl_b32 s{sT0}, s{sT0}, 10")
        for k in range(44):
            o = vRING + (k % 16) * 4
            a.vmem(f"buffer_load_dwordx4 {vr(o,4)}, v{vL0}, {srd(sW2)}, s{sT0} offen {opt.pfbits}", f"pf{k}")
            a(f"s_add_u32 s{sT0}, s{sT0}, {160*1024}")
            if k >= opt.pfdepth: a.wait_vm(f"pf{k-opt.pfdepth}")
        a.wait_vm0()
    if opt.pf == 2:
        assert opt.p1 == 2 and opt.p2 == 1
        a(f"s_cmp_lt_u32 s{sJ}, 28")
        a("s_cbranch_scc1 L_nopf")
        a(f"s_sub_u32 s{sT0}, s{sJ}, 28")
        a(f"s_lshl_b32 s{sT0}, s{sT0}, 2")
        a(f"s_add_u32 s{sT0}, s{sT0}, s{sWAVE}")
        a(f"s_lshl_b32 s{sT0}, s{sT0}, 13")
        a(f"s_lshl_b32 s{sT1}, s{sXCD}, 9")
        a(f"s_add_u32 s{sT0}, s{sT0}, s{sT1}")
        a(f"v_lshrrev_b32 v{vX}, 5, v{vLANE}")
        a(f"v_lshlrev_b32 v{vX}, 12, v{vX}")
        a(f"v_and_b32 v{vX+1}, 31, v{vLANE}")
        a(f"v_lshlrev_b32 v{vX+1}, 4, v{vX+1}")
        a(f"v_add_u32 v{vX}, v{vX}, v{vX+1}")
        keep = list(a.vm)
        for k in range(54):
            o = vRING + (k % 16) * 4
            a.vmem(f"buffer_load_dwordx4 {vr(o,4)}, v{vX}, {srd(sW2)}, s{sT0} offen", f"pf{k}")
            a(f"s_add_u32 s{sT0}, s{sT0}, {16*8192}")
            if k >= opt.pfdepth: a.wait_vm(f"pf{k-opt.pfdepth}")
        a.wait_vm0()
        a.label("L_nopf")
        a.vm = keep
    for st in range(10): w2_dma(a, st)
    for st in range(4):
        a.wait_vm(f"w2_{st}")
        w2_tr(a, st)
        if st % 2 == 1: a("s_waitcnt lgkmcnt(0)")
    for st in range(10, 14): w2_dma(a, st)
    for st in range(4, 10):
        a.wait_vm(f"w2_{st}")
        w2_tr(a, st)
        if st % 2 == 1: a("s_waitcnt lgkmcnt(0)")

    a.label("L_pre2")
    a(f"s_mul_i32 s{sT0}, s{sDT2}, 5120")
    a(f"v_add_u32 v{vA}, s{sT0}, v{vL0}")
    a(f"v_add_u32 v{vA2}, 4096, v{vA}")
    def w2_finish():
        a.wait_vm("w2all")
        a("s_waitcnt lgkmcnt(0)")
        for st in range(10, 14):
            w2_tr(a, st)
            if st % 2 == 1: a("s_waitcnt lgkmcnt(0)")
    if not opt.hold2:
        a.vm = ["w2all"]
        w2_finish()
    stamp(a, opt, 10)
    if opt.onepoll & 2:
        a(f"s_cmp_lg_u32 s{sWAVE}, {opt.pollw}")
        a("s_cbranch_scc1 L_gpolled")
        a(f"s_lshl_b32 s{sT0}, s{sDT2}, 5")
        a(f"s_mul_i32 s{sT0}, s{sT0}, {opt.gstride}")
        a(f"s_add_u32 s{sT0}, s{sT0}, {FLAG_G}")
        a(f"v_mul_u32_u24 v{vX}, {opt.gstride}, v{vLANE}")
        a(f"v_add_u32 v{vX}, s{sT0}, v{vX}")
        a(f"s_mov_b32 s{sP+2}, 0x7ffffff")
        a(f"s_mov_b32 s{sP+3}, 0")
        poll(a, opt, vX, 4, sP + 2, opt.sleep, opt.preg)
        a.label("L_gpolled")
        a("s_barrier")
    else:
        a(f"s_lshl_b32 s{sT0}, s{sDT2}, 5")
        a(f"s_mul_i32 s{sT1}, s{sWAVE}, 7")
        a(f"s_add_u32 s{sT0}, s{sT0}, s{sT1}")
        a(f"s_mul_i32 s{sT0}, s{sT0}, {opt.gstride}")
        a(f"s_add_u32 s{sT0}, s{sT0}, {FLAG_G}")
        a(f"v_mul_u32_u24 v{vX}, {opt.gstride}, v{vLANE}")
        a(f"v_add_u32 v{vX}, s{sT0}, v{vX}")
        a(f"s_cmp_eq_u32 s{sWAVE}, 3")
        a(f"s_cselect_b32 s{sP+2}, 0x3f, 0x7f")
        a(f"s_mov_b32 s{sP+3}, 0")
        poll(a, opt, vX, 4, sP + 2, opt.sleep, opt.preg)
    a.vm = ["w2all"] if opt.hold2 else []
    stamp(a, opt, 11)
    a(f"s_mul_i32 s{sSTEP}, s{sWAVE}, {14*40960}")
    def mfma2(st, mt, nt, slot):
        c = "0" if st == 0 else vr(acc2(mt, nt), 4)
        a(f"v_mfma_f32_16x16x32_bf16 {vr(acc2(mt,nt),4)}, {vr(ring(slot,mt),4)}, {ar(wfrag(st,nt),4)}, {c}")
    main_loop(sG, 14, sROT2, "g", mfma2, 12, None, 12, w2_finish if opt.hold2 else None)
    saved_vm2 = list(a.vm)
    a(f"v_and_b32 v{vT}, 15, v{vLANE}")
    a(f"s_lshl_b32 s{sT0}, s{sWAVE}, 4")
    a(f"v_add_u32 v{vT}, s{sT0}, v{vT}")
    a(f"v_mul_u32_u24 v{vA}, 1280, v{vT}")
    a(f"v_lshrrev_b32 v{vT}, 4, v{vLANE}")
    a(f"v_lshlrev_b32 v{vT}, 3, v{vT}")
    a(f"v_add_u32 v{vA}, v{vA}, v{vT}")
    a(f"s_mul_i32 s{sT0}, s{sST}, {64*1280}")
    a(f"s_mul_i32 s{sT1}, s{sDT2}, 160")
    a(f"s_add_u32 s{sOFF}, s{sT0}, s{sT1}")
    a(f"v_lshlrev_b32 v{vC0}, 16, v{vB2}")
    a(f"v_lshlrev_b32 v{vC0+1}, 16, v{vB2}")
    a(f"v_sub_u32 v{vA2}, v{vA}, v{vT}")
    a(f"v_bfe_u32 v{vT}, v{vLANE}, 4, 1")
    a(f"v_lshlrev_b32 v{vT}, 5, v{vT}")
    a(f"v_add_u32 v{vA2}, v{vA2}, v{vT}")
    a(f"v_bfe_u32 v{vT}, v{vLANE}, 5, 1")
    a(f"v_lshlrev_b32 v{vT}, 4, v{vT}")
    a(f"v_add_u32 v{vA2}, v{vA2}, v{vT}")
    def red2_addr(src, nt, mt):
        k = [x for x in range(4) if x != src].index(nt)
        return src * 32768 + (k * 5 + mt) * 1024
    for w in range(4):
        if w < 3:
            a(f"s_cmp_lg_u32 s{sWAVE}, {w}")
            a(f"s_cbranch_scc1 L_ep2_{w+1}")
        a.vm = list(saved_vm2)
        tl = [(mt, nt) for mt in range(5) for nt in range(4)]
        def wr2(t):
            vb, off = lds_ref(red2_addr(w, t[1], t[0]))
            a(f"ds_write_b128 v{vb}, {vr(acc2(*t),4)} offset:{off}")
        tile_tail(14, "g", [t for t in tl if t[1] != w], [t for t in tl if t[1] == w], lambda t: t[0],
                  lambda st, t: mfma2(st, t[0], t[1], st % NS), wr2, [])
        stamp(a, opt, 13)
        a("s_waitcnt lgkmcnt(0)")
        a("s_barrier")
        RT = vRING
        n = 0
        for mt in range(5):
            for src in range(4):
                if src == w: continue
                vb, off = lds_ref(red2_addr(src, w, mt))
                a(f"ds_read_b128 {vr(RT+n*4,4)}, v{vb} offset:{off}")
                n += 1
        n = 0
        for mt in range(5):
            r = acc2(mt, w)
            for si in range(3):
                a(f"s_waitcnt lgkmcnt({14 - n})")
                a(f"v_pk_add_f32 {vr(r,2)}, {vr(r,2)}, {vr(RT+n*4,2)}")
                a(f"v_pk_add_f32 {vr(r+2,2)}, {vr(r+2,2)}, {vr(RT+n*4+2,2)}")
                n += 1
            a(f"v_pk_add_f32 {vr(r,2)}, {vr(r,2)}, {vr(vC0,2)}")
            a(f"v_pk_add_f32 {vr(r+2,2)}, {vr(r+2,2)}, {vr(vC0,2)}")
            o = RT + 64 + 2 * mt
            a(f"v_cvt_pk_bf16_f32 v{o}, v{r}, v{r+1}")
            a(f"v_cvt_pk_bf16_f32 v{o+1}, v{r+2}, v{r+3}")
            if not opt.wide or mt == 4:
                a(f"buffer_store_dwordx2 {vr(o,2)}, v{vA}, {srd(sO)}, s{sOFF} offen offset:{mt*32} {opt.obits}")
            elif mt % 2 == 1:
                a("s_nop 1")
                a(f"v_permlane16_swap_b32 v{o-2}, v{o}")
                a(f"v_permlane16_swap_b32 v{o-1}, v{o+1}")
                a(f"buffer_store_dwordx4 {vr(o-2,4)}, v{vA2}, {srd(sO)}, s{sOFF} offen offset:{(mt-1)*32} {opt.obits}")
        a("s_branch L_fin")
        if w < 3: a.label(f"L_ep2_{w+1}")
    a.label("L_fin")
    if opt.probe >= 0:
        if opt.probe == 14:
            a("s_waitcnt vmcnt(0)")
            stamp(a, opt, 14)
        a(f"s_cmp_lg_u32 s{sWG}, {opt.probewg}")
        a("s_cbranch_scc1 L_done")
        a(f"s_cmp_lg_u32 s{sWAVE}, {opt.probew}")
        a("s_cbranch_scc1 L_done")
        ref = sNONCE if opt.probeabs else (sPROF + 2 if opt.probe0 >= 0 else 96)
        a(f"s_sub_u32 s{sT1}, s{sPROF+1}, s{ref}")
        if opt.probecyc: a(f"s_lshr_b32 s{sT1}, s{sT1}, 2")
        else: a(f"s_lshl_b32 s{sT1}, s{sT1}, 2")
        a(f"s_add_u32 s{sT1}, s{sT1}, 4000")
        a.label("L_probe")
        a(f"s_memrealtime s[{sP}:{sP+1}]")
        a("s_waitcnt lgkmcnt(0)")
        a(f"s_sub_u32 s{sT0}, s{sP}, s96")
        a(f"s_cmp_lt_u32 s{sT0}, s{sT1}")
        a("s_cbranch_scc1 L_probe")
    if opt.pad:
        a.label("L_pad")
        a(f"s_memrealtime s[{sP}:{sP+1}]")
        a("s_waitcnt lgkmcnt(0)")
        a(f"s_sub_u32 s{sT0}, s{sP}, s96")
        a(f"s_cmp_lt_u32 s{sT0}, {opt.pad}")
        a("s_cbranch_scc1 L_pad")
    if opt.prof:
        a("s_waitcnt vmcnt(0)")
        stamp(a, opt, 14)
        make_srd(a, sX, 18, 65536, WS_PROF)
        a(f"s_lshl_b32 s{sT0}, s{sWG}, 2")
        a(f"s_add_u32 s{sT0}, s{sT0}, s{sWAVE}")
        a(f"s_lshl_b32 s{sT0}, s{sT0}, 6")
        a(f"v_mov_b32 v{vT}, s{sT0}")
        a("s_mov_b64 exec, 1")
        for i in range(15):
            a(f"v_mov_b32 v100, s{sPROF+i}")
            a(f"buffer_store_dword v100, v{vT}, {srd(sX)}, 0 offen offset:{4*i}")
            a("s_nop 1")
        a("s_waitcnt vmcnt(0)")
    a.label("L_done")
    a("s_endpgm")
    a.label("L_codeend")
    a.raw('.section .rodata,"a"')
    a.raw(".p2align 6")
    a.raw(f".amdhsa_kernel {KN}")
    for l in ["next_free_vgpr 512", "next_free_sgpr 102", "accum_offset 256", "group_segment_fixed_size 0",
              "kernarg_size 64", "user_sgpr_count 2", "user_sgpr_kernarg_segment_ptr 1",
              "system_sgpr_workgroup_id_x 1", "float_denorm_mode_32 3"]:
        a.raw(f"  .amdhsa_{l}")
    a.raw(".end_amdhsa_kernel")
    return "\n".join(a.L) + "\n"

def parse(argv=None):
    ap = argparse.ArgumentParser()
    ap.add_argument("-o", default="standalone__mixer_token_mlp__prompt.s")
    ap.add_argument("--prof", type=int, default=0)
    ap.add_argument("--rot", type=int, default=3)
    ap.add_argument("--spin", type=int, default=20000)
    ap.add_argument("--sleep", type=int, default=8)
    ap.add_argument("--depth", type=int, default=3)
    ap.add_argument("--lnprof", type=int, default=0)
    ap.add_argument("--hbits", default="sc1")
    ap.add_argument("--pfwait", type=int, default=1)
    ap.add_argument("--hold", type=int, default=0)
    ap.add_argument("--probe", type=int, default=-1)
    ap.add_argument("--probe0", type=int, default=-1)
    ap.add_argument("--probecyc", type=int, default=0)
    ap.add_argument("--probeabs", type=int, default=0)
    ap.add_argument("--probewg", type=int, default=100)
    ap.add_argument("--probew", type=int, default=2)
    ap.add_argument("--rot8", type=int, default=1)
    ap.add_argument("--cpf", type=int, default=1)
    ap.add_argument("--cpfw", type=int, default=3)
    ap.add_argument("--wide", type=int, default=1)
    ap.add_argument("--idlewait", type=int, default=0)
    ap.add_argument("--sleeph", type=int, default=8)
    ap.add_argument("--preh", type=int, default=0)
    ap.add_argument("--preg", type=int, default=0)
    ap.add_argument("--onepoll", type=int, default=3)
    ap.add_argument("--pollw", type=int, default=3)
    ap.add_argument("--nta", type=int, default=0)
    ap.add_argument("--rotg1", type=int, default=0)
    ap.add_argument("--rotg2", type=int, default=0)
    ap.add_argument("--npost", type=int, default=3)
    ap.add_argument("--xbar", type=int, default=1)
    ap.add_argument("--hold1", type=int, default=4)
    ap.add_argument("--hold2", type=int, default=1)
    ap.add_argument("--nmid", type=int, default=0)
    ap.add_argument("--t13", type=int, default=1)
    ap.add_argument("--tt", type=int, default=2)
    ap.add_argument("--e2", type=int, default=0)
    ap.add_argument("--e3", type=int, default=0)
    ap.add_argument("--nb2", type=int, default=0)
    ap.add_argument("--e1", type=int, default=1)
    ap.add_argument("--nb", type=int, default=2)
    ap.add_argument("--nearly", type=int, default=2)
    ap.add_argument("--dpl", type=int, default=5)
    ap.add_argument("--dp", type=int, default=4)
    ap.add_argument("--p1", type=int, default=1)
    ap.add_argument("--p2", type=int, default=1)
    ap.add_argument("--rota1", type=int, default=0)
    ap.add_argument("--rota2", type=int, default=0)
    ap.add_argument("--xbits", default="nt")
    ap.add_argument("--w1bits", default="")
    ap.add_argument("--w2bits", default="")
    ap.add_argument("--pfbits", default="")
    ap.add_argument("--pfdepth", type=int, default=8)
    ap.add_argument("--prio", type=int, default=3)
    ap.add_argument("--delay", type=int, default=0)
    ap.add_argument("--hstride", type=int, default=8)
    ap.add_argument("--gstride", type=int, default=256)
    ap.add_argument("--pf", type=int, default=0)
    ap.add_argument("--pad", type=int, default=0)
    ap.add_argument("--obits", default="sc1")
    return ap.parse_args(argv)

if __name__ == "__main__":
    opt = parse()
    open(opt.o, "w").write(gen(opt))
```

```python
import argparse, struct

S, D, F = 2048, 640, 1728
KN = "standalone__mixer_token_mlp__prompt_kernel"

WS_H = 0
H_BYTES = 64 * 40 * 1024
WS_G = 0x300000
G_BYTES = 54 * 40 * 1024
WS_FLAG = 0x600000
FLAG_H = 0
FLAG_G = 0x10000
FLAG_BYTES = 0x40000
WS_PROF = 0x700000

LDS_BYTES = 163840
LN_BASE = 131072
LN_ROW = 1344
LF_BASE = 141824
P0_BASE = [0, 49152, 98304, 122880]

sWG = 2
sX, sW1, sW2, sH, sG, sO, sF, sB1, sB2, sD = 20, 24, 28, 32, 36, 40, 44, 48, 52, 56
sWAVE, sXCD, sJ, sFT, sDT1, sST, sDT2, sNONCE = 60, 61, 62, 63, 64, 65, 66, 67
sT0, sT1, sT2, sT3, sT4, sT5 = 68, 69, 70, 71, 72, 73
sROT1, sROT2, sSTEP, sOFF = 74, 75, 76, 77
sM0B, sSPIN = 78, 79
sP = 80
sPROF = 84
sUP = 99
sJLIM, sIDLE = 100, 101
sWB = 3

vTID, vLANE = 0, 1
vTR = 2
vA, vA2, vDMA, vT2 = 6, 7, 8, 9
vB1 = 10
vB2, vT = 14, 15
vACC = 16
vRING = 96
vTRU = 176
vL0, vL1, vL2 = 180, 181, 182
vC0 = 184
BI = 186
vPOLL = 194
vX = 196
vPQ = 208
vDM = 200

def srd(n): return f"s[{n}:{n+3}]"
def vr(n, c=1): return f"v{n}" if c == 1 else f"v[{n}:{n+c-1}]"
def ar(n, c=1): return f"a{n}" if c == 1 else f"a[{n}:{n+c-1}]"
def f2h(x): return "0x%08x" % struct.unpack("<I", struct.pack("<f", x))[0]
C0 = -2.0 * 0.7978845608028654 * 1.4426950408889634
C1 = C0 * 0.044715

class Asm:
    def __init__(self):
        self.L = []; self.vm = []; self.uid = 0
    def __call__(self, s): self.L.append("    " + s)
    def label(self, s): self.L.append(s + ":")
    def raw(self, s): self.L.append(s)
    def c(self, s): self.L.append("    ; " + s)
    def vmem(self, s, tag):
        self(s); self.vm.append(tag)
    def wait_vm(self, tag):
        hits = [i for i, t in enumerate(self.vm) if t == tag]
        if not hits: return
        n = len(self.vm) - 1 - hits[-1]
        self(f"s_waitcnt vmcnt({min(n, 63)})")
        self.vm = self.vm[hits[-1] + 1:]
    def wait_vm0(self):
        self("s_waitcnt vmcnt(0)"); self.vm = []
    def newlabel(self, p):
        self.uid += 1
        return f"L_{p}_{self.uid}"

def acc1(mt, nt): return vACC + (mt * 5 + nt) * 4
def acc2(mt, nt): return vACC + (mt * 4 + nt) * 4
def wfrag(step, t): return step * 16 + t * 4

def stamp(a, opt, idx, force=False):
    if opt.probe >= 0:
        ins = "s_memtime" if opt.probecyc else "s_memrealtime"
        if idx == opt.probe:
            a(f"{ins} s[{sP}:{sP+1}]")
            a("s_waitcnt lgkmcnt(0)")
            a(f"s_mov_b32 s{sPROF+1}, s{sP}")
        if idx == opt.probe0:
            a(f"{ins} s[{sP}:{sP+1}]")
            a("s_waitcnt lgkmcnt(0)")
            a(f"s_mov_b32 s{sPROF+2}, s{sP}")
        return
    if opt.prof == 4 and idx != 14: return
    if opt.lnprof and idx in (4, 5) and getattr(a, "ln_done", False): return
    if opt.prof:
        a(f"s_mem{'time' if opt.prof == 2 else 'realtime'} s[{sP}:{sP+1}]")
        a("s_waitcnt lgkmcnt(0)")
        a(f"s_mov_b32 s{sPROF+idx}, s{sP}")

def make_srd(a, n, lo, size, add=0):
    if add:
        a(f"s_add_u32 s{n}, s{lo}, {add}")
        a(f"s_addc_u32 s{n+1}, s{lo+1}, 0")
        a(f"s_and_b32 s{n+1}, s{n+1}, 0xffff")
    else:
        a(f"s_mov_b32 s{n}, s{lo}")
        a(f"s_and_b32 s{n+1}, s{lo+1}, 0xffff")
    a(f"s_mov_b32 s{n+2}, {size}")
    a(f"s_mov_b32 s{n+3}, 0x20000")

def nonce_spin(a, opt):
    lp = a.newlabel("nonce"); dn = a.newlabel("nonced")
    a(f"s_cmp_lg_u32 s{sNONCE}, 0")
    a(f"s_cbranch_scc1 {dn}")
    a(f"s_mov_b32 s{sSPIN}, 0")
    a(f"v_mov_b32 v{vT}, 0")
    a.label(lp)
    a(f"buffer_load_dword v{vT2}, v{vT}, {srd(sD)}, 0 offen sc1")
    a("s_waitcnt vmcnt(0)")
    a(f"v_readfirstlane_b32 s{sNONCE}, v{vT2}")
    a(f"s_add_u32 s{sSPIN}, s{sSPIN}, 1")
    a(f"s_cmp_lg_u32 s{sNONCE}, 0")
    a(f"s_cbranch_scc1 {dn}")
    a(f"s_cmp_lt_u32 s{sSPIN}, {opt.spin}")
    a(f"s_cbranch_scc1 {lp}")
    a.label(dn)

def lds_set(a, addr_sgpr_or_imm):
    a(f"v_mov_b32 v{vT}, {addr_sgpr_or_imm}")
    a(f"v_mov_b32 v{vT2}, 1")
    a(f"s_mov_b64 s[{sP}:{sP+1}], exec")
    a("s_mov_b64 exec, 1")
    a(f"ds_write_b32 v{vT}, v{vT2}")
    a(f"s_mov_b64 exec, s[{sP}:{sP+1}]")

def lds_spin(a, opt, addr):
    lp = a.newlabel("lspin"); dn = a.newlabel("lspun")
    a(f"v_mov_b32 v{vT}, {addr}")
    a(f"s_mov_b32 s{sSPIN}, 0")
    a.label(lp)
    a(f"ds_read_b32 v{vT2}, v{vT}")
    a("s_waitcnt lgkmcnt(0)")
    a(f"v_readfirstlane_b32 s{sP}, v{vT2}")
    a(f"s_add_u32 s{sSPIN}, s{sSPIN}, 1")
    a(f"s_cmp_lg_u32 s{sP}, 0")
    a(f"s_cbranch_scc1 {dn}")
    a(f"s_cmp_lt_u32 s{sSPIN}, {opt.spin * 8}")
    a(f"s_cbranch_scc1 {lp}")
    a.label(dn)

def dma_addr(a, stride, s_tile):
    a(f"v_lshrrev_b32 v{vT}, 3, v{vLANE}")
    a(f"v_lshrrev_b32 v{vT2}, 1, v{vT}")
    a(f"v_lshlrev_b32 v{vT2}, 1, v{vT2}")
    a(f"v_and_b32 v{vDM}, 7, v{vLANE}")
    a(f"v_xor_b32 v{vDM}, v{vDM}, v{vT2}")
    a(f"v_lshlrev_b32 v{vDM}, 4, v{vDM}")
    a(f"v_mul_u32_u24 v{vT}, {stride}, v{vT}")
    a(f"v_add_u32 v{vDM}, v{vDM}, v{vT}")
    a(f"s_lshl_b32 s{sT0}, s{s_tile}, 7")
    a(f"v_add_u32 v{vDM}, s{sT0}, v{vDM}")
    for b in range(1, 4):
        a(f"v_add_u32 v{vDM+b}, {b*(8*stride-1024)}, v{vDM}")

def step_off(a, dst, s_base, s_rot, i, nsteps, bytes_per_step):
    a(f"s_add_u32 s{sT4}, s{s_rot}, {i}")
    a(f"s_cmp_ge_u32 s{sT4}, {nsteps}")
    a(f"s_cselect_b32 s{dst}, {nsteps}, 0")
    a(f"s_sub_u32 s{sT4}, s{sT4}, s{dst}")
    a(f"s_mul_i32 s{sT4}, s{sT4}, {bytes_per_step}")
    a(f"s_add_u32 s{dst}, s{sT4}, s{s_base}")

def dma_step(a, srdn, stride, s_rowbase, s_rot, step, nsteps, s_lds, lds_off, tag, bits=""):
    a(f"s_add_u32 m0, s{s_lds}, {lds_off}")
    step_off(a, sOFF, s_rowbase, s_rot, step, nsteps, 32 * stride)
    for blk in range(4):
        a.vmem(f"buffer_load_dwordx4 v{vDM+blk}, {srd(srdn)}, s{sOFF} offen offset:{blk*1024} {bits} lds", tag)

def tr_step(a, vbase, off, step):
    for t in range(4):
        w = wfrag(step, t)
        a(f"ds_read_b64_tr_b16 {ar(w,2)}, v{vbase+t} offset:{off}")
        a(f"ds_read_b64_tr_b16 {ar(w+2,2)}, v{vbase+t} offset:{off+2048}")

def poll(a, opt, vaddr, nd, lanes, sleep=None, pre=0, nload=1):
    if sleep is None: sleep = opt.sleep
    if pre: a(f"s_sleep {pre}")
    lp = a.newlabel("poll"); dn = a.newlabel("polled")
    a(f"s_mov_b32 s{sSPIN}, 0")
    a.label(lp)
    ld = {1: "dword", 2: "dwordx2", 4: "dwordx4"}[nd]
    for k in range(nload):
        a(f"buffer_load_{ld} {vr(vPQ + 4*k, nd)}, v{vaddr}, {srd(sF)}, 0 offen offset:{k*1024} sc1")
    a("s_waitcnt vmcnt(0)")
    first = True
    for k in range(nload):
        for i in range(nd):
            if first:
                a(f"v_cmp_ne_u32 vcc, s{sNONCE}, v{vPQ+4*k+i}"); first = False
            else:
                a(f"v_cmp_ne_u32 s[{sP}:{sP+1}], s{sNONCE}, v{vPQ+4*k+i}")
                a(f"s_or_b64 vcc, vcc, s[{sP}:{sP+1}]")
    if lanes is not None:
        a(f"s_and_b64 vcc, vcc, s[{lanes}:{lanes+1}]")
    a(f"s_add_u32 s{sSPIN}, s{sSPIN}, 1")
    a("s_cmp_eq_u64 vcc, 0")
    a(f"s_cbranch_scc1 {dn}")
    if sleep: a(f"s_sleep {sleep}")
    a(f"s_cmp_lt_u32 s{sSPIN}, {opt.spin}")
    a(f"s_cbranch_scc1 {lp}")
    a.label(dn)
    a.vm = []

def poll_check(a, nd, lanes, ok_label):
    for i in range(nd):
        if i == 0: a(f"v_cmp_ne_u32 vcc, s{sNONCE}, v{vPQ}")
        else:
            a(f"v_cmp_ne_u32 s[{sP}:{sP+1}], s{sNONCE}, v{vPQ+i}")
            a(f"s_or_b64 vcc, vcc, s[{sP}:{sP+1}]")
    if lanes is not None:
        a(f"s_and_b64 vcc, vcc, s[{lanes}:{lanes+1}]")
    a("s_cmp_eq_u64 vcc, 0")
    a(f"s_cbranch_scc1 {ok_label}")

def flag_store(a, s_index_bytes):
    a(f"v_mov_b32 v{vT}, s{s_index_bytes}")
    a(f"v_mov_b32 v{vT2}, s{sNONCE}")
    a(f"s_mov_b64 s[{sP}:{sP+1}], exec")
    a("s_mov_b64 exec, 1")
    a.vmem(f"buffer_store_dword v{vT2}, v{vT}, {srd(sF)}, 0 offen {OPT.fbits}", "flag")
    a(f"s_mov_b64 exec, s[{sP}:{sP+1}]")

def gelu_pairs(a, regs, tmp, fill=None):
    def each(fn):
        for i, r in enumerate(regs): fn(r, tmp + 2 * i)
    each(lambda r, t: a(f"v_pk_mul_f32 {vr(t,2)}, {vr(r,2)}, {vr(r,2)}"))
    each(lambda r, t: a(f"v_pk_fma_f32 {vr(t,2)}, {vr(t,2)}, s[100:101], {vr(vC0,2)}"))
    each(lambda r, t: a(f"v_pk_mul_f32 {vr(t,2)}, {vr(t,2)}, {vr(r,2)}"))
    if fill: fill()
    each(lambda r, t: (a(f"v_exp_f32 v{t}, v{t}"), a(f"v_exp_f32 v{t+1}, v{t+1}")))
    each(lambda r, t: a(f"v_pk_add_f32 {vr(t,2)}, {vr(t,2)}, 1.0 op_sel_hi:[1,0]"))
    each(lambda r, t: (a(f"v_rcp_f32 v{t}, v{t}"), a(f"v_rcp_f32 v{t+1}, v{t+1}")))
    a("s_nop 0")
    each(lambda r, t: a(f"v_pk_mul_f32 {vr(r,2)}, {vr(r,2)}, {vr(t,2)}"))

def w2_slot(step):
    if step < 8: return sM0B, step * 4096, vTR, step * 4096
    if step < 10: return sUP, (step - 8) * 4096, vTRU, (step - 8) * 4096
    return sM0B, (step - 10) * 4096, vTR, (step - 10) * 4096

def w2_dma(a, step):
    sb, off, _, _ = w2_slot(step)
    dma_step(a, sW2, S * 2, sWB, sROT2, step, 14, sb, off, f"w2_{step}", OPT.w2bits)

def w2_dma_parts(a, step):
    sb, off, _, _ = w2_slot(step)
    def setup():
        a(f"s_add_u32 m0, s{sb}, {off}")
        step_off(a, sOFF, sWB, sROT2, step, 14, 32 * S * 2)
    def one(blk):
        return lambda: a.vmem(f"buffer_load_dwordx4 v{vDM+blk}, {srd(sW2)}, s{sOFF} offen offset:{blk*1024} {OPT.w2bits} lds", f"w2_{step}")
    return [setup] + [one(b) for b in range(4)]

def w2_tr(a, step):
    _, _, vb, off = w2_slot(step)
    tr_step(a, vb, off, step)

def gen(opt):
    global OPT
    OPT = opt
    a = Asm()
    NS = opt.depth + 1
    def ring(slot, t): return vRING + slot * 20 + t * 4
    a.raw(f"; @launch grid=(256,1,1) block=(256,1,1) lds={LDS_BYTES}")
    a.raw('.amdgcn_target "amdgcn-amd-amdhsa--gfx950"')
    a.raw(".text")
    a.raw(f".globl {KN}")
    a.raw(".p2align 8")
    a.raw(f".type {KN},@function")
    a.label(KN)
    if opt.cpf: a("s_getpc_b64 s[94:95]")
    a(f"s_cmp_ge_u32 s{sWG}, 256")
    a("s_cbranch_scc1 L_done")
    a("s_load_dwordx16 s[4:19], s[0:1], 0")
    if opt.prof:
        a(f"s_mem{'time' if opt.prof == 2 else 'realtime'} s[{sP}:{sP+1}]")
    if opt.prof:
        for i in range(1, 15): a(f"s_mov_b32 s{sPROF+i}, 0")
    if not opt.prof:
        a("s_memrealtime s[96:97]")
    a(f"v_lshrrev_b32 v{vT}, 6, v{vTID}")
    a(f"v_and_b32 v{vLANE}, 63, v{vTID}")
    a(f"v_readfirstlane_b32 s{sWAVE}, v{vT}")
    a(f"s_and_b32 s{sXCD}, s{sWG}, 7")
    a(f"s_lshr_b32 s{sJ}, s{sWG}, 3")
    if opt.p1 == 2:
        a(f"s_lshr_b32 s{sT1}, s{sXCD}, 1")
        a(f"s_and_b32 s{sT2}, s{sXCD}, 1")
        a(f"s_lshl_b32 s{sT2}, s{sT2}, 2")
        a(f"s_mul_i32 s{sT0}, s{sT1}, 7")
        a(f"s_lshr_b32 s{sFT}, s{sJ}, 2")
        a(f"s_add_u32 s{sFT}, s{sFT}, s{sT0}")
        a(f"s_and_b32 s{sT3}, s{sJ}, 3")
        a(f"s_add_u32 s{sDT1}, s{sT2}, s{sT3}")
        if opt.rot8: a(f"s_lshl_b32 s{sROT1}, s{sDT1}, 1")
        else: a(f"s_lshl_b32 s{sROT1}, s{sT3}, 2")
        a(f"s_cmp_eq_u32 s{sT1}, 3")
        a(f"s_cselect_b32 s{sJLIM}, 24, 28")
        a(f"s_lshl_b32 s{sT0}, s{sXCD}, 2")
        a(f"s_sub_u32 s{sT0}, s{sT0}, 28")
        a(f"s_lshl_b32 s{sT3}, s{sXCD}, 3")
        a(f"s_sub_u32 s{sT3}, s{sT3}, 48")
        a(f"s_cselect_b32 s{sIDLE}, s{sT0}, s{sT0}")
        a(f"s_cmp_ge_u32 s{sXCD}, 6")
        a(f"s_cselect_b32 s{sIDLE}, s{sT3}, s{sT0}")
        a(f"s_add_u32 s{sIDLE}, s{sIDLE}, s{sJ}")
    else:
        a(f"s_lshl_b32 s{sT0}, s{sXCD}, 2")
        a(f"s_mul_i32 s{sT1}, s{sXCD}, 3")
        a(f"s_add_u32 s{sT1}, s{sT1}, 3")
        a(f"s_cmp_lt_u32 s{sXCD}, 3")
        a(f"s_cselect_b32 s{sT0}, s{sT0}, s{sT1}")
        a(f"s_cselect_b32 s{sJLIM}, 32, 24")
        a(f"s_lshr_b32 s{sFT}, s{sJ}, 3")
        a(f"s_add_u32 s{sFT}, s{sFT}, s{sT0}")
        a(f"s_and_b32 s{sDT1}, s{sJ}, 7")
        a(f"s_lshl_b32 s{sROT1}, s{sDT1}, 1")
        a(f"s_lshl_b32 s{sIDLE}, s{sXCD}, 3")
        a(f"s_add_u32 s{sIDLE}, s{sIDLE}, s{sJ}")
        a(f"s_sub_u32 s{sIDLE}, s{sIDLE}, 48")
    if opt.rotg1 == 3:
        a(f"s_mul_i32 s{sT0}, s{sFT}, 11")
        a(f"s_lshr_b32 s{sT0}, s{sT0}, 5")
        a(f"s_mul_i32 s{sT0}, s{sT0}, 3")
        a(f"s_sub_u32 s{sT0}, s{sFT}, s{sT0}")
        a(f"s_mul_i32 s{sT0}, s{sT0}, 5")
        a(f"s_add_u32 s{sROT1}, s{sROT1}, s{sT0}")
        a(f"s_and_b32 s{sROT1}, s{sROT1}, 15")
    if opt.rotg1 == 2:
        a(f"s_and_b32 s{sT0}, s{sFT}, 1")
        a(f"s_lshl_b32 s{sT0}, s{sT0}, 3")
        a(f"s_add_u32 s{sROT1}, s{sROT1}, s{sT0}")
        a(f"s_and_b32 s{sROT1}, s{sROT1}, 15")
    if opt.rota1:
        a(f"s_mul_i32 s{sT0}, s{sFT}, {opt.rota1}")
        a(f"s_add_u32 s{sROT1}, s{sROT1}, s{sT0}")
        a(f"s_and_b32 s{sROT1}, s{sROT1}, 15")
    if opt.p2 == 2:
        a(f"s_lshr_b32 s{sT1}, s{sXCD}, 1")
        a(f"s_and_b32 s{sT2}, s{sXCD}, 1")
        a(f"s_lshl_b32 s{sT2}, s{sT2}, 2")
        a(f"s_lshr_b32 s{sT0}, s{sJ}, 2")
        a(f"s_lshl_b32 s{sST}, s{sT1}, 3")
        a(f"s_add_u32 s{sST}, s{sST}, s{sT0}")
        a(f"s_and_b32 s{sT3}, s{sJ}, 3")
        a(f"s_add_u32 s{sDT2}, s{sT2}, s{sT3}")
        if opt.rot8:
            a(f"s_mul_i32 s{sROT2}, s{sDT2}, 7")
            a(f"s_lshr_b32 s{sROT2}, s{sROT2}, 2")
        else:
            a(f"s_mul_i32 s{sROT2}, s{sT3}, 7")
            a(f"s_lshr_b32 s{sROT2}, s{sROT2}, 1")
    else:
        a(f"s_lshr_b32 s{sT0}, s{sJ}, 3")
        a(f"s_lshl_b32 s{sST}, s{sXCD}, 2")
        a(f"s_add_u32 s{sST}, s{sST}, s{sT0}")
        a(f"s_and_b32 s{sDT2}, s{sJ}, 7")
        a(f"s_mul_i32 s{sROT2}, s{sDT2}, 7")
        a(f"s_lshr_b32 s{sROT2}, s{sROT2}, 2")
    if opt.rotg2:
        if opt.rotg2 == 2:
            a(f"s_and_b32 s{sT0}, s{sST}, 1")
            a(f"s_mul_i32 s{sT0}, s{sT0}, 7")
        else:
            a(f"s_mul_i32 s{sT0}, s{sST}, 11")
            a(f"s_lshr_b32 s{sT0}, s{sT0}, 5")
            a(f"s_mul_i32 s{sT0}, s{sT0}, 3")
            a(f"s_sub_u32 s{sT0}, s{sST}, s{sT0}")
            a(f"s_mul_i32 s{sT0}, s{sT0}, 5")
        a(f"s_add_u32 s{sROT2}, s{sROT2}, s{sT0}")
        a(f"s_cmp_ge_u32 s{sROT2}, 14")
        a(f"s_cselect_b32 s{sT0}, 14, 0")
        a(f"s_sub_u32 s{sROT2}, s{sROT2}, s{sT0}")
    if opt.rota2:
        a(f"s_mul_i32 s{sT0}, s{sST}, {opt.rota2}")
        a(f"s_add_u32 s{sROT2}, s{sROT2}, s{sT0}")
        a(f"s_and_b32 s{sT0}, s{sROT2}, 0xff")
        a(f"s_mul_i32 s{sT0}, s{sROT2}, 18725")
        a(f"s_lshr_b32 s{sT0}, s{sT0}, 18")
        a(f"s_mul_i32 s{sT0}, s{sT0}, 14")
        a(f"s_sub_u32 s{sROT2}, s{sROT2}, s{sT0}")
    if not (opt.rot & 1): a(f"s_mov_b32 s{sROT1}, 0")
    if not (opt.rot & 2): a(f"s_mov_b32 s{sROT2}, 0")
    a(f"s_lshl_b32 s{sM0B}, s{sWAVE}, 15")
    a(f"s_lshl_b32 s{sUP}, s{sWAVE}, 13")
    a(f"s_add_u32 s{sUP}, s{sUP}, 131072")
    def tr_addr(base_sgpr):
        t0, t1, t2 = vX, vX + 1, vX + 2
        a(f"v_lshrrev_b32 v{t0}, 4, v{vLANE}")
        a(f"v_and_b32 v{t1}, 1, v{t0}")
        a(f"v_lshlrev_b32 v{t1}, 2, v{t1}")
        a(f"v_bfe_u32 v{t2}, v{vLANE}, 2, 2")
        a(f"v_add_u32 v{t1}, v{t1}, v{t2}")
        a(f"v_lshrrev_b32 v{t0}, 1, v{t0}")
        a(f"v_lshlrev_b32 v{t0}, 10, v{t0}")
        a(f"v_lshlrev_b32 v{t2}, 7, v{t1}")
        a(f"v_add_u32 v{t0}, v{t0}, v{t2}")
        a(f"v_and_b32 v{t2}, 3, v{vLANE}")
        a(f"v_lshlrev_b32 v{t2}, 3, v{t2}")
        a(f"v_add_u32 v{t0}, v{t0}, v{t2}")
        a(f"v_add_u32 v{t0}, s{base_sgpr}, v{t0}")
        a(f"v_lshrrev_b32 v{t1}, 1, v{t1}")
        for t in range(4):
            a(f"v_xor_b32 v{t2}, {t}, v{t1}")
            a(f"v_lshlrev_b32 v{t2}, 5, v{t2}")
            a(f"v_add_u32 v{vTR+t}, v{t0}, v{t2}")
    def w1_dma(i): dma_step(a, sW1, F * 2, sWB, sROT1, i, 16, sM0B, (i % 8) * 4096, f"w1_{i}", "nt" if i < opt.nta else opt.w1bits)
    def w1_stream(first, dp, hold=0):
        retired = 0
        def retire():
            nonlocal retired
            a.wait_vm(f"w1_{retired}")
            if retired: a("s_waitcnt lgkmcnt(0)")
            tr_step(a, vTR, (retired % 8) * 4096, retired)
            retired += 1
        for i in range(first, 16):
            while retired <= i - dp: retire()
            if i >= 8:
                while retired <= i - 8: retire()
                if retired == i - 7: a("s_waitcnt lgkmcnt(0)")
            w1_dma(i)
        while retired < 16 - hold: retire()
        def finish():
            while retired < 16: retire()
            a("s_waitcnt lgkmcnt(0)")
        if not hold: finish()
        return finish
    dma_addr(a, F * 2, sFT)
    a(f"s_mul_i32 s{sWB}, s{sWAVE}, {512*F*2}")
    a.c("LayerNorm: wave w normalises rows 32*ks + 16*(w>>1) + 4*q + 2*(w&1) + (0,1), 32 lanes per row")
    XR, XF, TM = 96, 108, 130
    a(f"s_lshr_b32 s{sT0}, s{sWG}, 2")
    a(f"s_and_b32 s{sT1}, s{sWG}, 3")
    a(f"s_lshl_b32 s{sT2}, s{sT0}, 5")
    a(f"s_lshr_b32 s{sT3}, s{sWAVE}, 1")
    a(f"s_lshl_b32 s{sT3}, s{sT3}, 4")
    a(f"s_add_u32 s{sT2}, s{sT2}, s{sT3}")
    a(f"s_lshl_b32 s{sT3}, s{sT1}, 2")
    a(f"s_add_u32 s{sT2}, s{sT2}, s{sT3}")
    a(f"s_and_b32 s{sT3}, s{sWAVE}, 1")
    a(f"s_lshl_b32 s{sT3}, s{sT3}, 1")
    a(f"s_add_u32 s{sT2}, s{sT2}, s{sT3}")
    a(f"s_mul_i32 s{sT2}, s{sT2}, 1280")
    a(f"v_lshrrev_b32 v{TM}, 5, v{vLANE}")
    a(f"v_and_b32 v{TM+1}, 31, v{vLANE}")
    a(f"v_lshlrev_b32 v{TM+1}, 3, v{TM+1}")
    a(f"v_mul_u32_u24 v{TM+2}, 1280, v{TM}")
    a(f"v_add_u32 v{TM+2}, v{TM+2}, v{TM+1}")
    a(f"v_mov_b32 v{vT}, 0")
    a("s_waitcnt lgkmcnt(0)")
    if opt.prof: a(f"s_mov_b32 s{sPROF}, s{sP}")
    make_srd(a, sD, 16, 256)
    a(f"s_cmp_lg_u32 s{sWG}, 0")
    a("s_cbranch_scc1 L_nononce")
    a(f"s_cmp_lg_u32 s{sWAVE}, 3")
    a("s_cbranch_scc1 L_nononce")
    a(f"s_or_b32 s{sNONCE}, s{sP if opt.prof else 96}, 1")
    a(f"v_mov_b32 v{vT2}, s{sNONCE}")
    a(f"s_mov_b64 s[{sP+2}:{sP+3}], exec")
    a("s_mov_b64 exec, 1")
    a(f"buffer_store_dword v{vT2}, v{vT}, {srd(sD)}, 0 offen sc1")
    a(f"s_mov_b64 exec, s[{sP+2}:{sP+3}]")
    a.label("L_nononce")
    make_srd(a, sX, 4, S * D * 2)
    for i in range(5):
        a.vmem(f"buffer_load_dwordx2 {vr(XR+2*i,2)}, v{TM+2}, {srd(sX)}, s{sT2} offen offset:{i*256} {opt.xbits}", "x")
    make_srd(a, sW1, 6, S * F * 2)
    if opt.xbar: a("s_barrier")
    a(f"s_cmp_ge_u32 s{sJ}, s{sJLIM}")
    a("s_cbranch_scc1 L_ln_now1")
    for i in range(opt.nearly): w1_dma(i)
    a.label("L_ln_now1")
    if opt.cpf:
        a(f"s_cmp_lg_u32 s{sWAVE}, 3")
        a("s_cbranch_scc1 L_nocpf")
        a(f"s_lshl_b32 s{sT3}, s{sJ}, 11")
        a(f"v_lshlrev_b32 v{vX}, 4, v{vLANE}")
        a(f"v_add_u32 v{vX}, s{sT3}, v{vX}")
        a(f"v_add_u32 v{vX+1}, 1024, v{vX}")
        for h in range(2):
            a(f"v_min_u32 v{vX+h}, L_codeend-{KN}-36, v{vX+h}")
            a(f"global_load_dwordx4 {vr(240+4*h,4)}, v{vX+h}, s[94:95]")
        a.label("L_nocpf")
    make_srd(a, sH, 18, H_BYTES, WS_H)
    make_srd(a, sF, 18, FLAG_BYTES, WS_FLAG)
    a(f"s_mul_i32 s{sSTEP}, s{sT0}, 40960")
    a(f"s_lshl_b32 s{sT1}, s{sT1}, 8")
    a(f"s_add_u32 s{sSTEP}, s{sSTEP}, s{sT1}")
    a(f"s_lshl_b32 s{sT3}, s{sWAVE}, 1")
    a(f"v_add_u32 v{TM+4}, s{sT3}, v{TM}")
    a(f"v_mul_u32_u24 v{TM+4}, {LN_ROW}, v{TM+4}")
    a(f"v_add_u32 v{TM+4}, v{TM+4}, v{TM+1}")
    a(f"v_add_u32 v{TM+4}, {LN_BASE}, v{TM+4}")
    a(f"s_mul_i32 s{sT3}, s{sWAVE}, 12")
    a(f"s_cmp_eq_u32 s{sWAVE}, 3")
    a(f"s_cselect_b32 s{sT3}, 32, s{sT3}")
    a(f"v_lshrrev_b32 v{TM+6}, 4, v{vLANE}")
    a(f"v_add_u32 v{TM+6}, s{sT3}, v{TM+6}")
    a(f"v_bfe_u32 v{TM+5}, v{vLANE}, 2, 2")
    a(f"v_mul_u32_u24 v{TM+5}, {LN_ROW}, v{TM+5}")
    a(f"v_lshlrev_b32 v{TM+7}, 5, v{TM+6}")
    a(f"v_add_u32 v{TM+5}, v{TM+5}, v{TM+7}")
    a(f"v_and_b32 v{TM+7}, 3, v{vLANE}")
    a(f"v_lshlrev_b32 v{TM+7}, 3, v{TM+7}")
    a(f"v_add_u32 v{TM+5}, v{TM+5}, v{TM+7}")
    a(f"v_add_u32 v{TM+5}, {LN_BASE}, v{TM+5}")
    a(f"v_lshlrev_b32 v{TM+6}, 10, v{TM+6}")
    a(f"v_and_b32 v{TM+7}, 15, v{vLANE}")
    a(f"v_lshlrev_b32 v{TM+7}, 4, v{TM+7}")
    a(f"v_add_u32 v{TM+6}, v{TM+6}, v{TM+7}")
    tr_addr(sM0B)
    a(f"s_mov_b32 s{sT0}, 0xffff0000")
    nc = 2 if opt.cpf else 0
    a(f"s_cmp_ge_u32 s{sJ}, s{sJLIM}")
    a("s_cbranch_scc1 L_ln_idle")
    a(f"s_cmp_eq_u32 s{sWAVE}, 3")
    a("s_cbranch_scc1 L_ln_w3")
    a(f"s_waitcnt vmcnt({4*opt.nearly})")
    a("s_branch L_ln_go")
    a.label("L_ln_w3")
    a(f"s_waitcnt vmcnt({4*opt.nearly + nc})")
    a("s_branch L_ln_go")
    a.label("L_ln_idle")
    a(f"s_cmp_eq_u32 s{sWAVE}, 3")
    a("s_cbranch_scc1 L_ln_idle3")
    a("s_waitcnt vmcnt(0)")
    a("s_branch L_ln_go")
    a.label("L_ln_idle3")
    a(f"s_waitcnt vmcnt({nc})")
    a.label("L_ln_go")
    stamp(a, opt, 1)
    nmid = [opt.nearly]
    def mid_step(tag):
        if nmid[0] < opt.nearly + opt.nmid:
            a(f"s_cmp_ge_u32 s{sJ}, s{sJLIM}")
            a(f"s_cbranch_scc1 L_mid_{tag}")
            w1_dma(nmid[0]); nmid[0] += 1
            a.label(f"L_mid_{tag}")
    mid_step("a")
    for i in range(10):
        a(f"v_lshlrev_b32 v{XF+2*i}, 16, v{XR+i}")
        a(f"v_and_b32 v{XF+2*i+1}, s{sT0}, v{XR+i}")
    SM = TM + 8
    a(f"v_pk_add_f32 {vr(SM,2)}, {vr(XF,2)}, {vr(XF+4,2)}")
    a(f"v_pk_add_f32 {vr(SM+2,2)}, {vr(XF+2,2)}, {vr(XF+6,2)}")
    for i in range(4, 10):
        k = i % 2
        a(f"v_pk_add_f32 {vr(SM+2*k,2)}, {vr(SM+2*k,2)}, {vr(XF+2*i,2)}")
    def reduce_row(dst):
        a(f"v_pk_add_f32 {vr(SM,2)}, {vr(SM,2)}, {vr(SM+2,2)}")
        a(f"v_add_f32 v{dst}, v{SM}, v{SM+1}")
        for rot in (8, 4, 2, 1):
            a("s_nop 1")
            a(f"v_add_f32_dpp v{dst}, v{dst}, v{dst} row_ror:{rot} row_mask:0xf bank_mask:0xf")
        a(f"v_mov_b32 v{SM}, v{dst}")
        a("s_nop 1")
        a(f"v_permlane16_swap_b32 v{dst}, v{SM}")
        a("s_nop 1")
        a(f"v_add_f32 v{dst}, v{dst}, v{SM}")
    MN = TM + 12
    reduce_row(MN)
    mid_step("b")
    a(f"v_mul_f32 v{MN}, {f2h(1.0/640.0)}, v{MN}")
    a(f"v_mov_b32 v{MN+1}, v{MN}")
    for i in range(10):
        a(f"v_pk_add_f32 {vr(XF+2*i,2)}, {vr(XF+2*i,2)}, {vr(MN,2)} neg_lo:[0,1] neg_hi:[0,1]")
    for k in range(2):
        a(f"v_pk_mul_f32 {vr(SM+2*k,2)}, {vr(XF+2*k,2)}, {vr(XF+2*k,2)}")
    for i in range(2, 10):
        k = i % 2
        a(f"v_pk_fma_f32 {vr(SM+2*k,2)}, {vr(XF+2*i,2)}, {vr(XF+2*i,2)}, {vr(SM+2*k,2)}")
    reduce_row(MN)
    mid_step("c")
    a(f"v_mov_b32 v{MN+1}, {f2h(1e-5)}")
    a(f"v_fmac_f32 v{MN+1}, {f2h(1.0/640.0)}, v{MN}")
    a(f"v_rsq_f32 v{MN}, v{MN+1}")
    a("s_nop 0")
    a(f"v_mov_b32 v{MN+1}, v{MN}")
    for i in range(10):
        a(f"v_pk_mul_f32 {vr(XF+2*i,2)}, {vr(XF+2*i,2)}, {vr(MN,2)}")
    for i in range(10):
        a(f"v_cvt_pk_bf16_f32 v{XR+i}, v{XF+2*i}, v{XF+2*i+1}")
    for i in range(5):
        a(f"ds_write_b64 v{TM+4}, {vr(XR+2*i,2)} offset:{i*256}")
    a("s_waitcnt lgkmcnt(0)")
    a("s_barrier")
    for i in range(2):
        a(f"ds_read_b64_tr_b16 {vr(XF+4*i,2)}, v{TM+5} offset:{i*128}")
        a(f"ds_read_b64_tr_b16 {vr(XF+4*i+2,2)}, v{TM+5} offset:{i*128+4*LN_ROW}")
    a(f"s_cmp_ge_u32 s{sWAVE}, 2")
    a("s_cbranch_scc1 L_ln_two")
    a(f"ds_read_b64_tr_b16 {vr(XF+8,2)}, v{TM+5} offset:{2*128}")
    a(f"ds_read_b64_tr_b16 {vr(XF+10,2)}, v{TM+5} offset:{2*128+4*LN_ROW}")
    a("s_waitcnt lgkmcnt(0)")
    a(f"s_add_u32 s{sT0}, s{sSTEP}, {2*4096}")
    a(f"buffer_store_dwordx4 {vr(XF+8,4)}, v{TM+6}, {srd(sH)}, s{sT0} offen {opt.hbits}")
    a.label("L_ln_two")
    a("s_waitcnt lgkmcnt(0)")
    for i in range(2):
        a(f"s_add_u32 s{sT0}, s{sSTEP}, {i*4096}")
        a(f"buffer_store_dwordx4 {vr(XF+4*i,4)}, v{TM+6}, {srd(sH)}, s{sT0} offen {opt.hbits}")
    a(f"buffer_load_dword v{vPOLL}, v{vT}, {srd(sD)}, 0 offen sc1")
    stamp(a, opt, 2)
    a(f"s_cmp_ge_u32 s{sJ}, s{sJLIM}")
    a("s_cbranch_scc1 L_ln_idle2")
    ne = opt.nearly + opt.nmid
    a.vm = [f"w1_{i}" for i in range(ne)]
    for i in range(ne, ne + opt.npost): w1_dma(i)
    a(f"s_waitcnt vmcnt({4*opt.npost})")
    a("s_branch L_ln_go2")
    a.label("L_ln_idle2")
    a("s_waitcnt vmcnt(0)")
    a.label("L_ln_go2")
    a(f"v_readfirstlane_b32 s{sNONCE}, v{vPOLL}")
    nonce_spin(a, opt)
    a("s_barrier")
    a(f"s_cmp_lg_u32 s{sWAVE}, 0")
    a("s_cbranch_scc1 L_noflag")
    a(f"s_lshl_b32 s{sT0}, s{sWG}, 2")
    keep = list(a.vm)
    flag_store(a, sT0)
    a.vm = keep
    a.label("L_noflag")
    stamp(a, opt, 3)
    a(f"s_cmp_ge_u32 s{sJ}, s{sJLIM}")
    a("s_cbranch_scc1 L_nogemm1")
    w1_finish = w1_stream(opt.nearly + opt.nmid + opt.npost, opt.dp, opt.hold1)

    def common_setup(retr=True):
        make_srd(a, sH, 18, H_BYTES, WS_H)
        make_srd(a, sF, 18, FLAG_BYTES, WS_FLAG)
        make_srd(a, sB1, 8, F * 2)
        make_srd(a, sW2, 10, F * S * 2)
        make_srd(a, sB2, 12, S * 2)
        make_srd(a, sO, 14, S * D * 2)
        make_srd(a, sG, 18, G_BYTES, WS_G)
        a(f"v_lshrrev_b32 v{vT}, 4, v{vLANE}")
        a(f"v_lshlrev_b32 v{vT}, 3, v{vT}")
        a(f"s_and_b32 s{sT0}, s{sWAVE}, 1")
        a(f"s_lshl_b32 s{sT0}, s{sT0}, 6")
        a(f"s_lshl_b32 s{sT1}, s{sFT}, 7")
        a(f"s_add_u32 s{sT0}, s{sT0}, s{sT1}")
        a.vmem(f"buffer_load_dwordx2 {vr(vB1,2)}, v{vT}, {srd(sB1)}, s{sT0} offen", "b")
        a.vmem(f"buffer_load_dwordx2 {vr(vB1+2,2)}, v{vT}, {srd(sB1)}, s{sT0} offen offset:32", "b")
        a(f"v_and_b32 v{vT}, 15, v{vLANE}")
        a(f"v_lshlrev_b32 v{vT}, 1, v{vT}")
        a(f"s_lshl_b32 s{sT0}, s{sST}, 7")
        a(f"s_lshl_b32 s{sT1}, s{sWAVE}, 5")
        a(f"s_add_u32 s{sT0}, s{sT0}, s{sT1}")
        a.vmem(f"buffer_load_ushort v{vB2}, v{vT}, {srd(sB2)}, s{sT0} offen", "b")
        dma_addr(a, S * 2, sST)
        a(f"s_mul_i32 s{sWB}, s{sWAVE}, {448*S*2}")
        if retr: tr_addr(sM0B)
        a(f"s_sub_u32 s{sT0}, s{sUP}, s{sM0B}")
        for t in range(4):
            a(f"v_add_u32 v{vTRU+t}, s{sT0}, v{vTR+t}")
        a(f"v_lshlrev_b32 v{vL0}, 4, v{vLANE}")
        a(f"v_add_u32 v{vL1}, 65536, v{vL0}")
        a(f"v_add_u32 v{vL2}, 131072, v{vL0}")

    a.label("L_w1_ready")
    stamp(a, opt, 4)
    vm_keep = list(a.vm)
    common_setup(retr=False)
    a(f"s_mul_i32 s{sT0}, s{sDT1}, 5120")
    a(f"v_add_u32 v{vA}, s{sT0}, v{vL0}")
    a(f"v_add_u32 v{vA2}, 4096, v{vA}")
    a(f"s_cmp_lg_u32 s{sWAVE}, {opt.pollw}")
    a("s_cbranch_scc1 L_hpolled")
    poll(a, opt, vL0, 4, None, opt.sleeph, opt.preh, 1)
    a.label("L_hpolled")
    a.vm = vm_keep + ["b", "b", "b"]
    a("s_barrier")
    stamp(a, opt, 5)

    def a_loads(srdn, step, nsteps, s_rot):
        slot = step % NS
        step_off(a, sOFF, sSTEP, s_rot, step, nsteps, 40960)
        return [f"buffer_load_dwordx4 {vr(ring(slot,t),4)}, v{vA if t < 4 else vA2}, {srd(srdn)}, s{sOFF} offen offset:{(t*1024) if t < 4 else 0} {opt.abits}" for t in range(5)]

    def main_loop(srdn, nsteps, s_rot, tagp, mfma, stamp0, tail, nuni, pre=None):
        for st in range(opt.depth):
            for o, ins in enumerate(a_loads(srdn, st, nsteps, s_rot)): a.vmem(ins, f"{tagp}{st}_{o}")
        if pre: pre()
        for st in range(nuni):
            nx = st + opt.depth
            nxt = a_loads(srdn, nx, nsteps, s_rot) if nx < nsteps else None
            a.wait_vm(f"{tagp}{st}_4")
            if st == 0 and stamp0 is not None: stamp(a, opt, stamp0)
            for o in range(5):
                if nxt: a.vmem(nxt[o], f"{tagp}{nx}_{o}")
                for i in range(4): mfma(st, o, i, st % NS)
                if tail: tail(st, o)

    def tile_tail(nsteps, tagp, first, last, frag_of, mfma_tile, write_tile, extra):
        ic = [0]
        done_at = {}
        queue = []
        extra = list(extra)
        def emit(fn):
            fn(); ic[0] += 1
        def filler():
            if queue and ic[0] - done_at[queue[0]] >= 9:
                t = queue.pop(0); emit(lambda: write_tile(t)); return
            if extra: emit(extra.pop(0))
        tiles = list(first) + list(last)
        for i in range(0, len(tiles), 2):
            pair = tiles[i:i + 2]
            for t in pair:
                for st in (nsteps - 2, nsteps - 1): a.wait_vm(f"{tagp}{st}_{frag_of(t)}")
            for st in (nsteps - 2, nsteps - 1):
                for t in pair:
                    emit(lambda: mfma_tile(st, t))
                    if st == nsteps - 1:
                        done_at[t] = ic[0]
                        if t in first: queue.append(t)
                    filler()
        while extra: emit(extra.pop(0))
        while queue:
            while ic[0] - done_at[queue[0]] < 9: emit(lambda: a("s_nop 0"))
            t = queue.pop(0); emit(lambda: write_tile(t))

    a(f"s_mul_i32 s{sSTEP}, s{sWAVE}, {16*40960}")
    def mfma1(st, nt, mt, slot):
        c = "0" if st == 0 else vr(acc1(mt, nt), 4)
        a(f"v_mfma_f32_16x16x32_bf16 {vr(acc1(mt,nt),4)}, {ar(wfrag(st,mt),4)}, {vr(ring(slot,nt),4)}, {c}")
    parts13 = w2_dma_parts(a, 0) if opt.t13 else []
    def tail1(st, o):
        if st == 13 and parts13:
            if o == 0: parts13[0]()
            else: parts13[o]()
    main_loop(sH, 16, sROT1, "h", mfma1, 6, tail1, 14, w1_finish if opt.hold1 else None)

    a(f"s_mov_b32 s100, {f2h(C1)}"); a(f"s_mov_b32 s101, {f2h(C1)}")
    a(f"v_mov_b32 v{vC0}, {f2h(C0)}"); a(f"v_mov_b32 v{vC0+1}, {f2h(C0)}")
    def lds_ref(addr):
        if addr < 65536: return vL0, addr
        if addr < 131072: return vL1, addr - 65536
        return vL2, addr - 131072
    def owner1(p, nt): return p + (0 if nt < 3 else 2)
    units = [(p, nt) for p in range(2) for nt in range(5)]
    def red1_addr(src, u):
        k = [x for x in units if owner1(*x) != src].index(u)
        return src * 32768 + 24576 + k * 2048 if k < 4 else 131072 + src * 8192 + (k - 4) * 2048
    saved_vm = list(a.vm)
    for w in range(4):
        if w < 3:
            a(f"s_cmp_lg_u32 s{sWAVE}, {w}")
            a(f"s_cbranch_scc1 L_ep1_{w+1}")
        a.vm = list(saved_vm)
        nis = [1 if opt.t13 else 0]
        def more(n, limit):
            for _ in range(n):
                if nis[0] < limit:
                    w2_dma(a, nis[0]); nis[0] += 1
        tl = [(2 * p + hf, nt) for nt in range(5) for p in range(2) for hf in range(2)]
        first = [t for t in tl if owner1(t[0] // 2, t[1]) != w]
        last = [t for t in tl if owner1(t[0] // 2, t[1]) == w]
        def wr1(t):
            vb, off = lds_ref(red1_addr(w, (t[0] // 2, t[1])) + (t[0] & 1) * 1024)
            a(f"ds_write_b128 v{vb}, {vr(acc1(*t),4)} offset:{off}")
        extra = []
        for _ in range(opt.tt):
            extra += w2_dma_parts(a, nis[0]); nis[0] += 1
        tile_tail(16, "h", first, last, lambda t: t[1], lambda st, t: mfma1(st, t[1], t[0], st % NS), wr1, extra)
        stamp(a, opt, 7)
        more(opt.e1, 6)
        a("s_waitcnt lgkmcnt(0)")
        a("s_barrier")
        own_u = [u for u in units if owner1(*u) == w]
        RT = vRING
        n = 0
        for u in own_u:
            for src in range(4):
                if src == w: continue
                for hf in range(2):
                    vb, off = lds_ref(red1_addr(src, u) + hf * 1024)
                    a(f"ds_read_b128 {vr(RT + n*4, 4)}, v{vb} offset:{off}")
                    n += 1
        a.wait_vm("b")
        for i in range(4):
            a(f"v_lshlrev_b32 v{BI+2*i}, 16, v{vB1+i}")
            a(f"v_and_b32 v{BI+2*i+1}, 0xffff0000, v{vB1+i}")
        for u in own_u:
            p, nt = u
            for hf in range(2):
                r = acc1(2*p+hf, nt)
                a(f"v_pk_add_f32 {vr(r,2)}, {vr(r,2)}, {vr(BI+4*hf,2)}")
                a(f"v_pk_add_f32 {vr(r+2,2)}, {vr(r+2,2)}, {vr(BI+4*hf+2,2)}")
        n = 0
        tot = len(own_u) * 6
        for u in own_u:
            p, nt = u
            for si in range(3):
                for hf in range(2):
                    a(f"s_waitcnt lgkmcnt({min(15, tot - n - 1)})")
                    r = acc1(2*p+hf, nt)
                    a(f"v_pk_add_f32 {vr(r,2)}, {vr(r,2)}, {vr(RT+n*4,2)}")
                    a(f"v_pk_add_f32 {vr(r+2,2)}, {vr(r+2,2)}, {vr(RT+n*4+2,2)}")
                    n += 1
        a("s_barrier")
        regs = []
        for u in own_u:
            p, nt = u
            for hf in range(2):
                r = acc1(2*p+hf, nt)
                regs += [r, r + 2]
        more(opt.e2, 10)
        gelu_pairs(a, regs, RT, fill=lambda: more(opt.e3, 10))
        a(f"s_lshl_b32 s{sT0}, s{sFT}, 1")
        a(f"s_add_u32 s{sT0}, s{sT0}, {w & 1}")
        a(f"s_mul_i32 s{sT0}, s{sT0}, 40960")
        a(f"s_mul_i32 s{sT1}, s{sDT1}, 5120")
        a(f"s_add_u32 s{sT0}, s{sT0}, s{sT1}")
        for i, u in enumerate(own_u):
            p, nt = u
            o = RT + 64 + 4 * i
            r0, r1 = acc1(2*p, nt), acc1(2*p+1, nt)
            a(f"v_cvt_pk_bf16_f32 v{o}, v{r0}, v{r0+1}")
            a(f"v_cvt_pk_bf16_f32 v{o+1}, v{r0+2}, v{r0+3}")
            a(f"v_cvt_pk_bf16_f32 v{o+2}, v{r1}, v{r1+1}")
            a(f"v_cvt_pk_bf16_f32 v{o+3}, v{r1+2}, v{r1+3}")
            a(f"s_add_u32 s{sT1}, s{sT0}, {nt*1024}")
            a.vmem(f"buffer_store_dwordx4 {vr(o,4)}, v{vL0}, {srd(sG)}, s{sT1} offen {opt.gbits}", "g")
        stamp(a, opt, 8)
        more(opt.nb, 10)
        a.wait_vm("w2_3")
        if nis[0] >= 4:
            for st in range(4):
                w2_tr(a, st)
                if st % 2 == 1: a("s_waitcnt lgkmcnt(0)")
        if nis[0] == 10 and opt.nb2:
            for st in range(10, 10 + opt.nb2): w2_dma(a, st)
            nis[0] += opt.nb2
        a.wait_vm("g")
        a(f"s_lshl_b32 s{sT0}, s{sDT1}, 5")
        a(f"s_add_u32 s{sT0}, s{sT0}, s{sFT}")
        a(f"s_mul_i32 s{sT0}, s{sT0}, {opt.gstride}")
        a(f"s_add_u32 s{sT0}, s{sT0}, {FLAG_G + 4*w}")
        flag_store(a, sT0)
        stamp(a, opt, 9)
        assert nis[0] >= 4
        more(10, 10)
        more(4, 14)
        for st in range(4, 10):
            a.wait_vm(f"w2_{st}")
            w2_tr(a, st)
            if st % 2 == 1: a("s_waitcnt lgkmcnt(0)")
        a("s_branch L_pre2")
        if w < 3: a.label(f"L_ep1_{w+1}")

    a.label("L_nogemm1")
    a.vm = []
    common_setup()
    if False:
        a(f"s_lshl_b32 s{sT0}, s{sWAVE}, 6")
        a(f"v_add_u32 v{vX}, s{sT0}, v{vLANE}")
        a(f"v_mul_u32_u24 v{vX}, {opt.hstride}, v{vX}")
        poll(a, opt, vX, 2, None)
        if opt.idlewait > 1:
            a(f"s_sleep {opt.idlewait}")
    if opt.pf == 3:
        a(f"s_lshl_b32 s{sT0}, s{sIDLE}, 2")
        a(f"s_add_u32 s{sT0}, s{sT0}, s{sWAVE}")
        a(f"s_lshl_b32 s{sT0}, s{sT0}, 10")
        for k in range(44):
            o = vRING + (k % 16) * 4
            a.vmem(f"buffer_load_dwordx4 {vr(o,4)}, v{vL0}, {srd(sW2)}, s{sT0} offen {opt.pfbits}", f"pf{k}")
            a(f"s_add_u32 s{sT0}, s{sT0}, {160*1024}")
            if k >= opt.pfdepth: a.wait_vm(f"pf{k-opt.pfdepth}")
        a.wait_vm0()
    if opt.pf == 2:
        assert opt.p1 == 2 and opt.p2 == 1
        a(f"s_cmp_lt_u32 s{sJ}, 28")
        a("s_cbranch_scc1 L_nopf")
        a(f"s_sub_u32 s{sT0}, s{sJ}, 28")
        a(f"s_lshl_b32 s{sT0}, s{sT0}, 2")
        a(f"s_add_u32 s{sT0}, s{sT0}, s{sWAVE}")
        a(f"s_lshl_b32 s{sT0}, s{sT0}, 13")
        a(f"s_lshl_b32 s{sT1}, s{sXCD}, 9")
        a(f"s_add_u32 s{sT0}, s{sT0}, s{sT1}")
        a(f"v_lshrrev_b32 v{vX}, 5, v{vLANE}")
        a(f"v_lshlrev_b32 v{vX}, 12, v{vX}")
        a(f"v_and_b32 v{vX+1}, 31, v{vLANE}")
        a(f"v_lshlrev_b32 v{vX+1}, 4, v{vX+1}")
        a(f"v_add_u32 v{vX}, v{vX}, v{vX+1}")
        keep = list(a.vm)
        for k in range(54):
            o = vRING + (k % 16) * 4
            a.vmem(f"buffer_load_dwordx4 {vr(o,4)}, v{vX}, {srd(sW2)}, s{sT0} offen", f"pf{k}")
            a(f"s_add_u32 s{sT0}, s{sT0}, {16*8192}")
            if k >= opt.pfdepth: a.wait_vm(f"pf{k-opt.pfdepth}")
        a.wait_vm0()
        a.label("L_nopf")
        a.vm = keep
    for st in range(10): w2_dma(a, st)
    for st in range(4):
        a.wait_vm(f"w2_{st}")
        w2_tr(a, st)
        if st % 2 == 1: a("s_waitcnt lgkmcnt(0)")
    for st in range(10, 14): w2_dma(a, st)
    for st in range(4, 10):
        a.wait_vm(f"w2_{st}")
        w2_tr(a, st)
        if st % 2 == 1: a("s_waitcnt lgkmcnt(0)")

    a.label("L_pre2")
    a(f"s_mul_i32 s{sT0}, s{sDT2}, 5120")
    a(f"v_add_u32 v{vA}, s{sT0}, v{vL0}")
    a(f"v_add_u32 v{vA2}, 4096, v{vA}")
    def w2_finish():
        a.wait_vm("w2all")
        a("s_waitcnt lgkmcnt(0)")
        for st in range(10, 14):
            w2_tr(a, st)
            if st % 2 == 1: a("s_waitcnt lgkmcnt(0)")
    if not opt.hold2:
        a.vm = ["w2all"]
        w2_finish()
    stamp(a, opt, 10)
    if opt.onepoll & 2:
        a(f"s_cmp_lg_u32 s{sWAVE}, {opt.pollw}")
        a("s_cbranch_scc1 L_gpolled")
        a(f"s_lshl_b32 s{sT0}, s{sDT2}, 5")
        a(f"s_mul_i32 s{sT0}, s{sT0}, {opt.gstride}")
        a(f"s_add_u32 s{sT0}, s{sT0}, {FLAG_G}")
        a(f"v_mul_u32_u24 v{vX}, {opt.gstride}, v{vLANE}")
        a(f"v_add_u32 v{vX}, s{sT0}, v{vX}")
        a(f"s_mov_b32 s{sP+2}, 0x7ffffff")
        a(f"s_mov_b32 s{sP+3}, 0")
        poll(a, opt, vX, 4, sP + 2, opt.sleep, opt.preg)
        a.label("L_gpolled")
        a("s_barrier")
    else:
        a(f"s_lshl_b32 s{sT0}, s{sDT2}, 5")
        a(f"s_mul_i32 s{sT1}, s{sWAVE}, 7")
        a(f"s_add_u32 s{sT0}, s{sT0}, s{sT1}")
        a(f"s_mul_i32 s{sT0}, s{sT0}, {opt.gstride}")
        a(f"s_add_u32 s{sT0}, s{sT0}, {FLAG_G}")
        a(f"v_mul_u32_u24 v{vX}, {opt.gstride}, v{vLANE}")
        a(f"v_add_u32 v{vX}, s{sT0}, v{vX}")
        a(f"s_cmp_eq_u32 s{sWAVE}, 3")
        a(f"s_cselect_b32 s{sP+2}, 0x3f, 0x7f")
        a(f"s_mov_b32 s{sP+3}, 0")
        poll(a, opt, vX, 4, sP + 2, opt.sleep, opt.preg)
    a.vm = ["w2all"] if opt.hold2 else []
    stamp(a, opt, 11)
    a(f"s_mul_i32 s{sSTEP}, s{sWAVE}, {14*40960}")
    def mfma2(st, mt, nt, slot):
        c = "0" if st == 0 else vr(acc2(mt, nt), 4)
        a(f"v_mfma_f32_16x16x32_bf16 {vr(acc2(mt,nt),4)}, {vr(ring(slot,mt),4)}, {ar(wfrag(st,nt),4)}, {c}")
    main_loop(sG, 14, sROT2, "g", mfma2, 12, None, 12, w2_finish if opt.hold2 else None)
    saved_vm2 = list(a.vm)
    a(f"v_and_b32 v{vT}, 15, v{vLANE}")
    a(f"s_lshl_b32 s{sT0}, s{sWAVE}, 4")
    a(f"v_add_u32 v{vT}, s{sT0}, v{vT}")
    a(f"v_mul_u32_u24 v{vA}, 1280, v{vT}")
    a(f"v_lshrrev_b32 v{vT}, 4, v{vLANE}")
    a(f"v_lshlrev_b32 v{vT}, 3, v{vT}")
    a(f"v_add_u32 v{vA}, v{vA}, v{vT}")
    a(f"s_mul_i32 s{sT0}, s{sST}, {64*1280}")
    a(f"s_mul_i32 s{sT1}, s{sDT2}, 160")
    a(f"s_add_u32 s{sOFF}, s{sT0}, s{sT1}")
    a(f"v_lshlrev_b32 v{vC0}, 16, v{vB2}")
    a(f"v_lshlrev_b32 v{vC0+1}, 16, v{vB2}")
    a(f"v_sub_u32 v{vA2}, v{vA}, v{vT}")
    a(f"v_bfe_u32 v{vT}, v{vLANE}, 4, 1")
    a(f"v_lshlrev_b32 v{vT}, 5, v{vT}")
    a(f"v_add_u32 v{vA2}, v{vA2}, v{vT}")
    a(f"v_bfe_u32 v{vT}, v{vLANE}, 5, 1")
    a(f"v_lshlrev_b32 v{vT}, 4, v{vT}")
    a(f"v_add_u32 v{vA2}, v{vA2}, v{vT}")
    def red2_addr(src, nt, mt):
        k = [x for x in range(4) if x != src].index(nt)
        return src * 32768 + (k * 5 + mt) * 1024
    for w in range(4):
        if w < 3:
            a(f"s_cmp_lg_u32 s{sWAVE}, {w}")
            a(f"s_cbranch_scc1 L_ep2_{w+1}")
        a.vm = list(saved_vm2)
        tl = [(mt, nt) for mt in range(5) for nt in range(4)]
        def wr2(t):
            vb, off = lds_ref(red2_addr(w, t[1], t[0]))
            a(f"ds_write_b128 v{vb}, {vr(acc2(*t),4)} offset:{off}")
        tile_tail(14, "g", [t for t in tl if t[1] != w], [t for t in tl if t[1] == w], lambda t: t[0],
                  lambda st, t: mfma2(st, t[0], t[1], st % NS), wr2, [])
        stamp(a, opt, 13)
        a("s_waitcnt lgkmcnt(0)")
        a("s_barrier")
        RT = vRING
        n = 0
        for mt in range(5):
            for src in range(4):
                if src == w: continue
                vb, off = lds_ref(red2_addr(src, w, mt))
                a(f"ds_read_b128 {vr(RT+n*4,4)}, v{vb} offset:{off}")
                n += 1
        n = 0
        for mt in range(5):
            r = acc2(mt, w)
            for si in range(3):
                a(f"s_waitcnt lgkmcnt({14 - n})")
                a(f"v_pk_add_f32 {vr(r,2)}, {vr(r,2)}, {vr(RT+n*4,2)}")
                a(f"v_pk_add_f32 {vr(r+2,2)}, {vr(r+2,2)}, {vr(RT+n*4+2,2)}")
                n += 1
            a(f"v_pk_add_f32 {vr(r,2)}, {vr(r,2)}, {vr(vC0,2)}")
            a(f"v_pk_add_f32 {vr(r+2,2)}, {vr(r+2,2)}, {vr(vC0,2)}")
            o = RT + 64 + 2 * mt
            a(f"v_cvt_pk_bf16_f32 v{o}, v{r}, v{r+1}")
            a(f"v_cvt_pk_bf16_f32 v{o+1}, v{r+2}, v{r+3}")
            if not opt.wide or mt == 4:
                a(f"buffer_store_dwordx2 {vr(o,2)}, v{vA}, {srd(sO)}, s{sOFF} offen offset:{mt*32} {opt.obits}")
            elif mt % 2 == 1:
                a("s_nop 1")
                a(f"v_permlane16_swap_b32 v{o-2}, v{o}")
                a(f"v_permlane16_swap_b32 v{o-1}, v{o+1}")
                a(f"buffer_store_dwordx4 {vr(o-2,4)}, v{vA2}, {srd(sO)}, s{sOFF} offen offset:{(mt-1)*32} {opt.obits}")
        a("s_branch L_fin")
        if w < 3: a.label(f"L_ep2_{w+1}")
    a.label("L_fin")
    if opt.probe >= 0:
        if opt.probe == 14:
            a("s_waitcnt vmcnt(0)")
            stamp(a, opt, 14)
        a(f"s_cmp_lg_u32 s{sWG}, {opt.probewg}")
        a("s_cbranch_scc1 L_done")
        a(f"s_cmp_lg_u32 s{sWAVE}, {opt.probew}")
        a("s_cbranch_scc1 L_done")
        ref = sNONCE if opt.probeabs else (sPROF + 2 if opt.probe0 >= 0 else 96)
        a(f"s_sub_u32 s{sT1}, s{sPROF+1}, s{ref}")
        if opt.probecyc: a(f"s_lshr_b32 s{sT1}, s{sT1}, 2")
        else: a(f"s_lshl_b32 s{sT1}, s{sT1}, 2")
        a(f"s_add_u32 s{sT1}, s{sT1}, 4000")
        a.label("L_probe")
        a(f"s_memrealtime s[{sP}:{sP+1}]")
        a("s_waitcnt lgkmcnt(0)")
        a(f"s_sub_u32 s{sT0}, s{sP}, s96")
        a(f"s_cmp_lt_u32 s{sT0}, s{sT1}")
        a("s_cbranch_scc1 L_probe")
    if opt.pad:
        a.label("L_pad")
        a(f"s_memrealtime s[{sP}:{sP+1}]")
        a("s_waitcnt lgkmcnt(0)")
        a(f"s_sub_u32 s{sT0}, s{sP}, s96")
        a(f"s_cmp_lt_u32 s{sT0}, {opt.pad}")
        a("s_cbranch_scc1 L_pad")
    if opt.prof:
        a("s_waitcnt vmcnt(0)")
        stamp(a, opt, 14)
        make_srd(a, sX, 18, 65536, WS_PROF)
        a(f"s_lshl_b32 s{sT0}, s{sWG}, 2")
        a(f"s_add_u32 s{sT0}, s{sT0}, s{sWAVE}")
        a(f"s_lshl_b32 s{sT0}, s{sT0}, 6")
        a(f"v_mov_b32 v{vT}, s{sT0}")
        a("s_mov_b64 exec, 1")
        for i in range(15):
            a(f"v_mov_b32 v100, s{sPROF+i}")
            a(f"buffer_store_dword v100, v{vT}, {srd(sX)}, 0 offen offset:{4*i}")
            a("s_nop 1")
        a("s_waitcnt vmcnt(0)")
    a.label("L_done")
    a("s_endpgm")
    a.label("L_codeend")
    a.raw('.section .rodata,"a"')
    a.raw(".p2align 6")
    a.raw(f".amdhsa_kernel {KN}")
    for l in ["next_free_vgpr 512", "next_free_sgpr 102", "accum_offset 256", "group_segment_fixed_size 0",
              "kernarg_size 64", "user_sgpr_count 2", "user_sgpr_kernarg_segment_ptr 1",
              "system_sgpr_workgroup_id_x 1", "float_denorm_mode_32 3"]:
        a.raw(f"  .amdhsa_{l}")
    a.raw(".end_amdhsa_kernel")
    return "\n".join(a.L) + "\n"

def parse(argv=None):
    ap = argparse.ArgumentParser()
    ap.add_argument("-o", default="standalone__mixer_token_mlp__prompt.s")
    ap.add_argument("--prof", type=int, default=0)
    ap.add_argument("--rot", type=int, default=3)
    ap.add_argument("--spin", type=int, default=20000)
    ap.add_argument("--sleep", type=int, default=8)
    ap.add_argument("--depth", type=int, default=3)
    ap.add_argument("--lnprof", type=int, default=0)
    ap.add_argument("--hbits", default="sc1")
    ap.add_argument("--pfwait", type=int, default=1)
    ap.add_argument("--hold", type=int, default=0)
    ap.add_argument("--probe", type=int, default=-1)
    ap.add_argument("--probe0", type=int, default=-1)
    ap.add_argument("--probecyc", type=int, default=0)
    ap.add_argument("--probeabs", type=int, default=0)
    ap.add_argument("--probewg", type=int, default=100)
    ap.add_argument("--probew", type=int, default=2)
    ap.add_argument("--rot8", type=int, default=1)
    ap.add_argument("--cpf", type=int, default=1)
    ap.add_argument("--cpfw", type=int, default=3)
    ap.add_argument("--wide", type=int, default=1)
    ap.add_argument("--idlewait", type=int, default=0)
    ap.add_argument("--sleeph", type=int, default=8)
    ap.add_argument("--preh", type=int, default=0)
    ap.add_argument("--preg", type=int, default=0)
    ap.add_argument("--onepoll", type=int, default=3)
    ap.add_argument("--pollw", type=int, default=3)
    ap.add_argument("--nta", type=int, default=0)
    ap.add_argument("--rotg1", type=int, default=0)
    ap.add_argument("--rotg2", type=int, default=0)
    ap.add_argument("--npost", type=int, default=3)
    ap.add_argument("--xbar", type=int, default=1)
    ap.add_argument("--hold1", type=int, default=4)
    ap.add_argument("--hold2", type=int, default=1)
    ap.add_argument("--nmid", type=int, default=0)
    ap.add_argument("--gbits", default="sc1")
    ap.add_argument("--fbits", default="sc1")
    ap.add_argument("--abits", default="sc1")
    ap.add_argument("--t13", type=int, default=1)
    ap.add_argument("--tt", type=int, default=2)
    ap.add_argument("--e2", type=int, default=0)
    ap.add_argument("--e3", type=int, default=0)
    ap.add_argument("--nb2", type=int, default=0)
    ap.add_argument("--e1", type=int, default=1)
    ap.add_argument("--nb", type=int, default=2)
    ap.add_argument("--nearly", type=int, default=2)
    ap.add_argument("--dpl", type=int, default=5)
    ap.add_argument("--dp", type=int, default=4)
    ap.add_argument("--p1", type=int, default=1)
    ap.add_argument("--p2", type=int, default=1)
    ap.add_argument("--rota1", type=int, default=0)
    ap.add_argument("--rota2", type=int, default=0)
    ap.add_argument("--xbits", default="nt")
    ap.add_argument("--w1bits", default="")
    ap.add_argument("--w2bits", default="")
    ap.add_argument("--pfbits", default="")
    ap.add_argument("--pfdepth", type=int, default=8)
    ap.add_argument("--prio", type=int, default=3)
    ap.add_argument("--delay", type=int, default=0)
    ap.add_argument("--hstride", type=int, default=8)
    ap.add_argument("--gstride", type=int, default=256)
    ap.add_argument("--pf", type=int, default=0)
    ap.add_argument("--pad", type=int, default=0)
    ap.add_argument("--obits", default="sc0 sc1")
    return ap.parse_args(argv)

if __name__ == "__main__":
    opt = parse()
    open(opt.o, "w").write(gen(opt))
```

```python
import argparse, struct

S, D, F = 2048, 640, 1728
KN = "standalone__mixer_token_mlp__prompt_kernel"

WS_H = 0
H_BYTES = 64 * 40 * 1024
WS_G = 0x300000
G_BYTES = 54 * 40 * 1024
WS_FLAG = 0x600000
FLAG_H = 0
FLAG_G = 0x10000
FLAG_BYTES = 0x40000
WS_PROF = 0x700000

LDS_BYTES = 163840
LN_BASE = 131072
LN_ROW = 1344
LF_BASE = 141824
P0_BASE = [0, 49152, 98304, 122880]

sWG = 2
sX, sW1, sW2, sH, sG, sO, sF, sB1, sB2, sD = 20, 24, 28, 32, 36, 40, 44, 48, 52, 56
sWAVE, sXCD, sJ, sFT, sDT1, sST, sDT2, sNONCE = 60, 61, 62, 63, 64, 65, 66, 67
sT0, sT1, sT2, sT3, sT4, sT5 = 68, 69, 70, 71, 72, 73
sROT1, sROT2, sSTEP, sOFF = 74, 75, 76, 77
sM0B, sSPIN = 78, 79
sP = 80
sPROF = 84
sUP = 99
sJLIM, sIDLE = 100, 101
sLNK = 82
sWB = 3

vTID, vLANE = 0, 1
vTR = 2
vA, vA2, vDMA, vT2 = 6, 7, 8, 9
vB1 = 10
vB2, vT = 14, 15
vACC = 16
vRING = 96
vTRU = 176
vL0, vL1, vL2 = 180, 181, 182
vC0 = 184
BI = 186
vPOLL = 194
vX = 196
vCK = 216
vSN = 220
vPQ = 208
vDM = 200

def srd(n): return f"s[{n}:{n+3}]"
def vr(n, c=1): return f"v{n}" if c == 1 else f"v[{n}:{n+c-1}]"
def ar(n, c=1): return f"a{n}" if c == 1 else f"a[{n}:{n+c-1}]"
def f2h(x): return "0x%08x" % struct.unpack("<I", struct.pack("<f", x))[0]
C0 = -2.0 * 0.7978845608028654 * 1.4426950408889634
C1 = C0 * 0.044715

class Asm:
    def __init__(self):
        self.L = []; self.vm = []; self.uid = 0
    def __call__(self, s): self.L.append("    " + s)
    def label(self, s): self.L.append(s + ":")
    def raw(self, s): self.L.append(s)
    def c(self, s): self.L.append("    ; " + s)
    def vmem(self, s, tag):
        self(s); self.vm.append(tag)
    def wait_vm(self, tag):
        hits = [i for i, t in enumerate(self.vm) if t == tag]
        if not hits: return
        n = len(self.vm) - 1 - hits[-1]
        self(f"s_waitcnt vmcnt({min(n, 63)})")
        self.vm = self.vm[hits[-1] + 1:]
    def wait_vm0(self):
        self("s_waitcnt vmcnt(0)"); self.vm = []
    def newlabel(self, p):
        self.uid += 1
        return f"L_{p}_{self.uid}"

def acc1(mt, nt): return vACC + (mt * 5 + nt) * 4
def acc2(mt, nt): return vACC + (mt * 4 + nt) * 4
def wfrag(step, t): return step * 16 + t * 4

def stamp(a, opt, idx, force=False):
    if opt.probe >= 0:
        ins = "s_memtime" if opt.probecyc else "s_memrealtime"
        if idx == opt.probe:
            a(f"{ins} s[{sP}:{sP+1}]")
            a("s_waitcnt lgkmcnt(0)")
            a(f"s_mov_b32 s{sPROF+1}, s{sP}")
        if idx == opt.probe0:
            a(f"{ins} s[{sP}:{sP+1}]")
            a("s_waitcnt lgkmcnt(0)")
            a(f"s_mov_b32 s{sPROF+2}, s{sP}")
        return
    if opt.prof == 4 and idx != 14: return
    if opt.lnprof and idx in (4, 5) and getattr(a, "ln_done", False): return
    if opt.prof:
        a(f"s_mem{'time' if opt.prof == 2 else 'realtime'} s[{sP}:{sP+1}]")
        a("s_waitcnt lgkmcnt(0)")
        a(f"s_mov_b32 s{sPROF+idx}, s{sP}")

def make_srd(a, n, lo, size, add=0):
    if add:
        a(f"s_add_u32 s{n}, s{lo}, {add}")
        a(f"s_addc_u32 s{n+1}, s{lo+1}, 0")
        a(f"s_and_b32 s{n+1}, s{n+1}, 0xffff")
    else:
        a(f"s_mov_b32 s{n}, s{lo}")
        a(f"s_and_b32 s{n+1}, s{lo+1}, 0xffff")
    a(f"s_mov_b32 s{n+2}, {size}")
    a(f"s_mov_b32 s{n+3}, 0x20000")

def nonce_spin(a, opt):
    lp = a.newlabel("nonce"); dn = a.newlabel("nonced")
    a(f"s_cmp_lg_u32 s{sNONCE}, 0")
    a(f"s_cbranch_scc1 {dn}")
    a(f"s_mov_b32 s{sSPIN}, 0")
    a(f"v_mov_b32 v{vT}, 0")
    a.label(lp)
    a(f"buffer_load_dword v{vT2}, v{vT}, {srd(sD)}, 0 offen sc1")
    a("s_waitcnt vmcnt(0)")
    a(f"v_readfirstlane_b32 s{sNONCE}, v{vT2}")
    a(f"s_add_u32 s{sSPIN}, s{sSPIN}, 1")
    a(f"s_cmp_lg_u32 s{sNONCE}, 0")
    a(f"s_cbranch_scc1 {dn}")
    a(f"s_cmp_lt_u32 s{sSPIN}, {opt.spin}")
    a(f"s_cbranch_scc1 {lp}")
    a.label(dn)

def lds_set(a, addr_sgpr_or_imm):
    a(f"v_mov_b32 v{vT}, {addr_sgpr_or_imm}")
    a(f"v_mov_b32 v{vT2}, 1")
    a(f"s_mov_b64 s[{sP}:{sP+1}], exec")
    a("s_mov_b64 exec, 1")
    a(f"ds_write_b32 v{vT}, v{vT2}")
    a(f"s_mov_b64 exec, s[{sP}:{sP+1}]")

def lds_spin(a, opt, addr):
    lp = a.newlabel("lspin"); dn = a.newlabel("lspun")
    a(f"v_mov_b32 v{vT}, {addr}")
    a(f"s_mov_b32 s{sSPIN}, 0")
    a.label(lp)
    a(f"ds_read_b32 v{vT2}, v{vT}")
    a("s_waitcnt lgkmcnt(0)")
    a(f"v_readfirstlane_b32 s{sP}, v{vT2}")
    a(f"s_add_u32 s{sSPIN}, s{sSPIN}, 1")
    a(f"s_cmp_lg_u32 s{sP}, 0")
    a(f"s_cbranch_scc1 {dn}")
    a(f"s_cmp_lt_u32 s{sSPIN}, {opt.spin * 8}")
    a(f"s_cbranch_scc1 {lp}")
    a.label(dn)

def dma_addr(a, stride, s_tile):
    a(f"v_lshrrev_b32 v{vT}, 3, v{vLANE}")
    a(f"v_lshrrev_b32 v{vT2}, 1, v{vT}")
    a(f"v_lshlrev_b32 v{vT2}, 1, v{vT2}")
    a(f"v_and_b32 v{vDM}, 7, v{vLANE}")
    a(f"v_xor_b32 v{vDM}, v{vDM}, v{vT2}")
    a(f"v_lshlrev_b32 v{vDM}, 4, v{vDM}")
    a(f"v_mul_u32_u24 v{vT}, {stride}, v{vT}")
    a(f"v_add_u32 v{vDM}, v{vDM}, v{vT}")
    a(f"s_lshl_b32 s{sT0}, s{s_tile}, 7")
    a(f"v_add_u32 v{vDM}, s{sT0}, v{vDM}")
    for b in range(1, 4):
        a(f"v_add_u32 v{vDM+b}, {b*(8*stride-1024)}, v{vDM}")

def step_off(a, dst, s_base, s_rot, i, nsteps, bytes_per_step):
    a(f"s_add_u32 s{sT4}, s{s_rot}, {i}")
    a(f"s_cmp_ge_u32 s{sT4}, {nsteps}")
    a(f"s_cselect_b32 s{dst}, {nsteps}, 0")
    a(f"s_sub_u32 s{sT4}, s{sT4}, s{dst}")
    a(f"s_mul_i32 s{sT4}, s{sT4}, {bytes_per_step}")
    a(f"s_add_u32 s{dst}, s{sT4}, s{s_base}")

def dma_step(a, srdn, stride, s_rowbase, s_rot, step, nsteps, s_lds, lds_off, tag, bits=""):
    a(f"s_add_u32 m0, s{s_lds}, {lds_off}")
    step_off(a, sOFF, s_rowbase, s_rot, step, nsteps, 32 * stride)
    for blk in range(4):
        a.vmem(f"buffer_load_dwordx4 v{vDM+blk}, {srd(srdn)}, s{sOFF} offen offset:{blk*1024} {bits} lds", tag)

def tr_step(a, vbase, off, step):
    for t in range(4):
        w = wfrag(step, t)
        a(f"ds_read_b64_tr_b16 {ar(w,2)}, v{vbase+t} offset:{off}")
        a(f"ds_read_b64_tr_b16 {ar(w+2,2)}, v{vbase+t} offset:{off+2048}")

def poll(a, opt, vaddr, nd, lanes, sleep=None, pre=0, nload=1):
    if sleep is None: sleep = opt.sleep
    if pre: a(f"s_sleep {pre}")
    lp = a.newlabel("poll"); dn = a.newlabel("polled")
    a(f"s_mov_b32 s{sSPIN}, 0")
    a.label(lp)
    ld = {1: "dword", 2: "dwordx2", 4: "dwordx4"}[nd]
    for k in range(nload):
        a(f"buffer_load_{ld} {vr(vPQ + 4*k, nd)}, v{vaddr}, {srd(sF)}, 0 offen offset:{k*1024} sc1")
    a("s_waitcnt vmcnt(0)")
    first = True
    for k in range(nload):
        for i in range(nd):
            if first:
                a(f"v_cmp_ne_u32 vcc, s{sNONCE}, v{vPQ+4*k+i}"); first = False
            else:
                a(f"v_cmp_ne_u32 s[{sP}:{sP+1}], s{sNONCE}, v{vPQ+4*k+i}")
                a(f"s_or_b64 vcc, vcc, s[{sP}:{sP+1}]")
    if lanes is not None:
        a(f"s_and_b64 vcc, vcc, s[{lanes}:{lanes+1}]")
    a(f"s_add_u32 s{sSPIN}, s{sSPIN}, 1")
    a("s_cmp_eq_u64 vcc, 0")
    a(f"s_cbranch_scc1 {dn}")
    if sleep: a(f"s_sleep {sleep}")
    a(f"s_cmp_lt_u32 s{sSPIN}, {opt.spin}")
    a(f"s_cbranch_scc1 {lp}")
    a.label(dn)
    a.vm = []

def poll_check(a, nd, lanes, ok_label):
    for i in range(nd):
        if i == 0: a(f"v_cmp_ne_u32 vcc, s{sNONCE}, v{vPQ}")
        else:
            a(f"v_cmp_ne_u32 s[{sP}:{sP+1}], s{sNONCE}, v{vPQ+i}")
            a(f"s_or_b64 vcc, vcc, s[{sP}:{sP+1}]")
    if lanes is not None:
        a(f"s_and_b64 vcc, vcc, s[{lanes}:{lanes+1}]")
    a("s_cmp_eq_u64 vcc, 0")
    a(f"s_cbranch_scc1 {ok_label}")

def flag_store(a, s_index_bytes):
    a(f"v_mov_b32 v{vT}, s{s_index_bytes}")
    a(f"v_mov_b32 v{vT2}, s{sNONCE}")
    a(f"s_mov_b64 s[{sP}:{sP+1}], exec")
    a("s_mov_b64 exec, 1")
    a.vmem(f"buffer_store_dword v{vT2}, v{vT}, {srd(sF)}, 0 offen {OPT.fbits}", "flag")
    a(f"s_mov_b64 exec, s[{sP}:{sP+1}]")

def gelu_pairs(a, regs, tmp, fill=None):
    def each(fn):
        for i, r in enumerate(regs): fn(r, tmp + 2 * i)
    each(lambda r, t: a(f"v_pk_mul_f32 {vr(t,2)}, {vr(r,2)}, {vr(r,2)}"))
    each(lambda r, t: a(f"v_pk_fma_f32 {vr(t,2)}, {vr(t,2)}, s[100:101], {vr(vC0,2)}"))
    each(lambda r, t: a(f"v_pk_mul_f32 {vr(t,2)}, {vr(t,2)}, {vr(r,2)}"))
    if fill: fill()
    each(lambda r, t: (a(f"v_exp_f32 v{t}, v{t}"), a(f"v_exp_f32 v{t+1}, v{t+1}")))
    each(lambda r, t: a(f"v_pk_add_f32 {vr(t,2)}, {vr(t,2)}, 1.0 op_sel_hi:[1,0]"))
    each(lambda r, t: (a(f"v_rcp_f32 v{t}, v{t}"), a(f"v_rcp_f32 v{t+1}, v{t+1}")))
    a("s_nop 0")
    each(lambda r, t: a(f"v_pk_mul_f32 {vr(r,2)}, {vr(r,2)}, {vr(t,2)}"))

def w2_slot(step):
    if step < 8: return sM0B, step * 4096, vTR, step * 4096
    if step < 10: return sUP, (step - 8) * 4096, vTRU, (step - 8) * 4096
    return sM0B, (step - 10) * 4096, vTR, (step - 10) * 4096

def w2_dma(a, step):
    sb, off, _, _ = w2_slot(step)
    dma_step(a, sW2, S * 2, sWB, sROT2, step, 14, sb, off, f"w2_{step}", OPT.w2bits)

def w2_dma_parts(a, step):
    sb, off, _, _ = w2_slot(step)
    def setup():
        a(f"s_add_u32 m0, s{sb}, {off}")
        step_off(a, sOFF, sWB, sROT2, step, 14, 32 * S * 2)
    def one(blk):
        return lambda: a.vmem(f"buffer_load_dwordx4 v{vDM+blk}, {srd(sW2)}, s{sOFF} offen offset:{blk*1024} {OPT.w2bits} lds", f"w2_{step}")
    return [setup] + [one(b) for b in range(4)]

def w2_tr(a, step):
    _, _, vb, off = w2_slot(step)
    tr_step(a, vb, off, step)

def gen(opt):
    global OPT
    OPT = opt
    a = Asm()
    NS = opt.depth + 1
    def ring(slot, t): return vRING + slot * 20 + t * 4
    a.raw(f"; @launch grid=(256,1,1) block=(256,1,1) lds={LDS_BYTES}")
    a.raw('.amdgcn_target "amdgcn-amd-amdhsa--gfx950"')
    a.raw(".text")
    a.raw(f".globl {KN}")
    a.raw(".p2align 8")
    a.raw(f".type {KN},@function")
    a.label(KN)
    if opt.cpf: a("s_getpc_b64 s[94:95]")
    a(f"s_cmp_ge_u32 s{sWG}, 256")
    a("s_cbranch_scc1 L_done")
    a("s_load_dwordx16 s[4:19], s[0:1], 0")
    if opt.prof:
        a(f"s_mem{'time' if opt.prof == 2 else 'realtime'} s[{sP}:{sP+1}]")
    if opt.prof:
        for i in range(1, 15): a(f"s_mov_b32 s{sPROF+i}, 0")
    if not opt.prof:
        a("s_memrealtime s[96:97]")
    a(f"v_lshrrev_b32 v{vT}, 6, v{vTID}")
    a(f"v_and_b32 v{vLANE}, 63, v{vTID}")
    a(f"v_readfirstlane_b32 s{sWAVE}, v{vT}")
    a(f"s_and_b32 s{sXCD}, s{sWG}, 7")
    a(f"s_lshr_b32 s{sJ}, s{sWG}, 3")
    if opt.p1 == 2:
        a(f"s_lshr_b32 s{sT1}, s{sXCD}, 1")
        a(f"s_and_b32 s{sT2}, s{sXCD}, 1")
        a(f"s_lshl_b32 s{sT2}, s{sT2}, 2")
        a(f"s_mul_i32 s{sT0}, s{sT1}, 7")
        a(f"s_lshr_b32 s{sFT}, s{sJ}, 2")
        a(f"s_add_u32 s{sFT}, s{sFT}, s{sT0}")
        a(f"s_and_b32 s{sT3}, s{sJ}, 3")
        a(f"s_add_u32 s{sDT1}, s{sT2}, s{sT3}")
        if opt.rot8: a(f"s_lshl_b32 s{sROT1}, s{sDT1}, 1")
        else: a(f"s_lshl_b32 s{sROT1}, s{sT3}, 2")
        a(f"s_cmp_eq_u32 s{sT1}, 3")
        a(f"s_cselect_b32 s{sJLIM}, 24, 28")
        a(f"s_lshl_b32 s{sT0}, s{sXCD}, 2")
        a(f"s_sub_u32 s{sT0}, s{sT0}, 28")
        a(f"s_lshl_b32 s{sT3}, s{sXCD}, 3")
        a(f"s_sub_u32 s{sT3}, s{sT3}, 48")
        a(f"s_cselect_b32 s{sIDLE}, s{sT0}, s{sT0}")
        a(f"s_cmp_ge_u32 s{sXCD}, 6")
        a(f"s_cselect_b32 s{sIDLE}, s{sT3}, s{sT0}")
        a(f"s_add_u32 s{sIDLE}, s{sIDLE}, s{sJ}")
    else:
        a(f"s_lshl_b32 s{sT0}, s{sXCD}, 2")
        a(f"s_mul_i32 s{sT1}, s{sXCD}, 3")
        a(f"s_add_u32 s{sT1}, s{sT1}, 3")
        a(f"s_cmp_lt_u32 s{sXCD}, 3")
        a(f"s_cselect_b32 s{sT0}, s{sT0}, s{sT1}")
        a(f"s_cselect_b32 s{sJLIM}, 32, 24")
        a(f"s_lshr_b32 s{sFT}, s{sJ}, 3")
        a(f"s_add_u32 s{sFT}, s{sFT}, s{sT0}")
        a(f"s_and_b32 s{sDT1}, s{sJ}, 7")
        a(f"s_lshl_b32 s{sROT1}, s{sDT1}, 1")
        a(f"s_lshl_b32 s{sIDLE}, s{sXCD}, 3")
        a(f"s_add_u32 s{sIDLE}, s{sIDLE}, s{sJ}")
        a(f"s_sub_u32 s{sIDLE}, s{sIDLE}, 48")
    if opt.rotg1 == 3:
        a(f"s_mul_i32 s{sT0}, s{sFT}, 11")
        a(f"s_lshr_b32 s{sT0}, s{sT0}, 5")
        a(f"s_mul_i32 s{sT0}, s{sT0}, 3")
        a(f"s_sub_u32 s{sT0}, s{sFT}, s{sT0}")
        a(f"s_mul_i32 s{sT0}, s{sT0}, 5")
        a(f"s_add_u32 s{sROT1}, s{sROT1}, s{sT0}")
        a(f"s_and_b32 s{sROT1}, s{sROT1}, 15")
    if opt.rotg1 == 2:
        a(f"s_and_b32 s{sT0}, s{sFT}, 1")
        a(f"s_lshl_b32 s{sT0}, s{sT0}, 3")
        a(f"s_add_u32 s{sROT1}, s{sROT1}, s{sT0}")
        a(f"s_and_b32 s{sROT1}, s{sROT1}, 15")
    if opt.rota1:
        a(f"s_mul_i32 s{sT0}, s{sFT}, {opt.rota1}")
        a(f"s_add_u32 s{sROT1}, s{sROT1}, s{sT0}")
        a(f"s_and_b32 s{sROT1}, s{sROT1}, 15")
    if opt.p2 == 2:
        a(f"s_lshr_b32 s{sT1}, s{sXCD}, 1")
        a(f"s_and_b32 s{sT2}, s{sXCD}, 1")
        a(f"s_lshl_b32 s{sT2}, s{sT2}, 2")
        a(f"s_lshr_b32 s{sT0}, s{sJ}, 2")
        a(f"s_lshl_b32 s{sST}, s{sT1}, 3")
        a(f"s_add_u32 s{sST}, s{sST}, s{sT0}")
        a(f"s_and_b32 s{sT3}, s{sJ}, 3")
        a(f"s_add_u32 s{sDT2}, s{sT2}, s{sT3}")
        if opt.rot8:
            a(f"s_mul_i32 s{sROT2}, s{sDT2}, 7")
            a(f"s_lshr_b32 s{sROT2}, s{sROT2}, 2")
        else:
            a(f"s_mul_i32 s{sROT2}, s{sT3}, 7")
            a(f"s_lshr_b32 s{sROT2}, s{sROT2}, 1")
    else:
        a(f"s_lshr_b32 s{sT0}, s{sJ}, 3")
        a(f"s_lshl_b32 s{sST}, s{sXCD}, 2")
        a(f"s_add_u32 s{sST}, s{sST}, s{sT0}")
        a(f"s_and_b32 s{sDT2}, s{sJ}, 7")
        a(f"s_mul_i32 s{sROT2}, s{sDT2}, 7")
        a(f"s_lshr_b32 s{sROT2}, s{sROT2}, 2")
    if opt.rotg2:
        if opt.rotg2 == 2:
            a(f"s_and_b32 s{sT0}, s{sST}, 1")
            a(f"s_mul_i32 s{sT0}, s{sT0}, 7")
        else:
            a(f"s_mul_i32 s{sT0}, s{sST}, 11")
            a(f"s_lshr_b32 s{sT0}, s{sT0}, 5")
            a(f"s_mul_i32 s{sT0}, s{sT0}, 3")
            a(f"s_sub_u32 s{sT0}, s{sST}, s{sT0}")
            a(f"s_mul_i32 s{sT0}, s{sT0}, 5")
        a(f"s_add_u32 s{sROT2}, s{sROT2}, s{sT0}")
        a(f"s_cmp_ge_u32 s{sROT2}, 14")
        a(f"s_cselect_b32 s{sT0}, 14, 0")
        a(f"s_sub_u32 s{sROT2}, s{sROT2}, s{sT0}")
    if opt.rota2:
        a(f"s_mul_i32 s{sT0}, s{sST}, {opt.rota2}")
        a(f"s_add_u32 s{sROT2}, s{sROT2}, s{sT0}")
        a(f"s_and_b32 s{sT0}, s{sROT2}, 0xff")
        a(f"s_mul_i32 s{sT0}, s{sROT2}, 18725")
        a(f"s_lshr_b32 s{sT0}, s{sT0}, 18")
        a(f"s_mul_i32 s{sT0}, s{sT0}, 14")
        a(f"s_sub_u32 s{sROT2}, s{sROT2}, s{sT0}")
    if not (opt.rot & 1): a(f"s_mov_b32 s{sROT1}, 0")
    if not (opt.rot & 2): a(f"s_mov_b32 s{sROT2}, 0")
    a(f"s_lshl_b32 s{sM0B}, s{sWAVE}, 15")
    a(f"s_lshl_b32 s{sUP}, s{sWAVE}, 13")
    a(f"s_add_u32 s{sUP}, s{sUP}, 131072")
    def tr_addr(base_sgpr):
        t0, t1, t2 = vX, vX + 1, vX + 2
        a(f"v_lshrrev_b32 v{t0}, 4, v{vLANE}")
        a(f"v_and_b32 v{t1}, 1, v{t0}")
        a(f"v_lshlrev_b32 v{t1}, 2, v{t1}")
        a(f"v_bfe_u32 v{t2}, v{vLANE}, 2, 2")
        a(f"v_add_u32 v{t1}, v{t1}, v{t2}")
        a(f"v_lshrrev_b32 v{t0}, 1, v{t0}")
        a(f"v_lshlrev_b32 v{t0}, 10, v{t0}")
        a(f"v_lshlrev_b32 v{t2}, 7, v{t1}")
        a(f"v_add_u32 v{t0}, v{t0}, v{t2}")
        a(f"v_and_b32 v{t2}, 3, v{vLANE}")
        a(f"v_lshlrev_b32 v{t2}, 3, v{t2}")
        a(f"v_add_u32 v{t0}, v{t0}, v{t2}")
        a(f"v_add_u32 v{t0}, s{base_sgpr}, v{t0}")
        a(f"v_lshrrev_b32 v{t1}, 1, v{t1}")
        for t in range(4):
            a(f"v_xor_b32 v{t2}, {t}, v{t1}")
            a(f"v_lshlrev_b32 v{t2}, 5, v{t2}")
            a(f"v_add_u32 v{vTR+t}, v{t0}, v{t2}")
    def w1_dma(i): dma_step(a, sW1, F * 2, sWB, sROT1, i, 16, sM0B, (i % 8) * 4096, f"w1_{i}", "nt" if i < opt.nta else opt.w1bits)
    def w1_stream(first, dp, hold=0):
        retired = 0
        def retire():
            nonlocal retired
            a.wait_vm(f"w1_{retired}")
            if retired: a("s_waitcnt lgkmcnt(0)")
            tr_step(a, vTR, (retired % 8) * 4096, retired)
            retired += 1
        for i in range(first, 16):
            while retired <= i - dp: retire()
            if i >= 8:
                while retired <= i - 8: retire()
                if retired == i - 7: a("s_waitcnt lgkmcnt(0)")
            w1_dma(i)
        while retired < 16 - hold: retire()
        def finish():
            while retired < 16: retire()
            a("s_waitcnt lgkmcnt(0)")
        if not hold: finish()
        return finish
    dma_addr(a, F * 2, sFT)
    a(f"s_mul_i32 s{sWB}, s{sWAVE}, {512*F*2}")
    a.c("LayerNorm: wave w normalises rows 32*ks + 16*(w>>1) + 4*q + 2*(w&1) + (0,1), 32 lanes per row")
    XR, XF, TM = 96, 108, 130
    a(f"s_lshr_b32 s{sT0}, s{sWG}, 2")
    a(f"s_and_b32 s{sT1}, s{sWG}, 3")
    a(f"s_lshl_b32 s{sT2}, s{sT0}, 5")
    a(f"s_lshr_b32 s{sT3}, s{sWAVE}, 1")
    a(f"s_lshl_b32 s{sT3}, s{sT3}, 4")
    a(f"s_add_u32 s{sT2}, s{sT2}, s{sT3}")
    a(f"s_lshl_b32 s{sT3}, s{sT1}, 2")
    a(f"s_add_u32 s{sT2}, s{sT2}, s{sT3}")
    a(f"s_and_b32 s{sT3}, s{sWAVE}, 1")
    a(f"s_lshl_b32 s{sT3}, s{sT3}, 1")
    a(f"s_add_u32 s{sT2}, s{sT2}, s{sT3}")
    a(f"s_mul_i32 s{sT2}, s{sT2}, 1280")
    a(f"v_lshrrev_b32 v{TM}, 5, v{vLANE}")
    a(f"v_and_b32 v{TM+1}, 31, v{vLANE}")
    a(f"v_lshlrev_b32 v{TM+1}, 3, v{TM+1}")
    a(f"v_mul_u32_u24 v{TM+2}, 1280, v{TM}")
    a(f"v_add_u32 v{TM+2}, v{TM+2}, v{TM+1}")
    a(f"v_mov_b32 v{vT}, 0")
    a("s_waitcnt lgkmcnt(0)")
    if opt.prof: a(f"s_mov_b32 s{sPROF}, s{sP}")
    make_srd(a, sD, 16, 256)
    a(f"s_cmp_lg_u32 s{sWG}, 0")
    a("s_cbranch_scc1 L_nononce")
    a(f"s_cmp_lg_u32 s{sWAVE}, 3")
    a("s_cbranch_scc1 L_nononce")
    a(f"s_or_b32 s{sNONCE}, s{sP if opt.prof else 96}, 1")
    a(f"v_mov_b32 v{vT2}, s{sNONCE}")
    a(f"s_mov_b64 s[{sP+2}:{sP+3}], exec")
    a("s_mov_b64 exec, 1")
    a(f"buffer_store_dword v{vT2}, v{vT}, {srd(sD)}, 0 offen sc1")
    a(f"s_mov_b64 exec, s[{sP+2}:{sP+3}]")
    a.label("L_nononce")
    make_srd(a, sX, 4, S * D * 2)
    for i in range(5):
        a.vmem(f"buffer_load_dwordx2 {vr(XR+2*i,2)}, v{TM+2}, {srd(sX)}, s{sT2} offen offset:{i*256} {opt.xbits}", "x")
    make_srd(a, sW1, 6, S * F * 2)
    if opt.xbar: a("s_barrier")
    a(f"s_cmp_ge_u32 s{sJ}, s{sJLIM}")
    a("s_cbranch_scc1 L_ln_now1")
    for i in range(opt.nearly): w1_dma(i)
    a.label("L_ln_now1")
    if opt.cpf:
        a(f"s_cmp_lg_u32 s{sWAVE}, 3")
        a("s_cbranch_scc1 L_nocpf")
        a(f"s_lshl_b32 s{sT3}, s{sJ}, 11")
        a(f"v_lshlrev_b32 v{vX}, 4, v{vLANE}")
        a(f"v_add_u32 v{vX}, s{sT3}, v{vX}")
        a(f"v_add_u32 v{vX+1}, 1024, v{vX}")
        for h in range(2):
            a(f"v_min_u32 v{vX+h}, L_codeend-{KN}-36, v{vX+h}")
            a(f"global_load_dwordx4 {vr(240+4*h,4)}, v{vX+h}, s[94:95]")
        a.label("L_nocpf")
    make_srd(a, sH, 18, H_BYTES, WS_H)
    make_srd(a, sF, 18, FLAG_BYTES, WS_FLAG)
    a(f"s_mul_i32 s{sSTEP}, s{sT0}, 40960")
    a(f"s_lshl_b32 s{sT1}, s{sT1}, 8")
    a(f"s_add_u32 s{sSTEP}, s{sSTEP}, s{sT1}")
    a(f"s_lshl_b32 s{sT3}, s{sWAVE}, 1")
    a(f"v_add_u32 v{TM+4}, s{sT3}, v{TM}")
    a(f"v_mul_u32_u24 v{TM+4}, {LN_ROW}, v{TM+4}")
    a(f"v_add_u32 v{TM+4}, v{TM+4}, v{TM+1}")
    a(f"v_add_u32 v{TM+4}, {LN_BASE}, v{TM+4}")
    a(f"s_mul_i32 s{sT3}, s{sWAVE}, 12")
    a(f"s_cmp_eq_u32 s{sWAVE}, 3")
    a(f"s_cselect_b32 s{sT3}, 32, s{sT3}")
    a(f"v_lshrrev_b32 v{TM+6}, 4, v{vLANE}")
    a(f"v_add_u32 v{TM+6}, s{sT3}, v{TM+6}")
    a(f"v_bfe_u32 v{TM+5}, v{vLANE}, 2, 2")
    a(f"v_mul_u32_u24 v{TM+5}, {LN_ROW}, v{TM+5}")
    a(f"v_lshlrev_b32 v{TM+7}, 5, v{TM+6}")
    a(f"v_add_u32 v{TM+5}, v{TM+5}, v{TM+7}")
    a(f"v_and_b32 v{TM+7}, 3, v{vLANE}")
    a(f"v_lshlrev_b32 v{TM+7}, 3, v{TM+7}")
    a(f"v_add_u32 v{TM+5}, v{TM+5}, v{TM+7}")
    a(f"v_add_u32 v{TM+5}, {LN_BASE}, v{TM+5}")
    a(f"v_lshlrev_b32 v{TM+6}, 10, v{TM+6}")
    a(f"v_and_b32 v{TM+7}, 15, v{vLANE}")
    a(f"v_lshlrev_b32 v{TM+7}, 4, v{TM+7}")
    a(f"v_add_u32 v{TM+6}, v{TM+6}, v{TM+7}")
    tr_addr(sM0B)
    a(f"s_mov_b32 s{sT0}, 0xffff0000")
    nc = 2 if opt.cpf else 0
    a(f"s_cmp_ge_u32 s{sJ}, s{sJLIM}")
    a("s_cbranch_scc1 L_ln_idle")
    a(f"s_cmp_eq_u32 s{sWAVE}, 3")
    a("s_cbranch_scc1 L_ln_w3")
    a(f"s_waitcnt vmcnt({4*opt.nearly})")
    a("s_branch L_ln_go")
    a.label("L_ln_w3")
    a(f"s_waitcnt vmcnt({4*opt.nearly + nc})")
    a("s_branch L_ln_go")
    a.label("L_ln_idle")
    a(f"s_cmp_eq_u32 s{sWAVE}, 3")
    a("s_cbranch_scc1 L_ln_idle3")
    a("s_waitcnt vmcnt(0)")
    a("s_branch L_ln_go")
    a.label("L_ln_idle3")
    a(f"s_waitcnt vmcnt({nc})")
    a.label("L_ln_go")
    stamp(a, opt, 1)
    nmid = [opt.nearly]
    def mid_step(tag):
        if nmid[0] < opt.nearly + opt.nmid:
            a(f"s_cmp_ge_u32 s{sJ}, s{sJLIM}")
            a(f"s_cbranch_scc1 L_mid_{tag}")
            w1_dma(nmid[0]); nmid[0] += 1
            a.label(f"L_mid_{tag}")
    if opt.unsafe & 2: a(f"buffer_load_dword v{vPOLL}, v{vT}, {srd(sD)}, 0 offen sc1")
    mid_step("a")
    for i in range(10):
        a(f"v_lshlrev_b32 v{XF+2*i}, 16, v{XR+i}")
        a(f"v_and_b32 v{XF+2*i+1}, s{sT0}, v{XR+i}")
    SM = TM + 8
    a(f"v_pk_add_f32 {vr(SM,2)}, {vr(XF,2)}, {vr(XF+4,2)}")
    a(f"v_pk_add_f32 {vr(SM+2,2)}, {vr(XF+2,2)}, {vr(XF+6,2)}")
    for i in range(4, 10):
        k = i % 2
        a(f"v_pk_add_f32 {vr(SM+2*k,2)}, {vr(SM+2*k,2)}, {vr(XF+2*i,2)}")
    def reduce_row(dst):
        a(f"v_pk_add_f32 {vr(SM,2)}, {vr(SM,2)}, {vr(SM+2,2)}")
        a(f"v_add_f32 v{dst}, v{SM}, v{SM+1}")
        for rot in (8, 4, 2, 1):
            a("s_nop 1")
            a(f"v_add_f32_dpp v{dst}, v{dst}, v{dst} row_ror:{rot} row_mask:0xf bank_mask:0xf")
        a(f"v_mov_b32 v{SM}, v{dst}")
        a("s_nop 1")
        a(f"v_permlane16_swap_b32 v{dst}, v{SM}")
        a("s_nop 1")
        a(f"v_add_f32 v{dst}, v{dst}, v{SM}")
    MN = TM + 12
    reduce_row(MN)
    mid_step("b")
    a(f"v_mul_f32 v{MN}, {f2h(1.0/640.0)}, v{MN}")
    a(f"v_mov_b32 v{MN+1}, v{MN}")
    for i in range(10):
        a(f"v_pk_add_f32 {vr(XF+2*i,2)}, {vr(XF+2*i,2)}, {vr(MN,2)} neg_lo:[0,1] neg_hi:[0,1]")
    for k in range(2):
        a(f"v_pk_mul_f32 {vr(SM+2*k,2)}, {vr(XF+2*k,2)}, {vr(XF+2*k,2)}")
    for i in range(2, 10):
        k = i % 2
        a(f"v_pk_fma_f32 {vr(SM+2*k,2)}, {vr(XF+2*i,2)}, {vr(XF+2*i,2)}, {vr(SM+2*k,2)}")
    reduce_row(MN)
    mid_step("c")
    a(f"v_mov_b32 v{MN+1}, {f2h(1e-5)}")
    a(f"v_fmac_f32 v{MN+1}, {f2h(1.0/640.0)}, v{MN}")
    a(f"v_rsq_f32 v{MN}, v{MN+1}")
    a("s_nop 0")
    a(f"v_mov_b32 v{MN+1}, v{MN}")
    for i in range(10):
        a(f"v_pk_mul_f32 {vr(XF+2*i,2)}, {vr(XF+2*i,2)}, {vr(MN,2)}")
    for i in range(10):
        a(f"v_cvt_pk_bf16_f32 v{XR+i}, v{XF+2*i}, v{XF+2*i+1}")
    for i in range(5):
        a(f"ds_write_b64 v{TM+4}, {vr(XR+2*i,2)} offset:{i*256}")
    a("s_waitcnt lgkmcnt(0)")
    if opt.unsafe & 2:
        a("s_waitcnt vmcnt(0)")
        a(f"v_readfirstlane_b32 s{sNONCE}, v{vPOLL}")
        nonce_spin(a, opt)
    a("s_barrier")
    for i in range(2):
        a(f"ds_read_b64_tr_b16 {vr(XF+4*i,2)}, v{TM+5} offset:{i*128}")
        a(f"ds_read_b64_tr_b16 {vr(XF+4*i+2,2)}, v{TM+5} offset:{i*128+4*LN_ROW}")
    a(f"s_cmp_ge_u32 s{sWAVE}, 2")
    a("s_cbranch_scc1 L_ln_two")
    a(f"ds_read_b64_tr_b16 {vr(XF+8,2)}, v{TM+5} offset:{2*128}")
    a(f"ds_read_b64_tr_b16 {vr(XF+10,2)}, v{TM+5} offset:{2*128+4*LN_ROW}")
    a("s_waitcnt lgkmcnt(0)")
    a(f"s_add_u32 s{sT0}, s{sSTEP}, {2*4096}")
    a(f"buffer_store_dwordx4 {vr(XF+8,4)}, v{TM+6}, {srd(sH)}, s{sT0} offen {opt.hbits}")
    a.label("L_ln_two")
    a("s_waitcnt lgkmcnt(0)")
    for i in range(2):
        a(f"s_add_u32 s{sT0}, s{sSTEP}, {i*4096}")
        a(f"buffer_store_dwordx4 {vr(XF+4*i,4)}, v{TM+6}, {srd(sH)}, s{sT0} offen {opt.hbits}")
    if not (opt.unsafe & 2): a(f"buffer_load_dword v{vPOLL}, v{vT}, {srd(sD)}, 0 offen sc1")
    stamp(a, opt, 2)
    if opt.unsafe & 2:
        a("s_barrier")
        a(f"s_cmp_lg_u32 s{sWAVE}, 0")
        a("s_cbranch_scc1 L_noflag0")
        a(f"s_lshl_b32 s{sT0}, s{sWG}, 2")
        flag_store(a, sT0)
        a.label("L_noflag0")
    a(f"s_cmp_ge_u32 s{sJ}, s{sJLIM}")
    a("s_cbranch_scc1 L_ln_idle2")
    ne = opt.nearly + opt.nmid
    a.vm = [f"w1_{i}" for i in range(ne)]
    for i in range(ne, ne + opt.npost): w1_dma(i)
    if not (opt.unsafe & 2): a(f"s_waitcnt vmcnt({4*opt.npost})")
    a("s_branch L_ln_go2")
    a.label("L_ln_idle2")
    if not (opt.unsafe & 2): a("s_waitcnt vmcnt(0)")
    a.label("L_ln_go2")
    if not (opt.unsafe & 2):
        a(f"v_readfirstlane_b32 s{sNONCE}, v{vPOLL}")
        nonce_spin(a, opt)
        a("s_barrier")
        a(f"s_cmp_lg_u32 s{sWAVE}, 0")
        a("s_cbranch_scc1 L_noflag")
        a(f"s_lshl_b32 s{sT0}, s{sWG}, 2")
        keep = list(a.vm)
        flag_store(a, sT0)
        a.vm = keep
        a.label("L_noflag")
    stamp(a, opt, 3)
    a(f"s_cmp_ge_u32 s{sJ}, s{sJLIM}")
    a("s_cbranch_scc1 L_nogemm1")
    if opt.sent:
        for i in range(4): a(f"v_mov_b32 v{vSN+i}, -1")
        a(f"s_lshl_b32 s{sT0}, s{sFT}, 1")
        a(f"s_and_b32 s{sT1}, s{sWAVE}, 1")
        a(f"s_add_u32 s{sT0}, s{sT0}, s{sT1}")
        a(f"s_mul_i32 s{sT0}, s{sT0}, 40960")
        a(f"s_mul_i32 s{sT1}, s{sDT1}, 5120")
        a(f"s_add_u32 s{sT0}, s{sT0}, s{sT1}")
        a(f"s_cmp_ge_u32 s{sWAVE}, 2")
        a(f"s_cselect_b32 s{sT1}, 3072, 0")
        a(f"s_movk_i32 s{sT2}, 2048")
        a(f"s_cselect_b32 s{sT2}, 4096, s{sT2}")
        a(f"s_add_u32 s{sT2}, s{sT2}, s{sT0}")
        a(f"s_add_u32 s{sT0}, s{sT0}, s{sT1}")
        make_srd(a, sG, 18, G_BYTES, WS_G)
        a(f"v_lshlrev_b32 v{vX}, 4, v{vLANE}")
        a.vmem(f"buffer_store_dwordx4 {vr(vSN,4)}, v{vX}, {srd(sG)}, s{sT0} offen sc1", "sent")
        a.vmem(f"buffer_store_dwordx4 {vr(vSN,4)}, v{vX}, {srd(sG)}, s{sT0} offen offset:1024 sc1", "sent")
        a.vmem(f"buffer_store_dwordx4 {vr(vSN,4)}, v{vX}, {srd(sG)}, s{sT2} offen sc1", "sent")
    w1_finish = w1_stream(opt.nearly + opt.nmid + opt.npost, opt.dp, opt.hold1)

    def common_setup(retr=True):
        make_srd(a, sH, 18, H_BYTES, WS_H)
        make_srd(a, sF, 18, FLAG_BYTES, WS_FLAG)
        make_srd(a, sB1, 8, F * 2)
        make_srd(a, sW2, 10, F * S * 2)
        make_srd(a, sB2, 12, S * 2)
        make_srd(a, sO, 14, S * D * 2)
        make_srd(a, sG, 18, G_BYTES, WS_G)
        a(f"v_lshrrev_b32 v{vT}, 4, v{vLANE}")
        a(f"v_lshlrev_b32 v{vT}, 3, v{vT}")
        a(f"s_and_b32 s{sT0}, s{sWAVE}, 1")
        a(f"s_lshl_b32 s{sT0}, s{sT0}, 6")
        a(f"s_lshl_b32 s{sT1}, s{sFT}, 7")
        a(f"s_add_u32 s{sT0}, s{sT0}, s{sT1}")
        a.vmem(f"buffer_load_dwordx2 {vr(vB1,2)}, v{vT}, {srd(sB1)}, s{sT0} offen", "b")
        a.vmem(f"buffer_load_dwordx2 {vr(vB1+2,2)}, v{vT}, {srd(sB1)}, s{sT0} offen offset:32", "b")
        a(f"v_and_b32 v{vT}, 15, v{vLANE}")
        a(f"v_lshlrev_b32 v{vT}, 1, v{vT}")
        a(f"s_lshl_b32 s{sT0}, s{sST}, 7")
        a(f"s_lshl_b32 s{sT1}, s{sWAVE}, 5")
        a(f"s_add_u32 s{sT0}, s{sT0}, s{sT1}")
        a.vmem(f"buffer_load_ushort v{vB2}, v{vT}, {srd(sB2)}, s{sT0} offen", "b")
        dma_addr(a, S * 2, sST)
        a(f"s_mul_i32 s{sWB}, s{sWAVE}, {448*S*2}")
        if retr: tr_addr(sM0B)
        a(f"s_sub_u32 s{sT0}, s{sUP}, s{sM0B}")
        for t in range(4):
            a(f"v_add_u32 v{vTRU+t}, s{sT0}, v{vTR+t}")
        a(f"v_lshlrev_b32 v{vL0}, 4, v{vLANE}")
        a(f"v_add_u32 v{vL1}, 65536, v{vL0}")
        a(f"v_add_u32 v{vL2}, 131072, v{vL0}")

    a.label("L_w1_ready")
    stamp(a, opt, 4)
    vm_keep = list(a.vm)
    common_setup(retr=False)
    a(f"s_mul_i32 s{sT0}, s{sDT1}, 5120")
    a(f"v_add_u32 v{vA}, s{sT0}, v{vL0}")
    a(f"v_add_u32 v{vA2}, 4096, v{vA}")
    a(f"s_cmp_lg_u32 s{sWAVE}, {opt.pollw}")
    a("s_cbranch_scc1 L_hpolled")
    poll(a, opt, vL0, 4, None, opt.sleeph, opt.preh, 1)
    a.label("L_hpolled")
    a.vm = vm_keep + ["b", "b", "b"]
    a("s_barrier")
    stamp(a, opt, 5)

    def a_loads(srdn, step, nsteps, s_rot):
        slot = step % NS
        step_off(a, sOFF, sSTEP, s_rot, step, nsteps, 40960)
        return [f"buffer_load_dwordx4 {vr(ring(slot,t),4)}, v{vA if t < 4 else vA2}, {srd(srdn)}, s{sOFF} offen offset:{(t*1024) if t < 4 else 0} {opt.abits}" for t in range(5)]

    fixups = []
    routines = {}
    def check_instrs(regs):
        ins = [f"v_max3_u32 v{vCK}, v{regs[0]}, v{regs[1]}, v{regs[2]}"]
        rest = regs[3:]
        while len(rest) >= 2:
            ins.append(f"v_max3_u32 v{vCK}, v{vCK}, v{rest[0]}, v{rest[1]}"); rest = rest[2:]
        if rest: ins.append(f"v_max_u32 v{vCK}, v{vCK}, v{rest[0]}")
        ins.append(f"v_cmp_eq_u32 vcc, -1, v{vCK}")
        return ins
    def check_branch(routine, steps):
        stub, back = a.newlabel("stub"), a.newlabel("back")
        a(f"s_cbranch_vccnz {stub}")
        a.label(back)
        fixups.append((stub, routine, back)); routines[routine] = steps
    def frag_regs(slot, t): return list(range(ring(slot, t), ring(slot, t) + 4))

    def main_loop(srdn, nsteps, s_rot, tagp, mfma, stamp0, tail, nuni, pre=None, validate=False):
        for st in range(opt.depth):
            for o, ins in enumerate(a_loads(srdn, st, nsteps, s_rot)): a.vmem(ins, f"{tagp}{st}_{o}")
        if pre: pre()
        for st in range(nuni):
            nx = st + opt.depth
            nxt = a_loads(srdn, nx, nsteps, s_rot) if nx < nsteps else None
            a.wait_vm(f"{tagp}{st}_4")
            if st == 0 and stamp0 is not None: stamp(a, opt, stamp0)
            if validate:
                for ins in check_instrs(frag_regs(st % NS, 0)): a(ins)
                check_branch(f"L_fix_{tagp}{st}", [st])
            for o in range(5):
                if nxt: a.vmem(nxt[o], f"{tagp}{nx}_{o}")
                chk = check_instrs(frag_regs(st % NS, o + 1)) if (validate and o < 4) else []
                for i in range(4):
                    mfma(st, o, i, st % NS)
                    if i < len(chk): a(chk[i])
                if chk: check_branch(f"L_fix_{tagp}{st}", [st])
                if tail: tail(st, o)

    def emit_fixups(srdn, nsteps, s_rot):
        for stub, routine, back in fixups:
            a.label(stub)
            a(f"s_call_b64 s[{sLNK}:{sLNK+1}], {routine}")
            a(f"s_branch {back}")
        for routine, steps in routines.items():
            lp, dn = a.newlabel("fixl"), a.newlabel("fixd")
            a.label(routine)
            a(f"s_mov_b32 s{sSPIN}, 0")
            a.label(lp)
            regs = []
            for st in steps:
                step_off(a, sT3, sSTEP, s_rot, st, nsteps, 40960)
                for t in range(5):
                    a(f"buffer_load_dwordx4 {vr(ring(st % NS, t),4)}, v{vA if t < 4 else vA2}, {srd(srdn)}, s{sT3} offen offset:{(t*1024) if t < 4 else 0} {opt.abits}")
                    regs += frag_regs(st % NS, t)
            a("s_waitcnt vmcnt(0)")
            for ins in check_instrs(regs): a(ins)
            a(f"s_cbranch_vccz {dn}")
            a("s_sleep 4")
            a(f"s_add_u32 s{sSPIN}, s{sSPIN}, 1")
            a(f"s_cmp_lt_u32 s{sSPIN}, {opt.spin}")
            a(f"s_cbranch_scc1 {lp}")
            a.label(dn)
            a(f"s_setpc_b64 s[{sLNK}:{sLNK+1}]")

    def tile_tail(nsteps, tagp, first, last, frag_of, mfma_tile, write_tile, extra, validate=False):
        ic = [0]
        done_at = {}
        queue = []
        extra = list(extra)
        def emit(fn):
            fn(); ic[0] += 1
        def filler():
            if queue and ic[0] - done_at[queue[0]] >= 9:
                t = queue.pop(0); emit(lambda: write_tile(t)); return
            if extra: emit(extra.pop(0))
        checked = set()
        tiles = list(first) + list(last)
        for i in range(0, len(tiles), 2):
            pair = tiles[i:i + 2]
            for t in pair:
                for st in (nsteps - 2, nsteps - 1): a.wait_vm(f"{tagp}{st}_{frag_of(t)}")
            if validate:
                fresh = sorted(set(frag_of(t) for t in pair) - checked)
                if fresh:
                    regs = []
                    for f in fresh:
                        for st in (nsteps - 2, nsteps - 1): regs += frag_regs(st % NS, f)
                    for ins in check_instrs(regs): emit(lambda: a(ins))
                    check_branch(f"L_fix_{tagp}tail", [nsteps - 2, nsteps - 1])
                    checked.update(fresh)
            for st in (nsteps - 2, nsteps - 1):
                for t in pair:
                    emit(lambda: mfma_tile(st, t))
                    if st == nsteps - 1:
                        done_at[t] = ic[0]
                        if t in first: queue.append(t)
                    filler()
        while extra: emit(extra.pop(0))
        while queue:
            while ic[0] - done_at[queue[0]] < 9: emit(lambda: a("s_nop 0"))
            t = queue.pop(0); emit(lambda: write_tile(t))

    a(f"s_mul_i32 s{sSTEP}, s{sWAVE}, {16*40960}")
    def mfma1(st, nt, mt, slot):
        c = "0" if st == 0 else vr(acc1(mt, nt), 4)
        a(f"v_mfma_f32_16x16x32_bf16 {vr(acc1(mt,nt),4)}, {ar(wfrag(st,mt),4)}, {vr(ring(slot,nt),4)}, {c}")
    parts13 = w2_dma_parts(a, 0) if opt.t13 else []
    def tail1(st, o):
        if st == 13 and parts13:
            if o == 0: parts13[0]()
            else: parts13[o]()
    main_loop(sH, 16, sROT1, "h", mfma1, 6, tail1, 14, w1_finish if opt.hold1 else None)

    a(f"s_mov_b32 s100, {f2h(C1)}"); a(f"s_mov_b32 s101, {f2h(C1)}")
    a(f"v_mov_b32 v{vC0}, {f2h(C0)}"); a(f"v_mov_b32 v{vC0+1}, {f2h(C0)}")
    def lds_ref(addr):
        if addr < 65536: return vL0, addr
        if addr < 131072: return vL1, addr - 65536
        return vL2, addr - 131072
    def owner1(p, nt): return p + (0 if nt < 3 else 2)
    units = [(p, nt) for p in range(2) for nt in range(5)]
    def red1_addr(src, u):
        k = [x for x in units if owner1(*x) != src].index(u)
        return src * 32768 + 24576 + k * 2048 if k < 4 else 131072 + src * 8192 + (k - 4) * 2048
    saved_vm = list(a.vm)
    for w in range(4):
        if w < 3:
            a(f"s_cmp_lg_u32 s{sWAVE}, {w}")
            a(f"s_cbranch_scc1 L_ep1_{w+1}")
        a.vm = list(saved_vm)
        nis = [1 if opt.t13 else 0]
        def more(n, limit):
            for _ in range(n):
                if nis[0] < limit:
                    w2_dma(a, nis[0]); nis[0] += 1
        tl = [(2 * p + hf, nt) for nt in range(5) for p in range(2) for hf in range(2)]
        first = [t for t in tl if owner1(t[0] // 2, t[1]) != w]
        last = [t for t in tl if owner1(t[0] // 2, t[1]) == w]
        def wr1(t):
            vb, off = lds_ref(red1_addr(w, (t[0] // 2, t[1])) + (t[0] & 1) * 1024)
            a(f"ds_write_b128 v{vb}, {vr(acc1(*t),4)} offset:{off}")
        extra = []
        for _ in range(opt.tt):
            extra += w2_dma_parts(a, nis[0]); nis[0] += 1
        tile_tail(16, "h", first, last, lambda t: t[1], lambda st, t: mfma1(st, t[1], t[0], st % NS), wr1, extra)
        stamp(a, opt, 7)
        more(opt.e1, 6)
        a("s_waitcnt lgkmcnt(0)")
        a("s_barrier")
        own_u = [u for u in units if owner1(*u) == w]
        RT = vRING
        n = 0
        for u in own_u:
            for src in range(4):
                if src == w: continue
                for hf in range(2):
                    vb, off = lds_ref(red1_addr(src, u) + hf * 1024)
                    a(f"ds_read_b128 {vr(RT + n*4, 4)}, v{vb} offset:{off}")
                    n += 1
        a.wait_vm("b")
        for i in range(4):
            a(f"v_lshlrev_b32 v{BI+2*i}, 16, v{vB1+i}")
            a(f"v_and_b32 v{BI+2*i+1}, 0xffff0000, v{vB1+i}")
        for u in own_u:
            p, nt = u
            for hf in range(2):
                r = acc1(2*p+hf, nt)
                a(f"v_pk_add_f32 {vr(r,2)}, {vr(r,2)}, {vr(BI+4*hf,2)}")
                a(f"v_pk_add_f32 {vr(r+2,2)}, {vr(r+2,2)}, {vr(BI+4*hf+2,2)}")
        n = 0
        tot = len(own_u) * 6
        for u in own_u:
            p, nt = u
            for si in range(3):
                for hf in range(2):
                    a(f"s_waitcnt lgkmcnt({min(15, tot - n - 1)})")
                    r = acc1(2*p+hf, nt)
                    a(f"v_pk_add_f32 {vr(r,2)}, {vr(r,2)}, {vr(RT+n*4,2)}")
                    a(f"v_pk_add_f32 {vr(r+2,2)}, {vr(r+2,2)}, {vr(RT+n*4+2,2)}")
                    n += 1
        a("s_barrier")
        regs = []
        for u in own_u:
            p, nt = u
            for hf in range(2):
                r = acc1(2*p+hf, nt)
                regs += [r, r + 2]
        more(opt.e2, 10)
        gelu_pairs(a, regs, RT, fill=lambda: more(opt.e3, 10))
        a(f"s_lshl_b32 s{sT0}, s{sFT}, 1")
        a(f"s_add_u32 s{sT0}, s{sT0}, {w & 1}")
        a(f"s_mul_i32 s{sT0}, s{sT0}, 40960")
        a(f"s_mul_i32 s{sT1}, s{sDT1}, 5120")
        a(f"s_add_u32 s{sT0}, s{sT0}, s{sT1}")
        late_stores = []
        a(f"s_mov_b32 s{sT2}, s{sT0}")
        for i, u in enumerate(own_u):
            p, nt = u
            o = RT + 64 + 4 * i
            r0, r1 = acc1(2*p, nt), acc1(2*p+1, nt)
            a(f"v_cvt_pk_bf16_f32 v{o}, v{r0}, v{r0+1}")
            a(f"v_cvt_pk_bf16_f32 v{o+1}, v{r0+2}, v{r0+3}")
            a(f"v_cvt_pk_bf16_f32 v{o+2}, v{r1}, v{r1+1}")
            a(f"v_cvt_pk_bf16_f32 v{o+3}, v{r1+2}, v{r1+3}")
            if opt.sent:
                for k in range(4): a(f"v_min_u32 v{o+k}, 0xfffffffe, v{o+k}")
            a(f"s_add_u32 s{sT1}, s{sT0}, {nt*1024}")
            late_stores.append((o, nt))
            if not opt.forcefix:
                a.vmem(f"buffer_store_dwordx4 {vr(o,4)}, v{vL0}, {srd(sG)}, s{sT1} offen {opt.gbits}", "g")
        stamp(a, opt, 8)
        def g_flag():
            a(f"s_lshl_b32 s{sT0}, s{sDT1}, 5")
            a(f"s_add_u32 s{sT0}, s{sT0}, s{sFT}")
            a(f"s_mul_i32 s{sT0}, s{sT0}, {opt.gstride}")
            a(f"s_add_u32 s{sT0}, s{sT0}, {FLAG_G + 4*w}")
            flag_store(a, sT0)
            stamp(a, opt, 9)
        if opt.sent or (opt.unsafe & 1): g_flag()
        if opt.forcefix:
            for _ in range(opt.forcefix): a("s_sleep 100")
            for o, nt in late_stores:
                a(f"s_add_u32 s{sT1}, s{sT2}, {nt*1024}")
                a.vmem(f"buffer_store_dwordx4 {vr(o,4)}, v{vL0}, {srd(sG)}, s{sT1} offen {opt.gbits}", "g")
        more(opt.nb, 10)
        a.wait_vm("w2_3")
        if nis[0] >= 4:
            for st in range(4):
                w2_tr(a, st)
                if st % 2 == 1: a("s_waitcnt lgkmcnt(0)")
        if nis[0] == 10 and opt.nb2:
            for st in range(10, 10 + opt.nb2): w2_dma(a, st)
            nis[0] += opt.nb2
        if not (opt.sent or (opt.unsafe & 1)):
            a.wait_vm("g")
            g_flag()
        assert nis[0] >= 4
        more(10, 10)
        more(4, 14)
        for st in range(4, 10):
            a.wait_vm(f"w2_{st}")
            w2_tr(a, st)
            if st % 2 == 1: a("s_waitcnt lgkmcnt(0)")
        a("s_branch L_pre2")
        if w < 3: a.label(f"L_ep1_{w+1}")

    a.label("L_nogemm1")
    a.vm = []
    common_setup()
    if False:
        a(f"s_lshl_b32 s{sT0}, s{sWAVE}, 6")
        a(f"v_add_u32 v{vX}, s{sT0}, v{vLANE}")
        a(f"v_mul_u32_u24 v{vX}, {opt.hstride}, v{vX}")
        poll(a, opt, vX, 2, None)
        if opt.idlewait > 1:
            a(f"s_sleep {opt.idlewait}")
    if opt.pf == 3:
        a(f"s_lshl_b32 s{sT0}, s{sIDLE}, 2")
        a(f"s_add_u32 s{sT0}, s{sT0}, s{sWAVE}")
        a(f"s_lshl_b32 s{sT0}, s{sT0}, 10")
        for k in range(44):
            o = vRING + (k % 16) * 4
            a.vmem(f"buffer_load_dwordx4 {vr(o,4)}, v{vL0}, {srd(sW2)}, s{sT0} offen {opt.pfbits}", f"pf{k}")
            a(f"s_add_u32 s{sT0}, s{sT0}, {160*1024}")
            if k >= opt.pfdepth: a.wait_vm(f"pf{k-opt.pfdepth}")
        a.wait_vm0()
    if opt.pf == 2:
        assert opt.p1 == 2 and opt.p2 == 1
        a(f"s_cmp_lt_u32 s{sJ}, 28")
        a("s_cbranch_scc1 L_nopf")
        a(f"s_sub_u32 s{sT0}, s{sJ}, 28")
        a(f"s_lshl_b32 s{sT0}, s{sT0}, 2")
        a(f"s_add_u32 s{sT0}, s{sT0}, s{sWAVE}")
        a(f"s_lshl_b32 s{sT0}, s{sT0}, 13")
        a(f"s_lshl_b32 s{sT1}, s{sXCD}, 9")
        a(f"s_add_u32 s{sT0}, s{sT0}, s{sT1}")
        a(f"v_lshrrev_b32 v{vX}, 5, v{vLANE}")
        a(f"v_lshlrev_b32 v{vX}, 12, v{vX}")
        a(f"v_and_b32 v{vX+1}, 31, v{vLANE}")
        a(f"v_lshlrev_b32 v{vX+1}, 4, v{vX+1}")
        a(f"v_add_u32 v{vX}, v{vX}, v{vX+1}")
        keep = list(a.vm)
        for k in range(54):
            o = vRING + (k % 16) * 4
            a.vmem(f"buffer_load_dwordx4 {vr(o,4)}, v{vX}, {srd(sW2)}, s{sT0} offen", f"pf{k}")
            a(f"s_add_u32 s{sT0}, s{sT0}, {16*8192}")
            if k >= opt.pfdepth: a.wait_vm(f"pf{k-opt.pfdepth}")
        a.wait_vm0()
        a.label("L_nopf")
        a.vm = keep
    for st in range(10): w2_dma(a, st)
    for st in range(4):
        a.wait_vm(f"w2_{st}")
        w2_tr(a, st)
        if st % 2 == 1: a("s_waitcnt lgkmcnt(0)")
    for st in range(10, 14): w2_dma(a, st)
    for st in range(4, 10):
        a.wait_vm(f"w2_{st}")
        w2_tr(a, st)
        if st % 2 == 1: a("s_waitcnt lgkmcnt(0)")

    a.label("L_pre2")
    a(f"s_mul_i32 s{sT0}, s{sDT2}, 5120")
    a(f"v_add_u32 v{vA}, s{sT0}, v{vL0}")
    a(f"v_add_u32 v{vA2}, 4096, v{vA}")
    def w2_finish():
        a.wait_vm("w2all")
        a("s_waitcnt lgkmcnt(0)")
        for st in range(10, 14):
            w2_tr(a, st)
            if st % 2 == 1: a("s_waitcnt lgkmcnt(0)")
    if not opt.hold2:
        a.vm = ["w2all"]
        w2_finish()
    stamp(a, opt, 10)
    if opt.onepoll & 2:
        a(f"s_cmp_lg_u32 s{sWAVE}, {opt.pollw}")
        a("s_cbranch_scc1 L_gpolled")
        a(f"s_lshl_b32 s{sT0}, s{sDT2}, 5")
        a(f"s_mul_i32 s{sT0}, s{sT0}, {opt.gstride}")
        a(f"s_add_u32 s{sT0}, s{sT0}, {FLAG_G}")
        a(f"v_mul_u32_u24 v{vX}, {opt.gstride}, v{vLANE}")
        a(f"v_add_u32 v{vX}, s{sT0}, v{vX}")
        a(f"s_mov_b32 s{sP+2}, 0x7ffffff")
        a(f"s_mov_b32 s{sP+3}, 0")
        poll(a, opt, vX, 4, sP + 2, opt.sleep, opt.preg)
        a.label("L_gpolled")
        a("s_barrier")
    else:
        a(f"s_lshl_b32 s{sT0}, s{sDT2}, 5")
        a(f"s_mul_i32 s{sT1}, s{sWAVE}, 7")
        a(f"s_add_u32 s{sT0}, s{sT0}, s{sT1}")
        a(f"s_mul_i32 s{sT0}, s{sT0}, {opt.gstride}")
        a(f"s_add_u32 s{sT0}, s{sT0}, {FLAG_G}")
        a(f"v_mul_u32_u24 v{vX}, {opt.gstride}, v{vLANE}")
        a(f"v_add_u32 v{vX}, s{sT0}, v{vX}")
        a(f"s_cmp_eq_u32 s{sWAVE}, 3")
        a(f"s_cselect_b32 s{sP+2}, 0x3f, 0x7f")
        a(f"s_mov_b32 s{sP+3}, 0")
        poll(a, opt, vX, 4, sP + 2, opt.sleep, opt.preg)
    a.vm = ["w2all"] if opt.hold2 else []
    stamp(a, opt, 11)
    a(f"s_mul_i32 s{sSTEP}, s{sWAVE}, {14*40960}")
    def mfma2(st, mt, nt, slot):
        c = "0" if st == 0 else vr(acc2(mt, nt), 4)
        a(f"v_mfma_f32_16x16x32_bf16 {vr(acc2(mt,nt),4)}, {vr(ring(slot,mt),4)}, {ar(wfrag(st,nt),4)}, {c}")
    main_loop(sG, 14, sROT2, "g", mfma2, 12, None, 12, w2_finish if opt.hold2 else None, validate=bool(opt.sent))
    saved_vm2 = list(a.vm)
    a(f"v_and_b32 v{vT}, 15, v{vLANE}")
    a(f"s_lshl_b32 s{sT0}, s{sWAVE}, 4")
    a(f"v_add_u32 v{vT}, s{sT0}, v{vT}")
    a(f"v_mul_u32_u24 v{vA}, 1280, v{vT}")
    a(f"v_lshrrev_b32 v{vT}, 4, v{vLANE}")
    a(f"v_lshlrev_b32 v{vT}, 3, v{vT}")
    a(f"v_add_u32 v{vA}, v{vA}, v{vT}")
    a(f"s_mul_i32 s{sT0}, s{sST}, {64*1280}")
    a(f"s_mul_i32 s{sT1}, s{sDT2}, 160")
    a(f"s_add_u32 s{sOFF}, s{sT0}, s{sT1}")
    a(f"v_lshlrev_b32 v{vC0}, 16, v{vB2}")
    a(f"v_lshlrev_b32 v{vC0+1}, 16, v{vB2}")
    a(f"v_sub_u32 v{vA2}, v{vA}, v{vT}")
    a(f"v_bfe_u32 v{vT}, v{vLANE}, 4, 1")
    a(f"v_lshlrev_b32 v{vT}, 5, v{vT}")
    a(f"v_add_u32 v{vA2}, v{vA2}, v{vT}")
    a(f"v_bfe_u32 v{vT}, v{vLANE}, 5, 1")
    a(f"v_lshlrev_b32 v{vT}, 4, v{vT}")
    a(f"v_add_u32 v{vA2}, v{vA2}, v{vT}")
    def red2_addr(src, nt, mt):
        k = [x for x in range(4) if x != src].index(nt)
        return src * 32768 + (k * 5 + mt) * 1024
    for w in range(4):
        if w < 3:
            a(f"s_cmp_lg_u32 s{sWAVE}, {w}")
            a(f"s_cbranch_scc1 L_ep2_{w+1}")
        a.vm = list(saved_vm2)
        tl = [(mt, nt) for mt in range(5) for nt in range(4)]
        def wr2(t):
            vb, off = lds_ref(red2_addr(w, t[1], t[0]))
            a(f"ds_write_b128 v{vb}, {vr(acc2(*t),4)} offset:{off}")
        tile_tail(14, "g", [t for t in tl if t[1] != w], [t for t in tl if t[1] == w], lambda t: t[0],
                  lambda st, t: mfma2(st, t[0], t[1], st % NS), wr2, [], validate=bool(opt.sent))
        stamp(a, opt, 13)
        a("s_waitcnt lgkmcnt(0)")
        a("s_barrier")
        RT = vRING
        n = 0
        for mt in range(5):
            for src in range(4):
                if src == w: continue
                vb, off = lds_ref(red2_addr(src, w, mt))
                a(f"ds_read_b128 {vr(RT+n*4,4)}, v{vb} offset:{off}")
                n += 1
        n = 0
        for mt in range(5):
            r = acc2(mt, w)
            for si in range(3):
                a(f"s_waitcnt lgkmcnt({14 - n})")
                a(f"v_pk_add_f32 {vr(r,2)}, {vr(r,2)}, {vr(RT+n*4,2)}")
                a(f"v_pk_add_f32 {vr(r+2,2)}, {vr(r+2,2)}, {vr(RT+n*4+2,2)}")
                n += 1
            a(f"v_pk_add_f32 {vr(r,2)}, {vr(r,2)}, {vr(vC0,2)}")
            a(f"v_pk_add_f32 {vr(r+2,2)}, {vr(r+2,2)}, {vr(vC0,2)}")
            o = RT + 64 + 2 * mt
            a(f"v_cvt_pk_bf16_f32 v{o}, v{r}, v{r+1}")
            a(f"v_cvt_pk_bf16_f32 v{o+1}, v{r+2}, v{r+3}")
            if not opt.wide or mt == 4:
                a(f"buffer_store_dwordx2 {vr(o,2)}, v{vA}, {srd(sO)}, s{sOFF} offen offset:{mt*32} {opt.obits}")
            elif mt % 2 == 1:
                a("s_nop 1")
                a(f"v_permlane16_swap_b32 v{o-2}, v{o}")
                a(f"v_permlane16_swap_b32 v{o-1}, v{o+1}")
                a(f"buffer_store_dwordx4 {vr(o-2,4)}, v{vA2}, {srd(sO)}, s{sOFF} offen offset:{(mt-1)*32} {opt.obits}")
        a("s_branch L_fin")
        if w < 3: a.label(f"L_ep2_{w+1}")
    a.label("L_fin")
    if opt.probe >= 0:
        if opt.probe == 14:
            a("s_waitcnt vmcnt(0)")
            stamp(a, opt, 14)
        a(f"s_cmp_lg_u32 s{sWG}, {opt.probewg}")
        a("s_cbranch_scc1 L_done")
        a(f"s_cmp_lg_u32 s{sWAVE}, {opt.probew}")
        a("s_cbranch_scc1 L_done")
        ref = sNONCE if opt.probeabs else (sPROF + 2 if opt.probe0 >= 0 else 96)
        a(f"s_sub_u32 s{sT1}, s{sPROF+1}, s{ref}")
        if opt.probecyc: a(f"s_lshr_b32 s{sT1}, s{sT1}, 2")
        else: a(f"s_lshl_b32 s{sT1}, s{sT1}, 2")
        a(f"s_add_u32 s{sT1}, s{sT1}, 4000")
        a.label("L_probe")
        a(f"s_memrealtime s[{sP}:{sP+1}]")
        a("s_waitcnt lgkmcnt(0)")
        a(f"s_sub_u32 s{sT0}, s{sP}, s96")
        a(f"s_cmp_lt_u32 s{sT0}, s{sT1}")
        a("s_cbranch_scc1 L_probe")
    if opt.pad:
        a.label("L_pad")
        a(f"s_memrealtime s[{sP}:{sP+1}]")
        a("s_waitcnt lgkmcnt(0)")
        a(f"s_sub_u32 s{sT0}, s{sP}, s96")
        a(f"s_cmp_lt_u32 s{sT0}, {opt.pad}")
        a("s_cbranch_scc1 L_pad")
    if opt.prof:
        a("s_waitcnt vmcnt(0)")
        stamp(a, opt, 14)
        make_srd(a, sX, 18, 65536, WS_PROF)
        a(f"s_lshl_b32 s{sT0}, s{sWG}, 2")
        a(f"s_add_u32 s{sT0}, s{sT0}, s{sWAVE}")
        a(f"s_lshl_b32 s{sT0}, s{sT0}, 6")
        a(f"v_mov_b32 v{vT}, s{sT0}")
        a("s_mov_b64 exec, 1")
        for i in range(15):
            a(f"v_mov_b32 v100, s{sPROF+i}")
            a(f"buffer_store_dword v100, v{vT}, {srd(sX)}, 0 offen offset:{4*i}")
            a("s_nop 1")
        a("s_waitcnt vmcnt(0)")
    a.label("L_done")
    a("s_endpgm")
    if opt.sent: emit_fixups(sG, 14, sROT2)
    a.label("L_codeend")
    a.raw('.section .rodata,"a"')
    a.raw(".p2align 6")
    a.raw(f".amdhsa_kernel {KN}")
    for l in ["next_free_vgpr 512", "next_free_sgpr 102", "accum_offset 256", "group_segment_fixed_size 0",
              "kernarg_size 64", "user_sgpr_count 2", "user_sgpr_kernarg_segment_ptr 1",
              "system_sgpr_workgroup_id_x 1", "float_denorm_mode_32 3"]:
        a.raw(f"  .amdhsa_{l}")
    a.raw(".end_amdhsa_kernel")
    return "\n".join(a.L) + "\n"

def parse(argv=None):
    ap = argparse.ArgumentParser()
    ap.add_argument("-o", default="standalone__mixer_token_mlp__prompt.s")
    ap.add_argument("--prof", type=int, default=0)
    ap.add_argument("--rot", type=int, default=3)
    ap.add_argument("--spin", type=int, default=20000)
    ap.add_argument("--sleep", type=int, default=8)
    ap.add_argument("--depth", type=int, default=3)
    ap.add_argument("--lnprof", type=int, default=0)
    ap.add_argument("--hbits", default="sc1")
    ap.add_argument("--pfwait", type=int, default=1)
    ap.add_argument("--hold", type=int, default=0)
    ap.add_argument("--probe", type=int, default=-1)
    ap.add_argument("--probe0", type=int, default=-1)
    ap.add_argument("--probecyc", type=int, default=0)
    ap.add_argument("--probeabs", type=int, default=0)
    ap.add_argument("--probewg", type=int, default=100)
    ap.add_argument("--probew", type=int, default=2)
    ap.add_argument("--rot8", type=int, default=1)
    ap.add_argument("--cpf", type=int, default=1)
    ap.add_argument("--cpfw", type=int, default=3)
    ap.add_argument("--wide", type=int, default=1)
    ap.add_argument("--idlewait", type=int, default=0)
    ap.add_argument("--sleeph", type=int, default=8)
    ap.add_argument("--preh", type=int, default=0)
    ap.add_argument("--preg", type=int, default=0)
    ap.add_argument("--onepoll", type=int, default=3)
    ap.add_argument("--pollw", type=int, default=3)
    ap.add_argument("--nta", type=int, default=0)
    ap.add_argument("--rotg1", type=int, default=0)
    ap.add_argument("--rotg2", type=int, default=0)
    ap.add_argument("--npost", type=int, default=3)
    ap.add_argument("--xbar", type=int, default=1)
    ap.add_argument("--hold1", type=int, default=4)
    ap.add_argument("--hold2", type=int, default=1)
    ap.add_argument("--nmid", type=int, default=0)
    ap.add_argument("--gbits", default="sc1")
    ap.add_argument("--fbits", default="sc1")
    ap.add_argument("--abits", default="sc1")
    ap.add_argument("--unsafe", type=int, default=0)
    ap.add_argument("--sent", type=int, default=1)
    ap.add_argument("--forcefix", type=int, default=0)
    ap.add_argument("--t13", type=int, default=1)
    ap.add_argument("--tt", type=int, default=2)
    ap.add_argument("--e2", type=int, default=0)
    ap.add_argument("--e3", type=int, default=0)
    ap.add_argument("--nb2", type=int, default=0)
    ap.add_argument("--e1", type=int, default=1)
    ap.add_argument("--nb", type=int, default=2)
    ap.add_argument("--nearly", type=int, default=2)
    ap.add_argument("--dpl", type=int, default=5)
    ap.add_argument("--dp", type=int, default=4)
    ap.add_argument("--p1", type=int, default=1)
    ap.add_argument("--p2", type=int, default=1)
    ap.add_argument("--rota1", type=int, default=0)
    ap.add_argument("--rota2", type=int, default=0)
    ap.add_argument("--xbits", default="nt")
    ap.add_argument("--w1bits", default="")
    ap.add_argument("--w2bits", default="")
    ap.add_argument("--pfbits", default="")
    ap.add_argument("--pfdepth", type=int, default=8)
    ap.add_argument("--prio", type=int, default=3)
    ap.add_argument("--delay", type=int, default=0)
    ap.add_argument("--hstride", type=int, default=8)
    ap.add_argument("--gstride", type=int, default=256)
    ap.add_argument("--pf", type=int, default=0)
    ap.add_argument("--pad", type=int, default=0)
    ap.add_argument("--obits", default="sc0 sc1")
    return ap.parse_args(argv)

if __name__ == "__main__":
    opt = parse()
    open(opt.o, "w").write(gen(opt))
```

```python
import argparse, struct

S, D, F = 2048, 640, 1728
KN = "standalone__mixer_token_mlp__prompt_kernel"

WS_H = 0
H_BYTES = 64 * 40 * 1024
WS_G = 0x300000
G_BYTES = 54 * 40 * 1024
WS_FLAG = 0x600000
FLAG_H = 0
FLAG_G = 0x10000
FLAG_BYTES = 0x40000
WS_PROF = 0x700000

LDS_BYTES = 163840
LN_BASE = 131072
LN_ROW = 1344
LF_BASE = 141824
P0_BASE = [0, 49152, 98304, 122880]

sWG = 2
sX, sW1, sW2, sH, sG, sO, sF, sB1, sB2, sD = 20, 24, 28, 32, 36, 40, 44, 48, 52, 56
sWAVE, sXCD, sJ, sFT, sDT1, sST, sDT2, sNONCE = 60, 61, 62, 63, 64, 65, 66, 67
sT0, sT1, sT2, sT3, sT4, sT5 = 68, 69, 70, 71, 72, 73
sROT1, sROT2, sSTEP, sOFF = 74, 75, 76, 77
sM0B, sSPIN = 78, 79
sP = 80
sPROF = 84
sUP = 99
sJLIM, sIDLE = 100, 101
sLNK = 82
sWB = 3

vTID, vLANE = 0, 1
vTR = 2
vA, vA2, vDMA, vT2 = 6, 7, 8, 9
vB1 = 10
vB2, vT = 14, 15
vACC = 16
vRING = 96
vTRU = 176
vL0, vL1, vL2 = 180, 181, 182
vC0 = 184
BI = 186
vPOLL = 194
vX = 196
vOA, vOA2 = 224, 225
vCK = 216
vSN = 220
vPQ = 208
vDM = 200

def srd(n): return f"s[{n}:{n+3}]"
def vr(n, c=1): return f"v{n}" if c == 1 else f"v[{n}:{n+c-1}]"
def ar(n, c=1): return f"a{n}" if c == 1 else f"a[{n}:{n+c-1}]"
def f2h(x): return "0x%08x" % struct.unpack("<I", struct.pack("<f", x))[0]
C0 = -2.0 * 0.7978845608028654 * 1.4426950408889634
C1 = C0 * 0.044715

class Asm:
    def __init__(self):
        self.L = []; self.vm = []; self.uid = 0
    def __call__(self, s): self.L.append("    " + s)
    def label(self, s): self.L.append(s + ":")
    def raw(self, s): self.L.append(s)
    def c(self, s): self.L.append("    ; " + s)
    def vmem(self, s, tag):
        self(s); self.vm.append(tag)
    def wait_vm(self, tag):
        hits = [i for i, t in enumerate(self.vm) if t == tag]
        if not hits: return
        n = len(self.vm) - 1 - hits[-1]
        self(f"s_waitcnt vmcnt({min(n, 63)})")
        self.vm = self.vm[hits[-1] + 1:]
    def wait_vm0(self):
        self("s_waitcnt vmcnt(0)"); self.vm = []
    def newlabel(self, p):
        self.uid += 1
        return f"L_{p}_{self.uid}"

def acc1(mt, nt): return vACC + (mt * 5 + nt) * 4
def acc2(mt, nt): return vACC + (mt * 4 + nt) * 4
def wfrag(step, t): return step * 16 + t * 4

def stamp(a, opt, idx, force=False):
    if opt.probe >= 0:
        ins = "s_memtime" if opt.probecyc else "s_memrealtime"
        if idx == opt.probe:
            a(f"{ins} s[{sP}:{sP+1}]")
            a("s_waitcnt lgkmcnt(0)")
            a(f"s_mov_b32 s{sPROF+1}, s{sP}")
        if idx == opt.probe0:
            a(f"{ins} s[{sP}:{sP+1}]")
            a("s_waitcnt lgkmcnt(0)")
            a(f"s_mov_b32 s{sPROF+2}, s{sP}")
        return
    if opt.prof == 4 and idx != 14: return
    if opt.lnprof and idx in (4, 5) and getattr(a, "ln_done", False): return
    if opt.prof:
        a(f"s_mem{'time' if opt.prof == 2 else 'realtime'} s[{sP}:{sP+1}]")
        a("s_waitcnt lgkmcnt(0)")
        a(f"s_mov_b32 s{sPROF+idx}, s{sP}")

def make_srd(a, n, lo, size, add=0):
    if add:
        a(f"s_add_u32 s{n}, s{lo}, {add}")
        a(f"s_addc_u32 s{n+1}, s{lo+1}, 0")
        a(f"s_and_b32 s{n+1}, s{n+1}, 0xffff")
    else:
        a(f"s_mov_b32 s{n}, s{lo}")
        a(f"s_and_b32 s{n+1}, s{lo+1}, 0xffff")
    a(f"s_mov_b32 s{n+2}, {size}")
    a(f"s_mov_b32 s{n+3}, 0x20000")

def nonce_spin(a, opt):
    lp = a.newlabel("nonce"); dn = a.newlabel("nonced")
    a(f"s_cmp_lg_u32 s{sNONCE}, 0")
    a(f"s_cbranch_scc1 {dn}")
    a(f"s_mov_b32 s{sSPIN}, 0")
    a(f"v_mov_b32 v{vT}, 0")
    a.label(lp)
    a(f"buffer_load_dword v{vT2}, v{vT}, {srd(sD)}, 0 offen sc1")
    a("s_waitcnt vmcnt(0)")
    a(f"v_readfirstlane_b32 s{sNONCE}, v{vT2}")
    a(f"s_add_u32 s{sSPIN}, s{sSPIN}, 1")
    a(f"s_cmp_lg_u32 s{sNONCE}, 0")
    a(f"s_cbranch_scc1 {dn}")
    a(f"s_cmp_lt_u32 s{sSPIN}, {opt.spin}")
    a(f"s_cbranch_scc1 {lp}")
    a.label(dn)

def lds_set(a, addr_sgpr_or_imm):
    a(f"v_mov_b32 v{vT}, {addr_sgpr_or_imm}")
    a(f"v_mov_b32 v{vT2}, 1")
    a(f"s_mov_b64 s[{sP}:{sP+1}], exec")
    a("s_mov_b64 exec, 1")
    a(f"ds_write_b32 v{vT}, v{vT2}")
    a(f"s_mov_b64 exec, s[{sP}:{sP+1}]")

def lds_spin(a, opt, addr):
    lp = a.newlabel("lspin"); dn = a.newlabel("lspun")
    a(f"v_mov_b32 v{vT}, {addr}")
    a(f"s_mov_b32 s{sSPIN}, 0")
    a.label(lp)
    a(f"ds_read_b32 v{vT2}, v{vT}")
    a("s_waitcnt lgkmcnt(0)")
    a(f"v_readfirstlane_b32 s{sP}, v{vT2}")
    a(f"s_add_u32 s{sSPIN}, s{sSPIN}, 1")
    a(f"s_cmp_lg_u32 s{sP}, 0")
    a(f"s_cbranch_scc1 {dn}")
    a(f"s_cmp_lt_u32 s{sSPIN}, {opt.spin * 8}")
    a(f"s_cbranch_scc1 {lp}")
    a.label(dn)

def dma_addr(a, stride, s_tile):
    a(f"v_lshrrev_b32 v{vT}, 3, v{vLANE}")
    a(f"v_lshrrev_b32 v{vT2}, 1, v{vT}")
    a(f"v_lshlrev_b32 v{vT2}, 1, v{vT2}")
    a(f"v_and_b32 v{vDM}, 7, v{vLANE}")
    a(f"v_xor_b32 v{vDM}, v{vDM}, v{vT2}")
    a(f"v_lshlrev_b32 v{vDM}, 4, v{vDM}")
    a(f"v_mul_u32_u24 v{vT}, {stride}, v{vT}")
    a(f"v_add_u32 v{vDM}, v{vDM}, v{vT}")
    a(f"s_lshl_b32 s{sT0}, s{s_tile}, 7")
    a(f"v_add_u32 v{vDM}, s{sT0}, v{vDM}")
    for b in range(1, 4):
        a(f"v_add_u32 v{vDM+b}, {b*(8*stride-1024)}, v{vDM}")

def step_off(a, dst, s_base, s_rot, i, nsteps, bytes_per_step):
    a(f"s_add_u32 s{sT4}, s{s_rot}, {i}")
    a(f"s_cmp_ge_u32 s{sT4}, {nsteps}")
    a(f"s_cselect_b32 s{dst}, {nsteps}, 0")
    a(f"s_sub_u32 s{sT4}, s{sT4}, s{dst}")
    a(f"s_mul_i32 s{sT4}, s{sT4}, {bytes_per_step}")
    a(f"s_add_u32 s{dst}, s{sT4}, s{s_base}")

def dma_step(a, srdn, stride, s_rowbase, s_rot, step, nsteps, s_lds, lds_off, tag, bits=""):
    a(f"s_add_u32 m0, s{s_lds}, {lds_off}")
    step_off(a, sOFF, s_rowbase, s_rot, step, nsteps, 32 * stride)
    for blk in range(4):
        a.vmem(f"buffer_load_dwordx4 v{vDM+blk}, {srd(srdn)}, s{sOFF} offen offset:{blk*1024} {bits} lds", tag)

def tr_step(a, vbase, off, step):
    for t in range(4):
        w = wfrag(step, t)
        a(f"ds_read_b64_tr_b16 {ar(w,2)}, v{vbase+t} offset:{off}")
        a(f"ds_read_b64_tr_b16 {ar(w+2,2)}, v{vbase+t} offset:{off+2048}")

def poll(a, opt, vaddr, nd, lanes, sleep=None, pre=0, nload=1):
    if sleep is None: sleep = opt.sleep
    if pre: a(f"s_sleep {pre}")
    lp = a.newlabel("poll"); dn = a.newlabel("polled")
    a(f"s_mov_b32 s{sSPIN}, 0")
    a.label(lp)
    ld = {1: "dword", 2: "dwordx2", 4: "dwordx4"}[nd]
    for k in range(nload):
        a(f"buffer_load_{ld} {vr(vPQ + 4*k, nd)}, v{vaddr}, {srd(sF)}, 0 offen offset:{k*1024} sc1")
    a("s_waitcnt vmcnt(0)")
    first = True
    for k in range(nload):
        for i in range(nd):
            if first:
                a(f"v_cmp_ne_u32 vcc, s{sNONCE}, v{vPQ+4*k+i}"); first = False
            else:
                a(f"v_cmp_ne_u32 s[{sP}:{sP+1}], s{sNONCE}, v{vPQ+4*k+i}")
                a(f"s_or_b64 vcc, vcc, s[{sP}:{sP+1}]")
    if lanes is not None:
        a(f"s_and_b64 vcc, vcc, s[{lanes}:{lanes+1}]")
    a(f"s_add_u32 s{sSPIN}, s{sSPIN}, 1")
    a("s_cmp_eq_u64 vcc, 0")
    a(f"s_cbranch_scc1 {dn}")
    if sleep: a(f"s_sleep {sleep}")
    a(f"s_cmp_lt_u32 s{sSPIN}, {opt.spin}")
    a(f"s_cbranch_scc1 {lp}")
    a.label(dn)
    a.vm = []

def poll_check(a, nd, lanes, ok_label):
    for i in range(nd):
        if i == 0: a(f"v_cmp_ne_u32 vcc, s{sNONCE}, v{vPQ}")
        else:
            a(f"v_cmp_ne_u32 s[{sP}:{sP+1}], s{sNONCE}, v{vPQ+i}")
            a(f"s_or_b64 vcc, vcc, s[{sP}:{sP+1}]")
    if lanes is not None:
        a(f"s_and_b64 vcc, vcc, s[{lanes}:{lanes+1}]")
    a("s_cmp_eq_u64 vcc, 0")
    a(f"s_cbranch_scc1 {ok_label}")

def flag_store(a, s_index_bytes):
    a(f"v_mov_b32 v{vT}, s{s_index_bytes}")
    a(f"v_mov_b32 v{vT2}, s{sNONCE}")
    a(f"s_mov_b64 s[{sP}:{sP+1}], exec")
    a("s_mov_b64 exec, 1")
    a.vmem(f"buffer_store_dword v{vT2}, v{vT}, {srd(sF)}, 0 offen {OPT.fbits}", "flag")
    a(f"s_mov_b64 exec, s[{sP}:{sP+1}]")

def gelu_pairs(a, regs, tmp, fill=None):
    def each(fn):
        for i, r in enumerate(regs): fn(r, tmp + 2 * i)
    each(lambda r, t: a(f"v_pk_mul_f32 {vr(t,2)}, {vr(r,2)}, {vr(r,2)}"))
    each(lambda r, t: a(f"v_pk_fma_f32 {vr(t,2)}, {vr(t,2)}, s[100:101], {vr(vC0,2)}"))
    each(lambda r, t: a(f"v_pk_mul_f32 {vr(t,2)}, {vr(t,2)}, {vr(r,2)}"))
    if fill: fill()
    each(lambda r, t: (a(f"v_exp_f32 v{t}, v{t}"), a(f"v_exp_f32 v{t+1}, v{t+1}")))
    each(lambda r, t: a(f"v_pk_add_f32 {vr(t,2)}, {vr(t,2)}, 1.0 op_sel_hi:[1,0]"))
    each(lambda r, t: (a(f"v_rcp_f32 v{t}, v{t}"), a(f"v_rcp_f32 v{t+1}, v{t+1}")))
    a("s_nop 0")
    each(lambda r, t: a(f"v_pk_mul_f32 {vr(r,2)}, {vr(r,2)}, {vr(t,2)}"))

def w2_slot(step):
    if step < 8: return sM0B, step * 4096, vTR, step * 4096
    if step < 10: return sUP, (step - 8) * 4096, vTRU, (step - 8) * 4096
    return sM0B, (step - 10) * 4096, vTR, (step - 10) * 4096

def w2_dma(a, step):
    sb, off, _, _ = w2_slot(step)
    dma_step(a, sW2, S * 2, sWB, sROT2, step, 14, sb, off, f"w2_{step}", OPT.w2bits)

def w2_dma_parts(a, step):
    sb, off, _, _ = w2_slot(step)
    def setup():
        a(f"s_add_u32 m0, s{sb}, {off}")
        step_off(a, sOFF, sWB, sROT2, step, 14, 32 * S * 2)
    def one(blk):
        return lambda: a.vmem(f"buffer_load_dwordx4 v{vDM+blk}, {srd(sW2)}, s{sOFF} offen offset:{blk*1024} {OPT.w2bits} lds", f"w2_{step}")
    return [setup] + [one(b) for b in range(4)]

def w2_tr(a, step):
    _, _, vb, off = w2_slot(step)
    tr_step(a, vb, off, step)

def gen(opt):
    global OPT
    OPT = opt
    a = Asm()
    NS = opt.depth + 1
    def ring(slot, t): return vRING + slot * 20 + t * 4
    a.raw(f"; @launch grid=(256,1,1) block=(256,1,1) lds={LDS_BYTES}")
    a.raw('.amdgcn_target "amdgcn-amd-amdhsa--gfx950"')
    a.raw(".text")
    a.raw(f".globl {KN}")
    a.raw(".p2align 8")
    a.raw(f".type {KN},@function")
    a.label(KN)
    if opt.cpf: a("s_getpc_b64 s[94:95]")
    a(f"s_cmp_ge_u32 s{sWG}, 256")
    a("s_cbranch_scc1 L_done")
    a("s_load_dwordx16 s[4:19], s[0:1], 0")
    if opt.prof:
        a(f"s_mem{'time' if opt.prof == 2 else 'realtime'} s[{sP}:{sP+1}]")
    if opt.prof:
        for i in range(1, 15): a(f"s_mov_b32 s{sPROF+i}, 0")
    if not opt.prof:
        a("s_memrealtime s[96:97]")
    a(f"v_lshrrev_b32 v{vT}, 6, v{vTID}")
    a(f"v_and_b32 v{vLANE}, 63, v{vTID}")
    a(f"v_readfirstlane_b32 s{sWAVE}, v{vT}")
    a(f"s_and_b32 s{sXCD}, s{sWG}, 7")
    a(f"s_lshr_b32 s{sJ}, s{sWG}, 3")
    if opt.p1 == 2:
        a(f"s_lshr_b32 s{sT1}, s{sXCD}, 1")
        a(f"s_and_b32 s{sT2}, s{sXCD}, 1")
        a(f"s_lshl_b32 s{sT2}, s{sT2}, 2")
        a(f"s_mul_i32 s{sT0}, s{sT1}, 7")
        a(f"s_lshr_b32 s{sFT}, s{sJ}, 2")
        a(f"s_add_u32 s{sFT}, s{sFT}, s{sT0}")
        a(f"s_and_b32 s{sT3}, s{sJ}, 3")
        a(f"s_add_u32 s{sDT1}, s{sT2}, s{sT3}")
        if opt.rot8: a(f"s_lshl_b32 s{sROT1}, s{sDT1}, 1")
        else: a(f"s_lshl_b32 s{sROT1}, s{sT3}, 2")
        a(f"s_cmp_eq_u32 s{sT1}, 3")
        a(f"s_cselect_b32 s{sJLIM}, 24, 28")
        a(f"s_lshl_b32 s{sT0}, s{sXCD}, 2")
        a(f"s_sub_u32 s{sT0}, s{sT0}, 28")
        a(f"s_lshl_b32 s{sT3}, s{sXCD}, 3")
        a(f"s_sub_u32 s{sT3}, s{sT3}, 48")
        a(f"s_cselect_b32 s{sIDLE}, s{sT0}, s{sT0}")
        a(f"s_cmp_ge_u32 s{sXCD}, 6")
        a(f"s_cselect_b32 s{sIDLE}, s{sT3}, s{sT0}")
        a(f"s_add_u32 s{sIDLE}, s{sIDLE}, s{sJ}")
    else:
        a(f"s_lshl_b32 s{sT0}, s{sXCD}, 2")
        a(f"s_mul_i32 s{sT1}, s{sXCD}, 3")
        a(f"s_add_u32 s{sT1}, s{sT1}, 3")
        a(f"s_cmp_lt_u32 s{sXCD}, 3")
        a(f"s_cselect_b32 s{sT0}, s{sT0}, s{sT1}")
        a(f"s_cselect_b32 s{sJLIM}, 32, 24")
        a(f"s_lshr_b32 s{sFT}, s{sJ}, 3")
        a(f"s_add_u32 s{sFT}, s{sFT}, s{sT0}")
        a(f"s_and_b32 s{sDT1}, s{sJ}, 7")
        a(f"s_lshl_b32 s{sROT1}, s{sDT1}, 1")
        a(f"s_lshl_b32 s{sIDLE}, s{sXCD}, 3")
        a(f"s_add_u32 s{sIDLE}, s{sIDLE}, s{sJ}")
        a(f"s_sub_u32 s{sIDLE}, s{sIDLE}, 48")
    if opt.rotg1 == 3:
        a(f"s_mul_i32 s{sT0}, s{sFT}, 11")
        a(f"s_lshr_b32 s{sT0}, s{sT0}, 5")
        a(f"s_mul_i32 s{sT0}, s{sT0}, 3")
        a(f"s_sub_u32 s{sT0}, s{sFT}, s{sT0}")
        a(f"s_mul_i32 s{sT0}, s{sT0}, 5")
        a(f"s_add_u32 s{sROT1}, s{sROT1}, s{sT0}")
        a(f"s_and_b32 s{sROT1}, s{sROT1}, 15")
    if opt.rotg1 == 2:
        a(f"s_and_b32 s{sT0}, s{sFT}, 1")
        a(f"s_lshl_b32 s{sT0}, s{sT0}, 3")
        a(f"s_add_u32 s{sROT1}, s{sROT1}, s{sT0}")
        a(f"s_and_b32 s{sROT1}, s{sROT1}, 15")
    if opt.rota1:
        a(f"s_mul_i32 s{sT0}, s{sFT}, {opt.rota1}")
        a(f"s_add_u32 s{sROT1}, s{sROT1}, s{sT0}")
        a(f"s_and_b32 s{sROT1}, s{sROT1}, 15")
    if opt.p2 == 2:
        a(f"s_lshr_b32 s{sT1}, s{sXCD}, 1")
        a(f"s_and_b32 s{sT2}, s{sXCD}, 1")
        a(f"s_lshl_b32 s{sT2}, s{sT2}, 2")
        a(f"s_lshr_b32 s{sT0}, s{sJ}, 2")
        a(f"s_lshl_b32 s{sST}, s{sT1}, 3")
        a(f"s_add_u32 s{sST}, s{sST}, s{sT0}")
        a(f"s_and_b32 s{sT3}, s{sJ}, 3")
        a(f"s_add_u32 s{sDT2}, s{sT2}, s{sT3}")
        if opt.rot8:
            a(f"s_mul_i32 s{sROT2}, s{sDT2}, 7")
            a(f"s_lshr_b32 s{sROT2}, s{sROT2}, 2")
        else:
            a(f"s_mul_i32 s{sROT2}, s{sT3}, 7")
            a(f"s_lshr_b32 s{sROT2}, s{sROT2}, 1")
    else:
        a(f"s_lshr_b32 s{sT0}, s{sJ}, 3")
        a(f"s_lshl_b32 s{sST}, s{sXCD}, 2")
        a(f"s_add_u32 s{sST}, s{sST}, s{sT0}")
        a(f"s_and_b32 s{sDT2}, s{sJ}, 7")
        a(f"s_mul_i32 s{sROT2}, s{sDT2}, 7")
        a(f"s_lshr_b32 s{sROT2}, s{sROT2}, 2")
    if opt.rotg2:
        if opt.rotg2 == 2:
            a(f"s_and_b32 s{sT0}, s{sST}, 1")
            a(f"s_mul_i32 s{sT0}, s{sT0}, 7")
        else:
            a(f"s_mul_i32 s{sT0}, s{sST}, 11")
            a(f"s_lshr_b32 s{sT0}, s{sT0}, 5")
            a(f"s_mul_i32 s{sT0}, s{sT0}, 3")
            a(f"s_sub_u32 s{sT0}, s{sST}, s{sT0}")
            a(f"s_mul_i32 s{sT0}, s{sT0}, 5")
        a(f"s_add_u32 s{sROT2}, s{sROT2}, s{sT0}")
        a(f"s_cmp_ge_u32 s{sROT2}, 14")
        a(f"s_cselect_b32 s{sT0}, 14, 0")
        a(f"s_sub_u32 s{sROT2}, s{sROT2}, s{sT0}")
    if opt.rota2:
        a(f"s_mul_i32 s{sT0}, s{sST}, {opt.rota2}")
        a(f"s_add_u32 s{sROT2}, s{sROT2}, s{sT0}")
        a(f"s_and_b32 s{sT0}, s{sROT2}, 0xff")
        a(f"s_mul_i32 s{sT0}, s{sROT2}, 18725")
        a(f"s_lshr_b32 s{sT0}, s{sT0}, 18")
        a(f"s_mul_i32 s{sT0}, s{sT0}, 14")
        a(f"s_sub_u32 s{sROT2}, s{sROT2}, s{sT0}")
    if not (opt.rot & 1): a(f"s_mov_b32 s{sROT1}, 0")
    if not (opt.rot & 2): a(f"s_mov_b32 s{sROT2}, 0")
    a(f"s_lshl_b32 s{sM0B}, s{sWAVE}, 15")
    a(f"s_lshl_b32 s{sUP}, s{sWAVE}, 13")
    a(f"s_add_u32 s{sUP}, s{sUP}, 131072")
    def tr_addr(base_sgpr):
        t0, t1, t2 = vX, vX + 1, vX + 2
        a(f"v_lshrrev_b32 v{t0}, 4, v{vLANE}")
        a(f"v_and_b32 v{t1}, 1, v{t0}")
        a(f"v_lshlrev_b32 v{t1}, 2, v{t1}")
        a(f"v_bfe_u32 v{t2}, v{vLANE}, 2, 2")
        a(f"v_add_u32 v{t1}, v{t1}, v{t2}")
        a(f"v_lshrrev_b32 v{t0}, 1, v{t0}")
        a(f"v_lshlrev_b32 v{t0}, 10, v{t0}")
        a(f"v_lshlrev_b32 v{t2}, 7, v{t1}")
        a(f"v_add_u32 v{t0}, v{t0}, v{t2}")
        a(f"v_and_b32 v{t2}, 3, v{vLANE}")
        a(f"v_lshlrev_b32 v{t2}, 3, v{t2}")
        a(f"v_add_u32 v{t0}, v{t0}, v{t2}")
        a(f"v_add_u32 v{t0}, s{base_sgpr}, v{t0}")
        a(f"v_lshrrev_b32 v{t1}, 1, v{t1}")
        for t in range(4):
            a(f"v_xor_b32 v{t2}, {t}, v{t1}")
            a(f"v_lshlrev_b32 v{t2}, 5, v{t2}")
            a(f"v_add_u32 v{vTR+t}, v{t0}, v{t2}")
    def w1_dma(i): dma_step(a, sW1, F * 2, sWB, sROT1, i, 16, sM0B, (i % 8) * 4096, f"w1_{i}", "nt" if i < opt.nta else opt.w1bits)
    def w1_stream(first, dp, hold=0):
        retired = 0
        def retire():
            nonlocal retired
            a.wait_vm(f"w1_{retired}")
            if retired: a("s_waitcnt lgkmcnt(0)")
            tr_step(a, vTR, (retired % 8) * 4096, retired)
            retired += 1
        for i in range(first, 16):
            while retired <= i - dp: retire()
            if i >= 8:
                while retired <= i - 8: retire()
                if retired == i - 7: a("s_waitcnt lgkmcnt(0)")
            w1_dma(i)
        while retired < 16 - hold: retire()
        def finish():
            while retired < 16: retire()
            a("s_waitcnt lgkmcnt(0)")
        if not hold: finish()
        return finish
    dma_addr(a, F * 2, sFT)
    a(f"s_mul_i32 s{sWB}, s{sWAVE}, {512*F*2}")
    a.c("LayerNorm: wave w normalises rows 32*ks + 16*(w>>1) + 4*q + 2*(w&1) + (0,1), 32 lanes per row")
    XR, XF, TM = 96, 108, 130
    a(f"s_lshr_b32 s{sT0}, s{sWG}, 2")
    a(f"s_and_b32 s{sT1}, s{sWG}, 3")
    a(f"s_lshl_b32 s{sT2}, s{sT0}, 5")
    a(f"s_lshr_b32 s{sT3}, s{sWAVE}, 1")
    a(f"s_lshl_b32 s{sT3}, s{sT3}, 4")
    a(f"s_add_u32 s{sT2}, s{sT2}, s{sT3}")
    a(f"s_lshl_b32 s{sT3}, s{sT1}, 2")
    a(f"s_add_u32 s{sT2}, s{sT2}, s{sT3}")
    a(f"s_and_b32 s{sT3}, s{sWAVE}, 1")
    a(f"s_lshl_b32 s{sT3}, s{sT3}, 1")
    a(f"s_add_u32 s{sT2}, s{sT2}, s{sT3}")
    a(f"s_mul_i32 s{sT2}, s{sT2}, 1280")
    a(f"v_lshrrev_b32 v{TM}, 5, v{vLANE}")
    a(f"v_and_b32 v{TM+1}, 31, v{vLANE}")
    a(f"v_lshlrev_b32 v{TM+1}, 3, v{TM+1}")
    a(f"v_mul_u32_u24 v{TM+2}, 1280, v{TM}")
    a(f"v_add_u32 v{TM+2}, v{TM+2}, v{TM+1}")
    a(f"v_mov_b32 v{vT}, 0")
    a("s_waitcnt lgkmcnt(0)")
    if opt.prof: a(f"s_mov_b32 s{sPROF}, s{sP}")
    make_srd(a, sD, 16, 256)
    a(f"s_cmp_lg_u32 s{sWG}, 0")
    a("s_cbranch_scc1 L_nononce")
    a(f"s_cmp_lg_u32 s{sWAVE}, 3")
    a("s_cbranch_scc1 L_nononce")
    a(f"s_or_b32 s{sNONCE}, s{sP if opt.prof else 96}, 1")
    a(f"v_mov_b32 v{vT2}, s{sNONCE}")
    a(f"s_mov_b64 s[{sP+2}:{sP+3}], exec")
    a("s_mov_b64 exec, 1")
    a(f"buffer_store_dword v{vT2}, v{vT}, {srd(sD)}, 0 offen sc1")
    a(f"s_mov_b64 exec, s[{sP+2}:{sP+3}]")
    a.label("L_nononce")
    make_srd(a, sX, 4, S * D * 2)
    for i in range(5):
        a.vmem(f"buffer_load_dwordx2 {vr(XR+2*i,2)}, v{TM+2}, {srd(sX)}, s{sT2} offen offset:{i*256} {opt.xbits}", "x")
    make_srd(a, sW1, 6, S * F * 2)
    if opt.xbar: a("s_barrier")
    a(f"s_cmp_ge_u32 s{sJ}, s{sJLIM}")
    a("s_cbranch_scc1 L_ln_now1")
    for i in range(opt.nearly): w1_dma(i)
    a.label("L_ln_now1")
    if opt.cpf:
        a(f"s_cmp_lg_u32 s{sWAVE}, 3")
        a("s_cbranch_scc1 L_nocpf")
        a(f"s_lshl_b32 s{sT3}, s{sJ}, 11")
        a(f"v_lshlrev_b32 v{vX}, 4, v{vLANE}")
        a(f"v_add_u32 v{vX}, s{sT3}, v{vX}")
        a(f"v_add_u32 v{vX+1}, 1024, v{vX}")
        for h in range(2):
            a(f"v_min_u32 v{vX+h}, L_codeend-{KN}-36, v{vX+h}")
            a(f"global_load_dwordx4 {vr(240+4*h,4)}, v{vX+h}, s[94:95]")
        a.label("L_nocpf")
    make_srd(a, sH, 18, H_BYTES, WS_H)
    make_srd(a, sF, 18, FLAG_BYTES, WS_FLAG)
    a(f"s_mul_i32 s{sSTEP}, s{sT0}, 40960")
    a(f"s_lshl_b32 s{sT1}, s{sT1}, 8")
    a(f"s_add_u32 s{sSTEP}, s{sSTEP}, s{sT1}")
    a(f"s_lshl_b32 s{sT3}, s{sWAVE}, 1")
    a(f"v_add_u32 v{TM+4}, s{sT3}, v{TM}")
    a(f"v_mul_u32_u24 v{TM+4}, {LN_ROW}, v{TM+4}")
    a(f"v_add_u32 v{TM+4}, v{TM+4}, v{TM+1}")
    a(f"v_add_u32 v{TM+4}, {LN_BASE}, v{TM+4}")
    a(f"s_mul_i32 s{sT3}, s{sWAVE}, 12")
    a(f"s_cmp_eq_u32 s{sWAVE}, 3")
    a(f"s_cselect_b32 s{sT3}, 32, s{sT3}")
    a(f"v_lshrrev_b32 v{TM+6}, 4, v{vLANE}")
    a(f"v_add_u32 v{TM+6}, s{sT3}, v{TM+6}")
    a(f"v_bfe_u32 v{TM+5}, v{vLANE}, 2, 2")
    a(f"v_mul_u32_u24 v{TM+5}, {LN_ROW}, v{TM+5}")
    a(f"v_lshlrev_b32 v{TM+7}, 5, v{TM+6}")
    a(f"v_add_u32 v{TM+5}, v{TM+5}, v{TM+7}")
    a(f"v_and_b32 v{TM+7}, 3, v{vLANE}")
    a(f"v_lshlrev_b32 v{TM+7}, 3, v{TM+7}")
    a(f"v_add_u32 v{TM+5}, v{TM+5}, v{TM+7}")
    a(f"v_add_u32 v{TM+5}, {LN_BASE}, v{TM+5}")
    a(f"v_lshlrev_b32 v{TM+6}, 10, v{TM+6}")
    a(f"v_and_b32 v{TM+7}, 15, v{vLANE}")
    a(f"v_lshlrev_b32 v{TM+7}, 4, v{TM+7}")
    a(f"v_add_u32 v{TM+6}, v{TM+6}, v{TM+7}")
    tr_addr(sM0B)
    a(f"s_mov_b32 s{sT0}, 0xffff0000")
    nc = 2 if opt.cpf else 0
    a(f"s_cmp_ge_u32 s{sJ}, s{sJLIM}")
    a("s_cbranch_scc1 L_ln_idle")
    a(f"s_cmp_eq_u32 s{sWAVE}, 3")
    a("s_cbranch_scc1 L_ln_w3")
    a(f"s_waitcnt vmcnt({4*opt.nearly})")
    a("s_branch L_ln_go")
    a.label("L_ln_w3")
    a(f"s_waitcnt vmcnt({4*opt.nearly + nc})")
    a("s_branch L_ln_go")
    a.label("L_ln_idle")
    a(f"s_cmp_eq_u32 s{sWAVE}, 3")
    a("s_cbranch_scc1 L_ln_idle3")
    a("s_waitcnt vmcnt(0)")
    a("s_branch L_ln_go")
    a.label("L_ln_idle3")
    a(f"s_waitcnt vmcnt({nc})")
    a.label("L_ln_go")
    stamp(a, opt, 1)
    nmid = [opt.nearly]
    def mid_step(tag):
        if nmid[0] < opt.nearly + opt.nmid:
            a(f"s_cmp_ge_u32 s{sJ}, s{sJLIM}")
            a(f"s_cbranch_scc1 L_mid_{tag}")
            w1_dma(nmid[0]); nmid[0] += 1
            a.label(f"L_mid_{tag}")
    if opt.unsafe & 2: a(f"buffer_load_dword v{vPOLL}, v{vT}, {srd(sD)}, 0 offen sc1")
    mid_step("a")
    for i in range(10):
        a(f"v_lshlrev_b32 v{XF+2*i}, 16, v{XR+i}")
        a(f"v_and_b32 v{XF+2*i+1}, s{sT0}, v{XR+i}")
    SM = TM + 8
    a(f"v_pk_add_f32 {vr(SM,2)}, {vr(XF,2)}, {vr(XF+4,2)}")
    a(f"v_pk_add_f32 {vr(SM+2,2)}, {vr(XF+2,2)}, {vr(XF+6,2)}")
    for i in range(4, 10):
        k = i % 2
        a(f"v_pk_add_f32 {vr(SM+2*k,2)}, {vr(SM+2*k,2)}, {vr(XF+2*i,2)}")
    def reduce_row(dst):
        a(f"v_pk_add_f32 {vr(SM,2)}, {vr(SM,2)}, {vr(SM+2,2)}")
        a(f"v_add_f32 v{dst}, v{SM}, v{SM+1}")
        for rot in (8, 4, 2, 1):
            a("s_nop 1")
            a(f"v_add_f32_dpp v{dst}, v{dst}, v{dst} row_ror:{rot} row_mask:0xf bank_mask:0xf")
        a(f"v_mov_b32 v{SM}, v{dst}")
        a("s_nop 1")
        a(f"v_permlane16_swap_b32 v{dst}, v{SM}")
        a("s_nop 1")
        a(f"v_add_f32 v{dst}, v{dst}, v{SM}")
    MN = TM + 12
    reduce_row(MN)
    mid_step("b")
    a(f"v_mul_f32 v{MN}, {f2h(1.0/640.0)}, v{MN}")
    a(f"v_mov_b32 v{MN+1}, v{MN}")
    for i in range(10):
        a(f"v_pk_add_f32 {vr(XF+2*i,2)}, {vr(XF+2*i,2)}, {vr(MN,2)} neg_lo:[0,1] neg_hi:[0,1]")
    for k in range(2):
        a(f"v_pk_mul_f32 {vr(SM+2*k,2)}, {vr(XF+2*k,2)}, {vr(XF+2*k,2)}")
    for i in range(2, 10):
        k = i % 2
        a(f"v_pk_fma_f32 {vr(SM+2*k,2)}, {vr(XF+2*i,2)}, {vr(XF+2*i,2)}, {vr(SM+2*k,2)}")
    reduce_row(MN)
    mid_step("c")
    a(f"v_mov_b32 v{MN+1}, {f2h(1e-5)}")
    a(f"v_fmac_f32 v{MN+1}, {f2h(1.0/640.0)}, v{MN}")
    a(f"v_rsq_f32 v{MN}, v{MN+1}")
    a("s_nop 0")
    a(f"v_mov_b32 v{MN+1}, v{MN}")
    for i in range(10):
        a(f"v_pk_mul_f32 {vr(XF+2*i,2)}, {vr(XF+2*i,2)}, {vr(MN,2)}")
    for i in range(10):
        a(f"v_cvt_pk_bf16_f32 v{XR+i}, v{XF+2*i}, v{XF+2*i+1}")
    for i in range(5):
        a(f"ds_write_b64 v{TM+4}, {vr(XR+2*i,2)} offset:{i*256}")
    a("s_waitcnt lgkmcnt(0)")
    if opt.unsafe & 2:
        a("s_waitcnt vmcnt(0)")
        a(f"v_readfirstlane_b32 s{sNONCE}, v{vPOLL}")
        nonce_spin(a, opt)
    a("s_barrier")
    for i in range(2):
        a(f"ds_read_b64_tr_b16 {vr(XF+4*i,2)}, v{TM+5} offset:{i*128}")
        a(f"ds_read_b64_tr_b16 {vr(XF+4*i+2,2)}, v{TM+5} offset:{i*128+4*LN_ROW}")
    a(f"s_cmp_ge_u32 s{sWAVE}, 2")
    a("s_cbranch_scc1 L_ln_two")
    a(f"ds_read_b64_tr_b16 {vr(XF+8,2)}, v{TM+5} offset:{2*128}")
    a(f"ds_read_b64_tr_b16 {vr(XF+10,2)}, v{TM+5} offset:{2*128+4*LN_ROW}")
    a("s_waitcnt lgkmcnt(0)")
    a(f"s_add_u32 s{sT0}, s{sSTEP}, {2*4096}")
    a(f"buffer_store_dwordx4 {vr(XF+8,4)}, v{TM+6}, {srd(sH)}, s{sT0} offen {opt.hbits}")
    a.label("L_ln_two")
    a("s_waitcnt lgkmcnt(0)")
    for i in range(2):
        a(f"s_add_u32 s{sT0}, s{sSTEP}, {i*4096}")
        a(f"buffer_store_dwordx4 {vr(XF+4*i,4)}, v{TM+6}, {srd(sH)}, s{sT0} offen {opt.hbits}")
    if not (opt.unsafe & 2): a(f"buffer_load_dword v{vPOLL}, v{vT}, {srd(sD)}, 0 offen sc1")
    stamp(a, opt, 2)
    if opt.unsafe & 2:
        a("s_barrier")
        a(f"s_cmp_lg_u32 s{sWAVE}, 0")
        a("s_cbranch_scc1 L_noflag0")
        a(f"s_lshl_b32 s{sT0}, s{sWG}, 2")
        flag_store(a, sT0)
        a.label("L_noflag0")
    a(f"s_cmp_ge_u32 s{sJ}, s{sJLIM}")
    a("s_cbranch_scc1 L_ln_idle2")
    ne = opt.nearly + opt.nmid
    a.vm = [f"w1_{i}" for i in range(ne)]
    for i in range(ne, ne + opt.npost): w1_dma(i)
    if not (opt.unsafe & 2): a(f"s_waitcnt vmcnt({4*opt.npost})")
    a("s_branch L_ln_go2")
    a.label("L_ln_idle2")
    if not (opt.unsafe & 2): a("s_waitcnt vmcnt(0)")
    a.label("L_ln_go2")
    if not (opt.unsafe & 2):
        a(f"v_readfirstlane_b32 s{sNONCE}, v{vPOLL}")
        nonce_spin(a, opt)
        a("s_barrier")
        a(f"s_cmp_lg_u32 s{sWAVE}, 0")
        a("s_cbranch_scc1 L_noflag")
        a(f"s_lshl_b32 s{sT0}, s{sWG}, 2")
        keep = list(a.vm)
        flag_store(a, sT0)
        a.vm = keep
        a.label("L_noflag")
    stamp(a, opt, 3)
    a(f"s_cmp_ge_u32 s{sJ}, s{sJLIM}")
    a("s_cbranch_scc1 L_nogemm1")
    if opt.sent:
        for i in range(4): a(f"v_mov_b32 v{vSN+i}, -1")
        a(f"s_lshl_b32 s{sT0}, s{sFT}, 1")
        a(f"s_and_b32 s{sT1}, s{sWAVE}, 1")
        a(f"s_add_u32 s{sT0}, s{sT0}, s{sT1}")
        a(f"s_mul_i32 s{sT0}, s{sT0}, 40960")
        a(f"s_mul_i32 s{sT1}, s{sDT1}, 5120")
        a(f"s_add_u32 s{sT0}, s{sT0}, s{sT1}")
        a(f"s_cmp_ge_u32 s{sWAVE}, 2")
        a(f"s_cselect_b32 s{sT1}, 3072, 0")
        a(f"s_movk_i32 s{sT2}, 2048")
        a(f"s_cselect_b32 s{sT2}, 4096, s{sT2}")
        a(f"s_add_u32 s{sT2}, s{sT2}, s{sT0}")
        a(f"s_add_u32 s{sT0}, s{sT0}, s{sT1}")
        make_srd(a, sG, 18, G_BYTES, WS_G)
        a(f"v_lshlrev_b32 v{vX}, 4, v{vLANE}")
        a.vmem(f"buffer_store_dwordx4 {vr(vSN,4)}, v{vX}, {srd(sG)}, s{sT0} offen sc1", "sent")
        a.vmem(f"buffer_store_dwordx4 {vr(vSN,4)}, v{vX}, {srd(sG)}, s{sT0} offen offset:1024 sc1", "sent")
        a.vmem(f"buffer_store_dwordx4 {vr(vSN,4)}, v{vX}, {srd(sG)}, s{sT2} offen sc1", "sent")
    w1_finish = w1_stream(opt.nearly + opt.nmid + opt.npost, opt.dp, opt.hold1)

    def common_setup(retr=True):
        make_srd(a, sH, 18, H_BYTES, WS_H)
        make_srd(a, sF, 18, FLAG_BYTES, WS_FLAG)
        make_srd(a, sB1, 8, F * 2)
        make_srd(a, sW2, 10, F * S * 2)
        make_srd(a, sB2, 12, S * 2)
        make_srd(a, sO, 14, S * D * 2)
        make_srd(a, sG, 18, G_BYTES, WS_G)
        a(f"v_lshrrev_b32 v{vT}, 4, v{vLANE}")
        a(f"v_lshlrev_b32 v{vT}, 3, v{vT}")
        a(f"s_and_b32 s{sT0}, s{sWAVE}, 1")
        a(f"s_lshl_b32 s{sT0}, s{sT0}, 6")
        a(f"s_lshl_b32 s{sT1}, s{sFT}, 7")
        a(f"s_add_u32 s{sT0}, s{sT0}, s{sT1}")
        a.vmem(f"buffer_load_dwordx2 {vr(vB1,2)}, v{vT}, {srd(sB1)}, s{sT0} offen", "b")
        a.vmem(f"buffer_load_dwordx2 {vr(vB1+2,2)}, v{vT}, {srd(sB1)}, s{sT0} offen offset:32", "b")
        a(f"v_and_b32 v{vT}, 15, v{vLANE}")
        a(f"v_lshlrev_b32 v{vT}, 1, v{vT}")
        a(f"s_lshl_b32 s{sT0}, s{sST}, 7")
        a(f"s_lshl_b32 s{sT1}, s{sWAVE}, 5")
        a(f"s_add_u32 s{sT0}, s{sT0}, s{sT1}")
        a.vmem(f"buffer_load_ushort v{vB2}, v{vT}, {srd(sB2)}, s{sT0} offen", "b")
        dma_addr(a, S * 2, sST)
        a(f"s_mul_i32 s{sWB}, s{sWAVE}, {448*S*2}")
        if retr: tr_addr(sM0B)
        a(f"s_sub_u32 s{sT0}, s{sUP}, s{sM0B}")
        for t in range(4):
            a(f"v_add_u32 v{vTRU+t}, s{sT0}, v{vTR+t}")
        a(f"v_lshlrev_b32 v{vL0}, 4, v{vLANE}")
        a(f"v_add_u32 v{vL1}, 65536, v{vL0}")
        a(f"v_add_u32 v{vL2}, 131072, v{vL0}")

    a.label("L_w1_ready")
    stamp(a, opt, 4)
    vm_keep = list(a.vm)
    common_setup(retr=False)
    a(f"s_mul_i32 s{sT0}, s{sDT1}, 5120")
    a(f"v_add_u32 v{vA}, s{sT0}, v{vL0}")
    a(f"v_add_u32 v{vA2}, 4096, v{vA}")
    a(f"s_cmp_lg_u32 s{sWAVE}, {opt.pollw}")
    a("s_cbranch_scc1 L_hpolled")
    poll(a, opt, vL0, 4, None, opt.sleeph, opt.preh, 1)
    a.label("L_hpolled")
    a.vm = vm_keep + ["b", "b", "b"]
    a("s_barrier")
    stamp(a, opt, 5)

    def a_loads(srdn, step, nsteps, s_rot):
        slot = step % NS
        step_off(a, sOFF, sSTEP, s_rot, step, nsteps, 40960)
        return [f"buffer_load_dwordx4 {vr(ring(slot,t),4)}, v{vA if t < 4 else vA2}, {srd(srdn)}, s{sOFF} offen offset:{(t*1024) if t < 4 else 0} {opt.abits}" for t in range(5)]

    fixups = []
    routines = {}
    def check_instrs(regs):
        ins = [f"v_max3_u32 v{vCK}, v{regs[0]}, v{regs[1]}, v{regs[2]}"]
        rest = regs[3:]
        while len(rest) >= 2:
            ins.append(f"v_max3_u32 v{vCK}, v{vCK}, v{rest[0]}, v{rest[1]}"); rest = rest[2:]
        if rest: ins.append(f"v_max_u32 v{vCK}, v{vCK}, v{rest[0]}")
        ins.append(f"v_cmp_eq_u32 vcc, -1, v{vCK}")
        return ins
    def check_branch(routine, steps):
        stub, back = a.newlabel("stub"), a.newlabel("back")
        a(f"s_cbranch_vccnz {stub}")
        a.label(back)
        fixups.append((stub, routine, back)); routines[routine] = steps
    def frag_regs(slot, t): return list(range(ring(slot, t), ring(slot, t) + 4))

    def main_loop(srdn, nsteps, s_rot, tagp, mfma, stamp0, tail, nuni, pre=None, validate=False):
        for st in range(opt.depth):
            for o, ins in enumerate(a_loads(srdn, st, nsteps, s_rot)): a.vmem(ins, f"{tagp}{st}_{o}")
        if pre: pre()
        for st in range(nuni):
            nx = st + opt.depth
            nxt = a_loads(srdn, nx, nsteps, s_rot) if nx < nsteps else None
            a.wait_vm(f"{tagp}{st}_4")
            if st == 0 and stamp0 is not None: stamp(a, opt, stamp0)
            if validate is True:
                for ins in check_instrs(frag_regs(st % NS, 0)): a(ins)
                check_branch(f"L_fix_{tagp}{st}", [st])
            for o in range(5):
                if nxt: a.vmem(nxt[o], f"{tagp}{nx}_{o}")
                chk = check_instrs(frag_regs(st % NS, o + 1)) if (validate is True and o < 4) else []
                if validate == "acc":
                    r = frag_regs(st % NS, o)
                    for i in range(4):
                        mfma(st, o, i, st % NS)
                        if i % 2 == 0: a(f"v_max3_u32 v{vCK}, v{vCK}, v{r[i]}, v{r[i+1]}")
                    continue
                for i in range(4):
                    mfma(st, o, i, st % NS)
                    if i < len(chk): a(chk[i])
                if chk: check_branch(f"L_fix_{tagp}{st}", [st])
                if tail: tail(st, o)

    def emit_fixups(srdn, nsteps, s_rot):
        for stub, routine, back in fixups:
            a.label(stub)
            a(f"s_call_b64 s[{sLNK}:{sLNK+1}], {routine}")
            a(f"s_branch {back}")
        for routine, steps in routines.items():
            lp, dn = a.newlabel("fixl"), a.newlabel("fixd")
            a.label(routine)
            a(f"s_mov_b32 s{sSPIN}, 0")
            a.label(lp)
            regs = []
            for st in steps:
                step_off(a, sT3, sSTEP, s_rot, st, nsteps, 40960)
                for t in range(5):
                    a(f"buffer_load_dwordx4 {vr(ring(st % NS, t),4)}, v{vA if t < 4 else vA2}, {srd(srdn)}, s{sT3} offen offset:{(t*1024) if t < 4 else 0} {opt.abits}")
                    regs += frag_regs(st % NS, t)
            a("s_waitcnt vmcnt(0)")
            for ins in check_instrs(regs): a(ins)
            a(f"s_cbranch_vccz {dn}")
            a("s_sleep 4")
            a(f"s_add_u32 s{sSPIN}, s{sSPIN}, 1")
            a(f"s_cmp_lt_u32 s{sSPIN}, {opt.spin}")
            a(f"s_cbranch_scc1 {lp}")
            a.label(dn)
            a(f"s_setpc_b64 s[{sLNK}:{sLNK+1}]")

    def tile_tail(nsteps, tagp, first, last, frag_of, mfma_tile, write_tile, extra, validate=False):
        ic = [0]
        done_at = {}
        queue = []
        extra = list(extra)
        def emit(fn):
            fn(); ic[0] += 1
        def filler():
            if queue and ic[0] - done_at[queue[0]] >= 9:
                t = queue.pop(0); emit(lambda: write_tile(t)); return
            if extra: emit(extra.pop(0))
        checked = set()
        tiles = list(first) + list(last)
        for i in range(0, len(tiles), 2):
            pair = tiles[i:i + 2]
            for t in pair:
                for st in (nsteps - 2, nsteps - 1): a.wait_vm(f"{tagp}{st}_{frag_of(t)}")
            if validate == "acc":
                fresh = sorted(set(frag_of(t) for t in pair) - checked)
                for f in fresh:
                    for st in (nsteps - 2, nsteps - 1):
                        r = frag_regs(st % NS, f)
                        extra.insert(0, (lambda x, y: (lambda: a(f"v_max3_u32 v{vCK}, v{vCK}, v{x}, v{y}")))(r[0], r[1]))
                        extra.insert(0, (lambda x, y: (lambda: a(f"v_max3_u32 v{vCK}, v{vCK}, v{x}, v{y}")))(r[2], r[3]))
                checked.update(fresh)
            if validate is True:
                fresh = sorted(set(frag_of(t) for t in pair) - checked)
                if fresh:
                    regs = []
                    for f in fresh:
                        for st in (nsteps - 2, nsteps - 1): regs += frag_regs(st % NS, f)
                    for ins in check_instrs(regs): emit(lambda: a(ins))
                    check_branch(f"L_fix_{tagp}tail", [nsteps - 2, nsteps - 1])
                    checked.update(fresh)
            for st in (nsteps - 2, nsteps - 1):
                for t in pair:
                    emit(lambda: mfma_tile(st, t))
                    if st == nsteps - 1:
                        done_at[t] = ic[0]
                        if t in first: queue.append(t)
                    filler()
        while extra: emit(extra.pop(0))
        while queue:
            while ic[0] - done_at[queue[0]] < 9: emit(lambda: a("s_nop 0"))
            t = queue.pop(0); emit(lambda: write_tile(t))

    a(f"s_mul_i32 s{sSTEP}, s{sWAVE}, {16*40960}")
    def mfma1(st, nt, mt, slot):
        c = "0" if st == 0 else vr(acc1(mt, nt), 4)
        a(f"v_mfma_f32_16x16x32_bf16 {vr(acc1(mt,nt),4)}, {ar(wfrag(st,mt),4)}, {vr(ring(slot,nt),4)}, {c}")
    parts13 = w2_dma_parts(a, 0) if opt.t13 else []
    def tail1(st, o):
        if st == 13 and parts13:
            if o == 0: parts13[0]()
            else: parts13[o]()
    main_loop(sH, 16, sROT1, "h", mfma1, 6, tail1, 14, w1_finish if opt.hold1 else None)

    a(f"s_mov_b32 s100, {f2h(C1)}"); a(f"s_mov_b32 s101, {f2h(C1)}")
    a(f"v_mov_b32 v{vC0}, {f2h(C0)}"); a(f"v_mov_b32 v{vC0+1}, {f2h(C0)}")
    def lds_ref(addr):
        if addr < 65536: return vL0, addr
        if addr < 131072: return vL1, addr - 65536
        return vL2, addr - 131072
    def owner1(p, nt): return p + (0 if nt < 3 else 2)
    units = [(p, nt) for p in range(2) for nt in range(5)]
    def red1_addr(src, u):
        k = [x for x in units if owner1(*x) != src].index(u)
        return src * 32768 + 24576 + k * 2048 if k < 4 else 131072 + src * 8192 + (k - 4) * 2048
    saved_vm = list(a.vm)
    for w in range(4):
        if w < 3:
            a(f"s_cmp_lg_u32 s{sWAVE}, {w}")
            a(f"s_cbranch_scc1 L_ep1_{w+1}")
        a.vm = list(saved_vm)
        nis = [1 if opt.t13 else 0]
        def more(n, limit):
            for _ in range(n):
                if nis[0] < limit:
                    w2_dma(a, nis[0]); nis[0] += 1
        tl = [(2 * p + hf, nt) for nt in range(5) for p in range(2) for hf in range(2)]
        first = [t for t in tl if owner1(t[0] // 2, t[1]) != w]
        last = [t for t in tl if owner1(t[0] // 2, t[1]) == w]
        def wr1(t):
            vb, off = lds_ref(red1_addr(w, (t[0] // 2, t[1])) + (t[0] & 1) * 1024)
            a(f"ds_write_b128 v{vb}, {vr(acc1(*t),4)} offset:{off}")
        extra = []
        for _ in range(opt.tt):
            extra += w2_dma_parts(a, nis[0]); nis[0] += 1
        tile_tail(16, "h", first, last, lambda t: t[1], lambda st, t: mfma1(st, t[1], t[0], st % NS), wr1, extra)
        stamp(a, opt, 7)
        more(opt.e1, 6)
        a("s_waitcnt lgkmcnt(0)")
        a("s_barrier")
        own_u = [u for u in units if owner1(*u) == w]
        RT = vRING
        n = 0
        for u in own_u:
            for src in range(4):
                if src == w: continue
                for hf in range(2):
                    vb, off = lds_ref(red1_addr(src, u) + hf * 1024)
                    a(f"ds_read_b128 {vr(RT + n*4, 4)}, v{vb} offset:{off}")
                    n += 1
        a.wait_vm("b")
        for i in range(4):
            a(f"v_lshlrev_b32 v{BI+2*i}, 16, v{vB1+i}")
            a(f"v_and_b32 v{BI+2*i+1}, 0xffff0000, v{vB1+i}")
        for u in own_u:
            p, nt = u
            for hf in range(2):
                r = acc1(2*p+hf, nt)
                a(f"v_pk_add_f32 {vr(r,2)}, {vr(r,2)}, {vr(BI+4*hf,2)}")
                a(f"v_pk_add_f32 {vr(r+2,2)}, {vr(r+2,2)}, {vr(BI+4*hf+2,2)}")
        n = 0
        tot = len(own_u) * 6
        for u in own_u:
            p, nt = u
            for si in range(3):
                for hf in range(2):
                    a(f"s_waitcnt lgkmcnt({min(15, tot - n - 1)})")
                    r = acc1(2*p+hf, nt)
                    a(f"v_pk_add_f32 {vr(r,2)}, {vr(r,2)}, {vr(RT+n*4,2)}")
                    a(f"v_pk_add_f32 {vr(r+2,2)}, {vr(r+2,2)}, {vr(RT+n*4+2,2)}")
                    n += 1
        a("s_barrier")
        regs = []
        for u in own_u:
            p, nt = u
            for hf in range(2):
                r = acc1(2*p+hf, nt)
                regs += [r, r + 2]
        more(opt.e2, 10)
        gelu_pairs(a, regs, RT, fill=lambda: more(opt.e3, 10))
        a(f"s_lshl_b32 s{sT0}, s{sFT}, 1")
        a(f"s_add_u32 s{sT0}, s{sT0}, {w & 1}")
        a(f"s_mul_i32 s{sT0}, s{sT0}, 40960")
        a(f"s_mul_i32 s{sT1}, s{sDT1}, 5120")
        a(f"s_add_u32 s{sT0}, s{sT0}, s{sT1}")
        late_stores = []
        a(f"s_mov_b32 s{sT2}, s{sT0}")
        for i, u in enumerate(own_u):
            p, nt = u
            o = RT + 64 + 4 * i
            r0, r1 = acc1(2*p, nt), acc1(2*p+1, nt)
            a(f"v_cvt_pk_bf16_f32 v{o}, v{r0}, v{r0+1}")
            a(f"v_cvt_pk_bf16_f32 v{o+1}, v{r0+2}, v{r0+3}")
            a(f"v_cvt_pk_bf16_f32 v{o+2}, v{r1}, v{r1+1}")
            a(f"v_cvt_pk_bf16_f32 v{o+3}, v{r1+2}, v{r1+3}")
            if opt.sent:
                for k in range(4): a(f"v_min_u32 v{o+k}, 0xfffffffe, v{o+k}")
            a(f"s_add_u32 s{sT1}, s{sT0}, {nt*1024}")
            late_stores.append((o, nt))
            if not opt.forcefix:
                a.vmem(f"buffer_store_dwordx4 {vr(o,4)}, v{vL0}, {srd(sG)}, s{sT1} offen {opt.gbits}", "g")
        stamp(a, opt, 8)
        def g_flag():
            a(f"s_lshl_b32 s{sT0}, s{sDT1}, 5")
            a(f"s_add_u32 s{sT0}, s{sT0}, s{sFT}")
            a(f"s_mul_i32 s{sT0}, s{sT0}, {opt.gstride}")
            a(f"s_add_u32 s{sT0}, s{sT0}, {FLAG_G + 4*w}")
            flag_store(a, sT0)
            stamp(a, opt, 9)
        if opt.sent or (opt.unsafe & 1): g_flag()
        if opt.forcefix:
            for _ in range(opt.forcefix): a("s_sleep 100")
            for o, nt in late_stores:
                a(f"s_add_u32 s{sT1}, s{sT2}, {nt*1024}")
                a.vmem(f"buffer_store_dwordx4 {vr(o,4)}, v{vL0}, {srd(sG)}, s{sT1} offen {opt.gbits}", "g")
        more(opt.nb, 10)
        a.wait_vm("w2_3")
        if nis[0] >= 4:
            for st in range(4):
                w2_tr(a, st)
                if st % 2 == 1: a("s_waitcnt lgkmcnt(0)")
        if nis[0] == 10 and opt.nb2:
            for st in range(10, 10 + opt.nb2): w2_dma(a, st)
            nis[0] += opt.nb2
        if not (opt.sent or (opt.unsafe & 1)):
            a.wait_vm("g")
            g_flag()
        assert nis[0] >= 4
        more(10, 10)
        more(4, 14)
        for st in range(4, 10):
            a.wait_vm(f"w2_{st}")
            w2_tr(a, st)
            if st % 2 == 1: a("s_waitcnt lgkmcnt(0)")
        a("s_branch L_pre2")
        if w < 3: a.label(f"L_ep1_{w+1}")

    a.label("L_nogemm1")
    a.vm = []
    common_setup()
    if False:
        a(f"s_lshl_b32 s{sT0}, s{sWAVE}, 6")
        a(f"v_add_u32 v{vX}, s{sT0}, v{vLANE}")
        a(f"v_mul_u32_u24 v{vX}, {opt.hstride}, v{vX}")
        poll(a, opt, vX, 2, None)
        if opt.idlewait > 1:
            a(f"s_sleep {opt.idlewait}")
    if opt.pf == 3:
        a(f"s_lshl_b32 s{sT0}, s{sIDLE}, 2")
        a(f"s_add_u32 s{sT0}, s{sT0}, s{sWAVE}")
        a(f"s_lshl_b32 s{sT0}, s{sT0}, 10")
        for k in range(44):
            o = vRING + (k % 16) * 4
            a.vmem(f"buffer_load_dwordx4 {vr(o,4)}, v{vL0}, {srd(sW2)}, s{sT0} offen {opt.pfbits}", f"pf{k}")
            a(f"s_add_u32 s{sT0}, s{sT0}, {160*1024}")
            if k >= opt.pfdepth: a.wait_vm(f"pf{k-opt.pfdepth}")
        a.wait_vm0()
    if opt.pf == 2:
        assert opt.p1 == 2 and opt.p2 == 1
        a(f"s_cmp_lt_u32 s{sJ}, 28")
        a("s_cbranch_scc1 L_nopf")
        a(f"s_sub_u32 s{sT0}, s{sJ}, 28")
        a(f"s_lshl_b32 s{sT0}, s{sT0}, 2")
        a(f"s_add_u32 s{sT0}, s{sT0}, s{sWAVE}")
        a(f"s_lshl_b32 s{sT0}, s{sT0}, 13")
        a(f"s_lshl_b32 s{sT1}, s{sXCD}, 9")
        a(f"s_add_u32 s{sT0}, s{sT0}, s{sT1}")
        a(f"v_lshrrev_b32 v{vX}, 5, v{vLANE}")
        a(f"v_lshlrev_b32 v{vX}, 12, v{vX}")
        a(f"v_and_b32 v{vX+1}, 31, v{vLANE}")
        a(f"v_lshlrev_b32 v{vX+1}, 4, v{vX+1}")
        a(f"v_add_u32 v{vX}, v{vX}, v{vX+1}")
        keep = list(a.vm)
        for k in range(54):
            o = vRING + (k % 16) * 4
            a.vmem(f"buffer_load_dwordx4 {vr(o,4)}, v{vX}, {srd(sW2)}, s{sT0} offen", f"pf{k}")
            a(f"s_add_u32 s{sT0}, s{sT0}, {16*8192}")
            if k >= opt.pfdepth: a.wait_vm(f"pf{k-opt.pfdepth}")
        a.wait_vm0()
        a.label("L_nopf")
        a.vm = keep
    for st in range(10): w2_dma(a, st)
    for st in range(4):
        a.wait_vm(f"w2_{st}")
        w2_tr(a, st)
        if st % 2 == 1: a("s_waitcnt lgkmcnt(0)")
    for st in range(10, 14): w2_dma(a, st)
    for st in range(4, 10):
        a.wait_vm(f"w2_{st}")
        w2_tr(a, st)
        if st % 2 == 1: a("s_waitcnt lgkmcnt(0)")

    a.label("L_pre2")
    a(f"s_mul_i32 s{sT0}, s{sDT2}, 5120")
    a(f"v_add_u32 v{vA}, s{sT0}, v{vL0}")
    a(f"v_add_u32 v{vA2}, 4096, v{vA}")
    def w2_finish():
        a.wait_vm("w2all")
        a("s_waitcnt lgkmcnt(0)")
        for st in range(10, 14):
            w2_tr(a, st)
            if st % 2 == 1: a("s_waitcnt lgkmcnt(0)")
    if not opt.hold2:
        a.vm = ["w2all"]
        w2_finish()
    stamp(a, opt, 10)
    if opt.onepoll & 2:
        a(f"s_cmp_lg_u32 s{sWAVE}, {opt.pollw}")
        a("s_cbranch_scc1 L_gpolled")
        a(f"s_lshl_b32 s{sT0}, s{sDT2}, 5")
        a(f"s_mul_i32 s{sT0}, s{sT0}, {opt.gstride}")
        a(f"s_add_u32 s{sT0}, s{sT0}, {FLAG_G}")
        a(f"v_mul_u32_u24 v{vX}, {opt.gstride}, v{vLANE}")
        a(f"v_add_u32 v{vX}, s{sT0}, v{vX}")
        a(f"s_mov_b32 s{sP+2}, 0x7ffffff")
        a(f"s_mov_b32 s{sP+3}, 0")
        poll(a, opt, vX, 4, sP + 2, opt.sleep, opt.preg)
        a.label("L_gpolled")
        a("s_barrier")
    else:
        a(f"s_lshl_b32 s{sT0}, s{sDT2}, 5")
        a(f"s_mul_i32 s{sT1}, s{sWAVE}, 7")
        a(f"s_add_u32 s{sT0}, s{sT0}, s{sT1}")
        a(f"s_mul_i32 s{sT0}, s{sT0}, {opt.gstride}")
        a(f"s_add_u32 s{sT0}, s{sT0}, {FLAG_G}")
        a(f"v_mul_u32_u24 v{vX}, {opt.gstride}, v{vLANE}")
        a(f"v_add_u32 v{vX}, s{sT0}, v{vX}")
        a(f"s_cmp_eq_u32 s{sWAVE}, 3")
        a(f"s_cselect_b32 s{sP+2}, 0x3f, 0x7f")
        a(f"s_mov_b32 s{sP+3}, 0")
        poll(a, opt, vX, 4, sP + 2, opt.sleep, opt.preg)
    a.vm = ["w2all"] if opt.hold2 else []
    stamp(a, opt, 11)
    a(f"s_mul_i32 s{sSTEP}, s{sWAVE}, {14*40960}")
    def mfma2(st, mt, nt, slot):
        c = "0" if st == 0 else vr(acc2(mt, nt), 4)
        a(f"v_mfma_f32_16x16x32_bf16 {vr(acc2(mt,nt),4)}, {vr(ring(slot,mt),4)}, {ar(wfrag(st,nt),4)}, {c}")
    if opt.sent: a(f"v_mov_b32 v{vCK}, 0")
    main_loop(sG, 14, sROT2, "g", mfma2, 12, None, 12, w2_finish if opt.hold2 else None, validate="acc" if opt.sent else False)
    saved_vm2 = list(a.vm)
    redo_tails = []
    a(f"v_and_b32 v{vT}, 15, v{vLANE}")
    a(f"s_lshl_b32 s{sT0}, s{sWAVE}, 4")
    a(f"v_add_u32 v{vT}, s{sT0}, v{vT}")
    a(f"v_mul_u32_u24 v{vOA}, 1280, v{vT}")
    a(f"v_lshrrev_b32 v{vT}, 4, v{vLANE}")
    a(f"v_lshlrev_b32 v{vT}, 3, v{vT}")
    a(f"v_add_u32 v{vOA}, v{vOA}, v{vT}")
    a(f"s_mul_i32 s{sT0}, s{sST}, {64*1280}")
    a(f"s_mul_i32 s{sT1}, s{sDT2}, 160")
    a(f"s_add_u32 s{sWB}, s{sT0}, s{sT1}")
    a(f"v_lshlrev_b32 v{vC0}, 16, v{vB2}")
    a(f"v_lshlrev_b32 v{vC0+1}, 16, v{vB2}")
    a(f"v_sub_u32 v{vOA2}, v{vOA}, v{vT}")
    a(f"v_bfe_u32 v{vT}, v{vLANE}, 4, 1")
    a(f"v_lshlrev_b32 v{vT}, 5, v{vT}")
    a(f"v_add_u32 v{vOA2}, v{vOA2}, v{vT}")
    a(f"v_bfe_u32 v{vT}, v{vLANE}, 5, 1")
    a(f"v_lshlrev_b32 v{vT}, 4, v{vT}")
    a(f"v_add_u32 v{vOA2}, v{vOA2}, v{vT}")
    def red2_addr(src, nt, mt):
        k = [x for x in range(4) if x != src].index(nt)
        return src * 32768 + (k * 5 + mt) * 1024
    for w in range(4):
        if w < 3:
            a(f"s_cmp_lg_u32 s{sWAVE}, {w}")
            a(f"s_cbranch_scc1 L_ep2_{w+1}")
        a.vm = list(saved_vm2)
        tl = [(mt, nt) for mt in range(5) for nt in range(4)]
        def wr2(t, w=w):
            vb, off = lds_ref(red2_addr(w, t[1], t[0]))
            a(f"ds_write_b128 v{vb}, {vr(acc2(*t),4)} offset:{off}")
        def tail2(validate, w=w, wr2=wr2, tl=tl):
            tile_tail(14, "g", [t for t in tl if t[1] != w], [t for t in tl if t[1] == w], lambda t: t[0],
                      lambda st, t: mfma2(st, t[0], t[1], st % NS), wr2, [], validate=validate)
        tail2("acc" if opt.sent else False)
        if opt.sent:
            a(f"v_cmp_eq_u32 vcc, -1, v{vCK}")
            a("s_nop 1")
            a("s_cbranch_vccnz L_redo2")
            a.label(f"L_after2_{w}")
            redo_tails.append(tail2)
        stamp(a, opt, 13)
        a("s_waitcnt lgkmcnt(0)")
        a("s_barrier")
        RT = vRING
        n = 0
        for mt in range(5):
            for src in range(4):
                if src == w: continue
                vb, off = lds_ref(red2_addr(src, w, mt))
                a(f"ds_read_b128 {vr(RT+n*4,4)}, v{vb} offset:{off}")
                n += 1
        n = 0
        for mt in range(5):
            r = acc2(mt, w)
            for si in range(3):
                a(f"s_waitcnt lgkmcnt({14 - n})")
                a(f"v_pk_add_f32 {vr(r,2)}, {vr(r,2)}, {vr(RT+n*4,2)}")
                a(f"v_pk_add_f32 {vr(r+2,2)}, {vr(r+2,2)}, {vr(RT+n*4+2,2)}")
                n += 1
            a(f"v_pk_add_f32 {vr(r,2)}, {vr(r,2)}, {vr(vC0,2)}")
            a(f"v_pk_add_f32 {vr(r+2,2)}, {vr(r+2,2)}, {vr(vC0,2)}")
            o = RT + 64 + 2 * mt
            a(f"v_cvt_pk_bf16_f32 v{o}, v{r}, v{r+1}")
            a(f"v_cvt_pk_bf16_f32 v{o+1}, v{r+2}, v{r+3}")
            if not opt.wide or mt == 4:
                a(f"buffer_store_dwordx2 {vr(o,2)}, v{vOA}, {srd(sO)}, s{sWB} offen offset:{mt*32} {opt.obits}")
            elif mt % 2 == 1:
                a("s_nop 1")
                a(f"v_permlane16_swap_b32 v{o-2}, v{o}")
                a(f"v_permlane16_swap_b32 v{o-1}, v{o+1}")
                a(f"buffer_store_dwordx4 {vr(o-2,4)}, v{vOA2}, {srd(sO)}, s{sWB} offen offset:{(mt-1)*32} {opt.obits}")
        a("s_branch L_fin")
        if w < 3: a.label(f"L_ep2_{w+1}")
    a.label("L_fin")
    if opt.probe >= 0:
        if opt.probe == 14:
            a("s_waitcnt vmcnt(0)")
            stamp(a, opt, 14)
        a(f"s_cmp_lg_u32 s{sWG}, {opt.probewg}")
        a("s_cbranch_scc1 L_done")
        a(f"s_cmp_lg_u32 s{sWAVE}, {opt.probew}")
        a("s_cbranch_scc1 L_done")
        ref = sNONCE if opt.probeabs else (sPROF + 2 if opt.probe0 >= 0 else 96)
        a(f"s_sub_u32 s{sT1}, s{sPROF+1}, s{ref}")
        if opt.probecyc: a(f"s_lshr_b32 s{sT1}, s{sT1}, 2")
        else: a(f"s_lshl_b32 s{sT1}, s{sT1}, 2")
        a(f"s_add_u32 s{sT1}, s{sT1}, 4000")
        a.label("L_probe")
        a(f"s_memrealtime s[{sP}:{sP+1}]")
        a("s_waitcnt lgkmcnt(0)")
        a(f"s_sub_u32 s{sT0}, s{sP}, s96")
        a(f"s_cmp_lt_u32 s{sT0}, s{sT1}")
        a("s_cbranch_scc1 L_probe")
    if opt.pad:
        a.label("L_pad")
        a(f"s_memrealtime s[{sP}:{sP+1}]")
        a("s_waitcnt lgkmcnt(0)")
        a(f"s_sub_u32 s{sT0}, s{sP}, s96")
        a(f"s_cmp_lt_u32 s{sT0}, {opt.pad}")
        a("s_cbranch_scc1 L_pad")
    if opt.prof:
        a("s_waitcnt vmcnt(0)")
        stamp(a, opt, 14)
        make_srd(a, sX, 18, 65536, WS_PROF)
        a(f"s_lshl_b32 s{sT0}, s{sWG}, 2")
        a(f"s_add_u32 s{sT0}, s{sT0}, s{sWAVE}")
        a(f"s_lshl_b32 s{sT0}, s{sT0}, 6")
        a(f"v_mov_b32 v{vT}, s{sT0}")
        a("s_mov_b64 exec, 1")
        for i in range(15):
            a(f"v_mov_b32 v100, s{sPROF+i}")
            a(f"buffer_store_dword v100, v{vT}, {srd(sX)}, 0 offen offset:{4*i}")
            a("s_nop 1")
        a("s_waitcnt vmcnt(0)")
    a.label("L_done")
    a("s_endpgm")
    if opt.sent:
        a.label("L_redo2")
        a("s_waitcnt vmcnt(0) lgkmcnt(0)")
        a.vm = []
        a(f"s_mul_i32 s{sT0}, s{sDT2}, 5120")
        a(f"v_add_u32 v{vA}, s{sT0}, v{vL0}")
        a(f"v_add_u32 v{vA2}, 4096, v{vA}")
        main_loop(sG, 14, sROT2, "g", mfma2, None, None, 12, None, validate=True)
        vm_redo = list(a.vm)
        for w in range(4):
            if w < 3:
                a(f"s_cmp_lg_u32 s{sWAVE}, {w}")
                a(f"s_cbranch_scc1 L_redot_{w+1}")
            a.vm = list(vm_redo)
            redo_tails[w](True)
            a(f"s_branch L_after2_{w}")
            if w < 3: a.label(f"L_redot_{w+1}")
        emit_fixups(sG, 14, sROT2)
    a.label("L_codeend")
    a.raw('.section .rodata,"a"')
    a.raw(".p2align 6")
    a.raw(f".amdhsa_kernel {KN}")
    for l in ["next_free_vgpr 512", "next_free_sgpr 102", "accum_offset 256", "group_segment_fixed_size 0",
              "kernarg_size 64", "user_sgpr_count 2", "user_sgpr_kernarg_segment_ptr 1",
              "system_sgpr_workgroup_id_x 1", "float_denorm_mode_32 3"]:
        a.raw(f"  .amdhsa_{l}")
    a.raw(".end_amdhsa_kernel")
    return "\n".join(a.L) + "\n"

def parse(argv=None):
    ap = argparse.ArgumentParser()
    ap.add_argument("-o", default="standalone__mixer_token_mlp__prompt.s")
    ap.add_argument("--prof", type=int, default=0)
    ap.add_argument("--rot", type=int, default=3)
    ap.add_argument("--spin", type=int, default=20000)
    ap.add_argument("--sleep", type=int, default=8)
    ap.add_argument("--depth", type=int, default=3)
    ap.add_argument("--lnprof", type=int, default=0)
    ap.add_argument("--hbits", default="sc1")
    ap.add_argument("--pfwait", type=int, default=1)
    ap.add_argument("--hold", type=int, default=0)
    ap.add_argument("--probe", type=int, default=-1)
    ap.add_argument("--probe0", type=int, default=-1)
    ap.add_argument("--probecyc", type=int, default=0)
    ap.add_argument("--probeabs", type=int, default=0)
    ap.add_argument("--probewg", type=int, default=100)
    ap.add_argument("--probew", type=int, default=2)
    ap.add_argument("--rot8", type=int, default=1)
    ap.add_argument("--cpf", type=int, default=1)
    ap.add_argument("--cpfw", type=int, default=3)
    ap.add_argument("--wide", type=int, default=1)
    ap.add_argument("--idlewait", type=int, default=0)
    ap.add_argument("--sleeph", type=int, default=8)
    ap.add_argument("--preh", type=int, default=0)
    ap.add_argument("--preg", type=int, default=0)
    ap.add_argument("--onepoll", type=int, default=3)
    ap.add_argument("--pollw", type=int, default=3)
    ap.add_argument("--nta", type=int, default=0)
    ap.add_argument("--rotg1", type=int, default=0)
    ap.add_argument("--rotg2", type=int, default=0)
    ap.add_argument("--npost", type=int, default=3)
    ap.add_argument("--xbar", type=int, default=1)
    ap.add_argument("--hold1", type=int, default=4)
    ap.add_argument("--hold2", type=int, default=1)
    ap.add_argument("--nmid", type=int, default=0)
    ap.add_argument("--gbits", default="sc1")
    ap.add_argument("--fbits", default="sc1")
    ap.add_argument("--abits", default="sc1")
    ap.add_argument("--unsafe", type=int, default=0)
    ap.add_argument("--sent", type=int, default=1)
    ap.add_argument("--forcefix", type=int, default=0)
    ap.add_argument("--t13", type=int, default=1)
    ap.add_argument("--tt", type=int, default=2)
    ap.add_argument("--e2", type=int, default=0)
    ap.add_argument("--e3", type=int, default=0)
    ap.add_argument("--nb2", type=int, default=0)
    ap.add_argument("--e1", type=int, default=1)
    ap.add_argument("--nb", type=int, default=2)
    ap.add_argument("--nearly", type=int, default=2)
    ap.add_argument("--dpl", type=int, default=5)
    ap.add_argument("--dp", type=int, default=4)
    ap.add_argument("--p1", type=int, default=1)
    ap.add_argument("--p2", type=int, default=1)
    ap.add_argument("--rota1", type=int, default=0)
    ap.add_argument("--rota2", type=int, default=0)
    ap.add_argument("--xbits", default="nt")
    ap.add_argument("--w1bits", default="")
    ap.add_argument("--w2bits", default="")
    ap.add_argument("--pfbits", default="")
    ap.add_argument("--pfdepth", type=int, default=8)
    ap.add_argument("--prio", type=int, default=3)
    ap.add_argument("--delay", type=int, default=0)
    ap.add_argument("--hstride", type=int, default=8)
    ap.add_argument("--gstride", type=int, default=256)
    ap.add_argument("--pf", type=int, default=0)
    ap.add_argument("--pad", type=int, default=0)
    ap.add_argument("--obits", default="sc0 sc1")
    return ap.parse_args(argv)

if __name__ == "__main__":
    opt = parse()
    open(opt.o, "w").write(gen(opt))
```

```python
import argparse, struct

S, D, F = 2048, 640, 1728
KN = "standalone__mixer_token_mlp__prompt_kernel"

WS_H = 0
H_BYTES = 64 * 40 * 1024
WS_G = 0x300000
G_BYTES = 54 * 40 * 1024
WS_FLAG = 0x600000
FLAG_H = 0
FLAG_G = 0x10000
FLAG_BYTES = 0x40000
WS_PROF = 0x700000

LDS_BYTES = 163840
LN_BASE = 131072
LN_ROW = 1344
LF_BASE = 141824
P0_BASE = [0, 49152, 98304, 122880]

sWG = 2
sX, sW1, sW2, sH, sG, sO, sF, sB1, sB2, sD = 20, 24, 28, 32, 36, 40, 44, 48, 52, 56
sWAVE, sXCD, sJ, sFT, sDT1, sST, sDT2, sNONCE = 60, 61, 62, 63, 64, 65, 66, 67
sT0, sT1, sT2, sT3, sT4, sT5 = 68, 69, 70, 71, 72, 73
sROT1, sROT2, sSTEP, sOFF = 74, 75, 76, 77
sM0B, sSPIN = 78, 79
sP = 80
sPROF = 84
sUP = 99
sJLIM, sIDLE = 100, 101
sLNK = 82
sWB = 3

vTID, vLANE = 0, 1
vTR = 2
vA, vA2, vDMA, vT2 = 6, 7, 8, 9
vB1 = 10
vB2, vT = 14, 15
vACC = 16
vRING = 96
vTRU = 176
vL0, vL1, vL2 = 180, 181, 182
vC0 = 184
BI = 186
vPOLL = 194
vX = 196
vOA, vOA2 = 224, 225
vCK = 216
vSN = 220
vPQ = 208
vDM = 200

def srd(n): return f"s[{n}:{n+3}]"
def vr(n, c=1): return f"v{n}" if c == 1 else f"v[{n}:{n+c-1}]"
def ar(n, c=1): return f"a{n}" if c == 1 else f"a[{n}:{n+c-1}]"
def f2h(x): return "0x%08x" % struct.unpack("<I", struct.pack("<f", x))[0]
C0 = -2.0 * 0.7978845608028654 * 1.4426950408889634
C1 = C0 * 0.044715

class Asm:
    def __init__(self):
        self.L = []; self.vm = []; self.uid = 0
    def __call__(self, s): self.L.append("    " + s)
    def label(self, s): self.L.append(s + ":")
    def raw(self, s): self.L.append(s)
    def c(self, s): self.L.append("    ; " + s)
    def vmem(self, s, tag):
        self(s); self.vm.append(tag)
    def wait_vm(self, tag):
        hits = [i for i, t in enumerate(self.vm) if t == tag]
        if not hits: return
        n = len(self.vm) - 1 - hits[-1]
        self(f"s_waitcnt vmcnt({min(n, 63)})")
        self.vm = self.vm[hits[-1] + 1:]
    def wait_vm0(self):
        self("s_waitcnt vmcnt(0)"); self.vm = []
    def newlabel(self, p):
        self.uid += 1
        return f"L_{p}_{self.uid}"

def acc1(mt, nt): return vACC + (mt * 5 + nt) * 4
def acc2(mt, nt): return vACC + (mt * 4 + nt) * 4
def wfrag(step, t): return step * 16 + t * 4

def stamp(a, opt, idx, force=False):
    if opt.probe >= 0:
        ins = "s_memtime" if opt.probecyc else "s_memrealtime"
        if idx == opt.probe:
            a(f"{ins} s[{sP}:{sP+1}]")
            a("s_waitcnt lgkmcnt(0)")
            a(f"s_mov_b32 s{sPROF+1}, s{sP}")
        if idx == opt.probe0:
            a(f"{ins} s[{sP}:{sP+1}]")
            a("s_waitcnt lgkmcnt(0)")
            a(f"s_mov_b32 s{sPROF+2}, s{sP}")
        return
    if opt.prof == 4 and idx != 14: return
    if opt.lnprof and idx in (4, 5) and getattr(a, "ln_done", False): return
    if opt.prof:
        a(f"s_mem{'time' if opt.prof == 2 else 'realtime'} s[{sP}:{sP+1}]")
        a("s_waitcnt lgkmcnt(0)")
        a(f"s_mov_b32 s{sPROF+idx}, s{sP}")

def make_srd(a, n, lo, size, add=0):
    if add:
        a(f"s_add_u32 s{n}, s{lo}, {add}")
        a(f"s_addc_u32 s{n+1}, s{lo+1}, 0")
        a(f"s_and_b32 s{n+1}, s{n+1}, 0xffff")
    else:
        a(f"s_mov_b32 s{n}, s{lo}")
        a(f"s_and_b32 s{n+1}, s{lo+1}, 0xffff")
    a(f"s_mov_b32 s{n+2}, {size}")
    a(f"s_mov_b32 s{n+3}, 0x20000")

def nonce_spin(a, opt):
    lp = a.newlabel("nonce"); dn = a.newlabel("nonced")
    a(f"s_cmp_lg_u32 s{sNONCE}, 0")
    a(f"s_cbranch_scc1 {dn}")
    a(f"s_mov_b32 s{sSPIN}, 0")
    a(f"v_mov_b32 v{vT}, 0")
    a.label(lp)
    a(f"buffer_load_dword v{vT2}, v{vT}, {srd(sD)}, 0 offen sc1")
    a("s_waitcnt vmcnt(0)")
    a(f"v_readfirstlane_b32 s{sNONCE}, v{vT2}")
    a(f"s_add_u32 s{sSPIN}, s{sSPIN}, 1")
    a(f"s_cmp_lg_u32 s{sNONCE}, 0")
    a(f"s_cbranch_scc1 {dn}")
    a(f"s_cmp_lt_u32 s{sSPIN}, {opt.spin}")
    a(f"s_cbranch_scc1 {lp}")
    a.label(dn)

def lds_set(a, addr_sgpr_or_imm):
    a(f"v_mov_b32 v{vT}, {addr_sgpr_or_imm}")
    a(f"v_mov_b32 v{vT2}, 1")
    a(f"s_mov_b64 s[{sP}:{sP+1}], exec")
    a("s_mov_b64 exec, 1")
    a(f"ds_write_b32 v{vT}, v{vT2}")
    a(f"s_mov_b64 exec, s[{sP}:{sP+1}]")

def lds_spin(a, opt, addr):
    lp = a.newlabel("lspin"); dn = a.newlabel("lspun")
    a(f"v_mov_b32 v{vT}, {addr}")
    a(f"s_mov_b32 s{sSPIN}, 0")
    a.label(lp)
    a(f"ds_read_b32 v{vT2}, v{vT}")
    a("s_waitcnt lgkmcnt(0)")
    a(f"v_readfirstlane_b32 s{sP}, v{vT2}")
    a(f"s_add_u32 s{sSPIN}, s{sSPIN}, 1")
    a(f"s_cmp_lg_u32 s{sP}, 0")
    a(f"s_cbranch_scc1 {dn}")
    a(f"s_cmp_lt_u32 s{sSPIN}, {opt.spin * 8}")
    a(f"s_cbranch_scc1 {lp}")
    a.label(dn)

def dma_addr(a, stride, s_tile):
    a(f"v_lshrrev_b32 v{vT}, 3, v{vLANE}")
    a(f"v_lshrrev_b32 v{vT2}, 1, v{vT}")
    a(f"v_lshlrev_b32 v{vT2}, 1, v{vT2}")
    a(f"v_and_b32 v{vDM}, 7, v{vLANE}")
    a(f"v_xor_b32 v{vDM}, v{vDM}, v{vT2}")
    a(f"v_lshlrev_b32 v{vDM}, 4, v{vDM}")
    a(f"v_mul_u32_u24 v{vT}, {stride}, v{vT}")
    a(f"v_add_u32 v{vDM}, v{vDM}, v{vT}")
    a(f"s_lshl_b32 s{sT0}, s{s_tile}, 7")
    a(f"v_add_u32 v{vDM}, s{sT0}, v{vDM}")
    for b in range(1, 4):
        a(f"v_add_u32 v{vDM+b}, {b*(8*stride-1024)}, v{vDM}")

def step_off(a, dst, s_base, s_rot, i, nsteps, bytes_per_step):
    a(f"s_add_u32 s{sT4}, s{s_rot}, {i}")
    a(f"s_cmp_ge_u32 s{sT4}, {nsteps}")
    a(f"s_cselect_b32 s{dst}, {nsteps}, 0")
    a(f"s_sub_u32 s{sT4}, s{sT4}, s{dst}")
    a(f"s_mul_i32 s{sT4}, s{sT4}, {bytes_per_step}")
    a(f"s_add_u32 s{dst}, s{sT4}, s{s_base}")

def dma_step(a, srdn, stride, s_rowbase, s_rot, step, nsteps, s_lds, lds_off, tag, bits=""):
    a(f"s_add_u32 m0, s{s_lds}, {lds_off}")
    step_off(a, sOFF, s_rowbase, s_rot, step, nsteps, 32 * stride)
    for blk in range(4):
        a.vmem(f"buffer_load_dwordx4 v{vDM+blk}, {srd(srdn)}, s{sOFF} offen offset:{blk*1024} {bits} lds", tag)

def tr_step(a, vbase, off, step):
    for t in range(4):
        w = wfrag(step, t)
        a(f"ds_read_b64_tr_b16 {ar(w,2)}, v{vbase+t} offset:{off}")
        a(f"ds_read_b64_tr_b16 {ar(w+2,2)}, v{vbase+t} offset:{off+2048}")

def poll(a, opt, vaddr, nd, lanes, sleep=None, pre=0, nload=1):
    if sleep is None: sleep = opt.sleep
    if pre: a(f"s_sleep {pre}")
    lp = a.newlabel("poll"); dn = a.newlabel("polled")
    a(f"s_mov_b32 s{sSPIN}, 0")
    a.label(lp)
    ld = {1: "dword", 2: "dwordx2", 4: "dwordx4"}[nd]
    for k in range(nload):
        a(f"buffer_load_{ld} {vr(vPQ + 4*k, nd)}, v{vaddr}, {srd(sF)}, 0 offen offset:{k*1024} sc1")
    a("s_waitcnt vmcnt(0)")
    first = True
    for k in range(nload):
        for i in range(nd):
            if first:
                a(f"v_cmp_ne_u32 vcc, s{sNONCE}, v{vPQ+4*k+i}"); first = False
            else:
                a(f"v_cmp_ne_u32 s[{sP}:{sP+1}], s{sNONCE}, v{vPQ+4*k+i}")
                a(f"s_or_b64 vcc, vcc, s[{sP}:{sP+1}]")
    if lanes is not None:
        a(f"s_and_b64 vcc, vcc, s[{lanes}:{lanes+1}]")
    a(f"s_add_u32 s{sSPIN}, s{sSPIN}, 1")
    a("s_cmp_eq_u64 vcc, 0")
    a(f"s_cbranch_scc1 {dn}")
    if sleep: a(f"s_sleep {sleep}")
    a(f"s_cmp_lt_u32 s{sSPIN}, {opt.spin}")
    a(f"s_cbranch_scc1 {lp}")
    a.label(dn)
    a.vm = []

def poll_check(a, nd, lanes, ok_label):
    for i in range(nd):
        if i == 0: a(f"v_cmp_ne_u32 vcc, s{sNONCE}, v{vPQ}")
        else:
            a(f"v_cmp_ne_u32 s[{sP}:{sP+1}], s{sNONCE}, v{vPQ+i}")
            a(f"s_or_b64 vcc, vcc, s[{sP}:{sP+1}]")
    if lanes is not None:
        a(f"s_and_b64 vcc, vcc, s[{lanes}:{lanes+1}]")
    a("s_cmp_eq_u64 vcc, 0")
    a(f"s_cbranch_scc1 {ok_label}")

def flag_store(a, s_index_bytes):
    a(f"v_mov_b32 v{vT}, s{s_index_bytes}")
    a(f"v_mov_b32 v{vT2}, s{sNONCE}")
    a(f"s_mov_b64 s[{sP}:{sP+1}], exec")
    a("s_mov_b64 exec, 1")
    a.vmem(f"buffer_store_dword v{vT2}, v{vT}, {srd(sF)}, 0 offen {OPT.fbits}", "flag")
    a(f"s_mov_b64 exec, s[{sP}:{sP+1}]")

def gelu_pairs(a, regs, tmp, fill=None):
    def each(fn):
        for i, r in enumerate(regs): fn(r, tmp + 2 * i)
    each(lambda r, t: a(f"v_pk_mul_f32 {vr(t,2)}, {vr(r,2)}, {vr(r,2)}"))
    each(lambda r, t: a(f"v_pk_fma_f32 {vr(t,2)}, {vr(t,2)}, s[100:101], {vr(vC0,2)}"))
    each(lambda r, t: a(f"v_pk_mul_f32 {vr(t,2)}, {vr(t,2)}, {vr(r,2)}"))
    if fill: fill()
    each(lambda r, t: (a(f"v_exp_f32 v{t}, v{t}"), a(f"v_exp_f32 v{t+1}, v{t+1}")))
    each(lambda r, t: a(f"v_pk_add_f32 {vr(t,2)}, {vr(t,2)}, 1.0 op_sel_hi:[1,0]"))
    each(lambda r, t: (a(f"v_rcp_f32 v{t}, v{t}"), a(f"v_rcp_f32 v{t+1}, v{t+1}")))
    a("s_nop 0")
    each(lambda r, t: a(f"v_pk_mul_f32 {vr(r,2)}, {vr(r,2)}, {vr(t,2)}"))

def w2_slot(step):
    if step < 8: return sM0B, step * 4096, vTR, step * 4096
    if step < 10: return sUP, (step - 8) * 4096, vTRU, (step - 8) * 4096
    return sM0B, (step - 10) * 4096, vTR, (step - 10) * 4096

def w2_dma(a, step):
    sb, off, _, _ = w2_slot(step)
    dma_step(a, sW2, S * 2, sWB, sROT2, step, 14, sb, off, f"w2_{step}", OPT.w2bits)

def w2_dma_parts(a, step):
    sb, off, _, _ = w2_slot(step)
    def setup():
        a(f"s_add_u32 m0, s{sb}, {off}")
        step_off(a, sOFF, sWB, sROT2, step, 14, 32 * S * 2)
    def one(blk):
        return lambda: a.vmem(f"buffer_load_dwordx4 v{vDM+blk}, {srd(sW2)}, s{sOFF} offen offset:{blk*1024} {OPT.w2bits} lds", f"w2_{step}")
    return [setup] + [one(b) for b in range(4)]

def w2_tr(a, step):
    _, _, vb, off = w2_slot(step)
    tr_step(a, vb, off, step)

def gen(opt):
    global OPT
    OPT = opt
    a = Asm()
    NS = opt.depth + 1
    def ring(slot, t): return vRING + slot * 20 + t * 4
    a.raw(f"; @launch grid=(256,1,1) block=(256,1,1) lds={LDS_BYTES}")
    a.raw('.amdgcn_target "amdgcn-amd-amdhsa--gfx950"')
    a.raw(".text")
    a.raw(f".globl {KN}")
    a.raw(".p2align 8")
    a.raw(f".type {KN},@function")
    a.label(KN)
    if opt.cpf: a("s_getpc_b64 s[94:95]")
    a(f"s_cmp_ge_u32 s{sWG}, 256")
    a("s_cbranch_scc1 L_done")
    a("s_load_dwordx16 s[4:19], s[0:1], 0")
    if opt.prof:
        a(f"s_mem{'time' if opt.prof == 2 else 'realtime'} s[{sP}:{sP+1}]")
    if opt.prof:
        for i in range(1, 15): a(f"s_mov_b32 s{sPROF+i}, 0")
    if not opt.prof:
        a("s_memrealtime s[96:97]")
    a(f"v_lshrrev_b32 v{vT}, 6, v{vTID}")
    a(f"v_and_b32 v{vLANE}, 63, v{vTID}")
    a(f"v_readfirstlane_b32 s{sWAVE}, v{vT}")
    a(f"s_and_b32 s{sXCD}, s{sWG}, 7")
    a(f"s_lshr_b32 s{sJ}, s{sWG}, 3")
    if opt.p1 == 2:
        a(f"s_lshr_b32 s{sT1}, s{sXCD}, 1")
        a(f"s_and_b32 s{sT2}, s{sXCD}, 1")
        a(f"s_lshl_b32 s{sT2}, s{sT2}, 2")
        a(f"s_mul_i32 s{sT0}, s{sT1}, 7")
        a(f"s_lshr_b32 s{sFT}, s{sJ}, 2")
        a(f"s_add_u32 s{sFT}, s{sFT}, s{sT0}")
        a(f"s_and_b32 s{sT3}, s{sJ}, 3")
        a(f"s_add_u32 s{sDT1}, s{sT2}, s{sT3}")
        if opt.rot8: a(f"s_lshl_b32 s{sROT1}, s{sDT1}, 1")
        else: a(f"s_lshl_b32 s{sROT1}, s{sT3}, 2")
        a(f"s_cmp_eq_u32 s{sT1}, 3")
        a(f"s_cselect_b32 s{sJLIM}, 24, 28")
        a(f"s_lshl_b32 s{sT0}, s{sXCD}, 2")
        a(f"s_sub_u32 s{sT0}, s{sT0}, 28")
        a(f"s_lshl_b32 s{sT3}, s{sXCD}, 3")
        a(f"s_sub_u32 s{sT3}, s{sT3}, 48")
        a(f"s_cselect_b32 s{sIDLE}, s{sT0}, s{sT0}")
        a(f"s_cmp_ge_u32 s{sXCD}, 6")
        a(f"s_cselect_b32 s{sIDLE}, s{sT3}, s{sT0}")
        a(f"s_add_u32 s{sIDLE}, s{sIDLE}, s{sJ}")
    else:
        a(f"s_lshl_b32 s{sT0}, s{sXCD}, 2")
        a(f"s_mul_i32 s{sT1}, s{sXCD}, 3")
        a(f"s_add_u32 s{sT1}, s{sT1}, 3")
        a(f"s_cmp_lt_u32 s{sXCD}, 3")
        a(f"s_cselect_b32 s{sT0}, s{sT0}, s{sT1}")
        a(f"s_cselect_b32 s{sJLIM}, 32, 24")
        a(f"s_lshr_b32 s{sFT}, s{sJ}, 3")
        a(f"s_add_u32 s{sFT}, s{sFT}, s{sT0}")
        a(f"s_and_b32 s{sDT1}, s{sJ}, 7")
        a(f"s_lshl_b32 s{sROT1}, s{sDT1}, 1")
        a(f"s_lshl_b32 s{sIDLE}, s{sXCD}, 3")
        a(f"s_add_u32 s{sIDLE}, s{sIDLE}, s{sJ}")
        a(f"s_sub_u32 s{sIDLE}, s{sIDLE}, 48")
    if opt.rotg1 == 3:
        a(f"s_mul_i32 s{sT0}, s{sFT}, 11")
        a(f"s_lshr_b32 s{sT0}, s{sT0}, 5")
        a(f"s_mul_i32 s{sT0}, s{sT0}, 3")
        a(f"s_sub_u32 s{sT0}, s{sFT}, s{sT0}")
        a(f"s_mul_i32 s{sT0}, s{sT0}, 5")
        a(f"s_add_u32 s{sROT1}, s{sROT1}, s{sT0}")
        a(f"s_and_b32 s{sROT1}, s{sROT1}, 15")
    if opt.rotg1 == 2:
        a(f"s_and_b32 s{sT0}, s{sFT}, 1")
        a(f"s_lshl_b32 s{sT0}, s{sT0}, 3")
        a(f"s_add_u32 s{sROT1}, s{sROT1}, s{sT0}")
        a(f"s_and_b32 s{sROT1}, s{sROT1}, 15")
    if opt.rota1:
        a(f"s_mul_i32 s{sT0}, s{sFT}, {opt.rota1}")
        a(f"s_add_u32 s{sROT1}, s{sROT1}, s{sT0}")
        a(f"s_and_b32 s{sROT1}, s{sROT1}, 15")
    if opt.p2 == 2:
        a(f"s_lshr_b32 s{sT1}, s{sXCD}, 1")
        a(f"s_and_b32 s{sT2}, s{sXCD}, 1")
        a(f"s_lshl_b32 s{sT2}, s{sT2}, 2")
        a(f"s_lshr_b32 s{sT0}, s{sJ}, 2")
        a(f"s_lshl_b32 s{sST}, s{sT1}, 3")
        a(f"s_add_u32 s{sST}, s{sST}, s{sT0}")
        a(f"s_and_b32 s{sT3}, s{sJ}, 3")
        a(f"s_add_u32 s{sDT2}, s{sT2}, s{sT3}")
        if opt.rot8:
            a(f"s_mul_i32 s{sROT2}, s{sDT2}, 7")
            a(f"s_lshr_b32 s{sROT2}, s{sROT2}, 2")
        else:
            a(f"s_mul_i32 s{sROT2}, s{sT3}, 7")
            a(f"s_lshr_b32 s{sROT2}, s{sROT2}, 1")
    else:
        a(f"s_lshr_b32 s{sT0}, s{sJ}, 3")
        a(f"s_lshl_b32 s{sST}, s{sXCD}, 2")
        a(f"s_add_u32 s{sST}, s{sST}, s{sT0}")
        a(f"s_and_b32 s{sDT2}, s{sJ}, 7")
        a(f"s_mul_i32 s{sROT2}, s{sDT2}, 7")
        a(f"s_lshr_b32 s{sROT2}, s{sROT2}, 2")
    if opt.rotg2:
        if opt.rotg2 == 2:
            a(f"s_and_b32 s{sT0}, s{sST}, 1")
            a(f"s_mul_i32 s{sT0}, s{sT0}, 7")
        else:
            a(f"s_mul_i32 s{sT0}, s{sST}, 11")
            a(f"s_lshr_b32 s{sT0}, s{sT0}, 5")
            a(f"s_mul_i32 s{sT0}, s{sT0}, 3")
            a(f"s_sub_u32 s{sT0}, s{sST}, s{sT0}")
            a(f"s_mul_i32 s{sT0}, s{sT0}, 5")
        a(f"s_add_u32 s{sROT2}, s{sROT2}, s{sT0}")
        a(f"s_cmp_ge_u32 s{sROT2}, 14")
        a(f"s_cselect_b32 s{sT0}, 14, 0")
        a(f"s_sub_u32 s{sROT2}, s{sROT2}, s{sT0}")
    if opt.rota2:
        a(f"s_mul_i32 s{sT0}, s{sST}, {opt.rota2}")
        a(f"s_add_u32 s{sROT2}, s{sROT2}, s{sT0}")
        a(f"s_and_b32 s{sT0}, s{sROT2}, 0xff")
        a(f"s_mul_i32 s{sT0}, s{sROT2}, 18725")
        a(f"s_lshr_b32 s{sT0}, s{sT0}, 18")
        a(f"s_mul_i32 s{sT0}, s{sT0}, 14")
        a(f"s_sub_u32 s{sROT2}, s{sROT2}, s{sT0}")
    if not (opt.rot & 1): a(f"s_mov_b32 s{sROT1}, 0")
    if not (opt.rot & 2): a(f"s_mov_b32 s{sROT2}, 0")
    a(f"s_lshl_b32 s{sM0B}, s{sWAVE}, 15")
    a(f"s_lshl_b32 s{sUP}, s{sWAVE}, 13")
    a(f"s_add_u32 s{sUP}, s{sUP}, 131072")
    def tr_addr(base_sgpr):
        t0, t1, t2 = vX, vX + 1, vX + 2
        a(f"v_lshrrev_b32 v{t0}, 4, v{vLANE}")
        a(f"v_and_b32 v{t1}, 1, v{t0}")
        a(f"v_lshlrev_b32 v{t1}, 2, v{t1}")
        a(f"v_bfe_u32 v{t2}, v{vLANE}, 2, 2")
        a(f"v_add_u32 v{t1}, v{t1}, v{t2}")
        a(f"v_lshrrev_b32 v{t0}, 1, v{t0}")
        a(f"v_lshlrev_b32 v{t0}, 10, v{t0}")
        a(f"v_lshlrev_b32 v{t2}, 7, v{t1}")
        a(f"v_add_u32 v{t0}, v{t0}, v{t2}")
        a(f"v_and_b32 v{t2}, 3, v{vLANE}")
        a(f"v_lshlrev_b32 v{t2}, 3, v{t2}")
        a(f"v_add_u32 v{t0}, v{t0}, v{t2}")
        a(f"v_add_u32 v{t0}, s{base_sgpr}, v{t0}")
        a(f"v_lshrrev_b32 v{t1}, 1, v{t1}")
        for t in range(4):
            a(f"v_xor_b32 v{t2}, {t}, v{t1}")
            a(f"v_lshlrev_b32 v{t2}, 5, v{t2}")
            a(f"v_add_u32 v{vTR+t}, v{t0}, v{t2}")
    def w1_dma(i): dma_step(a, sW1, F * 2, sWB, sROT1, i, 16, sM0B, (i % 8) * 4096, f"w1_{i}", "nt" if i < opt.nta else opt.w1bits)
    def w1_stream(first, dp, hold=0):
        retired = 0
        def retire():
            nonlocal retired
            a.wait_vm(f"w1_{retired}")
            if retired: a("s_waitcnt lgkmcnt(0)")
            tr_step(a, vTR, (retired % 8) * 4096, retired)
            retired += 1
        for i in range(first, 16):
            while retired <= i - dp: retire()
            if i >= 8:
                while retired <= i - 8: retire()
                if retired == i - 7: a("s_waitcnt lgkmcnt(0)")
            w1_dma(i)
        while retired < 16 - hold: retire()
        def finish():
            while retired < 16: retire()
            a("s_waitcnt lgkmcnt(0)")
        if not hold: finish()
        return finish
    dma_addr(a, F * 2, sFT)
    a(f"s_mul_i32 s{sWB}, s{sWAVE}, {512*F*2}")
    a.c("LayerNorm: wave w normalises rows 32*ks + 16*(w>>1) + 4*q + 2*(w&1) + (0,1), 32 lanes per row")
    XR, XF, TM = 96, 108, 130
    a(f"s_lshr_b32 s{sT0}, s{sWG}, 2")
    a(f"s_and_b32 s{sT1}, s{sWG}, 3")
    a(f"s_lshl_b32 s{sT2}, s{sT0}, 5")
    a(f"s_lshr_b32 s{sT3}, s{sWAVE}, 1")
    a(f"s_lshl_b32 s{sT3}, s{sT3}, 4")
    a(f"s_add_u32 s{sT2}, s{sT2}, s{sT3}")
    a(f"s_lshl_b32 s{sT3}, s{sT1}, 2")
    a(f"s_add_u32 s{sT2}, s{sT2}, s{sT3}")
    a(f"s_and_b32 s{sT3}, s{sWAVE}, 1")
    a(f"s_lshl_b32 s{sT3}, s{sT3}, 1")
    a(f"s_add_u32 s{sT2}, s{sT2}, s{sT3}")
    a(f"s_mul_i32 s{sT2}, s{sT2}, 1280")
    a(f"v_lshrrev_b32 v{TM}, 5, v{vLANE}")
    a(f"v_and_b32 v{TM+1}, 31, v{vLANE}")
    a(f"v_lshlrev_b32 v{TM+1}, 3, v{TM+1}")
    a(f"v_mul_u32_u24 v{TM+2}, 1280, v{TM}")
    a(f"v_add_u32 v{TM+2}, v{TM+2}, v{TM+1}")
    a(f"v_mov_b32 v{vT}, 0")
    a("s_waitcnt lgkmcnt(0)")
    if opt.prof: a(f"s_mov_b32 s{sPROF}, s{sP}")
    make_srd(a, sD, 16, 256)
    a(f"s_cmp_lg_u32 s{sWG}, 0")
    a("s_cbranch_scc1 L_nononce")
    a(f"s_cmp_lg_u32 s{sWAVE}, 3")
    a("s_cbranch_scc1 L_nononce")
    a(f"s_or_b32 s{sNONCE}, s{sP if opt.prof else 96}, 1")
    a(f"v_mov_b32 v{vT2}, s{sNONCE}")
    a(f"s_mov_b64 s[{sP+2}:{sP+3}], exec")
    a("s_mov_b64 exec, 1")
    a(f"buffer_store_dword v{vT2}, v{vT}, {srd(sD)}, 0 offen sc1")
    a(f"s_mov_b64 exec, s[{sP+2}:{sP+3}]")
    a.label("L_nononce")
    make_srd(a, sX, 4, S * D * 2)
    for i in range(5):
        a.vmem(f"buffer_load_dwordx2 {vr(XR+2*i,2)}, v{TM+2}, {srd(sX)}, s{sT2} offen offset:{i*256} {opt.xbits}", "x")
    make_srd(a, sW1, 6, S * F * 2)
    if opt.xbar: a("s_barrier")
    a(f"s_cmp_ge_u32 s{sJ}, s{sJLIM}")
    a("s_cbranch_scc1 L_ln_now1")
    for i in range(opt.nearly): w1_dma(i)
    a.label("L_ln_now1")
    if opt.cpf:
        a(f"s_cmp_lg_u32 s{sWAVE}, 3")
        a("s_cbranch_scc1 L_nocpf")
        a(f"s_lshl_b32 s{sT3}, s{sJ}, 11")
        a(f"v_lshlrev_b32 v{vX}, 4, v{vLANE}")
        a(f"v_add_u32 v{vX}, s{sT3}, v{vX}")
        a(f"v_add_u32 v{vX+1}, 1024, v{vX}")
        for h in range(2):
            a(f"v_min_u32 v{vX+h}, L_codeend-{KN}-36, v{vX+h}")
            a(f"global_load_dwordx4 {vr(240+4*h,4)}, v{vX+h}, s[94:95]")
        a.label("L_nocpf")
    make_srd(a, sH, 18, H_BYTES, WS_H)
    make_srd(a, sF, 18, FLAG_BYTES, WS_FLAG)
    a(f"s_mul_i32 s{sSTEP}, s{sT0}, 40960")
    a(f"s_lshl_b32 s{sT1}, s{sT1}, 8")
    a(f"s_add_u32 s{sSTEP}, s{sSTEP}, s{sT1}")
    a(f"s_lshl_b32 s{sT3}, s{sWAVE}, 1")
    a(f"v_add_u32 v{TM+4}, s{sT3}, v{TM}")
    a(f"v_mul_u32_u24 v{TM+4}, {LN_ROW}, v{TM+4}")
    a(f"v_add_u32 v{TM+4}, v{TM+4}, v{TM+1}")
    a(f"v_add_u32 v{TM+4}, {LN_BASE}, v{TM+4}")
    a(f"s_mul_i32 s{sT3}, s{sWAVE}, 12")
    a(f"s_cmp_eq_u32 s{sWAVE}, 3")
    a(f"s_cselect_b32 s{sT3}, 32, s{sT3}")
    a(f"v_lshrrev_b32 v{TM+6}, 4, v{vLANE}")
    a(f"v_add_u32 v{TM+6}, s{sT3}, v{TM+6}")
    a(f"v_bfe_u32 v{TM+5}, v{vLANE}, 2, 2")
    a(f"v_mul_u32_u24 v{TM+5}, {LN_ROW}, v{TM+5}")
    a(f"v_lshlrev_b32 v{TM+7}, 5, v{TM+6}")
    a(f"v_add_u32 v{TM+5}, v{TM+5}, v{TM+7}")
    a(f"v_and_b32 v{TM+7}, 3, v{vLANE}")
    a(f"v_lshlrev_b32 v{TM+7}, 3, v{TM+7}")
    a(f"v_add_u32 v{TM+5}, v{TM+5}, v{TM+7}")
    a(f"v_add_u32 v{TM+5}, {LN_BASE}, v{TM+5}")
    a(f"v_lshlrev_b32 v{TM+6}, 10, v{TM+6}")
    a(f"v_and_b32 v{TM+7}, 15, v{vLANE}")
    a(f"v_lshlrev_b32 v{TM+7}, 4, v{TM+7}")
    a(f"v_add_u32 v{TM+6}, v{TM+6}, v{TM+7}")
    tr_addr(sM0B)
    a(f"s_mov_b32 s{sT0}, 0xffff0000")
    nc = 2 if opt.cpf else 0
    a(f"s_cmp_ge_u32 s{sJ}, s{sJLIM}")
    a("s_cbranch_scc1 L_ln_idle")
    a(f"s_cmp_eq_u32 s{sWAVE}, 3")
    a("s_cbranch_scc1 L_ln_w3")
    a(f"s_waitcnt vmcnt({4*opt.nearly})")
    a("s_branch L_ln_go")
    a.label("L_ln_w3")
    a(f"s_waitcnt vmcnt({4*opt.nearly + nc})")
    a("s_branch L_ln_go")
    a.label("L_ln_idle")
    a(f"s_cmp_eq_u32 s{sWAVE}, 3")
    a("s_cbranch_scc1 L_ln_idle3")
    a("s_waitcnt vmcnt(0)")
    a("s_branch L_ln_go")
    a.label("L_ln_idle3")
    a(f"s_waitcnt vmcnt({nc})")
    a.label("L_ln_go")
    stamp(a, opt, 1)
    nmid = [opt.nearly]
    def mid_step(tag):
        if nmid[0] < opt.nearly + opt.nmid:
            a(f"s_cmp_ge_u32 s{sJ}, s{sJLIM}")
            a(f"s_cbranch_scc1 L_mid_{tag}")
            w1_dma(nmid[0]); nmid[0] += 1
            a.label(f"L_mid_{tag}")
    if opt.unsafe & 2: a(f"buffer_load_dword v{vPOLL}, v{vT}, {srd(sD)}, 0 offen sc1")
    mid_step("a")
    for i in range(10):
        a(f"v_lshlrev_b32 v{XF+2*i}, 16, v{XR+i}")
        a(f"v_and_b32 v{XF+2*i+1}, s{sT0}, v{XR+i}")
    SM = TM + 8
    a(f"v_pk_add_f32 {vr(SM,2)}, {vr(XF,2)}, {vr(XF+4,2)}")
    a(f"v_pk_add_f32 {vr(SM+2,2)}, {vr(XF+2,2)}, {vr(XF+6,2)}")
    for i in range(4, 10):
        k = i % 2
        a(f"v_pk_add_f32 {vr(SM+2*k,2)}, {vr(SM+2*k,2)}, {vr(XF+2*i,2)}")
    def reduce_row(dst):
        a(f"v_pk_add_f32 {vr(SM,2)}, {vr(SM,2)}, {vr(SM+2,2)}")
        a(f"v_add_f32 v{dst}, v{SM}, v{SM+1}")
        for rot in (8, 4, 2, 1):
            a("s_nop 1")
            a(f"v_add_f32_dpp v{dst}, v{dst}, v{dst} row_ror:{rot} row_mask:0xf bank_mask:0xf")
        a(f"v_mov_b32 v{SM}, v{dst}")
        a("s_nop 1")
        a(f"v_permlane16_swap_b32 v{dst}, v{SM}")
        a("s_nop 1")
        a(f"v_add_f32 v{dst}, v{dst}, v{SM}")
    MN = TM + 12
    reduce_row(MN)
    mid_step("b")
    a(f"v_mul_f32 v{MN}, {f2h(1.0/640.0)}, v{MN}")
    a(f"v_mov_b32 v{MN+1}, v{MN}")
    for i in range(10):
        a(f"v_pk_add_f32 {vr(XF+2*i,2)}, {vr(XF+2*i,2)}, {vr(MN,2)} neg_lo:[0,1] neg_hi:[0,1]")
    for k in range(2):
        a(f"v_pk_mul_f32 {vr(SM+2*k,2)}, {vr(XF+2*k,2)}, {vr(XF+2*k,2)}")
    for i in range(2, 10):
        k = i % 2
        a(f"v_pk_fma_f32 {vr(SM+2*k,2)}, {vr(XF+2*i,2)}, {vr(XF+2*i,2)}, {vr(SM+2*k,2)}")
    reduce_row(MN)
    mid_step("c")
    a(f"v_mov_b32 v{MN+1}, {f2h(1e-5)}")
    a(f"v_fmac_f32 v{MN+1}, {f2h(1.0/640.0)}, v{MN}")
    a(f"v_rsq_f32 v{MN}, v{MN+1}")
    a("s_nop 0")
    a(f"v_mov_b32 v{MN+1}, v{MN}")
    for i in range(10):
        a(f"v_pk_mul_f32 {vr(XF+2*i,2)}, {vr(XF+2*i,2)}, {vr(MN,2)}")
    for i in range(10):
        a(f"v_cvt_pk_bf16_f32 v{XR+i}, v{XF+2*i}, v{XF+2*i+1}")
    for i in range(5):
        a(f"ds_write_b64 v{TM+4}, {vr(XR+2*i,2)} offset:{i*256}")
    a("s_waitcnt lgkmcnt(0)")
    if opt.unsafe & 2:
        a("s_waitcnt vmcnt(0)")
        a(f"v_readfirstlane_b32 s{sNONCE}, v{vPOLL}")
        nonce_spin(a, opt)
    a("s_barrier")
    for i in range(2):
        a(f"ds_read_b64_tr_b16 {vr(XF+4*i,2)}, v{TM+5} offset:{i*128}")
        a(f"ds_read_b64_tr_b16 {vr(XF+4*i+2,2)}, v{TM+5} offset:{i*128+4*LN_ROW}")
    a(f"s_cmp_ge_u32 s{sWAVE}, 2")
    a("s_cbranch_scc1 L_ln_two")
    a(f"ds_read_b64_tr_b16 {vr(XF+8,2)}, v{TM+5} offset:{2*128}")
    a(f"ds_read_b64_tr_b16 {vr(XF+10,2)}, v{TM+5} offset:{2*128+4*LN_ROW}")
    a("s_waitcnt lgkmcnt(0)")
    a(f"s_add_u32 s{sT0}, s{sSTEP}, {2*4096}")
    a(f"buffer_store_dwordx4 {vr(XF+8,4)}, v{TM+6}, {srd(sH)}, s{sT0} offen {opt.hbits}")
    a.label("L_ln_two")
    a("s_waitcnt lgkmcnt(0)")
    for i in range(2):
        a(f"s_add_u32 s{sT0}, s{sSTEP}, {i*4096}")
        a(f"buffer_store_dwordx4 {vr(XF+4*i,4)}, v{TM+6}, {srd(sH)}, s{sT0} offen {opt.hbits}")
    if not (opt.unsafe & 2): a(f"buffer_load_dword v{vPOLL}, v{vT}, {srd(sD)}, 0 offen sc1")
    stamp(a, opt, 2)
    if opt.unsafe & 2:
        a("s_barrier")
        a(f"s_cmp_lg_u32 s{sWAVE}, 0")
        a("s_cbranch_scc1 L_noflag0")
        a(f"s_lshl_b32 s{sT0}, s{sWG}, 2")
        flag_store(a, sT0)
        a.label("L_noflag0")
    a(f"s_cmp_ge_u32 s{sJ}, s{sJLIM}")
    a("s_cbranch_scc1 L_ln_idle2")
    ne = opt.nearly + opt.nmid
    a.vm = [f"w1_{i}" for i in range(ne)]
    for i in range(ne, ne + opt.npost): w1_dma(i)
    if not (opt.unsafe & 2): a(f"s_waitcnt vmcnt({4*opt.npost})")
    a("s_branch L_ln_go2")
    a.label("L_ln_idle2")
    if not (opt.unsafe & 2): a("s_waitcnt vmcnt(0)")
    a.label("L_ln_go2")
    if not (opt.unsafe & 2):
        a(f"v_readfirstlane_b32 s{sNONCE}, v{vPOLL}")
        nonce_spin(a, opt)
        a("s_barrier")
        a(f"s_cmp_lg_u32 s{sWAVE}, 0")
        a("s_cbranch_scc1 L_noflag")
        a(f"s_lshl_b32 s{sT0}, s{sWG}, 2")
        keep = list(a.vm)
        flag_store(a, sT0)
        a.vm = keep
        a.label("L_noflag")
    stamp(a, opt, 3)
    a(f"s_cmp_ge_u32 s{sJ}, s{sJLIM}")
    a("s_cbranch_scc1 L_nogemm1")
    w1_finish = w1_stream(opt.nearly + opt.nmid + opt.npost, opt.dp, opt.hold1)

    def common_setup(retr=True):
        make_srd(a, sH, 18, H_BYTES, WS_H)
        make_srd(a, sF, 18, FLAG_BYTES, WS_FLAG)
        make_srd(a, sB1, 8, F * 2)
        make_srd(a, sW2, 10, F * S * 2)
        make_srd(a, sB2, 12, S * 2)
        make_srd(a, sO, 14, S * D * 2)
        make_srd(a, sG, 18, G_BYTES, WS_G)
        a(f"v_lshrrev_b32 v{vT}, 4, v{vLANE}")
        a(f"v_lshlrev_b32 v{vT}, 3, v{vT}")
        a(f"s_and_b32 s{sT0}, s{sWAVE}, 1")
        a(f"s_lshl_b32 s{sT0}, s{sT0}, 6")
        a(f"s_lshl_b32 s{sT1}, s{sFT}, 7")
        a(f"s_add_u32 s{sT0}, s{sT0}, s{sT1}")
        a.vmem(f"buffer_load_dwordx2 {vr(vB1,2)}, v{vT}, {srd(sB1)}, s{sT0} offen", "b")
        a.vmem(f"buffer_load_dwordx2 {vr(vB1+2,2)}, v{vT}, {srd(sB1)}, s{sT0} offen offset:32", "b")
        a(f"v_and_b32 v{vT}, 15, v{vLANE}")
        a(f"v_lshlrev_b32 v{vT}, 1, v{vT}")
        a(f"s_lshl_b32 s{sT0}, s{sST}, 7")
        a(f"s_lshl_b32 s{sT1}, s{sWAVE}, 5")
        a(f"s_add_u32 s{sT0}, s{sT0}, s{sT1}")
        a.vmem(f"buffer_load_ushort v{vB2}, v{vT}, {srd(sB2)}, s{sT0} offen", "b")
        dma_addr(a, S * 2, sST)
        a(f"s_mul_i32 s{sWB}, s{sWAVE}, {448*S*2}")
        if retr: tr_addr(sM0B)
        a(f"s_sub_u32 s{sT0}, s{sUP}, s{sM0B}")
        for t in range(4):
            a(f"v_add_u32 v{vTRU+t}, s{sT0}, v{vTR+t}")
        a(f"v_lshlrev_b32 v{vL0}, 4, v{vLANE}")
        a(f"v_add_u32 v{vL1}, 65536, v{vL0}")
        a(f"v_add_u32 v{vL2}, 131072, v{vL0}")

    a.label("L_w1_ready")
    stamp(a, opt, 4)
    vm_keep = list(a.vm)
    common_setup(retr=False)
    a(f"s_mul_i32 s{sT0}, s{sDT1}, 5120")
    a(f"v_add_u32 v{vA}, s{sT0}, v{vL0}")
    a(f"v_add_u32 v{vA2}, 4096, v{vA}")
    a(f"s_cmp_lg_u32 s{sWAVE}, {opt.pollw}")
    a("s_cbranch_scc1 L_hpolled")
    poll(a, opt, vL0, 4, None, opt.sleeph, opt.preh, 1)
    a.label("L_hpolled")
    a.vm = vm_keep + ["b", "b", "b"]
    a("s_barrier")
    stamp(a, opt, 5)

    def a_loads(srdn, step, nsteps, s_rot):
        slot = step % NS
        step_off(a, sOFF, sSTEP, s_rot, step, nsteps, 40960)
        return [f"buffer_load_dwordx4 {vr(ring(slot,t),4)}, v{vA if t < 4 else vA2}, {srd(srdn)}, s{sOFF} offen offset:{(t*1024) if t < 4 else 0} {opt.abits}" for t in range(5)]

    fixups = []
    routines = {}
    def check_instrs(regs):
        ins = [f"v_max3_u32 v{vCK}, v{regs[0]}, v{regs[1]}, v{regs[2]}"]
        rest = regs[3:]
        while len(rest) >= 2:
            ins.append(f"v_max3_u32 v{vCK}, v{vCK}, v{rest[0]}, v{rest[1]}"); rest = rest[2:]
        if rest: ins.append(f"v_max_u32 v{vCK}, v{vCK}, v{rest[0]}")
        ins.append(f"v_cmp_eq_u32 vcc, -1, v{vCK}")
        return ins
    def check_branch(routine, steps):
        stub, back = a.newlabel("stub"), a.newlabel("back")
        a(f"s_cbranch_vccnz {stub}")
        a.label(back)
        fixups.append((stub, routine, back)); routines[routine] = steps
    def frag_regs(slot, t): return list(range(ring(slot, t), ring(slot, t) + 4))

    def main_loop(srdn, nsteps, s_rot, tagp, mfma, stamp0, tail, nuni, pre=None, validate=False):
        for st in range(opt.depth):
            for o, ins in enumerate(a_loads(srdn, st, nsteps, s_rot)): a.vmem(ins, f"{tagp}{st}_{o}")
        if pre: pre()
        for st in range(nuni):
            nx = st + opt.depth
            nxt = a_loads(srdn, nx, nsteps, s_rot) if nx < nsteps else None
            a.wait_vm(f"{tagp}{st}_4")
            if st == 0 and stamp0 is not None: stamp(a, opt, stamp0)
            if validate is True:
                for ins in check_instrs(frag_regs(st % NS, 0)): a(ins)
                check_branch(f"L_fix_{tagp}{st}", [st])
            for o in range(5):
                if nxt: a.vmem(nxt[o], f"{tagp}{nx}_{o}")
                chk = check_instrs(frag_regs(st % NS, o + 1)) if (validate is True and o < 4) else []
                if validate == "acc":
                    r = frag_regs(st % NS, o)
                    for i in range(4):
                        mfma(st, o, i, st % NS)
                        if i % 2 == 0: a(f"v_max3_u32 v{vCK}, v{vCK}, v{r[i]}, v{r[i+1]}")
                    continue
                for i in range(4):
                    mfma(st, o, i, st % NS)
                    if i < len(chk): a(chk[i])
                if chk: check_branch(f"L_fix_{tagp}{st}", [st])
                if tail: tail(st, o)

    def emit_fixups(srdn, nsteps, s_rot):
        for stub, routine, back in fixups:
            a.label(stub)
            a(f"s_call_b64 s[{sLNK}:{sLNK+1}], {routine}")
            a(f"s_branch {back}")
        for routine, steps in routines.items():
            lp, dn = a.newlabel("fixl"), a.newlabel("fixd")
            a.label(routine)
            a(f"s_mov_b32 s{sSPIN}, 0")
            a.label(lp)
            regs = []
            for st in steps:
                step_off(a, sT3, sSTEP, s_rot, st, nsteps, 40960)
                for t in range(5):
                    a(f"buffer_load_dwordx4 {vr(ring(st % NS, t),4)}, v{vA if t < 4 else vA2}, {srd(srdn)}, s{sT3} offen offset:{(t*1024) if t < 4 else 0} {opt.abits}")
                    regs += frag_regs(st % NS, t)
            a("s_waitcnt vmcnt(0)")
            for ins in check_instrs(regs): a(ins)
            a(f"s_cbranch_vccz {dn}")
            a("s_sleep 4")
            a(f"s_add_u32 s{sSPIN}, s{sSPIN}, 1")
            a(f"s_cmp_lt_u32 s{sSPIN}, {opt.spin}")
            a(f"s_cbranch_scc1 {lp}")
            a.label(dn)
            a(f"s_setpc_b64 s[{sLNK}:{sLNK+1}]")

    def tile_tail(nsteps, tagp, first, last, frag_of, mfma_tile, write_tile, extra, validate=False):
        ic = [0]
        done_at = {}
        queue = []
        extra = list(extra)
        def emit(fn):
            fn(); ic[0] += 1
        def filler():
            if queue and ic[0] - done_at[queue[0]] >= 9:
                t = queue.pop(0); emit(lambda: write_tile(t)); return
            if extra: emit(extra.pop(0))
        checked = set()
        tiles = list(first) + list(last)
        for i in range(0, len(tiles), 2):
            pair = tiles[i:i + 2]
            for t in pair:
                for st in (nsteps - 2, nsteps - 1): a.wait_vm(f"{tagp}{st}_{frag_of(t)}")
            if validate == "acc":
                fresh = sorted(set(frag_of(t) for t in pair) - checked)
                for f in fresh:
                    for st in (nsteps - 2, nsteps - 1):
                        r = frag_regs(st % NS, f)
                        extra.insert(0, (lambda x, y: (lambda: a(f"v_max3_u32 v{vCK}, v{vCK}, v{x}, v{y}")))(r[0], r[1]))
                        extra.insert(0, (lambda x, y: (lambda: a(f"v_max3_u32 v{vCK}, v{vCK}, v{x}, v{y}")))(r[2], r[3]))
                checked.update(fresh)
            if validate is True:
                fresh = sorted(set(frag_of(t) for t in pair) - checked)
                if fresh:
                    regs = []
                    for f in fresh:
                        for st in (nsteps - 2, nsteps - 1): regs += frag_regs(st % NS, f)
                    for ins in check_instrs(regs): emit(lambda: a(ins))
                    check_branch(f"L_fix_{tagp}tail", [nsteps - 2, nsteps - 1])
                    checked.update(fresh)
            for st in (nsteps - 2, nsteps - 1):
                for t in pair:
                    emit(lambda: mfma_tile(st, t))
                    if st == nsteps - 1:
                        done_at[t] = ic[0]
                        if t in first: queue.append(t)
                    filler()
        while extra: emit(extra.pop(0))
        while queue:
            while ic[0] - done_at[queue[0]] < 9: emit(lambda: a("s_nop 0"))
            t = queue.pop(0); emit(lambda: write_tile(t))

    a(f"s_mul_i32 s{sSTEP}, s{sWAVE}, {16*40960}")
    def mfma1(st, nt, mt, slot):
        c = "0" if st == 0 else vr(acc1(mt, nt), 4)
        a(f"v_mfma_f32_16x16x32_bf16 {vr(acc1(mt,nt),4)}, {ar(wfrag(st,mt),4)}, {vr(ring(slot,nt),4)}, {c}")
    if opt.sent:
        for i in range(4): a(f"v_mov_b32 v{vSN+i}, -1")
        a(f"s_lshl_b32 s{sT0}, s{sFT}, 1")
        a(f"s_and_b32 s{sT1}, s{sWAVE}, 1")
        a(f"s_add_u32 s{sT0}, s{sT0}, s{sT1}")
        a(f"s_mul_i32 s{sT0}, s{sT0}, 40960")
        a(f"s_mul_i32 s{sT1}, s{sDT1}, 5120")
        a(f"s_add_u32 s{sT0}, s{sT0}, s{sT1}")
        a(f"s_cmp_ge_u32 s{sWAVE}, 2")
        a(f"s_cselect_b32 s{sT1}, 3072, 0")
        a(f"s_movk_i32 s{sT2}, 2048")
        a(f"s_cselect_b32 s{sT2}, 4096, s{sT2}")
        a(f"s_add_u32 s{sT2}, s{sT2}, s{sT0}")
        a(f"s_add_u32 s{sT0}, s{sT0}, s{sT1}")
    parts13 = w2_dma_parts(a, 0) if opt.t13 else []
    def tail1(st, o):
        if opt.sent and o == 2 and st in (1, 2, 3):
            so, off = [(sT0, 0), (sT0, 1024), (sT2, 0)][st - 1]
            a.vmem(f"buffer_store_dwordx4 {vr(vSN,4)}, v{vL0}, {srd(sG)}, s{so} offen offset:{off} sc1", "sent")
        if st == 13 and parts13:
            if o == 0: parts13[0]()
            else: parts13[o]()
    main_loop(sH, 16, sROT1, "h", mfma1, 6, tail1, 14, w1_finish if opt.hold1 else None)

    a(f"s_mov_b32 s100, {f2h(C1)}"); a(f"s_mov_b32 s101, {f2h(C1)}")
    a(f"v_mov_b32 v{vC0}, {f2h(C0)}"); a(f"v_mov_b32 v{vC0+1}, {f2h(C0)}")
    def lds_ref(addr):
        if addr < 65536: return vL0, addr
        if addr < 131072: return vL1, addr - 65536
        return vL2, addr - 131072
    def owner1(p, nt): return p + (0 if nt < 3 else 2)
    units = [(p, nt) for p in range(2) for nt in range(5)]
    def red1_addr(src, u):
        k = [x for x in units if owner1(*x) != src].index(u)
        return src * 32768 + 24576 + k * 2048 if k < 4 else 131072 + src * 8192 + (k - 4) * 2048
    saved_vm = list(a.vm)
    for w in range(4):
        if w < 3:
            a(f"s_cmp_lg_u32 s{sWAVE}, {w}")
            a(f"s_cbranch_scc1 L_ep1_{w+1}")
        a.vm = list(saved_vm)
        nis = [1 if opt.t13 else 0]
        def more(n, limit):
            for _ in range(n):
                if nis[0] < limit:
                    w2_dma(a, nis[0]); nis[0] += 1
        tl = [(2 * p + hf, nt) for nt in range(5) for p in range(2) for hf in range(2)]
        first = [t for t in tl if owner1(t[0] // 2, t[1]) != w]
        last = [t for t in tl if owner1(t[0] // 2, t[1]) == w]
        def wr1(t):
            vb, off = lds_ref(red1_addr(w, (t[0] // 2, t[1])) + (t[0] & 1) * 1024)
            a(f"ds_write_b128 v{vb}, {vr(acc1(*t),4)} offset:{off}")
        extra = []
        for _ in range(opt.tt):
            extra += w2_dma_parts(a, nis[0]); nis[0] += 1
        tile_tail(16, "h", first, last, lambda t: t[1], lambda st, t: mfma1(st, t[1], t[0], st % NS), wr1, extra)
        stamp(a, opt, 7)
        more(opt.e1, 6)
        a("s_waitcnt lgkmcnt(0)")
        a("s_barrier")
        own_u = [u for u in units if owner1(*u) == w]
        RT = vRING
        n = 0
        for u in own_u:
            for src in range(4):
                if src == w: continue
                for hf in range(2):
                    vb, off = lds_ref(red1_addr(src, u) + hf * 1024)
                    a(f"ds_read_b128 {vr(RT + n*4, 4)}, v{vb} offset:{off}")
                    n += 1
        a.wait_vm("b")
        for i in range(4):
            a(f"v_lshlrev_b32 v{BI+2*i}, 16, v{vB1+i}")
            a(f"v_and_b32 v{BI+2*i+1}, 0xffff0000, v{vB1+i}")
        for u in own_u:
            p, nt = u
            for hf in range(2):
                r = acc1(2*p+hf, nt)
                a(f"v_pk_add_f32 {vr(r,2)}, {vr(r,2)}, {vr(BI+4*hf,2)}")
                a(f"v_pk_add_f32 {vr(r+2,2)}, {vr(r+2,2)}, {vr(BI+4*hf+2,2)}")
        n = 0
        tot = len(own_u) * 6
        for u in own_u:
            p, nt = u
            for si in range(3):
                for hf in range(2):
                    a(f"s_waitcnt lgkmcnt({min(15, tot - n - 1)})")
                    r = acc1(2*p+hf, nt)
                    a(f"v_pk_add_f32 {vr(r,2)}, {vr(r,2)}, {vr(RT+n*4,2)}")
                    a(f"v_pk_add_f32 {vr(r+2,2)}, {vr(r+2,2)}, {vr(RT+n*4+2,2)}")
                    n += 1
        a("s_barrier")
        regs = []
        for u in own_u:
            p, nt = u
            for hf in range(2):
                r = acc1(2*p+hf, nt)
                regs += [r, r + 2]
        more(opt.e2, 10)
        gelu_pairs(a, regs, RT, fill=lambda: more(opt.e3, 10))
        a(f"s_lshl_b32 s{sT0}, s{sFT}, 1")
        a(f"s_add_u32 s{sT0}, s{sT0}, {w & 1}")
        a(f"s_mul_i32 s{sT0}, s{sT0}, 40960")
        a(f"s_mul_i32 s{sT1}, s{sDT1}, 5120")
        a(f"s_add_u32 s{sT0}, s{sT0}, s{sT1}")
        late_stores = []
        a(f"s_mov_b32 s{sT2}, s{sT0}")
        for i, u in enumerate(own_u):
            p, nt = u
            o = RT + 64 + 4 * i
            r0, r1 = acc1(2*p, nt), acc1(2*p+1, nt)
            a(f"v_cvt_pk_bf16_f32 v{o}, v{r0}, v{r0+1}")
            a(f"v_cvt_pk_bf16_f32 v{o+1}, v{r0+2}, v{r0+3}")
            a(f"v_cvt_pk_bf16_f32 v{o+2}, v{r1}, v{r1+1}")
            a(f"v_cvt_pk_bf16_f32 v{o+3}, v{r1+2}, v{r1+3}")
            if opt.sent:
                for k in range(4): a(f"v_min_u32 v{o+k}, 0xfffffffe, v{o+k}")
            a(f"s_add_u32 s{sT1}, s{sT0}, {nt*1024}")
            late_stores.append((o, nt))
            if not opt.forcefix:
                a.vmem(f"buffer_store_dwordx4 {vr(o,4)}, v{vL0}, {srd(sG)}, s{sT1} offen {opt.gbits}", "g")
        stamp(a, opt, 8)
        def g_flag():
            a(f"s_lshl_b32 s{sT0}, s{sDT1}, 5")
            a(f"s_add_u32 s{sT0}, s{sT0}, s{sFT}")
            a(f"s_mul_i32 s{sT0}, s{sT0}, {opt.gstride}")
            a(f"s_add_u32 s{sT0}, s{sT0}, {FLAG_G + 4*w}")
            flag_store(a, sT0)
            stamp(a, opt, 9)
        if opt.sent or (opt.unsafe & 1): g_flag()
        if opt.forcefix:
            for _ in range(opt.forcefix): a("s_sleep 100")
            for o, nt in late_stores:
                a(f"s_add_u32 s{sT1}, s{sT2}, {nt*1024}")
                a.vmem(f"buffer_store_dwordx4 {vr(o,4)}, v{vL0}, {srd(sG)}, s{sT1} offen {opt.gbits}", "g")
        more(opt.nb, 10)
        a.wait_vm("w2_3")
        if nis[0] >= 4:
            for st in range(4):
                w2_tr(a, st)
                if st % 2 == 1: a("s_waitcnt lgkmcnt(0)")
        if nis[0] == 10 and opt.nb2:
            for st in range(10, 10 + opt.nb2): w2_dma(a, st)
            nis[0] += opt.nb2
        if not (opt.sent or (opt.unsafe & 1)):
            a.wait_vm("g")
            g_flag()
        assert nis[0] >= 4
        more(10, 10)
        more(4, 14)
        for st in range(4, 10):
            a.wait_vm(f"w2_{st}")
            w2_tr(a, st)
            if st % 2 == 1: a("s_waitcnt lgkmcnt(0)")
        a("s_branch L_pre2")
        if w < 3: a.label(f"L_ep1_{w+1}")

    a.label("L_nogemm1")
    a.vm = []
    common_setup()
    if False:
        a(f"s_lshl_b32 s{sT0}, s{sWAVE}, 6")
        a(f"v_add_u32 v{vX}, s{sT0}, v{vLANE}")
        a(f"v_mul_u32_u24 v{vX}, {opt.hstride}, v{vX}")
        poll(a, opt, vX, 2, None)
        if opt.idlewait > 1:
            a(f"s_sleep {opt.idlewait}")
    if opt.pf == 3:
        a(f"s_lshl_b32 s{sT0}, s{sIDLE}, 2")
        a(f"s_add_u32 s{sT0}, s{sT0}, s{sWAVE}")
        a(f"s_lshl_b32 s{sT0}, s{sT0}, 10")
        for k in range(44):
            o = vRING + (k % 16) * 4
            a.vmem(f"buffer_load_dwordx4 {vr(o,4)}, v{vL0}, {srd(sW2)}, s{sT0} offen {opt.pfbits}", f"pf{k}")
            a(f"s_add_u32 s{sT0}, s{sT0}, {160*1024}")
            if k >= opt.pfdepth: a.wait_vm(f"pf{k-opt.pfdepth}")
        a.wait_vm0()
    if opt.pf == 2:
        assert opt.p1 == 2 and opt.p2 == 1
        a(f"s_cmp_lt_u32 s{sJ}, 28")
        a("s_cbranch_scc1 L_nopf")
        a(f"s_sub_u32 s{sT0}, s{sJ}, 28")
        a(f"s_lshl_b32 s{sT0}, s{sT0}, 2")
        a(f"s_add_u32 s{sT0}, s{sT0}, s{sWAVE}")
        a(f"s_lshl_b32 s{sT0}, s{sT0}, 13")
        a(f"s_lshl_b32 s{sT1}, s{sXCD}, 9")
        a(f"s_add_u32 s{sT0}, s{sT0}, s{sT1}")
        a(f"v_lshrrev_b32 v{vX}, 5, v{vLANE}")
        a(f"v_lshlrev_b32 v{vX}, 12, v{vX}")
        a(f"v_and_b32 v{vX+1}, 31, v{vLANE}")
        a(f"v_lshlrev_b32 v{vX+1}, 4, v{vX+1}")
        a(f"v_add_u32 v{vX}, v{vX}, v{vX+1}")
        keep = list(a.vm)
        for k in range(54):
            o = vRING + (k % 16) * 4
            a.vmem(f"buffer_load_dwordx4 {vr(o,4)}, v{vX}, {srd(sW2)}, s{sT0} offen", f"pf{k}")
            a(f"s_add_u32 s{sT0}, s{sT0}, {16*8192}")
            if k >= opt.pfdepth: a.wait_vm(f"pf{k-opt.pfdepth}")
        a.wait_vm0()
        a.label("L_nopf")
        a.vm = keep
    for st in range(10): w2_dma(a, st)
    for st in range(4):
        a.wait_vm(f"w2_{st}")
        w2_tr(a, st)
        if st % 2 == 1: a("s_waitcnt lgkmcnt(0)")
    for st in range(10, 14): w2_dma(a, st)
    for st in range(4, 10):
        a.wait_vm(f"w2_{st}")
        w2_tr(a, st)
        if st % 2 == 1: a("s_waitcnt lgkmcnt(0)")

    a.label("L_pre2")
    a(f"s_mul_i32 s{sT0}, s{sDT2}, 5120")
    a(f"v_add_u32 v{vA}, s{sT0}, v{vL0}")
    a(f"v_add_u32 v{vA2}, 4096, v{vA}")
    def w2_finish():
        a.wait_vm("w2all")
        a("s_waitcnt lgkmcnt(0)")
        for st in range(10, 14):
            w2_tr(a, st)
            if st % 2 == 1: a("s_waitcnt lgkmcnt(0)")
    if not opt.hold2:
        a.vm = ["w2all"]
        w2_finish()
    stamp(a, opt, 10)
    if opt.onepoll & 2:
        a(f"s_cmp_lg_u32 s{sWAVE}, {opt.pollw}")
        a("s_cbranch_scc1 L_gpolled")
        a(f"s_lshl_b32 s{sT0}, s{sDT2}, 5")
        a(f"s_mul_i32 s{sT0}, s{sT0}, {opt.gstride}")
        a(f"s_add_u32 s{sT0}, s{sT0}, {FLAG_G}")
        a(f"v_mul_u32_u24 v{vX}, {opt.gstride}, v{vLANE}")
        a(f"v_add_u32 v{vX}, s{sT0}, v{vX}")
        a(f"s_mov_b32 s{sP+2}, 0x7ffffff")
        a(f"s_mov_b32 s{sP+3}, 0")
        poll(a, opt, vX, 4, sP + 2, opt.sleep, opt.preg)
        a.label("L_gpolled")
        a("s_barrier")
    else:
        a(f"s_lshl_b32 s{sT0}, s{sDT2}, 5")
        a(f"s_mul_i32 s{sT1}, s{sWAVE}, 7")
        a(f"s_add_u32 s{sT0}, s{sT0}, s{sT1}")
        a(f"s_mul_i32 s{sT0}, s{sT0}, {opt.gstride}")
        a(f"s_add_u32 s{sT0}, s{sT0}, {FLAG_G}")
        a(f"v_mul_u32_u24 v{vX}, {opt.gstride}, v{vLANE}")
        a(f"v_add_u32 v{vX}, s{sT0}, v{vX}")
        a(f"s_cmp_eq_u32 s{sWAVE}, 3")
        a(f"s_cselect_b32 s{sP+2}, 0x3f, 0x7f")
        a(f"s_mov_b32 s{sP+3}, 0")
        poll(a, opt, vX, 4, sP + 2, opt.sleep, opt.preg)
    a.vm = ["w2all"] if opt.hold2 else []
    stamp(a, opt, 11)
    a(f"s_mul_i32 s{sSTEP}, s{sWAVE}, {14*40960}")
    def mfma2(st, mt, nt, slot):
        c = "0" if st == 0 else vr(acc2(mt, nt), 4)
        a(f"v_mfma_f32_16x16x32_bf16 {vr(acc2(mt,nt),4)}, {vr(ring(slot,mt),4)}, {ar(wfrag(st,nt),4)}, {c}")
    if opt.sent: a(f"v_mov_b32 v{vCK}, 0")
    main_loop(sG, 14, sROT2, "g", mfma2, 12, None, 12, w2_finish if opt.hold2 else None, validate="acc" if opt.sent else False)
    saved_vm2 = list(a.vm)
    redo_tails = []
    a(f"v_and_b32 v{vT}, 15, v{vLANE}")
    a(f"s_lshl_b32 s{sT0}, s{sWAVE}, 4")
    a(f"v_add_u32 v{vT}, s{sT0}, v{vT}")
    a(f"v_mul_u32_u24 v{vOA}, 1280, v{vT}")
    a(f"v_lshrrev_b32 v{vT}, 4, v{vLANE}")
    a(f"v_lshlrev_b32 v{vT}, 3, v{vT}")
    a(f"v_add_u32 v{vOA}, v{vOA}, v{vT}")
    a(f"s_mul_i32 s{sT0}, s{sST}, {64*1280}")
    a(f"s_mul_i32 s{sT1}, s{sDT2}, 160")
    a(f"s_add_u32 s{sWB}, s{sT0}, s{sT1}")
    a(f"v_lshlrev_b32 v{vC0}, 16, v{vB2}")
    a(f"v_lshlrev_b32 v{vC0+1}, 16, v{vB2}")
    a(f"v_sub_u32 v{vOA2}, v{vOA}, v{vT}")
    a(f"v_bfe_u32 v{vT}, v{vLANE}, 4, 1")
    a(f"v_lshlrev_b32 v{vT}, 5, v{vT}")
    a(f"v_add_u32 v{vOA2}, v{vOA2}, v{vT}")
    a(f"v_bfe_u32 v{vT}, v{vLANE}, 5, 1")
    a(f"v_lshlrev_b32 v{vT}, 4, v{vT}")
    a(f"v_add_u32 v{vOA2}, v{vOA2}, v{vT}")
    def red2_addr(src, nt, mt):
        k = [x for x in range(4) if x != src].index(nt)
        return src * 32768 + (k * 5 + mt) * 1024
    for w in range(4):
        if w < 3:
            a(f"s_cmp_lg_u32 s{sWAVE}, {w}")
            a(f"s_cbranch_scc1 L_ep2_{w+1}")
        a.vm = list(saved_vm2)
        tl = [(mt, nt) for mt in range(5) for nt in range(4)]
        def wr2(t, w=w):
            vb, off = lds_ref(red2_addr(w, t[1], t[0]))
            a(f"ds_write_b128 v{vb}, {vr(acc2(*t),4)} offset:{off}")
        def tail2(validate, w=w, wr2=wr2, tl=tl):
            tile_tail(14, "g", [t for t in tl if t[1] != w], [t for t in tl if t[1] == w], lambda t: t[0],
                      lambda st, t: mfma2(st, t[0], t[1], st % NS), wr2, [], validate=validate)
        tail2("acc" if opt.sent else False)
        if opt.sent:
            a(f"v_cmp_eq_u32 vcc, -1, v{vCK}")
            a("s_nop 1")
            a("s_cbranch_vccnz L_redo2")
            a.label(f"L_after2_{w}")
            redo_tails.append(tail2)
        stamp(a, opt, 13)
        a("s_waitcnt lgkmcnt(0)")
        a("s_barrier")
        RT = vRING
        n = 0
        for mt in range(5):
            for src in range(4):
                if src == w: continue
                vb, off = lds_ref(red2_addr(src, w, mt))
                a(f"ds_read_b128 {vr(RT+n*4,4)}, v{vb} offset:{off}")
                n += 1
        n = 0
        for mt in range(5):
            r = acc2(mt, w)
            for si in range(3):
                a(f"s_waitcnt lgkmcnt({14 - n})")
                a(f"v_pk_add_f32 {vr(r,2)}, {vr(r,2)}, {vr(RT+n*4,2)}")
                a(f"v_pk_add_f32 {vr(r+2,2)}, {vr(r+2,2)}, {vr(RT+n*4+2,2)}")
                n += 1
            a(f"v_pk_add_f32 {vr(r,2)}, {vr(r,2)}, {vr(vC0,2)}")
            a(f"v_pk_add_f32 {vr(r+2,2)}, {vr(r+2,2)}, {vr(vC0,2)}")
            o = RT + 64 + 2 * mt
            a(f"v_cvt_pk_bf16_f32 v{o}, v{r}, v{r+1}")
            a(f"v_cvt_pk_bf16_f32 v{o+1}, v{r+2}, v{r+3}")
            if not opt.wide or mt == 4:
                a(f"buffer_store_dwordx2 {vr(o,2)}, v{vOA}, {srd(sO)}, s{sWB} offen offset:{mt*32} {opt.obits}")
            elif mt % 2 == 1:
                a("s_nop 1")
                a(f"v_permlane16_swap_b32 v{o-2}, v{o}")
                a(f"v_permlane16_swap_b32 v{o-1}, v{o+1}")
                a(f"buffer_store_dwordx4 {vr(o-2,4)}, v{vOA2}, {srd(sO)}, s{sWB} offen offset:{(mt-1)*32} {opt.obits}")
        a("s_branch L_fin")
        if w < 3: a.label(f"L_ep2_{w+1}")
    a.label("L_fin")
    if opt.probe >= 0:
        if opt.probe == 14:
            a("s_waitcnt vmcnt(0)")
            stamp(a, opt, 14)
        a(f"s_cmp_lg_u32 s{sWG}, {opt.probewg}")
        a("s_cbranch_scc1 L_done")
        a(f"s_cmp_lg_u32 s{sWAVE}, {opt.probew}")
        a("s_cbranch_scc1 L_done")
        ref = sNONCE if opt.probeabs else (sPROF + 2 if opt.probe0 >= 0 else 96)
        a(f"s_sub_u32 s{sT1}, s{sPROF+1}, s{ref}")
        if opt.probecyc: a(f"s_lshr_b32 s{sT1}, s{sT1}, 2")
        else: a(f"s_lshl_b32 s{sT1}, s{sT1}, 2")
        a(f"s_add_u32 s{sT1}, s{sT1}, 4000")
        a.label("L_probe")
        a(f"s_memrealtime s[{sP}:{sP+1}]")
        a("s_waitcnt lgkmcnt(0)")
        a(f"s_sub_u32 s{sT0}, s{sP}, s96")
        a(f"s_cmp_lt_u32 s{sT0}, s{sT1}")
        a("s_cbranch_scc1 L_probe")
    if opt.pad:
        a.label("L_pad")
        a(f"s_memrealtime s[{sP}:{sP+1}]")
        a("s_waitcnt lgkmcnt(0)")
        a(f"s_sub_u32 s{sT0}, s{sP}, s96")
        a(f"s_cmp_lt_u32 s{sT0}, {opt.pad}")
        a("s_cbranch_scc1 L_pad")
    if opt.prof:
        a("s_waitcnt vmcnt(0)")
        stamp(a, opt, 14)
        make_srd(a, sX, 18, 65536, WS_PROF)
        a(f"s_lshl_b32 s{sT0}, s{sWG}, 2")
        a(f"s_add_u32 s{sT0}, s{sT0}, s{sWAVE}")
        a(f"s_lshl_b32 s{sT0}, s{sT0}, 6")
        a(f"v_mov_b32 v{vT}, s{sT0}")
        a("s_mov_b64 exec, 1")
        for i in range(15):
            a(f"v_mov_b32 v100, s{sPROF+i}")
            a(f"buffer_store_dword v100, v{vT}, {srd(sX)}, 0 offen offset:{4*i}")
            a("s_nop 1")
        a("s_waitcnt vmcnt(0)")
    a.label("L_done")
    a("s_endpgm")
    if opt.sent:
        a.label("L_redo2")
        a("s_waitcnt vmcnt(0) lgkmcnt(0)")
        a.vm = []
        a(f"s_mul_i32 s{sT0}, s{sDT2}, 5120")
        a(f"v_add_u32 v{vA}, s{sT0}, v{vL0}")
        a(f"v_add_u32 v{vA2}, 4096, v{vA}")
        main_loop(sG, 14, sROT2, "g", mfma2, None, None, 12, None, validate=True)
        vm_redo = list(a.vm)
        for w in range(4):
            if w < 3:
                a(f"s_cmp_lg_u32 s{sWAVE}, {w}")
                a(f"s_cbranch_scc1 L_redot_{w+1}")
            a.vm = list(vm_redo)
            redo_tails[w](True)
            a(f"s_branch L_after2_{w}")
            if w < 3: a.label(f"L_redot_{w+1}")
        emit_fixups(sG, 14, sROT2)
    a.label("L_codeend")
    a.raw('.section .rodata,"a"')
    a.raw(".p2align 6")
    a.raw(f".amdhsa_kernel {KN}")
    for l in ["next_free_vgpr 512", "next_free_sgpr 102", "accum_offset 256", "group_segment_fixed_size 0",
              "kernarg_size 64", "user_sgpr_count 2", "user_sgpr_kernarg_segment_ptr 1",
              "system_sgpr_workgroup_id_x 1", "float_denorm_mode_32 3"]:
        a.raw(f"  .amdhsa_{l}")
    a.raw(".end_amdhsa_kernel")
    return "\n".join(a.L) + "\n"

def parse(argv=None):
    ap = argparse.ArgumentParser()
    ap.add_argument("-o", default="standalone__mixer_token_mlp__prompt.s")
    ap.add_argument("--prof", type=int, default=0)
    ap.add_argument("--rot", type=int, default=3)
    ap.add_argument("--spin", type=int, default=20000)
    ap.add_argument("--sleep", type=int, default=8)
    ap.add_argument("--depth", type=int, default=3)
    ap.add_argument("--lnprof", type=int, default=0)
    ap.add_argument("--hbits", default="sc1")
    ap.add_argument("--pfwait", type=int, default=1)
    ap.add_argument("--hold", type=int, default=0)
    ap.add_argument("--probe", type=int, default=-1)
    ap.add_argument("--probe0", type=int, default=-1)
    ap.add_argument("--probecyc", type=int, default=0)
    ap.add_argument("--probeabs", type=int, default=0)
    ap.add_argument("--probewg", type=int, default=100)
    ap.add_argument("--probew", type=int, default=2)
    ap.add_argument("--rot8", type=int, default=1)
    ap.add_argument("--cpf", type=int, default=1)
    ap.add_argument("--cpfw", type=int, default=3)
    ap.add_argument("--wide", type=int, default=1)
    ap.add_argument("--idlewait", type=int, default=0)
    ap.add_argument("--sleeph", type=int, default=8)
    ap.add_argument("--preh", type=int, default=0)
    ap.add_argument("--preg", type=int, default=0)
    ap.add_argument("--onepoll", type=int, default=3)
    ap.add_argument("--pollw", type=int, default=3)
    ap.add_argument("--nta", type=int, default=0)
    ap.add_argument("--rotg1", type=int, default=0)
    ap.add_argument("--rotg2", type=int, default=0)
    ap.add_argument("--npost", type=int, default=3)
    ap.add_argument("--xbar", type=int, default=1)
    ap.add_argument("--hold1", type=int, default=4)
    ap.add_argument("--hold2", type=int, default=1)
    ap.add_argument("--nmid", type=int, default=0)
    ap.add_argument("--gbits", default="sc1")
    ap.add_argument("--fbits", default="sc1")
    ap.add_argument("--abits", default="sc1")
    ap.add_argument("--unsafe", type=int, default=0)
    ap.add_argument("--sent", type=int, default=1)
    ap.add_argument("--forcefix", type=int, default=0)
    ap.add_argument("--t13", type=int, default=1)
    ap.add_argument("--tt", type=int, default=2)
    ap.add_argument("--e2", type=int, default=0)
    ap.add_argument("--e3", type=int, default=0)
    ap.add_argument("--nb2", type=int, default=0)
    ap.add_argument("--e1", type=int, default=1)
    ap.add_argument("--nb", type=int, default=2)
    ap.add_argument("--nearly", type=int, default=2)
    ap.add_argument("--dpl", type=int, default=5)
    ap.add_argument("--dp", type=int, default=4)
    ap.add_argument("--p1", type=int, default=1)
    ap.add_argument("--p2", type=int, default=1)
    ap.add_argument("--rota1", type=int, default=0)
    ap.add_argument("--rota2", type=int, default=0)
    ap.add_argument("--xbits", default="nt")
    ap.add_argument("--w1bits", default="")
    ap.add_argument("--w2bits", default="")
    ap.add_argument("--pfbits", default="")
    ap.add_argument("--pfdepth", type=int, default=8)
    ap.add_argument("--prio", type=int, default=3)
    ap.add_argument("--delay", type=int, default=0)
    ap.add_argument("--hstride", type=int, default=8)
    ap.add_argument("--gstride", type=int, default=256)
    ap.add_argument("--pf", type=int, default=0)
    ap.add_argument("--pad", type=int, default=0)
    ap.add_argument("--obits", default="sc0 sc1")
    return ap.parse_args(argv)

if __name__ == "__main__":
    opt = parse()
    open(opt.o, "w").write(gen(opt))
```

```python
import argparse, struct

S, D, F = 2048, 640, 1728
KN = "standalone__mixer_token_mlp__prompt_kernel"

WS_H = 0
H_BYTES = 64 * 40 * 1024
WS_G = 0x300000
G_BYTES = 54 * 40 * 1024
WS_FLAG = 0x600000
FLAG_H = 0
FLAG_G = 0x10000
FLAG_BYTES = 0x40000
WS_PROF = 0x700000

LDS_BYTES = 163840
LN_BASE = 131072
LN_ROW = 1344
LF_BASE = 141824
P0_BASE = [0, 49152, 98304, 122880]

sWG = 2
sX, sW1, sW2, sH, sG, sO, sF, sB1, sB2, sD = 20, 24, 28, 32, 36, 40, 44, 48, 52, 56
sWAVE, sXCD, sJ, sFT, sDT1, sST, sDT2, sNONCE = 60, 61, 62, 63, 64, 65, 66, 67
sT0, sT1, sT2, sT3, sT4, sT5 = 68, 69, 70, 71, 72, 73
sROT1, sROT2, sSTEP, sOFF = 74, 75, 76, 77
sM0B, sSPIN = 78, 79
sP = 80
sPROF = 84
sUP = 99
sJLIM, sIDLE = 100, 101
sWB = 3

vTID, vLANE = 0, 1
vTR = 2
vA, vA2, vDMA, vT2 = 6, 7, 8, 9
vB1 = 10
vB2, vT = 14, 15
vACC = 16
vRING = 96
vTRU = 196
vL0, vL1, vL2 = 200, 201, 202
vC0 = 204
BI = 206
vPOLL = 214
vX = 216
vPQ = 228
vDM = 220

def srd(n): return f"s[{n}:{n+3}]"
def vr(n, c=1): return f"v{n}" if c == 1 else f"v[{n}:{n+c-1}]"
def ar(n, c=1): return f"a{n}" if c == 1 else f"a[{n}:{n+c-1}]"
def f2h(x): return "0x%08x" % struct.unpack("<I", struct.pack("<f", x))[0]
C0 = -2.0 * 0.7978845608028654 * 1.4426950408889634
C1 = C0 * 0.044715

class Asm:
    def __init__(self):
        self.L = []; self.vm = []; self.uid = 0
    def __call__(self, s): self.L.append("    " + s)
    def label(self, s): self.L.append(s + ":")
    def raw(self, s): self.L.append(s)
    def c(self, s): self.L.append("    ; " + s)
    def vmem(self, s, tag):
        self(s); self.vm.append(tag)
    def wait_vm(self, tag):
        hits = [i for i, t in enumerate(self.vm) if t == tag]
        if not hits: return
        n = len(self.vm) - 1 - hits[-1]
        self(f"s_waitcnt vmcnt({min(n, 63)})")
        self.vm = self.vm[hits[-1] + 1:]
    def wait_vm0(self):
        self("s_waitcnt vmcnt(0)"); self.vm = []
    def newlabel(self, p):
        self.uid += 1
        return f"L_{p}_{self.uid}"

def acc1(mt, nt): return vACC + (mt * 5 + nt) * 4
def acc2(mt, nt): return vACC + (mt * 4 + nt) * 4
def wfrag(step, t): return step * 16 + t * 4

def stamp(a, opt, idx, force=False):
    if opt.probe >= 0:
        ins = "s_memtime" if opt.probecyc else "s_memrealtime"
        if idx == opt.probe:
            a(f"{ins} s[{sP}:{sP+1}]")
            a("s_waitcnt lgkmcnt(0)")
            a(f"s_mov_b32 s{sPROF+1}, s{sP}")
        if idx == opt.probe0:
            a(f"{ins} s[{sP}:{sP+1}]")
            a("s_waitcnt lgkmcnt(0)")
            a(f"s_mov_b32 s{sPROF+2}, s{sP}")
        return
    if opt.prof == 4 and idx != 14: return
    if opt.lnprof and idx in (4, 5) and getattr(a, "ln_done", False): return
    if opt.prof:
        a(f"s_mem{'time' if opt.prof == 2 else 'realtime'} s[{sP}:{sP+1}]")
        a("s_waitcnt lgkmcnt(0)")
        a(f"s_mov_b32 s{sPROF+idx}, s{sP}")

def make_srd(a, n, lo, size, add=0):
    if add:
        a(f"s_add_u32 s{n}, s{lo}, {add}")
        a(f"s_addc_u32 s{n+1}, s{lo+1}, 0")
        a(f"s_and_b32 s{n+1}, s{n+1}, 0xffff")
    else:
        a(f"s_mov_b32 s{n}, s{lo}")
        a(f"s_and_b32 s{n+1}, s{lo+1}, 0xffff")
    a(f"s_mov_b32 s{n+2}, {size}")
    a(f"s_mov_b32 s{n+3}, 0x20000")

def nonce_spin(a, opt):
    lp = a.newlabel("nonce"); dn = a.newlabel("nonced")
    a(f"s_cmp_lg_u32 s{sNONCE}, 0")
    a(f"s_cbranch_scc1 {dn}")
    a(f"s_mov_b32 s{sSPIN}, 0")
    a(f"v_mov_b32 v{vT}, 0")
    a.label(lp)
    a(f"buffer_load_dword v{vT2}, v{vT}, {srd(sD)}, 0 offen sc1")
    a("s_waitcnt vmcnt(0)")
    a(f"v_readfirstlane_b32 s{sNONCE}, v{vT2}")
    a(f"s_add_u32 s{sSPIN}, s{sSPIN}, 1")
    a(f"s_cmp_lg_u32 s{sNONCE}, 0")
    a(f"s_cbranch_scc1 {dn}")
    a(f"s_cmp_lt_u32 s{sSPIN}, {opt.spin}")
    a(f"s_cbranch_scc1 {lp}")
    a.label(dn)

def lds_set(a, addr_sgpr_or_imm):
    a(f"v_mov_b32 v{vT}, {addr_sgpr_or_imm}")
    a(f"v_mov_b32 v{vT2}, 1")
    a(f"s_mov_b64 s[{sP}:{sP+1}], exec")
    a("s_mov_b64 exec, 1")
    a(f"ds_write_b32 v{vT}, v{vT2}")
    a(f"s_mov_b64 exec, s[{sP}:{sP+1}]")

def lds_spin(a, opt, addr):
    lp = a.newlabel("lspin"); dn = a.newlabel("lspun")
    a(f"v_mov_b32 v{vT}, {addr}")
    a(f"s_mov_b32 s{sSPIN}, 0")
    a.label(lp)
    a(f"ds_read_b32 v{vT2}, v{vT}")
    a("s_waitcnt lgkmcnt(0)")
    a(f"v_readfirstlane_b32 s{sP}, v{vT2}")
    a(f"s_add_u32 s{sSPIN}, s{sSPIN}, 1")
    a(f"s_cmp_lg_u32 s{sP}, 0")
    a(f"s_cbranch_scc1 {dn}")
    a(f"s_cmp_lt_u32 s{sSPIN}, {opt.spin * 8}")
    a(f"s_cbranch_scc1 {lp}")
    a.label(dn)

def dma_addr(a, stride, s_tile):
    a(f"v_lshrrev_b32 v{vT}, 3, v{vLANE}")
    a(f"v_lshrrev_b32 v{vT2}, 1, v{vT}")
    a(f"v_lshlrev_b32 v{vT2}, 1, v{vT2}")
    a(f"v_and_b32 v{vDM}, 7, v{vLANE}")
    a(f"v_xor_b32 v{vDM}, v{vDM}, v{vT2}")
    a(f"v_lshlrev_b32 v{vDM}, 4, v{vDM}")
    a(f"v_mul_u32_u24 v{vT}, {stride}, v{vT}")
    a(f"v_add_u32 v{vDM}, v{vDM}, v{vT}")
    a(f"s_lshl_b32 s{sT0}, s{s_tile}, 7")
    a(f"v_add_u32 v{vDM}, s{sT0}, v{vDM}")
    for b in range(1, 4):
        a(f"v_add_u32 v{vDM+b}, {b*(8*stride-1024)}, v{vDM}")

def step_off(a, dst, s_base, s_rot, i, nsteps, bytes_per_step):
    a(f"s_add_u32 s{sT4}, s{s_rot}, {i}")
    a(f"s_cmp_ge_u32 s{sT4}, {nsteps}")
    a(f"s_cselect_b32 s{dst}, {nsteps}, 0")
    a(f"s_sub_u32 s{sT4}, s{sT4}, s{dst}")
    a(f"s_mul_i32 s{sT4}, s{sT4}, {bytes_per_step}")
    a(f"s_add_u32 s{dst}, s{sT4}, s{s_base}")

def dma_step(a, srdn, stride, s_rowbase, s_rot, step, nsteps, s_lds, lds_off, tag, bits=""):
    a(f"s_add_u32 m0, s{s_lds}, {lds_off}")
    step_off(a, sOFF, s_rowbase, s_rot, step, nsteps, 32 * stride)
    for blk in range(4):
        a.vmem(f"buffer_load_dwordx4 v{vDM+blk}, {srd(srdn)}, s{sOFF} offen offset:{blk*1024} {bits} lds", tag)

def tr_step(a, vbase, off, step):
    for t in range(4):
        w = wfrag(step, t)
        a(f"ds_read_b64_tr_b16 {ar(w,2)}, v{vbase+t} offset:{off}")
        a(f"ds_read_b64_tr_b16 {ar(w+2,2)}, v{vbase+t} offset:{off+2048}")

def poll(a, opt, vaddr, nd, lanes, sleep=None, pre=0, nload=1):
    if sleep is None: sleep = opt.sleep
    if pre: a(f"s_sleep {pre}")
    lp = a.newlabel("poll"); dn = a.newlabel("polled")
    a(f"s_mov_b32 s{sSPIN}, 0")
    a.label(lp)
    ld = {1: "dword", 2: "dwordx2", 4: "dwordx4"}[nd]
    for k in range(nload):
        a(f"buffer_load_{ld} {vr(vPQ + 4*k, nd)}, v{vaddr}, {srd(sF)}, 0 offen offset:{k*1024} sc1")
    a("s_waitcnt vmcnt(0)")
    first = True
    for k in range(nload):
        for i in range(nd):
            if first:
                a(f"v_cmp_ne_u32 vcc, s{sNONCE}, v{vPQ+4*k+i}"); first = False
            else:
                a(f"v_cmp_ne_u32 s[{sP}:{sP+1}], s{sNONCE}, v{vPQ+4*k+i}")
                a(f"s_or_b64 vcc, vcc, s[{sP}:{sP+1}]")
    if lanes is not None:
        a(f"s_and_b64 vcc, vcc, s[{lanes}:{lanes+1}]")
    a(f"s_add_u32 s{sSPIN}, s{sSPIN}, 1")
    a("s_cmp_eq_u64 vcc, 0")
    a(f"s_cbranch_scc1 {dn}")
    if sleep: a(f"s_sleep {sleep}")
    a(f"s_cmp_lt_u32 s{sSPIN}, {opt.spin}")
    a(f"s_cbranch_scc1 {lp}")
    a.label(dn)
    a.vm = []

def poll_check(a, nd, lanes, ok_label):
    for i in range(nd):
        if i == 0: a(f"v_cmp_ne_u32 vcc, s{sNONCE}, v{vPQ}")
        else:
            a(f"v_cmp_ne_u32 s[{sP}:{sP+1}], s{sNONCE}, v{vPQ+i}")
            a(f"s_or_b64 vcc, vcc, s[{sP}:{sP+1}]")
    if lanes is not None:
        a(f"s_and_b64 vcc, vcc, s[{lanes}:{lanes+1}]")
    a("s_cmp_eq_u64 vcc, 0")
    a(f"s_cbranch_scc1 {ok_label}")

def flag_store(a, s_index_bytes):
    a(f"v_mov_b32 v{vT}, s{s_index_bytes}")
    a(f"v_mov_b32 v{vT2}, s{sNONCE}")
    a(f"s_mov_b64 s[{sP}:{sP+1}], exec")
    a("s_mov_b64 exec, 1")
    a.vmem(f"buffer_store_dword v{vT2}, v{vT}, {srd(sF)}, 0 offen {OPT.fbits}", "flag")
    a(f"s_mov_b64 exec, s[{sP}:{sP+1}]")

def gelu_pairs(a, regs, tmp, fill=None):
    def each(fn):
        for i, r in enumerate(regs): fn(r, tmp + 2 * i)
    each(lambda r, t: a(f"v_pk_mul_f32 {vr(t,2)}, {vr(r,2)}, {vr(r,2)}"))
    each(lambda r, t: a(f"v_pk_fma_f32 {vr(t,2)}, {vr(t,2)}, s[100:101], {vr(vC0,2)}"))
    each(lambda r, t: a(f"v_pk_mul_f32 {vr(t,2)}, {vr(t,2)}, {vr(r,2)}"))
    if fill: fill()
    each(lambda r, t: (a(f"v_exp_f32 v{t}, v{t}"), a(f"v_exp_f32 v{t+1}, v{t+1}")))
    each(lambda r, t: a(f"v_pk_add_f32 {vr(t,2)}, {vr(t,2)}, 1.0 op_sel_hi:[1,0]"))
    each(lambda r, t: (a(f"v_rcp_f32 v{t}, v{t}"), a(f"v_rcp_f32 v{t+1}, v{t+1}")))
    a("s_nop 0")
    each(lambda r, t: a(f"v_pk_mul_f32 {vr(r,2)}, {vr(r,2)}, {vr(t,2)}"))

def w2_slot(step):
    if step < 8: return sM0B, step * 4096, vTR, step * 4096
    if step < 10: return sUP, (step - 8) * 4096, vTRU, (step - 8) * 4096
    return sM0B, (step - 10) * 4096, vTR, (step - 10) * 4096

def w2_dma(a, step):
    sb, off, _, _ = w2_slot(step)
    dma_step(a, sW2, S * 2, sWB, sROT2, step, 14, sb, off, f"w2_{step}", OPT.w2bits)

def w2_dma_parts(a, step):
    sb, off, _, _ = w2_slot(step)
    def setup():
        a(f"s_add_u32 m0, s{sb}, {off}")
        step_off(a, sOFF, sWB, sROT2, step, 14, 32 * S * 2)
    def one(blk):
        return lambda: a.vmem(f"buffer_load_dwordx4 v{vDM+blk}, {srd(sW2)}, s{sOFF} offen offset:{blk*1024} {OPT.w2bits} lds", f"w2_{step}")
    return [setup] + [one(b) for b in range(4)]

def w2_tr(a, step):
    _, _, vb, off = w2_slot(step)
    tr_step(a, vb, off, step)

def gen(opt):
    global OPT
    OPT = opt
    a = Asm()
    NS = opt.depth + 1
    def ring(slot, t): return vRING + slot * 20 + t * 4
    a.raw(f"; @launch grid=(256,1,1) block=(256,1,1) lds={LDS_BYTES}")
    a.raw('.amdgcn_target "amdgcn-amd-amdhsa--gfx950"')
    a.raw(".text")
    a.raw(f".globl {KN}")
    a.raw(".p2align 8")
    a.raw(f".type {KN},@function")
    a.label(KN)
    if opt.cpf: a("s_getpc_b64 s[94:95]")
    a(f"s_cmp_ge_u32 s{sWG}, 256")
    a("s_cbranch_scc1 L_done")
    a("s_load_dwordx16 s[4:19], s[0:1], 0")
    if opt.prof:
        a(f"s_mem{'time' if opt.prof == 2 else 'realtime'} s[{sP}:{sP+1}]")
    if opt.prof:
        for i in range(1, 15): a(f"s_mov_b32 s{sPROF+i}, 0")
    if not opt.prof:
        a("s_memrealtime s[96:97]")
    a(f"v_lshrrev_b32 v{vT}, 6, v{vTID}")
    a(f"v_and_b32 v{vLANE}, 63, v{vTID}")
    a(f"v_readfirstlane_b32 s{sWAVE}, v{vT}")
    a(f"s_and_b32 s{sXCD}, s{sWG}, 7")
    a(f"s_lshr_b32 s{sJ}, s{sWG}, 3")
    if opt.p1 == 2:
        a(f"s_lshr_b32 s{sT1}, s{sXCD}, 1")
        a(f"s_and_b32 s{sT2}, s{sXCD}, 1")
        a(f"s_lshl_b32 s{sT2}, s{sT2}, 2")
        a(f"s_mul_i32 s{sT0}, s{sT1}, 7")
        a(f"s_lshr_b32 s{sFT}, s{sJ}, 2")
        a(f"s_add_u32 s{sFT}, s{sFT}, s{sT0}")
        a(f"s_and_b32 s{sT3}, s{sJ}, 3")
        a(f"s_add_u32 s{sDT1}, s{sT2}, s{sT3}")
        if opt.rot8: a(f"s_lshl_b32 s{sROT1}, s{sDT1}, 1")
        else: a(f"s_lshl_b32 s{sROT1}, s{sT3}, 2")
        a(f"s_cmp_eq_u32 s{sT1}, 3")
        a(f"s_cselect_b32 s{sJLIM}, 24, 28")
        a(f"s_lshl_b32 s{sT0}, s{sXCD}, 2")
        a(f"s_sub_u32 s{sT0}, s{sT0}, 28")
        a(f"s_lshl_b32 s{sT3}, s{sXCD}, 3")
        a(f"s_sub_u32 s{sT3}, s{sT3}, 48")
        a(f"s_cselect_b32 s{sIDLE}, s{sT0}, s{sT0}")
        a(f"s_cmp_ge_u32 s{sXCD}, 6")
        a(f"s_cselect_b32 s{sIDLE}, s{sT3}, s{sT0}")
        a(f"s_add_u32 s{sIDLE}, s{sIDLE}, s{sJ}")
    else:
        a(f"s_lshl_b32 s{sT0}, s{sXCD}, 2")
        a(f"s_mul_i32 s{sT1}, s{sXCD}, 3")
        a(f"s_add_u32 s{sT1}, s{sT1}, 3")
        a(f"s_cmp_lt_u32 s{sXCD}, 3")
        a(f"s_cselect_b32 s{sT0}, s{sT0}, s{sT1}")
        a(f"s_cselect_b32 s{sJLIM}, 32, 24")
        a(f"s_lshr_b32 s{sFT}, s{sJ}, 3")
        a(f"s_add_u32 s{sFT}, s{sFT}, s{sT0}")
        a(f"s_and_b32 s{sDT1}, s{sJ}, 7")
        a(f"s_lshl_b32 s{sROT1}, s{sDT1}, 1")
        a(f"s_lshl_b32 s{sIDLE}, s{sXCD}, 3")
        a(f"s_add_u32 s{sIDLE}, s{sIDLE}, s{sJ}")
        a(f"s_sub_u32 s{sIDLE}, s{sIDLE}, 48")
    if opt.rotg1 == 3:
        a(f"s_mul_i32 s{sT0}, s{sFT}, 11")
        a(f"s_lshr_b32 s{sT0}, s{sT0}, 5")
        a(f"s_mul_i32 s{sT0}, s{sT0}, 3")
        a(f"s_sub_u32 s{sT0}, s{sFT}, s{sT0}")
        a(f"s_mul_i32 s{sT0}, s{sT0}, 5")
        a(f"s_add_u32 s{sROT1}, s{sROT1}, s{sT0}")
        a(f"s_and_b32 s{sROT1}, s{sROT1}, 15")
    if opt.rotg1 == 2:
        a(f"s_and_b32 s{sT0}, s{sFT}, 1")
        a(f"s_lshl_b32 s{sT0}, s{sT0}, 3")
        a(f"s_add_u32 s{sROT1}, s{sROT1}, s{sT0}")
        a(f"s_and_b32 s{sROT1}, s{sROT1}, 15")
    if opt.rota1:
        a(f"s_mul_i32 s{sT0}, s{sFT}, {opt.rota1}")
        a(f"s_add_u32 s{sROT1}, s{sROT1}, s{sT0}")
        a(f"s_and_b32 s{sROT1}, s{sROT1}, 15")
    if opt.p2 == 2:
        a(f"s_lshr_b32 s{sT1}, s{sXCD}, 1")
        a(f"s_and_b32 s{sT2}, s{sXCD}, 1")
        a(f"s_lshl_b32 s{sT2}, s{sT2}, 2")
        a(f"s_lshr_b32 s{sT0}, s{sJ}, 2")
        a(f"s_lshl_b32 s{sST}, s{sT1}, 3")
        a(f"s_add_u32 s{sST}, s{sST}, s{sT0}")
        a(f"s_and_b32 s{sT3}, s{sJ}, 3")
        a(f"s_add_u32 s{sDT2}, s{sT2}, s{sT3}")
        if opt.rot8:
            a(f"s_mul_i32 s{sROT2}, s{sDT2}, 7")
            a(f"s_lshr_b32 s{sROT2}, s{sROT2}, 2")
        else:
            a(f"s_mul_i32 s{sROT2}, s{sT3}, 7")
            a(f"s_lshr_b32 s{sROT2}, s{sROT2}, 1")
    else:
        a(f"s_lshr_b32 s{sT0}, s{sJ}, 3")
        a(f"s_lshl_b32 s{sST}, s{sXCD}, 2")
        a(f"s_add_u32 s{sST}, s{sST}, s{sT0}")
        a(f"s_and_b32 s{sDT2}, s{sJ}, 7")
        a(f"s_mul_i32 s{sROT2}, s{sDT2}, 7")
        a(f"s_lshr_b32 s{sROT2}, s{sROT2}, 2")
    if opt.rotg2:
        if opt.rotg2 == 2:
            a(f"s_and_b32 s{sT0}, s{sST}, 1")
            a(f"s_mul_i32 s{sT0}, s{sT0}, 7")
        else:
            a(f"s_mul_i32 s{sT0}, s{sST}, 11")
            a(f"s_lshr_b32 s{sT0}, s{sT0}, 5")
            a(f"s_mul_i32 s{sT0}, s{sT0}, 3")
            a(f"s_sub_u32 s{sT0}, s{sST}, s{sT0}")
            a(f"s_mul_i32 s{sT0}, s{sT0}, 5")
        a(f"s_add_u32 s{sROT2}, s{sROT2}, s{sT0}")
        a(f"s_cmp_ge_u32 s{sROT2}, 14")
        a(f"s_cselect_b32 s{sT0}, 14, 0")
        a(f"s_sub_u32 s{sROT2}, s{sROT2}, s{sT0}")
    if opt.rota2:
        a(f"s_mul_i32 s{sT0}, s{sST}, {opt.rota2}")
        a(f"s_add_u32 s{sROT2}, s{sROT2}, s{sT0}")
        a(f"s_and_b32 s{sT0}, s{sROT2}, 0xff")
        a(f"s_mul_i32 s{sT0}, s{sROT2}, 18725")
        a(f"s_lshr_b32 s{sT0}, s{sT0}, 18")
        a(f"s_mul_i32 s{sT0}, s{sT0}, 14")
        a(f"s_sub_u32 s{sROT2}, s{sROT2}, s{sT0}")
    if not (opt.rot & 1): a(f"s_mov_b32 s{sROT1}, 0")
    if not (opt.rot & 2): a(f"s_mov_b32 s{sROT2}, 0")
    a(f"s_lshl_b32 s{sM0B}, s{sWAVE}, 15")
    a(f"s_lshl_b32 s{sUP}, s{sWAVE}, 13")
    a(f"s_add_u32 s{sUP}, s{sUP}, 131072")
    def tr_addr(base_sgpr):
        t0, t1, t2 = vX, vX + 1, vX + 2
        a(f"v_lshrrev_b32 v{t0}, 4, v{vLANE}")
        a(f"v_and_b32 v{t1}, 1, v{t0}")
        a(f"v_lshlrev_b32 v{t1}, 2, v{t1}")
        a(f"v_bfe_u32 v{t2}, v{vLANE}, 2, 2")
        a(f"v_add_u32 v{t1}, v{t1}, v{t2}")
        a(f"v_lshrrev_b32 v{t0}, 1, v{t0}")
        a(f"v_lshlrev_b32 v{t0}, 10, v{t0}")
        a(f"v_lshlrev_b32 v{t2}, 7, v{t1}")
        a(f"v_add_u32 v{t0}, v{t0}, v{t2}")
        a(f"v_and_b32 v{t2}, 3, v{vLANE}")
        a(f"v_lshlrev_b32 v{t2}, 3, v{t2}")
        a(f"v_add_u32 v{t0}, v{t0}, v{t2}")
        a(f"v_add_u32 v{t0}, s{base_sgpr}, v{t0}")
        a(f"v_lshrrev_b32 v{t1}, 1, v{t1}")
        for t in range(4):
            a(f"v_xor_b32 v{t2}, {t}, v{t1}")
            a(f"v_lshlrev_b32 v{t2}, 5, v{t2}")
            a(f"v_add_u32 v{vTR+t}, v{t0}, v{t2}")
    def w1_dma(i): dma_step(a, sW1, F * 2, sWB, sROT1, i, 16, sM0B, (i % 8) * 4096, f"w1_{i}", "nt" if i < opt.nta else opt.w1bits)
    def w1_stream(first, dp, hold=0):
        retired = 0
        def retire():
            nonlocal retired
            a.wait_vm(f"w1_{retired}")
            if retired: a("s_waitcnt lgkmcnt(0)")
            tr_step(a, vTR, (retired % 8) * 4096, retired)
            retired += 1
        for i in range(first, 16):
            while retired <= i - dp: retire()
            if i >= 8:
                while retired <= i - 8: retire()
                if retired == i - 7: a("s_waitcnt lgkmcnt(0)")
            w1_dma(i)
            if opt.epoll and i == opt.epoll:
                a(f"s_cmp_lg_u32 s{sWAVE}, {opt.pollw}")
                a("s_cbranch_scc1 L_noepoll")
                a(f"v_lshlrev_b32 v{vX+3}, 4, v{vLANE}")
                a(f"buffer_load_dwordx4 {vr(vPQ,4)}, v{vX+3}, {srd(sF)}, 0 offen sc1")
                a.label("L_noepoll")
        while retired < 16 - hold: retire()
        def finish():
            while retired < 16: retire()
            a("s_waitcnt lgkmcnt(0)")
        if not hold: finish()
        return finish
    dma_addr(a, F * 2, sFT)
    a(f"s_mul_i32 s{sWB}, s{sWAVE}, {512*F*2}")
    a.c("LayerNorm: wave w normalises rows 32*ks + 16*(w>>1) + 4*q + 2*(w&1) + (0,1), 32 lanes per row")
    XR, XF, TM = 96, 108, 130
    a(f"s_lshr_b32 s{sT0}, s{sWG}, 2")
    a(f"s_and_b32 s{sT1}, s{sWG}, 3")
    a(f"s_lshl_b32 s{sT2}, s{sT0}, 5")
    a(f"s_lshr_b32 s{sT3}, s{sWAVE}, 1")
    a(f"s_lshl_b32 s{sT3}, s{sT3}, 4")
    a(f"s_add_u32 s{sT2}, s{sT2}, s{sT3}")
    a(f"s_lshl_b32 s{sT3}, s{sT1}, 2")
    a(f"s_add_u32 s{sT2}, s{sT2}, s{sT3}")
    a(f"s_and_b32 s{sT3}, s{sWAVE}, 1")
    a(f"s_lshl_b32 s{sT3}, s{sT3}, 1")
    a(f"s_add_u32 s{sT2}, s{sT2}, s{sT3}")
    a(f"s_mul_i32 s{sT2}, s{sT2}, 1280")
    a(f"v_lshrrev_b32 v{TM}, 5, v{vLANE}")
    a(f"v_and_b32 v{TM+1}, 31, v{vLANE}")
    a(f"v_lshlrev_b32 v{TM+1}, 3, v{TM+1}")
    a(f"v_mul_u32_u24 v{TM+2}, 1280, v{TM}")
    a(f"v_add_u32 v{TM+2}, v{TM+2}, v{TM+1}")
    a(f"v_mov_b32 v{vT}, 0")
    a("s_waitcnt lgkmcnt(0)")
    if opt.prof: a(f"s_mov_b32 s{sPROF}, s{sP}")
    make_srd(a, sD, 16, 256)
    a(f"s_cmp_lg_u32 s{sWG}, 0")
    a("s_cbranch_scc1 L_nononce")
    a(f"s_cmp_lg_u32 s{sWAVE}, 3")
    a("s_cbranch_scc1 L_nononce")
    a(f"s_or_b32 s{sNONCE}, s{sP if opt.prof else 96}, 1")
    a(f"v_mov_b32 v{vT2}, s{sNONCE}")
    a(f"s_mov_b64 s[{sP+2}:{sP+3}], exec")
    a("s_mov_b64 exec, 1")
    a(f"buffer_store_dword v{vT2}, v{vT}, {srd(sD)}, 0 offen sc1")
    a(f"s_mov_b64 exec, s[{sP+2}:{sP+3}]")
    a.label("L_nononce")
    make_srd(a, sX, 4, S * D * 2)
    for i in range(5):
        a.vmem(f"buffer_load_dwordx2 {vr(XR+2*i,2)}, v{TM+2}, {srd(sX)}, s{sT2} offen offset:{i*256} {opt.xbits}", "x")
    make_srd(a, sW1, 6, S * F * 2)
    if opt.xbar: a("s_barrier")
    a(f"s_cmp_ge_u32 s{sJ}, s{sJLIM}")
    a("s_cbranch_scc1 L_ln_now1")
    for i in range(opt.nearly): w1_dma(i)
    a.label("L_ln_now1")
    if opt.cpf:
        a(f"s_cmp_lg_u32 s{sWAVE}, 3")
        a("s_cbranch_scc1 L_nocpf")
        a(f"s_lshl_b32 s{sT3}, s{sJ}, 11")
        a(f"v_lshlrev_b32 v{vX}, 4, v{vLANE}")
        a(f"v_add_u32 v{vX}, s{sT3}, v{vX}")
        a(f"v_add_u32 v{vX+1}, 1024, v{vX}")
        for h in range(2):
            a(f"v_min_u32 v{vX+h}, L_codeend-{KN}-36, v{vX+h}")
            a(f"global_load_dwordx4 {vr(240+4*h,4)}, v{vX+h}, s[94:95]")
        a.label("L_nocpf")
    make_srd(a, sH, 18, H_BYTES, WS_H)
    make_srd(a, sF, 18, FLAG_BYTES, WS_FLAG)
    a(f"s_mul_i32 s{sSTEP}, s{sT0}, 40960")
    a(f"s_lshl_b32 s{sT1}, s{sT1}, 8")
    a(f"s_add_u32 s{sSTEP}, s{sSTEP}, s{sT1}")
    a(f"s_lshl_b32 s{sT3}, s{sWAVE}, 1")
    a(f"v_add_u32 v{TM+4}, s{sT3}, v{TM}")
    a(f"v_mul_u32_u24 v{TM+4}, {LN_ROW}, v{TM+4}")
    a(f"v_add_u32 v{TM+4}, v{TM+4}, v{TM+1}")
    a(f"v_add_u32 v{TM+4}, {LN_BASE}, v{TM+4}")
    a(f"s_mul_i32 s{sT3}, s{sWAVE}, 12")
    a(f"s_cmp_eq_u32 s{sWAVE}, 3")
    a(f"s_cselect_b32 s{sT3}, 32, s{sT3}")
    a(f"v_lshrrev_b32 v{TM+6}, 4, v{vLANE}")
    a(f"v_add_u32 v{TM+6}, s{sT3}, v{TM+6}")
    a(f"v_bfe_u32 v{TM+5}, v{vLANE}, 2, 2")
    a(f"v_mul_u32_u24 v{TM+5}, {LN_ROW}, v{TM+5}")
    a(f"v_lshlrev_b32 v{TM+7}, 5, v{TM+6}")
    a(f"v_add_u32 v{TM+5}, v{TM+5}, v{TM+7}")
    a(f"v_and_b32 v{TM+7}, 3, v{vLANE}")
    a(f"v_lshlrev_b32 v{TM+7}, 3, v{TM+7}")
    a(f"v_add_u32 v{TM+5}, v{TM+5}, v{TM+7}")
    a(f"v_add_u32 v{TM+5}, {LN_BASE}, v{TM+5}")
    a(f"v_lshlrev_b32 v{TM+6}, 10, v{TM+6}")
    a(f"v_and_b32 v{TM+7}, 15, v{vLANE}")
    a(f"v_lshlrev_b32 v{TM+7}, 4, v{TM+7}")
    a(f"v_add_u32 v{TM+6}, v{TM+6}, v{TM+7}")
    tr_addr(sM0B)
    a(f"s_mov_b32 s{sT0}, 0xffff0000")
    nc = 2 if opt.cpf else 0
    a(f"s_cmp_ge_u32 s{sJ}, s{sJLIM}")
    a("s_cbranch_scc1 L_ln_idle")
    a(f"s_cmp_eq_u32 s{sWAVE}, 3")
    a("s_cbranch_scc1 L_ln_w3")
    a(f"s_waitcnt vmcnt({4*opt.nearly})")
    a("s_branch L_ln_go")
    a.label("L_ln_w3")
    a(f"s_waitcnt vmcnt({4*opt.nearly + nc})")
    a("s_branch L_ln_go")
    a.label("L_ln_idle")
    a(f"s_cmp_eq_u32 s{sWAVE}, 3")
    a("s_cbranch_scc1 L_ln_idle3")
    a("s_waitcnt vmcnt(0)")
    a("s_branch L_ln_go")
    a.label("L_ln_idle3")
    a(f"s_waitcnt vmcnt({nc})")
    a.label("L_ln_go")
    stamp(a, opt, 1)
    nmid = [opt.nearly]
    def mid_step(tag):
        if nmid[0] < opt.nearly + opt.nmid:
            a(f"s_cmp_ge_u32 s{sJ}, s{sJLIM}")
            a(f"s_cbranch_scc1 L_mid_{tag}")
            w1_dma(nmid[0]); nmid[0] += 1
            a.label(f"L_mid_{tag}")
    if opt.unsafe & 2: a(f"buffer_load_dword v{vPOLL}, v{vT}, {srd(sD)}, 0 offen sc1")
    mid_step("a")
    for i in range(10):
        a(f"v_lshlrev_b32 v{XF+2*i}, 16, v{XR+i}")
        a(f"v_and_b32 v{XF+2*i+1}, s{sT0}, v{XR+i}")
    SM = TM + 8
    a(f"v_pk_add_f32 {vr(SM,2)}, {vr(XF,2)}, {vr(XF+4,2)}")
    a(f"v_pk_add_f32 {vr(SM+2,2)}, {vr(XF+2,2)}, {vr(XF+6,2)}")
    for i in range(4, 10):
        k = i % 2
        a(f"v_pk_add_f32 {vr(SM+2*k,2)}, {vr(SM+2*k,2)}, {vr(XF+2*i,2)}")
    def reduce_row(dst):
        a(f"v_pk_add_f32 {vr(SM,2)}, {vr(SM,2)}, {vr(SM+2,2)}")
        a(f"v_add_f32 v{dst}, v{SM}, v{SM+1}")
        for rot in (8, 4, 2, 1):
            a("s_nop 1")
            a(f"v_add_f32_dpp v{dst}, v{dst}, v{dst} row_ror:{rot} row_mask:0xf bank_mask:0xf")
        a(f"v_mov_b32 v{SM}, v{dst}")
        a("s_nop 1")
        a(f"v_permlane16_swap_b32 v{dst}, v{SM}")
        a("s_nop 1")
        a(f"v_add_f32 v{dst}, v{dst}, v{SM}")
    MN = TM + 12
    reduce_row(MN)
    mid_step("b")
    a(f"v_mul_f32 v{MN}, {f2h(1.0/640.0)}, v{MN}")
    a(f"v_mov_b32 v{MN+1}, v{MN}")
    for i in range(10):
        a(f"v_pk_add_f32 {vr(XF+2*i,2)}, {vr(XF+2*i,2)}, {vr(MN,2)} neg_lo:[0,1] neg_hi:[0,1]")
    for k in range(2):
        a(f"v_pk_mul_f32 {vr(SM+2*k,2)}, {vr(XF+2*k,2)}, {vr(XF+2*k,2)}")
    for i in range(2, 10):
        k = i % 2
        a(f"v_pk_fma_f32 {vr(SM+2*k,2)}, {vr(XF+2*i,2)}, {vr(XF+2*i,2)}, {vr(SM+2*k,2)}")
    reduce_row(MN)
    mid_step("c")
    a(f"v_mov_b32 v{MN+1}, {f2h(1e-5)}")
    a(f"v_fmac_f32 v{MN+1}, {f2h(1.0/640.0)}, v{MN}")
    a(f"v_rsq_f32 v{MN}, v{MN+1}")
    a("s_nop 0")
    a(f"v_mov_b32 v{MN+1}, v{MN}")
    for i in range(10):
        a(f"v_pk_mul_f32 {vr(XF+2*i,2)}, {vr(XF+2*i,2)}, {vr(MN,2)}")
    for i in range(10):
        a(f"v_cvt_pk_bf16_f32 v{XR+i}, v{XF+2*i}, v{XF+2*i+1}")
    for i in range(5):
        a(f"ds_write_b64 v{TM+4}, {vr(XR+2*i,2)} offset:{i*256}")
    a("s_waitcnt lgkmcnt(0)")
    if opt.unsafe & 2:
        a("s_waitcnt vmcnt(0)")
        a(f"v_readfirstlane_b32 s{sNONCE}, v{vPOLL}")
        nonce_spin(a, opt)
    a("s_barrier")
    for i in range(2):
        a(f"ds_read_b64_tr_b16 {vr(XF+4*i,2)}, v{TM+5} offset:{i*128}")
        a(f"ds_read_b64_tr_b16 {vr(XF+4*i+2,2)}, v{TM+5} offset:{i*128+4*LN_ROW}")
    a(f"s_cmp_ge_u32 s{sWAVE}, 2")
    a("s_cbranch_scc1 L_ln_two")
    a(f"ds_read_b64_tr_b16 {vr(XF+8,2)}, v{TM+5} offset:{2*128}")
    a(f"ds_read_b64_tr_b16 {vr(XF+10,2)}, v{TM+5} offset:{2*128+4*LN_ROW}")
    a("s_waitcnt lgkmcnt(0)")
    a(f"s_add_u32 s{sT0}, s{sSTEP}, {2*4096}")
    a(f"buffer_store_dwordx4 {vr(XF+8,4)}, v{TM+6}, {srd(sH)}, s{sT0} offen {opt.hbits}")
    a.label("L_ln_two")
    a("s_waitcnt lgkmcnt(0)")
    for i in range(2):
        a(f"s_add_u32 s{sT0}, s{sSTEP}, {i*4096}")
        a(f"buffer_store_dwordx4 {vr(XF+4*i,4)}, v{TM+6}, {srd(sH)}, s{sT0} offen {opt.hbits}")
    if not (opt.unsafe & 2): a(f"buffer_load_dword v{vPOLL}, v{vT}, {srd(sD)}, 0 offen sc1")
    stamp(a, opt, 2)
    if opt.unsafe & 2:
        a("s_barrier")
        a(f"s_cmp_lg_u32 s{sWAVE}, 0")
        a("s_cbranch_scc1 L_noflag0")
        a(f"s_lshl_b32 s{sT0}, s{sWG}, 2")
        flag_store(a, sT0)
        a.label("L_noflag0")
    a(f"s_cmp_ge_u32 s{sJ}, s{sJLIM}")
    a("s_cbranch_scc1 L_ln_idle2")
    ne = opt.nearly + opt.nmid
    a.vm = [f"w1_{i}" for i in range(ne)]
    for i in range(ne, ne + opt.npost): w1_dma(i)
    if not (opt.unsafe & 2): a(f"s_waitcnt vmcnt({4*opt.npost})")
    a("s_branch L_ln_go2")
    a.label("L_ln_idle2")
    if not (opt.unsafe & 2): a("s_waitcnt vmcnt(0)")
    a.label("L_ln_go2")
    if not (opt.unsafe & 2):
        a(f"v_readfirstlane_b32 s{sNONCE}, v{vPOLL}")
        nonce_spin(a, opt)
        a("s_barrier")
        a(f"s_cmp_lg_u32 s{sWAVE}, 0")
        a("s_cbranch_scc1 L_noflag")
        a(f"s_lshl_b32 s{sT0}, s{sWG}, 2")
        keep = list(a.vm)
        flag_store(a, sT0)
        a.vm = keep
        a.label("L_noflag")
    stamp(a, opt, 3)
    a(f"s_cmp_ge_u32 s{sJ}, s{sJLIM}")
    a("s_cbranch_scc1 L_nogemm1")
    w1_finish = w1_stream(opt.nearly + opt.nmid + opt.npost, opt.dp, opt.hold1)

    def common_setup(retr=True):
        make_srd(a, sH, 18, H_BYTES, WS_H)
        make_srd(a, sF, 18, FLAG_BYTES, WS_FLAG)
        make_srd(a, sB1, 8, F * 2)
        make_srd(a, sW2, 10, F * S * 2)
        make_srd(a, sB2, 12, S * 2)
        make_srd(a, sO, 14, S * D * 2)
        make_srd(a, sG, 18, G_BYTES, WS_G)
        a(f"v_lshrrev_b32 v{vT}, 4, v{vLANE}")
        a(f"v_lshlrev_b32 v{vT}, 3, v{vT}")
        a(f"s_and_b32 s{sT0}, s{sWAVE}, 1")
        a(f"s_lshl_b32 s{sT0}, s{sT0}, 6")
        a(f"s_lshl_b32 s{sT1}, s{sFT}, 7")
        a(f"s_add_u32 s{sT0}, s{sT0}, s{sT1}")
        a.vmem(f"buffer_load_dwordx2 {vr(vB1,2)}, v{vT}, {srd(sB1)}, s{sT0} offen", "b")
        a.vmem(f"buffer_load_dwordx2 {vr(vB1+2,2)}, v{vT}, {srd(sB1)}, s{sT0} offen offset:32", "b")
        a(f"v_and_b32 v{vT}, 15, v{vLANE}")
        a(f"v_lshlrev_b32 v{vT}, 1, v{vT}")
        a(f"s_lshl_b32 s{sT0}, s{sST}, 7")
        a(f"s_lshl_b32 s{sT1}, s{sWAVE}, 5")
        a(f"s_add_u32 s{sT0}, s{sT0}, s{sT1}")
        a.vmem(f"buffer_load_ushort v{vB2}, v{vT}, {srd(sB2)}, s{sT0} offen", "b")
        dma_addr(a, S * 2, sST)
        a(f"s_mul_i32 s{sWB}, s{sWAVE}, {448*S*2}")
        if retr: tr_addr(sM0B)
        a(f"s_sub_u32 s{sT0}, s{sUP}, s{sM0B}")
        for t in range(4):
            a(f"v_add_u32 v{vTRU+t}, s{sT0}, v{vTR+t}")
        a(f"v_lshlrev_b32 v{vL0}, 4, v{vLANE}")
        a(f"v_add_u32 v{vL1}, 65536, v{vL0}")
        a(f"v_add_u32 v{vL2}, 131072, v{vL0}")

    a.label("L_w1_ready")
    stamp(a, opt, 4)
    vm_keep = list(a.vm)
    common_setup(retr=False)
    a(f"s_mul_i32 s{sT0}, s{sDT1}, 5120")
    a(f"v_add_u32 v{vA}, s{sT0}, v{vL0}")
    a(f"v_add_u32 v{vA2}, 4096, v{vA}")
    a(f"s_cmp_lg_u32 s{sWAVE}, {opt.pollw}")
    a("s_cbranch_scc1 L_hpolled")
    if opt.epoll:
        a(f"s_waitcnt vmcnt({4*(15 - opt.epoll) + 3})")
        poll_check(a, 4, None, "L_hpolled")
    poll(a, opt, vL0, 4, None, opt.sleeph, opt.preh, 1)
    a.label("L_hpolled")
    a.vm = vm_keep + ["b", "b", "b"]
    a("s_barrier")
    stamp(a, opt, 5)

    def a_loads(srdn, step, nsteps, s_rot):
        slot = step % NS
        step_off(a, sOFF, sSTEP, s_rot, step, nsteps, 40960)
        return [f"buffer_load_dwordx4 {vr(ring(slot,t),4)}, v{vA if t < 4 else vA2}, {srd(srdn)}, s{sOFF} offen offset:{(t*1024) if t < 4 else 0} {opt.abits}" for t in range(5)]

    def main_loop(srdn, nsteps, s_rot, tagp, mfma, stamp0, tail, nuni, pre=None):
        for st in range(opt.depth):
            for o, ins in enumerate(a_loads(srdn, st, nsteps, s_rot)): a.vmem(ins, f"{tagp}{st}_{o}")
        if pre: pre()
        for st in range(nuni):
            nx = st + opt.depth
            nxt = a_loads(srdn, nx, nsteps, s_rot) if nx < nsteps else None
            a.wait_vm(f"{tagp}{st}_4")
            if st == 0 and stamp0 is not None: stamp(a, opt, stamp0)
            for o in range(5):
                if nxt: a.vmem(nxt[o], f"{tagp}{nx}_{o}")
                for i in range(4): mfma(st, o, i, st % NS)
                if tail: tail(st, o)

    def tile_tail(nsteps, tagp, first, last, frag_of, mfma_tile, write_tile, extra):
        ic = [0]
        done_at = {}
        queue = []
        extra = list(extra)
        def emit(fn):
            fn(); ic[0] += 1
        def filler():
            if queue and ic[0] - done_at[queue[0]] >= 9:
                t = queue.pop(0); emit(lambda: write_tile(t)); return
            if extra: emit(extra.pop(0))
        tiles = list(first) + list(last)
        for i in range(0, len(tiles), 2):
            pair = tiles[i:i + 2]
            for t in pair:
                for st in (nsteps - 2, nsteps - 1): a.wait_vm(f"{tagp}{st}_{frag_of(t)}")
            for st in (nsteps - 2, nsteps - 1):
                for t in pair:
                    emit(lambda: mfma_tile(st, t))
                    if st == nsteps - 1:
                        done_at[t] = ic[0]
                        if t in first: queue.append(t)
                    filler()
        while extra: emit(extra.pop(0))
        while queue:
            while ic[0] - done_at[queue[0]] < 9: emit(lambda: a("s_nop 0"))
            t = queue.pop(0); emit(lambda: write_tile(t))

    a(f"s_mul_i32 s{sSTEP}, s{sWAVE}, {16*40960}")
    def mfma1(st, nt, mt, slot):
        c = "0" if st == 0 else vr(acc1(mt, nt), 4)
        a(f"v_mfma_f32_16x16x32_bf16 {vr(acc1(mt,nt),4)}, {ar(wfrag(st,mt),4)}, {vr(ring(slot,nt),4)}, {c}")
    parts13 = w2_dma_parts(a, 0) if opt.t13 else []
    def tail1(st, o):
        if st == 13 and parts13:
            if o == 0: parts13[0]()
            else: parts13[o]()
    main_loop(sH, 16, sROT1, "h", mfma1, 6, tail1, 14, w1_finish if opt.hold1 else None)

    a(f"s_mov_b32 s100, {f2h(C1)}"); a(f"s_mov_b32 s101, {f2h(C1)}")
    a(f"v_mov_b32 v{vC0}, {f2h(C0)}"); a(f"v_mov_b32 v{vC0+1}, {f2h(C0)}")
    def lds_ref(addr):
        if addr < 65536: return vL0, addr
        if addr < 131072: return vL1, addr - 65536
        return vL2, addr - 131072
    def owner1(p, nt): return p + (0 if nt < 3 else 2)
    units = [(p, nt) for p in range(2) for nt in range(5)]
    def red1_addr(src, u):
        k = [x for x in units if owner1(*x) != src].index(u)
        return src * 32768 + 24576 + k * 2048 if k < 4 else 131072 + src * 8192 + (k - 4) * 2048
    saved_vm = list(a.vm)
    for w in range(4):
        if w < 3:
            a(f"s_cmp_lg_u32 s{sWAVE}, {w}")
            a(f"s_cbranch_scc1 L_ep1_{w+1}")
        a.vm = list(saved_vm)
        nis = [1 if opt.t13 else 0]
        def more(n, limit):
            for _ in range(n):
                if nis[0] < limit:
                    w2_dma(a, nis[0]); nis[0] += 1
        tl = [(2 * p + hf, nt) for nt in range(5) for p in range(2) for hf in range(2)]
        first = [t for t in tl if owner1(t[0] // 2, t[1]) != w]
        last = [t for t in tl if owner1(t[0] // 2, t[1]) == w]
        def wr1(t):
            vb, off = lds_ref(red1_addr(w, (t[0] // 2, t[1])) + (t[0] & 1) * 1024)
            a(f"ds_write_b128 v{vb}, {vr(acc1(*t),4)} offset:{off}")
        extra = []
        for _ in range(opt.tt):
            extra += w2_dma_parts(a, nis[0]); nis[0] += 1
        tile_tail(16, "h", first, last, lambda t: t[1], lambda st, t: mfma1(st, t[1], t[0], st % NS), wr1, extra)
        stamp(a, opt, 7)
        more(opt.e1, 6)
        a("s_waitcnt lgkmcnt(0)")
        a("s_barrier")
        own_u = [u for u in units if owner1(*u) == w]
        RT = vRING
        n = 0
        for u in own_u:
            for src in range(4):
                if src == w: continue
                for hf in range(2):
                    vb, off = lds_ref(red1_addr(src, u) + hf * 1024)
                    a(f"ds_read_b128 {vr(RT + n*4, 4)}, v{vb} offset:{off}")
                    n += 1
        a.wait_vm("b")
        for i in range(4):
            a(f"v_lshlrev_b32 v{BI+2*i}, 16, v{vB1+i}")
            a(f"v_and_b32 v{BI+2*i+1}, 0xffff0000, v{vB1+i}")
        for u in own_u:
            p, nt = u
            for hf in range(2):
                r = acc1(2*p+hf, nt)
                a(f"v_pk_add_f32 {vr(r,2)}, {vr(r,2)}, {vr(BI+4*hf,2)}")
                a(f"v_pk_add_f32 {vr(r+2,2)}, {vr(r+2,2)}, {vr(BI+4*hf+2,2)}")
        n = 0
        tot = len(own_u) * 6
        for u in own_u:
            p, nt = u
            for si in range(3):
                for hf in range(2):
                    a(f"s_waitcnt lgkmcnt({min(15, tot - n - 1)})")
                    r = acc1(2*p+hf, nt)
                    a(f"v_pk_add_f32 {vr(r,2)}, {vr(r,2)}, {vr(RT+n*4,2)}")
                    a(f"v_pk_add_f32 {vr(r+2,2)}, {vr(r+2,2)}, {vr(RT+n*4+2,2)}")
                    n += 1
        a("s_barrier")
        regs = []
        for u in own_u:
            p, nt = u
            for hf in range(2):
                r = acc1(2*p+hf, nt)
                regs += [r, r + 2]
        more(opt.e2, 10)
        gelu_pairs(a, regs, RT, fill=lambda: more(opt.e3, 10))
        a(f"s_lshl_b32 s{sT0}, s{sFT}, 1")
        a(f"s_add_u32 s{sT0}, s{sT0}, {w & 1}")
        a(f"s_mul_i32 s{sT0}, s{sT0}, 40960")
        a(f"s_mul_i32 s{sT1}, s{sDT1}, 5120")
        a(f"s_add_u32 s{sT0}, s{sT0}, s{sT1}")
        for i, u in enumerate(own_u):
            p, nt = u
            o = RT + 64 + 4 * i
            r0, r1 = acc1(2*p, nt), acc1(2*p+1, nt)
            a(f"v_cvt_pk_bf16_f32 v{o}, v{r0}, v{r0+1}")
            a(f"v_cvt_pk_bf16_f32 v{o+1}, v{r0+2}, v{r0+3}")
            a(f"v_cvt_pk_bf16_f32 v{o+2}, v{r1}, v{r1+1}")
            a(f"v_cvt_pk_bf16_f32 v{o+3}, v{r1+2}, v{r1+3}")
            a(f"s_add_u32 s{sT1}, s{sT0}, {nt*1024}")
            a.vmem(f"buffer_store_dwordx4 {vr(o,4)}, v{vL0}, {srd(sG)}, s{sT1} offen {opt.gbits}", "g")
        stamp(a, opt, 8)
        def g_flag():
            a(f"s_lshl_b32 s{sT0}, s{sDT1}, 5")
            a(f"s_add_u32 s{sT0}, s{sT0}, s{sFT}")
            a(f"s_mul_i32 s{sT0}, s{sT0}, {opt.gstride}")
            a(f"s_add_u32 s{sT0}, s{sT0}, {FLAG_G + 4*w}")
            flag_store(a, sT0)
            stamp(a, opt, 9)
        if opt.unsafe & 1: g_flag()
        more(opt.nb, 10)
        a.wait_vm("w2_3")
        if nis[0] >= 4:
            for st in range(4):
                w2_tr(a, st)
                if st % 2 == 1: a("s_waitcnt lgkmcnt(0)")
        if nis[0] == 10 and opt.nb2:
            for st in range(10, 10 + opt.nb2): w2_dma(a, st)
            nis[0] += opt.nb2
        if not (opt.unsafe & 1):
            a.wait_vm("g")
            g_flag()
        assert nis[0] >= 4
        more(10, 10)
        more(4, 14)
        for st in range(4, 10):
            a.wait_vm(f"w2_{st}")
            w2_tr(a, st)
            if st % 2 == 1: a("s_waitcnt lgkmcnt(0)")
        a("s_branch L_pre2")
        if w < 3: a.label(f"L_ep1_{w+1}")

    a.label("L_nogemm1")
    a.vm = []
    common_setup()
    if False:
        a(f"s_lshl_b32 s{sT0}, s{sWAVE}, 6")
        a(f"v_add_u32 v{vX}, s{sT0}, v{vLANE}")
        a(f"v_mul_u32_u24 v{vX}, {opt.hstride}, v{vX}")
        poll(a, opt, vX, 2, None)
        if opt.idlewait > 1:
            a(f"s_sleep {opt.idlewait}")
    if opt.pf == 3:
        a(f"s_lshl_b32 s{sT0}, s{sIDLE}, 2")
        a(f"s_add_u32 s{sT0}, s{sT0}, s{sWAVE}")
        a(f"s_lshl_b32 s{sT0}, s{sT0}, 10")
        for k in range(44):
            o = vRING + (k % 16) * 4
            a.vmem(f"buffer_load_dwordx4 {vr(o,4)}, v{vL0}, {srd(sW2)}, s{sT0} offen {opt.pfbits}", f"pf{k}")
            a(f"s_add_u32 s{sT0}, s{sT0}, {160*1024}")
            if k >= opt.pfdepth: a.wait_vm(f"pf{k-opt.pfdepth}")
        a.wait_vm0()
    if opt.pf == 2:
        assert opt.p1 == 2 and opt.p2 == 1
        a(f"s_cmp_lt_u32 s{sJ}, 28")
        a("s_cbranch_scc1 L_nopf")
        a(f"s_sub_u32 s{sT0}, s{sJ}, 28")
        a(f"s_lshl_b32 s{sT0}, s{sT0}, 2")
        a(f"s_add_u32 s{sT0}, s{sT0}, s{sWAVE}")
        a(f"s_lshl_b32 s{sT0}, s{sT0}, 13")
        a(f"s_lshl_b32 s{sT1}, s{sXCD}, 9")
        a(f"s_add_u32 s{sT0}, s{sT0}, s{sT1}")
        a(f"v_lshrrev_b32 v{vX}, 5, v{vLANE}")
        a(f"v_lshlrev_b32 v{vX}, 12, v{vX}")
        a(f"v_and_b32 v{vX+1}, 31, v{vLANE}")
        a(f"v_lshlrev_b32 v{vX+1}, 4, v{vX+1}")
        a(f"v_add_u32 v{vX}, v{vX}, v{vX+1}")
        keep = list(a.vm)
        for k in range(54):
            o = vRING + (k % 16) * 4
            a.vmem(f"buffer_load_dwordx4 {vr(o,4)}, v{vX}, {srd(sW2)}, s{sT0} offen", f"pf{k}")
            a(f"s_add_u32 s{sT0}, s{sT0}, {16*8192}")
            if k >= opt.pfdepth: a.wait_vm(f"pf{k-opt.pfdepth}")
        a.wait_vm0()
        a.label("L_nopf")
        a.vm = keep
    for st in range(10): w2_dma(a, st)
    for st in range(4):
        a.wait_vm(f"w2_{st}")
        w2_tr(a, st)
        if st % 2 == 1: a("s_waitcnt lgkmcnt(0)")
    for st in range(10, 14): w2_dma(a, st)
    for st in range(4, 10):
        a.wait_vm(f"w2_{st}")
        w2_tr(a, st)
        if st % 2 == 1: a("s_waitcnt lgkmcnt(0)")

    a.label("L_pre2")
    a(f"s_mul_i32 s{sT0}, s{sDT2}, 5120")
    a(f"v_add_u32 v{vA}, s{sT0}, v{vL0}")
    a(f"v_add_u32 v{vA2}, 4096, v{vA}")
    def w2_finish():
        a.wait_vm("w2all")
        a("s_waitcnt lgkmcnt(0)")
        for st in range(10, 14):
            w2_tr(a, st)
            if st % 2 == 1: a("s_waitcnt lgkmcnt(0)")
    if not opt.hold2:
        a.vm = ["w2all"]
        w2_finish()
    stamp(a, opt, 10)
    if opt.onepoll & 2:
        a(f"s_cmp_lg_u32 s{sWAVE}, {opt.pollw}")
        a("s_cbranch_scc1 L_gpolled")
        a(f"s_lshl_b32 s{sT0}, s{sDT2}, 5")
        a(f"s_mul_i32 s{sT0}, s{sT0}, {opt.gstride}")
        a(f"s_add_u32 s{sT0}, s{sT0}, {FLAG_G}")
        a(f"v_mul_u32_u24 v{vX}, {opt.gstride}, v{vLANE}")
        a(f"v_add_u32 v{vX}, s{sT0}, v{vX}")
        a(f"s_mov_b32 s{sP+2}, 0x7ffffff")
        a(f"s_mov_b32 s{sP+3}, 0")
        poll(a, opt, vX, 4, sP + 2, opt.sleep, opt.preg)
        a.label("L_gpolled")
        a("s_barrier")
    else:
        a(f"s_lshl_b32 s{sT0}, s{sDT2}, 5")
        a(f"s_mul_i32 s{sT1}, s{sWAVE}, 7")
        a(f"s_add_u32 s{sT0}, s{sT0}, s{sT1}")
        a(f"s_mul_i32 s{sT0}, s{sT0}, {opt.gstride}")
        a(f"s_add_u32 s{sT0}, s{sT0}, {FLAG_G}")
        a(f"v_mul_u32_u24 v{vX}, {opt.gstride}, v{vLANE}")
        a(f"v_add_u32 v{vX}, s{sT0}, v{vX}")
        a(f"s_cmp_eq_u32 s{sWAVE}, 3")
        a(f"s_cselect_b32 s{sP+2}, 0x3f, 0x7f")
        a(f"s_mov_b32 s{sP+3}, 0")
        poll(a, opt, vX, 4, sP + 2, opt.sleep, opt.preg)
    a.vm = ["w2all"] if opt.hold2 else []
    stamp(a, opt, 11)
    a(f"s_mul_i32 s{sSTEP}, s{sWAVE}, {14*40960}")
    def mfma2(st, mt, nt, slot):
        c = "0" if st == 0 else vr(acc2(mt, nt), 4)
        a(f"v_mfma_f32_16x16x32_bf16 {vr(acc2(mt,nt),4)}, {vr(ring(slot,mt),4)}, {ar(wfrag(st,nt),4)}, {c}")
    main_loop(sG, 14, sROT2, "g", mfma2, 12, None, 12, w2_finish if opt.hold2 else None)
    saved_vm2 = list(a.vm)
    a(f"v_and_b32 v{vT}, 15, v{vLANE}")
    a(f"s_lshl_b32 s{sT0}, s{sWAVE}, 4")
    a(f"v_add_u32 v{vT}, s{sT0}, v{vT}")
    a(f"v_mul_u32_u24 v{vA}, 1280, v{vT}")
    a(f"v_lshrrev_b32 v{vT}, 4, v{vLANE}")
    a(f"v_lshlrev_b32 v{vT}, 3, v{vT}")
    a(f"v_add_u32 v{vA}, v{vA}, v{vT}")
    a(f"s_mul_i32 s{sT0}, s{sST}, {64*1280}")
    a(f"s_mul_i32 s{sT1}, s{sDT2}, 160")
    a(f"s_add_u32 s{sOFF}, s{sT0}, s{sT1}")
    a(f"v_lshlrev_b32 v{vC0}, 16, v{vB2}")
    a(f"v_lshlrev_b32 v{vC0+1}, 16, v{vB2}")
    a(f"v_sub_u32 v{vA2}, v{vA}, v{vT}")
    a(f"v_bfe_u32 v{vT}, v{vLANE}, 4, 1")
    a(f"v_lshlrev_b32 v{vT}, 5, v{vT}")
    a(f"v_add_u32 v{vA2}, v{vA2}, v{vT}")
    a(f"v_bfe_u32 v{vT}, v{vLANE}, 5, 1")
    a(f"v_lshlrev_b32 v{vT}, 4, v{vT}")
    a(f"v_add_u32 v{vA2}, v{vA2}, v{vT}")
    def red2_addr(src, nt, mt):
        k = [x for x in range(4) if x != src].index(nt)
        return src * 32768 + (k * 5 + mt) * 1024
    for w in range(4):
        if w < 3:
            a(f"s_cmp_lg_u32 s{sWAVE}, {w}")
            a(f"s_cbranch_scc1 L_ep2_{w+1}")
        a.vm = list(saved_vm2)
        tl = [(mt, nt) for mt in range(5) for nt in range(4)]
        def wr2(t):
            vb, off = lds_ref(red2_addr(w, t[1], t[0]))
            a(f"ds_write_b128 v{vb}, {vr(acc2(*t),4)} offset:{off}")
        tile_tail(14, "g", [t for t in tl if t[1] != w], [t for t in tl if t[1] == w], lambda t: t[0],
                  lambda st, t: mfma2(st, t[0], t[1], st % NS), wr2, [])
        stamp(a, opt, 13)
        a("s_waitcnt lgkmcnt(0)")
        a("s_barrier")
        RT = vRING
        n = 0
        for mt in range(5):
            for src in range(4):
                if src == w: continue
                vb, off = lds_ref(red2_addr(src, w, mt))
                a(f"ds_read_b128 {vr(RT+n*4,4)}, v{vb} offset:{off}")
                n += 1
        n = 0
        for mt in range(5):
            r = acc2(mt, w)
            for si in range(3):
                a(f"s_waitcnt lgkmcnt({14 - n})")
                a(f"v_pk_add_f32 {vr(r,2)}, {vr(r,2)}, {vr(RT+n*4,2)}")
                a(f"v_pk_add_f32 {vr(r+2,2)}, {vr(r+2,2)}, {vr(RT+n*4+2,2)}")
                n += 1
            a(f"v_pk_add_f32 {vr(r,2)}, {vr(r,2)}, {vr(vC0,2)}")
            a(f"v_pk_add_f32 {vr(r+2,2)}, {vr(r+2,2)}, {vr(vC0,2)}")
            o = RT + 64 + 2 * mt
            a(f"v_cvt_pk_bf16_f32 v{o}, v{r}, v{r+1}")
            a(f"v_cvt_pk_bf16_f32 v{o+1}, v{r+2}, v{r+3}")
            if not opt.wide or mt == 4:
                a(f"buffer_store_dwordx2 {vr(o,2)}, v{vA}, {srd(sO)}, s{sOFF} offen offset:{mt*32} {opt.obits}")
            elif mt % 2 == 1:
                a("s_nop 1")
                a(f"v_permlane16_swap_b32 v{o-2}, v{o}")
                a(f"v_permlane16_swap_b32 v{o-1}, v{o+1}")
                a(f"buffer_store_dwordx4 {vr(o-2,4)}, v{vA2}, {srd(sO)}, s{sOFF} offen offset:{(mt-1)*32} {opt.obits}")
        a("s_branch L_fin")
        if w < 3: a.label(f"L_ep2_{w+1}")
    a.label("L_fin")
    if opt.probe >= 0:
        if opt.probe == 14:
            a("s_waitcnt vmcnt(0)")
            stamp(a, opt, 14)
        a(f"s_cmp_lg_u32 s{sWG}, {opt.probewg}")
        a("s_cbranch_scc1 L_done")
        a(f"s_cmp_lg_u32 s{sWAVE}, {opt.probew}")
        a("s_cbranch_scc1 L_done")
        ref = sNONCE if opt.probeabs else (sPROF + 2 if opt.probe0 >= 0 else 96)
        a(f"s_sub_u32 s{sT1}, s{sPROF+1}, s{ref}")
        if opt.probecyc: a(f"s_lshr_b32 s{sT1}, s{sT1}, 2")
        else: a(f"s_lshl_b32 s{sT1}, s{sT1}, 2")
        a(f"s_add_u32 s{sT1}, s{sT1}, 4000")
        a.label("L_probe")
        a(f"s_memrealtime s[{sP}:{sP+1}]")
        a("s_waitcnt lgkmcnt(0)")
        a(f"s_sub_u32 s{sT0}, s{sP}, s96")
        a(f"s_cmp_lt_u32 s{sT0}, s{sT1}")
        a("s_cbranch_scc1 L_probe")
    if opt.pad:
        a.label("L_pad")
        a(f"s_memrealtime s[{sP}:{sP+1}]")
        a("s_waitcnt lgkmcnt(0)")
        a(f"s_sub_u32 s{sT0}, s{sP}, s96")
        a(f"s_cmp_lt_u32 s{sT0}, {opt.pad}")
        a("s_cbranch_scc1 L_pad")
    if opt.prof:
        a("s_waitcnt vmcnt(0)")
        stamp(a, opt, 14)
        make_srd(a, sX, 18, 65536, WS_PROF)
        a(f"s_lshl_b32 s{sT0}, s{sWG}, 2")
        a(f"s_add_u32 s{sT0}, s{sT0}, s{sWAVE}")
        a(f"s_lshl_b32 s{sT0}, s{sT0}, 6")
        a(f"v_mov_b32 v{vT}, s{sT0}")
        a("s_mov_b64 exec, 1")
        for i in range(15):
            a(f"v_mov_b32 v100, s{sPROF+i}")
            a(f"buffer_store_dword v100, v{vT}, {srd(sX)}, 0 offen offset:{4*i}")
            a("s_nop 1")
        a("s_waitcnt vmcnt(0)")
    a.label("L_done")
    a("s_endpgm")
    a.label("L_codeend")
    a.raw('.section .rodata,"a"')
    a.raw(".p2align 6")
    a.raw(f".amdhsa_kernel {KN}")
    for l in ["next_free_vgpr 512", "next_free_sgpr 102", "accum_offset 256", "group_segment_fixed_size 0",
              "kernarg_size 64", "user_sgpr_count 2", "user_sgpr_kernarg_segment_ptr 1",
              "system_sgpr_workgroup_id_x 1", "float_denorm_mode_32 3"]:
        a.raw(f"  .amdhsa_{l}")
    a.raw(".end_amdhsa_kernel")
    return "\n".join(a.L) + "\n"

def parse(argv=None):
    ap = argparse.ArgumentParser()
    ap.add_argument("-o", default="standalone__mixer_token_mlp__prompt.s")
    ap.add_argument("--prof", type=int, default=0)
    ap.add_argument("--rot", type=int, default=3)
    ap.add_argument("--spin", type=int, default=20000)
    ap.add_argument("--sleep", type=int, default=8)
    ap.add_argument("--depth", type=int, default=3)
    ap.add_argument("--lnprof", type=int, default=0)
    ap.add_argument("--hbits", default="sc1")
    ap.add_argument("--pfwait", type=int, default=1)
    ap.add_argument("--hold", type=int, default=0)
    ap.add_argument("--probe", type=int, default=-1)
    ap.add_argument("--probe0", type=int, default=-1)
    ap.add_argument("--probecyc", type=int, default=0)
    ap.add_argument("--probeabs", type=int, default=0)
    ap.add_argument("--probewg", type=int, default=100)
    ap.add_argument("--probew", type=int, default=2)
    ap.add_argument("--rot8", type=int, default=1)
    ap.add_argument("--cpf", type=int, default=1)
    ap.add_argument("--cpfw", type=int, default=3)
    ap.add_argument("--wide", type=int, default=1)
    ap.add_argument("--idlewait", type=int, default=0)
    ap.add_argument("--sleeph", type=int, default=8)
    ap.add_argument("--preh", type=int, default=0)
    ap.add_argument("--preg", type=int, default=0)
    ap.add_argument("--onepoll", type=int, default=3)
    ap.add_argument("--pollw", type=int, default=3)
    ap.add_argument("--nta", type=int, default=0)
    ap.add_argument("--rotg1", type=int, default=0)
    ap.add_argument("--rotg2", type=int, default=0)
    ap.add_argument("--npost", type=int, default=3)
    ap.add_argument("--xbar", type=int, default=1)
    ap.add_argument("--hold1", type=int, default=4)
    ap.add_argument("--hold2", type=int, default=1)
    ap.add_argument("--nmid", type=int, default=0)
    ap.add_argument("--gbits", default="sc1")
    ap.add_argument("--fbits", default="sc1")
    ap.add_argument("--abits", default="sc1")
    ap.add_argument("--unsafe", type=int, default=0)
    ap.add_argument("--epoll", type=int, default=12)
    ap.add_argument("--t13", type=int, default=1)
    ap.add_argument("--tt", type=int, default=2)
    ap.add_argument("--e2", type=int, default=0)
    ap.add_argument("--e3", type=int, default=0)
    ap.add_argument("--nb2", type=int, default=0)
    ap.add_argument("--e1", type=int, default=1)
    ap.add_argument("--nb", type=int, default=2)
    ap.add_argument("--nearly", type=int, default=2)
    ap.add_argument("--dpl", type=int, default=5)
    ap.add_argument("--dp", type=int, default=4)
    ap.add_argument("--p1", type=int, default=1)
    ap.add_argument("--p2", type=int, default=1)
    ap.add_argument("--rota1", type=int, default=0)
    ap.add_argument("--rota2", type=int, default=0)
    ap.add_argument("--xbits", default="nt")
    ap.add_argument("--w1bits", default="")
    ap.add_argument("--w2bits", default="")
    ap.add_argument("--pfbits", default="")
    ap.add_argument("--pfdepth", type=int, default=8)
    ap.add_argument("--prio", type=int, default=3)
    ap.add_argument("--delay", type=int, default=0)
    ap.add_argument("--hstride", type=int, default=8)
    ap.add_argument("--gstride", type=int, default=256)
    ap.add_argument("--pf", type=int, default=0)
    ap.add_argument("--pad", type=int, default=0)
    ap.add_argument("--obits", default="sc0 sc1")
    return ap.parse_args(argv)

if __name__ == "__main__":
    opt = parse()
    open(opt.o, "w").write(gen(opt))
```

```python
import argparse, struct

S, D, F = 2048, 640, 1728
KN = "standalone__mixer_token_mlp__prompt_kernel"

WS_H = 0
H_BYTES = 64 * 40 * 1024
WS_G = 0x300000
G_BYTES = 54 * 40 * 1024
WS_FLAG = 0x600000
FLAG_H = 0
FLAG_G = 0x10000
FLAG_BYTES = 0x40000
WS_PROF = 0x700000

LDS_BYTES = 163840
LN_BASE = 131072
LN_ROW = 1344
LF_BASE = 141824
P0_BASE = [0, 49152, 98304, 122880]

sWG = 2
sX, sW1, sW2, sH, sG, sO, sF, sB1, sB2, sD = 20, 24, 28, 32, 36, 40, 44, 48, 52, 56
sWAVE, sXCD, sJ, sFT, sDT1, sST, sDT2, sNONCE = 60, 61, 62, 63, 64, 65, 66, 67
sT0, sT1, sT2, sT3, sT4, sT5 = 68, 69, 70, 71, 72, 73
sROT1, sROT2, sSTEP, sOFF = 74, 75, 76, 77
sM0B, sSPIN = 78, 79
sP = 80
sPROF = 84
sUP = 99
sJLIM, sIDLE = 100, 101
sWB = 3

vTID, vLANE = 0, 1
vTR = 2
vA, vA2, vDMA, vT2 = 6, 7, 8, 9
vB1 = 10
vB2, vT = 14, 15
vACC = 16
vRING = 96
vTRU = 196
vL0, vL1, vL2 = 200, 201, 202
vC0 = 204
BI = 206
vPOLL = 214
vX = 216
vPQ = 228
vDM = 220

def srd(n): return f"s[{n}:{n+3}]"
def vr(n, c=1): return f"v{n}" if c == 1 else f"v[{n}:{n+c-1}]"
def ar(n, c=1): return f"a{n}" if c == 1 else f"a[{n}:{n+c-1}]"
def f2h(x): return "0x%08x" % struct.unpack("<I", struct.pack("<f", x))[0]
C0 = -2.0 * 0.7978845608028654 * 1.4426950408889634
C1 = C0 * 0.044715

class Asm:
    def __init__(self):
        self.L = []; self.vm = []; self.uid = 0
    def __call__(self, s): self.L.append("    " + s)
    def label(self, s): self.L.append(s + ":")
    def raw(self, s): self.L.append(s)
    def c(self, s): self.L.append("    ; " + s)
    def vmem(self, s, tag):
        self(s); self.vm.append(tag)
    def wait_vm(self, tag):
        hits = [i for i, t in enumerate(self.vm) if t == tag]
        if not hits: return
        n = len(self.vm) - 1 - hits[-1]
        self(f"s_waitcnt vmcnt({min(n, 63)})")
        self.vm = self.vm[hits[-1] + 1:]
    def wait_vm0(self):
        self("s_waitcnt vmcnt(0)"); self.vm = []
    def newlabel(self, p):
        self.uid += 1
        return f"L_{p}_{self.uid}"

def acc1(mt, nt): return vACC + (mt * 5 + nt) * 4
def acc2(mt, nt): return vACC + (mt * 4 + nt) * 4
def wfrag(step, t): return step * 16 + t * 4

def stamp(a, opt, idx, force=False):
    if opt.probe >= 0:
        ins = "s_memtime" if opt.probecyc else "s_memrealtime"
        if idx == opt.probe:
            a(f"{ins} s[{sP}:{sP+1}]")
            a("s_waitcnt lgkmcnt(0)")
            a(f"s_mov_b32 s{sPROF+1}, s{sP}")
        if idx == opt.probe0:
            a(f"{ins} s[{sP}:{sP+1}]")
            a("s_waitcnt lgkmcnt(0)")
            a(f"s_mov_b32 s{sPROF+2}, s{sP}")
        return
    if opt.prof == 4 and idx != 14: return
    if opt.lnprof and idx in (4, 5) and getattr(a, "ln_done", False): return
    if opt.prof:
        a(f"s_mem{'time' if opt.prof == 2 else 'realtime'} s[{sP}:{sP+1}]")
        a("s_waitcnt lgkmcnt(0)")
        a(f"s_mov_b32 s{sPROF+idx}, s{sP}")

def make_srd(a, n, lo, size, add=0):
    if add:
        a(f"s_add_u32 s{n}, s{lo}, {add}")
        a(f"s_addc_u32 s{n+1}, s{lo+1}, 0")
        a(f"s_and_b32 s{n+1}, s{n+1}, 0xffff")
    else:
        a(f"s_mov_b32 s{n}, s{lo}")
        a(f"s_and_b32 s{n+1}, s{lo+1}, 0xffff")
    a(f"s_mov_b32 s{n+2}, {size}")
    a(f"s_mov_b32 s{n+3}, 0x20000")

def nonce_spin(a, opt):
    lp = a.newlabel("nonce"); dn = a.newlabel("nonced")
    a(f"s_cmp_lg_u32 s{sNONCE}, 0")
    a(f"s_cbranch_scc1 {dn}")
    a(f"s_mov_b32 s{sSPIN}, 0")
    a(f"v_mov_b32 v{vT}, 0")
    a.label(lp)
    a(f"buffer_load_dword v{vT2}, v{vT}, {srd(sD)}, 0 offen sc1")
    a("s_waitcnt vmcnt(0)")
    a(f"v_readfirstlane_b32 s{sNONCE}, v{vT2}")
    a(f"s_add_u32 s{sSPIN}, s{sSPIN}, 1")
    a(f"s_cmp_lg_u32 s{sNONCE}, 0")
    a(f"s_cbranch_scc1 {dn}")
    a(f"s_cmp_lt_u32 s{sSPIN}, {opt.spin}")
    a(f"s_cbranch_scc1 {lp}")
    a.label(dn)

def lds_set(a, addr_sgpr_or_imm):
    a(f"v_mov_b32 v{vT}, {addr_sgpr_or_imm}")
    a(f"v_mov_b32 v{vT2}, 1")
    a(f"s_mov_b64 s[{sP}:{sP+1}], exec")
    a("s_mov_b64 exec, 1")
    a(f"ds_write_b32 v{vT}, v{vT2}")
    a(f"s_mov_b64 exec, s[{sP}:{sP+1}]")

def lds_spin(a, opt, addr):
    lp = a.newlabel("lspin"); dn = a.newlabel("lspun")
    a(f"v_mov_b32 v{vT}, {addr}")
    a(f"s_mov_b32 s{sSPIN}, 0")
    a.label(lp)
    a(f"ds_read_b32 v{vT2}, v{vT}")
    a("s_waitcnt lgkmcnt(0)")
    a(f"v_readfirstlane_b32 s{sP}, v{vT2}")
    a(f"s_add_u32 s{sSPIN}, s{sSPIN}, 1")
    a(f"s_cmp_lg_u32 s{sP}, 0")
    a(f"s_cbranch_scc1 {dn}")
    a(f"s_cmp_lt_u32 s{sSPIN}, {opt.spin * 8}")
    a(f"s_cbranch_scc1 {lp}")
    a.label(dn)

def dma_addr(a, stride, s_tile):
    a(f"v_lshrrev_b32 v{vT}, 3, v{vLANE}")
    a(f"v_lshrrev_b32 v{vT2}, 1, v{vT}")
    a(f"v_lshlrev_b32 v{vT2}, 1, v{vT2}")
    a(f"v_and_b32 v{vDM}, 7, v{vLANE}")
    a(f"v_xor_b32 v{vDM}, v{vDM}, v{vT2}")
    a(f"v_lshlrev_b32 v{vDM}, 4, v{vDM}")
    a(f"v_mul_u32_u24 v{vT}, {stride}, v{vT}")
    a(f"v_add_u32 v{vDM}, v{vDM}, v{vT}")
    a(f"s_lshl_b32 s{sT0}, s{s_tile}, 7")
    a(f"v_add_u32 v{vDM}, s{sT0}, v{vDM}")
    for b in range(1, 4):
        a(f"v_add_u32 v{vDM+b}, {b*(8*stride-1024)}, v{vDM}")

def step_off(a, dst, s_base, s_rot, i, nsteps, bytes_per_step):
    a(f"s_add_u32 s{sT4}, s{s_rot}, {i}")
    a(f"s_cmp_ge_u32 s{sT4}, {nsteps}")
    a(f"s_cselect_b32 s{dst}, {nsteps}, 0")
    a(f"s_sub_u32 s{sT4}, s{sT4}, s{dst}")
    a(f"s_mul_i32 s{sT4}, s{sT4}, {bytes_per_step}")
    a(f"s_add_u32 s{dst}, s{sT4}, s{s_base}")

def dma_step(a, srdn, stride, s_rowbase, s_rot, step, nsteps, s_lds, lds_off, tag, bits=""):
    a(f"s_add_u32 m0, s{s_lds}, {lds_off}")
    step_off(a, sOFF, s_rowbase, s_rot, step, nsteps, 32 * stride)
    for blk in range(4):
        a.vmem(f"buffer_load_dwordx4 v{vDM+blk}, {srd(srdn)}, s{sOFF} offen offset:{blk*1024} {bits} lds", tag)

def tr_step(a, vbase, off, step):
    for t in range(4):
        w = wfrag(step, t)
        a(f"ds_read_b64_tr_b16 {ar(w,2)}, v{vbase+t} offset:{off}")
        a(f"ds_read_b64_tr_b16 {ar(w+2,2)}, v{vbase+t} offset:{off+2048}")

def poll(a, opt, vaddr, nd, lanes, sleep=None, pre=0, nload=1):
    if sleep is None: sleep = opt.sleep
    if pre: a(f"s_sleep {pre}")
    lp = a.newlabel("poll"); dn = a.newlabel("polled")
    a(f"s_mov_b32 s{sSPIN}, 0")
    a.label(lp)
    ld = {1: "dword", 2: "dwordx2", 4: "dwordx4"}[nd]
    for k in range(nload):
        a(f"buffer_load_{ld} {vr(vPQ + 4*k, nd)}, v{vaddr}, {srd(sF)}, 0 offen offset:{k*1024} sc1")
    a("s_waitcnt vmcnt(0)")
    first = True
    for k in range(nload):
        for i in range(nd):
            if first:
                a(f"v_cmp_ne_u32 vcc, s{sNONCE}, v{vPQ+4*k+i}"); first = False
            else:
                a(f"v_cmp_ne_u32 s[{sP}:{sP+1}], s{sNONCE}, v{vPQ+4*k+i}")
                a(f"s_or_b64 vcc, vcc, s[{sP}:{sP+1}]")
    if lanes is not None:
        a(f"s_and_b64 vcc, vcc, s[{lanes}:{lanes+1}]")
    a(f"s_add_u32 s{sSPIN}, s{sSPIN}, 1")
    a("s_cmp_eq_u64 vcc, 0")
    a(f"s_cbranch_scc1 {dn}")
    if sleep: a(f"s_sleep {sleep}")
    a(f"s_cmp_lt_u32 s{sSPIN}, {opt.spin}")
    a(f"s_cbranch_scc1 {lp}")
    a.label(dn)
    a.vm = []

def poll_pipe(a, opt, vaddr, lanes, gap, nd=4):
    dn = a.newlabel("ppolled"); lp = a.newlabel("ppoll")
    regs = [vPQ, vPQ + 4, vPQ + 8]
    def probe(r): a(f"buffer_load_{'dwordx4' if nd == 4 else 'dword'} {vr(r,nd)}, v{vaddr}, {srd(sF)}, 0 offen sc1")
    a(f"s_mov_b32 s{sSPIN}, 0")
    probe(regs[0]); a(f"s_sleep {gap}"); probe(regs[1]); a(f"s_sleep {gap}"); probe(regs[2])
    a.label(lp)
    for r in regs:
        a("s_waitcnt vmcnt(2)")
        for i in range(nd):
            if i == 0: a(f"v_cmp_ne_u32 vcc, s{sNONCE}, v{r}")
            else:
                a(f"v_cmp_ne_u32 s[{sP}:{sP+1}], s{sNONCE}, v{r+i}")
                a(f"s_or_b64 vcc, vcc, s[{sP}:{sP+1}]")
        if lanes is not None: a(f"s_and_b64 vcc, vcc, s[{lanes}:{lanes+1}]")
        a("s_cmp_eq_u64 vcc, 0")
        a(f"s_cbranch_scc1 {dn}")
        a(f"s_sleep {gap}")
        probe(r)
    a(f"s_add_u32 s{sSPIN}, s{sSPIN}, 1")
    a(f"s_cmp_lt_u32 s{sSPIN}, {opt.spin}")
    a(f"s_cbranch_scc1 {lp}")
    a.label(dn)

def poll_check(a, nd, lanes, ok_label):
    for i in range(nd):
        if i == 0: a(f"v_cmp_ne_u32 vcc, s{sNONCE}, v{vPQ}")
        else:
            a(f"v_cmp_ne_u32 s[{sP}:{sP+1}], s{sNONCE}, v{vPQ+i}")
            a(f"s_or_b64 vcc, vcc, s[{sP}:{sP+1}]")
    if lanes is not None:
        a(f"s_and_b64 vcc, vcc, s[{lanes}:{lanes+1}]")
    a("s_cmp_eq_u64 vcc, 0")
    a(f"s_cbranch_scc1 {ok_label}")

def flag_store(a, s_index_bytes):
    a(f"v_mov_b32 v{vT}, s{s_index_bytes}")
    a(f"v_mov_b32 v{vT2}, s{sNONCE}")
    a(f"s_mov_b64 s[{sP}:{sP+1}], exec")
    a("s_mov_b64 exec, 1")
    a.vmem(f"buffer_store_dword v{vT2}, v{vT}, {srd(sF)}, 0 offen {OPT.fbits}", "flag")
    a(f"s_mov_b64 exec, s[{sP}:{sP+1}]")

def gelu_pairs(a, regs, tmp, fill=None):
    def each(fn):
        for i, r in enumerate(regs): fn(r, tmp + 2 * i)
    each(lambda r, t: a(f"v_pk_mul_f32 {vr(t,2)}, {vr(r,2)}, {vr(r,2)}"))
    each(lambda r, t: a(f"v_pk_fma_f32 {vr(t,2)}, {vr(t,2)}, s[100:101], {vr(vC0,2)}"))
    each(lambda r, t: a(f"v_pk_mul_f32 {vr(t,2)}, {vr(t,2)}, {vr(r,2)}"))
    if fill: fill()
    each(lambda r, t: (a(f"v_exp_f32 v{t}, v{t}"), a(f"v_exp_f32 v{t+1}, v{t+1}")))
    each(lambda r, t: a(f"v_pk_add_f32 {vr(t,2)}, {vr(t,2)}, 1.0 op_sel_hi:[1,0]"))
    each(lambda r, t: (a(f"v_rcp_f32 v{t}, v{t}"), a(f"v_rcp_f32 v{t+1}, v{t+1}")))
    a("s_nop 0")
    each(lambda r, t: a(f"v_pk_mul_f32 {vr(r,2)}, {vr(r,2)}, {vr(t,2)}"))

def w2_slot(step):
    if step < 8: return sM0B, step * 4096, vTR, step * 4096
    if step < 10: return sUP, (step - 8) * 4096, vTRU, (step - 8) * 4096
    return sM0B, (step - 10) * 4096, vTR, (step - 10) * 4096

def w2_dma(a, step):
    sb, off, _, _ = w2_slot(step)
    dma_step(a, sW2, S * 2, sWB, sROT2, step, 14, sb, off, f"w2_{step}", OPT.w2bits)

def w2_dma_parts(a, step):
    sb, off, _, _ = w2_slot(step)
    def setup():
        a(f"s_add_u32 m0, s{sb}, {off}")
        step_off(a, sOFF, sWB, sROT2, step, 14, 32 * S * 2)
    def one(blk):
        return lambda: a.vmem(f"buffer_load_dwordx4 v{vDM+blk}, {srd(sW2)}, s{sOFF} offen offset:{blk*1024} {OPT.w2bits} lds", f"w2_{step}")
    return [setup] + [one(b) for b in range(4)]

def w2_tr(a, step):
    _, _, vb, off = w2_slot(step)
    tr_step(a, vb, off, step)

def gen(opt):
    global OPT
    OPT = opt
    a = Asm()
    NS = opt.depth + 1
    def ring(slot, t): return vRING + slot * 20 + t * 4
    a.raw(f"; @launch grid=(256,1,1) block=(256,1,1) lds={LDS_BYTES}")
    a.raw('.amdgcn_target "amdgcn-amd-amdhsa--gfx950"')
    a.raw(".text")
    a.raw(f".globl {KN}")
    a.raw(".p2align 8")
    a.raw(f".type {KN},@function")
    a.label(KN)
    if opt.cpf: a("s_getpc_b64 s[94:95]")
    a(f"s_cmp_ge_u32 s{sWG}, 256")
    a("s_cbranch_scc1 L_done")
    a("s_load_dwordx16 s[4:19], s[0:1], 0")
    if opt.prof:
        a(f"s_mem{'time' if opt.prof == 2 else 'realtime'} s[{sP}:{sP+1}]")
    if opt.prof:
        for i in range(1, 15): a(f"s_mov_b32 s{sPROF+i}, 0")
    if not opt.prof:
        a("s_memrealtime s[96:97]")
    a(f"v_lshrrev_b32 v{vT}, 6, v{vTID}")
    a(f"v_and_b32 v{vLANE}, 63, v{vTID}")
    a(f"v_readfirstlane_b32 s{sWAVE}, v{vT}")
    a(f"s_and_b32 s{sXCD}, s{sWG}, 7")
    a(f"s_lshr_b32 s{sJ}, s{sWG}, 3")
    if opt.p1 == 2:
        a(f"s_lshr_b32 s{sT1}, s{sXCD}, 1")
        a(f"s_and_b32 s{sT2}, s{sXCD}, 1")
        a(f"s_lshl_b32 s{sT2}, s{sT2}, 2")
        a(f"s_mul_i32 s{sT0}, s{sT1}, 7")
        a(f"s_lshr_b32 s{sFT}, s{sJ}, 2")
        a(f"s_add_u32 s{sFT}, s{sFT}, s{sT0}")
        a(f"s_and_b32 s{sT3}, s{sJ}, 3")
        a(f"s_add_u32 s{sDT1}, s{sT2}, s{sT3}")
        if opt.rot8: a(f"s_lshl_b32 s{sROT1}, s{sDT1}, 1")
        else: a(f"s_lshl_b32 s{sROT1}, s{sT3}, 2")
        a(f"s_cmp_eq_u32 s{sT1}, 3")
        a(f"s_cselect_b32 s{sJLIM}, 24, 28")
        a(f"s_lshl_b32 s{sT0}, s{sXCD}, 2")
        a(f"s_sub_u32 s{sT0}, s{sT0}, 28")
        a(f"s_lshl_b32 s{sT3}, s{sXCD}, 3")
        a(f"s_sub_u32 s{sT3}, s{sT3}, 48")
        a(f"s_cselect_b32 s{sIDLE}, s{sT0}, s{sT0}")
        a(f"s_cmp_ge_u32 s{sXCD}, 6")
        a(f"s_cselect_b32 s{sIDLE}, s{sT3}, s{sT0}")
        a(f"s_add_u32 s{sIDLE}, s{sIDLE}, s{sJ}")
    else:
        a(f"s_lshl_b32 s{sT0}, s{sXCD}, 2")
        a(f"s_mul_i32 s{sT1}, s{sXCD}, 3")
        a(f"s_add_u32 s{sT1}, s{sT1}, 3")
        a(f"s_cmp_lt_u32 s{sXCD}, 3")
        a(f"s_cselect_b32 s{sT0}, s{sT0}, s{sT1}")
        a(f"s_cselect_b32 s{sJLIM}, 32, 24")
        a(f"s_lshr_b32 s{sFT}, s{sJ}, 3")
        a(f"s_add_u32 s{sFT}, s{sFT}, s{sT0}")
        a(f"s_and_b32 s{sDT1}, s{sJ}, 7")
        a(f"s_lshl_b32 s{sROT1}, s{sDT1}, 1")
        a(f"s_lshl_b32 s{sIDLE}, s{sXCD}, 3")
        a(f"s_add_u32 s{sIDLE}, s{sIDLE}, s{sJ}")
        a(f"s_sub_u32 s{sIDLE}, s{sIDLE}, 48")
    if opt.rotg1 == 3:
        a(f"s_mul_i32 s{sT0}, s{sFT}, 11")
        a(f"s_lshr_b32 s{sT0}, s{sT0}, 5")
        a(f"s_mul_i32 s{sT0}, s{sT0}, 3")
        a(f"s_sub_u32 s{sT0}, s{sFT}, s{sT0}")
        a(f"s_mul_i32 s{sT0}, s{sT0}, 5")
        a(f"s_add_u32 s{sROT1}, s{sROT1}, s{sT0}")
        a(f"s_and_b32 s{sROT1}, s{sROT1}, 15")
    if opt.rotg1 == 2:
        a(f"s_and_b32 s{sT0}, s{sFT}, 1")
        a(f"s_lshl_b32 s{sT0}, s{sT0}, 3")
        a(f"s_add_u32 s{sROT1}, s{sROT1}, s{sT0}")
        a(f"s_and_b32 s{sROT1}, s{sROT1}, 15")
    if opt.rota1:
        a(f"s_mul_i32 s{sT0}, s{sFT}, {opt.rota1}")
        a(f"s_add_u32 s{sROT1}, s{sROT1}, s{sT0}")
        a(f"s_and_b32 s{sROT1}, s{sROT1}, 15")
    if opt.p2 == 2:
        a(f"s_lshr_b32 s{sT1}, s{sXCD}, 1")
        a(f"s_and_b32 s{sT2}, s{sXCD}, 1")
        a(f"s_lshl_b32 s{sT2}, s{sT2}, 2")
        a(f"s_lshr_b32 s{sT0}, s{sJ}, 2")
        a(f"s_lshl_b32 s{sST}, s{sT1}, 3")
        a(f"s_add_u32 s{sST}, s{sST}, s{sT0}")
        a(f"s_and_b32 s{sT3}, s{sJ}, 3")
        a(f"s_add_u32 s{sDT2}, s{sT2}, s{sT3}")
        if opt.rot8:
            a(f"s_mul_i32 s{sROT2}, s{sDT2}, 7")
            a(f"s_lshr_b32 s{sROT2}, s{sROT2}, 2")
        else:
            a(f"s_mul_i32 s{sROT2}, s{sT3}, 7")
            a(f"s_lshr_b32 s{sROT2}, s{sROT2}, 1")
    else:
        a(f"s_lshr_b32 s{sT0}, s{sJ}, 3")
        a(f"s_lshl_b32 s{sST}, s{sXCD}, 2")
        a(f"s_add_u32 s{sST}, s{sST}, s{sT0}")
        a(f"s_and_b32 s{sDT2}, s{sJ}, 7")
        a(f"s_mul_i32 s{sROT2}, s{sDT2}, 7")
        a(f"s_lshr_b32 s{sROT2}, s{sROT2}, 2")
    if opt.rotg2:
        if opt.rotg2 == 2:
            a(f"s_and_b32 s{sT0}, s{sST}, 1")
            a(f"s_mul_i32 s{sT0}, s{sT0}, 7")
        else:
            a(f"s_mul_i32 s{sT0}, s{sST}, 11")
            a(f"s_lshr_b32 s{sT0}, s{sT0}, 5")
            a(f"s_mul_i32 s{sT0}, s{sT0}, 3")
            a(f"s_sub_u32 s{sT0}, s{sST}, s{sT0}")
            a(f"s_mul_i32 s{sT0}, s{sT0}, 5")
        a(f"s_add_u32 s{sROT2}, s{sROT2}, s{sT0}")
        a(f"s_cmp_ge_u32 s{sROT2}, 14")
        a(f"s_cselect_b32 s{sT0}, 14, 0")
        a(f"s_sub_u32 s{sROT2}, s{sROT2}, s{sT0}")
    if opt.rota2:
        a(f"s_mul_i32 s{sT0}, s{sST}, {opt.rota2}")
        a(f"s_add_u32 s{sROT2}, s{sROT2}, s{sT0}")
        a(f"s_and_b32 s{sT0}, s{sROT2}, 0xff")
        a(f"s_mul_i32 s{sT0}, s{sROT2}, 18725")
        a(f"s_lshr_b32 s{sT0}, s{sT0}, 18")
        a(f"s_mul_i32 s{sT0}, s{sT0}, 14")
        a(f"s_sub_u32 s{sROT2}, s{sROT2}, s{sT0}")
    if not (opt.rot & 1): a(f"s_mov_b32 s{sROT1}, 0")
    if not (opt.rot & 2): a(f"s_mov_b32 s{sROT2}, 0")
    a(f"s_lshl_b32 s{sM0B}, s{sWAVE}, 15")
    a(f"s_lshl_b32 s{sUP}, s{sWAVE}, 13")
    a(f"s_add_u32 s{sUP}, s{sUP}, 131072")
    def tr_addr(base_sgpr):
        t0, t1, t2 = vX, vX + 1, vX + 2
        a(f"v_lshrrev_b32 v{t0}, 4, v{vLANE}")
        a(f"v_and_b32 v{t1}, 1, v{t0}")
        a(f"v_lshlrev_b32 v{t1}, 2, v{t1}")
        a(f"v_bfe_u32 v{t2}, v{vLANE}, 2, 2")
        a(f"v_add_u32 v{t1}, v{t1}, v{t2}")
        a(f"v_lshrrev_b32 v{t0}, 1, v{t0}")
        a(f"v_lshlrev_b32 v{t0}, 10, v{t0}")
        a(f"v_lshlrev_b32 v{t2}, 7, v{t1}")
        a(f"v_add_u32 v{t0}, v{t0}, v{t2}")
        a(f"v_and_b32 v{t2}, 3, v{vLANE}")
        a(f"v_lshlrev_b32 v{t2}, 3, v{t2}")
        a(f"v_add_u32 v{t0}, v{t0}, v{t2}")
        a(f"v_add_u32 v{t0}, s{base_sgpr}, v{t0}")
        a(f"v_lshrrev_b32 v{t1}, 1, v{t1}")
        for t in range(4):
            a(f"v_xor_b32 v{t2}, {t}, v{t1}")
            a(f"v_lshlrev_b32 v{t2}, 5, v{t2}")
            a(f"v_add_u32 v{vTR+t}, v{t0}, v{t2}")
    def w1_dma(i): dma_step(a, sW1, F * 2, sWB, sROT1, i, 16, sM0B, (i % 8) * 4096, f"w1_{i}", "nt" if i < opt.nta else opt.w1bits)
    def w1_stream(first, dp, hold=0):
        retired = 0
        def retire():
            nonlocal retired
            a.wait_vm(f"w1_{retired}")
            if retired: a("s_waitcnt lgkmcnt(0)")
            tr_step(a, vTR, (retired % 8) * 4096, retired)
            retired += 1
        for i in range(first, 16):
            while retired <= i - dp: retire()
            if i >= 8:
                while retired <= i - 8: retire()
                if retired == i - 7: a("s_waitcnt lgkmcnt(0)")
            w1_dma(i)
            if opt.epoll and i == opt.epoll:
                a(f"s_cmp_lg_u32 s{sWAVE}, {opt.pollw}")
                a("s_cbranch_scc1 L_noepoll")
                a(f"v_lshlrev_b32 v{vX+3}, 4, v{vLANE}")
                a(f"buffer_load_dwordx4 {vr(vPQ,4)}, v{vX+3}, {srd(sF)}, 0 offen sc1")
                a.label("L_noepoll")
        while retired < 16 - hold: retire()
        def finish():
            while retired < 16: retire()
            a("s_waitcnt lgkmcnt(0)")
        if not hold: finish()
        return finish
    dma_addr(a, F * 2, sFT)
    a(f"s_mul_i32 s{sWB}, s{sWAVE}, {512*F*2}")
    a.c("LayerNorm: wave w normalises rows 32*ks + 16*(w>>1) + 4*q + 2*(w&1) + (0,1), 32 lanes per row")
    XR, XF, TM = 96, 108, 130
    a(f"s_lshr_b32 s{sT0}, s{sWG}, 2")
    a(f"s_and_b32 s{sT1}, s{sWG}, 3")
    a(f"s_lshl_b32 s{sT2}, s{sT0}, 5")
    a(f"s_lshr_b32 s{sT3}, s{sWAVE}, 1")
    a(f"s_lshl_b32 s{sT3}, s{sT3}, 4")
    a(f"s_add_u32 s{sT2}, s{sT2}, s{sT3}")
    a(f"s_lshl_b32 s{sT3}, s{sT1}, 2")
    a(f"s_add_u32 s{sT2}, s{sT2}, s{sT3}")
    a(f"s_and_b32 s{sT3}, s{sWAVE}, 1")
    a(f"s_lshl_b32 s{sT3}, s{sT3}, 1")
    a(f"s_add_u32 s{sT2}, s{sT2}, s{sT3}")
    a(f"s_mul_i32 s{sT2}, s{sT2}, 1280")
    a(f"v_lshrrev_b32 v{TM}, 5, v{vLANE}")
    a(f"v_and_b32 v{TM+1}, 31, v{vLANE}")
    a(f"v_lshlrev_b32 v{TM+1}, 3, v{TM+1}")
    a(f"v_mul_u32_u24 v{TM+2}, 1280, v{TM}")
    a(f"v_add_u32 v{TM+2}, v{TM+2}, v{TM+1}")
    a(f"v_mov_b32 v{vT}, 0")
    a("s_waitcnt lgkmcnt(0)")
    if opt.prof: a(f"s_mov_b32 s{sPROF}, s{sP}")
    make_srd(a, sD, 16, 256)
    a(f"s_cmp_lg_u32 s{sWG}, 0")
    a("s_cbranch_scc1 L_nononce")
    a(f"s_cmp_lg_u32 s{sWAVE}, 3")
    a("s_cbranch_scc1 L_nononce")
    a(f"s_or_b32 s{sNONCE}, s{sP if opt.prof else 96}, 1")
    a(f"v_mov_b32 v{vT2}, s{sNONCE}")
    a(f"s_mov_b64 s[{sP+2}:{sP+3}], exec")
    a("s_mov_b64 exec, 1")
    a(f"buffer_store_dword v{vT2}, v{vT}, {srd(sD)}, 0 offen sc1")
    a(f"s_mov_b64 exec, s[{sP+2}:{sP+3}]")
    a.label("L_nononce")
    make_srd(a, sX, 4, S * D * 2)
    for i in range(5):
        a.vmem(f"buffer_load_dwordx2 {vr(XR+2*i,2)}, v{TM+2}, {srd(sX)}, s{sT2} offen offset:{i*256} {opt.xbits}", "x")
    make_srd(a, sW1, 6, S * F * 2)
    if opt.xbar: a("s_barrier")
    a(f"s_cmp_ge_u32 s{sJ}, s{sJLIM}")
    a("s_cbranch_scc1 L_ln_now1")
    for i in range(opt.nearly): w1_dma(i)
    a.label("L_ln_now1")
    if opt.cpf:
        a(f"s_cmp_lg_u32 s{sWAVE}, 3")
        a("s_cbranch_scc1 L_nocpf")
        a(f"s_lshl_b32 s{sT3}, s{sJ}, 11")
        a(f"v_lshlrev_b32 v{vX}, 4, v{vLANE}")
        a(f"v_add_u32 v{vX}, s{sT3}, v{vX}")
        a(f"v_add_u32 v{vX+1}, 1024, v{vX}")
        for h in range(2):
            a(f"v_min_u32 v{vX+h}, L_codeend-{KN}-36, v{vX+h}")
            a(f"global_load_dwordx4 {vr(240+4*h,4)}, v{vX+h}, s[94:95]")
        a.label("L_nocpf")
    make_srd(a, sH, 18, H_BYTES, WS_H)
    make_srd(a, sF, 18, FLAG_BYTES, WS_FLAG)
    a(f"s_mul_i32 s{sSTEP}, s{sT0}, 40960")
    a(f"s_lshl_b32 s{sT1}, s{sT1}, 8")
    a(f"s_add_u32 s{sSTEP}, s{sSTEP}, s{sT1}")
    a(f"s_lshl_b32 s{sT3}, s{sWAVE}, 1")
    a(f"v_add_u32 v{TM+4}, s{sT3}, v{TM}")
    a(f"v_mul_u32_u24 v{TM+4}, {LN_ROW}, v{TM+4}")
    a(f"v_add_u32 v{TM+4}, v{TM+4}, v{TM+1}")
    a(f"v_add_u32 v{TM+4}, {LN_BASE}, v{TM+4}")
    a(f"s_mul_i32 s{sT3}, s{sWAVE}, 12")
    a(f"s_cmp_eq_u32 s{sWAVE}, 3")
    a(f"s_cselect_b32 s{sT3}, 32, s{sT3}")
    a(f"v_lshrrev_b32 v{TM+6}, 4, v{vLANE}")
    a(f"v_add_u32 v{TM+6}, s{sT3}, v{TM+6}")
    a(f"v_bfe_u32 v{TM+5}, v{vLANE}, 2, 2")
    a(f"v_mul_u32_u24 v{TM+5}, {LN_ROW}, v{TM+5}")
    a(f"v_lshlrev_b32 v{TM+7}, 5, v{TM+6}")
    a(f"v_add_u32 v{TM+5}, v{TM+5}, v{TM+7}")
    a(f"v_and_b32 v{TM+7}, 3, v{vLANE}")
    a(f"v_lshlrev_b32 v{TM+7}, 3, v{TM+7}")
    a(f"v_add_u32 v{TM+5}, v{TM+5}, v{TM+7}")
    a(f"v_add_u32 v{TM+5}, {LN_BASE}, v{TM+5}")
    a(f"v_lshlrev_b32 v{TM+6}, 10, v{TM+6}")
    a(f"v_and_b32 v{TM+7}, 15, v{vLANE}")
    a(f"v_lshlrev_b32 v{TM+7}, 4, v{TM+7}")
    a(f"v_add_u32 v{TM+6}, v{TM+6}, v{TM+7}")
    tr_addr(sM0B)
    a(f"s_mov_b32 s{sT0}, 0xffff0000")
    nc = 2 if opt.cpf else 0
    a(f"s_cmp_ge_u32 s{sJ}, s{sJLIM}")
    a("s_cbranch_scc1 L_ln_idle")
    a(f"s_cmp_eq_u32 s{sWAVE}, 3")
    a("s_cbranch_scc1 L_ln_w3")
    a(f"s_waitcnt vmcnt({4*opt.nearly})")
    a("s_branch L_ln_go")
    a.label("L_ln_w3")
    a(f"s_waitcnt vmcnt({4*opt.nearly + nc})")
    a("s_branch L_ln_go")
    a.label("L_ln_idle")
    a(f"s_cmp_eq_u32 s{sWAVE}, 3")
    a("s_cbranch_scc1 L_ln_idle3")
    a("s_waitcnt vmcnt(0)")
    a("s_branch L_ln_go")
    a.label("L_ln_idle3")
    a(f"s_waitcnt vmcnt({nc})")
    a.label("L_ln_go")
    stamp(a, opt, 1)
    nmid = [opt.nearly]
    def mid_step(tag):
        if nmid[0] < opt.nearly + opt.nmid:
            a(f"s_cmp_ge_u32 s{sJ}, s{sJLIM}")
            a(f"s_cbranch_scc1 L_mid_{tag}")
            w1_dma(nmid[0]); nmid[0] += 1
            a.label(f"L_mid_{tag}")
    if opt.unsafe & 2: a(f"buffer_load_dword v{vPOLL}, v{vT}, {srd(sD)}, 0 offen sc1")
    mid_step("a")
    for i in range(10):
        a(f"v_lshlrev_b32 v{XF+2*i}, 16, v{XR+i}")
        a(f"v_and_b32 v{XF+2*i+1}, s{sT0}, v{XR+i}")
    SM = TM + 8
    a(f"v_pk_add_f32 {vr(SM,2)}, {vr(XF,2)}, {vr(XF+4,2)}")
    a(f"v_pk_add_f32 {vr(SM+2,2)}, {vr(XF+2,2)}, {vr(XF+6,2)}")
    for i in range(4, 10):
        k = i % 2
        a(f"v_pk_add_f32 {vr(SM+2*k,2)}, {vr(SM+2*k,2)}, {vr(XF+2*i,2)}")
    def reduce_row(dst):
        a(f"v_pk_add_f32 {vr(SM,2)}, {vr(SM,2)}, {vr(SM+2,2)}")
        a(f"v_add_f32 v{dst}, v{SM}, v{SM+1}")
        for rot in (8, 4, 2, 1):
            a("s_nop 1")
            a(f"v_add_f32_dpp v{dst}, v{dst}, v{dst} row_ror:{rot} row_mask:0xf bank_mask:0xf")
        a(f"v_mov_b32 v{SM}, v{dst}")
        a("s_nop 1")
        a(f"v_permlane16_swap_b32 v{dst}, v{SM}")
        a("s_nop 1")
        a(f"v_add_f32 v{dst}, v{dst}, v{SM}")
    MN = TM + 12
    reduce_row(MN)
    mid_step("b")
    a(f"v_mul_f32 v{MN}, {f2h(1.0/640.0)}, v{MN}")
    a(f"v_mov_b32 v{MN+1}, v{MN}")
    for i in range(10):
        a(f"v_pk_add_f32 {vr(XF+2*i,2)}, {vr(XF+2*i,2)}, {vr(MN,2)} neg_lo:[0,1] neg_hi:[0,1]")
    for k in range(2):
        a(f"v_pk_mul_f32 {vr(SM+2*k,2)}, {vr(XF+2*k,2)}, {vr(XF+2*k,2)}")
    for i in range(2, 10):
        k = i % 2
        a(f"v_pk_fma_f32 {vr(SM+2*k,2)}, {vr(XF+2*i,2)}, {vr(XF+2*i,2)}, {vr(SM+2*k,2)}")
    reduce_row(MN)
    mid_step("c")
    a(f"v_mov_b32 v{MN+1}, {f2h(1e-5)}")
    a(f"v_fmac_f32 v{MN+1}, {f2h(1.0/640.0)}, v{MN}")
    a(f"v_rsq_f32 v{MN}, v{MN+1}")
    a("s_nop 0")
    a(f"v_mov_b32 v{MN+1}, v{MN}")
    for i in range(10):
        a(f"v_pk_mul_f32 {vr(XF+2*i,2)}, {vr(XF+2*i,2)}, {vr(MN,2)}")
    for i in range(10):
        a(f"v_cvt_pk_bf16_f32 v{XR+i}, v{XF+2*i}, v{XF+2*i+1}")
    for i in range(5):
        a(f"ds_write_b64 v{TM+4}, {vr(XR+2*i,2)} offset:{i*256}")
    a("s_waitcnt lgkmcnt(0)")
    if opt.unsafe & 2:
        a("s_waitcnt vmcnt(0)")
        a(f"v_readfirstlane_b32 s{sNONCE}, v{vPOLL}")
        nonce_spin(a, opt)
    a("s_barrier")
    for i in range(2):
        a(f"ds_read_b64_tr_b16 {vr(XF+4*i,2)}, v{TM+5} offset:{i*128}")
        a(f"ds_read_b64_tr_b16 {vr(XF+4*i+2,2)}, v{TM+5} offset:{i*128+4*LN_ROW}")
    a(f"s_cmp_ge_u32 s{sWAVE}, 2")
    a("s_cbranch_scc1 L_ln_two")
    a(f"ds_read_b64_tr_b16 {vr(XF+8,2)}, v{TM+5} offset:{2*128}")
    a(f"ds_read_b64_tr_b16 {vr(XF+10,2)}, v{TM+5} offset:{2*128+4*LN_ROW}")
    a("s_waitcnt lgkmcnt(0)")
    a(f"s_add_u32 s{sT0}, s{sSTEP}, {2*4096}")
    a(f"buffer_store_dwordx4 {vr(XF+8,4)}, v{TM+6}, {srd(sH)}, s{sT0} offen {opt.hbits}")
    a.label("L_ln_two")
    a("s_waitcnt lgkmcnt(0)")
    for i in range(2):
        a(f"s_add_u32 s{sT0}, s{sSTEP}, {i*4096}")
        a(f"buffer_store_dwordx4 {vr(XF+4*i,4)}, v{TM+6}, {srd(sH)}, s{sT0} offen {opt.hbits}")
    if not (opt.unsafe & 2): a(f"buffer_load_dword v{vPOLL}, v{vT}, {srd(sD)}, 0 offen sc1")
    stamp(a, opt, 2)
    if opt.unsafe & 2:
        a("s_barrier")
        a(f"s_cmp_lg_u32 s{sWAVE}, 0")
        a("s_cbranch_scc1 L_noflag0")
        a(f"s_lshl_b32 s{sT0}, s{sWG}, 2")
        flag_store(a, sT0)
        a.label("L_noflag0")
    a(f"s_cmp_ge_u32 s{sJ}, s{sJLIM}")
    a("s_cbranch_scc1 L_ln_idle2")
    ne = opt.nearly + opt.nmid
    a.vm = [f"w1_{i}" for i in range(ne)]
    for i in range(ne, ne + opt.npost): w1_dma(i)
    if not (opt.unsafe & 2): a(f"s_waitcnt vmcnt({4*opt.npost})")
    a("s_branch L_ln_go2")
    a.label("L_ln_idle2")
    if not (opt.unsafe & 2): a("s_waitcnt vmcnt(0)")
    a.label("L_ln_go2")
    if not (opt.unsafe & 2):
        a(f"v_readfirstlane_b32 s{sNONCE}, v{vPOLL}")
        nonce_spin(a, opt)
        a("s_barrier")
        a(f"s_cmp_lg_u32 s{sWAVE}, 0")
        a("s_cbranch_scc1 L_noflag")
        a(f"s_lshl_b32 s{sT0}, s{sWG}, 2")
        keep = list(a.vm)
        flag_store(a, sT0)
        a.vm = keep
        a.label("L_noflag")
    stamp(a, opt, 3)
    a(f"s_cmp_ge_u32 s{sJ}, s{sJLIM}")
    a("s_cbranch_scc1 L_nogemm1")
    w1_finish = w1_stream(opt.nearly + opt.nmid + opt.npost, opt.dp, opt.hold1)

    def common_setup(retr=True):
        make_srd(a, sH, 18, H_BYTES, WS_H)
        make_srd(a, sF, 18, FLAG_BYTES, WS_FLAG)
        make_srd(a, sB1, 8, F * 2)
        make_srd(a, sW2, 10, F * S * 2)
        make_srd(a, sB2, 12, S * 2)
        make_srd(a, sO, 14, S * D * 2)
        make_srd(a, sG, 18, G_BYTES, WS_G)
        a(f"v_lshrrev_b32 v{vT}, 4, v{vLANE}")
        a(f"v_lshlrev_b32 v{vT}, 3, v{vT}")
        a(f"s_and_b32 s{sT0}, s{sWAVE}, 1")
        a(f"s_lshl_b32 s{sT0}, s{sT0}, 6")
        a(f"s_lshl_b32 s{sT1}, s{sFT}, 7")
        a(f"s_add_u32 s{sT0}, s{sT0}, s{sT1}")
        a.vmem(f"buffer_load_dwordx2 {vr(vB1,2)}, v{vT}, {srd(sB1)}, s{sT0} offen", "b")
        a.vmem(f"buffer_load_dwordx2 {vr(vB1+2,2)}, v{vT}, {srd(sB1)}, s{sT0} offen offset:32", "b")
        a(f"v_and_b32 v{vT}, 15, v{vLANE}")
        a(f"v_lshlrev_b32 v{vT}, 1, v{vT}")
        a(f"s_lshl_b32 s{sT0}, s{sST}, 7")
        a(f"s_lshl_b32 s{sT1}, s{sWAVE}, 5")
        a(f"s_add_u32 s{sT0}, s{sT0}, s{sT1}")
        a.vmem(f"buffer_load_ushort v{vB2}, v{vT}, {srd(sB2)}, s{sT0} offen", "b")
        dma_addr(a, S * 2, sST)
        a(f"s_mul_i32 s{sWB}, s{sWAVE}, {448*S*2}")
        if retr: tr_addr(sM0B)
        a(f"s_sub_u32 s{sT0}, s{sUP}, s{sM0B}")
        for t in range(4):
            a(f"v_add_u32 v{vTRU+t}, s{sT0}, v{vTR+t}")
        a(f"v_lshlrev_b32 v{vL0}, 4, v{vLANE}")
        a(f"v_add_u32 v{vL1}, 65536, v{vL0}")
        a(f"v_add_u32 v{vL2}, 131072, v{vL0}")

    a.label("L_w1_ready")
    stamp(a, opt, 4)
    vm_keep = list(a.vm)
    common_setup(retr=False)
    a(f"s_mul_i32 s{sT0}, s{sDT1}, 5120")
    a(f"v_add_u32 v{vA}, s{sT0}, v{vL0}")
    a(f"v_add_u32 v{vA2}, 4096, v{vA}")
    a(f"s_cmp_lg_u32 s{sWAVE}, {opt.pollw}")
    a("s_cbranch_scc1 L_hpolled")
    if opt.epoll:
        a(f"s_waitcnt vmcnt({4*(15 - opt.epoll) + 3})")
        poll_check(a, 4, None, "L_hpolled")
    if opt.pipe & 1:
        a("s_waitcnt vmcnt(0)")
        poll_pipe(a, opt, vL0, None, opt.gap)
    else:
        poll(a, opt, vL0, 4, None, opt.sleeph, opt.preh, 1)
    a.label("L_hpolled")
    a.vm = vm_keep + ["b", "b", "b"]
    a("s_barrier")
    stamp(a, opt, 5)

    def a_loads(srdn, step, nsteps, s_rot):
        slot = step % NS
        step_off(a, sOFF, sSTEP, s_rot, step, nsteps, 40960)
        return [f"buffer_load_dwordx4 {vr(ring(slot,t),4)}, v{vA if t < 4 else vA2}, {srd(srdn)}, s{sOFF} offen offset:{(t*1024) if t < 4 else 0} {opt.abits}" for t in range(5)]

    def main_loop(srdn, nsteps, s_rot, tagp, mfma, stamp0, tail, nuni, pre=None):
        for st in range(opt.depth):
            for o, ins in enumerate(a_loads(srdn, st, nsteps, s_rot)): a.vmem(ins, f"{tagp}{st}_{o}")
        if pre: pre()
        for st in range(nuni):
            nx = st + opt.depth
            nxt = a_loads(srdn, nx, nsteps, s_rot) if nx < nsteps else None
            a.wait_vm(f"{tagp}{st}_4")
            if st == 0 and stamp0 is not None: stamp(a, opt, stamp0)
            for o in range(5):
                if nxt: a.vmem(nxt[o], f"{tagp}{nx}_{o}")
                for i in range(4): mfma(st, o, i, st % NS)
                if tail: tail(st, o)

    def tile_tail(nsteps, tagp, first, last, frag_of, mfma_tile, write_tile, extra):
        ic = [0]
        done_at = {}
        queue = []
        extra = list(extra)
        def emit(fn):
            fn(); ic[0] += 1
        def filler():
            if queue and ic[0] - done_at[queue[0]] >= 9:
                t = queue.pop(0); emit(lambda: write_tile(t)); return
            if extra: emit(extra.pop(0))
        tiles = list(first) + list(last)
        for i in range(0, len(tiles), 2):
            pair = tiles[i:i + 2]
            for t in pair:
                for st in (nsteps - 2, nsteps - 1): a.wait_vm(f"{tagp}{st}_{frag_of(t)}")
            for st in (nsteps - 2, nsteps - 1):
                for t in pair:
                    emit(lambda: mfma_tile(st, t))
                    if st == nsteps - 1:
                        done_at[t] = ic[0]
                        if t in first: queue.append(t)
                    filler()
        while extra: emit(extra.pop(0))
        while queue:
            while ic[0] - done_at[queue[0]] < 9: emit(lambda: a("s_nop 0"))
            t = queue.pop(0); emit(lambda: write_tile(t))

    a(f"s_mul_i32 s{sSTEP}, s{sWAVE}, {16*40960}")
    def mfma1(st, nt, mt, slot):
        c = "0" if st == 0 else vr(acc1(mt, nt), 4)
        a(f"v_mfma_f32_16x16x32_bf16 {vr(acc1(mt,nt),4)}, {ar(wfrag(st,mt),4)}, {vr(ring(slot,nt),4)}, {c}")
    parts13 = w2_dma_parts(a, 0) if opt.t13 else []
    def tail1(st, o):
        if st == 13 and parts13:
            if o == 0: parts13[0]()
            else: parts13[o]()
    main_loop(sH, 16, sROT1, "h", mfma1, 6, tail1, 14, w1_finish if opt.hold1 else None)

    a(f"s_mov_b32 s100, {f2h(C1)}"); a(f"s_mov_b32 s101, {f2h(C1)}")
    a(f"v_mov_b32 v{vC0}, {f2h(C0)}"); a(f"v_mov_b32 v{vC0+1}, {f2h(C0)}")
    def lds_ref(addr):
        if addr < 65536: return vL0, addr
        if addr < 131072: return vL1, addr - 65536
        return vL2, addr - 131072
    def owner1(p, nt): return p + (0 if nt < 3 else 2)
    units = [(p, nt) for p in range(2) for nt in range(5)]
    def red1_addr(src, u):
        k = [x for x in units if owner1(*x) != src].index(u)
        return src * 32768 + 24576 + k * 2048 if k < 4 else 131072 + src * 8192 + (k - 4) * 2048
    saved_vm = list(a.vm)
    for w in range(4):
        if w < 3:
            a(f"s_cmp_lg_u32 s{sWAVE}, {w}")
            a(f"s_cbranch_scc1 L_ep1_{w+1}")
        a.vm = list(saved_vm)
        nis = [1 if opt.t13 else 0]
        def more(n, limit):
            for _ in range(n):
                if nis[0] < limit:
                    w2_dma(a, nis[0]); nis[0] += 1
        tl = [(2 * p + hf, nt) for nt in range(5) for p in range(2) for hf in range(2)]
        first = [t for t in tl if owner1(t[0] // 2, t[1]) != w]
        last = [t for t in tl if owner1(t[0] // 2, t[1]) == w]
        def wr1(t):
            vb, off = lds_ref(red1_addr(w, (t[0] // 2, t[1])) + (t[0] & 1) * 1024)
            a(f"ds_write_b128 v{vb}, {vr(acc1(*t),4)} offset:{off}")
        extra = []
        for _ in range(opt.tt):
            extra += w2_dma_parts(a, nis[0]); nis[0] += 1
        tile_tail(16, "h", first, last, lambda t: t[1], lambda st, t: mfma1(st, t[1], t[0], st % NS), wr1, extra)
        stamp(a, opt, 7)
        more(opt.e1, 6)
        a("s_waitcnt lgkmcnt(0)")
        a("s_barrier")
        own_u = [u for u in units if owner1(*u) == w]
        RT = vRING
        n = 0
        for u in own_u:
            for src in range(4):
                if src == w: continue
                for hf in range(2):
                    vb, off = lds_ref(red1_addr(src, u) + hf * 1024)
                    a(f"ds_read_b128 {vr(RT + n*4, 4)}, v{vb} offset:{off}")
                    n += 1
        a.wait_vm("b")
        for i in range(4):
            a(f"v_lshlrev_b32 v{BI+2*i}, 16, v{vB1+i}")
            a(f"v_and_b32 v{BI+2*i+1}, 0xffff0000, v{vB1+i}")
        for u in own_u:
            p, nt = u
            for hf in range(2):
                r = acc1(2*p+hf, nt)
                a(f"v_pk_add_f32 {vr(r,2)}, {vr(r,2)}, {vr(BI+4*hf,2)}")
                a(f"v_pk_add_f32 {vr(r+2,2)}, {vr(r+2,2)}, {vr(BI+4*hf+2,2)}")
        n = 0
        tot = len(own_u) * 6
        for u in own_u:
            p, nt = u
            for si in range(3):
                for hf in range(2):
                    a(f"s_waitcnt lgkmcnt({min(15, tot - n - 1)})")
                    r = acc1(2*p+hf, nt)
                    a(f"v_pk_add_f32 {vr(r,2)}, {vr(r,2)}, {vr(RT+n*4,2)}")
                    a(f"v_pk_add_f32 {vr(r+2,2)}, {vr(r+2,2)}, {vr(RT+n*4+2,2)}")
                    n += 1
        a("s_barrier")
        regs = []
        for u in own_u:
            p, nt = u
            for hf in range(2):
                r = acc1(2*p+hf, nt)
                regs += [r, r + 2]
        more(opt.e2, 10)
        gelu_pairs(a, regs, RT, fill=lambda: more(opt.e3, 10))
        a(f"s_lshl_b32 s{sT0}, s{sFT}, 1")
        a(f"s_add_u32 s{sT0}, s{sT0}, {w & 1}")
        a(f"s_mul_i32 s{sT0}, s{sT0}, 40960")
        a(f"s_mul_i32 s{sT1}, s{sDT1}, 5120")
        a(f"s_add_u32 s{sT0}, s{sT0}, s{sT1}")
        for i, u in enumerate(own_u):
            p, nt = u
            o = RT + 64 + 4 * i
            r0, r1 = acc1(2*p, nt), acc1(2*p+1, nt)
            a(f"v_cvt_pk_bf16_f32 v{o}, v{r0}, v{r0+1}")
            a(f"v_cvt_pk_bf16_f32 v{o+1}, v{r0+2}, v{r0+3}")
            a(f"v_cvt_pk_bf16_f32 v{o+2}, v{r1}, v{r1+1}")
            a(f"v_cvt_pk_bf16_f32 v{o+3}, v{r1+2}, v{r1+3}")
            a(f"s_add_u32 s{sT1}, s{sT0}, {nt*1024}")
            a.vmem(f"buffer_store_dwordx4 {vr(o,4)}, v{vL0}, {srd(sG)}, s{sT1} offen {opt.gbits}", "g")
        stamp(a, opt, 8)
        def g_flag():
            a(f"s_lshl_b32 s{sT0}, s{sDT1}, 5")
            a(f"s_add_u32 s{sT0}, s{sT0}, s{sFT}")
            a(f"s_mul_i32 s{sT0}, s{sT0}, {opt.gstride}")
            a(f"s_add_u32 s{sT0}, s{sT0}, {FLAG_G + 4*w}")
            flag_store(a, sT0)
            stamp(a, opt, 9)
        if opt.unsafe & 1: g_flag()
        more(opt.nb, 10)
        a.wait_vm("w2_3")
        if nis[0] >= 4:
            for st in range(4):
                w2_tr(a, st)
                if st % 2 == 1: a("s_waitcnt lgkmcnt(0)")
        if nis[0] == 10 and opt.nb2:
            for st in range(10, 10 + opt.nb2): w2_dma(a, st)
            nis[0] += opt.nb2
        if not (opt.unsafe & 1):
            a.wait_vm("g")
            if opt.gwg:
                a("s_barrier")
                if w == 0:
                    keep = list(a.vm); g_flag(); a.vm = keep
            else:
                g_flag()
        assert nis[0] >= 4
        more(10, 10)
        more(4, 14)
        for st in range(4, 10):
            a.wait_vm(f"w2_{st}")
            w2_tr(a, st)
            if st % 2 == 1: a("s_waitcnt lgkmcnt(0)")
        a("s_branch L_pre2")
        if w < 3: a.label(f"L_ep1_{w+1}")

    a.label("L_nogemm1")
    a.vm = []
    common_setup()
    if False:
        a(f"s_lshl_b32 s{sT0}, s{sWAVE}, 6")
        a(f"v_add_u32 v{vX}, s{sT0}, v{vLANE}")
        a(f"v_mul_u32_u24 v{vX}, {opt.hstride}, v{vX}")
        poll(a, opt, vX, 2, None)
        if opt.idlewait > 1:
            a(f"s_sleep {opt.idlewait}")
    if opt.pf == 3:
        a(f"s_lshl_b32 s{sT0}, s{sIDLE}, 2")
        a(f"s_add_u32 s{sT0}, s{sT0}, s{sWAVE}")
        a(f"s_lshl_b32 s{sT0}, s{sT0}, 10")
        for k in range(44):
            o = vRING + (k % 16) * 4
            a.vmem(f"buffer_load_dwordx4 {vr(o,4)}, v{vL0}, {srd(sW2)}, s{sT0} offen {opt.pfbits}", f"pf{k}")
            a(f"s_add_u32 s{sT0}, s{sT0}, {160*1024}")
            if k >= opt.pfdepth: a.wait_vm(f"pf{k-opt.pfdepth}")
        a.wait_vm0()
    if opt.pf == 2:
        assert opt.p1 == 2 and opt.p2 == 1
        a(f"s_cmp_lt_u32 s{sJ}, 28")
        a("s_cbranch_scc1 L_nopf")
        a(f"s_sub_u32 s{sT0}, s{sJ}, 28")
        a(f"s_lshl_b32 s{sT0}, s{sT0}, 2")
        a(f"s_add_u32 s{sT0}, s{sT0}, s{sWAVE}")
        a(f"s_lshl_b32 s{sT0}, s{sT0}, 13")
        a(f"s_lshl_b32 s{sT1}, s{sXCD}, 9")
        a(f"s_add_u32 s{sT0}, s{sT0}, s{sT1}")
        a(f"v_lshrrev_b32 v{vX}, 5, v{vLANE}")
        a(f"v_lshlrev_b32 v{vX}, 12, v{vX}")
        a(f"v_and_b32 v{vX+1}, 31, v{vLANE}")
        a(f"v_lshlrev_b32 v{vX+1}, 4, v{vX+1}")
        a(f"v_add_u32 v{vX}, v{vX}, v{vX+1}")
        keep = list(a.vm)
        for k in range(54):
            o = vRING + (k % 16) * 4
            a.vmem(f"buffer_load_dwordx4 {vr(o,4)}, v{vX}, {srd(sW2)}, s{sT0} offen", f"pf{k}")
            a(f"s_add_u32 s{sT0}, s{sT0}, {16*8192}")
            if k >= opt.pfdepth: a.wait_vm(f"pf{k-opt.pfdepth}")
        a.wait_vm0()
        a.label("L_nopf")
        a.vm = keep
    for st in range(10): w2_dma(a, st)
    for st in range(4):
        a.wait_vm(f"w2_{st}")
        w2_tr(a, st)
        if st % 2 == 1: a("s_waitcnt lgkmcnt(0)")
    for st in range(10, 14): w2_dma(a, st)
    for st in range(4, 10):
        a.wait_vm(f"w2_{st}")
        w2_tr(a, st)
        if st % 2 == 1: a("s_waitcnt lgkmcnt(0)")

    a.label("L_pre2")
    a(f"s_mul_i32 s{sT0}, s{sDT2}, 5120")
    a(f"v_add_u32 v{vA}, s{sT0}, v{vL0}")
    a(f"v_add_u32 v{vA2}, 4096, v{vA}")
    def w2_finish():
        a.wait_vm("w2all")
        a("s_waitcnt lgkmcnt(0)")
        for st in range(10, 14):
            w2_tr(a, st)
            if st % 2 == 1: a("s_waitcnt lgkmcnt(0)")
    if not opt.hold2:
        a.vm = ["w2all"]
        w2_finish()
    stamp(a, opt, 10)
    if opt.onepoll & 2:
        a(f"s_cmp_lg_u32 s{sWAVE}, {opt.pollw}")
        a("s_cbranch_scc1 L_gpolled")
        a(f"s_lshl_b32 s{sT0}, s{sDT2}, 5")
        a(f"s_mul_i32 s{sT0}, s{sT0}, {opt.gstride}")
        a(f"s_add_u32 s{sT0}, s{sT0}, {FLAG_G}")
        a(f"v_mul_u32_u24 v{vX}, {opt.gstride}, v{vLANE}")
        a(f"v_add_u32 v{vX}, s{sT0}, v{vX}")
        a(f"s_mov_b32 s{sP+2}, 0x7ffffff")
        a(f"s_mov_b32 s{sP+3}, 0")
        if opt.pipe & 2:
            a("s_waitcnt vmcnt(0)")
            poll_pipe(a, opt, vX, sP + 2, opt.gap, 1 if opt.gwg else 4)
        else:
            poll(a, opt, vX, 1 if opt.gwg else 4, sP + 2, opt.sleep, opt.preg)
        a.label("L_gpolled")
        a("s_barrier")
    else:
        a(f"s_lshl_b32 s{sT0}, s{sDT2}, 5")
        a(f"s_mul_i32 s{sT1}, s{sWAVE}, 7")
        a(f"s_add_u32 s{sT0}, s{sT0}, s{sT1}")
        a(f"s_mul_i32 s{sT0}, s{sT0}, {opt.gstride}")
        a(f"s_add_u32 s{sT0}, s{sT0}, {FLAG_G}")
        a(f"v_mul_u32_u24 v{vX}, {opt.gstride}, v{vLANE}")
        a(f"v_add_u32 v{vX}, s{sT0}, v{vX}")
        a(f"s_cmp_eq_u32 s{sWAVE}, 3")
        a(f"s_cselect_b32 s{sP+2}, 0x3f, 0x7f")
        a(f"s_mov_b32 s{sP+3}, 0")
        poll(a, opt, vX, 4, sP + 2, opt.sleep, opt.preg)
    a.vm = ["w2all"] if opt.hold2 else []
    stamp(a, opt, 11)
    a(f"s_mul_i32 s{sSTEP}, s{sWAVE}, {14*40960}")
    def mfma2(st, mt, nt, slot):
        c = "0" if st == 0 else vr(acc2(mt, nt), 4)
        a(f"v_mfma_f32_16x16x32_bf16 {vr(acc2(mt,nt),4)}, {vr(ring(slot,mt),4)}, {ar(wfrag(st,nt),4)}, {c}")
    main_loop(sG, 14, sROT2, "g", mfma2, 12, None, 12, w2_finish if opt.hold2 else None)
    saved_vm2 = list(a.vm)
    a(f"v_and_b32 v{vT}, 15, v{vLANE}")
    a(f"s_lshl_b32 s{sT0}, s{sWAVE}, 4")
    a(f"v_add_u32 v{vT}, s{sT0}, v{vT}")
    a(f"v_mul_u32_u24 v{vA}, 1280, v{vT}")
    a(f"v_lshrrev_b32 v{vT}, 4, v{vLANE}")
    a(f"v_lshlrev_b32 v{vT}, 3, v{vT}")
    a(f"v_add_u32 v{vA}, v{vA}, v{vT}")
    a(f"s_mul_i32 s{sT0}, s{sST}, {64*1280}")
    a(f"s_mul_i32 s{sT1}, s{sDT2}, 160")
    a(f"s_add_u32 s{sOFF}, s{sT0}, s{sT1}")
    a(f"v_lshlrev_b32 v{vC0}, 16, v{vB2}")
    a(f"v_lshlrev_b32 v{vC0+1}, 16, v{vB2}")
    a(f"v_sub_u32 v{vA2}, v{vA}, v{vT}")
    a(f"v_bfe_u32 v{vT}, v{vLANE}, 4, 1")
    a(f"v_lshlrev_b32 v{vT}, 5, v{vT}")
    a(f"v_add_u32 v{vA2}, v{vA2}, v{vT}")
    a(f"v_bfe_u32 v{vT}, v{vLANE}, 5, 1")
    a(f"v_lshlrev_b32 v{vT}, 4, v{vT}")
    a(f"v_add_u32 v{vA2}, v{vA2}, v{vT}")
    def red2_addr(src, nt, mt):
        k = [x for x in range(4) if x != src].index(nt)
        return src * 32768 + (k * 5 + mt) * 1024
    for w in range(4):
        if w < 3:
            a(f"s_cmp_lg_u32 s{sWAVE}, {w}")
            a(f"s_cbranch_scc1 L_ep2_{w+1}")
        a.vm = list(saved_vm2)
        tl = [(mt, nt) for mt in range(5) for nt in range(4)]
        def wr2(t):
            vb, off = lds_ref(red2_addr(w, t[1], t[0]))
            a(f"ds_write_b128 v{vb}, {vr(acc2(*t),4)} offset:{off}")
        tile_tail(14, "g", [t for t in tl if t[1] != w], [t for t in tl if t[1] == w], lambda t: t[0],
                  lambda st, t: mfma2(st, t[0], t[1], st % NS), wr2, [])
        stamp(a, opt, 13)
        a("s_waitcnt lgkmcnt(0)")
        a("s_barrier")
        RT = vRING
        n = 0
        for mt in range(5):
            for src in range(4):
                if src == w: continue
                vb, off = lds_ref(red2_addr(src, w, mt))
                a(f"ds_read_b128 {vr(RT+n*4,4)}, v{vb} offset:{off}")
                n += 1
        n = 0
        for mt in range(5):
            r = acc2(mt, w)
            for si in range(3):
                a(f"s_waitcnt lgkmcnt({14 - n})")
                a(f"v_pk_add_f32 {vr(r,2)}, {vr(r,2)}, {vr(RT+n*4,2)}")
                a(f"v_pk_add_f32 {vr(r+2,2)}, {vr(r+2,2)}, {vr(RT+n*4+2,2)}")
                n += 1
            a(f"v_pk_add_f32 {vr(r,2)}, {vr(r,2)}, {vr(vC0,2)}")
            a(f"v_pk_add_f32 {vr(r+2,2)}, {vr(r+2,2)}, {vr(vC0,2)}")
            o = RT + 64 + 2 * mt
            a(f"v_cvt_pk_bf16_f32 v{o}, v{r}, v{r+1}")
            a(f"v_cvt_pk_bf16_f32 v{o+1}, v{r+2}, v{r+3}")
            if not opt.wide or mt == 4:
                a(f"buffer_store_dwordx2 {vr(o,2)}, v{vA}, {srd(sO)}, s{sOFF} offen offset:{mt*32} {opt.obits}")
            elif mt % 2 == 1:
                a("s_nop 1")
                a(f"v_permlane16_swap_b32 v{o-2}, v{o}")
                a(f"v_permlane16_swap_b32 v{o-1}, v{o+1}")
                a(f"buffer_store_dwordx4 {vr(o-2,4)}, v{vA2}, {srd(sO)}, s{sOFF} offen offset:{(mt-1)*32} {opt.obits}")
        a("s_branch L_fin")
        if w < 3: a.label(f"L_ep2_{w+1}")
    a.label("L_fin")
    if opt.probe >= 0:
        if opt.probe == 14:
            a("s_waitcnt vmcnt(0)")
            stamp(a, opt, 14)
        a(f"s_cmp_lg_u32 s{sWG}, {opt.probewg}")
        a("s_cbranch_scc1 L_done")
        a(f"s_cmp_lg_u32 s{sWAVE}, {opt.probew}")
        a("s_cbranch_scc1 L_done")
        ref = sNONCE if opt.probeabs else (sPROF + 2 if opt.probe0 >= 0 else 96)
        a(f"s_sub_u32 s{sT1}, s{sPROF+1}, s{ref}")
        if opt.probecyc: a(f"s_lshr_b32 s{sT1}, s{sT1}, 2")
        else: a(f"s_lshl_b32 s{sT1}, s{sT1}, 2")
        a(f"s_add_u32 s{sT1}, s{sT1}, 4000")
        a.label("L_probe")
        a(f"s_memrealtime s[{sP}:{sP+1}]")
        a("s_waitcnt lgkmcnt(0)")
        a(f"s_sub_u32 s{sT0}, s{sP}, s96")
        a(f"s_cmp_lt_u32 s{sT0}, s{sT1}")
        a("s_cbranch_scc1 L_probe")
    if opt.pad:
        a.label("L_pad")
        a(f"s_memrealtime s[{sP}:{sP+1}]")
        a("s_waitcnt lgkmcnt(0)")
        a(f"s_sub_u32 s{sT0}, s{sP}, s96")
        a(f"s_cmp_lt_u32 s{sT0}, {opt.pad}")
        a("s_cbranch_scc1 L_pad")
    if opt.prof:
        a("s_waitcnt vmcnt(0)")
        stamp(a, opt, 14)
        make_srd(a, sX, 18, 65536, WS_PROF)
        a(f"s_lshl_b32 s{sT0}, s{sWG}, 2")
        a(f"s_add_u32 s{sT0}, s{sT0}, s{sWAVE}")
        a(f"s_lshl_b32 s{sT0}, s{sT0}, 6")
        a(f"v_mov_b32 v{vT}, s{sT0}")
        a("s_mov_b64 exec, 1")
        for i in range(15):
            a(f"v_mov_b32 v100, s{sPROF+i}")
            a(f"buffer_store_dword v100, v{vT}, {srd(sX)}, 0 offen offset:{4*i}")
            a("s_nop 1")
        a("s_waitcnt vmcnt(0)")
    a.label("L_done")
    a("s_endpgm")
    a.label("L_codeend")
    a.raw('.section .rodata,"a"')
    a.raw(".p2align 6")
    a.raw(f".amdhsa_kernel {KN}")
    for l in ["next_free_vgpr 512", "next_free_sgpr 102", "accum_offset 256", "group_segment_fixed_size 0",
              "kernarg_size 64", "user_sgpr_count 2", "user_sgpr_kernarg_segment_ptr 1",
              "system_sgpr_workgroup_id_x 1", "float_denorm_mode_32 3"]:
        a.raw(f"  .amdhsa_{l}")
    a.raw(".end_amdhsa_kernel")
    return "\n".join(a.L) + "\n"

def parse(argv=None):
    ap = argparse.ArgumentParser()
    ap.add_argument("-o", default="standalone__mixer_token_mlp__prompt.s")
    ap.add_argument("--prof", type=int, default=0)
    ap.add_argument("--rot", type=int, default=3)
    ap.add_argument("--spin", type=int, default=20000)
    ap.add_argument("--sleep", type=int, default=8)
    ap.add_argument("--depth", type=int, default=3)
    ap.add_argument("--lnprof", type=int, default=0)
    ap.add_argument("--hbits", default="sc1")
    ap.add_argument("--pfwait", type=int, default=1)
    ap.add_argument("--hold", type=int, default=0)
    ap.add_argument("--probe", type=int, default=-1)
    ap.add_argument("--probe0", type=int, default=-1)
    ap.add_argument("--probecyc", type=int, default=0)
    ap.add_argument("--probeabs", type=int, default=0)
    ap.add_argument("--probewg", type=int, default=100)
    ap.add_argument("--probew", type=int, default=2)
    ap.add_argument("--rot8", type=int, default=1)
    ap.add_argument("--cpf", type=int, default=1)
    ap.add_argument("--cpfw", type=int, default=3)
    ap.add_argument("--wide", type=int, default=1)
    ap.add_argument("--idlewait", type=int, default=0)
    ap.add_argument("--sleeph", type=int, default=8)
    ap.add_argument("--preh", type=int, default=0)
    ap.add_argument("--preg", type=int, default=0)
    ap.add_argument("--onepoll", type=int, default=3)
    ap.add_argument("--pollw", type=int, default=3)
    ap.add_argument("--nta", type=int, default=0)
    ap.add_argument("--rotg1", type=int, default=0)
    ap.add_argument("--rotg2", type=int, default=0)
    ap.add_argument("--npost", type=int, default=3)
    ap.add_argument("--xbar", type=int, default=1)
    ap.add_argument("--hold1", type=int, default=4)
    ap.add_argument("--hold2", type=int, default=1)
    ap.add_argument("--nmid", type=int, default=0)
    ap.add_argument("--gbits", default="sc1")
    ap.add_argument("--fbits", default="sc1")
    ap.add_argument("--abits", default="sc1")
    ap.add_argument("--unsafe", type=int, default=0)
    ap.add_argument("--epoll", type=int, default=12)
    ap.add_argument("--pipe", type=int, default=1)
    ap.add_argument("--gap", type=int, default=2)
    ap.add_argument("--gwg", type=int, default=1)
    ap.add_argument("--t13", type=int, default=1)
    ap.add_argument("--tt", type=int, default=2)
    ap.add_argument("--e2", type=int, default=0)
    ap.add_argument("--e3", type=int, default=0)
    ap.add_argument("--nb2", type=int, default=0)
    ap.add_argument("--e1", type=int, default=1)
    ap.add_argument("--nb", type=int, default=2)
    ap.add_argument("--nearly", type=int, default=2)
    ap.add_argument("--dpl", type=int, default=5)
    ap.add_argument("--dp", type=int, default=4)
    ap.add_argument("--p1", type=int, default=1)
    ap.add_argument("--p2", type=int, default=1)
    ap.add_argument("--rota1", type=int, default=0)
    ap.add_argument("--rota2", type=int, default=0)
    ap.add_argument("--xbits", default="nt")
    ap.add_argument("--w1bits", default="")
    ap.add_argument("--w2bits", default="")
    ap.add_argument("--pfbits", default="")
    ap.add_argument("--pfdepth", type=int, default=8)
    ap.add_argument("--prio", type=int, default=3)
    ap.add_argument("--delay", type=int, default=0)
    ap.add_argument("--hstride", type=int, default=8)
    ap.add_argument("--gstride", type=int, default=256)
    ap.add_argument("--pf", type=int, default=0)
    ap.add_argument("--pad", type=int, default=0)
    ap.add_argument("--obits", default="sc0 sc1")
    return ap.parse_args(argv)

if __name__ == "__main__":
    opt = parse()
    open(opt.o, "w").write(gen(opt))
```

```python
import argparse, struct

S, D, F = 2048, 640, 1728
KN = "standalone__mixer_token_mlp__prompt_kernel"

WS_H = 0
H_BYTES = 64 * 40 * 1024
WS_G = 0x300000
G_BYTES = 54 * 40 * 1024
WS_FLAG = 0x600000
FLAG_H = 0
FLAG_G = 0x10000
FLAG_BYTES = 0x40000
WS_PROF = 0x700000

LDS_BYTES = 163840
LN_BASE = 131072
LN_ROW = 1344
LF_BASE = 141824
P0_BASE = [0, 49152, 98304, 122880]

sWG = 2
sX, sW1, sW2, sH, sG, sO, sF, sB1, sB2, sD = 20, 24, 28, 32, 36, 40, 44, 48, 52, 56
sWAVE, sXCD, sJ, sFT, sDT1, sST, sDT2, sNONCE = 60, 61, 62, 63, 64, 65, 66, 67
sT0, sT1, sT2, sT3, sT4, sT5 = 68, 69, 70, 71, 72, 73
sROT1, sROT2, sSTEP, sOFF = 74, 75, 76, 77
sM0B, sSPIN = 78, 79
sP = 80
sPROF = 84
sUP = 99
sJLIM, sIDLE = 100, 101
sWB = 3

vTID, vLANE = 0, 1
vTR = 2
vA, vA2, vDMA, vT2 = 6, 7, 8, 9
vB1 = 10
vB2, vT = 14, 15
vACC = 16
vRING = 96
vTRU = 196
vL0, vL1, vL2 = 200, 201, 202
vC0 = 204
BI = 206
vPOLL = 214
vX = 216
vHP = 226
vPQ = 228
vDM = 220

def srd(n): return f"s[{n}:{n+3}]"
def vr(n, c=1): return f"v{n}" if c == 1 else f"v[{n}:{n+c-1}]"
def ar(n, c=1): return f"a{n}" if c == 1 else f"a[{n}:{n+c-1}]"
def f2h(x): return "0x%08x" % struct.unpack("<I", struct.pack("<f", x))[0]
C0 = -2.0 * 0.7978845608028654 * 1.4426950408889634
C1 = C0 * 0.044715

class Asm:
    def __init__(self):
        self.L = []; self.vm = []; self.uid = 0
    def __call__(self, s): self.L.append("    " + s)
    def label(self, s): self.L.append(s + ":")
    def raw(self, s): self.L.append(s)
    def c(self, s): self.L.append("    ; " + s)
    def vmem(self, s, tag):
        self(s); self.vm.append(tag)
    def wait_vm(self, tag):
        hits = [i for i, t in enumerate(self.vm) if t == tag]
        if not hits: return
        n = len(self.vm) - 1 - hits[-1]
        self(f"s_waitcnt vmcnt({min(n, 63)})")
        self.vm = self.vm[hits[-1] + 1:]
    def wait_vm0(self):
        self("s_waitcnt vmcnt(0)"); self.vm = []
    def newlabel(self, p):
        self.uid += 1
        return f"L_{p}_{self.uid}"

def acc1(mt, nt): return vACC + (mt * 5 + nt) * 4
def acc2(mt, nt): return vACC + (mt * 4 + nt) * 4
def wfrag(step, t): return step * 16 + t * 4

def stamp(a, opt, idx, force=False):
    if opt.probe >= 0:
        ins = "s_memtime" if opt.probecyc else "s_memrealtime"
        if idx == opt.probe:
            a(f"{ins} s[{sP}:{sP+1}]")
            a("s_waitcnt lgkmcnt(0)")
            a(f"s_mov_b32 s{sPROF+1}, s{sP}")
        if idx == opt.probe0:
            a(f"{ins} s[{sP}:{sP+1}]")
            a("s_waitcnt lgkmcnt(0)")
            a(f"s_mov_b32 s{sPROF+2}, s{sP}")
        return
    if opt.prof == 4 and idx != 14: return
    if opt.lnprof and idx in (4, 5) and getattr(a, "ln_done", False): return
    if opt.prof:
        a(f"s_mem{'time' if opt.prof == 2 else 'realtime'} s[{sP}:{sP+1}]")
        a("s_waitcnt lgkmcnt(0)")
        a(f"s_mov_b32 s{sPROF+idx}, s{sP}")

def make_srd(a, n, lo, size, add=0):
    if add:
        a(f"s_add_u32 s{n}, s{lo}, {add}")
        a(f"s_addc_u32 s{n+1}, s{lo+1}, 0")
        a(f"s_and_b32 s{n+1}, s{n+1}, 0xffff")
    else:
        a(f"s_mov_b32 s{n}, s{lo}")
        a(f"s_and_b32 s{n+1}, s{lo+1}, 0xffff")
    a(f"s_mov_b32 s{n+2}, {size}")
    a(f"s_mov_b32 s{n+3}, 0x20000")

def nonce_spin(a, opt):
    lp = a.newlabel("nonce"); dn = a.newlabel("nonced")
    a(f"s_cmp_lg_u32 s{sNONCE}, 0")
    a(f"s_cbranch_scc1 {dn}")
    a(f"s_mov_b32 s{sSPIN}, 0")
    a(f"v_mov_b32 v{vT}, 0")
    a.label(lp)
    a(f"buffer_load_dword v{vT2}, v{vT}, {srd(sD)}, 0 offen sc1")
    a("s_waitcnt vmcnt(0)")
    a(f"v_readfirstlane_b32 s{sNONCE}, v{vT2}")
    a(f"s_add_u32 s{sSPIN}, s{sSPIN}, 1")
    a(f"s_cmp_lg_u32 s{sNONCE}, 0")
    a(f"s_cbranch_scc1 {dn}")
    a(f"s_cmp_lt_u32 s{sSPIN}, {opt.spin}")
    a(f"s_cbranch_scc1 {lp}")
    a.label(dn)

def lds_set(a, addr_sgpr_or_imm):
    a(f"v_mov_b32 v{vT}, {addr_sgpr_or_imm}")
    a(f"v_mov_b32 v{vT2}, 1")
    a(f"s_mov_b64 s[{sP}:{sP+1}], exec")
    a("s_mov_b64 exec, 1")
    a(f"ds_write_b32 v{vT}, v{vT2}")
    a(f"s_mov_b64 exec, s[{sP}:{sP+1}]")

def lds_spin(a, opt, addr):
    lp = a.newlabel("lspin"); dn = a.newlabel("lspun")
    a(f"v_mov_b32 v{vT}, {addr}")
    a(f"s_mov_b32 s{sSPIN}, 0")
    a.label(lp)
    a(f"ds_read_b32 v{vT2}, v{vT}")
    a("s_waitcnt lgkmcnt(0)")
    a(f"v_readfirstlane_b32 s{sP}, v{vT2}")
    a(f"s_add_u32 s{sSPIN}, s{sSPIN}, 1")
    a(f"s_cmp_lg_u32 s{sP}, 0")
    a(f"s_cbranch_scc1 {dn}")
    a(f"s_cmp_lt_u32 s{sSPIN}, {opt.spin * 8}")
    a(f"s_cbranch_scc1 {lp}")
    a.label(dn)

def dma_addr(a, stride, s_tile):
    a(f"v_lshrrev_b32 v{vT}, 3, v{vLANE}")
    a(f"v_lshrrev_b32 v{vT2}, 1, v{vT}")
    a(f"v_lshlrev_b32 v{vT2}, 1, v{vT2}")
    a(f"v_and_b32 v{vDM}, 7, v{vLANE}")
    a(f"v_xor_b32 v{vDM}, v{vDM}, v{vT2}")
    a(f"v_lshlrev_b32 v{vDM}, 4, v{vDM}")
    a(f"v_mul_u32_u24 v{vT}, {stride}, v{vT}")
    a(f"v_add_u32 v{vDM}, v{vDM}, v{vT}")
    a(f"s_lshl_b32 s{sT0}, s{s_tile}, 7")
    a(f"v_add_u32 v{vDM}, s{sT0}, v{vDM}")
    for b in range(1, 4):
        a(f"v_add_u32 v{vDM+b}, {b*(8*stride-1024)}, v{vDM}")

def step_off(a, dst, s_base, s_rot, i, nsteps, bytes_per_step):
    a(f"s_add_u32 s{sT4}, s{s_rot}, {i}")
    a(f"s_cmp_ge_u32 s{sT4}, {nsteps}")
    a(f"s_cselect_b32 s{dst}, {nsteps}, 0")
    a(f"s_sub_u32 s{sT4}, s{sT4}, s{dst}")
    a(f"s_mul_i32 s{sT4}, s{sT4}, {bytes_per_step}")
    a(f"s_add_u32 s{dst}, s{sT4}, s{s_base}")

def dma_step(a, srdn, stride, s_rowbase, s_rot, step, nsteps, s_lds, lds_off, tag, bits=""):
    a(f"s_add_u32 m0, s{s_lds}, {lds_off}")
    step_off(a, sOFF, s_rowbase, s_rot, step, nsteps, 32 * stride)
    for blk in range(4):
        a.vmem(f"buffer_load_dwordx4 v{vDM+blk}, {srd(srdn)}, s{sOFF} offen offset:{blk*1024} {bits} lds", tag)

def tr_step(a, vbase, off, step):
    for t in range(4):
        w = wfrag(step, t)
        a(f"ds_read_b64_tr_b16 {ar(w,2)}, v{vbase+t} offset:{off}")
        a(f"ds_read_b64_tr_b16 {ar(w+2,2)}, v{vbase+t} offset:{off+2048}")

def poll(a, opt, vaddr, nd, lanes, sleep=None, pre=0, nload=1):
    if sleep is None: sleep = opt.sleep
    if pre: a(f"s_sleep {pre}")
    lp = a.newlabel("poll"); dn = a.newlabel("polled")
    a(f"s_mov_b32 s{sSPIN}, 0")
    a.label(lp)
    ld = {1: "dword", 2: "dwordx2", 4: "dwordx4"}[nd]
    for k in range(nload):
        a(f"buffer_load_{ld} {vr(vPQ + 4*k, nd)}, v{vaddr}, {srd(sF)}, 0 offen offset:{k*1024} sc1")
    a("s_waitcnt vmcnt(0)")
    first = True
    for k in range(nload):
        for i in range(nd):
            if first:
                a(f"v_cmp_ne_u32 vcc, s{sNONCE}, v{vPQ+4*k+i}"); first = False
            else:
                a(f"v_cmp_ne_u32 s[{sP}:{sP+1}], s{sNONCE}, v{vPQ+4*k+i}")
                a(f"s_or_b64 vcc, vcc, s[{sP}:{sP+1}]")
    if lanes is not None:
        a(f"s_and_b64 vcc, vcc, s[{lanes}:{lanes+1}]")
    a(f"s_add_u32 s{sSPIN}, s{sSPIN}, 1")
    a("s_cmp_eq_u64 vcc, 0")
    a(f"s_cbranch_scc1 {dn}")
    if sleep: a(f"s_sleep {sleep}")
    a(f"s_cmp_lt_u32 s{sSPIN}, {opt.spin}")
    a(f"s_cbranch_scc1 {lp}")
    a.label(dn)
    a.vm = []

def poll_pipe(a, opt, vaddr, lanes, gap, nd=4):
    dn = a.newlabel("ppolled"); lp = a.newlabel("ppoll")
    regs = [vPQ, vPQ + 4, vPQ + 8]
    def probe(r): a(f"buffer_load_{'dwordx4' if nd == 4 else 'dword'} {vr(r,nd)}, v{vaddr}, {srd(sF)}, 0 offen sc1")
    a(f"s_mov_b32 s{sSPIN}, 0")
    probe(regs[0]); a(f"s_sleep {gap}"); probe(regs[1]); a(f"s_sleep {gap}"); probe(regs[2])
    a.label(lp)
    for r in regs:
        a("s_waitcnt vmcnt(2)")
        for i in range(nd):
            if i == 0: a(f"v_cmp_ne_u32 vcc, s{sNONCE}, v{r}")
            else:
                a(f"v_cmp_ne_u32 s[{sP}:{sP+1}], s{sNONCE}, v{r+i}")
                a(f"s_or_b64 vcc, vcc, s[{sP}:{sP+1}]")
        if lanes is not None: a(f"s_and_b64 vcc, vcc, s[{lanes}:{lanes+1}]")
        a("s_cmp_eq_u64 vcc, 0")
        a(f"s_cbranch_scc1 {dn}")
        a(f"s_sleep {gap}")
        probe(r)
    a(f"s_add_u32 s{sSPIN}, s{sSPIN}, 1")
    a(f"s_cmp_lt_u32 s{sSPIN}, {opt.spin}")
    a(f"s_cbranch_scc1 {lp}")
    a.label(dn)

def poll_check(a, nd, lanes, ok_label):
    for i in range(nd):
        if i == 0: a(f"v_cmp_ne_u32 vcc, s{sNONCE}, v{vPQ}")
        else:
            a(f"v_cmp_ne_u32 s[{sP}:{sP+1}], s{sNONCE}, v{vPQ+i}")
            a(f"s_or_b64 vcc, vcc, s[{sP}:{sP+1}]")
    if lanes is not None:
        a(f"s_and_b64 vcc, vcc, s[{lanes}:{lanes+1}]")
    a("s_cmp_eq_u64 vcc, 0")
    a(f"s_cbranch_scc1 {ok_label}")

def flag_store(a, s_index_bytes):
    a(f"v_mov_b32 v{vT}, s{s_index_bytes}")
    a(f"v_mov_b32 v{vT2}, s{sNONCE}")
    a(f"s_mov_b64 s[{sP}:{sP+1}], exec")
    a("s_mov_b64 exec, 1")
    a.vmem(f"buffer_store_dword v{vT2}, v{vT}, {srd(sF)}, 0 offen {OPT.fbits}", "flag")
    a(f"s_mov_b64 exec, s[{sP}:{sP+1}]")

def gelu_pairs(a, regs, tmp, fill=None):
    def each(fn):
        for i, r in enumerate(regs): fn(r, tmp + 2 * i)
    each(lambda r, t: a(f"v_pk_mul_f32 {vr(t,2)}, {vr(r,2)}, {vr(r,2)}"))
    each(lambda r, t: a(f"v_pk_fma_f32 {vr(t,2)}, {vr(t,2)}, s[100:101], {vr(vC0,2)}"))
    each(lambda r, t: a(f"v_pk_mul_f32 {vr(t,2)}, {vr(t,2)}, {vr(r,2)}"))
    if fill: fill()
    each(lambda r, t: (a(f"v_exp_f32 v{t}, v{t}"), a(f"v_exp_f32 v{t+1}, v{t+1}")))
    each(lambda r, t: a(f"v_pk_add_f32 {vr(t,2)}, {vr(t,2)}, 1.0 op_sel_hi:[1,0]"))
    each(lambda r, t: (a(f"v_rcp_f32 v{t}, v{t}"), a(f"v_rcp_f32 v{t+1}, v{t+1}")))
    a("s_nop 0")
    each(lambda r, t: a(f"v_pk_mul_f32 {vr(r,2)}, {vr(r,2)}, {vr(t,2)}"))

def w2_slot(step):
    if step < 8: return sM0B, step * 4096, vTR, step * 4096
    if step < 10: return sUP, (step - 8) * 4096, vTRU, (step - 8) * 4096
    return sM0B, (step - 10) * 4096, vTR, (step - 10) * 4096

def w2_dma(a, step):
    sb, off, _, _ = w2_slot(step)
    dma_step(a, sW2, S * 2, sWB, sROT2, step, 14, sb, off, f"w2_{step}", OPT.w2bits)

def w2_dma_parts(a, step):
    sb, off, _, _ = w2_slot(step)
    def setup():
        a(f"s_add_u32 m0, s{sb}, {off}")
        step_off(a, sOFF, sWB, sROT2, step, 14, 32 * S * 2)
    def one(blk):
        return lambda: a.vmem(f"buffer_load_dwordx4 v{vDM+blk}, {srd(sW2)}, s{sOFF} offen offset:{blk*1024} {OPT.w2bits} lds", f"w2_{step}")
    return [setup] + [one(b) for b in range(4)]

def w2_tr(a, step):
    _, _, vb, off = w2_slot(step)
    tr_step(a, vb, off, step)

def gen(opt):
    global OPT
    OPT = opt
    a = Asm()
    NS = opt.depth + 1
    def ring(slot, t): return vRING + slot * 20 + t * 4
    a.raw(f"; @launch grid=(256,1,1) block=(256,1,1) lds={LDS_BYTES}")
    a.raw('.amdgcn_target "amdgcn-amd-amdhsa--gfx950"')
    a.raw(".text")
    a.raw(f".globl {KN}")
    a.raw(".p2align 8")
    a.raw(f".type {KN},@function")
    a.label(KN)
    if opt.cpf: a("s_getpc_b64 s[94:95]")
    a(f"s_cmp_ge_u32 s{sWG}, 256")
    a("s_cbranch_scc1 L_done")
    a("s_load_dwordx16 s[4:19], s[0:1], 0")
    if opt.prof:
        a(f"s_mem{'time' if opt.prof == 2 else 'realtime'} s[{sP}:{sP+1}]")
    if opt.prof:
        for i in range(1, 15): a(f"s_mov_b32 s{sPROF+i}, 0")
    if not opt.prof:
        a("s_memrealtime s[96:97]")
    a(f"v_lshrrev_b32 v{vT}, 6, v{vTID}")
    a(f"v_and_b32 v{vLANE}, 63, v{vTID}")
    a(f"v_readfirstlane_b32 s{sWAVE}, v{vT}")
    a(f"s_and_b32 s{sXCD}, s{sWG}, 7")
    a(f"s_lshr_b32 s{sJ}, s{sWG}, 3")
    if opt.p1 == 2:
        a(f"s_lshr_b32 s{sT1}, s{sXCD}, 1")
        a(f"s_and_b32 s{sT2}, s{sXCD}, 1")
        a(f"s_lshl_b32 s{sT2}, s{sT2}, 2")
        a(f"s_mul_i32 s{sT0}, s{sT1}, 7")
        a(f"s_lshr_b32 s{sFT}, s{sJ}, 2")
        a(f"s_add_u32 s{sFT}, s{sFT}, s{sT0}")
        a(f"s_and_b32 s{sT3}, s{sJ}, 3")
        a(f"s_add_u32 s{sDT1}, s{sT2}, s{sT3}")
        if opt.rot8: a(f"s_lshl_b32 s{sROT1}, s{sDT1}, 1")
        else: a(f"s_lshl_b32 s{sROT1}, s{sT3}, 2")
        a(f"s_cmp_eq_u32 s{sT1}, 3")
        a(f"s_cselect_b32 s{sJLIM}, 24, 28")
        a(f"s_lshl_b32 s{sT0}, s{sXCD}, 2")
        a(f"s_sub_u32 s{sT0}, s{sT0}, 28")
        a(f"s_lshl_b32 s{sT3}, s{sXCD}, 3")
        a(f"s_sub_u32 s{sT3}, s{sT3}, 48")
        a(f"s_cselect_b32 s{sIDLE}, s{sT0}, s{sT0}")
        a(f"s_cmp_ge_u32 s{sXCD}, 6")
        a(f"s_cselect_b32 s{sIDLE}, s{sT3}, s{sT0}")
        a(f"s_add_u32 s{sIDLE}, s{sIDLE}, s{sJ}")
    else:
        a(f"s_lshl_b32 s{sT0}, s{sXCD}, 2")
        a(f"s_mul_i32 s{sT1}, s{sXCD}, 3")
        a(f"s_add_u32 s{sT1}, s{sT1}, 3")
        a(f"s_cmp_lt_u32 s{sXCD}, 3")
        a(f"s_cselect_b32 s{sT0}, s{sT0}, s{sT1}")
        a(f"s_cselect_b32 s{sJLIM}, 32, 24")
        a(f"s_lshr_b32 s{sFT}, s{sJ}, 3")
        a(f"s_add_u32 s{sFT}, s{sFT}, s{sT0}")
        a(f"s_and_b32 s{sDT1}, s{sJ}, 7")
        a(f"s_lshl_b32 s{sROT1}, s{sDT1}, 1")
        a(f"s_lshl_b32 s{sIDLE}, s{sXCD}, 3")
        a(f"s_add_u32 s{sIDLE}, s{sIDLE}, s{sJ}")
        a(f"s_sub_u32 s{sIDLE}, s{sIDLE}, 48")
    if opt.rotg1 == 3:
        a(f"s_mul_i32 s{sT0}, s{sFT}, 11")
        a(f"s_lshr_b32 s{sT0}, s{sT0}, 5")
        a(f"s_mul_i32 s{sT0}, s{sT0}, 3")
        a(f"s_sub_u32 s{sT0}, s{sFT}, s{sT0}")
        a(f"s_mul_i32 s{sT0}, s{sT0}, 5")
        a(f"s_add_u32 s{sROT1}, s{sROT1}, s{sT0}")
        a(f"s_and_b32 s{sROT1}, s{sROT1}, 15")
    if opt.rotg1 == 2:
        a(f"s_and_b32 s{sT0}, s{sFT}, 1")
        a(f"s_lshl_b32 s{sT0}, s{sT0}, 3")
        a(f"s_add_u32 s{sROT1}, s{sROT1}, s{sT0}")
        a(f"s_and_b32 s{sROT1}, s{sROT1}, 15")
    if opt.rota1:
        a(f"s_mul_i32 s{sT0}, s{sFT}, {opt.rota1}")
        a(f"s_add_u32 s{sROT1}, s{sROT1}, s{sT0}")
        a(f"s_and_b32 s{sROT1}, s{sROT1}, 15")
    if opt.p2 == 2:
        a(f"s_lshr_b32 s{sT1}, s{sXCD}, 1")
        a(f"s_and_b32 s{sT2}, s{sXCD}, 1")
        a(f"s_lshl_b32 s{sT2}, s{sT2}, 2")
        a(f"s_lshr_b32 s{sT0}, s{sJ}, 2")
        a(f"s_lshl_b32 s{sST}, s{sT1}, 3")
        a(f"s_add_u32 s{sST}, s{sST}, s{sT0}")
        a(f"s_and_b32 s{sT3}, s{sJ}, 3")
        a(f"s_add_u32 s{sDT2}, s{sT2}, s{sT3}")
        if opt.rot8:
            a(f"s_mul_i32 s{sROT2}, s{sDT2}, 7")
            a(f"s_lshr_b32 s{sROT2}, s{sROT2}, 2")
        else:
            a(f"s_mul_i32 s{sROT2}, s{sT3}, 7")
            a(f"s_lshr_b32 s{sROT2}, s{sROT2}, 1")
    else:
        a(f"s_lshr_b32 s{sT0}, s{sJ}, 3")
        a(f"s_lshl_b32 s{sST}, s{sXCD}, 2")
        a(f"s_add_u32 s{sST}, s{sST}, s{sT0}")
        a(f"s_and_b32 s{sDT2}, s{sJ}, 7")
        a(f"s_mul_i32 s{sROT2}, s{sDT2}, 7")
        a(f"s_lshr_b32 s{sROT2}, s{sROT2}, 2")
    if opt.rotg2:
        if opt.rotg2 == 2:
            a(f"s_and_b32 s{sT0}, s{sST}, 1")
            a(f"s_mul_i32 s{sT0}, s{sT0}, 7")
        else:
            a(f"s_mul_i32 s{sT0}, s{sST}, 11")
            a(f"s_lshr_b32 s{sT0}, s{sT0}, 5")
            a(f"s_mul_i32 s{sT0}, s{sT0}, 3")
            a(f"s_sub_u32 s{sT0}, s{sST}, s{sT0}")
            a(f"s_mul_i32 s{sT0}, s{sT0}, 5")
        a(f"s_add_u32 s{sROT2}, s{sROT2}, s{sT0}")
        a(f"s_cmp_ge_u32 s{sROT2}, 14")
        a(f"s_cselect_b32 s{sT0}, 14, 0")
        a(f"s_sub_u32 s{sROT2}, s{sROT2}, s{sT0}")
    if opt.rota2:
        a(f"s_mul_i32 s{sT0}, s{sST}, {opt.rota2}")
        a(f"s_add_u32 s{sROT2}, s{sROT2}, s{sT0}")
        a(f"s_and_b32 s{sT0}, s{sROT2}, 0xff")
        a(f"s_mul_i32 s{sT0}, s{sROT2}, 18725")
        a(f"s_lshr_b32 s{sT0}, s{sT0}, 18")
        a(f"s_mul_i32 s{sT0}, s{sT0}, 14")
        a(f"s_sub_u32 s{sROT2}, s{sROT2}, s{sT0}")
    if not (opt.rot & 1): a(f"s_mov_b32 s{sROT1}, 0")
    if not (opt.rot & 2): a(f"s_mov_b32 s{sROT2}, 0")
    a(f"s_lshl_b32 s{sM0B}, s{sWAVE}, 15")
    a(f"s_lshl_b32 s{sUP}, s{sWAVE}, 13")
    a(f"s_add_u32 s{sUP}, s{sUP}, 131072")
    def tr_addr(base_sgpr):
        t0, t1, t2 = vX, vX + 1, vX + 2
        a(f"v_lshrrev_b32 v{t0}, 4, v{vLANE}")
        a(f"v_and_b32 v{t1}, 1, v{t0}")
        a(f"v_lshlrev_b32 v{t1}, 2, v{t1}")
        a(f"v_bfe_u32 v{t2}, v{vLANE}, 2, 2")
        a(f"v_add_u32 v{t1}, v{t1}, v{t2}")
        a(f"v_lshrrev_b32 v{t0}, 1, v{t0}")
        a(f"v_lshlrev_b32 v{t0}, 10, v{t0}")
        a(f"v_lshlrev_b32 v{t2}, 7, v{t1}")
        a(f"v_add_u32 v{t0}, v{t0}, v{t2}")
        a(f"v_and_b32 v{t2}, 3, v{vLANE}")
        a(f"v_lshlrev_b32 v{t2}, 3, v{t2}")
        a(f"v_add_u32 v{t0}, v{t0}, v{t2}")
        a(f"v_add_u32 v{t0}, s{base_sgpr}, v{t0}")
        a(f"v_lshrrev_b32 v{t1}, 1, v{t1}")
        for t in range(4):
            a(f"v_xor_b32 v{t2}, {t}, v{t1}")
            a(f"v_lshlrev_b32 v{t2}, 5, v{t2}")
            a(f"v_add_u32 v{vTR+t}, v{t0}, v{t2}")
    def w1_dma(i): dma_step(a, sW1, F * 2, sWB, sROT1, i, 16, sM0B, (i % 8) * 4096, f"w1_{i}", "nt" if i < opt.nta else opt.w1bits)
    def w1_stream(first, dp, hold=0):
        retired = 0
        def retire():
            nonlocal retired
            a.wait_vm(f"w1_{retired}")
            if retired: a("s_waitcnt lgkmcnt(0)")
            tr_step(a, vTR, (retired % 8) * 4096, retired)
            retired += 1
        for i in range(first, 16):
            while retired <= i - dp: retire()
            if i >= 8:
                while retired <= i - 8: retire()
                if retired == i - 7: a("s_waitcnt lgkmcnt(0)")
            w1_dma(i)
            if opt.epoll and i == opt.epoll:
                a(f"v_mul_u32_u24 v{vHP}, {opt.hline}, v{vLANE}")
                a(f"s_cmp_lg_u32 s{sWAVE}, {opt.pollw}")
                a("s_cbranch_scc1 L_noepoll")
                a(f"buffer_load_dwordx4 {vr(vPQ,4)}, v{vHP}, {srd(sF)}, 0 offen sc1")
                a.label("L_noepoll")
        while retired < 16 - hold: retire()
        def finish():
            while retired < 16: retire()
            a("s_waitcnt lgkmcnt(0)")
        if not hold: finish()
        return finish
    dma_addr(a, F * 2, sFT)
    a(f"s_mul_i32 s{sWB}, s{sWAVE}, {512*F*2}")
    a.c("LayerNorm: wave w normalises rows 32*ks + 16*(w>>1) + 4*q + 2*(w&1) + (0,1), 32 lanes per row")
    XR, XF, TM = 96, 108, 130
    a(f"s_lshr_b32 s{sT0}, s{sWG}, 2")
    a(f"s_and_b32 s{sT1}, s{sWG}, 3")
    a(f"s_lshl_b32 s{sT2}, s{sT0}, 5")
    a(f"s_lshr_b32 s{sT3}, s{sWAVE}, 1")
    a(f"s_lshl_b32 s{sT3}, s{sT3}, 4")
    a(f"s_add_u32 s{sT2}, s{sT2}, s{sT3}")
    a(f"s_lshl_b32 s{sT3}, s{sT1}, 2")
    a(f"s_add_u32 s{sT2}, s{sT2}, s{sT3}")
    a(f"s_and_b32 s{sT3}, s{sWAVE}, 1")
    a(f"s_lshl_b32 s{sT3}, s{sT3}, 1")
    a(f"s_add_u32 s{sT2}, s{sT2}, s{sT3}")
    a(f"s_mul_i32 s{sT2}, s{sT2}, 1280")
    a(f"v_lshrrev_b32 v{TM}, 5, v{vLANE}")
    a(f"v_and_b32 v{TM+1}, 31, v{vLANE}")
    a(f"v_lshlrev_b32 v{TM+1}, 3, v{TM+1}")
    a(f"v_mul_u32_u24 v{TM+2}, 1280, v{TM}")
    a(f"v_add_u32 v{TM+2}, v{TM+2}, v{TM+1}")
    a(f"v_mov_b32 v{vT}, 0")
    a("s_waitcnt lgkmcnt(0)")
    if opt.prof: a(f"s_mov_b32 s{sPROF}, s{sP}")
    make_srd(a, sD, 16, 256)
    a(f"s_cmp_lg_u32 s{sWG}, 0")
    a("s_cbranch_scc1 L_nononce")
    a(f"s_cmp_lg_u32 s{sWAVE}, 3")
    a("s_cbranch_scc1 L_nononce")
    a(f"s_or_b32 s{sNONCE}, s{sP if opt.prof else 96}, 1")
    a(f"v_mov_b32 v{vT2}, s{sNONCE}")
    a(f"s_mov_b64 s[{sP+2}:{sP+3}], exec")
    a("s_mov_b64 exec, 1")
    a(f"buffer_store_dword v{vT2}, v{vT}, {srd(sD)}, 0 offen sc1")
    a(f"s_mov_b64 exec, s[{sP+2}:{sP+3}]")
    a.label("L_nononce")
    make_srd(a, sX, 4, S * D * 2)
    for i in range(5):
        a.vmem(f"buffer_load_dwordx2 {vr(XR+2*i,2)}, v{TM+2}, {srd(sX)}, s{sT2} offen offset:{i*256} {opt.xbits}", "x")
    make_srd(a, sW1, 6, S * F * 2)
    if opt.xbar: a("s_barrier")
    a(f"s_cmp_ge_u32 s{sJ}, s{sJLIM}")
    a("s_cbranch_scc1 L_ln_now1")
    for i in range(opt.nearly): w1_dma(i)
    a.label("L_ln_now1")
    if opt.cpf:
        a(f"s_cmp_lg_u32 s{sWAVE}, 3")
        a("s_cbranch_scc1 L_nocpf")
        a(f"s_lshl_b32 s{sT3}, s{sJ}, 11")
        a(f"v_lshlrev_b32 v{vX}, 4, v{vLANE}")
        a(f"v_add_u32 v{vX}, s{sT3}, v{vX}")
        a(f"v_add_u32 v{vX+1}, 1024, v{vX}")
        for h in range(2):
            a(f"v_min_u32 v{vX+h}, L_codeend-{KN}-36, v{vX+h}")
            a(f"global_load_dwordx4 {vr(240+4*h,4)}, v{vX+h}, s[94:95]")
        a.label("L_nocpf")
    make_srd(a, sH, 18, H_BYTES, WS_H)
    make_srd(a, sF, 18, FLAG_BYTES, WS_FLAG)
    a(f"s_mul_i32 s{sSTEP}, s{sT0}, 40960")
    a(f"s_lshl_b32 s{sT1}, s{sT1}, 8")
    a(f"s_add_u32 s{sSTEP}, s{sSTEP}, s{sT1}")
    a(f"s_lshl_b32 s{sT3}, s{sWAVE}, 1")
    a(f"v_add_u32 v{TM+4}, s{sT3}, v{TM}")
    a(f"v_mul_u32_u24 v{TM+4}, {LN_ROW}, v{TM+4}")
    a(f"v_add_u32 v{TM+4}, v{TM+4}, v{TM+1}")
    a(f"v_add_u32 v{TM+4}, {LN_BASE}, v{TM+4}")
    a(f"s_mul_i32 s{sT3}, s{sWAVE}, 12")
    a(f"s_cmp_eq_u32 s{sWAVE}, 3")
    a(f"s_cselect_b32 s{sT3}, 32, s{sT3}")
    a(f"v_lshrrev_b32 v{TM+6}, 4, v{vLANE}")
    a(f"v_add_u32 v{TM+6}, s{sT3}, v{TM+6}")
    a(f"v_bfe_u32 v{TM+5}, v{vLANE}, 2, 2")
    a(f"v_mul_u32_u24 v{TM+5}, {LN_ROW}, v{TM+5}")
    a(f"v_lshlrev_b32 v{TM+7}, 5, v{TM+6}")
    a(f"v_add_u32 v{TM+5}, v{TM+5}, v{TM+7}")
    a(f"v_and_b32 v{TM+7}, 3, v{vLANE}")
    a(f"v_lshlrev_b32 v{TM+7}, 3, v{TM+7}")
    a(f"v_add_u32 v{TM+5}, v{TM+5}, v{TM+7}")
    a(f"v_add_u32 v{TM+5}, {LN_BASE}, v{TM+5}")
    a(f"v_lshlrev_b32 v{TM+6}, 10, v{TM+6}")
    a(f"v_and_b32 v{TM+7}, 15, v{vLANE}")
    a(f"v_lshlrev_b32 v{TM+7}, 4, v{TM+7}")
    a(f"v_add_u32 v{TM+6}, v{TM+6}, v{TM+7}")
    tr_addr(sM0B)
    a(f"s_mov_b32 s{sT0}, 0xffff0000")
    nc = 2 if opt.cpf else 0
    a(f"s_cmp_ge_u32 s{sJ}, s{sJLIM}")
    a("s_cbranch_scc1 L_ln_idle")
    a(f"s_cmp_eq_u32 s{sWAVE}, 3")
    a("s_cbranch_scc1 L_ln_w3")
    a(f"s_waitcnt vmcnt({4*opt.nearly})")
    a("s_branch L_ln_go")
    a.label("L_ln_w3")
    a(f"s_waitcnt vmcnt({4*opt.nearly + nc})")
    a("s_branch L_ln_go")
    a.label("L_ln_idle")
    a(f"s_cmp_eq_u32 s{sWAVE}, 3")
    a("s_cbranch_scc1 L_ln_idle3")
    a("s_waitcnt vmcnt(0)")
    a("s_branch L_ln_go")
    a.label("L_ln_idle3")
    a(f"s_waitcnt vmcnt({nc})")
    a.label("L_ln_go")
    stamp(a, opt, 1)
    nmid = [opt.nearly]
    def mid_step(tag):
        if nmid[0] < opt.nearly + opt.nmid:
            a(f"s_cmp_ge_u32 s{sJ}, s{sJLIM}")
            a(f"s_cbranch_scc1 L_mid_{tag}")
            w1_dma(nmid[0]); nmid[0] += 1
            a.label(f"L_mid_{tag}")
    if opt.unsafe & 2: a(f"buffer_load_dword v{vPOLL}, v{vT}, {srd(sD)}, 0 offen sc1")
    mid_step("a")
    for i in range(10):
        a(f"v_lshlrev_b32 v{XF+2*i}, 16, v{XR+i}")
        a(f"v_and_b32 v{XF+2*i+1}, s{sT0}, v{XR+i}")
    SM = TM + 8
    a(f"v_pk_add_f32 {vr(SM,2)}, {vr(XF,2)}, {vr(XF+4,2)}")
    a(f"v_pk_add_f32 {vr(SM+2,2)}, {vr(XF+2,2)}, {vr(XF+6,2)}")
    for i in range(4, 10):
        k = i % 2
        a(f"v_pk_add_f32 {vr(SM+2*k,2)}, {vr(SM+2*k,2)}, {vr(XF+2*i,2)}")
    def reduce_row(dst):
        a(f"v_pk_add_f32 {vr(SM,2)}, {vr(SM,2)}, {vr(SM+2,2)}")
        a(f"v_add_f32 v{dst}, v{SM}, v{SM+1}")
        for rot in (8, 4, 2, 1):
            a("s_nop 1")
            a(f"v_add_f32_dpp v{dst}, v{dst}, v{dst} row_ror:{rot} row_mask:0xf bank_mask:0xf")
        a(f"v_mov_b32 v{SM}, v{dst}")
        a("s_nop 1")
        a(f"v_permlane16_swap_b32 v{dst}, v{SM}")
        a("s_nop 1")
        a(f"v_add_f32 v{dst}, v{dst}, v{SM}")
    MN = TM + 12
    reduce_row(MN)
    mid_step("b")
    a(f"v_mul_f32 v{MN}, {f2h(1.0/640.0)}, v{MN}")
    a(f"v_mov_b32 v{MN+1}, v{MN}")
    for i in range(10):
        a(f"v_pk_add_f32 {vr(XF+2*i,2)}, {vr(XF+2*i,2)}, {vr(MN,2)} neg_lo:[0,1] neg_hi:[0,1]")
    for k in range(2):
        a(f"v_pk_mul_f32 {vr(SM+2*k,2)}, {vr(XF+2*k,2)}, {vr(XF+2*k,2)}")
    for i in range(2, 10):
        k = i % 2
        a(f"v_pk_fma_f32 {vr(SM+2*k,2)}, {vr(XF+2*i,2)}, {vr(XF+2*i,2)}, {vr(SM+2*k,2)}")
    reduce_row(MN)
    mid_step("c")
    a(f"v_mov_b32 v{MN+1}, {f2h(1e-5)}")
    a(f"v_fmac_f32 v{MN+1}, {f2h(1.0/640.0)}, v{MN}")
    a(f"v_rsq_f32 v{MN}, v{MN+1}")
    a("s_nop 0")
    a(f"v_mov_b32 v{MN+1}, v{MN}")
    for i in range(10):
        a(f"v_pk_mul_f32 {vr(XF+2*i,2)}, {vr(XF+2*i,2)}, {vr(MN,2)}")
    for i in range(10):
        a(f"v_cvt_pk_bf16_f32 v{XR+i}, v{XF+2*i}, v{XF+2*i+1}")
    for i in range(5):
        a(f"ds_write_b64 v{TM+4}, {vr(XR+2*i,2)} offset:{i*256}")
    a("s_waitcnt lgkmcnt(0)")
    if opt.unsafe & 2:
        a("s_waitcnt vmcnt(0)")
        a(f"v_readfirstlane_b32 s{sNONCE}, v{vPOLL}")
        nonce_spin(a, opt)
    a("s_barrier")
    for i in range(2):
        a(f"ds_read_b64_tr_b16 {vr(XF+4*i,2)}, v{TM+5} offset:{i*128}")
        a(f"ds_read_b64_tr_b16 {vr(XF+4*i+2,2)}, v{TM+5} offset:{i*128+4*LN_ROW}")
    a(f"s_cmp_ge_u32 s{sWAVE}, 2")
    a("s_cbranch_scc1 L_ln_two")
    a(f"ds_read_b64_tr_b16 {vr(XF+8,2)}, v{TM+5} offset:{2*128}")
    a(f"ds_read_b64_tr_b16 {vr(XF+10,2)}, v{TM+5} offset:{2*128+4*LN_ROW}")
    a("s_waitcnt lgkmcnt(0)")
    a(f"s_add_u32 s{sT0}, s{sSTEP}, {2*4096}")
    a(f"buffer_store_dwordx4 {vr(XF+8,4)}, v{TM+6}, {srd(sH)}, s{sT0} offen {opt.hbits}")
    a.label("L_ln_two")
    a("s_waitcnt lgkmcnt(0)")
    for i in range(2):
        a(f"s_add_u32 s{sT0}, s{sSTEP}, {i*4096}")
        a(f"buffer_store_dwordx4 {vr(XF+4*i,4)}, v{TM+6}, {srd(sH)}, s{sT0} offen {opt.hbits}")
    if not (opt.unsafe & 2): a(f"buffer_load_dword v{vPOLL}, v{vT}, {srd(sD)}, 0 offen sc1")
    stamp(a, opt, 2)
    if opt.unsafe & 2:
        a("s_barrier")
        a(f"s_cmp_lg_u32 s{sWAVE}, 0")
        a("s_cbranch_scc1 L_noflag0")
        a(f"s_lshl_b32 s{sT0}, s{sWG}, 2")
        flag_store(a, sT0)
        a.label("L_noflag0")
    a(f"s_cmp_ge_u32 s{sJ}, s{sJLIM}")
    a("s_cbranch_scc1 L_ln_idle2")
    ne = opt.nearly + opt.nmid
    a.vm = [f"w1_{i}" for i in range(ne)]
    for i in range(ne, ne + opt.npost): w1_dma(i)
    if not (opt.unsafe & 2): a(f"s_waitcnt vmcnt({4*opt.npost})")
    a("s_branch L_ln_go2")
    a.label("L_ln_idle2")
    if not (opt.unsafe & 2): a("s_waitcnt vmcnt(0)")
    a.label("L_ln_go2")
    if not (opt.unsafe & 2):
        a(f"v_readfirstlane_b32 s{sNONCE}, v{vPOLL}")
        nonce_spin(a, opt)
        a("s_barrier")
        a(f"s_cmp_lg_u32 s{sWAVE}, 0")
        a("s_cbranch_scc1 L_noflag")
        a(f"s_lshr_b32 s{sT0}, s{sWG}, 2")
        a(f"s_mul_i32 s{sT0}, s{sT0}, {opt.hline}")
        a(f"s_and_b32 s{sT1}, s{sWG}, 3")
        a(f"s_lshl_b32 s{sT1}, s{sT1}, 2")
        a(f"s_add_u32 s{sT0}, s{sT0}, s{sT1}")
        keep = list(a.vm)
        flag_store(a, sT0)
        a.vm = keep
        a.label("L_noflag")
    stamp(a, opt, 3)
    a(f"s_cmp_ge_u32 s{sJ}, s{sJLIM}")
    a("s_cbranch_scc1 L_nogemm1")
    w1_finish = w1_stream(opt.nearly + opt.nmid + opt.npost, opt.dp, opt.hold1)

    def common_setup(retr=True):
        make_srd(a, sH, 18, H_BYTES, WS_H)
        make_srd(a, sF, 18, FLAG_BYTES, WS_FLAG)
        make_srd(a, sB1, 8, F * 2)
        make_srd(a, sW2, 10, F * S * 2)
        make_srd(a, sB2, 12, S * 2)
        make_srd(a, sO, 14, S * D * 2)
        make_srd(a, sG, 18, G_BYTES, WS_G)
        a(f"v_lshrrev_b32 v{vT}, 4, v{vLANE}")
        a(f"v_lshlrev_b32 v{vT}, 3, v{vT}")
        a(f"s_and_b32 s{sT0}, s{sWAVE}, 1")
        a(f"s_lshl_b32 s{sT0}, s{sT0}, 6")
        a(f"s_lshl_b32 s{sT1}, s{sFT}, 7")
        a(f"s_add_u32 s{sT0}, s{sT0}, s{sT1}")
        a.vmem(f"buffer_load_dwordx2 {vr(vB1,2)}, v{vT}, {srd(sB1)}, s{sT0} offen", "b")
        a.vmem(f"buffer_load_dwordx2 {vr(vB1+2,2)}, v{vT}, {srd(sB1)}, s{sT0} offen offset:32", "b")
        a(f"v_and_b32 v{vT}, 15, v{vLANE}")
        a(f"v_lshlrev_b32 v{vT}, 1, v{vT}")
        a(f"s_lshl_b32 s{sT0}, s{sST}, 7")
        a(f"s_lshl_b32 s{sT1}, s{sWAVE}, 5")
        a(f"s_add_u32 s{sT0}, s{sT0}, s{sT1}")
        a.vmem(f"buffer_load_ushort v{vB2}, v{vT}, {srd(sB2)}, s{sT0} offen", "b")
        dma_addr(a, S * 2, sST)
        a(f"s_mul_i32 s{sWB}, s{sWAVE}, {448*S*2}")
        if retr: tr_addr(sM0B)
        a(f"s_sub_u32 s{sT0}, s{sUP}, s{sM0B}")
        for t in range(4):
            a(f"v_add_u32 v{vTRU+t}, s{sT0}, v{vTR+t}")
        a(f"v_lshlrev_b32 v{vL0}, 4, v{vLANE}")
        a(f"v_add_u32 v{vL1}, 65536, v{vL0}")
        a(f"v_add_u32 v{vL2}, 131072, v{vL0}")

    a.label("L_w1_ready")
    stamp(a, opt, 4)
    vm_keep = list(a.vm)
    common_setup(retr=False)
    a(f"s_mul_i32 s{sT0}, s{sDT1}, 5120")
    a(f"v_add_u32 v{vA}, s{sT0}, v{vL0}")
    a(f"v_add_u32 v{vA2}, 4096, v{vA}")
    a(f"s_cmp_lg_u32 s{sWAVE}, {opt.pollw}")
    a("s_cbranch_scc1 L_hpolled")
    if opt.epoll:
        a(f"s_waitcnt vmcnt({4*(15 - opt.epoll) + 3})")
        poll_check(a, 4, None, "L_hpolled")
    if opt.pipe & 1:
        a("s_waitcnt vmcnt(0)")
        poll_pipe(a, opt, vHP, None, opt.gap)
    else:
        poll(a, opt, vHP, 4, None, opt.sleeph, opt.preh, 1)
    a.label("L_hpolled")
    a.vm = vm_keep + ["b", "b", "b"]
    a("s_barrier")
    stamp(a, opt, 5)

    def a_loads(srdn, step, nsteps, s_rot):
        slot = step % NS
        step_off(a, sOFF, sSTEP, s_rot, step, nsteps, 40960)
        return [f"buffer_load_dwordx4 {vr(ring(slot,t),4)}, v{vA if t < 4 else vA2}, {srd(srdn)}, s{sOFF} offen offset:{(t*1024) if t < 4 else 0} {opt.abits}" for t in range(5)]

    def main_loop(srdn, nsteps, s_rot, tagp, mfma, stamp0, tail, nuni, pre=None):
        for st in range(opt.depth):
            for o, ins in enumerate(a_loads(srdn, st, nsteps, s_rot)): a.vmem(ins, f"{tagp}{st}_{o}")
        if pre: pre()
        for st in range(nuni):
            nx = st + opt.depth
            nxt = a_loads(srdn, nx, nsteps, s_rot) if nx < nsteps else None
            a.wait_vm(f"{tagp}{st}_4")
            if st == 0 and stamp0 is not None: stamp(a, opt, stamp0)
            for o in range(5):
                if nxt: a.vmem(nxt[o], f"{tagp}{nx}_{o}")
                for i in range(4): mfma(st, o, i, st % NS)
                if tail: tail(st, o)

    def tile_tail(nsteps, tagp, first, last, frag_of, mfma_tile, write_tile, extra):
        ic = [0]
        done_at = {}
        queue = []
        extra = list(extra)
        def emit(fn):
            fn(); ic[0] += 1
        def filler():
            if queue and ic[0] - done_at[queue[0]] >= 9:
                t = queue.pop(0); emit(lambda: write_tile(t)); return
            if extra: emit(extra.pop(0))
        tiles = list(first) + list(last)
        for i in range(0, len(tiles), 2):
            pair = tiles[i:i + 2]
            for t in pair:
                for st in (nsteps - 2, nsteps - 1): a.wait_vm(f"{tagp}{st}_{frag_of(t)}")
            for st in (nsteps - 2, nsteps - 1):
                for t in pair:
                    emit(lambda: mfma_tile(st, t))
                    if st == nsteps - 1:
                        done_at[t] = ic[0]
                        if t in first: queue.append(t)
                    filler()
        while extra: emit(extra.pop(0))
        while queue:
            while ic[0] - done_at[queue[0]] < 9: emit(lambda: a("s_nop 0"))
            t = queue.pop(0); emit(lambda: write_tile(t))

    a(f"s_mul_i32 s{sSTEP}, s{sWAVE}, {16*40960}")
    def mfma1(st, nt, mt, slot):
        c = "0" if st == 0 else vr(acc1(mt, nt), 4)
        a(f"v_mfma_f32_16x16x32_bf16 {vr(acc1(mt,nt),4)}, {ar(wfrag(st,mt),4)}, {vr(ring(slot,nt),4)}, {c}")
    parts13 = w2_dma_parts(a, 0) if opt.t13 else []
    def tail1(st, o):
        if st == 13 and parts13:
            if o == 0: parts13[0]()
            else: parts13[o]()
    main_loop(sH, 16, sROT1, "h", mfma1, 6, tail1, 14, w1_finish if opt.hold1 else None)

    a(f"s_mov_b32 s100, {f2h(C1)}"); a(f"s_mov_b32 s101, {f2h(C1)}")
    a(f"v_mov_b32 v{vC0}, {f2h(C0)}"); a(f"v_mov_b32 v{vC0+1}, {f2h(C0)}")
    def lds_ref(addr):
        if addr < 65536: return vL0, addr
        if addr < 131072: return vL1, addr - 65536
        return vL2, addr - 131072
    def owner1(p, nt): return p + (0 if nt < 3 else 2)
    units = [(p, nt) for p in range(2) for nt in range(5)]
    def red1_addr(src, u):
        k = [x for x in units if owner1(*x) != src].index(u)
        return src * 32768 + 24576 + k * 2048 if k < 4 else 131072 + src * 8192 + (k - 4) * 2048
    saved_vm = list(a.vm)
    for w in range(4):
        if w < 3:
            a(f"s_cmp_lg_u32 s{sWAVE}, {w}")
            a(f"s_cbranch_scc1 L_ep1_{w+1}")
        a.vm = list(saved_vm)
        nis = [1 if opt.t13 else 0]
        def more(n, limit):
            for _ in range(n):
                if nis[0] < limit:
                    w2_dma(a, nis[0]); nis[0] += 1
        tl = [(2 * p + hf, nt) for nt in range(5) for p in range(2) for hf in range(2)]
        first = [t for t in tl if owner1(t[0] // 2, t[1]) != w]
        last = [t for t in tl if owner1(t[0] // 2, t[1]) == w]
        def wr1(t):
            vb, off = lds_ref(red1_addr(w, (t[0] // 2, t[1])) + (t[0] & 1) * 1024)
            a(f"ds_write_b128 v{vb}, {vr(acc1(*t),4)} offset:{off}")
        extra = []
        for _ in range(opt.tt):
            extra += w2_dma_parts(a, nis[0]); nis[0] += 1
        tile_tail(16, "h", first, last, lambda t: t[1], lambda st, t: mfma1(st, t[1], t[0], st % NS), wr1, extra)
        stamp(a, opt, 7)
        more(opt.e1, 6)
        a("s_waitcnt lgkmcnt(0)")
        a("s_barrier")
        own_u = [u for u in units if owner1(*u) == w]
        RT = vRING
        n = 0
        for u in own_u:
            for src in range(4):
                if src == w: continue
                for hf in range(2):
                    vb, off = lds_ref(red1_addr(src, u) + hf * 1024)
                    a(f"ds_read_b128 {vr(RT + n*4, 4)}, v{vb} offset:{off}")
                    n += 1
        a.wait_vm("b")
        for i in range(4):
            a(f"v_lshlrev_b32 v{BI+2*i}, 16, v{vB1+i}")
            a(f"v_and_b32 v{BI+2*i+1}, 0xffff0000, v{vB1+i}")
        for u in own_u:
            p, nt = u
            for hf in range(2):
                r = acc1(2*p+hf, nt)
                a(f"v_pk_add_f32 {vr(r,2)}, {vr(r,2)}, {vr(BI+4*hf,2)}")
                a(f"v_pk_add_f32 {vr(r+2,2)}, {vr(r+2,2)}, {vr(BI+4*hf+2,2)}")
        n = 0
        tot = len(own_u) * 6
        for u in own_u:
            p, nt = u
            for si in range(3):
                for hf in range(2):
                    a(f"s_waitcnt lgkmcnt({min(15, tot - n - 1)})")
                    r = acc1(2*p+hf, nt)
                    a(f"v_pk_add_f32 {vr(r,2)}, {vr(r,2)}, {vr(RT+n*4,2)}")
                    a(f"v_pk_add_f32 {vr(r+2,2)}, {vr(r+2,2)}, {vr(RT+n*4+2,2)}")
                    n += 1
        a("s_barrier")
        regs = []
        for u in own_u:
            p, nt = u
            for hf in range(2):
                r = acc1(2*p+hf, nt)
                regs += [r, r + 2]
        more(opt.e2, 10)
        gelu_pairs(a, regs, RT, fill=lambda: more(opt.e3, 10))
        a(f"s_lshl_b32 s{sT0}, s{sFT}, 1")
        a(f"s_add_u32 s{sT0}, s{sT0}, {w & 1}")
        a(f"s_mul_i32 s{sT0}, s{sT0}, 40960")
        a(f"s_mul_i32 s{sT1}, s{sDT1}, 5120")
        a(f"s_add_u32 s{sT0}, s{sT0}, s{sT1}")
        for i, u in enumerate(own_u):
            p, nt = u
            o = RT + 64 + 4 * i
            r0, r1 = acc1(2*p, nt), acc1(2*p+1, nt)
            a(f"v_cvt_pk_bf16_f32 v{o}, v{r0}, v{r0+1}")
            a(f"v_cvt_pk_bf16_f32 v{o+1}, v{r0+2}, v{r0+3}")
            a(f"v_cvt_pk_bf16_f32 v{o+2}, v{r1}, v{r1+1}")
            a(f"v_cvt_pk_bf16_f32 v{o+3}, v{r1+2}, v{r1+3}")
            a(f"s_add_u32 s{sT1}, s{sT0}, {nt*1024}")
            a.vmem(f"buffer_store_dwordx4 {vr(o,4)}, v{vL0}, {srd(sG)}, s{sT1} offen {opt.gbits}", "g")
        stamp(a, opt, 8)
        def g_flag():
            a(f"s_lshl_b32 s{sT0}, s{sDT1}, 5")
            a(f"s_add_u32 s{sT0}, s{sT0}, s{sFT}")
            a(f"s_mul_i32 s{sT0}, s{sT0}, {opt.gstride}")
            a(f"s_add_u32 s{sT0}, s{sT0}, {FLAG_G + 4*w}")
            flag_store(a, sT0)
            stamp(a, opt, 9)
        if opt.unsafe & 1: g_flag()
        more(opt.nb, 10)
        a.wait_vm("w2_3")
        if nis[0] >= 4:
            for st in range(4):
                w2_tr(a, st)
                if st % 2 == 1: a("s_waitcnt lgkmcnt(0)")
        if nis[0] == 10 and opt.nb2:
            for st in range(10, 10 + opt.nb2): w2_dma(a, st)
            nis[0] += opt.nb2
        if not (opt.unsafe & 1):
            a.wait_vm("g")
            if opt.gwg:
                a("s_barrier")
                if w == 0:
                    keep = list(a.vm); g_flag(); a.vm = keep
            else:
                g_flag()
        assert nis[0] >= 4
        more(10, 10)
        more(4, 14)
        for st in range(4, 10):
            a.wait_vm(f"w2_{st}")
            w2_tr(a, st)
            if st % 2 == 1: a("s_waitcnt lgkmcnt(0)")
        a("s_branch L_pre2")
        if w < 3: a.label(f"L_ep1_{w+1}")

    a.label("L_nogemm1")
    a.vm = []
    common_setup()
    if False:
        a(f"s_lshl_b32 s{sT0}, s{sWAVE}, 6")
        a(f"v_add_u32 v{vX}, s{sT0}, v{vLANE}")
        a(f"v_mul_u32_u24 v{vX}, {opt.hstride}, v{vX}")
        poll(a, opt, vX, 2, None)
        if opt.idlewait > 1:
            a(f"s_sleep {opt.idlewait}")
    if opt.pf == 3:
        a(f"s_lshl_b32 s{sT0}, s{sIDLE}, 2")
        a(f"s_add_u32 s{sT0}, s{sT0}, s{sWAVE}")
        a(f"s_lshl_b32 s{sT0}, s{sT0}, 10")
        for k in range(44):
            o = vRING + (k % 16) * 4
            a.vmem(f"buffer_load_dwordx4 {vr(o,4)}, v{vL0}, {srd(sW2)}, s{sT0} offen {opt.pfbits}", f"pf{k}")
            a(f"s_add_u32 s{sT0}, s{sT0}, {160*1024}")
            if k >= opt.pfdepth: a.wait_vm(f"pf{k-opt.pfdepth}")
        a.wait_vm0()
    if opt.pf == 2:
        assert opt.p1 == 2 and opt.p2 == 1
        a(f"s_cmp_lt_u32 s{sJ}, 28")
        a("s_cbranch_scc1 L_nopf")
        a(f"s_sub_u32 s{sT0}, s{sJ}, 28")
        a(f"s_lshl_b32 s{sT0}, s{sT0}, 2")
        a(f"s_add_u32 s{sT0}, s{sT0}, s{sWAVE}")
        a(f"s_lshl_b32 s{sT0}, s{sT0}, 13")
        a(f"s_lshl_b32 s{sT1}, s{sXCD}, 9")
        a(f"s_add_u32 s{sT0}, s{sT0}, s{sT1}")
        a(f"v_lshrrev_b32 v{vX}, 5, v{vLANE}")
        a(f"v_lshlrev_b32 v{vX}, 12, v{vX}")
        a(f"v_and_b32 v{vX+1}, 31, v{vLANE}")
        a(f"v_lshlrev_b32 v{vX+1}, 4, v{vX+1}")
        a(f"v_add_u32 v{vX}, v{vX}, v{vX+1}")
        keep = list(a.vm)
        for k in range(54):
            o = vRING + (k % 16) * 4
            a.vmem(f"buffer_load_dwordx4 {vr(o,4)}, v{vX}, {srd(sW2)}, s{sT0} offen", f"pf{k}")
            a(f"s_add_u32 s{sT0}, s{sT0}, {16*8192}")
            if k >= opt.pfdepth: a.wait_vm(f"pf{k-opt.pfdepth}")
        a.wait_vm0()
        a.label("L_nopf")
        a.vm = keep
    for st in range(10): w2_dma(a, st)
    for st in range(4):
        a.wait_vm(f"w2_{st}")
        w2_tr(a, st)
        if st % 2 == 1: a("s_waitcnt lgkmcnt(0)")
    for st in range(10, 14): w2_dma(a, st)
    for st in range(4, 10):
        a.wait_vm(f"w2_{st}")
        w2_tr(a, st)
        if st % 2 == 1: a("s_waitcnt lgkmcnt(0)")

    a.label("L_pre2")
    a(f"s_mul_i32 s{sT0}, s{sDT2}, 5120")
    a(f"v_add_u32 v{vA}, s{sT0}, v{vL0}")
    a(f"v_add_u32 v{vA2}, 4096, v{vA}")
    def w2_finish():
        a.wait_vm("w2all")
        a("s_waitcnt lgkmcnt(0)")
        for st in range(10, 14):
            w2_tr(a, st)
            if st % 2 == 1: a("s_waitcnt lgkmcnt(0)")
    if not opt.hold2:
        a.vm = ["w2all"]
        w2_finish()
    stamp(a, opt, 10)
    if opt.onepoll & 2:
        a(f"s_cmp_lg_u32 s{sWAVE}, {opt.pollw}")
        a("s_cbranch_scc1 L_gpolled")
        a(f"s_lshl_b32 s{sT0}, s{sDT2}, 5")
        a(f"s_mul_i32 s{sT0}, s{sT0}, {opt.gstride}")
        a(f"s_add_u32 s{sT0}, s{sT0}, {FLAG_G}")
        a(f"v_mul_u32_u24 v{vX}, {opt.gstride}, v{vLANE}")
        a(f"v_add_u32 v{vX}, s{sT0}, v{vX}")
        a(f"s_mov_b32 s{sP+2}, 0x7ffffff")
        a(f"s_mov_b32 s{sP+3}, 0")
        if opt.pipe & 2:
            a("s_waitcnt vmcnt(0)")
            poll_pipe(a, opt, vX, sP + 2, opt.gap, 1 if opt.gwg else 4)
        else:
            poll(a, opt, vX, 1 if opt.gwg else 4, sP + 2, opt.sleep, opt.preg)
        a.label("L_gpolled")
        a("s_barrier")
    else:
        a(f"s_lshl_b32 s{sT0}, s{sDT2}, 5")
        a(f"s_mul_i32 s{sT1}, s{sWAVE}, 7")
        a(f"s_add_u32 s{sT0}, s{sT0}, s{sT1}")
        a(f"s_mul_i32 s{sT0}, s{sT0}, {opt.gstride}")
        a(f"s_add_u32 s{sT0}, s{sT0}, {FLAG_G}")
        a(f"v_mul_u32_u24 v{vX}, {opt.gstride}, v{vLANE}")
        a(f"v_add_u32 v{vX}, s{sT0}, v{vX}")
        a(f"s_cmp_eq_u32 s{sWAVE}, 3")
        a(f"s_cselect_b32 s{sP+2}, 0x3f, 0x7f")
        a(f"s_mov_b32 s{sP+3}, 0")
        poll(a, opt, vX, 4, sP + 2, opt.sleep, opt.preg)
    a.vm = ["w2all"] if opt.hold2 else []
    stamp(a, opt, 11)
    a(f"s_mul_i32 s{sSTEP}, s{sWAVE}, {14*40960}")
    def mfma2(st, mt, nt, slot):
        c = "0" if st == 0 else vr(acc2(mt, nt), 4)
        a(f"v_mfma_f32_16x16x32_bf16 {vr(acc2(mt,nt),4)}, {vr(ring(slot,mt),4)}, {ar(wfrag(st,nt),4)}, {c}")
    main_loop(sG, 14, sROT2, "g", mfma2, 12, None, 12, w2_finish if opt.hold2 else None)
    saved_vm2 = list(a.vm)
    a(f"v_and_b32 v{vT}, 15, v{vLANE}")
    a(f"s_lshl_b32 s{sT0}, s{sWAVE}, 4")
    a(f"v_add_u32 v{vT}, s{sT0}, v{vT}")
    a(f"v_mul_u32_u24 v{vA}, 1280, v{vT}")
    a(f"v_lshrrev_b32 v{vT}, 4, v{vLANE}")
    a(f"v_lshlrev_b32 v{vT}, 3, v{vT}")
    a(f"v_add_u32 v{vA}, v{vA}, v{vT}")
    a(f"s_mul_i32 s{sT0}, s{sST}, {64*1280}")
    a(f"s_mul_i32 s{sT1}, s{sDT2}, 160")
    a(f"s_add_u32 s{sOFF}, s{sT0}, s{sT1}")
    a(f"v_lshlrev_b32 v{vC0}, 16, v{vB2}")
    a(f"v_lshlrev_b32 v{vC0+1}, 16, v{vB2}")
    a(f"v_sub_u32 v{vA2}, v{vA}, v{vT}")
    a(f"v_bfe_u32 v{vT}, v{vLANE}, 4, 1")
    a(f"v_lshlrev_b32 v{vT}, 5, v{vT}")
    a(f"v_add_u32 v{vA2}, v{vA2}, v{vT}")
    a(f"v_bfe_u32 v{vT}, v{vLANE}, 5, 1")
    a(f"v_lshlrev_b32 v{vT}, 4, v{vT}")
    a(f"v_add_u32 v{vA2}, v{vA2}, v{vT}")
    def red2_addr(src, nt, mt):
        k = [x for x in range(4) if x != src].index(nt)
        return src * 32768 + (k * 5 + mt) * 1024
    for w in range(4):
        if w < 3:
            a(f"s_cmp_lg_u32 s{sWAVE}, {w}")
            a(f"s_cbranch_scc1 L_ep2_{w+1}")
        a.vm = list(saved_vm2)
        tl = [(mt, nt) for mt in range(5) for nt in range(4)]
        def wr2(t):
            vb, off = lds_ref(red2_addr(w, t[1], t[0]))
            a(f"ds_write_b128 v{vb}, {vr(acc2(*t),4)} offset:{off}")
        tile_tail(14, "g", [t for t in tl if t[1] != w], [t for t in tl if t[1] == w], lambda t: t[0],
                  lambda st, t: mfma2(st, t[0], t[1], st % NS), wr2, [])
        stamp(a, opt, 13)
        a("s_waitcnt lgkmcnt(0)")
        a("s_barrier")
        RT = vRING
        n = 0
        for mt in range(5):
            for src in range(4):
                if src == w: continue
                vb, off = lds_ref(red2_addr(src, w, mt))
                a(f"ds_read_b128 {vr(RT+n*4,4)}, v{vb} offset:{off}")
                n += 1
        n = 0
        for mt in range(5):
            r = acc2(mt, w)
            for si in range(3):
                a(f"s_waitcnt lgkmcnt({14 - n})")
                a(f"v_pk_add_f32 {vr(r,2)}, {vr(r,2)}, {vr(RT+n*4,2)}")
                a(f"v_pk_add_f32 {vr(r+2,2)}, {vr(r+2,2)}, {vr(RT+n*4+2,2)}")
                n += 1
            a(f"v_pk_add_f32 {vr(r,2)}, {vr(r,2)}, {vr(vC0,2)}")
            a(f"v_pk_add_f32 {vr(r+2,2)}, {vr(r+2,2)}, {vr(vC0,2)}")
            o = RT + 64 + 2 * mt
            a(f"v_cvt_pk_bf16_f32 v{o}, v{r}, v{r+1}")
            a(f"v_cvt_pk_bf16_f32 v{o+1}, v{r+2}, v{r+3}")
            if not opt.wide or mt == 4:
                a(f"buffer_store_dwordx2 {vr(o,2)}, v{vA}, {srd(sO)}, s{sOFF} offen offset:{mt*32} {opt.obits}")
            elif mt % 2 == 1:
                a("s_nop 1")
                a(f"v_permlane16_swap_b32 v{o-2}, v{o}")
                a(f"v_permlane16_swap_b32 v{o-1}, v{o+1}")
                a(f"buffer_store_dwordx4 {vr(o-2,4)}, v{vA2}, {srd(sO)}, s{sOFF} offen offset:{(mt-1)*32} {opt.obits}")
        a("s_branch L_fin")
        if w < 3: a.label(f"L_ep2_{w+1}")
    a.label("L_fin")
    if opt.probe >= 0:
        if opt.probe == 14:
            a("s_waitcnt vmcnt(0)")
            stamp(a, opt, 14)
        a(f"s_cmp_lg_u32 s{sWG}, {opt.probewg}")
        a("s_cbranch_scc1 L_done")
        a(f"s_cmp_lg_u32 s{sWAVE}, {opt.probew}")
        a("s_cbranch_scc1 L_done")
        ref = sNONCE if opt.probeabs else (sPROF + 2 if opt.probe0 >= 0 else 96)
        a(f"s_sub_u32 s{sT1}, s{sPROF+1}, s{ref}")
        if opt.probecyc: a(f"s_lshr_b32 s{sT1}, s{sT1}, 2")
        else: a(f"s_lshl_b32 s{sT1}, s{sT1}, 2")
        a(f"s_add_u32 s{sT1}, s{sT1}, 4000")
        a.label("L_probe")
        a(f"s_memrealtime s[{sP}:{sP+1}]")
        a("s_waitcnt lgkmcnt(0)")
        a(f"s_sub_u32 s{sT0}, s{sP}, s96")
        a(f"s_cmp_lt_u32 s{sT0}, s{sT1}")
        a("s_cbranch_scc1 L_probe")
    if opt.pad:
        a.label("L_pad")
        a(f"s_memrealtime s[{sP}:{sP+1}]")
        a("s_waitcnt lgkmcnt(0)")
        a(f"s_sub_u32 s{sT0}, s{sP}, s96")
        a(f"s_cmp_lt_u32 s{sT0}, {opt.pad}")
        a("s_cbranch_scc1 L_pad")
    if opt.prof:
        a("s_waitcnt vmcnt(0)")
        stamp(a, opt, 14)
        make_srd(a, sX, 18, 65536, WS_PROF)
        a(f"s_lshl_b32 s{sT0}, s{sWG}, 2")
        a(f"s_add_u32 s{sT0}, s{sT0}, s{sWAVE}")
        a(f"s_lshl_b32 s{sT0}, s{sT0}, 6")
        a(f"v_mov_b32 v{vT}, s{sT0}")
        a("s_mov_b64 exec, 1")
        for i in range(15):
            a(f"v_mov_b32 v100, s{sPROF+i}")
            a(f"buffer_store_dword v100, v{vT}, {srd(sX)}, 0 offen offset:{4*i}")
            a("s_nop 1")
        a("s_waitcnt vmcnt(0)")
    a.label("L_done")
    a("s_endpgm")
    a.label("L_codeend")
    a.raw('.section .rodata,"a"')
    a.raw(".p2align 6")
    a.raw(f".amdhsa_kernel {KN}")
    for l in ["next_free_vgpr 512", "next_free_sgpr 102", "accum_offset 256", "group_segment_fixed_size 0",
              "kernarg_size 64", "user_sgpr_count 2", "user_sgpr_kernarg_segment_ptr 1",
              "system_sgpr_workgroup_id_x 1", "float_denorm_mode_32 3"]:
        a.raw(f"  .amdhsa_{l}")
    a.raw(".end_amdhsa_kernel")
    return "\n".join(a.L) + "\n"

def parse(argv=None):
    ap = argparse.ArgumentParser()
    ap.add_argument("-o", default="standalone__mixer_token_mlp__prompt.s")
    ap.add_argument("--prof", type=int, default=0)
    ap.add_argument("--rot", type=int, default=3)
    ap.add_argument("--spin", type=int, default=20000)
    ap.add_argument("--sleep", type=int, default=8)
    ap.add_argument("--depth", type=int, default=3)
    ap.add_argument("--lnprof", type=int, default=0)
    ap.add_argument("--hbits", default="sc1")
    ap.add_argument("--pfwait", type=int, default=1)
    ap.add_argument("--hold", type=int, default=0)
    ap.add_argument("--probe", type=int, default=-1)
    ap.add_argument("--probe0", type=int, default=-1)
    ap.add_argument("--probecyc", type=int, default=0)
    ap.add_argument("--probeabs", type=int, default=0)
    ap.add_argument("--probewg", type=int, default=100)
    ap.add_argument("--probew", type=int, default=2)
    ap.add_argument("--rot8", type=int, default=1)
    ap.add_argument("--cpf", type=int, default=1)
    ap.add_argument("--cpfw", type=int, default=3)
    ap.add_argument("--wide", type=int, default=1)
    ap.add_argument("--idlewait", type=int, default=0)
    ap.add_argument("--sleeph", type=int, default=8)
    ap.add_argument("--preh", type=int, default=0)
    ap.add_argument("--preg", type=int, default=0)
    ap.add_argument("--onepoll", type=int, default=3)
    ap.add_argument("--pollw", type=int, default=3)
    ap.add_argument("--nta", type=int, default=0)
    ap.add_argument("--rotg1", type=int, default=0)
    ap.add_argument("--rotg2", type=int, default=0)
    ap.add_argument("--npost", type=int, default=3)
    ap.add_argument("--xbar", type=int, default=1)
    ap.add_argument("--hold1", type=int, default=4)
    ap.add_argument("--hold2", type=int, default=1)
    ap.add_argument("--nmid", type=int, default=0)
    ap.add_argument("--gbits", default="sc1")
    ap.add_argument("--fbits", default="sc1")
    ap.add_argument("--abits", default="sc1")
    ap.add_argument("--unsafe", type=int, default=0)
    ap.add_argument("--epoll", type=int, default=12)
    ap.add_argument("--pipe", type=int, default=1)
    ap.add_argument("--gap", type=int, default=2)
    ap.add_argument("--gwg", type=int, default=1)
    ap.add_argument("--hline", type=int, default=16)
    ap.add_argument("--t13", type=int, default=1)
    ap.add_argument("--tt", type=int, default=2)
    ap.add_argument("--e2", type=int, default=0)
    ap.add_argument("--e3", type=int, default=0)
    ap.add_argument("--nb2", type=int, default=0)
    ap.add_argument("--e1", type=int, default=1)
    ap.add_argument("--nb", type=int, default=2)
    ap.add_argument("--nearly", type=int, default=2)
    ap.add_argument("--dpl", type=int, default=5)
    ap.add_argument("--dp", type=int, default=4)
    ap.add_argument("--p1", type=int, default=1)
    ap.add_argument("--p2", type=int, default=1)
    ap.add_argument("--rota1", type=int, default=0)
    ap.add_argument("--rota2", type=int, default=0)
    ap.add_argument("--xbits", default="nt")
    ap.add_argument("--w1bits", default="")
    ap.add_argument("--w2bits", default="")
    ap.add_argument("--pfbits", default="")
    ap.add_argument("--pfdepth", type=int, default=8)
    ap.add_argument("--prio", type=int, default=3)
    ap.add_argument("--delay", type=int, default=0)
    ap.add_argument("--hstride", type=int, default=8)
    ap.add_argument("--gstride", type=int, default=256)
    ap.add_argument("--pf", type=int, default=0)
    ap.add_argument("--pad", type=int, default=0)
    ap.add_argument("--obits", default="sc0 sc1")
    return ap.parse_args(argv)

if __name__ == "__main__":
    opt = parse()
    open(opt.o, "w").write(gen(opt))
```

```python
import argparse, struct

S, D, F = 2048, 640, 1728
KN = "standalone__mixer_token_mlp__prompt_kernel"

WS_H = 0
H_BYTES = 64 * 40 * 1024
WS_G = 0x300000
G_BYTES = 54 * 40 * 1024
WS_FLAG = 0x600000
FLAG_H = 0
FLAG_G = 0x10000
FLAG_BYTES = 0x40000
WS_PROF = 0x700000

LDS_BYTES = 163840
LN_BASE = 131072
LN_ROW = 1344
LF_BASE = 141824
P0_BASE = [0, 49152, 98304, 122880]

sWG = 2
sX, sW1, sW2, sH, sG, sO, sF, sB1, sB2, sD = 20, 24, 28, 32, 36, 40, 44, 48, 52, 56
sWAVE, sXCD, sJ, sFT, sDT1, sST, sDT2, sNONCE = 60, 61, 62, 63, 64, 65, 66, 67
sT0, sT1, sT2, sT3, sT4, sT5 = 68, 69, 70, 71, 72, 73
sROT1, sROT2, sSTEP, sOFF = 74, 75, 76, 77
sM0B, sSPIN = 78, 79
sP = 80
sPROF = 84
sUP = 99
sJLIM, sIDLE = 100, 101
sWB = 3

vTID, vLANE = 0, 1
vTR = 2
vA, vA2, vDMA, vT2 = 6, 7, 8, 9
vB1 = 10
vB2, vT = 14, 15
vACC = 16
vRING = 96
vTRU = 196
vL0, vL1, vL2 = 200, 201, 202
vC0 = 204
BI = 206
vPOLL = 214
vX = 216
vHP = 226
vPQ = 228
vDM = 220

def srd(n): return f"s[{n}:{n+3}]"
def vr(n, c=1): return f"v{n}" if c == 1 else f"v[{n}:{n+c-1}]"
def ar(n, c=1): return f"a{n}" if c == 1 else f"a[{n}:{n+c-1}]"
def f2h(x): return "0x%08x" % struct.unpack("<I", struct.pack("<f", x))[0]
C0 = -2.0 * 0.7978845608028654 * 1.4426950408889634
C1 = C0 * 0.044715

class Asm:
    def __init__(self):
        self.L = []; self.vm = []; self.uid = 0
    def __call__(self, s): self.L.append("    " + s)
    def label(self, s): self.L.append(s + ":")
    def raw(self, s): self.L.append(s)
    def c(self, s): self.L.append("    ; " + s)
    def vmem(self, s, tag):
        self(s); self.vm.append(tag)
    def wait_vm(self, tag):
        hits = [i for i, t in enumerate(self.vm) if t == tag]
        if not hits: return
        n = len(self.vm) - 1 - hits[-1]
        self(f"s_waitcnt vmcnt({min(n, 63)})")
        self.vm = self.vm[hits[-1] + 1:]
    def wait_vm0(self):
        self("s_waitcnt vmcnt(0)"); self.vm = []
    def newlabel(self, p):
        self.uid += 1
        return f"L_{p}_{self.uid}"

def acc1(mt, nt): return vACC + (mt * 5 + nt) * 4
def acc2(mt, nt): return vACC + (mt * 4 + nt) * 4
def wfrag(step, t): return step * 16 + t * 4

def stamp(a, opt, idx, force=False):
    if opt.probe >= 0:
        ins = "s_memtime" if opt.probecyc else "s_memrealtime"
        if idx == opt.probe:
            a(f"{ins} s[{sP}:{sP+1}]")
            a("s_waitcnt lgkmcnt(0)")
            a(f"s_mov_b32 s{sPROF+1}, s{sP}")
        if idx == opt.probe0:
            a(f"{ins} s[{sP}:{sP+1}]")
            a("s_waitcnt lgkmcnt(0)")
            a(f"s_mov_b32 s{sPROF+2}, s{sP}")
        return
    if opt.prof == 4 and idx != 14: return
    if opt.lnprof and idx in (4, 5) and getattr(a, "ln_done", False): return
    if opt.prof:
        a(f"s_mem{'time' if opt.prof == 2 else 'realtime'} s[{sP}:{sP+1}]")
        a("s_waitcnt lgkmcnt(0)")
        a(f"s_mov_b32 s{sPROF+idx}, s{sP}")

def make_srd(a, n, lo, size, add=0):
    if add:
        a(f"s_add_u32 s{n}, s{lo}, {add}")
        a(f"s_addc_u32 s{n+1}, s{lo+1}, 0")
        a(f"s_and_b32 s{n+1}, s{n+1}, 0xffff")
    else:
        a(f"s_mov_b32 s{n}, s{lo}")
        a(f"s_and_b32 s{n+1}, s{lo+1}, 0xffff")
    a(f"s_mov_b32 s{n+2}, {size}")
    a(f"s_mov_b32 s{n+3}, 0x20000")

def nonce_spin(a, opt):
    lp = a.newlabel("nonce"); dn = a.newlabel("nonced")
    a(f"s_cmp_lg_u32 s{sNONCE}, 0")
    a(f"s_cbranch_scc1 {dn}")
    a(f"s_mov_b32 s{sSPIN}, 0")
    a(f"v_mov_b32 v{vT}, 0")
    a.label(lp)
    a(f"buffer_load_dword v{vT2}, v{vT}, {srd(sD)}, 0 offen sc1")
    a("s_waitcnt vmcnt(0)")
    a(f"v_readfirstlane_b32 s{sNONCE}, v{vT2}")
    a(f"s_add_u32 s{sSPIN}, s{sSPIN}, 1")
    a(f"s_cmp_lg_u32 s{sNONCE}, 0")
    a(f"s_cbranch_scc1 {dn}")
    a(f"s_cmp_lt_u32 s{sSPIN}, {opt.spin}")
    a(f"s_cbranch_scc1 {lp}")
    a.label(dn)

def lds_set(a, addr_sgpr_or_imm):
    a(f"v_mov_b32 v{vT}, {addr_sgpr_or_imm}")
    a(f"v_mov_b32 v{vT2}, 1")
    a(f"s_mov_b64 s[{sP}:{sP+1}], exec")
    a("s_mov_b64 exec, 1")
    a(f"ds_write_b32 v{vT}, v{vT2}")
    a(f"s_mov_b64 exec, s[{sP}:{sP+1}]")

def lds_spin(a, opt, addr):
    lp = a.newlabel("lspin"); dn = a.newlabel("lspun")
    a(f"v_mov_b32 v{vT}, {addr}")
    a(f"s_mov_b32 s{sSPIN}, 0")
    a.label(lp)
    a(f"ds_read_b32 v{vT2}, v{vT}")
    a("s_waitcnt lgkmcnt(0)")
    a(f"v_readfirstlane_b32 s{sP}, v{vT2}")
    a(f"s_add_u32 s{sSPIN}, s{sSPIN}, 1")
    a(f"s_cmp_lg_u32 s{sP}, 0")
    a(f"s_cbranch_scc1 {dn}")
    a(f"s_cmp_lt_u32 s{sSPIN}, {opt.spin * 8}")
    a(f"s_cbranch_scc1 {lp}")
    a.label(dn)

def dma_addr(a, stride, s_tile):
    a(f"v_lshrrev_b32 v{vT}, 3, v{vLANE}")
    a(f"v_lshrrev_b32 v{vT2}, 1, v{vT}")
    a(f"v_lshlrev_b32 v{vT2}, 1, v{vT2}")
    a(f"v_and_b32 v{vDM}, 7, v{vLANE}")
    a(f"v_xor_b32 v{vDM}, v{vDM}, v{vT2}")
    a(f"v_lshlrev_b32 v{vDM}, 4, v{vDM}")
    a(f"v_mul_u32_u24 v{vT}, {stride}, v{vT}")
    a(f"v_add_u32 v{vDM}, v{vDM}, v{vT}")
    a(f"s_lshl_b32 s{sT0}, s{s_tile}, 7")
    a(f"v_add_u32 v{vDM}, s{sT0}, v{vDM}")
    for b in range(1, 4):
        a(f"v_add_u32 v{vDM+b}, {b*(8*stride-1024)}, v{vDM}")

def step_off(a, dst, s_base, s_rot, i, nsteps, bytes_per_step):
    a(f"s_add_u32 s{sT4}, s{s_rot}, {i}")
    a(f"s_cmp_ge_u32 s{sT4}, {nsteps}")
    a(f"s_cselect_b32 s{dst}, {nsteps}, 0")
    a(f"s_sub_u32 s{sT4}, s{sT4}, s{dst}")
    a(f"s_mul_i32 s{sT4}, s{sT4}, {bytes_per_step}")
    a(f"s_add_u32 s{dst}, s{sT4}, s{s_base}")

def dma_step(a, srdn, stride, s_rowbase, s_rot, step, nsteps, s_lds, lds_off, tag, bits=""):
    a(f"s_add_u32 m0, s{s_lds}, {lds_off}")
    step_off(a, sOFF, s_rowbase, s_rot, step, nsteps, 32 * stride)
    for blk in range(4):
        a.vmem(f"buffer_load_dwordx4 v{vDM+blk}, {srd(srdn)}, s{sOFF} offen offset:{blk*1024} {bits} lds", tag)

def tr_step(a, vbase, off, step):
    for t in range(4):
        w = wfrag(step, t)
        a(f"ds_read_b64_tr_b16 {ar(w,2)}, v{vbase+t} offset:{off}")
        a(f"ds_read_b64_tr_b16 {ar(w+2,2)}, v{vbase+t} offset:{off+2048}")

def poll(a, opt, vaddr, nd, lanes, sleep=None, pre=0, nload=1):
    if sleep is None: sleep = opt.sleep
    if pre: a(f"s_sleep {pre}")
    lp = a.newlabel("poll"); dn = a.newlabel("polled")
    a(f"s_mov_b32 s{sSPIN}, 0")
    a.label(lp)
    ld = {1: "dword", 2: "dwordx2", 4: "dwordx4"}[nd]
    for k in range(nload):
        a(f"buffer_load_{ld} {vr(vPQ + 4*k, nd)}, v{vaddr}, {srd(sF)}, 0 offen offset:{k*1024} sc1")
    a("s_waitcnt vmcnt(0)")
    first = True
    for k in range(nload):
        for i in range(nd):
            if first:
                a(f"v_cmp_ne_u32 vcc, s{sNONCE}, v{vPQ+4*k+i}"); first = False
            else:
                a(f"v_cmp_ne_u32 s[{sP}:{sP+1}], s{sNONCE}, v{vPQ+4*k+i}")
                a(f"s_or_b64 vcc, vcc, s[{sP}:{sP+1}]")
    if lanes is not None:
        a(f"s_and_b64 vcc, vcc, s[{lanes}:{lanes+1}]")
    a(f"s_add_u32 s{sSPIN}, s{sSPIN}, 1")
    a("s_cmp_eq_u64 vcc, 0")
    a(f"s_cbranch_scc1 {dn}")
    if sleep: a(f"s_sleep {sleep}")
    a(f"s_cmp_lt_u32 s{sSPIN}, {opt.spin}")
    a(f"s_cbranch_scc1 {lp}")
    a.label(dn)
    a.vm = []

def poll_pipe(a, opt, vaddr, lanes, gap, nd=4):
    dn = a.newlabel("ppolled"); lp = a.newlabel("ppoll")
    regs = [vPQ, vPQ + 4, vPQ + 8]
    def probe(r): a(f"buffer_load_{'dwordx4' if nd == 4 else 'dword'} {vr(r,nd)}, v{vaddr}, {srd(sF)}, 0 offen sc1")
    a(f"s_mov_b32 s{sSPIN}, 0")
    probe(regs[0]); a(f"s_sleep {gap}"); probe(regs[1]); a(f"s_sleep {gap}"); probe(regs[2])
    a.label(lp)
    for r in regs:
        a("s_waitcnt vmcnt(2)")
        for i in range(nd):
            if i == 0: a(f"v_cmp_ne_u32 vcc, s{sNONCE}, v{r}")
            else:
                a(f"v_cmp_ne_u32 s[{sP}:{sP+1}], s{sNONCE}, v{r+i}")
                a(f"s_or_b64 vcc, vcc, s[{sP}:{sP+1}]")
        if lanes is not None: a(f"s_and_b64 vcc, vcc, s[{lanes}:{lanes+1}]")
        a("s_cmp_eq_u64 vcc, 0")
        a(f"s_cbranch_scc1 {dn}")
        a(f"s_sleep {gap}")
        probe(r)
    a(f"s_add_u32 s{sSPIN}, s{sSPIN}, 1")
    a(f"s_cmp_lt_u32 s{sSPIN}, {opt.spin}")
    a(f"s_cbranch_scc1 {lp}")
    a.label(dn)

def poll_check(a, nd, lanes, ok_label):
    for i in range(nd):
        if i == 0: a(f"v_cmp_ne_u32 vcc, s{sNONCE}, v{vPQ}")
        else:
            a(f"v_cmp_ne_u32 s[{sP}:{sP+1}], s{sNONCE}, v{vPQ+i}")
            a(f"s_or_b64 vcc, vcc, s[{sP}:{sP+1}]")
    if lanes is not None:
        a(f"s_and_b64 vcc, vcc, s[{lanes}:{lanes+1}]")
    a("s_cmp_eq_u64 vcc, 0")
    a(f"s_cbranch_scc1 {ok_label}")

def flag_store(a, s_index_bytes):
    a(f"v_mov_b32 v{vT}, s{s_index_bytes}")
    a(f"v_mov_b32 v{vT2}, s{sNONCE}")
    a(f"s_mov_b64 s[{sP}:{sP+1}], exec")
    a("s_mov_b64 exec, 1")
    a.vmem(f"buffer_store_dword v{vT2}, v{vT}, {srd(sF)}, 0 offen {OPT.fbits}", "flag")
    a(f"s_mov_b64 exec, s[{sP}:{sP+1}]")

def gelu_pairs(a, regs, tmp, fill=None):
    def each(fn):
        for i, r in enumerate(regs): fn(r, tmp + 2 * i)
    each(lambda r, t: a(f"v_pk_mul_f32 {vr(t,2)}, {vr(r,2)}, {vr(r,2)}"))
    each(lambda r, t: a(f"v_pk_fma_f32 {vr(t,2)}, {vr(t,2)}, s[100:101], {vr(vC0,2)}"))
    each(lambda r, t: a(f"v_pk_mul_f32 {vr(t,2)}, {vr(t,2)}, {vr(r,2)}"))
    if fill: fill()
    each(lambda r, t: (a(f"v_exp_f32 v{t}, v{t}"), a(f"v_exp_f32 v{t+1}, v{t+1}")))
    each(lambda r, t: a(f"v_pk_add_f32 {vr(t,2)}, {vr(t,2)}, 1.0 op_sel_hi:[1,0]"))
    each(lambda r, t: (a(f"v_rcp_f32 v{t}, v{t}"), a(f"v_rcp_f32 v{t+1}, v{t+1}")))
    a("s_nop 0")
    each(lambda r, t: a(f"v_pk_mul_f32 {vr(r,2)}, {vr(r,2)}, {vr(t,2)}"))

def w2_slot(step):
    if step < 8: return sM0B, step * 4096, vTR, step * 4096
    if step < 10: return sUP, (step - 8) * 4096, vTRU, (step - 8) * 4096
    return sM0B, (step - 10) * 4096, vTR, (step - 10) * 4096

def w2_dma(a, step):
    sb, off, _, _ = w2_slot(step)
    dma_step(a, sW2, S * 2, sWB, sROT2, step, 14, sb, off, f"w2_{step}", OPT.w2bits)

def w2_dma_parts(a, step):
    sb, off, _, _ = w2_slot(step)
    def setup():
        a(f"s_add_u32 m0, s{sb}, {off}")
        step_off(a, sOFF, sWB, sROT2, step, 14, 32 * S * 2)
    def one(blk):
        return lambda: a.vmem(f"buffer_load_dwordx4 v{vDM+blk}, {srd(sW2)}, s{sOFF} offen offset:{blk*1024} {OPT.w2bits} lds", f"w2_{step}")
    return [setup] + [one(b) for b in range(4)]

def w2_tr(a, step):
    _, _, vb, off = w2_slot(step)
    tr_step(a, vb, off, step)

def gen(opt):
    global OPT
    OPT = opt
    a = Asm()
    NS = opt.depth + 1
    def ring(slot, t): return vRING + slot * 20 + t * 4
    a.raw(f"; @launch grid=(256,1,1) block=(256,1,1) lds={LDS_BYTES}")
    a.raw('.amdgcn_target "amdgcn-amd-amdhsa--gfx950"')
    a.raw(".text")
    a.raw(f".globl {KN}")
    a.raw(".p2align 8")
    a.raw(f".type {KN},@function")
    a.label(KN)
    if opt.cpf: a("s_getpc_b64 s[94:95]")
    a(f"s_cmp_ge_u32 s{sWG}, 256")
    a("s_cbranch_scc1 L_done")
    a("s_load_dwordx16 s[4:19], s[0:1], 0")
    if opt.prof:
        a(f"s_mem{'time' if opt.prof == 2 else 'realtime'} s[{sP}:{sP+1}]")
    if opt.prof:
        for i in range(1, 15): a(f"s_mov_b32 s{sPROF+i}, 0")
    if not opt.prof:
        a("s_memrealtime s[96:97]")
    a(f"v_lshrrev_b32 v{vT}, 6, v{vTID}")
    a(f"v_and_b32 v{vLANE}, 63, v{vTID}")
    a(f"v_readfirstlane_b32 s{sWAVE}, v{vT}")
    a(f"s_and_b32 s{sXCD}, s{sWG}, 7")
    a(f"s_lshr_b32 s{sJ}, s{sWG}, 3")
    if opt.p1 == 2:
        a(f"s_lshr_b32 s{sT1}, s{sXCD}, 1")
        a(f"s_and_b32 s{sT2}, s{sXCD}, 1")
        a(f"s_lshl_b32 s{sT2}, s{sT2}, 2")
        a(f"s_mul_i32 s{sT0}, s{sT1}, 7")
        a(f"s_lshr_b32 s{sFT}, s{sJ}, 2")
        a(f"s_add_u32 s{sFT}, s{sFT}, s{sT0}")
        a(f"s_and_b32 s{sT3}, s{sJ}, 3")
        a(f"s_add_u32 s{sDT1}, s{sT2}, s{sT3}")
        if opt.rot8: a(f"s_lshl_b32 s{sROT1}, s{sDT1}, 1")
        else: a(f"s_lshl_b32 s{sROT1}, s{sT3}, 2")
        a(f"s_cmp_eq_u32 s{sT1}, 3")
        a(f"s_cselect_b32 s{sJLIM}, 24, 28")
        a(f"s_lshl_b32 s{sT0}, s{sXCD}, 2")
        a(f"s_sub_u32 s{sT0}, s{sT0}, 28")
        a(f"s_lshl_b32 s{sT3}, s{sXCD}, 3")
        a(f"s_sub_u32 s{sT3}, s{sT3}, 48")
        a(f"s_cselect_b32 s{sIDLE}, s{sT0}, s{sT0}")
        a(f"s_cmp_ge_u32 s{sXCD}, 6")
        a(f"s_cselect_b32 s{sIDLE}, s{sT3}, s{sT0}")
        a(f"s_add_u32 s{sIDLE}, s{sIDLE}, s{sJ}")
    else:
        a(f"s_lshl_b32 s{sT0}, s{sXCD}, 2")
        a(f"s_mul_i32 s{sT1}, s{sXCD}, 3")
        a(f"s_add_u32 s{sT1}, s{sT1}, 3")
        a(f"s_cmp_lt_u32 s{sXCD}, 3")
        a(f"s_cselect_b32 s{sT0}, s{sT0}, s{sT1}")
        a(f"s_cselect_b32 s{sJLIM}, 32, 24")
        a(f"s_lshr_b32 s{sFT}, s{sJ}, 3")
        a(f"s_add_u32 s{sFT}, s{sFT}, s{sT0}")
        a(f"s_and_b32 s{sDT1}, s{sJ}, 7")
        a(f"s_lshl_b32 s{sROT1}, s{sDT1}, 1")
        a(f"s_lshl_b32 s{sIDLE}, s{sXCD}, 3")
        a(f"s_add_u32 s{sIDLE}, s{sIDLE}, s{sJ}")
        a(f"s_sub_u32 s{sIDLE}, s{sIDLE}, 48")
    if opt.rotg1 == 3:
        a(f"s_mul_i32 s{sT0}, s{sFT}, 11")
        a(f"s_lshr_b32 s{sT0}, s{sT0}, 5")
        a(f"s_mul_i32 s{sT0}, s{sT0}, 3")
        a(f"s_sub_u32 s{sT0}, s{sFT}, s{sT0}")
        a(f"s_mul_i32 s{sT0}, s{sT0}, 5")
        a(f"s_add_u32 s{sROT1}, s{sROT1}, s{sT0}")
        a(f"s_and_b32 s{sROT1}, s{sROT1}, 15")
    if opt.rotg1 == 2:
        a(f"s_and_b32 s{sT0}, s{sFT}, 1")
        a(f"s_lshl_b32 s{sT0}, s{sT0}, 3")
        a(f"s_add_u32 s{sROT1}, s{sROT1}, s{sT0}")
        a(f"s_and_b32 s{sROT1}, s{sROT1}, 15")
    if opt.rota1:
        a(f"s_mul_i32 s{sT0}, s{sFT}, {opt.rota1}")
        a(f"s_add_u32 s{sROT1}, s{sROT1}, s{sT0}")
        a(f"s_and_b32 s{sROT1}, s{sROT1}, 15")
    if opt.p2 == 2:
        a(f"s_lshr_b32 s{sT1}, s{sXCD}, 1")
        a(f"s_and_b32 s{sT2}, s{sXCD}, 1")
        a(f"s_lshl_b32 s{sT2}, s{sT2}, 2")
        a(f"s_lshr_b32 s{sT0}, s{sJ}, 2")
        a(f"s_lshl_b32 s{sST}, s{sT1}, 3")
        a(f"s_add_u32 s{sST}, s{sST}, s{sT0}")
        a(f"s_and_b32 s{sT3}, s{sJ}, 3")
        a(f"s_add_u32 s{sDT2}, s{sT2}, s{sT3}")
        if opt.rot8:
            a(f"s_mul_i32 s{sROT2}, s{sDT2}, 7")
            a(f"s_lshr_b32 s{sROT2}, s{sROT2}, 2")
        else:
            a(f"s_mul_i32 s{sROT2}, s{sT3}, 7")
            a(f"s_lshr_b32 s{sROT2}, s{sROT2}, 1")
    else:
        a(f"s_lshr_b32 s{sT0}, s{sJ}, 3")
        a(f"s_lshl_b32 s{sST}, s{sXCD}, 2")
        a(f"s_add_u32 s{sST}, s{sST}, s{sT0}")
        a(f"s_and_b32 s{sDT2}, s{sJ}, 7")
        a(f"s_mul_i32 s{sROT2}, s{sDT2}, 7")
        a(f"s_lshr_b32 s{sROT2}, s{sROT2}, 2")
    if opt.rotg2:
        if opt.rotg2 == 2:
            a(f"s_and_b32 s{sT0}, s{sST}, 1")
            a(f"s_mul_i32 s{sT0}, s{sT0}, 7")
        else:
            a(f"s_mul_i32 s{sT0}, s{sST}, 11")
            a(f"s_lshr_b32 s{sT0}, s{sT0}, 5")
            a(f"s_mul_i32 s{sT0}, s{sT0}, 3")
            a(f"s_sub_u32 s{sT0}, s{sST}, s{sT0}")
            a(f"s_mul_i32 s{sT0}, s{sT0}, 5")
        a(f"s_add_u32 s{sROT2}, s{sROT2}, s{sT0}")
        a(f"s_cmp_ge_u32 s{sROT2}, 14")
        a(f"s_cselect_b32 s{sT0}, 14, 0")
        a(f"s_sub_u32 s{sROT2}, s{sROT2}, s{sT0}")
    if opt.rota2:
        a(f"s_mul_i32 s{sT0}, s{sST}, {opt.rota2}")
        a(f"s_add_u32 s{sROT2}, s{sROT2}, s{sT0}")
        a(f"s_and_b32 s{sT0}, s{sROT2}, 0xff")
        a(f"s_mul_i32 s{sT0}, s{sROT2}, 18725")
        a(f"s_lshr_b32 s{sT0}, s{sT0}, 18")
        a(f"s_mul_i32 s{sT0}, s{sT0}, 14")
        a(f"s_sub_u32 s{sROT2}, s{sROT2}, s{sT0}")
    if not (opt.rot & 1): a(f"s_mov_b32 s{sROT1}, 0")
    if not (opt.rot & 2): a(f"s_mov_b32 s{sROT2}, 0")
    a(f"s_lshl_b32 s{sM0B}, s{sWAVE}, 15")
    a(f"s_lshl_b32 s{sUP}, s{sWAVE}, 13")
    a(f"s_add_u32 s{sUP}, s{sUP}, 131072")
    def tr_addr(base_sgpr):
        t0, t1, t2 = vX, vX + 1, vX + 2
        a(f"v_lshrrev_b32 v{t0}, 4, v{vLANE}")
        a(f"v_and_b32 v{t1}, 1, v{t0}")
        a(f"v_lshlrev_b32 v{t1}, 2, v{t1}")
        a(f"v_bfe_u32 v{t2}, v{vLANE}, 2, 2")
        a(f"v_add_u32 v{t1}, v{t1}, v{t2}")
        a(f"v_lshrrev_b32 v{t0}, 1, v{t0}")
        a(f"v_lshlrev_b32 v{t0}, 10, v{t0}")
        a(f"v_lshlrev_b32 v{t2}, 7, v{t1}")
        a(f"v_add_u32 v{t0}, v{t0}, v{t2}")
        a(f"v_and_b32 v{t2}, 3, v{vLANE}")
        a(f"v_lshlrev_b32 v{t2}, 3, v{t2}")
        a(f"v_add_u32 v{t0}, v{t0}, v{t2}")
        a(f"v_add_u32 v{t0}, s{base_sgpr}, v{t0}")
        a(f"v_lshrrev_b32 v{t1}, 1, v{t1}")
        for t in range(4):
            a(f"v_xor_b32 v{t2}, {t}, v{t1}")
            a(f"v_lshlrev_b32 v{t2}, 5, v{t2}")
            a(f"v_add_u32 v{vTR+t}, v{t0}, v{t2}")
    def w1_dma(i): dma_step(a, sW1, F * 2, sWB, sROT1, i, 16, sM0B, (i % 8) * 4096, f"w1_{i}", "nt" if i < opt.nta else opt.w1bits)
    def w1_stream(first, dp, hold=0):
        retired = 0
        def retire():
            nonlocal retired
            a.wait_vm(f"w1_{retired}")
            if retired: a("s_waitcnt lgkmcnt(0)")
            tr_step(a, vTR, (retired % 8) * 4096, retired)
            retired += 1
        for i in range(first, 16):
            while retired <= i - dp: retire()
            if i >= 8:
                while retired <= i - 8: retire()
                if retired == i - 7: a("s_waitcnt lgkmcnt(0)")
            w1_dma(i)
            if opt.epoll and i == opt.epoll:
                a(f"v_mul_u32_u24 v{vHP}, {opt.hline}, v{vLANE}")
                a(f"s_cmp_lg_u32 s{sWAVE}, {opt.pollw}")
                a("s_cbranch_scc1 L_noepoll")
                a(f"buffer_load_dwordx4 {vr(vPQ,4)}, v{vHP}, {srd(sF)}, 0 offen sc1")
                a.label("L_noepoll")
        while retired < 16 - hold: retire()
        def finish():
            while retired < 16: retire()
            a("s_waitcnt lgkmcnt(0)")
        if not hold: finish()
        return finish
    dma_addr(a, F * 2, sFT)
    a(f"s_mul_i32 s{sWB}, s{sWAVE}, {512*F*2}")
    a.c("LayerNorm: wave w normalises rows 32*ks + 16*(w>>1) + 4*q + 2*(w&1) + (0,1), 32 lanes per row")
    XR, XF, TM = 96, 108, 130
    a(f"s_lshr_b32 s{sT0}, s{sWG}, 2")
    a(f"s_and_b32 s{sT1}, s{sWG}, 3")
    a(f"s_lshl_b32 s{sT2}, s{sT0}, 5")
    a(f"s_lshr_b32 s{sT3}, s{sWAVE}, 1")
    a(f"s_lshl_b32 s{sT3}, s{sT3}, 4")
    a(f"s_add_u32 s{sT2}, s{sT2}, s{sT3}")
    a(f"s_lshl_b32 s{sT3}, s{sT1}, 2")
    a(f"s_add_u32 s{sT2}, s{sT2}, s{sT3}")
    a(f"s_and_b32 s{sT3}, s{sWAVE}, 1")
    a(f"s_lshl_b32 s{sT3}, s{sT3}, 1")
    a(f"s_add_u32 s{sT2}, s{sT2}, s{sT3}")
    a(f"s_mul_i32 s{sT2}, s{sT2}, 1280")
    a(f"v_lshrrev_b32 v{TM}, 5, v{vLANE}")
    a(f"v_and_b32 v{TM+1}, 31, v{vLANE}")
    a(f"v_lshlrev_b32 v{TM+1}, 3, v{TM+1}")
    a(f"v_mul_u32_u24 v{TM+2}, 1280, v{TM}")
    a(f"v_add_u32 v{TM+2}, v{TM+2}, v{TM+1}")
    a(f"v_mov_b32 v{vT}, 0")
    a("s_waitcnt lgkmcnt(0)")
    if opt.prof: a(f"s_mov_b32 s{sPROF}, s{sP}")
    make_srd(a, sD, 16, 256)
    a(f"s_cmp_lg_u32 s{sWG}, 0")
    a("s_cbranch_scc1 L_nononce")
    a(f"s_cmp_lg_u32 s{sWAVE}, 3")
    a("s_cbranch_scc1 L_nononce")
    a(f"s_or_b32 s{sNONCE}, s{sP if opt.prof else 96}, 1")
    a(f"v_mov_b32 v{vT2}, s{sNONCE}")
    a(f"s_mov_b64 s[{sP+2}:{sP+3}], exec")
    a("s_mov_b64 exec, 1")
    a(f"buffer_store_dword v{vT2}, v{vT}, {srd(sD)}, 0 offen sc1")
    a(f"s_mov_b64 exec, s[{sP+2}:{sP+3}]")
    a.label("L_nononce")
    make_srd(a, sX, 4, S * D * 2)
    for i in range(5):
        a.vmem(f"buffer_load_dwordx2 {vr(XR+2*i,2)}, v{TM+2}, {srd(sX)}, s{sT2} offen offset:{i*256} {opt.xbits}", "x")
    make_srd(a, sW1, 6, S * F * 2)
    if opt.xbar: a("s_barrier")
    a(f"s_cmp_ge_u32 s{sJ}, s{sJLIM}")
    a("s_cbranch_scc1 L_ln_now1")
    for i in range(opt.nearly): w1_dma(i)
    a.label("L_ln_now1")
    if opt.cpf:
        a(f"s_cmp_lg_u32 s{sWAVE}, 3")
        a("s_cbranch_scc1 L_nocpf")
        a(f"s_lshl_b32 s{sT3}, s{sJ}, 11")
        a(f"v_lshlrev_b32 v{vX}, 4, v{vLANE}")
        a(f"v_add_u32 v{vX}, s{sT3}, v{vX}")
        a(f"v_add_u32 v{vX+1}, 1024, v{vX}")
        for h in range(2):
            a(f"v_min_u32 v{vX+h}, L_codeend-{KN}-36, v{vX+h}")
            a(f"global_load_dwordx4 {vr(240+4*h,4)}, v{vX+h}, s[94:95]")
        a.label("L_nocpf")
    make_srd(a, sH, 18, H_BYTES, WS_H)
    make_srd(a, sF, 18, FLAG_BYTES, WS_FLAG)
    a(f"s_mul_i32 s{sSTEP}, s{sT0}, 40960")
    a(f"s_lshl_b32 s{sT1}, s{sT1}, 8")
    a(f"s_add_u32 s{sSTEP}, s{sSTEP}, s{sT1}")
    a(f"s_lshl_b32 s{sT3}, s{sWAVE}, 1")
    a(f"v_add_u32 v{TM+4}, s{sT3}, v{TM}")
    a(f"v_mul_u32_u24 v{TM+4}, {LN_ROW}, v{TM+4}")
    a(f"v_add_u32 v{TM+4}, v{TM+4}, v{TM+1}")
    a(f"v_add_u32 v{TM+4}, {LN_BASE}, v{TM+4}")
    a(f"s_mul_i32 s{sT3}, s{sWAVE}, 12")
    a(f"s_cmp_eq_u32 s{sWAVE}, 3")
    a(f"s_cselect_b32 s{sT3}, 32, s{sT3}")
    a(f"v_lshrrev_b32 v{TM+6}, 4, v{vLANE}")
    a(f"v_add_u32 v{TM+6}, s{sT3}, v{TM+6}")
    a(f"v_bfe_u32 v{TM+5}, v{vLANE}, 2, 2")
    a(f"v_mul_u32_u24 v{TM+5}, {LN_ROW}, v{TM+5}")
    a(f"v_lshlrev_b32 v{TM+7}, 5, v{TM+6}")
    a(f"v_add_u32 v{TM+5}, v{TM+5}, v{TM+7}")
    a(f"v_and_b32 v{TM+7}, 3, v{vLANE}")
    a(f"v_lshlrev_b32 v{TM+7}, 3, v{TM+7}")
    a(f"v_add_u32 v{TM+5}, v{TM+5}, v{TM+7}")
    a(f"v_add_u32 v{TM+5}, {LN_BASE}, v{TM+5}")
    a(f"v_lshlrev_b32 v{TM+6}, 10, v{TM+6}")
    a(f"v_and_b32 v{TM+7}, 15, v{vLANE}")
    a(f"v_lshlrev_b32 v{TM+7}, 4, v{TM+7}")
    a(f"v_add_u32 v{TM+6}, v{TM+6}, v{TM+7}")
    tr_addr(sM0B)
    a(f"s_mov_b32 s{sT0}, 0xffff0000")
    nc = 2 if opt.cpf else 0
    a(f"s_cmp_ge_u32 s{sJ}, s{sJLIM}")
    a("s_cbranch_scc1 L_ln_idle")
    a(f"s_cmp_eq_u32 s{sWAVE}, 3")
    a("s_cbranch_scc1 L_ln_w3")
    a(f"s_waitcnt vmcnt({4*opt.nearly})")
    a("s_branch L_ln_go")
    a.label("L_ln_w3")
    a(f"s_waitcnt vmcnt({4*opt.nearly + nc})")
    a("s_branch L_ln_go")
    a.label("L_ln_idle")
    a(f"s_cmp_eq_u32 s{sWAVE}, 3")
    a("s_cbranch_scc1 L_ln_idle3")
    a("s_waitcnt vmcnt(0)")
    a("s_branch L_ln_go")
    a.label("L_ln_idle3")
    a(f"s_waitcnt vmcnt({nc})")
    a.label("L_ln_go")
    stamp(a, opt, 1)
    nmid = [opt.nearly]
    def mid_step(tag):
        if nmid[0] < opt.nearly + opt.nmid:
            a(f"s_cmp_ge_u32 s{sJ}, s{sJLIM}")
            a(f"s_cbranch_scc1 L_mid_{tag}")
            w1_dma(nmid[0]); nmid[0] += 1
            a.label(f"L_mid_{tag}")
    if opt.unsafe & 2: a(f"buffer_load_dword v{vPOLL}, v{vT}, {srd(sD)}, 0 offen sc1")
    mid_step("a")
    for i in range(10):
        a(f"v_lshlrev_b32 v{XF+2*i}, 16, v{XR+i}")
        a(f"v_and_b32 v{XF+2*i+1}, s{sT0}, v{XR+i}")
    SM = TM + 8
    a(f"v_pk_add_f32 {vr(SM,2)}, {vr(XF,2)}, {vr(XF+4,2)}")
    a(f"v_pk_add_f32 {vr(SM+2,2)}, {vr(XF+2,2)}, {vr(XF+6,2)}")
    for i in range(4, 10):
        k = i % 2
        a(f"v_pk_add_f32 {vr(SM+2*k,2)}, {vr(SM+2*k,2)}, {vr(XF+2*i,2)}")
    def reduce_row(dst):
        a(f"v_pk_add_f32 {vr(SM,2)}, {vr(SM,2)}, {vr(SM+2,2)}")
        a(f"v_add_f32 v{dst}, v{SM}, v{SM+1}")
        for rot in (8, 4, 2, 1):
            a("s_nop 1")
            a(f"v_add_f32_dpp v{dst}, v{dst}, v{dst} row_ror:{rot} row_mask:0xf bank_mask:0xf")
        a(f"v_mov_b32 v{SM}, v{dst}")
        a("s_nop 1")
        a(f"v_permlane16_swap_b32 v{dst}, v{SM}")
        a("s_nop 1")
        a(f"v_add_f32 v{dst}, v{dst}, v{SM}")
    MN = TM + 12
    reduce_row(MN)
    mid_step("b")
    a(f"v_mul_f32 v{MN}, {f2h(1.0/640.0)}, v{MN}")
    a(f"v_mov_b32 v{MN+1}, v{MN}")
    for i in range(10):
        a(f"v_pk_add_f32 {vr(XF+2*i,2)}, {vr(XF+2*i,2)}, {vr(MN,2)} neg_lo:[0,1] neg_hi:[0,1]")
    for k in range(2):
        a(f"v_pk_mul_f32 {vr(SM+2*k,2)}, {vr(XF+2*k,2)}, {vr(XF+2*k,2)}")
    for i in range(2, 10):
        k = i % 2
        a(f"v_pk_fma_f32 {vr(SM+2*k,2)}, {vr(XF+2*i,2)}, {vr(XF+2*i,2)}, {vr(SM+2*k,2)}")
    reduce_row(MN)
    mid_step("c")
    a(f"v_mov_b32 v{MN+1}, {f2h(1e-5)}")
    a(f"v_fmac_f32 v{MN+1}, {f2h(1.0/640.0)}, v{MN}")
    a(f"v_rsq_f32 v{MN}, v{MN+1}")
    a("s_nop 0")
    a(f"v_mov_b32 v{MN+1}, v{MN}")
    for i in range(10):
        a(f"v_pk_mul_f32 {vr(XF+2*i,2)}, {vr(XF+2*i,2)}, {vr(MN,2)}")
    for i in range(10):
        a(f"v_cvt_pk_bf16_f32 v{XR+i}, v{XF+2*i}, v{XF+2*i+1}")
    for i in range(5):
        a(f"ds_write_b64 v{TM+4}, {vr(XR+2*i,2)} offset:{i*256}")
    a("s_waitcnt lgkmcnt(0)")
    if opt.unsafe & 2:
        a("s_waitcnt vmcnt(0)")
        a(f"v_readfirstlane_b32 s{sNONCE}, v{vPOLL}")
        nonce_spin(a, opt)
    a("s_barrier")
    for i in range(2):
        a(f"ds_read_b64_tr_b16 {vr(XF+4*i,2)}, v{TM+5} offset:{i*128}")
        a(f"ds_read_b64_tr_b16 {vr(XF+4*i+2,2)}, v{TM+5} offset:{i*128+4*LN_ROW}")
    a(f"s_cmp_ge_u32 s{sWAVE}, 2")
    a("s_cbranch_scc1 L_ln_two")
    a(f"ds_read_b64_tr_b16 {vr(XF+8,2)}, v{TM+5} offset:{2*128}")
    a(f"ds_read_b64_tr_b16 {vr(XF+10,2)}, v{TM+5} offset:{2*128+4*LN_ROW}")
    a("s_waitcnt lgkmcnt(0)")
    a(f"s_add_u32 s{sT0}, s{sSTEP}, {2*4096}")
    a(f"buffer_store_dwordx4 {vr(XF+8,4)}, v{TM+6}, {srd(sH)}, s{sT0} offen {opt.hbits}")
    a.label("L_ln_two")
    a("s_waitcnt lgkmcnt(0)")
    for i in range(2):
        a(f"s_add_u32 s{sT0}, s{sSTEP}, {i*4096}")
        a(f"buffer_store_dwordx4 {vr(XF+4*i,4)}, v{TM+6}, {srd(sH)}, s{sT0} offen {opt.hbits}")
    if not (opt.unsafe & 2): a(f"buffer_load_dword v{vPOLL}, v{vT}, {srd(sD)}, 0 offen sc1")
    stamp(a, opt, 2)
    if opt.unsafe & 2:
        a("s_barrier")
        a(f"s_cmp_lg_u32 s{sWAVE}, 0")
        a("s_cbranch_scc1 L_noflag0")
        a(f"s_lshl_b32 s{sT0}, s{sWG}, 2")
        flag_store(a, sT0)
        a.label("L_noflag0")
    a(f"s_cmp_ge_u32 s{sJ}, s{sJLIM}")
    a("s_cbranch_scc1 L_ln_idle2")
    ne = opt.nearly + opt.nmid
    a.vm = [f"w1_{i}" for i in range(ne)]
    for i in range(ne, ne + opt.npost): w1_dma(i)
    if not (opt.unsafe & 2): a(f"s_waitcnt vmcnt({4*opt.npost})")
    a("s_branch L_ln_go2")
    a.label("L_ln_idle2")
    if not (opt.unsafe & 2): a("s_waitcnt vmcnt(0)")
    a.label("L_ln_go2")
    if not (opt.unsafe & 2):
        a(f"v_readfirstlane_b32 s{sNONCE}, v{vPOLL}")
        nonce_spin(a, opt)
        a("s_barrier")
        a(f"s_cmp_lg_u32 s{sWAVE}, 0")
        a("s_cbranch_scc1 L_noflag")
        a(f"s_lshr_b32 s{sT0}, s{sWG}, 2")
        a(f"s_mul_i32 s{sT0}, s{sT0}, {opt.hline}")
        a(f"s_and_b32 s{sT1}, s{sWG}, 3")
        a(f"s_lshl_b32 s{sT1}, s{sT1}, 2")
        a(f"s_add_u32 s{sT0}, s{sT0}, s{sT1}")
        keep = list(a.vm)
        flag_store(a, sT0)
        a.vm = keep
        a.label("L_noflag")
    stamp(a, opt, 3)
    a(f"s_cmp_ge_u32 s{sJ}, s{sJLIM}")
    a("s_cbranch_scc1 L_nogemm1")
    w1_finish = w1_stream(opt.nearly + opt.nmid + opt.npost, opt.dp, opt.hold1)

    def common_setup(retr=True):
        make_srd(a, sH, 18, H_BYTES, WS_H)
        make_srd(a, sF, 18, FLAG_BYTES, WS_FLAG)
        make_srd(a, sB1, 8, F * 2)
        make_srd(a, sW2, 10, F * S * 2)
        make_srd(a, sB2, 12, S * 2)
        make_srd(a, sO, 14, S * D * 2)
        make_srd(a, sG, 18, G_BYTES, WS_G)
        a(f"v_lshrrev_b32 v{vT}, 4, v{vLANE}")
        a(f"v_lshlrev_b32 v{vT}, 3, v{vT}")
        a(f"s_and_b32 s{sT0}, s{sWAVE}, 1")
        a(f"s_lshl_b32 s{sT0}, s{sT0}, 6")
        a(f"s_lshl_b32 s{sT1}, s{sFT}, 7")
        a(f"s_add_u32 s{sT0}, s{sT0}, s{sT1}")
        a.vmem(f"buffer_load_dwordx2 {vr(vB1,2)}, v{vT}, {srd(sB1)}, s{sT0} offen", "b")
        a.vmem(f"buffer_load_dwordx2 {vr(vB1+2,2)}, v{vT}, {srd(sB1)}, s{sT0} offen offset:32", "b")
        a(f"v_and_b32 v{vT}, 15, v{vLANE}")
        a(f"v_lshlrev_b32 v{vT}, 1, v{vT}")
        a(f"s_lshl_b32 s{sT0}, s{sST}, 7")
        a(f"s_lshl_b32 s{sT1}, s{sWAVE}, 5")
        a(f"s_add_u32 s{sT0}, s{sT0}, s{sT1}")
        a.vmem(f"buffer_load_ushort v{vB2}, v{vT}, {srd(sB2)}, s{sT0} offen", "b")
        dma_addr(a, S * 2, sST)
        a(f"s_mul_i32 s{sWB}, s{sWAVE}, {448*S*2}")
        if retr: tr_addr(sM0B)
        a(f"s_sub_u32 s{sT0}, s{sUP}, s{sM0B}")
        for t in range(4):
            a(f"v_add_u32 v{vTRU+t}, s{sT0}, v{vTR+t}")
        a(f"v_lshlrev_b32 v{vL0}, 4, v{vLANE}")
        a(f"v_add_u32 v{vL1}, 65536, v{vL0}")
        a(f"v_add_u32 v{vL2}, 131072, v{vL0}")

    a.label("L_w1_ready")
    stamp(a, opt, 4)
    vm_keep = list(a.vm)
    common_setup(retr=False)
    a(f"s_mul_i32 s{sT0}, s{sDT1}, 5120")
    a(f"v_add_u32 v{vA}, s{sT0}, v{vL0}")
    a(f"v_add_u32 v{vA2}, 4096, v{vA}")
    a(f"s_cmp_lg_u32 s{sWAVE}, {opt.pollw}")
    a("s_cbranch_scc1 L_hpolled")
    if opt.epoll:
        a(f"s_waitcnt vmcnt({4*(15 - opt.epoll) + 3})")
        poll_check(a, 4, None, "L_hpolled")
    if opt.pipe & 1:
        a("s_waitcnt vmcnt(0)")
        poll_pipe(a, opt, vHP, None, opt.gap)
    else:
        poll(a, opt, vHP, 4, None, opt.sleeph, opt.preh, 1)
    a.label("L_hpolled")
    a.vm = vm_keep + ["b", "b", "b"]
    a("s_barrier")
    stamp(a, opt, 5)

    def a_loads(srdn, step, nsteps, s_rot):
        slot = step % NS
        step_off(a, sOFF, sSTEP, s_rot, step, nsteps, 40960)
        return [f"buffer_load_dwordx4 {vr(ring(slot,t),4)}, v{vA if t < 4 else vA2}, {srd(srdn)}, s{sOFF} offen offset:{(t*1024) if t < 4 else 0} {opt.abits}" for t in range(5)]

    def main_loop(srdn, nsteps, s_rot, tagp, mfma, stamp0, tail, nuni, pre=None):
        for st in range(opt.depth):
            for o, ins in enumerate(a_loads(srdn, st, nsteps, s_rot)): a.vmem(ins, f"{tagp}{st}_{o}")
        if pre: pre()
        for st in range(nuni):
            nx = st + opt.depth
            nxt = a_loads(srdn, nx, nsteps, s_rot) if nx < nsteps else None
            a.wait_vm(f"{tagp}{st}_4")
            if st == 0 and stamp0 is not None: stamp(a, opt, stamp0)
            for o in range(5):
                if nxt: a.vmem(nxt[o], f"{tagp}{nx}_{o}")
                for i in range(4): mfma(st, o, i, st % NS)
                if tail: tail(st, o)

    def tile_tail(nsteps, tagp, first, last, frag_of, mfma_tile, write_tile, extra):
        ic = [0]
        done_at = {}
        queue = []
        extra = list(extra)
        def emit(fn):
            fn(); ic[0] += 1
        def filler():
            if queue and ic[0] - done_at[queue[0]] >= 9:
                t = queue.pop(0); emit(lambda: write_tile(t)); return
            if extra: emit(extra.pop(0))
        tiles = list(first) + list(last)
        for i in range(0, len(tiles), 2):
            pair = tiles[i:i + 2]
            for t in pair:
                for st in (nsteps - 2, nsteps - 1): a.wait_vm(f"{tagp}{st}_{frag_of(t)}")
            for st in (nsteps - 2, nsteps - 1):
                for t in pair:
                    emit(lambda: mfma_tile(st, t))
                    if st == nsteps - 1:
                        done_at[t] = ic[0]
                        if t in first: queue.append(t)
                    filler()
        while extra: emit(extra.pop(0))
        while queue:
            while ic[0] - done_at[queue[0]] < 9: emit(lambda: a("s_nop 0"))
            t = queue.pop(0); emit(lambda: write_tile(t))

    a(f"s_mul_i32 s{sSTEP}, s{sWAVE}, {16*40960}")
    def mfma1(st, nt, mt, slot):
        c = "0" if st == 0 else vr(acc1(mt, nt), 4)
        a(f"v_mfma_f32_16x16x32_bf16 {vr(acc1(mt,nt),4)}, {ar(wfrag(st,mt),4)}, {vr(ring(slot,nt),4)}, {c}")
    parts13 = w2_dma_parts(a, 0) if opt.t13 else []
    def tail1(st, o):
        if st == 13 and parts13:
            if o == 0: parts13[0]()
            else: parts13[o]()
    main_loop(sH, 16, sROT1, "h", mfma1, 6, tail1, 14, w1_finish if opt.hold1 else None)

    a(f"s_mov_b32 s100, {f2h(C1)}"); a(f"s_mov_b32 s101, {f2h(C1)}")
    a(f"v_mov_b32 v{vC0}, {f2h(C0)}"); a(f"v_mov_b32 v{vC0+1}, {f2h(C0)}")
    def lds_ref(addr):
        if addr < 65536: return vL0, addr
        if addr < 131072: return vL1, addr - 65536
        return vL2, addr - 131072
    def owner1(p, nt): return p + (0 if nt < 3 else 2)
    units = [(p, nt) for p in range(2) for nt in range(5)]
    def red1_addr(src, u):
        k = [x for x in units if owner1(*x) != src].index(u)
        return src * 32768 + 24576 + k * 2048 if k < 4 else 131072 + src * 8192 + (k - 4) * 2048
    saved_vm = list(a.vm)
    for w in range(4):
        if w < 3:
            a(f"s_cmp_lg_u32 s{sWAVE}, {w}")
            a(f"s_cbranch_scc1 L_ep1_{w+1}")
        a.vm = list(saved_vm)
        nis = [1 if opt.t13 else 0]
        def more(n, limit):
            for _ in range(n):
                if nis[0] < limit:
                    w2_dma(a, nis[0]); nis[0] += 1
        tl = [(2 * p + hf, nt) for nt in range(5) for p in range(2) for hf in range(2)]
        first = [t for t in tl if owner1(t[0] // 2, t[1]) != w]
        last = [t for t in tl if owner1(t[0] // 2, t[1]) == w]
        def wr1(t):
            vb, off = lds_ref(red1_addr(w, (t[0] // 2, t[1])) + (t[0] & 1) * 1024)
            a(f"ds_write_b128 v{vb}, {vr(acc1(*t),4)} offset:{off}")
        extra = []
        for _ in range(opt.tt):
            extra += w2_dma_parts(a, nis[0]); nis[0] += 1
        tile_tail(16, "h", first, last, lambda t: t[1], lambda st, t: mfma1(st, t[1], t[0], st % NS), wr1, extra)
        stamp(a, opt, 7)
        more(opt.e1, 6)
        a("s_waitcnt lgkmcnt(0)")
        a("s_barrier")
        own_u = [u for u in units if owner1(*u) == w]
        RT = vRING
        n = 0
        for u in own_u:
            for src in range(4):
                if src == w: continue
                for hf in range(2):
                    vb, off = lds_ref(red1_addr(src, u) + hf * 1024)
                    a(f"ds_read_b128 {vr(RT + n*4, 4)}, v{vb} offset:{off}")
                    n += 1
        a.wait_vm("b")
        for i in range(4):
            a(f"v_lshlrev_b32 v{BI+2*i}, 16, v{vB1+i}")
            a(f"v_and_b32 v{BI+2*i+1}, 0xffff0000, v{vB1+i}")
        for u in own_u:
            p, nt = u
            for hf in range(2):
                r = acc1(2*p+hf, nt)
                a(f"v_pk_add_f32 {vr(r,2)}, {vr(r,2)}, {vr(BI+4*hf,2)}")
                a(f"v_pk_add_f32 {vr(r+2,2)}, {vr(r+2,2)}, {vr(BI+4*hf+2,2)}")
        n = 0
        tot = len(own_u) * 6
        for u in own_u:
            p, nt = u
            for si in range(3):
                for hf in range(2):
                    a(f"s_waitcnt lgkmcnt({min(15, tot - n - 1)})")
                    r = acc1(2*p+hf, nt)
                    a(f"v_pk_add_f32 {vr(r,2)}, {vr(r,2)}, {vr(RT+n*4,2)}")
                    a(f"v_pk_add_f32 {vr(r+2,2)}, {vr(r+2,2)}, {vr(RT+n*4+2,2)}")
                    n += 1
        a("s_barrier")
        regs = []
        for u in own_u:
            p, nt = u
            for hf in range(2):
                r = acc1(2*p+hf, nt)
                regs += [r, r + 2]
        more(opt.e2, 10)
        gelu_pairs(a, regs, RT, fill=lambda: more(opt.e3, 10))
        a(f"s_lshl_b32 s{sT0}, s{sFT}, 1")
        a(f"s_add_u32 s{sT0}, s{sT0}, {w & 1}")
        a(f"s_mul_i32 s{sT0}, s{sT0}, 40960")
        a(f"s_mul_i32 s{sT1}, s{sDT1}, 5120")
        a(f"s_add_u32 s{sT0}, s{sT0}, s{sT1}")
        for i, u in enumerate(own_u):
            p, nt = u
            o = RT + 64 + 4 * i
            r0, r1 = acc1(2*p, nt), acc1(2*p+1, nt)
            a(f"v_cvt_pk_bf16_f32 v{o}, v{r0}, v{r0+1}")
            a(f"v_cvt_pk_bf16_f32 v{o+1}, v{r0+2}, v{r0+3}")
            a(f"v_cvt_pk_bf16_f32 v{o+2}, v{r1}, v{r1+1}")
            a(f"v_cvt_pk_bf16_f32 v{o+3}, v{r1+2}, v{r1+3}")
            a(f"s_add_u32 s{sT1}, s{sT0}, {nt*1024}")
            a.vmem(f"buffer_store_dwordx4 {vr(o,4)}, v{vL0}, {srd(sG)}, s{sT1} offen {opt.gbits}", "g")
        stamp(a, opt, 8)
        def g_flag():
            a(f"s_lshl_b32 s{sT0}, s{sDT1}, 5")
            a(f"s_add_u32 s{sT0}, s{sT0}, s{sFT}")
            a(f"s_mul_i32 s{sT0}, s{sT0}, {opt.gstride}")
            a(f"s_add_u32 s{sT0}, s{sT0}, {FLAG_G + 4*w}")
            flag_store(a, sT0)
            stamp(a, opt, 9)
        if opt.unsafe & 1: g_flag()
        more(opt.nb, 10)
        a.wait_vm("w2_3")
        if nis[0] >= 4:
            for st in range(4):
                w2_tr(a, st)
                if st % 2 == 1: a("s_waitcnt lgkmcnt(0)")
        if nis[0] == 10 and opt.nb2:
            for st in range(10, 10 + opt.nb2): w2_dma(a, st)
            nis[0] += opt.nb2
        if not (opt.unsafe & 1):
            a.wait_vm("g")
            if opt.gwg:
                a("s_barrier")
                if w == 0:
                    keep = list(a.vm); g_flag(); a.vm = keep
            else:
                g_flag()
        assert nis[0] >= 4
        more(10, 10)
        more(4, 14)
        for st in range(4, 10):
            a.wait_vm(f"w2_{st}")
            w2_tr(a, st)
            if st % 2 == 1: a("s_waitcnt lgkmcnt(0)")
        a("s_branch L_pre2")
        if w < 3: a.label(f"L_ep1_{w+1}")

    a.label("L_nogemm1")
    a.vm = []
    common_setup()
    if False:
        a(f"s_lshl_b32 s{sT0}, s{sWAVE}, 6")
        a(f"v_add_u32 v{vX}, s{sT0}, v{vLANE}")
        a(f"v_mul_u32_u24 v{vX}, {opt.hstride}, v{vX}")
        poll(a, opt, vX, 2, None)
        if opt.idlewait > 1:
            a(f"s_sleep {opt.idlewait}")
    if opt.pf == 3:
        a(f"s_lshl_b32 s{sT0}, s{sIDLE}, 2")
        a(f"s_add_u32 s{sT0}, s{sT0}, s{sWAVE}")
        a(f"s_lshl_b32 s{sT0}, s{sT0}, 10")
        for k in range(44):
            o = vRING + (k % 16) * 4
            a.vmem(f"buffer_load_dwordx4 {vr(o,4)}, v{vL0}, {srd(sW2)}, s{sT0} offen {opt.pfbits}", f"pf{k}")
            a(f"s_add_u32 s{sT0}, s{sT0}, {160*1024}")
            if k >= opt.pfdepth: a.wait_vm(f"pf{k-opt.pfdepth}")
        a.wait_vm0()
    if opt.pf == 2:
        assert opt.p1 == 2 and opt.p2 == 1
        a(f"s_cmp_lt_u32 s{sJ}, 28")
        a("s_cbranch_scc1 L_nopf")
        a(f"s_sub_u32 s{sT0}, s{sJ}, 28")
        a(f"s_lshl_b32 s{sT0}, s{sT0}, 2")
        a(f"s_add_u32 s{sT0}, s{sT0}, s{sWAVE}")
        a(f"s_lshl_b32 s{sT0}, s{sT0}, 13")
        a(f"s_lshl_b32 s{sT1}, s{sXCD}, 9")
        a(f"s_add_u32 s{sT0}, s{sT0}, s{sT1}")
        a(f"v_lshrrev_b32 v{vX}, 5, v{vLANE}")
        a(f"v_lshlrev_b32 v{vX}, 12, v{vX}")
        a(f"v_and_b32 v{vX+1}, 31, v{vLANE}")
        a(f"v_lshlrev_b32 v{vX+1}, 4, v{vX+1}")
        a(f"v_add_u32 v{vX}, v{vX}, v{vX+1}")
        keep = list(a.vm)
        for k in range(54):
            o = vRING + (k % 16) * 4
            a.vmem(f"buffer_load_dwordx4 {vr(o,4)}, v{vX}, {srd(sW2)}, s{sT0} offen", f"pf{k}")
            a(f"s_add_u32 s{sT0}, s{sT0}, {16*8192}")
            if k >= opt.pfdepth: a.wait_vm(f"pf{k-opt.pfdepth}")
        a.wait_vm0()
        a.label("L_nopf")
        a.vm = keep
    for st in range(10): w2_dma(a, st)
    for st in range(4):
        a.wait_vm(f"w2_{st}")
        w2_tr(a, st)
        if st % 2 == 1: a("s_waitcnt lgkmcnt(0)")
    for st in range(10, 14): w2_dma(a, st)
    for st in range(4, 10):
        a.wait_vm(f"w2_{st}")
        w2_tr(a, st)
        if st % 2 == 1: a("s_waitcnt lgkmcnt(0)")

    if opt.idle1:
        a("s_waitcnt vmcnt(0)")
        a(f"s_cmp_lg_u32 s{sWAVE}, {opt.pollw}")
        a("s_cbranch_scc1 L_idle1")
        a(f"s_lshl_b32 s{sT0}, s{sDT2}, 5")
        a(f"s_add_u32 s{sT0}, s{sT0}, {opt.idle1ft}")
        a(f"s_mul_i32 s{sT0}, s{sT0}, {opt.gstride}")
        a(f"s_add_u32 s{sT0}, s{sT0}, {FLAG_G}")
        a(f"v_mov_b32 v{vX}, s{sT0}")
        poll(a, opt, vX, 1, None, opt.idle1)
        a.label("L_idle1")
    a.label("L_pre2")
    a(f"s_mul_i32 s{sT0}, s{sDT2}, 5120")
    a(f"v_add_u32 v{vA}, s{sT0}, v{vL0}")
    a(f"v_add_u32 v{vA2}, 4096, v{vA}")
    def w2_finish():
        a.wait_vm("w2all")
        a("s_waitcnt lgkmcnt(0)")
        for st in range(10, 14):
            w2_tr(a, st)
            if st % 2 == 1: a("s_waitcnt lgkmcnt(0)")
    if not opt.hold2:
        a.vm = ["w2all"]
        w2_finish()
    stamp(a, opt, 10)
    if opt.onepoll & 2:
        a(f"s_cmp_lg_u32 s{sWAVE}, {opt.pollw}")
        a("s_cbranch_scc1 L_gpolled")
        a(f"s_lshl_b32 s{sT0}, s{sDT2}, 5")
        a(f"s_mul_i32 s{sT0}, s{sT0}, {opt.gstride}")
        a(f"s_add_u32 s{sT0}, s{sT0}, {FLAG_G}")
        a(f"v_mul_u32_u24 v{vX}, {opt.gstride}, v{vLANE}")
        a(f"v_add_u32 v{vX}, s{sT0}, v{vX}")
        a(f"s_mov_b32 s{sP+2}, 0x7ffffff")
        a(f"s_mov_b32 s{sP+3}, 0")
        if opt.pipe & 2:
            a("s_waitcnt vmcnt(0)")
            poll_pipe(a, opt, vX, sP + 2, opt.gap, 1 if opt.gwg else 4)
        else:
            poll(a, opt, vX, 1 if opt.gwg else 4, sP + 2, opt.sleep, opt.preg)
        a.label("L_gpolled")
        a("s_barrier")
    else:
        a(f"s_lshl_b32 s{sT0}, s{sDT2}, 5")
        a(f"s_mul_i32 s{sT1}, s{sWAVE}, 7")
        a(f"s_add_u32 s{sT0}, s{sT0}, s{sT1}")
        a(f"s_mul_i32 s{sT0}, s{sT0}, {opt.gstride}")
        a(f"s_add_u32 s{sT0}, s{sT0}, {FLAG_G}")
        a(f"v_mul_u32_u24 v{vX}, {opt.gstride}, v{vLANE}")
        a(f"v_add_u32 v{vX}, s{sT0}, v{vX}")
        a(f"s_cmp_eq_u32 s{sWAVE}, 3")
        a(f"s_cselect_b32 s{sP+2}, 0x3f, 0x7f")
        a(f"s_mov_b32 s{sP+3}, 0")
        poll(a, opt, vX, 4, sP + 2, opt.sleep, opt.preg)
    a.vm = ["w2all"] if opt.hold2 else []
    stamp(a, opt, 11)
    a(f"s_mul_i32 s{sSTEP}, s{sWAVE}, {14*40960}")
    def mfma2(st, mt, nt, slot):
        c = "0" if st == 0 else vr(acc2(mt, nt), 4)
        a(f"v_mfma_f32_16x16x32_bf16 {vr(acc2(mt,nt),4)}, {vr(ring(slot,mt),4)}, {ar(wfrag(st,nt),4)}, {c}")
    main_loop(sG, 14, sROT2, "g", mfma2, 12, None, 12, w2_finish if opt.hold2 else None)
    saved_vm2 = list(a.vm)
    a(f"v_and_b32 v{vT}, 15, v{vLANE}")
    a(f"s_lshl_b32 s{sT0}, s{sWAVE}, 4")
    a(f"v_add_u32 v{vT}, s{sT0}, v{vT}")
    a(f"v_mul_u32_u24 v{vA}, 1280, v{vT}")
    a(f"v_lshrrev_b32 v{vT}, 4, v{vLANE}")
    a(f"v_lshlrev_b32 v{vT}, 3, v{vT}")
    a(f"v_add_u32 v{vA}, v{vA}, v{vT}")
    a(f"s_mul_i32 s{sT0}, s{sST}, {64*1280}")
    a(f"s_mul_i32 s{sT1}, s{sDT2}, 160")
    a(f"s_add_u32 s{sOFF}, s{sT0}, s{sT1}")
    a(f"v_lshlrev_b32 v{vC0}, 16, v{vB2}")
    a(f"v_lshlrev_b32 v{vC0+1}, 16, v{vB2}")
    a(f"v_sub_u32 v{vA2}, v{vA}, v{vT}")
    a(f"v_bfe_u32 v{vT}, v{vLANE}, 4, 1")
    a(f"v_lshlrev_b32 v{vT}, 5, v{vT}")
    a(f"v_add_u32 v{vA2}, v{vA2}, v{vT}")
    a(f"v_bfe_u32 v{vT}, v{vLANE}, 5, 1")
    a(f"v_lshlrev_b32 v{vT}, 4, v{vT}")
    a(f"v_add_u32 v{vA2}, v{vA2}, v{vT}")
    def red2_addr(src, nt, mt):
        k = [x for x in range(4) if x != src].index(nt)
        return src * 32768 + (k * 5 + mt) * 1024
    for w in range(4):
        if w < 3:
            a(f"s_cmp_lg_u32 s{sWAVE}, {w}")
            a(f"s_cbranch_scc1 L_ep2_{w+1}")
        a.vm = list(saved_vm2)
        tl = [(mt, nt) for mt in range(5) for nt in range(4)]
        def wr2(t):
            vb, off = lds_ref(red2_addr(w, t[1], t[0]))
            a(f"ds_write_b128 v{vb}, {vr(acc2(*t),4)} offset:{off}")
        tile_tail(14, "g", [t for t in tl if t[1] != w], [t for t in tl if t[1] == w], lambda t: t[0],
                  lambda st, t: mfma2(st, t[0], t[1], st % NS), wr2, [])
        stamp(a, opt, 13)
        a("s_waitcnt lgkmcnt(0)")
        a("s_barrier")
        RT = vRING
        n = 0
        for mt in range(5):
            for src in range(4):
                if src == w: continue
                vb, off = lds_ref(red2_addr(src, w, mt))
                a(f"ds_read_b128 {vr(RT+n*4,4)}, v{vb} offset:{off}")
                n += 1
        n = 0
        for mt in range(5):
            r = acc2(mt, w)
            for si in range(3):
                a(f"s_waitcnt lgkmcnt({14 - n})")
                a(f"v_pk_add_f32 {vr(r,2)}, {vr(r,2)}, {vr(RT+n*4,2)}")
                a(f"v_pk_add_f32 {vr(r+2,2)}, {vr(r+2,2)}, {vr(RT+n*4+2,2)}")
                n += 1
            a(f"v_pk_add_f32 {vr(r,2)}, {vr(r,2)}, {vr(vC0,2)}")
            a(f"v_pk_add_f32 {vr(r+2,2)}, {vr(r+2,2)}, {vr(vC0,2)}")
            o = RT + 64 + 2 * mt
            a(f"v_cvt_pk_bf16_f32 v{o}, v{r}, v{r+1}")
            a(f"v_cvt_pk_bf16_f32 v{o+1}, v{r+2}, v{r+3}")
            if not opt.wide or mt == 4:
                a(f"buffer_store_dwordx2 {vr(o,2)}, v{vA}, {srd(sO)}, s{sOFF} offen offset:{mt*32} {opt.obits}")
            elif mt % 2 == 1:
                a("s_nop 1")
                a(f"v_permlane16_swap_b32 v{o-2}, v{o}")
                a(f"v_permlane16_swap_b32 v{o-1}, v{o+1}")
                a(f"buffer_store_dwordx4 {vr(o-2,4)}, v{vA2}, {srd(sO)}, s{sOFF} offen offset:{(mt-1)*32} {opt.obits}")
        a("s_branch L_fin")
        if w < 3: a.label(f"L_ep2_{w+1}")
    a.label("L_fin")
    if opt.probe >= 0:
        if opt.probe == 14:
            a("s_waitcnt vmcnt(0)")
            stamp(a, opt, 14)
        a(f"s_cmp_lg_u32 s{sWG}, {opt.probewg}")
        a("s_cbranch_scc1 L_done")
        a(f"s_cmp_lg_u32 s{sWAVE}, {opt.probew}")
        a("s_cbranch_scc1 L_done")
        ref = sNONCE if opt.probeabs else (sPROF + 2 if opt.probe0 >= 0 else 96)
        a(f"s_sub_u32 s{sT1}, s{sPROF+1}, s{ref}")
        if opt.probecyc: a(f"s_lshr_b32 s{sT1}, s{sT1}, 2")
        else: a(f"s_lshl_b32 s{sT1}, s{sT1}, 2")
        a(f"s_add_u32 s{sT1}, s{sT1}, 4000")
        a.label("L_probe")
        a(f"s_memrealtime s[{sP}:{sP+1}]")
        a("s_waitcnt lgkmcnt(0)")
        a(f"s_sub_u32 s{sT0}, s{sP}, s96")
        a(f"s_cmp_lt_u32 s{sT0}, s{sT1}")
        a("s_cbranch_scc1 L_probe")
    if opt.pad:
        a.label("L_pad")
        a(f"s_memrealtime s[{sP}:{sP+1}]")
        a("s_waitcnt lgkmcnt(0)")
        a(f"s_sub_u32 s{sT0}, s{sP}, s96")
        a(f"s_cmp_lt_u32 s{sT0}, {opt.pad}")
        a("s_cbranch_scc1 L_pad")
    if opt.prof:
        a("s_waitcnt vmcnt(0)")
        stamp(a, opt, 14)
        make_srd(a, sX, 18, 65536, WS_PROF)
        a(f"s_lshl_b32 s{sT0}, s{sWG}, 2")
        a(f"s_add_u32 s{sT0}, s{sT0}, s{sWAVE}")
        a(f"s_lshl_b32 s{sT0}, s{sT0}, 6")
        a(f"v_mov_b32 v{vT}, s{sT0}")
        a("s_mov_b64 exec, 1")
        for i in range(15):
            a(f"v_mov_b32 v100, s{sPROF+i}")
            a(f"buffer_store_dword v100, v{vT}, {srd(sX)}, 0 offen offset:{4*i}")
            a("s_nop 1")
        a("s_waitcnt vmcnt(0)")
    a.label("L_done")
    a("s_endpgm")
    a.label("L_codeend")
    a.raw('.section .rodata,"a"')
    a.raw(".p2align 6")
    a.raw(f".amdhsa_kernel {KN}")
    for l in ["next_free_vgpr 512", "next_free_sgpr 102", "accum_offset 256", "group_segment_fixed_size 0",
              "kernarg_size 64", "user_sgpr_count 2", "user_sgpr_kernarg_segment_ptr 1",
              "system_sgpr_workgroup_id_x 1", "float_denorm_mode_32 3"]:
        a.raw(f"  .amdhsa_{l}")
    a.raw(".end_amdhsa_kernel")
    return "\n".join(a.L) + "\n"

def parse(argv=None):
    ap = argparse.ArgumentParser()
    ap.add_argument("-o", default="standalone__mixer_token_mlp__prompt.s")
    ap.add_argument("--prof", type=int, default=0)
    ap.add_argument("--rot", type=int, default=3)
    ap.add_argument("--spin", type=int, default=20000)
    ap.add_argument("--sleep", type=int, default=8)
    ap.add_argument("--depth", type=int, default=3)
    ap.add_argument("--lnprof", type=int, default=0)
    ap.add_argument("--hbits", default="sc1")
    ap.add_argument("--pfwait", type=int, default=1)
    ap.add_argument("--hold", type=int, default=0)
    ap.add_argument("--probe", type=int, default=-1)
    ap.add_argument("--probe0", type=int, default=-1)
    ap.add_argument("--probecyc", type=int, default=0)
    ap.add_argument("--probeabs", type=int, default=0)
    ap.add_argument("--probewg", type=int, default=100)
    ap.add_argument("--probew", type=int, default=2)
    ap.add_argument("--rot8", type=int, default=1)
    ap.add_argument("--cpf", type=int, default=1)
    ap.add_argument("--cpfw", type=int, default=3)
    ap.add_argument("--wide", type=int, default=1)
    ap.add_argument("--idlewait", type=int, default=0)
    ap.add_argument("--sleeph", type=int, default=8)
    ap.add_argument("--preh", type=int, default=0)
    ap.add_argument("--preg", type=int, default=0)
    ap.add_argument("--onepoll", type=int, default=3)
    ap.add_argument("--pollw", type=int, default=3)
    ap.add_argument("--nta", type=int, default=0)
    ap.add_argument("--rotg1", type=int, default=0)
    ap.add_argument("--rotg2", type=int, default=0)
    ap.add_argument("--npost", type=int, default=3)
    ap.add_argument("--xbar", type=int, default=1)
    ap.add_argument("--hold1", type=int, default=4)
    ap.add_argument("--hold2", type=int, default=1)
    ap.add_argument("--nmid", type=int, default=0)
    ap.add_argument("--gbits", default="sc1")
    ap.add_argument("--fbits", default="sc1")
    ap.add_argument("--abits", default="sc1")
    ap.add_argument("--unsafe", type=int, default=0)
    ap.add_argument("--epoll", type=int, default=12)
    ap.add_argument("--pipe", type=int, default=1)
    ap.add_argument("--gap", type=int, default=2)
    ap.add_argument("--gwg", type=int, default=1)
    ap.add_argument("--hline", type=int, default=16)
    ap.add_argument("--idle1", type=int, default=0)
    ap.add_argument("--idle1ft", type=int, default=13)
    ap.add_argument("--t13", type=int, default=1)
    ap.add_argument("--tt", type=int, default=2)
    ap.add_argument("--e2", type=int, default=0)
    ap.add_argument("--e3", type=int, default=0)
    ap.add_argument("--nb2", type=int, default=0)
    ap.add_argument("--e1", type=int, default=1)
    ap.add_argument("--nb", type=int, default=2)
    ap.add_argument("--nearly", type=int, default=2)
    ap.add_argument("--dpl", type=int, default=5)
    ap.add_argument("--dp", type=int, default=4)
    ap.add_argument("--p1", type=int, default=1)
    ap.add_argument("--p2", type=int, default=1)
    ap.add_argument("--rota1", type=int, default=0)
    ap.add_argument("--rota2", type=int, default=0)
    ap.add_argument("--xbits", default="nt")
    ap.add_argument("--w1bits", default="")
    ap.add_argument("--w2bits", default="")
    ap.add_argument("--pfbits", default="")
    ap.add_argument("--pfdepth", type=int, default=8)
    ap.add_argument("--prio", type=int, default=3)
    ap.add_argument("--delay", type=int, default=0)
    ap.add_argument("--hstride", type=int, default=8)
    ap.add_argument("--gstride", type=int, default=256)
    ap.add_argument("--pf", type=int, default=0)
    ap.add_argument("--pad", type=int, default=0)
    ap.add_argument("--obits", default="sc0 sc1")
    return ap.parse_args(argv)

if __name__ == "__main__":
    opt = parse()
    open(opt.o, "w").write(gen(opt))
```

```python
import argparse, struct

S, D, F = 2048, 640, 1728
KN = "standalone__mixer_token_mlp__prompt_kernel"

WS_H = 0
H_BYTES = 64 * 40 * 1024
WS_G = 0x300000
G_BYTES = 54 * 40 * 1024
WS_FLAG = 0x600000
FLAG_H = 0
FLAG_G = 0x10000
FLAG_BYTES = 0x40000
WS_PROF = 0x700000

LDS_BYTES = 163840
LN_BASE = 131072
LN_ROW = 1344
LF_BASE = 141824
P0_BASE = [0, 49152, 98304, 122880]

sWG = 2
sX, sW1, sW2, sH, sG, sO, sF, sB1, sB2, sD = 20, 24, 28, 32, 36, 40, 44, 48, 52, 56
sWAVE, sXCD, sJ, sFT, sDT1, sST, sDT2, sNONCE = 60, 61, 62, 63, 64, 65, 66, 67
sT0, sT1, sT2, sT3, sT4, sT5 = 68, 69, 70, 71, 72, 73
sROT1, sROT2, sSTEP, sOFF = 74, 75, 76, 77
sM0B, sSPIN = 78, 79
sP = 80
sPROF = 84
sUP = 99
sJLIM, sIDLE = 100, 101
sWB = 3

vTID, vLANE = 0, 1
vTR = 2
vA, vA2, vDMA, vT2 = 6, 7, 8, 9
vB1 = 10
vB2, vT = 14, 15
vACC = 16
vRING = 96
vTRU = 196
vL0, vL1, vL2 = 200, 201, 202
vC0 = 204
BI = 206
vPOLL = 214
vX = 216
vHP = 226
vPQ = 228
vDM = 220

def srd(n): return f"s[{n}:{n+3}]"
def vr(n, c=1): return f"v{n}" if c == 1 else f"v[{n}:{n+c-1}]"
def ar(n, c=1): return f"a{n}" if c == 1 else f"a[{n}:{n+c-1}]"
def f2h(x): return "0x%08x" % struct.unpack("<I", struct.pack("<f", x))[0]
C0 = -2.0 * 0.7978845608028654 * 1.4426950408889634
C1 = C0 * 0.044715

class Asm:
    def __init__(self):
        self.L = []; self.vm = []; self.uid = 0
    def __call__(self, s): self.L.append("    " + s)
    def label(self, s): self.L.append(s + ":")
    def raw(self, s): self.L.append(s)
    def c(self, s): self.L.append("    ; " + s)
    def vmem(self, s, tag):
        self(s); self.vm.append(tag)
    def wait_vm(self, tag):
        hits = [i for i, t in enumerate(self.vm) if t == tag]
        if not hits: return
        n = len(self.vm) - 1 - hits[-1]
        self(f"s_waitcnt vmcnt({min(n, 63)})")
        self.vm = self.vm[hits[-1] + 1:]
    def wait_vm0(self):
        self("s_waitcnt vmcnt(0)"); self.vm = []
    def newlabel(self, p):
        self.uid += 1
        return f"L_{p}_{self.uid}"

def acc1(mt, nt): return vACC + (mt * 5 + nt) * 4
def acc2(mt, nt): return vACC + (mt * 4 + nt) * 4
def wfrag(step, t): return step * 16 + t * 4

def stamp(a, opt, idx, force=False):
    if opt.probe >= 0:
        ins = "s_memtime" if opt.probecyc else "s_memrealtime"
        if idx == opt.probe:
            a(f"{ins} s[{sP}:{sP+1}]")
            a("s_waitcnt lgkmcnt(0)")
            a(f"s_mov_b32 s{sPROF+1}, s{sP}")
        if idx == opt.probe0:
            a(f"{ins} s[{sP}:{sP+1}]")
            a("s_waitcnt lgkmcnt(0)")
            a(f"s_mov_b32 s{sPROF+2}, s{sP}")
        return
    if opt.prof == 4 and idx != 14: return
    if opt.lnprof and idx in (4, 5) and getattr(a, "ln_done", False): return
    if opt.prof:
        a(f"s_mem{'time' if opt.prof == 2 else 'realtime'} s[{sP}:{sP+1}]")
        a("s_waitcnt lgkmcnt(0)")
        a(f"s_mov_b32 s{sPROF+idx}, s{sP}")

def jitter(a, opt, k):
    if not opt.jitter: return
    lp, dn = a.newlabel("jit"), a.newlabel("jitd")
    a(f"s_lshl_b32 s{sP+2}, s{sWG}, 2")
    a(f"s_add_u32 s{sP+2}, s{sP+2}, s{sWAVE}")
    a(f"s_mul_i32 s{sP+2}, s{sP+2}, {2654435761 * (2 * k + opt.jitter) % (1 << 31)}")
    a(f"s_lshr_b32 s{sP+2}, s{sP+2}, 26")
    a.label(lp)
    a(f"s_cmp_eq_u32 s{sP+2}, 0")
    a(f"s_cbranch_scc1 {dn}")
    a("s_sleep 2")
    a(f"s_sub_u32 s{sP+2}, s{sP+2}, 1")
    a(f"s_branch {lp}")
    a.label(dn)

def make_srd(a, n, lo, size, add=0):
    if add:
        a(f"s_add_u32 s{n}, s{lo}, {add}")
        a(f"s_addc_u32 s{n+1}, s{lo+1}, 0")
        a(f"s_and_b32 s{n+1}, s{n+1}, 0xffff")
    else:
        a(f"s_mov_b32 s{n}, s{lo}")
        a(f"s_and_b32 s{n+1}, s{lo+1}, 0xffff")
    a(f"s_mov_b32 s{n+2}, {size}")
    a(f"s_mov_b32 s{n+3}, 0x20000")

def nonce_spin(a, opt):
    lp = a.newlabel("nonce"); dn = a.newlabel("nonced")
    a(f"s_cmp_lg_u32 s{sNONCE}, 0")
    a(f"s_cbranch_scc1 {dn}")
    a(f"s_mov_b32 s{sSPIN}, 0")
    a(f"v_mov_b32 v{vT}, 0")
    a.label(lp)
    a(f"buffer_load_dword v{vT2}, v{vT}, {srd(sD)}, 0 offen sc1")
    a("s_waitcnt vmcnt(0)")
    a(f"v_readfirstlane_b32 s{sNONCE}, v{vT2}")
    a(f"s_add_u32 s{sSPIN}, s{sSPIN}, 1")
    a(f"s_cmp_lg_u32 s{sNONCE}, 0")
    a(f"s_cbranch_scc1 {dn}")
    a(f"s_cmp_lt_u32 s{sSPIN}, {opt.spin}")
    a(f"s_cbranch_scc1 {lp}")
    a.label(dn)

def lds_set(a, addr_sgpr_or_imm):
    a(f"v_mov_b32 v{vT}, {addr_sgpr_or_imm}")
    a(f"v_mov_b32 v{vT2}, 1")
    a(f"s_mov_b64 s[{sP}:{sP+1}], exec")
    a("s_mov_b64 exec, 1")
    a(f"ds_write_b32 v{vT}, v{vT2}")
    a(f"s_mov_b64 exec, s[{sP}:{sP+1}]")

def lds_spin(a, opt, addr):
    lp = a.newlabel("lspin"); dn = a.newlabel("lspun")
    a(f"v_mov_b32 v{vT}, {addr}")
    a(f"s_mov_b32 s{sSPIN}, 0")
    a.label(lp)
    a(f"ds_read_b32 v{vT2}, v{vT}")
    a("s_waitcnt lgkmcnt(0)")
    a(f"v_readfirstlane_b32 s{sP}, v{vT2}")
    a(f"s_add_u32 s{sSPIN}, s{sSPIN}, 1")
    a(f"s_cmp_lg_u32 s{sP}, 0")
    a(f"s_cbranch_scc1 {dn}")
    a(f"s_cmp_lt_u32 s{sSPIN}, {opt.spin * 8}")
    a(f"s_cbranch_scc1 {lp}")
    a.label(dn)

def dma_addr(a, stride, s_tile):
    a(f"v_lshrrev_b32 v{vT}, 3, v{vLANE}")
    a(f"v_lshrrev_b32 v{vT2}, 1, v{vT}")
    a(f"v_lshlrev_b32 v{vT2}, 1, v{vT2}")
    a(f"v_and_b32 v{vDM}, 7, v{vLANE}")
    a(f"v_xor_b32 v{vDM}, v{vDM}, v{vT2}")
    a(f"v_lshlrev_b32 v{vDM}, 4, v{vDM}")
    a(f"v_mul_u32_u24 v{vT}, {stride}, v{vT}")
    a(f"v_add_u32 v{vDM}, v{vDM}, v{vT}")
    a(f"s_lshl_b32 s{sT0}, s{s_tile}, 7")
    a(f"v_add_u32 v{vDM}, s{sT0}, v{vDM}")
    for b in range(1, 4):
        a(f"v_add_u32 v{vDM+b}, {b*(8*stride-1024)}, v{vDM}")

def step_off(a, dst, s_base, s_rot, i, nsteps, bytes_per_step):
    a(f"s_add_u32 s{sT4}, s{s_rot}, {i}")
    a(f"s_cmp_ge_u32 s{sT4}, {nsteps}")
    a(f"s_cselect_b32 s{dst}, {nsteps}, 0")
    a(f"s_sub_u32 s{sT4}, s{sT4}, s{dst}")
    a(f"s_mul_i32 s{sT4}, s{sT4}, {bytes_per_step}")
    a(f"s_add_u32 s{dst}, s{sT4}, s{s_base}")

def dma_step(a, srdn, stride, s_rowbase, s_rot, step, nsteps, s_lds, lds_off, tag, bits=""):
    a(f"s_add_u32 m0, s{s_lds}, {lds_off}")
    step_off(a, sOFF, s_rowbase, s_rot, step, nsteps, 32 * stride)
    for blk in range(4):
        a.vmem(f"buffer_load_dwordx4 v{vDM+blk}, {srd(srdn)}, s{sOFF} offen offset:{blk*1024} {bits} lds", tag)

def tr_step(a, vbase, off, step):
    for t in range(4):
        w = wfrag(step, t)
        a(f"ds_read_b64_tr_b16 {ar(w,2)}, v{vbase+t} offset:{off}")
        a(f"ds_read_b64_tr_b16 {ar(w+2,2)}, v{vbase+t} offset:{off+2048}")

def poll(a, opt, vaddr, nd, lanes, sleep=None, pre=0, nload=1):
    if sleep is None: sleep = opt.sleep
    if pre: a(f"s_sleep {pre}")
    lp = a.newlabel("poll"); dn = a.newlabel("polled")
    a(f"s_mov_b32 s{sSPIN}, 0")
    a.label(lp)
    ld = {1: "dword", 2: "dwordx2", 4: "dwordx4"}[nd]
    for k in range(nload):
        a(f"buffer_load_{ld} {vr(vPQ + 4*k, nd)}, v{vaddr}, {srd(sF)}, 0 offen offset:{k*1024} sc1")
    a("s_waitcnt vmcnt(0)")
    first = True
    for k in range(nload):
        for i in range(nd):
            if first:
                a(f"v_cmp_ne_u32 vcc, s{sNONCE}, v{vPQ+4*k+i}"); first = False
            else:
                a(f"v_cmp_ne_u32 s[{sP}:{sP+1}], s{sNONCE}, v{vPQ+4*k+i}")
                a(f"s_or_b64 vcc, vcc, s[{sP}:{sP+1}]")
    if lanes is not None:
        a(f"s_and_b64 vcc, vcc, s[{lanes}:{lanes+1}]")
    a(f"s_add_u32 s{sSPIN}, s{sSPIN}, 1")
    a("s_cmp_eq_u64 vcc, 0")
    a(f"s_cbranch_scc1 {dn}")
    if sleep: a(f"s_sleep {sleep}")
    a(f"s_cmp_lt_u32 s{sSPIN}, {opt.spin}")
    a(f"s_cbranch_scc1 {lp}")
    a.label(dn)
    a.vm = []

def poll_pipe(a, opt, vaddr, lanes, gap, nd=4):
    dn = a.newlabel("ppolled"); lp = a.newlabel("ppoll")
    regs = [vPQ, vPQ + 4, vPQ + 8]
    def probe(r): a(f"buffer_load_{'dwordx4' if nd == 4 else 'dword'} {vr(r,nd)}, v{vaddr}, {srd(sF)}, 0 offen sc1")
    a(f"s_mov_b32 s{sSPIN}, 0")
    probe(regs[0]); a(f"s_sleep {gap}"); probe(regs[1]); a(f"s_sleep {gap}"); probe(regs[2])
    a.label(lp)
    for r in regs:
        a("s_waitcnt vmcnt(2)")
        for i in range(nd):
            if i == 0: a(f"v_cmp_ne_u32 vcc, s{sNONCE}, v{r}")
            else:
                a(f"v_cmp_ne_u32 s[{sP}:{sP+1}], s{sNONCE}, v{r+i}")
                a(f"s_or_b64 vcc, vcc, s[{sP}:{sP+1}]")
        if lanes is not None: a(f"s_and_b64 vcc, vcc, s[{lanes}:{lanes+1}]")
        a("s_cmp_eq_u64 vcc, 0")
        a(f"s_cbranch_scc1 {dn}")
        a(f"s_sleep {gap}")
        probe(r)
    a(f"s_add_u32 s{sSPIN}, s{sSPIN}, 1")
    a(f"s_cmp_lt_u32 s{sSPIN}, {opt.spin}")
    a(f"s_cbranch_scc1 {lp}")
    a.label(dn)

def poll_check(a, nd, lanes, ok_label):
    for i in range(nd):
        if i == 0: a(f"v_cmp_ne_u32 vcc, s{sNONCE}, v{vPQ}")
        else:
            a(f"v_cmp_ne_u32 s[{sP}:{sP+1}], s{sNONCE}, v{vPQ+i}")
            a(f"s_or_b64 vcc, vcc, s[{sP}:{sP+1}]")
    if lanes is not None:
        a(f"s_and_b64 vcc, vcc, s[{lanes}:{lanes+1}]")
    a("s_cmp_eq_u64 vcc, 0")
    a(f"s_cbranch_scc1 {ok_label}")

def flag_store(a, s_index_bytes):
    a(f"v_mov_b32 v{vT}, s{s_index_bytes}")
    a(f"v_mov_b32 v{vT2}, s{sNONCE}")
    a(f"s_mov_b64 s[{sP}:{sP+1}], exec")
    a("s_mov_b64 exec, 1")
    a.vmem(f"buffer_store_dword v{vT2}, v{vT}, {srd(sF)}, 0 offen {OPT.fbits}", "flag")
    a(f"s_mov_b64 exec, s[{sP}:{sP+1}]")

def gelu_pairs(a, regs, tmp, fill=None):
    def each(fn):
        for i, r in enumerate(regs): fn(r, tmp + 2 * i)
    each(lambda r, t: a(f"v_pk_mul_f32 {vr(t,2)}, {vr(r,2)}, {vr(r,2)}"))
    each(lambda r, t: a(f"v_pk_fma_f32 {vr(t,2)}, {vr(t,2)}, s[100:101], {vr(vC0,2)}"))
    each(lambda r, t: a(f"v_pk_mul_f32 {vr(t,2)}, {vr(t,2)}, {vr(r,2)}"))
    if fill: fill()
    each(lambda r, t: (a(f"v_exp_f32 v{t}, v{t}"), a(f"v_exp_f32 v{t+1}, v{t+1}")))
    each(lambda r, t: a(f"v_pk_add_f32 {vr(t,2)}, {vr(t,2)}, 1.0 op_sel_hi:[1,0]"))
    each(lambda r, t: (a(f"v_rcp_f32 v{t}, v{t}"), a(f"v_rcp_f32 v{t+1}, v{t+1}")))
    a("s_nop 0")
    each(lambda r, t: a(f"v_pk_mul_f32 {vr(r,2)}, {vr(r,2)}, {vr(t,2)}"))

def w2_slot(step):
    if step < 8: return sM0B, step * 4096, vTR, step * 4096
    if step < 10: return sUP, (step - 8) * 4096, vTRU, (step - 8) * 4096
    return sM0B, (step - 10) * 4096, vTR, (step - 10) * 4096

def w2_dma(a, step):
    sb, off, _, _ = w2_slot(step)
    dma_step(a, sW2, S * 2, sWB, sROT2, step, 14, sb, off, f"w2_{step}", OPT.w2bits)

def w2_dma_parts(a, step):
    sb, off, _, _ = w2_slot(step)
    def setup():
        a(f"s_add_u32 m0, s{sb}, {off}")
        step_off(a, sOFF, sWB, sROT2, step, 14, 32 * S * 2)
    def one(blk):
        return lambda: a.vmem(f"buffer_load_dwordx4 v{vDM+blk}, {srd(sW2)}, s{sOFF} offen offset:{blk*1024} {OPT.w2bits} lds", f"w2_{step}")
    return [setup] + [one(b) for b in range(4)]

def w2_tr(a, step):
    _, _, vb, off = w2_slot(step)
    tr_step(a, vb, off, step)

def gen(opt):
    global OPT
    OPT = opt
    a = Asm()
    NS = opt.depth + 1
    def ring(slot, t): return vRING + slot * 20 + t * 4
    a.raw(f"; @launch grid=(256,1,1) block=(256,1,1) lds={LDS_BYTES}")
    a.raw('.amdgcn_target "amdgcn-amd-amdhsa--gfx950"')
    a.raw(".text")
    a.raw(f".globl {KN}")
    a.raw(".p2align 8")
    a.raw(f".type {KN},@function")
    a.label(KN)
    if opt.cpf: a("s_getpc_b64 s[94:95]")
    a(f"s_cmp_ge_u32 s{sWG}, 256")
    a("s_cbranch_scc1 L_done")
    a("s_load_dwordx16 s[4:19], s[0:1], 0")
    if opt.prof:
        a(f"s_mem{'time' if opt.prof == 2 else 'realtime'} s[{sP}:{sP+1}]")
    if opt.prof:
        for i in range(1, 15): a(f"s_mov_b32 s{sPROF+i}, 0")
    if not opt.prof:
        a("s_memrealtime s[96:97]")
    a(f"v_lshrrev_b32 v{vT}, 6, v{vTID}")
    a(f"v_and_b32 v{vLANE}, 63, v{vTID}")
    a(f"v_readfirstlane_b32 s{sWAVE}, v{vT}")
    a(f"s_and_b32 s{sXCD}, s{sWG}, 7")
    a(f"s_lshr_b32 s{sJ}, s{sWG}, 3")
    if opt.p1 == 2:
        if opt.pairx:
            assert opt.pf == 0
            a(f"s_add_u32 s{sT1}, s{sXCD}, {opt.pairx - 1}")
            a(f"s_and_b32 s{sT1}, s{sT1}, 3")
            a(f"s_and_b32 s{sT2}, s{sXCD}, 4")
        else:
            a(f"s_lshr_b32 s{sT1}, s{sXCD}, 1")
            a(f"s_and_b32 s{sT2}, s{sXCD}, 1")
            a(f"s_lshl_b32 s{sT2}, s{sT2}, 2")
        a(f"s_mul_i32 s{sT0}, s{sT1}, 7")
        a(f"s_lshr_b32 s{sFT}, s{sJ}, 2")
        a(f"s_add_u32 s{sFT}, s{sFT}, s{sT0}")
        a(f"s_and_b32 s{sT3}, s{sJ}, 3")
        a(f"s_add_u32 s{sDT1}, s{sT2}, s{sT3}")
        if opt.rot8: a(f"s_lshl_b32 s{sROT1}, s{sDT1}, 1")
        else: a(f"s_lshl_b32 s{sROT1}, s{sT3}, 2")
        a(f"s_cmp_eq_u32 s{sT1}, 3")
        a(f"s_cselect_b32 s{sJLIM}, 24, 28")
        a(f"s_lshl_b32 s{sT0}, s{sXCD}, 2")
        a(f"s_sub_u32 s{sT0}, s{sT0}, 28")
        a(f"s_lshl_b32 s{sT3}, s{sXCD}, 3")
        a(f"s_sub_u32 s{sT3}, s{sT3}, 48")
        a(f"s_cselect_b32 s{sIDLE}, s{sT0}, s{sT0}")
        a(f"s_cmp_ge_u32 s{sXCD}, 6")
        a(f"s_cselect_b32 s{sIDLE}, s{sT3}, s{sT0}")
        a(f"s_add_u32 s{sIDLE}, s{sIDLE}, s{sJ}")
    else:
        a(f"s_lshl_b32 s{sT0}, s{sXCD}, 2")
        a(f"s_mul_i32 s{sT1}, s{sXCD}, 3")
        a(f"s_add_u32 s{sT1}, s{sT1}, 3")
        a(f"s_cmp_lt_u32 s{sXCD}, 3")
        a(f"s_cselect_b32 s{sT0}, s{sT0}, s{sT1}")
        a(f"s_cselect_b32 s{sJLIM}, 32, 24")
        a(f"s_lshr_b32 s{sFT}, s{sJ}, 3")
        a(f"s_add_u32 s{sFT}, s{sFT}, s{sT0}")
        a(f"s_and_b32 s{sDT1}, s{sJ}, 7")
        a(f"s_lshl_b32 s{sROT1}, s{sDT1}, 1")
        a(f"s_lshl_b32 s{sIDLE}, s{sXCD}, 3")
        a(f"s_add_u32 s{sIDLE}, s{sIDLE}, s{sJ}")
        a(f"s_sub_u32 s{sIDLE}, s{sIDLE}, 48")
    if opt.rotg1 == 3:
        a(f"s_mul_i32 s{sT0}, s{sFT}, 11")
        a(f"s_lshr_b32 s{sT0}, s{sT0}, 5")
        a(f"s_mul_i32 s{sT0}, s{sT0}, 3")
        a(f"s_sub_u32 s{sT0}, s{sFT}, s{sT0}")
        a(f"s_mul_i32 s{sT0}, s{sT0}, 5")
        a(f"s_add_u32 s{sROT1}, s{sROT1}, s{sT0}")
        a(f"s_and_b32 s{sROT1}, s{sROT1}, 15")
    if opt.rotg1 == 2:
        a(f"s_and_b32 s{sT0}, s{sFT}, 1")
        a(f"s_lshl_b32 s{sT0}, s{sT0}, 3")
        a(f"s_add_u32 s{sROT1}, s{sROT1}, s{sT0}")
        a(f"s_and_b32 s{sROT1}, s{sROT1}, 15")
    if opt.rota1:
        a(f"s_mul_i32 s{sT0}, s{sFT}, {opt.rota1}")
        a(f"s_add_u32 s{sROT1}, s{sROT1}, s{sT0}")
        a(f"s_and_b32 s{sROT1}, s{sROT1}, 15")
    if opt.p2 == 2:
        a(f"s_lshr_b32 s{sT1}, s{sXCD}, 1")
        a(f"s_and_b32 s{sT2}, s{sXCD}, 1")
        a(f"s_lshl_b32 s{sT2}, s{sT2}, 2")
        a(f"s_lshr_b32 s{sT0}, s{sJ}, 2")
        a(f"s_lshl_b32 s{sST}, s{sT1}, 3")
        a(f"s_add_u32 s{sST}, s{sST}, s{sT0}")
        a(f"s_and_b32 s{sT3}, s{sJ}, 3")
        a(f"s_add_u32 s{sDT2}, s{sT2}, s{sT3}")
        if opt.rot8:
            a(f"s_mul_i32 s{sROT2}, s{sDT2}, 7")
            a(f"s_lshr_b32 s{sROT2}, s{sROT2}, 2")
        else:
            a(f"s_mul_i32 s{sROT2}, s{sT3}, 7")
            a(f"s_lshr_b32 s{sROT2}, s{sROT2}, 1")
    else:
        a(f"s_lshr_b32 s{sT0}, s{sJ}, 3")
        a(f"s_lshl_b32 s{sST}, s{sXCD}, 2")
        a(f"s_add_u32 s{sST}, s{sST}, s{sT0}")
        a(f"s_and_b32 s{sDT2}, s{sJ}, 7")
        a(f"s_mul_i32 s{sROT2}, s{sDT2}, 7")
        a(f"s_lshr_b32 s{sROT2}, s{sROT2}, 2")
    if opt.rotg2:
        if opt.rotg2 == 2:
            a(f"s_and_b32 s{sT0}, s{sST}, 1")
            a(f"s_mul_i32 s{sT0}, s{sT0}, 7")
        else:
            a(f"s_mul_i32 s{sT0}, s{sST}, 11")
            a(f"s_lshr_b32 s{sT0}, s{sT0}, 5")
            a(f"s_mul_i32 s{sT0}, s{sT0}, 3")
            a(f"s_sub_u32 s{sT0}, s{sST}, s{sT0}")
            a(f"s_mul_i32 s{sT0}, s{sT0}, 5")
        a(f"s_add_u32 s{sROT2}, s{sROT2}, s{sT0}")
        a(f"s_cmp_ge_u32 s{sROT2}, 14")
        a(f"s_cselect_b32 s{sT0}, 14, 0")
        a(f"s_sub_u32 s{sROT2}, s{sROT2}, s{sT0}")
    if opt.rota2:
        a(f"s_mul_i32 s{sT0}, s{sST}, {opt.rota2}")
        a(f"s_add_u32 s{sROT2}, s{sROT2}, s{sT0}")
        a(f"s_and_b32 s{sT0}, s{sROT2}, 0xff")
        a(f"s_mul_i32 s{sT0}, s{sROT2}, 18725")
        a(f"s_lshr_b32 s{sT0}, s{sT0}, 18")
        a(f"s_mul_i32 s{sT0}, s{sT0}, 14")
        a(f"s_sub_u32 s{sROT2}, s{sROT2}, s{sT0}")
    if not (opt.rot & 1): a(f"s_mov_b32 s{sROT1}, 0")
    if not (opt.rot & 2): a(f"s_mov_b32 s{sROT2}, 0")
    a(f"s_lshl_b32 s{sM0B}, s{sWAVE}, 15")
    a(f"s_lshl_b32 s{sUP}, s{sWAVE}, 13")
    a(f"s_add_u32 s{sUP}, s{sUP}, 131072")
    def tr_addr(base_sgpr):
        t0, t1, t2 = vX, vX + 1, vX + 2
        a(f"v_lshrrev_b32 v{t0}, 4, v{vLANE}")
        a(f"v_and_b32 v{t1}, 1, v{t0}")
        a(f"v_lshlrev_b32 v{t1}, 2, v{t1}")
        a(f"v_bfe_u32 v{t2}, v{vLANE}, 2, 2")
        a(f"v_add_u32 v{t1}, v{t1}, v{t2}")
        a(f"v_lshrrev_b32 v{t0}, 1, v{t0}")
        a(f"v_lshlrev_b32 v{t0}, 10, v{t0}")
        a(f"v_lshlrev_b32 v{t2}, 7, v{t1}")
        a(f"v_add_u32 v{t0}, v{t0}, v{t2}")
        a(f"v_and_b32 v{t2}, 3, v{vLANE}")
        a(f"v_lshlrev_b32 v{t2}, 3, v{t2}")
        a(f"v_add_u32 v{t0}, v{t0}, v{t2}")
        a(f"v_add_u32 v{t0}, s{base_sgpr}, v{t0}")
        a(f"v_lshrrev_b32 v{t1}, 1, v{t1}")
        for t in range(4):
            a(f"v_xor_b32 v{t2}, {t}, v{t1}")
            a(f"v_lshlrev_b32 v{t2}, 5, v{t2}")
            a(f"v_add_u32 v{vTR+t}, v{t0}, v{t2}")
    def w1_dma(i): dma_step(a, sW1, F * 2, sWB, sROT1, i, 16, sM0B, (i % 8) * 4096, f"w1_{i}", "nt" if i < opt.nta else opt.w1bits)
    def w1_stream(first, dp, hold=0):
        retired = 0
        def retire():
            nonlocal retired
            a.wait_vm(f"w1_{retired}")
            if retired: a("s_waitcnt lgkmcnt(0)")
            tr_step(a, vTR, (retired % 8) * 4096, retired)
            retired += 1
        for i in range(first, 16):
            while retired <= i - dp: retire()
            if i >= 8:
                while retired <= i - 8: retire()
                if retired == i - 7: a("s_waitcnt lgkmcnt(0)")
            w1_dma(i)
            if opt.epoll and i == opt.epoll:
                a(f"v_mul_u32_u24 v{vHP}, {opt.hline}, v{vLANE}")
                a(f"s_cmp_lg_u32 s{sWAVE}, {opt.pollw}")
                a("s_cbranch_scc1 L_noepoll")
                a(f"buffer_load_dwordx4 {vr(vPQ,4)}, v{vHP}, {srd(sF)}, 0 offen sc1")
                a.label("L_noepoll")
        while retired < 16 - hold: retire()
        def finish():
            while retired < 16: retire()
            a("s_waitcnt lgkmcnt(0)")
        if not hold: finish()
        return finish
    dma_addr(a, F * 2, sFT)
    a(f"s_mul_i32 s{sWB}, s{sWAVE}, {512*F*2}")
    a.c("LayerNorm: wave w normalises rows 32*ks + 16*(w>>1) + 4*q + 2*(w&1) + (0,1), 32 lanes per row")
    XR, XF, TM = 96, 108, 130
    a(f"s_lshr_b32 s{sT0}, s{sWG}, 2")
    a(f"s_and_b32 s{sT1}, s{sWG}, 3")
    a(f"s_lshl_b32 s{sT2}, s{sT0}, 5")
    a(f"s_lshr_b32 s{sT3}, s{sWAVE}, 1")
    a(f"s_lshl_b32 s{sT3}, s{sT3}, 4")
    a(f"s_add_u32 s{sT2}, s{sT2}, s{sT3}")
    a(f"s_lshl_b32 s{sT3}, s{sT1}, 2")
    a(f"s_add_u32 s{sT2}, s{sT2}, s{sT3}")
    a(f"s_and_b32 s{sT3}, s{sWAVE}, 1")
    a(f"s_lshl_b32 s{sT3}, s{sT3}, 1")
    a(f"s_add_u32 s{sT2}, s{sT2}, s{sT3}")
    a(f"s_mul_i32 s{sT2}, s{sT2}, 1280")
    a(f"v_lshrrev_b32 v{TM}, 5, v{vLANE}")
    a(f"v_and_b32 v{TM+1}, 31, v{vLANE}")
    a(f"v_lshlrev_b32 v{TM+1}, 3, v{TM+1}")
    a(f"v_mul_u32_u24 v{TM+2}, 1280, v{TM}")
    a(f"v_add_u32 v{TM+2}, v{TM+2}, v{TM+1}")
    a(f"v_mov_b32 v{vT}, 0")
    a("s_waitcnt lgkmcnt(0)")
    if opt.prof: a(f"s_mov_b32 s{sPROF}, s{sP}")
    make_srd(a, sD, 16, 256)
    a(f"s_cmp_lg_u32 s{sWG}, 0")
    a("s_cbranch_scc1 L_nononce")
    a(f"s_cmp_lg_u32 s{sWAVE}, 3")
    a("s_cbranch_scc1 L_nononce")
    a(f"s_or_b32 s{sNONCE}, s{sP if opt.prof else 96}, 1")
    a(f"v_mov_b32 v{vT2}, s{sNONCE}")
    a(f"s_mov_b64 s[{sP+2}:{sP+3}], exec")
    a("s_mov_b64 exec, 1")
    a(f"buffer_store_dword v{vT2}, v{vT}, {srd(sD)}, 0 offen sc1")
    a(f"s_mov_b64 exec, s[{sP+2}:{sP+3}]")
    a.label("L_nononce")
    make_srd(a, sX, 4, S * D * 2)
    for i in range(5):
        a.vmem(f"buffer_load_dwordx2 {vr(XR+2*i,2)}, v{TM+2}, {srd(sX)}, s{sT2} offen offset:{i*256} {opt.xbits}", "x")
    make_srd(a, sW1, 6, S * F * 2)
    if opt.xbar: a("s_barrier")
    a(f"s_cmp_ge_u32 s{sJ}, s{sJLIM}")
    a("s_cbranch_scc1 L_ln_now1")
    for i in range(opt.nearly): w1_dma(i)
    a.label("L_ln_now1")
    if opt.cpf:
        a(f"s_cmp_lg_u32 s{sWAVE}, 3")
        a("s_cbranch_scc1 L_nocpf")
        a(f"s_lshl_b32 s{sT3}, s{sJ}, 11")
        a(f"v_lshlrev_b32 v{vX}, 4, v{vLANE}")
        a(f"v_add_u32 v{vX}, s{sT3}, v{vX}")
        a(f"v_add_u32 v{vX+1}, 1024, v{vX}")
        for h in range(2):
            a(f"v_min_u32 v{vX+h}, L_codeend-{KN}-36, v{vX+h}")
            a(f"global_load_dwordx4 {vr(240+4*h,4)}, v{vX+h}, s[94:95]")
        a.label("L_nocpf")
    make_srd(a, sH, 18, H_BYTES, WS_H)
    make_srd(a, sF, 18, FLAG_BYTES, WS_FLAG)
    a(f"s_mul_i32 s{sSTEP}, s{sT0}, 40960")
    a(f"s_lshl_b32 s{sT1}, s{sT1}, 8")
    a(f"s_add_u32 s{sSTEP}, s{sSTEP}, s{sT1}")
    a(f"s_lshl_b32 s{sT3}, s{sWAVE}, 1")
    a(f"v_add_u32 v{TM+4}, s{sT3}, v{TM}")
    a(f"v_mul_u32_u24 v{TM+4}, {LN_ROW}, v{TM+4}")
    a(f"v_add_u32 v{TM+4}, v{TM+4}, v{TM+1}")
    a(f"v_add_u32 v{TM+4}, {LN_BASE}, v{TM+4}")
    a(f"s_mul_i32 s{sT3}, s{sWAVE}, 12")
    a(f"s_cmp_eq_u32 s{sWAVE}, 3")
    a(f"s_cselect_b32 s{sT3}, 32, s{sT3}")
    a(f"v_lshrrev_b32 v{TM+6}, 4, v{vLANE}")
    a(f"v_add_u32 v{TM+6}, s{sT3}, v{TM+6}")
    a(f"v_bfe_u32 v{TM+5}, v{vLANE}, 2, 2")
    a(f"v_mul_u32_u24 v{TM+5}, {LN_ROW}, v{TM+5}")
    a(f"v_lshlrev_b32 v{TM+7}, 5, v{TM+6}")
    a(f"v_add_u32 v{TM+5}, v{TM+5}, v{TM+7}")
    a(f"v_and_b32 v{TM+7}, 3, v{vLANE}")
    a(f"v_lshlrev_b32 v{TM+7}, 3, v{TM+7}")
    a(f"v_add_u32 v{TM+5}, v{TM+5}, v{TM+7}")
    a(f"v_add_u32 v{TM+5}, {LN_BASE}, v{TM+5}")
    a(f"v_lshlrev_b32 v{TM+6}, 10, v{TM+6}")
    a(f"v_and_b32 v{TM+7}, 15, v{vLANE}")
    a(f"v_lshlrev_b32 v{TM+7}, 4, v{TM+7}")
    a(f"v_add_u32 v{TM+6}, v{TM+6}, v{TM+7}")
    tr_addr(sM0B)
    a(f"s_mov_b32 s{sT0}, 0xffff0000")
    nc = 2 if opt.cpf else 0
    a(f"s_cmp_ge_u32 s{sJ}, s{sJLIM}")
    a("s_cbranch_scc1 L_ln_idle")
    a(f"s_cmp_eq_u32 s{sWAVE}, 3")
    a("s_cbranch_scc1 L_ln_w3")
    a(f"s_waitcnt vmcnt({4*opt.nearly})")
    a("s_branch L_ln_go")
    a.label("L_ln_w3")
    a(f"s_waitcnt vmcnt({4*opt.nearly + nc})")
    a("s_branch L_ln_go")
    a.label("L_ln_idle")
    a(f"s_cmp_eq_u32 s{sWAVE}, 3")
    a("s_cbranch_scc1 L_ln_idle3")
    a("s_waitcnt vmcnt(0)")
    a("s_branch L_ln_go")
    a.label("L_ln_idle3")
    a(f"s_waitcnt vmcnt({nc})")
    a.label("L_ln_go")
    stamp(a, opt, 1)
    jitter(a, opt, 1)
    nmid = [opt.nearly]
    def mid_step(tag):
        if nmid[0] < opt.nearly + opt.nmid:
            a(f"s_cmp_ge_u32 s{sJ}, s{sJLIM}")
            a(f"s_cbranch_scc1 L_mid_{tag}")
            w1_dma(nmid[0]); nmid[0] += 1
            a.label(f"L_mid_{tag}")
    if opt.unsafe & 2: a(f"buffer_load_dword v{vPOLL}, v{vT}, {srd(sD)}, 0 offen sc1")
    mid_step("a")
    for i in range(10):
        a(f"v_lshlrev_b32 v{XF+2*i}, 16, v{XR+i}")
        a(f"v_and_b32 v{XF+2*i+1}, s{sT0}, v{XR+i}")
    SM = TM + 8
    a(f"v_pk_add_f32 {vr(SM,2)}, {vr(XF,2)}, {vr(XF+4,2)}")
    a(f"v_pk_add_f32 {vr(SM+2,2)}, {vr(XF+2,2)}, {vr(XF+6,2)}")
    for i in range(4, 10):
        k = i % 2
        a(f"v_pk_add_f32 {vr(SM+2*k,2)}, {vr(SM+2*k,2)}, {vr(XF+2*i,2)}")
    def reduce_row(dst):
        a(f"v_pk_add_f32 {vr(SM,2)}, {vr(SM,2)}, {vr(SM+2,2)}")
        a(f"v_add_f32 v{dst}, v{SM}, v{SM+1}")
        for rot in (8, 4, 2, 1):
            a("s_nop 1")
            a(f"v_add_f32_dpp v{dst}, v{dst}, v{dst} row_ror:{rot} row_mask:0xf bank_mask:0xf")
        a(f"v_mov_b32 v{SM}, v{dst}")
        a("s_nop 1")
        a(f"v_permlane16_swap_b32 v{dst}, v{SM}")
        a("s_nop 1")
        a(f"v_add_f32 v{dst}, v{dst}, v{SM}")
    MN = TM + 12
    reduce_row(MN)
    mid_step("b")
    a(f"v_mul_f32 v{MN}, {f2h(1.0/640.0)}, v{MN}")
    a(f"v_mov_b32 v{MN+1}, v{MN}")
    for i in range(10):
        a(f"v_pk_add_f32 {vr(XF+2*i,2)}, {vr(XF+2*i,2)}, {vr(MN,2)} neg_lo:[0,1] neg_hi:[0,1]")
    for k in range(2):
        a(f"v_pk_mul_f32 {vr(SM+2*k,2)}, {vr(XF+2*k,2)}, {vr(XF+2*k,2)}")
    for i in range(2, 10):
        k = i % 2
        a(f"v_pk_fma_f32 {vr(SM+2*k,2)}, {vr(XF+2*i,2)}, {vr(XF+2*i,2)}, {vr(SM+2*k,2)}")
    reduce_row(MN)
    mid_step("c")
    a(f"v_mov_b32 v{MN+1}, {f2h(1e-5)}")
    a(f"v_fmac_f32 v{MN+1}, {f2h(1.0/640.0)}, v{MN}")
    a(f"v_rsq_f32 v{MN}, v{MN+1}")
    a("s_nop 0")
    a(f"v_mov_b32 v{MN+1}, v{MN}")
    for i in range(10):
        a(f"v_pk_mul_f32 {vr(XF+2*i,2)}, {vr(XF+2*i,2)}, {vr(MN,2)}")
    for i in range(10):
        a(f"v_cvt_pk_bf16_f32 v{XR+i}, v{XF+2*i}, v{XF+2*i+1}")
    for i in range(5):
        a(f"ds_write_b64 v{TM+4}, {vr(XR+2*i,2)} offset:{i*256}")
    a("s_waitcnt lgkmcnt(0)")
    if opt.unsafe & 2:
        a("s_waitcnt vmcnt(0)")
        a(f"v_readfirstlane_b32 s{sNONCE}, v{vPOLL}")
        nonce_spin(a, opt)
    a("s_barrier")
    for i in range(2):
        a(f"ds_read_b64_tr_b16 {vr(XF+4*i,2)}, v{TM+5} offset:{i*128}")
        a(f"ds_read_b64_tr_b16 {vr(XF+4*i+2,2)}, v{TM+5} offset:{i*128+4*LN_ROW}")
    a(f"s_cmp_ge_u32 s{sWAVE}, 2")
    a("s_cbranch_scc1 L_ln_two")
    a(f"ds_read_b64_tr_b16 {vr(XF+8,2)}, v{TM+5} offset:{2*128}")
    a(f"ds_read_b64_tr_b16 {vr(XF+10,2)}, v{TM+5} offset:{2*128+4*LN_ROW}")
    a("s_waitcnt lgkmcnt(0)")
    a(f"s_add_u32 s{sT0}, s{sSTEP}, {2*4096}")
    a(f"buffer_store_dwordx4 {vr(XF+8,4)}, v{TM+6}, {srd(sH)}, s{sT0} offen {opt.hbits}")
    a.label("L_ln_two")
    a("s_waitcnt lgkmcnt(0)")
    for i in range(2):
        a(f"s_add_u32 s{sT0}, s{sSTEP}, {i*4096}")
        a(f"buffer_store_dwordx4 {vr(XF+4*i,4)}, v{TM+6}, {srd(sH)}, s{sT0} offen {opt.hbits}")
    if not (opt.unsafe & 2): a(f"buffer_load_dword v{vPOLL}, v{vT}, {srd(sD)}, 0 offen sc1")
    stamp(a, opt, 2)
    if opt.unsafe & 2:
        a("s_barrier")
        a(f"s_cmp_lg_u32 s{sWAVE}, 0")
        a("s_cbranch_scc1 L_noflag0")
        a(f"s_lshl_b32 s{sT0}, s{sWG}, 2")
        flag_store(a, sT0)
        a.label("L_noflag0")
    a(f"s_cmp_ge_u32 s{sJ}, s{sJLIM}")
    a("s_cbranch_scc1 L_ln_idle2")
    ne = opt.nearly + opt.nmid
    a.vm = [f"w1_{i}" for i in range(ne)]
    for i in range(ne, ne + opt.npost): w1_dma(i)
    if not (opt.unsafe & 2): a(f"s_waitcnt vmcnt({4*opt.npost})")
    a("s_branch L_ln_go2")
    a.label("L_ln_idle2")
    if not (opt.unsafe & 2): a("s_waitcnt vmcnt(0)")
    a.label("L_ln_go2")
    if not (opt.unsafe & 2):
        a(f"v_readfirstlane_b32 s{sNONCE}, v{vPOLL}")
        nonce_spin(a, opt)
        a("s_barrier")
        a(f"s_cmp_lg_u32 s{sWAVE}, 0")
        a("s_cbranch_scc1 L_noflag")
        a(f"s_lshr_b32 s{sT0}, s{sWG}, 2")
        a(f"s_mul_i32 s{sT0}, s{sT0}, {opt.hline}")
        a(f"s_and_b32 s{sT1}, s{sWG}, 3")
        a(f"s_lshl_b32 s{sT1}, s{sT1}, 2")
        a(f"s_add_u32 s{sT0}, s{sT0}, s{sT1}")
        keep = list(a.vm)
        flag_store(a, sT0)
        a.vm = keep
        a.label("L_noflag")
    stamp(a, opt, 3)
    a(f"s_cmp_ge_u32 s{sJ}, s{sJLIM}")
    a("s_cbranch_scc1 L_nogemm1")
    w1_finish = w1_stream(opt.nearly + opt.nmid + opt.npost, opt.dp, opt.hold1)

    def common_setup(retr=True):
        make_srd(a, sH, 18, H_BYTES, WS_H)
        make_srd(a, sF, 18, FLAG_BYTES, WS_FLAG)
        make_srd(a, sB1, 8, F * 2)
        make_srd(a, sW2, 10, F * S * 2)
        make_srd(a, sB2, 12, S * 2)
        make_srd(a, sO, 14, S * D * 2)
        make_srd(a, sG, 18, G_BYTES, WS_G)
        a(f"v_lshrrev_b32 v{vT}, 4, v{vLANE}")
        a(f"v_lshlrev_b32 v{vT}, 3, v{vT}")
        a(f"s_and_b32 s{sT0}, s{sWAVE}, 1")
        a(f"s_lshl_b32 s{sT0}, s{sT0}, 6")
        a(f"s_lshl_b32 s{sT1}, s{sFT}, 7")
        a(f"s_add_u32 s{sT0}, s{sT0}, s{sT1}")
        a.vmem(f"buffer_load_dwordx2 {vr(vB1,2)}, v{vT}, {srd(sB1)}, s{sT0} offen", "b")
        a.vmem(f"buffer_load_dwordx2 {vr(vB1+2,2)}, v{vT}, {srd(sB1)}, s{sT0} offen offset:32", "b")
        a(f"v_and_b32 v{vT}, 15, v{vLANE}")
        a(f"v_lshlrev_b32 v{vT}, 1, v{vT}")
        a(f"s_lshl_b32 s{sT0}, s{sST}, 7")
        a(f"s_lshl_b32 s{sT1}, s{sWAVE}, 5")
        a(f"s_add_u32 s{sT0}, s{sT0}, s{sT1}")
        a.vmem(f"buffer_load_ushort v{vB2}, v{vT}, {srd(sB2)}, s{sT0} offen", "b")
        dma_addr(a, S * 2, sST)
        a(f"s_mul_i32 s{sWB}, s{sWAVE}, {448*S*2}")
        if retr: tr_addr(sM0B)
        a(f"s_sub_u32 s{sT0}, s{sUP}, s{sM0B}")
        for t in range(4):
            a(f"v_add_u32 v{vTRU+t}, s{sT0}, v{vTR+t}")
        a(f"v_lshlrev_b32 v{vL0}, 4, v{vLANE}")
        a(f"v_add_u32 v{vL1}, 65536, v{vL0}")
        a(f"v_add_u32 v{vL2}, 131072, v{vL0}")

    a.label("L_w1_ready")
    stamp(a, opt, 4)
    jitter(a, opt, 2)
    vm_keep = list(a.vm)
    common_setup(retr=False)
    a(f"s_mul_i32 s{sT0}, s{sDT1}, 5120")
    a(f"v_add_u32 v{vA}, s{sT0}, v{vL0}")
    a(f"v_add_u32 v{vA2}, 4096, v{vA}")
    a(f"s_cmp_lg_u32 s{sWAVE}, {opt.pollw}")
    a("s_cbranch_scc1 L_hpolled")
    if opt.epoll:
        a(f"s_waitcnt vmcnt({4*(15 - opt.epoll) + 3})")
        poll_check(a, 4, None, "L_hpolled")
    if opt.pipe & 1:
        a("s_waitcnt vmcnt(0)")
        poll_pipe(a, opt, vHP, None, opt.gap)
    else:
        poll(a, opt, vHP, 4, None, opt.sleeph, opt.preh, 1)
    a.label("L_hpolled")
    a.vm = vm_keep + ["b", "b", "b"]
    a("s_barrier")
    stamp(a, opt, 5)

    def a_loads(srdn, step, nsteps, s_rot):
        slot = step % NS
        step_off(a, sOFF, sSTEP, s_rot, step, nsteps, 40960)
        return [f"buffer_load_dwordx4 {vr(ring(slot,t),4)}, v{vA if t < 4 else vA2}, {srd(srdn)}, s{sOFF} offen offset:{(t*1024) if t < 4 else 0} {opt.abits}" for t in range(5)]

    def main_loop(srdn, nsteps, s_rot, tagp, mfma, stamp0, tail, nuni, pre=None):
        for st in range(opt.depth):
            for o, ins in enumerate(a_loads(srdn, st, nsteps, s_rot)): a.vmem(ins, f"{tagp}{st}_{o}")
        if pre: pre()
        for st in range(nuni):
            nx = st + opt.depth
            nxt = a_loads(srdn, nx, nsteps, s_rot) if nx < nsteps else None
            a.wait_vm(f"{tagp}{st}_4")
            if st == 0 and stamp0 is not None: stamp(a, opt, stamp0)
            for o in range(5):
                if nxt: a.vmem(nxt[o], f"{tagp}{nx}_{o}")
                for i in range(4): mfma(st, o, i, st % NS)
                if tail: tail(st, o)

    def tile_tail(nsteps, tagp, first, last, frag_of, mfma_tile, write_tile, extra):
        ic = [0]
        done_at = {}
        queue = []
        extra = list(extra)
        def emit(fn):
            fn(); ic[0] += 1
        def filler():
            if queue and ic[0] - done_at[queue[0]] >= 9:
                t = queue.pop(0); emit(lambda: write_tile(t)); return
            if extra: emit(extra.pop(0))
        tiles = list(first) + list(last)
        for i in range(0, len(tiles), 2):
            pair = tiles[i:i + 2]
            for t in pair:
                for st in (nsteps - 2, nsteps - 1): a.wait_vm(f"{tagp}{st}_{frag_of(t)}")
            for st in (nsteps - 2, nsteps - 1):
                for t in pair:
                    emit(lambda: mfma_tile(st, t))
                    if st == nsteps - 1:
                        done_at[t] = ic[0]
                        if t in first: queue.append(t)
                    filler()
        while extra: emit(extra.pop(0))
        while queue:
            while ic[0] - done_at[queue[0]] < 9: emit(lambda: a("s_nop 0"))
            t = queue.pop(0); emit(lambda: write_tile(t))

    a(f"s_mul_i32 s{sSTEP}, s{sWAVE}, {16*40960}")
    def mfma1(st, nt, mt, slot):
        c = "0" if st == 0 else vr(acc1(mt, nt), 4)
        a(f"v_mfma_f32_16x16x32_bf16 {vr(acc1(mt,nt),4)}, {ar(wfrag(st,mt),4)}, {vr(ring(slot,nt),4)}, {c}")
    parts13 = w2_dma_parts(a, 0) if opt.t13 else []
    def tail1(st, o):
        if st == 13 and parts13:
            if o == 0: parts13[0]()
            else: parts13[o]()
    main_loop(sH, 16, sROT1, "h", mfma1, 6, tail1, 14, w1_finish if opt.hold1 else None)

    a(f"s_mov_b32 s100, {f2h(C1)}"); a(f"s_mov_b32 s101, {f2h(C1)}")
    a(f"v_mov_b32 v{vC0}, {f2h(C0)}"); a(f"v_mov_b32 v{vC0+1}, {f2h(C0)}")
    def lds_ref(addr):
        if addr < 65536: return vL0, addr
        if addr < 131072: return vL1, addr - 65536
        return vL2, addr - 131072
    def owner1(p, nt): return p + (0 if nt < 3 else 2)
    units = [(p, nt) for p in range(2) for nt in range(5)]
    def red1_addr(src, u):
        k = [x for x in units if owner1(*x) != src].index(u)
        return src * 32768 + 24576 + k * 2048 if k < 4 else 131072 + src * 8192 + (k - 4) * 2048
    saved_vm = list(a.vm)
    for w in range(4):
        if w < 3:
            a(f"s_cmp_lg_u32 s{sWAVE}, {w}")
            a(f"s_cbranch_scc1 L_ep1_{w+1}")
        a.vm = list(saved_vm)
        nis = [1 if opt.t13 else 0]
        def more(n, limit):
            for _ in range(n):
                if nis[0] < limit:
                    w2_dma(a, nis[0]); nis[0] += 1
        tl = [(2 * p + hf, nt) for nt in range(5) for p in range(2) for hf in range(2)]
        first = [t for t in tl if owner1(t[0] // 2, t[1]) != w]
        last = [t for t in tl if owner1(t[0] // 2, t[1]) == w]
        def wr1(t):
            vb, off = lds_ref(red1_addr(w, (t[0] // 2, t[1])) + (t[0] & 1) * 1024)
            a(f"ds_write_b128 v{vb}, {vr(acc1(*t),4)} offset:{off}")
        extra = []
        for _ in range(opt.tt):
            extra += w2_dma_parts(a, nis[0]); nis[0] += 1
        tile_tail(16, "h", first, last, lambda t: t[1], lambda st, t: mfma1(st, t[1], t[0], st % NS), wr1, extra)
        stamp(a, opt, 7)
        jitter(a, opt, 3)
        more(opt.e1, 6)
        a("s_waitcnt lgkmcnt(0)")
        a("s_barrier")
        own_u = [u for u in units if owner1(*u) == w]
        RT = vRING
        n = 0
        for u in own_u:
            for src in range(4):
                if src == w: continue
                for hf in range(2):
                    vb, off = lds_ref(red1_addr(src, u) + hf * 1024)
                    a(f"ds_read_b128 {vr(RT + n*4, 4)}, v{vb} offset:{off}")
                    n += 1
        a.wait_vm("b")
        for i in range(4):
            a(f"v_lshlrev_b32 v{BI+2*i}, 16, v{vB1+i}")
            a(f"v_and_b32 v{BI+2*i+1}, 0xffff0000, v{vB1+i}")
        for u in own_u:
            p, nt = u
            for hf in range(2):
                r = acc1(2*p+hf, nt)
                a(f"v_pk_add_f32 {vr(r,2)}, {vr(r,2)}, {vr(BI+4*hf,2)}")
                a(f"v_pk_add_f32 {vr(r+2,2)}, {vr(r+2,2)}, {vr(BI+4*hf+2,2)}")
        n = 0
        tot = len(own_u) * 6
        for u in own_u:
            p, nt = u
            for si in range(3):
                for hf in range(2):
                    a(f"s_waitcnt lgkmcnt({min(15, tot - n - 1)})")
                    r = acc1(2*p+hf, nt)
                    a(f"v_pk_add_f32 {vr(r,2)}, {vr(r,2)}, {vr(RT+n*4,2)}")
                    a(f"v_pk_add_f32 {vr(r+2,2)}, {vr(r+2,2)}, {vr(RT+n*4+2,2)}")
                    n += 1
        a("s_barrier")
        regs = []
        for u in own_u:
            p, nt = u
            for hf in range(2):
                r = acc1(2*p+hf, nt)
                regs += [r, r + 2]
        more(opt.e2, 10)
        gelu_pairs(a, regs, RT, fill=lambda: more(opt.e3, 10))
        a(f"s_lshl_b32 s{sT0}, s{sFT}, 1")
        a(f"s_add_u32 s{sT0}, s{sT0}, {w & 1}")
        a(f"s_mul_i32 s{sT0}, s{sT0}, 40960")
        a(f"s_mul_i32 s{sT1}, s{sDT1}, 5120")
        a(f"s_add_u32 s{sT0}, s{sT0}, s{sT1}")
        for i, u in enumerate(own_u):
            p, nt = u
            o = RT + 64 + 4 * i
            r0, r1 = acc1(2*p, nt), acc1(2*p+1, nt)
            a(f"v_cvt_pk_bf16_f32 v{o}, v{r0}, v{r0+1}")
            a(f"v_cvt_pk_bf16_f32 v{o+1}, v{r0+2}, v{r0+3}")
            a(f"v_cvt_pk_bf16_f32 v{o+2}, v{r1}, v{r1+1}")
            a(f"v_cvt_pk_bf16_f32 v{o+3}, v{r1+2}, v{r1+3}")
            a(f"s_add_u32 s{sT1}, s{sT0}, {nt*1024}")
            a.vmem(f"buffer_store_dwordx4 {vr(o,4)}, v{vL0}, {srd(sG)}, s{sT1} offen {opt.gbits}", "g")
        stamp(a, opt, 8)
        jitter(a, opt, 4)
        def g_flag():
            a(f"s_lshl_b32 s{sT0}, s{sDT1}, 5")
            a(f"s_add_u32 s{sT0}, s{sT0}, s{sFT}")
            a(f"s_mul_i32 s{sT0}, s{sT0}, {opt.gstride}")
            a(f"s_add_u32 s{sT0}, s{sT0}, {FLAG_G + 4*w}")
            flag_store(a, sT0)
            stamp(a, opt, 9)
        if opt.unsafe & 1: g_flag()
        more(opt.nb, 10)
        def tr_first4():
            a.wait_vm("w2_3")
            for st in range(4):
                w2_tr(a, st)
                if st % 2 == 1: a("s_waitcnt lgkmcnt(0)")
        if not opt.flagfirst: tr_first4()
        if not (opt.unsafe & 1):
            a.wait_vm("g")
            if opt.gwg:
                a("s_barrier")
                if w == 0:
                    keep = list(a.vm); g_flag(); a.vm = keep
            else:
                g_flag()
        if opt.flagfirst:
            more(max(0, 4 - nis[0]), 10)
            more(opt.nb3, 10)
            tr_first4()
        assert nis[0] >= 4
        more(10, 10)
        more(4, 14)
        for st in range(4, 10):
            a.wait_vm(f"w2_{st}")
            w2_tr(a, st)
            if st % 2 == 1: a("s_waitcnt lgkmcnt(0)")
        a("s_branch L_pre2")
        if w < 3: a.label(f"L_ep1_{w+1}")

    a.label("L_nogemm1")
    a.vm = []
    common_setup()
    if False:
        a(f"s_lshl_b32 s{sT0}, s{sWAVE}, 6")
        a(f"v_add_u32 v{vX}, s{sT0}, v{vLANE}")
        a(f"v_mul_u32_u24 v{vX}, {opt.hstride}, v{vX}")
        poll(a, opt, vX, 2, None)
        if opt.idlewait > 1:
            a(f"s_sleep {opt.idlewait}")
    if opt.pf == 3:
        a(f"s_lshl_b32 s{sT0}, s{sIDLE}, 2")
        a(f"s_add_u32 s{sT0}, s{sT0}, s{sWAVE}")
        a(f"s_lshl_b32 s{sT0}, s{sT0}, 10")
        for k in range(44):
            o = vRING + (k % 16) * 4
            a.vmem(f"buffer_load_dwordx4 {vr(o,4)}, v{vL0}, {srd(sW2)}, s{sT0} offen {opt.pfbits}", f"pf{k}")
            a(f"s_add_u32 s{sT0}, s{sT0}, {160*1024}")
            if k >= opt.pfdepth: a.wait_vm(f"pf{k-opt.pfdepth}")
        a.wait_vm0()
    if opt.pf == 2:
        assert opt.p1 == 2 and opt.p2 == 1
        a(f"s_cmp_lt_u32 s{sJ}, 28")
        a("s_cbranch_scc1 L_nopf")
        a(f"s_sub_u32 s{sT0}, s{sJ}, 28")
        a(f"s_lshl_b32 s{sT0}, s{sT0}, 2")
        a(f"s_add_u32 s{sT0}, s{sT0}, s{sWAVE}")
        a(f"s_lshl_b32 s{sT0}, s{sT0}, 13")
        a(f"s_lshl_b32 s{sT1}, s{sXCD}, 9")
        a(f"s_add_u32 s{sT0}, s{sT0}, s{sT1}")
        a(f"v_lshrrev_b32 v{vX}, 5, v{vLANE}")
        a(f"v_lshlrev_b32 v{vX}, 12, v{vX}")
        a(f"v_and_b32 v{vX+1}, 31, v{vLANE}")
        a(f"v_lshlrev_b32 v{vX+1}, 4, v{vX+1}")
        a(f"v_add_u32 v{vX}, v{vX}, v{vX+1}")
        keep = list(a.vm)
        for k in range(54):
            o = vRING + (k % 16) * 4
            a.vmem(f"buffer_load_dwordx4 {vr(o,4)}, v{vX}, {srd(sW2)}, s{sT0} offen", f"pf{k}")
            a(f"s_add_u32 s{sT0}, s{sT0}, {16*8192}")
            if k >= opt.pfdepth: a.wait_vm(f"pf{k-opt.pfdepth}")
        a.wait_vm0()
        a.label("L_nopf")
        a.vm = keep
    for st in range(10): w2_dma(a, st)
    for st in range(4):
        a.wait_vm(f"w2_{st}")
        w2_tr(a, st)
        if st % 2 == 1: a("s_waitcnt lgkmcnt(0)")
    for st in range(10, 14): w2_dma(a, st)
    for st in range(4, 10):
        a.wait_vm(f"w2_{st}")
        w2_tr(a, st)
        if st % 2 == 1: a("s_waitcnt lgkmcnt(0)")

    if opt.idle1:
        a("s_waitcnt vmcnt(0)")
        a(f"s_cmp_lg_u32 s{sWAVE}, {opt.pollw}")
        a("s_cbranch_scc1 L_idle1")
        a(f"s_lshl_b32 s{sT0}, s{sDT2}, 5")
        a(f"s_add_u32 s{sT0}, s{sT0}, {opt.idle1ft}")
        a(f"s_mul_i32 s{sT0}, s{sT0}, {opt.gstride}")
        a(f"s_add_u32 s{sT0}, s{sT0}, {FLAG_G}")
        a(f"v_mov_b32 v{vX}, s{sT0}")
        poll(a, opt, vX, 1, None, opt.idle1)
        a.label("L_idle1")
    a.label("L_pre2")
    a(f"s_mul_i32 s{sT0}, s{sDT2}, 5120")
    a(f"v_add_u32 v{vA}, s{sT0}, v{vL0}")
    a(f"v_add_u32 v{vA2}, 4096, v{vA}")
    def w2_finish():
        a.wait_vm("w2all")
        a("s_waitcnt lgkmcnt(0)")
        for st in range(10, 14):
            w2_tr(a, st)
            if st % 2 == 1: a("s_waitcnt lgkmcnt(0)")
    if not opt.hold2:
        a.vm = ["w2all"]
        w2_finish()
    stamp(a, opt, 10)
    if opt.onepoll & 2:
        a(f"s_cmp_lg_u32 s{sWAVE}, {opt.pollw}")
        a("s_cbranch_scc1 L_gpolled")
        a(f"s_lshl_b32 s{sT0}, s{sDT2}, 5")
        a(f"s_mul_i32 s{sT0}, s{sT0}, {opt.gstride}")
        a(f"s_add_u32 s{sT0}, s{sT0}, {FLAG_G}")
        a(f"v_mul_u32_u24 v{vX}, {opt.gstride}, v{vLANE}")
        a(f"v_add_u32 v{vX}, s{sT0}, v{vX}")
        a(f"s_mov_b32 s{sP+2}, 0x7ffffff")
        a(f"s_mov_b32 s{sP+3}, 0")
        if opt.pipe & 2:
            a("s_waitcnt vmcnt(0)")
            poll_pipe(a, opt, vX, sP + 2, opt.gap, 1 if opt.gwg else 4)
        else:
            poll(a, opt, vX, 1 if opt.gwg else 4, sP + 2, opt.sleep, opt.preg)
        a.label("L_gpolled")
        a("s_barrier")
    else:
        a(f"s_lshl_b32 s{sT0}, s{sDT2}, 5")
        a(f"s_mul_i32 s{sT1}, s{sWAVE}, 7")
        a(f"s_add_u32 s{sT0}, s{sT0}, s{sT1}")
        a(f"s_mul_i32 s{sT0}, s{sT0}, {opt.gstride}")
        a(f"s_add_u32 s{sT0}, s{sT0}, {FLAG_G}")
        a(f"v_mul_u32_u24 v{vX}, {opt.gstride}, v{vLANE}")
        a(f"v_add_u32 v{vX}, s{sT0}, v{vX}")
        a(f"s_cmp_eq_u32 s{sWAVE}, 3")
        a(f"s_cselect_b32 s{sP+2}, 0x3f, 0x7f")
        a(f"s_mov_b32 s{sP+3}, 0")
        poll(a, opt, vX, 4, sP + 2, opt.sleep, opt.preg)
    a.vm = ["w2all"] if opt.hold2 else []
    stamp(a, opt, 11)
    a(f"s_mul_i32 s{sSTEP}, s{sWAVE}, {14*40960}")
    def mfma2(st, mt, nt, slot):
        c = "0" if st == 0 else vr(acc2(mt, nt), 4)
        a(f"v_mfma_f32_16x16x32_bf16 {vr(acc2(mt,nt),4)}, {vr(ring(slot,mt),4)}, {ar(wfrag(st,nt),4)}, {c}")
    main_loop(sG, 14, sROT2, "g", mfma2, 12, None, 12, w2_finish if opt.hold2 else None)
    saved_vm2 = list(a.vm)
    a(f"v_and_b32 v{vT}, 15, v{vLANE}")
    a(f"s_lshl_b32 s{sT0}, s{sWAVE}, 4")
    a(f"v_add_u32 v{vT}, s{sT0}, v{vT}")
    a(f"v_mul_u32_u24 v{vA}, 1280, v{vT}")
    a(f"v_lshrrev_b32 v{vT}, 4, v{vLANE}")
    a(f"v_lshlrev_b32 v{vT}, 3, v{vT}")
    a(f"v_add_u32 v{vA}, v{vA}, v{vT}")
    a(f"s_mul_i32 s{sT0}, s{sST}, {64*1280}")
    a(f"s_mul_i32 s{sT1}, s{sDT2}, 160")
    a(f"s_add_u32 s{sOFF}, s{sT0}, s{sT1}")
    a(f"v_lshlrev_b32 v{vC0}, 16, v{vB2}")
    a(f"v_lshlrev_b32 v{vC0+1}, 16, v{vB2}")
    a(f"v_sub_u32 v{vA2}, v{vA}, v{vT}")
    a(f"v_bfe_u32 v{vT}, v{vLANE}, 4, 1")
    a(f"v_lshlrev_b32 v{vT}, 5, v{vT}")
    a(f"v_add_u32 v{vA2}, v{vA2}, v{vT}")
    a(f"v_bfe_u32 v{vT}, v{vLANE}, 5, 1")
    a(f"v_lshlrev_b32 v{vT}, 4, v{vT}")
    a(f"v_add_u32 v{vA2}, v{vA2}, v{vT}")
    def red2_addr(src, nt, mt):
        k = [x for x in range(4) if x != src].index(nt)
        return src * 32768 + (k * 5 + mt) * 1024
    for w in range(4):
        if w < 3:
            a(f"s_cmp_lg_u32 s{sWAVE}, {w}")
            a(f"s_cbranch_scc1 L_ep2_{w+1}")
        a.vm = list(saved_vm2)
        tl = [(mt, nt) for mt in range(5) for nt in range(4)]
        def wr2(t):
            vb, off = lds_ref(red2_addr(w, t[1], t[0]))
            a(f"ds_write_b128 v{vb}, {vr(acc2(*t),4)} offset:{off}")
        tile_tail(14, "g", [t for t in tl if t[1] != w], [t for t in tl if t[1] == w], lambda t: t[0],
                  lambda st, t: mfma2(st, t[0], t[1], st % NS), wr2, [])
        stamp(a, opt, 13)
        jitter(a, opt, 5)
        a("s_waitcnt lgkmcnt(0)")
        a("s_barrier")
        RT = vRING
        n = 0
        for mt in range(5):
            for src in range(4):
                if src == w: continue
                vb, off = lds_ref(red2_addr(src, w, mt))
                a(f"ds_read_b128 {vr(RT+n*4,4)}, v{vb} offset:{off}")
                n += 1
        n = 0
        for mt in range(5):
            r = acc2(mt, w)
            for si in range(3):
                a(f"s_waitcnt lgkmcnt({14 - n})")
                a(f"v_pk_add_f32 {vr(r,2)}, {vr(r,2)}, {vr(RT+n*4,2)}")
                a(f"v_pk_add_f32 {vr(r+2,2)}, {vr(r+2,2)}, {vr(RT+n*4+2,2)}")
                n += 1
            a(f"v_pk_add_f32 {vr(r,2)}, {vr(r,2)}, {vr(vC0,2)}")
            a(f"v_pk_add_f32 {vr(r+2,2)}, {vr(r+2,2)}, {vr(vC0,2)}")
            o = RT + 64 + 2 * mt
            a(f"v_cvt_pk_bf16_f32 v{o}, v{r}, v{r+1}")
            a(f"v_cvt_pk_bf16_f32 v{o+1}, v{r+2}, v{r+3}")
            if not opt.wide or mt == 4:
                a(f"buffer_store_dwordx2 {vr(o,2)}, v{vA}, {srd(sO)}, s{sOFF} offen offset:{mt*32} {opt.obits}")
            elif mt % 2 == 1:
                a("s_nop 1")
                a(f"v_permlane16_swap_b32 v{o-2}, v{o}")
                a(f"v_permlane16_swap_b32 v{o-1}, v{o+1}")
                a(f"buffer_store_dwordx4 {vr(o-2,4)}, v{vA2}, {srd(sO)}, s{sOFF} offen offset:{(mt-1)*32} {opt.obits}")
        a("s_branch L_fin")
        if w < 3: a.label(f"L_ep2_{w+1}")
    a.label("L_fin")
    if opt.probe >= 0:
        if opt.probe == 14:
            a("s_waitcnt vmcnt(0)")
            stamp(a, opt, 14)
        a(f"s_cmp_lg_u32 s{sWG}, {opt.probewg}")
        a("s_cbranch_scc1 L_done")
        a(f"s_cmp_lg_u32 s{sWAVE}, {opt.probew}")
        a("s_cbranch_scc1 L_done")
        ref = sNONCE if opt.probeabs else (sPROF + 2 if opt.probe0 >= 0 else 96)
        a(f"s_sub_u32 s{sT1}, s{sPROF+1}, s{ref}")
        if opt.probecyc: a(f"s_lshr_b32 s{sT1}, s{sT1}, 2")
        else: a(f"s_lshl_b32 s{sT1}, s{sT1}, 2")
        a(f"s_add_u32 s{sT1}, s{sT1}, 4000")
        a.label("L_probe")
        a(f"s_memrealtime s[{sP}:{sP+1}]")
        a("s_waitcnt lgkmcnt(0)")
        a(f"s_sub_u32 s{sT0}, s{sP}, s96")
        a(f"s_cmp_lt_u32 s{sT0}, s{sT1}")
        a("s_cbranch_scc1 L_probe")
    if opt.pad:
        a.label("L_pad")
        a(f"s_memrealtime s[{sP}:{sP+1}]")
        a("s_waitcnt lgkmcnt(0)")
        a(f"s_sub_u32 s{sT0}, s{sP}, s96")
        a(f"s_cmp_lt_u32 s{sT0}, {opt.pad}")
        a("s_cbranch_scc1 L_pad")
    if opt.prof:
        a("s_waitcnt vmcnt(0)")
        stamp(a, opt, 14)
        make_srd(a, sX, 18, 65536, WS_PROF)
        a(f"s_lshl_b32 s{sT0}, s{sWG}, 2")
        a(f"s_add_u32 s{sT0}, s{sT0}, s{sWAVE}")
        a(f"s_lshl_b32 s{sT0}, s{sT0}, 6")
        a(f"v_mov_b32 v{vT}, s{sT0}")
        a("s_mov_b64 exec, 1")
        for i in range(15):
            a(f"v_mov_b32 v100, s{sPROF+i}")
            a(f"buffer_store_dword v100, v{vT}, {srd(sX)}, 0 offen offset:{4*i}")
            a("s_nop 1")
        a("s_waitcnt vmcnt(0)")
    a.label("L_done")
    a("s_endpgm")
    a.label("L_codeend")
    a.raw('.section .rodata,"a"')
    a.raw(".p2align 6")
    a.raw(f".amdhsa_kernel {KN}")
    for l in ["next_free_vgpr 512", "next_free_sgpr 102", "accum_offset 256", "group_segment_fixed_size 0",
              "kernarg_size 64", "user_sgpr_count 2", "user_sgpr_kernarg_segment_ptr 1",
              "system_sgpr_workgroup_id_x 1", "float_denorm_mode_32 3"]:
        a.raw(f"  .amdhsa_{l}")
    a.raw(".end_amdhsa_kernel")
    return "\n".join(a.L) + "\n"

def parse(argv=None):
    ap = argparse.ArgumentParser()
    ap.add_argument("-o", default="standalone__mixer_token_mlp__prompt.s")
    ap.add_argument("--prof", type=int, default=0)
    ap.add_argument("--rot", type=int, default=3)
    ap.add_argument("--spin", type=int, default=20000)
    ap.add_argument("--sleep", type=int, default=8)
    ap.add_argument("--depth", type=int, default=3)
    ap.add_argument("--lnprof", type=int, default=0)
    ap.add_argument("--hbits", default="sc1")
    ap.add_argument("--pfwait", type=int, default=1)
    ap.add_argument("--hold", type=int, default=0)
    ap.add_argument("--probe", type=int, default=-1)
    ap.add_argument("--probe0", type=int, default=-1)
    ap.add_argument("--probecyc", type=int, default=0)
    ap.add_argument("--probeabs", type=int, default=0)
    ap.add_argument("--probewg", type=int, default=100)
    ap.add_argument("--probew", type=int, default=2)
    ap.add_argument("--rot8", type=int, default=1)
    ap.add_argument("--cpf", type=int, default=1)
    ap.add_argument("--cpfw", type=int, default=3)
    ap.add_argument("--wide", type=int, default=1)
    ap.add_argument("--idlewait", type=int, default=0)
    ap.add_argument("--sleeph", type=int, default=8)
    ap.add_argument("--preh", type=int, default=0)
    ap.add_argument("--preg", type=int, default=0)
    ap.add_argument("--onepoll", type=int, default=3)
    ap.add_argument("--pollw", type=int, default=3)
    ap.add_argument("--nta", type=int, default=0)
    ap.add_argument("--rotg1", type=int, default=0)
    ap.add_argument("--rotg2", type=int, default=0)
    ap.add_argument("--npost", type=int, default=3)
    ap.add_argument("--xbar", type=int, default=1)
    ap.add_argument("--hold1", type=int, default=4)
    ap.add_argument("--hold2", type=int, default=1)
    ap.add_argument("--nmid", type=int, default=0)
    ap.add_argument("--gbits", default="sc1")
    ap.add_argument("--fbits", default="sc1")
    ap.add_argument("--abits", default="sc1")
    ap.add_argument("--unsafe", type=int, default=0)
    ap.add_argument("--epoll", type=int, default=12)
    ap.add_argument("--pipe", type=int, default=1)
    ap.add_argument("--gap", type=int, default=2)
    ap.add_argument("--gwg", type=int, default=1)
    ap.add_argument("--hline", type=int, default=16)
    ap.add_argument("--idle1", type=int, default=0)
    ap.add_argument("--idle1ft", type=int, default=13)
    ap.add_argument("--jitter", type=int, default=0)
    ap.add_argument("--flagfirst", type=int, default=0)
    ap.add_argument("--nb3", type=int, default=2)
    ap.add_argument("--pairx", type=int, default=1)
    ap.add_argument("--t13", type=int, default=1)
    ap.add_argument("--tt", type=int, default=2)
    ap.add_argument("--e2", type=int, default=0)
    ap.add_argument("--e3", type=int, default=0)
    ap.add_argument("--nb2", type=int, default=0)
    ap.add_argument("--e1", type=int, default=1)
    ap.add_argument("--nb", type=int, default=2)
    ap.add_argument("--nearly", type=int, default=2)
    ap.add_argument("--dpl", type=int, default=5)
    ap.add_argument("--dp", type=int, default=4)
    ap.add_argument("--p1", type=int, default=2)
    ap.add_argument("--p2", type=int, default=1)
    ap.add_argument("--rota1", type=int, default=0)
    ap.add_argument("--rota2", type=int, default=0)
    ap.add_argument("--xbits", default="nt")
    ap.add_argument("--w1bits", default="")
    ap.add_argument("--w2bits", default="")
    ap.add_argument("--pfbits", default="")
    ap.add_argument("--pfdepth", type=int, default=8)
    ap.add_argument("--prio", type=int, default=3)
    ap.add_argument("--delay", type=int, default=0)
    ap.add_argument("--hstride", type=int, default=8)
    ap.add_argument("--gstride", type=int, default=256)
    ap.add_argument("--pf", type=int, default=0)
    ap.add_argument("--pad", type=int, default=0)
    ap.add_argument("--obits", default="sc0 sc1")
    return ap.parse_args(argv)

if __name__ == "__main__":
    opt = parse()
    open(opt.o, "w").write(gen(opt))
```

```python
import argparse, struct

S, D, F = 2048, 640, 1728
KN = "standalone__mixer_token_mlp__prompt_kernel"

WS_H = 0
H_BYTES = 64 * 40 * 1024
WS_G = 0x300000
G_BYTES = 54 * 40 * 1024
WS_FLAG = 0x600000
FLAG_H = 0
FLAG_G = 0x10000
FLAG_BYTES = 0x40000
WS_PROF = 0x700000

LDS_BYTES = 163840
LN_BASE = 131072
LN_ROW = 1344
LF_BASE = 141824
P0_BASE = [0, 49152, 98304, 122880]

sWG = 2
sX, sW1, sW2, sH, sG, sO, sF, sB1, sB2, sD = 20, 24, 28, 32, 36, 40, 44, 48, 52, 56
sWAVE, sXCD, sJ, sFT, sDT1, sST, sDT2, sNONCE = 60, 61, 62, 63, 64, 65, 66, 67
sT0, sT1, sT2, sT3, sT4, sT5 = 68, 69, 70, 71, 72, 73
sROT1, sROT2, sSTEP, sOFF = 74, 75, 76, 77
sM0B, sSPIN = 78, 79
sP = 80
sPROF = 84
sUP = 99
sJLIM, sIDLE = 100, 101
sWB = 3

vTID, vLANE = 0, 1
vTR = 2
vA, vA2, vDMA, vT2 = 6, 7, 8, 9
vB1 = 10
vB2, vT = 14, 15
vACC = 16
vRING = 96
vTRU = 196
vL0, vL1, vL2 = 200, 201, 202
vC0 = 204
BI = 206
vPOLL = 214
vX = 216
vHP = 226
vPQ = 228
vDM = 220

def srd(n): return f"s[{n}:{n+3}]"
def vr(n, c=1): return f"v{n}" if c == 1 else f"v[{n}:{n+c-1}]"
def ar(n, c=1): return f"a{n}" if c == 1 else f"a[{n}:{n+c-1}]"
def f2h(x): return "0x%08x" % struct.unpack("<I", struct.pack("<f", x))[0]
C0 = -2.0 * 0.7978845608028654 * 1.4426950408889634
C1 = C0 * 0.044715

class Asm:
    def __init__(self):
        self.L = []; self.vm = []; self.uid = 0
    def __call__(self, s): self.L.append("    " + s)
    def label(self, s): self.L.append(s + ":")
    def raw(self, s): self.L.append(s)
    def c(self, s): self.L.append("    ; " + s)
    def vmem(self, s, tag):
        self(s); self.vm.append(tag)
    def wait_vm(self, tag):
        hits = [i for i, t in enumerate(self.vm) if t == tag]
        if not hits: return
        n = len(self.vm) - 1 - hits[-1]
        self(f"s_waitcnt vmcnt({min(n, 63)})")
        self.vm = self.vm[hits[-1] + 1:]
    def wait_vm0(self):
        self("s_waitcnt vmcnt(0)"); self.vm = []
    def newlabel(self, p):
        self.uid += 1
        return f"L_{p}_{self.uid}"

def acc1(mt, nt): return vACC + (mt * 5 + nt) * 4
def acc2(mt, nt): return vACC + (mt * 4 + nt) * 4
def wfrag(step, t): return step * 16 + t * 4

def stamp(a, opt, idx, force=False):
    if opt.probe >= 0:
        ins = "s_memtime" if opt.probecyc else "s_memrealtime"
        if idx == opt.probe:
            a(f"{ins} s[{sP}:{sP+1}]")
            a("s_waitcnt lgkmcnt(0)")
            a(f"s_mov_b32 s{sPROF+1}, s{sP}")
        if idx == opt.probe0:
            a(f"{ins} s[{sP}:{sP+1}]")
            a("s_waitcnt lgkmcnt(0)")
            a(f"s_mov_b32 s{sPROF+2}, s{sP}")
        return
    if opt.prof == 4 and idx != 14: return
    if opt.lnprof and idx in (4, 5) and getattr(a, "ln_done", False): return
    if opt.prof:
        a(f"s_mem{'time' if opt.prof == 2 else 'realtime'} s[{sP}:{sP+1}]")
        a("s_waitcnt lgkmcnt(0)")
        a(f"s_mov_b32 s{sPROF+idx}, s{sP}")

def jitter(a, opt, k):
    if not opt.jitter: return
    lp, dn = a.newlabel("jit"), a.newlabel("jitd")
    a(f"s_lshl_b32 s{sP+2}, s{sWG}, 2")
    a(f"s_add_u32 s{sP+2}, s{sP+2}, s{sWAVE}")
    a(f"s_mul_i32 s{sP+2}, s{sP+2}, {2654435761 * (2 * k + opt.jitter) % (1 << 31)}")
    a(f"s_lshr_b32 s{sP+2}, s{sP+2}, 26")
    a.label(lp)
    a(f"s_cmp_eq_u32 s{sP+2}, 0")
    a(f"s_cbranch_scc1 {dn}")
    a("s_sleep 2")
    a(f"s_sub_u32 s{sP+2}, s{sP+2}, 1")
    a(f"s_branch {lp}")
    a.label(dn)

def make_srd(a, n, lo, size, add=0):
    if add:
        a(f"s_add_u32 s{n}, s{lo}, {add}")
        a(f"s_addc_u32 s{n+1}, s{lo+1}, 0")
        a(f"s_and_b32 s{n+1}, s{n+1}, 0xffff")
    else:
        a(f"s_mov_b32 s{n}, s{lo}")
        a(f"s_and_b32 s{n+1}, s{lo+1}, 0xffff")
    a(f"s_mov_b32 s{n+2}, {size}")
    a(f"s_mov_b32 s{n+3}, 0x20000")

def nonce_spin(a, opt):
    lp = a.newlabel("nonce"); dn = a.newlabel("nonced")
    a(f"s_cmp_lg_u32 s{sNONCE}, 0")
    a(f"s_cbranch_scc1 {dn}")
    a(f"s_mov_b32 s{sSPIN}, 0")
    a(f"v_mov_b32 v{vT}, 0")
    a.label(lp)
    a(f"buffer_load_dword v{vT2}, v{vT}, {srd(sD)}, 0 offen sc1")
    a("s_waitcnt vmcnt(0)")
    a(f"v_readfirstlane_b32 s{sNONCE}, v{vT2}")
    a(f"s_add_u32 s{sSPIN}, s{sSPIN}, 1")
    a(f"s_cmp_lg_u32 s{sNONCE}, 0")
    a(f"s_cbranch_scc1 {dn}")
    a(f"s_cmp_lt_u32 s{sSPIN}, {opt.spin}")
    a(f"s_cbranch_scc1 {lp}")
    a.label(dn)

def lds_set(a, addr_sgpr_or_imm):
    a(f"v_mov_b32 v{vT}, {addr_sgpr_or_imm}")
    a(f"v_mov_b32 v{vT2}, 1")
    a(f"s_mov_b64 s[{sP}:{sP+1}], exec")
    a("s_mov_b64 exec, 1")
    a(f"ds_write_b32 v{vT}, v{vT2}")
    a(f"s_mov_b64 exec, s[{sP}:{sP+1}]")

def lds_spin(a, opt, addr):
    lp = a.newlabel("lspin"); dn = a.newlabel("lspun")
    a(f"v_mov_b32 v{vT}, {addr}")
    a(f"s_mov_b32 s{sSPIN}, 0")
    a.label(lp)
    a(f"ds_read_b32 v{vT2}, v{vT}")
    a("s_waitcnt lgkmcnt(0)")
    a(f"v_readfirstlane_b32 s{sP}, v{vT2}")
    a(f"s_add_u32 s{sSPIN}, s{sSPIN}, 1")
    a(f"s_cmp_lg_u32 s{sP}, 0")
    a(f"s_cbranch_scc1 {dn}")
    a(f"s_cmp_lt_u32 s{sSPIN}, {opt.spin * 8}")
    a(f"s_cbranch_scc1 {lp}")
    a.label(dn)

def dma_addr(a, stride, s_tile):
    a(f"v_lshrrev_b32 v{vT}, 3, v{vLANE}")
    a(f"v_lshrrev_b32 v{vT2}, 1, v{vT}")
    a(f"v_lshlrev_b32 v{vT2}, 1, v{vT2}")
    a(f"v_and_b32 v{vDM}, 7, v{vLANE}")
    a(f"v_xor_b32 v{vDM}, v{vDM}, v{vT2}")
    a(f"v_lshlrev_b32 v{vDM}, 4, v{vDM}")
    a(f"v_mul_u32_u24 v{vT}, {stride}, v{vT}")
    a(f"v_add_u32 v{vDM}, v{vDM}, v{vT}")
    a(f"s_lshl_b32 s{sT0}, s{s_tile}, 7")
    a(f"v_add_u32 v{vDM}, s{sT0}, v{vDM}")
    for b in range(1, 4):
        a(f"v_add_u32 v{vDM+b}, {b*(8*stride-1024)}, v{vDM}")

def step_off(a, dst, s_base, s_rot, i, nsteps, bytes_per_step):
    a(f"s_add_u32 s{sT4}, s{s_rot}, {i}")
    a(f"s_cmp_ge_u32 s{sT4}, {nsteps}")
    a(f"s_cselect_b32 s{dst}, {nsteps}, 0")
    a(f"s_sub_u32 s{sT4}, s{sT4}, s{dst}")
    a(f"s_mul_i32 s{sT4}, s{sT4}, {bytes_per_step}")
    a(f"s_add_u32 s{dst}, s{sT4}, s{s_base}")

def dma_step(a, srdn, stride, s_rowbase, s_rot, step, nsteps, s_lds, lds_off, tag, bits=""):
    a(f"s_add_u32 m0, s{s_lds}, {lds_off}")
    step_off(a, sOFF, s_rowbase, s_rot, step, nsteps, 32 * stride)
    for blk in range(4):
        a.vmem(f"buffer_load_dwordx4 v{vDM+blk}, {srd(srdn)}, s{sOFF} offen offset:{blk*1024} {bits} lds", tag)

def tr_step(a, vbase, off, step):
    for t in range(4):
        w = wfrag(step, t)
        a(f"ds_read_b64_tr_b16 {ar(w,2)}, v{vbase+t} offset:{off}")
        a(f"ds_read_b64_tr_b16 {ar(w+2,2)}, v{vbase+t} offset:{off+2048}")

def poll(a, opt, vaddr, nd, lanes, sleep=None, pre=0, nload=1):
    if sleep is None: sleep = opt.sleep
    if pre: a(f"s_sleep {pre}")
    lp = a.newlabel("poll"); dn = a.newlabel("polled")
    a(f"s_mov_b32 s{sSPIN}, 0")
    a.label(lp)
    ld = {1: "dword", 2: "dwordx2", 4: "dwordx4"}[nd]
    for k in range(nload):
        a(f"buffer_load_{ld} {vr(vPQ + 4*k, nd)}, v{vaddr}, {srd(sF)}, 0 offen offset:{k*1024} sc1")
    a("s_waitcnt vmcnt(0)")
    first = True
    for k in range(nload):
        for i in range(nd):
            if first:
                a(f"v_cmp_ne_u32 vcc, s{sNONCE}, v{vPQ+4*k+i}"); first = False
            else:
                a(f"v_cmp_ne_u32 s[{sP}:{sP+1}], s{sNONCE}, v{vPQ+4*k+i}")
                a(f"s_or_b64 vcc, vcc, s[{sP}:{sP+1}]")
    if lanes is not None:
        a(f"s_and_b64 vcc, vcc, s[{lanes}:{lanes+1}]")
    a(f"s_add_u32 s{sSPIN}, s{sSPIN}, 1")
    a("s_cmp_eq_u64 vcc, 0")
    a(f"s_cbranch_scc1 {dn}")
    if sleep: a(f"s_sleep {sleep}")
    a(f"s_cmp_lt_u32 s{sSPIN}, {opt.spin}")
    a(f"s_cbranch_scc1 {lp}")
    a.label(dn)
    a.vm = []

def poll_pipe(a, opt, vaddr, lanes, gap, nd=4):
    dn = a.newlabel("ppolled"); lp = a.newlabel("ppoll")
    regs = [vPQ, vPQ + 4, vPQ + 8]
    def probe(r): a(f"buffer_load_{'dwordx4' if nd == 4 else 'dword'} {vr(r,nd)}, v{vaddr}, {srd(sF)}, 0 offen sc1")
    a(f"s_mov_b32 s{sSPIN}, 0")
    probe(regs[0]); a(f"s_sleep {gap}"); probe(regs[1]); a(f"s_sleep {gap}"); probe(regs[2])
    a.label(lp)
    for r in regs:
        a("s_waitcnt vmcnt(2)")
        for i in range(nd):
            if i == 0: a(f"v_cmp_ne_u32 vcc, s{sNONCE}, v{r}")
            else:
                a(f"v_cmp_ne_u32 s[{sP}:{sP+1}], s{sNONCE}, v{r+i}")
                a(f"s_or_b64 vcc, vcc, s[{sP}:{sP+1}]")
        if lanes is not None: a(f"s_and_b64 vcc, vcc, s[{lanes}:{lanes+1}]")
        a("s_cmp_eq_u64 vcc, 0")
        a(f"s_cbranch_scc1 {dn}")
        a(f"s_sleep {gap}")
        probe(r)
    a(f"s_add_u32 s{sSPIN}, s{sSPIN}, 1")
    a(f"s_cmp_lt_u32 s{sSPIN}, {opt.spin}")
    a(f"s_cbranch_scc1 {lp}")
    a.label(dn)

def poll_check(a, nd, lanes, ok_label):
    for i in range(nd):
        if i == 0: a(f"v_cmp_ne_u32 vcc, s{sNONCE}, v{vPQ}")
        else:
            a(f"v_cmp_ne_u32 s[{sP}:{sP+1}], s{sNONCE}, v{vPQ+i}")
            a(f"s_or_b64 vcc, vcc, s[{sP}:{sP+1}]")
    if lanes is not None:
        a(f"s_and_b64 vcc, vcc, s[{lanes}:{lanes+1}]")
    a("s_cmp_eq_u64 vcc, 0")
    a(f"s_cbranch_scc1 {ok_label}")

def flag_store(a, s_index_bytes):
    a(f"v_mov_b32 v{vT}, s{s_index_bytes}")
    a(f"v_mov_b32 v{vT2}, s{sNONCE}")
    a(f"s_mov_b64 s[{sP}:{sP+1}], exec")
    a("s_mov_b64 exec, 1")
    a.vmem(f"buffer_store_dword v{vT2}, v{vT}, {srd(sF)}, 0 offen {OPT.fbits}", "flag")
    a(f"s_mov_b64 exec, s[{sP}:{sP+1}]")

def gelu_pairs(a, regs, tmp, fill=None):
    def each(fn):
        for i, r in enumerate(regs): fn(r, tmp + 2 * i)
    each(lambda r, t: a(f"v_pk_mul_f32 {vr(t,2)}, {vr(r,2)}, {vr(r,2)}"))
    each(lambda r, t: a(f"v_pk_fma_f32 {vr(t,2)}, {vr(t,2)}, s[100:101], {vr(vC0,2)}"))
    each(lambda r, t: a(f"v_pk_mul_f32 {vr(t,2)}, {vr(t,2)}, {vr(r,2)}"))
    if fill: fill()
    each(lambda r, t: (a(f"v_exp_f32 v{t}, v{t}"), a(f"v_exp_f32 v{t+1}, v{t+1}")))
    each(lambda r, t: a(f"v_pk_add_f32 {vr(t,2)}, {vr(t,2)}, 1.0 op_sel_hi:[1,0]"))
    each(lambda r, t: (a(f"v_rcp_f32 v{t}, v{t}"), a(f"v_rcp_f32 v{t+1}, v{t+1}")))
    a("s_nop 0")
    each(lambda r, t: a(f"v_pk_mul_f32 {vr(r,2)}, {vr(r,2)}, {vr(t,2)}"))

def w2_slot(step):
    if step < 8: return sM0B, step * 4096, vTR, step * 4096
    if step < 10: return sUP, (step - 8) * 4096, vTRU, (step - 8) * 4096
    return sM0B, (step - 10) * 4096, vTR, (step - 10) * 4096

def w2_dma(a, step):
    sb, off, _, _ = w2_slot(step)
    dma_step(a, sW2, S * 2, sWB, sROT2, step, 14, sb, off, f"w2_{step}", OPT.w2bits)

def w2_dma_parts(a, step):
    sb, off, _, _ = w2_slot(step)
    def setup():
        a(f"s_add_u32 m0, s{sb}, {off}")
        step_off(a, sOFF, sWB, sROT2, step, 14, 32 * S * 2)
    def one(blk):
        return lambda: a.vmem(f"buffer_load_dwordx4 v{vDM+blk}, {srd(sW2)}, s{sOFF} offen offset:{blk*1024} {OPT.w2bits} lds", f"w2_{step}")
    return [setup] + [one(b) for b in range(4)]

def w2_tr(a, step):
    _, _, vb, off = w2_slot(step)
    tr_step(a, vb, off, step)

def gen(opt):
    global OPT
    OPT = opt
    a = Asm()
    NS = opt.depth + 1
    def ring(slot, t): return vRING + slot * 20 + t * 4
    a.raw(f"; @launch grid=(256,1,1) block=(256,1,1) lds={LDS_BYTES}")
    a.raw('.amdgcn_target "amdgcn-amd-amdhsa--gfx950"')
    a.raw(".text")
    a.raw(f".globl {KN}")
    a.raw(".p2align 8")
    a.raw(f".type {KN},@function")
    a.label(KN)
    if opt.cpf: a("s_getpc_b64 s[94:95]")
    a(f"s_cmp_ge_u32 s{sWG}, 256")
    a("s_cbranch_scc1 L_done")
    a("s_load_dwordx16 s[4:19], s[0:1], 0")
    if opt.prof:
        a(f"s_mem{'time' if opt.prof == 2 else 'realtime'} s[{sP}:{sP+1}]")
    if opt.prof:
        for i in range(1, 15): a(f"s_mov_b32 s{sPROF+i}, 0")
    if not opt.prof:
        a("s_memrealtime s[96:97]")
    a(f"v_lshrrev_b32 v{vT}, 6, v{vTID}")
    a(f"v_and_b32 v{vLANE}, 63, v{vTID}")
    a(f"v_readfirstlane_b32 s{sWAVE}, v{vT}")
    a(f"s_and_b32 s{sXCD}, s{sWG}, 7")
    a(f"s_lshr_b32 s{sJ}, s{sWG}, 3")
    if opt.p1 == 2:
        if opt.pairx:
            assert opt.pf == 0
            a(f"s_add_u32 s{sT1}, s{sXCD}, {opt.pairx - 1}")
            a(f"s_and_b32 s{sT1}, s{sT1}, 3")
            a(f"s_and_b32 s{sT2}, s{sXCD}, 4")
        else:
            a(f"s_lshr_b32 s{sT1}, s{sXCD}, 1")
            a(f"s_and_b32 s{sT2}, s{sXCD}, 1")
            a(f"s_lshl_b32 s{sT2}, s{sT2}, 2")
        a(f"s_mul_i32 s{sT0}, s{sT1}, 7")
        a(f"s_lshr_b32 s{sFT}, s{sJ}, 2")
        a(f"s_add_u32 s{sFT}, s{sFT}, s{sT0}")
        a(f"s_and_b32 s{sT3}, s{sJ}, 3")
        a(f"s_add_u32 s{sDT1}, s{sT2}, s{sT3}")
        if opt.rot8: a(f"s_lshl_b32 s{sROT1}, s{sDT1}, 1")
        else: a(f"s_lshl_b32 s{sROT1}, s{sT3}, 2")
        a(f"s_cmp_eq_u32 s{sT1}, 3")
        a(f"s_cselect_b32 s{sJLIM}, 24, 28")
        a(f"s_lshl_b32 s{sT0}, s{sXCD}, 2")
        a(f"s_sub_u32 s{sT0}, s{sT0}, 28")
        a(f"s_lshl_b32 s{sT3}, s{sXCD}, 3")
        a(f"s_sub_u32 s{sT3}, s{sT3}, 48")
        a(f"s_cselect_b32 s{sIDLE}, s{sT0}, s{sT0}")
        a(f"s_cmp_ge_u32 s{sXCD}, 6")
        a(f"s_cselect_b32 s{sIDLE}, s{sT3}, s{sT0}")
        a(f"s_add_u32 s{sIDLE}, s{sIDLE}, s{sJ}")
    else:
        a(f"s_lshl_b32 s{sT0}, s{sXCD}, 2")
        a(f"s_mul_i32 s{sT1}, s{sXCD}, 3")
        a(f"s_add_u32 s{sT1}, s{sT1}, 3")
        a(f"s_cmp_lt_u32 s{sXCD}, 3")
        a(f"s_cselect_b32 s{sT0}, s{sT0}, s{sT1}")
        a(f"s_cselect_b32 s{sJLIM}, 32, 24")
        a(f"s_lshr_b32 s{sFT}, s{sJ}, 3")
        a(f"s_add_u32 s{sFT}, s{sFT}, s{sT0}")
        a(f"s_and_b32 s{sDT1}, s{sJ}, 7")
        a(f"s_lshl_b32 s{sROT1}, s{sDT1}, 1")
        a(f"s_lshl_b32 s{sIDLE}, s{sXCD}, 3")
        a(f"s_add_u32 s{sIDLE}, s{sIDLE}, s{sJ}")
        a(f"s_sub_u32 s{sIDLE}, s{sIDLE}, 48")
    if opt.rotg1 == 3:
        a(f"s_mul_i32 s{sT0}, s{sFT}, 11")
        a(f"s_lshr_b32 s{sT0}, s{sT0}, 5")
        a(f"s_mul_i32 s{sT0}, s{sT0}, 3")
        a(f"s_sub_u32 s{sT0}, s{sFT}, s{sT0}")
        a(f"s_mul_i32 s{sT0}, s{sT0}, 5")
        a(f"s_add_u32 s{sROT1}, s{sROT1}, s{sT0}")
        a(f"s_and_b32 s{sROT1}, s{sROT1}, 15")
    if opt.rotg1 == 2:
        a(f"s_and_b32 s{sT0}, s{sFT}, 1")
        a(f"s_lshl_b32 s{sT0}, s{sT0}, 3")
        a(f"s_add_u32 s{sROT1}, s{sROT1}, s{sT0}")
        a(f"s_and_b32 s{sROT1}, s{sROT1}, 15")
    if opt.rota1:
        a(f"s_mul_i32 s{sT0}, s{sFT}, {opt.rota1}")
        a(f"s_add_u32 s{sROT1}, s{sROT1}, s{sT0}")
        a(f"s_and_b32 s{sROT1}, s{sROT1}, 15")
    if opt.p2 == 2:
        a(f"s_lshr_b32 s{sT1}, s{sXCD}, 1")
        a(f"s_and_b32 s{sT2}, s{sXCD}, 1")
        a(f"s_lshl_b32 s{sT2}, s{sT2}, 2")
        a(f"s_lshr_b32 s{sT0}, s{sJ}, 2")
        a(f"s_lshl_b32 s{sST}, s{sT1}, 3")
        a(f"s_add_u32 s{sST}, s{sST}, s{sT0}")
        a(f"s_and_b32 s{sT3}, s{sJ}, 3")
        a(f"s_add_u32 s{sDT2}, s{sT2}, s{sT3}")
        if opt.rot8:
            a(f"s_mul_i32 s{sROT2}, s{sDT2}, 7")
            a(f"s_lshr_b32 s{sROT2}, s{sROT2}, 2")
        else:
            a(f"s_mul_i32 s{sROT2}, s{sT3}, 7")
            a(f"s_lshr_b32 s{sROT2}, s{sROT2}, 1")
    else:
        a(f"s_lshr_b32 s{sT0}, s{sJ}, 3")
        a(f"s_lshl_b32 s{sST}, s{sXCD}, 2")
        a(f"s_add_u32 s{sST}, s{sST}, s{sT0}")
        a(f"s_and_b32 s{sDT2}, s{sJ}, 7")
        a(f"s_mul_i32 s{sROT2}, s{sDT2}, 7")
        a(f"s_lshr_b32 s{sROT2}, s{sROT2}, 2")
    if opt.rotg2:
        if opt.rotg2 == 2:
            a(f"s_and_b32 s{sT0}, s{sST}, 1")
            a(f"s_mul_i32 s{sT0}, s{sT0}, 7")
        else:
            a(f"s_mul_i32 s{sT0}, s{sST}, 11")
            a(f"s_lshr_b32 s{sT0}, s{sT0}, 5")
            a(f"s_mul_i32 s{sT0}, s{sT0}, 3")
            a(f"s_sub_u32 s{sT0}, s{sST}, s{sT0}")
            a(f"s_mul_i32 s{sT0}, s{sT0}, 5")
        a(f"s_add_u32 s{sROT2}, s{sROT2}, s{sT0}")
        a(f"s_cmp_ge_u32 s{sROT2}, 14")
        a(f"s_cselect_b32 s{sT0}, 14, 0")
        a(f"s_sub_u32 s{sROT2}, s{sROT2}, s{sT0}")
    if opt.rota2:
        a(f"s_mul_i32 s{sT0}, s{sST}, {opt.rota2}")
        a(f"s_add_u32 s{sROT2}, s{sROT2}, s{sT0}")
        a(f"s_and_b32 s{sT0}, s{sROT2}, 0xff")
        a(f"s_mul_i32 s{sT0}, s{sROT2}, 18725")
        a(f"s_lshr_b32 s{sT0}, s{sT0}, 18")
        a(f"s_mul_i32 s{sT0}, s{sT0}, 14")
        a(f"s_sub_u32 s{sROT2}, s{sROT2}, s{sT0}")
    if not (opt.rot & 1): a(f"s_mov_b32 s{sROT1}, 0")
    if not (opt.rot & 2): a(f"s_mov_b32 s{sROT2}, 0")
    a(f"s_lshl_b32 s{sM0B}, s{sWAVE}, 15")
    a(f"s_lshl_b32 s{sUP}, s{sWAVE}, 13")
    a(f"s_add_u32 s{sUP}, s{sUP}, 131072")
    def tr_addr(base_sgpr):
        t0, t1, t2 = vX, vX + 1, vX + 2
        a(f"v_lshrrev_b32 v{t0}, 4, v{vLANE}")
        a(f"v_and_b32 v{t1}, 1, v{t0}")
        a(f"v_lshlrev_b32 v{t1}, 2, v{t1}")
        a(f"v_bfe_u32 v{t2}, v{vLANE}, 2, 2")
        a(f"v_add_u32 v{t1}, v{t1}, v{t2}")
        a(f"v_lshrrev_b32 v{t0}, 1, v{t0}")
        a(f"v_lshlrev_b32 v{t0}, 10, v{t0}")
        a(f"v_lshlrev_b32 v{t2}, 7, v{t1}")
        a(f"v_add_u32 v{t0}, v{t0}, v{t2}")
        a(f"v_and_b32 v{t2}, 3, v{vLANE}")
        a(f"v_lshlrev_b32 v{t2}, 3, v{t2}")
        a(f"v_add_u32 v{t0}, v{t0}, v{t2}")
        a(f"v_add_u32 v{t0}, s{base_sgpr}, v{t0}")
        a(f"v_lshrrev_b32 v{t1}, 1, v{t1}")
        for t in range(4):
            a(f"v_xor_b32 v{t2}, {t}, v{t1}")
            a(f"v_lshlrev_b32 v{t2}, 5, v{t2}")
            a(f"v_add_u32 v{vTR+t}, v{t0}, v{t2}")
    def w1_dma(i): dma_step(a, sW1, F * 2, sWB, sROT1, i, 16, sM0B, (i % 8) * 4096, f"w1_{i}", "nt" if i < opt.nta else opt.w1bits)
    def w1_stream(first, dp, hold=0):
        retired = 0
        def retire():
            nonlocal retired
            a.wait_vm(f"w1_{retired}")
            if retired: a("s_waitcnt lgkmcnt(0)")
            tr_step(a, vTR, (retired % 8) * 4096, retired)
            retired += 1
        for i in range(first, 16):
            while retired <= i - dp: retire()
            if i >= 8:
                while retired <= i - 8: retire()
                if retired == i - 7: a("s_waitcnt lgkmcnt(0)")
            w1_dma(i)
            if opt.epoll and i == opt.epoll:
                a(f"v_mul_u32_u24 v{vHP}, {opt.hline}, v{vLANE}")
                a(f"s_cmp_lg_u32 s{sWAVE}, {opt.pollw}")
                a("s_cbranch_scc1 L_noepoll")
                a(f"buffer_load_dwordx4 {vr(vPQ,4)}, v{vHP}, {srd(sF)}, 0 offen sc1")
                a.label("L_noepoll")
        while retired < 16 - hold: retire()
        def finish():
            while retired < 16: retire()
            a("s_waitcnt lgkmcnt(0)")
        if not hold: finish()
        return finish
    dma_addr(a, F * 2, sFT)
    a(f"s_mul_i32 s{sWB}, s{sWAVE}, {512*F*2}")
    a.c("LayerNorm: wave w normalises rows 32*ks + 16*(w>>1) + 4*q + 2*(w&1) + (0,1), 32 lanes per row")
    XR, XF, TM = 96, 108, 130
    a(f"s_lshr_b32 s{sT0}, s{sWG}, 2")
    a(f"s_and_b32 s{sT1}, s{sWG}, 3")
    a(f"s_lshl_b32 s{sT2}, s{sT0}, 5")
    a(f"s_lshr_b32 s{sT3}, s{sWAVE}, 1")
    a(f"s_lshl_b32 s{sT3}, s{sT3}, 4")
    a(f"s_add_u32 s{sT2}, s{sT2}, s{sT3}")
    a(f"s_lshl_b32 s{sT3}, s{sT1}, 2")
    a(f"s_add_u32 s{sT2}, s{sT2}, s{sT3}")
    a(f"s_and_b32 s{sT3}, s{sWAVE}, 1")
    a(f"s_lshl_b32 s{sT3}, s{sT3}, 1")
    a(f"s_add_u32 s{sT2}, s{sT2}, s{sT3}")
    a(f"s_mul_i32 s{sT2}, s{sT2}, 1280")
    a(f"v_lshrrev_b32 v{TM}, 5, v{vLANE}")
    a(f"v_and_b32 v{TM+1}, 31, v{vLANE}")
    a(f"v_lshlrev_b32 v{TM+1}, 3, v{TM+1}")
    a(f"v_mul_u32_u24 v{TM+2}, 1280, v{TM}")
    a(f"v_add_u32 v{TM+2}, v{TM+2}, v{TM+1}")
    a(f"v_mov_b32 v{vT}, 0")
    a("s_waitcnt lgkmcnt(0)")
    if opt.prof: a(f"s_mov_b32 s{sPROF}, s{sP}")
    make_srd(a, sD, 16, 256)
    a(f"s_cmp_lg_u32 s{sWG}, 0")
    a("s_cbranch_scc1 L_nononce")
    a(f"s_cmp_lg_u32 s{sWAVE}, 3")
    a("s_cbranch_scc1 L_nononce")
    a(f"s_or_b32 s{sNONCE}, s{sP if opt.prof else 96}, 1")
    a(f"v_mov_b32 v{vT2}, s{sNONCE}")
    a(f"s_mov_b64 s[{sP+2}:{sP+3}], exec")
    a("s_mov_b64 exec, 1")
    a(f"buffer_store_dword v{vT2}, v{vT}, {srd(sD)}, 0 offen sc1")
    a(f"s_mov_b64 exec, s[{sP+2}:{sP+3}]")
    a.label("L_nononce")
    make_srd(a, sX, 4, S * D * 2)
    if opt.xpf:
        a(f"s_and_b32 s{sT3}, s{sWG}, 4")
        a(f"s_cmp_lg_u32 s{sT3}, 0")
        a("s_cbranch_scc1 L_xlate")
        a(f"s_add_u32 s{sT3}, s{sT2}, {32*1280}")
        for i in range(5):
            a(f"buffer_load_dwordx2 {vr(244+2*(i%2),2)}, v{TM+2}, {srd(sX)}, s{sT3} offen offset:{i*256}")
        for i in range(5):
            a(f"buffer_load_dwordx2 {vr(XR+2*i,2)}, v{TM+2}, {srd(sX)}, s{sT2} offen offset:{i*256} {opt.xbits}")
        a("s_branch L_xissued")
        a.label("L_xlate")
        for i in range(5):
            a(f"buffer_load_dwordx2 {vr(XR+2*i,2)}, v{TM+2}, {srd(sX)}, s{sT2} offen offset:{i*256}")
        a.label("L_xissued")
    else:
        for i in range(5):
            a.vmem(f"buffer_load_dwordx2 {vr(XR+2*i,2)}, v{TM+2}, {srd(sX)}, s{sT2} offen offset:{i*256} {opt.xbits}", "x")
    make_srd(a, sW1, 6, S * F * 2)
    if opt.xbar: a("s_barrier")
    a(f"s_cmp_ge_u32 s{sJ}, s{sJLIM}")
    a("s_cbranch_scc1 L_ln_now1")
    for i in range(opt.nearly): w1_dma(i)
    a.label("L_ln_now1")
    if opt.cpf:
        a(f"s_cmp_lg_u32 s{sWAVE}, 3")
        a("s_cbranch_scc1 L_nocpf")
        a(f"s_lshl_b32 s{sT3}, s{sJ}, 11")
        a(f"v_lshlrev_b32 v{vX}, 4, v{vLANE}")
        a(f"v_add_u32 v{vX}, s{sT3}, v{vX}")
        a(f"v_add_u32 v{vX+1}, 1024, v{vX}")
        for h in range(2):
            a(f"v_min_u32 v{vX+h}, L_codeend-{KN}-36, v{vX+h}")
            a(f"global_load_dwordx4 {vr(240+4*h,4)}, v{vX+h}, s[94:95]")
        a.label("L_nocpf")
    make_srd(a, sH, 18, H_BYTES, WS_H)
    make_srd(a, sF, 18, FLAG_BYTES, WS_FLAG)
    a(f"s_mul_i32 s{sSTEP}, s{sT0}, 40960")
    a(f"s_lshl_b32 s{sT1}, s{sT1}, 8")
    a(f"s_add_u32 s{sSTEP}, s{sSTEP}, s{sT1}")
    a(f"s_lshl_b32 s{sT3}, s{sWAVE}, 1")
    a(f"v_add_u32 v{TM+4}, s{sT3}, v{TM}")
    a(f"v_mul_u32_u24 v{TM+4}, {LN_ROW}, v{TM+4}")
    a(f"v_add_u32 v{TM+4}, v{TM+4}, v{TM+1}")
    a(f"v_add_u32 v{TM+4}, {LN_BASE}, v{TM+4}")
    a(f"s_mul_i32 s{sT3}, s{sWAVE}, 12")
    a(f"s_cmp_eq_u32 s{sWAVE}, 3")
    a(f"s_cselect_b32 s{sT3}, 32, s{sT3}")
    a(f"v_lshrrev_b32 v{TM+6}, 4, v{vLANE}")
    a(f"v_add_u32 v{TM+6}, s{sT3}, v{TM+6}")
    a(f"v_bfe_u32 v{TM+5}, v{vLANE}, 2, 2")
    a(f"v_mul_u32_u24 v{TM+5}, {LN_ROW}, v{TM+5}")
    a(f"v_lshlrev_b32 v{TM+7}, 5, v{TM+6}")
    a(f"v_add_u32 v{TM+5}, v{TM+5}, v{TM+7}")
    a(f"v_and_b32 v{TM+7}, 3, v{vLANE}")
    a(f"v_lshlrev_b32 v{TM+7}, 3, v{TM+7}")
    a(f"v_add_u32 v{TM+5}, v{TM+5}, v{TM+7}")
    a(f"v_add_u32 v{TM+5}, {LN_BASE}, v{TM+5}")
    a(f"v_lshlrev_b32 v{TM+6}, 10, v{TM+6}")
    a(f"v_and_b32 v{TM+7}, 15, v{vLANE}")
    a(f"v_lshlrev_b32 v{TM+7}, 4, v{TM+7}")
    a(f"v_add_u32 v{TM+6}, v{TM+6}, v{TM+7}")
    tr_addr(sM0B)
    a(f"s_mov_b32 s{sT0}, 0xffff0000")
    nc = 2 if opt.cpf else 0
    a(f"s_cmp_ge_u32 s{sJ}, s{sJLIM}")
    a("s_cbranch_scc1 L_ln_idle")
    a(f"s_cmp_eq_u32 s{sWAVE}, 3")
    a("s_cbranch_scc1 L_ln_w3")
    a(f"s_waitcnt vmcnt({4*opt.nearly})")
    a("s_branch L_ln_go")
    a.label("L_ln_w3")
    a(f"s_waitcnt vmcnt({4*opt.nearly + nc})")
    a("s_branch L_ln_go")
    a.label("L_ln_idle")
    a(f"s_cmp_eq_u32 s{sWAVE}, 3")
    a("s_cbranch_scc1 L_ln_idle3")
    a("s_waitcnt vmcnt(0)")
    a("s_branch L_ln_go")
    a.label("L_ln_idle3")
    a(f"s_waitcnt vmcnt({nc})")
    a.label("L_ln_go")
    stamp(a, opt, 1)
    jitter(a, opt, 1)
    nmid = [opt.nearly]
    def mid_step(tag):
        if nmid[0] < opt.nearly + opt.nmid:
            a(f"s_cmp_ge_u32 s{sJ}, s{sJLIM}")
            a(f"s_cbranch_scc1 L_mid_{tag}")
            w1_dma(nmid[0]); nmid[0] += 1
            a.label(f"L_mid_{tag}")
    if opt.unsafe & 2: a(f"buffer_load_dword v{vPOLL}, v{vT}, {srd(sD)}, 0 offen sc1")
    mid_step("a")
    for i in range(10):
        a(f"v_lshlrev_b32 v{XF+2*i}, 16, v{XR+i}")
        a(f"v_and_b32 v{XF+2*i+1}, s{sT0}, v{XR+i}")
    SM = TM + 8
    a(f"v_pk_add_f32 {vr(SM,2)}, {vr(XF,2)}, {vr(XF+4,2)}")
    a(f"v_pk_add_f32 {vr(SM+2,2)}, {vr(XF+2,2)}, {vr(XF+6,2)}")
    for i in range(4, 10):
        k = i % 2
        a(f"v_pk_add_f32 {vr(SM+2*k,2)}, {vr(SM+2*k,2)}, {vr(XF+2*i,2)}")
    def reduce_row(dst):
        a(f"v_pk_add_f32 {vr(SM,2)}, {vr(SM,2)}, {vr(SM+2,2)}")
        a(f"v_add_f32 v{dst}, v{SM}, v{SM+1}")
        for rot in (8, 4, 2, 1):
            a("s_nop 1")
            a(f"v_add_f32_dpp v{dst}, v{dst}, v{dst} row_ror:{rot} row_mask:0xf bank_mask:0xf")
        a(f"v_mov_b32 v{SM}, v{dst}")
        a("s_nop 1")
        a(f"v_permlane16_swap_b32 v{dst}, v{SM}")
        a("s_nop 1")
        a(f"v_add_f32 v{dst}, v{dst}, v{SM}")
    MN = TM + 12
    reduce_row(MN)
    mid_step("b")
    a(f"v_mul_f32 v{MN}, {f2h(1.0/640.0)}, v{MN}")
    a(f"v_mov_b32 v{MN+1}, v{MN}")
    for i in range(10):
        a(f"v_pk_add_f32 {vr(XF+2*i,2)}, {vr(XF+2*i,2)}, {vr(MN,2)} neg_lo:[0,1] neg_hi:[0,1]")
    for k in range(2):
        a(f"v_pk_mul_f32 {vr(SM+2*k,2)}, {vr(XF+2*k,2)}, {vr(XF+2*k,2)}")
    for i in range(2, 10):
        k = i % 2
        a(f"v_pk_fma_f32 {vr(SM+2*k,2)}, {vr(XF+2*i,2)}, {vr(XF+2*i,2)}, {vr(SM+2*k,2)}")
    reduce_row(MN)
    mid_step("c")
    a(f"v_mov_b32 v{MN+1}, {f2h(1e-5)}")
    a(f"v_fmac_f32 v{MN+1}, {f2h(1.0/640.0)}, v{MN}")
    a(f"v_rsq_f32 v{MN}, v{MN+1}")
    a("s_nop 0")
    a(f"v_mov_b32 v{MN+1}, v{MN}")
    for i in range(10):
        a(f"v_pk_mul_f32 {vr(XF+2*i,2)}, {vr(XF+2*i,2)}, {vr(MN,2)}")
    for i in range(10):
        a(f"v_cvt_pk_bf16_f32 v{XR+i}, v{XF+2*i}, v{XF+2*i+1}")
    for i in range(5):
        a(f"ds_write_b64 v{TM+4}, {vr(XR+2*i,2)} offset:{i*256}")
    a("s_waitcnt lgkmcnt(0)")
    if opt.unsafe & 2:
        a("s_waitcnt vmcnt(0)")
        a(f"v_readfirstlane_b32 s{sNONCE}, v{vPOLL}")
        nonce_spin(a, opt)
    a("s_barrier")
    for i in range(2):
        a(f"ds_read_b64_tr_b16 {vr(XF+4*i,2)}, v{TM+5} offset:{i*128}")
        a(f"ds_read_b64_tr_b16 {vr(XF+4*i+2,2)}, v{TM+5} offset:{i*128+4*LN_ROW}")
    a(f"s_cmp_ge_u32 s{sWAVE}, 2")
    a("s_cbranch_scc1 L_ln_two")
    a(f"ds_read_b64_tr_b16 {vr(XF+8,2)}, v{TM+5} offset:{2*128}")
    a(f"ds_read_b64_tr_b16 {vr(XF+10,2)}, v{TM+5} offset:{2*128+4*LN_ROW}")
    a("s_waitcnt lgkmcnt(0)")
    a(f"s_add_u32 s{sT0}, s{sSTEP}, {2*4096}")
    a(f"buffer_store_dwordx4 {vr(XF+8,4)}, v{TM+6}, {srd(sH)}, s{sT0} offen {opt.hbits}")
    a.label("L_ln_two")
    a("s_waitcnt lgkmcnt(0)")
    for i in range(2):
        a(f"s_add_u32 s{sT0}, s{sSTEP}, {i*4096}")
        a(f"buffer_store_dwordx4 {vr(XF+4*i,4)}, v{TM+6}, {srd(sH)}, s{sT0} offen {opt.hbits}")
    if not (opt.unsafe & 2): a(f"buffer_load_dword v{vPOLL}, v{vT}, {srd(sD)}, 0 offen sc1")
    stamp(a, opt, 2)
    if opt.unsafe & 2:
        a("s_barrier")
        a(f"s_cmp_lg_u32 s{sWAVE}, 0")
        a("s_cbranch_scc1 L_noflag0")
        a(f"s_lshl_b32 s{sT0}, s{sWG}, 2")
        flag_store(a, sT0)
        a.label("L_noflag0")
    a(f"s_cmp_ge_u32 s{sJ}, s{sJLIM}")
    a("s_cbranch_scc1 L_ln_idle2")
    ne = opt.nearly + opt.nmid
    a.vm = [f"w1_{i}" for i in range(ne)]
    for i in range(ne, ne + opt.npost): w1_dma(i)
    if not (opt.unsafe & 2): a(f"s_waitcnt vmcnt({4*opt.npost})")
    a("s_branch L_ln_go2")
    a.label("L_ln_idle2")
    if not (opt.unsafe & 2): a("s_waitcnt vmcnt(0)")
    a.label("L_ln_go2")
    if not (opt.unsafe & 2):
        a(f"v_readfirstlane_b32 s{sNONCE}, v{vPOLL}")
        nonce_spin(a, opt)
        a("s_barrier")
        a(f"s_cmp_lg_u32 s{sWAVE}, 0")
        a("s_cbranch_scc1 L_noflag")
        a(f"s_lshr_b32 s{sT0}, s{sWG}, 2")
        a(f"s_mul_i32 s{sT0}, s{sT0}, {opt.hline}")
        a(f"s_and_b32 s{sT1}, s{sWG}, 3")
        a(f"s_lshl_b32 s{sT1}, s{sT1}, 2")
        a(f"s_add_u32 s{sT0}, s{sT0}, s{sT1}")
        keep = list(a.vm)
        flag_store(a, sT0)
        a.vm = keep
        a.label("L_noflag")
    stamp(a, opt, 3)
    a(f"s_cmp_ge_u32 s{sJ}, s{sJLIM}")
    a("s_cbranch_scc1 L_nogemm1")
    w1_finish = w1_stream(opt.nearly + opt.nmid + opt.npost, opt.dp, opt.hold1)

    def common_setup(retr=True):
        make_srd(a, sH, 18, H_BYTES, WS_H)
        make_srd(a, sF, 18, FLAG_BYTES, WS_FLAG)
        make_srd(a, sB1, 8, F * 2)
        make_srd(a, sW2, 10, F * S * 2)
        make_srd(a, sB2, 12, S * 2)
        make_srd(a, sO, 14, S * D * 2)
        make_srd(a, sG, 18, G_BYTES, WS_G)
        a(f"v_lshrrev_b32 v{vT}, 4, v{vLANE}")
        a(f"v_lshlrev_b32 v{vT}, 3, v{vT}")
        a(f"s_and_b32 s{sT0}, s{sWAVE}, 1")
        a(f"s_lshl_b32 s{sT0}, s{sT0}, 6")
        a(f"s_lshl_b32 s{sT1}, s{sFT}, 7")
        a(f"s_add_u32 s{sT0}, s{sT0}, s{sT1}")
        a.vmem(f"buffer_load_dwordx2 {vr(vB1,2)}, v{vT}, {srd(sB1)}, s{sT0} offen", "b")
        a.vmem(f"buffer_load_dwordx2 {vr(vB1+2,2)}, v{vT}, {srd(sB1)}, s{sT0} offen offset:32", "b")
        a(f"v_and_b32 v{vT}, 15, v{vLANE}")
        a(f"v_lshlrev_b32 v{vT}, 1, v{vT}")
        a(f"s_lshl_b32 s{sT0}, s{sST}, 7")
        a(f"s_lshl_b32 s{sT1}, s{sWAVE}, 5")
        a(f"s_add_u32 s{sT0}, s{sT0}, s{sT1}")
        a.vmem(f"buffer_load_ushort v{vB2}, v{vT}, {srd(sB2)}, s{sT0} offen", "b")
        dma_addr(a, S * 2, sST)
        a(f"s_mul_i32 s{sWB}, s{sWAVE}, {448*S*2}")
        if retr: tr_addr(sM0B)
        a(f"s_sub_u32 s{sT0}, s{sUP}, s{sM0B}")
        for t in range(4):
            a(f"v_add_u32 v{vTRU+t}, s{sT0}, v{vTR+t}")
        a(f"v_lshlrev_b32 v{vL0}, 4, v{vLANE}")
        a(f"v_add_u32 v{vL1}, 65536, v{vL0}")
        a(f"v_add_u32 v{vL2}, 131072, v{vL0}")

    a.label("L_w1_ready")
    stamp(a, opt, 4)
    jitter(a, opt, 2)
    vm_keep = list(a.vm)
    common_setup(retr=False)
    a(f"s_mul_i32 s{sT0}, s{sDT1}, 5120")
    a(f"v_add_u32 v{vA}, s{sT0}, v{vL0}")
    a(f"v_add_u32 v{vA2}, 4096, v{vA}")
    a(f"s_cmp_lg_u32 s{sWAVE}, {opt.pollw}")
    a("s_cbranch_scc1 L_hpolled")
    if opt.epoll:
        a(f"s_waitcnt vmcnt({4*(15 - opt.epoll) + 3})")
        poll_check(a, 4, None, "L_hpolled")
    if opt.pipe & 1:
        a("s_waitcnt vmcnt(0)")
        poll_pipe(a, opt, vHP, None, opt.gap)
    else:
        poll(a, opt, vHP, 4, None, opt.sleeph, opt.preh, 1)
    a.label("L_hpolled")
    a.vm = vm_keep + ["b", "b", "b"]
    a("s_barrier")
    stamp(a, opt, 5)

    def a_loads(srdn, step, nsteps, s_rot):
        slot = step % NS
        step_off(a, sOFF, sSTEP, s_rot, step, nsteps, 40960)
        return [f"buffer_load_dwordx4 {vr(ring(slot,t),4)}, v{vA if t < 4 else vA2}, {srd(srdn)}, s{sOFF} offen offset:{(t*1024) if t < 4 else 0} {opt.abits}" for t in range(5)]

    def main_loop(srdn, nsteps, s_rot, tagp, mfma, stamp0, tail, nuni, pre=None):
        for st in range(opt.depth):
            for o, ins in enumerate(a_loads(srdn, st, nsteps, s_rot)): a.vmem(ins, f"{tagp}{st}_{o}")
        if pre: pre()
        for st in range(nuni):
            nx = st + opt.depth
            nxt = a_loads(srdn, nx, nsteps, s_rot) if nx < nsteps else None
            a.wait_vm(f"{tagp}{st}_4")
            if st == 0 and stamp0 is not None: stamp(a, opt, stamp0)
            for o in range(5):
                if nxt: a.vmem(nxt[o], f"{tagp}{nx}_{o}")
                for i in range(4): mfma(st, o, i, st % NS)
                if tail: tail(st, o)

    def tile_tail(nsteps, tagp, first, last, frag_of, mfma_tile, write_tile, extra):
        ic = [0]
        done_at = {}
        queue = []
        extra = list(extra)
        def emit(fn):
            fn(); ic[0] += 1
        def filler():
            if queue and ic[0] - done_at[queue[0]] >= 9:
                t = queue.pop(0); emit(lambda: write_tile(t)); return
            if extra: emit(extra.pop(0))
        tiles = list(first) + list(last)
        for i in range(0, len(tiles), 2):
            pair = tiles[i:i + 2]
            for t in pair:
                for st in (nsteps - 2, nsteps - 1): a.wait_vm(f"{tagp}{st}_{frag_of(t)}")
            for st in (nsteps - 2, nsteps - 1):
                for t in pair:
                    emit(lambda: mfma_tile(st, t))
                    if st == nsteps - 1:
                        done_at[t] = ic[0]
                        if t in first: queue.append(t)
                    filler()
        while extra: emit(extra.pop(0))
        while queue:
            while ic[0] - done_at[queue[0]] < 9: emit(lambda: a("s_nop 0"))
            t = queue.pop(0); emit(lambda: write_tile(t))

    a(f"s_mul_i32 s{sSTEP}, s{sWAVE}, {16*40960}")
    def mfma1(st, nt, mt, slot):
        c = "0" if st == 0 else vr(acc1(mt, nt), 4)
        a(f"v_mfma_f32_16x16x32_bf16 {vr(acc1(mt,nt),4)}, {ar(wfrag(st,mt),4)}, {vr(ring(slot,nt),4)}, {c}")
    parts13 = w2_dma_parts(a, 0) if opt.t13 else []
    def tail1(st, o):
        if st == 13 and parts13:
            if o == 0: parts13[0]()
            else: parts13[o]()
    main_loop(sH, 16, sROT1, "h", mfma1, 6, tail1, 14, w1_finish if opt.hold1 else None)

    a(f"s_mov_b32 s100, {f2h(C1)}"); a(f"s_mov_b32 s101, {f2h(C1)}")
    a(f"v_mov_b32 v{vC0}, {f2h(C0)}"); a(f"v_mov_b32 v{vC0+1}, {f2h(C0)}")
    def lds_ref(addr):
        if addr < 65536: return vL0, addr
        if addr < 131072: return vL1, addr - 65536
        return vL2, addr - 131072
    def owner1(p, nt): return p + (0 if nt < 3 else 2)
    units = [(p, nt) for p in range(2) for nt in range(5)]
    def red1_addr(src, u):
        k = [x for x in units if owner1(*x) != src].index(u)
        return src * 32768 + 24576 + k * 2048 if k < 4 else 131072 + src * 8192 + (k - 4) * 2048
    saved_vm = list(a.vm)
    for w in range(4):
        if w < 3:
            a(f"s_cmp_lg_u32 s{sWAVE}, {w}")
            a(f"s_cbranch_scc1 L_ep1_{w+1}")
        a.vm = list(saved_vm)
        nis = [1 if opt.t13 else 0]
        def more(n, limit):
            for _ in range(n):
                if nis[0] < limit:
                    w2_dma(a, nis[0]); nis[0] += 1
        tl = [(2 * p + hf, nt) for nt in range(5) for p in range(2) for hf in range(2)]
        first = [t for t in tl if owner1(t[0] // 2, t[1]) != w]
        last = [t for t in tl if owner1(t[0] // 2, t[1]) == w]
        def wr1(t):
            vb, off = lds_ref(red1_addr(w, (t[0] // 2, t[1])) + (t[0] & 1) * 1024)
            a(f"ds_write_b128 v{vb}, {vr(acc1(*t),4)} offset:{off}")
        extra = []
        for _ in range(opt.tt):
            extra += w2_dma_parts(a, nis[0]); nis[0] += 1
        tile_tail(16, "h", first, last, lambda t: t[1], lambda st, t: mfma1(st, t[1], t[0], st % NS), wr1, extra)
        stamp(a, opt, 7)
        jitter(a, opt, 3)
        more(opt.e1, 6)
        a("s_waitcnt lgkmcnt(0)")
        a("s_barrier")
        own_u = [u for u in units if owner1(*u) == w]
        RT = vRING
        n = 0
        for u in own_u:
            for src in range(4):
                if src == w: continue
                for hf in range(2):
                    vb, off = lds_ref(red1_addr(src, u) + hf * 1024)
                    a(f"ds_read_b128 {vr(RT + n*4, 4)}, v{vb} offset:{off}")
                    n += 1
        a.wait_vm("b")
        for i in range(4):
            a(f"v_lshlrev_b32 v{BI+2*i}, 16, v{vB1+i}")
            a(f"v_and_b32 v{BI+2*i+1}, 0xffff0000, v{vB1+i}")
        for u in own_u:
            p, nt = u
            for hf in range(2):
                r = acc1(2*p+hf, nt)
                a(f"v_pk_add_f32 {vr(r,2)}, {vr(r,2)}, {vr(BI+4*hf,2)}")
                a(f"v_pk_add_f32 {vr(r+2,2)}, {vr(r+2,2)}, {vr(BI+4*hf+2,2)}")
        n = 0
        tot = len(own_u) * 6
        for u in own_u:
            p, nt = u
            for si in range(3):
                for hf in range(2):
                    a(f"s_waitcnt lgkmcnt({min(15, tot - n - 1)})")
                    r = acc1(2*p+hf, nt)
                    a(f"v_pk_add_f32 {vr(r,2)}, {vr(r,2)}, {vr(RT+n*4,2)}")
                    a(f"v_pk_add_f32 {vr(r+2,2)}, {vr(r+2,2)}, {vr(RT+n*4+2,2)}")
                    n += 1
        a("s_barrier")
        regs = []
        for u in own_u:
            p, nt = u
            for hf in range(2):
                r = acc1(2*p+hf, nt)
                regs += [r, r + 2]
        more(opt.e2, 10)
        gelu_pairs(a, regs, RT, fill=lambda: more(opt.e3, 10))
        a(f"s_lshl_b32 s{sT0}, s{sFT}, 1")
        a(f"s_add_u32 s{sT0}, s{sT0}, {w & 1}")
        a(f"s_mul_i32 s{sT0}, s{sT0}, 40960")
        a(f"s_mul_i32 s{sT1}, s{sDT1}, 5120")
        a(f"s_add_u32 s{sT0}, s{sT0}, s{sT1}")
        for i, u in enumerate(own_u):
            p, nt = u
            o = RT + 64 + 4 * i
            r0, r1 = acc1(2*p, nt), acc1(2*p+1, nt)
            a(f"v_cvt_pk_bf16_f32 v{o}, v{r0}, v{r0+1}")
            a(f"v_cvt_pk_bf16_f32 v{o+1}, v{r0+2}, v{r0+3}")
            a(f"v_cvt_pk_bf16_f32 v{o+2}, v{r1}, v{r1+1}")
            a(f"v_cvt_pk_bf16_f32 v{o+3}, v{r1+2}, v{r1+3}")
            a(f"s_add_u32 s{sT1}, s{sT0}, {nt*1024}")
            a.vmem(f"buffer_store_dwordx4 {vr(o,4)}, v{vL0}, {srd(sG)}, s{sT1} offen {opt.gbits}", "g")
        stamp(a, opt, 8)
        jitter(a, opt, 4)
        def g_flag():
            a(f"s_lshl_b32 s{sT0}, s{sDT1}, 5")
            a(f"s_add_u32 s{sT0}, s{sT0}, s{sFT}")
            a(f"s_mul_i32 s{sT0}, s{sT0}, {opt.gstride}")
            a(f"s_add_u32 s{sT0}, s{sT0}, {FLAG_G + 4*w}")
            flag_store(a, sT0)
            stamp(a, opt, 9)
        if opt.unsafe & 1: g_flag()
        more(opt.nb, 10)
        def tr_first4():
            a.wait_vm("w2_3")
            for st in range(4):
                w2_tr(a, st)
                if st % 2 == 1: a("s_waitcnt lgkmcnt(0)")
        if not opt.flagfirst: tr_first4()
        if not (opt.unsafe & 1):
            a.wait_vm("g")
            if opt.gwg:
                a("s_barrier")
                if w == 0:
                    keep = list(a.vm); g_flag(); a.vm = keep
            else:
                g_flag()
        if opt.flagfirst:
            more(max(0, 4 - nis[0]), 10)
            more(opt.nb3, 10)
            tr_first4()
        assert nis[0] >= 4
        more(10, 10)
        more(4, 14)
        for st in range(4, 10):
            a.wait_vm(f"w2_{st}")
            w2_tr(a, st)
            if st % 2 == 1: a("s_waitcnt lgkmcnt(0)")
        a("s_branch L_pre2")
        if w < 3: a.label(f"L_ep1_{w+1}")

    a.label("L_nogemm1")
    a.vm = []
    common_setup()
    if False:
        a(f"s_lshl_b32 s{sT0}, s{sWAVE}, 6")
        a(f"v_add_u32 v{vX}, s{sT0}, v{vLANE}")
        a(f"v_mul_u32_u24 v{vX}, {opt.hstride}, v{vX}")
        poll(a, opt, vX, 2, None)
        if opt.idlewait > 1:
            a(f"s_sleep {opt.idlewait}")
    if opt.pf == 3:
        a(f"s_lshl_b32 s{sT0}, s{sIDLE}, 2")
        a(f"s_add_u32 s{sT0}, s{sT0}, s{sWAVE}")
        a(f"s_lshl_b32 s{sT0}, s{sT0}, 10")
        for k in range(44):
            o = vRING + (k % 16) * 4
            a.vmem(f"buffer_load_dwordx4 {vr(o,4)}, v{vL0}, {srd(sW2)}, s{sT0} offen {opt.pfbits}", f"pf{k}")
            a(f"s_add_u32 s{sT0}, s{sT0}, {160*1024}")
            if k >= opt.pfdepth: a.wait_vm(f"pf{k-opt.pfdepth}")
        a.wait_vm0()
    if opt.pf == 2:
        assert opt.p1 == 2 and opt.p2 == 1
        a(f"s_cmp_lt_u32 s{sJ}, 28")
        a("s_cbranch_scc1 L_nopf")
        a(f"s_sub_u32 s{sT0}, s{sJ}, 28")
        a(f"s_lshl_b32 s{sT0}, s{sT0}, 2")
        a(f"s_add_u32 s{sT0}, s{sT0}, s{sWAVE}")
        a(f"s_lshl_b32 s{sT0}, s{sT0}, 13")
        a(f"s_lshl_b32 s{sT1}, s{sXCD}, 9")
        a(f"s_add_u32 s{sT0}, s{sT0}, s{sT1}")
        a(f"v_lshrrev_b32 v{vX}, 5, v{vLANE}")
        a(f"v_lshlrev_b32 v{vX}, 12, v{vX}")
        a(f"v_and_b32 v{vX+1}, 31, v{vLANE}")
        a(f"v_lshlrev_b32 v{vX+1}, 4, v{vX+1}")
        a(f"v_add_u32 v{vX}, v{vX}, v{vX+1}")
        keep = list(a.vm)
        for k in range(54):
            o = vRING + (k % 16) * 4
            a.vmem(f"buffer_load_dwordx4 {vr(o,4)}, v{vX}, {srd(sW2)}, s{sT0} offen", f"pf{k}")
            a(f"s_add_u32 s{sT0}, s{sT0}, {16*8192}")
            if k >= opt.pfdepth: a.wait_vm(f"pf{k-opt.pfdepth}")
        a.wait_vm0()
        a.label("L_nopf")
        a.vm = keep
    for st in range(10): w2_dma(a, st)
    for st in range(4):
        a.wait_vm(f"w2_{st}")
        w2_tr(a, st)
        if st % 2 == 1: a("s_waitcnt lgkmcnt(0)")
    for st in range(10, 14): w2_dma(a, st)
    for st in range(4, 10):
        a.wait_vm(f"w2_{st}")
        w2_tr(a, st)
        if st % 2 == 1: a("s_waitcnt lgkmcnt(0)")

    if opt.idle1:
        a("s_waitcnt vmcnt(0)")
        a(f"s_cmp_lg_u32 s{sWAVE}, {opt.pollw}")
        a("s_cbranch_scc1 L_idle1")
        a(f"s_lshl_b32 s{sT0}, s{sDT2}, 5")
        a(f"s_add_u32 s{sT0}, s{sT0}, {opt.idle1ft}")
        a(f"s_mul_i32 s{sT0}, s{sT0}, {opt.gstride}")
        a(f"s_add_u32 s{sT0}, s{sT0}, {FLAG_G}")
        a(f"v_mov_b32 v{vX}, s{sT0}")
        poll(a, opt, vX, 1, None, opt.idle1)
        a.label("L_idle1")
    a.label("L_pre2")
    a(f"s_mul_i32 s{sT0}, s{sDT2}, 5120")
    a(f"v_add_u32 v{vA}, s{sT0}, v{vL0}")
    a(f"v_add_u32 v{vA2}, 4096, v{vA}")
    def w2_finish():
        a.wait_vm("w2all")
        a("s_waitcnt lgkmcnt(0)")
        for st in range(10, 14):
            w2_tr(a, st)
            if st % 2 == 1: a("s_waitcnt lgkmcnt(0)")
    if not opt.hold2:
        a.vm = ["w2all"]
        w2_finish()
    stamp(a, opt, 10)
    if opt.onepoll & 2:
        a(f"s_cmp_lg_u32 s{sWAVE}, {opt.pollw}")
        a("s_cbranch_scc1 L_gpolled")
        a(f"s_lshl_b32 s{sT0}, s{sDT2}, 5")
        a(f"s_mul_i32 s{sT0}, s{sT0}, {opt.gstride}")
        a(f"s_add_u32 s{sT0}, s{sT0}, {FLAG_G}")
        a(f"v_mul_u32_u24 v{vX}, {opt.gstride}, v{vLANE}")
        a(f"v_add_u32 v{vX}, s{sT0}, v{vX}")
        a(f"s_mov_b32 s{sP+2}, 0x7ffffff")
        a(f"s_mov_b32 s{sP+3}, 0")
        if opt.pipe & 2:
            a("s_waitcnt vmcnt(0)")
            poll_pipe(a, opt, vX, sP + 2, opt.gap, 1 if opt.gwg else 4)
        else:
            poll(a, opt, vX, 1 if opt.gwg else 4, sP + 2, opt.sleep, opt.preg)
        a.label("L_gpolled")
        a("s_barrier")
    else:
        a(f"s_lshl_b32 s{sT0}, s{sDT2}, 5")
        a(f"s_mul_i32 s{sT1}, s{sWAVE}, 7")
        a(f"s_add_u32 s{sT0}, s{sT0}, s{sT1}")
        a(f"s_mul_i32 s{sT0}, s{sT0}, {opt.gstride}")
        a(f"s_add_u32 s{sT0}, s{sT0}, {FLAG_G}")
        a(f"v_mul_u32_u24 v{vX}, {opt.gstride}, v{vLANE}")
        a(f"v_add_u32 v{vX}, s{sT0}, v{vX}")
        a(f"s_cmp_eq_u32 s{sWAVE}, 3")
        a(f"s_cselect_b32 s{sP+2}, 0x3f, 0x7f")
        a(f"s_mov_b32 s{sP+3}, 0")
        poll(a, opt, vX, 4, sP + 2, opt.sleep, opt.preg)
    a.vm = ["w2all"] if opt.hold2 else []
    stamp(a, opt, 11)
    a(f"s_mul_i32 s{sSTEP}, s{sWAVE}, {14*40960}")
    def mfma2(st, mt, nt, slot):
        c = "0" if st == 0 else vr(acc2(mt, nt), 4)
        a(f"v_mfma_f32_16x16x32_bf16 {vr(acc2(mt,nt),4)}, {vr(ring(slot,mt),4)}, {ar(wfrag(st,nt),4)}, {c}")
    main_loop(sG, 14, sROT2, "g", mfma2, 12, None, 12, w2_finish if opt.hold2 else None)
    saved_vm2 = list(a.vm)
    a(f"v_and_b32 v{vT}, 15, v{vLANE}")
    a(f"s_lshl_b32 s{sT0}, s{sWAVE}, 4")
    a(f"v_add_u32 v{vT}, s{sT0}, v{vT}")
    a(f"v_mul_u32_u24 v{vA}, 1280, v{vT}")
    a(f"v_lshrrev_b32 v{vT}, 4, v{vLANE}")
    a(f"v_lshlrev_b32 v{vT}, 3, v{vT}")
    a(f"v_add_u32 v{vA}, v{vA}, v{vT}")
    a(f"s_mul_i32 s{sT0}, s{sST}, {64*1280}")
    a(f"s_mul_i32 s{sT1}, s{sDT2}, 160")
    a(f"s_add_u32 s{sOFF}, s{sT0}, s{sT1}")
    a(f"v_lshlrev_b32 v{vC0}, 16, v{vB2}")
    a(f"v_lshlrev_b32 v{vC0+1}, 16, v{vB2}")
    a(f"v_sub_u32 v{vA2}, v{vA}, v{vT}")
    a(f"v_bfe_u32 v{vT}, v{vLANE}, 4, 1")
    a(f"v_lshlrev_b32 v{vT}, 5, v{vT}")
    a(f"v_add_u32 v{vA2}, v{vA2}, v{vT}")
    a(f"v_bfe_u32 v{vT}, v{vLANE}, 5, 1")
    a(f"v_lshlrev_b32 v{vT}, 4, v{vT}")
    a(f"v_add_u32 v{vA2}, v{vA2}, v{vT}")
    def red2_addr(src, nt, mt):
        k = [x for x in range(4) if x != src].index(nt)
        return src * 32768 + (k * 5 + mt) * 1024
    for w in range(4):
        if w < 3:
            a(f"s_cmp_lg_u32 s{sWAVE}, {w}")
            a(f"s_cbranch_scc1 L_ep2_{w+1}")
        a.vm = list(saved_vm2)
        tl = [(mt, nt) for mt in range(5) for nt in range(4)]
        def wr2(t):
            vb, off = lds_ref(red2_addr(w, t[1], t[0]))
            a(f"ds_write_b128 v{vb}, {vr(acc2(*t),4)} offset:{off}")
        tile_tail(14, "g", [t for t in tl if t[1] != w], [t for t in tl if t[1] == w], lambda t: t[0],
                  lambda st, t: mfma2(st, t[0], t[1], st % NS), wr2, [])
        stamp(a, opt, 13)
        jitter(a, opt, 5)
        a("s_waitcnt lgkmcnt(0)")
        a("s_barrier")
        RT = vRING
        n = 0
        for mt in range(5):
            for src in range(4):
                if src == w: continue
                vb, off = lds_ref(red2_addr(src, w, mt))
                a(f"ds_read_b128 {vr(RT+n*4,4)}, v{vb} offset:{off}")
                n += 1
        n = 0
        for mt in range(5):
            r = acc2(mt, w)
            for si in range(3):
                a(f"s_waitcnt lgkmcnt({14 - n})")
                a(f"v_pk_add_f32 {vr(r,2)}, {vr(r,2)}, {vr(RT+n*4,2)}")
                a(f"v_pk_add_f32 {vr(r+2,2)}, {vr(r+2,2)}, {vr(RT+n*4+2,2)}")
                n += 1
            a(f"v_pk_add_f32 {vr(r,2)}, {vr(r,2)}, {vr(vC0,2)}")
            a(f"v_pk_add_f32 {vr(r+2,2)}, {vr(r+2,2)}, {vr(vC0,2)}")
            o = RT + 64 + 2 * mt
            a(f"v_cvt_pk_bf16_f32 v{o}, v{r}, v{r+1}")
            a(f"v_cvt_pk_bf16_f32 v{o+1}, v{r+2}, v{r+3}")
            if not opt.wide or mt == 4:
                a(f"buffer_store_dwordx2 {vr(o,2)}, v{vA}, {srd(sO)}, s{sOFF} offen offset:{mt*32} {opt.obits}")
            elif mt % 2 == 1:
                a("s_nop 1")
                a(f"v_permlane16_swap_b32 v{o-2}, v{o}")
                a(f"v_permlane16_swap_b32 v{o-1}, v{o+1}")
                a(f"buffer_store_dwordx4 {vr(o-2,4)}, v{vA2}, {srd(sO)}, s{sOFF} offen offset:{(mt-1)*32} {opt.obits}")
        a("s_branch L_fin")
        if w < 3: a.label(f"L_ep2_{w+1}")
    a.label("L_fin")
    if opt.probe >= 0:
        if opt.probe == 14:
            a("s_waitcnt vmcnt(0)")
            stamp(a, opt, 14)
        a(f"s_cmp_lg_u32 s{sWG}, {opt.probewg}")
        a("s_cbranch_scc1 L_done")
        a(f"s_cmp_lg_u32 s{sWAVE}, {opt.probew}")
        a("s_cbranch_scc1 L_done")
        ref = sNONCE if opt.probeabs else (sPROF + 2 if opt.probe0 >= 0 else 96)
        a(f"s_sub_u32 s{sT1}, s{sPROF+1}, s{ref}")
        if opt.probecyc: a(f"s_lshr_b32 s{sT1}, s{sT1}, 2")
        else: a(f"s_lshl_b32 s{sT1}, s{sT1}, 2")
        a(f"s_add_u32 s{sT1}, s{sT1}, 4000")
        a.label("L_probe")
        a(f"s_memrealtime s[{sP}:{sP+1}]")
        a("s_waitcnt lgkmcnt(0)")
        a(f"s_sub_u32 s{sT0}, s{sP}, s96")
        a(f"s_cmp_lt_u32 s{sT0}, s{sT1}")
        a("s_cbranch_scc1 L_probe")
    if opt.pad:
        a.label("L_pad")
        a(f"s_memrealtime s[{sP}:{sP+1}]")
        a("s_waitcnt lgkmcnt(0)")
        a(f"s_sub_u32 s{sT0}, s{sP}, s96")
        a(f"s_cmp_lt_u32 s{sT0}, {opt.pad}")
        a("s_cbranch_scc1 L_pad")
    if opt.prof:
        a("s_waitcnt vmcnt(0)")
        stamp(a, opt, 14)
        make_srd(a, sX, 18, 65536, WS_PROF)
        a(f"s_lshl_b32 s{sT0}, s{sWG}, 2")
        a(f"s_add_u32 s{sT0}, s{sT0}, s{sWAVE}")
        a(f"s_lshl_b32 s{sT0}, s{sT0}, 6")
        a(f"v_mov_b32 v{vT}, s{sT0}")
        a("s_mov_b64 exec, 1")
        for i in range(15):
            a(f"v_mov_b32 v100, s{sPROF+i}")
            a(f"buffer_store_dword v100, v{vT}, {srd(sX)}, 0 offen offset:{4*i}")
            a("s_nop 1")
        a("s_waitcnt vmcnt(0)")
    a.label("L_done")
    a("s_endpgm")
    a.label("L_codeend")
    a.raw('.section .rodata,"a"')
    a.raw(".p2align 6")
    a.raw(f".amdhsa_kernel {KN}")
    for l in ["next_free_vgpr 512", "next_free_sgpr 102", "accum_offset 256", "group_segment_fixed_size 0",
              "kernarg_size 64", "user_sgpr_count 2", "user_sgpr_kernarg_segment_ptr 1",
              "system_sgpr_workgroup_id_x 1", "float_denorm_mode_32 3"]:
        a.raw(f"  .amdhsa_{l}")
    a.raw(".end_amdhsa_kernel")
    return "\n".join(a.L) + "\n"

def parse(argv=None):
    ap = argparse.ArgumentParser()
    ap.add_argument("-o", default="standalone__mixer_token_mlp__prompt.s")
    ap.add_argument("--prof", type=int, default=0)
    ap.add_argument("--rot", type=int, default=3)
    ap.add_argument("--spin", type=int, default=20000)
    ap.add_argument("--sleep", type=int, default=8)
    ap.add_argument("--depth", type=int, default=3)
    ap.add_argument("--lnprof", type=int, default=0)
    ap.add_argument("--hbits", default="sc1")
    ap.add_argument("--pfwait", type=int, default=1)
    ap.add_argument("--hold", type=int, default=0)
    ap.add_argument("--probe", type=int, default=-1)
    ap.add_argument("--probe0", type=int, default=-1)
    ap.add_argument("--probecyc", type=int, default=0)
    ap.add_argument("--probeabs", type=int, default=0)
    ap.add_argument("--probewg", type=int, default=100)
    ap.add_argument("--probew", type=int, default=2)
    ap.add_argument("--rot8", type=int, default=1)
    ap.add_argument("--cpf", type=int, default=1)
    ap.add_argument("--cpfw", type=int, default=3)
    ap.add_argument("--wide", type=int, default=1)
    ap.add_argument("--idlewait", type=int, default=0)
    ap.add_argument("--sleeph", type=int, default=8)
    ap.add_argument("--preh", type=int, default=0)
    ap.add_argument("--preg", type=int, default=0)
    ap.add_argument("--onepoll", type=int, default=3)
    ap.add_argument("--pollw", type=int, default=3)
    ap.add_argument("--nta", type=int, default=0)
    ap.add_argument("--rotg1", type=int, default=0)
    ap.add_argument("--rotg2", type=int, default=0)
    ap.add_argument("--npost", type=int, default=3)
    ap.add_argument("--xbar", type=int, default=1)
    ap.add_argument("--hold1", type=int, default=4)
    ap.add_argument("--hold2", type=int, default=1)
    ap.add_argument("--nmid", type=int, default=0)
    ap.add_argument("--gbits", default="sc1")
    ap.add_argument("--fbits", default="sc1")
    ap.add_argument("--abits", default="sc1")
    ap.add_argument("--unsafe", type=int, default=0)
    ap.add_argument("--epoll", type=int, default=12)
    ap.add_argument("--pipe", type=int, default=1)
    ap.add_argument("--gap", type=int, default=2)
    ap.add_argument("--gwg", type=int, default=1)
    ap.add_argument("--hline", type=int, default=16)
    ap.add_argument("--idle1", type=int, default=0)
    ap.add_argument("--idle1ft", type=int, default=13)
    ap.add_argument("--jitter", type=int, default=0)
    ap.add_argument("--flagfirst", type=int, default=0)
    ap.add_argument("--nb3", type=int, default=2)
    ap.add_argument("--pairx", type=int, default=1)
    ap.add_argument("--xpf", type=int, default=0)
    ap.add_argument("--t13", type=int, default=1)
    ap.add_argument("--tt", type=int, default=2)
    ap.add_argument("--e2", type=int, default=0)
    ap.add_argument("--e3", type=int, default=0)
    ap.add_argument("--nb2", type=int, default=0)
    ap.add_argument("--e1", type=int, default=1)
    ap.add_argument("--nb", type=int, default=2)
    ap.add_argument("--nearly", type=int, default=2)
    ap.add_argument("--dpl", type=int, default=5)
    ap.add_argument("--dp", type=int, default=4)
    ap.add_argument("--p1", type=int, default=2)
    ap.add_argument("--p2", type=int, default=1)
    ap.add_argument("--rota1", type=int, default=0)
    ap.add_argument("--rota2", type=int, default=0)
    ap.add_argument("--xbits", default="nt")
    ap.add_argument("--w1bits", default="")
    ap.add_argument("--w2bits", default="")
    ap.add_argument("--pfbits", default="")
    ap.add_argument("--pfdepth", type=int, default=8)
    ap.add_argument("--prio", type=int, default=3)
    ap.add_argument("--delay", type=int, default=0)
    ap.add_argument("--hstride", type=int, default=8)
    ap.add_argument("--gstride", type=int, default=256)
    ap.add_argument("--pf", type=int, default=0)
    ap.add_argument("--pad", type=int, default=0)
    ap.add_argument("--obits", default="sc0 sc1")
    return ap.parse_args(argv)

if __name__ == "__main__":
    opt = parse()
    open(opt.o, "w").write(gen(opt))
```

```python
import argparse, struct

S, D, F = 2048, 640, 1728
KN = "standalone__mixer_token_mlp__prompt_kernel"

WS_H = 0
H_BYTES = 64 * 40 * 1024
WS_G = 0x300000
G_BYTES = 54 * 40 * 1024
WS_FLAG = 0x600000
FLAG_H = 0
FLAG_G = 0x10000
FLAG_BYTES = 0x40000
WS_PROF = 0x700000

LDS_BYTES = 163840
LN_BASE = 131072
LN_ROW = 1344
LF_BASE = 141824
P0_BASE = [0, 49152, 98304, 122880]

sWG = 2
sX, sW1, sW2, sH, sG, sO, sF, sB1, sB2, sD = 20, 24, 28, 32, 36, 40, 44, 48, 52, 56
sWAVE, sXCD, sJ, sFT, sDT1, sST, sDT2, sNONCE = 60, 61, 62, 63, 64, 65, 66, 67
sT0, sT1, sT2, sT3, sT4, sT5 = 68, 69, 70, 71, 72, 73
sROT1, sROT2, sSTEP, sOFF = 74, 75, 76, 77
sM0B, sSPIN = 78, 79
sP = 80
sPROF = 84
sUP = 99
sJLIM, sIDLE = 100, 101
sWB = 3

vTID, vLANE = 0, 1
vTR = 2
vA, vA2, vDMA, vT2 = 6, 7, 8, 9
vB1 = 10
vB2, vT = 14, 15
vACC = 16
vRING = 96
vTRU = 196
vL0, vL1, vL2 = 200, 201, 202
vC0 = 204
BI = 206
vPOLL = 214
vX = 216
vHP = 226
vPQ = 228
vDM = 220

def srd(n): return f"s[{n}:{n+3}]"
def vr(n, c=1): return f"v{n}" if c == 1 else f"v[{n}:{n+c-1}]"
def ar(n, c=1): return f"a{n}" if c == 1 else f"a[{n}:{n+c-1}]"
def f2h(x): return "0x%08x" % struct.unpack("<I", struct.pack("<f", x))[0]
C0 = -2.0 * 0.7978845608028654 * 1.4426950408889634
C1 = C0 * 0.044715

class Asm:
    def __init__(self):
        self.L = []; self.vm = []; self.uid = 0
    def __call__(self, s): self.L.append("    " + s)
    def label(self, s): self.L.append(s + ":")
    def raw(self, s): self.L.append(s)
    def c(self, s): self.L.append("    ; " + s)
    def vmem(self, s, tag):
        self(s); self.vm.append(tag)
    def wait_vm(self, tag):
        hits = [i for i, t in enumerate(self.vm) if t == tag]
        if not hits: return
        n = len(self.vm) - 1 - hits[-1]
        self(f"s_waitcnt vmcnt({min(n, 63)})")
        self.vm = self.vm[hits[-1] + 1:]
    def wait_vm0(self):
        self("s_waitcnt vmcnt(0)"); self.vm = []
    def newlabel(self, p):
        self.uid += 1
        return f"L_{p}_{self.uid}"

def acc1(mt, nt): return vACC + (mt * 5 + nt) * 4
def acc2(mt, nt): return vACC + (mt * 4 + nt) * 4
def wfrag(step, t): return step * 16 + t * 4

def stamp(a, opt, idx, force=False):
    if opt.probe >= 0:
        ins = "s_memtime" if opt.probecyc else "s_memrealtime"
        if idx == opt.probe:
            a(f"{ins} s[{sP}:{sP+1}]")
            a("s_waitcnt lgkmcnt(0)")
            a(f"s_mov_b32 s{sPROF+1}, s{sP}")
        if idx == opt.probe0:
            a(f"{ins} s[{sP}:{sP+1}]")
            a("s_waitcnt lgkmcnt(0)")
            a(f"s_mov_b32 s{sPROF+2}, s{sP}")
        return
    if opt.prof == 4 and idx != 14: return
    if opt.lnprof and idx in (4, 5) and getattr(a, "ln_done", False): return
    if opt.prof:
        a(f"s_mem{'time' if opt.prof == 2 else 'realtime'} s[{sP}:{sP+1}]")
        a("s_waitcnt lgkmcnt(0)")
        a(f"s_mov_b32 s{sPROF+idx}, s{sP}")

def jitter(a, opt, k):
    if not opt.jitter: return
    lp, dn = a.newlabel("jit"), a.newlabel("jitd")
    a(f"s_lshl_b32 s{sP+2}, s{sWG}, 2")
    a(f"s_add_u32 s{sP+2}, s{sP+2}, s{sWAVE}")
    a(f"s_mul_i32 s{sP+2}, s{sP+2}, {2654435761 * (2 * k + opt.jitter) % (1 << 31)}")
    a(f"s_lshr_b32 s{sP+2}, s{sP+2}, 26")
    a.label(lp)
    a(f"s_cmp_eq_u32 s{sP+2}, 0")
    a(f"s_cbranch_scc1 {dn}")
    a("s_sleep 2")
    a(f"s_sub_u32 s{sP+2}, s{sP+2}, 1")
    a(f"s_branch {lp}")
    a.label(dn)

def make_srd(a, n, lo, size, add=0):
    if add:
        a(f"s_add_u32 s{n}, s{lo}, {add}")
        a(f"s_addc_u32 s{n+1}, s{lo+1}, 0")
        a(f"s_and_b32 s{n+1}, s{n+1}, 0xffff")
    else:
        a(f"s_mov_b32 s{n}, s{lo}")
        a(f"s_and_b32 s{n+1}, s{lo+1}, 0xffff")
    a(f"s_mov_b32 s{n+2}, {size}")
    a(f"s_mov_b32 s{n+3}, 0x20000")

def nonce_spin(a, opt):
    lp = a.newlabel("nonce"); dn = a.newlabel("nonced")
    a(f"s_cmp_lg_u32 s{sNONCE}, 0")
    a(f"s_cbranch_scc1 {dn}")
    a(f"s_mov_b32 s{sSPIN}, 0")
    a(f"v_mov_b32 v{vT}, 0")
    a.label(lp)
    a(f"buffer_load_dword v{vT2}, v{vT}, {srd(sD)}, 0 offen sc1")
    a("s_waitcnt vmcnt(0)")
    a(f"v_readfirstlane_b32 s{sNONCE}, v{vT2}")
    a(f"s_add_u32 s{sSPIN}, s{sSPIN}, 1")
    a(f"s_cmp_lg_u32 s{sNONCE}, 0")
    a(f"s_cbranch_scc1 {dn}")
    a(f"s_cmp_lt_u32 s{sSPIN}, {opt.spin}")
    a(f"s_cbranch_scc1 {lp}")
    a.label(dn)

def lds_set(a, addr_sgpr_or_imm):
    a(f"v_mov_b32 v{vT}, {addr_sgpr_or_imm}")
    a(f"v_mov_b32 v{vT2}, 1")
    a(f"s_mov_b64 s[{sP}:{sP+1}], exec")
    a("s_mov_b64 exec, 1")
    a(f"ds_write_b32 v{vT}, v{vT2}")
    a(f"s_mov_b64 exec, s[{sP}:{sP+1}]")

def lds_spin(a, opt, addr):
    lp = a.newlabel("lspin"); dn = a.newlabel("lspun")
    a(f"v_mov_b32 v{vT}, {addr}")
    a(f"s_mov_b32 s{sSPIN}, 0")
    a.label(lp)
    a(f"ds_read_b32 v{vT2}, v{vT}")
    a("s_waitcnt lgkmcnt(0)")
    a(f"v_readfirstlane_b32 s{sP}, v{vT2}")
    a(f"s_add_u32 s{sSPIN}, s{sSPIN}, 1")
    a(f"s_cmp_lg_u32 s{sP}, 0")
    a(f"s_cbranch_scc1 {dn}")
    a(f"s_cmp_lt_u32 s{sSPIN}, {opt.spin * 8}")
    a(f"s_cbranch_scc1 {lp}")
    a.label(dn)

def dma_addr(a, stride, s_tile):
    a(f"v_lshrrev_b32 v{vT}, 3, v{vLANE}")
    a(f"v_lshrrev_b32 v{vT2}, 1, v{vT}")
    a(f"v_lshlrev_b32 v{vT2}, 1, v{vT2}")
    a(f"v_and_b32 v{vDM}, 7, v{vLANE}")
    a(f"v_xor_b32 v{vDM}, v{vDM}, v{vT2}")
    a(f"v_lshlrev_b32 v{vDM}, 4, v{vDM}")
    a(f"v_mul_u32_u24 v{vT}, {stride}, v{vT}")
    a(f"v_add_u32 v{vDM}, v{vDM}, v{vT}")
    a(f"s_lshl_b32 s{sT0}, s{s_tile}, 7")
    a(f"v_add_u32 v{vDM}, s{sT0}, v{vDM}")
    for b in range(1, 4):
        a(f"v_add_u32 v{vDM+b}, {b*(8*stride-1024)}, v{vDM}")

def step_off(a, dst, s_base, s_rot, i, nsteps, bytes_per_step):
    a(f"s_add_u32 s{sT4}, s{s_rot}, {i}")
    a(f"s_cmp_ge_u32 s{sT4}, {nsteps}")
    a(f"s_cselect_b32 s{dst}, {nsteps}, 0")
    a(f"s_sub_u32 s{sT4}, s{sT4}, s{dst}")
    a(f"s_mul_i32 s{sT4}, s{sT4}, {bytes_per_step}")
    a(f"s_add_u32 s{dst}, s{sT4}, s{s_base}")

def dma_step(a, srdn, stride, s_rowbase, s_rot, step, nsteps, s_lds, lds_off, tag, bits=""):
    a(f"s_add_u32 m0, s{s_lds}, {lds_off}")
    step_off(a, sOFF, s_rowbase, s_rot, step, nsteps, 32 * stride)
    for blk in range(4):
        a.vmem(f"buffer_load_dwordx4 v{vDM+blk}, {srd(srdn)}, s{sOFF} offen offset:{blk*1024} {bits} lds", tag)

def tr_step(a, vbase, off, step):
    for t in range(4):
        w = wfrag(step, t)
        a(f"ds_read_b64_tr_b16 {ar(w,2)}, v{vbase+t} offset:{off}")
        a(f"ds_read_b64_tr_b16 {ar(w+2,2)}, v{vbase+t} offset:{off+2048}")

def poll(a, opt, vaddr, nd, lanes, sleep=None, pre=0, nload=1):
    if sleep is None: sleep = opt.sleep
    if pre: a(f"s_sleep {pre}")
    lp = a.newlabel("poll"); dn = a.newlabel("polled")
    a(f"s_mov_b32 s{sSPIN}, 0")
    a.label(lp)
    ld = {1: "dword", 2: "dwordx2", 4: "dwordx4"}[nd]
    for k in range(nload):
        a(f"buffer_load_{ld} {vr(vPQ + 4*k, nd)}, v{vaddr}, {srd(sF)}, 0 offen offset:{k*1024} sc1")
    a("s_waitcnt vmcnt(0)")
    first = True
    for k in range(nload):
        for i in range(nd):
            if first:
                a(f"v_cmp_ne_u32 vcc, s{sNONCE}, v{vPQ+4*k+i}"); first = False
            else:
                a(f"v_cmp_ne_u32 s[{sP}:{sP+1}], s{sNONCE}, v{vPQ+4*k+i}")
                a(f"s_or_b64 vcc, vcc, s[{sP}:{sP+1}]")
    if lanes is not None:
        a(f"s_and_b64 vcc, vcc, s[{lanes}:{lanes+1}]")
    a(f"s_add_u32 s{sSPIN}, s{sSPIN}, 1")
    a("s_cmp_eq_u64 vcc, 0")
    a(f"s_cbranch_scc1 {dn}")
    if sleep: a(f"s_sleep {sleep}")
    a(f"s_cmp_lt_u32 s{sSPIN}, {opt.spin}")
    a(f"s_cbranch_scc1 {lp}")
    a.label(dn)
    a.vm = []

def poll_pipe(a, opt, vaddr, lanes, gap, nd=4):
    dn = a.newlabel("ppolled"); lp = a.newlabel("ppoll")
    regs = [vPQ, vPQ + 4, vPQ + 8]
    def probe(r): a(f"buffer_load_{'dwordx4' if nd == 4 else 'dword'} {vr(r,nd)}, v{vaddr}, {srd(sF)}, 0 offen sc1")
    a(f"s_mov_b32 s{sSPIN}, 0")
    probe(regs[0]); a(f"s_sleep {gap}"); probe(regs[1]); a(f"s_sleep {gap}"); probe(regs[2])
    a.label(lp)
    for r in regs:
        a("s_waitcnt vmcnt(2)")
        for i in range(nd):
            if i == 0: a(f"v_cmp_ne_u32 vcc, s{sNONCE}, v{r}")
            else:
                a(f"v_cmp_ne_u32 s[{sP}:{sP+1}], s{sNONCE}, v{r+i}")
                a(f"s_or_b64 vcc, vcc, s[{sP}:{sP+1}]")
        if lanes is not None: a(f"s_and_b64 vcc, vcc, s[{lanes}:{lanes+1}]")
        a("s_cmp_eq_u64 vcc, 0")
        a(f"s_cbranch_scc1 {dn}")
        a(f"s_sleep {gap}")
        probe(r)
    a(f"s_add_u32 s{sSPIN}, s{sSPIN}, 1")
    a(f"s_cmp_lt_u32 s{sSPIN}, {opt.spin}")
    a(f"s_cbranch_scc1 {lp}")
    a.label(dn)

def poll_check(a, nd, lanes, ok_label):
    for i in range(nd):
        if i == 0: a(f"v_cmp_ne_u32 vcc, s{sNONCE}, v{vPQ}")
        else:
            a(f"v_cmp_ne_u32 s[{sP}:{sP+1}], s{sNONCE}, v{vPQ+i}")
            a(f"s_or_b64 vcc, vcc, s[{sP}:{sP+1}]")
    if lanes is not None:
        a(f"s_and_b64 vcc, vcc, s[{lanes}:{lanes+1}]")
    a("s_cmp_eq_u64 vcc, 0")
    a(f"s_cbranch_scc1 {ok_label}")

def flag_store(a, s_index_bytes):
    a(f"v_mov_b32 v{vT}, s{s_index_bytes}")
    a(f"v_mov_b32 v{vT2}, s{sNONCE}")
    a(f"s_mov_b64 s[{sP}:{sP+1}], exec")
    a("s_mov_b64 exec, 1")
    a.vmem(f"buffer_store_dword v{vT2}, v{vT}, {srd(sF)}, 0 offen {OPT.fbits}", "flag")
    a(f"s_mov_b64 exec, s[{sP}:{sP+1}]")

def gelu_pairs(a, regs, tmp, fill=None):
    def each(fn):
        for i, r in enumerate(regs): fn(r, tmp + 2 * i)
    each(lambda r, t: a(f"v_pk_mul_f32 {vr(t,2)}, {vr(r,2)}, {vr(r,2)}"))
    each(lambda r, t: a(f"v_pk_fma_f32 {vr(t,2)}, {vr(t,2)}, s[100:101], {vr(vC0,2)}"))
    each(lambda r, t: a(f"v_pk_mul_f32 {vr(t,2)}, {vr(t,2)}, {vr(r,2)}"))
    if fill: fill()
    each(lambda r, t: (a(f"v_exp_f32 v{t}, v{t}"), a(f"v_exp_f32 v{t+1}, v{t+1}")))
    each(lambda r, t: a(f"v_pk_add_f32 {vr(t,2)}, {vr(t,2)}, 1.0 op_sel_hi:[1,0]"))
    each(lambda r, t: (a(f"v_rcp_f32 v{t}, v{t}"), a(f"v_rcp_f32 v{t+1}, v{t+1}")))
    a("s_nop 0")
    each(lambda r, t: a(f"v_pk_mul_f32 {vr(r,2)}, {vr(r,2)}, {vr(t,2)}"))

def w2_slot(step):
    if step < 8: return sM0B, step * 4096, vTR, step * 4096
    if step < 10: return sUP, (step - 8) * 4096, vTRU, (step - 8) * 4096
    return sM0B, (step - 10) * 4096, vTR, (step - 10) * 4096

def w2_dma(a, step):
    sb, off, _, _ = w2_slot(step)
    dma_step(a, sW2, S * 2, sWB, sROT2, step, 14, sb, off, f"w2_{step}", OPT.w2bits)

def w2_dma_parts(a, step):
    sb, off, _, _ = w2_slot(step)
    def setup():
        a(f"s_add_u32 m0, s{sb}, {off}")
        step_off(a, sT3, sWB, sROT2, step, 14, 32 * S * 2)
    def one(blk):
        return lambda: a.vmem(f"buffer_load_dwordx4 v{vDM+blk}, {srd(sW2)}, s{sT3} offen offset:{blk*1024} {OPT.w2bits} lds", f"w2_{step}")
    return [setup] + [one(b) for b in range(4)]

def w2_tr(a, step):
    _, _, vb, off = w2_slot(step)
    tr_step(a, vb, off, step)

def gen(opt):
    global OPT
    OPT = opt
    a = Asm()
    NS = (opt.dist + 1 + 4) // 5
    assert opt.dist < 5 * NS and NS <= 5
    def ring(slot, t): return vRING + slot * 20 + t * 4
    a.raw(f"; @launch grid=(256,1,1) block=(256,1,1) lds={LDS_BYTES}")
    a.raw('.amdgcn_target "amdgcn-amd-amdhsa--gfx950"')
    a.raw(".text")
    a.raw(f".globl {KN}")
    a.raw(".p2align 8")
    a.raw(f".type {KN},@function")
    a.label(KN)
    if opt.cpf: a("s_getpc_b64 s[94:95]")
    a(f"s_cmp_ge_u32 s{sWG}, 256")
    a("s_cbranch_scc1 L_done")
    a("s_load_dwordx16 s[4:19], s[0:1], 0")
    if opt.prof:
        a(f"s_mem{'time' if opt.prof == 2 else 'realtime'} s[{sP}:{sP+1}]")
    if opt.prof:
        for i in range(1, 15): a(f"s_mov_b32 s{sPROF+i}, 0")
    if not opt.prof:
        a("s_memrealtime s[96:97]")
    a(f"v_lshrrev_b32 v{vT}, 6, v{vTID}")
    a(f"v_and_b32 v{vLANE}, 63, v{vTID}")
    a(f"v_readfirstlane_b32 s{sWAVE}, v{vT}")
    a(f"s_and_b32 s{sXCD}, s{sWG}, 7")
    a(f"s_lshr_b32 s{sJ}, s{sWG}, 3")
    if opt.p1 == 2:
        if opt.pairx:
            assert opt.pf == 0
            a(f"s_add_u32 s{sT1}, s{sXCD}, {opt.pairx - 1}")
            a(f"s_and_b32 s{sT1}, s{sT1}, 3")
            a(f"s_and_b32 s{sT2}, s{sXCD}, 4")
        else:
            a(f"s_lshr_b32 s{sT1}, s{sXCD}, 1")
            a(f"s_and_b32 s{sT2}, s{sXCD}, 1")
            a(f"s_lshl_b32 s{sT2}, s{sT2}, 2")
        a(f"s_mul_i32 s{sT0}, s{sT1}, 7")
        a(f"s_lshr_b32 s{sFT}, s{sJ}, 2")
        a(f"s_add_u32 s{sFT}, s{sFT}, s{sT0}")
        a(f"s_and_b32 s{sT3}, s{sJ}, 3")
        a(f"s_add_u32 s{sDT1}, s{sT2}, s{sT3}")
        if opt.rot8: a(f"s_lshl_b32 s{sROT1}, s{sDT1}, 1")
        else: a(f"s_lshl_b32 s{sROT1}, s{sT3}, 2")
        a(f"s_cmp_eq_u32 s{sT1}, 3")
        a(f"s_cselect_b32 s{sJLIM}, 24, 28")
        a(f"s_lshl_b32 s{sT0}, s{sXCD}, 2")
        a(f"s_sub_u32 s{sT0}, s{sT0}, 28")
        a(f"s_lshl_b32 s{sT3}, s{sXCD}, 3")
        a(f"s_sub_u32 s{sT3}, s{sT3}, 48")
        a(f"s_cselect_b32 s{sIDLE}, s{sT0}, s{sT0}")
        a(f"s_cmp_ge_u32 s{sXCD}, 6")
        a(f"s_cselect_b32 s{sIDLE}, s{sT3}, s{sT0}")
        a(f"s_add_u32 s{sIDLE}, s{sIDLE}, s{sJ}")
    else:
        a(f"s_lshl_b32 s{sT0}, s{sXCD}, 2")
        a(f"s_mul_i32 s{sT1}, s{sXCD}, 3")
        a(f"s_add_u32 s{sT1}, s{sT1}, 3")
        a(f"s_cmp_lt_u32 s{sXCD}, 3")
        a(f"s_cselect_b32 s{sT0}, s{sT0}, s{sT1}")
        a(f"s_cselect_b32 s{sJLIM}, 32, 24")
        a(f"s_lshr_b32 s{sFT}, s{sJ}, 3")
        a(f"s_add_u32 s{sFT}, s{sFT}, s{sT0}")
        a(f"s_and_b32 s{sDT1}, s{sJ}, 7")
        a(f"s_lshl_b32 s{sROT1}, s{sDT1}, 1")
        a(f"s_lshl_b32 s{sIDLE}, s{sXCD}, 3")
        a(f"s_add_u32 s{sIDLE}, s{sIDLE}, s{sJ}")
        a(f"s_sub_u32 s{sIDLE}, s{sIDLE}, 48")
    if opt.rotg1 == 3:
        a(f"s_mul_i32 s{sT0}, s{sFT}, 11")
        a(f"s_lshr_b32 s{sT0}, s{sT0}, 5")
        a(f"s_mul_i32 s{sT0}, s{sT0}, 3")
        a(f"s_sub_u32 s{sT0}, s{sFT}, s{sT0}")
        a(f"s_mul_i32 s{sT0}, s{sT0}, 5")
        a(f"s_add_u32 s{sROT1}, s{sROT1}, s{sT0}")
        a(f"s_and_b32 s{sROT1}, s{sROT1}, 15")
    if opt.rotg1 == 2:
        a(f"s_and_b32 s{sT0}, s{sFT}, 1")
        a(f"s_lshl_b32 s{sT0}, s{sT0}, 3")
        a(f"s_add_u32 s{sROT1}, s{sROT1}, s{sT0}")
        a(f"s_and_b32 s{sROT1}, s{sROT1}, 15")
    if opt.rota1:
        a(f"s_mul_i32 s{sT0}, s{sFT}, {opt.rota1}")
        a(f"s_add_u32 s{sROT1}, s{sROT1}, s{sT0}")
        a(f"s_and_b32 s{sROT1}, s{sROT1}, 15")
    if opt.p2 == 2:
        a(f"s_lshr_b32 s{sT1}, s{sXCD}, 1")
        a(f"s_and_b32 s{sT2}, s{sXCD}, 1")
        a(f"s_lshl_b32 s{sT2}, s{sT2}, 2")
        a(f"s_lshr_b32 s{sT0}, s{sJ}, 2")
        a(f"s_lshl_b32 s{sST}, s{sT1}, 3")
        a(f"s_add_u32 s{sST}, s{sST}, s{sT0}")
        a(f"s_and_b32 s{sT3}, s{sJ}, 3")
        a(f"s_add_u32 s{sDT2}, s{sT2}, s{sT3}")
        if opt.rot8:
            a(f"s_mul_i32 s{sROT2}, s{sDT2}, 7")
            a(f"s_lshr_b32 s{sROT2}, s{sROT2}, 2")
        else:
            a(f"s_mul_i32 s{sROT2}, s{sT3}, 7")
            a(f"s_lshr_b32 s{sROT2}, s{sROT2}, 1")
    else:
        a(f"s_lshr_b32 s{sT0}, s{sJ}, 3")
        a(f"s_lshl_b32 s{sST}, s{sXCD}, 2")
        a(f"s_add_u32 s{sST}, s{sST}, s{sT0}")
        a(f"s_and_b32 s{sDT2}, s{sJ}, 7")
        a(f"s_mul_i32 s{sROT2}, s{sDT2}, 7")
        a(f"s_lshr_b32 s{sROT2}, s{sROT2}, 2")
    if opt.rotg2:
        if opt.rotg2 == 2:
            a(f"s_and_b32 s{sT0}, s{sST}, 1")
            a(f"s_mul_i32 s{sT0}, s{sT0}, 7")
        else:
            a(f"s_mul_i32 s{sT0}, s{sST}, 11")
            a(f"s_lshr_b32 s{sT0}, s{sT0}, 5")
            a(f"s_mul_i32 s{sT0}, s{sT0}, 3")
            a(f"s_sub_u32 s{sT0}, s{sST}, s{sT0}")
            a(f"s_mul_i32 s{sT0}, s{sT0}, 5")
        a(f"s_add_u32 s{sROT2}, s{sROT2}, s{sT0}")
        a(f"s_cmp_ge_u32 s{sROT2}, 14")
        a(f"s_cselect_b32 s{sT0}, 14, 0")
        a(f"s_sub_u32 s{sROT2}, s{sROT2}, s{sT0}")
    if opt.rota2:
        a(f"s_mul_i32 s{sT0}, s{sST}, {opt.rota2}")
        a(f"s_add_u32 s{sROT2}, s{sROT2}, s{sT0}")
        a(f"s_and_b32 s{sT0}, s{sROT2}, 0xff")
        a(f"s_mul_i32 s{sT0}, s{sROT2}, 18725")
        a(f"s_lshr_b32 s{sT0}, s{sT0}, 18")
        a(f"s_mul_i32 s{sT0}, s{sT0}, 14")
        a(f"s_sub_u32 s{sROT2}, s{sROT2}, s{sT0}")
    if not (opt.rot & 1): a(f"s_mov_b32 s{sROT1}, 0")
    if not (opt.rot & 2): a(f"s_mov_b32 s{sROT2}, 0")
    a(f"s_lshl_b32 s{sM0B}, s{sWAVE}, 15")
    a(f"s_lshl_b32 s{sUP}, s{sWAVE}, 13")
    a(f"s_add_u32 s{sUP}, s{sUP}, 131072")
    def tr_addr(base_sgpr):
        t0, t1, t2 = vX, vX + 1, vX + 2
        a(f"v_lshrrev_b32 v{t0}, 4, v{vLANE}")
        a(f"v_and_b32 v{t1}, 1, v{t0}")
        a(f"v_lshlrev_b32 v{t1}, 2, v{t1}")
        a(f"v_bfe_u32 v{t2}, v{vLANE}, 2, 2")
        a(f"v_add_u32 v{t1}, v{t1}, v{t2}")
        a(f"v_lshrrev_b32 v{t0}, 1, v{t0}")
        a(f"v_lshlrev_b32 v{t0}, 10, v{t0}")
        a(f"v_lshlrev_b32 v{t2}, 7, v{t1}")
        a(f"v_add_u32 v{t0}, v{t0}, v{t2}")
        a(f"v_and_b32 v{t2}, 3, v{vLANE}")
        a(f"v_lshlrev_b32 v{t2}, 3, v{t2}")
        a(f"v_add_u32 v{t0}, v{t0}, v{t2}")
        a(f"v_add_u32 v{t0}, s{base_sgpr}, v{t0}")
        a(f"v_lshrrev_b32 v{t1}, 1, v{t1}")
        for t in range(4):
            a(f"v_xor_b32 v{t2}, {t}, v{t1}")
            a(f"v_lshlrev_b32 v{t2}, 5, v{t2}")
            a(f"v_add_u32 v{vTR+t}, v{t0}, v{t2}")
    def w1_dma(i): dma_step(a, sW1, F * 2, sWB, sROT1, i, 16, sM0B, (i % 8) * 4096, f"w1_{i}", "nt" if i < opt.nta else opt.w1bits)
    def w1_stream(first, dp, hold=0):
        retired = 0
        def retire():
            nonlocal retired
            a.wait_vm(f"w1_{retired}")
            if retired: a("s_waitcnt lgkmcnt(0)")
            tr_step(a, vTR, (retired % 8) * 4096, retired)
            retired += 1
        for i in range(first, 16):
            while retired <= i - dp: retire()
            if i >= 8:
                while retired <= i - 8: retire()
                if retired == i - 7: a("s_waitcnt lgkmcnt(0)")
            w1_dma(i)
            if opt.epoll and i == opt.epoll:
                a(f"v_mul_u32_u24 v{vHP}, {opt.hline}, v{vLANE}")
                a(f"s_cmp_lg_u32 s{sWAVE}, {opt.pollw}")
                a("s_cbranch_scc1 L_noepoll")
                a(f"buffer_load_dwordx4 {vr(vPQ,4)}, v{vHP}, {srd(sF)}, 0 offen sc1")
                a.label("L_noepoll")
        while retired < 16 - hold: retire()
        def finish():
            while retired < 16: retire()
            a("s_waitcnt lgkmcnt(0)")
        if not hold: finish()
        return finish
    dma_addr(a, F * 2, sFT)
    a(f"s_mul_i32 s{sWB}, s{sWAVE}, {512*F*2}")
    a.c("LayerNorm: wave w normalises rows 32*ks + 16*(w>>1) + 4*q + 2*(w&1) + (0,1), 32 lanes per row")
    XR, XF, TM = 96, 108, 130
    a(f"s_lshr_b32 s{sT0}, s{sWG}, 2")
    a(f"s_and_b32 s{sT1}, s{sWG}, 3")
    a(f"s_lshl_b32 s{sT2}, s{sT0}, 5")
    a(f"s_lshr_b32 s{sT3}, s{sWAVE}, 1")
    a(f"s_lshl_b32 s{sT3}, s{sT3}, 4")
    a(f"s_add_u32 s{sT2}, s{sT2}, s{sT3}")
    a(f"s_lshl_b32 s{sT3}, s{sT1}, 2")
    a(f"s_add_u32 s{sT2}, s{sT2}, s{sT3}")
    a(f"s_and_b32 s{sT3}, s{sWAVE}, 1")
    a(f"s_lshl_b32 s{sT3}, s{sT3}, 1")
    a(f"s_add_u32 s{sT2}, s{sT2}, s{sT3}")
    a(f"s_mul_i32 s{sT2}, s{sT2}, 1280")
    a(f"v_lshrrev_b32 v{TM}, 5, v{vLANE}")
    a(f"v_and_b32 v{TM+1}, 31, v{vLANE}")
    a(f"v_lshlrev_b32 v{TM+1}, 3, v{TM+1}")
    a(f"v_mul_u32_u24 v{TM+2}, 1280, v{TM}")
    a(f"v_add_u32 v{TM+2}, v{TM+2}, v{TM+1}")
    a(f"v_mov_b32 v{vT}, 0")
    a("s_waitcnt lgkmcnt(0)")
    if opt.prof: a(f"s_mov_b32 s{sPROF}, s{sP}")
    make_srd(a, sD, 16, 256)
    a(f"s_cmp_lg_u32 s{sWG}, 0")
    a("s_cbranch_scc1 L_nononce")
    a(f"s_cmp_lg_u32 s{sWAVE}, 3")
    a("s_cbranch_scc1 L_nononce")
    a(f"s_or_b32 s{sNONCE}, s{sP if opt.prof else 96}, 1")
    a(f"v_mov_b32 v{vT2}, s{sNONCE}")
    a(f"s_mov_b64 s[{sP+2}:{sP+3}], exec")
    a("s_mov_b64 exec, 1")
    a(f"buffer_store_dword v{vT2}, v{vT}, {srd(sD)}, 0 offen sc1")
    a(f"s_mov_b64 exec, s[{sP+2}:{sP+3}]")
    a.label("L_nononce")
    make_srd(a, sX, 4, S * D * 2)
    if opt.xpf:
        a(f"s_and_b32 s{sT3}, s{sWG}, 4")
        a(f"s_cmp_lg_u32 s{sT3}, 0")
        a("s_cbranch_scc1 L_xlate")
        a(f"s_add_u32 s{sT3}, s{sT2}, {32*1280}")
        for i in range(5):
            a(f"buffer_load_dwordx2 {vr(244+2*(i%2),2)}, v{TM+2}, {srd(sX)}, s{sT3} offen offset:{i*256}")
        for i in range(5):
            a(f"buffer_load_dwordx2 {vr(XR+2*i,2)}, v{TM+2}, {srd(sX)}, s{sT2} offen offset:{i*256} {opt.xbits}")
        a("s_branch L_xissued")
        a.label("L_xlate")
        for i in range(5):
            a(f"buffer_load_dwordx2 {vr(XR+2*i,2)}, v{TM+2}, {srd(sX)}, s{sT2} offen offset:{i*256} {opt.xbits if opt.xpf == 2 else ''}")
        a.label("L_xissued")
    else:
        for i in range(5):
            a.vmem(f"buffer_load_dwordx2 {vr(XR+2*i,2)}, v{TM+2}, {srd(sX)}, s{sT2} offen offset:{i*256} {opt.xbits}", "x")
    make_srd(a, sW1, 6, S * F * 2)
    if opt.xbar: a("s_barrier")
    a(f"s_cmp_ge_u32 s{sJ}, s{sJLIM}")
    a("s_cbranch_scc1 L_ln_now1")
    for i in range(opt.nearly): w1_dma(i)
    a.label("L_ln_now1")
    if opt.cpf:
        a(f"s_cmp_lg_u32 s{sWAVE}, 3")
        a("s_cbranch_scc1 L_nocpf")
        a(f"s_lshl_b32 s{sT3}, s{sJ}, 11")
        a(f"v_lshlrev_b32 v{vX}, 4, v{vLANE}")
        a(f"v_add_u32 v{vX}, s{sT3}, v{vX}")
        a(f"v_add_u32 v{vX+1}, 1024, v{vX}")
        for h in range(2):
            a(f"v_min_u32 v{vX+h}, L_codeend-{KN}-36, v{vX+h}")
            a(f"global_load_dwordx4 {vr(240+4*h,4)}, v{vX+h}, s[94:95]")
        a.label("L_nocpf")
    make_srd(a, sH, 18, H_BYTES, WS_H)
    make_srd(a, sF, 18, FLAG_BYTES, WS_FLAG)
    a(f"s_mul_i32 s{sSTEP}, s{sT0}, 40960")
    a(f"s_lshl_b32 s{sT1}, s{sT1}, 8")
    a(f"s_add_u32 s{sSTEP}, s{sSTEP}, s{sT1}")
    a(f"s_lshl_b32 s{sT3}, s{sWAVE}, 1")
    a(f"v_add_u32 v{TM+4}, s{sT3}, v{TM}")
    a(f"v_mul_u32_u24 v{TM+4}, {LN_ROW}, v{TM+4}")
    a(f"v_add_u32 v{TM+4}, v{TM+4}, v{TM+1}")
    a(f"v_add_u32 v{TM+4}, {LN_BASE}, v{TM+4}")
    a(f"s_mul_i32 s{sT3}, s{sWAVE}, 12")
    a(f"s_cmp_eq_u32 s{sWAVE}, 3")
    a(f"s_cselect_b32 s{sT3}, 32, s{sT3}")
    a(f"v_lshrrev_b32 v{TM+6}, 4, v{vLANE}")
    a(f"v_add_u32 v{TM+6}, s{sT3}, v{TM+6}")
    a(f"v_bfe_u32 v{TM+5}, v{vLANE}, 2, 2")
    a(f"v_mul_u32_u24 v{TM+5}, {LN_ROW}, v{TM+5}")
    a(f"v_lshlrev_b32 v{TM+7}, 5, v{TM+6}")
    a(f"v_add_u32 v{TM+5}, v{TM+5}, v{TM+7}")
    a(f"v_and_b32 v{TM+7}, 3, v{vLANE}")
    a(f"v_lshlrev_b32 v{TM+7}, 3, v{TM+7}")
    a(f"v_add_u32 v{TM+5}, v{TM+5}, v{TM+7}")
    a(f"v_add_u32 v{TM+5}, {LN_BASE}, v{TM+5}")
    a(f"v_lshlrev_b32 v{TM+6}, 10, v{TM+6}")
    a(f"v_and_b32 v{TM+7}, 15, v{vLANE}")
    a(f"v_lshlrev_b32 v{TM+7}, 4, v{TM+7}")
    a(f"v_add_u32 v{TM+6}, v{TM+6}, v{TM+7}")
    tr_addr(sM0B)
    a(f"s_mov_b32 s{sT0}, 0xffff0000")
    nc = 2 if opt.cpf else 0
    a(f"s_cmp_ge_u32 s{sJ}, s{sJLIM}")
    a("s_cbranch_scc1 L_ln_idle")
    a(f"s_cmp_eq_u32 s{sWAVE}, 3")
    a("s_cbranch_scc1 L_ln_w3")
    a(f"s_waitcnt vmcnt({4*opt.nearly})")
    a("s_branch L_ln_go")
    a.label("L_ln_w3")
    a(f"s_waitcnt vmcnt({4*opt.nearly + nc})")
    a("s_branch L_ln_go")
    a.label("L_ln_idle")
    a(f"s_cmp_eq_u32 s{sWAVE}, 3")
    a("s_cbranch_scc1 L_ln_idle3")
    a("s_waitcnt vmcnt(0)")
    a("s_branch L_ln_go")
    a.label("L_ln_idle3")
    a(f"s_waitcnt vmcnt({nc})")
    a.label("L_ln_go")
    stamp(a, opt, 1)
    jitter(a, opt, 1)
    nmid = [opt.nearly]
    def mid_step(tag):
        if nmid[0] < opt.nearly + opt.nmid:
            a(f"s_cmp_ge_u32 s{sJ}, s{sJLIM}")
            a(f"s_cbranch_scc1 L_mid_{tag}")
            w1_dma(nmid[0]); nmid[0] += 1
            a.label(f"L_mid_{tag}")
    if opt.unsafe & 2: a(f"buffer_load_dword v{vPOLL}, v{vT}, {srd(sD)}, 0 offen sc1")
    mid_step("a")
    for i in range(10):
        a(f"v_lshlrev_b32 v{XF+2*i}, 16, v{XR+i}")
        a(f"v_and_b32 v{XF+2*i+1}, s{sT0}, v{XR+i}")
    SM = TM + 8
    a(f"v_pk_add_f32 {vr(SM,2)}, {vr(XF,2)}, {vr(XF+4,2)}")
    a(f"v_pk_add_f32 {vr(SM+2,2)}, {vr(XF+2,2)}, {vr(XF+6,2)}")
    for i in range(4, 10):
        k = i % 2
        a(f"v_pk_add_f32 {vr(SM+2*k,2)}, {vr(SM+2*k,2)}, {vr(XF+2*i,2)}")
    def reduce_row(dst):
        a(f"v_pk_add_f32 {vr(SM,2)}, {vr(SM,2)}, {vr(SM+2,2)}")
        a(f"v_add_f32 v{dst}, v{SM}, v{SM+1}")
        for rot in (8, 4, 2, 1):
            a("s_nop 1")
            a(f"v_add_f32_dpp v{dst}, v{dst}, v{dst} row_ror:{rot} row_mask:0xf bank_mask:0xf")
        a(f"v_mov_b32 v{SM}, v{dst}")
        a("s_nop 1")
        a(f"v_permlane16_swap_b32 v{dst}, v{SM}")
        a("s_nop 1")
        a(f"v_add_f32 v{dst}, v{dst}, v{SM}")
    MN = TM + 12
    reduce_row(MN)
    mid_step("b")
    a(f"v_mul_f32 v{MN}, {f2h(1.0/640.0)}, v{MN}")
    a(f"v_mov_b32 v{MN+1}, v{MN}")
    for i in range(10):
        a(f"v_pk_add_f32 {vr(XF+2*i,2)}, {vr(XF+2*i,2)}, {vr(MN,2)} neg_lo:[0,1] neg_hi:[0,1]")
    for k in range(2):
        a(f"v_pk_mul_f32 {vr(SM+2*k,2)}, {vr(XF+2*k,2)}, {vr(XF+2*k,2)}")
    for i in range(2, 10):
        k = i % 2
        a(f"v_pk_fma_f32 {vr(SM+2*k,2)}, {vr(XF+2*i,2)}, {vr(XF+2*i,2)}, {vr(SM+2*k,2)}")
    reduce_row(MN)
    mid_step("c")
    a(f"v_mov_b32 v{MN+1}, {f2h(1e-5)}")
    a(f"v_fmac_f32 v{MN+1}, {f2h(1.0/640.0)}, v{MN}")
    a(f"v_rsq_f32 v{MN}, v{MN+1}")
    a("s_nop 0")
    a(f"v_mov_b32 v{MN+1}, v{MN}")
    for i in range(10):
        a(f"v_pk_mul_f32 {vr(XF+2*i,2)}, {vr(XF+2*i,2)}, {vr(MN,2)}")
    for i in range(10):
        a(f"v_cvt_pk_bf16_f32 v{XR+i}, v{XF+2*i}, v{XF+2*i+1}")
    for i in range(5):
        a(f"ds_write_b64 v{TM+4}, {vr(XR+2*i,2)} offset:{i*256}")
    a("s_waitcnt lgkmcnt(0)")
    if opt.unsafe & 2:
        a("s_waitcnt vmcnt(0)")
        a(f"v_readfirstlane_b32 s{sNONCE}, v{vPOLL}")
        nonce_spin(a, opt)
    a("s_barrier")
    for i in range(2):
        a(f"ds_read_b64_tr_b16 {vr(XF+4*i,2)}, v{TM+5} offset:{i*128}")
        a(f"ds_read_b64_tr_b16 {vr(XF+4*i+2,2)}, v{TM+5} offset:{i*128+4*LN_ROW}")
    a(f"s_cmp_ge_u32 s{sWAVE}, 2")
    a("s_cbranch_scc1 L_ln_two")
    a(f"ds_read_b64_tr_b16 {vr(XF+8,2)}, v{TM+5} offset:{2*128}")
    a(f"ds_read_b64_tr_b16 {vr(XF+10,2)}, v{TM+5} offset:{2*128+4*LN_ROW}")
    a("s_waitcnt lgkmcnt(0)")
    a(f"s_add_u32 s{sT0}, s{sSTEP}, {2*4096}")
    a(f"buffer_store_dwordx4 {vr(XF+8,4)}, v{TM+6}, {srd(sH)}, s{sT0} offen {opt.hbits}")
    a.label("L_ln_two")
    a("s_waitcnt lgkmcnt(0)")
    for i in range(2):
        a(f"s_add_u32 s{sT0}, s{sSTEP}, {i*4096}")
        a(f"buffer_store_dwordx4 {vr(XF+4*i,4)}, v{TM+6}, {srd(sH)}, s{sT0} offen {opt.hbits}")
    if not (opt.unsafe & 2): a(f"buffer_load_dword v{vPOLL}, v{vT}, {srd(sD)}, 0 offen sc1")
    stamp(a, opt, 2)
    if opt.unsafe & 2:
        a("s_barrier")
        a(f"s_cmp_lg_u32 s{sWAVE}, 0")
        a("s_cbranch_scc1 L_noflag0")
        a(f"s_lshl_b32 s{sT0}, s{sWG}, 2")
        flag_store(a, sT0)
        a.label("L_noflag0")
    a(f"s_cmp_ge_u32 s{sJ}, s{sJLIM}")
    a("s_cbranch_scc1 L_ln_idle2")
    ne = opt.nearly + opt.nmid
    a.vm = [f"w1_{i}" for i in range(ne)]
    for i in range(ne, ne + opt.npost): w1_dma(i)
    if not (opt.unsafe & 2): a(f"s_waitcnt vmcnt({4*opt.npost})")
    a("s_branch L_ln_go2")
    a.label("L_ln_idle2")
    if not (opt.unsafe & 2): a("s_waitcnt vmcnt(0)")
    a.label("L_ln_go2")
    if not (opt.unsafe & 2):
        a(f"v_readfirstlane_b32 s{sNONCE}, v{vPOLL}")
        nonce_spin(a, opt)
        a("s_barrier")
        a(f"s_cmp_lg_u32 s{sWAVE}, 0")
        a("s_cbranch_scc1 L_noflag")
        a(f"s_lshr_b32 s{sT0}, s{sWG}, 2")
        a(f"s_mul_i32 s{sT0}, s{sT0}, {opt.hline}")
        a(f"s_and_b32 s{sT1}, s{sWG}, 3")
        a(f"s_lshl_b32 s{sT1}, s{sT1}, 2")
        a(f"s_add_u32 s{sT0}, s{sT0}, s{sT1}")
        keep = list(a.vm)
        flag_store(a, sT0)
        a.vm = keep
        a.label("L_noflag")
    stamp(a, opt, 3)
    a(f"s_cmp_ge_u32 s{sJ}, s{sJLIM}")
    a("s_cbranch_scc1 L_nogemm1")
    w1_finish = w1_stream(opt.nearly + opt.nmid + opt.npost, opt.dp, opt.hold1)

    def common_setup(retr=True):
        make_srd(a, sH, 18, H_BYTES, WS_H)
        make_srd(a, sF, 18, FLAG_BYTES, WS_FLAG)
        make_srd(a, sB1, 8, F * 2)
        make_srd(a, sW2, 10, F * S * 2)
        make_srd(a, sB2, 12, S * 2)
        make_srd(a, sO, 14, S * D * 2)
        make_srd(a, sG, 18, G_BYTES, WS_G)
        a(f"v_lshrrev_b32 v{vT}, 4, v{vLANE}")
        a(f"v_lshlrev_b32 v{vT}, 3, v{vT}")
        a(f"s_and_b32 s{sT0}, s{sWAVE}, 1")
        a(f"s_lshl_b32 s{sT0}, s{sT0}, 6")
        a(f"s_lshl_b32 s{sT1}, s{sFT}, 7")
        a(f"s_add_u32 s{sT0}, s{sT0}, s{sT1}")
        a.vmem(f"buffer_load_dwordx2 {vr(vB1,2)}, v{vT}, {srd(sB1)}, s{sT0} offen", "b")
        a.vmem(f"buffer_load_dwordx2 {vr(vB1+2,2)}, v{vT}, {srd(sB1)}, s{sT0} offen offset:32", "b")
        a(f"v_and_b32 v{vT}, 15, v{vLANE}")
        a(f"v_lshlrev_b32 v{vT}, 1, v{vT}")
        a(f"s_lshl_b32 s{sT0}, s{sST}, 7")
        a(f"s_lshl_b32 s{sT1}, s{sWAVE}, 5")
        a(f"s_add_u32 s{sT0}, s{sT0}, s{sT1}")
        a.vmem(f"buffer_load_ushort v{vB2}, v{vT}, {srd(sB2)}, s{sT0} offen", "b")
        dma_addr(a, S * 2, sST)
        a(f"s_mul_i32 s{sWB}, s{sWAVE}, {448*S*2}")
        if retr: tr_addr(sM0B)
        a(f"s_sub_u32 s{sT0}, s{sUP}, s{sM0B}")
        for t in range(4):
            a(f"v_add_u32 v{vTRU+t}, s{sT0}, v{vTR+t}")
        a(f"v_lshlrev_b32 v{vL0}, 4, v{vLANE}")
        a(f"v_add_u32 v{vL1}, 65536, v{vL0}")
        a(f"v_add_u32 v{vL2}, 131072, v{vL0}")

    a.label("L_w1_ready")
    stamp(a, opt, 4)
    jitter(a, opt, 2)
    vm_keep = list(a.vm)
    common_setup(retr=False)
    a(f"s_mul_i32 s{sT0}, s{sDT1}, 5120")
    a(f"v_add_u32 v{vA}, s{sT0}, v{vL0}")
    a(f"v_add_u32 v{vA2}, 4096, v{vA}")
    a(f"s_cmp_lg_u32 s{sWAVE}, {opt.pollw}")
    a("s_cbranch_scc1 L_hpolled")
    if opt.epoll:
        a(f"s_waitcnt vmcnt({4*(15 - opt.epoll) + 3})")
        poll_check(a, 4, None, "L_hpolled")
    if opt.pipe & 1:
        a("s_waitcnt vmcnt(0)")
        poll_pipe(a, opt, vHP, None, opt.gap)
    else:
        poll(a, opt, vHP, 4, None, opt.sleeph, opt.preh, 1)
    a.label("L_hpolled")
    a.vm = vm_keep + ["b", "b", "b"]
    a("s_barrier")
    stamp(a, opt, 5)

    def a_loads(srdn, step, nsteps, s_rot):
        slot = step % NS
        step_off(a, sOFF, sSTEP, s_rot, step, nsteps, 40960)
        return [f"buffer_load_dwordx4 {vr(ring(slot,t),4)}, v{vA if t < 4 else vA2}, {srd(srdn)}, s{sOFF} offen offset:{(t*1024) if t < 4 else 0} {opt.abits}" for t in range(5)]

    def main_loop(srdn, nsteps, s_rot, tagp, mfma, stamp0, tail, nuni, pre=None):
        def load(n):
            st, o = divmod(n, 5)
            if st >= nsteps: return
            if o == 0: step_off(a, sOFF, sSTEP, s_rot, st, nsteps, 40960)
            a.vmem(f"buffer_load_dwordx4 {vr(ring(st % NS, o),4)}, v{vA if o < 4 else vA2}, {srd(srdn)}, s{sOFF} offen "
                   f"offset:{(o*1024) if o < 4 else 0} {opt.abits}", f"{tagp}{st}_{o}")
        for n in range(opt.dist): load(n)
        if pre: pre()
        for st in range(nuni):
            for o in range(5):
                n = 5 * st + o
                if opt.fine == 1: load(n + opt.dist)
                a.wait_vm(f"{tagp}{st}_{o}")
                if n == 0 and stamp0 is not None: stamp(a, opt, stamp0)
                if opt.fine == 2: load(n + opt.dist)
                for i in range(4): mfma(st, o, i, st % NS)
                if tail: tail(st, o)
        assert 5 * nuni - 1 + opt.dist >= 5 * nsteps - 1, "loads left for the tail"

    def tile_tail(nsteps, tagp, first, last, frag_of, mfma_tile, write_tile, extra):
        ic = [0]
        done_at = {}
        queue = []
        extra = list(extra)
        def emit(fn):
            fn(); ic[0] += 1
        def filler():
            if queue and ic[0] - done_at[queue[0]] >= 9:
                t = queue.pop(0); emit(lambda: write_tile(t)); return
            if extra: emit(extra.pop(0))
        tiles = list(first) + list(last)
        for i in range(0, len(tiles), 2):
            pair = tiles[i:i + 2]
            for t in pair:
                for st in (nsteps - 2, nsteps - 1): a.wait_vm(f"{tagp}{st}_{frag_of(t)}")
            for st in (nsteps - 2, nsteps - 1):
                for t in pair:
                    emit(lambda: mfma_tile(st, t))
                    if st == nsteps - 1:
                        done_at[t] = ic[0]
                        if t in first: queue.append(t)
                    filler()
        while extra: emit(extra.pop(0))
        while queue:
            while ic[0] - done_at[queue[0]] < 9: emit(lambda: a("s_nop 0"))
            t = queue.pop(0); emit(lambda: write_tile(t))

    a(f"s_mul_i32 s{sSTEP}, s{sWAVE}, {16*40960}")
    def mfma1(st, nt, mt, slot):
        c = "0" if st == 0 else vr(acc1(mt, nt), 4)
        a(f"v_mfma_f32_16x16x32_bf16 {vr(acc1(mt,nt),4)}, {ar(wfrag(st,mt),4)}, {vr(ring(slot,nt),4)}, {c}")
    parts13 = w2_dma_parts(a, 0) if opt.t13 else []
    def tail1(st, o):
        if st == 13 and parts13:
            if o == 0: parts13[0]()
            else: parts13[o]()
    main_loop(sH, 16, sROT1, "h", mfma1, 6, tail1, 14, w1_finish if opt.hold1 else None)

    a(f"s_mov_b32 s100, {f2h(C1)}"); a(f"s_mov_b32 s101, {f2h(C1)}")
    a(f"v_mov_b32 v{vC0}, {f2h(C0)}"); a(f"v_mov_b32 v{vC0+1}, {f2h(C0)}")
    def lds_ref(addr):
        if addr < 65536: return vL0, addr
        if addr < 131072: return vL1, addr - 65536
        return vL2, addr - 131072
    def owner1(p, nt): return p + (0 if nt < 3 else 2)
    units = [(p, nt) for p in range(2) for nt in range(5)]
    def red1_addr(src, u):
        k = [x for x in units if owner1(*x) != src].index(u)
        return src * 32768 + 24576 + k * 2048 if k < 4 else 131072 + src * 8192 + (k - 4) * 2048
    saved_vm = list(a.vm)
    for w in range(4):
        if w < 3:
            a(f"s_cmp_lg_u32 s{sWAVE}, {w}")
            a(f"s_cbranch_scc1 L_ep1_{w+1}")
        a.vm = list(saved_vm)
        nis = [1 if opt.t13 else 0]
        def more(n, limit):
            for _ in range(n):
                if nis[0] < limit:
                    w2_dma(a, nis[0]); nis[0] += 1
        tl = [(2 * p + hf, nt) for nt in range(5) for p in range(2) for hf in range(2)]
        first = [t for t in tl if owner1(t[0] // 2, t[1]) != w]
        last = [t for t in tl if owner1(t[0] // 2, t[1]) == w]
        def wr1(t):
            vb, off = lds_ref(red1_addr(w, (t[0] // 2, t[1])) + (t[0] & 1) * 1024)
            a(f"ds_write_b128 v{vb}, {vr(acc1(*t),4)} offset:{off}")
        extra = []
        for _ in range(opt.tt):
            extra += w2_dma_parts(a, nis[0]); nis[0] += 1
        tile_tail(16, "h", first, last, lambda t: t[1], lambda st, t: mfma1(st, t[1], t[0], st % NS), wr1, extra)
        stamp(a, opt, 7)
        jitter(a, opt, 3)
        more(opt.e1, 6)
        a("s_waitcnt lgkmcnt(0)")
        a("s_barrier")
        own_u = [u for u in units if owner1(*u) == w]
        RT = vRING
        n = 0
        for u in own_u:
            for src in range(4):
                if src == w: continue
                for hf in range(2):
                    vb, off = lds_ref(red1_addr(src, u) + hf * 1024)
                    a(f"ds_read_b128 {vr(RT + n*4, 4)}, v{vb} offset:{off}")
                    n += 1
        a.wait_vm("b")
        for i in range(4):
            a(f"v_lshlrev_b32 v{BI+2*i}, 16, v{vB1+i}")
            a(f"v_and_b32 v{BI+2*i+1}, 0xffff0000, v{vB1+i}")
        for u in own_u:
            p, nt = u
            for hf in range(2):
                r = acc1(2*p+hf, nt)
                a(f"v_pk_add_f32 {vr(r,2)}, {vr(r,2)}, {vr(BI+4*hf,2)}")
                a(f"v_pk_add_f32 {vr(r+2,2)}, {vr(r+2,2)}, {vr(BI+4*hf+2,2)}")
        n = 0
        tot = len(own_u) * 6
        for u in own_u:
            p, nt = u
            for si in range(3):
                for hf in range(2):
                    a(f"s_waitcnt lgkmcnt({min(15, tot - n - 1)})")
                    r = acc1(2*p+hf, nt)
                    a(f"v_pk_add_f32 {vr(r,2)}, {vr(r,2)}, {vr(RT+n*4,2)}")
                    a(f"v_pk_add_f32 {vr(r+2,2)}, {vr(r+2,2)}, {vr(RT+n*4+2,2)}")
                    n += 1
        a("s_barrier")
        regs = []
        for u in own_u:
            p, nt = u
            for hf in range(2):
                r = acc1(2*p+hf, nt)
                regs += [r, r + 2]
        more(opt.e2, 10)
        gelu_pairs(a, regs, RT, fill=lambda: more(opt.e3, 10))
        a(f"s_lshl_b32 s{sT0}, s{sFT}, 1")
        a(f"s_add_u32 s{sT0}, s{sT0}, {w & 1}")
        a(f"s_mul_i32 s{sT0}, s{sT0}, 40960")
        a(f"s_mul_i32 s{sT1}, s{sDT1}, 5120")
        a(f"s_add_u32 s{sT0}, s{sT0}, s{sT1}")
        for i, u in enumerate(own_u):
            p, nt = u
            o = RT + 64 + 4 * i
            r0, r1 = acc1(2*p, nt), acc1(2*p+1, nt)
            a(f"v_cvt_pk_bf16_f32 v{o}, v{r0}, v{r0+1}")
            a(f"v_cvt_pk_bf16_f32 v{o+1}, v{r0+2}, v{r0+3}")
            a(f"v_cvt_pk_bf16_f32 v{o+2}, v{r1}, v{r1+1}")
            a(f"v_cvt_pk_bf16_f32 v{o+3}, v{r1+2}, v{r1+3}")
            a(f"s_add_u32 s{sT1}, s{sT0}, {nt*1024}")
            a.vmem(f"buffer_store_dwordx4 {vr(o,4)}, v{vL0}, {srd(sG)}, s{sT1} offen {opt.gbits}", "g")
        stamp(a, opt, 8)
        jitter(a, opt, 4)
        def g_flag():
            a(f"s_lshl_b32 s{sT0}, s{sDT1}, 5")
            a(f"s_add_u32 s{sT0}, s{sT0}, s{sFT}")
            a(f"s_mul_i32 s{sT0}, s{sT0}, {opt.gstride}")
            a(f"s_add_u32 s{sT0}, s{sT0}, {FLAG_G + 4*w}")
            flag_store(a, sT0)
            stamp(a, opt, 9)
        if opt.unsafe & 1: g_flag()
        more(opt.nb, 10)
        def tr_first4():
            a.wait_vm("w2_3")
            for st in range(4):
                w2_tr(a, st)
                if st % 2 == 1: a("s_waitcnt lgkmcnt(0)")
        if not opt.flagfirst: tr_first4()
        if not (opt.unsafe & 1):
            a.wait_vm("g")
            if opt.gwg:
                a("s_barrier")
                if w == 0:
                    keep = list(a.vm); g_flag(); a.vm = keep
            else:
                g_flag()
        if opt.flagfirst:
            more(max(0, 4 - nis[0]), 10)
            more(opt.nb3, 10)
            tr_first4()
        assert nis[0] >= 4
        more(10, 10)
        more(4, 14)
        for st in range(4, 10):
            a.wait_vm(f"w2_{st}")
            w2_tr(a, st)
            if st % 2 == 1: a("s_waitcnt lgkmcnt(0)")
        a("s_branch L_pre2")
        if w < 3: a.label(f"L_ep1_{w+1}")

    a.label("L_nogemm1")
    a.vm = []
    common_setup()
    if False:
        a(f"s_lshl_b32 s{sT0}, s{sWAVE}, 6")
        a(f"v_add_u32 v{vX}, s{sT0}, v{vLANE}")
        a(f"v_mul_u32_u24 v{vX}, {opt.hstride}, v{vX}")
        poll(a, opt, vX, 2, None)
        if opt.idlewait > 1:
            a(f"s_sleep {opt.idlewait}")
    if opt.pf == 3:
        a(f"s_lshl_b32 s{sT0}, s{sIDLE}, 2")
        a(f"s_add_u32 s{sT0}, s{sT0}, s{sWAVE}")
        a(f"s_lshl_b32 s{sT0}, s{sT0}, 10")
        for k in range(44):
            o = vRING + (k % 16) * 4
            a.vmem(f"buffer_load_dwordx4 {vr(o,4)}, v{vL0}, {srd(sW2)}, s{sT0} offen {opt.pfbits}", f"pf{k}")
            a(f"s_add_u32 s{sT0}, s{sT0}, {160*1024}")
            if k >= opt.pfdepth: a.wait_vm(f"pf{k-opt.pfdepth}")
        a.wait_vm0()
    if opt.pf == 2:
        assert opt.p1 == 2 and opt.p2 == 1
        a(f"s_cmp_lt_u32 s{sJ}, 28")
        a("s_cbranch_scc1 L_nopf")
        a(f"s_sub_u32 s{sT0}, s{sJ}, 28")
        a(f"s_lshl_b32 s{sT0}, s{sT0}, 2")
        a(f"s_add_u32 s{sT0}, s{sT0}, s{sWAVE}")
        a(f"s_lshl_b32 s{sT0}, s{sT0}, 13")
        a(f"s_lshl_b32 s{sT1}, s{sXCD}, 9")
        a(f"s_add_u32 s{sT0}, s{sT0}, s{sT1}")
        a(f"v_lshrrev_b32 v{vX}, 5, v{vLANE}")
        a(f"v_lshlrev_b32 v{vX}, 12, v{vX}")
        a(f"v_and_b32 v{vX+1}, 31, v{vLANE}")
        a(f"v_lshlrev_b32 v{vX+1}, 4, v{vX+1}")
        a(f"v_add_u32 v{vX}, v{vX}, v{vX+1}")
        keep = list(a.vm)
        for k in range(54):
            o = vRING + (k % 16) * 4
            a.vmem(f"buffer_load_dwordx4 {vr(o,4)}, v{vX}, {srd(sW2)}, s{sT0} offen", f"pf{k}")
            a(f"s_add_u32 s{sT0}, s{sT0}, {16*8192}")
            if k >= opt.pfdepth: a.wait_vm(f"pf{k-opt.pfdepth}")
        a.wait_vm0()
        a.label("L_nopf")
        a.vm = keep
    for st in range(10): w2_dma(a, st)
    for st in range(4):
        a.wait_vm(f"w2_{st}")
        w2_tr(a, st)
        if st % 2 == 1: a("s_waitcnt lgkmcnt(0)")
    for st in range(10, 14): w2_dma(a, st)
    for st in range(4, 10):
        a.wait_vm(f"w2_{st}")
        w2_tr(a, st)
        if st % 2 == 1: a("s_waitcnt lgkmcnt(0)")

    if opt.idle1:
        a("s_waitcnt vmcnt(0)")
        a(f"s_cmp_lg_u32 s{sWAVE}, {opt.pollw}")
        a("s_cbranch_scc1 L_idle1")
        a(f"s_lshl_b32 s{sT0}, s{sDT2}, 5")
        a(f"s_add_u32 s{sT0}, s{sT0}, {opt.idle1ft}")
        a(f"s_mul_i32 s{sT0}, s{sT0}, {opt.gstride}")
        a(f"s_add_u32 s{sT0}, s{sT0}, {FLAG_G}")
        a(f"v_mov_b32 v{vX}, s{sT0}")
        poll(a, opt, vX, 1, None, opt.idle1)
        a.label("L_idle1")
    a.label("L_pre2")
    a(f"s_mul_i32 s{sT0}, s{sDT2}, 5120")
    a(f"v_add_u32 v{vA}, s{sT0}, v{vL0}")
    a(f"v_add_u32 v{vA2}, 4096, v{vA}")
    def w2_finish():
        a.wait_vm("w2all")
        a("s_waitcnt lgkmcnt(0)")
        for st in range(10, 14):
            w2_tr(a, st)
            if st % 2 == 1: a("s_waitcnt lgkmcnt(0)")
    if not opt.hold2:
        a.vm = ["w2all"]
        w2_finish()
    stamp(a, opt, 10)
    if opt.onepoll & 2:
        a(f"s_cmp_lg_u32 s{sWAVE}, {opt.pollw}")
        a("s_cbranch_scc1 L_gpolled")
        a(f"s_lshl_b32 s{sT0}, s{sDT2}, 5")
        a(f"s_mul_i32 s{sT0}, s{sT0}, {opt.gstride}")
        a(f"s_add_u32 s{sT0}, s{sT0}, {FLAG_G}")
        a(f"v_mul_u32_u24 v{vX}, {opt.gstride}, v{vLANE}")
        a(f"v_add_u32 v{vX}, s{sT0}, v{vX}")
        a(f"s_mov_b32 s{sP+2}, 0x7ffffff")
        a(f"s_mov_b32 s{sP+3}, 0")
        if opt.pipe & 2:
            a("s_waitcnt vmcnt(0)")
            poll_pipe(a, opt, vX, sP + 2, opt.gap, 1 if opt.gwg else 4)
        else:
            poll(a, opt, vX, 1 if opt.gwg else 4, sP + 2, opt.sleep, opt.preg)
        a.label("L_gpolled")
        a("s_barrier")
    else:
        a(f"s_lshl_b32 s{sT0}, s{sDT2}, 5")
        a(f"s_mul_i32 s{sT1}, s{sWAVE}, 7")
        a(f"s_add_u32 s{sT0}, s{sT0}, s{sT1}")
        a(f"s_mul_i32 s{sT0}, s{sT0}, {opt.gstride}")
        a(f"s_add_u32 s{sT0}, s{sT0}, {FLAG_G}")
        a(f"v_mul_u32_u24 v{vX}, {opt.gstride}, v{vLANE}")
        a(f"v_add_u32 v{vX}, s{sT0}, v{vX}")
        a(f"s_cmp_eq_u32 s{sWAVE}, 3")
        a(f"s_cselect_b32 s{sP+2}, 0x3f, 0x7f")
        a(f"s_mov_b32 s{sP+3}, 0")
        poll(a, opt, vX, 4, sP + 2, opt.sleep, opt.preg)
    a.vm = ["w2all"] if opt.hold2 else []
    stamp(a, opt, 11)
    a(f"s_mul_i32 s{sSTEP}, s{sWAVE}, {14*40960}")
    def mfma2(st, mt, nt, slot):
        c = "0" if st == 0 else vr(acc2(mt, nt), 4)
        a(f"v_mfma_f32_16x16x32_bf16 {vr(acc2(mt,nt),4)}, {vr(ring(slot,mt),4)}, {ar(wfrag(st,nt),4)}, {c}")
    main_loop(sG, 14, sROT2, "g", mfma2, 12, None, 12, w2_finish if opt.hold2 else None)
    saved_vm2 = list(a.vm)
    a(f"v_and_b32 v{vT}, 15, v{vLANE}")
    a(f"s_lshl_b32 s{sT0}, s{sWAVE}, 4")
    a(f"v_add_u32 v{vT}, s{sT0}, v{vT}")
    a(f"v_mul_u32_u24 v{vA}, 1280, v{vT}")
    a(f"v_lshrrev_b32 v{vT}, 4, v{vLANE}")
    a(f"v_lshlrev_b32 v{vT}, 3, v{vT}")
    a(f"v_add_u32 v{vA}, v{vA}, v{vT}")
    a(f"s_mul_i32 s{sT0}, s{sST}, {64*1280}")
    a(f"s_mul_i32 s{sT1}, s{sDT2}, 160")
    a(f"s_add_u32 s{sOFF}, s{sT0}, s{sT1}")
    a(f"v_lshlrev_b32 v{vC0}, 16, v{vB2}")
    a(f"v_lshlrev_b32 v{vC0+1}, 16, v{vB2}")
    a(f"v_sub_u32 v{vA2}, v{vA}, v{vT}")
    a(f"v_bfe_u32 v{vT}, v{vLANE}, 4, 1")
    a(f"v_lshlrev_b32 v{vT}, 5, v{vT}")
    a(f"v_add_u32 v{vA2}, v{vA2}, v{vT}")
    a(f"v_bfe_u32 v{vT}, v{vLANE}, 5, 1")
    a(f"v_lshlrev_b32 v{vT}, 4, v{vT}")
    a(f"v_add_u32 v{vA2}, v{vA2}, v{vT}")
    def red2_addr(src, nt, mt):
        k = [x for x in range(4) if x != src].index(nt)
        return src * 32768 + (k * 5 + mt) * 1024
    for w in range(4):
        if w < 3:
            a(f"s_cmp_lg_u32 s{sWAVE}, {w}")
            a(f"s_cbranch_scc1 L_ep2_{w+1}")
        a.vm = list(saved_vm2)
        tl = [(mt, nt) for mt in range(5) for nt in range(4)]
        def wr2(t):
            vb, off = lds_ref(red2_addr(w, t[1], t[0]))
            a(f"ds_write_b128 v{vb}, {vr(acc2(*t),4)} offset:{off}")
        tile_tail(14, "g", [t for t in tl if t[1] != w], [t for t in tl if t[1] == w], lambda t: t[0],
                  lambda st, t: mfma2(st, t[0], t[1], st % NS), wr2, [])
        stamp(a, opt, 13)
        jitter(a, opt, 5)
        a("s_waitcnt lgkmcnt(0)")
        a("s_barrier")
        RT = vRING
        n = 0
        for mt in range(5):
            for src in range(4):
                if src == w: continue
                vb, off = lds_ref(red2_addr(src, w, mt))
                a(f"ds_read_b128 {vr(RT+n*4,4)}, v{vb} offset:{off}")
                n += 1
        n = 0
        for mt in range(5):
            r = acc2(mt, w)
            for si in range(3):
                a(f"s_waitcnt lgkmcnt({14 - n})")
                a(f"v_pk_add_f32 {vr(r,2)}, {vr(r,2)}, {vr(RT+n*4,2)}")
                a(f"v_pk_add_f32 {vr(r+2,2)}, {vr(r+2,2)}, {vr(RT+n*4+2,2)}")
                n += 1
            a(f"v_pk_add_f32 {vr(r,2)}, {vr(r,2)}, {vr(vC0,2)}")
            a(f"v_pk_add_f32 {vr(r+2,2)}, {vr(r+2,2)}, {vr(vC0,2)}")
            o = RT + 64 + 2 * mt
            a(f"v_cvt_pk_bf16_f32 v{o}, v{r}, v{r+1}")
            a(f"v_cvt_pk_bf16_f32 v{o+1}, v{r+2}, v{r+3}")
            if not opt.wide or mt == 4:
                a(f"buffer_store_dwordx2 {vr(o,2)}, v{vA}, {srd(sO)}, s{sOFF} offen offset:{mt*32} {opt.obits}")
            elif mt % 2 == 1:
                a("s_nop 1")
                a(f"v_permlane16_swap_b32 v{o-2}, v{o}")
                a(f"v_permlane16_swap_b32 v{o-1}, v{o+1}")
                a(f"buffer_store_dwordx4 {vr(o-2,4)}, v{vA2}, {srd(sO)}, s{sOFF} offen offset:{(mt-1)*32} {opt.obits}")
        a("s_branch L_fin")
        if w < 3: a.label(f"L_ep2_{w+1}")
    a.label("L_fin")
    if opt.probe >= 0:
        if opt.probe == 14:
            a("s_waitcnt vmcnt(0)")
            stamp(a, opt, 14)
        a(f"s_cmp_lg_u32 s{sWG}, {opt.probewg}")
        a("s_cbranch_scc1 L_done")
        a(f"s_cmp_lg_u32 s{sWAVE}, {opt.probew}")
        a("s_cbranch_scc1 L_done")
        ref = sNONCE if opt.probeabs else (sPROF + 2 if opt.probe0 >= 0 else 96)
        a(f"s_sub_u32 s{sT1}, s{sPROF+1}, s{ref}")
        if opt.probecyc: a(f"s_lshr_b32 s{sT1}, s{sT1}, 2")
        else: a(f"s_lshl_b32 s{sT1}, s{sT1}, 2")
        a(f"s_add_u32 s{sT1}, s{sT1}, 4000")
        a.label("L_probe")
        a(f"s_memrealtime s[{sP}:{sP+1}]")
        a("s_waitcnt lgkmcnt(0)")
        a(f"s_sub_u32 s{sT0}, s{sP}, s96")
        a(f"s_cmp_lt_u32 s{sT0}, s{sT1}")
        a("s_cbranch_scc1 L_probe")
    if opt.pad:
        a.label("L_pad")
        a(f"s_memrealtime s[{sP}:{sP+1}]")
        a("s_waitcnt lgkmcnt(0)")
        a(f"s_sub_u32 s{sT0}, s{sP}, s96")
        a(f"s_cmp_lt_u32 s{sT0}, {opt.pad}")
        a("s_cbranch_scc1 L_pad")
    if opt.prof:
        a("s_waitcnt vmcnt(0)")
        stamp(a, opt, 14)
        make_srd(a, sX, 18, 65536, WS_PROF)
        a(f"s_lshl_b32 s{sT0}, s{sWG}, 2")
        a(f"s_add_u32 s{sT0}, s{sT0}, s{sWAVE}")
        a(f"s_lshl_b32 s{sT0}, s{sT0}, 6")
        a(f"v_mov_b32 v{vT}, s{sT0}")
        a("s_mov_b64 exec, 1")
        for i in range(15):
            a(f"v_mov_b32 v100, s{sPROF+i}")
            a(f"buffer_store_dword v100, v{vT}, {srd(sX)}, 0 offen offset:{4*i}")
            a("s_nop 1")
        a("s_waitcnt vmcnt(0)")
    a.label("L_done")
    a("s_endpgm")
    a.label("L_codeend")
    a.raw('.section .rodata,"a"')
    a.raw(".p2align 6")
    a.raw(f".amdhsa_kernel {KN}")
    for l in ["next_free_vgpr 512", "next_free_sgpr 102", "accum_offset 256", "group_segment_fixed_size 0",
              "kernarg_size 64", "user_sgpr_count 2", "user_sgpr_kernarg_segment_ptr 1",
              "system_sgpr_workgroup_id_x 1", "float_denorm_mode_32 3"]:
        a.raw(f"  .amdhsa_{l}")
    a.raw(".end_amdhsa_kernel")
    return "\n".join(a.L) + "\n"

def parse(argv=None):
    ap = argparse.ArgumentParser()
    ap.add_argument("-o", default="standalone__mixer_token_mlp__prompt.s")
    ap.add_argument("--prof", type=int, default=0)
    ap.add_argument("--rot", type=int, default=3)
    ap.add_argument("--spin", type=int, default=20000)
    ap.add_argument("--sleep", type=int, default=8)
    ap.add_argument("--depth", type=int, default=3)
    ap.add_argument("--lnprof", type=int, default=0)
    ap.add_argument("--hbits", default="sc1")
    ap.add_argument("--pfwait", type=int, default=1)
    ap.add_argument("--hold", type=int, default=0)
    ap.add_argument("--probe", type=int, default=-1)
    ap.add_argument("--probe0", type=int, default=-1)
    ap.add_argument("--probecyc", type=int, default=0)
    ap.add_argument("--probeabs", type=int, default=0)
    ap.add_argument("--probewg", type=int, default=100)
    ap.add_argument("--probew", type=int, default=2)
    ap.add_argument("--rot8", type=int, default=1)
    ap.add_argument("--cpf", type=int, default=1)
    ap.add_argument("--cpfw", type=int, default=3)
    ap.add_argument("--wide", type=int, default=1)
    ap.add_argument("--idlewait", type=int, default=0)
    ap.add_argument("--sleeph", type=int, default=8)
    ap.add_argument("--preh", type=int, default=0)
    ap.add_argument("--preg", type=int, default=0)
    ap.add_argument("--onepoll", type=int, default=3)
    ap.add_argument("--pollw", type=int, default=3)
    ap.add_argument("--nta", type=int, default=0)
    ap.add_argument("--rotg1", type=int, default=0)
    ap.add_argument("--rotg2", type=int, default=0)
    ap.add_argument("--npost", type=int, default=3)
    ap.add_argument("--xbar", type=int, default=1)
    ap.add_argument("--hold1", type=int, default=4)
    ap.add_argument("--hold2", type=int, default=1)
    ap.add_argument("--nmid", type=int, default=0)
    ap.add_argument("--gbits", default="sc1")
    ap.add_argument("--fbits", default="sc1")
    ap.add_argument("--abits", default="sc1")
    ap.add_argument("--unsafe", type=int, default=0)
    ap.add_argument("--epoll", type=int, default=12)
    ap.add_argument("--pipe", type=int, default=1)
    ap.add_argument("--gap", type=int, default=2)
    ap.add_argument("--gwg", type=int, default=1)
    ap.add_argument("--hline", type=int, default=16)
    ap.add_argument("--idle1", type=int, default=0)
    ap.add_argument("--idle1ft", type=int, default=13)
    ap.add_argument("--jitter", type=int, default=0)
    ap.add_argument("--flagfirst", type=int, default=0)
    ap.add_argument("--nb3", type=int, default=2)
    ap.add_argument("--pairx", type=int, default=1)
    ap.add_argument("--xpf", type=int, default=0)
    ap.add_argument("--fine", type=int, default=2)
    ap.add_argument("--dist", type=int, default=12)
    ap.add_argument("--t13", type=int, default=1)
    ap.add_argument("--tt", type=int, default=2)
    ap.add_argument("--e2", type=int, default=0)
    ap.add_argument("--e3", type=int, default=0)
    ap.add_argument("--nb2", type=int, default=0)
    ap.add_argument("--e1", type=int, default=1)
    ap.add_argument("--nb", type=int, default=2)
    ap.add_argument("--nearly", type=int, default=2)
    ap.add_argument("--dpl", type=int, default=5)
    ap.add_argument("--dp", type=int, default=4)
    ap.add_argument("--p1", type=int, default=2)
    ap.add_argument("--p2", type=int, default=1)
    ap.add_argument("--rota1", type=int, default=0)
    ap.add_argument("--rota2", type=int, default=0)
    ap.add_argument("--xbits", default="nt")
    ap.add_argument("--w1bits", default="")
    ap.add_argument("--w2bits", default="")
    ap.add_argument("--pfbits", default="")
    ap.add_argument("--pfdepth", type=int, default=8)
    ap.add_argument("--prio", type=int, default=3)
    ap.add_argument("--delay", type=int, default=0)
    ap.add_argument("--hstride", type=int, default=8)
    ap.add_argument("--gstride", type=int, default=256)
    ap.add_argument("--pf", type=int, default=0)
    ap.add_argument("--pad", type=int, default=0)
    ap.add_argument("--obits", default="sc0 sc1")
    return ap.parse_args(argv)

if __name__ == "__main__":
    opt = parse()
    open(opt.o, "w").write(gen(opt))
```

```python
import argparse, struct

S, D, F = 2048, 640, 1728
KN = "standalone__mixer_token_mlp__prompt_kernel"

WS_H = 0
H_BYTES = 64 * 40 * 1024
WS_G = 0x300000
G_BYTES = 54 * 40 * 1024
WS_FLAG = 0x600000
FLAG_H = 0
FLAG_G = 0x10000
FLAG_BYTES = 0x40000
WS_PROF = 0x700000

LDS_BYTES = 163840
LN_BASE = 131072
LN_ROW = 1344
LF_BASE = 141824
P0_BASE = [0, 49152, 98304, 122880]

sWG = 2
sX, sW1, sW2, sH, sG, sO, sF, sB1, sB2, sD = 20, 24, 28, 32, 36, 40, 44, 48, 52, 56
sWAVE, sXCD, sJ, sFT, sDT1, sST, sDT2, sNONCE = 60, 61, 62, 63, 64, 65, 66, 67
sT0, sT1, sT2, sT3, sT4, sT5 = 68, 69, 70, 71, 72, 73
sROT1, sROT2, sSTEP, sOFF = 74, 75, 76, 77
sM0B, sSPIN = 78, 79
sP = 80
sPROF = 84
sUP = 99
sJLIM, sIDLE = 100, 101
sWB = 3

vTID, vLANE = 0, 1
vTR = 2
vA, vA2, vDMA, vT2 = 6, 7, 8, 9
vB1 = 10
vB2, vT = 14, 15
vACC = 16
vRING = 96
vTRU = 196
vL0, vL1, vL2 = 200, 201, 202
vC0 = 204
BI = 206
vPOLL = 214
vX = 216
vHP = 226
vPQ = 228
vDM = 220

def srd(n): return f"s[{n}:{n+3}]"
def vr(n, c=1): return f"v{n}" if c == 1 else f"v[{n}:{n+c-1}]"
def ar(n, c=1): return f"a{n}" if c == 1 else f"a[{n}:{n+c-1}]"
def f2h(x): return "0x%08x" % struct.unpack("<I", struct.pack("<f", x))[0]
C0 = -2.0 * 0.7978845608028654 * 1.4426950408889634
C1 = C0 * 0.044715

class Asm:
    def __init__(self):
        self.L = []; self.vm = []; self.uid = 0
    def __call__(self, s): self.L.append("    " + s)
    def label(self, s): self.L.append(s + ":")
    def raw(self, s): self.L.append(s)
    def c(self, s): self.L.append("    ; " + s)
    def vmem(self, s, tag):
        self(s); self.vm.append(tag)
    def wait_vm(self, tag):
        hits = [i for i, t in enumerate(self.vm) if t == tag]
        if not hits: return
        n = len(self.vm) - 1 - hits[-1]
        self(f"s_waitcnt vmcnt({min(n, 63)})")
        self.vm = self.vm[hits[-1] + 1:]
    def wait_vm0(self):
        self("s_waitcnt vmcnt(0)"); self.vm = []
    def newlabel(self, p):
        self.uid += 1
        return f"L_{p}_{self.uid}"

def acc1(mt, nt): return vACC + (mt * 5 + nt) * 4
def acc2(mt, nt): return vACC + (mt * 4 + nt) * 4
def wfrag(step, t): return step * 16 + t * 4

def stamp(a, opt, idx, force=False):
    if opt.probe >= 0:
        ins = "s_memtime" if opt.probecyc else "s_memrealtime"
        if idx == opt.probe:
            a(f"{ins} s[{sP}:{sP+1}]")
            a("s_waitcnt lgkmcnt(0)")
            a(f"s_mov_b32 s{sPROF+1}, s{sP}")
        if idx == opt.probe0:
            a(f"{ins} s[{sP}:{sP+1}]")
            a("s_waitcnt lgkmcnt(0)")
            a(f"s_mov_b32 s{sPROF+2}, s{sP}")
        return
    if opt.prof == 4 and idx != 14: return
    if opt.lnprof and idx in (4, 5) and getattr(a, "ln_done", False): return
    if opt.prof:
        a(f"s_mem{'time' if opt.prof == 2 else 'realtime'} s[{sP}:{sP+1}]")
        a("s_waitcnt lgkmcnt(0)")
        a(f"s_mov_b32 s{sPROF+idx}, s{sP}")

def jitter(a, opt, k):
    if not opt.jitter: return
    lp, dn = a.newlabel("jit"), a.newlabel("jitd")
    a(f"s_lshl_b32 s{sP+2}, s{sWG}, 2")
    a(f"s_add_u32 s{sP+2}, s{sP+2}, s{sWAVE}")
    a(f"s_mul_i32 s{sP+2}, s{sP+2}, {2654435761 * (2 * k + opt.jitter) % (1 << 31)}")
    a(f"s_lshr_b32 s{sP+2}, s{sP+2}, 26")
    a.label(lp)
    a(f"s_cmp_eq_u32 s{sP+2}, 0")
    a(f"s_cbranch_scc1 {dn}")
    a("s_sleep 2")
    a(f"s_sub_u32 s{sP+2}, s{sP+2}, 1")
    a(f"s_branch {lp}")
    a.label(dn)

def make_srd(a, n, lo, size, add=0):
    if add:
        a(f"s_add_u32 s{n}, s{lo}, {add}")
        a(f"s_addc_u32 s{n+1}, s{lo+1}, 0")
        a(f"s_and_b32 s{n+1}, s{n+1}, 0xffff")
    else:
        a(f"s_mov_b32 s{n}, s{lo}")
        a(f"s_and_b32 s{n+1}, s{lo+1}, 0xffff")
    a(f"s_mov_b32 s{n+2}, {size}")
    a(f"s_mov_b32 s{n+3}, 0x20000")

def nonce_spin(a, opt):
    lp = a.newlabel("nonce"); dn = a.newlabel("nonced")
    a(f"s_cmp_lg_u32 s{sNONCE}, 0")
    a(f"s_cbranch_scc1 {dn}")
    a(f"s_mov_b32 s{sSPIN}, 0")
    a(f"v_mov_b32 v{vT}, 0")
    a.label(lp)
    a(f"buffer_load_dword v{vT2}, v{vT}, {srd(sD)}, 0 offen sc1")
    a("s_waitcnt vmcnt(0)")
    a(f"v_readfirstlane_b32 s{sNONCE}, v{vT2}")
    a(f"s_add_u32 s{sSPIN}, s{sSPIN}, 1")
    a(f"s_cmp_lg_u32 s{sNONCE}, 0")
    a(f"s_cbranch_scc1 {dn}")
    a(f"s_cmp_lt_u32 s{sSPIN}, {opt.spin}")
    a(f"s_cbranch_scc1 {lp}")
    a.label(dn)

def lds_set(a, addr_sgpr_or_imm):
    a(f"v_mov_b32 v{vT}, {addr_sgpr_or_imm}")
    a(f"v_mov_b32 v{vT2}, 1")
    a(f"s_mov_b64 s[{sP}:{sP+1}], exec")
    a("s_mov_b64 exec, 1")
    a(f"ds_write_b32 v{vT}, v{vT2}")
    a(f"s_mov_b64 exec, s[{sP}:{sP+1}]")

def lds_spin(a, opt, addr):
    lp = a.newlabel("lspin"); dn = a.newlabel("lspun")
    a(f"v_mov_b32 v{vT}, {addr}")
    a(f"s_mov_b32 s{sSPIN}, 0")
    a.label(lp)
    a(f"ds_read_b32 v{vT2}, v{vT}")
    a("s_waitcnt lgkmcnt(0)")
    a(f"v_readfirstlane_b32 s{sP}, v{vT2}")
    a(f"s_add_u32 s{sSPIN}, s{sSPIN}, 1")
    a(f"s_cmp_lg_u32 s{sP}, 0")
    a(f"s_cbranch_scc1 {dn}")
    a(f"s_cmp_lt_u32 s{sSPIN}, {opt.spin * 8}")
    a(f"s_cbranch_scc1 {lp}")
    a.label(dn)

def dma_addr(a, stride, s_tile):
    a(f"v_lshrrev_b32 v{vT}, 3, v{vLANE}")
    a(f"v_lshrrev_b32 v{vT2}, 1, v{vT}")
    a(f"v_lshlrev_b32 v{vT2}, 1, v{vT2}")
    a(f"v_and_b32 v{vDM}, 7, v{vLANE}")
    a(f"v_xor_b32 v{vDM}, v{vDM}, v{vT2}")
    a(f"v_lshlrev_b32 v{vDM}, 4, v{vDM}")
    a(f"v_mul_u32_u24 v{vT}, {stride}, v{vT}")
    a(f"v_add_u32 v{vDM}, v{vDM}, v{vT}")
    a(f"s_lshl_b32 s{sT0}, s{s_tile}, 7")
    a(f"v_add_u32 v{vDM}, s{sT0}, v{vDM}")
    for b in range(1, 4):
        a(f"v_add_u32 v{vDM+b}, {b*(8*stride-1024)}, v{vDM}")

def step_off(a, dst, s_base, s_rot, i, nsteps, bytes_per_step):
    a(f"s_add_u32 s{sT4}, s{s_rot}, {i}")
    a(f"s_cmp_ge_u32 s{sT4}, {nsteps}")
    a(f"s_cselect_b32 s{dst}, {nsteps}, 0")
    a(f"s_sub_u32 s{sT4}, s{sT4}, s{dst}")
    a(f"s_mul_i32 s{sT4}, s{sT4}, {bytes_per_step}")
    a(f"s_add_u32 s{dst}, s{sT4}, s{s_base}")

def dma_step(a, srdn, stride, s_rowbase, s_rot, step, nsteps, s_lds, lds_off, tag, bits=""):
    a(f"s_add_u32 m0, s{s_lds}, {lds_off}")
    step_off(a, sOFF, s_rowbase, s_rot, step, nsteps, 32 * stride)
    for blk in range(4):
        a.vmem(f"buffer_load_dwordx4 v{vDM+blk}, {srd(srdn)}, s{sOFF} offen offset:{blk*1024} {bits} lds", tag)

def tr_step(a, vbase, off, step):
    for t in range(4):
        w = wfrag(step, t)
        a(f"ds_read_b64_tr_b16 {ar(w,2)}, v{vbase+t} offset:{off}")
        a(f"ds_read_b64_tr_b16 {ar(w+2,2)}, v{vbase+t} offset:{off+2048}")

def poll(a, opt, vaddr, nd, lanes, sleep=None, pre=0, nload=1):
    if sleep is None: sleep = opt.sleep
    if pre: a(f"s_sleep {pre}")
    lp = a.newlabel("poll"); dn = a.newlabel("polled")
    a(f"s_mov_b32 s{sSPIN}, 0")
    a.label(lp)
    ld = {1: "dword", 2: "dwordx2", 4: "dwordx4"}[nd]
    for k in range(nload):
        a(f"buffer_load_{ld} {vr(vPQ + 4*k, nd)}, v{vaddr}, {srd(sF)}, 0 offen offset:{k*1024} sc1")
    a("s_waitcnt vmcnt(0)")
    first = True
    for k in range(nload):
        for i in range(nd):
            if first:
                a(f"v_cmp_ne_u32 vcc, s{sNONCE}, v{vPQ+4*k+i}"); first = False
            else:
                a(f"v_cmp_ne_u32 s[{sP}:{sP+1}], s{sNONCE}, v{vPQ+4*k+i}")
                a(f"s_or_b64 vcc, vcc, s[{sP}:{sP+1}]")
    if lanes is not None:
        a(f"s_and_b64 vcc, vcc, s[{lanes}:{lanes+1}]")
    a(f"s_add_u32 s{sSPIN}, s{sSPIN}, 1")
    a("s_cmp_eq_u64 vcc, 0")
    a(f"s_cbranch_scc1 {dn}")
    if sleep: a(f"s_sleep {sleep}")
    a(f"s_cmp_lt_u32 s{sSPIN}, {opt.spin}")
    a(f"s_cbranch_scc1 {lp}")
    a.label(dn)
    a.vm = []

def poll_pipe(a, opt, vaddr, lanes, gap, nd=4):
    dn = a.newlabel("ppolled"); lp = a.newlabel("ppoll")
    regs = [vPQ, vPQ + 4, vPQ + 8]
    def probe(r): a(f"buffer_load_{'dwordx4' if nd == 4 else 'dword'} {vr(r,nd)}, v{vaddr}, {srd(sF)}, 0 offen sc1")
    a(f"s_mov_b32 s{sSPIN}, 0")
    probe(regs[0]); a(f"s_sleep {gap}"); probe(regs[1]); a(f"s_sleep {gap}"); probe(regs[2])
    a.label(lp)
    for r in regs:
        a("s_waitcnt vmcnt(2)")
        for i in range(nd):
            if i == 0: a(f"v_cmp_ne_u32 vcc, s{sNONCE}, v{r}")
            else:
                a(f"v_cmp_ne_u32 s[{sP}:{sP+1}], s{sNONCE}, v{r+i}")
                a(f"s_or_b64 vcc, vcc, s[{sP}:{sP+1}]")
        if lanes is not None: a(f"s_and_b64 vcc, vcc, s[{lanes}:{lanes+1}]")
        a("s_cmp_eq_u64 vcc, 0")
        a(f"s_cbranch_scc1 {dn}")
        a(f"s_sleep {gap}")
        probe(r)
    a(f"s_add_u32 s{sSPIN}, s{sSPIN}, 1")
    a(f"s_cmp_lt_u32 s{sSPIN}, {opt.spin}")
    a(f"s_cbranch_scc1 {lp}")
    a.label(dn)

def poll_check(a, nd, lanes, ok_label):
    for i in range(nd):
        if i == 0: a(f"v_cmp_ne_u32 vcc, s{sNONCE}, v{vPQ}")
        else:
            a(f"v_cmp_ne_u32 s[{sP}:{sP+1}], s{sNONCE}, v{vPQ+i}")
            a(f"s_or_b64 vcc, vcc, s[{sP}:{sP+1}]")
    if lanes is not None:
        a(f"s_and_b64 vcc, vcc, s[{lanes}:{lanes+1}]")
    a("s_cmp_eq_u64 vcc, 0")
    a(f"s_cbranch_scc1 {ok_label}")

def flag_store(a, s_index_bytes):
    a(f"v_mov_b32 v{vT}, s{s_index_bytes}")
    a(f"v_mov_b32 v{vT2}, s{sNONCE}")
    a(f"s_mov_b64 s[{sP}:{sP+1}], exec")
    a("s_mov_b64 exec, 1")
    a.vmem(f"buffer_store_dword v{vT2}, v{vT}, {srd(sF)}, 0 offen {OPT.fbits}", "flag")
    a(f"s_mov_b64 exec, s[{sP}:{sP+1}]")

def gelu_pairs(a, regs, tmp, fill=None):
    def each(fn):
        for i, r in enumerate(regs): fn(r, tmp + 2 * i)
    each(lambda r, t: a(f"v_pk_mul_f32 {vr(t,2)}, {vr(r,2)}, {vr(r,2)}"))
    each(lambda r, t: a(f"v_pk_fma_f32 {vr(t,2)}, {vr(t,2)}, s[100:101], {vr(vC0,2)}"))
    each(lambda r, t: a(f"v_pk_mul_f32 {vr(t,2)}, {vr(t,2)}, {vr(r,2)}"))
    if fill: fill()
    each(lambda r, t: (a(f"v_exp_f32 v{t}, v{t}"), a(f"v_exp_f32 v{t+1}, v{t+1}")))
    each(lambda r, t: a(f"v_pk_add_f32 {vr(t,2)}, {vr(t,2)}, 1.0 op_sel_hi:[1,0]"))
    each(lambda r, t: (a(f"v_rcp_f32 v{t}, v{t}"), a(f"v_rcp_f32 v{t+1}, v{t+1}")))
    a("s_nop 0")
    each(lambda r, t: a(f"v_pk_mul_f32 {vr(r,2)}, {vr(r,2)}, {vr(t,2)}"))

def w2_slot(step):
    if step < 8: return sM0B, step * 4096, vTR, step * 4096
    if step < 10: return sUP, (step - 8) * 4096, vTRU, (step - 8) * 4096
    return sM0B, (step - 10) * 4096, vTR, (step - 10) * 4096

def w2_dma(a, step):
    sb, off, _, _ = w2_slot(step)
    dma_step(a, sW2, S * 2, sWB, sROT2, step, 14, sb, off, f"w2_{step}", OPT.w2bits)

def w2_dma_parts(a, step):
    sb, off, _, _ = w2_slot(step)
    def setup():
        a(f"s_add_u32 m0, s{sb}, {off}")
        step_off(a, sT3, sWB, sROT2, step, 14, 32 * S * 2)
    def one(blk):
        return lambda: a.vmem(f"buffer_load_dwordx4 v{vDM+blk}, {srd(sW2)}, s{sT3} offen offset:{blk*1024} {OPT.w2bits} lds", f"w2_{step}")
    return [setup] + [one(b) for b in range(4)]

def w2_tr(a, step):
    _, _, vb, off = w2_slot(step)
    tr_step(a, vb, off, step)

def gen(opt):
    global OPT
    OPT = opt
    a = Asm()
    NS = (opt.dist + 1 + 4) // 5
    assert opt.dist < 5 * NS and NS <= 5
    def ring(slot, t): return vRING + slot * 20 + t * 4
    a.raw(f"; @launch grid=(256,1,1) block=(256,1,1) lds={LDS_BYTES}")
    a.raw('.amdgcn_target "amdgcn-amd-amdhsa--gfx950"')
    a.raw(".text")
    a.raw(f".globl {KN}")
    a.raw(".p2align 8")
    a.raw(f".type {KN},@function")
    a.label(KN)
    if opt.cpf: a("s_getpc_b64 s[94:95]")
    a(f"s_cmp_ge_u32 s{sWG}, 256")
    a("s_cbranch_scc1 L_done")
    a("s_load_dwordx16 s[4:19], s[0:1], 0")
    if opt.prof:
        a(f"s_mem{'time' if opt.prof == 2 else 'realtime'} s[{sP}:{sP+1}]")
    if opt.prof:
        for i in range(1, 15): a(f"s_mov_b32 s{sPROF+i}, 0")
    if not opt.prof:
        a("s_memrealtime s[96:97]")
    a(f"v_lshrrev_b32 v{vT}, 6, v{vTID}")
    a(f"v_and_b32 v{vLANE}, 63, v{vTID}")
    a(f"v_readfirstlane_b32 s{sWAVE}, v{vT}")
    a(f"s_and_b32 s{sXCD}, s{sWG}, 7")
    a(f"s_lshr_b32 s{sJ}, s{sWG}, 3")
    if opt.p1 == 2:
        if opt.pairx:
            assert opt.pf == 0
            a(f"s_add_u32 s{sT1}, s{sXCD}, {opt.pairx - 1}")
            a(f"s_and_b32 s{sT1}, s{sT1}, 3")
            a(f"s_and_b32 s{sT2}, s{sXCD}, 4")
        else:
            a(f"s_lshr_b32 s{sT1}, s{sXCD}, 1")
            a(f"s_and_b32 s{sT2}, s{sXCD}, 1")
            a(f"s_lshl_b32 s{sT2}, s{sT2}, 2")
        a(f"s_mul_i32 s{sT0}, s{sT1}, 7")
        a(f"s_lshr_b32 s{sFT}, s{sJ}, 2")
        a(f"s_add_u32 s{sFT}, s{sFT}, s{sT0}")
        a(f"s_and_b32 s{sT3}, s{sJ}, 3")
        a(f"s_add_u32 s{sDT1}, s{sT2}, s{sT3}")
        if opt.rot8: a(f"s_lshl_b32 s{sROT1}, s{sDT1}, 1")
        else: a(f"s_lshl_b32 s{sROT1}, s{sT3}, 2")
        a(f"s_cmp_eq_u32 s{sT1}, 3")
        a(f"s_cselect_b32 s{sJLIM}, 24, 28")
        a(f"s_lshl_b32 s{sT0}, s{sXCD}, 2")
        a(f"s_sub_u32 s{sT0}, s{sT0}, 28")
        a(f"s_lshl_b32 s{sT3}, s{sXCD}, 3")
        a(f"s_sub_u32 s{sT3}, s{sT3}, 48")
        a(f"s_cselect_b32 s{sIDLE}, s{sT0}, s{sT0}")
        a(f"s_cmp_ge_u32 s{sXCD}, 6")
        a(f"s_cselect_b32 s{sIDLE}, s{sT3}, s{sT0}")
        a(f"s_add_u32 s{sIDLE}, s{sIDLE}, s{sJ}")
    else:
        a(f"s_lshl_b32 s{sT0}, s{sXCD}, 2")
        a(f"s_mul_i32 s{sT1}, s{sXCD}, 3")
        a(f"s_add_u32 s{sT1}, s{sT1}, 3")
        a(f"s_cmp_lt_u32 s{sXCD}, 3")
        a(f"s_cselect_b32 s{sT0}, s{sT0}, s{sT1}")
        a(f"s_cselect_b32 s{sJLIM}, 32, 24")
        a(f"s_lshr_b32 s{sFT}, s{sJ}, 3")
        a(f"s_add_u32 s{sFT}, s{sFT}, s{sT0}")
        a(f"s_and_b32 s{sDT1}, s{sJ}, 7")
        a(f"s_lshl_b32 s{sROT1}, s{sDT1}, 1")
        a(f"s_lshl_b32 s{sIDLE}, s{sXCD}, 3")
        a(f"s_add_u32 s{sIDLE}, s{sIDLE}, s{sJ}")
        a(f"s_sub_u32 s{sIDLE}, s{sIDLE}, 48")
    if opt.rotg1 == 3:
        a(f"s_mul_i32 s{sT0}, s{sFT}, 11")
        a(f"s_lshr_b32 s{sT0}, s{sT0}, 5")
        a(f"s_mul_i32 s{sT0}, s{sT0}, 3")
        a(f"s_sub_u32 s{sT0}, s{sFT}, s{sT0}")
        a(f"s_mul_i32 s{sT0}, s{sT0}, 5")
        a(f"s_add_u32 s{sROT1}, s{sROT1}, s{sT0}")
        a(f"s_and_b32 s{sROT1}, s{sROT1}, 15")
    if opt.rotg1 == 2:
        a(f"s_and_b32 s{sT0}, s{sFT}, 1")
        a(f"s_lshl_b32 s{sT0}, s{sT0}, 3")
        a(f"s_add_u32 s{sROT1}, s{sROT1}, s{sT0}")
        a(f"s_and_b32 s{sROT1}, s{sROT1}, 15")
    if opt.rota1:
        a(f"s_mul_i32 s{sT0}, s{sFT}, {opt.rota1}")
        a(f"s_add_u32 s{sROT1}, s{sROT1}, s{sT0}")
        a(f"s_and_b32 s{sROT1}, s{sROT1}, 15")
    if opt.p2 == 2:
        a(f"s_lshr_b32 s{sT1}, s{sXCD}, 1")
        a(f"s_and_b32 s{sT2}, s{sXCD}, 1")
        a(f"s_lshl_b32 s{sT2}, s{sT2}, 2")
        a(f"s_lshr_b32 s{sT0}, s{sJ}, 2")
        a(f"s_lshl_b32 s{sST}, s{sT1}, 3")
        a(f"s_add_u32 s{sST}, s{sST}, s{sT0}")
        a(f"s_and_b32 s{sT3}, s{sJ}, 3")
        a(f"s_add_u32 s{sDT2}, s{sT2}, s{sT3}")
        if opt.rot8:
            a(f"s_mul_i32 s{sROT2}, s{sDT2}, 7")
            a(f"s_lshr_b32 s{sROT2}, s{sROT2}, 2")
        else:
            a(f"s_mul_i32 s{sROT2}, s{sT3}, 7")
            a(f"s_lshr_b32 s{sROT2}, s{sROT2}, 1")
    else:
        a(f"s_lshr_b32 s{sT0}, s{sJ}, 3")
        a(f"s_lshl_b32 s{sST}, s{sXCD}, 2")
        a(f"s_add_u32 s{sST}, s{sST}, s{sT0}")
        a(f"s_and_b32 s{sDT2}, s{sJ}, 7")
        a(f"s_mul_i32 s{sROT2}, s{sDT2}, 7")
        a(f"s_lshr_b32 s{sROT2}, s{sROT2}, 2")
    if opt.rotg2:
        if opt.rotg2 == 2:
            a(f"s_and_b32 s{sT0}, s{sST}, 1")
            a(f"s_mul_i32 s{sT0}, s{sT0}, 7")
        else:
            a(f"s_mul_i32 s{sT0}, s{sST}, 11")
            a(f"s_lshr_b32 s{sT0}, s{sT0}, 5")
            a(f"s_mul_i32 s{sT0}, s{sT0}, 3")
            a(f"s_sub_u32 s{sT0}, s{sST}, s{sT0}")
            a(f"s_mul_i32 s{sT0}, s{sT0}, 5")
        a(f"s_add_u32 s{sROT2}, s{sROT2}, s{sT0}")
        a(f"s_cmp_ge_u32 s{sROT2}, 14")
        a(f"s_cselect_b32 s{sT0}, 14, 0")
        a(f"s_sub_u32 s{sROT2}, s{sROT2}, s{sT0}")
    if opt.rota2:
        a(f"s_mul_i32 s{sT0}, s{sST}, {opt.rota2}")
        a(f"s_add_u32 s{sROT2}, s{sROT2}, s{sT0}")
        a(f"s_and_b32 s{sT0}, s{sROT2}, 0xff")
        a(f"s_mul_i32 s{sT0}, s{sROT2}, 18725")
        a(f"s_lshr_b32 s{sT0}, s{sT0}, 18")
        a(f"s_mul_i32 s{sT0}, s{sT0}, 14")
        a(f"s_sub_u32 s{sROT2}, s{sROT2}, s{sT0}")
    if not (opt.rot & 1): a(f"s_mov_b32 s{sROT1}, 0")
    if not (opt.rot & 2): a(f"s_mov_b32 s{sROT2}, 0")
    a(f"s_lshl_b32 s{sM0B}, s{sWAVE}, 15")
    a(f"s_lshl_b32 s{sUP}, s{sWAVE}, 13")
    a(f"s_add_u32 s{sUP}, s{sUP}, 131072")
    def tr_addr(base_sgpr):
        t0, t1, t2 = vX, vX + 1, vX + 2
        a(f"v_lshrrev_b32 v{t0}, 4, v{vLANE}")
        a(f"v_and_b32 v{t1}, 1, v{t0}")
        a(f"v_lshlrev_b32 v{t1}, 2, v{t1}")
        a(f"v_bfe_u32 v{t2}, v{vLANE}, 2, 2")
        a(f"v_add_u32 v{t1}, v{t1}, v{t2}")
        a(f"v_lshrrev_b32 v{t0}, 1, v{t0}")
        a(f"v_lshlrev_b32 v{t0}, 10, v{t0}")
        a(f"v_lshlrev_b32 v{t2}, 7, v{t1}")
        a(f"v_add_u32 v{t0}, v{t0}, v{t2}")
        a(f"v_and_b32 v{t2}, 3, v{vLANE}")
        a(f"v_lshlrev_b32 v{t2}, 3, v{t2}")
        a(f"v_add_u32 v{t0}, v{t0}, v{t2}")
        a(f"v_add_u32 v{t0}, s{base_sgpr}, v{t0}")
        a(f"v_lshrrev_b32 v{t1}, 1, v{t1}")
        for t in range(4):
            a(f"v_xor_b32 v{t2}, {t}, v{t1}")
            a(f"v_lshlrev_b32 v{t2}, 5, v{t2}")
            a(f"v_add_u32 v{vTR+t}, v{t0}, v{t2}")
    def w1_dma(i): dma_step(a, sW1, F * 2, sWB, sROT1, i, 16, sM0B, (i % 8) * 4096, f"w1_{i}", "nt" if i < opt.nta else opt.w1bits)
    def w1_stream(first, dp, hold=0):
        retired = 0
        def retire():
            nonlocal retired
            a.wait_vm(f"w1_{retired}")
            if retired: a("s_waitcnt lgkmcnt(0)")
            tr_step(a, vTR, (retired % 8) * 4096, retired)
            retired += 1
        for i in range(first, 16):
            while retired <= i - dp: retire()
            if i >= 8:
                while retired <= i - 8: retire()
                if retired == i - 7: a("s_waitcnt lgkmcnt(0)")
            w1_dma(i)
            if opt.epoll and i == opt.epoll:
                a(f"v_mul_u32_u24 v{vHP}, {opt.hline}, v{vLANE}")
                a(f"s_cmp_lg_u32 s{sWAVE}, {opt.pollw}")
                a("s_cbranch_scc1 L_noepoll")
                a(f"buffer_load_dwordx4 {vr(vPQ,4)}, v{vHP}, {srd(sF)}, 0 offen sc1")
                a.label("L_noepoll")
        while retired < 16 - hold: retire()
        def finish():
            while retired < 16: retire()
            a("s_waitcnt lgkmcnt(0)")
        if not hold: finish()
        return finish
    dma_addr(a, F * 2, sFT)
    a(f"s_mul_i32 s{sWB}, s{sWAVE}, {512*F*2}")
    a.c("LayerNorm: wave w normalises rows 32*ks + 16*(w>>1) + 4*q + 2*(w&1) + (0,1), 32 lanes per row")
    XR, XF, TM = 96, 108, 130
    a(f"s_lshr_b32 s{sT0}, s{sWG}, 2")
    a(f"s_and_b32 s{sT1}, s{sWG}, 3")
    a(f"s_lshl_b32 s{sT2}, s{sT0}, 5")
    a(f"s_lshr_b32 s{sT3}, s{sWAVE}, 1")
    a(f"s_lshl_b32 s{sT3}, s{sT3}, 4")
    a(f"s_add_u32 s{sT2}, s{sT2}, s{sT3}")
    a(f"s_lshl_b32 s{sT3}, s{sT1}, 2")
    a(f"s_add_u32 s{sT2}, s{sT2}, s{sT3}")
    a(f"s_and_b32 s{sT3}, s{sWAVE}, 1")
    a(f"s_lshl_b32 s{sT3}, s{sT3}, 1")
    a(f"s_add_u32 s{sT2}, s{sT2}, s{sT3}")
    a(f"s_mul_i32 s{sT2}, s{sT2}, 1280")
    a(f"v_lshrrev_b32 v{TM}, 5, v{vLANE}")
    a(f"v_and_b32 v{TM+1}, 31, v{vLANE}")
    a(f"v_lshlrev_b32 v{TM+1}, 3, v{TM+1}")
    a(f"v_mul_u32_u24 v{TM+2}, 1280, v{TM}")
    a(f"v_add_u32 v{TM+2}, v{TM+2}, v{TM+1}")
    a(f"v_mov_b32 v{vT}, 0")
    a("s_waitcnt lgkmcnt(0)")
    if opt.prof: a(f"s_mov_b32 s{sPROF}, s{sP}")
    make_srd(a, sD, 16, 256)
    a(f"s_cmp_lg_u32 s{sWG}, 0")
    a("s_cbranch_scc1 L_nononce")
    a(f"s_cmp_lg_u32 s{sWAVE}, 3")
    a("s_cbranch_scc1 L_nononce")
    a(f"s_or_b32 s{sNONCE}, s{sP if opt.prof else 96}, 1")
    a(f"v_mov_b32 v{vT2}, s{sNONCE}")
    a(f"s_mov_b64 s[{sP+2}:{sP+3}], exec")
    a("s_mov_b64 exec, 1")
    a(f"buffer_store_dword v{vT2}, v{vT}, {srd(sD)}, 0 offen sc1")
    a(f"s_mov_b64 exec, s[{sP+2}:{sP+3}]")
    a.label("L_nononce")
    make_srd(a, sX, 4, S * D * 2)
    if opt.xpf:
        a(f"s_and_b32 s{sT3}, s{sWG}, 4")
        a(f"s_cmp_lg_u32 s{sT3}, 0")
        a("s_cbranch_scc1 L_xlate")
        a(f"s_add_u32 s{sT3}, s{sT2}, {32*1280}")
        for i in range(5):
            a(f"buffer_load_dwordx2 {vr(244+2*(i%2),2)}, v{TM+2}, {srd(sX)}, s{sT3} offen offset:{i*256}")
        for i in range(5):
            a(f"buffer_load_dwordx2 {vr(XR+2*i,2)}, v{TM+2}, {srd(sX)}, s{sT2} offen offset:{i*256} {opt.xbits}")
        a("s_branch L_xissued")
        a.label("L_xlate")
        for i in range(5):
            a(f"buffer_load_dwordx2 {vr(XR+2*i,2)}, v{TM+2}, {srd(sX)}, s{sT2} offen offset:{i*256} {opt.xbits if opt.xpf == 2 else ''}")
        a.label("L_xissued")
    else:
        for i in range(5):
            a.vmem(f"buffer_load_dwordx2 {vr(XR+2*i,2)}, v{TM+2}, {srd(sX)}, s{sT2} offen offset:{i*256} {opt.xbits}", "x")
    make_srd(a, sW1, 6, S * F * 2)
    if opt.xbar: a("s_barrier")
    a(f"s_cmp_ge_u32 s{sJ}, s{sJLIM}")
    a("s_cbranch_scc1 L_ln_now1")
    for i in range(opt.nearly): w1_dma(i)
    a.label("L_ln_now1")
    if opt.cpf:
        a(f"s_cmp_lg_u32 s{sWAVE}, 3")
        a("s_cbranch_scc1 L_nocpf")
        a(f"s_lshl_b32 s{sT3}, s{sJ}, 11")
        a(f"v_lshlrev_b32 v{vX}, 4, v{vLANE}")
        a(f"v_add_u32 v{vX}, s{sT3}, v{vX}")
        a(f"v_add_u32 v{vX+1}, 1024, v{vX}")
        for h in range(2):
            a(f"v_min_u32 v{vX+h}, L_codeend-{KN}-36, v{vX+h}")
            a(f"global_load_dwordx4 {vr(240+4*h,4)}, v{vX+h}, s[94:95]")
        a.label("L_nocpf")
    make_srd(a, sH, 18, H_BYTES, WS_H)
    make_srd(a, sF, 18, FLAG_BYTES, WS_FLAG)
    a(f"s_mul_i32 s{sSTEP}, s{sT0}, 40960")
    a(f"s_lshl_b32 s{sT1}, s{sT1}, 8")
    a(f"s_add_u32 s{sSTEP}, s{sSTEP}, s{sT1}")
    a(f"s_lshl_b32 s{sT3}, s{sWAVE}, 1")
    a(f"v_add_u32 v{TM+4}, s{sT3}, v{TM}")
    a(f"v_mul_u32_u24 v{TM+4}, {LN_ROW}, v{TM+4}")
    a(f"v_add_u32 v{TM+4}, v{TM+4}, v{TM+1}")
    a(f"v_add_u32 v{TM+4}, {LN_BASE}, v{TM+4}")
    a(f"s_mul_i32 s{sT3}, s{sWAVE}, 12")
    a(f"s_cmp_eq_u32 s{sWAVE}, 3")
    a(f"s_cselect_b32 s{sT3}, 32, s{sT3}")
    a(f"v_lshrrev_b32 v{TM+6}, 4, v{vLANE}")
    a(f"v_add_u32 v{TM+6}, s{sT3}, v{TM+6}")
    a(f"v_bfe_u32 v{TM+5}, v{vLANE}, 2, 2")
    a(f"v_mul_u32_u24 v{TM+5}, {LN_ROW}, v{TM+5}")
    a(f"v_lshlrev_b32 v{TM+7}, 5, v{TM+6}")
    a(f"v_add_u32 v{TM+5}, v{TM+5}, v{TM+7}")
    a(f"v_and_b32 v{TM+7}, 3, v{vLANE}")
    a(f"v_lshlrev_b32 v{TM+7}, 3, v{TM+7}")
    a(f"v_add_u32 v{TM+5}, v{TM+5}, v{TM+7}")
    a(f"v_add_u32 v{TM+5}, {LN_BASE}, v{TM+5}")
    a(f"v_lshlrev_b32 v{TM+6}, 10, v{TM+6}")
    a(f"v_and_b32 v{TM+7}, 15, v{vLANE}")
    a(f"v_lshlrev_b32 v{TM+7}, 4, v{TM+7}")
    a(f"v_add_u32 v{TM+6}, v{TM+6}, v{TM+7}")
    tr_addr(sM0B)
    a(f"s_mov_b32 s{sT0}, 0xffff0000")
    nc = 2 if opt.cpf else 0
    a(f"s_cmp_ge_u32 s{sJ}, s{sJLIM}")
    a("s_cbranch_scc1 L_ln_idle")
    a(f"s_cmp_eq_u32 s{sWAVE}, 3")
    a("s_cbranch_scc1 L_ln_w3")
    a(f"s_waitcnt vmcnt({4*opt.nearly})")
    a("s_branch L_ln_go")
    a.label("L_ln_w3")
    a(f"s_waitcnt vmcnt({4*opt.nearly + nc})")
    a("s_branch L_ln_go")
    a.label("L_ln_idle")
    a(f"s_cmp_eq_u32 s{sWAVE}, 3")
    a("s_cbranch_scc1 L_ln_idle3")
    a("s_waitcnt vmcnt(0)")
    a("s_branch L_ln_go")
    a.label("L_ln_idle3")
    a(f"s_waitcnt vmcnt({nc})")
    a.label("L_ln_go")
    stamp(a, opt, 1)
    jitter(a, opt, 1)
    nmid = [opt.nearly]
    def mid_step(tag):
        if nmid[0] < opt.nearly + opt.nmid:
            a(f"s_cmp_ge_u32 s{sJ}, s{sJLIM}")
            a(f"s_cbranch_scc1 L_mid_{tag}")
            w1_dma(nmid[0]); nmid[0] += 1
            a.label(f"L_mid_{tag}")
    if opt.unsafe & 2: a(f"buffer_load_dword v{vPOLL}, v{vT}, {srd(sD)}, 0 offen sc1")
    mid_step("a")
    for i in range(10):
        a(f"v_lshlrev_b32 v{XF+2*i}, 16, v{XR+i}")
        a(f"v_and_b32 v{XF+2*i+1}, s{sT0}, v{XR+i}")
    SM = TM + 8
    a(f"v_pk_add_f32 {vr(SM,2)}, {vr(XF,2)}, {vr(XF+4,2)}")
    a(f"v_pk_add_f32 {vr(SM+2,2)}, {vr(XF+2,2)}, {vr(XF+6,2)}")
    for i in range(4, 10):
        k = i % 2
        a(f"v_pk_add_f32 {vr(SM+2*k,2)}, {vr(SM+2*k,2)}, {vr(XF+2*i,2)}")
    def reduce_row(dst):
        a(f"v_pk_add_f32 {vr(SM,2)}, {vr(SM,2)}, {vr(SM+2,2)}")
        a(f"v_add_f32 v{dst}, v{SM}, v{SM+1}")
        for rot in (8, 4, 2, 1):
            a("s_nop 1")
            a(f"v_add_f32_dpp v{dst}, v{dst}, v{dst} row_ror:{rot} row_mask:0xf bank_mask:0xf")
        a(f"v_mov_b32 v{SM}, v{dst}")
        a("s_nop 1")
        a(f"v_permlane16_swap_b32 v{dst}, v{SM}")
        a("s_nop 1")
        a(f"v_add_f32 v{dst}, v{dst}, v{SM}")
    MN = TM + 12
    reduce_row(MN)
    mid_step("b")
    a(f"v_mul_f32 v{MN}, {f2h(1.0/640.0)}, v{MN}")
    a(f"v_mov_b32 v{MN+1}, v{MN}")
    for i in range(10):
        a(f"v_pk_add_f32 {vr(XF+2*i,2)}, {vr(XF+2*i,2)}, {vr(MN,2)} neg_lo:[0,1] neg_hi:[0,1]")
    for k in range(2):
        a(f"v_pk_mul_f32 {vr(SM+2*k,2)}, {vr(XF+2*k,2)}, {vr(XF+2*k,2)}")
    for i in range(2, 10):
        k = i % 2
        a(f"v_pk_fma_f32 {vr(SM+2*k,2)}, {vr(XF+2*i,2)}, {vr(XF+2*i,2)}, {vr(SM+2*k,2)}")
    reduce_row(MN)
    mid_step("c")
    a(f"v_mov_b32 v{MN+1}, {f2h(1e-5)}")
    a(f"v_fmac_f32 v{MN+1}, {f2h(1.0/640.0)}, v{MN}")
    a(f"v_rsq_f32 v{MN}, v{MN+1}")
    a("s_nop 0")
    a(f"v_mov_b32 v{MN+1}, v{MN}")
    for i in range(10):
        a(f"v_pk_mul_f32 {vr(XF+2*i,2)}, {vr(XF+2*i,2)}, {vr(MN,2)}")
    for i in range(10):
        a(f"v_cvt_pk_bf16_f32 v{XR+i}, v{XF+2*i}, v{XF+2*i+1}")
    for i in range(5):
        a(f"ds_write_b64 v{TM+4}, {vr(XR+2*i,2)} offset:{i*256}")
    a("s_waitcnt lgkmcnt(0)")
    if opt.unsafe & 2:
        a("s_waitcnt vmcnt(0)")
        a(f"v_readfirstlane_b32 s{sNONCE}, v{vPOLL}")
        nonce_spin(a, opt)
    a("s_barrier")
    for i in range(2):
        a(f"ds_read_b64_tr_b16 {vr(XF+4*i,2)}, v{TM+5} offset:{i*128}")
        a(f"ds_read_b64_tr_b16 {vr(XF+4*i+2,2)}, v{TM+5} offset:{i*128+4*LN_ROW}")
    a(f"s_cmp_ge_u32 s{sWAVE}, 2")
    a("s_cbranch_scc1 L_ln_two")
    a(f"ds_read_b64_tr_b16 {vr(XF+8,2)}, v{TM+5} offset:{2*128}")
    a(f"ds_read_b64_tr_b16 {vr(XF+10,2)}, v{TM+5} offset:{2*128+4*LN_ROW}")
    a("s_waitcnt lgkmcnt(0)")
    a(f"s_add_u32 s{sT0}, s{sSTEP}, {2*4096}")
    a(f"buffer_store_dwordx4 {vr(XF+8,4)}, v{TM+6}, {srd(sH)}, s{sT0} offen {opt.hbits}")
    a.label("L_ln_two")
    a("s_waitcnt lgkmcnt(0)")
    for i in range(2):
        a(f"s_add_u32 s{sT0}, s{sSTEP}, {i*4096}")
        a(f"buffer_store_dwordx4 {vr(XF+4*i,4)}, v{TM+6}, {srd(sH)}, s{sT0} offen {opt.hbits}")
    if not (opt.unsafe & 2): a(f"buffer_load_dword v{vPOLL}, v{vT}, {srd(sD)}, 0 offen sc1")
    stamp(a, opt, 2)
    if opt.unsafe & 2:
        a("s_barrier")
        a(f"s_cmp_lg_u32 s{sWAVE}, 0")
        a("s_cbranch_scc1 L_noflag0")
        a(f"s_lshl_b32 s{sT0}, s{sWG}, 2")
        flag_store(a, sT0)
        a.label("L_noflag0")
    a(f"s_cmp_ge_u32 s{sJ}, s{sJLIM}")
    a("s_cbranch_scc1 L_ln_idle2")
    ne = opt.nearly + opt.nmid
    a.vm = [f"w1_{i}" for i in range(ne)]
    for i in range(ne, ne + opt.npost): w1_dma(i)
    if not (opt.unsafe & 2): a(f"s_waitcnt vmcnt({4*opt.npost})")
    a("s_branch L_ln_go2")
    a.label("L_ln_idle2")
    if not (opt.unsafe & 2): a("s_waitcnt vmcnt(0)")
    a.label("L_ln_go2")
    if not (opt.unsafe & 2):
        a(f"v_readfirstlane_b32 s{sNONCE}, v{vPOLL}")
        nonce_spin(a, opt)
        a("s_barrier")
        a(f"s_cmp_lg_u32 s{sWAVE}, 0")
        a("s_cbranch_scc1 L_noflag")
        a(f"s_lshr_b32 s{sT0}, s{sWG}, 2")
        a(f"s_mul_i32 s{sT0}, s{sT0}, {opt.hline}")
        a(f"s_and_b32 s{sT1}, s{sWG}, 3")
        a(f"s_lshl_b32 s{sT1}, s{sT1}, 2")
        a(f"s_add_u32 s{sT0}, s{sT0}, s{sT1}")
        keep = list(a.vm)
        flag_store(a, sT0)
        a.vm = keep
        a.label("L_noflag")
    stamp(a, opt, 3)
    a(f"s_cmp_ge_u32 s{sJ}, s{sJLIM}")
    a("s_cbranch_scc1 L_nogemm1")
    w1_finish = w1_stream(opt.nearly + opt.nmid + opt.npost, opt.dp, opt.hold1)

    def common_setup(retr=True):
        make_srd(a, sH, 18, H_BYTES, WS_H)
        make_srd(a, sF, 18, FLAG_BYTES, WS_FLAG)
        make_srd(a, sB1, 8, F * 2)
        make_srd(a, sW2, 10, F * S * 2)
        make_srd(a, sB2, 12, S * 2)
        make_srd(a, sO, 14, S * D * 2)
        make_srd(a, sG, 18, G_BYTES, WS_G)
        a(f"v_lshrrev_b32 v{vT}, 4, v{vLANE}")
        a(f"v_lshlrev_b32 v{vT}, 3, v{vT}")
        a(f"s_and_b32 s{sT0}, s{sWAVE}, 1")
        a(f"s_lshl_b32 s{sT0}, s{sT0}, 6")
        a(f"s_lshl_b32 s{sT1}, s{sFT}, 7")
        a(f"s_add_u32 s{sT0}, s{sT0}, s{sT1}")
        a.vmem(f"buffer_load_dwordx2 {vr(vB1,2)}, v{vT}, {srd(sB1)}, s{sT0} offen", "b")
        a.vmem(f"buffer_load_dwordx2 {vr(vB1+2,2)}, v{vT}, {srd(sB1)}, s{sT0} offen offset:32", "b")
        a(f"v_and_b32 v{vT}, 15, v{vLANE}")
        a(f"v_lshlrev_b32 v{vT}, 1, v{vT}")
        a(f"s_lshl_b32 s{sT0}, s{sST}, 7")
        a(f"s_lshl_b32 s{sT1}, s{sWAVE}, 5")
        a(f"s_add_u32 s{sT0}, s{sT0}, s{sT1}")
        a.vmem(f"buffer_load_ushort v{vB2}, v{vT}, {srd(sB2)}, s{sT0} offen", "b")
        dma_addr(a, S * 2, sST)
        a(f"s_mul_i32 s{sWB}, s{sWAVE}, {448*S*2}")
        if retr: tr_addr(sM0B)
        a(f"s_sub_u32 s{sT0}, s{sUP}, s{sM0B}")
        for t in range(4):
            a(f"v_add_u32 v{vTRU+t}, s{sT0}, v{vTR+t}")
        a(f"v_lshlrev_b32 v{vL0}, 4, v{vLANE}")
        a(f"v_add_u32 v{vL1}, 65536, v{vL0}")
        a(f"v_add_u32 v{vL2}, 131072, v{vL0}")

    a.label("L_w1_ready")
    stamp(a, opt, 4)
    jitter(a, opt, 2)
    vm_keep = list(a.vm)
    common_setup(retr=False)
    a(f"s_mul_i32 s{sT0}, s{sDT1}, 5120")
    a(f"v_add_u32 v{vA}, s{sT0}, v{vL0}")
    a(f"v_add_u32 v{vA2}, 4096, v{vA}")
    a(f"s_cmp_lg_u32 s{sWAVE}, {opt.pollw}")
    a("s_cbranch_scc1 L_hpolled")
    if opt.epoll:
        a(f"s_waitcnt vmcnt({4*(15 - opt.epoll) + 3})")
        poll_check(a, 4, None, "L_hpolled")
    if opt.pipe & 1:
        a("s_waitcnt vmcnt(0)")
        poll_pipe(a, opt, vHP, None, opt.gap)
    else:
        poll(a, opt, vHP, 4, None, opt.sleeph, opt.preh, 1)
    a.label("L_hpolled")
    a.vm = vm_keep + ["b", "b", "b"]
    a("s_barrier")
    stamp(a, opt, 5)

    def a_loads(srdn, step, nsteps, s_rot):
        slot = step % NS
        step_off(a, sOFF, sSTEP, s_rot, step, nsteps, 40960)
        return [f"buffer_load_dwordx4 {vr(ring(slot,t),4)}, v{vA if t < 4 else vA2}, {srd(srdn)}, s{sOFF} offen offset:{(t*1024) if t < 4 else 0} {opt.abits}" for t in range(5)]

    def main_loop(srdn, nsteps, s_rot, tagp, mfma, stamp0, tail, nuni, pre=None):
        def load(n):
            st, o = divmod(n, 5)
            if st >= nsteps: return
            if o == 0: step_off(a, sOFF, sSTEP, s_rot, st, nsteps, 40960)
            a.vmem(f"buffer_load_dwordx4 {vr(ring(st % NS, o),4)}, v{vA if o < 4 else vA2}, {srd(srdn)}, s{sOFF} offen "
                   f"offset:{(o*1024) if o < 4 else 0} {opt.abits}", f"{tagp}{st}_{o}")
        for n in range(opt.dist): load(n)
        if pre: pre()
        for st in range(nuni):
            for o in range(5):
                n = 5 * st + o
                if opt.fine == 1: load(n + opt.dist)
                a.wait_vm(f"{tagp}{st}_{o}")
                if n == 0 and stamp0 is not None: stamp(a, opt, stamp0)
                if opt.fine == 2: load(n + opt.dist)
                for i in range(4): mfma(st, o, i, st % NS)
                if tail: tail(st, o)
        assert 5 * nuni - 1 + opt.dist >= 5 * nsteps - 1, "loads left for the tail"

    def tile_tail(nsteps, tagp, first, last, frag_of, mfma_tile, write_tile, extra):
        ic = [0]
        done_at = {}
        queue = []
        extra = list(extra)
        def emit(fn):
            fn(); ic[0] += 1
        def filler():
            if queue and ic[0] - done_at[queue[0]] >= 9:
                t = queue.pop(0); emit(lambda: write_tile(t)); return
            if extra: emit(extra.pop(0))
        tiles = list(first) + list(last)
        for i in range(0, len(tiles), 2):
            pair = tiles[i:i + 2]
            for t in pair:
                for st in (nsteps - 2, nsteps - 1): a.wait_vm(f"{tagp}{st}_{frag_of(t)}")
            for st in (nsteps - 2, nsteps - 1):
                for t in pair:
                    emit(lambda: mfma_tile(st, t))
                    if st == nsteps - 1:
                        done_at[t] = ic[0]
                        if t in first: queue.append(t)
                    filler()
        while extra: emit(extra.pop(0))
        while queue:
            while ic[0] - done_at[queue[0]] < 9: emit(lambda: a("s_nop 0"))
            t = queue.pop(0); emit(lambda: write_tile(t))

    a(f"s_mul_i32 s{sSTEP}, s{sWAVE}, {16*40960}")
    def mfma1(st, nt, mt, slot):
        c = "0" if st == 0 else vr(acc1(mt, nt), 4)
        a(f"v_mfma_f32_16x16x32_bf16 {vr(acc1(mt,nt),4)}, {ar(wfrag(st,mt),4)}, {vr(ring(slot,nt),4)}, {c}")
    parts13 = w2_dma_parts(a, 0) if opt.t13 else []
    def tail1(st, o):
        if st == 13 and parts13:
            if o == 0: parts13[0]()
            else: parts13[o]()
    main_loop(sH, 16, sROT1, "h", mfma1, 6, tail1, 14, w1_finish if opt.hold1 else None)

    a(f"s_mov_b32 s100, {f2h(C1)}"); a(f"s_mov_b32 s101, {f2h(C1)}")
    a(f"v_mov_b32 v{vC0}, {f2h(C0)}"); a(f"v_mov_b32 v{vC0+1}, {f2h(C0)}")
    def lds_ref(addr):
        if addr < 65536: return vL0, addr
        if addr < 131072: return vL1, addr - 65536
        return vL2, addr - 131072
    def owner1(p, nt): return p + (0 if nt < 3 else 2)
    units = [(p, nt) for p in range(2) for nt in range(5)]
    def red1_addr(src, u):
        k = [x for x in units if owner1(*x) != src].index(u)
        return src * 32768 + 24576 + k * 2048 if k < 4 else 131072 + src * 8192 + (k - 4) * 2048
    saved_vm = list(a.vm)
    for w in range(4):
        if w < 3:
            a(f"s_cmp_lg_u32 s{sWAVE}, {w}")
            a(f"s_cbranch_scc1 L_ep1_{w+1}")
        a.vm = list(saved_vm)
        nis = [1 if opt.t13 else 0]
        def more(n, limit):
            for _ in range(n):
                if nis[0] < limit:
                    w2_dma(a, nis[0]); nis[0] += 1
        tl = [(2 * p + hf, nt) for nt in range(5) for p in range(2) for hf in range(2)]
        first = [t for t in tl if owner1(t[0] // 2, t[1]) != w]
        last = [t for t in tl if owner1(t[0] // 2, t[1]) == w]
        def wr1(t):
            vb, off = lds_ref(red1_addr(w, (t[0] // 2, t[1])) + (t[0] & 1) * 1024)
            a(f"ds_write_b128 v{vb}, {vr(acc1(*t),4)} offset:{off}")
        extra = []
        for _ in range(opt.tt):
            extra += w2_dma_parts(a, nis[0]); nis[0] += 1
        tile_tail(16, "h", first, last, lambda t: t[1], lambda st, t: mfma1(st, t[1], t[0], st % NS), wr1, extra)
        stamp(a, opt, 7)
        jitter(a, opt, 3)
        more(opt.e1, 6)
        a("s_waitcnt lgkmcnt(0)")
        a("s_barrier")
        own_u = [u for u in units if owner1(*u) == w]
        RT = vRING
        n = 0
        for u in own_u:
            for src in range(4):
                if src == w: continue
                for hf in range(2):
                    vb, off = lds_ref(red1_addr(src, u) + hf * 1024)
                    a(f"ds_read_b128 {vr(RT + n*4, 4)}, v{vb} offset:{off}")
                    n += 1
        a.wait_vm("b")
        for i in range(4):
            a(f"v_lshlrev_b32 v{BI+2*i}, 16, v{vB1+i}")
            a(f"v_and_b32 v{BI+2*i+1}, 0xffff0000, v{vB1+i}")
        for u in own_u:
            p, nt = u
            for hf in range(2):
                r = acc1(2*p+hf, nt)
                a(f"v_pk_add_f32 {vr(r,2)}, {vr(r,2)}, {vr(BI+4*hf,2)}")
                a(f"v_pk_add_f32 {vr(r+2,2)}, {vr(r+2,2)}, {vr(BI+4*hf+2,2)}")
        n = 0
        tot = len(own_u) * 6
        for u in own_u:
            p, nt = u
            for si in range(3):
                for hf in range(2):
                    a(f"s_waitcnt lgkmcnt({min(15, tot - n - 1)})")
                    r = acc1(2*p+hf, nt)
                    a(f"v_pk_add_f32 {vr(r,2)}, {vr(r,2)}, {vr(RT+n*4,2)}")
                    a(f"v_pk_add_f32 {vr(r+2,2)}, {vr(r+2,2)}, {vr(RT+n*4+2,2)}")
                    n += 1
        a("s_barrier")
        regs = []
        for u in own_u:
            p, nt = u
            for hf in range(2):
                r = acc1(2*p+hf, nt)
                regs += [r, r + 2]
        more(opt.e2, 10)
        gelu_pairs(a, regs, RT, fill=lambda: more(opt.e3, 10))
        a(f"s_lshl_b32 s{sT0}, s{sFT}, 1")
        a(f"s_add_u32 s{sT0}, s{sT0}, {w & 1}")
        a(f"s_mul_i32 s{sT0}, s{sT0}, 40960")
        a(f"s_mul_i32 s{sT1}, s{sDT1}, 5120")
        a(f"s_add_u32 s{sT0}, s{sT0}, s{sT1}")
        for i, u in enumerate(own_u):
            p, nt = u
            o = RT + 64 + 4 * i
            r0, r1 = acc1(2*p, nt), acc1(2*p+1, nt)
            a(f"v_cvt_pk_bf16_f32 v{o}, v{r0}, v{r0+1}")
            a(f"v_cvt_pk_bf16_f32 v{o+1}, v{r0+2}, v{r0+3}")
            a(f"v_cvt_pk_bf16_f32 v{o+2}, v{r1}, v{r1+1}")
            a(f"v_cvt_pk_bf16_f32 v{o+3}, v{r1+2}, v{r1+3}")
            a(f"s_add_u32 s{sT1}, s{sT0}, {nt*1024}")
            a.vmem(f"buffer_store_dwordx4 {vr(o,4)}, v{vL0}, {srd(sG)}, s{sT1} offen {opt.gbits}", "g")
        stamp(a, opt, 8)
        jitter(a, opt, 4)
        def g_flag():
            a(f"s_lshl_b32 s{sT0}, s{sDT1}, 5")
            a(f"s_add_u32 s{sT0}, s{sT0}, s{sFT}")
            a(f"s_mul_i32 s{sT0}, s{sT0}, {opt.gstride}")
            a(f"s_add_u32 s{sT0}, s{sT0}, {FLAG_G + 4*w}")
            flag_store(a, sT0)
            stamp(a, opt, 9)
        if opt.unsafe & 1:
            a("s_barrier")
            if w == 0:
                keep = list(a.vm); g_flag(); a.vm = keep
        more(opt.nb, 10)
        def tr_first4():
            a.wait_vm("w2_3")
            for st in range(4):
                w2_tr(a, st)
                if st % 2 == 1: a("s_waitcnt lgkmcnt(0)")
        if not opt.flagfirst: tr_first4()
        if not (opt.unsafe & 1):
            a.wait_vm("g")
            if opt.gwg:
                a("s_barrier")
                if w == 0:
                    keep = list(a.vm); g_flag(); a.vm = keep
            else:
                g_flag()
        if opt.flagfirst:
            more(max(0, 4 - nis[0]), 10)
            more(opt.nb3, 10)
            tr_first4()
        assert nis[0] >= 4
        more(10, 10)
        more(4, 14)
        for st in range(4, 10):
            a.wait_vm(f"w2_{st}")
            w2_tr(a, st)
            if st % 2 == 1: a("s_waitcnt lgkmcnt(0)")
        a("s_branch L_pre2")
        if w < 3: a.label(f"L_ep1_{w+1}")

    a.label("L_nogemm1")
    a.vm = []
    common_setup()
    if False:
        a(f"s_lshl_b32 s{sT0}, s{sWAVE}, 6")
        a(f"v_add_u32 v{vX}, s{sT0}, v{vLANE}")
        a(f"v_mul_u32_u24 v{vX}, {opt.hstride}, v{vX}")
        poll(a, opt, vX, 2, None)
        if opt.idlewait > 1:
            a(f"s_sleep {opt.idlewait}")
    if opt.pf == 3:
        a(f"s_lshl_b32 s{sT0}, s{sIDLE}, 2")
        a(f"s_add_u32 s{sT0}, s{sT0}, s{sWAVE}")
        a(f"s_lshl_b32 s{sT0}, s{sT0}, 10")
        for k in range(44):
            o = vRING + (k % 16) * 4
            a.vmem(f"buffer_load_dwordx4 {vr(o,4)}, v{vL0}, {srd(sW2)}, s{sT0} offen {opt.pfbits}", f"pf{k}")
            a(f"s_add_u32 s{sT0}, s{sT0}, {160*1024}")
            if k >= opt.pfdepth: a.wait_vm(f"pf{k-opt.pfdepth}")
        a.wait_vm0()
    if opt.pf == 2:
        assert opt.p1 == 2 and opt.p2 == 1
        a(f"s_cmp_lt_u32 s{sJ}, 28")
        a("s_cbranch_scc1 L_nopf")
        a(f"s_sub_u32 s{sT0}, s{sJ}, 28")
        a(f"s_lshl_b32 s{sT0}, s{sT0}, 2")
        a(f"s_add_u32 s{sT0}, s{sT0}, s{sWAVE}")
        a(f"s_lshl_b32 s{sT0}, s{sT0}, 13")
        a(f"s_lshl_b32 s{sT1}, s{sXCD}, 9")
        a(f"s_add_u32 s{sT0}, s{sT0}, s{sT1}")
        a(f"v_lshrrev_b32 v{vX}, 5, v{vLANE}")
        a(f"v_lshlrev_b32 v{vX}, 12, v{vX}")
        a(f"v_and_b32 v{vX+1}, 31, v{vLANE}")
        a(f"v_lshlrev_b32 v{vX+1}, 4, v{vX+1}")
        a(f"v_add_u32 v{vX}, v{vX}, v{vX+1}")
        keep = list(a.vm)
        for k in range(54):
            o = vRING + (k % 16) * 4
            a.vmem(f"buffer_load_dwordx4 {vr(o,4)}, v{vX}, {srd(sW2)}, s{sT0} offen", f"pf{k}")
            a(f"s_add_u32 s{sT0}, s{sT0}, {16*8192}")
            if k >= opt.pfdepth: a.wait_vm(f"pf{k-opt.pfdepth}")
        a.wait_vm0()
        a.label("L_nopf")
        a.vm = keep
    for st in range(10): w2_dma(a, st)
    for st in range(4):
        a.wait_vm(f"w2_{st}")
        w2_tr(a, st)
        if st % 2 == 1: a("s_waitcnt lgkmcnt(0)")
    for st in range(10, 14): w2_dma(a, st)
    for st in range(4, 10):
        a.wait_vm(f"w2_{st}")
        w2_tr(a, st)
        if st % 2 == 1: a("s_waitcnt lgkmcnt(0)")

    if opt.idle1:
        a("s_waitcnt vmcnt(0)")
        a(f"s_cmp_lg_u32 s{sWAVE}, {opt.pollw}")
        a("s_cbranch_scc1 L_idle1")
        a(f"s_lshl_b32 s{sT0}, s{sDT2}, 5")
        a(f"s_add_u32 s{sT0}, s{sT0}, {opt.idle1ft}")
        a(f"s_mul_i32 s{sT0}, s{sT0}, {opt.gstride}")
        a(f"s_add_u32 s{sT0}, s{sT0}, {FLAG_G}")
        a(f"v_mov_b32 v{vX}, s{sT0}")
        poll(a, opt, vX, 1, None, opt.idle1)
        a.label("L_idle1")
    a.label("L_pre2")
    a(f"s_mul_i32 s{sT0}, s{sDT2}, 5120")
    a(f"v_add_u32 v{vA}, s{sT0}, v{vL0}")
    a(f"v_add_u32 v{vA2}, 4096, v{vA}")
    def w2_finish():
        a.wait_vm("w2all")
        a("s_waitcnt lgkmcnt(0)")
        for st in range(10, 14):
            w2_tr(a, st)
            if st % 2 == 1: a("s_waitcnt lgkmcnt(0)")
    if not opt.hold2:
        a.vm = ["w2all"]
        w2_finish()
    stamp(a, opt, 10)
    if opt.onepoll & 2:
        a(f"s_cmp_lg_u32 s{sWAVE}, {opt.pollw}")
        a("s_cbranch_scc1 L_gpolled")
        a(f"s_lshl_b32 s{sT0}, s{sDT2}, 5")
        a(f"s_mul_i32 s{sT0}, s{sT0}, {opt.gstride}")
        a(f"s_add_u32 s{sT0}, s{sT0}, {FLAG_G}")
        a(f"v_mul_u32_u24 v{vX}, {opt.gstride}, v{vLANE}")
        a(f"v_add_u32 v{vX}, s{sT0}, v{vX}")
        a(f"s_mov_b32 s{sP+2}, 0x7ffffff")
        a(f"s_mov_b32 s{sP+3}, 0")
        if opt.pipe & 2:
            a("s_waitcnt vmcnt(0)")
            poll_pipe(a, opt, vX, sP + 2, opt.gap, 1 if opt.gwg else 4)
        else:
            poll(a, opt, vX, 1 if opt.gwg else 4, sP + 2, opt.sleep, opt.preg)
        a.label("L_gpolled")
        a("s_barrier")
    else:
        a(f"s_lshl_b32 s{sT0}, s{sDT2}, 5")
        a(f"s_mul_i32 s{sT1}, s{sWAVE}, 7")
        a(f"s_add_u32 s{sT0}, s{sT0}, s{sT1}")
        a(f"s_mul_i32 s{sT0}, s{sT0}, {opt.gstride}")
        a(f"s_add_u32 s{sT0}, s{sT0}, {FLAG_G}")
        a(f"v_mul_u32_u24 v{vX}, {opt.gstride}, v{vLANE}")
        a(f"v_add_u32 v{vX}, s{sT0}, v{vX}")
        a(f"s_cmp_eq_u32 s{sWAVE}, 3")
        a(f"s_cselect_b32 s{sP+2}, 0x3f, 0x7f")
        a(f"s_mov_b32 s{sP+3}, 0")
        poll(a, opt, vX, 4, sP + 2, opt.sleep, opt.preg)
    a.vm = ["w2all"] if opt.hold2 else []
    stamp(a, opt, 11)
    a(f"s_mul_i32 s{sSTEP}, s{sWAVE}, {14*40960}")
    def mfma2(st, mt, nt, slot):
        c = "0" if st == 0 else vr(acc2(mt, nt), 4)
        a(f"v_mfma_f32_16x16x32_bf16 {vr(acc2(mt,nt),4)}, {vr(ring(slot,mt),4)}, {ar(wfrag(st,nt),4)}, {c}")
    main_loop(sG, 14, sROT2, "g", mfma2, 12, None, 12, w2_finish if opt.hold2 else None)
    saved_vm2 = list(a.vm)
    a(f"v_and_b32 v{vT}, 15, v{vLANE}")
    a(f"s_lshl_b32 s{sT0}, s{sWAVE}, 4")
    a(f"v_add_u32 v{vT}, s{sT0}, v{vT}")
    a(f"v_mul_u32_u24 v{vA}, 1280, v{vT}")
    a(f"v_lshrrev_b32 v{vT}, 4, v{vLANE}")
    a(f"v_lshlrev_b32 v{vT}, 3, v{vT}")
    a(f"v_add_u32 v{vA}, v{vA}, v{vT}")
    a(f"s_mul_i32 s{sT0}, s{sST}, {64*1280}")
    a(f"s_mul_i32 s{sT1}, s{sDT2}, 160")
    a(f"s_add_u32 s{sOFF}, s{sT0}, s{sT1}")
    a(f"v_lshlrev_b32 v{vC0}, 16, v{vB2}")
    a(f"v_lshlrev_b32 v{vC0+1}, 16, v{vB2}")
    a(f"v_sub_u32 v{vA2}, v{vA}, v{vT}")
    a(f"v_bfe_u32 v{vT}, v{vLANE}, 4, 1")
    a(f"v_lshlrev_b32 v{vT}, 5, v{vT}")
    a(f"v_add_u32 v{vA2}, v{vA2}, v{vT}")
    a(f"v_bfe_u32 v{vT}, v{vLANE}, 5, 1")
    a(f"v_lshlrev_b32 v{vT}, 4, v{vT}")
    a(f"v_add_u32 v{vA2}, v{vA2}, v{vT}")
    def red2_addr(src, nt, mt):
        k = [x for x in range(4) if x != src].index(nt)
        return src * 32768 + (k * 5 + mt) * 1024
    for w in range(4):
        if w < 3:
            a(f"s_cmp_lg_u32 s{sWAVE}, {w}")
            a(f"s_cbranch_scc1 L_ep2_{w+1}")
        a.vm = list(saved_vm2)
        tl = [(mt, nt) for mt in range(5) for nt in range(4)]
        def wr2(t):
            vb, off = lds_ref(red2_addr(w, t[1], t[0]))
            a(f"ds_write_b128 v{vb}, {vr(acc2(*t),4)} offset:{off}")
        tile_tail(14, "g", [t for t in tl if t[1] != w], [t for t in tl if t[1] == w], lambda t: t[0],
                  lambda st, t: mfma2(st, t[0], t[1], st % NS), wr2, [])
        stamp(a, opt, 13)
        jitter(a, opt, 5)
        a("s_waitcnt lgkmcnt(0)")
        a("s_barrier")
        RT = vRING
        n = 0
        for mt in range(5):
            for src in range(4):
                if src == w: continue
                vb, off = lds_ref(red2_addr(src, w, mt))
                a(f"ds_read_b128 {vr(RT+n*4,4)}, v{vb} offset:{off}")
                n += 1
        def finish_tiles(single):
            n = 0
            paired = [m for m in range(5) if m != single]
            for mt in range(5):
                r = acc2(mt, w)
                for si in range(3):
                    a(f"s_waitcnt lgkmcnt({14 - n})")
                    a(f"v_pk_add_f32 {vr(r,2)}, {vr(r,2)}, {vr(RT+n*4,2)}")
                    a(f"v_pk_add_f32 {vr(r+2,2)}, {vr(r+2,2)}, {vr(RT+n*4+2,2)}")
                    n += 1
                a(f"v_pk_add_f32 {vr(r,2)}, {vr(r,2)}, {vr(vC0,2)}")
                a(f"v_pk_add_f32 {vr(r+2,2)}, {vr(r+2,2)}, {vr(vC0,2)}")
                if mt == single: o = RT + 72
                else: o = RT + 64 + 2 * paired.index(mt)
                a(f"v_cvt_pk_bf16_f32 v{o}, v{r}, v{r+1}")
                a(f"v_cvt_pk_bf16_f32 v{o+1}, v{r+2}, v{r+3}")
                if not opt.wide or mt == single:
                    a(f"buffer_store_dwordx2 {vr(o,2)}, v{vA}, {srd(sO)}, s{sOFF} offen offset:{mt*32} {opt.obits}")
                elif paired.index(mt) % 2 == 1:
                    a("s_nop 1")
                    a(f"v_permlane16_swap_b32 v{o-2}, v{o}")
                    a(f"v_permlane16_swap_b32 v{o-1}, v{o+1}")
                    a(f"buffer_store_dwordx4 {vr(o-2,4)}, v{vA2}, {srd(sO)}, s{sOFF} offen offset:{(mt-1)*32} {opt.obits}")
        if opt.align64:
            a(f"s_and_b32 s{sT0}, s{sDT2}, 1")
            a(f"s_cmp_lg_u32 s{sT0}, 0")
            a(f"s_cbranch_scc1 L_odd_{w}")
            finish_tiles(4)
            a("s_branch L_fin")
            a.label(f"L_odd_{w}")
            finish_tiles(0)
        else:
            finish_tiles(4)
        a("s_branch L_fin")
        if w < 3: a.label(f"L_ep2_{w+1}")
    a.label("L_fin")
    if opt.probe >= 0:
        if opt.probe == 14:
            a("s_waitcnt vmcnt(0)")
            stamp(a, opt, 14)
        a(f"s_cmp_lg_u32 s{sWG}, {opt.probewg}")
        a("s_cbranch_scc1 L_done")
        a(f"s_cmp_lg_u32 s{sWAVE}, {opt.probew}")
        a("s_cbranch_scc1 L_done")
        ref = sNONCE if opt.probeabs else (sPROF + 2 if opt.probe0 >= 0 else 96)
        a(f"s_sub_u32 s{sT1}, s{sPROF+1}, s{ref}")
        if opt.probecyc: a(f"s_lshr_b32 s{sT1}, s{sT1}, 2")
        else: a(f"s_lshl_b32 s{sT1}, s{sT1}, 2")
        a(f"s_add_u32 s{sT1}, s{sT1}, 4000")
        a.label("L_probe")
        a(f"s_memrealtime s[{sP}:{sP+1}]")
        a("s_waitcnt lgkmcnt(0)")
        a(f"s_sub_u32 s{sT0}, s{sP}, s96")
        a(f"s_cmp_lt_u32 s{sT0}, s{sT1}")
        a("s_cbranch_scc1 L_probe")
    if opt.pad:
        a.label("L_pad")
        a(f"s_memrealtime s[{sP}:{sP+1}]")
        a("s_waitcnt lgkmcnt(0)")
        a(f"s_sub_u32 s{sT0}, s{sP}, s96")
        a(f"s_cmp_lt_u32 s{sT0}, {opt.pad}")
        a("s_cbranch_scc1 L_pad")
    if opt.prof:
        a("s_waitcnt vmcnt(0)")
        stamp(a, opt, 14)
        make_srd(a, sX, 18, 65536, WS_PROF)
        a(f"s_lshl_b32 s{sT0}, s{sWG}, 2")
        a(f"s_add_u32 s{sT0}, s{sT0}, s{sWAVE}")
        a(f"s_lshl_b32 s{sT0}, s{sT0}, 6")
        a(f"v_mov_b32 v{vT}, s{sT0}")
        a("s_mov_b64 exec, 1")
        for i in range(15):
            a(f"v_mov_b32 v100, s{sPROF+i}")
            a(f"buffer_store_dword v100, v{vT}, {srd(sX)}, 0 offen offset:{4*i}")
            a("s_nop 1")
        a("s_waitcnt vmcnt(0)")
    a.label("L_done")
    a("s_endpgm")
    a.label("L_codeend")
    a.raw('.section .rodata,"a"')
    a.raw(".p2align 6")
    a.raw(f".amdhsa_kernel {KN}")
    for l in ["next_free_vgpr 512", "next_free_sgpr 102", "accum_offset 256", "group_segment_fixed_size 0",
              "kernarg_size 64", "user_sgpr_count 2", "user_sgpr_kernarg_segment_ptr 1",
              "system_sgpr_workgroup_id_x 1", "float_denorm_mode_32 3"]:
        a.raw(f"  .amdhsa_{l}")
    a.raw(".end_amdhsa_kernel")
    return "\n".join(a.L) + "\n"

def parse(argv=None):
    ap = argparse.ArgumentParser()
    ap.add_argument("-o", default="standalone__mixer_token_mlp__prompt.s")
    ap.add_argument("--prof", type=int, default=0)
    ap.add_argument("--rot", type=int, default=3)
    ap.add_argument("--spin", type=int, default=20000)
    ap.add_argument("--sleep", type=int, default=8)
    ap.add_argument("--depth", type=int, default=3)
    ap.add_argument("--lnprof", type=int, default=0)
    ap.add_argument("--hbits", default="sc1")
    ap.add_argument("--pfwait", type=int, default=1)
    ap.add_argument("--hold", type=int, default=0)
    ap.add_argument("--probe", type=int, default=-1)
    ap.add_argument("--probe0", type=int, default=-1)
    ap.add_argument("--probecyc", type=int, default=0)
    ap.add_argument("--probeabs", type=int, default=0)
    ap.add_argument("--probewg", type=int, default=100)
    ap.add_argument("--probew", type=int, default=2)
    ap.add_argument("--rot8", type=int, default=1)
    ap.add_argument("--cpf", type=int, default=1)
    ap.add_argument("--cpfw", type=int, default=3)
    ap.add_argument("--wide", type=int, default=1)
    ap.add_argument("--idlewait", type=int, default=0)
    ap.add_argument("--sleeph", type=int, default=8)
    ap.add_argument("--preh", type=int, default=0)
    ap.add_argument("--preg", type=int, default=0)
    ap.add_argument("--onepoll", type=int, default=3)
    ap.add_argument("--pollw", type=int, default=3)
    ap.add_argument("--nta", type=int, default=0)
    ap.add_argument("--rotg1", type=int, default=0)
    ap.add_argument("--rotg2", type=int, default=0)
    ap.add_argument("--npost", type=int, default=3)
    ap.add_argument("--xbar", type=int, default=1)
    ap.add_argument("--hold1", type=int, default=4)
    ap.add_argument("--hold2", type=int, default=1)
    ap.add_argument("--nmid", type=int, default=0)
    ap.add_argument("--gbits", default="sc1")
    ap.add_argument("--fbits", default="sc1")
    ap.add_argument("--abits", default="sc1")
    ap.add_argument("--unsafe", type=int, default=0)
    ap.add_argument("--epoll", type=int, default=12)
    ap.add_argument("--pipe", type=int, default=1)
    ap.add_argument("--gap", type=int, default=2)
    ap.add_argument("--gwg", type=int, default=1)
    ap.add_argument("--hline", type=int, default=16)
    ap.add_argument("--idle1", type=int, default=0)
    ap.add_argument("--idle1ft", type=int, default=13)
    ap.add_argument("--jitter", type=int, default=0)
    ap.add_argument("--flagfirst", type=int, default=0)
    ap.add_argument("--nb3", type=int, default=2)
    ap.add_argument("--pairx", type=int, default=1)
    ap.add_argument("--xpf", type=int, default=0)
    ap.add_argument("--fine", type=int, default=2)
    ap.add_argument("--dist", type=int, default=12)
    ap.add_argument("--align64", type=int, default=1)
    ap.add_argument("--t13", type=int, default=1)
    ap.add_argument("--tt", type=int, default=2)
    ap.add_argument("--e2", type=int, default=0)
    ap.add_argument("--e3", type=int, default=0)
    ap.add_argument("--nb2", type=int, default=0)
    ap.add_argument("--e1", type=int, default=1)
    ap.add_argument("--nb", type=int, default=2)
    ap.add_argument("--nearly", type=int, default=2)
    ap.add_argument("--dpl", type=int, default=5)
    ap.add_argument("--dp", type=int, default=4)
    ap.add_argument("--p1", type=int, default=2)
    ap.add_argument("--p2", type=int, default=1)
    ap.add_argument("--rota1", type=int, default=0)
    ap.add_argument("--rota2", type=int, default=0)
    ap.add_argument("--xbits", default="nt")
    ap.add_argument("--w1bits", default="")
    ap.add_argument("--w2bits", default="")
    ap.add_argument("--pfbits", default="")
    ap.add_argument("--pfdepth", type=int, default=8)
    ap.add_argument("--prio", type=int, default=3)
    ap.add_argument("--delay", type=int, default=0)
    ap.add_argument("--hstride", type=int, default=8)
    ap.add_argument("--gstride", type=int, default=256)
    ap.add_argument("--pf", type=int, default=0)
    ap.add_argument("--pad", type=int, default=0)
    ap.add_argument("--obits", default="sc0 sc1")
    return ap.parse_args(argv)

if __name__ == "__main__":
    opt = parse()
    open(opt.o, "w").write(gen(opt))
```

```python
import argparse, struct

S, D, F = 2048, 640, 1728
KN = "standalone__mixer_token_mlp__prompt_kernel"

WS_H = 0
H_BYTES = 64 * 40 * 1024
WS_G = 0x300000
G_BYTES = 54 * 40 * 1024
WS_FLAG = 0x600000
FLAG_H = 0
FLAG_G = 0x10000
FLAG_BYTES = 0x40000
WS_PROF = 0x700000

LDS_BYTES = 163840
LN_BASE = 131072
LN_ROW = 1344
LF_BASE = 141824
P0_BASE = [0, 49152, 98304, 122880]

sWG = 2
sX, sW1, sW2, sH, sG, sO, sF, sB1, sB2, sD = 20, 24, 28, 32, 36, 40, 44, 48, 52, 56
sWAVE, sXCD, sJ, sFT, sDT1, sST, sDT2, sNONCE = 60, 61, 62, 63, 64, 65, 66, 67
sT0, sT1, sT2, sT3, sT4, sT5 = 68, 69, 70, 71, 72, 73
sROT1, sROT2, sSTEP, sOFF = 74, 75, 76, 77
sM0B, sSPIN = 78, 79
sP = 80
sPROF = 84
sUP = 99
sJLIM, sIDLE = 100, 101
sWB = 3

vTID, vLANE = 0, 1
vTR = 2
vA, vA2, vDMA, vT2 = 6, 7, 8, 9
vB1 = 10
vB2, vT = 14, 15
vACC = 16
vRING = 96
vTRU = 196
vL0, vL1, vL2 = 200, 201, 202
vC0 = 204
BI = 206
vPOLL = 214
vX = 216
vFS = 248
vHP = 226
vPQ = 228
vDM = 220

def srd(n): return f"s[{n}:{n+3}]"
def vr(n, c=1): return f"v{n}" if c == 1 else f"v[{n}:{n+c-1}]"
def ar(n, c=1): return f"a{n}" if c == 1 else f"a[{n}:{n+c-1}]"
def f2h(x): return "0x%08x" % struct.unpack("<I", struct.pack("<f", x))[0]
C0 = -2.0 * 0.7978845608028654 * 1.4426950408889634
C1 = C0 * 0.044715

class Asm:
    def __init__(self):
        self.L = []; self.vm = []; self.uid = 0
    def __call__(self, s): self.L.append("    " + s)
    def label(self, s): self.L.append(s + ":")
    def raw(self, s): self.L.append(s)
    def c(self, s): self.L.append("    ; " + s)
    def vmem(self, s, tag):
        self(s); self.vm.append(tag)
    def wait_vm(self, tag):
        hits = [i for i, t in enumerate(self.vm) if t == tag]
        if not hits: return
        n = len(self.vm) - 1 - hits[-1]
        self(f"s_waitcnt vmcnt({min(n, 63)})")
        self.vm = self.vm[hits[-1] + 1:]
    def wait_vm0(self):
        self("s_waitcnt vmcnt(0)"); self.vm = []
    def newlabel(self, p):
        self.uid += 1
        return f"L_{p}_{self.uid}"

def acc1(mt, nt): return vACC + (mt * 5 + nt) * 4
def acc2(mt, nt): return vACC + (mt * 4 + nt) * 4
def wfrag(step, t): return step * 16 + t * 4

def stamp(a, opt, idx, force=False):
    if opt.probe >= 0:
        ins = "s_memtime" if opt.probecyc else "s_memrealtime"
        if idx == opt.probe:
            a(f"{ins} s[{sP}:{sP+1}]")
            a("s_waitcnt lgkmcnt(0)")
            a(f"s_mov_b32 s{sPROF+1}, s{sP}")
        if idx == opt.probe0:
            a(f"{ins} s[{sP}:{sP+1}]")
            a("s_waitcnt lgkmcnt(0)")
            a(f"s_mov_b32 s{sPROF+2}, s{sP}")
        return
    if opt.prof == 4 and idx != 14: return
    if opt.lnprof and idx in (4, 5) and getattr(a, "ln_done", False): return
    if opt.prof:
        a(f"s_mem{'time' if opt.prof == 2 else 'realtime'} s[{sP}:{sP+1}]")
        a("s_waitcnt lgkmcnt(0)")
        a(f"s_mov_b32 s{sPROF+idx}, s{sP}")

def jitter(a, opt, k):
    if not opt.jitter: return
    lp, dn = a.newlabel("jit"), a.newlabel("jitd")
    a(f"s_lshl_b32 s{sP+2}, s{sWG}, 2")
    a(f"s_add_u32 s{sP+2}, s{sP+2}, s{sWAVE}")
    a(f"s_mul_i32 s{sP+2}, s{sP+2}, {2654435761 * (2 * k + opt.jitter) % (1 << 31)}")
    a(f"s_lshr_b32 s{sP+2}, s{sP+2}, 26")
    a.label(lp)
    a(f"s_cmp_eq_u32 s{sP+2}, 0")
    a(f"s_cbranch_scc1 {dn}")
    a("s_sleep 2")
    a(f"s_sub_u32 s{sP+2}, s{sP+2}, 1")
    a(f"s_branch {lp}")
    a.label(dn)

def make_srd(a, n, lo, size, add=0):
    if add:
        a(f"s_add_u32 s{n}, s{lo}, {add}")
        a(f"s_addc_u32 s{n+1}, s{lo+1}, 0")
        a(f"s_and_b32 s{n+1}, s{n+1}, 0xffff")
    else:
        a(f"s_mov_b32 s{n}, s{lo}")
        a(f"s_and_b32 s{n+1}, s{lo+1}, 0xffff")
    a(f"s_mov_b32 s{n+2}, {size}")
    a(f"s_mov_b32 s{n+3}, 0x20000")

def nonce_spin(a, opt):
    lp = a.newlabel("nonce"); dn = a.newlabel("nonced")
    a(f"s_cmp_lg_u32 s{sNONCE}, 0")
    a(f"s_cbranch_scc1 {dn}")
    a(f"s_mov_b32 s{sSPIN}, 0")
    a(f"v_mov_b32 v{vT}, 0")
    a.label(lp)
    a(f"buffer_load_dword v{vT2}, v{vT}, {srd(sD)}, 0 offen sc1")
    a("s_waitcnt vmcnt(0)")
    a(f"v_readfirstlane_b32 s{sNONCE}, v{vT2}")
    a(f"s_add_u32 s{sSPIN}, s{sSPIN}, 1")
    a(f"s_cmp_lg_u32 s{sNONCE}, 0")
    a(f"s_cbranch_scc1 {dn}")
    a(f"s_cmp_lt_u32 s{sSPIN}, {opt.spin}")
    a(f"s_cbranch_scc1 {lp}")
    a.label(dn)

def lds_set(a, addr_sgpr_or_imm):
    a(f"v_mov_b32 v{vT}, {addr_sgpr_or_imm}")
    a(f"v_mov_b32 v{vT2}, 1")
    a(f"s_mov_b64 s[{sP}:{sP+1}], exec")
    a("s_mov_b64 exec, 1")
    a(f"ds_write_b32 v{vT}, v{vT2}")
    a(f"s_mov_b64 exec, s[{sP}:{sP+1}]")

def lds_spin(a, opt, addr):
    lp = a.newlabel("lspin"); dn = a.newlabel("lspun")
    a(f"v_mov_b32 v{vT}, {addr}")
    a(f"s_mov_b32 s{sSPIN}, 0")
    a.label(lp)
    a(f"ds_read_b32 v{vT2}, v{vT}")
    a("s_waitcnt lgkmcnt(0)")
    a(f"v_readfirstlane_b32 s{sP}, v{vT2}")
    a(f"s_add_u32 s{sSPIN}, s{sSPIN}, 1")
    a(f"s_cmp_lg_u32 s{sP}, 0")
    a(f"s_cbranch_scc1 {dn}")
    a(f"s_cmp_lt_u32 s{sSPIN}, {opt.spin * 8}")
    a(f"s_cbranch_scc1 {lp}")
    a.label(dn)

def dma_addr(a, stride, s_tile):
    a(f"v_lshrrev_b32 v{vT}, 3, v{vLANE}")
    a(f"v_lshrrev_b32 v{vT2}, 1, v{vT}")
    a(f"v_lshlrev_b32 v{vT2}, 1, v{vT2}")
    a(f"v_and_b32 v{vDM}, 7, v{vLANE}")
    a(f"v_xor_b32 v{vDM}, v{vDM}, v{vT2}")
    a(f"v_lshlrev_b32 v{vDM}, 4, v{vDM}")
    a(f"v_mul_u32_u24 v{vT}, {stride}, v{vT}")
    a(f"v_add_u32 v{vDM}, v{vDM}, v{vT}")
    a(f"s_lshl_b32 s{sT0}, s{s_tile}, 7")
    a(f"v_add_u32 v{vDM}, s{sT0}, v{vDM}")
    for b in range(1, 4):
        a(f"v_add_u32 v{vDM+b}, {b*(8*stride-1024)}, v{vDM}")

def step_off(a, dst, s_base, s_rot, i, nsteps, bytes_per_step):
    a(f"s_add_u32 s{sT4}, s{s_rot}, {i}")
    a(f"s_cmp_ge_u32 s{sT4}, {nsteps}")
    a(f"s_cselect_b32 s{dst}, {nsteps}, 0")
    a(f"s_sub_u32 s{sT4}, s{sT4}, s{dst}")
    a(f"s_mul_i32 s{sT4}, s{sT4}, {bytes_per_step}")
    a(f"s_add_u32 s{dst}, s{sT4}, s{s_base}")

def dma_step(a, srdn, stride, s_rowbase, s_rot, step, nsteps, s_lds, lds_off, tag, bits=""):
    a(f"s_add_u32 m0, s{s_lds}, {lds_off}")
    step_off(a, sOFF, s_rowbase, s_rot, step, nsteps, 32 * stride)
    for blk in range(4):
        a.vmem(f"buffer_load_dwordx4 v{vDM+blk}, {srd(srdn)}, s{sOFF} offen offset:{blk*1024} {bits} lds", tag)

def tr_step(a, vbase, off, step):
    for t in range(4):
        w = wfrag(step, t)
        a(f"ds_read_b64_tr_b16 {ar(w,2)}, v{vbase+t} offset:{off}")
        a(f"ds_read_b64_tr_b16 {ar(w+2,2)}, v{vbase+t} offset:{off+2048}")

def poll(a, opt, vaddr, nd, lanes, sleep=None, pre=0, nload=1):
    if sleep is None: sleep = opt.sleep
    if pre: a(f"s_sleep {pre}")
    lp = a.newlabel("poll"); dn = a.newlabel("polled")
    a(f"s_mov_b32 s{sSPIN}, 0")
    a.label(lp)
    ld = {1: "dword", 2: "dwordx2", 4: "dwordx4"}[nd]
    for k in range(nload):
        a(f"buffer_load_{ld} {vr(vPQ + 4*k, nd)}, v{vaddr}, {srd(sF)}, 0 offen offset:{k*1024} sc1")
    a("s_waitcnt vmcnt(0)")
    first = True
    for k in range(nload):
        for i in range(nd):
            if first:
                a(f"v_cmp_ne_u32 vcc, s{sNONCE}, v{vPQ+4*k+i}"); first = False
            else:
                a(f"v_cmp_ne_u32 s[{sP}:{sP+1}], s{sNONCE}, v{vPQ+4*k+i}")
                a(f"s_or_b64 vcc, vcc, s[{sP}:{sP+1}]")
    if lanes is not None:
        a(f"s_and_b64 vcc, vcc, s[{lanes}:{lanes+1}]")
    a(f"s_add_u32 s{sSPIN}, s{sSPIN}, 1")
    a("s_cmp_eq_u64 vcc, 0")
    a(f"s_cbranch_scc1 {dn}")
    if sleep: a(f"s_sleep {sleep}")
    a(f"s_cmp_lt_u32 s{sSPIN}, {opt.spin}")
    a(f"s_cbranch_scc1 {lp}")
    a.label(dn)
    a.vm = []

def poll_pipe(a, opt, vaddr, lanes, gap, nd=4):
    dn = a.newlabel("ppolled"); lp = a.newlabel("ppoll")
    regs = [vPQ, vPQ + 4, vPQ + 8]
    def probe(r): a(f"buffer_load_{'dwordx4' if nd == 4 else 'dword'} {vr(r,nd)}, v{vaddr}, {srd(sF)}, 0 offen sc1")
    a(f"s_mov_b32 s{sSPIN}, 0")
    probe(regs[0]); a(f"s_sleep {gap}"); probe(regs[1]); a(f"s_sleep {gap}"); probe(regs[2])
    a.label(lp)
    for r in regs:
        a("s_waitcnt vmcnt(2)")
        for i in range(nd):
            if i == 0: a(f"v_cmp_ne_u32 vcc, s{sNONCE}, v{r}")
            else:
                a(f"v_cmp_ne_u32 s[{sP}:{sP+1}], s{sNONCE}, v{r+i}")
                a(f"s_or_b64 vcc, vcc, s[{sP}:{sP+1}]")
        if lanes is not None: a(f"s_and_b64 vcc, vcc, s[{lanes}:{lanes+1}]")
        a("s_cmp_eq_u64 vcc, 0")
        a(f"s_cbranch_scc1 {dn}")
        a(f"s_sleep {gap}")
        probe(r)
    a(f"s_add_u32 s{sSPIN}, s{sSPIN}, 1")
    a(f"s_cmp_lt_u32 s{sSPIN}, {opt.spin}")
    a(f"s_cbranch_scc1 {lp}")
    a.label(dn)

def poll_check(a, nd, lanes, ok_label):
    for i in range(nd):
        if i == 0: a(f"v_cmp_ne_u32 vcc, s{sNONCE}, v{vPQ}")
        else:
            a(f"v_cmp_ne_u32 s[{sP}:{sP+1}], s{sNONCE}, v{vPQ+i}")
            a(f"s_or_b64 vcc, vcc, s[{sP}:{sP+1}]")
    if lanes is not None:
        a(f"s_and_b64 vcc, vcc, s[{lanes}:{lanes+1}]")
    a("s_cmp_eq_u64 vcc, 0")
    a(f"s_cbranch_scc1 {ok_label}")

def flag_store(a, s_index_bytes, sector=False):
    if sector:
        a(f"v_lshlrev_b32 v{vT}, 4, v{vLANE}")
        a(f"v_add_u32 v{vT}, s{s_index_bytes}, v{vT}")
        for i in range(4): a(f"v_mov_b32 v{vFS+i}, s{sNONCE}")
        a(f"s_mov_b64 s[{sP}:{sP+1}], exec")
        a("s_mov_b64 exec, 15")
        a.vmem(f"buffer_store_dwordx4 {vr(vFS,4)}, v{vT}, {srd(sF)}, 0 offen {OPT.fbits}", "flag")
        a(f"s_mov_b64 exec, s[{sP}:{sP+1}]")
        return
    a(f"v_mov_b32 v{vT}, s{s_index_bytes}")
    a(f"v_mov_b32 v{vT2}, s{sNONCE}")
    a(f"s_mov_b64 s[{sP}:{sP+1}], exec")
    a("s_mov_b64 exec, 1")
    a.vmem(f"buffer_store_dword v{vT2}, v{vT}, {srd(sF)}, 0 offen {OPT.fbits}", "flag")
    a(f"s_mov_b64 exec, s[{sP}:{sP+1}]")

def gelu_pairs(a, regs, tmp, fill=None):
    def each(fn):
        for i, r in enumerate(regs): fn(r, tmp + 2 * i)
    each(lambda r, t: a(f"v_pk_mul_f32 {vr(t,2)}, {vr(r,2)}, {vr(r,2)}"))
    each(lambda r, t: a(f"v_pk_fma_f32 {vr(t,2)}, {vr(t,2)}, s[100:101], {vr(vC0,2)}"))
    each(lambda r, t: a(f"v_pk_mul_f32 {vr(t,2)}, {vr(t,2)}, {vr(r,2)}"))
    if fill: fill()
    each(lambda r, t: (a(f"v_exp_f32 v{t}, v{t}"), a(f"v_exp_f32 v{t+1}, v{t+1}")))
    each(lambda r, t: a(f"v_pk_add_f32 {vr(t,2)}, {vr(t,2)}, 1.0 op_sel_hi:[1,0]"))
    each(lambda r, t: (a(f"v_rcp_f32 v{t}, v{t}"), a(f"v_rcp_f32 v{t+1}, v{t+1}")))
    a("s_nop 0")
    each(lambda r, t: a(f"v_pk_mul_f32 {vr(r,2)}, {vr(r,2)}, {vr(t,2)}"))

def w2_slot(step):
    if step < 8: return sM0B, step * 4096, vTR, step * 4096
    if step < 10: return sUP, (step - 8) * 4096, vTRU, (step - 8) * 4096
    return sM0B, (step - 10) * 4096, vTR, (step - 10) * 4096

def w2_dma(a, step):
    sb, off, _, _ = w2_slot(step)
    dma_step(a, sW2, S * 2, sWB, sROT2, step, 14, sb, off, f"w2_{step}", OPT.w2bits)

def w2_dma_parts(a, step):
    sb, off, _, _ = w2_slot(step)
    def setup():
        a(f"s_add_u32 m0, s{sb}, {off}")
        step_off(a, sT3, sWB, sROT2, step, 14, 32 * S * 2)
    def one(blk):
        return lambda: a.vmem(f"buffer_load_dwordx4 v{vDM+blk}, {srd(sW2)}, s{sT3} offen offset:{blk*1024} {OPT.w2bits} lds", f"w2_{step}")
    return [setup] + [one(b) for b in range(4)]

def w2_tr(a, step):
    _, _, vb, off = w2_slot(step)
    tr_step(a, vb, off, step)

def gen(opt):
    global OPT
    OPT = opt
    a = Asm()
    NS = (opt.dist + 1 + 4) // 5
    assert opt.dist < 5 * NS and NS <= 5
    def ring(slot, t): return vRING + slot * 20 + t * 4
    a.raw(f"; @launch grid=(256,1,1) block=(256,1,1) lds={LDS_BYTES}")
    a.raw('.amdgcn_target "amdgcn-amd-amdhsa--gfx950"')
    a.raw(".text")
    a.raw(f".globl {KN}")
    a.raw(".p2align 8")
    a.raw(f".type {KN},@function")
    a.label(KN)
    if opt.cpf: a("s_getpc_b64 s[94:95]")
    a(f"s_cmp_ge_u32 s{sWG}, 256")
    a("s_cbranch_scc1 L_done")
    a("s_load_dwordx16 s[4:19], s[0:1], 0")
    if opt.prof:
        a(f"s_mem{'time' if opt.prof == 2 else 'realtime'} s[{sP}:{sP+1}]")
    if opt.prof:
        for i in range(1, 15): a(f"s_mov_b32 s{sPROF+i}, 0")
    if not opt.prof:
        a("s_memrealtime s[96:97]")
    a(f"v_lshrrev_b32 v{vT}, 6, v{vTID}")
    a(f"v_and_b32 v{vLANE}, 63, v{vTID}")
    a(f"v_readfirstlane_b32 s{sWAVE}, v{vT}")
    a(f"s_and_b32 s{sXCD}, s{sWG}, 7")
    a(f"s_lshr_b32 s{sJ}, s{sWG}, 3")
    if opt.p1 == 2:
        if opt.pairx:
            assert opt.pf == 0
            a(f"s_add_u32 s{sT1}, s{sXCD}, {opt.pairx - 1}")
            a(f"s_and_b32 s{sT1}, s{sT1}, 3")
            a(f"s_and_b32 s{sT2}, s{sXCD}, 4")
        else:
            a(f"s_lshr_b32 s{sT1}, s{sXCD}, 1")
            a(f"s_and_b32 s{sT2}, s{sXCD}, 1")
            a(f"s_lshl_b32 s{sT2}, s{sT2}, 2")
        a(f"s_mul_i32 s{sT0}, s{sT1}, 7")
        a(f"s_lshr_b32 s{sFT}, s{sJ}, 2")
        a(f"s_add_u32 s{sFT}, s{sFT}, s{sT0}")
        a(f"s_and_b32 s{sT3}, s{sJ}, 3")
        a(f"s_add_u32 s{sDT1}, s{sT2}, s{sT3}")
        if opt.rot8: a(f"s_lshl_b32 s{sROT1}, s{sDT1}, 1")
        else: a(f"s_lshl_b32 s{sROT1}, s{sT3}, 2")
        a(f"s_cmp_eq_u32 s{sT1}, 3")
        a(f"s_cselect_b32 s{sJLIM}, 24, 28")
        a(f"s_lshl_b32 s{sT0}, s{sXCD}, 2")
        a(f"s_sub_u32 s{sT0}, s{sT0}, 28")
        a(f"s_lshl_b32 s{sT3}, s{sXCD}, 3")
        a(f"s_sub_u32 s{sT3}, s{sT3}, 48")
        a(f"s_cselect_b32 s{sIDLE}, s{sT0}, s{sT0}")
        a(f"s_cmp_ge_u32 s{sXCD}, 6")
        a(f"s_cselect_b32 s{sIDLE}, s{sT3}, s{sT0}")
        a(f"s_add_u32 s{sIDLE}, s{sIDLE}, s{sJ}")
    else:
        a(f"s_lshl_b32 s{sT0}, s{sXCD}, 2")
        a(f"s_mul_i32 s{sT1}, s{sXCD}, 3")
        a(f"s_add_u32 s{sT1}, s{sT1}, 3")
        a(f"s_cmp_lt_u32 s{sXCD}, 3")
        a(f"s_cselect_b32 s{sT0}, s{sT0}, s{sT1}")
        a(f"s_cselect_b32 s{sJLIM}, 32, 24")
        a(f"s_lshr_b32 s{sFT}, s{sJ}, 3")
        a(f"s_add_u32 s{sFT}, s{sFT}, s{sT0}")
        a(f"s_and_b32 s{sDT1}, s{sJ}, 7")
        a(f"s_lshl_b32 s{sROT1}, s{sDT1}, 1")
        a(f"s_lshl_b32 s{sIDLE}, s{sXCD}, 3")
        a(f"s_add_u32 s{sIDLE}, s{sIDLE}, s{sJ}")
        a(f"s_sub_u32 s{sIDLE}, s{sIDLE}, 48")
    if opt.rotg1 == 3:
        a(f"s_mul_i32 s{sT0}, s{sFT}, 11")
        a(f"s_lshr_b32 s{sT0}, s{sT0}, 5")
        a(f"s_mul_i32 s{sT0}, s{sT0}, 3")
        a(f"s_sub_u32 s{sT0}, s{sFT}, s{sT0}")
        a(f"s_mul_i32 s{sT0}, s{sT0}, 5")
        a(f"s_add_u32 s{sROT1}, s{sROT1}, s{sT0}")
        a(f"s_and_b32 s{sROT1}, s{sROT1}, 15")
    if opt.rotg1 == 2:
        a(f"s_and_b32 s{sT0}, s{sFT}, 1")
        a(f"s_lshl_b32 s{sT0}, s{sT0}, 3")
        a(f"s_add_u32 s{sROT1}, s{sROT1}, s{sT0}")
        a(f"s_and_b32 s{sROT1}, s{sROT1}, 15")
    if opt.rota1:
        a(f"s_mul_i32 s{sT0}, s{sFT}, {opt.rota1}")
        a(f"s_add_u32 s{sROT1}, s{sROT1}, s{sT0}")
        a(f"s_and_b32 s{sROT1}, s{sROT1}, 15")
    if opt.p2 == 2:
        a(f"s_lshr_b32 s{sT1}, s{sXCD}, 1")
        a(f"s_and_b32 s{sT2}, s{sXCD}, 1")
        a(f"s_lshl_b32 s{sT2}, s{sT2}, 2")
        a(f"s_lshr_b32 s{sT0}, s{sJ}, 2")
        a(f"s_lshl_b32 s{sST}, s{sT1}, 3")
        a(f"s_add_u32 s{sST}, s{sST}, s{sT0}")
        a(f"s_and_b32 s{sT3}, s{sJ}, 3")
        a(f"s_add_u32 s{sDT2}, s{sT2}, s{sT3}")
        if opt.rot8:
            a(f"s_mul_i32 s{sROT2}, s{sDT2}, 7")
            a(f"s_lshr_b32 s{sROT2}, s{sROT2}, 2")
        else:
            a(f"s_mul_i32 s{sROT2}, s{sT3}, 7")
            a(f"s_lshr_b32 s{sROT2}, s{sROT2}, 1")
    else:
        a(f"s_lshr_b32 s{sT0}, s{sJ}, 3")
        a(f"s_lshl_b32 s{sST}, s{sXCD}, 2")
        a(f"s_add_u32 s{sST}, s{sST}, s{sT0}")
        a(f"s_and_b32 s{sDT2}, s{sJ}, 7")
        a(f"s_mul_i32 s{sROT2}, s{sDT2}, 7")
        a(f"s_lshr_b32 s{sROT2}, s{sROT2}, 2")
    if opt.rotg2:
        if opt.rotg2 == 2:
            a(f"s_and_b32 s{sT0}, s{sST}, 1")
            a(f"s_mul_i32 s{sT0}, s{sT0}, 7")
        else:
            a(f"s_mul_i32 s{sT0}, s{sST}, 11")
            a(f"s_lshr_b32 s{sT0}, s{sT0}, 5")
            a(f"s_mul_i32 s{sT0}, s{sT0}, 3")
            a(f"s_sub_u32 s{sT0}, s{sST}, s{sT0}")
            a(f"s_mul_i32 s{sT0}, s{sT0}, 5")
        a(f"s_add_u32 s{sROT2}, s{sROT2}, s{sT0}")
        a(f"s_cmp_ge_u32 s{sROT2}, 14")
        a(f"s_cselect_b32 s{sT0}, 14, 0")
        a(f"s_sub_u32 s{sROT2}, s{sROT2}, s{sT0}")
    if opt.rota2:
        a(f"s_mul_i32 s{sT0}, s{sST}, {opt.rota2}")
        a(f"s_add_u32 s{sROT2}, s{sROT2}, s{sT0}")
        a(f"s_and_b32 s{sT0}, s{sROT2}, 0xff")
        a(f"s_mul_i32 s{sT0}, s{sROT2}, 18725")
        a(f"s_lshr_b32 s{sT0}, s{sT0}, 18")
        a(f"s_mul_i32 s{sT0}, s{sT0}, 14")
        a(f"s_sub_u32 s{sROT2}, s{sROT2}, s{sT0}")
    if not (opt.rot & 1): a(f"s_mov_b32 s{sROT1}, 0")
    if not (opt.rot & 2): a(f"s_mov_b32 s{sROT2}, 0")
    a(f"s_lshl_b32 s{sM0B}, s{sWAVE}, 15")
    a(f"s_lshl_b32 s{sUP}, s{sWAVE}, 13")
    a(f"s_add_u32 s{sUP}, s{sUP}, 131072")
    def tr_addr(base_sgpr):
        t0, t1, t2 = vX, vX + 1, vX + 2
        a(f"v_lshrrev_b32 v{t0}, 4, v{vLANE}")
        a(f"v_and_b32 v{t1}, 1, v{t0}")
        a(f"v_lshlrev_b32 v{t1}, 2, v{t1}")
        a(f"v_bfe_u32 v{t2}, v{vLANE}, 2, 2")
        a(f"v_add_u32 v{t1}, v{t1}, v{t2}")
        a(f"v_lshrrev_b32 v{t0}, 1, v{t0}")
        a(f"v_lshlrev_b32 v{t0}, 10, v{t0}")
        a(f"v_lshlrev_b32 v{t2}, 7, v{t1}")
        a(f"v_add_u32 v{t0}, v{t0}, v{t2}")
        a(f"v_and_b32 v{t2}, 3, v{vLANE}")
        a(f"v_lshlrev_b32 v{t2}, 3, v{t2}")
        a(f"v_add_u32 v{t0}, v{t0}, v{t2}")
        a(f"v_add_u32 v{t0}, s{base_sgpr}, v{t0}")
        a(f"v_lshrrev_b32 v{t1}, 1, v{t1}")
        for t in range(4):
            a(f"v_xor_b32 v{t2}, {t}, v{t1}")
            a(f"v_lshlrev_b32 v{t2}, 5, v{t2}")
            a(f"v_add_u32 v{vTR+t}, v{t0}, v{t2}")
    def w1_dma(i): dma_step(a, sW1, F * 2, sWB, sROT1, i, 16, sM0B, (i % 8) * 4096, f"w1_{i}", "nt" if i < opt.nta else opt.w1bits)
    def w1_stream(first, dp, hold=0):
        retired = 0
        def retire():
            nonlocal retired
            a.wait_vm(f"w1_{retired}")
            if retired: a("s_waitcnt lgkmcnt(0)")
            tr_step(a, vTR, (retired % 8) * 4096, retired)
            retired += 1
        for i in range(first, 16):
            while retired <= i - dp: retire()
            if i >= 8:
                while retired <= i - 8: retire()
                if retired == i - 7: a("s_waitcnt lgkmcnt(0)")
            w1_dma(i)
            if opt.epoll and i == opt.epoll:
                a(f"v_mul_u32_u24 v{vHP}, {opt.hline}, v{vLANE}")
                a(f"s_cmp_lg_u32 s{sWAVE}, {opt.pollw}")
                a("s_cbranch_scc1 L_noepoll")
                a(f"buffer_load_dwordx4 {vr(vPQ,4)}, v{vHP}, {srd(sF)}, 0 offen sc1")
                a.label("L_noepoll")
        while retired < 16 - hold: retire()
        def finish():
            while retired < 16: retire()
            a("s_waitcnt lgkmcnt(0)")
        if not hold: finish()
        return finish
    dma_addr(a, F * 2, sFT)
    a(f"s_mul_i32 s{sWB}, s{sWAVE}, {512*F*2}")
    a.c("LayerNorm: wave w normalises rows 32*ks + 16*(w>>1) + 4*q + 2*(w&1) + (0,1), 32 lanes per row")
    XR, XF, TM = 96, 108, 130
    a(f"s_lshr_b32 s{sT0}, s{sWG}, 2")
    a(f"s_and_b32 s{sT1}, s{sWG}, 3")
    a(f"s_lshl_b32 s{sT2}, s{sT0}, 5")
    a(f"s_lshr_b32 s{sT3}, s{sWAVE}, 1")
    a(f"s_lshl_b32 s{sT3}, s{sT3}, 4")
    a(f"s_add_u32 s{sT2}, s{sT2}, s{sT3}")
    a(f"s_lshl_b32 s{sT3}, s{sT1}, 2")
    a(f"s_add_u32 s{sT2}, s{sT2}, s{sT3}")
    a(f"s_and_b32 s{sT3}, s{sWAVE}, 1")
    a(f"s_lshl_b32 s{sT3}, s{sT3}, 1")
    a(f"s_add_u32 s{sT2}, s{sT2}, s{sT3}")
    a(f"s_mul_i32 s{sT2}, s{sT2}, 1280")
    a(f"v_lshrrev_b32 v{TM}, 5, v{vLANE}")
    a(f"v_and_b32 v{TM+1}, 31, v{vLANE}")
    a(f"v_lshlrev_b32 v{TM+1}, 3, v{TM+1}")
    a(f"v_mul_u32_u24 v{TM+2}, 1280, v{TM}")
    a(f"v_add_u32 v{TM+2}, v{TM+2}, v{TM+1}")
    a(f"v_mov_b32 v{vT}, 0")
    a("s_waitcnt lgkmcnt(0)")
    if opt.prof: a(f"s_mov_b32 s{sPROF}, s{sP}")
    make_srd(a, sD, 16, 256)
    a(f"s_cmp_lg_u32 s{sWG}, 0")
    a("s_cbranch_scc1 L_nononce")
    a(f"s_cmp_lg_u32 s{sWAVE}, 3")
    a("s_cbranch_scc1 L_nononce")
    a(f"s_or_b32 s{sNONCE}, s{sP if opt.prof else 96}, 1")
    a(f"v_mov_b32 v{vT2}, s{sNONCE}")
    a(f"s_mov_b64 s[{sP+2}:{sP+3}], exec")
    a("s_mov_b64 exec, 1")
    a(f"buffer_store_dword v{vT2}, v{vT}, {srd(sD)}, 0 offen sc1")
    a(f"s_mov_b64 exec, s[{sP+2}:{sP+3}]")
    a.label("L_nononce")
    make_srd(a, sX, 4, S * D * 2)
    if opt.xpf:
        a(f"s_and_b32 s{sT3}, s{sWG}, 4")
        a(f"s_cmp_lg_u32 s{sT3}, 0")
        a("s_cbranch_scc1 L_xlate")
        a(f"s_add_u32 s{sT3}, s{sT2}, {32*1280}")
        for i in range(5):
            a(f"buffer_load_dwordx2 {vr(244+2*(i%2),2)}, v{TM+2}, {srd(sX)}, s{sT3} offen offset:{i*256}")
        for i in range(5):
            a(f"buffer_load_dwordx2 {vr(XR+2*i,2)}, v{TM+2}, {srd(sX)}, s{sT2} offen offset:{i*256} {opt.xbits}")
        a("s_branch L_xissued")
        a.label("L_xlate")
        for i in range(5):
            a(f"buffer_load_dwordx2 {vr(XR+2*i,2)}, v{TM+2}, {srd(sX)}, s{sT2} offen offset:{i*256} {opt.xbits if opt.xpf == 2 else ''}")
        a.label("L_xissued")
    else:
        for i in range(5):
            a.vmem(f"buffer_load_dwordx2 {vr(XR+2*i,2)}, v{TM+2}, {srd(sX)}, s{sT2} offen offset:{i*256} {opt.xbits}", "x")
    make_srd(a, sW1, 6, S * F * 2)
    if opt.xbar: a("s_barrier")
    a(f"s_cmp_ge_u32 s{sJ}, s{sJLIM}")
    a("s_cbranch_scc1 L_ln_now1")
    for i in range(opt.nearly): w1_dma(i)
    a.label("L_ln_now1")
    if opt.cpf:
        a(f"s_cmp_lg_u32 s{sWAVE}, 3")
        a("s_cbranch_scc1 L_nocpf")
        a(f"s_lshl_b32 s{sT3}, s{sJ}, 11")
        a(f"v_lshlrev_b32 v{vX}, 4, v{vLANE}")
        a(f"v_add_u32 v{vX}, s{sT3}, v{vX}")
        a(f"v_add_u32 v{vX+1}, 1024, v{vX}")
        for h in range(2):
            a(f"v_min_u32 v{vX+h}, L_codeend-{KN}-36, v{vX+h}")
            a(f"global_load_dwordx4 {vr(240+4*h,4)}, v{vX+h}, s[94:95]")
        a.label("L_nocpf")
    make_srd(a, sH, 18, H_BYTES, WS_H)
    make_srd(a, sF, 18, FLAG_BYTES, WS_FLAG)
    a(f"s_mul_i32 s{sSTEP}, s{sT0}, 40960")
    a(f"s_lshl_b32 s{sT1}, s{sT1}, 8")
    a(f"s_add_u32 s{sSTEP}, s{sSTEP}, s{sT1}")
    a(f"s_lshl_b32 s{sT3}, s{sWAVE}, 1")
    a(f"v_add_u32 v{TM+4}, s{sT3}, v{TM}")
    a(f"v_mul_u32_u24 v{TM+4}, {LN_ROW}, v{TM+4}")
    a(f"v_add_u32 v{TM+4}, v{TM+4}, v{TM+1}")
    a(f"v_add_u32 v{TM+4}, {LN_BASE}, v{TM+4}")
    a(f"s_mul_i32 s{sT3}, s{sWAVE}, 12")
    a(f"s_cmp_eq_u32 s{sWAVE}, 3")
    a(f"s_cselect_b32 s{sT3}, 32, s{sT3}")
    a(f"v_lshrrev_b32 v{TM+6}, 4, v{vLANE}")
    a(f"v_add_u32 v{TM+6}, s{sT3}, v{TM+6}")
    a(f"v_bfe_u32 v{TM+5}, v{vLANE}, 2, 2")
    a(f"v_mul_u32_u24 v{TM+5}, {LN_ROW}, v{TM+5}")
    a(f"v_lshlrev_b32 v{TM+7}, 5, v{TM+6}")
    a(f"v_add_u32 v{TM+5}, v{TM+5}, v{TM+7}")
    a(f"v_and_b32 v{TM+7}, 3, v{vLANE}")
    a(f"v_lshlrev_b32 v{TM+7}, 3, v{TM+7}")
    a(f"v_add_u32 v{TM+5}, v{TM+5}, v{TM+7}")
    a(f"v_add_u32 v{TM+5}, {LN_BASE}, v{TM+5}")
    a(f"v_lshlrev_b32 v{TM+6}, 10, v{TM+6}")
    a(f"v_and_b32 v{TM+7}, 15, v{vLANE}")
    a(f"v_lshlrev_b32 v{TM+7}, 4, v{TM+7}")
    a(f"v_add_u32 v{TM+6}, v{TM+6}, v{TM+7}")
    tr_addr(sM0B)
    a(f"s_mov_b32 s{sT0}, 0xffff0000")
    nc = 2 if opt.cpf else 0
    a(f"s_cmp_ge_u32 s{sJ}, s{sJLIM}")
    a("s_cbranch_scc1 L_ln_idle")
    a(f"s_cmp_eq_u32 s{sWAVE}, 3")
    a("s_cbranch_scc1 L_ln_w3")
    a(f"s_waitcnt vmcnt({4*opt.nearly})")
    a("s_branch L_ln_go")
    a.label("L_ln_w3")
    a(f"s_waitcnt vmcnt({4*opt.nearly + nc})")
    a("s_branch L_ln_go")
    a.label("L_ln_idle")
    a(f"s_cmp_eq_u32 s{sWAVE}, 3")
    a("s_cbranch_scc1 L_ln_idle3")
    a("s_waitcnt vmcnt(0)")
    a("s_branch L_ln_go")
    a.label("L_ln_idle3")
    a(f"s_waitcnt vmcnt({nc})")
    a.label("L_ln_go")
    stamp(a, opt, 1)
    jitter(a, opt, 1)
    nmid = [opt.nearly]
    def mid_step(tag):
        if nmid[0] < opt.nearly + opt.nmid:
            a(f"s_cmp_ge_u32 s{sJ}, s{sJLIM}")
            a(f"s_cbranch_scc1 L_mid_{tag}")
            w1_dma(nmid[0]); nmid[0] += 1
            a.label(f"L_mid_{tag}")
    if opt.unsafe & 2: a(f"buffer_load_dword v{vPOLL}, v{vT}, {srd(sD)}, 0 offen sc1")
    mid_step("a")
    for i in range(10):
        a(f"v_lshlrev_b32 v{XF+2*i}, 16, v{XR+i}")
        a(f"v_and_b32 v{XF+2*i+1}, s{sT0}, v{XR+i}")
    SM = TM + 8
    a(f"v_pk_add_f32 {vr(SM,2)}, {vr(XF,2)}, {vr(XF+4,2)}")
    a(f"v_pk_add_f32 {vr(SM+2,2)}, {vr(XF+2,2)}, {vr(XF+6,2)}")
    for i in range(4, 10):
        k = i % 2
        a(f"v_pk_add_f32 {vr(SM+2*k,2)}, {vr(SM+2*k,2)}, {vr(XF+2*i,2)}")
    def reduce_row(dst):
        a(f"v_pk_add_f32 {vr(SM,2)}, {vr(SM,2)}, {vr(SM+2,2)}")
        a(f"v_add_f32 v{dst}, v{SM}, v{SM+1}")
        for rot in (8, 4, 2, 1):
            a("s_nop 1")
            a(f"v_add_f32_dpp v{dst}, v{dst}, v{dst} row_ror:{rot} row_mask:0xf bank_mask:0xf")
        a(f"v_mov_b32 v{SM}, v{dst}")
        a("s_nop 1")
        a(f"v_permlane16_swap_b32 v{dst}, v{SM}")
        a("s_nop 1")
        a(f"v_add_f32 v{dst}, v{dst}, v{SM}")
    MN = TM + 12
    reduce_row(MN)
    mid_step("b")
    a(f"v_mul_f32 v{MN}, {f2h(1.0/640.0)}, v{MN}")
    a(f"v_mov_b32 v{MN+1}, v{MN}")
    for i in range(10):
        a(f"v_pk_add_f32 {vr(XF+2*i,2)}, {vr(XF+2*i,2)}, {vr(MN,2)} neg_lo:[0,1] neg_hi:[0,1]")
    for k in range(2):
        a(f"v_pk_mul_f32 {vr(SM+2*k,2)}, {vr(XF+2*k,2)}, {vr(XF+2*k,2)}")
    for i in range(2, 10):
        k = i % 2
        a(f"v_pk_fma_f32 {vr(SM+2*k,2)}, {vr(XF+2*i,2)}, {vr(XF+2*i,2)}, {vr(SM+2*k,2)}")
    reduce_row(MN)
    mid_step("c")
    a(f"v_mov_b32 v{MN+1}, {f2h(1e-5)}")
    a(f"v_fmac_f32 v{MN+1}, {f2h(1.0/640.0)}, v{MN}")
    a(f"v_rsq_f32 v{MN}, v{MN+1}")
    a("s_nop 0")
    a(f"v_mov_b32 v{MN+1}, v{MN}")
    for i in range(10):
        a(f"v_pk_mul_f32 {vr(XF+2*i,2)}, {vr(XF+2*i,2)}, {vr(MN,2)}")
    for i in range(10):
        a(f"v_cvt_pk_bf16_f32 v{XR+i}, v{XF+2*i}, v{XF+2*i+1}")
    for i in range(5):
        a(f"ds_write_b64 v{TM+4}, {vr(XR+2*i,2)} offset:{i*256}")
    a("s_waitcnt lgkmcnt(0)")
    if opt.unsafe & 2:
        a("s_waitcnt vmcnt(0)")
        a(f"v_readfirstlane_b32 s{sNONCE}, v{vPOLL}")
        nonce_spin(a, opt)
    a("s_barrier")
    for i in range(2):
        a(f"ds_read_b64_tr_b16 {vr(XF+4*i,2)}, v{TM+5} offset:{i*128}")
        a(f"ds_read_b64_tr_b16 {vr(XF+4*i+2,2)}, v{TM+5} offset:{i*128+4*LN_ROW}")
    a(f"s_cmp_ge_u32 s{sWAVE}, 2")
    a("s_cbranch_scc1 L_ln_two")
    a(f"ds_read_b64_tr_b16 {vr(XF+8,2)}, v{TM+5} offset:{2*128}")
    a(f"ds_read_b64_tr_b16 {vr(XF+10,2)}, v{TM+5} offset:{2*128+4*LN_ROW}")
    a("s_waitcnt lgkmcnt(0)")
    a(f"s_add_u32 s{sT0}, s{sSTEP}, {2*4096}")
    a(f"buffer_store_dwordx4 {vr(XF+8,4)}, v{TM+6}, {srd(sH)}, s{sT0} offen {opt.hbits}")
    a.label("L_ln_two")
    a("s_waitcnt lgkmcnt(0)")
    for i in range(2):
        a(f"s_add_u32 s{sT0}, s{sSTEP}, {i*4096}")
        a(f"buffer_store_dwordx4 {vr(XF+4*i,4)}, v{TM+6}, {srd(sH)}, s{sT0} offen {opt.hbits}")
    if not (opt.unsafe & 2): a(f"buffer_load_dword v{vPOLL}, v{vT}, {srd(sD)}, 0 offen sc1")
    stamp(a, opt, 2)
    if opt.unsafe & 2:
        a("s_barrier")
        a(f"s_cmp_lg_u32 s{sWAVE}, 0")
        a("s_cbranch_scc1 L_noflag0")
        a(f"s_lshl_b32 s{sT0}, s{sWG}, 2")
        flag_store(a, sT0)
        a.label("L_noflag0")
    a(f"s_cmp_ge_u32 s{sJ}, s{sJLIM}")
    a("s_cbranch_scc1 L_ln_idle2")
    ne = opt.nearly + opt.nmid
    a.vm = [f"w1_{i}" for i in range(ne)]
    for i in range(ne, ne + opt.npost): w1_dma(i)
    if not (opt.unsafe & 2): a(f"s_waitcnt vmcnt({4*opt.npost})")
    a("s_branch L_ln_go2")
    a.label("L_ln_idle2")
    if not (opt.unsafe & 2): a("s_waitcnt vmcnt(0)")
    a.label("L_ln_go2")
    if not (opt.unsafe & 2):
        a(f"v_readfirstlane_b32 s{sNONCE}, v{vPOLL}")
        nonce_spin(a, opt)
        a("s_barrier")
        a(f"s_cmp_lg_u32 s{sWAVE}, 0")
        a("s_cbranch_scc1 L_noflag")
        a(f"s_lshr_b32 s{sT0}, s{sWG}, 2")
        a(f"s_mul_i32 s{sT0}, s{sT0}, {opt.hline}")
        a(f"s_and_b32 s{sT1}, s{sWG}, 3")
        a(f"s_lshl_b32 s{sT1}, s{sT1}, 2")
        a(f"s_add_u32 s{sT0}, s{sT0}, s{sT1}")
        keep = list(a.vm)
        flag_store(a, sT0)
        a.vm = keep
        a.label("L_noflag")
    stamp(a, opt, 3)
    a(f"s_cmp_ge_u32 s{sJ}, s{sJLIM}")
    a("s_cbranch_scc1 L_nogemm1")
    w1_finish = w1_stream(opt.nearly + opt.nmid + opt.npost, opt.dp, opt.hold1)

    def common_setup(retr=True):
        make_srd(a, sH, 18, H_BYTES, WS_H)
        make_srd(a, sF, 18, FLAG_BYTES, WS_FLAG)
        make_srd(a, sB1, 8, F * 2)
        make_srd(a, sW2, 10, F * S * 2)
        make_srd(a, sB2, 12, S * 2)
        make_srd(a, sO, 14, S * D * 2)
        make_srd(a, sG, 18, G_BYTES, WS_G)
        a(f"v_lshrrev_b32 v{vT}, 4, v{vLANE}")
        a(f"v_lshlrev_b32 v{vT}, 3, v{vT}")
        a(f"s_and_b32 s{sT0}, s{sWAVE}, 1")
        a(f"s_lshl_b32 s{sT0}, s{sT0}, 6")
        a(f"s_lshl_b32 s{sT1}, s{sFT}, 7")
        a(f"s_add_u32 s{sT0}, s{sT0}, s{sT1}")
        a.vmem(f"buffer_load_dwordx2 {vr(vB1,2)}, v{vT}, {srd(sB1)}, s{sT0} offen", "b")
        a.vmem(f"buffer_load_dwordx2 {vr(vB1+2,2)}, v{vT}, {srd(sB1)}, s{sT0} offen offset:32", "b")
        a(f"v_and_b32 v{vT}, 15, v{vLANE}")
        a(f"v_lshlrev_b32 v{vT}, 1, v{vT}")
        a(f"s_lshl_b32 s{sT0}, s{sST}, 7")
        a(f"s_lshl_b32 s{sT1}, s{sWAVE}, 5")
        a(f"s_add_u32 s{sT0}, s{sT0}, s{sT1}")
        a.vmem(f"buffer_load_ushort v{vB2}, v{vT}, {srd(sB2)}, s{sT0} offen", "b")
        dma_addr(a, S * 2, sST)
        a(f"s_mul_i32 s{sWB}, s{sWAVE}, {448*S*2}")
        if retr: tr_addr(sM0B)
        a(f"s_sub_u32 s{sT0}, s{sUP}, s{sM0B}")
        for t in range(4):
            a(f"v_add_u32 v{vTRU+t}, s{sT0}, v{vTR+t}")
        a(f"v_lshlrev_b32 v{vL0}, 4, v{vLANE}")
        a(f"v_add_u32 v{vL1}, 65536, v{vL0}")
        a(f"v_add_u32 v{vL2}, 131072, v{vL0}")

    a.label("L_w1_ready")
    stamp(a, opt, 4)
    jitter(a, opt, 2)
    vm_keep = list(a.vm)
    common_setup(retr=False)
    a(f"s_mul_i32 s{sT0}, s{sDT1}, 5120")
    a(f"v_add_u32 v{vA}, s{sT0}, v{vL0}")
    a(f"v_add_u32 v{vA2}, 4096, v{vA}")
    a(f"s_cmp_lg_u32 s{sWAVE}, {opt.pollw}")
    a("s_cbranch_scc1 L_hpolled")
    if opt.epoll:
        a(f"s_waitcnt vmcnt({4*(15 - opt.epoll) + 3})")
        poll_check(a, 4, None, "L_hpolled")
    if opt.pipe & 1:
        a("s_waitcnt vmcnt(0)")
        poll_pipe(a, opt, vHP, None, opt.gap)
    else:
        poll(a, opt, vHP, 4, None, opt.sleeph, opt.preh, 1)
    a.label("L_hpolled")
    a.vm = vm_keep + ["b", "b", "b"]
    a("s_barrier")
    stamp(a, opt, 5)

    def a_loads(srdn, step, nsteps, s_rot):
        slot = step % NS
        step_off(a, sOFF, sSTEP, s_rot, step, nsteps, 40960)
        return [f"buffer_load_dwordx4 {vr(ring(slot,t),4)}, v{vA if t < 4 else vA2}, {srd(srdn)}, s{sOFF} offen offset:{(t*1024) if t < 4 else 0} {opt.abits}" for t in range(5)]

    def main_loop(srdn, nsteps, s_rot, tagp, mfma, stamp0, tail, nuni, pre=None):
        def load(n):
            st, o = divmod(n, 5)
            if st >= nsteps: return
            if o == 0: step_off(a, sOFF, sSTEP, s_rot, st, nsteps, 40960)
            a.vmem(f"buffer_load_dwordx4 {vr(ring(st % NS, o),4)}, v{vA if o < 4 else vA2}, {srd(srdn)}, s{sOFF} offen "
                   f"offset:{(o*1024) if o < 4 else 0} {opt.abits}", f"{tagp}{st}_{o}")
        for n in range(opt.dist): load(n)
        if pre: pre()
        for st in range(nuni):
            for o in range(5):
                n = 5 * st + o
                if opt.fine == 1: load(n + opt.dist)
                a.wait_vm(f"{tagp}{st}_{o}")
                if n == 0 and stamp0 is not None: stamp(a, opt, stamp0)
                if opt.fine == 2: load(n + opt.dist)
                for i in range(4): mfma(st, o, i, st % NS)
                if tail: tail(st, o)
        assert 5 * nuni - 1 + opt.dist >= 5 * nsteps - 1, "loads left for the tail"

    def tile_tail(nsteps, tagp, first, last, frag_of, mfma_tile, write_tile, extra):
        ic = [0]
        done_at = {}
        queue = []
        extra = list(extra)
        def emit(fn):
            fn(); ic[0] += 1
        def filler():
            if queue and ic[0] - done_at[queue[0]] >= 9:
                t = queue.pop(0); emit(lambda: write_tile(t)); return
            if extra: emit(extra.pop(0))
        tiles = list(first) + list(last)
        for i in range(0, len(tiles), 2):
            pair = tiles[i:i + 2]
            for t in pair:
                for st in (nsteps - 2, nsteps - 1): a.wait_vm(f"{tagp}{st}_{frag_of(t)}")
            for st in (nsteps - 2, nsteps - 1):
                for t in pair:
                    emit(lambda: mfma_tile(st, t))
                    if st == nsteps - 1:
                        done_at[t] = ic[0]
                        if t in first: queue.append(t)
                    filler()
        while extra: emit(extra.pop(0))
        while queue:
            while ic[0] - done_at[queue[0]] < 9: emit(lambda: a("s_nop 0"))
            t = queue.pop(0); emit(lambda: write_tile(t))

    a(f"s_mul_i32 s{sSTEP}, s{sWAVE}, {16*40960}")
    def mfma1(st, nt, mt, slot):
        c = "0" if st == 0 else vr(acc1(mt, nt), 4)
        a(f"v_mfma_f32_16x16x32_bf16 {vr(acc1(mt,nt),4)}, {ar(wfrag(st,mt),4)}, {vr(ring(slot,nt),4)}, {c}")
    parts13 = w2_dma_parts(a, 0) if opt.t13 else []
    def tail1(st, o):
        if st == 13 and parts13:
            if o == 0: parts13[0]()
            else: parts13[o]()
    main_loop(sH, 16, sROT1, "h", mfma1, 6, tail1, 14, w1_finish if opt.hold1 else None)

    a(f"s_mov_b32 s100, {f2h(C1)}"); a(f"s_mov_b32 s101, {f2h(C1)}")
    a(f"v_mov_b32 v{vC0}, {f2h(C0)}"); a(f"v_mov_b32 v{vC0+1}, {f2h(C0)}")
    def lds_ref(addr):
        if addr < 65536: return vL0, addr
        if addr < 131072: return vL1, addr - 65536
        return vL2, addr - 131072
    def owner1(p, nt): return p + (0 if nt < 3 else 2)
    units = [(p, nt) for p in range(2) for nt in range(5)]
    def red1_addr(src, u):
        k = [x for x in units if owner1(*x) != src].index(u)
        return src * 32768 + 24576 + k * 2048 if k < 4 else 131072 + src * 8192 + (k - 4) * 2048
    saved_vm = list(a.vm)
    for w in range(4):
        if w < 3:
            a(f"s_cmp_lg_u32 s{sWAVE}, {w}")
            a(f"s_cbranch_scc1 L_ep1_{w+1}")
        a.vm = list(saved_vm)
        nis = [1 if opt.t13 else 0]
        def more(n, limit):
            for _ in range(n):
                if nis[0] < limit:
                    w2_dma(a, nis[0]); nis[0] += 1
        tl = [(2 * p + hf, nt) for nt in range(5) for p in range(2) for hf in range(2)]
        first = [t for t in tl if owner1(t[0] // 2, t[1]) != w]
        last = [t for t in tl if owner1(t[0] // 2, t[1]) == w]
        def wr1(t):
            vb, off = lds_ref(red1_addr(w, (t[0] // 2, t[1])) + (t[0] & 1) * 1024)
            a(f"ds_write_b128 v{vb}, {vr(acc1(*t),4)} offset:{off}")
        extra = []
        for _ in range(opt.tt):
            extra += w2_dma_parts(a, nis[0]); nis[0] += 1
        tile_tail(16, "h", first, last, lambda t: t[1], lambda st, t: mfma1(st, t[1], t[0], st % NS), wr1, extra)
        stamp(a, opt, 7)
        jitter(a, opt, 3)
        more(opt.e1, 6)
        a("s_waitcnt lgkmcnt(0)")
        a("s_barrier")
        own_u = [u for u in units if owner1(*u) == w]
        RT = vRING
        n = 0
        for u in own_u:
            for src in range(4):
                if src == w: continue
                for hf in range(2):
                    vb, off = lds_ref(red1_addr(src, u) + hf * 1024)
                    a(f"ds_read_b128 {vr(RT + n*4, 4)}, v{vb} offset:{off}")
                    n += 1
        a.wait_vm("b")
        for i in range(4):
            a(f"v_lshlrev_b32 v{BI+2*i}, 16, v{vB1+i}")
            a(f"v_and_b32 v{BI+2*i+1}, 0xffff0000, v{vB1+i}")
        for u in own_u:
            p, nt = u
            for hf in range(2):
                r = acc1(2*p+hf, nt)
                a(f"v_pk_add_f32 {vr(r,2)}, {vr(r,2)}, {vr(BI+4*hf,2)}")
                a(f"v_pk_add_f32 {vr(r+2,2)}, {vr(r+2,2)}, {vr(BI+4*hf+2,2)}")
        n = 0
        tot = len(own_u) * 6
        for u in own_u:
            p, nt = u
            for si in range(3):
                for hf in range(2):
                    a(f"s_waitcnt lgkmcnt({min(15, tot - n - 1)})")
                    r = acc1(2*p+hf, nt)
                    a(f"v_pk_add_f32 {vr(r,2)}, {vr(r,2)}, {vr(RT+n*4,2)}")
                    a(f"v_pk_add_f32 {vr(r+2,2)}, {vr(r+2,2)}, {vr(RT+n*4+2,2)}")
                    n += 1
        a("s_barrier")
        regs = []
        for u in own_u:
            p, nt = u
            for hf in range(2):
                r = acc1(2*p+hf, nt)
                regs += [r, r + 2]
        more(opt.e2, 10)
        gelu_pairs(a, regs, RT, fill=lambda: more(opt.e3, 10))
        a(f"s_lshl_b32 s{sT0}, s{sFT}, 1")
        a(f"s_add_u32 s{sT0}, s{sT0}, {w & 1}")
        a(f"s_mul_i32 s{sT0}, s{sT0}, 40960")
        a(f"s_mul_i32 s{sT1}, s{sDT1}, 5120")
        a(f"s_add_u32 s{sT0}, s{sT0}, s{sT1}")
        for i, u in enumerate(own_u):
            p, nt = u
            o = RT + 64 + 4 * i
            r0, r1 = acc1(2*p, nt), acc1(2*p+1, nt)
            a(f"v_cvt_pk_bf16_f32 v{o}, v{r0}, v{r0+1}")
            a(f"v_cvt_pk_bf16_f32 v{o+1}, v{r0+2}, v{r0+3}")
            a(f"v_cvt_pk_bf16_f32 v{o+2}, v{r1}, v{r1+1}")
            a(f"v_cvt_pk_bf16_f32 v{o+3}, v{r1+2}, v{r1+3}")
            a(f"s_add_u32 s{sT1}, s{sT0}, {nt*1024}")
            a.vmem(f"buffer_store_dwordx4 {vr(o,4)}, v{vL0}, {srd(sG)}, s{sT1} offen {opt.gbits}", "g")
        stamp(a, opt, 8)
        jitter(a, opt, 4)
        def g_flag():
            a(f"s_lshl_b32 s{sT0}, s{sDT1}, 5")
            a(f"s_add_u32 s{sT0}, s{sT0}, s{sFT}")
            a(f"s_mul_i32 s{sT0}, s{sT0}, {opt.gstride}")
            a(f"s_add_u32 s{sT0}, s{sT0}, {FLAG_G + 4*w}")
            flag_store(a, sT0, sector=bool(opt.gsec and opt.gwg))
            stamp(a, opt, 9)
        if opt.unsafe & 1:
            a("s_barrier")
            if w == 0:
                keep = list(a.vm); g_flag(); a.vm = keep
        more(opt.nb, 10)
        def tr_first4():
            a.wait_vm("w2_3")
            for st in range(4):
                w2_tr(a, st)
                if st % 2 == 1: a("s_waitcnt lgkmcnt(0)")
        if not opt.flagfirst: tr_first4()
        if not (opt.unsafe & 1):
            a.wait_vm("g")
            if opt.gwg:
                a("s_barrier")
                if w == 0:
                    keep = list(a.vm); g_flag(); a.vm = keep
            else:
                g_flag()
        if opt.flagfirst:
            more(max(0, 4 - nis[0]), 10)
            more(opt.nb3, 10)
            tr_first4()
        assert nis[0] >= 4
        more(10, 10)
        more(4, 14)
        for st in range(4, 10):
            a.wait_vm(f"w2_{st}")
            w2_tr(a, st)
            if st % 2 == 1: a("s_waitcnt lgkmcnt(0)")
        a("s_branch L_pre2")
        if w < 3: a.label(f"L_ep1_{w+1}")

    a.label("L_nogemm1")
    a.vm = []
    common_setup()
    if False:
        a(f"s_lshl_b32 s{sT0}, s{sWAVE}, 6")
        a(f"v_add_u32 v{vX}, s{sT0}, v{vLANE}")
        a(f"v_mul_u32_u24 v{vX}, {opt.hstride}, v{vX}")
        poll(a, opt, vX, 2, None)
        if opt.idlewait > 1:
            a(f"s_sleep {opt.idlewait}")
    if opt.pf == 3:
        a(f"s_lshl_b32 s{sT0}, s{sIDLE}, 2")
        a(f"s_add_u32 s{sT0}, s{sT0}, s{sWAVE}")
        a(f"s_lshl_b32 s{sT0}, s{sT0}, 10")
        for k in range(44):
            o = vRING + (k % 16) * 4
            a.vmem(f"buffer_load_dwordx4 {vr(o,4)}, v{vL0}, {srd(sW2)}, s{sT0} offen {opt.pfbits}", f"pf{k}")
            a(f"s_add_u32 s{sT0}, s{sT0}, {160*1024}")
            if k >= opt.pfdepth: a.wait_vm(f"pf{k-opt.pfdepth}")
        a.wait_vm0()
    if opt.pf == 2:
        assert opt.p1 == 2 and opt.p2 == 1
        a(f"s_cmp_lt_u32 s{sJ}, 28")
        a("s_cbranch_scc1 L_nopf")
        a(f"s_sub_u32 s{sT0}, s{sJ}, 28")
        a(f"s_lshl_b32 s{sT0}, s{sT0}, 2")
        a(f"s_add_u32 s{sT0}, s{sT0}, s{sWAVE}")
        a(f"s_lshl_b32 s{sT0}, s{sT0}, 13")
        a(f"s_lshl_b32 s{sT1}, s{sXCD}, 9")
        a(f"s_add_u32 s{sT0}, s{sT0}, s{sT1}")
        a(f"v_lshrrev_b32 v{vX}, 5, v{vLANE}")
        a(f"v_lshlrev_b32 v{vX}, 12, v{vX}")
        a(f"v_and_b32 v{vX+1}, 31, v{vLANE}")
        a(f"v_lshlrev_b32 v{vX+1}, 4, v{vX+1}")
        a(f"v_add_u32 v{vX}, v{vX}, v{vX+1}")
        keep = list(a.vm)
        for k in range(54):
            o = vRING + (k % 16) * 4
            a.vmem(f"buffer_load_dwordx4 {vr(o,4)}, v{vX}, {srd(sW2)}, s{sT0} offen", f"pf{k}")
            a(f"s_add_u32 s{sT0}, s{sT0}, {16*8192}")
            if k >= opt.pfdepth: a.wait_vm(f"pf{k-opt.pfdepth}")
        a.wait_vm0()
        a.label("L_nopf")
        a.vm = keep
    for st in range(10): w2_dma(a, st)
    for st in range(4):
        a.wait_vm(f"w2_{st}")
        w2_tr(a, st)
        if st % 2 == 1: a("s_waitcnt lgkmcnt(0)")
    for st in range(10, 14): w2_dma(a, st)
    for st in range(4, 10):
        a.wait_vm(f"w2_{st}")
        w2_tr(a, st)
        if st % 2 == 1: a("s_waitcnt lgkmcnt(0)")

    if opt.idle1:
        a("s_waitcnt vmcnt(0)")
        a(f"s_cmp_lg_u32 s{sWAVE}, {opt.pollw}")
        a("s_cbranch_scc1 L_idle1")
        a(f"s_lshl_b32 s{sT0}, s{sDT2}, 5")
        a(f"s_add_u32 s{sT0}, s{sT0}, {opt.idle1ft}")
        a(f"s_mul_i32 s{sT0}, s{sT0}, {opt.gstride}")
        a(f"s_add_u32 s{sT0}, s{sT0}, {FLAG_G}")
        a(f"v_mov_b32 v{vX}, s{sT0}")
        poll(a, opt, vX, 1, None, opt.idle1)
        a.label("L_idle1")
    a.label("L_pre2")
    a(f"s_mul_i32 s{sT0}, s{sDT2}, 5120")
    a(f"v_add_u32 v{vA}, s{sT0}, v{vL0}")
    a(f"v_add_u32 v{vA2}, 4096, v{vA}")
    def w2_finish():
        a.wait_vm("w2all")
        a("s_waitcnt lgkmcnt(0)")
        for st in range(10, 14):
            w2_tr(a, st)
            if st % 2 == 1: a("s_waitcnt lgkmcnt(0)")
    if not opt.hold2:
        a.vm = ["w2all"]
        w2_finish()
    stamp(a, opt, 10)
    if opt.onepoll & 2:
        a(f"s_cmp_lg_u32 s{sWAVE}, {opt.pollw}")
        a("s_cbranch_scc1 L_gpolled")
        a(f"s_lshl_b32 s{sT0}, s{sDT2}, 5")
        a(f"s_mul_i32 s{sT0}, s{sT0}, {opt.gstride}")
        a(f"s_add_u32 s{sT0}, s{sT0}, {FLAG_G}")
        a(f"v_mul_u32_u24 v{vX}, {opt.gstride}, v{vLANE}")
        a(f"v_add_u32 v{vX}, s{sT0}, v{vX}")
        a(f"s_mov_b32 s{sP+2}, 0x7ffffff")
        a(f"s_mov_b32 s{sP+3}, 0")
        if opt.pipe & 2:
            a("s_waitcnt vmcnt(0)")
            poll_pipe(a, opt, vX, sP + 2, opt.gap, 1 if opt.gwg else 4)
        else:
            poll(a, opt, vX, 1 if opt.gwg else 4, sP + 2, opt.sleep, opt.preg)
        a.label("L_gpolled")
        a("s_barrier")
    else:
        a(f"s_lshl_b32 s{sT0}, s{sDT2}, 5")
        a(f"s_mul_i32 s{sT1}, s{sWAVE}, 7")
        a(f"s_add_u32 s{sT0}, s{sT0}, s{sT1}")
        a(f"s_mul_i32 s{sT0}, s{sT0}, {opt.gstride}")
        a(f"s_add_u32 s{sT0}, s{sT0}, {FLAG_G}")
        a(f"v_mul_u32_u24 v{vX}, {opt.gstride}, v{vLANE}")
        a(f"v_add_u32 v{vX}, s{sT0}, v{vX}")
        a(f"s_cmp_eq_u32 s{sWAVE}, 3")
        a(f"s_cselect_b32 s{sP+2}, 0x3f, 0x7f")
        a(f"s_mov_b32 s{sP+3}, 0")
        poll(a, opt, vX, 4, sP + 2, opt.sleep, opt.preg)
    a.vm = ["w2all"] if opt.hold2 else []
    stamp(a, opt, 11)
    a(f"s_mul_i32 s{sSTEP}, s{sWAVE}, {14*40960}")
    def mfma2(st, mt, nt, slot):
        c = "0" if st == 0 else vr(acc2(mt, nt), 4)
        a(f"v_mfma_f32_16x16x32_bf16 {vr(acc2(mt,nt),4)}, {vr(ring(slot,mt),4)}, {ar(wfrag(st,nt),4)}, {c}")
    main_loop(sG, 14, sROT2, "g", mfma2, 12, None, 12, w2_finish if opt.hold2 else None)
    saved_vm2 = list(a.vm)
    a(f"v_and_b32 v{vT}, 15, v{vLANE}")
    a(f"s_lshl_b32 s{sT0}, s{sWAVE}, 4")
    a(f"v_add_u32 v{vT}, s{sT0}, v{vT}")
    a(f"v_mul_u32_u24 v{vA}, 1280, v{vT}")
    a(f"v_lshrrev_b32 v{vT}, 4, v{vLANE}")
    a(f"v_lshlrev_b32 v{vT}, 3, v{vT}")
    a(f"v_add_u32 v{vA}, v{vA}, v{vT}")
    a(f"s_mul_i32 s{sT0}, s{sST}, {64*1280}")
    a(f"s_mul_i32 s{sT1}, s{sDT2}, 160")
    a(f"s_add_u32 s{sOFF}, s{sT0}, s{sT1}")
    a(f"v_lshlrev_b32 v{vC0}, 16, v{vB2}")
    a(f"v_lshlrev_b32 v{vC0+1}, 16, v{vB2}")
    a(f"v_sub_u32 v{vA2}, v{vA}, v{vT}")
    a(f"v_bfe_u32 v{vT}, v{vLANE}, 4, 1")
    a(f"v_lshlrev_b32 v{vT}, 5, v{vT}")
    a(f"v_add_u32 v{vA2}, v{vA2}, v{vT}")
    a(f"v_bfe_u32 v{vT}, v{vLANE}, 5, 1")
    a(f"v_lshlrev_b32 v{vT}, 4, v{vT}")
    a(f"v_add_u32 v{vA2}, v{vA2}, v{vT}")
    def red2_addr(src, nt, mt):
        k = [x for x in range(4) if x != src].index(nt)
        return src * 32768 + (k * 5 + mt) * 1024
    for w in range(4):
        if w < 3:
            a(f"s_cmp_lg_u32 s{sWAVE}, {w}")
            a(f"s_cbranch_scc1 L_ep2_{w+1}")
        a.vm = list(saved_vm2)
        tl = [(mt, nt) for mt in range(5) for nt in range(4)]
        def wr2(t):
            vb, off = lds_ref(red2_addr(w, t[1], t[0]))
            a(f"ds_write_b128 v{vb}, {vr(acc2(*t),4)} offset:{off}")
        tile_tail(14, "g", [t for t in tl if t[1] != w], [t for t in tl if t[1] == w], lambda t: t[0],
                  lambda st, t: mfma2(st, t[0], t[1], st % NS), wr2, [])
        stamp(a, opt, 13)
        jitter(a, opt, 5)
        a("s_waitcnt lgkmcnt(0)")
        a("s_barrier")
        RT = vRING
        def read_partials(order):
            n = 0
            for mt in order:
                for src in range(4):
                    if src == w: continue
                    vb, off = lds_ref(red2_addr(src, w, mt))
                    a(f"ds_read_b128 {vr(RT+n*4,4)}, v{vb} offset:{off}")
                    n += 1
        def finish_tiles(single):
            n = 0
            paired = [m for m in range(5) if m != single]
            order = ([single] + paired) if opt.sfirst else list(range(5))
            read_partials(order)
            for mt in order:
                r = acc2(mt, w)
                for si in range(3):
                    a(f"s_waitcnt lgkmcnt({14 - n})")
                    a(f"v_pk_add_f32 {vr(r,2)}, {vr(r,2)}, {vr(RT+n*4,2)}")
                    a(f"v_pk_add_f32 {vr(r+2,2)}, {vr(r+2,2)}, {vr(RT+n*4+2,2)}")
                    n += 1
                a(f"v_pk_add_f32 {vr(r,2)}, {vr(r,2)}, {vr(vC0,2)}")
                a(f"v_pk_add_f32 {vr(r+2,2)}, {vr(r+2,2)}, {vr(vC0,2)}")
                if mt == single: o = RT + 72
                else: o = RT + 64 + 2 * paired.index(mt)
                a(f"v_cvt_pk_bf16_f32 v{o}, v{r}, v{r+1}")
                a(f"v_cvt_pk_bf16_f32 v{o+1}, v{r+2}, v{r+3}")
                if not opt.wide or mt == single:
                    a(f"buffer_store_dwordx2 {vr(o,2)}, v{vA}, {srd(sO)}, s{sOFF} offen offset:{mt*32} {opt.obits1}")
                elif paired.index(mt) % 2 == 1:
                    a("s_nop 1")
                    a(f"v_permlane16_swap_b32 v{o-2}, v{o}")
                    a(f"v_permlane16_swap_b32 v{o-1}, v{o+1}")
                    a(f"buffer_store_dwordx4 {vr(o-2,4)}, v{vA2}, {srd(sO)}, s{sOFF} offen offset:{(mt-1)*32} {opt.obits}")
        if opt.align64:
            a(f"s_and_b32 s{sT0}, s{sDT2}, 1")
            a(f"s_cmp_lg_u32 s{sT0}, 0")
            a(f"s_cbranch_scc1 L_odd_{w}")
            finish_tiles(4)
            a("s_branch L_fin")
            a.label(f"L_odd_{w}")
            finish_tiles(0)
        else:
            finish_tiles(4)
        a("s_branch L_fin")
        if w < 3: a.label(f"L_ep2_{w+1}")
    a.label("L_fin")
    if opt.probe >= 0:
        if opt.probe == 14:
            a("s_waitcnt vmcnt(0)")
            stamp(a, opt, 14)
        a(f"s_cmp_lg_u32 s{sWG}, {opt.probewg}")
        a("s_cbranch_scc1 L_done")
        a(f"s_cmp_lg_u32 s{sWAVE}, {opt.probew}")
        a("s_cbranch_scc1 L_done")
        ref = sNONCE if opt.probeabs else (sPROF + 2 if opt.probe0 >= 0 else 96)
        a(f"s_sub_u32 s{sT1}, s{sPROF+1}, s{ref}")
        if opt.probecyc: a(f"s_lshr_b32 s{sT1}, s{sT1}, 2")
        else: a(f"s_lshl_b32 s{sT1}, s{sT1}, 2")
        a(f"s_add_u32 s{sT1}, s{sT1}, 4000")
        a.label("L_probe")
        a(f"s_memrealtime s[{sP}:{sP+1}]")
        a("s_waitcnt lgkmcnt(0)")
        a(f"s_sub_u32 s{sT0}, s{sP}, s96")
        a(f"s_cmp_lt_u32 s{sT0}, s{sT1}")
        a("s_cbranch_scc1 L_probe")
    if opt.pad:
        a.label("L_pad")
        a(f"s_memrealtime s[{sP}:{sP+1}]")
        a("s_waitcnt lgkmcnt(0)")
        a(f"s_sub_u32 s{sT0}, s{sP}, s96")
        a(f"s_cmp_lt_u32 s{sT0}, {opt.pad}")
        a("s_cbranch_scc1 L_pad")
    if opt.prof:
        a("s_waitcnt vmcnt(0)")
        stamp(a, opt, 14)
        make_srd(a, sX, 18, 65536, WS_PROF)
        a(f"s_lshl_b32 s{sT0}, s{sWG}, 2")
        a(f"s_add_u32 s{sT0}, s{sT0}, s{sWAVE}")
        a(f"s_lshl_b32 s{sT0}, s{sT0}, 6")
        a(f"v_mov_b32 v{vT}, s{sT0}")
        a("s_mov_b64 exec, 1")
        for i in range(15):
            a(f"v_mov_b32 v100, s{sPROF+i}")
            a(f"buffer_store_dword v100, v{vT}, {srd(sX)}, 0 offen offset:{4*i}")
            a("s_nop 1")
        a("s_waitcnt vmcnt(0)")
    a.label("L_done")
    a("s_endpgm")
    a.label("L_codeend")
    a.raw('.section .rodata,"a"')
    a.raw(".p2align 6")
    a.raw(f".amdhsa_kernel {KN}")
    for l in ["next_free_vgpr 512", "next_free_sgpr 102", "accum_offset 256", "group_segment_fixed_size 0",
              "kernarg_size 64", "user_sgpr_count 2", "user_sgpr_kernarg_segment_ptr 1",
              "system_sgpr_workgroup_id_x 1", "float_denorm_mode_32 3"]:
        a.raw(f"  .amdhsa_{l}")
    a.raw(".end_amdhsa_kernel")
    return "\n".join(a.L) + "\n"

def parse(argv=None):
    ap = argparse.ArgumentParser()
    ap.add_argument("-o", default="standalone__mixer_token_mlp__prompt.s")
    ap.add_argument("--prof", type=int, default=0)
    ap.add_argument("--rot", type=int, default=3)
    ap.add_argument("--spin", type=int, default=20000)
    ap.add_argument("--sleep", type=int, default=8)
    ap.add_argument("--depth", type=int, default=3)
    ap.add_argument("--lnprof", type=int, default=0)
    ap.add_argument("--hbits", default="sc1")
    ap.add_argument("--pfwait", type=int, default=1)
    ap.add_argument("--hold", type=int, default=0)
    ap.add_argument("--probe", type=int, default=-1)
    ap.add_argument("--probe0", type=int, default=-1)
    ap.add_argument("--probecyc", type=int, default=0)
    ap.add_argument("--probeabs", type=int, default=0)
    ap.add_argument("--probewg", type=int, default=100)
    ap.add_argument("--probew", type=int, default=2)
    ap.add_argument("--rot8", type=int, default=1)
    ap.add_argument("--cpf", type=int, default=1)
    ap.add_argument("--cpfw", type=int, default=3)
    ap.add_argument("--wide", type=int, default=1)
    ap.add_argument("--idlewait", type=int, default=0)
    ap.add_argument("--sleeph", type=int, default=8)
    ap.add_argument("--preh", type=int, default=0)
    ap.add_argument("--preg", type=int, default=0)
    ap.add_argument("--onepoll", type=int, default=3)
    ap.add_argument("--pollw", type=int, default=3)
    ap.add_argument("--nta", type=int, default=0)
    ap.add_argument("--rotg1", type=int, default=0)
    ap.add_argument("--rotg2", type=int, default=0)
    ap.add_argument("--npost", type=int, default=3)
    ap.add_argument("--xbar", type=int, default=1)
    ap.add_argument("--hold1", type=int, default=4)
    ap.add_argument("--hold2", type=int, default=1)
    ap.add_argument("--nmid", type=int, default=0)
    ap.add_argument("--gbits", default="sc1")
    ap.add_argument("--fbits", default="sc1")
    ap.add_argument("--abits", default="sc1")
    ap.add_argument("--unsafe", type=int, default=0)
    ap.add_argument("--epoll", type=int, default=12)
    ap.add_argument("--pipe", type=int, default=1)
    ap.add_argument("--gap", type=int, default=2)
    ap.add_argument("--gwg", type=int, default=1)
    ap.add_argument("--hline", type=int, default=16)
    ap.add_argument("--idle1", type=int, default=0)
    ap.add_argument("--idle1ft", type=int, default=13)
    ap.add_argument("--jitter", type=int, default=0)
    ap.add_argument("--flagfirst", type=int, default=0)
    ap.add_argument("--nb3", type=int, default=2)
    ap.add_argument("--pairx", type=int, default=1)
    ap.add_argument("--xpf", type=int, default=0)
    ap.add_argument("--fine", type=int, default=2)
    ap.add_argument("--dist", type=int, default=12)
    ap.add_argument("--align64", type=int, default=1)
    ap.add_argument("--obits1", default="sc0 sc1")
    ap.add_argument("--sfirst", type=int, default=0)
    ap.add_argument("--gsec", type=int, default=0)
    ap.add_argument("--t13", type=int, default=1)
    ap.add_argument("--tt", type=int, default=2)
    ap.add_argument("--e2", type=int, default=0)
    ap.add_argument("--e3", type=int, default=0)
    ap.add_argument("--nb2", type=int, default=0)
    ap.add_argument("--e1", type=int, default=1)
    ap.add_argument("--nb", type=int, default=2)
    ap.add_argument("--nearly", type=int, default=2)
    ap.add_argument("--dpl", type=int, default=5)
    ap.add_argument("--dp", type=int, default=4)
    ap.add_argument("--p1", type=int, default=2)
    ap.add_argument("--p2", type=int, default=1)
    ap.add_argument("--rota1", type=int, default=0)
    ap.add_argument("--rota2", type=int, default=0)
    ap.add_argument("--xbits", default="nt")
    ap.add_argument("--w1bits", default="")
    ap.add_argument("--w2bits", default="")
    ap.add_argument("--pfbits", default="")
    ap.add_argument("--pfdepth", type=int, default=8)
    ap.add_argument("--prio", type=int, default=3)
    ap.add_argument("--delay", type=int, default=0)
    ap.add_argument("--hstride", type=int, default=8)
    ap.add_argument("--gstride", type=int, default=256)
    ap.add_argument("--pf", type=int, default=0)
    ap.add_argument("--pad", type=int, default=0)
    ap.add_argument("--obits", default="sc0 sc1")
    return ap.parse_args(argv)

if __name__ == "__main__":
    opt = parse()
    open(opt.o, "w").write(gen(opt))
```

```python
import argparse, struct

S, D, F = 2048, 640, 1728
KN = "standalone__mixer_token_mlp__prompt_kernel"

WS_H = 0
H_BYTES = 64 * 40 * 1024
WS_G = 0x300000
G_BYTES = 54 * 40 * 1024
WS_FLAG = 0x600000
FLAG_H = 0
FLAG_G = 0x10000
FLAG_BYTES = 0x40000
WS_PROF = 0x700000

LDS_BYTES = 163840
LN_BASE = 131072
LN_ROW = 1344
LF_BASE = 141824
P0_BASE = [0, 49152, 98304, 122880]

sWG = 2
sX, sW1, sW2, sH, sG, sO, sF, sB1, sB2, sD = 20, 24, 28, 32, 36, 40, 44, 48, 52, 56
sWAVE, sXCD, sJ, sFT, sDT1, sST, sDT2, sNONCE = 60, 61, 62, 63, 64, 65, 66, 67
sT0, sT1, sT2, sT3, sT4, sT5 = 68, 69, 70, 71, 72, 73
sROT1, sROT2, sSTEP, sOFF = 74, 75, 76, 77
sM0B, sSPIN = 78, 79
sP = 80
sPROF = 84
sUP = 99
sJLIM, sIDLE = 100, 101
sWB = 3

vTID, vLANE = 0, 1
vTR = 2
vA, vA2, vDMA, vT2 = 6, 7, 8, 9
vB1 = 10
vB2, vT = 14, 15
vACC = 16
vRING = 96
vTRU = 196
vL0, vL1, vL2 = 200, 201, 202
vC0 = 204
BI = 206
vPOLL = 214
vX = 216
vFS = 248
vHP = 226
vPQ = 228
vDM = 220

def srd(n): return f"s[{n}:{n+3}]"
def vr(n, c=1): return f"v{n}" if c == 1 else f"v[{n}:{n+c-1}]"
def ar(n, c=1): return f"a{n}" if c == 1 else f"a[{n}:{n+c-1}]"
def f2h(x): return "0x%08x" % struct.unpack("<I", struct.pack("<f", x))[0]
C0 = -2.0 * 0.7978845608028654 * 1.4426950408889634
C1 = C0 * 0.044715

class Asm:
    def __init__(self):
        self.L = []; self.vm = []; self.uid = 0
    def __call__(self, s): self.L.append("    " + s)
    def label(self, s): self.L.append(s + ":")
    def raw(self, s): self.L.append(s)
    def c(self, s): self.L.append("    ; " + s)
    def vmem(self, s, tag):
        self(s); self.vm.append(tag)
    def wait_vm(self, tag):
        hits = [i for i, t in enumerate(self.vm) if t == tag]
        if not hits: return
        n = len(self.vm) - 1 - hits[-1]
        self(f"s_waitcnt vmcnt({min(n, 63)})")
        self.vm = self.vm[hits[-1] + 1:]
    def wait_vm0(self):
        self("s_waitcnt vmcnt(0)"); self.vm = []
    def newlabel(self, p):
        self.uid += 1
        return f"L_{p}_{self.uid}"

def acc1(mt, nt): return vACC + (mt * 5 + nt) * 4
def acc2(mt, nt): return vACC + (mt * 4 + nt) * 4
def wfrag(step, t): return step * 16 + t * 4

def stamp(a, opt, idx, force=False):
    if opt.probe >= 0:
        ins = "s_memtime" if opt.probecyc else "s_memrealtime"
        if idx == opt.probe:
            a(f"{ins} s[{sP}:{sP+1}]")
            a("s_waitcnt lgkmcnt(0)")
            a(f"s_mov_b32 s{sPROF+1}, s{sP}")
        if idx == opt.probe0:
            a(f"{ins} s[{sP}:{sP+1}]")
            a("s_waitcnt lgkmcnt(0)")
            a(f"s_mov_b32 s{sPROF+2}, s{sP}")
        return
    if opt.prof == 4 and idx != 14: return
    if opt.lnprof and idx in (4, 5) and getattr(a, "ln_done", False): return
    if opt.prof:
        a(f"s_mem{'time' if opt.prof == 2 else 'realtime'} s[{sP}:{sP+1}]")
        a("s_waitcnt lgkmcnt(0)")
        a(f"s_mov_b32 s{sPROF+idx}, s{sP}")

def jitter(a, opt, k):
    if not opt.jitter: return
    lp, dn = a.newlabel("jit"), a.newlabel("jitd")
    a(f"s_lshl_b32 s{sP+2}, s{sWG}, 2")
    a(f"s_add_u32 s{sP+2}, s{sP+2}, s{sWAVE}")
    a(f"s_mul_i32 s{sP+2}, s{sP+2}, {2654435761 * (2 * k + opt.jitter) % (1 << 31)}")
    a(f"s_lshr_b32 s{sP+2}, s{sP+2}, 26")
    a.label(lp)
    a(f"s_cmp_eq_u32 s{sP+2}, 0")
    a(f"s_cbranch_scc1 {dn}")
    a("s_sleep 2")
    a(f"s_sub_u32 s{sP+2}, s{sP+2}, 1")
    a(f"s_branch {lp}")
    a.label(dn)

def make_srd(a, n, lo, size, add=0):
    if add:
        a(f"s_add_u32 s{n}, s{lo}, {add}")
        a(f"s_addc_u32 s{n+1}, s{lo+1}, 0")
        a(f"s_and_b32 s{n+1}, s{n+1}, 0xffff")
    else:
        a(f"s_mov_b32 s{n}, s{lo}")
        a(f"s_and_b32 s{n+1}, s{lo+1}, 0xffff")
    a(f"s_mov_b32 s{n+2}, {size}")
    a(f"s_mov_b32 s{n+3}, 0x20000")

def nonce_spin(a, opt):
    lp = a.newlabel("nonce"); dn = a.newlabel("nonced")
    a(f"s_cmp_lg_u32 s{sNONCE}, 0")
    a(f"s_cbranch_scc1 {dn}")
    a(f"s_mov_b32 s{sSPIN}, 0")
    a(f"v_mov_b32 v{vT}, 0")
    a.label(lp)
    a(f"buffer_load_dword v{vT2}, v{vT}, {srd(sD)}, 0 offen sc1")
    a("s_waitcnt vmcnt(0)")
    a(f"v_readfirstlane_b32 s{sNONCE}, v{vT2}")
    a(f"s_add_u32 s{sSPIN}, s{sSPIN}, 1")
    a(f"s_cmp_lg_u32 s{sNONCE}, 0")
    a(f"s_cbranch_scc1 {dn}")
    a(f"s_cmp_lt_u32 s{sSPIN}, {opt.spin}")
    a(f"s_cbranch_scc1 {lp}")
    a.label(dn)

def lds_set(a, addr_sgpr_or_imm):
    a(f"v_mov_b32 v{vT}, {addr_sgpr_or_imm}")
    a(f"v_mov_b32 v{vT2}, 1")
    a(f"s_mov_b64 s[{sP}:{sP+1}], exec")
    a("s_mov_b64 exec, 1")
    a(f"ds_write_b32 v{vT}, v{vT2}")
    a(f"s_mov_b64 exec, s[{sP}:{sP+1}]")

def lds_spin(a, opt, addr):
    lp = a.newlabel("lspin"); dn = a.newlabel("lspun")
    a(f"v_mov_b32 v{vT}, {addr}")
    a(f"s_mov_b32 s{sSPIN}, 0")
    a.label(lp)
    a(f"ds_read_b32 v{vT2}, v{vT}")
    a("s_waitcnt lgkmcnt(0)")
    a(f"v_readfirstlane_b32 s{sP}, v{vT2}")
    a(f"s_add_u32 s{sSPIN}, s{sSPIN}, 1")
    a(f"s_cmp_lg_u32 s{sP}, 0")
    a(f"s_cbranch_scc1 {dn}")
    a(f"s_cmp_lt_u32 s{sSPIN}, {opt.spin * 8}")
    a(f"s_cbranch_scc1 {lp}")
    a.label(dn)

def dma_addr(a, stride, s_tile):
    a(f"v_lshrrev_b32 v{vT}, 3, v{vLANE}")
    a(f"v_lshrrev_b32 v{vT2}, 1, v{vT}")
    a(f"v_lshlrev_b32 v{vT2}, 1, v{vT2}")
    a(f"v_and_b32 v{vDM}, 7, v{vLANE}")
    a(f"v_xor_b32 v{vDM}, v{vDM}, v{vT2}")
    a(f"v_lshlrev_b32 v{vDM}, 4, v{vDM}")
    a(f"v_mul_u32_u24 v{vT}, {stride}, v{vT}")
    a(f"v_add_u32 v{vDM}, v{vDM}, v{vT}")
    a(f"s_lshl_b32 s{sT0}, s{s_tile}, 7")
    a(f"v_add_u32 v{vDM}, s{sT0}, v{vDM}")
    for b in range(1, 4):
        a(f"v_add_u32 v{vDM+b}, {b*(8*stride-1024)}, v{vDM}")

def step_off(a, dst, s_base, s_rot, i, nsteps, bytes_per_step):
    a(f"s_add_u32 s{sT4}, s{s_rot}, {i}")
    a(f"s_cmp_ge_u32 s{sT4}, {nsteps}")
    a(f"s_cselect_b32 s{dst}, {nsteps}, 0")
    a(f"s_sub_u32 s{sT4}, s{sT4}, s{dst}")
    a(f"s_mul_i32 s{sT4}, s{sT4}, {bytes_per_step}")
    a(f"s_add_u32 s{dst}, s{sT4}, s{s_base}")

def dma_step(a, srdn, stride, s_rowbase, s_rot, step, nsteps, s_lds, lds_off, tag, bits=""):
    a(f"s_add_u32 m0, s{s_lds}, {lds_off}")
    step_off(a, sOFF, s_rowbase, s_rot, step, nsteps, 32 * stride)
    for blk in range(4):
        a.vmem(f"buffer_load_dwordx4 v{vDM+blk}, {srd(srdn)}, s{sOFF} offen offset:{blk*1024} {bits} lds", tag)

def tr_step(a, vbase, off, step):
    for t in range(4):
        w = wfrag(step, t)
        a(f"ds_read_b64_tr_b16 {ar(w,2)}, v{vbase+t} offset:{off}")
        a(f"ds_read_b64_tr_b16 {ar(w+2,2)}, v{vbase+t} offset:{off+2048}")

def poll(a, opt, vaddr, nd, lanes, sleep=None, pre=0, nload=1):
    if sleep is None: sleep = opt.sleep
    if pre: a(f"s_sleep {pre}")
    lp = a.newlabel("poll"); dn = a.newlabel("polled")
    a(f"s_mov_b32 s{sSPIN}, 0")
    a.label(lp)
    ld = {1: "dword", 2: "dwordx2", 4: "dwordx4"}[nd]
    for k in range(nload):
        a(f"buffer_load_{ld} {vr(vPQ + 4*k, nd)}, v{vaddr}, {srd(sF)}, 0 offen offset:{k*1024} sc1")
    a("s_waitcnt vmcnt(0)")
    first = True
    for k in range(nload):
        for i in range(nd):
            if first:
                a(f"v_cmp_ne_u32 vcc, s{sNONCE}, v{vPQ+4*k+i}"); first = False
            else:
                a(f"v_cmp_ne_u32 s[{sP}:{sP+1}], s{sNONCE}, v{vPQ+4*k+i}")
                a(f"s_or_b64 vcc, vcc, s[{sP}:{sP+1}]")
    if lanes is not None:
        a(f"s_and_b64 vcc, vcc, s[{lanes}:{lanes+1}]")
    a(f"s_add_u32 s{sSPIN}, s{sSPIN}, 1")
    a("s_cmp_eq_u64 vcc, 0")
    a(f"s_cbranch_scc1 {dn}")
    if sleep: a(f"s_sleep {sleep}")
    a(f"s_cmp_lt_u32 s{sSPIN}, {opt.spin}")
    a(f"s_cbranch_scc1 {lp}")
    a.label(dn)
    a.vm = []

def poll_pipe(a, opt, vaddr, lanes, gap, nd=4):
    dn = a.newlabel("ppolled"); lp = a.newlabel("ppoll")
    regs = [vPQ, vPQ + 4, vPQ + 8]
    def probe(r): a(f"buffer_load_{'dwordx4' if nd == 4 else 'dword'} {vr(r,nd)}, v{vaddr}, {srd(sF)}, 0 offen sc1")
    a(f"s_mov_b32 s{sSPIN}, 0")
    probe(regs[0]); a(f"s_sleep {gap}"); probe(regs[1]); a(f"s_sleep {gap}"); probe(regs[2])
    a.label(lp)
    for r in regs:
        a("s_waitcnt vmcnt(2)")
        for i in range(nd):
            if i == 0: a(f"v_cmp_ne_u32 vcc, s{sNONCE}, v{r}")
            else:
                a(f"v_cmp_ne_u32 s[{sP}:{sP+1}], s{sNONCE}, v{r+i}")
                a(f"s_or_b64 vcc, vcc, s[{sP}:{sP+1}]")
        if lanes is not None: a(f"s_and_b64 vcc, vcc, s[{lanes}:{lanes+1}]")
        a("s_cmp_eq_u64 vcc, 0")
        a(f"s_cbranch_scc1 {dn}")
        a(f"s_sleep {gap}")
        probe(r)
    a(f"s_add_u32 s{sSPIN}, s{sSPIN}, 1")
    a(f"s_cmp_lt_u32 s{sSPIN}, {opt.spin}")
    a(f"s_cbranch_scc1 {lp}")
    a.label(dn)

def poll_check(a, nd, lanes, ok_label):
    for i in range(nd):
        if i == 0: a(f"v_cmp_ne_u32 vcc, s{sNONCE}, v{vPQ}")
        else:
            a(f"v_cmp_ne_u32 s[{sP}:{sP+1}], s{sNONCE}, v{vPQ+i}")
            a(f"s_or_b64 vcc, vcc, s[{sP}:{sP+1}]")
    if lanes is not None:
        a(f"s_and_b64 vcc, vcc, s[{lanes}:{lanes+1}]")
    a("s_cmp_eq_u64 vcc, 0")
    a(f"s_cbranch_scc1 {ok_label}")

def flag_store(a, s_index_bytes, sector=False):
    if sector:
        a(f"v_lshlrev_b32 v{vT}, 4, v{vLANE}")
        a(f"v_add_u32 v{vT}, s{s_index_bytes}, v{vT}")
        for i in range(4): a(f"v_mov_b32 v{vFS+i}, s{sNONCE}")
        a(f"s_mov_b64 s[{sP}:{sP+1}], exec")
        a("s_mov_b64 exec, 15")
        a.vmem(f"buffer_store_dwordx4 {vr(vFS,4)}, v{vT}, {srd(sF)}, 0 offen {OPT.fbits}", "flag")
        a(f"s_mov_b64 exec, s[{sP}:{sP+1}]")
        return
    a(f"v_mov_b32 v{vT}, s{s_index_bytes}")
    a(f"v_mov_b32 v{vT2}, s{sNONCE}")
    a(f"s_mov_b64 s[{sP}:{sP+1}], exec")
    a("s_mov_b64 exec, 1")
    a.vmem(f"buffer_store_dword v{vT2}, v{vT}, {srd(sF)}, 0 offen {OPT.fbits}", "flag")
    a(f"s_mov_b64 exec, s[{sP}:{sP+1}]")

def gelu_pairs(a, regs, tmp, fill=None):
    def each(fn):
        for i, r in enumerate(regs): fn(r, tmp + 2 * i)
    each(lambda r, t: a(f"v_pk_mul_f32 {vr(t,2)}, {vr(r,2)}, {vr(r,2)}"))
    each(lambda r, t: a(f"v_pk_fma_f32 {vr(t,2)}, {vr(t,2)}, s[100:101], {vr(vC0,2)}"))
    each(lambda r, t: a(f"v_pk_mul_f32 {vr(t,2)}, {vr(t,2)}, {vr(r,2)}"))
    if fill: fill()
    each(lambda r, t: (a(f"v_exp_f32 v{t}, v{t}"), a(f"v_exp_f32 v{t+1}, v{t+1}")))
    each(lambda r, t: a(f"v_pk_add_f32 {vr(t,2)}, {vr(t,2)}, 1.0 op_sel_hi:[1,0]"))
    each(lambda r, t: (a(f"v_rcp_f32 v{t}, v{t}"), a(f"v_rcp_f32 v{t+1}, v{t+1}")))
    a("s_nop 0")
    each(lambda r, t: a(f"v_pk_mul_f32 {vr(r,2)}, {vr(r,2)}, {vr(t,2)}"))

def w2_slot(step):
    if step < 8: return sM0B, step * 4096, vTR, step * 4096
    if step < 10: return sUP, (step - 8) * 4096, vTRU, (step - 8) * 4096
    return sM0B, (step - 10) * 4096, vTR, (step - 10) * 4096

def w2_dma(a, step):
    sb, off, _, _ = w2_slot(step)
    dma_step(a, sW2, S * 2, sWB, sROT2, step, 14, sb, off, f"w2_{step}", OPT.w2bits)

def w2_dma_parts(a, step):
    sb, off, _, _ = w2_slot(step)
    def setup():
        a(f"s_add_u32 m0, s{sb}, {off}")
        step_off(a, sT3, sWB, sROT2, step, 14, 32 * S * 2)
    def one(blk):
        return lambda: a.vmem(f"buffer_load_dwordx4 v{vDM+blk}, {srd(sW2)}, s{sT3} offen offset:{blk*1024} {OPT.w2bits} lds", f"w2_{step}")
    return [setup] + [one(b) for b in range(4)]

def w2_tr(a, step):
    _, _, vb, off = w2_slot(step)
    tr_step(a, vb, off, step)

def gen(opt):
    global OPT
    OPT = opt
    a = Asm()
    NS = (max(opt.dist, opt.dist2) + 1 + 4) // 5
    assert opt.dist < 5 * NS and NS <= 5
    def ring(slot, t): return vRING + slot * 20 + t * 4
    for line in ['; Fused token-mixing MLP: LayerNorm -> GEMM1 + GELU -> GEMM2, one persistent workgroup per CU.', '; kernarg: x (2048x640 bf16), w1 (2048x1728), b1 (1728), w2 (1728x2048), b2 (2048), out (2048x640), debug, workspace.', ';', "; Phase 0  every workgroup normalises 8 rows of x and stores them as MFMA B fragments (H', workspace), while it", ';          streams its 64-column panel of w1 through LDS (LDS-DMA, transposing reads) into a[0:255].', '; GEMM1    216 workgroups, tile 64 (f) x 80 (d); the four waves split K and keep full-tile accumulators;', ";          partial sums meet in LDS, bias + tanh-form GELU, result stored as MFMA A fragments (G', workspace).", "; GEMM2    256 workgroups, tile 80 (d) x 64 (s); w2 panel in the AGPRs, G' streamed; reduction, bias, bf16 store.", '; Hand-offs between workgroups: write-through stores, drained, then one flag per workgroup holding a per-launch', ';          nonce (published in debug[0]); one wave per consumer polls, the others wait at a barrier.']: a.raw(line)
    a.raw(f"; @launch grid=(256,1,1) block=(256,1,1) lds={LDS_BYTES}")
    a.raw('.amdgcn_target "amdgcn-amd-amdhsa--gfx950"')
    a.raw(".text")
    a.raw(f".globl {KN}")
    a.raw(".p2align 8")
    a.raw(f".type {KN},@function")
    a.label(KN)
    if opt.cpf: a("s_getpc_b64 s[94:95]")
    a(f"s_cmp_ge_u32 s{sWG}, 256")
    a("s_cbranch_scc1 L_done")
    a("s_load_dwordx16 s[4:19], s[0:1], 0")
    if opt.prof:
        a(f"s_mem{'time' if opt.prof == 2 else 'realtime'} s[{sP}:{sP+1}]")
    if opt.prof:
        for i in range(1, 15): a(f"s_mov_b32 s{sPROF+i}, 0")
    if not opt.prof:
        a("s_memrealtime s[96:97]")
    a(f"v_lshrrev_b32 v{vT}, 6, v{vTID}")
    a(f"v_and_b32 v{vLANE}, 63, v{vTID}")
    a(f"v_readfirstlane_b32 s{sWAVE}, v{vT}")
    a(f"s_and_b32 s{sXCD}, s{sWG}, 7")
    a(f"s_lshr_b32 s{sJ}, s{sWG}, 3")
    if opt.p1 == 2:
        if opt.pairx:
            assert opt.pf == 0
            a(f"s_add_u32 s{sT1}, s{sXCD}, {opt.pairx - 1}")
            a(f"s_and_b32 s{sT1}, s{sT1}, 3")
            a(f"s_and_b32 s{sT2}, s{sXCD}, 4")
        else:
            a(f"s_lshr_b32 s{sT1}, s{sXCD}, 1")
            a(f"s_and_b32 s{sT2}, s{sXCD}, 1")
            a(f"s_lshl_b32 s{sT2}, s{sT2}, 2")
        a(f"s_mul_i32 s{sT0}, s{sT1}, 7")
        a(f"s_lshr_b32 s{sFT}, s{sJ}, 2")
        a(f"s_add_u32 s{sFT}, s{sFT}, s{sT0}")
        a(f"s_and_b32 s{sT3}, s{sJ}, 3")
        a(f"s_add_u32 s{sDT1}, s{sT2}, s{sT3}")
        if opt.rot8: a(f"s_lshl_b32 s{sROT1}, s{sDT1}, 1")
        else: a(f"s_lshl_b32 s{sROT1}, s{sT3}, 2")
        a(f"s_cmp_eq_u32 s{sT1}, 3")
        a(f"s_cselect_b32 s{sJLIM}, 24, 28")
        a(f"s_lshl_b32 s{sT0}, s{sXCD}, 2")
        a(f"s_sub_u32 s{sT0}, s{sT0}, 28")
        a(f"s_lshl_b32 s{sT3}, s{sXCD}, 3")
        a(f"s_sub_u32 s{sT3}, s{sT3}, 48")
        a(f"s_cselect_b32 s{sIDLE}, s{sT0}, s{sT0}")
        a(f"s_cmp_ge_u32 s{sXCD}, 6")
        a(f"s_cselect_b32 s{sIDLE}, s{sT3}, s{sT0}")
        a(f"s_add_u32 s{sIDLE}, s{sIDLE}, s{sJ}")
    else:
        a(f"s_lshl_b32 s{sT0}, s{sXCD}, 2")
        a(f"s_mul_i32 s{sT1}, s{sXCD}, 3")
        a(f"s_add_u32 s{sT1}, s{sT1}, 3")
        a(f"s_cmp_lt_u32 s{sXCD}, 3")
        a(f"s_cselect_b32 s{sT0}, s{sT0}, s{sT1}")
        a(f"s_cselect_b32 s{sJLIM}, 32, 24")
        a(f"s_lshr_b32 s{sFT}, s{sJ}, 3")
        a(f"s_add_u32 s{sFT}, s{sFT}, s{sT0}")
        a(f"s_and_b32 s{sDT1}, s{sJ}, 7")
        a(f"s_lshl_b32 s{sROT1}, s{sDT1}, 1")
        a(f"s_lshl_b32 s{sIDLE}, s{sXCD}, 3")
        a(f"s_add_u32 s{sIDLE}, s{sIDLE}, s{sJ}")
        a(f"s_sub_u32 s{sIDLE}, s{sIDLE}, 48")
    if opt.rotg1 == 3:
        a(f"s_mul_i32 s{sT0}, s{sFT}, 11")
        a(f"s_lshr_b32 s{sT0}, s{sT0}, 5")
        a(f"s_mul_i32 s{sT0}, s{sT0}, 3")
        a(f"s_sub_u32 s{sT0}, s{sFT}, s{sT0}")
        a(f"s_mul_i32 s{sT0}, s{sT0}, 5")
        a(f"s_add_u32 s{sROT1}, s{sROT1}, s{sT0}")
        a(f"s_and_b32 s{sROT1}, s{sROT1}, 15")
    if opt.rotg1 == 2:
        a(f"s_and_b32 s{sT0}, s{sFT}, 1")
        a(f"s_lshl_b32 s{sT0}, s{sT0}, 3")
        a(f"s_add_u32 s{sROT1}, s{sROT1}, s{sT0}")
        a(f"s_and_b32 s{sROT1}, s{sROT1}, 15")
    if opt.rota1:
        a(f"s_mul_i32 s{sT0}, s{sFT}, {opt.rota1}")
        a(f"s_add_u32 s{sROT1}, s{sROT1}, s{sT0}")
        a(f"s_and_b32 s{sROT1}, s{sROT1}, 15")
    if opt.p2 == 2:
        a(f"s_lshr_b32 s{sT1}, s{sXCD}, 1")
        a(f"s_and_b32 s{sT2}, s{sXCD}, 1")
        a(f"s_lshl_b32 s{sT2}, s{sT2}, 2")
        a(f"s_lshr_b32 s{sT0}, s{sJ}, 2")
        a(f"s_lshl_b32 s{sST}, s{sT1}, 3")
        a(f"s_add_u32 s{sST}, s{sST}, s{sT0}")
        a(f"s_and_b32 s{sT3}, s{sJ}, 3")
        a(f"s_add_u32 s{sDT2}, s{sT2}, s{sT3}")
        if opt.rot8:
            a(f"s_mul_i32 s{sROT2}, s{sDT2}, 7")
            a(f"s_lshr_b32 s{sROT2}, s{sROT2}, 2")
        else:
            a(f"s_mul_i32 s{sROT2}, s{sT3}, 7")
            a(f"s_lshr_b32 s{sROT2}, s{sROT2}, 1")
    else:
        a(f"s_lshr_b32 s{sT0}, s{sJ}, 3")
        a(f"s_lshl_b32 s{sST}, s{sXCD}, 2")
        a(f"s_add_u32 s{sST}, s{sST}, s{sT0}")
        a(f"s_and_b32 s{sDT2}, s{sJ}, 7")
        a(f"s_mul_i32 s{sROT2}, s{sDT2}, 7")
        a(f"s_lshr_b32 s{sROT2}, s{sROT2}, 2")
    if opt.rotg2:
        if opt.rotg2 == 2:
            a(f"s_and_b32 s{sT0}, s{sST}, 1")
            a(f"s_mul_i32 s{sT0}, s{sT0}, 7")
        else:
            a(f"s_mul_i32 s{sT0}, s{sST}, 11")
            a(f"s_lshr_b32 s{sT0}, s{sT0}, 5")
            a(f"s_mul_i32 s{sT0}, s{sT0}, 3")
            a(f"s_sub_u32 s{sT0}, s{sST}, s{sT0}")
            a(f"s_mul_i32 s{sT0}, s{sT0}, 5")
        a(f"s_add_u32 s{sROT2}, s{sROT2}, s{sT0}")
        a(f"s_cmp_ge_u32 s{sROT2}, 14")
        a(f"s_cselect_b32 s{sT0}, 14, 0")
        a(f"s_sub_u32 s{sROT2}, s{sROT2}, s{sT0}")
    if opt.rota2:
        a(f"s_mul_i32 s{sT0}, s{sST}, {opt.rota2}")
        a(f"s_add_u32 s{sROT2}, s{sROT2}, s{sT0}")
        a(f"s_and_b32 s{sT0}, s{sROT2}, 0xff")
        a(f"s_mul_i32 s{sT0}, s{sROT2}, 18725")
        a(f"s_lshr_b32 s{sT0}, s{sT0}, 18")
        a(f"s_mul_i32 s{sT0}, s{sT0}, 14")
        a(f"s_sub_u32 s{sROT2}, s{sROT2}, s{sT0}")
    if not (opt.rot & 1): a(f"s_mov_b32 s{sROT1}, 0")
    if not (opt.rot & 2): a(f"s_mov_b32 s{sROT2}, 0")
    a(f"s_lshl_b32 s{sM0B}, s{sWAVE}, 15")
    a(f"s_lshl_b32 s{sUP}, s{sWAVE}, 13")
    a(f"s_add_u32 s{sUP}, s{sUP}, 131072")
    def tr_addr(base_sgpr):
        t0, t1, t2 = vX, vX + 1, vX + 2
        a(f"v_lshrrev_b32 v{t0}, 4, v{vLANE}")
        a(f"v_and_b32 v{t1}, 1, v{t0}")
        a(f"v_lshlrev_b32 v{t1}, 2, v{t1}")
        a(f"v_bfe_u32 v{t2}, v{vLANE}, 2, 2")
        a(f"v_add_u32 v{t1}, v{t1}, v{t2}")
        a(f"v_lshrrev_b32 v{t0}, 1, v{t0}")
        a(f"v_lshlrev_b32 v{t0}, 10, v{t0}")
        a(f"v_lshlrev_b32 v{t2}, 7, v{t1}")
        a(f"v_add_u32 v{t0}, v{t0}, v{t2}")
        a(f"v_and_b32 v{t2}, 3, v{vLANE}")
        a(f"v_lshlrev_b32 v{t2}, 3, v{t2}")
        a(f"v_add_u32 v{t0}, v{t0}, v{t2}")
        a(f"v_add_u32 v{t0}, s{base_sgpr}, v{t0}")
        a(f"v_lshrrev_b32 v{t1}, 1, v{t1}")
        for t in range(4):
            a(f"v_xor_b32 v{t2}, {t}, v{t1}")
            a(f"v_lshlrev_b32 v{t2}, 5, v{t2}")
            a(f"v_add_u32 v{vTR+t}, v{t0}, v{t2}")
    def w1_dma(i): dma_step(a, sW1, F * 2, sWB, sROT1, i, 16, sM0B, (i % 8) * 4096, f"w1_{i}", "nt" if i < opt.nta else opt.w1bits)
    def w1_stream(first, dp, hold=0):
        retired = 0
        def retire():
            nonlocal retired
            a.wait_vm(f"w1_{retired}")
            if retired: a("s_waitcnt lgkmcnt(0)")
            tr_step(a, vTR, (retired % 8) * 4096, retired)
            retired += 1
        for i in range(first, 16):
            while retired <= i - dp: retire()
            if i >= 8:
                while retired <= i - 8: retire()
                if retired == i - 7: a("s_waitcnt lgkmcnt(0)")
            w1_dma(i)
            if opt.epoll and i == opt.epoll:
                a(f"v_mul_u32_u24 v{vHP}, {opt.hline}, v{vLANE}")
                a(f"s_cmp_lg_u32 s{sWAVE}, {opt.pollw}")
                a("s_cbranch_scc1 L_noepoll")
                if opt.elate:
                    a(f"s_and_b32 s{sT0}, s{sWG}, 4")
                    a(f"s_cmp_eq_u32 s{sT0}, 0")
                    a("s_cbranch_scc1 L_noepoll")
                a(f"buffer_load_dwordx4 {vr(vPQ,4)}, v{vHP}, {srd(sF)}, 0 offen sc1")
                a.label("L_noepoll")
        while retired < 16 - hold: retire()
        def finish():
            while retired < 16: retire()
            a("s_waitcnt lgkmcnt(0)")
        if not hold: finish()
        return finish
    dma_addr(a, F * 2, sFT)
    a(f"s_mul_i32 s{sWB}, s{sWAVE}, {512*F*2}")
    a.c("LayerNorm: wave w normalises rows 32*ks + 16*(w>>1) + 4*q + 2*(w&1) + (0,1), 32 lanes per row")
    XR, XF, TM = 96, 108, 130
    a(f"s_lshr_b32 s{sT0}, s{sWG}, 2")
    a(f"s_and_b32 s{sT1}, s{sWG}, 3")
    a(f"s_lshl_b32 s{sT2}, s{sT0}, 5")
    a(f"s_lshr_b32 s{sT3}, s{sWAVE}, 1")
    a(f"s_lshl_b32 s{sT3}, s{sT3}, 4")
    a(f"s_add_u32 s{sT2}, s{sT2}, s{sT3}")
    a(f"s_lshl_b32 s{sT3}, s{sT1}, 2")
    a(f"s_add_u32 s{sT2}, s{sT2}, s{sT3}")
    a(f"s_and_b32 s{sT3}, s{sWAVE}, 1")
    a(f"s_lshl_b32 s{sT3}, s{sT3}, 1")
    a(f"s_add_u32 s{sT2}, s{sT2}, s{sT3}")
    a(f"s_mul_i32 s{sT2}, s{sT2}, 1280")
    a(f"v_lshrrev_b32 v{TM}, 5, v{vLANE}")
    a(f"v_and_b32 v{TM+1}, 31, v{vLANE}")
    a(f"v_lshlrev_b32 v{TM+1}, 3, v{TM+1}")
    a(f"v_mul_u32_u24 v{TM+2}, 1280, v{TM}")
    a(f"v_add_u32 v{TM+2}, v{TM+2}, v{TM+1}")
    a(f"v_mov_b32 v{vT}, 0")
    a("s_waitcnt lgkmcnt(0)")
    if opt.prof: a(f"s_mov_b32 s{sPROF}, s{sP}")
    make_srd(a, sD, 16, 256)
    a(f"s_cmp_lg_u32 s{sWG}, 0")
    a("s_cbranch_scc1 L_nononce")
    a(f"s_cmp_lg_u32 s{sWAVE}, 3")
    a("s_cbranch_scc1 L_nononce")
    a(f"s_or_b32 s{sNONCE}, s{sP if opt.prof else 96}, 1")
    a(f"v_mov_b32 v{vT2}, s{sNONCE}")
    a(f"s_mov_b64 s[{sP+2}:{sP+3}], exec")
    a("s_mov_b64 exec, 1")
    a(f"buffer_store_dword v{vT2}, v{vT}, {srd(sD)}, 0 offen sc1")
    a(f"s_mov_b64 exec, s[{sP+2}:{sP+3}]")
    a.label("L_nononce")
    make_srd(a, sX, 4, S * D * 2)
    if opt.xpf:
        a(f"s_and_b32 s{sT3}, s{sWG}, 4")
        a(f"s_cmp_lg_u32 s{sT3}, 0")
        a("s_cbranch_scc1 L_xlate")
        a(f"s_add_u32 s{sT3}, s{sT2}, {32*1280}")
        for i in range(5):
            a(f"buffer_load_dwordx2 {vr(244+2*(i%2),2)}, v{TM+2}, {srd(sX)}, s{sT3} offen offset:{i*256}")
        for i in range(5):
            a(f"buffer_load_dwordx2 {vr(XR+2*i,2)}, v{TM+2}, {srd(sX)}, s{sT2} offen offset:{i*256} {opt.xbits}")
        a("s_branch L_xissued")
        a.label("L_xlate")
        for i in range(5):
            a(f"buffer_load_dwordx2 {vr(XR+2*i,2)}, v{TM+2}, {srd(sX)}, s{sT2} offen offset:{i*256} {opt.xbits if opt.xpf == 2 else ''}")
        a.label("L_xissued")
    else:
        for i in range(5):
            a.vmem(f"buffer_load_dwordx2 {vr(XR+2*i,2)}, v{TM+2}, {srd(sX)}, s{sT2} offen offset:{i*256} {opt.xbits}", "x")
    make_srd(a, sW1, 6, S * F * 2)
    if opt.xbar: a("s_barrier")
    a(f"s_cmp_ge_u32 s{sJ}, s{sJLIM}")
    a("s_cbranch_scc1 L_ln_now1")
    for i in range(opt.nearly): w1_dma(i)
    a.label("L_ln_now1")
    if opt.cpf:
        a(f"s_cmp_lg_u32 s{sWAVE}, 3")
        a("s_cbranch_scc1 L_nocpf")
        a(f"s_lshl_b32 s{sT3}, s{sJ}, 11")
        a(f"v_lshlrev_b32 v{vX}, 4, v{vLANE}")
        a(f"v_add_u32 v{vX}, s{sT3}, v{vX}")
        a(f"v_add_u32 v{vX+1}, 1024, v{vX}")
        for h in range(2):
            a(f"v_min_u32 v{vX+h}, L_codeend-{KN}-36, v{vX+h}")
            a(f"global_load_dwordx4 {vr(240+4*h,4)}, v{vX+h}, s[94:95]")
        a.label("L_nocpf")
    make_srd(a, sH, 18, H_BYTES, WS_H)
    make_srd(a, sF, 18, FLAG_BYTES, WS_FLAG)
    a(f"s_mul_i32 s{sSTEP}, s{sT0}, 40960")
    a(f"s_lshl_b32 s{sT1}, s{sT1}, 8")
    a(f"s_add_u32 s{sSTEP}, s{sSTEP}, s{sT1}")
    a(f"s_lshl_b32 s{sT3}, s{sWAVE}, 1")
    a(f"v_add_u32 v{TM+4}, s{sT3}, v{TM}")
    a(f"v_mul_u32_u24 v{TM+4}, {LN_ROW}, v{TM+4}")
    a(f"v_add_u32 v{TM+4}, v{TM+4}, v{TM+1}")
    a(f"v_add_u32 v{TM+4}, {LN_BASE}, v{TM+4}")
    a(f"s_mul_i32 s{sT3}, s{sWAVE}, 12")
    a(f"s_cmp_eq_u32 s{sWAVE}, 3")
    a(f"s_cselect_b32 s{sT3}, 32, s{sT3}")
    a(f"v_lshrrev_b32 v{TM+6}, 4, v{vLANE}")
    a(f"v_add_u32 v{TM+6}, s{sT3}, v{TM+6}")
    a(f"v_bfe_u32 v{TM+5}, v{vLANE}, 2, 2")
    a(f"v_mul_u32_u24 v{TM+5}, {LN_ROW}, v{TM+5}")
    a(f"v_lshlrev_b32 v{TM+7}, 5, v{TM+6}")
    a(f"v_add_u32 v{TM+5}, v{TM+5}, v{TM+7}")
    a(f"v_and_b32 v{TM+7}, 3, v{vLANE}")
    a(f"v_lshlrev_b32 v{TM+7}, 3, v{TM+7}")
    a(f"v_add_u32 v{TM+5}, v{TM+5}, v{TM+7}")
    a(f"v_add_u32 v{TM+5}, {LN_BASE}, v{TM+5}")
    a(f"v_lshlrev_b32 v{TM+6}, 10, v{TM+6}")
    a(f"v_and_b32 v{TM+7}, 15, v{vLANE}")
    a(f"v_lshlrev_b32 v{TM+7}, 4, v{TM+7}")
    a(f"v_add_u32 v{TM+6}, v{TM+6}, v{TM+7}")
    tr_addr(sM0B)
    a(f"s_mov_b32 s{sT0}, 0xffff0000")
    nc = 2 if opt.cpf else 0
    a(f"s_cmp_ge_u32 s{sJ}, s{sJLIM}")
    a("s_cbranch_scc1 L_ln_idle")
    a(f"s_cmp_eq_u32 s{sWAVE}, 3")
    a("s_cbranch_scc1 L_ln_w3")
    a(f"s_waitcnt vmcnt({4*opt.nearly})")
    a("s_branch L_ln_go")
    a.label("L_ln_w3")
    a(f"s_waitcnt vmcnt({4*opt.nearly + nc})")
    a("s_branch L_ln_go")
    a.label("L_ln_idle")
    a(f"s_cmp_eq_u32 s{sWAVE}, 3")
    a("s_cbranch_scc1 L_ln_idle3")
    a("s_waitcnt vmcnt(0)")
    a("s_branch L_ln_go")
    a.label("L_ln_idle3")
    a(f"s_waitcnt vmcnt({nc})")
    a.label("L_ln_go")
    stamp(a, opt, 1)
    jitter(a, opt, 1)
    nmid = [opt.nearly]
    def mid_step(tag):
        if nmid[0] < opt.nearly + opt.nmid:
            a(f"s_cmp_ge_u32 s{sJ}, s{sJLIM}")
            a(f"s_cbranch_scc1 L_mid_{tag}")
            w1_dma(nmid[0]); nmid[0] += 1
            a.label(f"L_mid_{tag}")
    if opt.unsafe & 2: a(f"buffer_load_dword v{vPOLL}, v{vT}, {srd(sD)}, 0 offen sc1")
    mid_step("a")
    for i in range(10):
        a(f"v_lshlrev_b32 v{XF+2*i}, 16, v{XR+i}")
        a(f"v_and_b32 v{XF+2*i+1}, s{sT0}, v{XR+i}")
    SM = TM + 8
    a(f"v_pk_add_f32 {vr(SM,2)}, {vr(XF,2)}, {vr(XF+4,2)}")
    a(f"v_pk_add_f32 {vr(SM+2,2)}, {vr(XF+2,2)}, {vr(XF+6,2)}")
    for i in range(4, 10):
        k = i % 2
        a(f"v_pk_add_f32 {vr(SM+2*k,2)}, {vr(SM+2*k,2)}, {vr(XF+2*i,2)}")
    def reduce_row(dst):
        a(f"v_pk_add_f32 {vr(SM,2)}, {vr(SM,2)}, {vr(SM+2,2)}")
        a(f"v_add_f32 v{dst}, v{SM}, v{SM+1}")
        for rot in (8, 4, 2, 1):
            a("s_nop 1")
            a(f"v_add_f32_dpp v{dst}, v{dst}, v{dst} row_ror:{rot} row_mask:0xf bank_mask:0xf")
        a(f"v_mov_b32 v{SM}, v{dst}")
        a("s_nop 1")
        a(f"v_permlane16_swap_b32 v{dst}, v{SM}")
        a("s_nop 1")
        a(f"v_add_f32 v{dst}, v{dst}, v{SM}")
    MN = TM + 12
    reduce_row(MN)
    mid_step("b")
    a(f"v_mul_f32 v{MN}, {f2h(1.0/640.0)}, v{MN}")
    a(f"v_mov_b32 v{MN+1}, v{MN}")
    for i in range(10):
        a(f"v_pk_add_f32 {vr(XF+2*i,2)}, {vr(XF+2*i,2)}, {vr(MN,2)} neg_lo:[0,1] neg_hi:[0,1]")
    for k in range(2):
        a(f"v_pk_mul_f32 {vr(SM+2*k,2)}, {vr(XF+2*k,2)}, {vr(XF+2*k,2)}")
    for i in range(2, 10):
        k = i % 2
        a(f"v_pk_fma_f32 {vr(SM+2*k,2)}, {vr(XF+2*i,2)}, {vr(XF+2*i,2)}, {vr(SM+2*k,2)}")
    reduce_row(MN)
    mid_step("c")
    a(f"v_mov_b32 v{MN+1}, {f2h(1e-5)}")
    a(f"v_fmac_f32 v{MN+1}, {f2h(1.0/640.0)}, v{MN}")
    a(f"v_rsq_f32 v{MN}, v{MN+1}")
    a("s_nop 0")
    a(f"v_mov_b32 v{MN+1}, v{MN}")
    for i in range(10):
        a(f"v_pk_mul_f32 {vr(XF+2*i,2)}, {vr(XF+2*i,2)}, {vr(MN,2)}")
    for i in range(10):
        a(f"v_cvt_pk_bf16_f32 v{XR+i}, v{XF+2*i}, v{XF+2*i+1}")
    for i in range(5):
        a(f"ds_write_b64 v{TM+4}, {vr(XR+2*i,2)} offset:{i*256}")
    a("s_waitcnt lgkmcnt(0)")
    if opt.unsafe & 2:
        a("s_waitcnt vmcnt(0)")
        a(f"v_readfirstlane_b32 s{sNONCE}, v{vPOLL}")
        nonce_spin(a, opt)
    a("s_barrier")
    for i in range(2):
        a(f"ds_read_b64_tr_b16 {vr(XF+4*i,2)}, v{TM+5} offset:{i*128}")
        a(f"ds_read_b64_tr_b16 {vr(XF+4*i+2,2)}, v{TM+5} offset:{i*128+4*LN_ROW}")
    a(f"s_cmp_ge_u32 s{sWAVE}, 2")
    a("s_cbranch_scc1 L_ln_two")
    a(f"ds_read_b64_tr_b16 {vr(XF+8,2)}, v{TM+5} offset:{2*128}")
    a(f"ds_read_b64_tr_b16 {vr(XF+10,2)}, v{TM+5} offset:{2*128+4*LN_ROW}")
    a("s_waitcnt lgkmcnt(0)")
    a(f"s_add_u32 s{sT0}, s{sSTEP}, {2*4096}")
    a(f"buffer_store_dwordx4 {vr(XF+8,4)}, v{TM+6}, {srd(sH)}, s{sT0} offen {opt.hbits}")
    a.label("L_ln_two")
    a("s_waitcnt lgkmcnt(0)")
    for i in range(2):
        a(f"s_add_u32 s{sT0}, s{sSTEP}, {i*4096}")
        a(f"buffer_store_dwordx4 {vr(XF+4*i,4)}, v{TM+6}, {srd(sH)}, s{sT0} offen {opt.hbits}")
    if not (opt.unsafe & 2): a(f"buffer_load_dword v{vPOLL}, v{vT}, {srd(sD)}, 0 offen sc1")
    stamp(a, opt, 2)
    if opt.unsafe & 2:
        a("s_barrier")
        a(f"s_cmp_lg_u32 s{sWAVE}, 0")
        a("s_cbranch_scc1 L_noflag0")
        a(f"s_lshl_b32 s{sT0}, s{sWG}, 2")
        flag_store(a, sT0)
        a.label("L_noflag0")
    a(f"s_cmp_ge_u32 s{sJ}, s{sJLIM}")
    a("s_cbranch_scc1 L_ln_idle2")
    ne = opt.nearly + opt.nmid
    a.vm = [f"w1_{i}" for i in range(ne)]
    for i in range(ne, ne + opt.npost): w1_dma(i)
    if not (opt.unsafe & 2): a(f"s_waitcnt vmcnt({4*opt.npost})")
    a("s_branch L_ln_go2")
    a.label("L_ln_idle2")
    if not (opt.unsafe & 2): a("s_waitcnt vmcnt(0)")
    a.label("L_ln_go2")
    if not (opt.unsafe & 2):
        a(f"v_readfirstlane_b32 s{sNONCE}, v{vPOLL}")
        nonce_spin(a, opt)
        a("s_barrier")
        a(f"s_cmp_lg_u32 s{sWAVE}, 0")
        a("s_cbranch_scc1 L_noflag")
        a(f"s_lshr_b32 s{sT0}, s{sWG}, 2")
        a(f"s_mul_i32 s{sT0}, s{sT0}, {opt.hline}")
        a(f"s_and_b32 s{sT1}, s{sWG}, 3")
        a(f"s_lshl_b32 s{sT1}, s{sT1}, 2")
        a(f"s_add_u32 s{sT0}, s{sT0}, s{sT1}")
        keep = list(a.vm)
        flag_store(a, sT0)
        a.vm = keep
        a.label("L_noflag")
    stamp(a, opt, 3)
    a(f"s_cmp_ge_u32 s{sJ}, s{sJLIM}")
    a("s_cbranch_scc1 L_nogemm1")
    w1_finish = w1_stream(opt.nearly + opt.nmid + opt.npost, opt.dp, opt.hold1)

    def common_setup(retr=True):
        make_srd(a, sH, 18, H_BYTES, WS_H)
        make_srd(a, sF, 18, FLAG_BYTES, WS_FLAG)
        make_srd(a, sB1, 8, F * 2)
        make_srd(a, sW2, 10, F * S * 2)
        make_srd(a, sB2, 12, S * 2)
        make_srd(a, sO, 14, S * D * 2)
        make_srd(a, sG, 18, G_BYTES, WS_G)
        a(f"v_lshrrev_b32 v{vT}, 4, v{vLANE}")
        a(f"v_lshlrev_b32 v{vT}, 3, v{vT}")
        a(f"s_and_b32 s{sT0}, s{sWAVE}, 1")
        a(f"s_lshl_b32 s{sT0}, s{sT0}, 6")
        a(f"s_lshl_b32 s{sT1}, s{sFT}, 7")
        a(f"s_add_u32 s{sT0}, s{sT0}, s{sT1}")
        a.vmem(f"buffer_load_dwordx2 {vr(vB1,2)}, v{vT}, {srd(sB1)}, s{sT0} offen", "b")
        a.vmem(f"buffer_load_dwordx2 {vr(vB1+2,2)}, v{vT}, {srd(sB1)}, s{sT0} offen offset:32", "b")
        a(f"v_and_b32 v{vT}, 15, v{vLANE}")
        a(f"v_lshlrev_b32 v{vT}, 1, v{vT}")
        a(f"s_lshl_b32 s{sT0}, s{sST}, 7")
        a(f"s_lshl_b32 s{sT1}, s{sWAVE}, 5")
        a(f"s_add_u32 s{sT0}, s{sT0}, s{sT1}")
        a.vmem(f"buffer_load_ushort v{vB2}, v{vT}, {srd(sB2)}, s{sT0} offen", "b")
        dma_addr(a, S * 2, sST)
        a(f"s_mul_i32 s{sWB}, s{sWAVE}, {448*S*2}")
        if retr: tr_addr(sM0B)
        a(f"s_sub_u32 s{sT0}, s{sUP}, s{sM0B}")
        for t in range(4):
            a(f"v_add_u32 v{vTRU+t}, s{sT0}, v{vTR+t}")
        a(f"v_lshlrev_b32 v{vL0}, 4, v{vLANE}")
        a(f"v_add_u32 v{vL1}, 65536, v{vL0}")
        a(f"v_add_u32 v{vL2}, 131072, v{vL0}")

    a.label("L_w1_ready")
    stamp(a, opt, 4)
    jitter(a, opt, 2)
    vm_keep = list(a.vm)
    common_setup(retr=False)
    a(f"s_mul_i32 s{sT0}, s{sDT1}, 5120")
    a(f"v_add_u32 v{vA}, s{sT0}, v{vL0}")
    a(f"v_add_u32 v{vA2}, 4096, v{vA}")
    a(f"s_cmp_lg_u32 s{sWAVE}, {opt.pollw}")
    a("s_cbranch_scc1 L_hpolled")
    if opt.epoll:
        if opt.elate:
            a(f"s_and_b32 s{sT0}, s{sWG}, 4")
            a(f"s_cmp_eq_u32 s{sT0}, 0")
            a("s_cbranch_scc1 L_hfull")
        a(f"s_waitcnt vmcnt({4*(15 - opt.epoll) + 3})")
        poll_check(a, 4, None, "L_hpolled")
        if opt.elate: a.label("L_hfull")
    if opt.pipe & 1:
        a("s_waitcnt vmcnt(0)")
        poll_pipe(a, opt, vHP, None, opt.gap)
    else:
        poll(a, opt, vHP, 4, None, opt.sleeph, opt.preh, 1)
    a.label("L_hpolled")
    a.vm = vm_keep + ["b", "b", "b"]
    a("s_barrier")
    stamp(a, opt, 5)

    def a_loads(srdn, step, nsteps, s_rot):
        slot = step % NS
        step_off(a, sOFF, sSTEP, s_rot, step, nsteps, 40960)
        return [f"buffer_load_dwordx4 {vr(ring(slot,t),4)}, v{vA if t < 4 else vA2}, {srd(srdn)}, s{sOFF} offen offset:{(t*1024) if t < 4 else 0} {opt.abits}" for t in range(5)]

    def main_loop(srdn, nsteps, s_rot, tagp, mfma, stamp0, tail, nuni, pre=None, dist=None):
        def load(n):
            st, o = divmod(n, 5)
            if st >= nsteps: return
            if o == 0: step_off(a, sOFF, sSTEP, s_rot, st, nsteps, 40960)
            a.vmem(f"buffer_load_dwordx4 {vr(ring(st % NS, o),4)}, v{vA if o < 4 else vA2}, {srd(srdn)}, s{sOFF} offen "
                   f"offset:{(o*1024) if o < 4 else 0} {opt.abits}", f"{tagp}{st}_{o}")
        dist = dist or opt.dist
        assert dist < 5 * NS
        for n in range(dist): load(n)
        if pre: pre()
        for st in range(nuni):
            for o in range(5):
                n = 5 * st + o
                if opt.fine == 1: load(n + dist)
                a.wait_vm(f"{tagp}{st}_{o}")
                if n == 0 and stamp0 is not None: stamp(a, opt, stamp0)
                if opt.fine == 2: load(n + dist)
                for i in range(4): mfma(st, o, i, st % NS)
                if tail: tail(st, o)
        assert 5 * nuni - 1 + dist >= 5 * nsteps - 1, "loads left for the tail"

    def tile_tail(nsteps, tagp, first, last, frag_of, mfma_tile, write_tile, extra):
        ic = [0]
        done_at = {}
        queue = []
        extra = list(extra)
        def emit(fn):
            fn(); ic[0] += 1
        def filler():
            if queue and ic[0] - done_at[queue[0]] >= 9:
                t = queue.pop(0); emit(lambda: write_tile(t)); return
            if extra: emit(extra.pop(0))
        tiles = list(first) + list(last)
        for i in range(0, len(tiles), 2):
            pair = tiles[i:i + 2]
            for t in pair:
                for st in (nsteps - 2, nsteps - 1): a.wait_vm(f"{tagp}{st}_{frag_of(t)}")
            for st in (nsteps - 2, nsteps - 1):
                for t in pair:
                    emit(lambda: mfma_tile(st, t))
                    if st == nsteps - 1:
                        done_at[t] = ic[0]
                        if t in first: queue.append(t)
                    filler()
        while extra: emit(extra.pop(0))
        while queue:
            while ic[0] - done_at[queue[0]] < 9: emit(lambda: a("s_nop 0"))
            t = queue.pop(0); emit(lambda: write_tile(t))

    a(f"s_mul_i32 s{sSTEP}, s{sWAVE}, {16*40960}")
    def mfma1(st, nt, mt, slot):
        c = "0" if st == 0 else vr(acc1(mt, nt), 4)
        a(f"v_mfma_f32_16x16x32_bf16 {vr(acc1(mt,nt),4)}, {ar(wfrag(st,mt),4)}, {vr(ring(slot,nt),4)}, {c}")
    parts13 = w2_dma_parts(a, 0) if opt.t13 else []
    def tail1(st, o):
        if st == 13 and parts13:
            if o == 0: parts13[0]()
            else: parts13[o]()
    main_loop(sH, 16, sROT1, "h", mfma1, 6, tail1, 14, w1_finish if opt.hold1 else None)

    a(f"s_mov_b32 s100, {f2h(C1)}"); a(f"s_mov_b32 s101, {f2h(C1)}")
    a(f"v_mov_b32 v{vC0}, {f2h(C0)}"); a(f"v_mov_b32 v{vC0+1}, {f2h(C0)}")
    def lds_ref(addr):
        if addr < 65536: return vL0, addr
        if addr < 131072: return vL1, addr - 65536
        return vL2, addr - 131072
    def owner1(p, nt): return p + (0 if nt < 3 else 2)
    units = [(p, nt) for p in range(2) for nt in range(5)]
    def red1_addr(src, u):
        k = [x for x in units if owner1(*x) != src].index(u)
        return src * 32768 + 24576 + k * 2048 if k < 4 else 131072 + src * 8192 + (k - 4) * 2048
    saved_vm = list(a.vm)
    for w in range(4):
        if w < 3:
            a(f"s_cmp_lg_u32 s{sWAVE}, {w}")
            a(f"s_cbranch_scc1 L_ep1_{w+1}")
        a.vm = list(saved_vm)
        nis = [1 if opt.t13 else 0]
        def more(n, limit):
            for _ in range(n):
                if nis[0] < limit:
                    w2_dma(a, nis[0]); nis[0] += 1
        tl = [(2 * p + hf, nt) for nt in range(5) for p in range(2) for hf in range(2)]
        first = [t for t in tl if owner1(t[0] // 2, t[1]) != w]
        last = [t for t in tl if owner1(t[0] // 2, t[1]) == w]
        def wr1(t):
            vb, off = lds_ref(red1_addr(w, (t[0] // 2, t[1])) + (t[0] & 1) * 1024)
            a(f"ds_write_b128 v{vb}, {vr(acc1(*t),4)} offset:{off}")
        extra = []
        for _ in range(opt.tt):
            extra += w2_dma_parts(a, nis[0]); nis[0] += 1
        tile_tail(16, "h", first, last, lambda t: t[1], lambda st, t: mfma1(st, t[1], t[0], st % NS), wr1, extra)
        stamp(a, opt, 7)
        jitter(a, opt, 3)
        more(opt.e1, 6)
        a("s_waitcnt lgkmcnt(0)")
        a("s_barrier")
        own_u = [u for u in units if owner1(*u) == w]
        RT = vRING
        n = 0
        for u in own_u:
            for src in range(4):
                if src == w: continue
                for hf in range(2):
                    vb, off = lds_ref(red1_addr(src, u) + hf * 1024)
                    a(f"ds_read_b128 {vr(RT + n*4, 4)}, v{vb} offset:{off}")
                    n += 1
        a.wait_vm("b")
        for i in range(4):
            a(f"v_lshlrev_b32 v{BI+2*i}, 16, v{vB1+i}")
            a(f"v_and_b32 v{BI+2*i+1}, 0xffff0000, v{vB1+i}")
        for u in own_u:
            p, nt = u
            for hf in range(2):
                r = acc1(2*p+hf, nt)
                a(f"v_pk_add_f32 {vr(r,2)}, {vr(r,2)}, {vr(BI+4*hf,2)}")
                a(f"v_pk_add_f32 {vr(r+2,2)}, {vr(r+2,2)}, {vr(BI+4*hf+2,2)}")
        n = 0
        tot = len(own_u) * 6
        for u in own_u:
            p, nt = u
            for si in range(3):
                for hf in range(2):
                    a(f"s_waitcnt lgkmcnt({min(15, tot - n - 1)})")
                    r = acc1(2*p+hf, nt)
                    a(f"v_pk_add_f32 {vr(r,2)}, {vr(r,2)}, {vr(RT+n*4,2)}")
                    a(f"v_pk_add_f32 {vr(r+2,2)}, {vr(r+2,2)}, {vr(RT+n*4+2,2)}")
                    n += 1
        a("s_barrier")
        regs = []
        for u in own_u:
            p, nt = u
            for hf in range(2):
                r = acc1(2*p+hf, nt)
                regs += [r, r + 2]
        more(opt.e2, 10)
        gelu_pairs(a, regs, RT, fill=lambda: more(opt.e3, 10))
        a(f"s_lshl_b32 s{sT0}, s{sFT}, 1")
        a(f"s_add_u32 s{sT0}, s{sT0}, {w & 1}")
        a(f"s_mul_i32 s{sT0}, s{sT0}, 40960")
        a(f"s_mul_i32 s{sT1}, s{sDT1}, 5120")
        a(f"s_add_u32 s{sT0}, s{sT0}, s{sT1}")
        for i, u in enumerate(own_u):
            p, nt = u
            o = RT + 64 + 4 * i
            r0, r1 = acc1(2*p, nt), acc1(2*p+1, nt)
            a(f"v_cvt_pk_bf16_f32 v{o}, v{r0}, v{r0+1}")
            a(f"v_cvt_pk_bf16_f32 v{o+1}, v{r0+2}, v{r0+3}")
            a(f"v_cvt_pk_bf16_f32 v{o+2}, v{r1}, v{r1+1}")
            a(f"v_cvt_pk_bf16_f32 v{o+3}, v{r1+2}, v{r1+3}")
            a(f"s_add_u32 s{sT1}, s{sT0}, {nt*1024}")
            a.vmem(f"buffer_store_dwordx4 {vr(o,4)}, v{vL0}, {srd(sG)}, s{sT1} offen {opt.gbits}", "g")
        stamp(a, opt, 8)
        jitter(a, opt, 4)
        def g_flag():
            a(f"s_lshl_b32 s{sT0}, s{sDT1}, 5")
            a(f"s_add_u32 s{sT0}, s{sT0}, s{sFT}")
            a(f"s_mul_i32 s{sT0}, s{sT0}, {opt.gstride}")
            a(f"s_add_u32 s{sT0}, s{sT0}, {FLAG_G + 4*w}")
            flag_store(a, sT0, sector=bool(opt.gsec and opt.gwg))
            stamp(a, opt, 9)
        if opt.unsafe & 1:
            a("s_barrier")
            if w == 0:
                keep = list(a.vm); g_flag(); a.vm = keep
        more(opt.nb, 10)
        def tr_first4():
            a.wait_vm("w2_3")
            for st in range(4):
                w2_tr(a, st)
                if st % 2 == 1: a("s_waitcnt lgkmcnt(0)")
        if not opt.flagfirst: tr_first4()
        if not (opt.unsafe & 1):
            a.wait_vm("g")
            if opt.gwg:
                a("s_barrier")
                if w == 0:
                    keep = list(a.vm); g_flag(); a.vm = keep
            else:
                g_flag()
        if opt.flagfirst:
            more(max(0, 4 - nis[0]), 10)
            more(opt.nb3, 10)
            tr_first4()
        assert nis[0] >= 4
        more(10, 10)
        more(4, 14)
        for st in range(4, 10):
            a.wait_vm(f"w2_{st}")
            w2_tr(a, st)
            if st % 2 == 1: a("s_waitcnt lgkmcnt(0)")
        a("s_branch L_pre2")
        if w < 3: a.label(f"L_ep1_{w+1}")

    a.label("L_nogemm1")
    a.vm = []
    common_setup()
    if False:
        a(f"s_lshl_b32 s{sT0}, s{sWAVE}, 6")
        a(f"v_add_u32 v{vX}, s{sT0}, v{vLANE}")
        a(f"v_mul_u32_u24 v{vX}, {opt.hstride}, v{vX}")
        poll(a, opt, vX, 2, None)
        if opt.idlewait > 1:
            a(f"s_sleep {opt.idlewait}")
    if opt.pf == 3:
        a(f"s_lshl_b32 s{sT0}, s{sIDLE}, 2")
        a(f"s_add_u32 s{sT0}, s{sT0}, s{sWAVE}")
        a(f"s_lshl_b32 s{sT0}, s{sT0}, 10")
        for k in range(44):
            o = vRING + (k % 16) * 4
            a.vmem(f"buffer_load_dwordx4 {vr(o,4)}, v{vL0}, {srd(sW2)}, s{sT0} offen {opt.pfbits}", f"pf{k}")
            a(f"s_add_u32 s{sT0}, s{sT0}, {160*1024}")
            if k >= opt.pfdepth: a.wait_vm(f"pf{k-opt.pfdepth}")
        a.wait_vm0()
    if opt.pf == 2:
        assert opt.p1 == 2 and opt.p2 == 1
        a(f"s_cmp_lt_u32 s{sJ}, 28")
        a("s_cbranch_scc1 L_nopf")
        a(f"s_sub_u32 s{sT0}, s{sJ}, 28")
        a(f"s_lshl_b32 s{sT0}, s{sT0}, 2")
        a(f"s_add_u32 s{sT0}, s{sT0}, s{sWAVE}")
        a(f"s_lshl_b32 s{sT0}, s{sT0}, 13")
        a(f"s_lshl_b32 s{sT1}, s{sXCD}, 9")
        a(f"s_add_u32 s{sT0}, s{sT0}, s{sT1}")
        a(f"v_lshrrev_b32 v{vX}, 5, v{vLANE}")
        a(f"v_lshlrev_b32 v{vX}, 12, v{vX}")
        a(f"v_and_b32 v{vX+1}, 31, v{vLANE}")
        a(f"v_lshlrev_b32 v{vX+1}, 4, v{vX+1}")
        a(f"v_add_u32 v{vX}, v{vX}, v{vX+1}")
        keep = list(a.vm)
        for k in range(54):
            o = vRING + (k % 16) * 4
            a.vmem(f"buffer_load_dwordx4 {vr(o,4)}, v{vX}, {srd(sW2)}, s{sT0} offen", f"pf{k}")
            a(f"s_add_u32 s{sT0}, s{sT0}, {16*8192}")
            if k >= opt.pfdepth: a.wait_vm(f"pf{k-opt.pfdepth}")
        a.wait_vm0()
        a.label("L_nopf")
        a.vm = keep
    for st in range(10): w2_dma(a, st)
    for st in range(4):
        a.wait_vm(f"w2_{st}")
        w2_tr(a, st)
        if st % 2 == 1: a("s_waitcnt lgkmcnt(0)")
    for st in range(10, 14): w2_dma(a, st)
    for st in range(4, 10):
        a.wait_vm(f"w2_{st}")
        w2_tr(a, st)
        if st % 2 == 1: a("s_waitcnt lgkmcnt(0)")

    if opt.idle1:
        a("s_waitcnt vmcnt(0)")
        a(f"s_cmp_lg_u32 s{sWAVE}, {opt.pollw}")
        a("s_cbranch_scc1 L_idle1")
        a(f"s_lshl_b32 s{sT0}, s{sDT2}, 5")
        a(f"s_add_u32 s{sT0}, s{sT0}, {opt.idle1ft}")
        a(f"s_mul_i32 s{sT0}, s{sT0}, {opt.gstride}")
        a(f"s_add_u32 s{sT0}, s{sT0}, {FLAG_G}")
        a(f"v_mov_b32 v{vX}, s{sT0}")
        poll(a, opt, vX, 1, None, opt.idle1)
        a.label("L_idle1")
    a.label("L_pre2")
    a(f"s_mul_i32 s{sT0}, s{sDT2}, 5120")
    a(f"v_add_u32 v{vA}, s{sT0}, v{vL0}")
    a(f"v_add_u32 v{vA2}, 4096, v{vA}")
    def w2_finish():
        a.wait_vm("w2all")
        a("s_waitcnt lgkmcnt(0)")
        for st in range(10, 14):
            w2_tr(a, st)
            if st % 2 == 1: a("s_waitcnt lgkmcnt(0)")
    if not opt.hold2:
        a.vm = ["w2all"]
        w2_finish()
    stamp(a, opt, 10)
    if opt.onepoll & 2:
        a(f"s_cmp_lg_u32 s{sWAVE}, {opt.pollw}")
        a("s_cbranch_scc1 L_gpolled")
        a(f"s_lshl_b32 s{sT0}, s{sDT2}, 5")
        a(f"s_mul_i32 s{sT0}, s{sT0}, {opt.gstride}")
        a(f"s_add_u32 s{sT0}, s{sT0}, {FLAG_G}")
        a(f"v_mul_u32_u24 v{vX}, {opt.gstride}, v{vLANE}")
        a(f"v_add_u32 v{vX}, s{sT0}, v{vX}")
        a(f"s_mov_b32 s{sP+2}, 0x7ffffff")
        a(f"s_mov_b32 s{sP+3}, 0")
        if opt.pipe & 2:
            a("s_waitcnt vmcnt(0)")
            poll_pipe(a, opt, vX, sP + 2, opt.gap, 1 if opt.gwg else 4)
        else:
            poll(a, opt, vX, 1 if opt.gwg else 4, sP + 2, opt.sleep, opt.preg)
        a.label("L_gpolled")
        a("s_barrier")
    else:
        a(f"s_lshl_b32 s{sT0}, s{sDT2}, 5")
        a(f"s_mul_i32 s{sT1}, s{sWAVE}, 7")
        a(f"s_add_u32 s{sT0}, s{sT0}, s{sT1}")
        a(f"s_mul_i32 s{sT0}, s{sT0}, {opt.gstride}")
        a(f"s_add_u32 s{sT0}, s{sT0}, {FLAG_G}")
        a(f"v_mul_u32_u24 v{vX}, {opt.gstride}, v{vLANE}")
        a(f"v_add_u32 v{vX}, s{sT0}, v{vX}")
        a(f"s_cmp_eq_u32 s{sWAVE}, 3")
        a(f"s_cselect_b32 s{sP+2}, 0x3f, 0x7f")
        a(f"s_mov_b32 s{sP+3}, 0")
        poll(a, opt, vX, 4, sP + 2, opt.sleep, opt.preg)
    a.vm = ["w2all"] if opt.hold2 else []
    stamp(a, opt, 11)
    a(f"s_mul_i32 s{sSTEP}, s{sWAVE}, {14*40960}")
    def mfma2(st, mt, nt, slot):
        c = "0" if st == 0 else vr(acc2(mt, nt), 4)
        a(f"v_mfma_f32_16x16x32_bf16 {vr(acc2(mt,nt),4)}, {vr(ring(slot,mt),4)}, {ar(wfrag(st,nt),4)}, {c}")
    main_loop(sG, 14, sROT2, "g", mfma2, 12, None, 12, w2_finish if opt.hold2 else None, dist=opt.dist2)
    saved_vm2 = list(a.vm)
    a(f"v_and_b32 v{vT}, 15, v{vLANE}")
    a(f"s_lshl_b32 s{sT0}, s{sWAVE}, 4")
    a(f"v_add_u32 v{vT}, s{sT0}, v{vT}")
    a(f"v_mul_u32_u24 v{vA}, 1280, v{vT}")
    a(f"v_lshrrev_b32 v{vT}, 4, v{vLANE}")
    a(f"v_lshlrev_b32 v{vT}, 3, v{vT}")
    a(f"v_add_u32 v{vA}, v{vA}, v{vT}")
    a(f"s_mul_i32 s{sT0}, s{sST}, {64*1280}")
    a(f"s_mul_i32 s{sT1}, s{sDT2}, 160")
    a(f"s_add_u32 s{sOFF}, s{sT0}, s{sT1}")
    a(f"v_lshlrev_b32 v{vC0}, 16, v{vB2}")
    a(f"v_lshlrev_b32 v{vC0+1}, 16, v{vB2}")
    a(f"v_sub_u32 v{vA2}, v{vA}, v{vT}")
    a(f"v_bfe_u32 v{vT}, v{vLANE}, 4, 1")
    a(f"v_lshlrev_b32 v{vT}, 5, v{vT}")
    a(f"v_add_u32 v{vA2}, v{vA2}, v{vT}")
    a(f"v_bfe_u32 v{vT}, v{vLANE}, 5, 1")
    a(f"v_lshlrev_b32 v{vT}, 4, v{vT}")
    a(f"v_add_u32 v{vA2}, v{vA2}, v{vT}")
    def red2_addr(src, nt, mt):
        k = [x for x in range(4) if x != src].index(nt)
        return src * 32768 + (k * 5 + mt) * 1024
    for w in range(4):
        if w < 3:
            a(f"s_cmp_lg_u32 s{sWAVE}, {w}")
            a(f"s_cbranch_scc1 L_ep2_{w+1}")
        a.vm = list(saved_vm2)
        tl = [(mt, nt) for mt in range(5) for nt in range(4)]
        def wr2(t):
            vb, off = lds_ref(red2_addr(w, t[1], t[0]))
            a(f"ds_write_b128 v{vb}, {vr(acc2(*t),4)} offset:{off}")
        tile_tail(14, "g", [t for t in tl if t[1] != w], [t for t in tl if t[1] == w], lambda t: t[0],
                  lambda st, t: mfma2(st, t[0], t[1], st % NS), wr2, [])
        stamp(a, opt, 13)
        jitter(a, opt, 5)
        a("s_waitcnt lgkmcnt(0)")
        a("s_barrier")
        RT = vRING
        def read_partials(order):
            n = 0
            for mt in order:
                for src in range(4):
                    if src == w: continue
                    vb, off = lds_ref(red2_addr(src, w, mt))
                    a(f"ds_read_b128 {vr(RT+n*4,4)}, v{vb} offset:{off}")
                    n += 1
        def finish_tiles(single):
            n = 0
            paired = [m for m in range(5) if m != single]
            order = ([single] + paired) if opt.sfirst else list(range(5))
            read_partials(order)
            for mt in order:
                r = acc2(mt, w)
                for si in range(3):
                    a(f"s_waitcnt lgkmcnt({14 - n})")
                    a(f"v_pk_add_f32 {vr(r,2)}, {vr(r,2)}, {vr(RT+n*4,2)}")
                    a(f"v_pk_add_f32 {vr(r+2,2)}, {vr(r+2,2)}, {vr(RT+n*4+2,2)}")
                    n += 1
                a(f"v_pk_add_f32 {vr(r,2)}, {vr(r,2)}, {vr(vC0,2)}")
                a(f"v_pk_add_f32 {vr(r+2,2)}, {vr(r+2,2)}, {vr(vC0,2)}")
                if mt == single: o = RT + 72
                else: o = RT + 64 + 2 * paired.index(mt)
                a(f"v_cvt_pk_bf16_f32 v{o}, v{r}, v{r+1}")
                a(f"v_cvt_pk_bf16_f32 v{o+1}, v{r+2}, v{r+3}")
                if not opt.wide or mt == single:
                    a(f"buffer_store_dwordx2 {vr(o,2)}, v{vA}, {srd(sO)}, s{sOFF} offen offset:{mt*32} {opt.obits1}")
                elif paired.index(mt) % 2 == 1:
                    a("s_nop 1")
                    a(f"v_permlane16_swap_b32 v{o-2}, v{o}")
                    a(f"v_permlane16_swap_b32 v{o-1}, v{o+1}")
                    a(f"buffer_store_dwordx4 {vr(o-2,4)}, v{vA2}, {srd(sO)}, s{sOFF} offen offset:{(mt-1)*32} {opt.obits}")
        if opt.align64:
            a(f"s_and_b32 s{sT0}, s{sDT2}, 1")
            a(f"s_cmp_lg_u32 s{sT0}, 0")
            a(f"s_cbranch_scc1 L_odd_{w}")
            finish_tiles(4)
            a("s_branch L_fin")
            a.label(f"L_odd_{w}")
            finish_tiles(0)
        else:
            finish_tiles(4)
        a("s_branch L_fin")
        if w < 3: a.label(f"L_ep2_{w+1}")
    a.label("L_fin")
    if opt.probe >= 0:
        if opt.probe == 14:
            a("s_waitcnt vmcnt(0)")
            stamp(a, opt, 14)
        a(f"s_cmp_lg_u32 s{sWG}, {opt.probewg}")
        a("s_cbranch_scc1 L_done")
        a(f"s_cmp_lg_u32 s{sWAVE}, {opt.probew}")
        a("s_cbranch_scc1 L_done")
        ref = sNONCE if opt.probeabs else (sPROF + 2 if opt.probe0 >= 0 else 96)
        a(f"s_sub_u32 s{sT1}, s{sPROF+1}, s{ref}")
        if opt.probecyc: a(f"s_lshr_b32 s{sT1}, s{sT1}, 2")
        else: a(f"s_lshl_b32 s{sT1}, s{sT1}, 2")
        a(f"s_add_u32 s{sT1}, s{sT1}, 4000")
        a.label("L_probe")
        a(f"s_memrealtime s[{sP}:{sP+1}]")
        a("s_waitcnt lgkmcnt(0)")
        a(f"s_sub_u32 s{sT0}, s{sP}, s96")
        a(f"s_cmp_lt_u32 s{sT0}, s{sT1}")
        a("s_cbranch_scc1 L_probe")
    if opt.pad:
        a.label("L_pad")
        a(f"s_memrealtime s[{sP}:{sP+1}]")
        a("s_waitcnt lgkmcnt(0)")
        a(f"s_sub_u32 s{sT0}, s{sP}, s96")
        a(f"s_cmp_lt_u32 s{sT0}, {opt.pad}")
        a("s_cbranch_scc1 L_pad")
    if opt.prof:
        a("s_waitcnt vmcnt(0)")
        stamp(a, opt, 14)
        make_srd(a, sX, 18, 65536, WS_PROF)
        a(f"s_lshl_b32 s{sT0}, s{sWG}, 2")
        a(f"s_add_u32 s{sT0}, s{sT0}, s{sWAVE}")
        a(f"s_lshl_b32 s{sT0}, s{sT0}, 6")
        a(f"v_mov_b32 v{vT}, s{sT0}")
        a("s_mov_b64 exec, 1")
        for i in range(15):
            a(f"v_mov_b32 v100, s{sPROF+i}")
            a(f"buffer_store_dword v100, v{vT}, {srd(sX)}, 0 offen offset:{4*i}")
            a("s_nop 1")
        a("s_waitcnt vmcnt(0)")
    a.label("L_done")
    a("s_endpgm")
    a.label("L_codeend")
    a.raw('.section .rodata,"a"')
    a.raw(".p2align 6")
    a.raw(f".amdhsa_kernel {KN}")
    for l in ["next_free_vgpr 512", "next_free_sgpr 102", "accum_offset 256", "group_segment_fixed_size 0",
              "kernarg_size 64", "user_sgpr_count 2", "user_sgpr_kernarg_segment_ptr 1",
              "system_sgpr_workgroup_id_x 1", "float_denorm_mode_32 3"]:
        a.raw(f"  .amdhsa_{l}")
    a.raw(".end_amdhsa_kernel")
    return "\n".join(a.L) + "\n"

def parse(argv=None):
    ap = argparse.ArgumentParser()
    ap.add_argument("-o", default="standalone__mixer_token_mlp__prompt.s")
    ap.add_argument("--prof", type=int, default=0)
    ap.add_argument("--rot", type=int, default=3)
    ap.add_argument("--spin", type=int, default=20000)
    ap.add_argument("--sleep", type=int, default=8)
    ap.add_argument("--depth", type=int, default=3)
    ap.add_argument("--lnprof", type=int, default=0)
    ap.add_argument("--hbits", default="sc1")
    ap.add_argument("--pfwait", type=int, default=1)
    ap.add_argument("--hold", type=int, default=0)
    ap.add_argument("--probe", type=int, default=-1)
    ap.add_argument("--probe0", type=int, default=-1)
    ap.add_argument("--probecyc", type=int, default=0)
    ap.add_argument("--probeabs", type=int, default=0)
    ap.add_argument("--probewg", type=int, default=100)
    ap.add_argument("--probew", type=int, default=2)
    ap.add_argument("--rot8", type=int, default=1)
    ap.add_argument("--cpf", type=int, default=1)
    ap.add_argument("--cpfw", type=int, default=3)
    ap.add_argument("--wide", type=int, default=1)
    ap.add_argument("--idlewait", type=int, default=0)
    ap.add_argument("--sleeph", type=int, default=4)
    ap.add_argument("--preh", type=int, default=0)
    ap.add_argument("--preg", type=int, default=0)
    ap.add_argument("--onepoll", type=int, default=3)
    ap.add_argument("--pollw", type=int, default=3)
    ap.add_argument("--nta", type=int, default=0)
    ap.add_argument("--rotg1", type=int, default=0)
    ap.add_argument("--rotg2", type=int, default=0)
    ap.add_argument("--npost", type=int, default=3)
    ap.add_argument("--xbar", type=int, default=1)
    ap.add_argument("--hold1", type=int, default=4)
    ap.add_argument("--hold2", type=int, default=1)
    ap.add_argument("--nmid", type=int, default=0)
    ap.add_argument("--gbits", default="sc1")
    ap.add_argument("--fbits", default="sc1")
    ap.add_argument("--abits", default="sc1")
    ap.add_argument("--unsafe", type=int, default=0)
    ap.add_argument("--epoll", type=int, default=12)
    ap.add_argument("--pipe", type=int, default=0)
    ap.add_argument("--gap", type=int, default=2)
    ap.add_argument("--gwg", type=int, default=1)
    ap.add_argument("--hline", type=int, default=16)
    ap.add_argument("--idle1", type=int, default=0)
    ap.add_argument("--idle1ft", type=int, default=13)
    ap.add_argument("--jitter", type=int, default=0)
    ap.add_argument("--flagfirst", type=int, default=0)
    ap.add_argument("--nb3", type=int, default=2)
    ap.add_argument("--pairx", type=int, default=1)
    ap.add_argument("--xpf", type=int, default=0)
    ap.add_argument("--fine", type=int, default=2)
    ap.add_argument("--dist", type=int, default=12)
    ap.add_argument("--align64", type=int, default=1)
    ap.add_argument("--obits1", default="sc0 sc1")
    ap.add_argument("--sfirst", type=int, default=0)
    ap.add_argument("--gsec", type=int, default=0)
    ap.add_argument("--dist2", type=int, default=12)
    ap.add_argument("--elate", type=int, default=0)
    ap.add_argument("--t13", type=int, default=1)
    ap.add_argument("--tt", type=int, default=2)
    ap.add_argument("--e2", type=int, default=0)
    ap.add_argument("--e3", type=int, default=0)
    ap.add_argument("--nb2", type=int, default=0)
    ap.add_argument("--e1", type=int, default=1)
    ap.add_argument("--nb", type=int, default=2)
    ap.add_argument("--nearly", type=int, default=2)
    ap.add_argument("--dpl", type=int, default=5)
    ap.add_argument("--dp", type=int, default=4)
    ap.add_argument("--p1", type=int, default=2)
    ap.add_argument("--p2", type=int, default=1)
    ap.add_argument("--rota1", type=int, default=0)
    ap.add_argument("--rota2", type=int, default=0)
    ap.add_argument("--xbits", default="nt")
    ap.add_argument("--w1bits", default="")
    ap.add_argument("--w2bits", default="")
    ap.add_argument("--pfbits", default="")
    ap.add_argument("--pfdepth", type=int, default=8)
    ap.add_argument("--prio", type=int, default=3)
    ap.add_argument("--delay", type=int, default=0)
    ap.add_argument("--hstride", type=int, default=8)
    ap.add_argument("--gstride", type=int, default=256)
    ap.add_argument("--pf", type=int, default=0)
    ap.add_argument("--pad", type=int, default=0)
    ap.add_argument("--obits", default="sc0 sc1")
    return ap.parse_args(argv)

if __name__ == "__main__":
    opt = parse()
    open(opt.o, "w").write(gen(opt))
```

```python
import argparse, struct

S, D, F = 2048, 640, 1728
KN = "standalone__mixer_token_mlp__prompt_kernel"

WS_H = 0
H_BYTES = 64 * 40 * 1024
WS_G = 0x300000
G_BYTES = 54 * 40 * 1024
WS_FLAG = 0x600000
FLAG_H = 0
FLAG_G = 0x10000
FLAG_BYTES = 0x40000
WS_PROF = 0x700000

LDS_BYTES = 163840
LN_BASE = 131072
LN_ROW = 1344
LF_BASE = 141824
P0_BASE = [0, 49152, 98304, 122880]

sWG = 2
sX, sW1, sW2, sH, sG, sO, sF, sB1, sB2, sD = 20, 24, 28, 32, 36, 40, 44, 48, 52, 56
sWAVE, sXCD, sJ, sFT, sDT1, sST, sDT2, sNONCE = 60, 61, 62, 63, 64, 65, 66, 67
sT0, sT1, sT2, sT3, sT4, sT5 = 68, 69, 70, 71, 72, 73
sROT1, sROT2, sSTEP, sOFF = 74, 75, 76, 77
sM0B, sSPIN = 78, 79
sP = 80
sPROF = 84
sUP = 99
sJLIM, sIDLE = 100, 101
sWB = 3

vTID, vLANE = 0, 1
vTR = 2
vA, vA2, vDMA, vT2 = 6, 7, 8, 9
vB1 = 10
vB2, vT = 14, 15
vACC = 16
vRING = 96
vTRU = 196
vL0, vL1, vL2 = 200, 201, 202
vC0 = 204
BI = 206
vPOLL = 214
vX = 216
vFS = 248
vHP = 226
vPQ = 228
vDM = 220

def srd(n): return f"s[{n}:{n+3}]"
def vr(n, c=1): return f"v{n}" if c == 1 else f"v[{n}:{n+c-1}]"
def ar(n, c=1): return f"a{n}" if c == 1 else f"a[{n}:{n+c-1}]"
def f2h(x): return "0x%08x" % struct.unpack("<I", struct.pack("<f", x))[0]
C0 = -2.0 * 0.7978845608028654 * 1.4426950408889634
C1 = C0 * 0.044715

class Asm:
    def __init__(self):
        self.L = []; self.vm = []; self.uid = 0
    def __call__(self, s): self.L.append("    " + s)
    def label(self, s): self.L.append(s + ":")
    def raw(self, s): self.L.append(s)
    def c(self, s): self.L.append("    ; " + s)
    def vmem(self, s, tag):
        self(s); self.vm.append(tag)
    def wait_vm(self, tag):
        hits = [i for i, t in enumerate(self.vm) if t == tag]
        if not hits: return
        n = len(self.vm) - 1 - hits[-1]
        self(f"s_waitcnt vmcnt({min(n, 63)})")
        self.vm = self.vm[hits[-1] + 1:]
    def wait_vm0(self):
        self("s_waitcnt vmcnt(0)"); self.vm = []
    def newlabel(self, p):
        self.uid += 1
        return f"L_{p}_{self.uid}"

def acc1(mt, nt): return vACC + (mt * 5 + nt) * 4
def acc2(mt, nt): return vACC + (mt * 4 + nt) * 4
def wfrag(step, t): return step * 16 + t * 4

def stamp(a, opt, idx, force=False):
    if opt.probe >= 0:
        ins = "s_memtime" if opt.probecyc else "s_memrealtime"
        if idx == opt.probe:
            a(f"{ins} s[{sP}:{sP+1}]")
            a("s_waitcnt lgkmcnt(0)")
            a(f"s_mov_b32 s{sPROF+1}, s{sP}")
        if idx == opt.probe0:
            a(f"{ins} s[{sP}:{sP+1}]")
            a("s_waitcnt lgkmcnt(0)")
            a(f"s_mov_b32 s{sPROF+2}, s{sP}")
        return
    if opt.prof == 4 and idx != 14: return
    if opt.lnprof and idx in (4, 5) and getattr(a, "ln_done", False): return
    if opt.prof:
        a(f"s_mem{'time' if opt.prof == 2 else 'realtime'} s[{sP}:{sP+1}]")
        a("s_waitcnt lgkmcnt(0)")
        a(f"s_mov_b32 s{sPROF+idx}, s{sP}")

def jitter(a, opt, k):
    if not opt.jitter: return
    lp, dn = a.newlabel("jit"), a.newlabel("jitd")
    a(f"s_lshl_b32 s{sP+2}, s{sWG}, 2")
    a(f"s_add_u32 s{sP+2}, s{sP+2}, s{sWAVE}")
    a(f"s_mul_i32 s{sP+2}, s{sP+2}, {2654435761 * (2 * k + opt.jitter) % (1 << 31)}")
    a(f"s_lshr_b32 s{sP+2}, s{sP+2}, 26")
    a.label(lp)
    a(f"s_cmp_eq_u32 s{sP+2}, 0")
    a(f"s_cbranch_scc1 {dn}")
    a("s_sleep 2")
    a(f"s_sub_u32 s{sP+2}, s{sP+2}, 1")
    a(f"s_branch {lp}")
    a.label(dn)

def make_srd(a, n, lo, size, add=0):
    if add:
        a(f"s_add_u32 s{n}, s{lo}, {add}")
        a(f"s_addc_u32 s{n+1}, s{lo+1}, 0")
        a(f"s_and_b32 s{n+1}, s{n+1}, 0xffff")
    else:
        a(f"s_mov_b32 s{n}, s{lo}")
        a(f"s_and_b32 s{n+1}, s{lo+1}, 0xffff")
    a(f"s_mov_b32 s{n+2}, {size}")
    a(f"s_mov_b32 s{n+3}, 0x20000")

def nonce_spin(a, opt):
    lp = a.newlabel("nonce"); dn = a.newlabel("nonced")
    a(f"s_cmp_lg_u32 s{sNONCE}, 0")
    a(f"s_cbranch_scc1 {dn}")
    a(f"s_mov_b32 s{sSPIN}, 0")
    a(f"v_mov_b32 v{vT}, 0")
    a.label(lp)
    a(f"buffer_load_dword v{vT2}, v{vT}, {srd(sD)}, 0 offen sc1")
    a("s_waitcnt vmcnt(0)")
    a(f"v_readfirstlane_b32 s{sNONCE}, v{vT2}")
    a(f"s_add_u32 s{sSPIN}, s{sSPIN}, 1")
    a(f"s_cmp_lg_u32 s{sNONCE}, 0")
    a(f"s_cbranch_scc1 {dn}")
    a(f"s_cmp_lt_u32 s{sSPIN}, {opt.spin}")
    a(f"s_cbranch_scc1 {lp}")
    a.label(dn)

def lds_set(a, addr_sgpr_or_imm):
    a(f"v_mov_b32 v{vT}, {addr_sgpr_or_imm}")
    a(f"v_mov_b32 v{vT2}, 1")
    a(f"s_mov_b64 s[{sP}:{sP+1}], exec")
    a("s_mov_b64 exec, 1")
    a(f"ds_write_b32 v{vT}, v{vT2}")
    a(f"s_mov_b64 exec, s[{sP}:{sP+1}]")

def lds_spin(a, opt, addr):
    lp = a.newlabel("lspin"); dn = a.newlabel("lspun")
    a(f"v_mov_b32 v{vT}, {addr}")
    a(f"s_mov_b32 s{sSPIN}, 0")
    a.label(lp)
    a(f"ds_read_b32 v{vT2}, v{vT}")
    a("s_waitcnt lgkmcnt(0)")
    a(f"v_readfirstlane_b32 s{sP}, v{vT2}")
    a(f"s_add_u32 s{sSPIN}, s{sSPIN}, 1")
    a(f"s_cmp_lg_u32 s{sP}, 0")
    a(f"s_cbranch_scc1 {dn}")
    a(f"s_cmp_lt_u32 s{sSPIN}, {opt.spin * 8}")
    a(f"s_cbranch_scc1 {lp}")
    a.label(dn)

def dma_addr(a, stride, s_tile):
    a(f"v_lshrrev_b32 v{vT}, 3, v{vLANE}")
    a(f"v_lshrrev_b32 v{vT2}, 1, v{vT}")
    a(f"v_lshlrev_b32 v{vT2}, 1, v{vT2}")
    a(f"v_and_b32 v{vDM}, 7, v{vLANE}")
    a(f"v_xor_b32 v{vDM}, v{vDM}, v{vT2}")
    a(f"v_lshlrev_b32 v{vDM}, 4, v{vDM}")
    a(f"v_mul_u32_u24 v{vT}, {stride}, v{vT}")
    a(f"v_add_u32 v{vDM}, v{vDM}, v{vT}")
    a(f"s_lshl_b32 s{sT0}, s{s_tile}, 7")
    a(f"v_add_u32 v{vDM}, s{sT0}, v{vDM}")
    for b in range(1, 4):
        a(f"v_add_u32 v{vDM+b}, {b*(8*stride-1024)}, v{vDM}")

def step_off(a, dst, s_base, s_rot, i, nsteps, bytes_per_step):
    a(f"s_add_u32 s{sT4}, s{s_rot}, {i}")
    a(f"s_cmp_ge_u32 s{sT4}, {nsteps}")
    a(f"s_cselect_b32 s{dst}, {nsteps}, 0")
    a(f"s_sub_u32 s{sT4}, s{sT4}, s{dst}")
    a(f"s_mul_i32 s{sT4}, s{sT4}, {bytes_per_step}")
    a(f"s_add_u32 s{dst}, s{sT4}, s{s_base}")

def dma_step(a, srdn, stride, s_rowbase, s_rot, step, nsteps, s_lds, lds_off, tag, bits=""):
    a(f"s_add_u32 m0, s{s_lds}, {lds_off}")
    step_off(a, sOFF, s_rowbase, s_rot, step, nsteps, 32 * stride)
    for blk in range(4):
        a.vmem(f"buffer_load_dwordx4 v{vDM+blk}, {srd(srdn)}, s{sOFF} offen offset:{blk*1024} {bits} lds", tag)

def tr_step(a, vbase, off, step):
    for t in range(4):
        w = wfrag(step, t)
        a(f"ds_read_b64_tr_b16 {ar(w,2)}, v{vbase+t} offset:{off}")
        a(f"ds_read_b64_tr_b16 {ar(w+2,2)}, v{vbase+t} offset:{off+2048}")

def poll(a, opt, vaddr, nd, lanes, sleep=None, pre=0, nload=1):
    if sleep is None: sleep = opt.sleep
    if pre: a(f"s_sleep {pre}")
    lp = a.newlabel("poll"); dn = a.newlabel("polled")
    a(f"s_mov_b32 s{sSPIN}, 0")
    a.label(lp)
    ld = {1: "dword", 2: "dwordx2", 4: "dwordx4"}[nd]
    for k in range(nload):
        a(f"buffer_load_{ld} {vr(vPQ + 4*k, nd)}, v{vaddr}, {srd(sF)}, 0 offen offset:{k*1024} sc1")
    a("s_waitcnt vmcnt(0)")
    first = True
    for k in range(nload):
        for i in range(nd):
            if first:
                a(f"v_cmp_ne_u32 vcc, s{sNONCE}, v{vPQ+4*k+i}"); first = False
            else:
                a(f"v_cmp_ne_u32 s[{sP}:{sP+1}], s{sNONCE}, v{vPQ+4*k+i}")
                a(f"s_or_b64 vcc, vcc, s[{sP}:{sP+1}]")
    if lanes is not None:
        a(f"s_and_b64 vcc, vcc, s[{lanes}:{lanes+1}]")
    a(f"s_add_u32 s{sSPIN}, s{sSPIN}, 1")
    a("s_cmp_eq_u64 vcc, 0")
    a(f"s_cbranch_scc1 {dn}")
    if sleep: a(f"s_sleep {sleep}")
    a(f"s_cmp_lt_u32 s{sSPIN}, {opt.spin}")
    a(f"s_cbranch_scc1 {lp}")
    a.label(dn)
    a.vm = []

def poll_pipe(a, opt, vaddr, lanes, gap, nd=4):
    dn = a.newlabel("ppolled"); lp = a.newlabel("ppoll")
    regs = [vPQ, vPQ + 4, vPQ + 8]
    def probe(r): a(f"buffer_load_{'dwordx4' if nd == 4 else 'dword'} {vr(r,nd)}, v{vaddr}, {srd(sF)}, 0 offen sc1")
    a(f"s_mov_b32 s{sSPIN}, 0")
    probe(regs[0]); a(f"s_sleep {gap}"); probe(regs[1]); a(f"s_sleep {gap}"); probe(regs[2])
    a.label(lp)
    for r in regs:
        a("s_waitcnt vmcnt(2)")
        for i in range(nd):
            if i == 0: a(f"v_cmp_ne_u32 vcc, s{sNONCE}, v{r}")
            else:
                a(f"v_cmp_ne_u32 s[{sP}:{sP+1}], s{sNONCE}, v{r+i}")
                a(f"s_or_b64 vcc, vcc, s[{sP}:{sP+1}]")
        if lanes is not None: a(f"s_and_b64 vcc, vcc, s[{lanes}:{lanes+1}]")
        a("s_cmp_eq_u64 vcc, 0")
        a(f"s_cbranch_scc1 {dn}")
        a(f"s_sleep {gap}")
        probe(r)
    a(f"s_add_u32 s{sSPIN}, s{sSPIN}, 1")
    a(f"s_cmp_lt_u32 s{sSPIN}, {opt.spin}")
    a(f"s_cbranch_scc1 {lp}")
    a.label(dn)

def poll_check(a, nd, lanes, ok_label):
    for i in range(nd):
        if i == 0: a(f"v_cmp_ne_u32 vcc, s{sNONCE}, v{vPQ}")
        else:
            a(f"v_cmp_ne_u32 s[{sP}:{sP+1}], s{sNONCE}, v{vPQ+i}")
            a(f"s_or_b64 vcc, vcc, s[{sP}:{sP+1}]")
    if lanes is not None:
        a(f"s_and_b64 vcc, vcc, s[{lanes}:{lanes+1}]")
    a("s_cmp_eq_u64 vcc, 0")
    a(f"s_cbranch_scc1 {ok_label}")

def flag_store(a, s_index_bytes, sector=False):
    if sector:
        a(f"v_lshlrev_b32 v{vT}, 4, v{vLANE}")
        a(f"v_add_u32 v{vT}, s{s_index_bytes}, v{vT}")
        for i in range(4): a(f"v_mov_b32 v{vFS+i}, s{sNONCE}")
        a(f"s_mov_b64 s[{sP}:{sP+1}], exec")
        a("s_mov_b64 exec, 15")
        a.vmem(f"buffer_store_dwordx4 {vr(vFS,4)}, v{vT}, {srd(sF)}, 0 offen {OPT.fbits}", "flag")
        a(f"s_mov_b64 exec, s[{sP}:{sP+1}]")
        return
    a(f"v_mov_b32 v{vT}, s{s_index_bytes}")
    a(f"v_mov_b32 v{vT2}, s{sNONCE}")
    a(f"s_mov_b64 s[{sP}:{sP+1}], exec")
    a("s_mov_b64 exec, 1")
    a.vmem(f"buffer_store_dword v{vT2}, v{vT}, {srd(sF)}, 0 offen {OPT.fbits}", "flag")
    a(f"s_mov_b64 exec, s[{sP}:{sP+1}]")

def gelu_pairs(a, regs, tmp, fill=None):
    def each(fn):
        for i, r in enumerate(regs): fn(r, tmp + 2 * i)
    each(lambda r, t: a(f"v_pk_mul_f32 {vr(t,2)}, {vr(r,2)}, {vr(r,2)}"))
    each(lambda r, t: a(f"v_pk_fma_f32 {vr(t,2)}, {vr(t,2)}, s[100:101], {vr(vC0,2)}"))
    each(lambda r, t: a(f"v_pk_mul_f32 {vr(t,2)}, {vr(t,2)}, {vr(r,2)}"))
    if fill: fill()
    each(lambda r, t: (a(f"v_exp_f32 v{t}, v{t}"), a(f"v_exp_f32 v{t+1}, v{t+1}")))
    each(lambda r, t: a(f"v_pk_add_f32 {vr(t,2)}, {vr(t,2)}, 1.0 op_sel_hi:[1,0]"))
    each(lambda r, t: (a(f"v_rcp_f32 v{t}, v{t}"), a(f"v_rcp_f32 v{t+1}, v{t+1}")))
    a("s_nop 0")
    each(lambda r, t: a(f"v_pk_mul_f32 {vr(r,2)}, {vr(r,2)}, {vr(t,2)}"))

def w2_slot(step):
    if step < 8: return sM0B, step * 4096, vTR, step * 4096
    if step < 10: return sUP, (step - 8) * 4096, vTRU, (step - 8) * 4096
    return sM0B, (step - 10) * 4096, vTR, (step - 10) * 4096

def w2_dma(a, step):
    sb, off, _, _ = w2_slot(step)
    dma_step(a, sW2, S * 2, sWB, sROT2, step, 14, sb, off, f"w2_{step}", OPT.w2bits)

def w2_dma_parts(a, step):
    sb, off, _, _ = w2_slot(step)
    def setup():
        a(f"s_add_u32 m0, s{sb}, {off}")
        step_off(a, sT3, sWB, sROT2, step, 14, 32 * S * 2)
    def one(blk):
        return lambda: a.vmem(f"buffer_load_dwordx4 v{vDM+blk}, {srd(sW2)}, s{sT3} offen offset:{blk*1024} {OPT.w2bits} lds", f"w2_{step}")
    return [setup] + [one(b) for b in range(4)]

def w2_tr(a, step):
    _, _, vb, off = w2_slot(step)
    tr_step(a, vb, off, step)

def gen(opt):
    global OPT
    OPT = opt
    a = Asm()
    NS = (max(opt.dist, opt.dist2) + 1 + 4) // 5
    assert opt.dist < 5 * NS and NS <= 5
    def ring(slot, t): return vRING + slot * 20 + t * 4
    for line in ['; Fused token-mixing MLP: LayerNorm -> GEMM1 + GELU -> GEMM2, one persistent workgroup per CU.', '; kernarg: x (2048x640 bf16), w1 (2048x1728), b1 (1728), w2 (1728x2048), b2 (2048), out (2048x640), debug, workspace.', ';', "; Phase 0  every workgroup normalises 8 rows of x and stores them as MFMA B fragments (H', workspace), while it", ';          streams its 64-column panel of w1 through LDS (LDS-DMA, transposing reads) into a[0:255].', '; GEMM1    216 workgroups, tile 64 (f) x 80 (d); the four waves split K and keep full-tile accumulators;', ";          partial sums meet in LDS, bias + tanh-form GELU, result stored as MFMA A fragments (G', workspace).", "; GEMM2    256 workgroups, tile 80 (d) x 64 (s); w2 panel in the AGPRs, G' streamed; reduction, bias, bf16 store.", '; Hand-offs between workgroups: write-through stores, drained, then one flag per workgroup holding a per-launch', ';          nonce (published in debug[0]); one wave per consumer polls, the others wait at a barrier.']: a.raw(line)
    a.raw(f"; @launch grid=(256,1,1) block=(256,1,1) lds={LDS_BYTES}")
    a.raw('.amdgcn_target "amdgcn-amd-amdhsa--gfx950"')
    a.raw(".text")
    a.raw(f".globl {KN}")
    a.raw(".p2align 8")
    a.raw(f".type {KN},@function")
    a.label(KN)
    if opt.cpf: a("s_getpc_b64 s[94:95]")
    a(f"s_cmp_ge_u32 s{sWG}, 256")
    a("s_cbranch_scc1 L_done")
    a("s_load_dwordx16 s[4:19], s[0:1], 0")
    if opt.prof:
        a(f"s_mem{'time' if opt.prof == 2 else 'realtime'} s[{sP}:{sP+1}]")
    if opt.prof:
        for i in range(1, 15): a(f"s_mov_b32 s{sPROF+i}, 0")
    if not opt.prof:
        a("s_memrealtime s[96:97]")
    a(f"v_lshrrev_b32 v{vT}, 6, v{vTID}")
    a(f"v_and_b32 v{vLANE}, 63, v{vTID}")
    a(f"v_readfirstlane_b32 s{sWAVE}, v{vT}")
    a(f"s_and_b32 s{sXCD}, s{sWG}, 7")
    a(f"s_lshr_b32 s{sJ}, s{sWG}, 3")
    if opt.p1 == 2:
        if opt.pairx:
            assert opt.pf == 0
            a(f"s_add_u32 s{sT1}, s{sXCD}, {opt.pairx - 1}")
            a(f"s_and_b32 s{sT1}, s{sT1}, 3")
            a(f"s_and_b32 s{sT2}, s{sXCD}, 4")
        else:
            a(f"s_lshr_b32 s{sT1}, s{sXCD}, 1")
            a(f"s_and_b32 s{sT2}, s{sXCD}, 1")
            a(f"s_lshl_b32 s{sT2}, s{sT2}, 2")
        a(f"s_mul_i32 s{sT0}, s{sT1}, 7")
        a(f"s_lshr_b32 s{sFT}, s{sJ}, 2")
        a(f"s_add_u32 s{sFT}, s{sFT}, s{sT0}")
        a(f"s_and_b32 s{sT3}, s{sJ}, 3")
        a(f"s_add_u32 s{sDT1}, s{sT2}, s{sT3}")
        if opt.rot8: a(f"s_lshl_b32 s{sROT1}, s{sDT1}, 1")
        else: a(f"s_lshl_b32 s{sROT1}, s{sT3}, 2")
        a(f"s_cmp_eq_u32 s{sT1}, 3")
        a(f"s_cselect_b32 s{sJLIM}, 24, 28")
        a(f"s_lshl_b32 s{sT0}, s{sXCD}, 2")
        a(f"s_sub_u32 s{sT0}, s{sT0}, 28")
        a(f"s_lshl_b32 s{sT3}, s{sXCD}, 3")
        a(f"s_sub_u32 s{sT3}, s{sT3}, 48")
        a(f"s_cselect_b32 s{sIDLE}, s{sT0}, s{sT0}")
        a(f"s_cmp_ge_u32 s{sXCD}, 6")
        a(f"s_cselect_b32 s{sIDLE}, s{sT3}, s{sT0}")
        a(f"s_add_u32 s{sIDLE}, s{sIDLE}, s{sJ}")
    else:
        a(f"s_lshl_b32 s{sT0}, s{sXCD}, 2")
        a(f"s_mul_i32 s{sT1}, s{sXCD}, 3")
        a(f"s_add_u32 s{sT1}, s{sT1}, 3")
        a(f"s_cmp_lt_u32 s{sXCD}, 3")
        a(f"s_cselect_b32 s{sT0}, s{sT0}, s{sT1}")
        a(f"s_cselect_b32 s{sJLIM}, 32, 24")
        a(f"s_lshr_b32 s{sFT}, s{sJ}, 3")
        a(f"s_add_u32 s{sFT}, s{sFT}, s{sT0}")
        a(f"s_and_b32 s{sDT1}, s{sJ}, 7")
        a(f"s_lshl_b32 s{sROT1}, s{sDT1}, 1")
        a(f"s_lshl_b32 s{sIDLE}, s{sXCD}, 3")
        a(f"s_add_u32 s{sIDLE}, s{sIDLE}, s{sJ}")
        a(f"s_sub_u32 s{sIDLE}, s{sIDLE}, 48")
    if opt.rotg1 == 3:
        a(f"s_mul_i32 s{sT0}, s{sFT}, 11")
        a(f"s_lshr_b32 s{sT0}, s{sT0}, 5")
        a(f"s_mul_i32 s{sT0}, s{sT0}, 3")
        a(f"s_sub_u32 s{sT0}, s{sFT}, s{sT0}")
        a(f"s_mul_i32 s{sT0}, s{sT0}, 5")
        a(f"s_add_u32 s{sROT1}, s{sROT1}, s{sT0}")
        a(f"s_and_b32 s{sROT1}, s{sROT1}, 15")
    if opt.rotg1 == 2:
        a(f"s_and_b32 s{sT0}, s{sFT}, 1")
        a(f"s_lshl_b32 s{sT0}, s{sT0}, 3")
        a(f"s_add_u32 s{sROT1}, s{sROT1}, s{sT0}")
        a(f"s_and_b32 s{sROT1}, s{sROT1}, 15")
    if opt.rota1:
        a(f"s_mul_i32 s{sT0}, s{sFT}, {opt.rota1}")
        a(f"s_add_u32 s{sROT1}, s{sROT1}, s{sT0}")
        a(f"s_and_b32 s{sROT1}, s{sROT1}, 15")
    if opt.p2 == 2:
        a(f"s_lshr_b32 s{sT1}, s{sXCD}, 1")
        a(f"s_and_b32 s{sT2}, s{sXCD}, 1")
        a(f"s_lshl_b32 s{sT2}, s{sT2}, 2")
        a(f"s_lshr_b32 s{sT0}, s{sJ}, 2")
        a(f"s_lshl_b32 s{sST}, s{sT1}, 3")
        a(f"s_add_u32 s{sST}, s{sST}, s{sT0}")
        a(f"s_and_b32 s{sT3}, s{sJ}, 3")
        a(f"s_add_u32 s{sDT2}, s{sT2}, s{sT3}")
        if opt.rot8:
            a(f"s_mul_i32 s{sROT2}, s{sDT2}, 7")
            a(f"s_lshr_b32 s{sROT2}, s{sROT2}, 2")
        else:
            a(f"s_mul_i32 s{sROT2}, s{sT3}, 7")
            a(f"s_lshr_b32 s{sROT2}, s{sROT2}, 1")
    else:
        a(f"s_lshr_b32 s{sT0}, s{sJ}, 3")
        a(f"s_lshl_b32 s{sST}, s{sXCD}, 2")
        a(f"s_add_u32 s{sST}, s{sST}, s{sT0}")
        a(f"s_and_b32 s{sDT2}, s{sJ}, 7")
        a(f"s_mul_i32 s{sROT2}, s{sDT2}, 7")
        a(f"s_lshr_b32 s{sROT2}, s{sROT2}, 2")
    if opt.rotg2:
        if opt.rotg2 == 2:
            a(f"s_and_b32 s{sT0}, s{sST}, 1")
            a(f"s_mul_i32 s{sT0}, s{sT0}, 7")
        else:
            a(f"s_mul_i32 s{sT0}, s{sST}, 11")
            a(f"s_lshr_b32 s{sT0}, s{sT0}, 5")
            a(f"s_mul_i32 s{sT0}, s{sT0}, 3")
            a(f"s_sub_u32 s{sT0}, s{sST}, s{sT0}")
            a(f"s_mul_i32 s{sT0}, s{sT0}, 5")
        a(f"s_add_u32 s{sROT2}, s{sROT2}, s{sT0}")
        a(f"s_cmp_ge_u32 s{sROT2}, 14")
        a(f"s_cselect_b32 s{sT0}, 14, 0")
        a(f"s_sub_u32 s{sROT2}, s{sROT2}, s{sT0}")
    if opt.rota2:
        a(f"s_mul_i32 s{sT0}, s{sST}, {opt.rota2}")
        a(f"s_add_u32 s{sROT2}, s{sROT2}, s{sT0}")
        a(f"s_and_b32 s{sT0}, s{sROT2}, 0xff")
        a(f"s_mul_i32 s{sT0}, s{sROT2}, 18725")
        a(f"s_lshr_b32 s{sT0}, s{sT0}, 18")
        a(f"s_mul_i32 s{sT0}, s{sT0}, 14")
        a(f"s_sub_u32 s{sROT2}, s{sROT2}, s{sT0}")
    if not (opt.rot & 1): a(f"s_mov_b32 s{sROT1}, 0")
    if not (opt.rot & 2): a(f"s_mov_b32 s{sROT2}, 0")
    a(f"s_lshl_b32 s{sM0B}, s{sWAVE}, 15")
    a(f"s_lshl_b32 s{sUP}, s{sWAVE}, 13")
    a(f"s_add_u32 s{sUP}, s{sUP}, 131072")
    def tr_addr(base_sgpr):
        t0, t1, t2 = vX, vX + 1, vX + 2
        a(f"v_lshrrev_b32 v{t0}, 4, v{vLANE}")
        a(f"v_and_b32 v{t1}, 1, v{t0}")
        a(f"v_lshlrev_b32 v{t1}, 2, v{t1}")
        a(f"v_bfe_u32 v{t2}, v{vLANE}, 2, 2")
        a(f"v_add_u32 v{t1}, v{t1}, v{t2}")
        a(f"v_lshrrev_b32 v{t0}, 1, v{t0}")
        a(f"v_lshlrev_b32 v{t0}, 10, v{t0}")
        a(f"v_lshlrev_b32 v{t2}, 7, v{t1}")
        a(f"v_add_u32 v{t0}, v{t0}, v{t2}")
        a(f"v_and_b32 v{t2}, 3, v{vLANE}")
        a(f"v_lshlrev_b32 v{t2}, 3, v{t2}")
        a(f"v_add_u32 v{t0}, v{t0}, v{t2}")
        a(f"v_add_u32 v{t0}, s{base_sgpr}, v{t0}")
        a(f"v_lshrrev_b32 v{t1}, 1, v{t1}")
        for t in range(4):
            a(f"v_xor_b32 v{t2}, {t}, v{t1}")
            a(f"v_lshlrev_b32 v{t2}, 5, v{t2}")
            a(f"v_add_u32 v{vTR+t}, v{t0}, v{t2}")
    def w1_dma(i): dma_step(a, sW1, F * 2, sWB, sROT1, i, 16, sM0B, (i % 8) * 4096, f"w1_{i}", "nt" if i < opt.nta else opt.w1bits)
    def w1_stream(first, dp, hold=0):
        retired = 0
        def retire():
            nonlocal retired
            a.wait_vm(f"w1_{retired}")
            if retired: a("s_waitcnt lgkmcnt(0)")
            tr_step(a, vTR, (retired % 8) * 4096, retired)
            retired += 1
        for i in range(first, 16):
            while retired <= i - dp: retire()
            if i >= 8:
                while retired <= i - 8: retire()
                if retired == i - 7: a("s_waitcnt lgkmcnt(0)")
            w1_dma(i)
            if opt.epoll and i == opt.epoll:
                a(f"v_mul_u32_u24 v{vHP}, {opt.hline}, v{vLANE}")
                a(f"s_cmp_lg_u32 s{sWAVE}, {opt.pollw}")
                a("s_cbranch_scc1 L_noepoll")
                if opt.elate:
                    a(f"s_and_b32 s{sT0}, s{sWG}, 4")
                    a(f"s_cmp_eq_u32 s{sT0}, 0")
                    a("s_cbranch_scc1 L_noepoll")
                a(f"buffer_load_dwordx4 {vr(vPQ,4)}, v{vHP}, {srd(sF)}, 0 offen sc1")
                a.label("L_noepoll")
        while retired < 16 - hold: retire()
        def finish():
            while retired < 16: retire()
            a("s_waitcnt lgkmcnt(0)")
        if not hold: finish()
        return finish
    dma_addr(a, F * 2, sFT)
    a(f"s_mul_i32 s{sWB}, s{sWAVE}, {512*F*2}")
    a.c("LayerNorm: wave w normalises rows 32*ks + 16*(w>>1) + 4*q + 2*(w&1) + (0,1), 32 lanes per row")
    XR, XF, TM = 96, 108, 130
    a(f"s_lshr_b32 s{sT0}, s{sWG}, 2")
    a(f"s_and_b32 s{sT1}, s{sWG}, 3")
    a(f"s_lshl_b32 s{sT2}, s{sT0}, 5")
    a(f"s_lshr_b32 s{sT3}, s{sWAVE}, 1")
    a(f"s_lshl_b32 s{sT3}, s{sT3}, 4")
    a(f"s_add_u32 s{sT2}, s{sT2}, s{sT3}")
    a(f"s_lshl_b32 s{sT3}, s{sT1}, 2")
    a(f"s_add_u32 s{sT2}, s{sT2}, s{sT3}")
    a(f"s_and_b32 s{sT3}, s{sWAVE}, 1")
    a(f"s_lshl_b32 s{sT3}, s{sT3}, 1")
    a(f"s_add_u32 s{sT2}, s{sT2}, s{sT3}")
    a(f"s_mul_i32 s{sT2}, s{sT2}, 1280")
    a(f"v_lshrrev_b32 v{TM}, 5, v{vLANE}")
    a(f"v_and_b32 v{TM+1}, 31, v{vLANE}")
    a(f"v_lshlrev_b32 v{TM+1}, 3, v{TM+1}")
    a(f"v_mul_u32_u24 v{TM+2}, 1280, v{TM}")
    a(f"v_add_u32 v{TM+2}, v{TM+2}, v{TM+1}")
    a(f"v_mov_b32 v{vT}, 0")
    a("s_waitcnt lgkmcnt(0)")
    if opt.prof: a(f"s_mov_b32 s{sPROF}, s{sP}")
    make_srd(a, sD, 16, 256)
    a(f"s_cmp_lg_u32 s{sWG}, 0")
    a("s_cbranch_scc1 L_nononce")
    a(f"s_cmp_lg_u32 s{sWAVE}, 3")
    a("s_cbranch_scc1 L_nononce")
    a(f"s_or_b32 s{sNONCE}, s{sP if opt.prof else 96}, 1")
    a(f"v_mov_b32 v{vT2}, s{sNONCE}")
    a(f"s_mov_b64 s[{sP+2}:{sP+3}], exec")
    a("s_mov_b64 exec, 1")
    a(f"buffer_store_dword v{vT2}, v{vT}, {srd(sD)}, 0 offen sc1")
    a(f"s_mov_b64 exec, s[{sP+2}:{sP+3}]")
    a.label("L_nononce")
    make_srd(a, sX, 4, S * D * 2)
    if opt.xpf:
        a(f"s_and_b32 s{sT3}, s{sWG}, 4")
        a(f"s_cmp_lg_u32 s{sT3}, 0")
        a("s_cbranch_scc1 L_xlate")
        a(f"s_add_u32 s{sT3}, s{sT2}, {32*1280}")
        for i in range(5):
            a(f"buffer_load_dwordx2 {vr(244+2*(i%2),2)}, v{TM+2}, {srd(sX)}, s{sT3} offen offset:{i*256}")
        for i in range(5):
            a(f"buffer_load_dwordx2 {vr(XR+2*i,2)}, v{TM+2}, {srd(sX)}, s{sT2} offen offset:{i*256} {opt.xbits}")
        a("s_branch L_xissued")
        a.label("L_xlate")
        for i in range(5):
            a(f"buffer_load_dwordx2 {vr(XR+2*i,2)}, v{TM+2}, {srd(sX)}, s{sT2} offen offset:{i*256} {opt.xbits if opt.xpf == 2 else ''}")
        a.label("L_xissued")
    else:
        for i in range(5):
            a.vmem(f"buffer_load_dwordx2 {vr(XR+2*i,2)}, v{TM+2}, {srd(sX)}, s{sT2} offen offset:{i*256} {opt.xbits}", "x")
    make_srd(a, sW1, 6, S * F * 2)
    if opt.xbar: a("s_barrier")
    a(f"s_cmp_ge_u32 s{sJ}, s{sJLIM}")
    a("s_cbranch_scc1 L_ln_now1")
    for i in range(opt.nearly): w1_dma(i)
    a.label("L_ln_now1")
    if opt.cpf:
        a(f"s_cmp_lg_u32 s{sWAVE}, 3")
        a("s_cbranch_scc1 L_nocpf")
        a(f"s_lshl_b32 s{sT3}, s{sJ}, 11")
        a(f"v_lshlrev_b32 v{vX}, 4, v{vLANE}")
        a(f"v_add_u32 v{vX}, s{sT3}, v{vX}")
        a(f"v_add_u32 v{vX+1}, 1024, v{vX}")
        for h in range(2):
            a(f"v_min_u32 v{vX+h}, L_codeend-{KN}-36, v{vX+h}")
            a(f"global_load_dwordx4 {vr(240+4*h,4)}, v{vX+h}, s[94:95]")
        a.label("L_nocpf")
    make_srd(a, sH, 18, H_BYTES, WS_H)
    make_srd(a, sF, 18, FLAG_BYTES, WS_FLAG)
    a(f"s_mul_i32 s{sSTEP}, s{sT0}, 40960")
    a(f"s_lshl_b32 s{sT1}, s{sT1}, 8")
    a(f"s_add_u32 s{sSTEP}, s{sSTEP}, s{sT1}")
    a(f"s_lshl_b32 s{sT3}, s{sWAVE}, 1")
    a(f"v_add_u32 v{TM+4}, s{sT3}, v{TM}")
    a(f"v_mul_u32_u24 v{TM+4}, {LN_ROW}, v{TM+4}")
    a(f"v_add_u32 v{TM+4}, v{TM+4}, v{TM+1}")
    a(f"v_add_u32 v{TM+4}, {LN_BASE}, v{TM+4}")
    a(f"s_mul_i32 s{sT3}, s{sWAVE}, 12")
    a(f"s_cmp_eq_u32 s{sWAVE}, 3")
    a(f"s_cselect_b32 s{sT3}, 32, s{sT3}")
    a(f"v_lshrrev_b32 v{TM+6}, 4, v{vLANE}")
    a(f"v_add_u32 v{TM+6}, s{sT3}, v{TM+6}")
    a(f"v_bfe_u32 v{TM+5}, v{vLANE}, 2, 2")
    a(f"v_mul_u32_u24 v{TM+5}, {LN_ROW}, v{TM+5}")
    a(f"v_lshlrev_b32 v{TM+7}, 5, v{TM+6}")
    a(f"v_add_u32 v{TM+5}, v{TM+5}, v{TM+7}")
    a(f"v_and_b32 v{TM+7}, 3, v{vLANE}")
    a(f"v_lshlrev_b32 v{TM+7}, 3, v{TM+7}")
    a(f"v_add_u32 v{TM+5}, v{TM+5}, v{TM+7}")
    a(f"v_add_u32 v{TM+5}, {LN_BASE}, v{TM+5}")
    a(f"v_lshlrev_b32 v{TM+6}, 10, v{TM+6}")
    a(f"v_and_b32 v{TM+7}, 15, v{vLANE}")
    a(f"v_lshlrev_b32 v{TM+7}, 4, v{TM+7}")
    a(f"v_add_u32 v{TM+6}, v{TM+6}, v{TM+7}")
    tr_addr(sM0B)
    a(f"s_mov_b32 s{sT0}, 0xffff0000")
    nc = 2 if opt.cpf else 0
    a(f"s_cmp_ge_u32 s{sJ}, s{sJLIM}")
    a("s_cbranch_scc1 L_ln_idle")
    a(f"s_cmp_eq_u32 s{sWAVE}, 3")
    a("s_cbranch_scc1 L_ln_w3")
    a(f"s_waitcnt vmcnt({4*opt.nearly})")
    a("s_branch L_ln_go")
    a.label("L_ln_w3")
    a(f"s_waitcnt vmcnt({4*opt.nearly + nc})")
    a("s_branch L_ln_go")
    a.label("L_ln_idle")
    a(f"s_cmp_eq_u32 s{sWAVE}, 3")
    a("s_cbranch_scc1 L_ln_idle3")
    a("s_waitcnt vmcnt(0)")
    a("s_branch L_ln_go")
    a.label("L_ln_idle3")
    a(f"s_waitcnt vmcnt({nc})")
    a.label("L_ln_go")
    stamp(a, opt, 1)
    jitter(a, opt, 1)
    nmid = [opt.nearly]
    def mid_step(tag):
        if nmid[0] < opt.nearly + opt.nmid:
            a(f"s_cmp_ge_u32 s{sJ}, s{sJLIM}")
            a(f"s_cbranch_scc1 L_mid_{tag}")
            w1_dma(nmid[0]); nmid[0] += 1
            a.label(f"L_mid_{tag}")
    if opt.unsafe & 2: a(f"buffer_load_dword v{vPOLL}, v{vT}, {srd(sD)}, 0 offen sc1")
    mid_step("a")
    for i in range(10):
        a(f"v_lshlrev_b32 v{XF+2*i}, 16, v{XR+i}")
        a(f"v_and_b32 v{XF+2*i+1}, s{sT0}, v{XR+i}")
    SM = TM + 8
    a(f"v_pk_add_f32 {vr(SM,2)}, {vr(XF,2)}, {vr(XF+4,2)}")
    a(f"v_pk_add_f32 {vr(SM+2,2)}, {vr(XF+2,2)}, {vr(XF+6,2)}")
    for i in range(4, 10):
        k = i % 2
        a(f"v_pk_add_f32 {vr(SM+2*k,2)}, {vr(SM+2*k,2)}, {vr(XF+2*i,2)}")
    def reduce_row(dst):
        a(f"v_pk_add_f32 {vr(SM,2)}, {vr(SM,2)}, {vr(SM+2,2)}")
        a(f"v_add_f32 v{dst}, v{SM}, v{SM+1}")
        for rot in (8, 4, 2, 1):
            a("s_nop 1")
            a(f"v_add_f32_dpp v{dst}, v{dst}, v{dst} row_ror:{rot} row_mask:0xf bank_mask:0xf")
        a(f"v_mov_b32 v{SM}, v{dst}")
        a("s_nop 1")
        a(f"v_permlane16_swap_b32 v{dst}, v{SM}")
        a("s_nop 1")
        a(f"v_add_f32 v{dst}, v{dst}, v{SM}")
    MN = TM + 12
    reduce_row(MN)
    mid_step("b")
    a(f"v_mul_f32 v{MN}, {f2h(1.0/640.0)}, v{MN}")
    a(f"v_mov_b32 v{MN+1}, v{MN}")
    for i in range(10):
        a(f"v_pk_add_f32 {vr(XF+2*i,2)}, {vr(XF+2*i,2)}, {vr(MN,2)} neg_lo:[0,1] neg_hi:[0,1]")
    for k in range(2):
        a(f"v_pk_mul_f32 {vr(SM+2*k,2)}, {vr(XF+2*k,2)}, {vr(XF+2*k,2)}")
    for i in range(2, 10):
        k = i % 2
        a(f"v_pk_fma_f32 {vr(SM+2*k,2)}, {vr(XF+2*i,2)}, {vr(XF+2*i,2)}, {vr(SM+2*k,2)}")
    reduce_row(MN)
    mid_step("c")
    a(f"v_mov_b32 v{MN+1}, {f2h(1e-5)}")
    a(f"v_fmac_f32 v{MN+1}, {f2h(1.0/640.0)}, v{MN}")
    a(f"v_rsq_f32 v{MN}, v{MN+1}")
    a("s_nop 0")
    a(f"v_mov_b32 v{MN+1}, v{MN}")
    for i in range(10):
        a(f"v_pk_mul_f32 {vr(XF+2*i,2)}, {vr(XF+2*i,2)}, {vr(MN,2)}")
    for i in range(10):
        a(f"v_cvt_pk_bf16_f32 v{XR+i}, v{XF+2*i}, v{XF+2*i+1}")
    for i in range(5):
        a(f"ds_write_b64 v{TM+4}, {vr(XR+2*i,2)} offset:{i*256}")
    a("s_waitcnt lgkmcnt(0)")
    if opt.unsafe & 2:
        a("s_waitcnt vmcnt(0)")
        a(f"v_readfirstlane_b32 s{sNONCE}, v{vPOLL}")
        nonce_spin(a, opt)
    a("s_barrier")
    for i in range(2):
        a(f"ds_read_b64_tr_b16 {vr(XF+4*i,2)}, v{TM+5} offset:{i*128}")
        a(f"ds_read_b64_tr_b16 {vr(XF+4*i+2,2)}, v{TM+5} offset:{i*128+4*LN_ROW}")
    a(f"s_cmp_ge_u32 s{sWAVE}, 2")
    a("s_cbranch_scc1 L_ln_two")
    a(f"ds_read_b64_tr_b16 {vr(XF+8,2)}, v{TM+5} offset:{2*128}")
    a(f"ds_read_b64_tr_b16 {vr(XF+10,2)}, v{TM+5} offset:{2*128+4*LN_ROW}")
    a("s_waitcnt lgkmcnt(0)")
    a(f"s_add_u32 s{sT0}, s{sSTEP}, {2*4096}")
    a(f"buffer_store_dwordx4 {vr(XF+8,4)}, v{TM+6}, {srd(sH)}, s{sT0} offen {opt.hbits}")
    a.label("L_ln_two")
    a("s_waitcnt lgkmcnt(0)")
    for i in range(2):
        a(f"s_add_u32 s{sT0}, s{sSTEP}, {i*4096}")
        a(f"buffer_store_dwordx4 {vr(XF+4*i,4)}, v{TM+6}, {srd(sH)}, s{sT0} offen {opt.hbits}")
    if not (opt.unsafe & 2): a(f"buffer_load_dword v{vPOLL}, v{vT}, {srd(sD)}, 0 offen sc1")
    stamp(a, opt, 2)
    if opt.unsafe & 2:
        a("s_barrier")
        a(f"s_cmp_lg_u32 s{sWAVE}, 0")
        a("s_cbranch_scc1 L_noflag0")
        a(f"s_lshl_b32 s{sT0}, s{sWG}, 2")
        flag_store(a, sT0)
        a.label("L_noflag0")
    a(f"s_cmp_ge_u32 s{sJ}, s{sJLIM}")
    a("s_cbranch_scc1 L_ln_idle2")
    ne = opt.nearly + opt.nmid
    a.vm = [f"w1_{i}" for i in range(ne)]
    for i in range(ne, ne + opt.npost): w1_dma(i)
    if not (opt.unsafe & 2): a(f"s_waitcnt vmcnt({4*opt.npost})")
    a("s_branch L_ln_go2")
    a.label("L_ln_idle2")
    if not (opt.unsafe & 2): a("s_waitcnt vmcnt(0)")
    a.label("L_ln_go2")
    if not (opt.unsafe & 2):
        a(f"v_readfirstlane_b32 s{sNONCE}, v{vPOLL}")
        nonce_spin(a, opt)
        a("s_barrier")
        a(f"s_cmp_lg_u32 s{sWAVE}, 0")
        a("s_cbranch_scc1 L_noflag")
        a(f"s_lshr_b32 s{sT0}, s{sWG}, 2")
        a(f"s_mul_i32 s{sT0}, s{sT0}, {opt.hline}")
        a(f"s_and_b32 s{sT1}, s{sWG}, 3")
        a(f"s_lshl_b32 s{sT1}, s{sT1}, 2")
        a(f"s_add_u32 s{sT0}, s{sT0}, s{sT1}")
        keep = list(a.vm)
        flag_store(a, sT0)
        a.vm = keep
        a.label("L_noflag")
    stamp(a, opt, 3)
    a(f"s_cmp_ge_u32 s{sJ}, s{sJLIM}")
    a("s_cbranch_scc1 L_nogemm1")
    w1_finish = w1_stream(opt.nearly + opt.nmid + opt.npost, opt.dp, opt.hold1)

    def common_setup(retr=True):
        make_srd(a, sH, 18, H_BYTES, WS_H)
        make_srd(a, sF, 18, FLAG_BYTES, WS_FLAG)
        make_srd(a, sB1, 8, F * 2)
        make_srd(a, sW2, 10, F * S * 2)
        make_srd(a, sB2, 12, S * 2)
        make_srd(a, sO, 14, S * D * 2)
        make_srd(a, sG, 18, G_BYTES, WS_G)
        a(f"v_lshrrev_b32 v{vT}, 4, v{vLANE}")
        a(f"v_lshlrev_b32 v{vT}, 3, v{vT}")
        a(f"s_and_b32 s{sT0}, s{sWAVE}, 1")
        a(f"s_lshl_b32 s{sT0}, s{sT0}, 6")
        a(f"s_lshl_b32 s{sT1}, s{sFT}, 7")
        a(f"s_add_u32 s{sT0}, s{sT0}, s{sT1}")
        a.vmem(f"buffer_load_dwordx2 {vr(vB1,2)}, v{vT}, {srd(sB1)}, s{sT0} offen", "b")
        a.vmem(f"buffer_load_dwordx2 {vr(vB1+2,2)}, v{vT}, {srd(sB1)}, s{sT0} offen offset:32", "b")
        a(f"v_and_b32 v{vT}, 15, v{vLANE}")
        a(f"v_lshlrev_b32 v{vT}, 1, v{vT}")
        a(f"s_lshl_b32 s{sT0}, s{sST}, 7")
        a(f"s_lshl_b32 s{sT1}, s{sWAVE}, 5")
        a(f"s_add_u32 s{sT0}, s{sT0}, s{sT1}")
        a.vmem(f"buffer_load_ushort v{vB2}, v{vT}, {srd(sB2)}, s{sT0} offen", "b")
        dma_addr(a, S * 2, sST)
        a(f"s_mul_i32 s{sWB}, s{sWAVE}, {448*S*2}")
        if retr: tr_addr(sM0B)
        a(f"s_sub_u32 s{sT0}, s{sUP}, s{sM0B}")
        for t in range(4):
            a(f"v_add_u32 v{vTRU+t}, s{sT0}, v{vTR+t}")
        a(f"v_lshlrev_b32 v{vL0}, 4, v{vLANE}")
        a(f"v_add_u32 v{vL1}, 65536, v{vL0}")
        a(f"v_add_u32 v{vL2}, 131072, v{vL0}")

    a.label("L_w1_ready")
    stamp(a, opt, 4)
    jitter(a, opt, 2)
    vm_keep = list(a.vm)
    common_setup(retr=False)
    a(f"s_mul_i32 s{sT0}, s{sDT1}, 5120")
    a(f"v_add_u32 v{vA}, s{sT0}, v{vL0}")
    a(f"v_add_u32 v{vA2}, 4096, v{vA}")
    a(f"s_cmp_lg_u32 s{sWAVE}, {opt.pollw}")
    a("s_cbranch_scc1 L_hpolled")
    if opt.epoll:
        if opt.elate:
            a(f"s_and_b32 s{sT0}, s{sWG}, 4")
            a(f"s_cmp_eq_u32 s{sT0}, 0")
            a("s_cbranch_scc1 L_hfull")
        a(f"s_waitcnt vmcnt({4*(15 - opt.epoll) + 3})")
        poll_check(a, 4, None, "L_hpolled")
        if opt.elate: a.label("L_hfull")
    if opt.pipe & 1:
        a("s_waitcnt vmcnt(0)")
        poll_pipe(a, opt, vHP, None, opt.gap)
    else:
        poll(a, opt, vHP, 4, None, opt.sleeph, opt.preh, 1)
    a.label("L_hpolled")
    a.vm = vm_keep + ["b", "b", "b"]
    a("s_barrier")
    stamp(a, opt, 5)

    def a_loads(srdn, step, nsteps, s_rot):
        slot = step % NS
        step_off(a, sOFF, sSTEP, s_rot, step, nsteps, 40960)
        return [f"buffer_load_dwordx4 {vr(ring(slot,t),4)}, v{vA if t < 4 else vA2}, {srd(srdn)}, s{sOFF} offen offset:{(t*1024) if t < 4 else 0} {opt.abits}" for t in range(5)]

    def main_loop(srdn, nsteps, s_rot, tagp, mfma, stamp0, tail, nuni, pre=None, dist=None):
        def load(n):
            st, o = divmod(n, 5)
            if st >= nsteps: return
            if o == 0: step_off(a, sOFF, sSTEP, s_rot, st, nsteps, 40960)
            a.vmem(f"buffer_load_dwordx4 {vr(ring(st % NS, o),4)}, v{vA if o < 4 else vA2}, {srd(srdn)}, s{sOFF} offen "
                   f"offset:{(o*1024) if o < 4 else 0} {opt.abits}", f"{tagp}{st}_{o}")
        dist = dist or opt.dist
        assert dist < 5 * NS
        for n in range(dist): load(n)
        if pre: pre()
        for st in range(nuni):
            for o in range(5):
                n = 5 * st + o
                if opt.fine == 1: load(n + dist)
                a.wait_vm(f"{tagp}{st}_{o}")
                if n == 0 and stamp0 is not None: stamp(a, opt, stamp0)
                if opt.fine == 2: load(n + dist)
                for i in range(4): mfma(st, o, i, st % NS)
                if tail: tail(st, o)
        assert 5 * nuni - 1 + dist >= 5 * nsteps - 1, "loads left for the tail"

    def tile_tail(nsteps, tagp, first, last, frag_of, mfma_tile, write_tile, extra):
        ic = [0]
        done_at = {}
        queue = []
        extra = list(extra)
        def emit(fn):
            fn(); ic[0] += 1
        def filler():
            if queue and ic[0] - done_at[queue[0]] >= 9:
                t = queue.pop(0); emit(lambda: write_tile(t)); return
            if extra: emit(extra.pop(0))
        tiles = list(first) + list(last)
        for i in range(0, len(tiles), 2):
            pair = tiles[i:i + 2]
            for t in pair:
                for st in (nsteps - 2, nsteps - 1): a.wait_vm(f"{tagp}{st}_{frag_of(t)}")
            for st in (nsteps - 2, nsteps - 1):
                for t in pair:
                    emit(lambda: mfma_tile(st, t))
                    if st == nsteps - 1:
                        done_at[t] = ic[0]
                        if t in first: queue.append(t)
                    filler()
        while extra: emit(extra.pop(0))
        while queue:
            while ic[0] - done_at[queue[0]] < 9: emit(lambda: a("s_nop 0"))
            t = queue.pop(0); emit(lambda: write_tile(t))

    a(f"s_mul_i32 s{sSTEP}, s{sWAVE}, {16*40960}")
    def mfma1(st, nt, mt, slot):
        c = "0" if st == 0 else vr(acc1(mt, nt), 4)
        a(f"v_mfma_f32_16x16x32_bf16 {vr(acc1(mt,nt),4)}, {ar(wfrag(st,mt),4)}, {vr(ring(slot,nt),4)}, {c}")
    parts13 = w2_dma_parts(a, 0) if opt.t13 else []
    def tail1(st, o):
        if st == 13 and parts13:
            if o == 0: parts13[0]()
            else: parts13[o]()
    main_loop(sH, 16, sROT1, "h", mfma1, 6, tail1, 14, w1_finish if opt.hold1 else None)

    a(f"s_mov_b32 s100, {f2h(C1)}"); a(f"s_mov_b32 s101, {f2h(C1)}")
    a(f"v_mov_b32 v{vC0}, {f2h(C0)}"); a(f"v_mov_b32 v{vC0+1}, {f2h(C0)}")
    def lds_ref(addr):
        if addr < 65536: return vL0, addr
        if addr < 131072: return vL1, addr - 65536
        return vL2, addr - 131072
    def owner1(p, nt): return p + (0 if nt < 3 else 2)
    units = [(p, nt) for p in range(2) for nt in range(5)]
    def red1_addr(src, u):
        k = [x for x in units if owner1(*x) != src].index(u)
        return src * 32768 + 24576 + k * 2048 if k < 4 else 131072 + src * 8192 + (k - 4) * 2048
    saved_vm = list(a.vm)
    for w in range(4):
        if w < 3:
            a(f"s_cmp_lg_u32 s{sWAVE}, {w}")
            a(f"s_cbranch_scc1 L_ep1_{w+1}")
        a.vm = list(saved_vm)
        nis = [1 if opt.t13 else 0]
        def more(n, limit):
            for _ in range(n):
                if nis[0] < limit:
                    w2_dma(a, nis[0]); nis[0] += 1
        tl = [(2 * p + hf, nt) for nt in range(5) for p in range(2) for hf in range(2)]
        first = [t for t in tl if owner1(t[0] // 2, t[1]) != w]
        last = [t for t in tl if owner1(t[0] // 2, t[1]) == w]
        def wr1(t):
            vb, off = lds_ref(red1_addr(w, (t[0] // 2, t[1])) + (t[0] & 1) * 1024)
            a(f"ds_write_b128 v{vb}, {vr(acc1(*t),4)} offset:{off}")
        extra = []
        for _ in range(opt.tt):
            extra += w2_dma_parts(a, nis[0]); nis[0] += 1
        tile_tail(16, "h", first, last, lambda t: t[1], lambda st, t: mfma1(st, t[1], t[0], st % NS), wr1, extra)
        stamp(a, opt, 7)
        jitter(a, opt, 3)
        more(opt.e1, 6)
        a("s_waitcnt lgkmcnt(0)")
        a("s_barrier")
        own_u = [u for u in units if owner1(*u) == w]
        RT = vRING
        n = 0
        for u in own_u:
            for src in range(4):
                if src == w: continue
                for hf in range(2):
                    vb, off = lds_ref(red1_addr(src, u) + hf * 1024)
                    a(f"ds_read_b128 {vr(RT + n*4, 4)}, v{vb} offset:{off}")
                    n += 1
        a.wait_vm("b")
        for i in range(4):
            a(f"v_lshlrev_b32 v{BI+2*i}, 16, v{vB1+i}")
            a(f"v_and_b32 v{BI+2*i+1}, 0xffff0000, v{vB1+i}")
        for u in own_u:
            p, nt = u
            for hf in range(2):
                r = acc1(2*p+hf, nt)
                a(f"v_pk_add_f32 {vr(r,2)}, {vr(r,2)}, {vr(BI+4*hf,2)}")
                a(f"v_pk_add_f32 {vr(r+2,2)}, {vr(r+2,2)}, {vr(BI+4*hf+2,2)}")
        n = 0
        tot = len(own_u) * 6
        for u in own_u:
            p, nt = u
            for si in range(3):
                for hf in range(2):
                    a(f"s_waitcnt lgkmcnt({min(15, tot - n - 1)})")
                    r = acc1(2*p+hf, nt)
                    a(f"v_pk_add_f32 {vr(r,2)}, {vr(r,2)}, {vr(RT+n*4,2)}")
                    a(f"v_pk_add_f32 {vr(r+2,2)}, {vr(r+2,2)}, {vr(RT+n*4+2,2)}")
                    n += 1
        a("s_barrier")
        regs = []
        for u in own_u:
            p, nt = u
            for hf in range(2):
                r = acc1(2*p+hf, nt)
                regs += [r, r + 2]
        more(opt.e2, 10)
        gelu_pairs(a, regs, RT, fill=lambda: more(opt.e3, 10))
        a(f"s_lshl_b32 s{sT0}, s{sFT}, 1")
        a(f"s_add_u32 s{sT0}, s{sT0}, {w & 1}")
        a(f"s_mul_i32 s{sT0}, s{sT0}, 40960")
        a(f"s_mul_i32 s{sT1}, s{sDT1}, 5120")
        a(f"s_add_u32 s{sT0}, s{sT0}, s{sT1}")
        for i, u in enumerate(own_u):
            p, nt = u
            o = RT + 64 + 4 * i
            r0, r1 = acc1(2*p, nt), acc1(2*p+1, nt)
            a(f"v_cvt_pk_bf16_f32 v{o}, v{r0}, v{r0+1}")
            a(f"v_cvt_pk_bf16_f32 v{o+1}, v{r0+2}, v{r0+3}")
            a(f"v_cvt_pk_bf16_f32 v{o+2}, v{r1}, v{r1+1}")
            a(f"v_cvt_pk_bf16_f32 v{o+3}, v{r1+2}, v{r1+3}")
            a(f"s_add_u32 s{sT1}, s{sT0}, {nt*1024}")
            a.vmem(f"buffer_store_dwordx4 {vr(o,4)}, v{vL0}, {srd(sG)}, s{sT1} offen {opt.gbits}", "g")
        stamp(a, opt, 8)
        jitter(a, opt, 4)
        def g_flag():
            a(f"s_lshl_b32 s{sT0}, s{sDT1}, 5")
            a(f"s_add_u32 s{sT0}, s{sT0}, s{sFT}")
            a(f"s_mul_i32 s{sT0}, s{sT0}, {opt.gstride}")
            a(f"s_add_u32 s{sT0}, s{sT0}, {FLAG_G + 4*w}")
            flag_store(a, sT0, sector=bool(opt.gsec and opt.gwg))
            stamp(a, opt, 9)
        if opt.unsafe & 1:
            a("s_barrier")
            if w == 0:
                keep = list(a.vm); g_flag(); a.vm = keep
        more(opt.nb, 10)
        def tr_first4():
            a.wait_vm("w2_3")
            for st in range(4):
                w2_tr(a, st)
                if st % 2 == 1: a("s_waitcnt lgkmcnt(0)")
        if not opt.flagfirst: tr_first4()
        if not (opt.unsafe & 1):
            a.wait_vm("g")
            if opt.gwg:
                a("s_barrier")
                if w == 0:
                    keep = list(a.vm); g_flag(); a.vm = keep
            else:
                g_flag()
        if opt.flagfirst:
            more(max(0, 4 - nis[0]), 10)
            more(opt.nb3, 10)
            tr_first4()
        assert nis[0] >= 4
        more(10, 10)
        more(4, 14)
        for st in range(4, 10):
            a.wait_vm(f"w2_{st}")
            w2_tr(a, st)
            if st % 2 == 1: a("s_waitcnt lgkmcnt(0)")
        a("s_branch L_pre2")
        if w < 3: a.label(f"L_ep1_{w+1}")

    a.label("L_nogemm1")
    a.vm = []
    common_setup()
    if False:
        a(f"s_lshl_b32 s{sT0}, s{sWAVE}, 6")
        a(f"v_add_u32 v{vX}, s{sT0}, v{vLANE}")
        a(f"v_mul_u32_u24 v{vX}, {opt.hstride}, v{vX}")
        poll(a, opt, vX, 2, None)
        if opt.idlewait > 1:
            a(f"s_sleep {opt.idlewait}")
    if opt.pf == 3:
        a(f"s_lshl_b32 s{sT0}, s{sIDLE}, 2")
        a(f"s_add_u32 s{sT0}, s{sT0}, s{sWAVE}")
        a(f"s_lshl_b32 s{sT0}, s{sT0}, 10")
        for k in range(44):
            o = vRING + (k % 16) * 4
            a.vmem(f"buffer_load_dwordx4 {vr(o,4)}, v{vL0}, {srd(sW2)}, s{sT0} offen {opt.pfbits}", f"pf{k}")
            a(f"s_add_u32 s{sT0}, s{sT0}, {160*1024}")
            if k >= opt.pfdepth: a.wait_vm(f"pf{k-opt.pfdepth}")
        a.wait_vm0()
    if opt.pf == 2:
        assert opt.p1 == 2 and opt.p2 == 1
        a(f"s_cmp_lt_u32 s{sJ}, 28")
        a("s_cbranch_scc1 L_nopf")
        a(f"s_sub_u32 s{sT0}, s{sJ}, 28")
        a(f"s_lshl_b32 s{sT0}, s{sT0}, 2")
        a(f"s_add_u32 s{sT0}, s{sT0}, s{sWAVE}")
        a(f"s_lshl_b32 s{sT0}, s{sT0}, 13")
        a(f"s_lshl_b32 s{sT1}, s{sXCD}, 9")
        a(f"s_add_u32 s{sT0}, s{sT0}, s{sT1}")
        a(f"v_lshrrev_b32 v{vX}, 5, v{vLANE}")
        a(f"v_lshlrev_b32 v{vX}, 12, v{vX}")
        a(f"v_and_b32 v{vX+1}, 31, v{vLANE}")
        a(f"v_lshlrev_b32 v{vX+1}, 4, v{vX+1}")
        a(f"v_add_u32 v{vX}, v{vX}, v{vX+1}")
        keep = list(a.vm)
        for k in range(54):
            o = vRING + (k % 16) * 4
            a.vmem(f"buffer_load_dwordx4 {vr(o,4)}, v{vX}, {srd(sW2)}, s{sT0} offen", f"pf{k}")
            a(f"s_add_u32 s{sT0}, s{sT0}, {16*8192}")
            if k >= opt.pfdepth: a.wait_vm(f"pf{k-opt.pfdepth}")
        a.wait_vm0()
        a.label("L_nopf")
        a.vm = keep
    for st in range(10): w2_dma(a, st)
    for st in range(4):
        a.wait_vm(f"w2_{st}")
        w2_tr(a, st)
        if st % 2 == 1: a("s_waitcnt lgkmcnt(0)")
    for st in range(10, 14): w2_dma(a, st)
    for st in range(4, 10):
        a.wait_vm(f"w2_{st}")
        w2_tr(a, st)
        if st % 2 == 1: a("s_waitcnt lgkmcnt(0)")

    if opt.ptouch:
        a(f"s_lshl_b32 s{sT0}, s{sWAVE}, 6")
        a(f"v_add_u32 v{vX}, s{sT0}, v{vLANE}")
        a(f"v_lshlrev_b32 v{vX}, 12, v{vX}")
        if opt.ptouch & 1:
            for k in range(3):
                a(f"s_mov_b32 s{sT1}, {k*256*4096}")
                a(f"buffer_load_dword v{240+k}, v{vX}, {srd(sG)}, s{sT1} offen")
        if opt.ptouch & 2:
            a(f"s_mul_i32 s{sT1}, s{sXCD}, {256*1280}")
            a(f"v_cmp_gt_u32 vcc, {80*4096}, v{vX}")
            a(f"s_and_saveexec_b64 s[{sP}:{sP+1}], vcc")
            a("s_cbranch_execz L_ptouch")
            a(f"buffer_load_dword v243, v{vX}, {srd(sO)}, s{sT1} offen")
            a.label("L_ptouch")
            a(f"s_mov_b64 exec, s[{sP}:{sP+1}]")
    if opt.idle1:
        a("s_waitcnt vmcnt(0)")
        a(f"s_cmp_lg_u32 s{sWAVE}, {opt.pollw}")
        a("s_cbranch_scc1 L_idle1")
        a(f"s_lshl_b32 s{sT0}, s{sDT2}, 5")
        a(f"s_add_u32 s{sT0}, s{sT0}, {opt.idle1ft}")
        a(f"s_mul_i32 s{sT0}, s{sT0}, {opt.gstride}")
        a(f"s_add_u32 s{sT0}, s{sT0}, {FLAG_G}")
        a(f"v_mov_b32 v{vX}, s{sT0}")
        poll(a, opt, vX, 1, None, opt.idle1)
        a.label("L_idle1")
    a.label("L_pre2")
    a(f"s_mul_i32 s{sT0}, s{sDT2}, 5120")
    a(f"v_add_u32 v{vA}, s{sT0}, v{vL0}")
    a(f"v_add_u32 v{vA2}, 4096, v{vA}")
    def w2_finish():
        a.wait_vm("w2all")
        a("s_waitcnt lgkmcnt(0)")
        for st in range(10, 14):
            w2_tr(a, st)
            if st % 2 == 1: a("s_waitcnt lgkmcnt(0)")
    if not opt.hold2:
        a.vm = ["w2all"]
        w2_finish()
    stamp(a, opt, 10)
    if opt.onepoll & 2:
        a(f"s_cmp_lg_u32 s{sWAVE}, {opt.pollw}")
        a("s_cbranch_scc1 L_gpolled")
        a(f"s_lshl_b32 s{sT0}, s{sDT2}, 5")
        a(f"s_mul_i32 s{sT0}, s{sT0}, {opt.gstride}")
        a(f"s_add_u32 s{sT0}, s{sT0}, {FLAG_G}")
        a(f"v_mul_u32_u24 v{vX}, {opt.gstride}, v{vLANE}")
        a(f"v_add_u32 v{vX}, s{sT0}, v{vX}")
        a(f"s_mov_b32 s{sP+2}, 0x7ffffff")
        a(f"s_mov_b32 s{sP+3}, 0")
        if opt.pipe & 2:
            a("s_waitcnt vmcnt(0)")
            poll_pipe(a, opt, vX, sP + 2, opt.gap, 1 if opt.gwg else 4)
        else:
            poll(a, opt, vX, 1 if opt.gwg else 4, sP + 2, opt.sleep, opt.preg)
        a.label("L_gpolled")
        a("s_barrier")
    else:
        a(f"s_lshl_b32 s{sT0}, s{sDT2}, 5")
        a(f"s_mul_i32 s{sT1}, s{sWAVE}, 7")
        a(f"s_add_u32 s{sT0}, s{sT0}, s{sT1}")
        a(f"s_mul_i32 s{sT0}, s{sT0}, {opt.gstride}")
        a(f"s_add_u32 s{sT0}, s{sT0}, {FLAG_G}")
        a(f"v_mul_u32_u24 v{vX}, {opt.gstride}, v{vLANE}")
        a(f"v_add_u32 v{vX}, s{sT0}, v{vX}")
        a(f"s_cmp_eq_u32 s{sWAVE}, 3")
        a(f"s_cselect_b32 s{sP+2}, 0x3f, 0x7f")
        a(f"s_mov_b32 s{sP+3}, 0")
        poll(a, opt, vX, 4, sP + 2, opt.sleep, opt.preg)
    a.vm = ["w2all"] if opt.hold2 else []
    stamp(a, opt, 11)
    a(f"s_mul_i32 s{sSTEP}, s{sWAVE}, {14*40960}")
    def mfma2(st, mt, nt, slot):
        c = "0" if st == 0 else vr(acc2(mt, nt), 4)
        a(f"v_mfma_f32_16x16x32_bf16 {vr(acc2(mt,nt),4)}, {vr(ring(slot,mt),4)}, {ar(wfrag(st,nt),4)}, {c}")
    main_loop(sG, 14, sROT2, "g", mfma2, 12, None, 12, w2_finish if opt.hold2 else None, dist=opt.dist2)
    saved_vm2 = list(a.vm)
    a(f"v_and_b32 v{vT}, 15, v{vLANE}")
    a(f"s_lshl_b32 s{sT0}, s{sWAVE}, 4")
    a(f"v_add_u32 v{vT}, s{sT0}, v{vT}")
    a(f"v_mul_u32_u24 v{vA}, 1280, v{vT}")
    a(f"v_lshrrev_b32 v{vT}, 4, v{vLANE}")
    a(f"v_lshlrev_b32 v{vT}, 3, v{vT}")
    a(f"v_add_u32 v{vA}, v{vA}, v{vT}")
    a(f"s_mul_i32 s{sT0}, s{sST}, {64*1280}")
    a(f"s_mul_i32 s{sT1}, s{sDT2}, 160")
    a(f"s_add_u32 s{sOFF}, s{sT0}, s{sT1}")
    a(f"v_lshlrev_b32 v{vC0}, 16, v{vB2}")
    a(f"v_lshlrev_b32 v{vC0+1}, 16, v{vB2}")
    a(f"v_sub_u32 v{vA2}, v{vA}, v{vT}")
    a(f"v_bfe_u32 v{vT}, v{vLANE}, 4, 1")
    a(f"v_lshlrev_b32 v{vT}, 5, v{vT}")
    a(f"v_add_u32 v{vA2}, v{vA2}, v{vT}")
    a(f"v_bfe_u32 v{vT}, v{vLANE}, 5, 1")
    a(f"v_lshlrev_b32 v{vT}, 4, v{vT}")
    a(f"v_add_u32 v{vA2}, v{vA2}, v{vT}")
    def red2_addr(src, nt, mt):
        k = [x for x in range(4) if x != src].index(nt)
        return src * 32768 + (k * 5 + mt) * 1024
    for w in range(4):
        if w < 3:
            a(f"s_cmp_lg_u32 s{sWAVE}, {w}")
            a(f"s_cbranch_scc1 L_ep2_{w+1}")
        a.vm = list(saved_vm2)
        tl = [(mt, nt) for mt in range(5) for nt in range(4)]
        def wr2(t):
            vb, off = lds_ref(red2_addr(w, t[1], t[0]))
            a(f"ds_write_b128 v{vb}, {vr(acc2(*t),4)} offset:{off}")
        tile_tail(14, "g", [t for t in tl if t[1] != w], [t for t in tl if t[1] == w], lambda t: t[0],
                  lambda st, t: mfma2(st, t[0], t[1], st % NS), wr2, [])
        stamp(a, opt, 13)
        jitter(a, opt, 5)
        a("s_waitcnt lgkmcnt(0)")
        a("s_barrier")
        RT = vRING
        def read_partials(order):
            n = 0
            for mt in order:
                for src in range(4):
                    if src == w: continue
                    vb, off = lds_ref(red2_addr(src, w, mt))
                    a(f"ds_read_b128 {vr(RT+n*4,4)}, v{vb} offset:{off}")
                    n += 1
        def finish_tiles(single):
            n = 0
            paired = [m for m in range(5) if m != single]
            order = ([single] + paired) if opt.sfirst else list(range(5))
            read_partials(order)
            for mt in order:
                r = acc2(mt, w)
                for si in range(3):
                    a(f"s_waitcnt lgkmcnt({14 - n})")
                    a(f"v_pk_add_f32 {vr(r,2)}, {vr(r,2)}, {vr(RT+n*4,2)}")
                    a(f"v_pk_add_f32 {vr(r+2,2)}, {vr(r+2,2)}, {vr(RT+n*4+2,2)}")
                    n += 1
                a(f"v_pk_add_f32 {vr(r,2)}, {vr(r,2)}, {vr(vC0,2)}")
                a(f"v_pk_add_f32 {vr(r+2,2)}, {vr(r+2,2)}, {vr(vC0,2)}")
                if mt == single: o = RT + 72
                else: o = RT + 64 + 2 * paired.index(mt)
                a(f"v_cvt_pk_bf16_f32 v{o}, v{r}, v{r+1}")
                a(f"v_cvt_pk_bf16_f32 v{o+1}, v{r+2}, v{r+3}")
                if not opt.wide or mt == single:
                    a(f"buffer_store_dwordx2 {vr(o,2)}, v{vA}, {srd(sO)}, s{sOFF} offen offset:{mt*32} {opt.obits1}")
                elif paired.index(mt) % 2 == 1:
                    a("s_nop 1")
                    a(f"v_permlane16_swap_b32 v{o-2}, v{o}")
                    a(f"v_permlane16_swap_b32 v{o-1}, v{o+1}")
                    a(f"buffer_store_dwordx4 {vr(o-2,4)}, v{vA2}, {srd(sO)}, s{sOFF} offen offset:{(mt-1)*32} {opt.obits}")
        if opt.align64:
            a(f"s_and_b32 s{sT0}, s{sDT2}, 1")
            a(f"s_cmp_lg_u32 s{sT0}, 0")
            a(f"s_cbranch_scc1 L_odd_{w}")
            finish_tiles(4)
            a("s_branch L_fin")
            a.label(f"L_odd_{w}")
            finish_tiles(0)
        else:
            finish_tiles(4)
        a("s_branch L_fin")
        if w < 3: a.label(f"L_ep2_{w+1}")
    a.label("L_fin")
    if opt.probe >= 0:
        if opt.probe == 14:
            a("s_waitcnt vmcnt(0)")
            stamp(a, opt, 14)
        a(f"s_cmp_lg_u32 s{sWG}, {opt.probewg}")
        a("s_cbranch_scc1 L_done")
        a(f"s_cmp_lg_u32 s{sWAVE}, {opt.probew}")
        a("s_cbranch_scc1 L_done")
        ref = sNONCE if opt.probeabs else (sPROF + 2 if opt.probe0 >= 0 else 96)
        a(f"s_sub_u32 s{sT1}, s{sPROF+1}, s{ref}")
        if opt.probecyc: a(f"s_lshr_b32 s{sT1}, s{sT1}, 2")
        else: a(f"s_lshl_b32 s{sT1}, s{sT1}, 2")
        a(f"s_add_u32 s{sT1}, s{sT1}, 4000")
        a.label("L_probe")
        a(f"s_memrealtime s[{sP}:{sP+1}]")
        a("s_waitcnt lgkmcnt(0)")
        a(f"s_sub_u32 s{sT0}, s{sP}, s96")
        a(f"s_cmp_lt_u32 s{sT0}, s{sT1}")
        a("s_cbranch_scc1 L_probe")
    if opt.pad:
        a.label("L_pad")
        a(f"s_memrealtime s[{sP}:{sP+1}]")
        a("s_waitcnt lgkmcnt(0)")
        a(f"s_sub_u32 s{sT0}, s{sP}, s96")
        a(f"s_cmp_lt_u32 s{sT0}, {opt.pad}")
        a("s_cbranch_scc1 L_pad")
    if opt.prof:
        a("s_waitcnt vmcnt(0)")
        stamp(a, opt, 14)
        make_srd(a, sX, 18, 65536, WS_PROF)
        a(f"s_lshl_b32 s{sT0}, s{sWG}, 2")
        a(f"s_add_u32 s{sT0}, s{sT0}, s{sWAVE}")
        a(f"s_lshl_b32 s{sT0}, s{sT0}, 6")
        a(f"v_mov_b32 v{vT}, s{sT0}")
        a("s_mov_b64 exec, 1")
        for i in range(15):
            a(f"v_mov_b32 v100, s{sPROF+i}")
            a(f"buffer_store_dword v100, v{vT}, {srd(sX)}, 0 offen offset:{4*i}")
            a("s_nop 1")
        a("s_waitcnt vmcnt(0)")
    a.label("L_done")
    a("s_endpgm")
    a.label("L_codeend")
    a.raw('.section .rodata,"a"')
    a.raw(".p2align 6")
    a.raw(f".amdhsa_kernel {KN}")
    for l in ["next_free_vgpr 512", "next_free_sgpr 102", "accum_offset 256", "group_segment_fixed_size 0",
              "kernarg_size 64", "user_sgpr_count 2", "user_sgpr_kernarg_segment_ptr 1",
              "system_sgpr_workgroup_id_x 1", "float_denorm_mode_32 3"]:
        a.raw(f"  .amdhsa_{l}")
    a.raw(".end_amdhsa_kernel")
    return "\n".join(a.L) + "\n"

def parse(argv=None):
    ap = argparse.ArgumentParser()
    ap.add_argument("-o", default="standalone__mixer_token_mlp__prompt.s")
    ap.add_argument("--prof", type=int, default=0)
    ap.add_argument("--rot", type=int, default=3)
    ap.add_argument("--spin", type=int, default=20000)
    ap.add_argument("--sleep", type=int, default=8)
    ap.add_argument("--depth", type=int, default=3)
    ap.add_argument("--lnprof", type=int, default=0)
    ap.add_argument("--hbits", default="sc1")
    ap.add_argument("--pfwait", type=int, default=1)
    ap.add_argument("--hold", type=int, default=0)
    ap.add_argument("--probe", type=int, default=-1)
    ap.add_argument("--probe0", type=int, default=-1)
    ap.add_argument("--probecyc", type=int, default=0)
    ap.add_argument("--probeabs", type=int, default=0)
    ap.add_argument("--probewg", type=int, default=100)
    ap.add_argument("--probew", type=int, default=2)
    ap.add_argument("--rot8", type=int, default=1)
    ap.add_argument("--cpf", type=int, default=1)
    ap.add_argument("--cpfw", type=int, default=3)
    ap.add_argument("--wide", type=int, default=1)
    ap.add_argument("--idlewait", type=int, default=0)
    ap.add_argument("--sleeph", type=int, default=4)
    ap.add_argument("--preh", type=int, default=0)
    ap.add_argument("--preg", type=int, default=0)
    ap.add_argument("--onepoll", type=int, default=3)
    ap.add_argument("--pollw", type=int, default=3)
    ap.add_argument("--nta", type=int, default=0)
    ap.add_argument("--rotg1", type=int, default=0)
    ap.add_argument("--rotg2", type=int, default=0)
    ap.add_argument("--npost", type=int, default=3)
    ap.add_argument("--xbar", type=int, default=1)
    ap.add_argument("--hold1", type=int, default=4)
    ap.add_argument("--hold2", type=int, default=1)
    ap.add_argument("--nmid", type=int, default=0)
    ap.add_argument("--gbits", default="sc1")
    ap.add_argument("--fbits", default="sc1")
    ap.add_argument("--abits", default="sc1")
    ap.add_argument("--unsafe", type=int, default=0)
    ap.add_argument("--epoll", type=int, default=12)
    ap.add_argument("--pipe", type=int, default=0)
    ap.add_argument("--gap", type=int, default=2)
    ap.add_argument("--gwg", type=int, default=1)
    ap.add_argument("--hline", type=int, default=16)
    ap.add_argument("--idle1", type=int, default=0)
    ap.add_argument("--idle1ft", type=int, default=13)
    ap.add_argument("--jitter", type=int, default=0)
    ap.add_argument("--flagfirst", type=int, default=0)
    ap.add_argument("--nb3", type=int, default=2)
    ap.add_argument("--pairx", type=int, default=1)
    ap.add_argument("--xpf", type=int, default=0)
    ap.add_argument("--fine", type=int, default=2)
    ap.add_argument("--dist", type=int, default=12)
    ap.add_argument("--align64", type=int, default=1)
    ap.add_argument("--obits1", default="sc0 sc1")
    ap.add_argument("--sfirst", type=int, default=0)
    ap.add_argument("--gsec", type=int, default=0)
    ap.add_argument("--dist2", type=int, default=12)
    ap.add_argument("--elate", type=int, default=0)
    ap.add_argument("--ptouch", type=int, default=0)
    ap.add_argument("--t13", type=int, default=1)
    ap.add_argument("--tt", type=int, default=2)
    ap.add_argument("--e2", type=int, default=0)
    ap.add_argument("--e3", type=int, default=0)
    ap.add_argument("--nb2", type=int, default=0)
    ap.add_argument("--e1", type=int, default=1)
    ap.add_argument("--nb", type=int, default=2)
    ap.add_argument("--nearly", type=int, default=2)
    ap.add_argument("--dpl", type=int, default=5)
    ap.add_argument("--dp", type=int, default=4)
    ap.add_argument("--p1", type=int, default=2)
    ap.add_argument("--p2", type=int, default=1)
    ap.add_argument("--rota1", type=int, default=0)
    ap.add_argument("--rota2", type=int, default=0)
    ap.add_argument("--xbits", default="nt")
    ap.add_argument("--w1bits", default="")
    ap.add_argument("--w2bits", default="")
    ap.add_argument("--pfbits", default="")
    ap.add_argument("--pfdepth", type=int, default=8)
    ap.add_argument("--prio", type=int, default=3)
    ap.add_argument("--delay", type=int, default=0)
    ap.add_argument("--hstride", type=int, default=8)
    ap.add_argument("--gstride", type=int, default=256)
    ap.add_argument("--pf", type=int, default=0)
    ap.add_argument("--pad", type=int, default=0)
    ap.add_argument("--obits", default="sc0 sc1")
    return ap.parse_args(argv)

if __name__ == "__main__":
    opt = parse()
    open(opt.o, "w").write(gen(opt))
```

```python
import argparse, struct

S, D, F = 2048, 640, 1728
KN = "standalone__mixer_token_mlp__prompt_kernel"

WS_H = 0
H_BYTES = 64 * 40 * 1024
WS_G = 0x300000
G_BYTES = 54 * 40 * 1024
WS_FLAG = 0x600000
FLAG_H = 0
FLAG_G = 0x10000
FLAG_BYTES = 0x40000
WS_PROF = 0x700000

LDS_BYTES = 163840
LN_BASE = 131072
LN_ROW = 1344
LF_BASE = 141824
P0_BASE = [0, 49152, 98304, 122880]

sWG = 2
sX, sW1, sW2, sH, sG, sO, sF, sB1, sB2, sD = 20, 24, 28, 32, 36, 40, 44, 48, 52, 56
sWAVE, sXCD, sJ, sFT, sDT1, sST, sDT2, sNONCE = 60, 61, 62, 63, 64, 65, 66, 67
sT0, sT1, sT2, sT3, sT4, sT5 = 68, 69, 70, 71, 72, 73
sROT1, sROT2, sSTEP, sOFF = 74, 75, 76, 77
sM0B, sSPIN = 78, 79
sP = 80
sPROF = 84
sUP = 99
sJLIM, sIDLE = 100, 101
sWB = 3

vTID, vLANE = 0, 1
vTR = 2
vA, vA2, vDMA, vT2 = 6, 7, 8, 9
vB1 = 10
vB2, vT = 14, 15
vACC = 16
vRING = 96
vTRU = 196
vL0, vL1, vL2 = 200, 201, 202
vC0 = 204
BI = 206
vPOLL = 214
vX = 216
vFS = 248
vHP = 226
vPQ = 228
vDM = 220

def srd(n): return f"s[{n}:{n+3}]"
def vr(n, c=1): return f"v{n}" if c == 1 else f"v[{n}:{n+c-1}]"
def ar(n, c=1): return f"a{n}" if c == 1 else f"a[{n}:{n+c-1}]"
def f2h(x): return "0x%08x" % struct.unpack("<I", struct.pack("<f", x))[0]
C0 = -2.0 * 0.7978845608028654 * 1.4426950408889634
C1 = C0 * 0.044715

class Asm:
    def __init__(self):
        self.L = []; self.vm = []; self.uid = 0
    def __call__(self, s): self.L.append("    " + s)
    def label(self, s): self.L.append(s + ":")
    def raw(self, s): self.L.append(s)
    def c(self, s): self.L.append("    ; " + s)
    def vmem(self, s, tag):
        self(s); self.vm.append(tag)
    def wait_vm(self, tag):
        hits = [i for i, t in enumerate(self.vm) if t == tag]
        if not hits: return
        n = len(self.vm) - 1 - hits[-1]
        self(f"s_waitcnt vmcnt({min(n, 63)})")
        self.vm = self.vm[hits[-1] + 1:]
    def wait_vm0(self):
        self("s_waitcnt vmcnt(0)"); self.vm = []
    def newlabel(self, p):
        self.uid += 1
        return f"L_{p}_{self.uid}"

def acc1(mt, nt): return vACC + (mt * 5 + nt) * 4
def acc2(mt, nt): return vACC + (mt * 4 + nt) * 4
def wfrag(step, t): return step * 16 + t * 4

def stamp(a, opt, idx, force=False):
    if opt.probe >= 0:
        ins = "s_memtime" if opt.probecyc else "s_memrealtime"
        if idx == opt.probe:
            a(f"{ins} s[{sP}:{sP+1}]")
            a("s_waitcnt lgkmcnt(0)")
            a(f"s_mov_b32 s{sPROF+1}, s{sP}")
        if idx == opt.probe0:
            a(f"{ins} s[{sP}:{sP+1}]")
            a("s_waitcnt lgkmcnt(0)")
            a(f"s_mov_b32 s{sPROF+2}, s{sP}")
        return
    if opt.prof == 4 and idx != 14: return
    if opt.lnprof and idx in (4, 5) and getattr(a, "ln_done", False): return
    if opt.prof:
        a(f"s_mem{'time' if opt.prof == 2 else 'realtime'} s[{sP}:{sP+1}]")
        a("s_waitcnt lgkmcnt(0)")
        a(f"s_mov_b32 s{sPROF+idx}, s{sP}")

def jitter(a, opt, k):
    if not opt.jitter: return
    lp, dn = a.newlabel("jit"), a.newlabel("jitd")
    a(f"s_lshl_b32 s{sP+2}, s{sWG}, 2")
    a(f"s_add_u32 s{sP+2}, s{sP+2}, s{sWAVE}")
    a(f"s_mul_i32 s{sP+2}, s{sP+2}, {2654435761 * (2 * k + opt.jitter) % (1 << 31)}")
    a(f"s_lshr_b32 s{sP+2}, s{sP+2}, 26")
    a.label(lp)
    a(f"s_cmp_eq_u32 s{sP+2}, 0")
    a(f"s_cbranch_scc1 {dn}")
    a("s_sleep 2")
    a(f"s_sub_u32 s{sP+2}, s{sP+2}, 1")
    a(f"s_branch {lp}")
    a.label(dn)

def make_srd(a, n, lo, size, add=0):
    if add:
        a(f"s_add_u32 s{n}, s{lo}, {add}")
        a(f"s_addc_u32 s{n+1}, s{lo+1}, 0")
        a(f"s_and_b32 s{n+1}, s{n+1}, 0xffff")
    else:
        a(f"s_mov_b32 s{n}, s{lo}")
        a(f"s_and_b32 s{n+1}, s{lo+1}, 0xffff")
    a(f"s_mov_b32 s{n+2}, {size}")
    a(f"s_mov_b32 s{n+3}, 0x20000")

def nonce_spin(a, opt):
    lp = a.newlabel("nonce"); dn = a.newlabel("nonced")
    a(f"s_cmp_lg_u32 s{sNONCE}, 0")
    a(f"s_cbranch_scc1 {dn}")
    a(f"s_mov_b32 s{sSPIN}, 0")
    a(f"v_mov_b32 v{vT}, 0")
    a.label(lp)
    a(f"buffer_load_dword v{vT2}, v{vT}, {srd(sD)}, 0 offen sc1")
    a("s_waitcnt vmcnt(0)")
    a(f"v_readfirstlane_b32 s{sNONCE}, v{vT2}")
    a(f"s_add_u32 s{sSPIN}, s{sSPIN}, 1")
    a(f"s_cmp_lg_u32 s{sNONCE}, 0")
    a(f"s_cbranch_scc1 {dn}")
    a(f"s_cmp_lt_u32 s{sSPIN}, {opt.spin}")
    a(f"s_cbranch_scc1 {lp}")
    a.label(dn)

def lds_set(a, addr_sgpr_or_imm):
    a(f"v_mov_b32 v{vT}, {addr_sgpr_or_imm}")
    a(f"v_mov_b32 v{vT2}, 1")
    a(f"s_mov_b64 s[{sP}:{sP+1}], exec")
    a("s_mov_b64 exec, 1")
    a(f"ds_write_b32 v{vT}, v{vT2}")
    a(f"s_mov_b64 exec, s[{sP}:{sP+1}]")

def lds_spin(a, opt, addr):
    lp = a.newlabel("lspin"); dn = a.newlabel("lspun")
    a(f"v_mov_b32 v{vT}, {addr}")
    a(f"s_mov_b32 s{sSPIN}, 0")
    a.label(lp)
    a(f"ds_read_b32 v{vT2}, v{vT}")
    a("s_waitcnt lgkmcnt(0)")
    a(f"v_readfirstlane_b32 s{sP}, v{vT2}")
    a(f"s_add_u32 s{sSPIN}, s{sSPIN}, 1")
    a(f"s_cmp_lg_u32 s{sP}, 0")
    a(f"s_cbranch_scc1 {dn}")
    a(f"s_cmp_lt_u32 s{sSPIN}, {opt.spin * 8}")
    a(f"s_cbranch_scc1 {lp}")
    a.label(dn)

def dma_addr(a, stride, s_tile):
    a(f"v_lshrrev_b32 v{vT}, 3, v{vLANE}")
    a(f"v_lshrrev_b32 v{vT2}, 1, v{vT}")
    a(f"v_lshlrev_b32 v{vT2}, 1, v{vT2}")
    a(f"v_and_b32 v{vDM}, 7, v{vLANE}")
    a(f"v_xor_b32 v{vDM}, v{vDM}, v{vT2}")
    a(f"v_lshlrev_b32 v{vDM}, 4, v{vDM}")
    a(f"v_mul_u32_u24 v{vT}, {stride}, v{vT}")
    a(f"v_add_u32 v{vDM}, v{vDM}, v{vT}")
    a(f"s_lshl_b32 s{sT0}, s{s_tile}, 7")
    a(f"v_add_u32 v{vDM}, s{sT0}, v{vDM}")
    for b in range(1, 4):
        a(f"v_add_u32 v{vDM+b}, {b*(8*stride-1024)}, v{vDM}")

def step_off(a, dst, s_base, s_rot, i, nsteps, bytes_per_step):
    a(f"s_add_u32 s{sT4}, s{s_rot}, {i}")
    a(f"s_cmp_ge_u32 s{sT4}, {nsteps}")
    a(f"s_cselect_b32 s{dst}, {nsteps}, 0")
    a(f"s_sub_u32 s{sT4}, s{sT4}, s{dst}")
    a(f"s_mul_i32 s{sT4}, s{sT4}, {bytes_per_step}")
    a(f"s_add_u32 s{dst}, s{sT4}, s{s_base}")

def dma_step(a, srdn, stride, s_rowbase, s_rot, step, nsteps, s_lds, lds_off, tag, bits=""):
    a(f"s_add_u32 m0, s{s_lds}, {lds_off}")
    step_off(a, sOFF, s_rowbase, s_rot, step, nsteps, 32 * stride)
    for blk in range(4):
        a.vmem(f"buffer_load_dwordx4 v{vDM+blk}, {srd(srdn)}, s{sOFF} offen offset:{blk*1024} {bits} lds", tag)

def tr_step(a, vbase, off, step):
    for t in range(4):
        w = wfrag(step, t)
        a(f"ds_read_b64_tr_b16 {ar(w,2)}, v{vbase+t} offset:{off}")
        a(f"ds_read_b64_tr_b16 {ar(w+2,2)}, v{vbase+t} offset:{off+2048}")

def poll(a, opt, vaddr, nd, lanes, sleep=None, pre=0, nload=1):
    if sleep is None: sleep = opt.sleep
    if pre: a(f"s_sleep {pre}")
    lp = a.newlabel("poll"); dn = a.newlabel("polled")
    a(f"s_mov_b32 s{sSPIN}, 0")
    a.label(lp)
    ld = {1: "dword", 2: "dwordx2", 4: "dwordx4"}[nd]
    for k in range(nload):
        a(f"buffer_load_{ld} {vr(vPQ + 4*k, nd)}, v{vaddr}, {srd(sF)}, 0 offen offset:{k*1024} sc1")
    a("s_waitcnt vmcnt(0)")
    first = True
    for k in range(nload):
        for i in range(nd):
            if first:
                a(f"v_cmp_ne_u32 vcc, s{sNONCE}, v{vPQ+4*k+i}"); first = False
            else:
                a(f"v_cmp_ne_u32 s[{sP}:{sP+1}], s{sNONCE}, v{vPQ+4*k+i}")
                a(f"s_or_b64 vcc, vcc, s[{sP}:{sP+1}]")
    if lanes is not None:
        a(f"s_and_b64 vcc, vcc, s[{lanes}:{lanes+1}]")
    a(f"s_add_u32 s{sSPIN}, s{sSPIN}, 1")
    a("s_cmp_eq_u64 vcc, 0")
    a(f"s_cbranch_scc1 {dn}")
    if sleep: a(f"s_sleep {sleep}")
    a(f"s_cmp_lt_u32 s{sSPIN}, {opt.spin}")
    a(f"s_cbranch_scc1 {lp}")
    a.label(dn)
    a.vm = []

def poll_pipe(a, opt, vaddr, lanes, gap, nd=4):
    dn = a.newlabel("ppolled"); lp = a.newlabel("ppoll")
    regs = [vPQ, vPQ + 4, vPQ + 8]
    def probe(r): a(f"buffer_load_{'dwordx4' if nd == 4 else 'dword'} {vr(r,nd)}, v{vaddr}, {srd(sF)}, 0 offen sc1")
    a(f"s_mov_b32 s{sSPIN}, 0")
    probe(regs[0]); a(f"s_sleep {gap}"); probe(regs[1]); a(f"s_sleep {gap}"); probe(regs[2])
    a.label(lp)
    for r in regs:
        a("s_waitcnt vmcnt(2)")
        for i in range(nd):
            if i == 0: a(f"v_cmp_ne_u32 vcc, s{sNONCE}, v{r}")
            else:
                a(f"v_cmp_ne_u32 s[{sP}:{sP+1}], s{sNONCE}, v{r+i}")
                a(f"s_or_b64 vcc, vcc, s[{sP}:{sP+1}]")
        if lanes is not None: a(f"s_and_b64 vcc, vcc, s[{lanes}:{lanes+1}]")
        a("s_cmp_eq_u64 vcc, 0")
        a(f"s_cbranch_scc1 {dn}")
        a(f"s_sleep {gap}")
        probe(r)
    a(f"s_add_u32 s{sSPIN}, s{sSPIN}, 1")
    a(f"s_cmp_lt_u32 s{sSPIN}, {opt.spin}")
    a(f"s_cbranch_scc1 {lp}")
    a.label(dn)

def poll_check(a, nd, lanes, ok_label):
    for i in range(nd):
        if i == 0: a(f"v_cmp_ne_u32 vcc, s{sNONCE}, v{vPQ}")
        else:
            a(f"v_cmp_ne_u32 s[{sP}:{sP+1}], s{sNONCE}, v{vPQ+i}")
            a(f"s_or_b64 vcc, vcc, s[{sP}:{sP+1}]")
    if lanes is not None:
        a(f"s_and_b64 vcc, vcc, s[{lanes}:{lanes+1}]")
    a("s_cmp_eq_u64 vcc, 0")
    a(f"s_cbranch_scc1 {ok_label}")

def flag_store(a, s_index_bytes, sector=False):
    if sector:
        a(f"v_lshlrev_b32 v{vT}, 4, v{vLANE}")
        a(f"v_add_u32 v{vT}, s{s_index_bytes}, v{vT}")
        for i in range(4): a(f"v_mov_b32 v{vFS+i}, s{sNONCE}")
        a(f"s_mov_b64 s[{sP}:{sP+1}], exec")
        a("s_mov_b64 exec, 15")
        a.vmem(f"buffer_store_dwordx4 {vr(vFS,4)}, v{vT}, {srd(sF)}, 0 offen {OPT.fbits}", "flag")
        a(f"s_mov_b64 exec, s[{sP}:{sP+1}]")
        return
    a(f"v_mov_b32 v{vT}, s{s_index_bytes}")
    a(f"v_mov_b32 v{vT2}, s{sNONCE}")
    a(f"s_mov_b64 s[{sP}:{sP+1}], exec")
    a("s_mov_b64 exec, 1")
    a.vmem(f"buffer_store_dword v{vT2}, v{vT}, {srd(sF)}, 0 offen {OPT.fbits}", "flag")
    a(f"s_mov_b64 exec, s[{sP}:{sP+1}]")

def gelu_pairs(a, regs, tmp, fill=None):
    def each(fn):
        for i, r in enumerate(regs): fn(r, tmp + 2 * i)
    each(lambda r, t: a(f"v_pk_mul_f32 {vr(t,2)}, {vr(r,2)}, {vr(r,2)}"))
    each(lambda r, t: a(f"v_pk_fma_f32 {vr(t,2)}, {vr(t,2)}, s[100:101], {vr(vC0,2)}"))
    each(lambda r, t: a(f"v_pk_mul_f32 {vr(t,2)}, {vr(t,2)}, {vr(r,2)}"))
    if fill: fill()
    each(lambda r, t: (a(f"v_exp_f32 v{t}, v{t}"), a(f"v_exp_f32 v{t+1}, v{t+1}")))
    each(lambda r, t: a(f"v_pk_add_f32 {vr(t,2)}, {vr(t,2)}, 1.0 op_sel_hi:[1,0]"))
    each(lambda r, t: (a(f"v_rcp_f32 v{t}, v{t}"), a(f"v_rcp_f32 v{t+1}, v{t+1}")))
    a("s_nop 0")
    each(lambda r, t: a(f"v_pk_mul_f32 {vr(r,2)}, {vr(r,2)}, {vr(t,2)}"))

def w2_slot(step):
    if step < 8: return sM0B, step * 4096, vTR, step * 4096
    if step < 10: return sUP, (step - 8) * 4096, vTRU, (step - 8) * 4096
    return sM0B, (step - 10) * 4096, vTR, (step - 10) * 4096

def w2_dma(a, step):
    sb, off, _, _ = w2_slot(step)
    dma_step(a, sW2, S * 2, sWB, sROT2, step, 14, sb, off, f"w2_{step}", OPT.w2bits)

def w2_dma_parts(a, step):
    sb, off, _, _ = w2_slot(step)
    def setup():
        a(f"s_add_u32 m0, s{sb}, {off}")
        step_off(a, sT3, sWB, sROT2, step, 14, 32 * S * 2)
    def one(blk):
        return lambda: a.vmem(f"buffer_load_dwordx4 v{vDM+blk}, {srd(sW2)}, s{sT3} offen offset:{blk*1024} {OPT.w2bits} lds", f"w2_{step}")
    return [setup] + [one(b) for b in range(4)]

def w2_tr(a, step):
    _, _, vb, off = w2_slot(step)
    tr_step(a, vb, off, step)

def gen(opt):
    global OPT
    OPT = opt
    a = Asm()
    NS = (max(opt.dist, opt.dist2) + 1 + 4) // 5
    assert opt.dist < 5 * NS and NS <= 5
    def ring(slot, t): return vRING + slot * 20 + t * 4
    for line in ['; Fused token-mixing MLP: LayerNorm -> GEMM1 + GELU -> GEMM2, one persistent workgroup per CU.', '; kernarg: x (2048x640 bf16), w1 (2048x1728), b1 (1728), w2 (1728x2048), b2 (2048), out (2048x640), debug, workspace.', ';', "; Phase 0  every workgroup normalises 8 rows of x and stores them as MFMA B fragments (H', workspace), while it", ';          streams its 64-column panel of w1 through LDS (LDS-DMA, transposing reads) into a[0:255].', '; GEMM1    216 workgroups, tile 64 (f) x 80 (d); the four waves split K and keep full-tile accumulators;', ";          partial sums meet in LDS, bias + tanh-form GELU, result stored as MFMA A fragments (G', workspace).", "; GEMM2    256 workgroups, tile 80 (d) x 64 (s); w2 panel in the AGPRs, G' streamed; reduction, bias, bf16 store.", '; Hand-offs between workgroups: write-through stores, drained, then one flag per workgroup holding a per-launch', ';          nonce (published in debug[0]); one wave per consumer polls, the others wait at a barrier.']: a.raw(line)
    a.raw(f"; @launch grid=(256,1,1) block=(256,1,1) lds={LDS_BYTES}")
    a.raw('.amdgcn_target "amdgcn-amd-amdhsa--gfx950"')
    a.raw(".text")
    a.raw(f".globl {KN}")
    a.raw(".p2align 8")
    a.raw(f".type {KN},@function")
    a.label(KN)
    if opt.cpf: a("s_getpc_b64 s[94:95]")
    a(f"s_cmp_ge_u32 s{sWG}, 256")
    a("s_cbranch_scc1 L_done")
    a("s_load_dwordx16 s[4:19], s[0:1], 0")
    if opt.prof:
        a(f"s_mem{'time' if opt.prof == 2 else 'realtime'} s[{sP}:{sP+1}]")
    if opt.prof:
        for i in range(1, 15): a(f"s_mov_b32 s{sPROF+i}, 0")
    if not opt.prof:
        a("s_memrealtime s[96:97]")
    a(f"v_lshrrev_b32 v{vT}, 6, v{vTID}")
    a(f"v_and_b32 v{vLANE}, 63, v{vTID}")
    a(f"v_readfirstlane_b32 s{sWAVE}, v{vT}")
    a(f"s_and_b32 s{sXCD}, s{sWG}, 7")
    a(f"s_lshr_b32 s{sJ}, s{sWG}, 3")
    if opt.p1 == 2:
        if opt.pairx:
            assert opt.pf == 0 or opt.pairx == 1
            a(f"s_add_u32 s{sT1}, s{sXCD}, {opt.pairx - 1}")
            a(f"s_and_b32 s{sT1}, s{sT1}, 3")
            a(f"s_and_b32 s{sT2}, s{sXCD}, 4")
        else:
            a(f"s_lshr_b32 s{sT1}, s{sXCD}, 1")
            a(f"s_and_b32 s{sT2}, s{sXCD}, 1")
            a(f"s_lshl_b32 s{sT2}, s{sT2}, 2")
        a(f"s_mul_i32 s{sT0}, s{sT1}, 7")
        a(f"s_lshr_b32 s{sFT}, s{sJ}, 2")
        a(f"s_add_u32 s{sFT}, s{sFT}, s{sT0}")
        a(f"s_and_b32 s{sT3}, s{sJ}, 3")
        a(f"s_add_u32 s{sDT1}, s{sT2}, s{sT3}")
        if opt.rot8: a(f"s_lshl_b32 s{sROT1}, s{sDT1}, 1")
        else: a(f"s_lshl_b32 s{sROT1}, s{sT3}, 2")
        a(f"s_cmp_eq_u32 s{sT1}, 3")
        a(f"s_cselect_b32 s{sJLIM}, 24, 28")
        if opt.pairx == 1:
            a(f"s_lshr_b32 s{sT0}, s{sXCD}, 2")
            a(f"s_lshl_b32 s{sT3}, s{sT0}, 3")
            a(f"s_mul_i32 s{sT0}, s{sT0}, 3")
            a(f"s_add_u32 s{sT0}, s{sT0}, s{sT1}")
            a(f"s_lshl_b32 s{sT0}, s{sT0}, 2")
            a(f"s_sub_u32 s{sT0}, s{sT0}, 28")
            a(f"s_cmp_eq_u32 s{sT1}, 3")
            a(f"s_cselect_b32 s{sIDLE}, s{sT3}, s{sT0}")
            a(f"s_add_u32 s{sIDLE}, s{sIDLE}, s{sJ}")
        else:
            a(f"s_lshl_b32 s{sT0}, s{sXCD}, 2")
            a(f"s_sub_u32 s{sT0}, s{sT0}, 28")
            a(f"s_lshl_b32 s{sT3}, s{sXCD}, 3")
            a(f"s_sub_u32 s{sT3}, s{sT3}, 48")
            a(f"s_cmp_ge_u32 s{sXCD}, 6")
            a(f"s_cselect_b32 s{sIDLE}, s{sT3}, s{sT0}")
            a(f"s_add_u32 s{sIDLE}, s{sIDLE}, s{sJ}")
    else:
        a(f"s_lshl_b32 s{sT0}, s{sXCD}, 2")
        a(f"s_mul_i32 s{sT1}, s{sXCD}, 3")
        a(f"s_add_u32 s{sT1}, s{sT1}, 3")
        a(f"s_cmp_lt_u32 s{sXCD}, 3")
        a(f"s_cselect_b32 s{sT0}, s{sT0}, s{sT1}")
        a(f"s_cselect_b32 s{sJLIM}, 32, 24")
        a(f"s_lshr_b32 s{sFT}, s{sJ}, 3")
        a(f"s_add_u32 s{sFT}, s{sFT}, s{sT0}")
        a(f"s_and_b32 s{sDT1}, s{sJ}, 7")
        a(f"s_lshl_b32 s{sROT1}, s{sDT1}, 1")
        a(f"s_lshl_b32 s{sIDLE}, s{sXCD}, 3")
        a(f"s_add_u32 s{sIDLE}, s{sIDLE}, s{sJ}")
        a(f"s_sub_u32 s{sIDLE}, s{sIDLE}, 48")
    if opt.rotg1 == 3:
        a(f"s_mul_i32 s{sT0}, s{sFT}, 11")
        a(f"s_lshr_b32 s{sT0}, s{sT0}, 5")
        a(f"s_mul_i32 s{sT0}, s{sT0}, 3")
        a(f"s_sub_u32 s{sT0}, s{sFT}, s{sT0}")
        a(f"s_mul_i32 s{sT0}, s{sT0}, 5")
        a(f"s_add_u32 s{sROT1}, s{sROT1}, s{sT0}")
        a(f"s_and_b32 s{sROT1}, s{sROT1}, 15")
    if opt.rotg1 == 2:
        a(f"s_and_b32 s{sT0}, s{sFT}, 1")
        a(f"s_lshl_b32 s{sT0}, s{sT0}, 3")
        a(f"s_add_u32 s{sROT1}, s{sROT1}, s{sT0}")
        a(f"s_and_b32 s{sROT1}, s{sROT1}, 15")
    if opt.rota1:
        a(f"s_mul_i32 s{sT0}, s{sFT}, {opt.rota1}")
        a(f"s_add_u32 s{sROT1}, s{sROT1}, s{sT0}")
        a(f"s_and_b32 s{sROT1}, s{sROT1}, 15")
    if opt.p2 == 2:
        a(f"s_lshr_b32 s{sT1}, s{sXCD}, 1")
        a(f"s_and_b32 s{sT2}, s{sXCD}, 1")
        a(f"s_lshl_b32 s{sT2}, s{sT2}, 2")
        a(f"s_lshr_b32 s{sT0}, s{sJ}, 2")
        a(f"s_lshl_b32 s{sST}, s{sT1}, 3")
        a(f"s_add_u32 s{sST}, s{sST}, s{sT0}")
        a(f"s_and_b32 s{sT3}, s{sJ}, 3")
        a(f"s_add_u32 s{sDT2}, s{sT2}, s{sT3}")
        if opt.rot8:
            a(f"s_mul_i32 s{sROT2}, s{sDT2}, 7")
            a(f"s_lshr_b32 s{sROT2}, s{sROT2}, 2")
        else:
            a(f"s_mul_i32 s{sROT2}, s{sT3}, 7")
            a(f"s_lshr_b32 s{sROT2}, s{sROT2}, 1")
    else:
        a(f"s_lshr_b32 s{sT0}, s{sJ}, 3")
        a(f"s_lshl_b32 s{sST}, s{sXCD}, 2")
        a(f"s_add_u32 s{sST}, s{sST}, s{sT0}")
        a(f"s_and_b32 s{sDT2}, s{sJ}, 7")
        a(f"s_mul_i32 s{sROT2}, s{sDT2}, 7")
        a(f"s_lshr_b32 s{sROT2}, s{sROT2}, 2")
    if opt.rotg2:
        if opt.rotg2 == 2:
            a(f"s_and_b32 s{sT0}, s{sST}, 1")
            a(f"s_mul_i32 s{sT0}, s{sT0}, 7")
        else:
            a(f"s_mul_i32 s{sT0}, s{sST}, 11")
            a(f"s_lshr_b32 s{sT0}, s{sT0}, 5")
            a(f"s_mul_i32 s{sT0}, s{sT0}, 3")
            a(f"s_sub_u32 s{sT0}, s{sST}, s{sT0}")
            a(f"s_mul_i32 s{sT0}, s{sT0}, 5")
        a(f"s_add_u32 s{sROT2}, s{sROT2}, s{sT0}")
        a(f"s_cmp_ge_u32 s{sROT2}, 14")
        a(f"s_cselect_b32 s{sT0}, 14, 0")
        a(f"s_sub_u32 s{sROT2}, s{sROT2}, s{sT0}")
    if opt.rota2:
        a(f"s_mul_i32 s{sT0}, s{sST}, {opt.rota2}")
        a(f"s_add_u32 s{sROT2}, s{sROT2}, s{sT0}")
        a(f"s_and_b32 s{sT0}, s{sROT2}, 0xff")
        a(f"s_mul_i32 s{sT0}, s{sROT2}, 18725")
        a(f"s_lshr_b32 s{sT0}, s{sT0}, 18")
        a(f"s_mul_i32 s{sT0}, s{sT0}, 14")
        a(f"s_sub_u32 s{sROT2}, s{sROT2}, s{sT0}")
    if not (opt.rot & 1): a(f"s_mov_b32 s{sROT1}, 0")
    if not (opt.rot & 2): a(f"s_mov_b32 s{sROT2}, 0")
    a(f"s_lshl_b32 s{sM0B}, s{sWAVE}, 15")
    a(f"s_lshl_b32 s{sUP}, s{sWAVE}, 13")
    a(f"s_add_u32 s{sUP}, s{sUP}, 131072")
    def tr_addr(base_sgpr):
        t0, t1, t2 = vX, vX + 1, vX + 2
        a(f"v_lshrrev_b32 v{t0}, 4, v{vLANE}")
        a(f"v_and_b32 v{t1}, 1, v{t0}")
        a(f"v_lshlrev_b32 v{t1}, 2, v{t1}")
        a(f"v_bfe_u32 v{t2}, v{vLANE}, 2, 2")
        a(f"v_add_u32 v{t1}, v{t1}, v{t2}")
        a(f"v_lshrrev_b32 v{t0}, 1, v{t0}")
        a(f"v_lshlrev_b32 v{t0}, 10, v{t0}")
        a(f"v_lshlrev_b32 v{t2}, 7, v{t1}")
        a(f"v_add_u32 v{t0}, v{t0}, v{t2}")
        a(f"v_and_b32 v{t2}, 3, v{vLANE}")
        a(f"v_lshlrev_b32 v{t2}, 3, v{t2}")
        a(f"v_add_u32 v{t0}, v{t0}, v{t2}")
        a(f"v_add_u32 v{t0}, s{base_sgpr}, v{t0}")
        a(f"v_lshrrev_b32 v{t1}, 1, v{t1}")
        for t in range(4):
            a(f"v_xor_b32 v{t2}, {t}, v{t1}")
            a(f"v_lshlrev_b32 v{t2}, 5, v{t2}")
            a(f"v_add_u32 v{vTR+t}, v{t0}, v{t2}")
    def w1_dma(i): dma_step(a, sW1, F * 2, sWB, sROT1, i, 16, sM0B, (i % 8) * 4096, f"w1_{i}", "nt" if i < opt.nta else opt.w1bits)
    def w1_stream(first, dp, hold=0):
        retired = 0
        def retire():
            nonlocal retired
            a.wait_vm(f"w1_{retired}")
            if retired: a("s_waitcnt lgkmcnt(0)")
            tr_step(a, vTR, (retired % 8) * 4096, retired)
            retired += 1
        for i in range(first, 16):
            while retired <= i - dp: retire()
            if i >= 8:
                while retired <= i - 8: retire()
                if retired == i - 7: a("s_waitcnt lgkmcnt(0)")
            w1_dma(i)
            if opt.epoll and i == opt.epoll:
                a(f"v_mul_u32_u24 v{vHP}, {opt.hline}, v{vLANE}")
                a(f"s_cmp_lg_u32 s{sWAVE}, {opt.pollw}")
                a("s_cbranch_scc1 L_noepoll")
                if opt.elate:
                    a(f"s_and_b32 s{sT0}, s{sWG}, 4")
                    a(f"s_cmp_eq_u32 s{sT0}, 0")
                    a("s_cbranch_scc1 L_noepoll")
                a(f"buffer_load_dwordx4 {vr(vPQ,4)}, v{vHP}, {srd(sF)}, 0 offen sc1")
                a.label("L_noepoll")
        while retired < 16 - hold: retire()
        def finish():
            while retired < 16: retire()
            a("s_waitcnt lgkmcnt(0)")
        if not hold: finish()
        return finish
    dma_addr(a, F * 2, sFT)
    a(f"s_mul_i32 s{sWB}, s{sWAVE}, {512*F*2}")
    a.c("LayerNorm: wave w normalises rows 32*ks + 16*(w>>1) + 4*q + 2*(w&1) + (0,1), 32 lanes per row")
    XR, XF, TM = 96, 108, 130
    a(f"s_lshr_b32 s{sT0}, s{sWG}, 2")
    a(f"s_and_b32 s{sT1}, s{sWG}, 3")
    a(f"s_lshl_b32 s{sT2}, s{sT0}, 5")
    a(f"s_lshr_b32 s{sT3}, s{sWAVE}, 1")
    a(f"s_lshl_b32 s{sT3}, s{sT3}, 4")
    a(f"s_add_u32 s{sT2}, s{sT2}, s{sT3}")
    a(f"s_lshl_b32 s{sT3}, s{sT1}, 2")
    a(f"s_add_u32 s{sT2}, s{sT2}, s{sT3}")
    a(f"s_and_b32 s{sT3}, s{sWAVE}, 1")
    a(f"s_lshl_b32 s{sT3}, s{sT3}, 1")
    a(f"s_add_u32 s{sT2}, s{sT2}, s{sT3}")
    a(f"s_mul_i32 s{sT2}, s{sT2}, 1280")
    a(f"v_lshrrev_b32 v{TM}, 5, v{vLANE}")
    a(f"v_and_b32 v{TM+1}, 31, v{vLANE}")
    a(f"v_lshlrev_b32 v{TM+1}, 3, v{TM+1}")
    a(f"v_mul_u32_u24 v{TM+2}, 1280, v{TM}")
    a(f"v_add_u32 v{TM+2}, v{TM+2}, v{TM+1}")
    a(f"v_mov_b32 v{vT}, 0")
    a("s_waitcnt lgkmcnt(0)")
    if opt.prof: a(f"s_mov_b32 s{sPROF}, s{sP}")
    make_srd(a, sD, 16, 256)
    a(f"s_cmp_lg_u32 s{sWG}, 0")
    a("s_cbranch_scc1 L_nononce")
    a(f"s_cmp_lg_u32 s{sWAVE}, 3")
    a("s_cbranch_scc1 L_nononce")
    a(f"s_or_b32 s{sNONCE}, s{sP if opt.prof else 96}, 1")
    a(f"v_mov_b32 v{vT2}, s{sNONCE}")
    a(f"s_mov_b64 s[{sP+2}:{sP+3}], exec")
    a("s_mov_b64 exec, 1")
    a(f"buffer_store_dword v{vT2}, v{vT}, {srd(sD)}, 0 offen sc1")
    a(f"s_mov_b64 exec, s[{sP+2}:{sP+3}]")
    a.label("L_nononce")
    make_srd(a, sX, 4, S * D * 2)
    if opt.xpf:
        a(f"s_and_b32 s{sT3}, s{sWG}, 4")
        a(f"s_cmp_lg_u32 s{sT3}, 0")
        a("s_cbranch_scc1 L_xlate")
        a(f"s_add_u32 s{sT3}, s{sT2}, {32*1280}")
        for i in range(5):
            a(f"buffer_load_dwordx2 {vr(244+2*(i%2),2)}, v{TM+2}, {srd(sX)}, s{sT3} offen offset:{i*256}")
        for i in range(5):
            a(f"buffer_load_dwordx2 {vr(XR+2*i,2)}, v{TM+2}, {srd(sX)}, s{sT2} offen offset:{i*256} {opt.xbits}")
        a("s_branch L_xissued")
        a.label("L_xlate")
        for i in range(5):
            a(f"buffer_load_dwordx2 {vr(XR+2*i,2)}, v{TM+2}, {srd(sX)}, s{sT2} offen offset:{i*256} {opt.xbits if opt.xpf == 2 else ''}")
        a.label("L_xissued")
    else:
        for i in range(5):
            a.vmem(f"buffer_load_dwordx2 {vr(XR+2*i,2)}, v{TM+2}, {srd(sX)}, s{sT2} offen offset:{i*256} {opt.xbits}", "x")
    make_srd(a, sW1, 6, S * F * 2)
    if opt.xbar: a("s_barrier")
    a(f"s_cmp_ge_u32 s{sJ}, s{sJLIM}")
    a("s_cbranch_scc1 L_ln_now1")
    for i in range(opt.nearly): w1_dma(i)
    a.label("L_ln_now1")
    if opt.cpf:
        a(f"s_cmp_lg_u32 s{sWAVE}, 3")
        a("s_cbranch_scc1 L_nocpf")
        a(f"s_lshl_b32 s{sT3}, s{sJ}, 11")
        a(f"v_lshlrev_b32 v{vX}, 4, v{vLANE}")
        a(f"v_add_u32 v{vX}, s{sT3}, v{vX}")
        a(f"v_add_u32 v{vX+1}, 1024, v{vX}")
        for h in range(2):
            a(f"v_min_u32 v{vX+h}, L_codeend-{KN}-36, v{vX+h}")
            a(f"global_load_dwordx4 {vr(240+4*h,4)}, v{vX+h}, s[94:95]")
        a.label("L_nocpf")
    make_srd(a, sH, 18, H_BYTES, WS_H)
    make_srd(a, sF, 18, FLAG_BYTES, WS_FLAG)
    a(f"s_mul_i32 s{sSTEP}, s{sT0}, 40960")
    a(f"s_lshl_b32 s{sT1}, s{sT1}, 8")
    a(f"s_add_u32 s{sSTEP}, s{sSTEP}, s{sT1}")
    a(f"s_lshl_b32 s{sT3}, s{sWAVE}, 1")
    a(f"v_add_u32 v{TM+4}, s{sT3}, v{TM}")
    a(f"v_mul_u32_u24 v{TM+4}, {LN_ROW}, v{TM+4}")
    a(f"v_add_u32 v{TM+4}, v{TM+4}, v{TM+1}")
    a(f"v_add_u32 v{TM+4}, {LN_BASE}, v{TM+4}")
    a(f"s_mul_i32 s{sT3}, s{sWAVE}, 12")
    a(f"s_cmp_eq_u32 s{sWAVE}, 3")
    a(f"s_cselect_b32 s{sT3}, 32, s{sT3}")
    a(f"v_lshrrev_b32 v{TM+6}, 4, v{vLANE}")
    a(f"v_add_u32 v{TM+6}, s{sT3}, v{TM+6}")
    a(f"v_bfe_u32 v{TM+5}, v{vLANE}, 2, 2")
    a(f"v_mul_u32_u24 v{TM+5}, {LN_ROW}, v{TM+5}")
    a(f"v_lshlrev_b32 v{TM+7}, 5, v{TM+6}")
    a(f"v_add_u32 v{TM+5}, v{TM+5}, v{TM+7}")
    a(f"v_and_b32 v{TM+7}, 3, v{vLANE}")
    a(f"v_lshlrev_b32 v{TM+7}, 3, v{TM+7}")
    a(f"v_add_u32 v{TM+5}, v{TM+5}, v{TM+7}")
    a(f"v_add_u32 v{TM+5}, {LN_BASE}, v{TM+5}")
    a(f"v_lshlrev_b32 v{TM+6}, 10, v{TM+6}")
    a(f"v_and_b32 v{TM+7}, 15, v{vLANE}")
    a(f"v_lshlrev_b32 v{TM+7}, 4, v{TM+7}")
    a(f"v_add_u32 v{TM+6}, v{TM+6}, v{TM+7}")
    tr_addr(sM0B)
    a(f"s_mov_b32 s{sT0}, 0xffff0000")
    nc = 2 if opt.cpf else 0
    a(f"s_cmp_ge_u32 s{sJ}, s{sJLIM}")
    a("s_cbranch_scc1 L_ln_idle")
    a(f"s_cmp_eq_u32 s{sWAVE}, 3")
    a("s_cbranch_scc1 L_ln_w3")
    a(f"s_waitcnt vmcnt({4*opt.nearly})")
    a("s_branch L_ln_go")
    a.label("L_ln_w3")
    a(f"s_waitcnt vmcnt({4*opt.nearly + nc})")
    a("s_branch L_ln_go")
    a.label("L_ln_idle")
    a(f"s_cmp_eq_u32 s{sWAVE}, 3")
    a("s_cbranch_scc1 L_ln_idle3")
    a("s_waitcnt vmcnt(0)")
    a("s_branch L_ln_go")
    a.label("L_ln_idle3")
    a(f"s_waitcnt vmcnt({nc})")
    a.label("L_ln_go")
    stamp(a, opt, 1)
    jitter(a, opt, 1)
    nmid = [opt.nearly]
    def mid_step(tag):
        if nmid[0] < opt.nearly + opt.nmid:
            a(f"s_cmp_ge_u32 s{sJ}, s{sJLIM}")
            a(f"s_cbranch_scc1 L_mid_{tag}")
            w1_dma(nmid[0]); nmid[0] += 1
            a.label(f"L_mid_{tag}")
    if opt.unsafe & 2: a(f"buffer_load_dword v{vPOLL}, v{vT}, {srd(sD)}, 0 offen sc1")
    mid_step("a")
    for i in range(10):
        a(f"v_lshlrev_b32 v{XF+2*i}, 16, v{XR+i}")
        a(f"v_and_b32 v{XF+2*i+1}, s{sT0}, v{XR+i}")
    SM = TM + 8
    a(f"v_pk_add_f32 {vr(SM,2)}, {vr(XF,2)}, {vr(XF+4,2)}")
    a(f"v_pk_add_f32 {vr(SM+2,2)}, {vr(XF+2,2)}, {vr(XF+6,2)}")
    for i in range(4, 10):
        k = i % 2
        a(f"v_pk_add_f32 {vr(SM+2*k,2)}, {vr(SM+2*k,2)}, {vr(XF+2*i,2)}")
    def reduce_row(dst):
        a(f"v_pk_add_f32 {vr(SM,2)}, {vr(SM,2)}, {vr(SM+2,2)}")
        a(f"v_add_f32 v{dst}, v{SM}, v{SM+1}")
        for rot in (8, 4, 2, 1):
            a("s_nop 1")
            a(f"v_add_f32_dpp v{dst}, v{dst}, v{dst} row_ror:{rot} row_mask:0xf bank_mask:0xf")
        a(f"v_mov_b32 v{SM}, v{dst}")
        a("s_nop 1")
        a(f"v_permlane16_swap_b32 v{dst}, v{SM}")
        a("s_nop 1")
        a(f"v_add_f32 v{dst}, v{dst}, v{SM}")
    MN = TM + 12
    reduce_row(MN)
    mid_step("b")
    a(f"v_mul_f32 v{MN}, {f2h(1.0/640.0)}, v{MN}")
    a(f"v_mov_b32 v{MN+1}, v{MN}")
    for i in range(10):
        a(f"v_pk_add_f32 {vr(XF+2*i,2)}, {vr(XF+2*i,2)}, {vr(MN,2)} neg_lo:[0,1] neg_hi:[0,1]")
    for k in range(2):
        a(f"v_pk_mul_f32 {vr(SM+2*k,2)}, {vr(XF+2*k,2)}, {vr(XF+2*k,2)}")
    for i in range(2, 10):
        k = i % 2
        a(f"v_pk_fma_f32 {vr(SM+2*k,2)}, {vr(XF+2*i,2)}, {vr(XF+2*i,2)}, {vr(SM+2*k,2)}")
    reduce_row(MN)
    mid_step("c")
    a(f"v_mov_b32 v{MN+1}, {f2h(1e-5)}")
    a(f"v_fmac_f32 v{MN+1}, {f2h(1.0/640.0)}, v{MN}")
    a(f"v_rsq_f32 v{MN}, v{MN+1}")
    a("s_nop 0")
    a(f"v_mov_b32 v{MN+1}, v{MN}")
    for i in range(10):
        a(f"v_pk_mul_f32 {vr(XF+2*i,2)}, {vr(XF+2*i,2)}, {vr(MN,2)}")
    for i in range(10):
        a(f"v_cvt_pk_bf16_f32 v{XR+i}, v{XF+2*i}, v{XF+2*i+1}")
    for i in range(5):
        a(f"ds_write_b64 v{TM+4}, {vr(XR+2*i,2)} offset:{i*256}")
    a("s_waitcnt lgkmcnt(0)")
    if opt.unsafe & 2:
        a("s_waitcnt vmcnt(0)")
        a(f"v_readfirstlane_b32 s{sNONCE}, v{vPOLL}")
        nonce_spin(a, opt)
    a("s_barrier")
    for i in range(2):
        a(f"ds_read_b64_tr_b16 {vr(XF+4*i,2)}, v{TM+5} offset:{i*128}")
        a(f"ds_read_b64_tr_b16 {vr(XF+4*i+2,2)}, v{TM+5} offset:{i*128+4*LN_ROW}")
    a(f"s_cmp_ge_u32 s{sWAVE}, 2")
    a("s_cbranch_scc1 L_ln_two")
    a(f"ds_read_b64_tr_b16 {vr(XF+8,2)}, v{TM+5} offset:{2*128}")
    a(f"ds_read_b64_tr_b16 {vr(XF+10,2)}, v{TM+5} offset:{2*128+4*LN_ROW}")
    a("s_waitcnt lgkmcnt(0)")
    a(f"s_add_u32 s{sT0}, s{sSTEP}, {2*4096}")
    a(f"buffer_store_dwordx4 {vr(XF+8,4)}, v{TM+6}, {srd(sH)}, s{sT0} offen {opt.hbits}")
    a.label("L_ln_two")
    a("s_waitcnt lgkmcnt(0)")
    for i in range(2):
        a(f"s_add_u32 s{sT0}, s{sSTEP}, {i*4096}")
        a(f"buffer_store_dwordx4 {vr(XF+4*i,4)}, v{TM+6}, {srd(sH)}, s{sT0} offen {opt.hbits}")
    if not (opt.unsafe & 2): a(f"buffer_load_dword v{vPOLL}, v{vT}, {srd(sD)}, 0 offen sc1")
    stamp(a, opt, 2)
    if opt.unsafe & 2:
        a("s_barrier")
        a(f"s_cmp_lg_u32 s{sWAVE}, 0")
        a("s_cbranch_scc1 L_noflag0")
        a(f"s_lshl_b32 s{sT0}, s{sWG}, 2")
        flag_store(a, sT0)
        a.label("L_noflag0")
    a(f"s_cmp_ge_u32 s{sJ}, s{sJLIM}")
    a("s_cbranch_scc1 L_ln_idle2")
    ne = opt.nearly + opt.nmid
    a.vm = [f"w1_{i}" for i in range(ne)]
    for i in range(ne, ne + opt.npost): w1_dma(i)
    if not (opt.unsafe & 2): a(f"s_waitcnt vmcnt({4*opt.npost})")
    a("s_branch L_ln_go2")
    a.label("L_ln_idle2")
    if not (opt.unsafe & 2): a("s_waitcnt vmcnt(0)")
    a.label("L_ln_go2")
    if not (opt.unsafe & 2):
        a(f"v_readfirstlane_b32 s{sNONCE}, v{vPOLL}")
        nonce_spin(a, opt)
        a("s_barrier")
        a(f"s_cmp_lg_u32 s{sWAVE}, 0")
        a("s_cbranch_scc1 L_noflag")
        a(f"s_lshr_b32 s{sT0}, s{sWG}, 2")
        a(f"s_mul_i32 s{sT0}, s{sT0}, {opt.hline}")
        a(f"s_and_b32 s{sT1}, s{sWG}, 3")
        a(f"s_lshl_b32 s{sT1}, s{sT1}, 2")
        a(f"s_add_u32 s{sT0}, s{sT0}, s{sT1}")
        keep = list(a.vm)
        flag_store(a, sT0)
        a.vm = keep
        a.label("L_noflag")
    stamp(a, opt, 3)
    a(f"s_cmp_ge_u32 s{sJ}, s{sJLIM}")
    a("s_cbranch_scc1 L_nogemm1")
    w1_finish = w1_stream(opt.nearly + opt.nmid + opt.npost, opt.dp, opt.hold1)

    def common_setup(retr=True):
        make_srd(a, sH, 18, H_BYTES, WS_H)
        make_srd(a, sF, 18, FLAG_BYTES, WS_FLAG)
        make_srd(a, sB1, 8, F * 2)
        make_srd(a, sW2, 10, F * S * 2)
        make_srd(a, sB2, 12, S * 2)
        make_srd(a, sO, 14, S * D * 2)
        make_srd(a, sG, 18, G_BYTES, WS_G)
        a(f"v_lshrrev_b32 v{vT}, 4, v{vLANE}")
        a(f"v_lshlrev_b32 v{vT}, 3, v{vT}")
        a(f"s_and_b32 s{sT0}, s{sWAVE}, 1")
        a(f"s_lshl_b32 s{sT0}, s{sT0}, 6")
        a(f"s_lshl_b32 s{sT1}, s{sFT}, 7")
        a(f"s_add_u32 s{sT0}, s{sT0}, s{sT1}")
        a.vmem(f"buffer_load_dwordx2 {vr(vB1,2)}, v{vT}, {srd(sB1)}, s{sT0} offen", "b")
        a.vmem(f"buffer_load_dwordx2 {vr(vB1+2,2)}, v{vT}, {srd(sB1)}, s{sT0} offen offset:32", "b")
        a(f"v_and_b32 v{vT}, 15, v{vLANE}")
        a(f"v_lshlrev_b32 v{vT}, 1, v{vT}")
        a(f"s_lshl_b32 s{sT0}, s{sST}, 7")
        a(f"s_lshl_b32 s{sT1}, s{sWAVE}, 5")
        a(f"s_add_u32 s{sT0}, s{sT0}, s{sT1}")
        a.vmem(f"buffer_load_ushort v{vB2}, v{vT}, {srd(sB2)}, s{sT0} offen", "b")
        dma_addr(a, S * 2, sST)
        a(f"s_mul_i32 s{sWB}, s{sWAVE}, {448*S*2}")
        if retr: tr_addr(sM0B)
        a(f"s_sub_u32 s{sT0}, s{sUP}, s{sM0B}")
        for t in range(4):
            a(f"v_add_u32 v{vTRU+t}, s{sT0}, v{vTR+t}")
        a(f"v_lshlrev_b32 v{vL0}, 4, v{vLANE}")
        a(f"v_add_u32 v{vL1}, 65536, v{vL0}")
        a(f"v_add_u32 v{vL2}, 131072, v{vL0}")

    a.label("L_w1_ready")
    stamp(a, opt, 4)
    jitter(a, opt, 2)
    vm_keep = list(a.vm)
    common_setup(retr=False)
    a(f"s_mul_i32 s{sT0}, s{sDT1}, 5120")
    a(f"v_add_u32 v{vA}, s{sT0}, v{vL0}")
    a(f"v_add_u32 v{vA2}, 4096, v{vA}")
    a(f"s_cmp_lg_u32 s{sWAVE}, {opt.pollw}")
    a("s_cbranch_scc1 L_hpolled")
    if opt.epoll:
        if opt.elate:
            a(f"s_and_b32 s{sT0}, s{sWG}, 4")
            a(f"s_cmp_eq_u32 s{sT0}, 0")
            a("s_cbranch_scc1 L_hfull")
        a(f"s_waitcnt vmcnt({4*(15 - opt.epoll) + 3})")
        poll_check(a, 4, None, "L_hpolled")
        if opt.elate: a.label("L_hfull")
    if opt.pipe & 1:
        a("s_waitcnt vmcnt(0)")
        poll_pipe(a, opt, vHP, None, opt.gap)
    else:
        poll(a, opt, vHP, 4, None, opt.sleeph, opt.preh, 1)
    a.label("L_hpolled")
    a.vm = vm_keep + ["b", "b", "b"]
    a("s_barrier")
    stamp(a, opt, 5)

    def a_loads(srdn, step, nsteps, s_rot):
        slot = step % NS
        step_off(a, sOFF, sSTEP, s_rot, step, nsteps, 40960)
        return [f"buffer_load_dwordx4 {vr(ring(slot,t),4)}, v{vA if t < 4 else vA2}, {srd(srdn)}, s{sOFF} offen offset:{(t*1024) if t < 4 else 0} {opt.abits}" for t in range(5)]

    def main_loop(srdn, nsteps, s_rot, tagp, mfma, stamp0, tail, nuni, pre=None, dist=None):
        def load(n):
            st, o = divmod(n, 5)
            if st >= nsteps: return
            if o == 0: step_off(a, sOFF, sSTEP, s_rot, st, nsteps, 40960)
            a.vmem(f"buffer_load_dwordx4 {vr(ring(st % NS, o),4)}, v{vA if o < 4 else vA2}, {srd(srdn)}, s{sOFF} offen "
                   f"offset:{(o*1024) if o < 4 else 0} {opt.abits}", f"{tagp}{st}_{o}")
        dist = dist or opt.dist
        assert dist < 5 * NS
        for n in range(dist): load(n)
        if pre: pre()
        for st in range(nuni):
            for o in range(5):
                n = 5 * st + o
                if opt.fine == 1: load(n + dist)
                a.wait_vm(f"{tagp}{st}_{o}")
                if n == 0 and stamp0 is not None: stamp(a, opt, stamp0)
                if opt.fine == 2: load(n + dist)
                for i in range(4): mfma(st, o, i, st % NS)
                if tail: tail(st, o)
        assert 5 * nuni - 1 + dist >= 5 * nsteps - 1, "loads left for the tail"

    def tile_tail(nsteps, tagp, first, last, frag_of, mfma_tile, write_tile, extra):
        ic = [0]
        done_at = {}
        queue = []
        extra = list(extra)
        def emit(fn):
            fn(); ic[0] += 1
        def filler():
            if queue and ic[0] - done_at[queue[0]] >= 9:
                t = queue.pop(0); emit(lambda: write_tile(t)); return
            if extra: emit(extra.pop(0))
        tiles = list(first) + list(last)
        for i in range(0, len(tiles), 2):
            pair = tiles[i:i + 2]
            for t in pair:
                for st in (nsteps - 2, nsteps - 1): a.wait_vm(f"{tagp}{st}_{frag_of(t)}")
            for st in (nsteps - 2, nsteps - 1):
                for t in pair:
                    emit(lambda: mfma_tile(st, t))
                    if st == nsteps - 1:
                        done_at[t] = ic[0]
                        if t in first: queue.append(t)
                    filler()
        while extra: emit(extra.pop(0))
        while queue:
            while ic[0] - done_at[queue[0]] < 9: emit(lambda: a("s_nop 0"))
            t = queue.pop(0); emit(lambda: write_tile(t))

    a(f"s_mul_i32 s{sSTEP}, s{sWAVE}, {16*40960}")
    def mfma1(st, nt, mt, slot):
        c = "0" if st == 0 else vr(acc1(mt, nt), 4)
        a(f"v_mfma_f32_16x16x32_bf16 {vr(acc1(mt,nt),4)}, {ar(wfrag(st,mt),4)}, {vr(ring(slot,nt),4)}, {c}")
    parts13 = w2_dma_parts(a, 0) if opt.t13 else []
    def tail1(st, o):
        if st == 13 and parts13:
            if o == 0: parts13[0]()
            else: parts13[o]()
    main_loop(sH, 16, sROT1, "h", mfma1, 6, tail1, 14, w1_finish if opt.hold1 else None)

    a(f"s_mov_b32 s100, {f2h(C1)}"); a(f"s_mov_b32 s101, {f2h(C1)}")
    a(f"v_mov_b32 v{vC0}, {f2h(C0)}"); a(f"v_mov_b32 v{vC0+1}, {f2h(C0)}")
    def lds_ref(addr):
        if addr < 65536: return vL0, addr
        if addr < 131072: return vL1, addr - 65536
        return vL2, addr - 131072
    def owner1(p, nt): return p + (0 if nt < 3 else 2)
    units = [(p, nt) for p in range(2) for nt in range(5)]
    def red1_addr(src, u):
        k = [x for x in units if owner1(*x) != src].index(u)
        return src * 32768 + 24576 + k * 2048 if k < 4 else 131072 + src * 8192 + (k - 4) * 2048
    saved_vm = list(a.vm)
    for w in range(4):
        if w < 3:
            a(f"s_cmp_lg_u32 s{sWAVE}, {w}")
            a(f"s_cbranch_scc1 L_ep1_{w+1}")
        a.vm = list(saved_vm)
        nis = [1 if opt.t13 else 0]
        def more(n, limit):
            for _ in range(n):
                if nis[0] < limit:
                    w2_dma(a, nis[0]); nis[0] += 1
        tl = [(2 * p + hf, nt) for nt in range(5) for p in range(2) for hf in range(2)]
        first = [t for t in tl if owner1(t[0] // 2, t[1]) != w]
        last = [t for t in tl if owner1(t[0] // 2, t[1]) == w]
        def wr1(t):
            vb, off = lds_ref(red1_addr(w, (t[0] // 2, t[1])) + (t[0] & 1) * 1024)
            a(f"ds_write_b128 v{vb}, {vr(acc1(*t),4)} offset:{off}")
        extra = []
        for _ in range(opt.tt):
            extra += w2_dma_parts(a, nis[0]); nis[0] += 1
        tile_tail(16, "h", first, last, lambda t: t[1], lambda st, t: mfma1(st, t[1], t[0], st % NS), wr1, extra)
        stamp(a, opt, 7)
        jitter(a, opt, 3)
        more(opt.e1, 6)
        a("s_waitcnt lgkmcnt(0)")
        a("s_barrier")
        own_u = [u for u in units if owner1(*u) == w]
        RT = vRING
        n = 0
        for u in own_u:
            for src in range(4):
                if src == w: continue
                for hf in range(2):
                    vb, off = lds_ref(red1_addr(src, u) + hf * 1024)
                    a(f"ds_read_b128 {vr(RT + n*4, 4)}, v{vb} offset:{off}")
                    n += 1
        a.wait_vm("b")
        for i in range(4):
            a(f"v_lshlrev_b32 v{BI+2*i}, 16, v{vB1+i}")
            a(f"v_and_b32 v{BI+2*i+1}, 0xffff0000, v{vB1+i}")
        for u in own_u:
            p, nt = u
            for hf in range(2):
                r = acc1(2*p+hf, nt)
                a(f"v_pk_add_f32 {vr(r,2)}, {vr(r,2)}, {vr(BI+4*hf,2)}")
                a(f"v_pk_add_f32 {vr(r+2,2)}, {vr(r+2,2)}, {vr(BI+4*hf+2,2)}")
        n = 0
        tot = len(own_u) * 6
        for u in own_u:
            p, nt = u
            for si in range(3):
                for hf in range(2):
                    a(f"s_waitcnt lgkmcnt({min(15, tot - n - 1)})")
                    r = acc1(2*p+hf, nt)
                    a(f"v_pk_add_f32 {vr(r,2)}, {vr(r,2)}, {vr(RT+n*4,2)}")
                    a(f"v_pk_add_f32 {vr(r+2,2)}, {vr(r+2,2)}, {vr(RT+n*4+2,2)}")
                    n += 1
        a("s_barrier")
        regs = []
        for u in own_u:
            p, nt = u
            for hf in range(2):
                r = acc1(2*p+hf, nt)
                regs += [r, r + 2]
        more(opt.e2, 10)
        gelu_pairs(a, regs, RT, fill=lambda: more(opt.e3, 10))
        a(f"s_lshl_b32 s{sT0}, s{sFT}, 1")
        a(f"s_add_u32 s{sT0}, s{sT0}, {w & 1}")
        a(f"s_mul_i32 s{sT0}, s{sT0}, 40960")
        a(f"s_mul_i32 s{sT1}, s{sDT1}, 5120")
        a(f"s_add_u32 s{sT0}, s{sT0}, s{sT1}")
        for i, u in enumerate(own_u):
            p, nt = u
            o = RT + 64 + 4 * i
            r0, r1 = acc1(2*p, nt), acc1(2*p+1, nt)
            a(f"v_cvt_pk_bf16_f32 v{o}, v{r0}, v{r0+1}")
            a(f"v_cvt_pk_bf16_f32 v{o+1}, v{r0+2}, v{r0+3}")
            a(f"v_cvt_pk_bf16_f32 v{o+2}, v{r1}, v{r1+1}")
            a(f"v_cvt_pk_bf16_f32 v{o+3}, v{r1+2}, v{r1+3}")
            a(f"s_add_u32 s{sT1}, s{sT0}, {nt*1024}")
            a.vmem(f"buffer_store_dwordx4 {vr(o,4)}, v{vL0}, {srd(sG)}, s{sT1} offen {opt.gbits}", "g")
        stamp(a, opt, 8)
        jitter(a, opt, 4)
        def g_flag():
            a(f"s_lshl_b32 s{sT0}, s{sDT1}, 5")
            a(f"s_add_u32 s{sT0}, s{sT0}, s{sFT}")
            a(f"s_mul_i32 s{sT0}, s{sT0}, {opt.gstride}")
            a(f"s_add_u32 s{sT0}, s{sT0}, {FLAG_G + 4*w}")
            flag_store(a, sT0, sector=bool(opt.gsec and opt.gwg))
            stamp(a, opt, 9)
        if opt.unsafe & 1:
            a("s_barrier")
            if w == 0:
                keep = list(a.vm); g_flag(); a.vm = keep
        more(opt.nb, 10)
        def tr_first4():
            a.wait_vm("w2_3")
            for st in range(4):
                w2_tr(a, st)
                if st % 2 == 1: a("s_waitcnt lgkmcnt(0)")
        if not opt.flagfirst: tr_first4()
        if not (opt.unsafe & 1):
            a.wait_vm("g")
            if opt.gwg:
                a("s_barrier")
                if w == 0:
                    keep = list(a.vm); g_flag(); a.vm = keep
            else:
                g_flag()
        if opt.flagfirst:
            more(max(0, 4 - nis[0]), 10)
            more(opt.nb3, 10)
            tr_first4()
        assert nis[0] >= 4
        more(10, 10)
        more(4, 14)
        for st in range(4, 10):
            a.wait_vm(f"w2_{st}")
            w2_tr(a, st)
            if st % 2 == 1: a("s_waitcnt lgkmcnt(0)")
        a("s_branch L_pre2")
        if w < 3: a.label(f"L_ep1_{w+1}")

    a.label("L_nogemm1")
    a.vm = []
    common_setup()
    if False:
        a(f"s_lshl_b32 s{sT0}, s{sWAVE}, 6")
        a(f"v_add_u32 v{vX}, s{sT0}, v{vLANE}")
        a(f"v_mul_u32_u24 v{vX}, {opt.hstride}, v{vX}")
        poll(a, opt, vX, 2, None)
        if opt.idlewait > 1:
            a(f"s_sleep {opt.idlewait}")
    if opt.pf == 3:
        a(f"s_lshl_b32 s{sT0}, s{sIDLE}, 2")
        a(f"s_add_u32 s{sT0}, s{sT0}, s{sWAVE}")
        a(f"s_lshl_b32 s{sT0}, s{sT0}, 10")
        for k in range(44):
            o = vRING + (k % 16) * 4
            a.vmem(f"buffer_load_dwordx4 {vr(o,4)}, v{vL0}, {srd(sW2)}, s{sT0} offen {opt.pfbits}", f"pf{k}")
            a(f"s_add_u32 s{sT0}, s{sT0}, {160*1024}")
            if k >= opt.pfdepth: a.wait_vm(f"pf{k-opt.pfdepth}")
        a.wait_vm0()
    if opt.pf == 2:
        assert opt.p1 == 2 and opt.p2 == 1
        a(f"s_cmp_lt_u32 s{sJ}, 28")
        a("s_cbranch_scc1 L_nopf")
        a(f"s_sub_u32 s{sT0}, s{sJ}, 28")
        a(f"s_lshl_b32 s{sT0}, s{sT0}, 2")
        a(f"s_add_u32 s{sT0}, s{sT0}, s{sWAVE}")
        a(f"s_lshl_b32 s{sT0}, s{sT0}, 13")
        a(f"s_lshl_b32 s{sT1}, s{sXCD}, 9")
        a(f"s_add_u32 s{sT0}, s{sT0}, s{sT1}")
        a(f"v_lshrrev_b32 v{vX}, 5, v{vLANE}")
        a(f"v_lshlrev_b32 v{vX}, 12, v{vX}")
        a(f"v_and_b32 v{vX+1}, 31, v{vLANE}")
        a(f"v_lshlrev_b32 v{vX+1}, 4, v{vX+1}")
        a(f"v_add_u32 v{vX}, v{vX}, v{vX+1}")
        keep = list(a.vm)
        for k in range(54):
            o = vRING + (k % 16) * 4
            a.vmem(f"buffer_load_dwordx4 {vr(o,4)}, v{vX}, {srd(sW2)}, s{sT0} offen", f"pf{k}")
            a(f"s_add_u32 s{sT0}, s{sT0}, {16*8192}")
            if k >= opt.pfdepth: a.wait_vm(f"pf{k-opt.pfdepth}")
        a.wait_vm0()
        a.label("L_nopf")
        a.vm = keep
    for st in range(10): w2_dma(a, st)
    for st in range(4):
        a.wait_vm(f"w2_{st}")
        w2_tr(a, st)
        if st % 2 == 1: a("s_waitcnt lgkmcnt(0)")
    for st in range(10, 14): w2_dma(a, st)
    for st in range(4, 10):
        a.wait_vm(f"w2_{st}")
        w2_tr(a, st)
        if st % 2 == 1: a("s_waitcnt lgkmcnt(0)")

    if opt.ptouch:
        a(f"s_lshl_b32 s{sT0}, s{sWAVE}, 6")
        a(f"v_add_u32 v{vX}, s{sT0}, v{vLANE}")
        a(f"v_lshlrev_b32 v{vX}, 12, v{vX}")
        if opt.ptouch & 1:
            for k in range(3):
                a(f"s_mov_b32 s{sT1}, {k*256*4096}")
                a(f"buffer_load_dword v{240+k}, v{vX}, {srd(sG)}, s{sT1} offen")
        if opt.ptouch & 2:
            a(f"s_mul_i32 s{sT1}, s{sXCD}, {256*1280}")
            a(f"v_cmp_gt_u32 vcc, {80*4096}, v{vX}")
            a(f"s_and_saveexec_b64 s[{sP}:{sP+1}], vcc")
            a("s_cbranch_execz L_ptouch")
            a(f"buffer_load_dword v243, v{vX}, {srd(sO)}, s{sT1} offen")
            a.label("L_ptouch")
            a(f"s_mov_b64 exec, s[{sP}:{sP+1}]")
    if opt.idle1:
        a("s_waitcnt vmcnt(0)")
        a(f"s_cmp_lg_u32 s{sWAVE}, {opt.pollw}")
        a("s_cbranch_scc1 L_idle1")
        a(f"s_lshl_b32 s{sT0}, s{sDT2}, 5")
        a(f"s_add_u32 s{sT0}, s{sT0}, {opt.idle1ft}")
        a(f"s_mul_i32 s{sT0}, s{sT0}, {opt.gstride}")
        a(f"s_add_u32 s{sT0}, s{sT0}, {FLAG_G}")
        a(f"v_mov_b32 v{vX}, s{sT0}")
        poll(a, opt, vX, 1, None, opt.idle1)
        a.label("L_idle1")
    a.label("L_pre2")
    a(f"s_mul_i32 s{sT0}, s{sDT2}, 5120")
    a(f"v_add_u32 v{vA}, s{sT0}, v{vL0}")
    a(f"v_add_u32 v{vA2}, 4096, v{vA}")
    def w2_finish():
        a.wait_vm("w2all")
        a("s_waitcnt lgkmcnt(0)")
        for st in range(10, 14):
            w2_tr(a, st)
            if st % 2 == 1: a("s_waitcnt lgkmcnt(0)")
    if not opt.hold2:
        a.vm = ["w2all"]
        w2_finish()
    stamp(a, opt, 10)
    if opt.onepoll & 2:
        a(f"s_cmp_lg_u32 s{sWAVE}, {opt.pollw}")
        a("s_cbranch_scc1 L_gpolled")
        a(f"s_lshl_b32 s{sT0}, s{sDT2}, 5")
        a(f"s_mul_i32 s{sT0}, s{sT0}, {opt.gstride}")
        a(f"s_add_u32 s{sT0}, s{sT0}, {FLAG_G}")
        a(f"v_mul_u32_u24 v{vX}, {opt.gstride}, v{vLANE}")
        a(f"v_add_u32 v{vX}, s{sT0}, v{vX}")
        a(f"s_mov_b32 s{sP+2}, 0x7ffffff")
        a(f"s_mov_b32 s{sP+3}, 0")
        if opt.pipe & 2:
            a("s_waitcnt vmcnt(0)")
            poll_pipe(a, opt, vX, sP + 2, opt.gap, 1 if opt.gwg else 4)
        else:
            poll(a, opt, vX, 1 if opt.gwg else 4, sP + 2, opt.sleep, opt.preg)
        a.label("L_gpolled")
        a("s_barrier")
    else:
        a(f"s_lshl_b32 s{sT0}, s{sDT2}, 5")
        a(f"s_mul_i32 s{sT1}, s{sWAVE}, 7")
        a(f"s_add_u32 s{sT0}, s{sT0}, s{sT1}")
        a(f"s_mul_i32 s{sT0}, s{sT0}, {opt.gstride}")
        a(f"s_add_u32 s{sT0}, s{sT0}, {FLAG_G}")
        a(f"v_mul_u32_u24 v{vX}, {opt.gstride}, v{vLANE}")
        a(f"v_add_u32 v{vX}, s{sT0}, v{vX}")
        a(f"s_cmp_eq_u32 s{sWAVE}, 3")
        a(f"s_cselect_b32 s{sP+2}, 0x3f, 0x7f")
        a(f"s_mov_b32 s{sP+3}, 0")
        poll(a, opt, vX, 4, sP + 2, opt.sleep, opt.preg)
    a.vm = ["w2all"] if opt.hold2 else []
    stamp(a, opt, 11)
    a(f"s_mul_i32 s{sSTEP}, s{sWAVE}, {14*40960}")
    def mfma2(st, mt, nt, slot):
        c = "0" if st == 0 else vr(acc2(mt, nt), 4)
        a(f"v_mfma_f32_16x16x32_bf16 {vr(acc2(mt,nt),4)}, {vr(ring(slot,mt),4)}, {ar(wfrag(st,nt),4)}, {c}")
    main_loop(sG, 14, sROT2, "g", mfma2, 12, None, 12, w2_finish if opt.hold2 else None, dist=opt.dist2)
    saved_vm2 = list(a.vm)
    a(f"v_and_b32 v{vT}, 15, v{vLANE}")
    a(f"s_lshl_b32 s{sT0}, s{sWAVE}, 4")
    a(f"v_add_u32 v{vT}, s{sT0}, v{vT}")
    a(f"v_mul_u32_u24 v{vA}, 1280, v{vT}")
    a(f"v_lshrrev_b32 v{vT}, 4, v{vLANE}")
    a(f"v_lshlrev_b32 v{vT}, 3, v{vT}")
    a(f"v_add_u32 v{vA}, v{vA}, v{vT}")
    a(f"s_mul_i32 s{sT0}, s{sST}, {64*1280}")
    a(f"s_mul_i32 s{sT1}, s{sDT2}, 160")
    a(f"s_add_u32 s{sOFF}, s{sT0}, s{sT1}")
    a(f"v_lshlrev_b32 v{vC0}, 16, v{vB2}")
    a(f"v_lshlrev_b32 v{vC0+1}, 16, v{vB2}")
    a(f"v_sub_u32 v{vA2}, v{vA}, v{vT}")
    a(f"v_bfe_u32 v{vT}, v{vLANE}, 4, 1")
    a(f"v_lshlrev_b32 v{vT}, 5, v{vT}")
    a(f"v_add_u32 v{vA2}, v{vA2}, v{vT}")
    a(f"v_bfe_u32 v{vT}, v{vLANE}, 5, 1")
    a(f"v_lshlrev_b32 v{vT}, 4, v{vT}")
    a(f"v_add_u32 v{vA2}, v{vA2}, v{vT}")
    def red2_addr(src, nt, mt):
        k = [x for x in range(4) if x != src].index(nt)
        return src * 32768 + (k * 5 + mt) * 1024
    for w in range(4):
        if w < 3:
            a(f"s_cmp_lg_u32 s{sWAVE}, {w}")
            a(f"s_cbranch_scc1 L_ep2_{w+1}")
        a.vm = list(saved_vm2)
        tl = [(mt, nt) for mt in range(5) for nt in range(4)]
        def wr2(t):
            vb, off = lds_ref(red2_addr(w, t[1], t[0]))
            a(f"ds_write_b128 v{vb}, {vr(acc2(*t),4)} offset:{off}")
        tile_tail(14, "g", [t for t in tl if t[1] != w], [t for t in tl if t[1] == w], lambda t: t[0],
                  lambda st, t: mfma2(st, t[0], t[1], st % NS), wr2, [])
        stamp(a, opt, 13)
        jitter(a, opt, 5)
        a("s_waitcnt lgkmcnt(0)")
        a("s_barrier")
        RT = vRING
        def read_partials(order):
            n = 0
            for mt in order:
                for src in range(4):
                    if src == w: continue
                    vb, off = lds_ref(red2_addr(src, w, mt))
                    a(f"ds_read_b128 {vr(RT+n*4,4)}, v{vb} offset:{off}")
                    n += 1
        def finish_tiles(single):
            n = 0
            paired = [m for m in range(5) if m != single]
            order = ([single] + paired) if opt.sfirst else list(range(5))
            read_partials(order)
            for mt in order:
                r = acc2(mt, w)
                for si in range(3):
                    a(f"s_waitcnt lgkmcnt({14 - n})")
                    a(f"v_pk_add_f32 {vr(r,2)}, {vr(r,2)}, {vr(RT+n*4,2)}")
                    a(f"v_pk_add_f32 {vr(r+2,2)}, {vr(r+2,2)}, {vr(RT+n*4+2,2)}")
                    n += 1
                a(f"v_pk_add_f32 {vr(r,2)}, {vr(r,2)}, {vr(vC0,2)}")
                a(f"v_pk_add_f32 {vr(r+2,2)}, {vr(r+2,2)}, {vr(vC0,2)}")
                if mt == single: o = RT + 72
                else: o = RT + 64 + 2 * paired.index(mt)
                a(f"v_cvt_pk_bf16_f32 v{o}, v{r}, v{r+1}")
                a(f"v_cvt_pk_bf16_f32 v{o+1}, v{r+2}, v{r+3}")
                if not opt.wide or mt == single:
                    a(f"buffer_store_dwordx2 {vr(o,2)}, v{vA}, {srd(sO)}, s{sOFF} offen offset:{mt*32} {opt.obits1}")
                elif paired.index(mt) % 2 == 1:
                    a("s_nop 1")
                    a(f"v_permlane16_swap_b32 v{o-2}, v{o}")
                    a(f"v_permlane16_swap_b32 v{o-1}, v{o+1}")
                    a(f"buffer_store_dwordx4 {vr(o-2,4)}, v{vA2}, {srd(sO)}, s{sOFF} offen offset:{(mt-1)*32} {opt.obits}")
        if opt.align64:
            a(f"s_and_b32 s{sT0}, s{sDT2}, 1")
            a(f"s_cmp_lg_u32 s{sT0}, 0")
            a(f"s_cbranch_scc1 L_odd_{w}")
            finish_tiles(4)
            a("s_branch L_fin")
            a.label(f"L_odd_{w}")
            finish_tiles(0)
        else:
            finish_tiles(4)
        a("s_branch L_fin")
        if w < 3: a.label(f"L_ep2_{w+1}")
    a.label("L_fin")
    if opt.probe >= 0:
        if opt.probe == 14:
            a("s_waitcnt vmcnt(0)")
            stamp(a, opt, 14)
        a(f"s_cmp_lg_u32 s{sWG}, {opt.probewg}")
        a("s_cbranch_scc1 L_done")
        a(f"s_cmp_lg_u32 s{sWAVE}, {opt.probew}")
        a("s_cbranch_scc1 L_done")
        ref = sNONCE if opt.probeabs else (sPROF + 2 if opt.probe0 >= 0 else 96)
        a(f"s_sub_u32 s{sT1}, s{sPROF+1}, s{ref}")
        if opt.probecyc: a(f"s_lshr_b32 s{sT1}, s{sT1}, 2")
        else: a(f"s_lshl_b32 s{sT1}, s{sT1}, 2")
        a(f"s_add_u32 s{sT1}, s{sT1}, 4000")
        a.label("L_probe")
        a(f"s_memrealtime s[{sP}:{sP+1}]")
        a("s_waitcnt lgkmcnt(0)")
        a(f"s_sub_u32 s{sT0}, s{sP}, s96")
        a(f"s_cmp_lt_u32 s{sT0}, s{sT1}")
        a("s_cbranch_scc1 L_probe")
    if opt.pad:
        a.label("L_pad")
        a(f"s_memrealtime s[{sP}:{sP+1}]")
        a("s_waitcnt lgkmcnt(0)")
        a(f"s_sub_u32 s{sT0}, s{sP}, s96")
        a(f"s_cmp_lt_u32 s{sT0}, {opt.pad}")
        a("s_cbranch_scc1 L_pad")
    if opt.prof:
        a("s_waitcnt vmcnt(0)")
        stamp(a, opt, 14)
        make_srd(a, sX, 18, 65536, WS_PROF)
        a(f"s_lshl_b32 s{sT0}, s{sWG}, 2")
        a(f"s_add_u32 s{sT0}, s{sT0}, s{sWAVE}")
        a(f"s_lshl_b32 s{sT0}, s{sT0}, 6")
        a(f"v_mov_b32 v{vT}, s{sT0}")
        a("s_mov_b64 exec, 1")
        for i in range(15):
            a(f"v_mov_b32 v100, s{sPROF+i}")
            a(f"buffer_store_dword v100, v{vT}, {srd(sX)}, 0 offen offset:{4*i}")
            a("s_nop 1")
        a("s_waitcnt vmcnt(0)")
    a.label("L_done")
    a("s_endpgm")
    a.label("L_codeend")
    a.raw('.section .rodata,"a"')
    a.raw(".p2align 6")
    a.raw(f".amdhsa_kernel {KN}")
    for l in ["next_free_vgpr 512", "next_free_sgpr 102", "accum_offset 256", "group_segment_fixed_size 0",
              "kernarg_size 64", "user_sgpr_count 2", "user_sgpr_kernarg_segment_ptr 1",
              "system_sgpr_workgroup_id_x 1", "float_denorm_mode_32 3"]:
        a.raw(f"  .amdhsa_{l}")
    a.raw(".end_amdhsa_kernel")
    return "\n".join(a.L) + "\n"

def parse(argv=None):
    ap = argparse.ArgumentParser()
    ap.add_argument("-o", default="standalone__mixer_token_mlp__prompt.s")
    ap.add_argument("--prof", type=int, default=0)
    ap.add_argument("--rot", type=int, default=3)
    ap.add_argument("--spin", type=int, default=20000)
    ap.add_argument("--sleep", type=int, default=8)
    ap.add_argument("--depth", type=int, default=3)
    ap.add_argument("--lnprof", type=int, default=0)
    ap.add_argument("--hbits", default="sc1")
    ap.add_argument("--pfwait", type=int, default=1)
    ap.add_argument("--hold", type=int, default=0)
    ap.add_argument("--probe", type=int, default=-1)
    ap.add_argument("--probe0", type=int, default=-1)
    ap.add_argument("--probecyc", type=int, default=0)
    ap.add_argument("--probeabs", type=int, default=0)
    ap.add_argument("--probewg", type=int, default=100)
    ap.add_argument("--probew", type=int, default=2)
    ap.add_argument("--rot8", type=int, default=1)
    ap.add_argument("--cpf", type=int, default=1)
    ap.add_argument("--cpfw", type=int, default=3)
    ap.add_argument("--wide", type=int, default=1)
    ap.add_argument("--idlewait", type=int, default=0)
    ap.add_argument("--sleeph", type=int, default=4)
    ap.add_argument("--preh", type=int, default=0)
    ap.add_argument("--preg", type=int, default=0)
    ap.add_argument("--onepoll", type=int, default=3)
    ap.add_argument("--pollw", type=int, default=3)
    ap.add_argument("--nta", type=int, default=0)
    ap.add_argument("--rotg1", type=int, default=0)
    ap.add_argument("--rotg2", type=int, default=0)
    ap.add_argument("--npost", type=int, default=3)
    ap.add_argument("--xbar", type=int, default=1)
    ap.add_argument("--hold1", type=int, default=4)
    ap.add_argument("--hold2", type=int, default=1)
    ap.add_argument("--nmid", type=int, default=0)
    ap.add_argument("--gbits", default="sc1")
    ap.add_argument("--fbits", default="sc1")
    ap.add_argument("--abits", default="sc1")
    ap.add_argument("--unsafe", type=int, default=0)
    ap.add_argument("--epoll", type=int, default=12)
    ap.add_argument("--pipe", type=int, default=0)
    ap.add_argument("--gap", type=int, default=2)
    ap.add_argument("--gwg", type=int, default=1)
    ap.add_argument("--hline", type=int, default=16)
    ap.add_argument("--idle1", type=int, default=0)
    ap.add_argument("--idle1ft", type=int, default=13)
    ap.add_argument("--jitter", type=int, default=0)
    ap.add_argument("--flagfirst", type=int, default=0)
    ap.add_argument("--nb3", type=int, default=2)
    ap.add_argument("--pairx", type=int, default=1)
    ap.add_argument("--xpf", type=int, default=0)
    ap.add_argument("--fine", type=int, default=2)
    ap.add_argument("--dist", type=int, default=12)
    ap.add_argument("--align64", type=int, default=1)
    ap.add_argument("--obits1", default="sc0 sc1")
    ap.add_argument("--sfirst", type=int, default=0)
    ap.add_argument("--gsec", type=int, default=0)
    ap.add_argument("--dist2", type=int, default=12)
    ap.add_argument("--elate", type=int, default=0)
    ap.add_argument("--ptouch", type=int, default=0)
    ap.add_argument("--t13", type=int, default=1)
    ap.add_argument("--tt", type=int, default=2)
    ap.add_argument("--e2", type=int, default=0)
    ap.add_argument("--e3", type=int, default=0)
    ap.add_argument("--nb2", type=int, default=0)
    ap.add_argument("--e1", type=int, default=1)
    ap.add_argument("--nb", type=int, default=2)
    ap.add_argument("--nearly", type=int, default=2)
    ap.add_argument("--dpl", type=int, default=5)
    ap.add_argument("--dp", type=int, default=4)
    ap.add_argument("--p1", type=int, default=2)
    ap.add_argument("--p2", type=int, default=1)
    ap.add_argument("--rota1", type=int, default=0)
    ap.add_argument("--rota2", type=int, default=0)
    ap.add_argument("--xbits", default="nt")
    ap.add_argument("--w1bits", default="")
    ap.add_argument("--w2bits", default="")
    ap.add_argument("--pfbits", default="")
    ap.add_argument("--pfdepth", type=int, default=8)
    ap.add_argument("--prio", type=int, default=3)
    ap.add_argument("--delay", type=int, default=0)
    ap.add_argument("--hstride", type=int, default=8)
    ap.add_argument("--gstride", type=int, default=256)
    ap.add_argument("--pf", type=int, default=0)
    ap.add_argument("--pad", type=int, default=0)
    ap.add_argument("--obits", default="sc0 sc1")
    return ap.parse_args(argv)

if __name__ == "__main__":
    opt = parse()
    open(opt.o, "w").write(gen(opt))
```
